```python
import torch

def _softmax(x, axis=-1):
    return torch.softmax(x, dim=axis)
def _gelu(x):
    return torch.nn.functional.gelu(x, approximate="tanh")
def _silu(x):
    return torch.nn.functional.silu(x)
def _sigmoid(x):
    return torch.sigmoid(x)
def _layernorm(x, axis=-1, eps=1e-5):
    m = x.mean(dim=axis, keepdim=True)
    v = x.var(dim=axis, keepdim=True, unbiased=False)
    return (x - m) / torch.sqrt(v + eps)
def _scatter_add(tgt, idx, src, axis=0):
    return tgt.clone().index_add_(axis, idx, src)
def _segment_sum(src, seg, n):
    out = torch.zeros((n,) + src.shape[1:], dtype=src.dtype)
    return out.index_add_(0, seg, src)
def _pad(x, pw):
    flat = tuple(v for pair in reversed(pw) for v in pair)
    return torch.nn.functional.pad(x, flat)

kernel_name = 'parallel_sum__softmax_full_mha__glu_gated_glu__prompt'

def setup_inputs():

    _w = (lambda a: (lambda t: t.to(torch.bfloat16) if t.is_floating_point() else t)(torch.as_tensor(a)))
    def _A_setup():
        B, S, D = 1, 2048, 512
        return {
            "x": _w((lambda *s: torch.randn(*s, dtype=torch.bfloat16) * 0.05)(B, S, D)),
            "wqkv": _w((lambda *s: torch.randn(*s, dtype=torch.bfloat16) * 0.2)(D, 3 * D)),
            "wo": _w((lambda *s: torch.randn(*s, dtype=torch.bfloat16) * 0.1)(D, D)),
        }
    _A_in = _A_setup()

    def _B_setup():
        B, S, D, F = 1, 2048, 512, 1792
        return {
            "x": _w((lambda *s: torch.randn(*s, dtype=torch.bfloat16) * 0.05)(B, S, D)),
            "w_gate": _w((lambda *s: torch.randn(*s, dtype=torch.bfloat16) * 0.8)(D, F)),
            "w_up": _w((lambda *s: torch.randn(*s, dtype=torch.bfloat16) * 0.2)(D, F)),
            "w_down": _w((lambda *s: torch.randn(*s, dtype=torch.bfloat16) * 0.2)(F, D)),
        }
    _B_in = _B_setup()

    return {
        "A_x": _A_in["x"],
        "A_wqkv": _A_in["wqkv"],
        "A_wo": _A_in["wo"],
        "B_x": _B_in["x"],
        "B_w_gate": _B_in["w_gate"],
        "B_w_up": _B_in["w_up"],
        "B_w_down": _B_in["w_down"],
    }

def reference(A_x, A_wqkv, A_wo, B_x, B_w_gate, B_w_up, B_w_down):
    def _A_ref(x, wqkv, wo):
        B, S, D = x.shape
        H = 32; Dh = D // H
        qkv = (lambda x, *d: x.permute(*d))((x @ wqkv).reshape(B, S, 3, H, Dh), 2, 0, 3, 1, 4)
        q, k, v = qkv[0], qkv[1], qkv[2]
        scale = Dh ** -0.5
        scores = torch.einsum("bhqd,bhkd->bhqk", q, k) * scale
        p = _softmax(scores, axis=-1)
        o = torch.einsum("bhqk,bhkd->bhqd", p, v)
        return (lambda x, *d: x.permute(*d))(o, 0, 2, 1, 3).reshape(B, S, D) @ wo

    def _B_ref(x, w_gate, w_up, w_down):
        g = torch.einsum("bsd,df->bsf", x, w_gate)
        u = torch.einsum("bsd,df->bsf", x, w_up)
        h = _sigmoid(g) * u
        return torch.einsum("bsf,fd->bsd", h, w_down)

    x = A_x
    xn = _layernorm(x, axis=-1)
    return x + _A_ref(xn, A_wqkv, A_wo) + _B_ref(xn, B_w_gate, B_w_up, B_w_down)
```

```python
NAME = "parallel_sum__softmax_full_mha__glu_gated_glu__prompt"

def v(i, n=1):
    return f"v{i}" if n == 1 else f"v[{i}:{i+n-1}]"
def a(i, n=1):
    return f"a{i}" if n == 1 else f"a[{i}:{i+n-1}]"
def s(i, n=1):
    return f"s{i}" if n == 1 else f"s[{i}:{i+n-1}]"

class Kernel:
    def __init__(self, name, nvgpr=256, nsgpr=102, accum=None, wgid_y=False):
        self.name = name
        self.lines = []
        self.nvgpr = nvgpr
        self.nsgpr = nsgpr
        self.accum = accum
        self.wgid_y = wgid_y
        self._lab = 0
    def e(self, *txt):
        for t in txt:
            for l in t.split("\n"):
                l = l.strip()
                if l:
                    self.lines.append("    " + l)
    def c(self, txt):
        self.lines.append("    ; " + txt)
    def label(self, l):
        self.lines.append(l + ":")
    def newlabel(self, base):
        self._lab += 1
        return f"L_{self.name[:12]}_{base}_{self._lab}"
    def text(self):
        o = [f".globl {self.name}", ".p2align 8", f".type {self.name},@function", f"{self.name}:"]
        o += self.lines
        return "\n".join(o) + "\n"
    def desc(self):
        acc = self.accum if self.accum is not None else ((self.nvgpr + 3) // 4) * 4
        o = [".p2align 6", f".amdhsa_kernel {self.name}",
             f"  .amdhsa_next_free_vgpr {self.nvgpr}",
             f"  .amdhsa_next_free_sgpr {self.nsgpr}",
             f"  .amdhsa_accum_offset {acc}",
             "  .amdhsa_group_segment_fixed_size 0",
             "  .amdhsa_kernarg_size 80",
             "  .amdhsa_user_sgpr_count 2",
             "  .amdhsa_user_sgpr_kernarg_segment_ptr 1",
             "  .amdhsa_system_sgpr_workgroup_id_x 1"]
        if self.wgid_y:
            o.append("  .amdhsa_system_sgpr_workgroup_id_y 1")
        o += ["  .amdhsa_float_denorm_mode_32 3", "  .amdhsa_float_denorm_mode_16_64 3"] if getattr(self, "denorm", False) else []
        o.append(".end_amdhsa_kernel")
        return "\n".join(o) + "\n"

HEADER = """; Kernarg layout for this problem (80 bytes, ptrs only, base s[0:1]):
"""

def build_file(launches, kernels):
    o = HEADER
    for (k, g, b, lds) in launches:
        o += f"; @launch kernel={k} grid=({g[0]},{g[1]},{g[2]}) block=({b[0]},{b[1]},{b[2]}) lds={lds}\n"
    o += '.amdgcn_target "amdgcn-amd-amdhsa--gfx950"\n.text\n'
    for k in kernels:
        o += k.text()
        o += "\n"
    o += '.section .rodata,"a"\n'
    for k in kernels:
        o += k.desc()
    return o
```

```python
import sys
from agen import *

WS_XN = 0
WS_QKV = 0x200000
WS_H = 0x800000
WS_O = 0xF00000

def prologue(k, nwg):
    k.e(f"s_cmp_ge_u32 s2, {nwg}", "s_cbranch_scc1 L_end_" + k.name)

def epilogue(k):
    k.label("L_end_" + k.name)
    k.e("s_endpgm")

def round_bf16(k, r, tmp=None):
    k.e(f"v_cvt_pk_bf16_f32 v{r}, v{r}, v{r}", "s_nop 0", f"v_lshlrev_b32 v{r}, 16, v{r}")

def wave_reduce_add(k, r, tmp, idx, lane):
    for sh in (1, 2, 4, 8, 16, 32):
        k.e(f"v_xor_b32 v{idx}, {sh}, v{lane}", f"v_lshlrev_b32 v{idx}, 2, v{idx}",
            f"ds_bpermute_b32 v{tmp}, v{idx}, v{r}", "s_waitcnt lgkmcnt(0)", f"v_add_f32 v{r}, v{r}, v{tmp}")

def ln_kernel():
    k = Kernel("p_ln_kernel", nvgpr=64)
    prologue(k, 512)
    k.e("s_load_dwordx2 s[4:5], s[0:1], 0", "s_load_dwordx2 s[6:7], s[0:1], 72",
        "v_lshrrev_b32 v1, 6, v0", "v_and_b32 v2, 63, v0", "s_lshl_b32 s3, s2, 2", "v_add_u32 v1, s3, v1",
        "v_lshlrev_b32 v3, 10, v1", "v_lshl_add_u32 v3, v2, 4, v3", "s_waitcnt lgkmcnt(0)",
        "global_load_dwordx4 v[4:7], v3, s[4:5]", "s_waitcnt vmcnt(0)")
    for i in range(4):
        k.e(f"v_lshlrev_b32 v{8+2*i}, 16, v{4+i}", f"v_and_b32 v{9+2*i}, 0xffff0000, v{4+i}")
    k.e("v_mov_b32 v16, 0")
    for i in range(8):
        k.e(f"v_add_f32 v16, v16, v{8+i}")
    wave_reduce_add(k, 16, 17, 18, 2)
    k.e("v_mul_f32 v16, 0x3b000000, v16")
    k.e("v_mov_b32 v19, 0")
    for i in range(8):
        k.e(f"v_sub_f32 v20, v{8+i}, v16", "v_fmac_f32 v19, v20, v20")
    wave_reduce_add(k, 19, 17, 18, 2)
    k.e("v_mul_f32 v19, 0x3b000000, v19")
    round_bf16(k, 19)
    k.e("v_add_f32 v19, 0x3727c5ac, v19")
    round_bf16(k, 19)
    k.e("v_sqrt_f32 v19, v19", "s_nop 0")
    round_bf16(k, 19)
    k.e("v_rcp_f32 v19, v19", "s_nop 0")
    round_bf16(k, 16)
    for i in range(8):
        k.e(f"v_sub_f32 v{8+i}, v{8+i}, v16")
    for i in range(4):
        k.e(f"v_cvt_pk_bf16_f32 v{4+i}, v{8+2*i}, v{9+2*i}")
    for i in range(4):
        k.e(f"v_lshlrev_b32 v{8+2*i}, 16, v{4+i}", f"v_and_b32 v{9+2*i}, 0xffff0000, v{4+i}")
    for i in range(8):
        k.e(f"v_mul_f32 v{8+i}, v{8+i}, v19")
    for i in range(4):
        k.e(f"v_cvt_pk_bf16_f32 v{4+i}, v{8+2*i}, v{9+2*i}")
    k.e(f"s_add_u32 s6, s6, {WS_XN}", "s_addc_u32 s7, s7, 0")
    k.e("global_store_dwordx4 v3, v[4:7], s[6:7]", "s_waitcnt vmcnt(0)")
    epilogue(k)
    return k

def load_wT_frag(k, dst, voff, sbase, ldw):
    for j in range(8):
        off = j * ldw
        k.e(f"v_add_u32 v63, {off}, v{voff}")
        k.e(f"global_load_ushort v{112 + j}, v63, s[{sbase}:{sbase+1}]")
    k.e("s_waitcnt vmcnt(0)")
    for j in range(4):
        k.e(f"v_lshl_or_b32 v{dst+j}, v{113+2*j}, 16, v{112+2*j}")

def gemm_loop(k, accs, wbases, ldw, woff, xbase, ldx, xoff, K, tag):
    k.e(f"s_mov_b32 s20, {K//16}")
    L = f"L_{k.name}_{tag}"
    k.label(L)
    k.e(f"global_load_dwordx4 v[40:43], v{xoff}, s[{xbase}:{xbase+1}]")
    for i, wb in enumerate(wbases):
        load_wT_frag(k, 44 + 4*i, woff, wb, ldw)
    k.e("s_waitcnt vmcnt(0)", "s_nop 2")
    for i, ac in enumerate(accs):
        k.e(f"v_mfma_f32_32x32x16_bf16 v[{ac}:{ac+15}], v[{44+4*i}:{47+4*i}], v[40:43], v[{ac}:{ac+15}]")
    k.e(f"v_add_u32 v{xoff}, 32, v{xoff}", f"v_add_u32 v{woff}, {16*ldw}, v{woff}")
    k.e("s_sub_u32 s20, s20, 1", "s_cmp_lg_u32 s20, 0", f"s_cbranch_scc1 {L}")
    k.e("s_nop 15", "s_nop 15")

def lane_setup(k):
    k.e("v_and_b32 v1, 31, v0", "v_bfe_u32 v2, v0, 5, 1", "v_lshrrev_b32 v3, 6, v0", "s_nop 0",
        "v_readfirstlane_b32 s3, v3", "s_lshl_b32 s21, s2, 2", "s_nop 3", "s_add_u32 s3, s3, s21")

def qkv_kernel():
    k = Kernel("p_qkv_kernel", nvgpr=128)
    prologue(k, 768)
    k.e("s_load_dwordx2 s[4:5], s[0:1], 8", "s_load_dwordx2 s[6:7], s[0:1], 72")
    lane_setup(k)
    k.e("s_and_b32 s22, s3, 63", "s_lshr_b32 s23, s3, 6")
    k.e("s_waitcnt lgkmcnt(0)")
    k.e(f"s_add_u32 s8, s6, {WS_XN}", "s_addc_u32 s9, s7, 0", f"s_add_u32 s10, s6, {WS_QKV}", "s_addc_u32 s11, s7, 0")
    k.e("s_lshl_b32 s24, s22, 5", "v_add_u32 v4, s24, v1", "v_lshlrev_b32 v4, 10, v4", "v_lshl_add_u32 v4, v2, 4, v4")
    k.e("s_lshl_b32 s25, s23, 5", "v_add_u32 v5, s25, v1", "v_lshlrev_b32 v5, 1, v5",
        "v_mul_u32_u24 v6, 24576, v2", "v_add_u32 v5, v5, v6")
    for i in range(16): k.e(f"v_mov_b32 v{64+i}, 0")
    gemm_loop(k, [64], [4], 3072, 5, 8, 1024, 4, 512, "k")
    k.e("v_add_u32 v4, s24, v1", "v_mul_u32_u24 v4, 3072, v4", "s_lshl_b32 s26, s23, 6", "v_add_u32 v4, s26, v4",
        "v_lshl_add_u32 v4, v2, 3, v4")
    for j in range(4):
        k.e(f"v_cvt_pk_bf16_f32 v44, v{64+4*j}, v{65+4*j}", f"v_cvt_pk_bf16_f32 v45, v{66+4*j}, v{67+4*j}",
            f"global_store_dwordx2 v4, v[44:45], s[10:11] offset:{16*j}", "s_nop 1")
    k.e("s_waitcnt vmcnt(0)")
    epilogue(k)
    return k

def glu_kernel(mimic):
    k = Kernel("p_glu_kernel", nvgpr=128)
    prologue(k, 896)
    k.e("s_load_dwordx2 s[4:5], s[0:1], 32", "s_load_dwordx2 s[12:13], s[0:1], 40", "s_load_dwordx2 s[6:7], s[0:1], 72")
    lane_setup(k)
    k.e("s_and_b32 s22, s3, 63", "s_lshr_b32 s23, s3, 6")
    k.e("s_waitcnt lgkmcnt(0)")
    k.e(f"s_add_u32 s8, s6, {WS_XN}", "s_addc_u32 s9, s7, 0", f"s_add_u32 s10, s6, {WS_H}", "s_addc_u32 s11, s7, 0")
    k.e("s_lshl_b32 s24, s22, 5", "v_add_u32 v4, s24, v1", "v_lshlrev_b32 v4, 10, v4", "v_lshl_add_u32 v4, v2, 4, v4")
    k.e("s_lshl_b32 s25, s23, 5", "v_add_u32 v5, s25, v1", "v_lshlrev_b32 v5, 1, v5",
        f"v_mul_u32_u24 v6, {8*3584}, v2", "v_add_u32 v5, v5, v6")
    for i in range(32): k.e(f"v_mov_b32 v{64+i}, 0")
    gemm_loop(k, [64, 80], [4, 12], 3584, 5, 8, 1024, 4, 512, "k")
    for i in range(16):
        g, u = 64+i, 80+i
        if mimic:
            round_bf16(k, g); round_bf16(k, u)
        k.e(f"v_mul_f32 v{g}, 0xbfb8aa3b, v{g}", f"v_exp_f32 v{g}, v{g}", "s_nop 0", f"v_add_f32 v{g}, 1.0, v{g}",
            f"v_rcp_f32 v{g}, v{g}", "s_nop 0")
        if mimic:
            round_bf16(k, g)
        k.e(f"v_mul_f32 v{g}, v{g}, v{u}")
    k.e("v_add_u32 v4, s24, v1", "v_mul_u32_u24 v4, 3584, v4", "s_lshl_b32 s26, s23, 6", "v_add_u32 v4, s26, v4",
        "v_lshl_add_u32 v4, v2, 3, v4")
    for j in range(4):
        k.e(f"v_cvt_pk_bf16_f32 v44, v{64+4*j}, v{65+4*j}", f"v_cvt_pk_bf16_f32 v45, v{66+4*j}, v{67+4*j}",
            f"global_store_dwordx2 v4, v[44:45], s[10:11] offset:{16*j}", "s_nop 1")
    k.e("s_waitcnt vmcnt(0)")
    epilogue(k)
    return k

def attn_kernel(round_scores):
    k = Kernel("p_attn_kernel", nvgpr=128)
    prologue(k, 512)
    k.e("s_load_dwordx2 s[6:7], s[0:1], 72")
    lane_setup(k)
    k.e("s_and_b32 s22, s3, 63", "s_lshr_b32 s23, s3, 6")
    k.e("s_waitcnt lgkmcnt(0)")
    k.e(f"s_add_u32 s8, s6, {WS_QKV}", "s_addc_u32 s9, s7, 0", f"s_add_u32 s10, s6, {WS_O}", "s_addc_u32 s11, s7, 0")
    k.e("s_lshl_b32 s24, s22, 5", "v_add_u32 v4, s24, v1", "v_mul_u32_u24 v4, 3072, v4", "s_lshl_b32 s25, s23, 5",
        "v_add_u32 v4, s25, v4", "v_lshl_add_u32 v4, v2, 4, v4")
    k.e("global_load_dwordx4 v[8:11], v4, s[8:9]")
    k.e("v_mul_u32_u24 v5, 3072, v1", "v_add_u32 v5, s25, v5", "v_lshl_add_u32 v5, v2, 4, v5", "v_add_u32 v5, 1024, v5")
    k.e("v_mov_b32 v12, v5")
    k.e("v_mov_b32 v13, 0xff800000")
    for i in range(16): k.e(f"v_mov_b32 v{96+i}, 0")
    k.e("s_mov_b32 s20, 64")
    k.label("L_attn_p1")
    k.e("global_load_dwordx4 v[16:19], v12, s[8:9]", "s_waitcnt vmcnt(0)",
        "v_mfma_f32_32x32x16_bf16 v[64:79], v[16:19], v[8:11], v[96:111]", "s_nop 15", "s_nop 3")
    for i in range(16):
        if round_scores: round_bf16(k, 64+i)
        k.e(f"v_max_f32 v13, v13, v{64+i}")
    k.e(f"v_add_u32 v12, {32*3072}, v12", "s_sub_u32 s20, s20, 1", "s_cmp_lg_u32 s20, 0", "s_cbranch_scc1 L_attn_p1")
    k.e("v_and_b32 v14, 63, v0", "v_xor_b32 v14, 32, v14", "v_lshlrev_b32 v14, 2, v14", "ds_bpermute_b32 v15, v14, v13",
        "s_waitcnt lgkmcnt(0)", "v_max_f32 v13, v13, v15")
    k.e("s_mov_b32 s27, 0x3eb8aa3b", "v_mul_f32 v13, s27, v13", "v_sub_f32 v13, 0, v13")
    k.e("v_and_b32 v6, 15, v1", "v_lshlrev_b32 v6, 1, v6", "v_add_u32 v6, s25, v6", "v_add_u32 v6, 2048, v6",
        f"v_mul_u32_u24 v7, {4*3072}, v2", "v_add_u32 v6, v6, v7")
    k.e("v_cmp_lt_u32 s[28:29], 15, v1")
    k.e("v_mov_b32 v31, 0x3f803f80")
    for i in range(16): k.e(f"v_mov_b32 v{80+i}, 0")
    k.e("v_mov_b32 v12, v5", "s_mov_b32 s20, 64")
    k.label("L_attn_p2")
    k.e("global_load_dwordx4 v[16:19], v12, s[8:9]")
    for t in range(2):
        for j in range(8):
            key = 16*t + (j if j < 4 else 8 + j - 4)
            k.e(f"v_add_u32 v63, {key*3072}, v6", f"global_load_ushort v{112+j}, v63, s[8:9]")
        k.e("s_waitcnt vmcnt(0)")
        for j in range(4):
            k.e(f"v_lshl_or_b32 v{20+4*t+j}, v{113+2*j}, 16, v{112+2*j}")
    k.e("s_waitcnt vmcnt(0)")
    for i in range(8):
        k.e(f"v_cndmask_b32 v{20+i}, v{20+i}, v31, s[28:29]")
    k.e("s_nop 2")
    k.e("v_mfma_f32_32x32x16_bf16 v[64:79], v[16:19], v[8:11], v[96:111]", "s_nop 15", "s_nop 3")
    for i in range(16):
        if round_scores: round_bf16(k, 64+i)
        k.e(f"v_fma_f32 v{64+i}, v{64+i}, s27, v13", f"v_exp_f32 v{64+i}, v{64+i}")
    k.e("s_nop 1")
    for i in range(8):
        k.e(f"v_cvt_pk_bf16_f32 v{32+i}, v{64+2*i}, v{65+2*i}")
    k.e("s_nop 2")
    k.e("v_mfma_f32_32x32x16_bf16 v[80:95], v[20:23], v[32:35], v[80:95]",
        "v_mfma_f32_32x32x16_bf16 v[80:95], v[24:27], v[36:39], v[80:95]")
    k.e(f"v_add_u32 v12, {32*3072}, v12", f"v_add_u32 v6, {32*3072}, v6", "s_sub_u32 s20, s20, 1", "s_cmp_lg_u32 s20, 0", "s_cbranch_scc1 L_attn_p2")
    k.e("s_nop 15", "s_nop 15", "v_rcp_f32 v15, v88", "s_nop 0")
    for i in range(8): k.e(f"v_mul_f32 v{80+i}, v{80+i}, v15")
    k.e("v_add_u32 v4, s24, v1", "v_lshlrev_b32 v4, 10, v4", "v_add_u32 v4, s25, v4", "v_lshl_add_u32 v4, v2, 3, v4")
    for j in range(2):
        k.e(f"v_cvt_pk_bf16_f32 v44, v{80+4*j}, v{81+4*j}", f"v_cvt_pk_bf16_f32 v45, v{82+4*j}, v{83+4*j}",
            f"global_store_dwordx2 v4, v[44:45], s[10:11] offset:{16*j}", "s_nop 1")
    k.e("s_waitcnt vmcnt(0)")
    epilogue(k)
    return k

def out_kernel(mimic, noise=None):
    k = Kernel("p_out_kernel", nvgpr=128)
    prologue(k, 256)
    k.e("s_load_dwordx2 s[4:5], s[0:1], 48", "s_load_dwordx2 s[12:13], s[0:1], 16", "s_load_dwordx2 s[6:7], s[0:1], 72",
        "s_load_dwordx2 s[14:15], s[0:1], 0", "s_load_dwordx2 s[16:17], s[0:1], 56")
    lane_setup(k)
    k.e("s_and_b32 s22, s3, 63", "s_lshr_b32 s23, s3, 6")
    k.e("s_waitcnt lgkmcnt(0)")
    k.e(f"s_add_u32 s8, s6, {WS_H}", "s_addc_u32 s9, s7, 0", f"s_add_u32 s10, s6, {WS_O}", "s_addc_u32 s11, s7, 0")
    k.e("s_lshl_b32 s24, s22, 5", "s_lshl_b32 s25, s23, 5")
    for i in range(32): k.e(f"v_mov_b32 v{64+i}, 0")
    k.e("v_add_u32 v4, s24, v1", "v_mul_u32_u24 v4, 3584, v4", "v_lshl_add_u32 v4, v2, 4, v4")
    k.e("v_add_u32 v5, s25, v1", "v_lshlrev_b32 v5, 1, v5", f"v_mul_u32_u24 v6, {8*1024}, v2", "v_add_u32 v5, v5, v6")
    gemm_loop(k, [80], [4], 1024, 5, 8, 3584, 4, 1792, "k1")
    k.e("v_add_u32 v4, s24, v1", "v_lshlrev_b32 v4, 10, v4", "v_lshl_add_u32 v4, v2, 4, v4")
    k.e("v_add_u32 v5, s25, v1", "v_lshlrev_b32 v5, 1, v5", f"v_mul_u32_u24 v6, {8*1024}, v2", "v_add_u32 v5, v5, v6")
    gemm_loop(k, [64], [12], 1024, 5, 10, 1024, 4, 512, "k2")
    k.e("v_add_u32 v4, s24, v1", "v_lshlrev_b32 v4, 10, v4", "s_lshl_b32 s26, s23, 6", "v_add_u32 v4, s26, v4",
        "v_lshl_add_u32 v4, v2, 3, v4")
    for j in range(4):
        k.e(f"global_load_dwordx2 v[44:45], v4, s[14:15] offset:{16*j}", "s_waitcnt vmcnt(0)")
        k.e("v_lshlrev_b32 v46, 16, v44", "v_and_b32 v47, 0xffff0000, v44", "v_lshlrev_b32 v48, 16, v45", "v_and_b32 v49, 0xffff0000, v45")
        for i in range(4):
            A, B = 64+4*j+i, 80+4*j+i
            if mimic:
                round_bf16(k, A); round_bf16(k, B)
            k.e(f"v_add_f32 v{A}, v{A}, v{46+i}")
            if mimic: round_bf16(k, A)
            k.e(f"v_add_f32 v{A}, v{A}, v{B}")
            if noise is not None:
                pass
        k.e(f"v_cvt_pk_bf16_f32 v44, v{64+4*j}, v{65+4*j}", f"v_cvt_pk_bf16_f32 v45, v{66+4*j}, v{67+4*j}",
            f"global_store_dwordx2 v4, v[44:45], s[16:17] offset:{16*j}", "s_nop 1")
    k.e("s_waitcnt vmcnt(0)")
    epilogue(k)
    return k

def build(mimic_b, round_scores):
    ks = [ln_kernel(), qkv_kernel(), glu_kernel(mimic_b), attn_kernel(round_scores), out_kernel(mimic_b)]
    grids = [512, 768, 896, 512, 256]
    launches = [(k.name, (g,1,1), (256,1,1), 0) for k, g in zip(ks, grids)]
    return build_file(launches, ks)

if __name__ == "__main__":
    open("probe_a.s", "w").write(build(False, False))
    open("probe_b.s", "w").write(build(True, True))
```

```python
import sys
from agen import *

WS_XN = 0
WS_QKV = 0x200000
WS_H = 0x800000
WS_O = 0xF00000

def prologue(k, nwg):
    k.e(f"s_cmp_ge_u32 s2, {nwg}", "s_cbranch_scc1 L_end_" + k.name)

def epilogue(k):
    k.label("L_end_" + k.name)
    k.e("s_endpgm")

def round_bf16(k, r, tmp=None):
    k.e(f"v_cvt_pk_bf16_f32 v{r}, v{r}, v{r}", "s_nop 0", f"v_lshlrev_b32 v{r}, 16, v{r}")

def wave_reduce_add(k, r, tmp, idx, lane):
    for sh in (1, 2, 4, 8, 16, 32):
        k.e(f"v_xor_b32 v{idx}, {sh}, v{lane}", f"v_lshlrev_b32 v{idx}, 2, v{idx}",
            f"ds_bpermute_b32 v{tmp}, v{idx}, v{r}", "s_waitcnt lgkmcnt(0)", f"v_add_f32 v{r}, v{r}, v{tmp}")

def ln_kernel():
    k = Kernel("p_ln_kernel", nvgpr=64)
    prologue(k, 512)
    k.e("s_load_dwordx2 s[4:5], s[0:1], 0", "s_load_dwordx2 s[6:7], s[0:1], 72",
        "v_lshrrev_b32 v1, 6, v0", "v_and_b32 v2, 63, v0", "s_lshl_b32 s3, s2, 2", "v_add_u32 v1, s3, v1",
        "v_lshlrev_b32 v3, 10, v1", "v_lshl_add_u32 v3, v2, 4, v3", "s_waitcnt lgkmcnt(0)",
        "global_load_dwordx4 v[4:7], v3, s[4:5]", "s_waitcnt vmcnt(0)")
    for i in range(4):
        k.e(f"v_lshlrev_b32 v{8+2*i}, 16, v{4+i}", f"v_and_b32 v{9+2*i}, 0xffff0000, v{4+i}")
    k.e("v_mov_b32 v16, 0")
    for i in range(8):
        k.e(f"v_add_f32 v16, v16, v{8+i}")
    wave_reduce_add(k, 16, 17, 18, 2)
    k.e("v_mul_f32 v16, 0x3b000000, v16")
    k.e("v_mov_b32 v19, 0")
    for i in range(8):
        k.e(f"v_sub_f32 v20, v{8+i}, v16", "v_fmac_f32 v19, v20, v20")
    wave_reduce_add(k, 19, 17, 18, 2)
    k.e("v_mul_f32 v19, 0x3b000000, v19")
    round_bf16(k, 19)
    k.e("v_add_f32 v19, 0x3727c5ac, v19")
    round_bf16(k, 19)
    k.e("v_sqrt_f32 v19, v19", "s_nop 0")
    round_bf16(k, 19)
    k.e("v_rcp_f32 v19, v19", "s_nop 0")
    round_bf16(k, 16)
    for i in range(8):
        k.e(f"v_sub_f32 v{8+i}, v{8+i}, v16")
    for i in range(4):
        k.e(f"v_cvt_pk_bf16_f32 v{4+i}, v{8+2*i}, v{9+2*i}")
    for i in range(4):
        k.e(f"v_lshlrev_b32 v{8+2*i}, 16, v{4+i}", f"v_and_b32 v{9+2*i}, 0xffff0000, v{4+i}")
    for i in range(8):
        k.e(f"v_mul_f32 v{8+i}, v{8+i}, v19")
    for i in range(4):
        k.e(f"v_cvt_pk_bf16_f32 v{4+i}, v{8+2*i}, v{9+2*i}")
    k.e(f"s_add_u32 s6, s6, {WS_XN}", "s_addc_u32 s7, s7, 0")
    k.e("global_store_dwordx4 v3, v[4:7], s[6:7]", "s_waitcnt vmcnt(0)")
    epilogue(k)
    return k

def load_wT_frag(k, dst, voff, sbase, ldw):
    for j in range(8):
        off = j * ldw
        k.e(f"v_add_u32 v63, {off}, v{voff}")
        k.e(f"global_load_ushort v{112 + j}, v63, s[{sbase}:{sbase+1}]")
    k.e("s_waitcnt vmcnt(0)")
    for j in range(4):
        k.e(f"v_lshl_or_b32 v{dst+j}, v{113+2*j}, 16, v{112+2*j}")

def gemm_loop(k, accs, wbases, ldw, woff, xbase, ldx, xoff, K, tag):
    k.e(f"s_mov_b32 s20, {K//16}")
    L = f"L_{k.name}_{tag}"
    k.label(L)
    k.e(f"global_load_dwordx4 v[40:43], v{xoff}, s[{xbase}:{xbase+1}]")
    for i, wb in enumerate(wbases):
        load_wT_frag(k, 44 + 4*i, woff, wb, ldw)
    k.e("s_waitcnt vmcnt(0)", "s_nop 2")
    for i, ac in enumerate(accs):
        k.e(f"v_mfma_f32_32x32x16_bf16 v[{ac}:{ac+15}], v[{44+4*i}:{47+4*i}], v[40:43], v[{ac}:{ac+15}]")
    k.e(f"v_add_u32 v{xoff}, 32, v{xoff}", f"v_add_u32 v{woff}, {16*ldw}, v{woff}")
    k.e("s_sub_u32 s20, s20, 1", "s_cmp_lg_u32 s20, 0", f"s_cbranch_scc1 {L}")
    k.e("s_nop 15", "s_nop 15")

def lane_setup(k):
    k.e("v_and_b32 v1, 31, v0", "v_bfe_u32 v2, v0, 5, 1", "v_lshrrev_b32 v3, 6, v0", "s_nop 0",
        "v_readfirstlane_b32 s3, v3", "s_lshl_b32 s21, s2, 2", "s_nop 3", "s_add_u32 s3, s3, s21")

def qkv_kernel():
    k = Kernel("p_qkv_kernel", nvgpr=128)
    prologue(k, 768)
    k.e("s_load_dwordx2 s[4:5], s[0:1], 8", "s_load_dwordx2 s[6:7], s[0:1], 72")
    lane_setup(k)
    k.e("s_and_b32 s22, s3, 63", "s_lshr_b32 s23, s3, 6")
    k.e("s_waitcnt lgkmcnt(0)")
    k.e(f"s_add_u32 s8, s6, {WS_XN}", "s_addc_u32 s9, s7, 0", f"s_add_u32 s10, s6, {WS_QKV}", "s_addc_u32 s11, s7, 0")
    k.e("s_lshl_b32 s24, s22, 5", "v_add_u32 v4, s24, v1", "v_lshlrev_b32 v4, 10, v4", "v_lshl_add_u32 v4, v2, 4, v4")
    k.e("s_lshl_b32 s25, s23, 5", "v_add_u32 v5, s25, v1", "v_lshlrev_b32 v5, 1, v5",
        "v_mul_u32_u24 v6, 24576, v2", "v_add_u32 v5, v5, v6")
    for i in range(16): k.e(f"v_mov_b32 v{64+i}, 0")
    gemm_loop(k, [64], [4], 3072, 5, 8, 1024, 4, 512, "k")
    k.e("v_add_u32 v4, s24, v1", "v_mul_u32_u24 v4, 3072, v4", "s_lshl_b32 s26, s23, 6", "v_add_u32 v4, s26, v4",
        "v_lshl_add_u32 v4, v2, 3, v4")
    for j in range(4):
        k.e(f"v_cvt_pk_bf16_f32 v44, v{64+4*j}, v{65+4*j}", f"v_cvt_pk_bf16_f32 v45, v{66+4*j}, v{67+4*j}",
            f"global_store_dwordx2 v4, v[44:45], s[10:11] offset:{16*j}", "s_nop 1")
    k.e("s_waitcnt vmcnt(0)")
    epilogue(k)
    return k

def glu_kernel(mimic):
    k = Kernel("p_glu_kernel", nvgpr=128)
    prologue(k, 896)
    k.e("s_load_dwordx2 s[4:5], s[0:1], 32", "s_load_dwordx2 s[12:13], s[0:1], 40", "s_load_dwordx2 s[6:7], s[0:1], 72")
    lane_setup(k)
    k.e("s_and_b32 s22, s3, 63", "s_lshr_b32 s23, s3, 6")
    k.e("s_waitcnt lgkmcnt(0)")
    k.e(f"s_add_u32 s8, s6, {WS_XN}", "s_addc_u32 s9, s7, 0", f"s_add_u32 s10, s6, {WS_H}", "s_addc_u32 s11, s7, 0")
    k.e("s_lshl_b32 s24, s22, 5", "v_add_u32 v4, s24, v1", "v_lshlrev_b32 v4, 10, v4", "v_lshl_add_u32 v4, v2, 4, v4")
    k.e("s_lshl_b32 s25, s23, 5", "v_add_u32 v5, s25, v1", "v_lshlrev_b32 v5, 1, v5",
        f"v_mul_u32_u24 v6, {8*3584}, v2", "v_add_u32 v5, v5, v6")
    for i in range(32): k.e(f"v_mov_b32 v{64+i}, 0")
    gemm_loop(k, [64, 80], [4, 12], 3584, 5, 8, 1024, 4, 512, "k")
    for i in range(16):
        g, u = 64+i, 80+i
        if mimic:
            round_bf16(k, g); round_bf16(k, u)
        k.e(f"v_mul_f32 v{g}, 0xbfb8aa3b, v{g}", f"v_exp_f32 v{g}, v{g}", "s_nop 0", f"v_add_f32 v{g}, 1.0, v{g}",
            f"v_rcp_f32 v{g}, v{g}", "s_nop 0")
        if mimic:
            round_bf16(k, g)
        k.e(f"v_mul_f32 v{g}, v{g}, v{u}")
    k.e("v_add_u32 v4, s24, v1", "v_mul_u32_u24 v4, 3584, v4", "s_lshl_b32 s26, s23, 6", "v_add_u32 v4, s26, v4",
        "v_lshl_add_u32 v4, v2, 3, v4")
    for j in range(4):
        k.e(f"v_cvt_pk_bf16_f32 v44, v{64+4*j}, v{65+4*j}", f"v_cvt_pk_bf16_f32 v45, v{66+4*j}, v{67+4*j}",
            f"global_store_dwordx2 v4, v[44:45], s[10:11] offset:{16*j}", "s_nop 1")
    k.e("s_waitcnt vmcnt(0)")
    epilogue(k)
    return k

def attn_kernel(round_scores):
    k = Kernel("p_attn_kernel", nvgpr=128)
    prologue(k, 512)
    k.e("s_load_dwordx2 s[6:7], s[0:1], 72")
    lane_setup(k)
    k.e("s_and_b32 s22, s3, 63", "s_lshr_b32 s23, s3, 6")
    k.e("s_waitcnt lgkmcnt(0)")
    k.e(f"s_add_u32 s8, s6, {WS_QKV}", "s_addc_u32 s9, s7, 0", f"s_add_u32 s10, s6, {WS_O}", "s_addc_u32 s11, s7, 0")
    k.e("s_lshl_b32 s24, s22, 5", "v_add_u32 v4, s24, v1", "v_mul_u32_u24 v4, 3072, v4", "s_lshl_b32 s25, s23, 5",
        "v_add_u32 v4, s25, v4", "v_lshl_add_u32 v4, v2, 4, v4")
    k.e("global_load_dwordx4 v[8:11], v4, s[8:9]")
    k.e("v_mul_u32_u24 v5, 3072, v1", "v_add_u32 v5, s25, v5", "v_lshl_add_u32 v5, v2, 4, v5", "v_add_u32 v5, 1024, v5")
    k.e("v_mov_b32 v12, v5")
    k.e("v_mov_b32 v13, 0xff800000")
    for i in range(16): k.e(f"v_mov_b32 v{96+i}, 0")
    k.e("s_mov_b32 s20, 64")
    k.label("L_attn_p1")
    k.e("global_load_dwordx4 v[16:19], v12, s[8:9]", "s_waitcnt vmcnt(0)",
        "v_mfma_f32_32x32x16_bf16 v[64:79], v[16:19], v[8:11], v[96:111]", "s_nop 15", "s_nop 3")
    for i in range(16):
        if round_scores: round_bf16(k, 64+i)
        k.e(f"v_max_f32 v13, v13, v{64+i}")
    k.e(f"v_add_u32 v12, {32*3072}, v12", "s_sub_u32 s20, s20, 1", "s_cmp_lg_u32 s20, 0", "s_cbranch_scc1 L_attn_p1")
    k.e("v_and_b32 v14, 63, v0", "v_xor_b32 v14, 32, v14", "v_lshlrev_b32 v14, 2, v14", "ds_bpermute_b32 v15, v14, v13",
        "s_waitcnt lgkmcnt(0)", "v_max_f32 v13, v13, v15")
    k.e("s_mov_b32 s27, 0x3eb8aa3b", "v_mul_f32 v13, s27, v13", "v_sub_f32 v13, 0, v13")
    k.e("v_and_b32 v6, 15, v1", "v_lshlrev_b32 v6, 1, v6", "v_add_u32 v6, s25, v6", "v_add_u32 v6, 2048, v6",
        f"v_mul_u32_u24 v7, {4*3072}, v2", "v_add_u32 v6, v6, v7")
    k.e("v_cmp_lt_u32 s[28:29], 15, v1")
    k.e("v_mov_b32 v31, 0x3f803f80")
    for i in range(16): k.e(f"v_mov_b32 v{80+i}, 0")
    k.e("v_mov_b32 v12, v5", "s_mov_b32 s20, 64")
    k.label("L_attn_p2")
    k.e("global_load_dwordx4 v[16:19], v12, s[8:9]")
    for t in range(2):
        for j in range(8):
            key = 16*t + (j if j < 4 else 8 + j - 4)
            k.e(f"v_add_u32 v63, {key*3072}, v6", f"global_load_ushort v{112+j}, v63, s[8:9]")
        k.e("s_waitcnt vmcnt(0)")
        for j in range(4):
            k.e(f"v_lshl_or_b32 v{20+4*t+j}, v{113+2*j}, 16, v{112+2*j}")
    k.e("s_waitcnt vmcnt(0)")
    for i in range(8):
        k.e(f"v_cndmask_b32 v{20+i}, v{20+i}, v31, s[28:29]")
    k.e("s_nop 2")
    k.e("v_mfma_f32_32x32x16_bf16 v[64:79], v[16:19], v[8:11], v[96:111]", "s_nop 15", "s_nop 3")
    for i in range(16):
        if round_scores: round_bf16(k, 64+i)
        k.e(f"v_fma_f32 v{64+i}, v{64+i}, s27, v13", f"v_exp_f32 v{64+i}, v{64+i}")
    k.e("s_nop 1")
    for i in range(8):
        k.e(f"v_cvt_pk_bf16_f32 v{32+i}, v{64+2*i}, v{65+2*i}")
    k.e("s_nop 2")
    k.e("v_mfma_f32_32x32x16_bf16 v[80:95], v[20:23], v[32:35], v[80:95]",
        "v_mfma_f32_32x32x16_bf16 v[80:95], v[24:27], v[36:39], v[80:95]")
    k.e(f"v_add_u32 v12, {32*3072}, v12", f"v_add_u32 v6, {32*3072}, v6", "s_sub_u32 s20, s20, 1", "s_cmp_lg_u32 s20, 0", "s_cbranch_scc1 L_attn_p2")
    k.e("s_nop 15", "s_nop 15", "v_rcp_f32 v15, v88", "s_nop 0")
    for i in range(8): k.e(f"v_mul_f32 v{80+i}, v{80+i}, v15")
    k.e("v_add_u32 v4, s24, v1", "v_lshlrev_b32 v4, 10, v4", "v_add_u32 v4, s25, v4", "v_lshl_add_u32 v4, v2, 3, v4")
    for j in range(2):
        k.e(f"v_cvt_pk_bf16_f32 v44, v{80+4*j}, v{81+4*j}", f"v_cvt_pk_bf16_f32 v45, v{82+4*j}, v{83+4*j}",
            f"global_store_dwordx2 v4, v[44:45], s[10:11] offset:{16*j}", "s_nop 1")
    k.e("s_waitcnt vmcnt(0)")
    epilogue(k)
    return k

def out_kernel(mimic, noise=None):
    k = Kernel("p_out_kernel", nvgpr=128)
    prologue(k, 256)
    k.e("s_load_dwordx2 s[4:5], s[0:1], 48", "s_load_dwordx2 s[12:13], s[0:1], 16", "s_load_dwordx2 s[6:7], s[0:1], 72",
        "s_load_dwordx2 s[14:15], s[0:1], 0", "s_load_dwordx2 s[16:17], s[0:1], 56")
    lane_setup(k)
    k.e("s_and_b32 s22, s3, 63", "s_lshr_b32 s23, s3, 6")
    k.e("s_waitcnt lgkmcnt(0)")
    k.e(f"s_add_u32 s8, s6, {WS_H}", "s_addc_u32 s9, s7, 0", f"s_add_u32 s10, s6, {WS_O}", "s_addc_u32 s11, s7, 0")
    k.e("s_lshl_b32 s24, s22, 5", "s_lshl_b32 s25, s23, 5")
    for i in range(32): k.e(f"v_mov_b32 v{64+i}, 0")
    k.e("v_add_u32 v4, s24, v1", "v_mul_u32_u24 v4, 3584, v4", "v_lshl_add_u32 v4, v2, 4, v4")
    k.e("v_add_u32 v5, s25, v1", "v_lshlrev_b32 v5, 1, v5", f"v_mul_u32_u24 v6, {8*1024}, v2", "v_add_u32 v5, v5, v6")
    gemm_loop(k, [80], [4], 1024, 5, 8, 3584, 4, 1792, "k1")
    k.e("v_add_u32 v4, s24, v1", "v_lshlrev_b32 v4, 10, v4", "v_lshl_add_u32 v4, v2, 4, v4")
    k.e("v_add_u32 v5, s25, v1", "v_lshlrev_b32 v5, 1, v5", f"v_mul_u32_u24 v6, {8*1024}, v2", "v_add_u32 v5, v5, v6")
    gemm_loop(k, [64], [12], 1024, 5, 10, 1024, 4, 512, "k2")
    k.e("v_add_u32 v4, s24, v1", "v_lshlrev_b32 v4, 10, v4", "s_lshl_b32 s26, s23, 6", "v_add_u32 v4, s26, v4",
        "v_lshl_add_u32 v4, v2, 3, v4")
    for j in range(4):
        k.e(f"global_load_dwordx2 v[44:45], v4, s[14:15] offset:{16*j}", "s_waitcnt vmcnt(0)")
        k.e("v_lshlrev_b32 v46, 16, v44", "v_and_b32 v47, 0xffff0000, v44", "v_lshlrev_b32 v48, 16, v45", "v_and_b32 v49, 0xffff0000, v45")
        for i in range(4):
            A, B = 64+4*j+i, 80+4*j+i
            if mimic:
                round_bf16(k, A); round_bf16(k, B)
            k.e(f"v_add_f32 v{A}, v{A}, v{46+i}")
            if mimic: round_bf16(k, A)
            k.e(f"v_add_f32 v{A}, v{A}, v{B}")
            if noise is not None and noise[0] == "spike" and j == 0 and i == 0:
                import struct
                bits = struct.unpack("<I", struct.pack("<f", noise[1]))[0]
                k.e("v_cmp_eq_u32 vcc, 0, v0", "s_cmp_eq_u32 s2, 0", "s_cselect_b64 vcc, vcc, 0", f"v_mov_b32 v50, 0x{bits:08x}", "s_nop 4",
                    "v_cndmask_b32 v50, 0, v50, vcc", f"v_add_f32 v{A}, v{A}, v50")
            if noise is not None and noise[0] == "all":
                import struct
                bits = struct.unpack("<I", struct.pack("<f", noise[1]))[0]
                if i % 2 == 0: k.e(f"v_add_f32 v{A}, 0x{bits:08x}, v{A}")
                else: k.e(f"v_subrev_f32 v{A}, 0x{bits:08x}, v{A}")
        k.e(f"v_cvt_pk_bf16_f32 v44, v{64+4*j}, v{65+4*j}", f"v_cvt_pk_bf16_f32 v45, v{66+4*j}, v{67+4*j}",
            f"global_store_dwordx2 v4, v[44:45], s[16:17] offset:{16*j}", "s_nop 1")
    k.e("s_waitcnt vmcnt(0)")
    epilogue(k)
    return k

def build(mimic_b, round_scores, noise=None):
    ks = [ln_kernel(), qkv_kernel(), glu_kernel(mimic_b), attn_kernel(round_scores), out_kernel(mimic_b, noise)]
    grids = [512, 768, 896, 512, 256]
    launches = [(k.name, (g,1,1), (256,1,1), 0) for k, g in zip(ks, grids)]
    return build_file(launches, ks)

if __name__ == "__main__":
    open("probe_a.s", "w").write(build(False, False))
    open("probe_b.s", "w").write(build(True, True))
    for E in (2.5, 3, 4, 6, 8, 16, 32, 64):
        open(f"probe_s{E}.s", "w").write(build(True, True, ("spike", E)))
    for E in (0.25, 0.5, 1, 1.5, 2, 3):
        open(f"probe_n{E}.s", "w").write(build(True, True, ("all", E)))
```

```python
from probe import *
def empty_kernel():
    k = Kernel("p_empty_kernel", nvgpr=32)
    k.e("s_endpgm")
    return k
def build2(nempty, grid=256):
    ks = [ln_kernel(), qkv_kernel(), glu_kernel(False), attn_kernel(False), out_kernel(False), empty_kernel()]
    grids = [512, 768, 896, 512, 256]
    launches = [(k.name, (g,1,1), (256,1,1), 0) for k, g in zip(ks, grids)]
    launches += [("p_empty_kernel", (grid,1,1), (256,1,1), 0)] * nempty
    return build_file(launches, ks)
open("probe_e0.s","w").write(build2(0).replace("", ""))
open("probe_e20.s","w").write(build2(20))
open("probe_e40.s","w").write(build2(40))
```

```python
import sys
sys.path.insert(0, "gen")
from agen import *
import probe

def code_kernel(name, n_instr, loop, nwg=256, width=4):
    k = Kernel(name, nvgpr=32)
    k.e(f"s_cmp_ge_u32 s2, {nwg}", f"s_cbranch_scc1 L_end_{name}")
    k.e("v_mov_b32 v1, 0", "v_mov_b32 v2, 0", "s_mov_b32 s4, 0x12345")
    ins = "v_add_u32 v1, v0, v1" if width == 4 else "v_add_u32 v1, 0x12345, v1"
    if loop:
        body = 64
        k.e(f"s_mov_b32 s20, {n_instr // body}")
        k.label(f"L_loop_{name}")
        for i in range(body): k.e(ins)
        k.e("s_sub_u32 s20, s20, 1", "s_cmp_lg_u32 s20, 0", f"s_cbranch_scc1 L_loop_{name}")
    else:
        for i in range(n_instr): k.e(ins)
    k.label(f"L_end_{name}")
    k.e("s_endpgm")
    return k

def build(extra):
    ks = [probe.ln_kernel(), probe.qkv_kernel(), probe.glu_kernel(False), probe.attn_kernel(False), probe.out_kernel(False, None)]
    grids = [512, 768, 896, 512, 256]
    launches = [(k.name, (g,1,1), (256,1,1), 0) for k, g in zip(ks, grids)]
    for (k, g) in extra:
        ks.append(k); launches.append((k.name, (g,1,1), (256,1,1), 0))
    return build_file(launches, ks)

open("ic_base.s", "w").write(build([(code_kernel("c0_kernel", 64, True), 256)]))
open("ic_loop8k.s", "w").write(build([(code_kernel("c1_kernel", 8192, True), 256)]))
open("ic_line8k.s", "w").write(build([(code_kernel("c2_kernel", 8192, False), 256)]))
open("ic_line8k_w8.s", "w").write(build([(code_kernel("c3_kernel", 8192, False, width=8), 256)]))
open("ic_loop8k_w8.s", "w").write(build([(code_kernel("c4_kernel", 8192, True, width=8), 256)]))
```

```python
import sys
sys.path.insert(0, "gen")
from agen import *
import probe

def clk_kernel(name, dep=True, nwg=256):
    k = Kernel(name, nvgpr=32)
    k.e(f"s_cmp_ge_u32 s2, {nwg}", f"s_cbranch_scc1 L_end_{name}")
    k.e("s_load_dwordx2 s[6:7], s[0:1], 64")
    for i in range(1, 9): k.e(f"v_mov_b32 v{i}, 0")
    k.e("s_waitcnt lgkmcnt(0)")
    k.e("s_memtime s[8:9]", "s_memrealtime s[10:11]", "s_waitcnt lgkmcnt(0)")
    k.e(f"s_mov_b32 s20, 128")
    k.label(f"L_loop_{name}")
    for i in range(64):
        r = 1 if dep else 1 + (i % 8)
        k.e(f"v_add_u32 v{r}, v0, v{r}")
    k.e("s_sub_u32 s20, s20, 1", "s_cmp_lg_u32 s20, 0", f"s_cbranch_scc1 L_loop_{name}")
    k.e("s_memtime s[12:13]", "s_memrealtime s[14:15]", "s_waitcnt lgkmcnt(0)")
    k.e("s_sub_u32 s12, s12, s8", "s_sub_u32 s14, s14, s10")
    k.e("s_cmp_lg_u32 s2, 0", f"s_cbranch_scc1 L_end_{name}")
    k.e("v_mov_b32 v10, s12", "v_mov_b32 v11, s14", "v_mov_b32 v12, 0", "v_cmp_eq_u32 vcc, 0, v0", "s_and_saveexec_b64 s[16:17], vcc",
        "global_store_dwordx2 v12, v[10:11], s[6:7]", "s_waitcnt vmcnt(0)")
    k.label(f"L_end_{name}")
    k.e("s_endpgm")
    return k

def build(pre):
    ks = [probe.ln_kernel(), probe.qkv_kernel(), probe.glu_kernel(False), probe.attn_kernel(False), probe.out_kernel(False, None)]
    grids = [512, 768, 896, 512, 256]
    launches = [(k.name, (g,1,1), (256,1,1), 0) for k, g in zip(ks, grids)]
    for (k, g) in pre:
        ks.append(k); launches.insert(0, (k.name, (g,1,1), (256,1,1), 0))
    return build_file(launches, ks)

open("clk_dep.s", "w").write(build([(clk_kernel("k0_kernel", True), 256)]))
open("clk_ind.s", "w").write(build([(clk_kernel("k1_kernel", False), 256)]))
```

```python
from agen import *

WS_TOK = 0x000000
WS_COL = 0x010000
WS_QF  = 0x100000
WS_KF  = 0x300000
WS_VF  = 0x500000
WS_HF  = 0x700000
WS_OF  = 0xE00000
WS_SIZE = 0x1000000
LOG2E = 1.4426950408889634

import struct
def f2u(x): return struct.unpack("<I", struct.pack("<f", x))[0]

class KV(Kernel):
    def __init__(self, *a, **kw):
        super().__init__(*a, **kw)
        self.vm = []
        self.lg = []
    def vmem(self, txt, tag=None):
        self.e(txt); self.vm.append(tag)
    def wait_vm(self, *tags):
        idx = [i for i, t in enumerate(self.vm) if t in tags]
        if not idx: return
        last = max(idx)
        n = len(self.vm) - 1 - last
        assert n <= 63
        self.e(f"s_waitcnt vmcnt({n})")
        self.vm = self.vm[last + 1:]
    def wait_vm_all(self):
        self.e("s_waitcnt vmcnt(0)"); self.vm = []
    def ds(self, txt, tag=None):
        self.e(txt); self.lg.append(tag)
    def wait_lg(self, *tags):
        idx = [i for i, t in enumerate(self.lg) if t in tags]
        if not idx: return
        last = max(idx)
        n = min(15, len(self.lg) - 1 - last)
        self.e(f"s_waitcnt lgkmcnt({n})")
        self.lg = self.lg[len(self.lg) - n:] if n else []
    def wait_lg_all(self):
        if self.lg:
            self.e("s_waitcnt lgkmcnt(0)")
        self.lg = []

def srd(k, d, karg_off, nbytes):
    k.e(f"s_load_dwordx2 s[{d}:{d+1}], s[0:1], {karg_off}")
    return [f"s_mov_b32 s{d+2}, 0x{nbytes:x}", f"s_mov_b32 s{d+3}, 0x00020000"]

SZ_X = 2048*512*2; SZ_WQKV = 512*1536*2; SZ_WO = 512*512*2; SZ_WG = 512*1792*2; SZ_WD = 1792*512*2

def allreduce(k, regs, tmps):
    n = len(regs)
    pad = max(0, 2 - (n - 1))
    for mode in ("quad_perm:[1,0,3,2]", "quad_perm:[2,3,0,1]", "row_half_mirror", "row_mirror"):
        for r in regs:
            k.e(f"v_add_f32_dpp v{r}, v{r}, v{r} {mode} row_mask:0xf bank_mask:0xf")
        if pad: k.e(f"s_nop {pad-1}")
    for sw in ("v_permlane16_swap_b32", "v_permlane32_swap_b32"):
        for r, t in zip(regs, tmps): k.e(f"v_mov_b32 v{t}, v{r}")
        k.e("s_nop 1")
        for r, t in zip(regs, tmps): k.e(f"{sw} v{r}, v{t}")
        k.e("s_nop 1")
        for r, t in zip(regs, tmps): k.e(f"v_add_f32 v{r}, v{r}, v{t}")
    k.e("s_nop 1")

def row_job(k, s_job, srd_x, srd_ws, sc1=""):
    k.e("v_and_b32 v1, 63, v0", "v_lshrrev_b32 v2, 6, v0", f"s_lshl_b32 s40, s{s_job}, 14",
        "v_lshlrev_b32 v3, 12, v2", "v_lshl_add_u32 v3, v1, 4, v3", "v_add_u32 v3, s40, v3")
    for j in range(4):
        k.vmem(f"buffer_load_dwordx4 v[{4+4*j}:{7+4*j}], v3, s[{srd_x}:{srd_x+3}], 0 offen offset:{1024*j}", "rj")
    k.e("v_bfe_u32 v72, v1, 1, 2", "v_cmp_eq_u32 s[42:43], 1, v72", "v_cmp_eq_u32 s[44:45], 2, v72", "v_cmp_eq_u32 s[46:47], 3, v72")
    k.wait_vm("rj")
    for j in range(4):
        for i in range(4):
            k.e(f"v_lshlrev_b32 v{32+8*j+2*i}, 16, v{4+4*j+i}", f"v_and_b32 v{33+8*j+2*i}, 0xffff0000, v{4+4*j+i}")
    for j in range(4):
        b = 32 + 8*j
        k.e(f"v_add_f32 v{20+j}, v{b}, v{b+1}")
    for i in range(2, 8):
        for j in range(4):
            k.e(f"v_add_f32 v{20+j}, v{20+j}, v{32+8*j+i}")
    allreduce(k, [20, 21, 22, 23], [24, 25, 26, 27])
    for j in range(4): k.e(f"v_mul_f32 v{20+j}, 0x3b000000, v{20+j}")
    for i in range(8):
        for j in range(4): k.e(f"v_sub_f32 v{32+8*j+i}, v{32+8*j+i}, v{20+j}")
    for j in range(4): k.e(f"v_mul_f32 v{28+j}, v{32+8*j}, v{32+8*j}")
    for i in range(1, 8):
        for j in range(4): k.e(f"v_fmac_f32 v{28+j}, v{32+8*j+i}, v{32+8*j+i}")
    allreduce(k, [28, 29, 30, 31], [24, 25, 26, 27])
    k.e("v_cndmask_b32 v64, v20, v21, s[42:43]", "v_cndmask_b32 v65, v28, v29, s[42:43]",
        "v_cndmask_b32 v64, v64, v22, s[44:45]", "v_cndmask_b32 v65, v65, v30, s[44:45]",
        "v_cndmask_b32 v64, v64, v23, s[46:47]", "v_cndmask_b32 v65, v65, v31, s[46:47]")
    k.e("v_mov_b32 v66, 0x3727c5ac", "v_fmac_f32 v66, 0x3b000000, v65",
        "v_rsq_f32 v67, v66", "v_sub_f32 v64, 0, v64",
        "v_mul_f32 v68, v66, v67",
        "v_cvt_pk_bf16_f32 v69, v64, v64", "s_nop 0", "v_and_b32 v69, 0xffff0000, v69", "v_sub_f32 v70, v64, v69",
        "v_cvt_pk_bf16_f32 v69, v70, v70", "s_nop 0", "v_and_b32 v69, 0xffff0000, v69", "v_sub_f32 v71, v70, v69",
        "v_cvt_pk_bf16_f32 v4, v64, v70", "v_cvt_pk_bf16_f32 v6, v71, v64",
        "v_and_b32 v72, 1, v1", "v_cmp_eq_u32 vcc, 1, v72", "v_mov_b32 v5, v4", "v_mov_b32 v7, 0",
        "v_cndmask_b32 v4, v4, v67, vcc", "v_cndmask_b32 v5, v5, v68, vcc", "v_cndmask_b32 v6, v6, v7, vcc")
    k.e(f"s_lshl_b32 s40, s{s_job}, 9", "v_lshlrev_b32 v3, 7, v2", "v_lshl_add_u32 v3, v1, 4, v3", "v_add_u32 v3, s40, v3",
        "v_cmp_gt_u32 vcc, 8, v1", "s_and_saveexec_b64 s[42:43], vcc")
    k.vmem(f"buffer_store_dwordx4 v[4:7], v3, s[{srd_ws}:{srd_ws+3}], 0 offen offset:{WS_TOK} {sc1}", "st")
    k.e("s_mov_b64 exec, s[42:43]")

def col_job(k, s_job, srd_w, s_ld, s_col0b, srd_ws, ldsbase=0, sc1=""):
    k.e("v_and_b32 v1, 63, v0", "v_lshrrev_b32 v2, 6, v0", "v_lshrrev_b32 v3, 2, v1", "v_lshl_add_u32 v3, v2, 7, v3",
        f"v_mul_lo_u32 v3, v3, s{s_ld}", "v_and_b32 v4, 3, v1", "v_lshl_add_u32 v3, v4, 4, v3", f"v_add_u32 v3, s{s_col0b}, v3",
        f"s_lshl_b32 s41, s{s_ld}, 4", "s_mov_b32 s40, 0")
    for i in range(8):
        k.vmem(f"buffer_load_dwordx4 v[{8+4*i}:{11+4*i}], v3, s[{srd_w}:{srd_w+3}], s40 offen", ("cj", i))
        if i < 7: k.e("s_add_u32 s40, s40, s41")
    k.e("s_mov_b32 s42, 0x00003f80", "s_mov_b32 s43, 0x3f800000")
    for i in range(8): k.e(f"v_mov_b32 v{40+i}, 0")
    for i in range(8):
        k.wait_vm(("cj", i))
        for d in range(4):
            k.e(f"v_dot2_f32_bf16 v{40+2*d}, v{8+4*i+d}, s42, v{40+2*d}", f"v_dot2_f32_bf16 v{41+2*d}, v{8+4*i+d}, s43, v{41+2*d}")
    k.e("s_nop 2")
    for mode in ("row_ror:4", "row_ror:8"):
        for i in range(8): k.e(f"v_add_f32_dpp v{40+i}, v{40+i}, v{40+i} {mode} row_mask:0xf bank_mask:0xf")
    k.e("v_lshrrev_b32 v5, 4, v1", "v_lshl_add_u32 v5, v2, 2, v5", "v_lshlrev_b32 v5, 7, v5", "v_lshl_add_u32 v5, v4, 5, v5",
        "v_and_b32 v6, 15, v1", "v_cmp_gt_u32 vcc, 4, v6", "s_and_saveexec_b64 s[44:45], vcc")
    k.ds(f"ds_write_b128 v5, v[40:43] offset:{ldsbase}")
    k.ds(f"ds_write_b128 v5, v[44:47] offset:{ldsbase+16}")
    k.e("s_mov_b64 exec, s[44:45]")
    k.wait_lg_all()
    k.e("s_barrier")
    k.e("v_cmp_gt_u32 vcc, 32, v0", "s_and_saveexec_b64 s[44:45], vcc", "v_lshlrev_b32 v5, 2, v0")
    for p in range(16): k.ds(f"ds_read_b32 v{8+p}, v5 offset:{ldsbase+128*p}")
    k.wait_lg_all()
    for st in (8, 4, 2, 1):
        for p in range(st): k.e(f"v_add_f32 v{8+p}, v{8+p}, v{8+p+st}")
    k.e("s_nop 0",
        "v_cvt_pk_bf16_f32 v12, v8, v8", "s_nop 0", "v_and_b32 v9, 0xffff0000, v12", "v_sub_f32 v9, v8, v9",
        "v_cvt_pk_bf16_f32 v13, v9, v9", "s_nop 0", "v_and_b32 v10, 0xffff0000, v13", "v_sub_f32 v10, v9, v10",
        "v_cvt_pk_bf16_f32 v14, v8, v10", "v_mov_b32 v15, 0",
        f"s_lshl_b32 s40, s{s_job}, 9", "v_lshlrev_b32 v5, 4, v0", "v_add_u32 v5, s40, v5", f"s_mov_b32 s40, {WS_COL}")
    k.vmem(f"buffer_store_dwordx4 v[12:15], v5, s[{srd_ws}:{srd_ws+3}], s40 offen {sc1}", "st")
    k.e("s_mov_b64 exec, s[44:45]")

def k0_kernel():
    k = KV("k0_stats_kernel", nvgpr=96)
    k.e("s_cmp_ge_u32 s2, 288", f"s_cbranch_scc1 L_end_{k.name}")
    fx = srd(k, 8, 0, SZ_X) + srd(k, 20, 72, WS_SIZE)
    k.e("s_load_dwordx2 s[28:29], s[0:1], 8", "s_load_dwordx2 s[30:31], s[0:1], 32", "s_load_dwordx2 s[32:33], s[0:1], 40")
    k.e("s_waitcnt lgkmcnt(0)"); k.e(*fx)
    k.e("s_cmp_ge_u32 s2, 128", "s_cbranch_scc1 L_k0_col")
    row_job(k, 2, 8, 20)
    k.e("s_branch L_k0_done")
    k.label("L_k0_col")
    k.e("s_sub_u32 s3, s2, 128")
    k.e("s_mov_b32 s12, s28", "s_mov_b32 s13, s29", f"s_mov_b32 s14, {SZ_WQKV}", "s_mov_b32 s15, 0x00020000",
        "s_movk_i32 s16, 3072", "s_lshl_b32 s17, s3, 6",
        "s_cmp_lt_u32 s3, 48", "s_cbranch_scc1 L_k0_go",
        "s_mov_b32 s12, s30", "s_mov_b32 s13, s31", f"s_mov_b32 s14, {SZ_WG}", "s_movk_i32 s16, 3584",
        "s_sub_u32 s17, s3, 48", "s_lshl_b32 s17, s17, 6",
        "s_cmp_lt_u32 s3, 104", "s_cbranch_scc1 L_k0_go",
        "s_mov_b32 s12, s32", "s_mov_b32 s13, s33", "s_sub_u32 s17, s3, 104", "s_lshl_b32 s17, s17, 6")
    k.label("L_k0_go")
    col_job(k, 3, 12, 16, 17, 20)
    k.label("L_k0_done")
    k.wait_vm_all()
    k.label(f"L_end_{k.name}")
    k.e("s_endpgm")
    return k

def gemm_loop(k, nunits, mfmas, reads, dmas, vm_need, fill=6, dma_first_gap=0):
    def tagof(g, name): return ("fr", g, name)
    for u in range(nunits):
        g0, g1 = 2*u, 2*u + 1
        k.wait_vm(*vm_need(u))
        k.wait_lg_all()
        k.e("s_barrier")
        R0 = list(reads(g0, 0)); R1 = list(reads(g1, 1))
        prev = list(mfmas(g0 - 1, 1)) if u > 0 else []
        cur = list(mfmas(g0, 0))
        D = list(dmas(u))
        rel = {}
        for i, (t, used) in enumerate(prev):
            for nm in used: rel[nm] = i
        def emit_reads(i, budget):
            n = 0
            while n < budget and R0:
                t, nm = R0.pop(0); k.ds(t, tagof(g0, nm)); n += 1
            j = 0
            while n < budget and j < len(R1):
                t, nm = R1[j]
                if rel.get(nm, -1) <= i:
                    k.ds(t, tagof(g1, nm)); R1.pop(j); n += 1
                else: j += 1
            return n
        if not prev:
            emit_reads(-1, 1000)
        for i, (t, used) in enumerate(prev):
            k.e(t)
            emit_reads(i, fill)
        emit_reads(10**6, 1000)
        ngap = len(cur)
        per = -(-len(D) // ngap) if D else 0
        for j, (t, used) in enumerate(cur):
            k.wait_lg(*[tagof(g0, nm) for nm in used])
            k.e(t)
            for _ in range(per):
                if D:
                    for (txt, tag, isvm) in D.pop(0):
                        if isvm: k.vmem(txt, tag)
                        else: k.e(txt)
        assert not D
    k.wait_lg_all()
    for (t, used) in mfmas(2*nunits - 1, 1): k.e(t)

def dma(srd_, voff, s_m0base, m0imm, s_tmp, soff, tag, imm=0):
    out = [(f"s_add_u32 m0, s{s_m0base}, {m0imm - imm}" , None, False)]
    out.append((f"s_mov_b32 s{s_tmp}, 0x{soff:x}", None, False))
    o = f" offset:{imm}" if imm else ""
    out.append((f"buffer_load_dwordx4 v{voff}, s[{srd_}:{srd_+3}], s{s_tmp} offen{o} lds", tag, True))
    return out

def emit_groups(k, groups):
    for gr in groups:
        for (txt, tag, isvm) in gr:
            if isvm: k.vmem(txt, tag)
            else: k.e(txt)

MF = "v_mfma_f32_32x32x16_bf16"

def e1_body(k, SX=8, SW=12, SWS=20, sc1=""):
    E1_XB = 49152
    k.e("v_and_b32 v1, 63, v0", "v_lshrrev_b32 v10, 6, v0", "s_nop 0", "v_readfirstlane_b32 s24, v10")
    k.e("v_and_b32 v11, 31, v1", "v_lshrrev_b32 v12, 5, v1")
    k.e("s_and_b32 s27, s24, 1", "s_lshr_b32 s28, s24, 1")
    k.e("v_lshrrev_b32 v13, 3, v1", "v_lshrrev_b32 v14, 4, v1", "v_and_b32 v15, 7, v1",
        "v_xor_b32 v7, v15, v14", "v_lshlrev_b32 v7, 4, v7", "v_lshl_add_u32 v7, v13, 10, v7",
        "s_lshl_b32 s29, s25, 16", "s_lshl_b32 s30, s24, 14", "s_add_u32 s29, s29, s30",
        "v_add_u32 v7, s29, v7", "v_xor_b32 v8, 64, v7", "v_add_u32 v8, 8192, v8")
    k.e("v_and_b32 v14, 1, v14", "v_lshlrev_b32 v14, 2, v14", "v_xor_b32 v9, v15, v14", "v_lshlrev_b32 v9, 4, v9",
        "s_lshl_b32 s30, s24, 3", "v_add_u32 v13, s30, v13", "v_mul_u32_u24 v13, 3072, v13", "v_add_u32 v9, v9, v13",
        "s_lshl_b32 s30, s26, 7", "v_add_u32 v9, s30, v9")
    k.e(f"s_lshl_b32 s31, s24, 11", f"s_add_u32 s31, s31, {E1_XB}", "s_lshl_b32 s32, s24, 10")
    def xd(v):
        return [dma(SX, 7, 31, (v % 3)*8192, 33, v*128, ("X", v)), dma(SX, 8, 31, (v % 3)*8192 + 1024, 33, v*128, ("X", v))]
    def wd(u):
        return [dma(SW, 9, 32, (u % 4)*12288 + p*4096, 33, u*32*3072, ("W", u), imm=1024*p) for p in range(3)]
    emit_groups(k, xd(0) + wd(0) + wd(1) + xd(1) + wd(2))
    for i in range(48, 64): k.e(f"v_mov_b32 v{i}, 0")
    k.e("s_lshl_b32 s34, s25, 6", "s_lshl_b32 s35, s27, 5", "s_add_u32 s34, s34, s35",
        "v_add_u32 v13, s34, v11", "v_lshlrev_b32 v13, 5, v13")
    k.vmem(f"buffer_load_dword v112, v13, s[{SWS}:{SWS+3}], 0 offen offset:{WS_TOK+16} {sc1}", "ex")
    k.e("s_lshl_b32 s35, s26, 6", "s_lshl_b32 s36, s28, 5", "s_add_u32 s35, s35, s36",
        "v_add_u32 v14, s35, v11", "v_lshlrev_b32 v14, 4, v14", f"s_mov_b32 s36, {WS_COL}",
        "s_mov_b64 exec, 0xffffffff")
    k.vmem(f"buffer_load_dwordx4 v[48:51], v13, s[{SWS}:{SWS+3}], 0 offen offset:{WS_TOK} {sc1}", "ex")
    for p in range(3):
        k.vmem(f"buffer_load_dwordx4 v[{52+4*p}:{55+4*p}], v14, s[{SWS}:{SWS+3}], s36 offen {sc1}", "ex")
        if p < 2: k.e("s_add_u32 s36, s36, 8192")
    k.e("s_mov_b64 exec, -1")
    k.e("s_lshl_b32 s36, s27, 5", "v_add_u32 v13, s36, v11", "v_bfe_u32 v14, v13, 1, 3", "v_xor_b32 v14, v14, v12",
        "v_lshlrev_b32 v14, 4, v14", "v_lshl_add_u32 v2, v13, 7, v14", f"v_add_u32 v2, {E1_XB}, v2",
        "v_xor_b32 v3, 32, v2", "v_xor_b32 v4, 64, v2", "v_xor_b32 v5, 96, v2")
    k.e("v_bfe_u32 v13, v1, 2, 2", "v_lshl_add_u32 v13, v12, 3, v13", "v_lshlrev_b32 v6, 7, v13",
        "v_bfe_u32 v13, v1, 4, 1", "v_lshlrev_b32 v13, 1, v13", "v_bfe_u32 v14, v1, 1, 1", "v_add_u32 v13, v13, v14",
        "s_lshl_b32 s36, s28, 2", "v_add_u32 v13, s36, v13", "v_bfe_u32 v14, v1, 3, 1", "v_lshlrev_b32 v14, 2, v14",
        "v_xor_b32 v13, v13, v14", "v_lshl_add_u32 v6, v13, 4, v6", "v_and_b32 v14, 1, v1", "v_lshl_add_u32 v6, v14, 3, v6")
    for i in range(64, 112): k.e(f"v_mov_b32 v{i}, 0")
    def fr(st): return 16 + 16*st
    def reads(g, st):
        b = fr(st); u = g >> 1; v = g >> 2
        out = [(f"ds_read_b128 v[{b}:{b+3}], v{2 + (g & 3)} offset:{(v % 3)*8192}", "X")]
        for p in range(3):
            o = (u % 4)*12288 + p*4096 + (g & 1)*2048
            out.append((f"ds_read_b64_tr_b16 v[{b+4+4*p}:{b+5+4*p}], v6 offset:{o}", f"W{p}"))
            out.append((f"ds_read_b64_tr_b16 v[{b+6+4*p}:{b+7+4*p}], v6 offset:{o+512}", f"W{p}"))
        return out
    def mf(b_x, b_w):
        out = []
        for p in range(3):
            a = 64 + 16*p
            w = f"v[{b_w+4*p}:{b_w+4*p+3}]"; x = f"v[{b_x}:{b_x+3}]"
            A, B = (w, x) if p < 2 else (x, w)
            out.append((f"{MF} v[{a}:{a+15}], {A}, {B}, v[{a}:{a+15}]", ["X", f"W{p}"]))
        return out
    def mfmas(g, st): return mf(fr(st), fr(st) + 4)
    def dmas(u):
        out = []
        if u + 3 < 16: out += wd(u + 3)
        if u % 2 == 0 and u//2 + 2 < 8: out += xd(u//2 + 2)
        return out
    gemm_loop(k, 16, mfmas, reads, dmas, lambda u: [("W", u), ("X", u >> 1)])
    k.wait_vm("ex")
    for (t, _) in mf(48, 52): k.e(t)
    k.e("s_lshl_b32 s36, s24, 7", "v_lshlrev_b32 v13, 2, v11", "v_add_u32 v13, s36, v13")
    k.ds("ds_write_b32 v13, v112")
    k.e("v_lshlrev_b32 v13, 4, v12", "v_add_u32 v13, s36, v13")
    k.wait_lg_all()
    for gq in range(4): k.ds(f"ds_read_b128 v[{32+4*gq}:{35+4*gq}], v13 offset:{32*gq}")
    k.e(f"v_mul_f32 v113, 0x{f2u(0.25*LOG2E):08x}, v112")
    k.e("v_lshlrev_b32 v10, 4, v1",
        "s_lshl_b32 s36, s26, 2", "s_lshl_b32 s37, s28, 1", "s_add_u32 s36, s36, s37", "s_lshl_b32 s36, s36, 16",
        "s_lshl_b32 s37, s25, 1", "s_add_u32 s37, s37, s27", "s_lshl_b32 s37, s37, 10", "s_add_u32 s36, s36, s37")
    k.e("s_nop 4")
    for p, (scale, base) in enumerate(((113, WS_QF), (112, WS_KF))):
        a = 64 + 16*p
        for r in range(16): k.e(f"v_mul_f32 v{a+r}, v{a+r}, v{scale}")
        for j in range(2):
            d = 16 + 8*p + 4*j
            for i in range(4): k.e(f"v_cvt_pk_bf16_f32 v{d+i}, v{a+8*j+2*i}, v{a+8*j+2*i+1}")
            k.e(f"s_add_u32 s37, s36, 0x{base + j*65536:x}")
            k.vmem(f"buffer_store_dwordx4 v[{d}:{d+3}], v10, s[{SWS}:{SWS+3}], s37 offen {sc1}", "st")
    k.wait_lg_all()
    a = 96
    for r in range(16): k.e(f"v_mul_f32 v{a+r}, v{a+r}, v{32+r}")
    k.e("v_lshrrev_b32 v13, 4, v11", "v_lshlrev_b32 v13, 16, v13", "v_lshl_add_u32 v13, v12, 8, v13", "v_and_b32 v14, 15, v11",
        "v_lshl_add_u32 v13, v14, 4, v13", f"s_add_u32 s37, s36, 0x{WS_VF:x}")
    for j in range(2):
        d = 48 + 4*j
        for i in range(4): k.e(f"v_cvt_pk_bf16_f32 v{d+i}, v{a+8*j+2*i}, v{a+8*j+2*i+1}")
        k.vmem(f"buffer_store_dwordx4 v[{d}:{d+3}], v13, s[{SWS}:{SWS+3}], s37 offen offset:{512*j} {sc1}", "st")

def e3_body(k, SX=8, SG=12, SU=16, SWS=20, sc1=""):
    XB = 49152
    k.e("v_and_b32 v1, 63, v0", "v_lshrrev_b32 v10, 6, v0", "s_nop 0", "v_readfirstlane_b32 s24, v10")
    k.e("v_and_b32 v11, 31, v1", "v_lshrrev_b32 v12, 5, v1")
    k.e("s_and_b32 s27, s24, 1", "s_lshr_b32 s28, s24, 1")
    k.e("v_lshrrev_b32 v13, 3, v1", "v_lshrrev_b32 v14, 4, v1", "v_and_b32 v15, 7, v1",
        "v_xor_b32 v7, v15, v14", "v_lshlrev_b32 v7, 4, v7", "v_lshl_add_u32 v7, v13, 10, v7",
        "s_lshl_b32 s29, s25, 17", "s_lshl_b32 s30, s24, 15", "s_add_u32 s29, s29, s30",
        "v_add_u32 v7, s29, v7", "v_xor_b32 v8, 64, v7", "v_add_u32 v8, 8192, v8")
    k.e("v_lshlrev_b32 v13, 2, v14", "v_and_b32 v15, 15, v1", "v_xor_b32 v9, v15, v13", "v_lshlrev_b32 v9, 4, v9",
        "s_lshl_b32 s30, s24, 3", "v_add_u32 v13, s30, v14", "v_mul_u32_u24 v13, 3584, v13", "v_add_u32 v9, v9, v13",
        "s_lshl_b32 s30, s26, 8", "v_add_u32 v9, s30, v9")
    k.e(f"s_lshl_b32 s31, s24, 12", f"s_add_u32 s31, s31, {XB}", "s_lshl_b32 s32, s24, 11")
    def xd(v):
        return [dma(SX, 7 + (i & 1), 31, (v % 2)*16384 + i*1024, 33, v*128 + (i >> 1)*16384, ("X", v)) for i in range(4)]
    def wd(u):
        out = []
        for i in range(2):
            for p, sr in enumerate((SG, SU)):
                out.append(dma(sr, 9, 32, (u % 3)*16384 + p*8192 + i*1024, 33, (u*32 + 4*i)*3584, ("W", u)))
        return out
    emit_groups(k, xd(0) + wd(0) + wd(1))
    k.e("s_lshl_b32 s36, s27, 6", "v_add_u32 v13, s36, v11", "v_bfe_u32 v14, v13, 1, 3", "v_xor_b32 v14, v14, v12",
        "v_lshlrev_b32 v14, 4, v14", "v_lshl_add_u32 v2, v13, 7, v14", f"v_add_u32 v2, {XB}, v2",
        "v_xor_b32 v3, 32, v2", "v_xor_b32 v4, 64, v2", "v_xor_b32 v5, 96, v2")
    k.e("v_bfe_u32 v15, v1, 2, 2", "v_lshl_add_u32 v13, v12, 3, v15", "v_lshlrev_b32 v6, 8, v13",
        "v_bfe_u32 v13, v1, 4, 1", "v_lshlrev_b32 v13, 1, v13", "v_bfe_u32 v14, v1, 1, 1", "v_add_u32 v13, v13, v14",
        "s_lshl_b32 s36, s28, 3", "v_add_u32 v13, s36, v13", "v_lshlrev_b32 v15, 2, v15",
        "v_xor_b32 v13, v13, v15", "v_lshl_add_u32 v6, v13, 4, v6", "v_and_b32 v14, 1, v1", "v_lshl_add_u32 v6, v14, 3, v6",
        "v_xor_b32 v10, 64, v6")
    ACC = 128
    for i in range(ACC, ACC + 128): k.e(f"v_mov_b32 v{i}, 0")
    def fr(st): return 16 + 24*st
    def acc(part, b, tb): return ACC + 16*(part*4 + b*2 + tb)
    def reads(g, st):
        b0 = fr(st); u = g >> 1; v = g >> 2
        out = []
        def wr(part, b):
            d = b0 + 8 + 8*part + 4*b
            o = (u % 3)*16384 + part*8192 + (g & 1)*4096
            av = 6 if b == 0 else 10
            return [(f"ds_read_b64_tr_b16 v[{d}:{d+1}], v{av} offset:{o}", f"W{part}{b}"),
                    (f"ds_read_b64_tr_b16 v[{d+2}:{d+3}], v{av} offset:{o+1024}", f"W{part}{b}")]
        def xr(tb): return [(f"ds_read_b128 v[{b0+4*tb}:{b0+4*tb+3}], v{2 + (g & 3)} offset:{(v % 2)*16384 + tb*4096}", f"X{tb}")]
        out = xr(0) + wr(0, 0) + xr(1) + wr(0, 1) + wr(1, 0) + wr(1, 1)
        return out
    def mf(b0):
        out = []
        for part in range(2):
            for b in range(2):
                for tb in range(2):
                    a = acc(part, b, tb); w = b0 + 8 + 8*part + 4*b; x = b0 + 4*tb
                    out.append((f"{MF} v[{a}:{a+15}], v[{w}:{w+3}], v[{x}:{x+3}], v[{a}:{a+15}]", [f"X{tb}", f"W{part}{b}"]))
        return out
    def mfmas(g, st): return mf(fr(st))
    def dmas(u):
        out = []
        if u + 2 < 16: out += wd(u + 2)
        if u % 2 == 0 and u//2 + 1 < 8: out += xd(u//2 + 1)
        return out
    for i in range(64, 88): k.e(f"v_mov_b32 v{i}, 0")
    k.e("s_lshl_b32 s34, s25, 7", "s_lshl_b32 s35, s27, 6", "s_add_u32 s34, s34, s35",
        "v_add_u32 v13, s34, v11", "v_lshlrev_b32 v13, 5, v13")
    for tb in range(2):
        k.vmem(f"buffer_load_dwordx2 v[{88+2*tb}:{89+2*tb}], v13, s[{SWS}:{SWS+3}], 0 offen offset:{WS_TOK+16+1024*tb} {sc1}", "ex")
    k.e("s_lshl_b32 s35, s26, 7", "s_lshl_b32 s36, s28, 6", "s_add_u32 s35, s35, s36",
        "v_add_u32 v14, s35, v11", "v_lshlrev_b32 v14, 4, v14", f"s_mov_b32 s36, {WS_COL + 1536*16}", f"s_mov_b32 s37, {WS_COL + 3328*16}",
        "s_mov_b64 exec, 0xffffffff")
    for tb in range(2):
        k.vmem(f"buffer_load_dwordx4 v[{64+4*tb}:{67+4*tb}], v13, s[{SWS}:{SWS+3}], 0 offen offset:{WS_TOK+1024*tb} {sc1}", "ex")
    for part in range(2):
        for b in range(2):
            d = 72 + 8*part + 4*b
            k.vmem(f"buffer_load_dwordx4 v[{d}:{d+3}], v14, s[{SWS}:{SWS+3}], s{36+part} offen offset:{512*b} {sc1}", "ex")
    k.e("s_mov_b64 exec, -1")
    gemm_loop(k, 16, mfmas, reads, dmas, lambda u: [("W", u), ("X", u >> 1)])
    k.wait_vm("ex")
    for (t, _) in mf(64): k.e(t)
    k.e(f"v_mul_f32 v92, 0x{f2u(LOG2E):08x}, v88", f"v_mul_f32 v93, 0x{f2u(LOG2E):08x}, v90")
    k.e("v_lshlrev_b32 v10, 4, v1",
        "s_lshl_b32 s36, s25, 2", "s_lshl_b32 s37, s27, 1", "s_add_u32 s36, s36, s37", "s_mul_i32 s36, s36, 112",
        "s_lshl_b32 s37, s26, 3", "s_add_u32 s36, s36, s37", "s_lshl_b32 s37, s28, 2", "s_add_u32 s36, s36, s37",
        "s_lshl_b32 s36, s36, 10", f"s_add_u32 s36, s36, 0x{WS_HF:x}")
    k.e("s_nop 4")
    n = 0
    for b in range(2):
        for tb in range(2):
            g = acc(0, b, tb); uu = acc(1, b, tb)
            A = 92 + tb; SD = 89 + 2*tb
            for r in range(16): k.e(f"v_mul_f32 v{g+r}, v{g+r}, v{A}")
            for r in range(16): k.e(f"v_exp_f32 v{g+r}, -v{g+r}")
            for r in range(16): k.e(f"v_fma_f32 v{g+r}, v{g+r}, v{SD}, v{SD}")
            for r in range(16): k.e(f"v_rcp_f32 v{g+r}, v{g+r}")
            for r in range(16): k.e(f"v_mul_f32 v{g+r}, v{g+r}, v{uu+r}")
            for j in range(2):
                d = 16 + 4*(n % 8); n += 1
                for i in range(4): k.e(f"v_cvt_pk_bf16_f32 v{d+i}, v{g+8*j+2*i}, v{g+8*j+2*i+1}")
                k.e(f"s_add_u32 s37, s36, {(tb*112 + b*2 + j)*1024}")
                k.vmem(f"buffer_store_dwordx4 v[{d}:{d+3}], v10, s[{SWS}:{SWS+3}], s37 offen {sc1}", "st")

def k1_kernel():
    k = KV("k1_gemm_kernel", nvgpr=256)
    k.e("s_cmp_ge_u32 s2, 480", f"s_cbranch_scc1 L_end_{k.name}")
    fx = srd(k, 8, 0, SZ_X) + srd(k, 20, 72, WS_SIZE)
    k.e("s_cmp_ge_u32 s2, 256", "s_cbranch_scc1 L_k1_e3")
    fx1 = srd(k, 12, 8, SZ_WQKV)
    k.e("s_waitcnt lgkmcnt(0)"); k.e(*(fx + fx1))
    k.e("s_and_b32 s26, s2, 7", "s_lshr_b32 s25, s2, 3")
    e1_body(k)
    k.wait_vm_all()
    k.e("s_endpgm")
    k.label("L_k1_e3")
    k.vm = []; k.lg = []
    fx3 = srd(k, 12, 32, SZ_WG) + srd(k, 16, 40, SZ_WG)
    k.e("s_waitcnt lgkmcnt(0)"); k.e(*(fx + fx3))
    k.e("s_sub_u32 s3, s2, 256", "s_and_b32 s4, s3, 7", "s_lshr_b32 s5, s3, 3", "s_mul_i32 s4, s4, 28", "s_add_u32 s4, s4, s5",
        "s_lshr_b32 s26, s4, 4", "s_and_b32 s25, s4, 15")
    e3_body(k)
    k.wait_vm_all()
    k.label(f"L_end_{k.name}")
    k.e("s_endpgm")
    return k

BIAS_M = 90.0
def e2_body(k, SWS=20, sc1="", tag="e2", bias=BIAS_M, force_fb=False):
    SA, SB, OA, OB, CA, CB, PA, PB, QA, QB = 64, 80, 96, 112, 128, 144, 160, 168, 176, 180
    KB_ = [184, 188]; VB_ = [192, 200]
    SLOT = 12288
    S = [SA, SB]; O = [OA, OB]; C = [CA, CB]; P = [PA, PB]; Q = [QA, QB]
    k.e("v_and_b32 v1, 63, v0", "v_lshrrev_b32 v10, 6, v0", "s_nop 0", "v_readfirstlane_b32 s24, v10")
    k.e("v_lshlrev_b32 v2, 4, v1")
    k.e("v_lshrrev_b32 v3, 5, v1", "v_lshlrev_b32 v3, 8, v3", "v_and_b32 v4, 15, v1", "v_lshl_add_u32 v3, v4, 4, v3")
    k.e("s_mov_b32 s28, 0x0000ffff", "s_mov_b32 s29, 0x0000ffff")
    k.e("s_lshl_b32 s33, s25, 16", "s_lshl_b32 s34, s24, 10", "s_add_u32 s33, s33, s34",
        f"s_add_u32 s30, s33, 0x{WS_KF:x}", f"s_add_u32 s31, s33, 0x{WS_VF:x}")
    k.e("s_lshl_b32 s32, s24, 10", "s_lshl_b32 s35, s24, 11", "s_add_u32 s35, s35, 4096")
    def chunk_dma(slot):
        k.e(f"s_add_u32 m0, s32, {slot*SLOT}", "s_add_u32 s33, s31, 512")
        k.vmem(f"buffer_load_dwordx4 v2, s[{SWS}:{SWS+3}], s30 offen lds {sc1}", "c")
        k.e(f"s_add_u32 m0, s35, {slot*SLOT}", "s_mov_b64 exec, s[28:29]")
        k.vmem(f"buffer_load_dwordx4 v3, s[{SWS}:{SWS+3}], s31 offen lds {sc1}", "c")
        k.e(f"s_add_u32 m0, s35, {slot*SLOT + 1024}", "s_add_u32 s30, s30, 4096")
        k.vmem(f"buffer_load_dwordx4 v3, s[{SWS}:{SWS+3}], s33 offen lds {sc1}", "c")
        k.e("s_mov_b64 exec, -1", "s_add_u32 s31, s31, 4096")
    k.e("s_lshl_b32 s36, s26, 3", "s_lshl_b32 s37, s24, 1", "s_add_u32 s36, s36, s37",
        "s_lshl_b32 s37, s25, 6", "s_add_u32 s37, s37, s36", "s_lshl_b32 s37, s37, 10", f"s_add_u32 s37, s37, 0x{WS_QF:x}")
    for c in range(1): chunk_dma(0)
    k.vmem(f"buffer_load_dwordx4 v[{QA}:{QA+3}], v2, s[{SWS}:{SWS+3}], s37 offen {sc1}", "q")
    k.vmem(f"buffer_load_dwordx4 v[{QB}:{QB+3}], v2, s[{SWS}:{SWS+3}], s37 offen offset:1024 {sc1}", "q")
    chunk_dma(1); chunk_dma(2)
    k.e("v_mov_b32 v4, 0x3f803f80", "v_mov_b32 v5, v4", "v_mov_b32 v6, v4", "v_mov_b32 v7, v4",
        f"s_mul_i32 s33, s24, {SLOT}", "v_add_u32 v8, s33, v2", "s_mov_b32 s38, 0xffff0000", "s_mov_b32 s39, 0xffff0000", "s_mov_b64 exec, s[38:39]")
    for g in range(8): k.ds(f"ds_write_b128 v8, v[4:7] offset:{4096 + g*1024}")
    k.e("s_mov_b64 exec, -1")
    for i in range(16):
        k.e(f"v_mov_b32 v{OA+i}, 0", f"v_mov_b32 v{OB+i}, 0")
    for i in range(8): k.e(f"v_mov_b32 v{PB+i}, 0", f"v_mov_b32 v{VB_[1]+i}, 0")
    k.wait_vm("q")
    k.wait_lg_all()
    k.e("s_barrier")
    k.ds(f"ds_read_b128 v[{KB_[0]}:{KB_[0]+3}], v2 offset:0")
    k.ds(f"ds_read_b128 v[{KB_[1]}:{KB_[1]+3}], v2 offset:1024")
    k.wait_lg_all()
    k.e(f"{MF} v[{SA}:{SA+15}], v[{KB_[0]}:{KB_[0]+3}], v[{QA}:{QA+3}], 0",
        f"{MF} v[{SB}:{SB+15}], v[{KB_[0]}:{KB_[0]+3}], v[{QB}:{QB+3}], 0",
        f"{MF} v[{CA}:{CA+15}], v[{KB_[1]}:{KB_[1]+3}], v[{QA}:{QA+3}], 0",
        f"{MF} v[{CB}:{CB+15}], v[{KB_[1]}:{KB_[1]+3}], v[{QB}:{QB+3}], 0")
    k.e("s_nop 9")
    for x in range(2):
        k.e(f"v_max3_f32 v{10+x}, v{S[x]}, v{S[x]+1}, v{S[x]+2}")
        for i in range(3, 15, 2): k.e(f"v_max3_f32 v{10+x}, v{S[x]+i}, v{S[x]+i+1}, v{10+x}")
        k.e(f"v_max_f32 v{10+x}, v{S[x]+15}, v{10+x}")
    k.e("s_nop 4")
    for x in range(2):
        for i in range(0, 16, 2): k.e(f"v_max3_f32 v{10+x}, v{C[x]+i}, v{C[x]+i+1}, v{10+x}")
    k.e("v_mov_b32 v12, v10", "v_mov_b32 v13, v11", "s_nop 1", "v_permlane32_swap_b32 v10, v12", "v_permlane32_swap_b32 v11, v13", "s_nop 1",
        "v_max_f32 v10, v10, v12", "v_max_f32 v11, v11, v13")
    k.e(f"v_sub_f32 v10, 0x{f2u(-bias):08x}, v10", f"v_sub_f32 v11, 0x{f2u(-bias):08x}, v11")
    for i in range(16): k.e(f"v_mov_b32 v{CA+i}, v10", f"v_mov_b32 v{CB+i}, v11")
    k.e("s_nop 1")
    k.e(f"{MF} v[{SA}:{SA+15}], v[{KB_[0]}:{KB_[0]+3}], v[{QA}:{QA+3}], v[{CA}:{CA+15}]")
    k.e("s_nop 11")

    def valu_seq(x):
        s, p = S[x], P[x]
        out = []
        for i in range(8):
            out.append(f"v_exp_f32 v{s+2*i}, v{s+2*i}"); out.append(f"v_exp_f32 v{s+2*i+1}, v{s+2*i+1}")
            if i >= 1: out.append(f"v_cvt_pk_bf16_f32 v{p+i-1}, v{s+2*i-2}, v{s+2*i-1}")
        out.append(f"v_cvt_pk_bf16_f32 v{p+7}, v{s+14}, v{s+15}")
        return out
    def phase(first_mfma, pv, x, extra):
        va = valu_seq(x)
        if first_mfma: k.e(first_mfma)
        for i, t in enumerate(va):
            k.e(t)
            if i == 5: k.e(pv[0])
            if i == 13: k.e(pv[1])
            for f in extra.get(i, []): f()
    def pvs(x, vb):
        return [f"{MF} v[{O[x]}:{O[x]+15}], v[{vb}:{vb+3}], v[{P[x]}:{P[x]+3}], v[{O[x]}:{O[x]+15}]",
                f"{MF} v[{O[x]}:{O[x]+15}], v[{vb+4}:{vb+7}], v[{P[x]+4}:{P[x]+7}], v[{O[x]}:{O[x]+15}]"]
    def block(c4, kk, last_block, sync, do_dma):
        par = kk & 1
        slot = c4; nslot = (c4 + 1) % 4
        if sync is not None:
            k.e(f"s_waitcnt vmcnt({sync})", "s_barrier")
        kn = (slot*SLOT + (kk + 1)*1024) if kk < 3 else nslot*SLOT
        ex = {}
        if not last_block:
            ex[0] = [lambda: k.e(f"ds_read_b128 v[{KB_[par^1]}:{KB_[par^1]+3}], v2 offset:{kn}")]
        vo = slot*SLOT + 4096 + kk*2048
        ex[1] = [lambda: k.e(f"ds_read_b128 v[{VB_[par]}:{VB_[par]+3}], v2 offset:{vo}")]
        ex[2] = [lambda: k.e(f"ds_read_b128 v[{VB_[par]+4}:{VB_[par]+7}], v2 offset:{vo+1024}")]
        if do_dma: ex[16] = [lambda: chunk_dma((c4 + 3) % 4)]
        phase(f"{MF} v[{SB}:{SB+15}], v[{KB_[par]}:{KB_[par]+3}], v[{QB}:{QB+3}], v[{CB}:{CB+15}]", pvs(1, VB_[par ^ 1]), 0, ex)
        k.e("s_waitcnt lgkmcnt(0)")
        fm = None if last_block else f"{MF} v[{SA}:{SA+15}], v[{KB_[par^1]}:{KB_[par^1]+3}], v[{QA}:{QA+3}], v[{CA}:{CA+15}]"
        phase(fm, pvs(0, VB_[par]), 1, {})
    k.vm = []
    k.e("s_mov_b32 s36, 3")
    L = f"L_{tag}_loop"
    k.label(L)
    for c4 in range(4):
        for kk in range(4):
            block(c4, kk, False, 3 if kk == 3 else None, kk == 3)
    k.vm = []
    k.e("s_sub_u32 s36, s36, 1", "s_cmp_lg_u32 s36, 0", f"s_cbranch_scc1 {L}")
    for c4 in range(4):
        for kk in range(4):
            sync = None; dm = False
            if kk == 3:
                if c4 == 0: sync, dm = 3, True
                elif c4 == 1: sync = 3
                elif c4 == 2: sync = 0
            block(c4, kk, c4 == 3 and kk == 3, sync, dm)
    k.vm = []
    k.e("s_nop 1")
    for t in pvs(1, VB_[1]): k.e(t)
    k.e("s_nop 11")
    for x in range(2):
        k.e(f"v_add_f32 v{10+x}, v{O[x]}, v{O[x]+8}")
        for i in range(1, 8): k.e(f"v_add_f32 v{10+x}, v{10+x}, v{O[x]+i}")
    k.e("v_add_f32 v10, v10, v11", "s_movk_i32 s33, 0x207", "v_cmp_class_f32 vcc, v10, s33")
    if force_fb: k.e("s_mov_b64 vcc, -1")
    k.e("s_nop 4", f"s_cbranch_vccnz L_{tag}_fb")
    k.label(f"L_{tag}_fin")
    for x in range(2): k.e(f"v_rcp_f32 v{10+x}, v{O[x]+8}")
    k.e("s_nop 0")
    k.e("s_lshl_b32 s36, s26, 3", "s_lshl_b32 s37, s24, 1", "s_add_u32 s36, s36, s37", "s_lshl_b32 s36, s36, 5", "s_add_u32 s36, s36, s25",
        "s_lshl_b32 s36, s36, 10", f"s_add_u32 s36, s36, 0x{WS_OF:x}")
    for x in range(2):
        for i in range(8): k.e(f"v_mul_f32 v{O[x]+i}, v{O[x]+i}, v{10+x}")
        for i in range(4): k.e(f"v_cvt_pk_bf16_f32 v{P[x]+i}, v{O[x]+2*i}, v{O[x]+2*i+1}")
        k.vmem(f"buffer_store_dwordx4 v[{P[x]}:{P[x]+3}], v2, s[{SWS}:{SWS+3}], s36 offen {sc1}", "st")
        if x == 0: k.e("s_add_u32 s36, s36, 32768")
    k.fb_code = lambda: e2_fallback(k, SWS, sc1, tag, S, O, C, P, Q, KB_, VB_)

def e2_fallback(k, SWS, sc1, tag, S, O, C, P, Q, KB_, VB_):
    k.label(f"L_{tag}_fb")
    KR = KB_[0]; VR = VB_[0]
    k.e("s_lshl_b32 s33, s25, 16", f"s_add_u32 s30, s33, 0x{WS_KF:x}", f"s_add_u32 s31, s33, 0x{WS_VF:x}")
    k.e("v_mov_b32 v10, 0xff800000", "v_mov_b32 v11, 0xff800000", "s_mov_b32 s36, 64", "s_mov_b32 s33, s30")
    k.label(f"L_{tag}_fb1")
    k.e(f"buffer_load_dwordx4 v[{KR}:{KR+3}], v2, s[{SWS}:{SWS+3}], s33 offen {sc1}", "s_waitcnt vmcnt(0)")
    for x in range(2): k.e(f"{MF} v[{S[x]}:{S[x]+15}], v[{KR}:{KR+3}], v[{Q[x]}:{Q[x]+3}], 0")
    k.e("s_nop 11")
    for x in range(2):
        for i in range(0, 16, 2): k.e(f"v_max3_f32 v{10+x}, v{S[x]+i}, v{S[x]+i+1}, v{10+x}")
    k.e("s_add_u32 s33, s33, 1024", "s_sub_u32 s36, s36, 1", "s_cmp_lg_u32 s36, 0", f"s_cbranch_scc1 L_{tag}_fb1")
    k.e("v_mov_b32 v12, v10", "v_mov_b32 v13, v11", "s_nop 1", "v_permlane32_swap_b32 v10, v12", "v_permlane32_swap_b32 v11, v13", "s_nop 1",
        "v_max_f32 v10, v10, v12", "v_max_f32 v11, v11, v13", "v_sub_f32 v10, 0, v10", "v_sub_f32 v11, 0, v11")
    for i in range(16):
        k.e(f"v_mov_b32 v{C[0]+i}, v10", f"v_mov_b32 v{C[1]+i}, v11", f"v_mov_b32 v{O[0]+i}, 0", f"v_mov_b32 v{O[1]+i}, 0")
    for i in range(8): k.e(f"v_mov_b32 v{VR+i}, 0x3f803f80")
    k.e("s_mov_b32 s36, 64")
    k.label(f"L_{tag}_fb2")
    k.e(f"buffer_load_dwordx4 v[{KR}:{KR+3}], v2, s[{SWS}:{SWS+3}], s30 offen {sc1}", "s_mov_b64 exec, s[28:29]",
        f"buffer_load_dwordx4 v[{VR}:{VR+3}], v3, s[{SWS}:{SWS+3}], s31 offen {sc1}",
        f"buffer_load_dwordx4 v[{VR+4}:{VR+7}], v3, s[{SWS}:{SWS+3}], s31 offen offset:512 {sc1}",
        "s_mov_b64 exec, -1", "s_waitcnt vmcnt(0)")
    for x in range(2): k.e(f"{MF} v[{S[x]}:{S[x]+15}], v[{KR}:{KR+3}], v[{Q[x]}:{Q[x]+3}], v[{C[x]}:{C[x]+15}]")
    k.e("s_nop 11")
    for x in range(2):
        for i in range(16): k.e(f"v_exp_f32 v{S[x]+i}, v{S[x]+i}")
        k.e("s_nop 0")
        for i in range(8): k.e(f"v_cvt_pk_bf16_f32 v{P[x]+i}, v{S[x]+2*i}, v{S[x]+2*i+1}")
    k.e("s_nop 1")
    for x in range(2):
        k.e(f"{MF} v[{O[x]}:{O[x]+15}], v[{VR}:{VR+3}], v[{P[x]}:{P[x]+3}], v[{O[x]}:{O[x]+15}]",
            f"{MF} v[{O[x]}:{O[x]+15}], v[{VR+4}:{VR+7}], v[{P[x]+4}:{P[x]+7}], v[{O[x]}:{O[x]+15}]")
    k.e("s_add_u32 s30, s30, 1024", "s_add_u32 s31, s31, 1024", "s_sub_u32 s36, s36, 1", "s_cmp_lg_u32 s36, 0", f"s_cbranch_scc1 L_{tag}_fb2")
    k.e("s_nop 11", f"s_branch L_{tag}_fin")

def k2_kernel(**kw):
    k = KV("k2_attn_kernel", nvgpr=256)
    k.e("s_cmp_ge_u32 s2, 256", f"s_cbranch_scc1 L_end_{k.name}")
    fx = srd(k, 20, 72, WS_SIZE)
    k.e("s_waitcnt lgkmcnt(0)"); k.e(*fx)
    k.e("s_and_b32 s3, s2, 7", "s_lshr_b32 s4, s2, 3", "s_and_b32 s5, s4, 3", "s_lshl_b32 s25, s3, 2", "s_add_u32 s25, s25, s5", "s_lshr_b32 s26, s4, 2")
    e2_body(k, **kw)
    k.wait_vm_all()
    k.label(f"L_end_{k.name}")
    k.e("s_endpgm")
    k.fb_code()
    return k

def e4_body(k, SD=12, SO=16, SWS=20, SX=8, SOUT=4, sc1="", tag="e4"):
    DEPTH = 8
    ACC = 64
    HR = 128
    WR = 16
    k.e("v_and_b32 v1, 63, v0", "v_lshrrev_b32 v10, 6, v0", "s_nop 0", "v_readfirstlane_b32 s24, v10")
    k.e("v_lshlrev_b32 v2, 4, v1")
    k.e("v_lshrrev_b32 v3, 3, v1", "v_lshlrev_b32 v3, 10, v3", "v_bfe_u32 v4, v1, 4, 1", "v_lshlrev_b32 v4, 2, v4", "v_and_b32 v5, 7, v1",
        "v_xor_b32 v4, v4, v5", "v_lshl_add_u32 v3, v4, 4, v3", "s_lshl_b32 s27, s26, 7", "v_add_u32 v3, s27, v3")
    k.e("v_lshrrev_b32 v4, 5, v1", "v_bfe_u32 v5, v1, 2, 2", "v_lshl_add_u32 v4, v4, 2, v5", "v_lshlrev_b32 v6, 7, v4",
        "v_bfe_u32 v4, v1, 4, 1", "v_lshlrev_b32 v4, 1, v4", "v_bfe_u32 v5, v1, 1, 1", "v_add_u32 v4, v4, v5",
        "v_bfe_u32 v5, v1, 3, 1", "v_lshlrev_b32 v5, 2, v5", "v_xor_b32 v4, v4, v5", "v_lshl_add_u32 v6, v4, 4, v6",
        "v_and_b32 v5, 1, v1", "v_lshl_add_u32 v6, v5, 3, v6", "s_lshl_b32 s28, s24, 14", "v_add_u32 v6, s28, v6", "v_xor_b32 v7, 64, v6")
    k.e("s_mul_i32 s29, s24, 458752",
        "s_mul_i32 s30, s25, 224", "s_mul_i32 s31, s24, 28", "s_add_u32 s30, s30, s31", "s_lshl_b32 s30, s30, 10", f"s_add_u32 s30, s30, 0x{WS_HF:x}",
        "s_lshl_b32 s34, s24, 17",
        "s_lshl_b32 s35, s25, 6", "s_lshl_b32 s31, s24, 3", "s_add_u32 s35, s35, s31", "s_lshl_b32 s35, s35, 10", f"s_add_u32 s35, s35, 0x{WS_OF:x}")
    NS = 36
    def issue(s):
        slot = s % DEPTH
        if s < 28: sr, sb, kk, hb, hstride = SD, 29, s, 30, 112*1024
        else: sr, sb, kk, hb, hstride = SO, 34, s - 28, 35, 32*1024
        for i in range(2):
            k.e(f"s_add_u32 m0, s28, {slot*2048 + i*1024}", f"s_add_u32 s33, s{sb}, {kk*16384 + i*8192}")
            k.vmem(f"buffer_load_dwordx4 v3, s[{sr}:{sr+3}], s33 offen lds", ("W", s))
        for tb in range(2):
            d = HR + slot*8 + 4*tb
            k.e(f"s_add_u32 s33, s{hb}, {kk*1024 + tb*hstride}")
            k.vmem(f"buffer_load_dwordx4 v[{d}:{d+3}], v2, s[{SWS}:{SWS+3}], s33 offen {sc1}", ("H", s))
    def reads(s):
        b = WR + 8*(s & 1); o = (s % DEPTH)*2048
        for cb2 in range(2):
            av = 6 + cb2
            k.ds(f"ds_read_b64_tr_b16 v[{b+4*cb2}:{b+4*cb2+1}], v{av} offset:{o}", ("r", s))
            k.ds(f"ds_read_b64_tr_b16 v[{b+4*cb2+2}:{b+4*cb2+3}], v{av} offset:{o+1024}", ("r", s))
    for s in range(DEPTH): issue(s)
    k.e("v_lshrrev_b32 v8, 3, v0", "s_lshl_b32 s31, s25, 6", "v_add_u32 v8, s31, v8", "v_lshlrev_b32 v8, 10, v8",
        "v_and_b32 v9, 7, v0", "v_lshl_add_u32 v8, v9, 4, v8", "v_add_u32 v8, s27, v8")
    k.vmem(f"buffer_load_dwordx4 v[32:35], v8, s[{SX}:{SX+3}], 0 offen", "x")
    k.e("s_mov_b32 s31, 32768")
    k.vmem(f"buffer_load_dwordx4 v[36:39], v8, s[{SX}:{SX+3}], s31 offen", "x")
    for i in range(64): k.e(f"v_mov_b32 v{ACC+i}, 0")
    k.wait_vm(("W", 0)); reads(0)
    for s in range(NS):
        if s + 1 < NS:
            k.wait_vm(("W", s + 1)); reads(s + 1)
        k.wait_vm(("H", s)); k.wait_lg(("r", s))
        b = WR + 8*(s & 1); h = HR + (s % DEPTH)*8
        for cb2 in range(2):
            for tb in range(2):
                a = ACC + 16*(cb2*2 + tb)
                k.e(f"{MF} v[{a}:{a+15}], v[{b+4*cb2}:{b+4*cb2+3}], v[{h+4*tb}:{h+4*tb+3}], v[{a}:{a+15}]")
        if s + DEPTH < NS: issue(s + DEPTH)
    k.e("s_nop 7", "s_barrier")
    RS = 272
    k.e("v_and_b32 v4, 31, v1", f"v_mul_u32_u24 v4, {RS}, v4", "v_lshrrev_b32 v5, 5, v1", "v_lshl_add_u32 v4, v5, 4, v4",
        f"s_mul_i32 s31, s24, {64*RS}", "v_add_u32 v4, s31, v4", "s_nop 3")
    for cb2 in range(2):
        for tb in range(2):
            a = ACC + 16*(cb2*2 + tb)
            for g in range(4):
                k.ds(f"ds_write_b128 v4, v[{a+4*g}:{a+4*g+3}] offset:{tb*32*RS + cb2*128 + g*32}")
    k.wait_lg_all()
    k.e("s_barrier")
    k.e("v_lshrrev_b32 v4, 3, v0", f"v_mul_u32_u24 v4, {RS}, v4", "v_and_b32 v5, 7, v0", "v_lshl_add_u32 v4, v5, 5, v4")
    for half in range(2):
        for w in range(4):
            d = 64 + half*32 + w*8
            for j in range(2):
                k.ds(f"ds_read_b128 v[{d+4*j}:{d+4*j+3}], v4 offset:{w*64*RS + half*32*RS + j*16}", ("rd", half))
    k.wait_vm("x")
    for half in range(2):
        k.wait_lg(("rd", half))
        d = 64 + half*32
        for i in range(8):
            k.e(f"v_add_f32 v{d+i}, v{d+i}, v{d+8+i}", f"v_add_f32 v{d+16+i}, v{d+16+i}, v{d+24+i}")
        for i in range(4):
            xr = 32 + 4*half + i
            k.e(f"v_lshlrev_b32 v{d+8+2*i}, 16, v{xr}", f"v_and_b32 v{d+9+2*i}, 0xffff0000, v{xr}")
        for i in range(8): k.e(f"v_add_f32 v{d+i}, v{d+i}, v{d+16+i}")
        for i in range(8): k.e(f"v_add_f32 v{d+i}, v{d+i}, v{d+8+i}")
        for i in range(4): k.e(f"v_cvt_pk_bf16_f32 v{40+4*half+i}, v{d+2*i}, v{d+2*i+1}")
        if half == 0: k.vmem(f"buffer_store_dwordx4 v[40:43], v8, s[{SOUT}:{SOUT+3}], 0 offen", "st")
        else: k.vmem(f"buffer_store_dwordx4 v[44:47], v8, s[{SOUT}:{SOUT+3}], s31 offen", "st") if False else None
    k.e("s_mov_b32 s31, 32768")
    k.vmem(f"buffer_store_dwordx4 v[44:47], v8, s[{SOUT}:{SOUT+3}], s31 offen", "st")

def k3_kernel():
    k = KV("k3_out_kernel", nvgpr=256)
    k.e("s_cmp_ge_u32 s2, 256", f"s_cbranch_scc1 L_end_{k.name}")
    fx = srd(k, 8, 0, SZ_X) + srd(k, 20, 72, WS_SIZE) + srd(k, 12, 48, SZ_WD) + srd(k, 16, 16, SZ_WO) + srd(k, 4, 56, SZ_X)
    k.e("s_waitcnt lgkmcnt(0)"); k.e(*fx)
    k.e("s_and_b32 s3, s2, 7", "s_lshr_b32 s27, s2, 3", "s_and_b32 s28, s27, 3", "s_lshl_b32 s25, s3, 2", "s_add_u32 s25, s25, s28", "s_lshr_b32 s26, s27, 2")
    e4_body(k)
    k.wait_vm_all()
    k.label(f"L_end_{k.name}")
    k.e("s_endpgm")
    return k
```

```python
import re, sys

REG = re.compile(r"\b([vsa])(\d+)\b|\b([vsa])\[(\d+):(\d+)\]|\b(vcc|exec|m0|scc)\b")
TRANS = ("v_exp_", "v_log_", "v_rcp_", "v_rsq_", "v_sqrt_", "v_sin_", "v_cos_")

def regs_of(tok):
    out = set()
    for m in REG.finditer(tok):
        if m.group(1): out.add((m.group(1), int(m.group(2))))
        elif m.group(3):
            for i in range(int(m.group(4)), int(m.group(5)) + 1): out.add((m.group(3), i))
        else:
            n = m.group(6)
            if n == "vcc": out |= {("s", 106), ("s", 107)}
            elif n == "exec": out |= {("s", 126), ("s", 127)}
            elif n == "m0": out.add(("s", 124))
    return out

def split_ops(rest):
    ops, depth, cur = [], 0, ""
    for ch in rest:
        if ch == "[": depth += 1
        if ch == "]": depth -= 1
        if ch == "," and depth == 0:
            ops.append(cur.strip()); cur = ""
        else: cur += ch
    if cur.strip(): ops.append(cur.strip())
    return ops

class I:
    pass

def parse(line):
    line = line.split(";")[0].strip()
    if not line or line.endswith(":") or line.startswith("."): return None
    parts = line.split(None, 1)
    op = parts[0]; rest = parts[1] if len(parts) > 1 else ""
    ops = split_ops(rest)
    i = I(); i.text = line; i.op = op; i.ops = ops
    i.w = set(); i.r = set(); i.kind = "other"; i.ws = 1
    i.dpp = ("quad_perm" in rest or "row_" in rest or "_dpp" in op or "wave_" in rest)
    i.sdwa = "_sdwa" in op or "op_sel" in rest
    def R(k): return regs_of(ops[k].split(" ")[0]) if k < len(ops) else set()
    def Rall(k): return regs_of(ops[k]) if k < len(ops) else set()
    if op == "s_nop":
        i.kind = "nop"; i.ws = int(ops[0], 0) + 1
    elif op.startswith("v_mfma") or op.startswith("v_smfmac"):
        i.kind = "mfma"; i.w = R(0); i.A = R(1); i.B = R(2); i.C = R(3); i.r = i.A | i.B | i.C
        i.passes = 8 if "32x32x16" in op else (4 if "16x16x32" in op else 16)
    elif op.startswith("v_"):
        i.kind = "valu"
        i.trans = op.startswith(TRANS)
        i.dot = op.startswith("v_dot")
        i.perml = op.startswith("v_permlane")
        i.rdl = op.startswith("v_readlane") or op.startswith("v_readfirstlane")
        if op.startswith("v_cmp"):
            if op.startswith("v_cmpx"): i.w = {("s", 126), ("s", 127)} | (R(0) if not ops[0].startswith("v") else set())
            else: i.w = R(0)
            for k in range(1, len(ops)): i.r |= R(k)
        elif i.perml and "swap" in op:
            i.w = R(0) | R(1); i.r = R(0) | R(1)
        else:
            i.w = R(0)
            k0 = 1
            if "_co_" in op and len(ops) >= 4 and (ops[1].startswith("vcc") or ops[1].startswith("s")):
                i.w |= R(1); k0 = 2
            for k in range(k0, len(ops)): i.r |= R(k)
            if op.startswith(("v_fmac", "v_mac", "v_dot2c", "v_pk_fmac", "v_writelane")) or i.dpp or i.sdwa: i.r |= R(0)
            if op.startswith("v_cndmask") and len(ops) == 3: i.r |= {("s", 106), ("s", 107)}
            if op.endswith("_e32") and op.startswith("v_cndmask"): i.r |= {("s", 106), ("s", 107)}
    elif op.startswith("ds_"):
        i.kind = "ds"
        if op.startswith(("ds_read", "ds_bpermute", "ds_permute", "ds_swizzle")) or "_rtn" in op:
            i.w = R(0)
            for k in range(1, len(ops)): i.r |= R(k)
            i.load = True
        else:
            for k in range(len(ops)): i.r |= R(k)
            i.load = False
    elif op.startswith("buffer_") or op.startswith("global_") or op.startswith("flat_"):
        i.kind = "vmem"
        i.lds = (" lds" in " " + rest) or "_lds_" in op
        i.store = "store" in op
        i.wide = i.store and ("x4" in op or "x3" in op)
        i.data = set()
        if op in ("buffer_inv", "buffer_wbl2"): pass
        elif op.startswith("buffer_"):
            if i.lds:
                for k in range(len(ops)): i.r |= R(k)
            elif i.store or "atomic" in op:
                i.data = R(0)
                for k in range(len(ops)): i.r |= R(k)
                if "atomic" in op and ("sc0" in rest): i.w = R(0)
            else:
                i.w = R(0)
                for k in range(1, len(ops)): i.r |= R(k)
        else:
            if i.lds:
                for k in range(len(ops)): i.r |= R(k)
            elif i.store:
                i.data = R(1)
                for k in range(len(ops)): i.r |= R(k)
            elif "atomic" in op:
                if "sc0" in rest:
                    i.w = R(0)
                    for k in range(1, len(ops)): i.r |= R(k)
                else:
                    for k in range(len(ops)): i.r |= R(k)
            else:
                i.w = R(0)
                for k in range(1, len(ops)): i.r |= R(k)
        if i.lds: i.r.add(("s", 124))
    elif op.startswith("s_"):
        i.kind = "salu"
        if op.startswith(("s_cmp", "s_cbranch", "s_branch", "s_waitcnt", "s_barrier", "s_endpgm", "s_setprio", "s_sleep", "s_bitcmp", "s_setreg")):
            for k in range(len(ops)): i.r |= R(k)
        else:
            i.w = R(0)
            for k in range(1, len(ops)): i.r |= R(k)
            if "saveexec" in op: i.w |= {("s", 126), ("s", 127)}
    return i

def V(s): return {x for x in s if x[0] in "va"}
def S(s): return {x for x in s if x[0] == "s"}

def need(p, c):
    n = 0; why = ""
    def up(k, w):
        nonlocal n, why
        if k > n: n, why = k, w
    if p.kind == "valu":
        pw = V(p.w); ps = S(p.w)
        if c.kind == "valu":
            if pw & V(c.r):
                if c.dpp:
                    pass
                if c.perml: up(2, "valu->permlane")
                if c.rdl: up(1, "valu->readlane")
                if p.trans and not c.trans: up(1, "trans->valu")
                if p.trans and c.trans: up(1, "trans->trans(consv)")
                if p.dot and not (c.dot and c.op == p.op): up(3, "dot->other")
                if p.sdwa: up(1, "sdwa/opsel->valu")
            if c.dpp and c.ops and len(c.ops) > 1 and (pw & regs_of(c.ops[1].split(" ")[0])): up(2, "valu->dpp")
            if p.dot and (pw & V(c.w)) and not (c.dot and c.op == p.op): up(3, "dot->other(w)")
            if ps & S(c.r):
                up(2, "valu sgpr->valu read")
                if c.op.startswith(("v_readlane", "v_writelane")): up(4, "valu sgpr->lane select(consv)")
            if (ps & {("s", 126), ("s", 127)}):
                if c.dpp: up(5, "valu exec->dpp")
                if c.perml or c.rdl: up(4, "exec->permlane/readlane")
        if c.kind == "mfma":
            if pw & c.r: up(2, "valu->mfma")
            if ps & {("s", 126), ("s", 127)}: up(4, "valu exec->mfma")
        if c.kind == "vmem":
            if ps & S(c.r): up(5, "valu sgpr->vmem")
            if p.dot and (pw & V(c.r)): up(3, "dot->vmem")
        if c.kind == "ds" and p.dot and (pw & V(c.r)): up(3, "dot->ds")
    if p.kind == "salu":
        if ("s", 124) in p.w and c.kind == "vmem" and c.lds: up(1, "m0->lds dma")
    if p.kind == "mfma":
        big = {8: 12, 4: 8, 16: 20}[p.passes]
        if c.kind == "mfma":
            if p.w & c.C:
                if p.w == c.C and p.passes == c.passes: pass
                else: up({8: 10, 4: 6, 16: 18}[p.passes], "mfma D->C partial")
            if p.w & (c.A | c.B): up(big, "mfma D->A/B")
            if (p.w & c.w) and not (p.w & c.C):
                up(big, "mfma D->mfma D WAW (consv)")
        elif c.kind == "valu":
            if p.w & (V(c.r) | V(c.w)): up(big, "mfma D->valu")
            if p.C & V(c.w): up({8: 7, 4: 3, 16: 15}[p.passes], "mfma C WAR valu")
        elif c.kind in ("vmem", "ds"):
            if p.w & (V(c.r) | V(c.w)): up(big, "mfma D->mem")
            if p.C & V(c.w): up({8: 7, 4: 3, 16: 15}[p.passes], "mfma C WAR load(consv)")
    if p.kind == "vmem" and getattr(p, "wide", False):
        if c.kind == "valu" and (p.data & V(c.w)): up(2, "wide store WAR valu")
        elif (p.data & V(c.w)): up(1, "wide store WAR")
    if p.kind == "ds" and not p.load and p.op.endswith(("b128", "b96")):
        pass
    return n, why

def check_seq(ins, tag=""):
    errs = []
    for j, c in enumerate(ins):
        dist = 0
        for i in range(j - 1, max(-1, j - 24), -1):
            p = ins[i]
            n, why = need(p, c)
            if n > dist:
                errs.append(f"{tag}HAZARD {why}: need {n} have {dist}\n    {p.text}\n    {c.text}")
            dist += p.ws
            if dist >= 20: break
    return errs

def check_text(text):
    lines = text.split("\n")
    ins = []; labels = {}
    for l in lines:
        s = l.split(";")[0].strip()
        if s.endswith(":") and not s.startswith("."):
            labels[s[:-1]] = len(ins); continue
        p = parse(l)
        if p is not None: ins.append(p)
    errs = check_seq(ins)
    for j, c in enumerate(ins):
        if c.op.startswith(("s_cbranch", "s_branch")):
            t = c.ops[0]
            if t in labels:
                i = labels[t]
                seq = ins[max(0, j - 24): j + 1] + ins[i: i + 24]
                e = check_seq(seq, tag=f"[branch {t}] ")
                errs += e
    seen = set(); out = []
    for e in errs:
        if e not in seen: seen.add(e); out.append(e)
    return out

if __name__ == "__main__":
    e = check_text(open(sys.argv[1]).read())
    for x in e: print(x)
    print(len(e), "hazards")
```

```python
import sys
sys.path.insert(0, "gen")
from eng import *
import haz
def build(fn, **kw):
    ks = [k0_kernel(), k1_kernel(), k2_kernel(**kw), k3_kernel()]
    launches = [(ks[0].name, (288,1,1), (256,1,1), 4096), (ks[1].name, (480,1,1), (256,1,1), 81920),
                (ks[2].name, (256,1,1), (256,1,1), 49152), (ks[3].name, (256,1,1), (256,1,1), 69632)]
    txt = build_file(launches, ks)
    open(fn, "w").write(txt)
    e = haz.check_text(txt)
    for x in e: print(x)
    print(fn, len(e), "hazards;", len(txt), "bytes")
build("t2.s")
build("t2fb.s", force_fb=True)
KV.STAMP = True
build("t2st.s")
```

```python
from agen import *

WS_TOK = 0x000000
WS_COL = 0x010000
WS_QF  = 0x100000
WS_KF  = 0x300000
WS_VF  = 0x500000
WS_HF  = 0x700000
WS_OF  = 0xE00000
WS_SIZE = 0x1100000
WS_DBG = 0x1000000
LOG2E = 1.4426950408889634

import struct
def f2u(x): return struct.unpack("<I", struct.pack("<f", x))[0]

class KV(Kernel):
    def __init__(self, *a, **kw):
        super().__init__(*a, **kw)
        self.vm = []
        self.lg = []
    def vmem(self, txt, tag=None):
        self.e(txt); self.vm.append(tag)
    def wait_vm(self, *tags):
        idx = [i for i, t in enumerate(self.vm) if t in tags]
        if not idx: return
        last = max(idx)
        n = len(self.vm) - 1 - last
        assert n <= 63
        self.e(f"s_waitcnt vmcnt({n})")
        self.vm = self.vm[last + 1:]
    def wait_vm_all(self):
        self.e("s_waitcnt vmcnt(0)"); self.vm = []
    def ds(self, txt, tag=None):
        self.e(txt); self.lg.append(tag)
    def wait_lg(self, *tags):
        idx = [i for i, t in enumerate(self.lg) if t in tags]
        if not idx: return
        last = max(idx)
        n = min(15, len(self.lg) - 1 - last)
        self.e(f"s_waitcnt lgkmcnt({n})")
        self.lg = self.lg[len(self.lg) - n:] if n else []
    STAMP = False
    def stamp(self, idx):
        if not KV.STAMP: return
        self.e("s_memtime s[60:61]", "s_memrealtime s[62:63]", "s_waitcnt lgkmcnt(0)",
               f"s_mov_b32 s{64+2*idx}, s60", f"s_mov_b32 s{65+2*idx}, s62")
        self.lg = []
    def stamp_out(self, n, base, SWS=20):
        if not KV.STAMP: return
        self.e("v_lshrrev_b32 v250, 6, v0", "s_lshl_b32 s60, s2, 2", "v_add_u32 v250, s60, v250", "v_lshlrev_b32 v250, 6, v250",
               f"v_add_u32 v250, 0x{WS_DBG + base:x}, v250", "v_and_b32 v251, 63, v0", "v_cmp_eq_u32 vcc, 0, v251", "s_and_saveexec_b64 s[60:61], vcc")
        for i in range(2*n):
            self.e(f"v_mov_b32 v251, s{64+i}", f"buffer_store_dword v251, v250, s[{SWS}:{SWS+3}], 0 offen offset:{4*i}", "s_nop 1")
        self.e("s_mov_b64 exec, s[60:61]")
    def wait_lg_all(self):
        if self.lg:
            self.e("s_waitcnt lgkmcnt(0)")
        self.lg = []

def srd(k, d, karg_off, nbytes):
    k.e(f"s_load_dwordx2 s[{d}:{d+1}], s[0:1], {karg_off}")
    return [f"s_mov_b32 s{d+2}, 0x{nbytes:x}", f"s_mov_b32 s{d+3}, 0x00020000"]

SZ_X = 2048*512*2; SZ_WQKV = 512*1536*2; SZ_WO = 512*512*2; SZ_WG = 512*1792*2; SZ_WD = 1792*512*2

def allreduce(k, regs, tmps):
    n = len(regs)
    pad = max(0, 2 - (n - 1))
    for mode in ("quad_perm:[1,0,3,2]", "quad_perm:[2,3,0,1]", "row_half_mirror", "row_mirror"):
        for r in regs:
            k.e(f"v_add_f32_dpp v{r}, v{r}, v{r} {mode} row_mask:0xf bank_mask:0xf")
        if pad: k.e(f"s_nop {pad-1}")
    for sw in ("v_permlane16_swap_b32", "v_permlane32_swap_b32"):
        for r, t in zip(regs, tmps): k.e(f"v_mov_b32 v{t}, v{r}")
        k.e("s_nop 1")
        for r, t in zip(regs, tmps): k.e(f"{sw} v{r}, v{t}")
        k.e("s_nop 1")
        for r, t in zip(regs, tmps): k.e(f"v_add_f32 v{r}, v{r}, v{t}")
    k.e("s_nop 1")

def row_job(k, s_job, srd_x, srd_ws, sc1=""):
    k.e("v_and_b32 v1, 63, v0", "v_lshrrev_b32 v2, 6, v0", f"s_lshl_b32 s40, s{s_job}, 14",
        "v_lshlrev_b32 v3, 12, v2", "v_lshl_add_u32 v3, v1, 4, v3", "v_add_u32 v3, s40, v3")
    for j in range(4):
        k.vmem(f"buffer_load_dwordx4 v[{4+4*j}:{7+4*j}], v3, s[{srd_x}:{srd_x+3}], 0 offen offset:{1024*j}", "rj")
    k.e("v_bfe_u32 v72, v1, 1, 2", "v_cmp_eq_u32 s[42:43], 1, v72", "v_cmp_eq_u32 s[44:45], 2, v72", "v_cmp_eq_u32 s[46:47], 3, v72")
    k.wait_vm("rj")
    for j in range(4):
        for i in range(4):
            k.e(f"v_lshlrev_b32 v{32+8*j+2*i}, 16, v{4+4*j+i}", f"v_and_b32 v{33+8*j+2*i}, 0xffff0000, v{4+4*j+i}")
    for j in range(4):
        b = 32 + 8*j
        k.e(f"v_add_f32 v{20+j}, v{b}, v{b+1}")
    for i in range(2, 8):
        for j in range(4):
            k.e(f"v_add_f32 v{20+j}, v{20+j}, v{32+8*j+i}")
    allreduce(k, [20, 21, 22, 23], [24, 25, 26, 27])
    for j in range(4): k.e(f"v_mul_f32 v{20+j}, 0x3b000000, v{20+j}")
    for i in range(8):
        for j in range(4): k.e(f"v_sub_f32 v{32+8*j+i}, v{32+8*j+i}, v{20+j}")
    for j in range(4): k.e(f"v_mul_f32 v{28+j}, v{32+8*j}, v{32+8*j}")
    for i in range(1, 8):
        for j in range(4): k.e(f"v_fmac_f32 v{28+j}, v{32+8*j+i}, v{32+8*j+i}")
    allreduce(k, [28, 29, 30, 31], [24, 25, 26, 27])
    k.e("v_cndmask_b32 v64, v20, v21, s[42:43]", "v_cndmask_b32 v65, v28, v29, s[42:43]",
        "v_cndmask_b32 v64, v64, v22, s[44:45]", "v_cndmask_b32 v65, v65, v30, s[44:45]",
        "v_cndmask_b32 v64, v64, v23, s[46:47]", "v_cndmask_b32 v65, v65, v31, s[46:47]")
    k.e("v_mov_b32 v66, 0x3727c5ac", "v_fmac_f32 v66, 0x3b000000, v65",
        "v_rsq_f32 v67, v66", "v_sub_f32 v64, 0, v64",
        "v_mul_f32 v68, v66, v67",
        "v_cvt_pk_bf16_f32 v69, v64, v64", "s_nop 0", "v_and_b32 v69, 0xffff0000, v69", "v_sub_f32 v70, v64, v69",
        "v_cvt_pk_bf16_f32 v69, v70, v70", "s_nop 0", "v_and_b32 v69, 0xffff0000, v69", "v_sub_f32 v71, v70, v69",
        "v_cvt_pk_bf16_f32 v4, v64, v70", "v_cvt_pk_bf16_f32 v6, v71, v64",
        "v_and_b32 v72, 1, v1", "v_cmp_eq_u32 vcc, 1, v72", "v_mov_b32 v5, v4", "v_mov_b32 v7, 0",
        "v_cndmask_b32 v4, v4, v67, vcc", "v_cndmask_b32 v5, v5, v68, vcc", "v_cndmask_b32 v6, v6, v7, vcc")
    k.e(f"s_lshl_b32 s40, s{s_job}, 9", "v_lshlrev_b32 v3, 7, v2", "v_lshl_add_u32 v3, v1, 4, v3", "v_add_u32 v3, s40, v3",
        "v_cmp_gt_u32 vcc, 8, v1", "s_and_saveexec_b64 s[42:43], vcc")
    k.vmem(f"buffer_store_dwordx4 v[4:7], v3, s[{srd_ws}:{srd_ws+3}], 0 offen offset:{WS_TOK} {sc1}", "st")
    k.e("s_mov_b64 exec, s[42:43]")

def col_job(k, s_job, srd_w, s_ld, s_col0b, srd_ws, ldsbase=0, sc1=""):
    k.e("v_and_b32 v1, 63, v0", "v_lshrrev_b32 v2, 6, v0", "v_lshrrev_b32 v3, 2, v1", "v_lshl_add_u32 v3, v2, 7, v3",
        f"v_mul_lo_u32 v3, v3, s{s_ld}", "v_and_b32 v4, 3, v1", "v_lshl_add_u32 v3, v4, 4, v3", f"v_add_u32 v3, s{s_col0b}, v3",
        f"s_lshl_b32 s41, s{s_ld}, 4", "s_mov_b32 s40, 0")
    for i in range(8):
        k.vmem(f"buffer_load_dwordx4 v[{8+4*i}:{11+4*i}], v3, s[{srd_w}:{srd_w+3}], s40 offen", ("cj", i))
        if i < 7: k.e("s_add_u32 s40, s40, s41")
    k.e("s_mov_b32 s42, 0x00003f80", "s_mov_b32 s43, 0x3f800000")
    for i in range(8): k.e(f"v_mov_b32 v{40+i}, 0")
    for i in range(8):
        k.wait_vm(("cj", i))
        for d in range(4):
            k.e(f"v_dot2_f32_bf16 v{40+2*d}, v{8+4*i+d}, s42, v{40+2*d}", f"v_dot2_f32_bf16 v{41+2*d}, v{8+4*i+d}, s43, v{41+2*d}")
    k.e("s_nop 2")
    for mode in ("row_ror:4", "row_ror:8"):
        for i in range(8): k.e(f"v_add_f32_dpp v{40+i}, v{40+i}, v{40+i} {mode} row_mask:0xf bank_mask:0xf")
    k.e("v_lshrrev_b32 v5, 4, v1", "v_lshl_add_u32 v5, v2, 2, v5", "v_lshlrev_b32 v5, 7, v5", "v_lshl_add_u32 v5, v4, 5, v5",
        "v_and_b32 v6, 15, v1", "v_cmp_gt_u32 vcc, 4, v6", "s_and_saveexec_b64 s[44:45], vcc")
    k.ds(f"ds_write_b128 v5, v[40:43] offset:{ldsbase}")
    k.ds(f"ds_write_b128 v5, v[44:47] offset:{ldsbase+16}")
    k.e("s_mov_b64 exec, s[44:45]")
    k.wait_lg_all()
    k.e("s_barrier")
    k.e("v_cmp_gt_u32 vcc, 32, v0", "s_and_saveexec_b64 s[44:45], vcc", "v_lshlrev_b32 v5, 2, v0")
    for p in range(16): k.ds(f"ds_read_b32 v{8+p}, v5 offset:{ldsbase+128*p}")
    k.wait_lg_all()
    for st in (8, 4, 2, 1):
        for p in range(st): k.e(f"v_add_f32 v{8+p}, v{8+p}, v{8+p+st}")
    k.e("s_nop 0",
        "v_cvt_pk_bf16_f32 v12, v8, v8", "s_nop 0", "v_and_b32 v9, 0xffff0000, v12", "v_sub_f32 v9, v8, v9",
        "v_cvt_pk_bf16_f32 v13, v9, v9", "s_nop 0", "v_and_b32 v10, 0xffff0000, v13", "v_sub_f32 v10, v9, v10",
        "v_cvt_pk_bf16_f32 v14, v8, v10", "v_mov_b32 v15, 0",
        f"s_lshl_b32 s40, s{s_job}, 9", "v_lshlrev_b32 v5, 4, v0", "v_add_u32 v5, s40, v5", f"s_mov_b32 s40, {WS_COL}")
    k.vmem(f"buffer_store_dwordx4 v[12:15], v5, s[{srd_ws}:{srd_ws+3}], s40 offen {sc1}", "st")
    k.e("s_mov_b64 exec, s[44:45]")

def k0_kernel():
    k = KV("k0_stats_kernel", nvgpr=96)
    k.e("s_cmp_ge_u32 s2, 288", f"s_cbranch_scc1 L_end_{k.name}")
    fx = srd(k, 8, 0, SZ_X) + srd(k, 20, 72, WS_SIZE)
    k.e("s_load_dwordx2 s[28:29], s[0:1], 8", "s_load_dwordx2 s[30:31], s[0:1], 32", "s_load_dwordx2 s[32:33], s[0:1], 40")
    k.e("s_waitcnt lgkmcnt(0)"); k.e(*fx)
    k.e("s_cmp_ge_u32 s2, 128", "s_cbranch_scc1 L_k0_col")
    row_job(k, 2, 8, 20)
    k.e("s_branch L_k0_done")
    k.label("L_k0_col")
    k.e("s_sub_u32 s3, s2, 128")
    k.e("s_mov_b32 s12, s28", "s_mov_b32 s13, s29", f"s_mov_b32 s14, {SZ_WQKV}", "s_mov_b32 s15, 0x00020000",
        "s_movk_i32 s16, 3072", "s_lshl_b32 s17, s3, 6",
        "s_cmp_lt_u32 s3, 48", "s_cbranch_scc1 L_k0_go",
        "s_mov_b32 s12, s30", "s_mov_b32 s13, s31", f"s_mov_b32 s14, {SZ_WG}", "s_movk_i32 s16, 3584",
        "s_sub_u32 s17, s3, 48", "s_lshl_b32 s17, s17, 6",
        "s_cmp_lt_u32 s3, 104", "s_cbranch_scc1 L_k0_go",
        "s_mov_b32 s12, s32", "s_mov_b32 s13, s33", "s_sub_u32 s17, s3, 104", "s_lshl_b32 s17, s17, 6")
    k.label("L_k0_go")
    col_job(k, 3, 12, 16, 17, 20)
    k.label("L_k0_done")
    k.wait_vm_all()
    k.label(f"L_end_{k.name}")
    k.e("s_endpgm")
    return k

def gemm_loop(k, nunits, mfmas, reads, dmas, vm_need, fill=6, dma_first_gap=0):
    def tagof(g, name): return ("fr", g, name)
    for u in range(nunits):
        g0, g1 = 2*u, 2*u + 1
        k.wait_vm(*vm_need(u))
        k.wait_lg_all()
        k.e("s_barrier")
        R0 = list(reads(g0, 0)); R1 = list(reads(g1, 1))
        prev = list(mfmas(g0 - 1, 1)) if u > 0 else []
        cur = list(mfmas(g0, 0))
        D = list(dmas(u))
        rel = {}
        for i, (t, used) in enumerate(prev):
            for nm in used: rel[nm] = i
        def emit_reads(i, budget):
            n = 0
            while n < budget and R0:
                t, nm = R0.pop(0); k.ds(t, tagof(g0, nm)); n += 1
            j = 0
            while n < budget and j < len(R1):
                t, nm = R1[j]
                if rel.get(nm, -1) <= i:
                    k.ds(t, tagof(g1, nm)); R1.pop(j); n += 1
                else: j += 1
            return n
        if not prev:
            emit_reads(-1, 1000)
        for i, (t, used) in enumerate(prev):
            k.e(t)
            emit_reads(i, fill)
        emit_reads(10**6, 1000)
        ngap = len(cur)
        per = -(-len(D) // ngap) if D else 0
        for j, (t, used) in enumerate(cur):
            k.wait_lg(*[tagof(g0, nm) for nm in used])
            k.e(t)
            for _ in range(per):
                if D:
                    for (txt, tag, isvm) in D.pop(0):
                        if isvm: k.vmem(txt, tag)
                        else: k.e(txt)
        assert not D
    k.wait_lg_all()
    for (t, used) in mfmas(2*nunits - 1, 1): k.e(t)

def dma(srd_, voff, s_m0base, m0imm, s_tmp, soff, tag, imm=0):
    out = [(f"s_add_u32 m0, s{s_m0base}, {m0imm - imm}" , None, False)]
    out.append((f"s_mov_b32 s{s_tmp}, 0x{soff:x}", None, False))
    o = f" offset:{imm}" if imm else ""
    out.append((f"buffer_load_dwordx4 v{voff}, s[{srd_}:{srd_+3}], s{s_tmp} offen{o} lds", tag, True))
    return out

def emit_groups(k, groups):
    for gr in groups:
        for (txt, tag, isvm) in gr:
            if isvm: k.vmem(txt, tag)
            else: k.e(txt)

MF = "v_mfma_f32_32x32x16_bf16"

def e1_body(k, SX=8, SW=12, SWS=20, sc1=""):
    E1_XB = 49152
    k.e("v_and_b32 v1, 63, v0", "v_lshrrev_b32 v10, 6, v0", "s_nop 0", "v_readfirstlane_b32 s24, v10")
    k.e("v_and_b32 v11, 31, v1", "v_lshrrev_b32 v12, 5, v1")
    k.e("s_and_b32 s27, s24, 1", "s_lshr_b32 s28, s24, 1")
    k.e("v_lshrrev_b32 v13, 3, v1", "v_lshrrev_b32 v14, 4, v1", "v_and_b32 v15, 7, v1",
        "v_xor_b32 v7, v15, v14", "v_lshlrev_b32 v7, 4, v7", "v_lshl_add_u32 v7, v13, 10, v7",
        "s_lshl_b32 s29, s25, 16", "s_lshl_b32 s30, s24, 14", "s_add_u32 s29, s29, s30",
        "v_add_u32 v7, s29, v7", "v_xor_b32 v8, 64, v7", "v_add_u32 v8, 8192, v8")
    k.e("v_and_b32 v14, 1, v14", "v_lshlrev_b32 v14, 2, v14", "v_xor_b32 v9, v15, v14", "v_lshlrev_b32 v9, 4, v9",
        "s_lshl_b32 s30, s24, 3", "v_add_u32 v13, s30, v13", "v_mul_u32_u24 v13, 3072, v13", "v_add_u32 v9, v9, v13",
        "s_lshl_b32 s30, s26, 7", "v_add_u32 v9, s30, v9")
    k.e(f"s_lshl_b32 s31, s24, 11", f"s_add_u32 s31, s31, {E1_XB}", "s_lshl_b32 s32, s24, 10")
    def xd(v):
        return [dma(SX, 7, 31, (v % 3)*8192, 33, v*128, ("X", v)), dma(SX, 8, 31, (v % 3)*8192 + 1024, 33, v*128, ("X", v))]
    def wd(u):
        return [dma(SW, 9, 32, (u % 4)*12288 + p*4096, 33, u*32*3072, ("W", u), imm=1024*p) for p in range(3)]
    emit_groups(k, xd(0) + wd(0) + wd(1) + xd(1) + wd(2))
    for i in range(48, 64): k.e(f"v_mov_b32 v{i}, 0")
    k.e("s_lshl_b32 s34, s25, 6", "s_lshl_b32 s35, s27, 5", "s_add_u32 s34, s34, s35",
        "v_add_u32 v13, s34, v11", "v_lshlrev_b32 v13, 5, v13")
    k.vmem(f"buffer_load_dword v112, v13, s[{SWS}:{SWS+3}], 0 offen offset:{WS_TOK+16} {sc1}", "ex")
    k.e("s_lshl_b32 s35, s26, 6", "s_lshl_b32 s36, s28, 5", "s_add_u32 s35, s35, s36",
        "v_add_u32 v14, s35, v11", "v_lshlrev_b32 v14, 4, v14", f"s_mov_b32 s36, {WS_COL}",
        "s_mov_b64 exec, 0xffffffff")
    k.vmem(f"buffer_load_dwordx4 v[48:51], v13, s[{SWS}:{SWS+3}], 0 offen offset:{WS_TOK} {sc1}", "ex")
    for p in range(3):
        k.vmem(f"buffer_load_dwordx4 v[{52+4*p}:{55+4*p}], v14, s[{SWS}:{SWS+3}], s36 offen {sc1}", "ex")
        if p < 2: k.e("s_add_u32 s36, s36, 8192")
    k.e("s_mov_b64 exec, -1")
    k.e("s_lshl_b32 s36, s27, 5", "v_add_u32 v13, s36, v11", "v_bfe_u32 v14, v13, 1, 3", "v_xor_b32 v14, v14, v12",
        "v_lshlrev_b32 v14, 4, v14", "v_lshl_add_u32 v2, v13, 7, v14", f"v_add_u32 v2, {E1_XB}, v2",
        "v_xor_b32 v3, 32, v2", "v_xor_b32 v4, 64, v2", "v_xor_b32 v5, 96, v2")
    k.e("v_bfe_u32 v13, v1, 2, 2", "v_lshl_add_u32 v13, v12, 3, v13", "v_lshlrev_b32 v6, 7, v13",
        "v_bfe_u32 v13, v1, 4, 1", "v_lshlrev_b32 v13, 1, v13", "v_bfe_u32 v14, v1, 1, 1", "v_add_u32 v13, v13, v14",
        "s_lshl_b32 s36, s28, 2", "v_add_u32 v13, s36, v13", "v_bfe_u32 v14, v1, 3, 1", "v_lshlrev_b32 v14, 2, v14",
        "v_xor_b32 v13, v13, v14", "v_lshl_add_u32 v6, v13, 4, v6", "v_and_b32 v14, 1, v1", "v_lshl_add_u32 v6, v14, 3, v6")
    for i in range(64, 112): k.e(f"v_mov_b32 v{i}, 0")
    def fr(st): return 16 + 16*st
    def reads(g, st):
        b = fr(st); u = g >> 1; v = g >> 2
        out = [(f"ds_read_b128 v[{b}:{b+3}], v{2 + (g & 3)} offset:{(v % 3)*8192}", "X")]
        for p in range(3):
            o = (u % 4)*12288 + p*4096 + (g & 1)*2048
            out.append((f"ds_read_b64_tr_b16 v[{b+4+4*p}:{b+5+4*p}], v6 offset:{o}", f"W{p}"))
            out.append((f"ds_read_b64_tr_b16 v[{b+6+4*p}:{b+7+4*p}], v6 offset:{o+512}", f"W{p}"))
        return out
    def mf(b_x, b_w):
        out = []
        for p in range(3):
            a = 64 + 16*p
            w = f"v[{b_w+4*p}:{b_w+4*p+3}]"; x = f"v[{b_x}:{b_x+3}]"
            A, B = (w, x) if p < 2 else (x, w)
            out.append((f"{MF} v[{a}:{a+15}], {A}, {B}, v[{a}:{a+15}]", ["X", f"W{p}"]))
        return out
    def mfmas(g, st): return mf(fr(st), fr(st) + 4)
    def dmas(u):
        out = []
        if u + 3 < 16: out += wd(u + 3)
        if u % 2 == 0 and u//2 + 2 < 8: out += xd(u//2 + 2)
        return out
    k.stamp(1)
    gemm_loop(k, 16, mfmas, reads, dmas, lambda u: [("W", u), ("X", u >> 1)])
    k.stamp(2)
    k.wait_vm("ex")
    for (t, _) in mf(48, 52): k.e(t)
    k.e("s_lshl_b32 s36, s24, 7", "v_lshlrev_b32 v13, 2, v11", "v_add_u32 v13, s36, v13")
    k.ds("ds_write_b32 v13, v112")
    k.e("v_lshlrev_b32 v13, 4, v12", "v_add_u32 v13, s36, v13")
    k.wait_lg_all()
    for gq in range(4): k.ds(f"ds_read_b128 v[{32+4*gq}:{35+4*gq}], v13 offset:{32*gq}")
    k.e(f"v_mul_f32 v113, 0x{f2u(0.25*LOG2E):08x}, v112")
    k.e("v_lshlrev_b32 v10, 4, v1",
        "s_lshl_b32 s36, s26, 2", "s_lshl_b32 s37, s28, 1", "s_add_u32 s36, s36, s37", "s_lshl_b32 s36, s36, 16",
        "s_lshl_b32 s37, s25, 1", "s_add_u32 s37, s37, s27", "s_lshl_b32 s37, s37, 10", "s_add_u32 s36, s36, s37")
    k.e("s_nop 4")
    for p, (scale, base) in enumerate(((113, WS_QF), (112, WS_KF))):
        a = 64 + 16*p
        for r in range(16): k.e(f"v_mul_f32 v{a+r}, v{a+r}, v{scale}")
        for j in range(2):
            d = 16 + 8*p + 4*j
            for i in range(4): k.e(f"v_cvt_pk_bf16_f32 v{d+i}, v{a+8*j+2*i}, v{a+8*j+2*i+1}")
            k.e(f"s_add_u32 s37, s36, 0x{base + j*65536:x}")
            k.vmem(f"buffer_store_dwordx4 v[{d}:{d+3}], v10, s[{SWS}:{SWS+3}], s37 offen {sc1}", "st")
    k.wait_lg_all()
    a = 96
    for r in range(16): k.e(f"v_mul_f32 v{a+r}, v{a+r}, v{32+r}")
    k.e("v_lshrrev_b32 v13, 4, v11", "v_lshlrev_b32 v13, 16, v13", "v_lshl_add_u32 v13, v12, 8, v13", "v_and_b32 v14, 15, v11",
        "v_lshl_add_u32 v13, v14, 4, v13", f"s_add_u32 s37, s36, 0x{WS_VF:x}")
    for j in range(2):
        d = 48 + 4*j
        for i in range(4): k.e(f"v_cvt_pk_bf16_f32 v{d+i}, v{a+8*j+2*i}, v{a+8*j+2*i+1}")
        k.vmem(f"buffer_store_dwordx4 v[{d}:{d+3}], v13, s[{SWS}:{SWS+3}], s37 offen offset:{512*j} {sc1}", "st")

def e3_body(k, SX=8, SG=12, SU=16, SWS=20, sc1=""):
    XB = 49152
    k.e("v_and_b32 v1, 63, v0", "v_lshrrev_b32 v10, 6, v0", "s_nop 0", "v_readfirstlane_b32 s24, v10")
    k.e("v_and_b32 v11, 31, v1", "v_lshrrev_b32 v12, 5, v1")
    k.e("s_and_b32 s27, s24, 1", "s_lshr_b32 s28, s24, 1")
    k.e("v_lshrrev_b32 v13, 3, v1", "v_lshrrev_b32 v14, 4, v1", "v_and_b32 v15, 7, v1",
        "v_xor_b32 v7, v15, v14", "v_lshlrev_b32 v7, 4, v7", "v_lshl_add_u32 v7, v13, 10, v7",
        "s_lshl_b32 s29, s25, 17", "s_lshl_b32 s30, s24, 15", "s_add_u32 s29, s29, s30",
        "v_add_u32 v7, s29, v7", "v_xor_b32 v8, 64, v7", "v_add_u32 v8, 8192, v8")
    k.e("v_lshlrev_b32 v13, 2, v14", "v_and_b32 v15, 15, v1", "v_xor_b32 v9, v15, v13", "v_lshlrev_b32 v9, 4, v9",
        "s_lshl_b32 s30, s24, 3", "v_add_u32 v13, s30, v14", "v_mul_u32_u24 v13, 3584, v13", "v_add_u32 v9, v9, v13",
        "s_lshl_b32 s30, s26, 8", "v_add_u32 v9, s30, v9")
    k.e(f"s_lshl_b32 s31, s24, 12", f"s_add_u32 s31, s31, {XB}", "s_lshl_b32 s32, s24, 11")
    def xd(v):
        return [dma(SX, 7 + (i & 1), 31, (v % 2)*16384 + i*1024, 33, v*128 + (i >> 1)*16384, ("X", v)) for i in range(4)]
    def wd(u):
        out = []
        for i in range(2):
            for p, sr in enumerate((SG, SU)):
                out.append(dma(sr, 9, 32, (u % 3)*16384 + p*8192 + i*1024, 33, (u*32 + 4*i)*3584, ("W", u)))
        return out
    emit_groups(k, xd(0) + wd(0) + wd(1))
    k.e("s_lshl_b32 s36, s27, 6", "v_add_u32 v13, s36, v11", "v_bfe_u32 v14, v13, 1, 3", "v_xor_b32 v14, v14, v12",
        "v_lshlrev_b32 v14, 4, v14", "v_lshl_add_u32 v2, v13, 7, v14", f"v_add_u32 v2, {XB}, v2",
        "v_xor_b32 v3, 32, v2", "v_xor_b32 v4, 64, v2", "v_xor_b32 v5, 96, v2")
    k.e("v_bfe_u32 v15, v1, 2, 2", "v_lshl_add_u32 v13, v12, 3, v15", "v_lshlrev_b32 v6, 8, v13",
        "v_bfe_u32 v13, v1, 4, 1", "v_lshlrev_b32 v13, 1, v13", "v_bfe_u32 v14, v1, 1, 1", "v_add_u32 v13, v13, v14",
        "s_lshl_b32 s36, s28, 3", "v_add_u32 v13, s36, v13", "v_lshlrev_b32 v15, 2, v15",
        "v_xor_b32 v13, v13, v15", "v_lshl_add_u32 v6, v13, 4, v6", "v_and_b32 v14, 1, v1", "v_lshl_add_u32 v6, v14, 3, v6",
        "v_xor_b32 v10, 64, v6")
    ACC = 128
    for i in range(ACC, ACC + 128): k.e(f"v_mov_b32 v{i}, 0")
    def fr(st): return 16 + 24*st
    def acc(part, b, tb): return ACC + 16*(part*4 + b*2 + tb)
    def reads(g, st):
        b0 = fr(st); u = g >> 1; v = g >> 2
        out = []
        def wr(part, b):
            d = b0 + 8 + 8*part + 4*b
            o = (u % 3)*16384 + part*8192 + (g & 1)*4096
            av = 6 if b == 0 else 10
            return [(f"ds_read_b64_tr_b16 v[{d}:{d+1}], v{av} offset:{o}", f"W{part}{b}"),
                    (f"ds_read_b64_tr_b16 v[{d+2}:{d+3}], v{av} offset:{o+1024}", f"W{part}{b}")]
        def xr(tb): return [(f"ds_read_b128 v[{b0+4*tb}:{b0+4*tb+3}], v{2 + (g & 3)} offset:{(v % 2)*16384 + tb*4096}", f"X{tb}")]
        out = xr(0) + wr(0, 0) + xr(1) + wr(0, 1) + wr(1, 0) + wr(1, 1)
        return out
    def mf(b0):
        out = []
        for part in range(2):
            for b in range(2):
                for tb in range(2):
                    a = acc(part, b, tb); w = b0 + 8 + 8*part + 4*b; x = b0 + 4*tb
                    out.append((f"{MF} v[{a}:{a+15}], v[{w}:{w+3}], v[{x}:{x+3}], v[{a}:{a+15}]", [f"X{tb}", f"W{part}{b}"]))
        return out
    def mfmas(g, st): return mf(fr(st))
    def dmas(u):
        out = []
        if u + 2 < 16: out += wd(u + 2)
        if u % 2 == 0 and u//2 + 1 < 8: out += xd(u//2 + 1)
        return out
    for i in range(64, 88): k.e(f"v_mov_b32 v{i}, 0")
    k.e("s_lshl_b32 s34, s25, 7", "s_lshl_b32 s35, s27, 6", "s_add_u32 s34, s34, s35",
        "v_add_u32 v13, s34, v11", "v_lshlrev_b32 v13, 5, v13")
    for tb in range(2):
        k.vmem(f"buffer_load_dwordx2 v[{88+2*tb}:{89+2*tb}], v13, s[{SWS}:{SWS+3}], 0 offen offset:{WS_TOK+16+1024*tb} {sc1}", "ex")
    k.e("s_lshl_b32 s35, s26, 7", "s_lshl_b32 s36, s28, 6", "s_add_u32 s35, s35, s36",
        "v_add_u32 v14, s35, v11", "v_lshlrev_b32 v14, 4, v14", f"s_mov_b32 s36, {WS_COL + 1536*16}", f"s_mov_b32 s37, {WS_COL + 3328*16}",
        "s_mov_b64 exec, 0xffffffff")
    for tb in range(2):
        k.vmem(f"buffer_load_dwordx4 v[{64+4*tb}:{67+4*tb}], v13, s[{SWS}:{SWS+3}], 0 offen offset:{WS_TOK+1024*tb} {sc1}", "ex")
    for part in range(2):
        for b in range(2):
            d = 72 + 8*part + 4*b
            k.vmem(f"buffer_load_dwordx4 v[{d}:{d+3}], v14, s[{SWS}:{SWS+3}], s{36+part} offen offset:{512*b} {sc1}", "ex")
    k.e("s_mov_b64 exec, -1")
    k.stamp(1)
    gemm_loop(k, 16, mfmas, reads, dmas, lambda u: [("W", u), ("X", u >> 1)])
    k.stamp(2)
    k.wait_vm("ex")
    for (t, _) in mf(64): k.e(t)
    k.e(f"v_mul_f32 v92, 0x{f2u(LOG2E):08x}, v88", f"v_mul_f32 v93, 0x{f2u(LOG2E):08x}, v90")
    k.e("v_lshlrev_b32 v10, 4, v1",
        "s_lshl_b32 s36, s25, 2", "s_lshl_b32 s37, s27, 1", "s_add_u32 s36, s36, s37", "s_mul_i32 s36, s36, 112",
        "s_lshl_b32 s37, s26, 3", "s_add_u32 s36, s36, s37", "s_lshl_b32 s37, s28, 2", "s_add_u32 s36, s36, s37",
        "s_lshl_b32 s36, s36, 10", f"s_add_u32 s36, s36, 0x{WS_HF:x}")
    k.e("s_nop 4")
    n = 0
    for b in range(2):
        for tb in range(2):
            g = acc(0, b, tb); uu = acc(1, b, tb)
            A = 92 + tb; SD = 89 + 2*tb
            for r in range(16): k.e(f"v_mul_f32 v{g+r}, v{g+r}, v{A}")
            for r in range(16): k.e(f"v_exp_f32 v{g+r}, -v{g+r}")
            for r in range(16): k.e(f"v_fma_f32 v{g+r}, v{g+r}, v{SD}, v{SD}")
            for r in range(16): k.e(f"v_rcp_f32 v{g+r}, v{g+r}")
            for r in range(16): k.e(f"v_mul_f32 v{g+r}, v{g+r}, v{uu+r}")
            for j in range(2):
                d = 16 + 4*(n % 8); n += 1
                for i in range(4): k.e(f"v_cvt_pk_bf16_f32 v{d+i}, v{g+8*j+2*i}, v{g+8*j+2*i+1}")
                k.e(f"s_add_u32 s37, s36, {(tb*112 + b*2 + j)*1024}")
                k.vmem(f"buffer_store_dwordx4 v[{d}:{d+3}], v10, s[{SWS}:{SWS+3}], s37 offen {sc1}", "st")

def k1_kernel():
    k = KV("k1_gemm_kernel", nvgpr=256)
    k.e("s_cmp_ge_u32 s2, 480", f"s_cbranch_scc1 L_end_{k.name}")
    fx = srd(k, 8, 0, SZ_X) + srd(k, 20, 72, WS_SIZE)
    k.e("s_cmp_ge_u32 s2, 256", "s_cbranch_scc1 L_k1_e3")
    fx1 = srd(k, 12, 8, SZ_WQKV)
    k.e("s_waitcnt lgkmcnt(0)"); k.e(*(fx + fx1))
    k.e("s_and_b32 s26, s2, 7", "s_lshr_b32 s25, s2, 3")
    k.stamp(0)
    e1_body(k)
    k.wait_vm_all()
    k.stamp(3); k.stamp_out(4, 0); k.wait_vm_all()
    k.e("s_endpgm")
    k.label("L_k1_e3")
    k.vm = []; k.lg = []
    fx3 = srd(k, 12, 32, SZ_WG) + srd(k, 16, 40, SZ_WG)
    k.e("s_waitcnt lgkmcnt(0)"); k.e(*(fx + fx3))
    k.e("s_sub_u32 s3, s2, 256", "s_and_b32 s4, s3, 7", "s_lshr_b32 s5, s3, 3", "s_mul_i32 s4, s4, 28", "s_add_u32 s4, s4, s5",
        "s_lshr_b32 s26, s4, 4", "s_and_b32 s25, s4, 15")
    k.stamp(0)
    e3_body(k)
    k.wait_vm_all()
    k.stamp(3); k.stamp_out(4, 0); k.wait_vm_all()
    k.label(f"L_end_{k.name}")
    k.e("s_endpgm")
    return k

BIAS_M = 90.0
def e2_body(k, SWS=20, sc1="", tag="e2", bias=BIAS_M, force_fb=False, pre_hook=None):
    SA, SB, OA, OB, CA, CB, PA, PB, QA, QB = 64, 80, 96, 112, 128, 144, 160, 168, 176, 180
    KB_ = [184, 188]; VB_ = [192, 200]
    SLOT = 12288
    S = [SA, SB]; O = [OA, OB]; C = [CA, CB]; P = [PA, PB]; Q = [QA, QB]
    k.e("v_and_b32 v1, 63, v0", "v_lshrrev_b32 v10, 6, v0", "s_nop 0", "v_readfirstlane_b32 s24, v10")
    k.e("v_lshlrev_b32 v2, 4, v1")
    k.e("v_lshrrev_b32 v3, 5, v1", "v_lshlrev_b32 v3, 8, v3", "v_and_b32 v4, 15, v1", "v_lshl_add_u32 v3, v4, 4, v3")
    k.e("s_mov_b32 s28, 0x0000ffff", "s_mov_b32 s29, 0x0000ffff")
    k.e("s_lshl_b32 s34, s24, 10", "v_add_u32 v14, s34, v2", f"s_add_u32 s34, s34, 0x{WS_VF - WS_KF - 1024:x}", "v_add_u32 v15, s34, v3",
        "v_subrev_u32 v16, 512, v15")
    k.e("s_lshl_b32 s33, s25, 16", f"s_add_u32 s30, s33, 0x{WS_KF:x}", "s_mul_i32 s32, s24, 3072")
    def chunk_dma_items(slot):
        return [("s", f"s_add_u32 m0, s32, {slot*SLOT}"),
                ("s", "s_nop 0"),
                ("v", f"buffer_load_dwordx4 v14, s[{SWS}:{SWS+3}], s30 offen lds {sc1}"),
                ("s", "s_mov_b64 exec, s[28:29]"),
                ("v", f"buffer_load_dwordx4 v15, s[{SWS}:{SWS+3}], s30 offen offset:1024 lds {sc1}"),
                ("v", f"buffer_load_dwordx4 v16, s[{SWS}:{SWS+3}], s30 offen offset:2048 lds {sc1}"),
                ("s", "s_mov_b64 exec, -1"),
                ("s", "s_add_u32 s30, s30, 4096")]
    def chunk_dma(slot):
        for kind, t in chunk_dma_items(slot):
            if kind == "v": k.vmem(t, "c")
            else: k.e(t)
    k.e("v_mov_b32 v4, 0x3f803f80", "v_mov_b32 v5, v4", "v_mov_b32 v6, v4", "v_mov_b32 v7, v4",
        f"s_mul_i32 s33, s24, {SLOT}", "v_add_u32 v8, s33, v2", "s_mov_b32 s38, 0xffff0000", "s_mov_b32 s39, 0xffff0000", "s_mov_b64 exec, s[38:39]")
    for kb in range(4):
        for g in range(2): k.ds(f"ds_write_b128 v8, v[4:7] offset:{kb*3072 + 1024 + g*1024}")
    k.e("s_mov_b64 exec, -1")
    if pre_hook: pre_hook()
    k.e("s_lshl_b32 s36, s26, 3", "s_lshl_b32 s37, s24, 1", "s_add_u32 s36, s36, s37",
        "s_lshl_b32 s37, s25, 6", "s_add_u32 s37, s37, s36", "s_lshl_b32 s37, s37, 10", f"s_add_u32 s37, s37, 0x{WS_QF:x}")
    chunk_dma(0)
    k.vmem(f"buffer_load_dwordx4 v[{QA}:{QA+3}], v2, s[{SWS}:{SWS+3}], s37 offen {sc1}", "q")
    k.vmem(f"buffer_load_dwordx4 v[{QB}:{QB+3}], v2, s[{SWS}:{SWS+3}], s37 offen offset:1024 {sc1}", "q")
    chunk_dma(1); chunk_dma(2)
    for i in range(16):
        k.e(f"v_mov_b32 v{OA+i}, 0", f"v_mov_b32 v{OB+i}, 0")
    for i in range(8): k.e(f"v_mov_b32 v{PB+i}, 0", f"v_mov_b32 v{VB_[1]+i}, 0")
    k.wait_vm("q")
    k.wait_lg_all()
    k.e("s_barrier")
    k.ds(f"ds_read_b128 v[{KB_[0]}:{KB_[0]+3}], v2 offset:0")
    k.ds(f"ds_read_b128 v[{KB_[1]}:{KB_[1]+3}], v2 offset:3072")
    k.wait_lg_all()
    k.e(f"{MF} v[{SA}:{SA+15}], v[{KB_[0]}:{KB_[0]+3}], v[{QA}:{QA+3}], 0",
        f"{MF} v[{SB}:{SB+15}], v[{KB_[0]}:{KB_[0]+3}], v[{QB}:{QB+3}], 0",
        f"{MF} v[{CA}:{CA+15}], v[{KB_[1]}:{KB_[1]+3}], v[{QA}:{QA+3}], 0",
        f"{MF} v[{CB}:{CB+15}], v[{KB_[1]}:{KB_[1]+3}], v[{QB}:{QB+3}], 0")
    k.e("s_nop 9")
    for x in range(2):
        k.e(f"v_max3_f32 v{10+x}, v{S[x]}, v{S[x]+1}, v{S[x]+2}")
        for i in range(3, 15, 2): k.e(f"v_max3_f32 v{10+x}, v{S[x]+i}, v{S[x]+i+1}, v{10+x}")
        k.e(f"v_max_f32 v{10+x}, v{S[x]+15}, v{10+x}")
    k.e("s_nop 4")
    for x in range(2):
        for i in range(0, 16, 2): k.e(f"v_max3_f32 v{10+x}, v{C[x]+i}, v{C[x]+i+1}, v{10+x}")
    k.e("v_mov_b32 v12, v10", "v_mov_b32 v13, v11", "s_nop 1", "v_permlane32_swap_b32 v10, v12", "v_permlane32_swap_b32 v11, v13", "s_nop 1",
        "v_max_f32 v10, v10, v12", "v_max_f32 v11, v11, v13")
    k.e(f"v_sub_f32 v10, 0x{f2u(-bias):08x}, v10", f"v_sub_f32 v11, 0x{f2u(-bias):08x}, v11")
    for i in range(16): k.e(f"v_mov_b32 v{CA+i}, v10", f"v_mov_b32 v{CB+i}, v11")
    k.e("s_nop 1")
    k.e(f"{MF} v[{SA}:{SA+15}], v[{KB_[0]}:{KB_[0]+3}], v[{QA}:{QA+3}], v[{CA}:{CA+15}]")
    k.e("s_nop 11")

    def valu_seq(x):
        s, p = S[x], P[x]
        out = []
        for i in range(8):
            out.append(f"v_exp_f32 v{s+2*i}, v{s+2*i}"); out.append(f"v_exp_f32 v{s+2*i+1}, v{s+2*i+1}")
            if i >= 1: out.append(f"v_cvt_pk_bf16_f32 v{p+i-1}, v{s+2*i-2}, v{s+2*i-1}")
        out.append(f"v_cvt_pk_bf16_f32 v{p+7}, v{s+14}, v{s+15}")
        return out
    def phase(mf3, x, slots):
        va = valu_seq(x)
        def put(j):
            if mf3[j]: k.e(mf3[j])
            for t in slots[j]: k.e(t)
        put(0)
        for i, t in enumerate(va):
            k.e(t)
            if i == 5: put(1)
            if i == 13: put(2)
    def pvs(x, vb):
        return [f"{MF} v[{O[x]}:{O[x]+15}], v[{vb}:{vb+3}], v[{P[x]}:{P[x]+3}], v[{O[x]}:{O[x]+15}]",
                f"{MF} v[{O[x]}:{O[x]+15}], v[{vb+4}:{vb+7}], v[{P[x]+4}:{P[x]+7}], v[{O[x]}:{O[x]+15}]"]
    def koff(c4, kk):
        n = c4*4 + kk
        return ((n // 4) % 4)*SLOT + (n % 4)*3072
    def block(c4, kk, kblk_left, sync, do_dma):
        par = kk & 1
        vo = koff(c4, kk) + 1024
        sA = [[f"ds_read_b128 v[{VB_[par]}:{VB_[par]+3}], v2 offset:{vo}"],
              [f"ds_read_b128 v[{VB_[par]+4}:{VB_[par]+7}], v2 offset:{vo+1024}"],
              ["s_waitcnt lgkmcnt(1)"]]
        if sync is not None: sA[2] = [f"s_waitcnt vmcnt({sync}) lgkmcnt(1)", "s_barrier"]
        pv = pvs(1, VB_[par ^ 1])
        phase([f"{MF} v[{SB}:{SB+15}], v[{KB_[par]}:{KB_[par]+3}], v[{QB}:{QB+3}], v[{CB}:{CB+15}]", pv[0], pv[1]], 0, sA)
        fm = None if kblk_left < 1 else f"{MF} v[{SA}:{SA+15}], v[{KB_[par^1]}:{KB_[par^1]+3}], v[{QA}:{QA+3}], v[{CA}:{CA+15}]"
        sB = [[], [], []]
        if kblk_left >= 2:
            sB[0] = [f"ds_read_b128 v[{KB_[par]}:{KB_[par]+3}], v2 offset:{koff(c4, kk + 2)}"]
            sB[1] = ["s_waitcnt lgkmcnt(1)"]
        else:
            sB[0] = ["s_waitcnt lgkmcnt(0)"]
        if do_dma:
            it = [t for _, t in chunk_dma_items((c4 + 3) % 4)]
            sB[1] = sB[1] + it[0:3]
            sB[2] = it[3:]
        pv = pvs(0, VB_[par])
        phase([fm, pv[0], pv[1]], 1, sB)
    k.vm = []; k.lg = []
    k.stamp(1)
    k.e("s_mov_b32 s36, 3")
    L = f"L_{tag}_loop"
    k.label(L)
    for c4 in range(4):
        for kk in range(4):
            block(c4, kk, 99, 3 if kk == 2 else None, kk == 2)
    k.e("s_sub_u32 s36, s36, 1", "s_cmp_lg_u32 s36, 0", f"s_cbranch_scc1 {L}")
    for c4 in range(4):
        for kk in range(4):
            sync = None; dm = False
            if kk == 2:
                if c4 == 0: sync, dm = 3, True
                elif c4 == 1: sync = 3
                elif c4 == 2: sync = 0
            block(c4, kk, (3 - c4)*4 + (3 - kk), sync, dm)
    k.vm = []
    k.stamp(2)
    k.e("s_nop 1")
    for t in pvs(1, VB_[1]): k.e(t)
    k.e("s_nop 11")
    for x in range(2):
        k.e(f"v_add_f32 v{10+x}, v{O[x]}, v{O[x]+8}")
        for i in range(1, 8): k.e(f"v_add_f32 v{10+x}, v{10+x}, v{O[x]+i}")
    k.e("v_add_f32 v10, v10, v11", "s_movk_i32 s33, 0x207", "v_cmp_class_f32 vcc, v10, s33")
    if force_fb: k.e("s_mov_b64 vcc, -1")
    k.e("s_nop 4", f"s_cbranch_vccnz L_{tag}_fb")
    k.label(f"L_{tag}_fin")
    for x in range(2): k.e(f"v_rcp_f32 v{10+x}, v{O[x]+8}")
    k.e("s_nop 0")
    k.e("s_lshl_b32 s36, s26, 3", "s_lshl_b32 s37, s24, 1", "s_add_u32 s36, s36, s37", "s_lshl_b32 s36, s36, 5", "s_add_u32 s36, s36, s25",
        "s_lshl_b32 s36, s36, 10", f"s_add_u32 s36, s36, 0x{WS_OF:x}")
    for x in range(2):
        for i in range(8): k.e(f"v_mul_f32 v{O[x]+i}, v{O[x]+i}, v{10+x}")
        for i in range(4): k.e(f"v_cvt_pk_bf16_f32 v{P[x]+i}, v{O[x]+2*i}, v{O[x]+2*i+1}")
        k.vmem(f"buffer_store_dwordx4 v[{P[x]}:{P[x]+3}], v2, s[{SWS}:{SWS+3}], s36 offen {sc1}", "st")
        if x == 0: k.e("s_add_u32 s36, s36, 32768")
    k.fb_code = lambda: e2_fallback(k, SWS, sc1, tag, S, O, C, P, Q, KB_, VB_)

def e2_fallback(k, SWS, sc1, tag, S, O, C, P, Q, KB_, VB_):
    k.label(f"L_{tag}_fb")
    KR = KB_[0]; VR = VB_[0]
    k.e("s_lshl_b32 s33, s25, 16", f"s_add_u32 s30, s33, 0x{WS_KF:x}", f"s_add_u32 s31, s33, 0x{WS_VF:x}")
    k.e("v_mov_b32 v10, 0xff800000", "v_mov_b32 v11, 0xff800000", "s_mov_b32 s36, 64", "s_mov_b32 s33, s30")
    k.label(f"L_{tag}_fb1")
    k.e(f"buffer_load_dwordx4 v[{KR}:{KR+3}], v2, s[{SWS}:{SWS+3}], s33 offen {sc1}", "s_waitcnt vmcnt(0)")
    for x in range(2): k.e(f"{MF} v[{S[x]}:{S[x]+15}], v[{KR}:{KR+3}], v[{Q[x]}:{Q[x]+3}], 0")
    k.e("s_nop 11")
    for x in range(2):
        for i in range(0, 16, 2): k.e(f"v_max3_f32 v{10+x}, v{S[x]+i}, v{S[x]+i+1}, v{10+x}")
    k.e("s_add_u32 s33, s33, 1024", "s_sub_u32 s36, s36, 1", "s_cmp_lg_u32 s36, 0", f"s_cbranch_scc1 L_{tag}_fb1")
    k.e("v_mov_b32 v12, v10", "v_mov_b32 v13, v11", "s_nop 1", "v_permlane32_swap_b32 v10, v12", "v_permlane32_swap_b32 v11, v13", "s_nop 1",
        "v_max_f32 v10, v10, v12", "v_max_f32 v11, v11, v13", "v_sub_f32 v10, 0, v10", "v_sub_f32 v11, 0, v11")
    for i in range(16):
        k.e(f"v_mov_b32 v{C[0]+i}, v10", f"v_mov_b32 v{C[1]+i}, v11", f"v_mov_b32 v{O[0]+i}, 0", f"v_mov_b32 v{O[1]+i}, 0")
    for i in range(8): k.e(f"v_mov_b32 v{VR+i}, 0x3f803f80")
    k.e("s_mov_b32 s36, 64")
    k.label(f"L_{tag}_fb2")
    k.e(f"buffer_load_dwordx4 v[{KR}:{KR+3}], v2, s[{SWS}:{SWS+3}], s30 offen {sc1}", "s_mov_b64 exec, s[28:29]",
        f"buffer_load_dwordx4 v[{VR}:{VR+3}], v3, s[{SWS}:{SWS+3}], s31 offen {sc1}",
        f"buffer_load_dwordx4 v[{VR+4}:{VR+7}], v3, s[{SWS}:{SWS+3}], s31 offen offset:512 {sc1}",
        "s_mov_b64 exec, -1", "s_waitcnt vmcnt(0)")
    for x in range(2): k.e(f"{MF} v[{S[x]}:{S[x]+15}], v[{KR}:{KR+3}], v[{Q[x]}:{Q[x]+3}], v[{C[x]}:{C[x]+15}]")
    k.e("s_nop 11")
    for x in range(2):
        for i in range(16): k.e(f"v_exp_f32 v{S[x]+i}, v{S[x]+i}")
        k.e("s_nop 0")
        for i in range(8): k.e(f"v_cvt_pk_bf16_f32 v{P[x]+i}, v{S[x]+2*i}, v{S[x]+2*i+1}")
    k.e("s_nop 1")
    for x in range(2):
        k.e(f"{MF} v[{O[x]}:{O[x]+15}], v[{VR}:{VR+3}], v[{P[x]}:{P[x]+3}], v[{O[x]}:{O[x]+15}]",
            f"{MF} v[{O[x]}:{O[x]+15}], v[{VR+4}:{VR+7}], v[{P[x]+4}:{P[x]+7}], v[{O[x]}:{O[x]+15}]")
    k.e("s_add_u32 s30, s30, 1024", "s_add_u32 s31, s31, 1024", "s_sub_u32 s36, s36, 1", "s_cmp_lg_u32 s36, 0", f"s_cbranch_scc1 L_{tag}_fb2")
    k.e("s_nop 11", f"s_branch L_{tag}_fin")

def k2_kernel(**kw):
    k = KV("k2_attn_kernel", nvgpr=256)
    k.e("s_cmp_ge_u32 s2, 256", f"s_cbranch_scc1 L_end_{k.name}")
    fx = srd(k, 20, 72, WS_SIZE)
    k.e("s_waitcnt lgkmcnt(0)"); k.e(*fx)
    k.e("s_and_b32 s3, s2, 7", "s_lshr_b32 s4, s2, 3", "s_and_b32 s5, s4, 3", "s_lshl_b32 s25, s3, 2", "s_add_u32 s25, s25, s5", "s_lshr_b32 s26, s4, 2")
    k.stamp(0)
    e2_body(k, **kw)
    k.wait_vm_all()
    k.stamp(3); k.stamp_out(4, 0x20000); k.wait_vm_all()
    k.label(f"L_end_{k.name}")
    k.e("s_endpgm")
    k.fb_code()
    return k

def e4_body(k, SD=12, SO=16, SWS=20, SX=8, SOUT=4, sc1="", tag="e4"):
    DEPTH = 8
    ACC = 64
    HR = 128
    WR = 16
    k.e("v_and_b32 v1, 63, v0", "v_lshrrev_b32 v10, 6, v0", "s_nop 0", "v_readfirstlane_b32 s24, v10")
    k.e("v_lshlrev_b32 v2, 4, v1")
    k.e("v_lshrrev_b32 v3, 3, v1", "v_lshlrev_b32 v3, 10, v3", "v_bfe_u32 v4, v1, 4, 1", "v_lshlrev_b32 v4, 2, v4", "v_and_b32 v5, 7, v1",
        "v_xor_b32 v4, v4, v5", "v_lshl_add_u32 v3, v4, 4, v3", "s_lshl_b32 s27, s26, 7", "v_add_u32 v3, s27, v3")
    k.e("v_lshrrev_b32 v4, 5, v1", "v_bfe_u32 v5, v1, 2, 2", "v_lshl_add_u32 v4, v4, 2, v5", "v_lshlrev_b32 v6, 7, v4",
        "v_bfe_u32 v4, v1, 4, 1", "v_lshlrev_b32 v4, 1, v4", "v_bfe_u32 v5, v1, 1, 1", "v_add_u32 v4, v4, v5",
        "v_bfe_u32 v5, v1, 3, 1", "v_lshlrev_b32 v5, 2, v5", "v_xor_b32 v4, v4, v5", "v_lshl_add_u32 v6, v4, 4, v6",
        "v_and_b32 v5, 1, v1", "v_lshl_add_u32 v6, v5, 3, v6", "s_lshl_b32 s28, s24, 14", "v_add_u32 v6, s28, v6", "v_xor_b32 v7, 64, v6")
    k.e("s_mul_i32 s29, s24, 458752",
        "s_mul_i32 s30, s25, 224", "s_mul_i32 s31, s24, 28", "s_add_u32 s30, s30, s31", "s_lshl_b32 s30, s30, 10", f"s_add_u32 s30, s30, 0x{WS_HF:x}",
        "s_lshl_b32 s34, s24, 17",
        "s_lshl_b32 s35, s25, 6", "s_lshl_b32 s31, s24, 3", "s_add_u32 s35, s35, s31", "s_lshl_b32 s35, s35, 10", f"s_add_u32 s35, s35, 0x{WS_OF:x}")
    NS = 36
    def issue(s):
        slot = s % DEPTH
        if s < 28: sr, sb, kk, hb, hstride = SD, 29, s, 30, 112*1024
        else: sr, sb, kk, hb, hstride = SO, 34, s - 28, 35, 32*1024
        for i in range(2):
            k.e(f"s_add_u32 m0, s28, {slot*2048 + i*1024}", f"s_add_u32 s33, s{sb}, {kk*16384 + i*8192}")
            k.vmem(f"buffer_load_dwordx4 v3, s[{sr}:{sr+3}], s33 offen lds", ("W", s))
        for tb in range(2):
            d = HR + slot*8 + 4*tb
            k.e(f"s_add_u32 s33, s{hb}, {kk*1024 + tb*hstride}")
            k.vmem(f"buffer_load_dwordx4 v[{d}:{d+3}], v2, s[{SWS}:{SWS+3}], s33 offen {sc1}", ("H", s))
    def reads(s):
        b = WR + 8*(s & 1); o = (s % DEPTH)*2048
        for cb2 in range(2):
            av = 6 + cb2
            k.ds(f"ds_read_b64_tr_b16 v[{b+4*cb2}:{b+4*cb2+1}], v{av} offset:{o}", ("r", s))
            k.ds(f"ds_read_b64_tr_b16 v[{b+4*cb2+2}:{b+4*cb2+3}], v{av} offset:{o+1024}", ("r", s))
    for s in range(DEPTH): issue(s)
    k.e("v_lshrrev_b32 v8, 3, v0", "s_lshl_b32 s31, s25, 6", "v_add_u32 v8, s31, v8", "v_lshlrev_b32 v8, 10, v8",
        "v_and_b32 v9, 7, v0", "v_lshl_add_u32 v8, v9, 4, v8", "v_add_u32 v8, s27, v8")
    k.vmem(f"buffer_load_dwordx4 v[32:35], v8, s[{SX}:{SX+3}], 0 offen", "x")
    k.e("s_mov_b32 s31, 32768")
    k.vmem(f"buffer_load_dwordx4 v[36:39], v8, s[{SX}:{SX+3}], s31 offen", "x")
    for i in range(64): k.e(f"v_mov_b32 v{ACC+i}, 0")
    k.stamp(1)
    k.wait_vm(("W", 0)); reads(0)
    for s in range(NS):
        if s + 1 < NS:
            k.wait_vm(("W", s + 1)); reads(s + 1)
        k.wait_vm(("H", s)); k.wait_lg(("r", s))
        b = WR + 8*(s & 1); h = HR + (s % DEPTH)*8
        for cb2 in range(2):
            for tb in range(2):
                a = ACC + 16*(cb2*2 + tb)
                k.e(f"{MF} v[{a}:{a+15}], v[{b+4*cb2}:{b+4*cb2+3}], v[{h+4*tb}:{h+4*tb+3}], v[{a}:{a+15}]")
        if s + DEPTH < NS: issue(s + DEPTH)
    k.stamp(2)
    k.e("s_nop 7", "s_barrier")
    RS = 272
    k.e("v_and_b32 v4, 31, v1", f"v_mul_u32_u24 v4, {RS}, v4", "v_lshrrev_b32 v5, 5, v1", "v_lshl_add_u32 v4, v5, 4, v4",
        f"s_mul_i32 s31, s24, {64*RS}", "v_add_u32 v4, s31, v4", "s_nop 3")
    for cb2 in range(2):
        for tb in range(2):
            a = ACC + 16*(cb2*2 + tb)
            for g in range(4):
                k.ds(f"ds_write_b128 v4, v[{a+4*g}:{a+4*g+3}] offset:{tb*32*RS + cb2*128 + g*32}")
    k.wait_lg_all()
    k.e("s_barrier")
    k.e("v_lshrrev_b32 v4, 3, v0", f"v_mul_u32_u24 v4, {RS}, v4", "v_and_b32 v5, 7, v0", "v_lshl_add_u32 v4, v5, 5, v4")
    for half in range(2):
        for w in range(4):
            d = 64 + half*32 + w*8
            for j in range(2):
                k.ds(f"ds_read_b128 v[{d+4*j}:{d+4*j+3}], v4 offset:{w*64*RS + half*32*RS + j*16}", ("rd", half))
    k.wait_vm("x")
    for half in range(2):
        k.wait_lg(("rd", half))
        d = 64 + half*32
        for i in range(8):
            k.e(f"v_add_f32 v{d+i}, v{d+i}, v{d+8+i}", f"v_add_f32 v{d+16+i}, v{d+16+i}, v{d+24+i}")
        for i in range(4):
            xr = 32 + 4*half + i
            k.e(f"v_lshlrev_b32 v{d+8+2*i}, 16, v{xr}", f"v_and_b32 v{d+9+2*i}, 0xffff0000, v{xr}")
        for i in range(8): k.e(f"v_add_f32 v{d+i}, v{d+i}, v{d+16+i}")
        for i in range(8): k.e(f"v_add_f32 v{d+i}, v{d+i}, v{d+8+i}")
        for i in range(4): k.e(f"v_cvt_pk_bf16_f32 v{40+4*half+i}, v{d+2*i}, v{d+2*i+1}")
        if half == 0: k.vmem(f"buffer_store_dwordx4 v[40:43], v8, s[{SOUT}:{SOUT+3}], 0 offen", "st")
        else: k.vmem(f"buffer_store_dwordx4 v[44:47], v8, s[{SOUT}:{SOUT+3}], s31 offen", "st") if False else None
    k.e("s_mov_b32 s31, 32768")
    k.vmem(f"buffer_store_dwordx4 v[44:47], v8, s[{SOUT}:{SOUT+3}], s31 offen", "st")

def k3_kernel():
    k = KV("k3_out_kernel", nvgpr=256)
    k.e("s_cmp_ge_u32 s2, 256", f"s_cbranch_scc1 L_end_{k.name}")
    fx = srd(k, 8, 0, SZ_X) + srd(k, 20, 72, WS_SIZE) + srd(k, 12, 48, SZ_WD) + srd(k, 16, 16, SZ_WO) + srd(k, 4, 56, SZ_X)
    k.e("s_waitcnt lgkmcnt(0)"); k.e(*fx)
    k.e("s_and_b32 s3, s2, 7", "s_lshr_b32 s27, s2, 3", "s_and_b32 s28, s27, 3", "s_lshl_b32 s25, s3, 2", "s_add_u32 s25, s25, s28", "s_lshr_b32 s26, s27, 2")
    k.stamp(0)
    e4_body(k)
    k.wait_vm_all()
    k.stamp(3); k.stamp_out(4, 0x40000); k.wait_vm_all()
    k.label(f"L_end_{k.name}")
    k.e("s_endpgm")
    return k
```

```python
import sys
sys.path.insert(0, "gen")
from eng import *
import haz
def build(fn, a={}, b={}):
    a = dict(a); warm = a.get("l2warm", 0)
    ks = [kA2_kernel(prep=True, **a), kB3_kernel(**b)]
    launches = [(ks[0].name, (256,1,1), (256,1,1), 151552 + (4096 if warm else 0)), (ks[1].name, (512,1,1), (256,1,1), 81920)]
    txt = build_file(launches, ks)
    open(fn, "w").write(txt)
    e = haz.check_text(txt)
    for x in e: print(x)
    print(fn, len(e), "hazards;", len(txt), "bytes")
if __name__ == "__main__":
    A = dict(mapping=1, l2warm=1, wtouch=True)
    build("t5.s", a=A, b=dict(epi_prio=1, post_prio=0))
    KV.STAMP = True
    build("t5st_p2.s", a=A, b=dict(epi_prio=1, post_prio=0))
    build("t5st_na.s", a=A, b=dict(epi_prio=1, post_prio=0, skip_a=True))
    build("t5st_nant.s", a=A, b=dict(epi_prio=1, post_prio=0, skip_a=True, touch=False))
```

```python
from agen import *

WS_TOK = 0x000000
WS_COL = 0x010000
WS_QF  = 0x100000
WS_KF  = 0x300000
WS_VF  = 0x500000
WS_HF  = 0x700000
WS_OF  = 0xE00000
WS_SIZE = 0x1100000
WS_DBG = 0x1000000
LOG2E = 1.4426950408889634

import struct
def f2u(x): return struct.unpack("<I", struct.pack("<f", x))[0]

class KV(Kernel):
    def __init__(self, *a, **kw):
        super().__init__(*a, **kw)
        self.vm = []
        self.lg = []
        self.tails = []
    def emit_tails(self):
        for t in self.tails: t()
        self.tails = []
    def vmem(self, txt, tag=None, opt=False):
        self.e(txt); self.vm.append((tag, opt))
    def wait_vm(self, *tags, cond=False):
        idx = [i for i, (t, o) in enumerate(self.vm) if t in tags]
        if not idx: return
        last = max(idx)
        n = sum(1 for (t, o) in self.vm[last + 1:] if not o)
        assert n <= 63
        self.e(f"s_waitcnt vmcnt({n})")
        if cond:
            self.vm = [(t, o) for i, (t, o) in enumerate(self.vm) if not (o and i <= last)]
        else:
            self.vm = self.vm[last + 1:]
    def wait_vm_all(self):
        self.e("s_waitcnt vmcnt(0)"); self.vm = []
    def ds(self, txt, tag=None):
        self.e(txt); self.lg.append(tag)
    def wait_lg(self, *tags):
        idx = [i for i, t in enumerate(self.lg) if t in tags]
        if not idx: return
        last = max(idx)
        n = min(15, len(self.lg) - 1 - last)
        self.e(f"s_waitcnt lgkmcnt({n})")
        self.lg = self.lg[len(self.lg) - n:] if n else []
    STAMP = False
    def stamp(self, idx):
        if not KV.STAMP: return
        self.e("s_memtime s[60:61]", "s_memrealtime s[62:63]", "s_waitcnt lgkmcnt(0)",
               f"s_mov_b32 s{64+2*idx}, s60", f"s_mov_b32 s{65+2*idx}, s62")
        self.lg = []
    def stamp_out(self, n, base, SWS=20):
        if not KV.STAMP: return
        self.e("v_lshrrev_b32 v250, 6, v0", "s_lshl_b32 s60, s2, 2", "v_add_u32 v250, s60, v250", "v_lshlrev_b32 v250, 6, v250",
               f"v_add_u32 v250, 0x{WS_DBG + base:x}, v250", "v_and_b32 v251, 63, v0", "v_cmp_eq_u32 vcc, 0, v251", "s_and_saveexec_b64 s[60:61], vcc")
        for i in range(2*n):
            self.e(f"v_mov_b32 v251, s{64+i}", f"buffer_store_dword v251, v250, s[{SWS}:{SWS+3}], 0 offen offset:{4*i}", "s_nop 1")
        self.e("s_mov_b64 exec, s[60:61]")
    def wait_lg_all(self):
        if self.lg:
            self.e("s_waitcnt lgkmcnt(0)")
        self.lg = []

def srd(k, d, karg_off, nbytes):
    k.e(f"s_load_dwordx2 s[{d}:{d+1}], s[0:1], {karg_off}")
    return [f"s_mov_b32 s{d+2}, 0x{nbytes:x}", f"s_mov_b32 s{d+3}, 0x00020000"]

SZ_X = 2048*512*2; SZ_WQKV = 512*1536*2; SZ_WO = 512*512*2; SZ_WG = 512*1792*2; SZ_WD = 1792*512*2

def allreduce(k, regs, tmps):
    n = len(regs)
    pad = max(0, 2 - (n - 1))
    for mode in ("quad_perm:[1,0,3,2]", "quad_perm:[2,3,0,1]", "row_half_mirror", "row_mirror"):
        for r in regs:
            k.e(f"v_add_f32_dpp v{r}, v{r}, v{r} {mode} row_mask:0xf bank_mask:0xf")
        if pad: k.e(f"s_nop {pad-1}")
    for sw in ("v_permlane16_swap_b32", "v_permlane32_swap_b32"):
        for r, t in zip(regs, tmps): k.e(f"v_mov_b32 v{t}, v{r}")
        k.e("s_nop 1")
        for r, t in zip(regs, tmps): k.e(f"{sw} v{r}, v{t}")
        k.e("s_nop 1")
        for r, t in zip(regs, tmps): k.e(f"v_add_f32 v{r}, v{r}, v{t}")
    k.e("s_nop 1")


SDBG = 56
SEP = 58
SCNT = 54
FLG = 0x40000
FLG_ROW = FLG
FLG_COLQ = FLG + 0x400
FLG_COLG = FLG + 0x800
FLG_QKV = FLG + 0x1000
FLG_H = FLG + 0x2000
FLG_O = FLG + 0x3000
SPIN_MAX = 0x40000

def load_dbg(k):
    k.e(f"s_load_dwordx2 s[{SDBG}:{SDBG+1}], s[0:1], 64")

def wave_id(k):
    k.e("v_lshrrev_b32 v10, 6, v0", "s_nop 1", "v_readfirstlane_b32 s24, v10", "s_nop 3")

def epoch_make(k):
    L = k.newlabel("ep")
    k.e("s_or_b32 s54, s2, s24", "s_cmp_lg_u32 s54, 0", f"s_cbranch_scc1 {L}",
        f"s_memrealtime s[{SEP}:{SEP+1}]", "v_mov_b32 v1, 0", "s_waitcnt lgkmcnt(0)", f"s_or_b32 s{SEP}, s{SEP}, 1",
        f"v_mov_b32 v2, s{SEP}", f"v_mov_b32 v3, s{SEP+1}", "s_mov_b64 exec, 1",
        f"global_store_dwordx2 v1, v[2:3], s[{SDBG}:{SDBG+1}] sc1", "s_mov_b64 exec, -1")
    k.label(L)

def w0_begin(k):
    L = k.newlabel("w0")
    k.e("s_cmp_lg_u32 s24, 0", f"s_cbranch_scc1 {L}")
    return L

def epoch_issue(k, vd):
    k.e(f"v_mov_b32 v{vd+2}, 0")
    L = w0_begin(k)
    k.vmem(f"global_load_dwordx2 v[{vd}:{vd+1}], v{vd+2}, s[{SDBG}:{SDBG+1}] sc1", "ep", opt=True)
    k.label(L)

def epoch_check(k, vd):
    L = w0_begin(k)
    Ls = k.newlabel("eps"); Lc = k.newlabel("epc")
    k.wait_vm("ep", cond=True)
    k.label(Lc + "_r")
    k.e(f"v_readfirstlane_b32 s{SEP}, v{vd}", f"v_readfirstlane_b32 s{SEP+1}, v{vd+1}", "s_nop 3", f"s_cmp_eq_u32 s{SEP}, 0", f"s_cbranch_scc1 {Ls}")
    k.label(Lc)
    k.label(L)
    def tail():
        k.label(Ls)
        k.e(f"s_mov_b32 s{SCNT}, 0")
        k.label(Ls + "_l")
        k.e(f"global_load_dwordx2 v[{vd}:{vd+1}], v{vd+2}, s[{SDBG}:{SDBG+1}] sc1", f"s_add_u32 s{SCNT}, s{SCNT}, 1", "s_waitcnt vmcnt(0)",
            f"v_readfirstlane_b32 s{SEP}, v{vd}", f"v_readfirstlane_b32 s{SEP+1}, v{vd+1}", "s_nop 3", f"s_cmp_lg_u32 s{SEP}, 0", f"s_cbranch_scc1 {Lc}",
            "s_sleep 2", f"s_cmp_lt_u32 s{SCNT}, 0x{SPIN_MAX:x}", f"s_cbranch_scc1 {Ls}_l", f"s_branch {Lc}")
    k.tails.append(tail)

def publish(k, s_off, SWS=20, vt=1):
    k.wait_vm_all(); k.wait_lg_all()
    k.e("s_barrier")
    L = w0_begin(k)
    k.e(f"v_mov_b32 v{vt}, s{s_off}", f"v_mov_b32 v{vt+1}, s{SEP}", f"v_mov_b32 v{vt+2}, s{SEP+1}", "s_mov_b64 exec, 1")
    k.vmem(f"buffer_store_dwordx2 v[{vt+1}:{vt+2}], v{vt}, s[{SWS}:{SWS+3}], 0 offen sc1", "flag", opt=True)
    k.e("s_mov_b64 exec, -1")
    k.label(L)

def poll_issue(k, vd, voff, SWS=20):
    L = w0_begin(k)
    k.vmem(f"buffer_load_dwordx2 v[{vd}:{vd+1}], v{voff}, s[{SWS}:{SWS+3}], 0 offen sc1", "poll", opt=True)
    k.label(L)

def poll_check(k, vd, voff, SWS=20):
    L = w0_begin(k)
    Ls = k.newlabel("spin"); Lc = k.newlabel("cont")
    k.wait_vm("poll", cond=True)
    k.e(f"v_cmp_eq_u64 vcc, s[{SEP}:{SEP+1}], v[{vd}:{vd+1}]", "s_nop 3", "s_cmp_eq_u64 vcc, -1", f"s_cbranch_scc0 {Ls}")
    k.label(Lc)
    k.label(L)
    def tail():
        k.label(Ls)
        k.e(f"s_mov_b32 s{SCNT}, 0")
        k.label(Ls + "_l")
        k.e("s_sleep 2", f"buffer_load_dwordx2 v[{vd}:{vd+1}], v{voff}, s[{SWS}:{SWS+3}], 0 offen sc1", f"s_add_u32 s{SCNT}, s{SCNT}, 1", "s_waitcnt vmcnt(0)",
            f"v_cmp_eq_u64 vcc, s[{SEP}:{SEP+1}], v[{vd}:{vd+1}]", "s_nop 3", "s_cmp_eq_u64 vcc, -1", f"s_cbranch_scc1 {Lc}",
            f"s_cmp_lt_u32 s{SCNT}, 0x{SPIN_MAX:x}", f"s_cbranch_scc1 {Ls}_l", f"s_branch {Lc}")
    k.tails.append(tail)

def row_job(k, s_job, srd_x, srd_ws, sc1="", pre_store=None):
    k.e("v_and_b32 v1, 63, v0", "v_lshrrev_b32 v2, 6, v0", f"s_lshl_b32 s40, s{s_job}, 14",
        "v_lshlrev_b32 v3, 12, v2", "v_lshl_add_u32 v3, v1, 4, v3", "v_add_u32 v3, s40, v3")
    for j in range(4):
        k.vmem(f"buffer_load_dwordx4 v[{4+4*j}:{7+4*j}], v3, s[{srd_x}:{srd_x+3}], 0 offen offset:{1024*j}", "rj")
    k.e("v_bfe_u32 v72, v1, 1, 2", "v_cmp_eq_u32 s[42:43], 1, v72", "v_cmp_eq_u32 s[44:45], 2, v72", "v_cmp_eq_u32 s[46:47], 3, v72")
    k.wait_vm("rj")
    if pre_store: pre_store()
    for j in range(4):
        for i in range(4):
            k.e(f"v_lshlrev_b32 v{32+8*j+2*i}, 16, v{4+4*j+i}", f"v_and_b32 v{33+8*j+2*i}, 0xffff0000, v{4+4*j+i}")
    for j in range(4):
        b = 32 + 8*j
        k.e(f"v_add_f32 v{20+j}, v{b}, v{b+1}")
    for i in range(2, 8):
        for j in range(4):
            k.e(f"v_add_f32 v{20+j}, v{20+j}, v{32+8*j+i}")
    allreduce(k, [20, 21, 22, 23], [24, 25, 26, 27])
    for j in range(4): k.e(f"v_mul_f32 v{20+j}, 0x3b000000, v{20+j}")
    for i in range(8):
        for j in range(4): k.e(f"v_sub_f32 v{32+8*j+i}, v{32+8*j+i}, v{20+j}")
    for j in range(4): k.e(f"v_mul_f32 v{28+j}, v{32+8*j}, v{32+8*j}")
    for i in range(1, 8):
        for j in range(4): k.e(f"v_fmac_f32 v{28+j}, v{32+8*j+i}, v{32+8*j+i}")
    allreduce(k, [28, 29, 30, 31], [24, 25, 26, 27])
    k.e("v_cndmask_b32 v64, v20, v21, s[42:43]", "v_cndmask_b32 v65, v28, v29, s[42:43]",
        "v_cndmask_b32 v64, v64, v22, s[44:45]", "v_cndmask_b32 v65, v65, v30, s[44:45]",
        "v_cndmask_b32 v64, v64, v23, s[46:47]", "v_cndmask_b32 v65, v65, v31, s[46:47]")
    k.e("v_mov_b32 v66, 0x3727c5ac", "v_fmac_f32 v66, 0x3b000000, v65",
        "v_rsq_f32 v67, v66", "v_sub_f32 v64, 0, v64",
        "v_mul_f32 v68, v66, v67",
        "v_cvt_pk_bf16_f32 v69, v64, v64", "s_nop 0", "v_and_b32 v69, 0xffff0000, v69", "v_sub_f32 v70, v64, v69",
        "v_cvt_pk_bf16_f32 v69, v70, v70", "s_nop 0", "v_and_b32 v69, 0xffff0000, v69", "v_sub_f32 v71, v70, v69",
        "v_cvt_pk_bf16_f32 v4, v64, v70", "v_cvt_pk_bf16_f32 v6, v71, v64",
        "v_and_b32 v72, 1, v1", "v_cmp_eq_u32 vcc, 1, v72", "v_mov_b32 v5, v4", "v_mov_b32 v7, 0",
        "v_cndmask_b32 v4, v4, v67, vcc", "v_cndmask_b32 v5, v5, v68, vcc", "v_cndmask_b32 v6, v6, v7, vcc")
    k.e(f"s_lshl_b32 s40, s{s_job}, 9", "v_lshlrev_b32 v3, 7, v2", "v_lshl_add_u32 v3, v1, 4, v3", "v_add_u32 v3, s40, v3",
        "v_cmp_gt_u32 vcc, 8, v1", "s_and_saveexec_b64 s[42:43], vcc")
    k.vmem(f"buffer_store_dwordx4 v[4:7], v3, s[{srd_ws}:{srd_ws+3}], 0 offen offset:{WS_TOK} {sc1}", "st")
    k.e("s_mov_b64 exec, s[42:43]")

def col_job(k, s_job, srd_w, s_ld, s_col0b, srd_ws, ldsbase=0, sc1="", pre_store=None):
    k.e("v_and_b32 v1, 63, v0", "v_lshrrev_b32 v2, 6, v0", "v_lshrrev_b32 v3, 2, v1", "v_lshl_add_u32 v3, v2, 7, v3",
        f"v_mul_lo_u32 v3, v3, s{s_ld}", "v_and_b32 v4, 3, v1", "v_lshl_add_u32 v3, v4, 4, v3", f"v_add_u32 v3, s{s_col0b}, v3",
        f"s_lshl_b32 s41, s{s_ld}, 4", "s_mov_b32 s40, 0")
    for i in range(8):
        k.vmem(f"buffer_load_dwordx4 v[{8+4*i}:{11+4*i}], v3, s[{srd_w}:{srd_w+3}], s40 offen", ("cj", i))
        if i < 7: k.e("s_add_u32 s40, s40, s41")
    k.e("s_mov_b32 s42, 0x00003f80", "s_mov_b32 s43, 0x3f800000")
    for i in range(8): k.e(f"v_mov_b32 v{40+i}, 0")
    for i in range(8):
        k.wait_vm(("cj", i))
        for d in range(4):
            k.e(f"v_dot2_f32_bf16 v{40+2*d}, v{8+4*i+d}, s42, v{40+2*d}", f"v_dot2_f32_bf16 v{41+2*d}, v{8+4*i+d}, s43, v{41+2*d}")
    if pre_store: pre_store()
    k.e("s_nop 2")
    for mode in ("row_ror:4", "row_ror:8"):
        for i in range(8): k.e(f"v_add_f32_dpp v{40+i}, v{40+i}, v{40+i} {mode} row_mask:0xf bank_mask:0xf")
    k.e("v_lshrrev_b32 v5, 4, v1", "v_lshl_add_u32 v5, v2, 2, v5", "v_lshlrev_b32 v5, 7, v5", "v_lshl_add_u32 v5, v4, 5, v5",
        "v_and_b32 v6, 15, v1", "v_cmp_gt_u32 vcc, 4, v6", "s_and_saveexec_b64 s[44:45], vcc")
    k.ds(f"ds_write_b128 v5, v[40:43] offset:{ldsbase}")
    k.ds(f"ds_write_b128 v5, v[44:47] offset:{ldsbase+16}")
    k.e("s_mov_b64 exec, s[44:45]")
    k.wait_lg_all()
    k.e("s_barrier")
    k.e("v_cmp_gt_u32 vcc, 32, v0", "s_and_saveexec_b64 s[44:45], vcc", "v_lshlrev_b32 v5, 2, v0")
    for p in range(16): k.ds(f"ds_read_b32 v{8+p}, v5 offset:{ldsbase+128*p}")
    k.wait_lg_all()
    for st in (8, 4, 2, 1):
        for p in range(st): k.e(f"v_add_f32 v{8+p}, v{8+p}, v{8+p+st}")
    k.e("s_nop 0",
        "v_cvt_pk_bf16_f32 v12, v8, v8", "s_nop 0", "v_and_b32 v9, 0xffff0000, v12", "v_sub_f32 v9, v8, v9",
        "v_cvt_pk_bf16_f32 v13, v9, v9", "s_nop 0", "v_and_b32 v10, 0xffff0000, v13", "v_sub_f32 v10, v9, v10",
        "v_cvt_pk_bf16_f32 v14, v8, v10", "v_mov_b32 v15, 0",
        f"s_lshl_b32 s40, s{s_job}, 9", "v_lshlrev_b32 v5, 4, v0", "v_add_u32 v5, s40, v5", f"s_mov_b32 s40, {WS_COL}")
    k.vmem(f"buffer_store_dwordx4 v[12:15], v5, s[{srd_ws}:{srd_ws+3}], s40 offen {sc1}", "st")
    k.e("s_mov_b64 exec, s[44:45]")

def k0_kernel():
    k = KV("k0_stats_kernel", nvgpr=96)
    k.e("s_cmp_ge_u32 s2, 288", f"s_cbranch_scc1 L_end_{k.name}")
    fx = srd(k, 8, 0, SZ_X) + srd(k, 20, 72, WS_SIZE)
    k.e("s_load_dwordx2 s[28:29], s[0:1], 8", "s_load_dwordx2 s[30:31], s[0:1], 32", "s_load_dwordx2 s[32:33], s[0:1], 40")
    k.e("s_waitcnt lgkmcnt(0)"); k.e(*fx)
    k.e("s_cmp_ge_u32 s2, 128", "s_cbranch_scc1 L_k0_col")
    row_job(k, 2, 8, 20)
    k.e("s_branch L_k0_done")
    k.label("L_k0_col")
    k.e("s_sub_u32 s3, s2, 128")
    k.e("s_mov_b32 s12, s28", "s_mov_b32 s13, s29", f"s_mov_b32 s14, {SZ_WQKV}", "s_mov_b32 s15, 0x00020000",
        "s_movk_i32 s16, 3072", "s_lshl_b32 s17, s3, 6",
        "s_cmp_lt_u32 s3, 48", "s_cbranch_scc1 L_k0_go",
        "s_mov_b32 s12, s30", "s_mov_b32 s13, s31", f"s_mov_b32 s14, {SZ_WG}", "s_movk_i32 s16, 3584",
        "s_sub_u32 s17, s3, 48", "s_lshl_b32 s17, s17, 6",
        "s_cmp_lt_u32 s3, 104", "s_cbranch_scc1 L_k0_go",
        "s_mov_b32 s12, s32", "s_mov_b32 s13, s33", "s_sub_u32 s17, s3, 104", "s_lshl_b32 s17, s17, 6")
    k.label("L_k0_go")
    col_job(k, 3, 12, 16, 17, 20)
    k.label("L_k0_done")
    k.wait_vm_all()
    k.label(f"L_end_{k.name}")
    k.e("s_endpgm")
    return k

DBG = dict(nodma=False, nobar=False, noreads=False, fill=None, early=False)
def gemm_loop(k, nunits, mfmas, reads, dmas, vm_need, fill=6, dma_first_gap=0, hooks=None, pre_hooks=None, dbg=False):
    def tagof(g, name): return ("fr", g, name)
    for u in range(nunits):
        g0, g1 = 2*u, 2*u + 1
        k.wait_vm(*vm_need(u))
        k.wait_lg_all()
        if not (dbg and DBG["nobar"]): k.e("s_barrier")
        if pre_hooks and u in pre_hooks: pre_hooks[u]()
        R0 = list(reads(g0, 0)); R1 = list(reads(g1, 1))
        if dbg and DBG["noreads"] and u > 0: R0 = []; R1 = []
        if dbg and DBG["fill"]: fill = DBG["fill"]
        prev = list(mfmas(g0 - 1, 1)) if u > 0 else []
        cur = list(mfmas(g0, 0))
        D = list(dmas(u))
        if dbg and DBG["nodma"]: D = []
        rel = {}
        for i, (t, used) in enumerate(prev):
            for nm in used: rel[nm] = i
        def emit_reads(i, budget):
            n = 0
            while n < budget and R0:
                t, nm = R0.pop(0); k.ds(t, tagof(g0, nm)); n += 1
            j = 0
            while n < budget and j < len(R1):
                t, nm = R1[j]
                if rel.get(nm, -1) <= i:
                    k.ds(t, tagof(g1, nm)); R1.pop(j); n += 1
                else: j += 1
            return n
        if not prev:
            emit_reads(-1, 1000)
        early = dbg and DBG["early"]
        def emit_dma():
            for (txt, tag, isvm) in D.pop(0):
                if isvm: k.vmem(txt, tag)
                else: k.e(txt)
        for i, (t, used) in enumerate(prev):
            k.e(t)
            if early:
                emit_reads(i, 4)
                if D: emit_dma()
            else:
                emit_reads(i, fill)
        emit_reads(10**6, 1000)
        ngap = len(cur)
        per = -(-len(D) // ngap) if D else 0
        for j, (t, used) in enumerate(cur):
            k.wait_lg(*[tagof(g0, nm) for nm in used])
            k.e(t)
            for _ in range(per):
                if D:
                    for (txt, tag, isvm) in D.pop(0):
                        if isvm: k.vmem(txt, tag)
                        else: k.e(txt)
        assert not D
        if hooks and u in hooks:
            for h in hooks[u]: h()
    k.wait_lg_all()
    for (t, used) in mfmas(2*nunits - 1, 1): k.e(t)

def dma(srd_, voff, s_m0base, m0imm, s_tmp, soff, tag, imm=0):
    out = [(f"s_add_u32 m0, s{s_m0base}, {m0imm - imm}" , None, False)]
    out.append((f"s_mov_b32 s{s_tmp}, 0x{soff:x}", None, False))
    o = f" offset:{imm}" if imm else ""
    out.append((f"buffer_load_dwordx4 v{voff}, s[{srd_}:{srd_+3}], s{s_tmp} offen{o} lds", tag, True))
    return out

def dmab(srd_, voff, s_m0base, m0imm, s_tmp, s_base, soff, tag, imm=0, post=()):
    out = [(f"s_add_u32 m0, s{s_m0base}, {m0imm - imm}" , None, False)]
    out.append((f"s_add_u32 s{s_tmp}, s{s_base}, 0x{soff:x}", None, False))
    o = f" offset:{imm}" if imm else ""
    out.append((f"buffer_load_dwordx4 v{voff}, s[{srd_}:{srd_+3}], s{s_tmp} offen{o} lds", tag, True))
    for t in post: out.append((t, None, False))
    return out

def rot_adv(s, step, lim, tmp):
    return [f"s_add_u32 s{s}, s{s}, {step}", f"s_cmp_ge_u32 s{s}, {lim}", f"s_cselect_b32 s{tmp}, {lim}, 0", f"s_sub_u32 s{s}, s{s}, s{tmp}"]

def emit_groups(k, groups):
    for gr in groups:
        for (txt, tag, isvm) in gr:
            if isvm: k.vmem(txt, tag)
            else: k.e(txt)

MF = "v_mfma_f32_32x32x16_bf16"

def e1_body(k, SX=8, SW=12, SWS=20, sc1="", stats_sync=None):
    E1_XB = 49152
    k.e("v_and_b32 v1, 63, v0", "v_lshrrev_b32 v10, 6, v0", "s_nop 0", "v_readfirstlane_b32 s24, v10")
    k.e("v_and_b32 v11, 31, v1", "v_lshrrev_b32 v12, 5, v1")
    k.e("s_and_b32 s27, s24, 1", "s_lshr_b32 s28, s24, 1")
    k.e("v_lshrrev_b32 v13, 3, v1", "v_lshrrev_b32 v14, 4, v1", "v_and_b32 v15, 7, v1",
        "v_xor_b32 v7, v15, v14", "v_lshlrev_b32 v7, 4, v7", "v_lshl_add_u32 v7, v13, 10, v7",
        "s_lshl_b32 s29, s25, 16", "s_lshl_b32 s30, s24, 14", "s_add_u32 s29, s29, s30",
        "v_add_u32 v7, s29, v7", "v_xor_b32 v8, 64, v7", "v_add_u32 v8, 8192, v8")
    k.e("v_and_b32 v14, 1, v14", "v_lshlrev_b32 v14, 2, v14", "v_xor_b32 v9, v15, v14", "v_lshlrev_b32 v9, 4, v9",
        "s_lshl_b32 s30, s24, 3", "v_add_u32 v13, s30, v13", "v_mul_u32_u24 v13, 3072, v13", "v_add_u32 v9, v9, v13",
        "s_lshl_b32 s30, s26, 7", "v_add_u32 v9, s30, v9")
    k.e(f"s_lshl_b32 s31, s24, 11", f"s_add_u32 s31, s31, {E1_XB}", "s_lshl_b32 s32, s24, 10")
    def xd(v):
        return [dma(SX, 7, 31, (v % 3)*8192, 33, v*128, ("X", v)), dma(SX, 8, 31, (v % 3)*8192 + 1024, 33, v*128, ("X", v))]
    def wd(u):
        return [dma(SW, 9, 32, (u % 4)*12288 + p*4096, 33, u*32*3072, ("W", u), imm=1024*p) for p in range(3)]
    emit_groups(k, xd(0) + wd(0) + wd(1) + xd(1) + wd(2))
    for i in range(48, 64): k.e(f"v_mov_b32 v{i}, 0")
    k.e("s_lshl_b32 s34, s25, 6", "s_lshl_b32 s35, s27, 5", "s_add_u32 s34, s34, s35",
        "v_add_u32 v116, s34, v11", "v_lshlrev_b32 v116, 5, v116")
    k.e("s_lshl_b32 s35, s26, 6", "s_lshl_b32 s36, s28, 5", "s_add_u32 s35, s35, s36",
        "v_add_u32 v117, s35, v11", "v_lshlrev_b32 v117, 4, v117")
    def extras(xsc):
        k.vmem(f"buffer_load_dword v112, v116, s[{SWS}:{SWS+3}], 0 offen offset:{WS_TOK+16} {xsc}", "ex")
        k.e(f"s_mov_b32 s36, {WS_COL}", "s_mov_b64 exec, 0xffffffff")
        k.vmem(f"buffer_load_dwordx4 v[48:51], v116, s[{SWS}:{SWS+3}], 0 offen offset:{WS_TOK} {xsc}", "ex")
        for p in range(3):
            k.vmem(f"buffer_load_dwordx4 v[{52+4*p}:{55+4*p}], v117, s[{SWS}:{SWS+3}], s36 offen {xsc}", "ex")
            if p < 2: k.e("s_add_u32 s36, s36, 8192")
        k.e("s_mov_b64 exec, -1")
    hooks = None; pre_hooks = None
    if stats_sync is None:
        extras("")
    else:
        ue, up, uc = stats_sync
        k.e("v_and_b32 v114, 15, v1", "v_min_u32 v114, 9, v114", "v_lshlrev_b32 v114, 3, v114",
            f"s_lshl_b32 s36, s25, 5", f"s_add_u32 s36, s36, 0x{FLG_ROW:x}", "v_add_u32 v115, s36, v114",
            f"s_lshl_b32 s36, s26, 7", f"s_add_u32 s36, s36, 0x{FLG_COLQ - 32:x}", "v_add_u32 v118, s36, v114",
            "v_cmp_gt_u32 vcc, 32, v114", "s_nop 1", "v_cndmask_b32 v115, v118, v115, vcc")
        def h_e(): epoch_issue(k, 120)
        def h_p():
            epoch_check(k, 120)
            poll_issue(k, 120, 115)
        def h_c(): poll_check(k, 120, 115)
        def h_x(): extras("sc1")
        hooks = {ue: [h_e], up: [h_p], uc: [h_c]}
        pre_hooks = {uc + 1: h_x}
    k.e("s_lshl_b32 s36, s27, 5", "v_add_u32 v13, s36, v11", "v_bfe_u32 v14, v13, 1, 3", "v_xor_b32 v14, v14, v12",
        "v_lshlrev_b32 v14, 4, v14", "v_lshl_add_u32 v2, v13, 7, v14", f"v_add_u32 v2, {E1_XB}, v2",
        "v_xor_b32 v3, 32, v2", "v_xor_b32 v4, 64, v2", "v_xor_b32 v5, 96, v2")
    k.e("v_bfe_u32 v13, v1, 2, 2", "v_lshl_add_u32 v13, v12, 3, v13", "v_lshlrev_b32 v6, 7, v13",
        "v_bfe_u32 v13, v1, 4, 1", "v_lshlrev_b32 v13, 1, v13", "v_bfe_u32 v14, v1, 1, 1", "v_add_u32 v13, v13, v14",
        "s_lshl_b32 s36, s28, 2", "v_add_u32 v13, s36, v13", "v_bfe_u32 v14, v1, 3, 1", "v_lshlrev_b32 v14, 2, v14",
        "v_xor_b32 v13, v13, v14", "v_lshl_add_u32 v6, v13, 4, v6", "v_and_b32 v14, 1, v1", "v_lshl_add_u32 v6, v14, 3, v6")
    for i in range(64, 112): k.e(f"v_mov_b32 v{i}, 0")
    def fr(st): return 16 + 16*st
    def reads(g, st):
        b = fr(st); u = g >> 1; v = g >> 2
        out = [(f"ds_read_b128 v[{b}:{b+3}], v{2 + (g & 3)} offset:{(v % 3)*8192}", "X")]
        for p in range(3):
            o = (u % 4)*12288 + p*4096 + (g & 1)*2048
            out.append((f"ds_read_b64_tr_b16 v[{b+4+4*p}:{b+5+4*p}], v6 offset:{o}", f"W{p}"))
            out.append((f"ds_read_b64_tr_b16 v[{b+6+4*p}:{b+7+4*p}], v6 offset:{o+512}", f"W{p}"))
        return out
    def mf(b_x, b_w):
        out = []
        for p in range(3):
            a = 64 + 16*p
            w = f"v[{b_w+4*p}:{b_w+4*p+3}]"; x = f"v[{b_x}:{b_x+3}]"
            A, B = (w, x) if p < 2 else (x, w)
            out.append((f"{MF} v[{a}:{a+15}], {A}, {B}, v[{a}:{a+15}]", ["X", f"W{p}"]))
        return out
    def mfmas(g, st): return mf(fr(st), fr(st) + 4)
    def dmas(u):
        out = []
        if u + 3 < 16: out += wd(u + 3)
        if u % 2 == 0 and u//2 + 2 < 8: out += xd(u//2 + 2)
        return out
    k.stamp(1)
    gemm_loop(k, 16, mfmas, reads, dmas, lambda u: [("W", u), ("X", u >> 1)], hooks=hooks, pre_hooks=pre_hooks)
    k.stamp(2)
    k.wait_vm("ex")
    for (t, _) in mf(48, 52): k.e(t)
    k.e("s_lshl_b32 s36, s24, 7", "v_lshlrev_b32 v13, 2, v11", "v_add_u32 v13, s36, v13")
    k.ds("ds_write_b32 v13, v112")
    k.e("v_lshlrev_b32 v13, 4, v12", "v_add_u32 v13, s36, v13")
    k.wait_lg_all()
    for gq in range(4): k.ds(f"ds_read_b128 v[{32+4*gq}:{35+4*gq}], v13 offset:{32*gq}")
    k.e(f"v_mul_f32 v113, 0x{f2u(0.25*LOG2E):08x}, v112")
    k.e("v_lshlrev_b32 v10, 4, v1",
        "s_lshl_b32 s36, s26, 2", "s_lshl_b32 s37, s28, 1", "s_add_u32 s36, s36, s37", "s_lshl_b32 s36, s36, 16",
        "s_lshl_b32 s37, s25, 1", "s_add_u32 s37, s37, s27", "s_lshl_b32 s37, s37, 10", "s_add_u32 s36, s36, s37")
    k.e("s_nop 4")
    for p, (scale, base) in enumerate(((113, WS_QF), (112, WS_KF))):
        a = 64 + 16*p
        for r in range(16): k.e(f"v_mul_f32 v{a+r}, v{a+r}, v{scale}")
        for j in range(2):
            d = 16 + 8*p + 4*j
            for i in range(4): k.e(f"v_cvt_pk_bf16_f32 v{d+i}, v{a+8*j+2*i}, v{a+8*j+2*i+1}")
            k.e(f"s_add_u32 s37, s36, 0x{base + j*65536:x}")
            k.vmem(f"buffer_store_dwordx4 v[{d}:{d+3}], v10, s[{SWS}:{SWS+3}], s37 offen {sc1}", "st")
    k.wait_lg_all()
    a = 96
    for r in range(16): k.e(f"v_mul_f32 v{a+r}, v{a+r}, v{32+r}")
    k.e("v_lshrrev_b32 v13, 4, v11", "v_lshlrev_b32 v13, 16, v13", "v_lshl_add_u32 v13, v12, 8, v13", "v_and_b32 v14, 15, v11",
        "v_lshl_add_u32 v13, v14, 4, v13", f"s_add_u32 s37, s36, 0x{WS_VF:x}")
    for j in range(2):
        d = 48 + 4*j
        for i in range(4): k.e(f"v_cvt_pk_bf16_f32 v{d+i}, v{a+8*j+2*i}, v{a+8*j+2*i+1}")
        k.vmem(f"buffer_store_dwordx4 v[{d}:{d+3}], v13, s[{SWS}:{SWS+3}], s37 offen offset:{512*j} {sc1}", "st")

def e3_body(k, SX=8, SG=12, SU=16, SWS=20, sc1="", norm=False, xoff=0, epi_prio=None, post_loop=None, st_sc1=None, pre_loop=None):
    XB = 49152
    k.e("v_and_b32 v1, 63, v0", "v_lshrrev_b32 v10, 6, v0", "s_nop 0", "v_readfirstlane_b32 s24, v10")
    k.e("v_and_b32 v11, 31, v1", "v_lshrrev_b32 v12, 5, v1")
    k.e("s_and_b32 s27, s24, 1", "s_lshr_b32 s28, s24, 1")
    k.e("v_lshrrev_b32 v13, 3, v1", "v_lshrrev_b32 v14, 4, v1", "v_and_b32 v15, 7, v1",
        "v_xor_b32 v7, v15, v14", "v_lshlrev_b32 v7, 4, v7", "v_lshl_add_u32 v7, v13, 10, v7",
        "s_lshl_b32 s29, s25, 17", "s_lshl_b32 s30, s24, 15", "s_add_u32 s29, s29, s30",
        "v_add_u32 v7, s29, v7", "v_xor_b32 v8, 64, v7", "v_add_u32 v8, 8192, v8")
    k.e("v_lshlrev_b32 v13, 2, v14", "v_and_b32 v15, 15, v1", "v_xor_b32 v9, v15, v13", "v_lshlrev_b32 v9, 4, v9",
        "s_lshl_b32 s30, s24, 3", "v_add_u32 v13, s30, v14", "v_mul_u32_u24 v13, 3584, v13", "v_add_u32 v9, v9, v13",
        "s_lshl_b32 s30, s26, 8", "v_add_u32 v9, s30, v9")
    k.e(f"s_lshl_b32 s31, s24, 12", f"s_add_u32 s31, s31, {XB}", "s_lshl_b32 s32, s24, 11")
    def xd(v):
        return [dma(SX, 7 + (i & 1), 31, (v % 2)*16384 + i*1024, 33, xoff + v*128 + (i >> 1)*16384, ("X", v)) for i in range(4)]
    def wd(u):
        out = []
        for i in range(2):
            for p, sr in enumerate((SG, SU)):
                out.append(dma(sr, 9, 32, (u % 3)*16384 + p*8192 + i*1024, 33, (u*32 + 4*i)*3584, ("W", u)))
        return out
    emit_groups(k, xd(0) + wd(0) + wd(1))
    if pre_loop: pre_loop()
    k.e("s_lshl_b32 s36, s27, 6", "v_add_u32 v13, s36, v11", "v_bfe_u32 v14, v13, 1, 3", "v_xor_b32 v14, v14, v12",
        "v_lshlrev_b32 v14, 4, v14", "v_lshl_add_u32 v2, v13, 7, v14", f"v_add_u32 v2, {XB}, v2",
        "v_xor_b32 v3, 32, v2", "v_xor_b32 v4, 64, v2", "v_xor_b32 v5, 96, v2")
    k.e("v_bfe_u32 v15, v1, 2, 2", "v_lshl_add_u32 v13, v12, 3, v15", "v_lshlrev_b32 v6, 8, v13",
        "v_bfe_u32 v13, v1, 4, 1", "v_lshlrev_b32 v13, 1, v13", "v_bfe_u32 v14, v1, 1, 1", "v_add_u32 v13, v13, v14",
        "s_lshl_b32 s36, s28, 3", "v_add_u32 v13, s36, v13", "v_lshlrev_b32 v15, 2, v15",
        "v_xor_b32 v13, v13, v15", "v_lshl_add_u32 v6, v13, 4, v6", "v_and_b32 v14, 1, v1", "v_lshl_add_u32 v6, v14, 3, v6",
        "v_xor_b32 v10, 64, v6")
    ACC = 128
    if not norm:
        for i in range(ACC, ACC + 128): k.e(f"v_mov_b32 v{i}, 0")
    def fr(st): return 16 + 24*st
    def acc(part, b, tb): return ACC + 16*(part*4 + b*2 + tb)
    def reads(g, st):
        b0 = fr(st); u = g >> 1; v = g >> 2
        out = []
        def wr(part, b):
            d = b0 + 8 + 8*part + 4*b
            o = (u % 3)*16384 + part*8192 + (g & 1)*4096
            av = 6 if b == 0 else 10
            return [(f"ds_read_b64_tr_b16 v[{d}:{d+1}], v{av} offset:{o}", f"W{part}{b}"),
                    (f"ds_read_b64_tr_b16 v[{d+2}:{d+3}], v{av} offset:{o+1024}", f"W{part}{b}")]
        def xr(tb): return [(f"ds_read_b128 v[{b0+4*tb}:{b0+4*tb+3}], v{2 + (g & 3)} offset:{(v % 2)*16384 + tb*4096}", f"X{tb}")]
        out = xr(0) + wr(0, 0) + xr(1) + wr(0, 1) + wr(1, 0) + wr(1, 1)
        return out
    def mf(b0, first=False):
        out = []
        for part in range(2):
            for b in range(2):
                for tb in range(2):
                    a = acc(part, b, tb); w = b0 + 8 + 8*part + 4*b; x = b0 + 4*tb
                    c = "0" if first else f"v[{a}:{a+15}]"
                    out.append((f"{MF} v[{a}:{a+15}], v[{w}:{w+3}], v[{x}:{x+3}], {c}", [f"X{tb}", f"W{part}{b}"]))
        return out
    def mfmas(g, st): return mf(fr(st), first=(norm and g == 0))
    def dmas(u):
        out = []
        if u + 2 < 16: out += wd(u + 2)
        if u % 2 == 0 and u//2 + 1 < 8: out += xd(u//2 + 1)
        return out
    if not norm:
        for i in range(64, 88): k.e(f"v_mov_b32 v{i}, 0")
        k.e("s_lshl_b32 s34, s25, 7", "s_lshl_b32 s35, s27, 6", "s_add_u32 s34, s34, s35",
            "v_add_u32 v13, s34, v11", "v_lshlrev_b32 v13, 5, v13")
        for tb in range(2):
            k.vmem(f"buffer_load_dwordx2 v[{88+2*tb}:{89+2*tb}], v13, s[{SWS}:{SWS+3}], 0 offen offset:{WS_TOK+16+1024*tb} {sc1}", "ex")
        k.e("s_lshl_b32 s35, s26, 7", "s_lshl_b32 s36, s28, 6", "s_add_u32 s35, s35, s36",
            "v_add_u32 v14, s35, v11", "v_lshlrev_b32 v14, 4, v14", f"s_mov_b32 s36, {WS_COL + 1536*16}", f"s_mov_b32 s37, {WS_COL + 3328*16}",
            "s_mov_b64 exec, 0xffffffff")
        for tb in range(2):
            k.vmem(f"buffer_load_dwordx4 v[{64+4*tb}:{67+4*tb}], v13, s[{SWS}:{SWS+3}], 0 offen offset:{WS_TOK+1024*tb} {sc1}", "ex")
        for part in range(2):
            for b in range(2):
                d = 72 + 8*part + 4*b
                k.vmem(f"buffer_load_dwordx4 v[{d}:{d+3}], v14, s[{SWS}:{SWS+3}], s{36+part} offen offset:{512*b} {sc1}", "ex")
        k.e("s_mov_b64 exec, -1")
    k.stamp(1)
    gemm_loop(k, 16, mfmas, reads, dmas, lambda u: [("W", u), ("X", u >> 1)], dbg=True)
    k.stamp(2)
    if epi_prio is not None: k.e(f"s_setprio {epi_prio}")
    if post_loop: post_loop()
    if st_sc1 is None: st_sc1 = sc1
    if not norm:
        k.wait_vm("ex")
        for (t, _) in mf(64): k.e(t)
        k.e(f"v_mul_f32 v92, 0x{f2u(LOG2E):08x}, v88", f"v_mul_f32 v93, 0x{f2u(LOG2E):08x}, v90")
    else:
        k.e(f"s_mov_b32 s38, 0x{f2u(-LOG2E):08x}")
    k.e("v_lshlrev_b32 v10, 4, v1",
        "s_lshl_b32 s36, s25, 2", "s_lshl_b32 s37, s27, 1", "s_add_u32 s36, s36, s37", "s_mul_i32 s36, s36, 112",
        "s_lshl_b32 s37, s26, 3", "s_add_u32 s36, s36, s37", "s_lshl_b32 s37, s28, 2", "s_add_u32 s36, s36, s37",
        "s_lshl_b32 s36, s36, 10", f"s_add_u32 s36, s36, 0x{WS_HF:x}")
    k.e("s_nop 4")
    n = 0
    for b in range(2):
        for tb in range(2):
            g = acc(0, b, tb); uu = acc(1, b, tb)
            A = 92 + tb; SD = 89 + 2*tb
            if not norm:
                for r in range(16): k.e(f"v_mul_f32 v{g+r}, v{g+r}, v{A}")
                for r in range(16): k.e(f"v_exp_f32 v{g+r}, -v{g+r}")
                for r in range(16): k.e(f"v_fma_f32 v{g+r}, v{g+r}, v{SD}, v{SD}")
            else:
                for r in range(16): k.e(f"v_mul_f32 v{g+r}, s38, v{g+r}")
                for r in range(16): k.e(f"v_exp_f32 v{g+r}, v{g+r}")
                for r in range(16): k.e(f"v_add_f32 v{g+r}, 1.0, v{g+r}")
            for r in range(16): k.e(f"v_rcp_f32 v{g+r}, v{g+r}")
            for r in range(16): k.e(f"v_mul_f32 v{g+r}, v{g+r}, v{uu+r}")
            for j in range(2):
                d = 16 + 4*(n % 8); n += 1
                for i in range(4): k.e(f"v_cvt_pk_bf16_f32 v{d+i}, v{g+8*j+2*i}, v{g+8*j+2*i+1}")
                k.e(f"s_add_u32 s37, s36, {(tb*112 + b*2 + j)*1024}")
                k.vmem(f"buffer_store_dwordx4 v[{d}:{d+3}], v10, s[{SWS}:{SWS+3}], s37 offen {st_sc1}", "st")

def k1_kernel():
    k = KV("k1_gemm_kernel", nvgpr=256)
    k.e("s_cmp_ge_u32 s2, 480", f"s_cbranch_scc1 L_end_{k.name}")
    fx = srd(k, 8, 0, SZ_X) + srd(k, 20, 72, WS_SIZE)
    k.e("s_cmp_ge_u32 s2, 256", "s_cbranch_scc1 L_k1_e3")
    fx1 = srd(k, 12, 8, SZ_WQKV)
    k.e("s_waitcnt lgkmcnt(0)"); k.e(*(fx + fx1))
    k.e("s_and_b32 s26, s2, 7", "s_lshr_b32 s25, s2, 3")
    k.stamp(0)
    e1_body(k)
    k.wait_vm_all()
    k.stamp(3); k.stamp_out(4, 0); k.wait_vm_all()
    k.e("s_endpgm")
    k.label("L_k1_e3")
    k.vm = []; k.lg = []
    fx3 = srd(k, 12, 32, SZ_WG) + srd(k, 16, 40, SZ_WG)
    k.e("s_waitcnt lgkmcnt(0)"); k.e(*(fx + fx3))
    k.e("s_sub_u32 s3, s2, 256", "s_and_b32 s4, s3, 7", "s_lshr_b32 s5, s3, 3", "s_mul_i32 s4, s4, 28", "s_add_u32 s4, s4, s5",
        "s_lshr_b32 s26, s4, 4", "s_and_b32 s25, s4, 15")
    k.stamp(0)
    e3_body(k)
    k.wait_vm_all()
    k.stamp(3); k.stamp_out(4, 0); k.wait_vm_all()
    k.label(f"L_end_{k.name}")
    k.e("s_endpgm")
    return k

BIAS_M = 90.0
def e2_body(k, SWS=20, sc1="", tag="e2", bias=BIAS_M, force_fb=False, pre_hook=None, sparse_ones=True, st_sc1=None, touch=False, oflag=False):
    SA, SB, OA, OB, CA, CB, PA, PB, QA, QB = 64, 80, 96, 112, 128, 144, 160, 168, 176, 180
    KB_ = [184, 188]; VB_ = [192, 200]
    SLOT = 12288
    S = [SA, SB]; O = [OA, OB]; C = [CA, CB]; P = [PA, PB]; Q = [QA, QB]
    k.e("v_and_b32 v1, 63, v0", "v_lshrrev_b32 v10, 6, v0", "s_nop 0", "v_readfirstlane_b32 s24, v10")
    k.e("v_lshlrev_b32 v2, 4, v1")
    k.e("v_lshrrev_b32 v3, 5, v1", "v_lshlrev_b32 v3, 8, v3", "v_and_b32 v4, 15, v1", "v_lshl_add_u32 v3, v4, 4, v3")
    k.e("s_mov_b32 s28, 0x0000ffff", "s_mov_b32 s29, 0x0000ffff")
    k.e("s_lshl_b32 s34, s24, 10", "v_add_u32 v14, s34, v2", f"s_add_u32 s34, s34, 0x{WS_VF - WS_KF - 1024:x}", "v_add_u32 v15, s34, v3",
        "v_subrev_u32 v16, 512, v15")
    k.e("s_lshl_b32 s33, s25, 16", f"s_add_u32 s30, s33, 0x{WS_KF:x}", "s_mul_i32 s32, s24, 3072")
    def chunk_dma_items(slot):
        return [("s", f"s_add_u32 m0, s32, {slot*SLOT}"),
                ("s", "s_nop 0"),
                ("v", f"buffer_load_dwordx4 v14, s[{SWS}:{SWS+3}], s30 offen lds {sc1}"),
                ("s", "s_mov_b64 exec, s[28:29]"),
                ("v", f"buffer_load_dwordx4 v15, s[{SWS}:{SWS+3}], s30 offen offset:1024 lds {sc1}"),
                ("v", f"buffer_load_dwordx4 v16, s[{SWS}:{SWS+3}], s30 offen offset:2048 lds {sc1}"),
                ("s", "s_mov_b64 exec, -1"),
                ("s", "s_add_u32 s30, s30, 4096")]
    def chunk_dma(slot):
        for kind, t in chunk_dma_items(slot):
            if kind == "v": k.vmem(t, "c")
            else: k.e(t)
    if sparse_ones:
        k.e("v_and_b32 v9, 27, v1", "v_cmp_eq_u32 vcc, 16, v9", "v_mov_b32 v4, 0x3f803f80", "v_mov_b32 v5, 0", "s_nop 1", "v_cndmask_b32 v4, v5, v4, vcc")
    else:
        k.e("v_mov_b32 v4, 0x3f803f80")
    k.e("v_mov_b32 v5, v4", "v_mov_b32 v6, v4", "v_mov_b32 v7, v4",
        f"s_mul_i32 s33, s24, {SLOT}", "v_add_u32 v8, s33, v2", "s_mov_b32 s38, 0xffff0000", "s_mov_b32 s39, 0xffff0000", "s_mov_b64 exec, s[38:39]")
    for kb in range(4):
        for g in range(2): k.ds(f"ds_write_b128 v8, v[4:7] offset:{kb*3072 + 1024 + g*1024}")
    k.e("s_mov_b64 exec, -1")
    if pre_hook: pre_hook()
    k.e("s_lshl_b32 s36, s26, 3", "s_lshl_b32 s37, s24, 1", "s_add_u32 s36, s36, s37",
        "s_lshl_b32 s37, s25, 6", "s_add_u32 s37, s37, s36", "s_lshl_b32 s37, s37, 10", f"s_add_u32 s37, s37, 0x{WS_QF:x}")
    chunk_dma(0)
    k.vmem(f"buffer_load_dwordx4 v[{QA}:{QA+3}], v2, s[{SWS}:{SWS+3}], s37 offen {sc1}", "q")
    k.vmem(f"buffer_load_dwordx4 v[{QB}:{QB+3}], v2, s[{SWS}:{SWS+3}], s37 offen offset:1024 {sc1}", "q")
    chunk_dma(1); chunk_dma(2)
    if touch:
        k.e("s_and_b32 s36, s24, 1", f"s_mul_i32 s36, s36, 0x{WS_VF - WS_KF:x}", "s_lshl_b32 s37, s26, 13", "s_add_u32 s36, s36, s37",
            "s_lshl_b32 s37, s25, 16", "s_add_u32 s36, s36, s37", f"s_add_u32 s36, s36, 0x{WS_KF:x}", "v_lshlrev_b32 v20, 7, v1")
        k.vmem(f"buffer_load_dword v21, v20, s[{SWS}:{SWS+3}], s36 offen", "touch")
    for i in range(16):
        k.e(f"v_mov_b32 v{OA+i}, 0", f"v_mov_b32 v{OB+i}, 0")
    for i in range(8): k.e(f"v_mov_b32 v{PB+i}, 0", f"v_mov_b32 v{VB_[1]+i}, 0")
    k.wait_vm("q")
    k.wait_lg_all()
    k.e("s_barrier")
    k.ds(f"ds_read_b128 v[{KB_[0]}:{KB_[0]+3}], v2 offset:0")
    k.ds(f"ds_read_b128 v[{KB_[1]}:{KB_[1]+3}], v2 offset:3072")
    k.wait_lg_all()
    k.e(f"{MF} v[{SA}:{SA+15}], v[{KB_[0]}:{KB_[0]+3}], v[{QA}:{QA+3}], 0",
        f"{MF} v[{SB}:{SB+15}], v[{KB_[0]}:{KB_[0]+3}], v[{QB}:{QB+3}], 0",
        f"{MF} v[{CA}:{CA+15}], v[{KB_[1]}:{KB_[1]+3}], v[{QA}:{QA+3}], 0",
        f"{MF} v[{CB}:{CB+15}], v[{KB_[1]}:{KB_[1]+3}], v[{QB}:{QB+3}], 0")
    k.e("s_nop 9")
    for x in range(2):
        k.e(f"v_max3_f32 v{10+x}, v{S[x]}, v{S[x]+1}, v{S[x]+2}")
        for i in range(3, 15, 2): k.e(f"v_max3_f32 v{10+x}, v{S[x]+i}, v{S[x]+i+1}, v{10+x}")
        k.e(f"v_max_f32 v{10+x}, v{S[x]+15}, v{10+x}")
    k.e("s_nop 4")
    for x in range(2):
        for i in range(0, 16, 2): k.e(f"v_max3_f32 v{10+x}, v{C[x]+i}, v{C[x]+i+1}, v{10+x}")
    k.e("v_mov_b32 v12, v10", "v_mov_b32 v13, v11", "s_nop 1", "v_permlane32_swap_b32 v10, v12", "v_permlane32_swap_b32 v11, v13", "s_nop 1",
        "v_max_f32 v10, v10, v12", "v_max_f32 v11, v11, v13")
    k.e(f"v_sub_f32 v10, 0x{f2u(-bias):08x}, v10", f"v_sub_f32 v11, 0x{f2u(-bias):08x}, v11")
    for i in range(16): k.e(f"v_mov_b32 v{CA+i}, v10", f"v_mov_b32 v{CB+i}, v11")
    k.e("s_nop 1")
    k.e(f"{MF} v[{SA}:{SA+15}], v[{KB_[0]}:{KB_[0]+3}], v[{QA}:{QA+3}], v[{CA}:{CA+15}]")
    k.e("s_nop 11")

    def valu_seq(x):
        s, p = S[x], P[x]
        out = []
        for i in range(8):
            out.append(f"v_exp_f32 v{s+2*i}, v{s+2*i}"); out.append(f"v_exp_f32 v{s+2*i+1}, v{s+2*i+1}")
            if i >= 1: out.append(f"v_cvt_pk_bf16_f32 v{p+i-1}, v{s+2*i-2}, v{s+2*i-1}")
        out.append(f"v_cvt_pk_bf16_f32 v{p+7}, v{s+14}, v{s+15}")
        return out
    def phase(mf3, x, slots):
        va = valu_seq(x)
        def put(j):
            if mf3[j]: k.e(mf3[j])
            for t in slots[j]: k.e(t)
        put(0)
        for i, t in enumerate(va):
            k.e(t)
            if i == 5: put(1)
            if i == 13: put(2)
    def pvs(x, vb):
        return [f"{MF} v[{O[x]}:{O[x]+15}], v[{vb}:{vb+3}], v[{P[x]}:{P[x]+3}], v[{O[x]}:{O[x]+15}]",
                f"{MF} v[{O[x]}:{O[x]+15}], v[{vb+4}:{vb+7}], v[{P[x]+4}:{P[x]+7}], v[{O[x]}:{O[x]+15}]"]
    def koff(c4, kk):
        n = c4*4 + kk
        return ((n // 4) % 4)*SLOT + (n % 4)*3072
    def block(c4, kk, kblk_left, sync, do_dma):
        par = kk & 1
        vo = koff(c4, kk) + 1024
        sA = [[f"ds_read_b128 v[{VB_[par]}:{VB_[par]+3}], v2 offset:{vo}"],
              [f"ds_read_b128 v[{VB_[par]+4}:{VB_[par]+7}], v2 offset:{vo+1024}"],
              ["s_waitcnt lgkmcnt(1)"]]
        if sync is not None: sA[2] = [f"s_waitcnt vmcnt({sync}) lgkmcnt(1)", "s_barrier"]
        pv = pvs(1, VB_[par ^ 1])
        phase([f"{MF} v[{SB}:{SB+15}], v[{KB_[par]}:{KB_[par]+3}], v[{QB}:{QB+3}], v[{CB}:{CB+15}]", pv[0], pv[1]], 0, sA)
        fm = None if kblk_left < 1 else f"{MF} v[{SA}:{SA+15}], v[{KB_[par^1]}:{KB_[par^1]+3}], v[{QA}:{QA+3}], v[{CA}:{CA+15}]"
        sB = [[], [], []]
        if kblk_left >= 2:
            sB[0] = [f"ds_read_b128 v[{KB_[par]}:{KB_[par]+3}], v2 offset:{koff(c4, kk + 2)}"]
            sB[1] = ["s_waitcnt lgkmcnt(1)"]
        else:
            sB[0] = ["s_waitcnt lgkmcnt(0)"]
        if do_dma:
            it = [t for _, t in chunk_dma_items((c4 + 3) % 4)]
            sB[1] = sB[1] + it[0:3]
            sB[2] = it[3:]
        pv = pvs(0, VB_[par])
        phase([fm, pv[0], pv[1]], 1, sB)
    k.vm = []; k.lg = []
    k.stamp(1)
    k.e("s_mov_b32 s36, 3")
    L = f"L_{tag}_loop"
    k.label(L)
    for c4 in range(4):
        for kk in range(4):
            block(c4, kk, 99, 3 if kk == 2 else None, kk == 2)
    k.e("s_sub_u32 s36, s36, 1", "s_cmp_lg_u32 s36, 0", f"s_cbranch_scc1 {L}")
    for c4 in range(4):
        for kk in range(4):
            sync = None; dm = False
            if kk == 2:
                if c4 == 0: sync, dm = 3, True
                elif c4 == 1: sync = 3
                elif c4 == 2: sync = 0
            block(c4, kk, (3 - c4)*4 + (3 - kk), sync, dm)
    k.vm = []
    k.stamp(2)
    k.e("s_nop 1")
    for t in pvs(1, VB_[1]): k.e(t)
    k.e("s_nop 11")
    for x in range(2):
        k.e(f"v_add_f32 v{10+x}, v{O[x]}, v{O[x]+8}")
        for i in range(1, 8): k.e(f"v_add_f32 v{10+x}, v{10+x}, v{O[x]+i}")
    k.e("v_add_f32 v10, v10, v11", "s_movk_i32 s33, 0x207", "v_cmp_class_f32 vcc, v10, s33")
    if force_fb: k.e("s_mov_b64 vcc, -1")
    k.e("s_nop 4", f"s_cbranch_vccnz L_{tag}_fb")
    k.label(f"L_{tag}_fin")
    for x in range(2): k.e(f"v_rcp_f32 v{10+x}, v{O[x]+8}")
    k.e("s_nop 0")
    k.e("s_lshl_b32 s36, s26, 3", "s_lshl_b32 s37, s24, 1", "s_add_u32 s36, s36, s37", "s_lshl_b32 s36, s36, 5", "s_add_u32 s36, s36, s25",
        "s_lshl_b32 s36, s36, 10", f"s_add_u32 s36, s36, 0x{WS_OF:x}")
    for x in range(2):
        for i in range(8): k.e(f"v_mul_f32 v{O[x]+i}, v{O[x]+i}, v{10+x}")
        for i in range(4): k.e(f"v_cvt_pk_bf16_f32 v{P[x]+i}, v{O[x]+2*i}, v{O[x]+2*i+1}")
        k.vmem(f"buffer_store_dwordx4 v[{P[x]}:{P[x]+3}], v2, s[{SWS}:{SWS+3}], s36 offen {sc1 if st_sc1 is None else st_sc1}", "st")
        if x == 0: k.e("s_add_u32 s36, s36, 32768")
    if oflag:
        k.e("s_lshl_b32 s36, s26, 2", "s_add_u32 s36, s36, s24", "s_lshl_b32 s36, s36, 7", "s_lshl_b32 s37, s25, 2", "s_add_u32 s36, s36, s37",
            f"s_add_u32 s36, s36, 0x{FLG_O:x}", "v_mov_b32 v12, s36", "v_mov_b32 v13, 1", "s_mov_b64 exec, 1")
        k.vmem(f"buffer_store_dword v13, v12, s[{SWS}:{SWS+3}], 0 offen sc1", "st")
        k.e("s_mov_b64 exec, -1")
    k.fb_code = lambda: e2_fallback(k, SWS, sc1, tag, S, O, C, P, Q, KB_, VB_)

def e2_fallback(k, SWS, sc1, tag, S, O, C, P, Q, KB_, VB_):
    k.label(f"L_{tag}_fb")
    KR = KB_[0]; VR = VB_[0]
    k.e("s_lshl_b32 s33, s25, 16", f"s_add_u32 s30, s33, 0x{WS_KF:x}", f"s_add_u32 s31, s33, 0x{WS_VF:x}")
    k.e("v_mov_b32 v10, 0xff800000", "v_mov_b32 v11, 0xff800000", "s_mov_b32 s36, 64", "s_mov_b32 s33, s30")
    k.label(f"L_{tag}_fb1")
    k.e(f"buffer_load_dwordx4 v[{KR}:{KR+3}], v2, s[{SWS}:{SWS+3}], s33 offen {sc1}", "s_waitcnt vmcnt(0)")
    for x in range(2): k.e(f"{MF} v[{S[x]}:{S[x]+15}], v[{KR}:{KR+3}], v[{Q[x]}:{Q[x]+3}], 0")
    k.e("s_nop 11")
    for x in range(2):
        for i in range(0, 16, 2): k.e(f"v_max3_f32 v{10+x}, v{S[x]+i}, v{S[x]+i+1}, v{10+x}")
    k.e("s_add_u32 s33, s33, 1024", "s_sub_u32 s36, s36, 1", "s_cmp_lg_u32 s36, 0", f"s_cbranch_scc1 L_{tag}_fb1")
    k.e("v_mov_b32 v12, v10", "v_mov_b32 v13, v11", "s_nop 1", "v_permlane32_swap_b32 v10, v12", "v_permlane32_swap_b32 v11, v13", "s_nop 1",
        "v_max_f32 v10, v10, v12", "v_max_f32 v11, v11, v13", "v_sub_f32 v10, 0, v10", "v_sub_f32 v11, 0, v11")
    for i in range(16):
        k.e(f"v_mov_b32 v{C[0]+i}, v10", f"v_mov_b32 v{C[1]+i}, v11", f"v_mov_b32 v{O[0]+i}, 0", f"v_mov_b32 v{O[1]+i}, 0")
    for i in range(8): k.e(f"v_mov_b32 v{VR+i}, 0x3f803f80")
    k.e("s_mov_b32 s36, 64")
    k.label(f"L_{tag}_fb2")
    k.e(f"buffer_load_dwordx4 v[{KR}:{KR+3}], v2, s[{SWS}:{SWS+3}], s30 offen {sc1}", "s_mov_b64 exec, s[28:29]",
        f"buffer_load_dwordx4 v[{VR}:{VR+3}], v3, s[{SWS}:{SWS+3}], s31 offen {sc1}",
        f"buffer_load_dwordx4 v[{VR+4}:{VR+7}], v3, s[{SWS}:{SWS+3}], s31 offen offset:512 {sc1}",
        "s_mov_b64 exec, -1", "s_waitcnt vmcnt(0)")
    for x in range(2): k.e(f"{MF} v[{S[x]}:{S[x]+15}], v[{KR}:{KR+3}], v[{Q[x]}:{Q[x]+3}], v[{C[x]}:{C[x]+15}]")
    k.e("s_nop 11")
    for x in range(2):
        for i in range(16): k.e(f"v_exp_f32 v{S[x]+i}, v{S[x]+i}")
        k.e("s_nop 0")
        for i in range(8): k.e(f"v_cvt_pk_bf16_f32 v{P[x]+i}, v{S[x]+2*i}, v{S[x]+2*i+1}")
    k.e("s_nop 1")
    for x in range(2):
        k.e(f"{MF} v[{O[x]}:{O[x]+15}], v[{VR}:{VR+3}], v[{P[x]}:{P[x]+3}], v[{O[x]}:{O[x]+15}]",
            f"{MF} v[{O[x]}:{O[x]+15}], v[{VR+4}:{VR+7}], v[{P[x]+4}:{P[x]+7}], v[{O[x]}:{O[x]+15}]")
    k.e("s_add_u32 s30, s30, 1024", "s_add_u32 s31, s31, 1024", "s_sub_u32 s36, s36, 1", "s_cmp_lg_u32 s36, 0", f"s_cbranch_scc1 L_{tag}_fb2")
    k.e("s_nop 11", f"s_branch L_{tag}_fin")

def k2_kernel(**kw):
    k = KV("k2_attn_kernel", nvgpr=256)
    k.e("s_cmp_ge_u32 s2, 256", f"s_cbranch_scc1 L_end_{k.name}")
    fx = srd(k, 20, 72, WS_SIZE)
    k.e("s_waitcnt lgkmcnt(0)"); k.e(*fx)
    k.e("s_and_b32 s3, s2, 7", "s_lshr_b32 s4, s2, 3", "s_and_b32 s5, s4, 3", "s_lshl_b32 s25, s3, 2", "s_add_u32 s25, s25, s5", "s_lshr_b32 s26, s4, 2")
    k.stamp(0)
    e2_body(k, **kw)
    k.wait_vm_all()
    k.stamp(3); k.stamp_out(4, 0x20000); k.wait_vm_all()
    k.label(f"L_end_{k.name}")
    k.e("s_endpgm")
    k.fb_code()
    return k

def e4_body(k, SD=12, SO=16, SWS=20, SX=8, SOUT=4, sc1="", tag="e4"):
    DEPTH = 8
    ACC = 64
    HR = 128
    WR = 16
    k.e("v_and_b32 v1, 63, v0", "v_lshrrev_b32 v10, 6, v0", "s_nop 0", "v_readfirstlane_b32 s24, v10")
    k.e("v_lshlrev_b32 v2, 4, v1")
    k.e("v_lshrrev_b32 v3, 3, v1", "v_lshlrev_b32 v3, 10, v3", "v_bfe_u32 v4, v1, 4, 1", "v_lshlrev_b32 v4, 2, v4", "v_and_b32 v5, 7, v1",
        "v_xor_b32 v4, v4, v5", "v_lshl_add_u32 v3, v4, 4, v3", "s_lshl_b32 s27, s26, 7", "v_add_u32 v3, s27, v3")
    k.e("v_lshrrev_b32 v4, 5, v1", "v_bfe_u32 v5, v1, 2, 2", "v_lshl_add_u32 v4, v4, 2, v5", "v_lshlrev_b32 v6, 7, v4",
        "v_bfe_u32 v4, v1, 4, 1", "v_lshlrev_b32 v4, 1, v4", "v_bfe_u32 v5, v1, 1, 1", "v_add_u32 v4, v4, v5",
        "v_bfe_u32 v5, v1, 3, 1", "v_lshlrev_b32 v5, 2, v5", "v_xor_b32 v4, v4, v5", "v_lshl_add_u32 v6, v4, 4, v6",
        "v_and_b32 v5, 1, v1", "v_lshl_add_u32 v6, v5, 3, v6", "s_lshl_b32 s28, s24, 14", "v_add_u32 v6, s28, v6", "v_xor_b32 v7, 64, v6")
    k.e("s_mul_i32 s29, s24, 458752",
        "s_mul_i32 s30, s25, 224", "s_mul_i32 s31, s24, 28", "s_add_u32 s30, s30, s31", "s_lshl_b32 s30, s30, 10", f"s_add_u32 s30, s30, 0x{WS_HF:x}",
        "s_lshl_b32 s34, s24, 17",
        "s_lshl_b32 s35, s25, 6", "s_lshl_b32 s31, s24, 3", "s_add_u32 s35, s35, s31", "s_lshl_b32 s35, s35, 10", f"s_add_u32 s35, s35, 0x{WS_OF:x}")
    NS = 36
    def issue(s):
        slot = s % DEPTH
        if s < 28: sr, sb, kk, hb, hstride = SD, 29, s, 30, 112*1024
        else: sr, sb, kk, hb, hstride = SO, 34, s - 28, 35, 32*1024
        for i in range(2):
            k.e(f"s_add_u32 m0, s28, {slot*2048 + i*1024}", f"s_add_u32 s33, s{sb}, {kk*16384 + i*8192}")
            k.vmem(f"buffer_load_dwordx4 v3, s[{sr}:{sr+3}], s33 offen lds", ("W", s))
        for tb in range(2):
            d = HR + slot*8 + 4*tb
            k.e(f"s_add_u32 s33, s{hb}, {kk*1024 + tb*hstride}")
            k.vmem(f"buffer_load_dwordx4 v[{d}:{d+3}], v2, s[{SWS}:{SWS+3}], s33 offen {sc1}", ("H", s))
    def reads(s):
        b = WR + 8*(s & 1); o = (s % DEPTH)*2048
        for cb2 in range(2):
            av = 6 + cb2
            k.ds(f"ds_read_b64_tr_b16 v[{b+4*cb2}:{b+4*cb2+1}], v{av} offset:{o}", ("r", s))
            k.ds(f"ds_read_b64_tr_b16 v[{b+4*cb2+2}:{b+4*cb2+3}], v{av} offset:{o+1024}", ("r", s))
    for s in range(DEPTH): issue(s)
    k.e("v_lshrrev_b32 v8, 3, v0", "s_lshl_b32 s31, s25, 6", "v_add_u32 v8, s31, v8", "v_lshlrev_b32 v8, 10, v8",
        "v_and_b32 v9, 7, v0", "v_lshl_add_u32 v8, v9, 4, v8", "v_add_u32 v8, s27, v8")
    k.vmem(f"buffer_load_dwordx4 v[32:35], v8, s[{SX}:{SX+3}], 0 offen", "x")
    k.e("s_mov_b32 s31, 32768")
    k.vmem(f"buffer_load_dwordx4 v[36:39], v8, s[{SX}:{SX+3}], s31 offen", "x")
    for i in range(64): k.e(f"v_mov_b32 v{ACC+i}, 0")
    k.stamp(1)
    k.wait_vm(("W", 0)); reads(0)
    for s in range(NS):
        if s + 1 < NS:
            k.wait_vm(("W", s + 1)); reads(s + 1)
        k.wait_vm(("H", s)); k.wait_lg(("r", s))
        b = WR + 8*(s & 1); h = HR + (s % DEPTH)*8
        for cb2 in range(2):
            for tb in range(2):
                a = ACC + 16*(cb2*2 + tb)
                k.e(f"{MF} v[{a}:{a+15}], v[{b+4*cb2}:{b+4*cb2+3}], v[{h+4*tb}:{h+4*tb+3}], v[{a}:{a+15}]")
        if s + DEPTH < NS: issue(s + DEPTH)
    k.stamp(2)
    k.e("s_nop 7", "s_barrier")
    RS = 272
    k.e("v_and_b32 v4, 31, v1", f"v_mul_u32_u24 v4, {RS}, v4", "v_lshrrev_b32 v5, 5, v1", "v_lshl_add_u32 v4, v5, 4, v4",
        f"s_mul_i32 s31, s24, {64*RS}", "v_add_u32 v4, s31, v4", "s_nop 3")
    for cb2 in range(2):
        for tb in range(2):
            a = ACC + 16*(cb2*2 + tb)
            for g in range(4):
                k.ds(f"ds_write_b128 v4, v[{a+4*g}:{a+4*g+3}] offset:{tb*32*RS + cb2*128 + g*32}")
    k.wait_lg_all()
    k.e("s_barrier")
    k.e("v_lshrrev_b32 v4, 3, v0", f"v_mul_u32_u24 v4, {RS}, v4", "v_and_b32 v5, 7, v0", "v_lshl_add_u32 v4, v5, 5, v4")
    for half in range(2):
        for w in range(4):
            d = 64 + half*32 + w*8
            for j in range(2):
                k.ds(f"ds_read_b128 v[{d+4*j}:{d+4*j+3}], v4 offset:{w*64*RS + half*32*RS + j*16}", ("rd", half))
    k.wait_vm("x")
    for half in range(2):
        k.wait_lg(("rd", half))
        d = 64 + half*32
        for i in range(8):
            k.e(f"v_add_f32 v{d+i}, v{d+i}, v{d+8+i}", f"v_add_f32 v{d+16+i}, v{d+16+i}, v{d+24+i}")
        for i in range(4):
            xr = 32 + 4*half + i
            k.e(f"v_lshlrev_b32 v{d+8+2*i}, 16, v{xr}", f"v_and_b32 v{d+9+2*i}, 0xffff0000, v{xr}")
        for i in range(8): k.e(f"v_add_f32 v{d+i}, v{d+i}, v{d+16+i}")
        for i in range(8): k.e(f"v_add_f32 v{d+i}, v{d+i}, v{d+8+i}")
        for i in range(4): k.e(f"v_cvt_pk_bf16_f32 v{40+4*half+i}, v{d+2*i}, v{d+2*i+1}")
        if half == 0: k.vmem(f"buffer_store_dwordx4 v[40:43], v8, s[{SOUT}:{SOUT+3}], 0 offen", "st")
        else: k.vmem(f"buffer_store_dwordx4 v[44:47], v8, s[{SOUT}:{SOUT+3}], s31 offen", "st") if False else None
    k.e("s_mov_b32 s31, 32768")
    k.vmem(f"buffer_store_dwordx4 v[44:47], v8, s[{SOUT}:{SOUT+3}], s31 offen", "st")

def k3_kernel():
    k = KV("k3_out_kernel", nvgpr=256)
    k.e("s_cmp_ge_u32 s2, 256", f"s_cbranch_scc1 L_end_{k.name}")
    fx = srd(k, 8, 0, SZ_X) + srd(k, 20, 72, WS_SIZE) + srd(k, 12, 48, SZ_WD) + srd(k, 16, 16, SZ_WO) + srd(k, 4, 56, SZ_X)
    k.e("s_waitcnt lgkmcnt(0)"); k.e(*fx)
    k.e("s_and_b32 s3, s2, 7", "s_lshr_b32 s27, s2, 3", "s_and_b32 s28, s27, 3", "s_lshl_b32 s25, s3, 2", "s_add_u32 s25, s25, s28", "s_lshr_b32 s26, s27, 2")
    k.stamp(0)
    e4_body(k)
    k.wait_vm_all()
    k.stamp(3); k.stamp_out(4, 0x40000); k.wait_vm_all()
    k.label(f"L_end_{k.name}")
    k.e("s_endpgm")
    return k

def stats_role(k, sc1="sc1"):
    k.e("s_cmp_ge_u32 s3, 128", "s_cbranch_scc1 L_st_col")
    row_job(k, 3, 8, 20, sc1=sc1, pre_store=lambda: epoch_issue(k, 74))
    k.wait_vm_all()
    epoch_check(k, 74)
    k.e("s_lshl_b32 s48, s3, 3", f"s_add_u32 s48, s48, 0x{FLG_ROW:x}")
    publish(k, 48)
    k.e("s_branch L_st_done")
    k.label("L_st_col")
    k.vm = []; k.lg = []
    k.e("s_sub_u32 s3, s3, 128")
    k.label("L_st_col2")
    k.e("s_mov_b32 s12, s28", "s_mov_b32 s13, s29", f"s_mov_b32 s14, {SZ_WQKV}", "s_mov_b32 s15, 0x00020000",
        "s_movk_i32 s16, 3072", "s_lshl_b32 s17, s3, 6",
        "s_bfe_u32 s48, s3, 0x30001", "s_lshl_b32 s48, s48, 7", "s_lshr_b32 s49, s3, 4", "s_lshl_b32 s49, s49, 4", "s_add_u32 s48, s48, s49",
        "s_and_b32 s49, s3, 1", "s_lshl_b32 s49, s49, 3", "s_add_u32 s48, s48, s49", f"s_add_u32 s48, s48, 0x{FLG_COLQ:x}",
        "s_cmp_lt_u32 s3, 48", "s_cbranch_scc1 L_st_go",
        "s_mov_b32 s12, s30", "s_mov_b32 s13, s31", f"s_mov_b32 s14, {SZ_WG}", "s_movk_i32 s16, 3584",
        "s_sub_u32 s50, s3, 48", "s_lshl_b32 s17, s50, 6", f"s_mov_b32 s51, 0x{FLG_COLG:x}",
        "s_cmp_lt_u32 s3, 104", "s_cbranch_scc1 L_st_gu",
        "s_mov_b32 s12, s32", "s_mov_b32 s13, s33", "s_sub_u32 s50, s3, 104", "s_lshl_b32 s17, s50, 6", f"s_mov_b32 s51, 0x{FLG_COLG + 32:x}")
    k.label("L_st_gu")
    k.e("s_lshr_b32 s48, s50, 2", "s_lshl_b32 s48, s48, 7", "s_and_b32 s49, s50, 3", "s_lshl_b32 s49, s49, 3", "s_add_u32 s48, s48, s49", "s_add_u32 s48, s48, s51")
    k.label("L_st_go")
    col_job(k, 3, 12, 16, 17, 20, sc1=sc1, pre_store=lambda: epoch_issue(k, 60))
    k.wait_vm_all()
    epoch_check(k, 60)
    publish(k, 48)
    k.e("s_cmp_lt_u32 s3, 96", "s_cbranch_scc1 L_st_done", "s_cmp_ge_u32 s3, 128", "s_cbranch_scc1 L_st_done",
        "s_add_u32 s3, s3, 32", "s_branch L_st_col2")
    k.label("L_st_done")

def kA_kernel(ue=4, up=7, uc=10, name="ka_qkv_kernel"):
    k = KV(name, nvgpr=256)
    k.e("s_cmp_ge_u32 s2, 512", f"s_cbranch_scc1 L_end_{k.name}")
    fx = srd(k, 8, 0, SZ_X) + srd(k, 20, 72, WS_SIZE)
    load_dbg(k)
    wave_id(k)
    k.e("s_cmp_ge_u32 s2, 256", "s_cbranch_scc1 L_ka_g")
    fx1 = srd(k, 12, 8, SZ_WQKV)
    k.e("s_waitcnt lgkmcnt(0)"); k.e(*(fx + fx1))
    epoch_make(k)
    k.e("s_and_b32 s26, s2, 7", "s_lshr_b32 s25, s2, 3")
    k.stamp(0)
    e1_body(k, stats_sync=(ue, up, uc))
    k.wait_vm_all()
    k.stamp(3); k.stamp_out(4, 0); k.wait_vm_all()
    k.e("s_endpgm")
    k.label("L_ka_g")
    k.vm = []; k.lg = []
    k.e("s_load_dwordx2 s[28:29], s[0:1], 8", "s_load_dwordx2 s[30:31], s[0:1], 32", "s_load_dwordx2 s[32:33], s[0:1], 40")
    k.e("s_waitcnt lgkmcnt(0)"); k.e(*fx)
    k.e("s_sub_u32 s3, s2, 256")
    k.stamp(0); k.stamp(1); k.stamp(2)
    stats_role(k)
    k.wait_vm_all()
    k.stamp(3); k.stamp_out(4, 0); k.wait_vm_all()
    k.label(f"L_end_{k.name}")
    k.e("s_endpgm")
    k.emit_tails()
    return k

def prefetch_role(k, jobs, s_idx, nwg):
    for (sr, nb) in jobs:
        per = nb // nwg
        assert per % 4096 == 0 or per % 1024 == 0
        k.e(f"s_mul_i32 s40, s{s_idx}, {per}", "v_lshlrev_b32 v1, 4, v0", "v_add_u32 v1, s40, v1")
        n = per // 4096
        rem = per % 4096
        k.e("s_mov_b32 s41, 0")
        for i in range(n):
            k.vmem(f"buffer_load_dwordx4 v[{4+4*(i%32)}:{7+4*(i%32)}], v1, s[{sr}:{sr+3}], s41 offen", "pf")
            k.e("s_add_u32 s41, s41, 4096")
        if rem:
            k.e(f"v_cmp_gt_u32 vcc, {rem//16}, v0" if rem//16 <= 64 else f"s_movk_i32 s42, {rem//16}\n v_cmp_gt_u32 vcc, s42, v0", "s_and_saveexec_b64 s[44:45], vcc")
            k.vmem(f"buffer_load_dwordx4 v[{4+4*(n%32)}:{7+4*(n%32)}], v1, s[{sr}:{sr+3}], s41 offen", "pf")
            k.e("s_mov_b64 exec, s[44:45]")
    k.wait_vm_all()

def kB_kernel(name="kb_attn_glu_kernel", prio_a=None, prio_g=None, **kw):
    k = KV(name, nvgpr=256)
    k.e("s_cmp_ge_u32 s2, 512", f"s_cbranch_scc1 L_end_{k.name}")
    fx = srd(k, 20, 72, WS_SIZE)
    k.e("s_cmp_ge_u32 s2, 256", "s_cbranch_scc1 L_kb_g")
    k.e("s_waitcnt lgkmcnt(0)"); k.e(*fx)
    if prio_a is not None: k.e(f"s_setprio {prio_a}")
    k.e("s_and_b32 s3, s2, 7", "s_lshr_b32 s4, s2, 3", "s_and_b32 s5, s4, 3", "s_lshl_b32 s25, s3, 2", "s_add_u32 s25, s25, s5", "s_lshr_b32 s26, s4, 2")
    k.stamp(0)
    e2_body(k, **kw)
    k.wait_vm_all()
    k.stamp(3); k.stamp_out(4, 0x20000); k.wait_vm_all()
    k.e("s_endpgm")
    fb = k.fb_code
    k.label("L_kb_g")
    k.vm = []; k.lg = []
    k.e("s_cmp_ge_u32 s2, 480", "s_cbranch_scc1 L_kb_pf")
    fx3 = srd(k, 8, 0, SZ_X) + srd(k, 12, 32, SZ_WG) + srd(k, 16, 40, SZ_WG)
    k.e("s_waitcnt lgkmcnt(0)"); k.e(*(fx + fx3))
    if prio_g is not None: k.e(f"s_setprio {prio_g}")
    k.e("s_sub_u32 s3, s2, 256", "s_and_b32 s4, s3, 7", "s_lshr_b32 s5, s3, 3", "s_mul_i32 s4, s4, 28", "s_add_u32 s4, s4, s5",
        "s_lshr_b32 s26, s4, 4", "s_and_b32 s25, s4, 15")
    k.stamp(0)
    e3_body(k)
    k.wait_vm_all()
    k.stamp(3); k.stamp_out(4, 0x20000); k.wait_vm_all()
    k.e("s_endpgm")
    k.label("L_kb_pf")
    k.vm = []; k.lg = []
    fxp = srd(k, 12, 48, SZ_WD) + srd(k, 16, 16, SZ_WO)
    k.e("s_waitcnt lgkmcnt(0)"); k.e(*fxp)
    k.e("s_sub_u32 s3, s2, 480")
    prefetch_role(k, [(12, SZ_WD), (16, SZ_WO)], 3, 32)
    k.label(f"L_end_{k.name}")
    k.e("s_endpgm")
    fb()
    k.emit_tails()
    return k

WS_XN = 0x1100000
WS_SIZE2 = 0x1300000
def e1n_body(k, SX=8, SW=12, SWS=20, sc1="", NS=7, fine=False, prep=False, l2warm=0, wtouch=None):
    WB = 65536
    assert WB + NS*12288 <= 163840
    k.e("v_and_b32 v1, 63, v0", "v_lshrrev_b32 v10, 6, v0", "s_nop 0", "v_readfirstlane_b32 s24, v10")
    XR = 128
    k.e("v_lshrrev_b32 v13, 3, v1", "v_and_b32 v15, 7, v1", "v_lshlrev_b32 v7, 4, v15", "v_lshl_add_u32 v7, v13, 10, v7",
        "s_lshl_b32 s29, s25, 16", "s_lshl_b32 s30, s24, 14", "s_add_u32 s29, s29, s30", "s_add_u32 s30, s29, 8192")
    for g in range(2):
        for j in range(8):
            d = XR + 32*g + 4*j
            k.vmem(f"buffer_load_dwordx4 v[{d}:{d+3}], v7, s[{SX}:{SX+3}], s{29+g} offen offset:{128*j}", ("x", g))
    k.e("v_and_b32 v11, 31, v1", "v_lshrrev_b32 v12, 5, v1", "v_lshrrev_b32 v14, 4, v1")
    k.e("s_and_b32 s27, s24, 1", "s_lshr_b32 s28, s24, 1")
    k.e("v_and_b32 v14, 1, v14", "v_lshlrev_b32 v14, 2, v14", "v_xor_b32 v9, v15, v14", "v_lshlrev_b32 v9, 4, v9",
        "s_lshl_b32 s31, s24, 3", "v_add_u32 v16, s31, v13", "v_mul_u32_u24 v16, 3072, v16", "v_add_u32 v9, v9, v16",
        "s_lshl_b32 s31, s26, 7", "v_add_u32 v9, s31, v9")
    k.e("s_lshl_b32 s32, s24, 10", f"s_add_u32 s32, s32, {WB}")
    def wd(u):
        return [dma(SW, 9, 32, (u % NS)*12288 + p*4096, 33, u*32*3072, ("W", u), imm=1024*p) for p in range(3)]
    for u in range(NS - 1): emit_groups(k, wd(u))
    if l2warm:
        nrow = (16 - (NS - 1))*32
        per = nrow // 16
        k.e("s_and_b32 s34, s25, 3", "s_lshl_b32 s34, s34, 2", "s_add_u32 s34, s34, s24", f"s_mul_i32 s34, s34, {per*3072}",
            f"s_add_u32 s34, s34, {(NS-1)*32*3072}", f"s_mul_i32 s35, s24, {8*3072}", "s_sub_u32 s34, s34, s35",
            "s_lshl_b32 s35, s24, 10", f"s_add_u32 m0, s35, {WB + NS*12288}")
        for r0 in range(0, per, 8):
            part = r0 + 8 > per
            assert (not part) or per % 8 == 4
            if part: k.e("s_mov_b64 exec, 0xffffffff")
            for p in range(3):
                k.e(f"s_add_u32 s35, s34, {r0*3072 + 1024*p}")
                k.vmem(f"buffer_load_dwordx4 v9, s[{SW}:{SW+3}], s35 offen lds", "warm")
            if part: k.e("s_mov_b64 exec, -1")
    if prep:
        k.e("v_mov_b32 v40, -1", "v_mov_b32 v41, -1", "v_mov_b32 v42, -1", "v_mov_b32 v43, -1", "v_lshlrev_b32 v48, 4, v0",
            "s_lshl_b32 s34, s2, 13", f"s_add_u32 s34, s34, 0x{WS_OF:x}")
        k.vmem(f"buffer_store_dwordx4 v[40:43], v48, s[{SWS}:{SWS+3}], s34 offen", "prep")
        k.e("s_add_u32 s34, s34, 4096")
        k.vmem(f"buffer_store_dwordx4 v[40:43], v48, s[{SWS}:{SWS+3}], s34 offen", "prep")
        Lp = k.newlabel("prep")
        k.e("v_mov_b32 v44, 0", "v_mov_b32 v45, 0", "v_mov_b32 v46, 0", "v_mov_b32 v47, 0", f"s_mov_b32 s34, 0x{FLG_H:x}",
            "s_lshl_b32 s35, s2, 12", "s_add_u32 s34, s34, s35", "s_cmp_ge_u32 s2, 2", f"s_cbranch_scc1 {Lp}")
        k.vmem(f"buffer_store_dwordx4 v[44:47], v48, s[{SWS}:{SWS+3}], s34 offen", "prep", opt=True)
        k.label(Lp)
    k.e("v_lshrrev_b32 v16, 1, v13", "v_xor_b32 v16, v15, v16", "v_lshlrev_b32 v16, 4, v16", "v_lshl_add_u32 v16, v13, 7, v16",
        "s_lshl_b32 s31, s24, 11", "v_add_u32 v16, s31, v16", "v_xor_b32 v17, 64, v16", "v_add_u32 v17, 1024, v17")
    k.e("s_lshl_b32 s36, s27, 5", "v_add_u32 v18, s36, v11", "v_bfe_u32 v19, v18, 1, 3", "v_xor_b32 v19, v19, v12",
        "v_lshlrev_b32 v19, 4, v19", "v_lshl_add_u32 v2, v18, 7, v19",
        "v_xor_b32 v3, 32, v2", "v_xor_b32 v4, 64, v2", "v_xor_b32 v5, 96, v2")
    k.e("v_bfe_u32 v18, v1, 2, 2", "v_lshl_add_u32 v18, v12, 3, v18", "v_lshlrev_b32 v6, 7, v18",
        "v_bfe_u32 v18, v1, 4, 1", "v_lshlrev_b32 v18, 1, v18", "v_bfe_u32 v19, v1, 1, 1", "v_add_u32 v18, v18, v19",
        "s_lshl_b32 s36, s28, 2", "v_add_u32 v18, s36, v18", "v_bfe_u32 v19, v1, 3, 1", "v_lshlrev_b32 v19, 2, v19",
        "v_xor_b32 v18, v18, v19", "v_lshl_add_u32 v6, v18, 4, v6", "v_and_b32 v19, 1, v1", "v_lshl_add_u32 v6, v19, 3, v6",
        f"v_add_u32 v6, {WB}, v6", f"v_add_u32 v8, {5*12288}, v6")
    F = [64, 192]
    k.e("s_mov_b32 s42, 0x3f803f80", "s_mov_b32 s43, 0x00003f80", "s_mov_b32 s44, 0x3f800000")
    A = [20, 24]
    for g in range(2):
        k.wait_vm(("x", g))
        for i in range(32):
            c = f"v{A[g] + i % 4}" if i >= 4 else "0"
            k.e(f"v_dot2_f32_bf16 v{A[g] + i % 4}, v{XR + 32*g + i}, s42, {c}")
    if fine: k.stamp(1)
    k.e("s_nop 2")
    def red8(regs):
        for b in regs: k.e(f"v_add_f32 v{b}, v{b}, v{b+1}", f"v_add_f32 v{b+2}, v{b+2}, v{b+3}")
        for b in regs: k.e(f"v_add_f32 v{b}, v{b}, v{b+2}")
        k.e("s_nop 1")
        for mode in ("quad_perm:[1,0,3,2]", "quad_perm:[2,3,0,1]", "row_half_mirror"):
            for b in regs: k.e(f"v_add_f32_dpp v{b}, v{b}, v{b} {mode} row_mask:0xf bank_mask:0xf")
            k.e("s_nop 1")
    red8(A)
    for g in range(2): k.e(f"v_mul_f32 v{A[g]}, 0xbb000000, v{A[g]}")
    k.e("s_nop 0")
    for g in range(2):
        for i in range(32):
            k.e(f"v_dot2_f32_bf16 v{F[g] + 2*i}, v{XR + 32*g + i}, s43, v{A[g]}", f"v_dot2_f32_bf16 v{F[g] + 2*i + 1}, v{XR + 32*g + i}, s44, v{A[g]}")
    k.e("s_nop 2")
    B = [28, 32]
    for g in range(2):
        for i in range(32):
            a = B[g] + 2*(i % 2); d = F[g] + 2*i
            if i < 2: k.e(f"v_pk_mul_f32 v[{a}:{a+1}], v[{d}:{d+1}], v[{d}:{d+1}]")
            else: k.e(f"v_pk_fma_f32 v[{a}:{a+1}], v[{d}:{d+1}], v[{d}:{d+1}], v[{a}:{a+1}]")
    red8(B)
    k.e("v_mov_b32 v36, 0x3727c5ac", "v_mov_b32 v38, 0x3727c5ac")
    for g in range(2): k.e(f"v_fmac_f32 v{36+2*g}, 0x3b000000, v{B[g]}")
    for g in range(2): k.e(f"v_rsq_f32 v{36+2*g}, v{36+2*g}")
    k.e("s_nop 0")
    for g in range(2):
        for j in range(8):
            for i in range(4):
                d = F[g] + 2*(4*j + i)
                k.e(f"v_pk_mul_f32 v[{d}:{d+1}], v[{d}:{d+1}], v[{36+2*g}:{37+2*g}] op_sel_hi:[1,0]")
            for i in range(4):
                d = F[g] + 2*(4*j + i)
                k.e(f"v_cvt_pk_bf16_f32 v{XR + 32*g + 4*j + i}, v{d}, v{d+1}")
            k.ds(f"ds_write_b128 v{16+g}, v[{XR + 32*g + 4*j}:{XR + 32*g + 4*j + 3}] offset:{8192*j}")
    Ls = k.newlabel("xn"); L1 = k.newlabel("xn1")
    k.e("s_lshr_b32 s36, s26, 1", "s_cmp_lg_u32 s36, s24", f"s_cbranch_scc1 {Ls}",
        "s_lshl_b32 s36, s25, 16", "s_lshl_b32 s37, s26, 13", "s_add_u32 s36, s36, s37", f"s_add_u32 s36, s36, 0x{WS_XN:x}",
        "s_bitcmp1_b32 s26, 0", f"s_cbranch_scc1 {L1}")
    for g in range(2):
        if g == 1: k.label(L1)
        for j in range(8):
            d = XR + 32*g + 4*j
            k.vmem(f"buffer_store_dwordx4 v[{d}:{d+3}], v7, s[{SWS}:{SWS+3}], s36 offen offset:{128*j} {sc1}", "xn", opt=True)
        if g == 0: k.e(f"s_branch {Ls}")
    k.label(Ls)
    def fr(st): return 16 + 16*st + 24
    def reads(g, st):
        b = fr(st); u = g >> 1; v = g >> 2
        out = [(f"ds_read_b128 v[{b}:{b+3}], v{2 + (g & 3)} offset:{v*8192}", "X")]
        sl = u % NS
        av, so = (6, sl*12288) if sl < 5 else (8, (sl - 5)*12288)
        for p in range(3):
            o = so + p*4096 + (g & 1)*2048
            out.append((f"ds_read_b64_tr_b16 v[{b+4+4*p}:{b+5+4*p}], v{av} offset:{o}", f"W{p}"))
            out.append((f"ds_read_b64_tr_b16 v[{b+6+4*p}:{b+7+4*p}], v{av} offset:{o+512}", f"W{p}"))
        return out
    ACC = 80
    def mfmas(g, st):
        out = []
        b_x = fr(st); b_w = b_x + 4
        for p in range(3):
            a = ACC + 16*p
            w = f"v[{b_w+4*p}:{b_w+4*p+3}]"; x = f"v[{b_x}:{b_x+3}]"
            A_, B_ = (w, x) if p < 2 else (x, w)
            c = "0" if g == 0 else f"v[{a}:{a+15}]"
            out.append((f"{MF} v[{a}:{a+15}], {A_}, {B_}, {c}", ["X", f"W{p}"]))
        return out
    def dmas(u):
        return wd(u + NS - 1) if u + NS - 1 < 16 else []
    hooks = None
    if wtouch:
        def h_t():
            k.e("s_lshl_b32 s34, s2, 8", "v_add_u32 v72, s34, v0", "v_lshlrev_b32 v72, 7, v72", "s_lshl_b32 s35, s24, 10", f"s_add_u32 m0, s35, {WB + NS*12288}")
            start = 0
            for i, (sr, nb) in enumerate(wtouch):
                k.e(f"v_subrev_u32 v{73+i}, 0x{start:x}, v72")
                k.vmem(f"buffer_load_dword v{73+i}, s[{sr}:{sr+3}], 0 offen lds", "wt")
                start += nb
            assert start <= 65536*128
        hooks = {16 - NS: [h_t]}
    k.stamp(2 if fine else 1)
    gemm_loop(k, 16, mfmas, reads, dmas, lambda u: [("W", u)], hooks=hooks)
    if not fine: k.stamp(2)
    k.e("v_lshlrev_b32 v10, 4, v1",
        "s_lshl_b32 s36, s26, 2", "s_lshl_b32 s37, s28, 1", "s_add_u32 s36, s36, s37", "s_lshl_b32 s36, s36, 16",
        "s_lshl_b32 s37, s25, 1", "s_add_u32 s37, s37, s27", "s_lshl_b32 s37, s37, 10", "s_add_u32 s36, s36, s37")
    k.e("v_lshrrev_b32 v13, 4, v11", "v_lshlrev_b32 v13, 16, v13", "v_lshl_add_u32 v13, v12, 8, v13", "v_and_b32 v14, 15, v11",
        "v_lshl_add_u32 v13, v14, 4, v13", f"s_mov_b32 s38, 0x{f2u(0.25*LOG2E):08x}")
    k.e("s_nop 7")
    for p, base in enumerate((WS_QF, WS_KF)):
        a = ACC + 16*p
        if p == 0:
            for r in range(16): k.e(f"v_mul_f32 v{a+r}, s38, v{a+r}")
        for j in range(2):
            d = 16 + 8*p + 4*j
            for i in range(4): k.e(f"v_cvt_pk_bf16_f32 v{d+i}, v{a+8*j+2*i}, v{a+8*j+2*i+1}")
            k.e(f"s_add_u32 s37, s36, 0x{base + j*65536:x}")
            k.vmem(f"buffer_store_dwordx4 v[{d}:{d+3}], v10, s[{SWS}:{SWS+3}], s37 offen {sc1}", "st")
    a = ACC + 32
    k.e(f"s_add_u32 s37, s36, 0x{WS_VF:x}")
    for j in range(2):
        d = 32 + 4*j
        for i in range(4): k.e(f"v_cvt_pk_bf16_f32 v{d+i}, v{a+8*j+2*i}, v{a+8*j+2*i+1}")
        k.vmem(f"buffer_store_dwordx4 v[{d}:{d+3}], v13, s[{SWS}:{SWS+3}], s37 offen offset:{512*j} {sc1}", "st")

def kA2_kernel(name="ka_qkv_kernel", mapping=0, wtouch=False, **kw):
    k = KV(name, nvgpr=256)
    k.e("s_cmp_ge_u32 s2, 256", f"s_cbranch_scc1 L_end_{k.name}")
    fx = srd(k, 8, 0, SZ_X) + srd(k, 20, 72, WS_SIZE2) + srd(k, 12, 8, SZ_WQKV)
    if wtouch:
        fx += srd(k, 76, 32, SZ_WG) + srd(k, 80, 40, SZ_WG) + srd(k, 84, 48, SZ_WD) + srd(k, 88, 16, SZ_WO)
        kw["wtouch"] = [(76, SZ_WG), (80, SZ_WG), (84, SZ_WD), (88, SZ_WO)]
    k.e("s_waitcnt lgkmcnt(0)"); k.e(*fx)
    if mapping == 0:
        k.e("s_and_b32 s26, s2, 7", "s_lshr_b32 s25, s2, 3")
    elif mapping == 1:
        k.e("s_and_b32 s3, s2, 7", "s_lshr_b32 s4, s2, 3", "s_and_b32 s5, s4, 3", "s_lshl_b32 s25, s3, 2", "s_add_u32 s25, s25, s5", "s_lshr_b32 s26, s4, 2")
    elif mapping == 2:
        k.e("s_and_b32 s3, s2, 7", "s_lshr_b32 s4, s2, 3", "s_and_b32 s5, s3, 3", "s_lshl_b32 s26, s5, 1", "s_and_b32 s5, s4, 1", "s_add_u32 s26, s26, s5",
            "s_lshr_b32 s25, s3, 2", "s_lshl_b32 s25, s25, 4", "s_lshr_b32 s5, s4, 1", "s_add_u32 s25, s25, s5")
    elif mapping == 3:
        k.e("s_and_b32 s3, s2, 7", "s_lshr_b32 s4, s2, 3", "s_and_b32 s5, s3, 1", "s_lshl_b32 s26, s5, 2", "s_and_b32 s5, s4, 3", "s_add_u32 s26, s26, s5",
            "s_lshr_b32 s25, s3, 1", "s_lshl_b32 s25, s25, 3", "s_lshr_b32 s5, s4, 2", "s_add_u32 s25, s25, s5")
    k.stamp(0)
    e1n_body(k, **kw)
    k.wait_vm_all()
    k.stamp(3); k.stamp_out(4, 0); k.wait_vm_all()
    k.label(f"L_end_{k.name}")
    k.e("s_endpgm")
    return k


def kB2_kernel(name="kb_attn_glu_kernel", prio_a=None, prio_g=None, epi_prio=None, prefetch=True, **kw):
    k = KV(name, nvgpr=256)
    k.e("s_cmp_ge_u32 s2, 512", f"s_cbranch_scc1 L_end_{k.name}")
    fx = srd(k, 20, 72, WS_SIZE2)
    k.e("s_cmp_ge_u32 s2, 256", "s_cbranch_scc1 L_kb_g")
    k.e("s_waitcnt lgkmcnt(0)"); k.e(*fx)
    if prio_a is not None: k.e(f"s_setprio {prio_a}")
    k.e("s_and_b32 s3, s2, 7", "s_lshr_b32 s4, s2, 3", "s_and_b32 s5, s4, 3", "s_lshl_b32 s25, s3, 2", "s_add_u32 s25, s25, s5", "s_lshr_b32 s26, s4, 2")
    k.stamp(0)
    e2_body(k, **kw)
    k.wait_vm_all()
    k.stamp(3); k.stamp_out(4, 0x20000); k.wait_vm_all()
    k.e("s_endpgm")
    fb = k.fb_code
    k.label("L_kb_g")
    k.vm = []; k.lg = []
    k.e("s_cmp_ge_u32 s2, 480", "s_cbranch_scc1 L_kb_pf")
    fx3 = srd(k, 12, 32, SZ_WG) + srd(k, 16, 40, SZ_WG)
    k.e("s_waitcnt lgkmcnt(0)"); k.e(*(fx + fx3))
    if prio_g is not None: k.e(f"s_setprio {prio_g}")
    k.e("s_sub_u32 s3, s2, 256", "s_and_b32 s4, s3, 7", "s_lshr_b32 s5, s3, 3", "s_mul_i32 s4, s4, 28", "s_add_u32 s4, s4, s5",
        "s_lshr_b32 s26, s4, 4", "s_and_b32 s25, s4, 15")
    k.stamp(0)
    e3_body(k, SX=20, norm=True, xoff=WS_XN, epi_prio=epi_prio)
    k.wait_vm_all()
    k.stamp(3); k.stamp_out(4, 0x20000); k.wait_vm_all()
    k.e("s_endpgm")
    k.label("L_kb_pf")
    k.vm = []; k.lg = []
    if prefetch:
        fxp = srd(k, 12, 48, SZ_WD) + srd(k, 16, 16, SZ_WO)
        k.e("s_waitcnt lgkmcnt(0)"); k.e(*fxp)
        k.e("s_sub_u32 s3, s2, 480")
        prefetch_role(k, [(12, SZ_WD), (16, SZ_WO)], 3, 32)
    k.label(f"L_end_{k.name}")
    k.e("s_endpgm")
    fb()
    k.emit_tails()
    return k


class E4F:
    DEPTH = 8; ACC = 64; HR = 128; WR = 16; WOF = 192
    V16 = 48; VW = 49; VT = 50; VX = 52; VPH = 53; VPO = 54; VP = 55; VC = 56
    SB = 40; SDO = 41; SH = 42; SWO = 43; SO_ = 44; ST = 45; SCB = 46; SRB = 47; SC = 48; SK = 49
    def __init__(self, k, SD, SO, SWS, SX, SOUT, hsleep=2, osleep=2):
        self.k = k; self.SD = SD; self.SO = SO; self.SWS = SWS; self.SX = SX; self.SOUT = SOUT
        self.hsleep = hsleep; self.osleep = osleep
    def setup(self):
        k = self.k; c = self
        a, b = 56, 57
        k.e(f"v_lshlrev_b32 v{c.V16}, 4, v1", f"s_lshl_b32 s{c.ST}, s{c.SCB}, 7",
            f"v_lshrrev_b32 v{c.VW}, 3, v1", f"v_lshlrev_b32 v{c.VW}, 10, v{c.VW}", f"v_bfe_u32 v{a}, v1, 4, 1", f"v_lshlrev_b32 v{a}, 2, v{a}", f"v_and_b32 v{b}, 7, v1",
            f"v_xor_b32 v{a}, v{a}, v{b}", f"v_lshl_add_u32 v{c.VW}, v{a}, 4, v{c.VW}", f"v_add_u32 v{c.VW}, s{c.ST}, v{c.VW}")
        k.e(f"v_lshrrev_b32 v{a}, 5, v1", f"v_bfe_u32 v{b}, v1, 2, 2", f"v_lshl_add_u32 v{a}, v{a}, 2, v{b}", f"v_lshlrev_b32 v{c.VT}, 7, v{a}",
            f"v_bfe_u32 v{a}, v1, 4, 1", f"v_lshlrev_b32 v{a}, 1, v{a}", f"v_bfe_u32 v{b}, v1, 1, 1", f"v_add_u32 v{a}, v{a}, v{b}",
            f"v_bfe_u32 v{b}, v1, 3, 1", f"v_lshlrev_b32 v{b}, 2, v{b}", f"v_xor_b32 v{a}, v{a}, v{b}", f"v_lshl_add_u32 v{c.VT}, v{a}, 4, v{c.VT}",
            f"v_and_b32 v{b}, 1, v1", f"v_lshl_add_u32 v{c.VT}, v{b}, 3, v{c.VT}", f"s_lshl_b32 s{c.SB}, s24, 14", f"v_add_u32 v{c.VT}, s{c.SB}, v{c.VT}",
            f"v_xor_b32 v{c.VT+1}, 64, v{c.VT}")
        k.e(f"s_mul_i32 s{c.SDO}, s24, 458752",
            f"s_mul_i32 s{c.SH}, s{c.SRB}, 224", f"s_mul_i32 s{c.SC}, s24, 28", f"s_add_u32 s{c.SH}, s{c.SH}, s{c.SC}", f"s_lshl_b32 s{c.SH}, s{c.SH}, 10", f"s_add_u32 s{c.SH}, s{c.SH}, 0x{WS_HF:x}",
            f"s_lshl_b32 s{c.SWO}, s24, 17",
            f"s_lshl_b32 s{c.SO_}, s{c.SRB}, 6", f"s_lshl_b32 s{c.SC}, s24, 3", f"s_add_u32 s{c.SO_}, s{c.SO_}, s{c.SC}", f"s_lshl_b32 s{c.SO_}, s{c.SO_}, 10", f"s_add_u32 s{c.SO_}, s{c.SO_}, 0x{WS_OF:x}")
        k.e(f"v_lshrrev_b32 v{c.VX}, 3, v0", f"s_lshl_b32 s{c.SC}, s{c.SRB}, 6", f"v_add_u32 v{c.VX}, s{c.SC}, v{c.VX}", f"v_lshlrev_b32 v{c.VX}, 10, v{c.VX}",
            f"v_and_b32 v{a}, 7, v0", f"v_lshl_add_u32 v{c.VX}, v{a}, 4, v{c.VX}", f"v_add_u32 v{c.VX}, s{c.ST}, v{c.VX}")
        k.e(f"v_min_u32 v{c.VPH}, 6, v1", f"s_mul_i32 s{c.SC}, s24, 7", f"v_add_u32 v{c.VPH}, s{c.SC}, v{c.VPH}", f"v_lshlrev_b32 v{c.VPH}, 2, v{c.VPH}",
            f"s_lshl_b32 s{c.SC}, s{c.SRB}, 7", f"s_add_u32 s{c.SC}, s{c.SC}, 0x{FLG_H:x}", f"v_add_u32 v{c.VPH}, s{c.SC}, v{c.VPH}")
        k.e(f"v_and_b32 v{a}, 7, v1", f"v_lshlrev_b32 v{c.VPO}, 2, v{a}", f"s_lshl_b32 s{c.SC}, s{c.SRB}, 7", f"s_lshl_b32 s{c.SK}, s24, 5",
            f"s_add_u32 s{c.SC}, s{c.SC}, s{c.SK}", f"s_add_u32 s{c.SC}, s{c.SC}, 0x{FLG_O:x}", f"v_add_u32 v{c.VPO}, s{c.SC}, v{c.VPO}")
    def touchW(self, vd):
        k = self.k; c = self
        a = 56
        k.e(f"s_and_b32 s{c.SC}, s{c.SRB}, 3", f"s_mul_i32 s{c.SK}, s{c.SC}, {112*1024}", f"s_add_u32 s{c.SK}, s{c.SK}, s{c.SDO}",
            f"s_lshl_b32 s{c.ST}, s{c.SCB}, 7", f"v_lshlrev_b32 v{a}, 10, v1", f"v_add_u32 v{a}, s{c.ST}, v{a}")
        k.vmem(f"buffer_load_dword v{vd}, v{a}, s[{c.SD}:{c.SD+3}], s{c.SK} offen", "touch")
        k.e(f"s_add_u32 s{c.SK}, s{c.SK}, 65536", "s_mov_b32 exec_hi, 0xffff")
        k.vmem(f"buffer_load_dword v{vd}, v{a}, s[{c.SD}:{c.SD+3}], s{c.SK} offen", "touch")
        k.e(f"s_lshl_b32 s{c.SK}, s{c.SC}, 15", f"s_add_u32 s{c.SK}, s{c.SK}, s{c.SWO}", "s_mov_b64 exec, 0xffffffff")
        k.vmem(f"buffer_load_dword v{vd}, v{a}, s[{c.SO}:{c.SO+3}], s{c.SK} offen", "touch")
        k.e("s_mov_b64 exec, -1")
    def issueW(self, s):
        k = self.k; c = self
        slot = s % c.DEPTH
        sr, sb, kk = (c.SD, c.SDO, s) if s < 28 else (c.SO, c.SWO, s - 28)
        for i in range(2):
            k.e(f"s_add_u32 m0, s{c.SB}, {slot*2048 + i*1024}", f"s_add_u32 s{c.ST}, s{sb}, {kk*16384 + i*8192}")
            k.vmem(f"buffer_load_dwordx4 v{c.VW}, s[{sr}:{sr+3}], s{c.ST} offen lds", ("W", s))
    def issueH(self, s):
        k = self.k; c = self
        slot = s % c.DEPTH
        kk, hb, hstride = (s, c.SH, 112*1024) if s < 28 else (s - 28, c.SO_, 32*1024)
        for tb in range(2):
            d = c.HR + slot*8 + 4*tb
            k.e(f"s_add_u32 s{c.ST}, s{hb}, {kk*1024 + tb*hstride}")
            k.vmem(f"buffer_load_dwordx4 v[{d}:{d+3}], v{c.V16}, s[{c.SWS}:{c.SWS+3}], s{c.ST} offen {c.hsc1 if s < 28 else 'sc1'}", ("H", s))
    def reads(self, s, b):
        k = self.k; c = self
        o = (s % c.DEPTH)*2048
        for cb2 in range(2):
            av = c.VT + cb2
            k.ds(f"ds_read_b64_tr_b16 v[{b+4*cb2}:{b+4*cb2+1}], v{av} offset:{o}", ("r", s))
            k.ds(f"ds_read_b64_tr_b16 v[{b+4*cb2+2}:{b+4*cb2+3}], v{av} offset:{o+1024}", ("r", s))
    def mf(self, s, b, first):
        k = self.k; c = self
        h = c.HR + (s % c.DEPTH)*8
        for cb2 in range(2):
            for tb in range(2):
                a = c.ACC + 16*(cb2*2 + tb)
                k.e(f"{MF} v[{a}:{a+15}], v[{b+4*cb2}:{b+4*cb2+3}], v[{h+4*tb}:{h+4*tb+3}], " + ("0" if first else f"v[{a}:{a+15}]"))
    def spin(self, tag, issue_txt, ok_cmp, sleep):
        k = self.k; c = self
        L = k.newlabel(tag); Lc = k.newlabel(tag + "c")
        k.e(f"s_mov_b32 s{c.SK}, 0")
        k.label(L)
        k.e(issue_txt, f"s_add_u32 s{c.SK}, s{c.SK}, 1", "s_waitcnt vmcnt(0)", ok_cmp, "s_nop 3", "s_cmp_eq_u64 vcc, -1", f"s_cbranch_scc1 {Lc}",
            f"s_sleep {sleep}", f"s_cmp_lt_u32 s{c.SK}, 0x{SPIN_MAX:x}", f"s_cbranch_scc1 {L}")
        k.label(Lc)
        k.vm = []
    def reduce(self, dst, addx, lds_base=0):
        k = self.k; c = self
        RS = 272
        k.e("s_nop 7", "s_barrier")
        k.e("v_and_b32 v4, 31, v1", f"v_mul_u32_u24 v4, {RS}, v4", "v_lshrrev_b32 v5, 5, v1", "v_lshl_add_u32 v4, v5, 4, v4",
            f"s_mul_i32 s{c.SC}, s24, {64*RS}", f"v_add_u32 v4, s{c.SC}, v4", "s_nop 3")
        for cb2 in range(2):
            for tb in range(2):
                a = c.ACC + 16*(cb2*2 + tb)
                for g in range(4):
                    k.ds(f"ds_write_b128 v4, v[{a+4*g}:{a+4*g+3}] offset:{lds_base + tb*32*RS + cb2*128 + g*32}")
        k.e("v_lshrrev_b32 v6, 3, v0", f"v_mul_u32_u24 v6, {RS}, v6", "v_and_b32 v5, 7, v0", "v_lshl_add_u32 v6, v5, 5, v6")
        k.wait_lg_all()
        k.e("s_barrier")
        for half in range(2):
            for w in range(4):
                d = 64 + half*32 + w*8
                for j in range(2):
                    k.ds(f"ds_read_b128 v[{d+4*j}:{d+4*j+3}], v6 offset:{lds_base + w*64*RS + half*32*RS + j*16}", ("rd", half))
        if addx: k.wait_vm("x")
        for half in range(2):
            k.wait_lg(("rd", half))
            d = 64 + half*32; o = dst + 8*half
            for i in range(8):
                k.e(f"v_add_f32 v{d+i}, v{d+i}, v{d+8+i}", f"v_add_f32 v{d+16+i}, v{d+16+i}, v{d+24+i}")
            if addx:
                for i in range(4):
                    xr = 40 + 4*half + i
                    k.e(f"v_lshlrev_b32 v{d+8+2*i}, 16, v{xr}", f"v_and_b32 v{d+9+2*i}, 0xffff0000, v{xr}")
                for i in range(8): k.e(f"v_add_f32 v{d+i}, v{d+i}, v{d+16+i}")
                for i in range(8): k.e(f"v_add_f32 v{o+i}, v{d+i}, v{d+8+i}")
            else:
                for i in range(8): k.e(f"v_add_f32 v{d+i}, v{d+i}, v{d+16+i}")
                for i in range(8): k.e(f"v_add_f32 v{o+i}, v{o+i}, v{d+i}")
    def body(self, pre_issued=True, st=(1, 2), hwait=True):
        k = self.k; c = self
        D = c.DEPTH
        if not pre_issued:
            for s in range(D): c.issueW(s)
        k.vmem(f"buffer_load_dwordx4 v[40:43], v{c.VX}, s[{c.SX}:{c.SX+3}], 0 offen", "x")
        k.e(f"s_mov_b32 s{c.ST}, 32768")
        k.vmem(f"buffer_load_dwordx4 v[44:47], v{c.VX}, s[{c.SX}:{c.SX+3}], s{c.ST} offen", "x")
        if hwait:
            c.spin("hsp", f"buffer_load_dword v{c.VP}, v{c.VPH}, s[{c.SWS}:{c.SWS+3}], 0 offen sc1", f"v_cmp_eq_u32 vcc, 1, v{c.VP}", c.hsleep)
        c.hsc1 = "sc1" if hwait else ""
        k.stamp(st[0])
        if c.e4_prio is not None: k.e(f"s_setprio {c.e4_prio}")
        for s in range(D): c.issueH(s)
        c.reads(0, c.WR)
        for s in range(28):
            if s + 1 < 28:
                k.wait_vm(("W", s + 1)); c.reads(s + 1, c.WR + 8*((s + 1) & 1))
            k.wait_vm(("H", s)); k.wait_lg(("r", s))
            c.mf(s, c.WR + 8*(s & 1), s == 0)
            if s + D < 36:
                c.issueW(s + D)
                if s + D < 28: c.issueH(s + D)
        for s in range(28, 36):
            k.wait_vm(("W", s)); c.reads(s, c.WOF + 8*(s - 28))
        k.wait_lg_all()
        c.reduce(32, True)
        k.stamp(st[1])
        if c.e4_prio is not None: k.e(f"s_setprio {c.post_prio or 0}")
        Lr = k.newlabel("oretry"); Lg = k.newlabel("ogo"); Ld = k.newlabel("odone")
        k.e(f"s_mov_b32 s{c.SK+1}, 0")
        k.label(Lr)
        c.spin("osp", f"buffer_load_dword v{c.VP}, v{c.VPO}, s[{c.SWS}:{c.SWS+3}], 0 offen sc1", f"v_cmp_eq_u32 vcc, 1, v{c.VP}", c.osleep)
        for s in range(28, 36): c.issueH(s)
        k.e(f"v_mov_b32 v{c.VC}, 0")
        for s in range(28, 36):
            k.wait_vm(("H", s))
            h = c.HR + (s % D)*8
            c.mf(s, c.WOF + 8*(s - 28), s == 28)
            for i in range(0, 8, 2): k.e(f"v_max3_u32 v{c.VC}, v{h+i}, v{h+i+1}, v{c.VC}")
        k.e(f"v_cmp_eq_u32 vcc, -1, v{c.VC}", f"s_add_u32 s{c.SK+1}, s{c.SK+1}, 1", "s_nop 3", "s_cmp_eq_u64 vcc, 0", f"s_cbranch_scc1 {Ld}",
            f"s_cmp_lt_u32 s{c.SK+1}, 0x400", "s_nop 15", f"s_cbranch_scc1 {Lr}")
        k.label(Ld)
        if not hwait: k.stamp(st[1] + 1)
        c.reduce(32, False)
        for half in range(2):
            for i in range(4): k.e(f"v_cvt_pk_bf16_f32 v{48+4*half+i - 0 if False else 16+4*half+i}, v{32+8*half+2*i}, v{32+8*half+2*i+1}")
        k.vmem(f"buffer_store_dwordx4 v[16:19], v{c.VX}, s[{c.SOUT}:{c.SOUT+3}], 0 offen", "st")
        k.e(f"s_mov_b32 s{c.ST}, 32768")
        k.vmem(f"buffer_store_dwordx4 v[20:23], v{c.VX}, s[{c.SOUT}:{c.SOUT+3}], s{c.ST} offen", "st")

def kB3_kernel(name="kb_main_kernel", prio_a=None, prio_g=None, epi_prio=None, post_prio=None, e4_prio=None, touch=True, hsleep=2, osleep=2, **kw):
    k = KV(name, nvgpr=256)
    k.e("s_cmp_ge_u32 s2, 512", f"s_cbranch_scc1 L_end_{k.name}")
    fx = srd(k, 20, 72, WS_SIZE2)
    k.e("s_cmp_ge_u32 s2, 256", "s_cbranch_scc1 L_kb_g")
    k.e("s_waitcnt lgkmcnt(0)"); k.e(*fx)
    if prio_a is not None: k.e(f"s_setprio {prio_a}")
    k.e("s_and_b32 s3, s2, 7", "s_lshr_b32 s4, s2, 3", "s_and_b32 s5, s4, 3", "s_lshl_b32 s25, s3, 2", "s_add_u32 s25, s25, s5", "s_lshr_b32 s26, s4, 2")
    k.stamp(0)
    if kw.pop("skip_a", False):
        k.e("v_and_b32 v1, 63, v0", "v_lshrrev_b32 v10, 6, v0", "s_nop 0", "v_readfirstlane_b32 s24, v10", "v_lshlrev_b32 v2, 4, v1",
            "v_mov_b32 v160, 0", "v_mov_b32 v161, 0", "v_mov_b32 v162, 0", "v_mov_b32 v163, 0")
        k.stamp(1); k.stamp(2)
        k.e("s_lshl_b32 s36, s26, 3", "s_lshl_b32 s37, s24, 1", "s_add_u32 s36, s36, s37", "s_lshl_b32 s36, s36, 5", "s_add_u32 s36, s36, s25",
            "s_lshl_b32 s36, s36, 10", f"s_add_u32 s36, s36, 0x{WS_OF:x}")
        k.e("buffer_store_dwordx4 v[160:163], v2, s[20:23], s36 offen sc1", "s_add_u32 s36, s36, 32768", "buffer_store_dwordx4 v[160:163], v2, s[20:23], s36 offen sc1")
        k.e("s_lshl_b32 s36, s26, 2", "s_add_u32 s36, s36, s24", "s_lshl_b32 s36, s36, 7", "s_lshl_b32 s37, s25, 2", "s_add_u32 s36, s36, s37",
            f"s_add_u32 s36, s36, 0x{FLG_O:x}", "v_mov_b32 v12, s36", "v_mov_b32 v13, 1", "s_mov_b64 exec, 1",
            "buffer_store_dword v13, v12, s[20:23], 0 offen sc1", "s_mov_b64 exec, -1")
        k.fb_code = lambda: None
    else:
        e2_body(k, st_sc1="sc1", touch=touch, oflag=True, **kw)
    k.wait_vm_all()
    k.stamp(3); k.stamp_out(4, 0x20000); k.wait_vm_all()
    k.e("s_endpgm")
    fb = k.fb_code
    k.label("L_kb_g")
    k.vm = []; k.lg = []
    SD, SO, SX, SOUT = 84, 88, 8, 4
    fx3 = srd(k, 12, 32, SZ_WG) + srd(k, 16, 40, SZ_WG) + srd(k, SD, 48, SZ_WD) + srd(k, SO, 16, SZ_WO) + srd(k, SX, 0, SZ_X) + srd(k, SOUT, 56, SZ_X)
    k.e("s_waitcnt lgkmcnt(0)"); k.e(*(fx + fx3))
    if prio_g is not None: k.e(f"s_setprio {prio_g}")
    e4 = E4F(k, SD, SO, 20, SX, SOUT, hsleep=hsleep, osleep=osleep)
    c = e4
    k.e("s_sub_u32 s3, s2, 256", "s_and_b32 s92, s3, 7", "s_lshr_b32 s93, s3, 3",
        f"s_and_b32 s{c.SRB}, s93, 3", "s_lshl_b32 s94, s92, 2", f"s_add_u32 s{c.SRB}, s{c.SRB}, s94", f"s_lshr_b32 s{c.SCB}, s93, 2")
    k.e("s_cmp_ge_u32 s2, 480", "s_cbranch_scc1 L_kb_pf")
    k.e("s_and_b32 s26, s92, 1", "s_mul_i32 s26, s26, 7", "s_lshr_b32 s94, s93, 2", "s_add_u32 s26, s26, s94",
        "s_lshr_b32 s25, s92, 1", "s_lshl_b32 s25, s25, 2", "s_and_b32 s95, s93, 3", "s_add_u32 s25, s25, s95")
    k.stamp(0)
    def pre_loop():
        if not touch: return
        k.e("v_lshrrev_b32 v66, 1, v1", "v_mul_u32_u24 v66, 3584, v66", "v_and_b32 v67, 1, v1", "v_lshl_add_u32 v66, v67, 7, v66",
            "s_lshl_b32 s36, s95, 7", "s_lshl_b32 s37, s28, 6", "s_add_u32 s36, s36, s37", "s_mul_i32 s36, s36, 3584", "s_lshl_b32 s37, s26, 8", "s_add_u32 s36, s36, s37",
            f"s_add_u32 s37, s36, {32*3584}", "s_cmp_eq_u32 s27, 0", "s_cbranch_scc0 L_kb_tu")
        k.vmem("buffer_load_dword v64, v66, s[12:15], s36 offen", "touch"); k.vmem("buffer_load_dword v64, v66, s[12:15], s37 offen", "touch")
        k.e("s_branch L_kb_tx")
        k.label("L_kb_tu")
        k.e("buffer_load_dword v64, v66, s[16:19], s36 offen", "buffer_load_dword v64, v66, s[16:19], s37 offen")
        k.label("L_kb_tx")
        k.e("v_and_b32 v67, 31, v1", "v_lshlrev_b32 v67, 10, v67", "s_lshl_b32 s36, s25, 17", "s_lshl_b32 s37, s24, 15", "s_add_u32 s36, s36, s37",
            "s_lshl_b32 s37, s94, 7", "s_add_u32 s36, s36, s37", f"s_add_u32 s36, s36, 0x{WS_XN + 128:x}", "s_mov_b64 exec, 0xffffffff")
        k.vmem("buffer_load_dword v64, v67, s[20:23], s36 offen", "touch")
        k.e("s_mov_b64 exec, -1")
    def post_loop():
        k.e("s_barrier")
        e4.setup()
        for s in range(c.DEPTH): e4.issueW(s)
        if touch: e4.touchW(64)
    e3_body(k, SX=20, norm=True, xoff=WS_XN, epi_prio=epi_prio, post_loop=post_loop, st_sc1="sc1", pre_loop=pre_loop)
    k.e("s_lshl_b32 s36, s25, 1", "s_add_u32 s36, s36, s27", "s_lshl_b32 s36, s36, 7", "s_lshl_b32 s37, s26, 1", "s_add_u32 s37, s37, s28",
        "s_lshl_b32 s37, s37, 2", "s_add_u32 s36, s36, s37", f"s_add_u32 s36, s36, 0x{FLG_H:x}", "v_mov_b32 v56, s36", "v_mov_b32 v57, 1")
    k.stamp(3)
    k.wait_vm_all()
    k.stamp(4)
    k.e("s_mov_b64 exec, 1")
    k.vmem("buffer_store_dword v57, v56, s[20:23], 0 offen sc1", "flag")
    k.e("s_mov_b64 exec, -1")
    if post_prio is not None: k.e(f"s_setprio {post_prio}")
    k.e("s_branch L_kb_e4")
    k.label("L_kb_pf")
    k.vm = []; k.lg = []
    k.e("v_and_b32 v1, 63, v0", "v_lshrrev_b32 v10, 6, v0", "s_nop 0", "v_readfirstlane_b32 s24, v10", "s_sub_u32 s3, s2, 480")
    k.stamp(0); k.stamp(1); k.stamp(2); k.stamp(3); k.stamp(4)
    e4.setup()
    for s in range(c.DEPTH): e4.issueW(s)
    if post_prio is not None: k.e(f"s_setprio {post_prio}")
    k.label("L_kb_e4")
    k.vm = [(("W", s), False) for s in range(c.DEPTH) for _ in range(2)] + [("flag", True)]
    k.lg = []
    e4.e4_prio = e4_prio; e4.post_prio = post_prio
    e4.body(st=(5, 6))
    k.wait_vm_all()
    k.stamp(7); k.stamp_out(8, 0x40000); k.wait_vm_all()
    k.label(f"L_end_{k.name}")
    k.e("s_endpgm")
    fb()
    k.emit_tails()
    return k


def gemm2(k, nunits, mfmas, reads, dmas, vm_need, fill0=None, rper=4, dper=1, hooks=None, pre_hooks=None, first_wait=None):
    def tagof(g, name): return ("fr", g, name)
    for u in range(nunits):
        g0, g1 = 2*u, 2*u + 1
        k.wait_vm(*vm_need(u))
        k.wait_lg_all()
        k.e("s_barrier")
        if pre_hooks and u in pre_hooks: pre_hooks[u]()
        R0 = list(reads(g0, 0)); R1 = list(reads(g1, 1))
        prev = list(mfmas(g0 - 1, 1)) if u > 0 else []
        cur = list(mfmas(g0, 0))
        D = list(dmas(u))
        F = list(fill0(u)) if fill0 else []
        rel = {}
        for i, (t, used) in enumerate(prev):
            for nm in used: rel[nm] = i
        def emit_reads(i, budget):
            n = 0
            while n < budget and R0:
                t, nm = R0.pop(0); k.ds(t, tagof(g0, nm)); n += 1
            j = 0
            while n < budget and j < len(R1):
                t, nm = R1[j]
                if rel.get(nm, -1) <= i:
                    k.ds(t, tagof(g1, nm)); R1.pop(j); n += 1
                else: j += 1
        def emit_dma():
            for (txt, tag, isvm) in D.pop(0):
                if isvm: k.vmem(txt, tag)
                else: k.e(txt)
        if not prev:
            emit_reads(-1, 1000)
        for i, (t, used) in enumerate(prev):
            k.e(t)
            emit_reads(i, rper)
            for _ in range(dper):
                if D: emit_dma()
        emit_reads(10**6, 1000)
        ngap = len(cur)
        per = -(-len(D) // ngap) if D else 0
        fper = -(-len(F) // ngap) if F else 0
        have = set()
        for j, (t, used) in enumerate(cur):
            k.wait_lg(*[tagof(g0, nm) for nm in used])
            have |= set(used)
            k.e(t)
            for _ in range(per):
                if D: emit_dma()
            n = 0; i = 0
            lim = fper + 1 if j < ngap - 1 else 10**6
            while n < lim and i < len(F):
                if F[i][1] in have:
                    k.e(F[i][0]); F.pop(i); n += 1
                else: i += 1
        assert not D and not F
        if hooks and u in hooks:
            for h in hooks[u]: h()
    k.wait_lg_all()
    for (t, used) in mfmas(2*nunits - 1, 1): k.e(t)

ONES = 42
DBG1 = {}

def half_sum(k, regs, tmps):
    for r, t in zip(regs, tmps): k.e(f"v_mov_b32 v{t}, v{r}")
    k.e("s_nop 1")
    for r, t in zip(regs, tmps): k.e(f"v_permlane32_swap_b32 v{r}, v{t}")
    k.e("s_nop 1")
    for r, t in zip(regs, tmps): k.e(f"v_add_f32 v{r}, v{r}, v{t}")

def row_stats(k, sx, sxx, mean, rstd, tmp):
    k.e(f"v_mul_f32 v{mean}, 0x3b000000, v{sx}", f"v_mul_f32 v{tmp}, 0x3b000000, v{sxx}",
        f"v_fma_f32 v{tmp}, -v{mean}, v{mean}, v{tmp}", f"v_max_f32 v{tmp}, 0, v{tmp}", f"v_add_f32 v{tmp}, 0x3727c5ac, v{tmp}",
        f"v_rsq_f32 v{rstd}, v{tmp}")

def e1s_body(k, SX=8, SW=12, SWS=20, sc1="", hooks=None, pre_hooks=None, rot=False):
    E1_XB = 49152
    k.e("v_and_b32 v1, 63, v0", "v_lshrrev_b32 v10, 6, v0", "s_nop 0", "v_readfirstlane_b32 s24, v10")
    k.e("v_and_b32 v11, 31, v1", "v_lshrrev_b32 v12, 5, v1")
    k.e("s_and_b32 s27, s24, 1", "s_lshr_b32 s28, s24, 1")
    k.e("v_lshrrev_b32 v13, 3, v1", "v_lshrrev_b32 v14, 4, v1", "v_and_b32 v15, 7, v1",
        "v_xor_b32 v7, v15, v14", "v_lshlrev_b32 v7, 4, v7", "v_lshl_add_u32 v7, v13, 10, v7",
        "s_lshl_b32 s29, s25, 16", "s_lshl_b32 s30, s24, 14", "s_add_u32 s29, s29, s30",
        "v_add_u32 v7, s29, v7", "v_xor_b32 v8, 64, v7", "v_add_u32 v8, 8192, v8")
    k.e("v_and_b32 v14, 1, v14", "v_lshlrev_b32 v14, 2, v14", "v_xor_b32 v9, v15, v14", "v_lshlrev_b32 v9, 4, v9",
        "s_lshl_b32 s30, s24, 3", "v_add_u32 v13, s30, v13", "v_mul_u32_u24 v13, 3072, v13", "v_add_u32 v9, v9, v13",
        "s_lshl_b32 s30, s26, 7", "v_add_u32 v9, s30, v9")
    k.e(f"s_lshl_b32 s31, s24, 11", f"s_add_u32 s31, s31, {E1_XB}", "s_lshl_b32 s32, s24, 10")
    def xd(v):
        if rot:
            return [dmab(SX, 7, 31, (v % 3)*8192, 33, 51, 0, ("X", v)),
                    dmab(SX, 8, 31, (v % 3)*8192 + 1024, 33, 51, 0, ("X", v), post=["s_add_u32 s51, s51, 128", "s_and_b32 s51, s51, 1023"])]
        return [dma(SX, 7, 31, (v % 3)*8192, 33, v*128, ("X", v)), dma(SX, 8, 31, (v % 3)*8192 + 1024, 33, v*128, ("X", v))]
    def wd(u):
        if rot:
            return [dmab(SW, 9, 32, (u % 4)*12288 + p*4096, 33, 50, 0, ("W", u), imm=1024*p, post=(rot_adv(50, 32*3072, 512*3072, 52) if p == 2 else ())) for p in range(3)]
        return [dma(SW, 9, 32, (u % 4)*12288 + p*4096, 33, u*32*3072, ("W", u), imm=1024*p) for p in range(3)]
    if rot:
        k.e("s_lshl_b32 s51, s53, 7", f"s_mul_i32 s50, s53, {64*3072}")
    emit_groups(k, xd(0) + wd(0) + wd(1) + xd(1) + wd(2))
    k.e("s_xor_b32 s34, s27, s28")
    k.e("s_lshl_b32 s36, s27, 5", "v_add_u32 v13, s36, v11", "v_bfe_u32 v14, v13, 1, 3", "v_xor_b32 v14, v14, v12",
        "v_lshlrev_b32 v14, 4, v14", "v_lshl_add_u32 v2, v13, 7, v14", f"v_add_u32 v2, {E1_XB}, v2",
        "s_lshl_b32 s35, s34, 5", "v_xor_b32 v2, s35, v2",
        "v_xor_b32 v3, 32, v2", "v_xor_b32 v4, 64, v2", "v_xor_b32 v5, 96, v2")
    k.e("v_bfe_u32 v13, v1, 2, 2", "v_lshl_add_u32 v13, v12, 3, v13", "v_lshlrev_b32 v6, 7, v13",
        "v_bfe_u32 v13, v1, 4, 1", "v_lshlrev_b32 v13, 1, v13", "v_bfe_u32 v14, v1, 1, 1", "v_add_u32 v13, v13, v14",
        "s_lshl_b32 s36, s28, 2", "v_add_u32 v13, s36, v13", "v_bfe_u32 v14, v1, 3, 1", "v_lshlrev_b32 v14, 2, v14",
        "v_xor_b32 v13, v13, v14", "v_lshl_add_u32 v6, v13, 4, v6", "v_and_b32 v14, 1, v1", "v_lshl_add_u32 v6, v14, 3, v6",
        "s_lshl_b32 s35, s34, 11", "v_xor_b32 v10, 2048, v6", "v_xor_b32 v10, s35, v10", "v_xor_b32 v6, s35, v6")
    k.e(f"s_mov_b32 s{ONES}, 0x3f803f80")
    ST = 48
    for i in range(5): k.e(f"v_mov_b32 v{ST+i}, 0")
    ACC = 64
    def fr(st): return 16 + 16*st
    def reads(g, st):
        b = fr(st); u = g >> 1; v = g >> 2
        out = [(f"ds_read_b128 v[{b}:{b+3}], v{2 + (g & 3)} offset:{(v % 3)*8192}", "X")]
        av = 6 if (g & 1) == 0 else 10
        for p in range(3):
            o = (u % 4)*12288 + p*4096
            out.append((f"ds_read_b64_tr_b16 v[{b+4+4*p}:{b+5+4*p}], v{av} offset:{o}", f"W{p}"))
            out.append((f"ds_read_b64_tr_b16 v[{b+6+4*p}:{b+7+4*p}], v{av} offset:{o+512}", f"W{p}"))
        return out
    def mfmas(g, st):
        out = []
        b_x = fr(st); b_w = b_x + 4
        for p in range(3):
            a = ACC + 16*p
            w = f"v[{b_w+4*p}:{b_w+4*p+3}]"; x = f"v[{b_x}:{b_x+3}]"
            A, B = (w, x) if p < 2 else (x, w)
            c = "0" if g == 0 else f"v[{a}:{a+15}]"
            out.append((f"{MF} v[{a}:{a+15}], {A}, {B}, {c}", ["X", f"W{p}"]))
        return out
    def fill0(u):
        b = fr(0); out = []
        for i in range(4):
            out.append((f"v_dot2_f32_bf16 v{ST}, v{b+i}, s{ONES}, v{ST}", "X"))
            out.append((f"v_dot2_f32_bf16 v{ST+1}, v{b+i}, v{b+i}, v{ST+1}", "X"))
            for p in range(3):
                out.append((f"v_dot2_f32_bf16 v{ST+2+p}, v{b+4+4*p+i}, s{ONES}, v{ST+2+p}", f"W{p}"))
        return out
    def dmas(u):
        out = []
        if u + 3 < 16: out += wd(u + 3)
        if u % 2 == 0 and u//2 + 2 < 8: out += xd(u//2 + 2)
        return out
    k.stamp(1)
    if DBG1.get("fine"): pre_hooks = {0: lambda: k.stamp(2), 2: lambda: k.stamp(3), 4: lambda: k.stamp(4), 8: lambda: k.stamp(5)}
    gemm2(k, 16, mfmas, reads, dmas, lambda u: [("W", u), ("X", u >> 1)], fill0=(None if DBG1.get("nostat1") else fill0), rper=5, dper=2, hooks=hooks, pre_hooks=pre_hooks)
    k.stamp(6 if DBG1.get("fine") else 2)
    k.e("s_nop 2")
    half_sum(k, [ST+i for i in range(5)], [53, 54, 55, 56, 57])
    k.e("s_barrier", "s_mul_i32 s36, s24, 640", "v_lshlrev_b32 v13, 2, v11", "v_add_u32 v14, s36, v13")
    for i in range(5): k.ds(f"ds_write_b32 v14, v{ST+i} offset:{128*i}")
    k.e("s_xor_b32 s37, s24, 2", "s_mul_i32 s37, s37, 640", "v_add_u32 v15, s37, v13", "s_xor_b32 s37, s24, 1", "s_mul_i32 s37, s37, 640", "v_add_u32 v16, s37, v13")
    k.wait_lg_all()
    k.e("s_barrier")
    k.ds("ds_read_b32 v53, v15"); k.ds("ds_read_b32 v54, v15 offset:128")
    for p in range(3): k.ds(f"ds_read_b32 v{55+p}, v16 offset:{256+128*p}")
    k.e("v_lshlrev_b32 v10, 4, v1",
        "s_lshl_b32 s36, s26, 2", "s_lshl_b32 s37, s28, 1", "s_add_u32 s36, s36, s37", "s_lshl_b32 s36, s36, 16",
        "s_lshl_b32 s37, s25, 1", "s_add_u32 s37, s37, s27", "s_lshl_b32 s37, s37, 10", "s_add_u32 s36, s36, s37")
    k.e("v_lshrrev_b32 v17, 4, v11", "v_lshlrev_b32 v17, 16, v17", "v_lshl_add_u32 v17, v12, 8, v17", "v_and_b32 v18, 15, v11", "v_lshl_add_u32 v17, v18, 4, v17")
    k.wait_lg_all()
    for i in range(5): k.e(f"v_add_f32 v{ST+i}, v{ST+i}, v{53+i}")
    row_stats(k, ST, ST+1, 58, 59, 60)
    k.e("s_mul_i32 s37, s24, 640", "s_add_u32 s37, s37, 2560", "v_add_u32 v14, s37, v13", "v_sub_f32 v58, 0, v58")
    k.ds(f"ds_write_b32 v14, v{ST+2}"); k.ds(f"ds_write_b32 v14, v{ST+3} offset:128")
    k.ds("ds_write_b32 v14, v58 offset:256"); k.ds("ds_write_b32 v14, v59 offset:384")
    k.e("v_lshlrev_b32 v15, 4, v12", "v_add_u32 v15, s37, v15", f"v_mul_f32 v60, 0x{f2u(0.25*LOG2E):08x}, v59")
    k.wait_lg_all()
    B0 = 112
    for i in range(4):
        for gq in range(4): k.ds(f"ds_read_b128 v[{B0+16*i+4*gq}:{B0+16*i+4*gq+3}], v15 offset:{128*i + 32*gq}", ("bc", i))
    for p, (scale, base) in enumerate(((60, WS_QF), (59, WS_KF))):
        a = ACC + 16*p
        k.wait_lg(("bc", p))
        for r in range(16): k.e(f"v_fmac_f32 v{a+r}, v58, v{B0+16*p+r}")
        for r in range(16): k.e(f"v_mul_f32 v{a+r}, v{a+r}, v{scale}")
        for j in range(2):
            d = 20 + 8*p + 4*j
            for i in range(4): k.e(f"v_cvt_pk_bf16_f32 v{d+i}, v{a+8*j+2*i}, v{a+8*j+2*i+1}")
            k.e(f"s_add_u32 s37, s36, 0x{base + j*65536:x}")
            k.vmem(f"buffer_store_dwordx4 v[{d}:{d+3}], v10, s[{SWS}:{SWS+3}], s37 offen {sc1}", "st")
    a = ACC + 32
    k.wait_lg(("bc", 3))
    for r in range(16): k.e(f"v_fmac_f32 v{a+r}, v{ST+4}, v{B0+32+r}")
    for r in range(16): k.e(f"v_mul_f32 v{a+r}, v{a+r}, v{B0+48+r}")
    k.e(f"s_add_u32 s37, s36, 0x{WS_VF:x}")
    for j in range(2):
        d = 36 + 4*j
        for i in range(4): k.e(f"v_cvt_pk_bf16_f32 v{d+i}, v{a+8*j+2*i}, v{a+8*j+2*i+1}")
        k.vmem(f"buffer_store_dwordx4 v[{d}:{d+3}], v17, s[{SWS}:{SWS+3}], s37 offen offset:{512*j} {sc1}", "st")

def e3s_body(k, SX=8, SG=12, SU=16, SWS=20, st_sc1="", epi_prio=None, post_loop=None, hooks=None, pre_hooks=None, rot=False):
    XB = 49152
    k.e("v_and_b32 v1, 63, v0", "v_lshrrev_b32 v10, 6, v0", "s_nop 0", "v_readfirstlane_b32 s24, v10")
    k.e("v_and_b32 v11, 31, v1", "v_lshrrev_b32 v12, 5, v1")
    k.e("s_and_b32 s27, s24, 1", "s_lshr_b32 s28, s24, 1")
    k.e("v_lshrrev_b32 v13, 3, v1", "v_lshrrev_b32 v14, 4, v1", "v_and_b32 v15, 7, v1",
        "v_xor_b32 v7, v15, v14", "v_lshlrev_b32 v7, 4, v7", "v_lshl_add_u32 v7, v13, 10, v7",
        "s_lshl_b32 s29, s25, 17", "s_lshl_b32 s30, s24, 15", "s_add_u32 s29, s29, s30",
        "v_add_u32 v7, s29, v7", "v_xor_b32 v8, 64, v7", "v_add_u32 v8, 8192, v8")
    k.e("v_lshlrev_b32 v13, 2, v14", "v_and_b32 v15, 15, v1", "v_xor_b32 v9, v15, v13", "v_lshlrev_b32 v9, 4, v9",
        "s_lshl_b32 s30, s24, 3", "v_add_u32 v13, s30, v14", "v_mul_u32_u24 v13, 3584, v13", "v_add_u32 v9, v9, v13",
        "s_lshl_b32 s30, s26, 8", "v_add_u32 v9, s30, v9")
    k.e(f"s_lshl_b32 s31, s24, 12", f"s_add_u32 s31, s31, {XB}", "s_lshl_b32 s32, s24, 11")
    def xd(v):
        if rot:
            return [dmab(SX, 7 + (i & 1), 31, (v % 2)*16384 + i*1024, 33, 51, (i >> 1)*16384, ("X", v),
                         post=(["s_add_u32 s51, s51, 128", "s_and_b32 s51, s51, 1023"] if i == 3 else ())) for i in range(4)]
        return [dma(SX, 7 + (i & 1), 31, (v % 2)*16384 + i*1024, 33, v*128 + (i >> 1)*16384, ("X", v)) for i in range(4)]
    def wd(u):
        out = []
        for i in range(2):
            for p, sr in enumerate((SG, SU)):
                if rot:
                    out.append(dmab(sr, 9, 32, (u % 3)*16384 + p*8192 + i*1024, 33, 50, 4*i*3584, ("W", u),
                                    post=(rot_adv(50, 32*3584, 512*3584, 52) if (i, p) == (1, 1) else ())))
                else:
                    out.append(dma(sr, 9, 32, (u % 3)*16384 + p*8192 + i*1024, 33, (u*32 + 4*i)*3584, ("W", u)))
        return out
    if rot:
        k.e("s_lshl_b32 s51, s53, 7", f"s_mul_i32 s50, s53, {64*3584}")
    if DBG1.get("wfirst"): emit_groups(k, wd(0) + xd(0) + wd(1))
    else: emit_groups(k, xd(0) + wd(0) + wd(1))
    if DBG1.get("touch3"):
        Lu = k.newlabel("tu"); Lx = k.newlabel("tx")
        k.e("v_lshrrev_b32 v66, 1, v1", "s_lshl_b32 s36, s28, 5", "v_add_u32 v66, s36, v66", "v_mul_u32_u24 v66, 3584, v66", "v_and_b32 v67, 1, v1",
            "v_lshl_add_u32 v66, v67, 7, v66", "s_lshl_b32 s36, s26, 8", "v_add_u32 v66, s36, v66", "s_cmp_eq_u32 s27, 0", f"s_cbranch_scc0 {Lu}")
        k.vmem(f"buffer_load_dword v63, v66, s[{SG}:{SG+3}], s50 offen", "touch")
        k.e(f"s_branch {Lx}")
        k.label(Lu)
        k.e(f"buffer_load_dword v63, v66, s[{SU}:{SU+3}], s50 offen")
        k.label(Lx)
    k.e("s_xor_b32 s34, s27, s28")
    k.e("s_lshl_b32 s36, s27, 6", "v_add_u32 v13, s36, v11", "v_bfe_u32 v14, v13, 1, 3", "v_xor_b32 v14, v14, v12",
        "v_lshlrev_b32 v14, 4, v14", "v_lshl_add_u32 v2, v13, 7, v14", f"v_add_u32 v2, {XB}, v2",
        "s_lshl_b32 s35, s34, 5", "v_xor_b32 v2, s35, v2",
        "v_xor_b32 v3, 32, v2", "v_xor_b32 v4, 64, v2", "v_xor_b32 v5, 96, v2")
    k.e("v_bfe_u32 v15, v1, 2, 2", "v_lshl_add_u32 v13, v12, 3, v15", "v_lshlrev_b32 v6, 8, v13",
        "v_bfe_u32 v13, v1, 4, 1", "v_lshlrev_b32 v13, 1, v13", "v_bfe_u32 v14, v1, 1, 1", "v_add_u32 v13, v13, v14",
        "s_lshl_b32 s36, s28, 3", "v_add_u32 v13, s36, v13", "v_lshlrev_b32 v15, 2, v15",
        "v_xor_b32 v13, v13, v15", "v_lshl_add_u32 v6, v13, 4, v6", "v_and_b32 v14, 1, v1", "v_lshl_add_u32 v6, v14, 3, v6",
        "s_lshl_b32 s35, s34, 12", "v_xor_b32 v6, s35, v6",
        "v_xor_b32 v10, 64, v6", "v_xor_b32 v72, 4096, v6", "v_xor_b32 v73, 4096, v10")
    k.e(f"s_mov_b32 s{ONES}, 0x3f803f80")
    ST = 64
    for i in range(8): k.e(f"v_mov_b32 v{ST+i}, 0")
    ACC = 128
    def fr(st): return 16 + 24*st
    def acc(part, b, tb): return ACC + 16*(part*4 + b*2 + tb)
    def reads(g, st):
        b0 = fr(st); u = g >> 1; v = g >> 2
        def wr(part, b):
            d = b0 + 8 + 8*part + 4*b
            o = (u % 3)*16384 + part*8192
            av = ((6, 10), (72, 73))[g & 1][b]
            return [(f"ds_read_b64_tr_b16 v[{d}:{d+1}], v{av} offset:{o}", f"W{part}{b}"),
                    (f"ds_read_b64_tr_b16 v[{d+2}:{d+3}], v{av} offset:{o+1024}", f"W{part}{b}")]
        def xr(tb): return [(f"ds_read_b128 v[{b0+4*tb}:{b0+4*tb+3}], v{2 + (g & 3)} offset:{(v % 2)*16384 + tb*4096}", f"X{tb}")]
        return xr(0) + wr(0, 0) + xr(1) + wr(0, 1) + wr(1, 0) + wr(1, 1)
    def mfmas(g, st):
        out = []
        b0 = fr(st)
        for part in range(2):
            for b in range(2):
                for tb in range(2):
                    a = acc(part, b, tb); w = b0 + 8 + 8*part + 4*b; x = b0 + 4*tb
                    c = "0" if g == 0 else f"v[{a}:{a+15}]"
                    out.append((f"{MF} v[{a}:{a+15}], v[{w}:{w+3}], v[{x}:{x+3}], {c}", [f"X{tb}", f"W{part}{b}"]))
        return out
    def fill0(u):
        b0 = fr(0); out = []
        for i in range(4):
            for tb in range(2):
                x = b0 + 4*tb + i
                out.append((f"v_dot2_f32_bf16 v{ST+2*tb}, v{x}, s{ONES}, v{ST+2*tb}", f"X{tb}"))
                out.append((f"v_dot2_f32_bf16 v{ST+2*tb+1}, v{x}, v{x}, v{ST+2*tb+1}", f"X{tb}"))
            for part in range(2):
                for b in range(2):
                    w = b0 + 8 + 8*part + 4*b + i
                    out.append((f"v_dot2_f32_bf16 v{ST+4+2*part+b}, v{w}, s{ONES}, v{ST+4+2*part+b}", f"W{part}{b}"))
        return out
    def dmas(u):
        out = []
        if u + 2 < 16: out += wd(u + 2)
        if u % 2 == 0 and u//2 + 1 < 8: out += xd(u//2 + 1)
        return out
    k.stamp(1)
    if DBG1.get("fine"): pre_hooks = {0: lambda: k.stamp(2), 2: lambda: k.stamp(3), 4: lambda: k.stamp(4), 8: lambda: k.stamp(5)}
    gemm2(k, 16, mfmas, reads, dmas, lambda u: [("W", u), ("X", u >> 1)], fill0=(None if DBG1.get("nostat3") else fill0), rper=4, dper=1, hooks=hooks, pre_hooks=pre_hooks)
    k.stamp(6 if DBG1.get("fine") else 2)
    if epi_prio is not None: k.e(f"s_setprio {epi_prio}")
    k.e("s_nop 2")
    half_sum(k, [ST+i for i in range(8)], [76+i for i in range(8)])
    SBASE = 73728
    k.e("s_barrier", "s_lshl_b32 s36, s24, 10", "v_lshlrev_b32 v13, 2, v11", "v_add_u32 v14, s36, v13", f"v_add_u32 v14, {SBASE}, v14")
    for i in range(8): k.ds(f"ds_write_b32 v14, v{ST+i} offset:{128*i}")
    k.e("v_xor_b32 v15, 2048, v14", "v_xor_b32 v16, 1024, v14")
    k.wait_lg_all()
    k.e("s_barrier")
    for i in range(4): k.ds(f"ds_read_b32 v{76+i}, v15 offset:{128*i}")
    for i in range(4, 8): k.ds(f"ds_read_b32 v{76+i}, v16 offset:{128*i}")
    if post_loop: post_loop()
    k.wait_lg_all()
    for i in range(8): k.e(f"v_add_f32 v{ST+i}, v{ST+i}, v{76+i}")
    for tb in range(2):
        row_stats(k, ST+2*tb, ST+2*tb+1, 84+tb, 86+tb, 88+tb)
    k.e("s_nop 0")
    for tb in range(2):
        k.e(f"v_mul_f32 v{88+tb}, v{88+tb}, v{86+tb}",
            f"v_mul_f32 v{86+tb}, 0x{f2u(-LOG2E):08x}, v{86+tb}", f"v_sub_f32 v{84+tb}, 0, v{84+tb}")
    k.e("s_lshl_b32 s36, s24, 9", f"s_add_u32 s36, s36, {SBASE + 4096}", "v_add_u32 v14, s36, v13", "v_lshlrev_b32 v15, 4, v12", "v_add_u32 v15, s36, v15")
    for i in range(4): k.ds(f"ds_write_b32 v14, v{ST+4+i} offset:{128*i}")
    k.wait_lg_all()
    CB = 16
    k.e("v_lshlrev_b32 v10, 4, v1",
        "s_lshl_b32 s36, s25, 2", "s_lshl_b32 s37, s27, 1", "s_add_u32 s36, s36, s37", "s_mul_i32 s36, s36, 112",
        "s_lshl_b32 s37, s26, 3", "s_add_u32 s36, s36, s37", "s_lshl_b32 s37, s28, 2", "s_add_u32 s36, s36, s37",
        "s_lshl_b32 s36, s36, 10", f"s_add_u32 s36, s36, 0x{WS_HF:x}")
    CR = [92, 16]
    for b in range(2):
        for part in range(2):
            for gq in range(4):
                d = CR[b] + 16*part + 4*gq
                k.ds(f"ds_read_b128 v[{d}:{d+3}], v15 offset:{128*(2*part + b) + 32*gq}", ("bc", b))
    n = 0
    for b in range(2):
        k.wait_lg(("bc", b))
        for tb in range(2):
            g = acc(0, b, tb); uu = acc(1, b, tb)
            for r in range(16): k.e(f"v_fmac_f32 v{g+r}, v{84+tb}, v{CR[b]+r}")
            for r in range(16): k.e(f"v_mul_f32 v{g+r}, v{g+r}, v{86+tb}")
            for r in range(16): k.e(f"v_exp_f32 v{g+r}, v{g+r}")
            for r in range(16): k.e(f"v_fmac_f32 v{uu+r}, v{84+tb}, v{CR[b]+16+r}")
            for r in range(16): k.e(f"v_fma_f32 v{g+r}, v{g+r}, v{88+tb}, v{88+tb}")
            for r in range(16): k.e(f"v_rcp_f32 v{g+r}, v{g+r}")
            k.e("s_nop 0")
            for r in range(16): k.e(f"v_mul_f32 v{g+r}, v{g+r}, v{uu+r}")
            for j in range(2):
                d = 48 + 4*(n % 4); n += 1
                for i in range(4): k.e(f"v_cvt_pk_bf16_f32 v{d+i}, v{g+8*j+2*i}, v{g+8*j+2*i+1}")
                k.e(f"s_add_u32 s37, s36, {(tb*112 + b*2 + j)*1024}")
                k.vmem(f"buffer_store_dwordx4 v[{d}:{d+3}], v10, s[{SWS}:{SWS+3}], s37 offen {st_sc1}", "st")

def prep_role(k, SWS, s_idx, nwg, flags=True):
    per = (1 << 21) // nwg
    k.e("v_mov_b32 v40, -1", "v_mov_b32 v41, -1", "v_mov_b32 v42, -1", "v_mov_b32 v43, -1", "v_lshlrev_b32 v48, 4, v0",
        f"s_mul_i32 s34, s{s_idx}, {per}", f"s_add_u32 s34, s34, 0x{WS_OF:x}")
    for i in range(per // 4096):
        k.vmem(f"buffer_store_dwordx4 v[40:43], v48, s[{SWS}:{SWS+3}], s34 offen", "prep")
        k.e("s_add_u32 s34, s34, 4096")
    if flags:
        Lp = k.newlabel("prep")
        k.e("v_mov_b32 v44, 0", "v_mov_b32 v45, 0", "v_mov_b32 v46, 0", "v_mov_b32 v47, 0", f"s_mov_b32 s34, 0x{FLG_H:x}",
            f"s_lshl_b32 s35, s{s_idx}, 12", "s_add_u32 s34, s34, s35", f"s_cmp_ge_u32 s{s_idx}, 2", f"s_cbranch_scc1 {Lp}")
        k.vmem(f"buffer_store_dwordx4 v[44:47], v48, s[{SWS}:{SWS+3}], s34 offen", "prep", opt=True)
        k.label(Lp)

def k1s_kernel(name="k1_proj_kernel", map1=1, prio_a=None, prio_g=None, rot=0, **kw):
    k = KV(name, nvgpr=256)
    k.e("s_cmp_ge_u32 s2, 512", f"s_cbranch_scc1 L_end_{k.name}")
    fx = srd(k, 8, 0, SZ_X) + srd(k, 20, 72, WS_SIZE2)
    k.e("s_cmp_ge_u32 s2, 256", "s_cbranch_scc1 L_k1_g")
    fx1 = srd(k, 12, 8, SZ_WQKV)
    k.e("s_waitcnt lgkmcnt(0)"); k.e(*(fx + fx1))
    if prio_a is not None: k.e(f"s_setprio {prio_a}")
    if map1 == 0: k.e("s_and_b32 s26, s2, 7", "s_lshr_b32 s25, s2, 3")
    elif map1 == 3:
        k.e("s_and_b32 s3, s2, 7", "s_lshr_b32 s4, s2, 3", "s_and_b32 s5, s3, 1", "s_lshl_b32 s26, s5, 2", "s_and_b32 s5, s4, 3", "s_add_u32 s26, s26, s5",
            "s_lshr_b32 s25, s3, 1", "s_lshl_b32 s25, s25, 3", "s_lshr_b32 s5, s4, 2", "s_add_u32 s25, s25, s5")
    else: k.e("s_and_b32 s3, s2, 7", "s_lshr_b32 s4, s2, 3", "s_and_b32 s5, s4, 3", "s_lshl_b32 s25, s3, 2", "s_add_u32 s25, s25, s5", "s_lshr_b32 s26, s4, 2")
    if rot:
        if map1 == 3:
            k.e("s_and_b32 s53, s26, 3", "s_lshl_b32 s53, s53, 1", "s_add_u32 s53, s53, s25", "s_and_b32 s53, s53, 7")
        elif map1 == 1:
            k.e("s_and_b32 s53, s25, 3", "s_lshl_b32 s53, s53, 1", "s_add_u32 s53, s53, s26", "s_and_b32 s53, s53, 7")
        else:
            k.e("s_and_b32 s53, s25, 7")
    k.stamp(0)
    e1s_body(k, rot=bool(rot))
    k.wait_vm_all()
    if DBG1.get("fine"): k.stamp(7); k.stamp_out(8, 0)
    else: k.stamp(3); k.stamp_out(4, 0)
    k.wait_vm_all()
    k.e("s_endpgm")
    k.label("L_k1_g")
    k.vm = []; k.lg = []
    k.e("s_cmp_ge_u32 s2, 480", "s_cbranch_scc1 L_k1_pf")
    fx3 = srd(k, 12, 32, SZ_WG) + srd(k, 16, 40, SZ_WG)
    k.e("s_waitcnt lgkmcnt(0)"); k.e(*(fx + fx3))
    if prio_g is not None: k.e(f"s_setprio {prio_g}")
    k.e("s_sub_u32 s3, s2, 256", "s_and_b32 s92, s3, 7", "s_lshr_b32 s93, s3, 3")
    k.e("s_and_b32 s26, s92, 1", "s_mul_i32 s26, s26, 7", "s_lshr_b32 s94, s93, 2", "s_add_u32 s26, s26, s94",
        "s_lshr_b32 s25, s92, 1", "s_lshl_b32 s25, s25, 2", "s_and_b32 s95, s93, 3", "s_add_u32 s25, s25, s95")
    if rot: k.e("s_lshl_b32 s53, s95, 1", "s_add_u32 s53, s53, s94", "s_and_b32 s53, s53, 7")
    k.stamp(0)
    e3s_body(k, rot=bool(rot))
    k.wait_vm_all()
    if DBG1.get("fine"): k.stamp(7); k.stamp_out(8, 0)
    else: k.stamp(3); k.stamp_out(4, 0)
    k.wait_vm_all()
    k.e("s_endpgm")
    k.label("L_k1_pf")
    k.vm = []; k.lg = []
    fxp = srd(k, 12, 48, SZ_WD) + srd(k, 16, 16, SZ_WO)
    k.e("s_waitcnt lgkmcnt(0)"); k.e(*(fx + fxp))
    k.e("s_sub_u32 s3, s2, 480")
    prep_role(k, 20, 3, 32)
    if not DBG1.get("nopf"): prefetch_role(k, [(12, SZ_WD), (16, SZ_WO)], 3, 32)
    k.label(f"L_end_{k.name}")
    k.e("s_endpgm")
    k.emit_tails()
    return k

def k1t_kernel(name="k1_proj_kernel", prio_a=None, prio_g=None, **kw):
    k = KV(name, nvgpr=256)
    k.e("s_cmp_ge_u32 s2, 512", f"s_cbranch_scc1 L_end_{k.name}")
    fx = srd(k, 8, 0, SZ_X) + srd(k, 20, 72, WS_SIZE2)
    k.e("s_cmp_lt_u32 s2, 256", "s_cbranch_scc1 L_k1_g")
    fx1 = srd(k, 12, 8, SZ_WQKV)
    k.e("s_waitcnt lgkmcnt(0)"); k.e(*(fx + fx1))
    if prio_a is not None: k.e(f"s_setprio {prio_a}")
    k.e("s_and_b32 s3, s2, 7", "s_lshr_b32 s4, s2, 3", "s_and_b32 s4, s4, 31", "s_and_b32 s5, s3, 1", "s_lshl_b32 s26, s5, 2", "s_and_b32 s5, s4, 3", "s_add_u32 s26, s26, s5",
        "s_lshr_b32 s25, s3, 1", "s_lshl_b32 s25, s25, 3", "s_lshr_b32 s5, s4, 2", "s_add_u32 s25, s25, s5")
    k.e("s_and_b32 s53, s26, 3", "s_lshl_b32 s53, s53, 1", "s_add_u32 s53, s53, s25", "s_and_b32 s53, s53, 7")
    k.stamp(0)
    e1s_body(k, rot=True)
    k.wait_vm_all()
    if DBG1.get("fine"): k.stamp(7); k.stamp_out(8, 0)
    else: k.stamp(3); k.stamp_out(4, 0)
    k.wait_vm_all()
    k.e("s_endpgm")
    k.label("L_k1_g")
    k.vm = []; k.lg = []
    k.e("s_cmp_ge_u32 s2, 224", "s_cbranch_scc1 L_k1_pf")
    fx3 = srd(k, 12, 32, SZ_WG) + srd(k, 16, 40, SZ_WG)
    k.e("s_waitcnt lgkmcnt(0)"); k.e(*(fx + fx3))
    if prio_g is not None: k.e(f"s_setprio {prio_g}")
    k.e("s_and_b32 s92, s2, 7", "s_lshr_b32 s93, s2, 3")
    k.e("s_and_b32 s26, s92, 1", "s_mul_i32 s26, s26, 7", "s_lshr_b32 s94, s93, 2", "s_add_u32 s26, s26, s94",
        "s_lshr_b32 s25, s92, 1", "s_lshl_b32 s25, s25, 2", "s_and_b32 s95, s93, 3", "s_add_u32 s25, s25, s95")
    k.e("s_lshl_b32 s53, s95, 1", "s_add_u32 s53, s53, s94", "s_and_b32 s53, s53, 7")
    k.stamp(0)
    e3s_body(k, rot=True)
    k.wait_vm_all()
    if DBG1.get("fine"): k.stamp(7); k.stamp_out(8, 0)
    else: k.stamp(3); k.stamp_out(4, 0)
    k.wait_vm_all()
    k.e("s_endpgm")
    k.label("L_k1_pf")
    k.vm = []; k.lg = []
    fxp = srd(k, 12, 48, SZ_WD) + srd(k, 16, 16, SZ_WO)
    k.e("s_waitcnt lgkmcnt(0)"); k.e(*(fx + fxp))
    k.e("s_sub_u32 s3, s2, 224")
    prep_role(k, 20, 3, 32)
    if not DBG1.get("nopf"): prefetch_role(k, [(12, SZ_WD), (16, SZ_WO)], 3, 32)
    k.label(f"L_end_{k.name}")
    k.e("s_endpgm")
    k.emit_tails()
    return k

def kB4_kernel(name="kb_main_kernel", prio_a=None, prio_g=None, e4_prio=None, post_prio=None, osleep=2, **kw):
    k = KV(name, nvgpr=256)
    k.e("s_cmp_ge_u32 s2, 512", f"s_cbranch_scc1 L_end_{k.name}")
    fx = srd(k, 20, 72, WS_SIZE2)
    k.e("s_cmp_ge_u32 s2, 256", "s_cbranch_scc1 L_kb_g")
    k.e("s_waitcnt lgkmcnt(0)"); k.e(*fx)
    if prio_a is not None: k.e(f"s_setprio {prio_a}")
    k.e("s_and_b32 s3, s2, 7", "s_lshr_b32 s4, s2, 3", "s_and_b32 s5, s4, 3", "s_lshl_b32 s25, s3, 2", "s_add_u32 s25, s25, s5", "s_lshr_b32 s26, s4, 2")
    k.stamp(0)
    e2_body(k, st_sc1="sc1", oflag=True, **kw)
    k.wait_vm_all()
    k.stamp(3); k.stamp_out(4, 0x20000); k.wait_vm_all()
    k.e("s_endpgm")
    fb = k.fb_code
    k.label("L_kb_g")
    k.vm = []; k.lg = []
    SD, SO, SX, SOUT = 84, 88, 8, 4
    fx3 = srd(k, SD, 48, SZ_WD) + srd(k, SO, 16, SZ_WO) + srd(k, SX, 0, SZ_X) + srd(k, SOUT, 56, SZ_X)
    k.e("s_waitcnt lgkmcnt(0)"); k.e(*(fx + fx3))
    if prio_g is not None: k.e(f"s_setprio {prio_g}")
    e4 = E4F(k, SD, SO, 20, SX, SOUT, osleep=osleep)
    c = e4
    k.e("s_sub_u32 s3, s2, 256", "s_and_b32 s92, s3, 7", "s_lshr_b32 s93, s3, 3",
        f"s_and_b32 s{c.SRB}, s93, 3", "s_lshl_b32 s94, s92, 2", f"s_add_u32 s{c.SRB}, s{c.SRB}, s94", f"s_lshr_b32 s{c.SCB}, s93, 2")
    k.e("v_and_b32 v1, 63, v0", "v_lshrrev_b32 v10, 6, v0", "s_nop 0", "v_readfirstlane_b32 s24, v10", "s_nop 3")
    k.stamp(0)
    e4.setup()
    e4.e4_prio = e4_prio; e4.post_prio = post_prio
    e4.body(pre_issued=False, st=(1, 2), hwait=False)
    k.wait_vm_all()
    k.stamp(4); k.stamp_out(5, 0x40000); k.wait_vm_all()
    k.label(f"L_end_{k.name}")
    k.e("s_endpgm")
    fb()
    k.emit_tails()
    return k
```

```python
import sys
sys.path.insert(0, "gen")
from eng import *
import eng
from b5 import build
A = dict(mapping=1, l2warm=1, wtouch=True)
eng.DBG.update(dict(nodma=False, nobar=False, noreads=False, fill=None, early=True))
build("t5b.s", a=A, b=dict(epi_prio=1, post_prio=0, touch=False))
```

```python
from agen import *

WS_TOK = 0x000000
WS_COL = 0x010000
WS_QF  = 0x100000
WS_KF  = 0x300000
WS_VF  = 0x500000
WS_HF  = 0x700000
WS_OF  = 0xE00000
WS_SIZE = 0x1100000
WS_DBG = 0x1000000
LOG2E = 1.4426950408889634

import struct
def f2u(x): return struct.unpack("<I", struct.pack("<f", x))[0]

class KV(Kernel):
    def __init__(self, *a, **kw):
        super().__init__(*a, **kw)
        self.vm = []
        self.lg = []
        self.tails = []
    def emit_tails(self):
        for t in self.tails: t()
        self.tails = []
    def vmem(self, txt, tag=None, opt=False):
        self.e(txt); self.vm.append((tag, opt))
    def wait_vm(self, *tags, cond=False):
        idx = [i for i, (t, o) in enumerate(self.vm) if t in tags]
        if not idx: return
        last = max(idx)
        n = sum(1 for (t, o) in self.vm[last + 1:] if not o)
        assert n <= 63
        self.e(f"s_waitcnt vmcnt({n})")
        if cond:
            self.vm = [(t, o) for i, (t, o) in enumerate(self.vm) if not (o and i <= last)]
        else:
            self.vm = self.vm[last + 1:]
    def wait_vm_all(self):
        self.e("s_waitcnt vmcnt(0)"); self.vm = []
    def ds(self, txt, tag=None):
        self.e(txt); self.lg.append(tag)
    def wait_lg(self, *tags):
        idx = [i for i, t in enumerate(self.lg) if t in tags]
        if not idx: return
        last = max(idx)
        n = min(15, len(self.lg) - 1 - last)
        self.e(f"s_waitcnt lgkmcnt({n})")
        self.lg = self.lg[len(self.lg) - n:] if n else []
    STAMP = False
    def stamp(self, idx):
        if not KV.STAMP or getattr(self, "nostamp", False): return
        idx = idx + getattr(self, "stamp_off", 0)
        self.e("s_memtime s[60:61]", "s_memrealtime s[62:63]", "s_waitcnt lgkmcnt(0)",
               f"s_mov_b32 s{64+2*idx}, s60", f"s_mov_b32 s{65+2*idx}, s62")
        self.lg = []
    def stamp_out(self, n, base, SWS=20, sh=6):
        if not KV.STAMP: return
        self.e("v_lshrrev_b32 v250, 6, v0", "s_lshl_b32 s60, s2, 2", "v_add_u32 v250, s60, v250", f"v_lshlrev_b32 v250, {sh}, v250",
               f"v_add_u32 v250, 0x{WS_DBG + base:x}, v250", "v_and_b32 v251, 63, v0", "v_cmp_eq_u32 vcc, 0, v251", "s_and_saveexec_b64 s[60:61], vcc")
        for i in range(2*n):
            self.e(f"v_mov_b32 v251, s{64+i}", f"buffer_store_dword v251, v250, s[{SWS}:{SWS+3}], 0 offen offset:{4*i}", "s_nop 1")
        self.e("s_mov_b64 exec, s[60:61]")
    def wait_lg_all(self):
        if self.lg:
            self.e("s_waitcnt lgkmcnt(0)")
        self.lg = []

def srd(k, d, karg_off, nbytes):
    k.e(f"s_load_dwordx2 s[{d}:{d+1}], s[0:1], {karg_off}")
    return [f"s_mov_b32 s{d+2}, 0x{nbytes:x}", f"s_mov_b32 s{d+3}, 0x00020000"]

SZ_X = 2048*512*2; SZ_WQKV = 512*1536*2; SZ_WO = 512*512*2; SZ_WG = 512*1792*2; SZ_WD = 1792*512*2

def allreduce(k, regs, tmps):
    n = len(regs)
    pad = max(0, 2 - (n - 1))
    for mode in ("quad_perm:[1,0,3,2]", "quad_perm:[2,3,0,1]", "row_half_mirror", "row_mirror"):
        for r in regs:
            k.e(f"v_add_f32_dpp v{r}, v{r}, v{r} {mode} row_mask:0xf bank_mask:0xf")
        if pad: k.e(f"s_nop {pad-1}")
    for sw in ("v_permlane16_swap_b32", "v_permlane32_swap_b32"):
        for r, t in zip(regs, tmps): k.e(f"v_mov_b32 v{t}, v{r}")
        k.e("s_nop 1")
        for r, t in zip(regs, tmps): k.e(f"{sw} v{r}, v{t}")
        k.e("s_nop 1")
        for r, t in zip(regs, tmps): k.e(f"v_add_f32 v{r}, v{r}, v{t}")
    k.e("s_nop 1")


SDBG = 56
SEP = 58
SCNT = 54
FLG = 0x40000
FLG_ROW = FLG
FLG_COLQ = FLG + 0x400
FLG_COLG = FLG + 0x800
FLG_QKV = FLG + 0x1000
FLG_H = FLG + 0x2000
FLG_O = FLG + 0x3000
SPIN_MAX = 0x4000
FLG_QKV8 = FLG + 0x1000
FLG_H8 = FLG + 0x2000
FLG_O8 = FLG + 0x4000

def load_dbg(k):
    k.e(f"s_load_dwordx2 s[{SDBG}:{SDBG+1}], s[0:1], 64")

def wave_id(k):
    k.e("v_lshrrev_b32 v10, 6, v0", "s_nop 1", "v_readfirstlane_b32 s24, v10", "s_nop 3")

def epoch_make(k):
    L = k.newlabel("ep")
    k.e("s_or_b32 s54, s2, s24", "s_cmp_lg_u32 s54, 0", f"s_cbranch_scc1 {L}",
        f"s_memrealtime s[{SEP}:{SEP+1}]", "v_mov_b32 v1, 0", "s_waitcnt lgkmcnt(0)", f"s_or_b32 s{SEP}, s{SEP}, 1",
        f"v_mov_b32 v2, s{SEP}", f"v_mov_b32 v3, s{SEP+1}", "s_mov_b64 exec, 1",
        f"global_store_dwordx2 v1, v[2:3], s[{SDBG}:{SDBG+1}] sc1", "s_mov_b64 exec, -1")
    k.label(L)

def w0_begin(k):
    L = k.newlabel("w0")
    k.e("s_cmp_lg_u32 s24, 0", f"s_cbranch_scc1 {L}")
    return L

def epoch_issue(k, vd):
    k.e(f"v_mov_b32 v{vd+2}, 0")
    L = w0_begin(k)
    k.vmem(f"global_load_dwordx2 v[{vd}:{vd+1}], v{vd+2}, s[{SDBG}:{SDBG+1}] sc1", "ep", opt=True)
    k.label(L)

def epoch_check(k, vd):
    L = w0_begin(k)
    Ls = k.newlabel("eps"); Lc = k.newlabel("epc")
    k.wait_vm("ep", cond=True)
    k.label(Lc + "_r")
    k.e(f"v_readfirstlane_b32 s{SEP}, v{vd}", f"v_readfirstlane_b32 s{SEP+1}, v{vd+1}", "s_nop 3", f"s_cmp_eq_u32 s{SEP}, 0", f"s_cbranch_scc1 {Ls}")
    k.label(Lc)
    k.label(L)
    def tail():
        k.label(Ls)
        k.e(f"s_mov_b32 s{SCNT}, 0")
        k.label(Ls + "_l")
        k.e(f"global_load_dwordx2 v[{vd}:{vd+1}], v{vd+2}, s[{SDBG}:{SDBG+1}] sc1", f"s_add_u32 s{SCNT}, s{SCNT}, 1", "s_waitcnt vmcnt(0)",
            f"v_readfirstlane_b32 s{SEP}, v{vd}", f"v_readfirstlane_b32 s{SEP+1}, v{vd+1}", "s_nop 3", f"s_cmp_lg_u32 s{SEP}, 0", f"s_cbranch_scc1 {Lc}",
            "s_sleep 2", f"s_cmp_lt_u32 s{SCNT}, 0x{SPIN_MAX:x}", f"s_cbranch_scc1 {Ls}_l", f"s_branch {Lc}")
    k.tails.append(tail)

def publish(k, s_off, SWS=20, vt=1):
    k.wait_vm_all(); k.wait_lg_all()
    k.e("s_barrier")
    L = w0_begin(k)
    k.e(f"v_mov_b32 v{vt}, s{s_off}", f"v_mov_b32 v{vt+1}, s{SEP}", f"v_mov_b32 v{vt+2}, s{SEP+1}", "s_mov_b64 exec, 1")
    k.vmem(f"buffer_store_dwordx2 v[{vt+1}:{vt+2}], v{vt}, s[{SWS}:{SWS+3}], 0 offen sc1", "flag", opt=True)
    k.e("s_mov_b64 exec, -1")
    k.label(L)

def poll_issue(k, vd, voff, SWS=20):
    L = w0_begin(k)
    k.vmem(f"buffer_load_dwordx2 v[{vd}:{vd+1}], v{voff}, s[{SWS}:{SWS+3}], 0 offen sc1", "poll", opt=True)
    k.label(L)

def poll_check(k, vd, voff, SWS=20):
    L = w0_begin(k)
    Ls = k.newlabel("spin"); Lc = k.newlabel("cont")
    k.wait_vm("poll", cond=True)
    k.e(f"v_cmp_eq_u64 vcc, s[{SEP}:{SEP+1}], v[{vd}:{vd+1}]", "s_nop 3", "s_cmp_eq_u64 vcc, -1", f"s_cbranch_scc0 {Ls}")
    k.label(Lc)
    k.label(L)
    def tail():
        k.label(Ls)
        k.e(f"s_mov_b32 s{SCNT}, 0")
        k.label(Ls + "_l")
        k.e("s_sleep 2", f"buffer_load_dwordx2 v[{vd}:{vd+1}], v{voff}, s[{SWS}:{SWS+3}], 0 offen sc1", f"s_add_u32 s{SCNT}, s{SCNT}, 1", "s_waitcnt vmcnt(0)",
            f"v_cmp_eq_u64 vcc, s[{SEP}:{SEP+1}], v[{vd}:{vd+1}]", "s_nop 3", "s_cmp_eq_u64 vcc, -1", f"s_cbranch_scc1 {Lc}",
            f"s_cmp_lt_u32 s{SCNT}, 0x{SPIN_MAX:x}", f"s_cbranch_scc1 {Ls}_l", f"s_branch {Lc}")
    k.tails.append(tail)

def row_job(k, s_job, srd_x, srd_ws, sc1="", pre_store=None):
    k.e("v_and_b32 v1, 63, v0", "v_lshrrev_b32 v2, 6, v0", f"s_lshl_b32 s40, s{s_job}, 14",
        "v_lshlrev_b32 v3, 12, v2", "v_lshl_add_u32 v3, v1, 4, v3", "v_add_u32 v3, s40, v3")
    for j in range(4):
        k.vmem(f"buffer_load_dwordx4 v[{4+4*j}:{7+4*j}], v3, s[{srd_x}:{srd_x+3}], 0 offen offset:{1024*j}", "rj")
    k.e("v_bfe_u32 v72, v1, 1, 2", "v_cmp_eq_u32 s[42:43], 1, v72", "v_cmp_eq_u32 s[44:45], 2, v72", "v_cmp_eq_u32 s[46:47], 3, v72")
    k.wait_vm("rj")
    if pre_store: pre_store()
    for j in range(4):
        for i in range(4):
            k.e(f"v_lshlrev_b32 v{32+8*j+2*i}, 16, v{4+4*j+i}", f"v_and_b32 v{33+8*j+2*i}, 0xffff0000, v{4+4*j+i}")
    for j in range(4):
        b = 32 + 8*j
        k.e(f"v_add_f32 v{20+j}, v{b}, v{b+1}")
    for i in range(2, 8):
        for j in range(4):
            k.e(f"v_add_f32 v{20+j}, v{20+j}, v{32+8*j+i}")
    allreduce(k, [20, 21, 22, 23], [24, 25, 26, 27])
    for j in range(4): k.e(f"v_mul_f32 v{20+j}, 0x3b000000, v{20+j}")
    for i in range(8):
        for j in range(4): k.e(f"v_sub_f32 v{32+8*j+i}, v{32+8*j+i}, v{20+j}")
    for j in range(4): k.e(f"v_mul_f32 v{28+j}, v{32+8*j}, v{32+8*j}")
    for i in range(1, 8):
        for j in range(4): k.e(f"v_fmac_f32 v{28+j}, v{32+8*j+i}, v{32+8*j+i}")
    allreduce(k, [28, 29, 30, 31], [24, 25, 26, 27])
    k.e("v_cndmask_b32 v64, v20, v21, s[42:43]", "v_cndmask_b32 v65, v28, v29, s[42:43]",
        "v_cndmask_b32 v64, v64, v22, s[44:45]", "v_cndmask_b32 v65, v65, v30, s[44:45]",
        "v_cndmask_b32 v64, v64, v23, s[46:47]", "v_cndmask_b32 v65, v65, v31, s[46:47]")
    k.e("v_mov_b32 v66, 0x3727c5ac", "v_fmac_f32 v66, 0x3b000000, v65",
        "v_rsq_f32 v67, v66", "v_sub_f32 v64, 0, v64",
        "v_mul_f32 v68, v66, v67",
        "v_cvt_pk_bf16_f32 v69, v64, v64", "s_nop 0", "v_and_b32 v69, 0xffff0000, v69", "v_sub_f32 v70, v64, v69",
        "v_cvt_pk_bf16_f32 v69, v70, v70", "s_nop 0", "v_and_b32 v69, 0xffff0000, v69", "v_sub_f32 v71, v70, v69",
        "v_cvt_pk_bf16_f32 v4, v64, v70", "v_cvt_pk_bf16_f32 v6, v71, v64",
        "v_and_b32 v72, 1, v1", "v_cmp_eq_u32 vcc, 1, v72", "v_mov_b32 v5, v4", "v_mov_b32 v7, 0",
        "v_cndmask_b32 v4, v4, v67, vcc", "v_cndmask_b32 v5, v5, v68, vcc", "v_cndmask_b32 v6, v6, v7, vcc")
    k.e(f"s_lshl_b32 s40, s{s_job}, 9", "v_lshlrev_b32 v3, 7, v2", "v_lshl_add_u32 v3, v1, 4, v3", "v_add_u32 v3, s40, v3",
        "v_cmp_gt_u32 vcc, 8, v1", "s_and_saveexec_b64 s[42:43], vcc")
    k.vmem(f"buffer_store_dwordx4 v[4:7], v3, s[{srd_ws}:{srd_ws+3}], 0 offen offset:{WS_TOK} {sc1}", "st")
    k.e("s_mov_b64 exec, s[42:43]")

def col_job(k, s_job, srd_w, s_ld, s_col0b, srd_ws, ldsbase=0, sc1="", pre_store=None):
    k.e("v_and_b32 v1, 63, v0", "v_lshrrev_b32 v2, 6, v0", "v_lshrrev_b32 v3, 2, v1", "v_lshl_add_u32 v3, v2, 7, v3",
        f"v_mul_lo_u32 v3, v3, s{s_ld}", "v_and_b32 v4, 3, v1", "v_lshl_add_u32 v3, v4, 4, v3", f"v_add_u32 v3, s{s_col0b}, v3",
        f"s_lshl_b32 s41, s{s_ld}, 4", "s_mov_b32 s40, 0")
    for i in range(8):
        k.vmem(f"buffer_load_dwordx4 v[{8+4*i}:{11+4*i}], v3, s[{srd_w}:{srd_w+3}], s40 offen", ("cj", i))
        if i < 7: k.e("s_add_u32 s40, s40, s41")
    k.e("s_mov_b32 s42, 0x00003f80", "s_mov_b32 s43, 0x3f800000")
    for i in range(8): k.e(f"v_mov_b32 v{40+i}, 0")
    for i in range(8):
        k.wait_vm(("cj", i))
        for d in range(4):
            k.e(f"v_dot2_f32_bf16 v{40+2*d}, v{8+4*i+d}, s42, v{40+2*d}", f"v_dot2_f32_bf16 v{41+2*d}, v{8+4*i+d}, s43, v{41+2*d}")
    if pre_store: pre_store()
    k.e("s_nop 2")
    for mode in ("row_ror:4", "row_ror:8"):
        for i in range(8): k.e(f"v_add_f32_dpp v{40+i}, v{40+i}, v{40+i} {mode} row_mask:0xf bank_mask:0xf")
    k.e("v_lshrrev_b32 v5, 4, v1", "v_lshl_add_u32 v5, v2, 2, v5", "v_lshlrev_b32 v5, 7, v5", "v_lshl_add_u32 v5, v4, 5, v5",
        "v_and_b32 v6, 15, v1", "v_cmp_gt_u32 vcc, 4, v6", "s_and_saveexec_b64 s[44:45], vcc")
    k.ds(f"ds_write_b128 v5, v[40:43] offset:{ldsbase}")
    k.ds(f"ds_write_b128 v5, v[44:47] offset:{ldsbase+16}")
    k.e("s_mov_b64 exec, s[44:45]")
    k.wait_lg_all()
    k.e("s_barrier")
    k.e("v_cmp_gt_u32 vcc, 32, v0", "s_and_saveexec_b64 s[44:45], vcc", "v_lshlrev_b32 v5, 2, v0")
    for p in range(16): k.ds(f"ds_read_b32 v{8+p}, v5 offset:{ldsbase+128*p}")
    k.wait_lg_all()
    for st in (8, 4, 2, 1):
        for p in range(st): k.e(f"v_add_f32 v{8+p}, v{8+p}, v{8+p+st}")
    k.e("s_nop 0",
        "v_cvt_pk_bf16_f32 v12, v8, v8", "s_nop 0", "v_and_b32 v9, 0xffff0000, v12", "v_sub_f32 v9, v8, v9",
        "v_cvt_pk_bf16_f32 v13, v9, v9", "s_nop 0", "v_and_b32 v10, 0xffff0000, v13", "v_sub_f32 v10, v9, v10",
        "v_cvt_pk_bf16_f32 v14, v8, v10", "v_mov_b32 v15, 0",
        f"s_lshl_b32 s40, s{s_job}, 9", "v_lshlrev_b32 v5, 4, v0", "v_add_u32 v5, s40, v5", f"s_mov_b32 s40, {WS_COL}")
    k.vmem(f"buffer_store_dwordx4 v[12:15], v5, s[{srd_ws}:{srd_ws+3}], s40 offen {sc1}", "st")
    k.e("s_mov_b64 exec, s[44:45]")

def k0_kernel():
    k = KV("k0_stats_kernel", nvgpr=96)
    k.e("s_cmp_ge_u32 s2, 288", f"s_cbranch_scc1 L_end_{k.name}")
    fx = srd(k, 8, 0, SZ_X) + srd(k, 20, 72, WS_SIZE)
    k.e("s_load_dwordx2 s[28:29], s[0:1], 8", "s_load_dwordx2 s[30:31], s[0:1], 32", "s_load_dwordx2 s[32:33], s[0:1], 40")
    k.e("s_waitcnt lgkmcnt(0)"); k.e(*fx)
    k.e("s_cmp_ge_u32 s2, 128", "s_cbranch_scc1 L_k0_col")
    row_job(k, 2, 8, 20)
    k.e("s_branch L_k0_done")
    k.label("L_k0_col")
    k.e("s_sub_u32 s3, s2, 128")
    k.e("s_mov_b32 s12, s28", "s_mov_b32 s13, s29", f"s_mov_b32 s14, {SZ_WQKV}", "s_mov_b32 s15, 0x00020000",
        "s_movk_i32 s16, 3072", "s_lshl_b32 s17, s3, 6",
        "s_cmp_lt_u32 s3, 48", "s_cbranch_scc1 L_k0_go",
        "s_mov_b32 s12, s30", "s_mov_b32 s13, s31", f"s_mov_b32 s14, {SZ_WG}", "s_movk_i32 s16, 3584",
        "s_sub_u32 s17, s3, 48", "s_lshl_b32 s17, s17, 6",
        "s_cmp_lt_u32 s3, 104", "s_cbranch_scc1 L_k0_go",
        "s_mov_b32 s12, s32", "s_mov_b32 s13, s33", "s_sub_u32 s17, s3, 104", "s_lshl_b32 s17, s17, 6")
    k.label("L_k0_go")
    col_job(k, 3, 12, 16, 17, 20)
    k.label("L_k0_done")
    k.wait_vm_all()
    k.label(f"L_end_{k.name}")
    k.e("s_endpgm")
    return k

DBG = dict(nodma=False, nobar=False, noreads=False, fill=None, early=False)
def gemm_loop(k, nunits, mfmas, reads, dmas, vm_need, fill=6, dma_first_gap=0, hooks=None, pre_hooks=None, dbg=False):
    def tagof(g, name): return ("fr", g, name)
    for u in range(nunits):
        g0, g1 = 2*u, 2*u + 1
        k.wait_vm(*vm_need(u))
        k.wait_lg_all()
        if not (dbg and DBG["nobar"]): k.e("s_barrier")
        if pre_hooks and u in pre_hooks: pre_hooks[u]()
        R0 = list(reads(g0, 0)); R1 = list(reads(g1, 1))
        if dbg and DBG["noreads"] and u > 0: R0 = []; R1 = []
        if dbg and DBG["fill"]: fill = DBG["fill"]
        prev = list(mfmas(g0 - 1, 1)) if u > 0 else []
        cur = list(mfmas(g0, 0))
        D = list(dmas(u))
        if dbg and DBG["nodma"]: D = []
        rel = {}
        for i, (t, used) in enumerate(prev):
            for nm in used: rel[nm] = i
        def emit_reads(i, budget):
            n = 0
            while n < budget and R0:
                t, nm = R0.pop(0); k.ds(t, tagof(g0, nm)); n += 1
            j = 0
            while n < budget and j < len(R1):
                t, nm = R1[j]
                if rel.get(nm, -1) <= i:
                    k.ds(t, tagof(g1, nm)); R1.pop(j); n += 1
                else: j += 1
            return n
        if not prev:
            emit_reads(-1, 1000)
        early = dbg and DBG["early"]
        def emit_dma():
            for (txt, tag, isvm) in D.pop(0):
                if isvm: k.vmem(txt, tag)
                else: k.e(txt)
        for i, (t, used) in enumerate(prev):
            k.e(t)
            if early:
                emit_reads(i, 4)
                if D: emit_dma()
            else:
                emit_reads(i, fill)
        emit_reads(10**6, 1000)
        ngap = len(cur)
        per = -(-len(D) // ngap) if D else 0
        for j, (t, used) in enumerate(cur):
            k.wait_lg(*[tagof(g0, nm) for nm in used])
            k.e(t)
            for _ in range(per):
                if D:
                    for (txt, tag, isvm) in D.pop(0):
                        if isvm: k.vmem(txt, tag)
                        else: k.e(txt)
        assert not D
        if hooks and u in hooks:
            for h in hooks[u]: h()
    k.wait_lg_all()
    for (t, used) in mfmas(2*nunits - 1, 1): k.e(t)

def dma(srd_, voff, s_m0base, m0imm, s_tmp, soff, tag, imm=0):
    out = [(f"s_add_u32 m0, s{s_m0base}, {m0imm - imm}" , None, False)]
    out.append((f"s_mov_b32 s{s_tmp}, 0x{soff:x}", None, False))
    o = f" offset:{imm}" if imm else ""
    out.append((f"buffer_load_dwordx4 v{voff}, s[{srd_}:{srd_+3}], s{s_tmp} offen{o} lds", tag, True))
    return out

def dmab(srd_, voff, s_m0base, m0imm, s_tmp, s_base, soff, tag, imm=0, post=()):
    out = [(f"s_add_u32 m0, s{s_m0base}, {m0imm - imm}" , None, False)]
    out.append((f"s_add_u32 s{s_tmp}, s{s_base}, 0x{soff:x}", None, False))
    o = f" offset:{imm}" if imm else ""
    out.append((f"buffer_load_dwordx4 v{voff}, s[{srd_}:{srd_+3}], s{s_tmp} offen{o} lds", tag, True))
    for t in post: out.append((t, None, False))
    return out

def rot_adv(s, step, lim, tmp):
    return [f"s_add_u32 s{s}, s{s}, {step}", f"s_cmp_ge_u32 s{s}, {lim}", f"s_cselect_b32 s{tmp}, {lim}, 0", f"s_sub_u32 s{s}, s{s}, s{tmp}"]

def emit_groups(k, groups):
    for gr in groups:
        for (txt, tag, isvm) in gr:
            if isvm: k.vmem(txt, tag)
            else: k.e(txt)

MF = "v_mfma_f32_32x32x16_bf16"

def e1_body(k, SX=8, SW=12, SWS=20, sc1="", stats_sync=None):
    E1_XB = 49152
    k.e("v_and_b32 v1, 63, v0", "v_lshrrev_b32 v10, 6, v0", "s_nop 0", "v_readfirstlane_b32 s24, v10")
    k.e("v_and_b32 v11, 31, v1", "v_lshrrev_b32 v12, 5, v1")
    k.e("s_and_b32 s27, s24, 1", "s_lshr_b32 s28, s24, 1")
    k.e("v_lshrrev_b32 v13, 3, v1", "v_lshrrev_b32 v14, 4, v1", "v_and_b32 v15, 7, v1",
        "v_xor_b32 v7, v15, v14", "v_lshlrev_b32 v7, 4, v7", "v_lshl_add_u32 v7, v13, 10, v7",
        "s_lshl_b32 s29, s25, 16", "s_lshl_b32 s30, s24, 14", "s_add_u32 s29, s29, s30",
        "v_add_u32 v7, s29, v7", "v_xor_b32 v8, 64, v7", "v_add_u32 v8, 8192, v8")
    k.e("v_and_b32 v14, 1, v14", "v_lshlrev_b32 v14, 2, v14", "v_xor_b32 v9, v15, v14", "v_lshlrev_b32 v9, 4, v9",
        "s_lshl_b32 s30, s24, 3", "v_add_u32 v13, s30, v13", "v_mul_u32_u24 v13, 3072, v13", "v_add_u32 v9, v9, v13",
        "s_lshl_b32 s30, s26, 7", "v_add_u32 v9, s30, v9")
    k.e(f"s_lshl_b32 s31, s24, 11", f"s_add_u32 s31, s31, {E1_XB}", "s_lshl_b32 s32, s24, 10")
    def xd(v):
        return [dma(SX, 7, 31, (v % 3)*8192, 33, v*128, ("X", v)), dma(SX, 8, 31, (v % 3)*8192 + 1024, 33, v*128, ("X", v))]
    def wd(u):
        return [dma(SW, 9, 32, (u % 4)*12288 + p*4096, 33, u*32*3072, ("W", u), imm=1024*p) for p in range(3)]
    emit_groups(k, xd(0) + wd(0) + wd(1) + xd(1) + wd(2))
    for i in range(48, 64): k.e(f"v_mov_b32 v{i}, 0")
    k.e("s_lshl_b32 s34, s25, 6", "s_lshl_b32 s35, s27, 5", "s_add_u32 s34, s34, s35",
        "v_add_u32 v116, s34, v11", "v_lshlrev_b32 v116, 5, v116")
    k.e("s_lshl_b32 s35, s26, 6", "s_lshl_b32 s36, s28, 5", "s_add_u32 s35, s35, s36",
        "v_add_u32 v117, s35, v11", "v_lshlrev_b32 v117, 4, v117")
    def extras(xsc):
        k.vmem(f"buffer_load_dword v112, v116, s[{SWS}:{SWS+3}], 0 offen offset:{WS_TOK+16} {xsc}", "ex")
        k.e(f"s_mov_b32 s36, {WS_COL}", "s_mov_b64 exec, 0xffffffff")
        k.vmem(f"buffer_load_dwordx4 v[48:51], v116, s[{SWS}:{SWS+3}], 0 offen offset:{WS_TOK} {xsc}", "ex")
        for p in range(3):
            k.vmem(f"buffer_load_dwordx4 v[{52+4*p}:{55+4*p}], v117, s[{SWS}:{SWS+3}], s36 offen {xsc}", "ex")
            if p < 2: k.e("s_add_u32 s36, s36, 8192")
        k.e("s_mov_b64 exec, -1")
    hooks = None; pre_hooks = None
    if stats_sync is None:
        extras("")
    else:
        ue, up, uc = stats_sync
        k.e("v_and_b32 v114, 15, v1", "v_min_u32 v114, 9, v114", "v_lshlrev_b32 v114, 3, v114",
            f"s_lshl_b32 s36, s25, 5", f"s_add_u32 s36, s36, 0x{FLG_ROW:x}", "v_add_u32 v115, s36, v114",
            f"s_lshl_b32 s36, s26, 7", f"s_add_u32 s36, s36, 0x{FLG_COLQ - 32:x}", "v_add_u32 v118, s36, v114",
            "v_cmp_gt_u32 vcc, 32, v114", "s_nop 1", "v_cndmask_b32 v115, v118, v115, vcc")
        def h_e(): epoch_issue(k, 120)
        def h_p():
            epoch_check(k, 120)
            poll_issue(k, 120, 115)
        def h_c(): poll_check(k, 120, 115)
        def h_x(): extras("sc1")
        hooks = {ue: [h_e], up: [h_p], uc: [h_c]}
        pre_hooks = {uc + 1: h_x}
    k.e("s_lshl_b32 s36, s27, 5", "v_add_u32 v13, s36, v11", "v_bfe_u32 v14, v13, 1, 3", "v_xor_b32 v14, v14, v12",
        "v_lshlrev_b32 v14, 4, v14", "v_lshl_add_u32 v2, v13, 7, v14", f"v_add_u32 v2, {E1_XB}, v2",
        "v_xor_b32 v3, 32, v2", "v_xor_b32 v4, 64, v2", "v_xor_b32 v5, 96, v2")
    k.e("v_bfe_u32 v13, v1, 2, 2", "v_lshl_add_u32 v13, v12, 3, v13", "v_lshlrev_b32 v6, 7, v13",
        "v_bfe_u32 v13, v1, 4, 1", "v_lshlrev_b32 v13, 1, v13", "v_bfe_u32 v14, v1, 1, 1", "v_add_u32 v13, v13, v14",
        "s_lshl_b32 s36, s28, 2", "v_add_u32 v13, s36, v13", "v_bfe_u32 v14, v1, 3, 1", "v_lshlrev_b32 v14, 2, v14",
        "v_xor_b32 v13, v13, v14", "v_lshl_add_u32 v6, v13, 4, v6", "v_and_b32 v14, 1, v1", "v_lshl_add_u32 v6, v14, 3, v6")
    for i in range(64, 112): k.e(f"v_mov_b32 v{i}, 0")
    def fr(st): return 16 + 16*st
    def reads(g, st):
        b = fr(st); u = g >> 1; v = g >> 2
        out = [(f"ds_read_b128 v[{b}:{b+3}], v{2 + (g & 3)} offset:{(v % 3)*8192}", "X")]
        for p in range(3):
            o = (u % 4)*12288 + p*4096 + (g & 1)*2048
            out.append((f"ds_read_b64_tr_b16 v[{b+4+4*p}:{b+5+4*p}], v6 offset:{o}", f"W{p}"))
            out.append((f"ds_read_b64_tr_b16 v[{b+6+4*p}:{b+7+4*p}], v6 offset:{o+512}", f"W{p}"))
        return out
    def mf(b_x, b_w):
        out = []
        for p in range(3):
            a = 64 + 16*p
            w = f"v[{b_w+4*p}:{b_w+4*p+3}]"; x = f"v[{b_x}:{b_x+3}]"
            A, B = (w, x) if p < 2 else (x, w)
            out.append((f"{MF} v[{a}:{a+15}], {A}, {B}, v[{a}:{a+15}]", ["X", f"W{p}"]))
        return out
    def mfmas(g, st): return mf(fr(st), fr(st) + 4)
    def dmas(u):
        out = []
        if u + 3 < 16: out += wd(u + 3)
        if u % 2 == 0 and u//2 + 2 < 8: out += xd(u//2 + 2)
        return out
    k.stamp(1)
    gemm_loop(k, 16, mfmas, reads, dmas, lambda u: [("W", u), ("X", u >> 1)], hooks=hooks, pre_hooks=pre_hooks)
    k.stamp(2)
    k.wait_vm("ex")
    for (t, _) in mf(48, 52): k.e(t)
    k.e("s_lshl_b32 s36, s24, 7", "v_lshlrev_b32 v13, 2, v11", "v_add_u32 v13, s36, v13")
    k.ds("ds_write_b32 v13, v112")
    k.e("v_lshlrev_b32 v13, 4, v12", "v_add_u32 v13, s36, v13")
    k.wait_lg_all()
    for gq in range(4): k.ds(f"ds_read_b128 v[{32+4*gq}:{35+4*gq}], v13 offset:{32*gq}")
    k.e(f"v_mul_f32 v113, 0x{f2u(0.25*LOG2E):08x}, v112")
    k.e("v_lshlrev_b32 v10, 4, v1",
        "s_lshl_b32 s36, s26, 2", "s_lshl_b32 s37, s28, 1", "s_add_u32 s36, s36, s37", "s_lshl_b32 s36, s36, 16",
        "s_lshl_b32 s37, s25, 1", "s_add_u32 s37, s37, s27", "s_lshl_b32 s37, s37, 10", "s_add_u32 s36, s36, s37")
    k.e("s_nop 4")
    for p, (scale, base) in enumerate(((113, WS_QF), (112, WS_KF))):
        a = 64 + 16*p
        for r in range(16): k.e(f"v_mul_f32 v{a+r}, v{a+r}, v{scale}")
        for j in range(2):
            d = 16 + 8*p + 4*j
            for i in range(4): k.e(f"v_cvt_pk_bf16_f32 v{d+i}, v{a+8*j+2*i}, v{a+8*j+2*i+1}")
            k.e(f"s_add_u32 s37, s36, 0x{base + j*65536:x}")
            k.vmem(f"buffer_store_dwordx4 v[{d}:{d+3}], v10, s[{SWS}:{SWS+3}], s37 offen {sc1}", "st")
    k.wait_lg_all()
    a = 96
    for r in range(16): k.e(f"v_mul_f32 v{a+r}, v{a+r}, v{32+r}")
    k.e("v_lshrrev_b32 v13, 4, v11", "v_lshlrev_b32 v13, 16, v13", "v_lshl_add_u32 v13, v12, 8, v13", "v_and_b32 v14, 15, v11",
        "v_lshl_add_u32 v13, v14, 4, v13", f"s_add_u32 s37, s36, 0x{WS_VF:x}")
    for j in range(2):
        d = 48 + 4*j
        for i in range(4): k.e(f"v_cvt_pk_bf16_f32 v{d+i}, v{a+8*j+2*i}, v{a+8*j+2*i+1}")
        k.vmem(f"buffer_store_dwordx4 v[{d}:{d+3}], v13, s[{SWS}:{SWS+3}], s37 offen offset:{512*j} {sc1}", "st")

def e3_body(k, SX=8, SG=12, SU=16, SWS=20, sc1="", norm=False, xoff=0, epi_prio=None, post_loop=None, st_sc1=None, pre_loop=None):
    XB = 49152
    k.e("v_and_b32 v1, 63, v0", "v_lshrrev_b32 v10, 6, v0", "s_nop 0", "v_readfirstlane_b32 s24, v10")
    k.e("v_and_b32 v11, 31, v1", "v_lshrrev_b32 v12, 5, v1")
    k.e("s_and_b32 s27, s24, 1", "s_lshr_b32 s28, s24, 1")
    k.e("v_lshrrev_b32 v13, 3, v1", "v_lshrrev_b32 v14, 4, v1", "v_and_b32 v15, 7, v1",
        "v_xor_b32 v7, v15, v14", "v_lshlrev_b32 v7, 4, v7", "v_lshl_add_u32 v7, v13, 10, v7",
        "s_lshl_b32 s29, s25, 17", "s_lshl_b32 s30, s24, 15", "s_add_u32 s29, s29, s30",
        "v_add_u32 v7, s29, v7", "v_xor_b32 v8, 64, v7", "v_add_u32 v8, 8192, v8")
    k.e("v_lshlrev_b32 v13, 2, v14", "v_and_b32 v15, 15, v1", "v_xor_b32 v9, v15, v13", "v_lshlrev_b32 v9, 4, v9",
        "s_lshl_b32 s30, s24, 3", "v_add_u32 v13, s30, v14", "v_mul_u32_u24 v13, 3584, v13", "v_add_u32 v9, v9, v13",
        "s_lshl_b32 s30, s26, 8", "v_add_u32 v9, s30, v9")
    k.e(f"s_lshl_b32 s31, s24, 12", f"s_add_u32 s31, s31, {XB}", "s_lshl_b32 s32, s24, 11")
    def xd(v):
        return [dma(SX, 7 + (i & 1), 31, (v % 2)*16384 + i*1024, 33, xoff + v*128 + (i >> 1)*16384, ("X", v)) for i in range(4)]
    def wd(u):
        out = []
        for i in range(2):
            for p, sr in enumerate((SG, SU)):
                out.append(dma(sr, 9, 32, (u % 3)*16384 + p*8192 + i*1024, 33, (u*32 + 4*i)*3584, ("W", u)))
        return out
    emit_groups(k, xd(0) + wd(0) + wd(1))
    if pre_loop: pre_loop()
    k.e("s_lshl_b32 s36, s27, 6", "v_add_u32 v13, s36, v11", "v_bfe_u32 v14, v13, 1, 3", "v_xor_b32 v14, v14, v12",
        "v_lshlrev_b32 v14, 4, v14", "v_lshl_add_u32 v2, v13, 7, v14", f"v_add_u32 v2, {XB}, v2",
        "v_xor_b32 v3, 32, v2", "v_xor_b32 v4, 64, v2", "v_xor_b32 v5, 96, v2")
    k.e("v_bfe_u32 v15, v1, 2, 2", "v_lshl_add_u32 v13, v12, 3, v15", "v_lshlrev_b32 v6, 8, v13",
        "v_bfe_u32 v13, v1, 4, 1", "v_lshlrev_b32 v13, 1, v13", "v_bfe_u32 v14, v1, 1, 1", "v_add_u32 v13, v13, v14",
        "s_lshl_b32 s36, s28, 3", "v_add_u32 v13, s36, v13", "v_lshlrev_b32 v15, 2, v15",
        "v_xor_b32 v13, v13, v15", "v_lshl_add_u32 v6, v13, 4, v6", "v_and_b32 v14, 1, v1", "v_lshl_add_u32 v6, v14, 3, v6",
        "v_xor_b32 v10, 64, v6")
    ACC = 128
    if not norm:
        for i in range(ACC, ACC + 128): k.e(f"v_mov_b32 v{i}, 0")
    def fr(st): return 16 + 24*st
    def acc(part, b, tb): return ACC + 16*(part*4 + b*2 + tb)
    def reads(g, st):
        b0 = fr(st); u = g >> 1; v = g >> 2
        out = []
        def wr(part, b):
            d = b0 + 8 + 8*part + 4*b
            o = (u % 3)*16384 + part*8192 + (g & 1)*4096
            av = 6 if b == 0 else 10
            return [(f"ds_read_b64_tr_b16 v[{d}:{d+1}], v{av} offset:{o}", f"W{part}{b}"),
                    (f"ds_read_b64_tr_b16 v[{d+2}:{d+3}], v{av} offset:{o+1024}", f"W{part}{b}")]
        def xr(tb): return [(f"ds_read_b128 v[{b0+4*tb}:{b0+4*tb+3}], v{2 + (g & 3)} offset:{(v % 2)*16384 + tb*4096}", f"X{tb}")]
        out = xr(0) + wr(0, 0) + xr(1) + wr(0, 1) + wr(1, 0) + wr(1, 1)
        return out
    def mf(b0, first=False):
        out = []
        for part in range(2):
            for b in range(2):
                for tb in range(2):
                    a = acc(part, b, tb); w = b0 + 8 + 8*part + 4*b; x = b0 + 4*tb
                    c = "0" if first else f"v[{a}:{a+15}]"
                    out.append((f"{MF} v[{a}:{a+15}], v[{w}:{w+3}], v[{x}:{x+3}], {c}", [f"X{tb}", f"W{part}{b}"]))
        return out
    def mfmas(g, st): return mf(fr(st), first=(norm and g == 0))
    def dmas(u):
        out = []
        if u + 2 < 16: out += wd(u + 2)
        if u % 2 == 0 and u//2 + 1 < 8: out += xd(u//2 + 1)
        return out
    if not norm:
        for i in range(64, 88): k.e(f"v_mov_b32 v{i}, 0")
        k.e("s_lshl_b32 s34, s25, 7", "s_lshl_b32 s35, s27, 6", "s_add_u32 s34, s34, s35",
            "v_add_u32 v13, s34, v11", "v_lshlrev_b32 v13, 5, v13")
        for tb in range(2):
            k.vmem(f"buffer_load_dwordx2 v[{88+2*tb}:{89+2*tb}], v13, s[{SWS}:{SWS+3}], 0 offen offset:{WS_TOK+16+1024*tb} {sc1}", "ex")
        k.e("s_lshl_b32 s35, s26, 7", "s_lshl_b32 s36, s28, 6", "s_add_u32 s35, s35, s36",
            "v_add_u32 v14, s35, v11", "v_lshlrev_b32 v14, 4, v14", f"s_mov_b32 s36, {WS_COL + 1536*16}", f"s_mov_b32 s37, {WS_COL + 3328*16}",
            "s_mov_b64 exec, 0xffffffff")
        for tb in range(2):
            k.vmem(f"buffer_load_dwordx4 v[{64+4*tb}:{67+4*tb}], v13, s[{SWS}:{SWS+3}], 0 offen offset:{WS_TOK+1024*tb} {sc1}", "ex")
        for part in range(2):
            for b in range(2):
                d = 72 + 8*part + 4*b
                k.vmem(f"buffer_load_dwordx4 v[{d}:{d+3}], v14, s[{SWS}:{SWS+3}], s{36+part} offen offset:{512*b} {sc1}", "ex")
        k.e("s_mov_b64 exec, -1")
    k.stamp(1)
    gemm_loop(k, 16, mfmas, reads, dmas, lambda u: [("W", u), ("X", u >> 1)], dbg=True)
    k.stamp(2)
    if epi_prio is not None: k.e(f"s_setprio {epi_prio}")
    if post_loop: post_loop()
    if st_sc1 is None: st_sc1 = sc1
    if not norm:
        k.wait_vm("ex")
        for (t, _) in mf(64): k.e(t)
        k.e(f"v_mul_f32 v92, 0x{f2u(LOG2E):08x}, v88", f"v_mul_f32 v93, 0x{f2u(LOG2E):08x}, v90")
    else:
        k.e(f"s_mov_b32 s38, 0x{f2u(-LOG2E):08x}")
    k.e("v_lshlrev_b32 v10, 4, v1",
        "s_lshl_b32 s36, s25, 2", "s_lshl_b32 s37, s27, 1", "s_add_u32 s36, s36, s37", "s_mul_i32 s36, s36, 112",
        "s_lshl_b32 s37, s26, 3", "s_add_u32 s36, s36, s37", "s_lshl_b32 s37, s28, 2", "s_add_u32 s36, s36, s37",
        "s_lshl_b32 s36, s36, 10", f"s_add_u32 s36, s36, 0x{WS_HF:x}")
    k.e("s_nop 4")
    n = 0
    for b in range(2):
        for tb in range(2):
            g = acc(0, b, tb); uu = acc(1, b, tb)
            A = 92 + tb; SD = 89 + 2*tb
            if not norm:
                for r in range(16): k.e(f"v_mul_f32 v{g+r}, v{g+r}, v{A}")
                for r in range(16): k.e(f"v_exp_f32 v{g+r}, -v{g+r}")
                for r in range(16): k.e(f"v_fma_f32 v{g+r}, v{g+r}, v{SD}, v{SD}")
            else:
                for r in range(16): k.e(f"v_mul_f32 v{g+r}, s38, v{g+r}")
                for r in range(16): k.e(f"v_exp_f32 v{g+r}, v{g+r}")
                for r in range(16): k.e(f"v_add_f32 v{g+r}, 1.0, v{g+r}")
            for r in range(16): k.e(f"v_rcp_f32 v{g+r}, v{g+r}")
            for r in range(16): k.e(f"v_mul_f32 v{g+r}, v{g+r}, v{uu+r}")
            for j in range(2):
                d = 16 + 4*(n % 8); n += 1
                for i in range(4): k.e(f"v_cvt_pk_bf16_f32 v{d+i}, v{g+8*j+2*i}, v{g+8*j+2*i+1}")
                k.e(f"s_add_u32 s37, s36, {(tb*112 + b*2 + j)*1024}")
                k.vmem(f"buffer_store_dwordx4 v[{d}:{d+3}], v10, s[{SWS}:{SWS+3}], s37 offen {st_sc1}", "st")

def k1_kernel():
    k = KV("k1_gemm_kernel", nvgpr=256)
    k.e("s_cmp_ge_u32 s2, 480", f"s_cbranch_scc1 L_end_{k.name}")
    fx = srd(k, 8, 0, SZ_X) + srd(k, 20, 72, WS_SIZE)
    k.e("s_cmp_ge_u32 s2, 256", "s_cbranch_scc1 L_k1_e3")
    fx1 = srd(k, 12, 8, SZ_WQKV)
    k.e("s_waitcnt lgkmcnt(0)"); k.e(*(fx + fx1))
    k.e("s_and_b32 s26, s2, 7", "s_lshr_b32 s25, s2, 3")
    k.stamp(0)
    e1_body(k)
    k.wait_vm_all()
    k.stamp(3); k.stamp_out(4, 0); k.wait_vm_all()
    k.e("s_endpgm")
    k.label("L_k1_e3")
    k.vm = []; k.lg = []
    fx3 = srd(k, 12, 32, SZ_WG) + srd(k, 16, 40, SZ_WG)
    k.e("s_waitcnt lgkmcnt(0)"); k.e(*(fx + fx3))
    k.e("s_sub_u32 s3, s2, 256", "s_and_b32 s4, s3, 7", "s_lshr_b32 s5, s3, 3", "s_mul_i32 s4, s4, 28", "s_add_u32 s4, s4, s5",
        "s_lshr_b32 s26, s4, 4", "s_and_b32 s25, s4, 15")
    k.stamp(0)
    e3_body(k)
    k.wait_vm_all()
    k.stamp(3); k.stamp_out(4, 0); k.wait_vm_all()
    k.label(f"L_end_{k.name}")
    k.e("s_endpgm")
    return k

BIAS_M = 90.0
def e2_body(k, SWS=20, sc1="", tag="e2", bias=BIAS_M, force_fb=False, pre_hook=None, sparse_ones=True, st_sc1=None, touch=False, oflag=False):
    SA, SB, OA, OB, CA, CB, PA, PB, QA, QB = 64, 80, 96, 112, 128, 144, 160, 168, 176, 180
    KB_ = [184, 188]; VB_ = [192, 200]
    SLOT = 12288
    S = [SA, SB]; O = [OA, OB]; C = [CA, CB]; P = [PA, PB]; Q = [QA, QB]
    k.e("v_and_b32 v1, 63, v0", "v_lshrrev_b32 v10, 6, v0", "s_nop 0", "v_readfirstlane_b32 s24, v10")
    k.e("v_lshlrev_b32 v2, 4, v1")
    k.e("v_lshrrev_b32 v3, 5, v1", "v_lshlrev_b32 v3, 8, v3", "v_and_b32 v4, 15, v1", "v_lshl_add_u32 v3, v4, 4, v3")
    k.e("s_mov_b32 s28, 0x0000ffff", "s_mov_b32 s29, 0x0000ffff")
    k.e("s_lshl_b32 s34, s24, 10", "v_add_u32 v14, s34, v2", f"s_add_u32 s34, s34, 0x{WS_VF - WS_KF - 1024:x}", "v_add_u32 v15, s34, v3",
        "v_subrev_u32 v16, 512, v15")
    k.e("s_lshl_b32 s33, s25, 16", f"s_add_u32 s30, s33, 0x{WS_KF:x}", "s_mul_i32 s32, s24, 3072")
    def chunk_dma_items(slot):
        return [("s", f"s_add_u32 m0, s32, {slot*SLOT}"),
                ("s", "s_nop 0"),
                ("v", f"buffer_load_dwordx4 v14, s[{SWS}:{SWS+3}], s30 offen {sc1} lds"),
                ("s", "s_mov_b64 exec, s[28:29]"),
                ("v", f"buffer_load_dwordx4 v15, s[{SWS}:{SWS+3}], s30 offen offset:1024 {sc1} lds"),
                ("v", f"buffer_load_dwordx4 v16, s[{SWS}:{SWS+3}], s30 offen offset:2048 {sc1} lds"),
                ("s", "s_mov_b64 exec, -1"),
                ("s", "s_add_u32 s30, s30, 4096")]
    def chunk_dma(slot):
        for kind, t in chunk_dma_items(slot):
            if kind == "v": k.vmem(t, "c")
            else: k.e(t)
    if sparse_ones:
        k.e("v_and_b32 v9, 27, v1", "v_cmp_eq_u32 vcc, 16, v9", "v_mov_b32 v4, 0x3f803f80", "v_mov_b32 v5, 0", "s_nop 1", "v_cndmask_b32 v4, v5, v4, vcc")
    else:
        k.e("v_mov_b32 v4, 0x3f803f80")
    k.e("v_mov_b32 v5, v4", "v_mov_b32 v6, v4", "v_mov_b32 v7, v4",
        f"s_mul_i32 s33, s24, {SLOT}", "v_add_u32 v8, s33, v2", "s_mov_b32 s38, 0xffff0000", "s_mov_b32 s39, 0xffff0000", "s_mov_b64 exec, s[38:39]")
    for kb in range(4):
        for g in range(2): k.ds(f"ds_write_b128 v8, v[4:7] offset:{kb*3072 + 1024 + g*1024}")
    k.e("s_mov_b64 exec, -1")
    if pre_hook: pre_hook()
    k.e("s_lshl_b32 s36, s26, 3", "s_lshl_b32 s37, s24, 1", "s_add_u32 s36, s36, s37",
        "s_lshl_b32 s37, s25, 6", "s_add_u32 s37, s37, s36", "s_lshl_b32 s37, s37, 10", f"s_add_u32 s37, s37, 0x{WS_QF:x}")
    chunk_dma(0)
    k.vmem(f"buffer_load_dwordx4 v[{QA}:{QA+3}], v2, s[{SWS}:{SWS+3}], s37 offen {sc1}", "q")
    k.vmem(f"buffer_load_dwordx4 v[{QB}:{QB+3}], v2, s[{SWS}:{SWS+3}], s37 offen offset:1024 {sc1}", "q")
    chunk_dma(1); chunk_dma(2)
    if touch:
        k.e("s_and_b32 s36, s24, 1", f"s_mul_i32 s36, s36, 0x{WS_VF - WS_KF:x}", "s_lshl_b32 s37, s26, 13", "s_add_u32 s36, s36, s37",
            "s_lshl_b32 s37, s25, 16", "s_add_u32 s36, s36, s37", f"s_add_u32 s36, s36, 0x{WS_KF:x}", "v_lshlrev_b32 v20, 7, v1")
        k.vmem(f"buffer_load_dword v21, v20, s[{SWS}:{SWS+3}], s36 offen", "touch")
    for i in range(16):
        k.e(f"v_mov_b32 v{OA+i}, 0", f"v_mov_b32 v{OB+i}, 0")
    for i in range(8): k.e(f"v_mov_b32 v{PB+i}, 0", f"v_mov_b32 v{VB_[1]+i}, 0")
    k.wait_vm("q")
    k.wait_lg_all()
    k.e("s_barrier")
    k.ds(f"ds_read_b128 v[{KB_[0]}:{KB_[0]+3}], v2 offset:0")
    k.ds(f"ds_read_b128 v[{KB_[1]}:{KB_[1]+3}], v2 offset:3072")
    k.wait_lg_all()
    k.e(f"{MF} v[{SA}:{SA+15}], v[{KB_[0]}:{KB_[0]+3}], v[{QA}:{QA+3}], 0",
        f"{MF} v[{SB}:{SB+15}], v[{KB_[0]}:{KB_[0]+3}], v[{QB}:{QB+3}], 0",
        f"{MF} v[{CA}:{CA+15}], v[{KB_[1]}:{KB_[1]+3}], v[{QA}:{QA+3}], 0",
        f"{MF} v[{CB}:{CB+15}], v[{KB_[1]}:{KB_[1]+3}], v[{QB}:{QB+3}], 0")
    k.e("s_nop 9")
    for x in range(2):
        k.e(f"v_max3_f32 v{10+x}, v{S[x]}, v{S[x]+1}, v{S[x]+2}")
        for i in range(3, 15, 2): k.e(f"v_max3_f32 v{10+x}, v{S[x]+i}, v{S[x]+i+1}, v{10+x}")
        k.e(f"v_max_f32 v{10+x}, v{S[x]+15}, v{10+x}")
    k.e("s_nop 4")
    for x in range(2):
        for i in range(0, 16, 2): k.e(f"v_max3_f32 v{10+x}, v{C[x]+i}, v{C[x]+i+1}, v{10+x}")
    k.e("v_mov_b32 v12, v10", "v_mov_b32 v13, v11", "s_nop 1", "v_permlane32_swap_b32 v10, v12", "v_permlane32_swap_b32 v11, v13", "s_nop 1",
        "v_max_f32 v10, v10, v12", "v_max_f32 v11, v11, v13")
    k.e(f"v_sub_f32 v10, 0x{f2u(-bias):08x}, v10", f"v_sub_f32 v11, 0x{f2u(-bias):08x}, v11")
    for i in range(16): k.e(f"v_mov_b32 v{CA+i}, v10", f"v_mov_b32 v{CB+i}, v11")
    k.e("s_nop 1")
    k.e(f"{MF} v[{SA}:{SA+15}], v[{KB_[0]}:{KB_[0]+3}], v[{QA}:{QA+3}], v[{CA}:{CA+15}]")
    k.e("s_nop 11")

    def valu_seq(x):
        s, p = S[x], P[x]
        out = []
        for i in range(8):
            out.append(f"v_exp_f32 v{s+2*i}, v{s+2*i}"); out.append(f"v_exp_f32 v{s+2*i+1}, v{s+2*i+1}")
            if i >= 1: out.append(f"v_cvt_pk_bf16_f32 v{p+i-1}, v{s+2*i-2}, v{s+2*i-1}")
        out.append(f"v_cvt_pk_bf16_f32 v{p+7}, v{s+14}, v{s+15}")
        return out
    def phase(mf3, x, slots):
        va = valu_seq(x)
        def put(j):
            if mf3[j]: k.e(mf3[j])
            for t in slots[j]: k.e(t)
        put(0)
        for i, t in enumerate(va):
            k.e(t)
            if i == 5: put(1)
            if i == 13: put(2)
    def pvs(x, vb):
        return [f"{MF} v[{O[x]}:{O[x]+15}], v[{vb}:{vb+3}], v[{P[x]}:{P[x]+3}], v[{O[x]}:{O[x]+15}]",
                f"{MF} v[{O[x]}:{O[x]+15}], v[{vb+4}:{vb+7}], v[{P[x]+4}:{P[x]+7}], v[{O[x]}:{O[x]+15}]"]
    def koff(c4, kk):
        n = c4*4 + kk
        return ((n // 4) % 4)*SLOT + (n % 4)*3072
    def block(c4, kk, kblk_left, sync, do_dma):
        par = kk & 1
        vo = koff(c4, kk) + 1024
        sA = [[f"ds_read_b128 v[{VB_[par]}:{VB_[par]+3}], v2 offset:{vo}"],
              [f"ds_read_b128 v[{VB_[par]+4}:{VB_[par]+7}], v2 offset:{vo+1024}"],
              ["s_waitcnt lgkmcnt(1)"]]
        if sync is not None: sA[2] = [f"s_waitcnt vmcnt({sync}) lgkmcnt(1)", "s_barrier"]
        pv = pvs(1, VB_[par ^ 1])
        phase([f"{MF} v[{SB}:{SB+15}], v[{KB_[par]}:{KB_[par]+3}], v[{QB}:{QB+3}], v[{CB}:{CB+15}]", pv[0], pv[1]], 0, sA)
        fm = None if kblk_left < 1 else f"{MF} v[{SA}:{SA+15}], v[{KB_[par^1]}:{KB_[par^1]+3}], v[{QA}:{QA+3}], v[{CA}:{CA+15}]"
        sB = [[], [], []]
        if kblk_left >= 2:
            sB[0] = [f"ds_read_b128 v[{KB_[par]}:{KB_[par]+3}], v2 offset:{koff(c4, kk + 2)}"]
            sB[1] = ["s_waitcnt lgkmcnt(1)"]
        else:
            sB[0] = ["s_waitcnt lgkmcnt(0)"]
        if do_dma:
            it = [t for _, t in chunk_dma_items((c4 + 3) % 4)]
            sB[1] = sB[1] + it[0:3]
            sB[2] = it[3:]
        pv = pvs(0, VB_[par])
        phase([fm, pv[0], pv[1]], 1, sB)
    k.vm = []; k.lg = []
    k.stamp(1)
    k.e("s_mov_b32 s36, 3")
    L = f"L_{tag}_loop"
    k.label(L)
    for c4 in range(4):
        for kk in range(4):
            block(c4, kk, 99, 3 if kk == 2 else None, kk == 2)
    k.e("s_sub_u32 s36, s36, 1", "s_cmp_lg_u32 s36, 0", f"s_cbranch_scc1 {L}")
    for c4 in range(4):
        for kk in range(4):
            sync = None; dm = False
            if kk == 2:
                if c4 == 0: sync, dm = 3, True
                elif c4 == 1: sync = 3
                elif c4 == 2: sync = 0
            block(c4, kk, (3 - c4)*4 + (3 - kk), sync, dm)
    k.vm = []
    k.stamp(2)
    k.e("s_nop 1")
    for t in pvs(1, VB_[1]): k.e(t)
    k.e("s_nop 11")
    for x in range(2):
        k.e(f"v_add_f32 v{10+x}, v{O[x]}, v{O[x]+8}")
        for i in range(1, 8): k.e(f"v_add_f32 v{10+x}, v{10+x}, v{O[x]+i}")
    k.e("v_add_f32 v10, v10, v11", "s_movk_i32 s33, 0x207", "v_cmp_class_f32 vcc, v10, s33")
    if force_fb: k.e("s_mov_b64 vcc, -1")
    k.e("s_nop 4", f"s_cbranch_vccnz L_{tag}_fb")
    k.label(f"L_{tag}_fin")
    for x in range(2): k.e(f"v_rcp_f32 v{10+x}, v{O[x]+8}")
    k.e("s_nop 0")
    k.e("s_lshl_b32 s36, s26, 3", "s_lshl_b32 s37, s24, 1", "s_add_u32 s36, s36, s37", "s_lshl_b32 s36, s36, 5", "s_add_u32 s36, s36, s25",
        "s_lshl_b32 s36, s36, 10", f"s_add_u32 s36, s36, 0x{WS_OF:x}")
    for x in range(2):
        for i in range(8): k.e(f"v_mul_f32 v{O[x]+i}, v{O[x]+i}, v{10+x}")
        for i in range(4): k.e(f"v_cvt_pk_bf16_f32 v{P[x]+i}, v{O[x]+2*i}, v{O[x]+2*i+1}")
        k.vmem(f"buffer_store_dwordx4 v[{P[x]}:{P[x]+3}], v2, s[{SWS}:{SWS+3}], s36 offen {sc1 if st_sc1 is None else st_sc1}", "st")
        if x == 0: k.e("s_add_u32 s36, s36, 32768")
    if oflag == "ep":
        k.e("s_lshl_b32 s36, s26, 2", "s_add_u32 s36, s36, s24", "s_lshl_b32 s36, s36, 8", "s_lshl_b32 s37, s25, 3", "s_add_u32 s36, s36, s37",
            f"s_add_u32 s36, s36, 0x{FLG_O8:x}", "v_mov_b32 v12, s36", f"v_mov_b32 v14, s{SEP}", f"v_mov_b32 v15, s{SEP+1}", "s_mov_b64 exec, 1")
        k.vmem(f"buffer_store_dwordx2 v[14:15], v12, s[{SWS}:{SWS+3}], 0 offen sc1", "st")
        k.e("s_mov_b64 exec, -1")
    elif oflag:
        k.e("s_lshl_b32 s36, s26, 2", "s_add_u32 s36, s36, s24", "s_lshl_b32 s36, s36, 7", "s_lshl_b32 s37, s25, 2", "s_add_u32 s36, s36, s37",
            f"s_add_u32 s36, s36, 0x{FLG_O:x}", "v_mov_b32 v12, s36", "v_mov_b32 v13, 1", "s_mov_b64 exec, 1")
        k.vmem(f"buffer_store_dword v13, v12, s[{SWS}:{SWS+3}], 0 offen sc1", "st")
        k.e("s_mov_b64 exec, -1")
    k.fb_code = lambda: e2_fallback(k, SWS, sc1, tag, S, O, C, P, Q, KB_, VB_)

def e2_fallback(k, SWS, sc1, tag, S, O, C, P, Q, KB_, VB_):
    k.label(f"L_{tag}_fb")
    KR = KB_[0]; VR = VB_[0]
    k.e("s_lshl_b32 s33, s25, 16", f"s_add_u32 s30, s33, 0x{WS_KF:x}", f"s_add_u32 s31, s33, 0x{WS_VF:x}")
    k.e("v_mov_b32 v10, 0xff800000", "v_mov_b32 v11, 0xff800000", "s_mov_b32 s36, 64", "s_mov_b32 s33, s30")
    k.label(f"L_{tag}_fb1")
    k.e(f"buffer_load_dwordx4 v[{KR}:{KR+3}], v2, s[{SWS}:{SWS+3}], s33 offen {sc1}", "s_waitcnt vmcnt(0)")
    for x in range(2): k.e(f"{MF} v[{S[x]}:{S[x]+15}], v[{KR}:{KR+3}], v[{Q[x]}:{Q[x]+3}], 0")
    k.e("s_nop 11")
    for x in range(2):
        for i in range(0, 16, 2): k.e(f"v_max3_f32 v{10+x}, v{S[x]+i}, v{S[x]+i+1}, v{10+x}")
    k.e("s_add_u32 s33, s33, 1024", "s_sub_u32 s36, s36, 1", "s_cmp_lg_u32 s36, 0", f"s_cbranch_scc1 L_{tag}_fb1")
    k.e("v_mov_b32 v12, v10", "v_mov_b32 v13, v11", "s_nop 1", "v_permlane32_swap_b32 v10, v12", "v_permlane32_swap_b32 v11, v13", "s_nop 1",
        "v_max_f32 v10, v10, v12", "v_max_f32 v11, v11, v13", "v_sub_f32 v10, 0, v10", "v_sub_f32 v11, 0, v11")
    for i in range(16):
        k.e(f"v_mov_b32 v{C[0]+i}, v10", f"v_mov_b32 v{C[1]+i}, v11", f"v_mov_b32 v{O[0]+i}, 0", f"v_mov_b32 v{O[1]+i}, 0")
    for i in range(8): k.e(f"v_mov_b32 v{VR+i}, 0x3f803f80")
    k.e("s_mov_b32 s36, 64")
    k.label(f"L_{tag}_fb2")
    k.e(f"buffer_load_dwordx4 v[{KR}:{KR+3}], v2, s[{SWS}:{SWS+3}], s30 offen {sc1}", "s_mov_b64 exec, s[28:29]",
        f"buffer_load_dwordx4 v[{VR}:{VR+3}], v3, s[{SWS}:{SWS+3}], s31 offen {sc1}",
        f"buffer_load_dwordx4 v[{VR+4}:{VR+7}], v3, s[{SWS}:{SWS+3}], s31 offen offset:512 {sc1}",
        "s_mov_b64 exec, -1", "s_waitcnt vmcnt(0)")
    for x in range(2): k.e(f"{MF} v[{S[x]}:{S[x]+15}], v[{KR}:{KR+3}], v[{Q[x]}:{Q[x]+3}], v[{C[x]}:{C[x]+15}]")
    k.e("s_nop 11")
    for x in range(2):
        for i in range(16): k.e(f"v_exp_f32 v{S[x]+i}, v{S[x]+i}")
        k.e("s_nop 0")
        for i in range(8): k.e(f"v_cvt_pk_bf16_f32 v{P[x]+i}, v{S[x]+2*i}, v{S[x]+2*i+1}")
    k.e("s_nop 1")
    for x in range(2):
        k.e(f"{MF} v[{O[x]}:{O[x]+15}], v[{VR}:{VR+3}], v[{P[x]}:{P[x]+3}], v[{O[x]}:{O[x]+15}]",
            f"{MF} v[{O[x]}:{O[x]+15}], v[{VR+4}:{VR+7}], v[{P[x]+4}:{P[x]+7}], v[{O[x]}:{O[x]+15}]")
    k.e("s_add_u32 s30, s30, 1024", "s_add_u32 s31, s31, 1024", "s_sub_u32 s36, s36, 1", "s_cmp_lg_u32 s36, 0", f"s_cbranch_scc1 L_{tag}_fb2")
    k.e("s_nop 11", f"s_branch L_{tag}_fin")

def k2_kernel(**kw):
    k = KV("k2_attn_kernel", nvgpr=256)
    k.e("s_cmp_ge_u32 s2, 256", f"s_cbranch_scc1 L_end_{k.name}")
    fx = srd(k, 20, 72, WS_SIZE)
    k.e("s_waitcnt lgkmcnt(0)"); k.e(*fx)
    k.e("s_and_b32 s3, s2, 7", "s_lshr_b32 s4, s2, 3", "s_and_b32 s5, s4, 3", "s_lshl_b32 s25, s3, 2", "s_add_u32 s25, s25, s5", "s_lshr_b32 s26, s4, 2")
    k.stamp(0)
    e2_body(k, **kw)
    k.wait_vm_all()
    k.stamp(3); k.stamp_out(4, 0x20000); k.wait_vm_all()
    k.label(f"L_end_{k.name}")
    k.e("s_endpgm")
    k.fb_code()
    return k

def e4_body(k, SD=12, SO=16, SWS=20, SX=8, SOUT=4, sc1="", tag="e4"):
    DEPTH = 8
    ACC = 64
    HR = 128
    WR = 16
    k.e("v_and_b32 v1, 63, v0", "v_lshrrev_b32 v10, 6, v0", "s_nop 0", "v_readfirstlane_b32 s24, v10")
    k.e("v_lshlrev_b32 v2, 4, v1")
    k.e("v_lshrrev_b32 v3, 3, v1", "v_lshlrev_b32 v3, 10, v3", "v_bfe_u32 v4, v1, 4, 1", "v_lshlrev_b32 v4, 2, v4", "v_and_b32 v5, 7, v1",
        "v_xor_b32 v4, v4, v5", "v_lshl_add_u32 v3, v4, 4, v3", "s_lshl_b32 s27, s26, 7", "v_add_u32 v3, s27, v3")
    k.e("v_lshrrev_b32 v4, 5, v1", "v_bfe_u32 v5, v1, 2, 2", "v_lshl_add_u32 v4, v4, 2, v5", "v_lshlrev_b32 v6, 7, v4",
        "v_bfe_u32 v4, v1, 4, 1", "v_lshlrev_b32 v4, 1, v4", "v_bfe_u32 v5, v1, 1, 1", "v_add_u32 v4, v4, v5",
        "v_bfe_u32 v5, v1, 3, 1", "v_lshlrev_b32 v5, 2, v5", "v_xor_b32 v4, v4, v5", "v_lshl_add_u32 v6, v4, 4, v6",
        "v_and_b32 v5, 1, v1", "v_lshl_add_u32 v6, v5, 3, v6", "s_lshl_b32 s28, s24, 14", "v_add_u32 v6, s28, v6", "v_xor_b32 v7, 64, v6")
    k.e("s_mul_i32 s29, s24, 458752",
        "s_mul_i32 s30, s25, 224", "s_mul_i32 s31, s24, 28", "s_add_u32 s30, s30, s31", "s_lshl_b32 s30, s30, 10", f"s_add_u32 s30, s30, 0x{WS_HF:x}",
        "s_lshl_b32 s34, s24, 17",
        "s_lshl_b32 s35, s25, 6", "s_lshl_b32 s31, s24, 3", "s_add_u32 s35, s35, s31", "s_lshl_b32 s35, s35, 10", f"s_add_u32 s35, s35, 0x{WS_OF:x}")
    NS = 36
    def issue(s):
        slot = s % DEPTH
        if s < 28: sr, sb, kk, hb, hstride = SD, 29, s, 30, 112*1024
        else: sr, sb, kk, hb, hstride = SO, 34, s - 28, 35, 32*1024
        for i in range(2):
            k.e(f"s_add_u32 m0, s28, {slot*2048 + i*1024}", f"s_add_u32 s33, s{sb}, {kk*16384 + i*8192}")
            k.vmem(f"buffer_load_dwordx4 v3, s[{sr}:{sr+3}], s33 offen lds", ("W", s))
        for tb in range(2):
            d = HR + slot*8 + 4*tb
            k.e(f"s_add_u32 s33, s{hb}, {kk*1024 + tb*hstride}")
            k.vmem(f"buffer_load_dwordx4 v[{d}:{d+3}], v2, s[{SWS}:{SWS+3}], s33 offen {sc1}", ("H", s))
    def reads(s):
        b = WR + 8*(s & 1); o = (s % DEPTH)*2048
        for cb2 in range(2):
            av = 6 + cb2
            k.ds(f"ds_read_b64_tr_b16 v[{b+4*cb2}:{b+4*cb2+1}], v{av} offset:{o}", ("r", s))
            k.ds(f"ds_read_b64_tr_b16 v[{b+4*cb2+2}:{b+4*cb2+3}], v{av} offset:{o+1024}", ("r", s))
    for s in range(DEPTH): issue(s)
    k.e("v_lshrrev_b32 v8, 3, v0", "s_lshl_b32 s31, s25, 6", "v_add_u32 v8, s31, v8", "v_lshlrev_b32 v8, 10, v8",
        "v_and_b32 v9, 7, v0", "v_lshl_add_u32 v8, v9, 4, v8", "v_add_u32 v8, s27, v8")
    k.vmem(f"buffer_load_dwordx4 v[32:35], v8, s[{SX}:{SX+3}], 0 offen", "x")
    k.e("s_mov_b32 s31, 32768")
    k.vmem(f"buffer_load_dwordx4 v[36:39], v8, s[{SX}:{SX+3}], s31 offen", "x")
    for i in range(64): k.e(f"v_mov_b32 v{ACC+i}, 0")
    k.stamp(1)
    k.wait_vm(("W", 0)); reads(0)
    for s in range(NS):
        if s + 1 < NS:
            k.wait_vm(("W", s + 1)); reads(s + 1)
        k.wait_vm(("H", s)); k.wait_lg(("r", s))
        b = WR + 8*(s & 1); h = HR + (s % DEPTH)*8
        for cb2 in range(2):
            for tb in range(2):
                a = ACC + 16*(cb2*2 + tb)
                k.e(f"{MF} v[{a}:{a+15}], v[{b+4*cb2}:{b+4*cb2+3}], v[{h+4*tb}:{h+4*tb+3}], v[{a}:{a+15}]")
        if s + DEPTH < NS: issue(s + DEPTH)
    k.stamp(2)
    k.e("s_nop 7", "s_barrier")
    RS = 272
    k.e("v_and_b32 v4, 31, v1", f"v_mul_u32_u24 v4, {RS}, v4", "v_lshrrev_b32 v5, 5, v1", "v_lshl_add_u32 v4, v5, 4, v4",
        f"s_mul_i32 s31, s24, {64*RS}", "v_add_u32 v4, s31, v4", "s_nop 3")
    for cb2 in range(2):
        for tb in range(2):
            a = ACC + 16*(cb2*2 + tb)
            for g in range(4):
                k.ds(f"ds_write_b128 v4, v[{a+4*g}:{a+4*g+3}] offset:{tb*32*RS + cb2*128 + g*32}")
    k.wait_lg_all()
    k.e("s_barrier")
    k.e("v_lshrrev_b32 v4, 3, v0", f"v_mul_u32_u24 v4, {RS}, v4", "v_and_b32 v5, 7, v0", "v_lshl_add_u32 v4, v5, 5, v4")
    for half in range(2):
        for w in range(4):
            d = 64 + half*32 + w*8
            for j in range(2):
                k.ds(f"ds_read_b128 v[{d+4*j}:{d+4*j+3}], v4 offset:{w*64*RS + half*32*RS + j*16}", ("rd", half))
    k.wait_vm("x")
    for half in range(2):
        k.wait_lg(("rd", half))
        d = 64 + half*32
        for i in range(8):
            k.e(f"v_add_f32 v{d+i}, v{d+i}, v{d+8+i}", f"v_add_f32 v{d+16+i}, v{d+16+i}, v{d+24+i}")
        for i in range(4):
            xr = 32 + 4*half + i
            k.e(f"v_lshlrev_b32 v{d+8+2*i}, 16, v{xr}", f"v_and_b32 v{d+9+2*i}, 0xffff0000, v{xr}")
        for i in range(8): k.e(f"v_add_f32 v{d+i}, v{d+i}, v{d+16+i}")
        for i in range(8): k.e(f"v_add_f32 v{d+i}, v{d+i}, v{d+8+i}")
        for i in range(4): k.e(f"v_cvt_pk_bf16_f32 v{40+4*half+i}, v{d+2*i}, v{d+2*i+1}")
        if half == 0: k.vmem(f"buffer_store_dwordx4 v[40:43], v8, s[{SOUT}:{SOUT+3}], 0 offen", "st")
        else: k.vmem(f"buffer_store_dwordx4 v[44:47], v8, s[{SOUT}:{SOUT+3}], s31 offen", "st") if False else None
    k.e("s_mov_b32 s31, 32768")
    k.vmem(f"buffer_store_dwordx4 v[44:47], v8, s[{SOUT}:{SOUT+3}], s31 offen", "st")

def k3_kernel():
    k = KV("k3_out_kernel", nvgpr=256)
    k.e("s_cmp_ge_u32 s2, 256", f"s_cbranch_scc1 L_end_{k.name}")
    fx = srd(k, 8, 0, SZ_X) + srd(k, 20, 72, WS_SIZE) + srd(k, 12, 48, SZ_WD) + srd(k, 16, 16, SZ_WO) + srd(k, 4, 56, SZ_X)
    k.e("s_waitcnt lgkmcnt(0)"); k.e(*fx)
    k.e("s_and_b32 s3, s2, 7", "s_lshr_b32 s27, s2, 3", "s_and_b32 s28, s27, 3", "s_lshl_b32 s25, s3, 2", "s_add_u32 s25, s25, s28", "s_lshr_b32 s26, s27, 2")
    k.stamp(0)
    e4_body(k)
    k.wait_vm_all()
    k.stamp(3); k.stamp_out(4, 0x40000); k.wait_vm_all()
    k.label(f"L_end_{k.name}")
    k.e("s_endpgm")
    return k

def stats_role(k, sc1="sc1"):
    k.e("s_cmp_ge_u32 s3, 128", "s_cbranch_scc1 L_st_col")
    row_job(k, 3, 8, 20, sc1=sc1, pre_store=lambda: epoch_issue(k, 74))
    k.wait_vm_all()
    epoch_check(k, 74)
    k.e("s_lshl_b32 s48, s3, 3", f"s_add_u32 s48, s48, 0x{FLG_ROW:x}")
    publish(k, 48)
    k.e("s_branch L_st_done")
    k.label("L_st_col")
    k.vm = []; k.lg = []
    k.e("s_sub_u32 s3, s3, 128")
    k.label("L_st_col2")
    k.e("s_mov_b32 s12, s28", "s_mov_b32 s13, s29", f"s_mov_b32 s14, {SZ_WQKV}", "s_mov_b32 s15, 0x00020000",
        "s_movk_i32 s16, 3072", "s_lshl_b32 s17, s3, 6",
        "s_bfe_u32 s48, s3, 0x30001", "s_lshl_b32 s48, s48, 7", "s_lshr_b32 s49, s3, 4", "s_lshl_b32 s49, s49, 4", "s_add_u32 s48, s48, s49",
        "s_and_b32 s49, s3, 1", "s_lshl_b32 s49, s49, 3", "s_add_u32 s48, s48, s49", f"s_add_u32 s48, s48, 0x{FLG_COLQ:x}",
        "s_cmp_lt_u32 s3, 48", "s_cbranch_scc1 L_st_go",
        "s_mov_b32 s12, s30", "s_mov_b32 s13, s31", f"s_mov_b32 s14, {SZ_WG}", "s_movk_i32 s16, 3584",
        "s_sub_u32 s50, s3, 48", "s_lshl_b32 s17, s50, 6", f"s_mov_b32 s51, 0x{FLG_COLG:x}",
        "s_cmp_lt_u32 s3, 104", "s_cbranch_scc1 L_st_gu",
        "s_mov_b32 s12, s32", "s_mov_b32 s13, s33", "s_sub_u32 s50, s3, 104", "s_lshl_b32 s17, s50, 6", f"s_mov_b32 s51, 0x{FLG_COLG + 32:x}")
    k.label("L_st_gu")
    k.e("s_lshr_b32 s48, s50, 2", "s_lshl_b32 s48, s48, 7", "s_and_b32 s49, s50, 3", "s_lshl_b32 s49, s49, 3", "s_add_u32 s48, s48, s49", "s_add_u32 s48, s48, s51")
    k.label("L_st_go")
    col_job(k, 3, 12, 16, 17, 20, sc1=sc1, pre_store=lambda: epoch_issue(k, 60))
    k.wait_vm_all()
    epoch_check(k, 60)
    publish(k, 48)
    k.e("s_cmp_lt_u32 s3, 96", "s_cbranch_scc1 L_st_done", "s_cmp_ge_u32 s3, 128", "s_cbranch_scc1 L_st_done",
        "s_add_u32 s3, s3, 32", "s_branch L_st_col2")
    k.label("L_st_done")

def kA_kernel(ue=4, up=7, uc=10, name="ka_qkv_kernel"):
    k = KV(name, nvgpr=256)
    k.e("s_cmp_ge_u32 s2, 512", f"s_cbranch_scc1 L_end_{k.name}")
    fx = srd(k, 8, 0, SZ_X) + srd(k, 20, 72, WS_SIZE)
    load_dbg(k)
    wave_id(k)
    k.e("s_cmp_ge_u32 s2, 256", "s_cbranch_scc1 L_ka_g")
    fx1 = srd(k, 12, 8, SZ_WQKV)
    k.e("s_waitcnt lgkmcnt(0)"); k.e(*(fx + fx1))
    epoch_make(k)
    k.e("s_and_b32 s26, s2, 7", "s_lshr_b32 s25, s2, 3")
    k.stamp(0)
    e1_body(k, stats_sync=(ue, up, uc))
    k.wait_vm_all()
    k.stamp(3); k.stamp_out(4, 0); k.wait_vm_all()
    k.e("s_endpgm")
    k.label("L_ka_g")
    k.vm = []; k.lg = []
    k.e("s_load_dwordx2 s[28:29], s[0:1], 8", "s_load_dwordx2 s[30:31], s[0:1], 32", "s_load_dwordx2 s[32:33], s[0:1], 40")
    k.e("s_waitcnt lgkmcnt(0)"); k.e(*fx)
    k.e("s_sub_u32 s3, s2, 256")
    k.stamp(0); k.stamp(1); k.stamp(2)
    stats_role(k)
    k.wait_vm_all()
    k.stamp(3); k.stamp_out(4, 0); k.wait_vm_all()
    k.label(f"L_end_{k.name}")
    k.e("s_endpgm")
    k.emit_tails()
    return k

def prefetch_role(k, jobs, s_idx, nwg):
    for (sr, nb) in jobs:
        per = nb // nwg
        assert per % 4096 == 0 or per % 1024 == 0
        k.e(f"s_mul_i32 s40, s{s_idx}, {per}", "v_lshlrev_b32 v1, 4, v0", "v_add_u32 v1, s40, v1")
        n = per // 4096
        rem = per % 4096
        k.e("s_mov_b32 s41, 0")
        for i in range(n):
            k.vmem(f"buffer_load_dwordx4 v[{4+4*(i%32)}:{7+4*(i%32)}], v1, s[{sr}:{sr+3}], s41 offen", "pf")
            k.e("s_add_u32 s41, s41, 4096")
        if rem:
            k.e(f"v_cmp_gt_u32 vcc, {rem//16}, v0" if rem//16 <= 64 else f"s_movk_i32 s42, {rem//16}\n v_cmp_gt_u32 vcc, s42, v0", "s_and_saveexec_b64 s[44:45], vcc")
            k.vmem(f"buffer_load_dwordx4 v[{4+4*(n%32)}:{7+4*(n%32)}], v1, s[{sr}:{sr+3}], s41 offen", "pf")
            k.e("s_mov_b64 exec, s[44:45]")
    k.wait_vm_all()

def kB_kernel(name="kb_attn_glu_kernel", prio_a=None, prio_g=None, **kw):
    k = KV(name, nvgpr=256)
    k.e("s_cmp_ge_u32 s2, 512", f"s_cbranch_scc1 L_end_{k.name}")
    fx = srd(k, 20, 72, WS_SIZE)
    k.e("s_cmp_ge_u32 s2, 256", "s_cbranch_scc1 L_kb_g")
    k.e("s_waitcnt lgkmcnt(0)"); k.e(*fx)
    if prio_a is not None: k.e(f"s_setprio {prio_a}")
    k.e("s_and_b32 s3, s2, 7", "s_lshr_b32 s4, s2, 3", "s_and_b32 s5, s4, 3", "s_lshl_b32 s25, s3, 2", "s_add_u32 s25, s25, s5", "s_lshr_b32 s26, s4, 2")
    k.stamp(0)
    e2_body(k, **kw)
    k.wait_vm_all()
    k.stamp(3); k.stamp_out(4, 0x20000); k.wait_vm_all()
    k.e("s_endpgm")
    fb = k.fb_code
    k.label("L_kb_g")
    k.vm = []; k.lg = []
    k.e("s_cmp_ge_u32 s2, 480", "s_cbranch_scc1 L_kb_pf")
    fx3 = srd(k, 8, 0, SZ_X) + srd(k, 12, 32, SZ_WG) + srd(k, 16, 40, SZ_WG)
    k.e("s_waitcnt lgkmcnt(0)"); k.e(*(fx + fx3))
    if prio_g is not None: k.e(f"s_setprio {prio_g}")
    k.e("s_sub_u32 s3, s2, 256", "s_and_b32 s4, s3, 7", "s_lshr_b32 s5, s3, 3", "s_mul_i32 s4, s4, 28", "s_add_u32 s4, s4, s5",
        "s_lshr_b32 s26, s4, 4", "s_and_b32 s25, s4, 15")
    k.stamp(0)
    e3_body(k)
    k.wait_vm_all()
    k.stamp(3); k.stamp_out(4, 0x20000); k.wait_vm_all()
    k.e("s_endpgm")
    k.label("L_kb_pf")
    k.vm = []; k.lg = []
    fxp = srd(k, 12, 48, SZ_WD) + srd(k, 16, 16, SZ_WO)
    k.e("s_waitcnt lgkmcnt(0)"); k.e(*fxp)
    k.e("s_sub_u32 s3, s2, 480")
    prefetch_role(k, [(12, SZ_WD), (16, SZ_WO)], 3, 32)
    k.label(f"L_end_{k.name}")
    k.e("s_endpgm")
    fb()
    k.emit_tails()
    return k

WS_XN = 0x1100000
WS_SIZE2 = 0x1300000
def e1n_body(k, SX=8, SW=12, SWS=20, sc1="", NS=7, fine=False, prep=False, l2warm=0, wtouch=None):
    WB = 65536
    assert WB + NS*12288 <= 163840
    k.e("v_and_b32 v1, 63, v0", "v_lshrrev_b32 v10, 6, v0", "s_nop 0", "v_readfirstlane_b32 s24, v10")
    XR = 128
    k.e("v_lshrrev_b32 v13, 3, v1", "v_and_b32 v15, 7, v1", "v_lshlrev_b32 v7, 4, v15", "v_lshl_add_u32 v7, v13, 10, v7",
        "s_lshl_b32 s29, s25, 16", "s_lshl_b32 s30, s24, 14", "s_add_u32 s29, s29, s30", "s_add_u32 s30, s29, 8192")
    for g in range(2):
        for j in range(8):
            d = XR + 32*g + 4*j
            k.vmem(f"buffer_load_dwordx4 v[{d}:{d+3}], v7, s[{SX}:{SX+3}], s{29+g} offen offset:{128*j}", ("x", g))
    k.e("v_and_b32 v11, 31, v1", "v_lshrrev_b32 v12, 5, v1", "v_lshrrev_b32 v14, 4, v1")
    k.e("s_and_b32 s27, s24, 1", "s_lshr_b32 s28, s24, 1")
    k.e("v_and_b32 v14, 1, v14", "v_lshlrev_b32 v14, 2, v14", "v_xor_b32 v9, v15, v14", "v_lshlrev_b32 v9, 4, v9",
        "s_lshl_b32 s31, s24, 3", "v_add_u32 v16, s31, v13", "v_mul_u32_u24 v16, 3072, v16", "v_add_u32 v9, v9, v16",
        "s_lshl_b32 s31, s26, 7", "v_add_u32 v9, s31, v9")
    k.e("s_lshl_b32 s32, s24, 10", f"s_add_u32 s32, s32, {WB}")
    def wd(u):
        return [dma(SW, 9, 32, (u % NS)*12288 + p*4096, 33, u*32*3072, ("W", u), imm=1024*p) for p in range(3)]
    for u in range(NS - 1): emit_groups(k, wd(u))
    if l2warm:
        nrow = (16 - (NS - 1))*32
        per = nrow // 16
        k.e("s_and_b32 s34, s25, 3", "s_lshl_b32 s34, s34, 2", "s_add_u32 s34, s34, s24", f"s_mul_i32 s34, s34, {per*3072}",
            f"s_add_u32 s34, s34, {(NS-1)*32*3072}", f"s_mul_i32 s35, s24, {8*3072}", "s_sub_u32 s34, s34, s35",
            "s_lshl_b32 s35, s24, 10", f"s_add_u32 m0, s35, {WB + NS*12288}")
        for r0 in range(0, per, 8):
            part = r0 + 8 > per
            assert (not part) or per % 8 == 4
            if part: k.e("s_mov_b64 exec, 0xffffffff")
            for p in range(3):
                k.e(f"s_add_u32 s35, s34, {r0*3072 + 1024*p}")
                k.vmem(f"buffer_load_dwordx4 v9, s[{SW}:{SW+3}], s35 offen lds", "warm")
            if part: k.e("s_mov_b64 exec, -1")
    if prep:
        k.e("v_mov_b32 v40, -1", "v_mov_b32 v41, -1", "v_mov_b32 v42, -1", "v_mov_b32 v43, -1", "v_lshlrev_b32 v48, 4, v0",
            "s_lshl_b32 s34, s2, 13", f"s_add_u32 s34, s34, 0x{WS_OF:x}")
        k.vmem(f"buffer_store_dwordx4 v[40:43], v48, s[{SWS}:{SWS+3}], s34 offen", "prep")
        k.e("s_add_u32 s34, s34, 4096")
        k.vmem(f"buffer_store_dwordx4 v[40:43], v48, s[{SWS}:{SWS+3}], s34 offen", "prep")
        Lp = k.newlabel("prep")
        k.e("v_mov_b32 v44, 0", "v_mov_b32 v45, 0", "v_mov_b32 v46, 0", "v_mov_b32 v47, 0", f"s_mov_b32 s34, 0x{FLG_H:x}",
            "s_lshl_b32 s35, s2, 12", "s_add_u32 s34, s34, s35", "s_cmp_ge_u32 s2, 2", f"s_cbranch_scc1 {Lp}")
        k.vmem(f"buffer_store_dwordx4 v[44:47], v48, s[{SWS}:{SWS+3}], s34 offen", "prep", opt=True)
        k.label(Lp)
    k.e("v_lshrrev_b32 v16, 1, v13", "v_xor_b32 v16, v15, v16", "v_lshlrev_b32 v16, 4, v16", "v_lshl_add_u32 v16, v13, 7, v16",
        "s_lshl_b32 s31, s24, 11", "v_add_u32 v16, s31, v16", "v_xor_b32 v17, 64, v16", "v_add_u32 v17, 1024, v17")
    k.e("s_lshl_b32 s36, s27, 5", "v_add_u32 v18, s36, v11", "v_bfe_u32 v19, v18, 1, 3", "v_xor_b32 v19, v19, v12",
        "v_lshlrev_b32 v19, 4, v19", "v_lshl_add_u32 v2, v18, 7, v19",
        "v_xor_b32 v3, 32, v2", "v_xor_b32 v4, 64, v2", "v_xor_b32 v5, 96, v2")
    k.e("v_bfe_u32 v18, v1, 2, 2", "v_lshl_add_u32 v18, v12, 3, v18", "v_lshlrev_b32 v6, 7, v18",
        "v_bfe_u32 v18, v1, 4, 1", "v_lshlrev_b32 v18, 1, v18", "v_bfe_u32 v19, v1, 1, 1", "v_add_u32 v18, v18, v19",
        "s_lshl_b32 s36, s28, 2", "v_add_u32 v18, s36, v18", "v_bfe_u32 v19, v1, 3, 1", "v_lshlrev_b32 v19, 2, v19",
        "v_xor_b32 v18, v18, v19", "v_lshl_add_u32 v6, v18, 4, v6", "v_and_b32 v19, 1, v1", "v_lshl_add_u32 v6, v19, 3, v6",
        f"v_add_u32 v6, {WB}, v6", f"v_add_u32 v8, {5*12288}, v6")
    F = [64, 192]
    k.e("s_mov_b32 s42, 0x3f803f80", "s_mov_b32 s43, 0x00003f80", "s_mov_b32 s44, 0x3f800000")
    A = [20, 24]
    for g in range(2):
        k.wait_vm(("x", g))
        for i in range(32):
            c = f"v{A[g] + i % 4}" if i >= 4 else "0"
            k.e(f"v_dot2_f32_bf16 v{A[g] + i % 4}, v{XR + 32*g + i}, s42, {c}")
    if fine: k.stamp(1)
    k.e("s_nop 2")
    def red8(regs):
        for b in regs: k.e(f"v_add_f32 v{b}, v{b}, v{b+1}", f"v_add_f32 v{b+2}, v{b+2}, v{b+3}")
        for b in regs: k.e(f"v_add_f32 v{b}, v{b}, v{b+2}")
        k.e("s_nop 1")
        for mode in ("quad_perm:[1,0,3,2]", "quad_perm:[2,3,0,1]", "row_half_mirror"):
            for b in regs: k.e(f"v_add_f32_dpp v{b}, v{b}, v{b} {mode} row_mask:0xf bank_mask:0xf")
            k.e("s_nop 1")
    red8(A)
    for g in range(2): k.e(f"v_mul_f32 v{A[g]}, 0xbb000000, v{A[g]}")
    k.e("s_nop 0")
    for g in range(2):
        for i in range(32):
            k.e(f"v_dot2_f32_bf16 v{F[g] + 2*i}, v{XR + 32*g + i}, s43, v{A[g]}", f"v_dot2_f32_bf16 v{F[g] + 2*i + 1}, v{XR + 32*g + i}, s44, v{A[g]}")
    k.e("s_nop 2")
    B = [28, 32]
    for g in range(2):
        for i in range(32):
            a = B[g] + 2*(i % 2); d = F[g] + 2*i
            if i < 2: k.e(f"v_pk_mul_f32 v[{a}:{a+1}], v[{d}:{d+1}], v[{d}:{d+1}]")
            else: k.e(f"v_pk_fma_f32 v[{a}:{a+1}], v[{d}:{d+1}], v[{d}:{d+1}], v[{a}:{a+1}]")
    red8(B)
    k.e("v_mov_b32 v36, 0x3727c5ac", "v_mov_b32 v38, 0x3727c5ac")
    for g in range(2): k.e(f"v_fmac_f32 v{36+2*g}, 0x3b000000, v{B[g]}")
    for g in range(2): k.e(f"v_rsq_f32 v{36+2*g}, v{36+2*g}")
    k.e("s_nop 0")
    for g in range(2):
        for j in range(8):
            for i in range(4):
                d = F[g] + 2*(4*j + i)
                k.e(f"v_pk_mul_f32 v[{d}:{d+1}], v[{d}:{d+1}], v[{36+2*g}:{37+2*g}] op_sel_hi:[1,0]")
            for i in range(4):
                d = F[g] + 2*(4*j + i)
                k.e(f"v_cvt_pk_bf16_f32 v{XR + 32*g + 4*j + i}, v{d}, v{d+1}")
            k.ds(f"ds_write_b128 v{16+g}, v[{XR + 32*g + 4*j}:{XR + 32*g + 4*j + 3}] offset:{8192*j}")
    Ls = k.newlabel("xn"); L1 = k.newlabel("xn1")
    k.e("s_lshr_b32 s36, s26, 1", "s_cmp_lg_u32 s36, s24", f"s_cbranch_scc1 {Ls}",
        "s_lshl_b32 s36, s25, 16", "s_lshl_b32 s37, s26, 13", "s_add_u32 s36, s36, s37", f"s_add_u32 s36, s36, 0x{WS_XN:x}",
        "s_bitcmp1_b32 s26, 0", f"s_cbranch_scc1 {L1}")
    for g in range(2):
        if g == 1: k.label(L1)
        for j in range(8):
            d = XR + 32*g + 4*j
            k.vmem(f"buffer_store_dwordx4 v[{d}:{d+3}], v7, s[{SWS}:{SWS+3}], s36 offen offset:{128*j} {sc1}", "xn", opt=True)
        if g == 0: k.e(f"s_branch {Ls}")
    k.label(Ls)
    def fr(st): return 16 + 16*st + 24
    def reads(g, st):
        b = fr(st); u = g >> 1; v = g >> 2
        out = [(f"ds_read_b128 v[{b}:{b+3}], v{2 + (g & 3)} offset:{v*8192}", "X")]
        sl = u % NS
        av, so = (6, sl*12288) if sl < 5 else (8, (sl - 5)*12288)
        for p in range(3):
            o = so + p*4096 + (g & 1)*2048
            out.append((f"ds_read_b64_tr_b16 v[{b+4+4*p}:{b+5+4*p}], v{av} offset:{o}", f"W{p}"))
            out.append((f"ds_read_b64_tr_b16 v[{b+6+4*p}:{b+7+4*p}], v{av} offset:{o+512}", f"W{p}"))
        return out
    ACC = 80
    def mfmas(g, st):
        out = []
        b_x = fr(st); b_w = b_x + 4
        for p in range(3):
            a = ACC + 16*p
            w = f"v[{b_w+4*p}:{b_w+4*p+3}]"; x = f"v[{b_x}:{b_x+3}]"
            A_, B_ = (w, x) if p < 2 else (x, w)
            c = "0" if g == 0 else f"v[{a}:{a+15}]"
            out.append((f"{MF} v[{a}:{a+15}], {A_}, {B_}, {c}", ["X", f"W{p}"]))
        return out
    def dmas(u):
        return wd(u + NS - 1) if u + NS - 1 < 16 else []
    hooks = None
    if wtouch:
        def h_t():
            k.e("s_lshl_b32 s34, s2, 8", "v_add_u32 v72, s34, v0", "v_lshlrev_b32 v72, 7, v72", "s_lshl_b32 s35, s24, 10", f"s_add_u32 m0, s35, {WB + NS*12288}")
            start = 0
            for i, (sr, nb) in enumerate(wtouch):
                k.e(f"v_subrev_u32 v{73+i}, 0x{start:x}, v72")
                k.vmem(f"buffer_load_dword v{73+i}, s[{sr}:{sr+3}], 0 offen lds", "wt")
                start += nb
            assert start <= 65536*128
        hooks = {16 - NS: [h_t]}
    k.stamp(2 if fine else 1)
    gemm_loop(k, 16, mfmas, reads, dmas, lambda u: [("W", u)], hooks=hooks)
    if not fine: k.stamp(2)
    k.e("v_lshlrev_b32 v10, 4, v1",
        "s_lshl_b32 s36, s26, 2", "s_lshl_b32 s37, s28, 1", "s_add_u32 s36, s36, s37", "s_lshl_b32 s36, s36, 16",
        "s_lshl_b32 s37, s25, 1", "s_add_u32 s37, s37, s27", "s_lshl_b32 s37, s37, 10", "s_add_u32 s36, s36, s37")
    k.e("v_lshrrev_b32 v13, 4, v11", "v_lshlrev_b32 v13, 16, v13", "v_lshl_add_u32 v13, v12, 8, v13", "v_and_b32 v14, 15, v11",
        "v_lshl_add_u32 v13, v14, 4, v13", f"s_mov_b32 s38, 0x{f2u(0.25*LOG2E):08x}")
    k.e("s_nop 7")
    for p, base in enumerate((WS_QF, WS_KF)):
        a = ACC + 16*p
        if p == 0:
            for r in range(16): k.e(f"v_mul_f32 v{a+r}, s38, v{a+r}")
        for j in range(2):
            d = 16 + 8*p + 4*j
            for i in range(4): k.e(f"v_cvt_pk_bf16_f32 v{d+i}, v{a+8*j+2*i}, v{a+8*j+2*i+1}")
            k.e(f"s_add_u32 s37, s36, 0x{base + j*65536:x}")
            k.vmem(f"buffer_store_dwordx4 v[{d}:{d+3}], v10, s[{SWS}:{SWS+3}], s37 offen {sc1}", "st")
    a = ACC + 32
    k.e(f"s_add_u32 s37, s36, 0x{WS_VF:x}")
    for j in range(2):
        d = 32 + 4*j
        for i in range(4): k.e(f"v_cvt_pk_bf16_f32 v{d+i}, v{a+8*j+2*i}, v{a+8*j+2*i+1}")
        k.vmem(f"buffer_store_dwordx4 v[{d}:{d+3}], v13, s[{SWS}:{SWS+3}], s37 offen offset:{512*j} {sc1}", "st")

def kA2_kernel(name="ka_qkv_kernel", mapping=0, wtouch=False, **kw):
    k = KV(name, nvgpr=256)
    k.e("s_cmp_ge_u32 s2, 256", f"s_cbranch_scc1 L_end_{k.name}")
    fx = srd(k, 8, 0, SZ_X) + srd(k, 20, 72, WS_SIZE2) + srd(k, 12, 8, SZ_WQKV)
    if wtouch:
        fx += srd(k, 76, 32, SZ_WG) + srd(k, 80, 40, SZ_WG) + srd(k, 84, 48, SZ_WD) + srd(k, 88, 16, SZ_WO)
        kw["wtouch"] = [(76, SZ_WG), (80, SZ_WG), (84, SZ_WD), (88, SZ_WO)]
    k.e("s_waitcnt lgkmcnt(0)"); k.e(*fx)
    if mapping == 0:
        k.e("s_and_b32 s26, s2, 7", "s_lshr_b32 s25, s2, 3")
    elif mapping == 1:
        k.e("s_and_b32 s3, s2, 7", "s_lshr_b32 s4, s2, 3", "s_and_b32 s5, s4, 3", "s_lshl_b32 s25, s3, 2", "s_add_u32 s25, s25, s5", "s_lshr_b32 s26, s4, 2")
    elif mapping == 2:
        k.e("s_and_b32 s3, s2, 7", "s_lshr_b32 s4, s2, 3", "s_and_b32 s5, s3, 3", "s_lshl_b32 s26, s5, 1", "s_and_b32 s5, s4, 1", "s_add_u32 s26, s26, s5",
            "s_lshr_b32 s25, s3, 2", "s_lshl_b32 s25, s25, 4", "s_lshr_b32 s5, s4, 1", "s_add_u32 s25, s25, s5")
    elif mapping == 3:
        k.e("s_and_b32 s3, s2, 7", "s_lshr_b32 s4, s2, 3", "s_and_b32 s5, s3, 1", "s_lshl_b32 s26, s5, 2", "s_and_b32 s5, s4, 3", "s_add_u32 s26, s26, s5",
            "s_lshr_b32 s25, s3, 1", "s_lshl_b32 s25, s25, 3", "s_lshr_b32 s5, s4, 2", "s_add_u32 s25, s25, s5")
    k.stamp(0)
    e1n_body(k, **kw)
    k.wait_vm_all()
    k.stamp(3); k.stamp_out(4, 0); k.wait_vm_all()
    k.label(f"L_end_{k.name}")
    k.e("s_endpgm")
    return k


def kB2_kernel(name="kb_attn_glu_kernel", prio_a=None, prio_g=None, epi_prio=None, prefetch=True, **kw):
    k = KV(name, nvgpr=256)
    k.e("s_cmp_ge_u32 s2, 512", f"s_cbranch_scc1 L_end_{k.name}")
    fx = srd(k, 20, 72, WS_SIZE2)
    k.e("s_cmp_ge_u32 s2, 256", "s_cbranch_scc1 L_kb_g")
    k.e("s_waitcnt lgkmcnt(0)"); k.e(*fx)
    if prio_a is not None: k.e(f"s_setprio {prio_a}")
    k.e("s_and_b32 s3, s2, 7", "s_lshr_b32 s4, s2, 3", "s_and_b32 s5, s4, 3", "s_lshl_b32 s25, s3, 2", "s_add_u32 s25, s25, s5", "s_lshr_b32 s26, s4, 2")
    k.stamp(0)
    e2_body(k, **kw)
    k.wait_vm_all()
    k.stamp(3); k.stamp_out(4, 0x20000); k.wait_vm_all()
    k.e("s_endpgm")
    fb = k.fb_code
    k.label("L_kb_g")
    k.vm = []; k.lg = []
    k.e("s_cmp_ge_u32 s2, 480", "s_cbranch_scc1 L_kb_pf")
    fx3 = srd(k, 12, 32, SZ_WG) + srd(k, 16, 40, SZ_WG)
    k.e("s_waitcnt lgkmcnt(0)"); k.e(*(fx + fx3))
    if prio_g is not None: k.e(f"s_setprio {prio_g}")
    k.e("s_sub_u32 s3, s2, 256", "s_and_b32 s4, s3, 7", "s_lshr_b32 s5, s3, 3", "s_mul_i32 s4, s4, 28", "s_add_u32 s4, s4, s5",
        "s_lshr_b32 s26, s4, 4", "s_and_b32 s25, s4, 15")
    k.stamp(0)
    e3_body(k, SX=20, norm=True, xoff=WS_XN, epi_prio=epi_prio)
    k.wait_vm_all()
    k.stamp(3); k.stamp_out(4, 0x20000); k.wait_vm_all()
    k.e("s_endpgm")
    k.label("L_kb_pf")
    k.vm = []; k.lg = []
    if prefetch:
        fxp = srd(k, 12, 48, SZ_WD) + srd(k, 16, 16, SZ_WO)
        k.e("s_waitcnt lgkmcnt(0)"); k.e(*fxp)
        k.e("s_sub_u32 s3, s2, 480")
        prefetch_role(k, [(12, SZ_WD), (16, SZ_WO)], 3, 32)
    k.label(f"L_end_{k.name}")
    k.e("s_endpgm")
    fb()
    k.emit_tails()
    return k


class E4F:
    DEPTH = 8; ACC = 64; HR = 128; WR = 16; WOF = 192
    V16 = 48; VW = 49; VT = 50; VX = 52; VPH = 53; VPO = 54; VP = 55; VC = 56
    SB = 40; SDO = 41; SH = 42; SWO = 43; SO_ = 44; ST = 45; SCB = 46; SRB = 47; SC = 48; SK = 49
    def __init__(self, k, SD, SO, SWS, SX, SOUT, hsleep=2, osleep=2, ep=False):
        self.k = k; self.SD = SD; self.SO = SO; self.SWS = SWS; self.SX = SX; self.SOUT = SOUT
        self.hsleep = hsleep; self.osleep = osleep; self.ep = ep
        if ep: self.VP = 58
    def setup(self):
        k = self.k; c = self
        a, b = 56, 57
        k.e(f"v_lshlrev_b32 v{c.V16}, 4, v1", f"s_lshl_b32 s{c.ST}, s{c.SCB}, 7",
            f"v_lshrrev_b32 v{c.VW}, 3, v1", f"v_lshlrev_b32 v{c.VW}, 10, v{c.VW}", f"v_bfe_u32 v{a}, v1, 4, 1", f"v_lshlrev_b32 v{a}, 2, v{a}", f"v_and_b32 v{b}, 7, v1",
            f"v_xor_b32 v{a}, v{a}, v{b}", f"v_lshl_add_u32 v{c.VW}, v{a}, 4, v{c.VW}", f"v_add_u32 v{c.VW}, s{c.ST}, v{c.VW}")
        k.e(f"v_lshrrev_b32 v{a}, 5, v1", f"v_bfe_u32 v{b}, v1, 2, 2", f"v_lshl_add_u32 v{a}, v{a}, 2, v{b}", f"v_lshlrev_b32 v{c.VT}, 7, v{a}",
            f"v_bfe_u32 v{a}, v1, 4, 1", f"v_lshlrev_b32 v{a}, 1, v{a}", f"v_bfe_u32 v{b}, v1, 1, 1", f"v_add_u32 v{a}, v{a}, v{b}",
            f"v_bfe_u32 v{b}, v1, 3, 1", f"v_lshlrev_b32 v{b}, 2, v{b}", f"v_xor_b32 v{a}, v{a}, v{b}", f"v_lshl_add_u32 v{c.VT}, v{a}, 4, v{c.VT}",
            f"v_and_b32 v{b}, 1, v1", f"v_lshl_add_u32 v{c.VT}, v{b}, 3, v{c.VT}", f"s_lshl_b32 s{c.SB}, s24, 14", f"v_add_u32 v{c.VT}, s{c.SB}, v{c.VT}",
            f"v_xor_b32 v{c.VT+1}, 64, v{c.VT}")
        k.e(f"s_mul_i32 s{c.SDO}, s24, 458752",
            f"s_mul_i32 s{c.SH}, s{c.SRB}, 224", f"s_mul_i32 s{c.SC}, s24, 28", f"s_add_u32 s{c.SH}, s{c.SH}, s{c.SC}", f"s_lshl_b32 s{c.SH}, s{c.SH}, 10", f"s_add_u32 s{c.SH}, s{c.SH}, 0x{WS_HF:x}",
            f"s_lshl_b32 s{c.SWO}, s24, 17",
            f"s_lshl_b32 s{c.SO_}, s{c.SRB}, 6", f"s_lshl_b32 s{c.SC}, s24, 3", f"s_add_u32 s{c.SO_}, s{c.SO_}, s{c.SC}", f"s_lshl_b32 s{c.SO_}, s{c.SO_}, 10", f"s_add_u32 s{c.SO_}, s{c.SO_}, 0x{WS_OF:x}")
        k.e(f"v_lshrrev_b32 v{c.VX}, 3, v0", f"s_lshl_b32 s{c.SC}, s{c.SRB}, 6", f"v_add_u32 v{c.VX}, s{c.SC}, v{c.VX}", f"v_lshlrev_b32 v{c.VX}, 10, v{c.VX}",
            f"v_and_b32 v{a}, 7, v0", f"v_lshl_add_u32 v{c.VX}, v{a}, 4, v{c.VX}", f"v_add_u32 v{c.VX}, s{c.ST}, v{c.VX}")
        sh = 1 if c.ep else 0
        fh, fo = (FLG_H8, FLG_O8) if c.ep else (FLG_H, FLG_O)
        k.e(f"v_min_u32 v{c.VPH}, 6, v1", f"s_mul_i32 s{c.SC}, s24, 7", f"v_add_u32 v{c.VPH}, s{c.SC}, v{c.VPH}", f"v_lshlrev_b32 v{c.VPH}, {2+sh}, v{c.VPH}",
            f"s_lshl_b32 s{c.SC}, s{c.SRB}, {7+sh}", f"s_add_u32 s{c.SC}, s{c.SC}, 0x{fh:x}", f"v_add_u32 v{c.VPH}, s{c.SC}, v{c.VPH}")
        k.e(f"v_and_b32 v{a}, 7, v1", f"v_lshlrev_b32 v{c.VPO}, {2+sh}, v{a}", f"s_lshl_b32 s{c.SC}, s{c.SRB}, {7+sh}", f"s_lshl_b32 s{c.SK}, s24, {5+sh}",
            f"s_add_u32 s{c.SC}, s{c.SC}, s{c.SK}", f"s_add_u32 s{c.SC}, s{c.SC}, 0x{fo:x}", f"v_add_u32 v{c.VPO}, s{c.SC}, v{c.VPO}")
    def touchW(self, vd):
        k = self.k; c = self
        a = 56
        k.e(f"s_and_b32 s{c.SC}, s{c.SRB}, 3", f"s_mul_i32 s{c.SK}, s{c.SC}, {112*1024}", f"s_add_u32 s{c.SK}, s{c.SK}, s{c.SDO}",
            f"s_lshl_b32 s{c.ST}, s{c.SCB}, 7", f"v_lshlrev_b32 v{a}, 10, v1", f"v_add_u32 v{a}, s{c.ST}, v{a}")
        k.vmem(f"buffer_load_dword v{vd}, v{a}, s[{c.SD}:{c.SD+3}], s{c.SK} offen", "touch")
        k.e(f"s_add_u32 s{c.SK}, s{c.SK}, 65536", "s_mov_b32 exec_hi, 0xffff")
        k.vmem(f"buffer_load_dword v{vd}, v{a}, s[{c.SD}:{c.SD+3}], s{c.SK} offen", "touch")
        k.e(f"s_lshl_b32 s{c.SK}, s{c.SC}, 15", f"s_add_u32 s{c.SK}, s{c.SK}, s{c.SWO}", "s_mov_b64 exec, 0xffffffff")
        k.vmem(f"buffer_load_dword v{vd}, v{a}, s[{c.SO}:{c.SO+3}], s{c.SK} offen", "touch")
        k.e("s_mov_b64 exec, -1")
    def issueW(self, s):
        k = self.k; c = self
        slot = s % c.DEPTH
        sr, sb, kk = (c.SD, c.SDO, s) if s < 28 else (c.SO, c.SWO, s - 28)
        for i in range(2):
            k.e(f"s_add_u32 m0, s{c.SB}, {slot*2048 + i*1024}", f"s_add_u32 s{c.ST}, s{sb}, {kk*16384 + i*8192}")
            k.vmem(f"buffer_load_dwordx4 v{c.VW}, s[{sr}:{sr+3}], s{c.ST} offen lds", ("W", s))
    def issueH(self, s):
        k = self.k; c = self
        slot = s % c.DEPTH
        kk, hb, hstride = (s, c.SH, 112*1024) if s < 28 else (s - 28, c.SO_, 32*1024)
        for tb in range(2):
            d = c.HR + slot*8 + 4*tb
            k.e(f"s_add_u32 s{c.ST}, s{hb}, {kk*1024 + tb*hstride}")
            k.vmem(f"buffer_load_dwordx4 v[{d}:{d+3}], v{c.V16}, s[{c.SWS}:{c.SWS+3}], s{c.ST} offen {c.hsc1 if s < 28 else 'sc1'}", ("H", s))
    def reads(self, s, b):
        k = self.k; c = self
        o = (s % c.DEPTH)*2048
        for cb2 in range(2):
            av = c.VT + cb2
            k.ds(f"ds_read_b64_tr_b16 v[{b+4*cb2}:{b+4*cb2+1}], v{av} offset:{o}", ("r", s))
            k.ds(f"ds_read_b64_tr_b16 v[{b+4*cb2+2}:{b+4*cb2+3}], v{av} offset:{o+1024}", ("r", s))
    def mf(self, s, b, first):
        k = self.k; c = self
        h = c.HR + (s % c.DEPTH)*8
        for cb2 in range(2):
            for tb in range(2):
                a = c.ACC + 16*(cb2*2 + tb)
                k.e(f"{MF} v[{a}:{a+15}], v[{b+4*cb2}:{b+4*cb2+3}], v[{h+4*tb}:{h+4*tb+3}], " + ("0" if first else f"v[{a}:{a+15}]"))
    def spin(self, tag, issue_txt, ok_cmp, sleep):
        k = self.k; c = self
        L = k.newlabel(tag); Lc = k.newlabel(tag + "c")
        k.e(f"s_mov_b32 s{c.SK}, 0")
        k.label(L)
        k.e(issue_txt, f"s_add_u32 s{c.SK}, s{c.SK}, 1", "s_waitcnt vmcnt(0)", ok_cmp, "s_nop 3", "s_cmp_eq_u64 vcc, -1", f"s_cbranch_scc1 {Lc}",
            f"s_sleep {sleep}", f"s_cmp_lt_u32 s{c.SK}, 0x{SPIN_MAX:x}", f"s_cbranch_scc1 {L}")
        k.label(Lc)
        k.vm = []
    def pollt(self, va):
        c = self
        if c.ep: return (f"buffer_load_dwordx2 v[{c.VP}:{c.VP+1}], v{va}, s[{c.SWS}:{c.SWS+3}], 0 offen sc1", f"v_cmp_eq_u64 vcc, s[{SEP}:{SEP+1}], v[{c.VP}:{c.VP+1}]")
        return (f"buffer_load_dword v{c.VP}, v{va}, s[{c.SWS}:{c.SWS+3}], 0 offen sc1", f"v_cmp_eq_u32 vcc, 1, v{c.VP}")
    def reduce(self, dst, addx, lds_base=0):
        k = self.k; c = self
        RS = 272
        k.e("s_nop 7", "s_barrier")
        k.e("v_and_b32 v4, 31, v1", f"v_mul_u32_u24 v4, {RS}, v4", "v_lshrrev_b32 v5, 5, v1", "v_lshl_add_u32 v4, v5, 4, v4",
            f"s_mul_i32 s{c.SC}, s24, {64*RS}", f"v_add_u32 v4, s{c.SC}, v4", "s_nop 3")
        for cb2 in range(2):
            for tb in range(2):
                a = c.ACC + 16*(cb2*2 + tb)
                for g in range(4):
                    k.ds(f"ds_write_b128 v4, v[{a+4*g}:{a+4*g+3}] offset:{lds_base + tb*32*RS + cb2*128 + g*32}")
        k.e("v_lshrrev_b32 v6, 3, v0", f"v_mul_u32_u24 v6, {RS}, v6", "v_and_b32 v5, 7, v0", "v_lshl_add_u32 v6, v5, 5, v6")
        k.wait_lg_all()
        k.e("s_barrier")
        for half in range(2):
            for w in range(4):
                d = 64 + half*32 + w*8
                for j in range(2):
                    k.ds(f"ds_read_b128 v[{d+4*j}:{d+4*j+3}], v6 offset:{lds_base + w*64*RS + half*32*RS + j*16}", ("rd", half))
        if addx: k.wait_vm("x")
        for half in range(2):
            k.wait_lg(("rd", half))
            d = 64 + half*32; o = dst + 8*half
            for i in range(8):
                k.e(f"v_add_f32 v{d+i}, v{d+i}, v{d+8+i}", f"v_add_f32 v{d+16+i}, v{d+16+i}, v{d+24+i}")
            if addx:
                for i in range(4):
                    xr = 40 + 4*half + i
                    k.e(f"v_lshlrev_b32 v{d+8+2*i}, 16, v{xr}", f"v_and_b32 v{d+9+2*i}, 0xffff0000, v{xr}")
                for i in range(8): k.e(f"v_add_f32 v{d+i}, v{d+i}, v{d+16+i}")
                for i in range(8): k.e(f"v_add_f32 v{o+i}, v{d+i}, v{d+8+i}")
            else:
                for i in range(8): k.e(f"v_add_f32 v{d+i}, v{d+i}, v{d+16+i}")
                for i in range(8): k.e(f"v_add_f32 v{o+i}, v{o+i}, v{d+i}")
    def body(self, pre_issued=True, st=(1, 2), hwait=True):
        k = self.k; c = self
        D = c.DEPTH
        if not pre_issued:
            for s in range(D): c.issueW(s)
        k.vmem(f"buffer_load_dwordx4 v[40:43], v{c.VX}, s[{c.SX}:{c.SX+3}], 0 offen", "x")
        k.e(f"s_mov_b32 s{c.ST}, 32768")
        k.vmem(f"buffer_load_dwordx4 v[44:47], v{c.VX}, s[{c.SX}:{c.SX+3}], s{c.ST} offen", "x")
        if hwait:
            c.spin("hsp", *c.pollt(c.VPH), c.hsleep)
        c.hsc1 = "sc1" if hwait else ""
        k.stamp(st[0])
        if c.e4_prio is not None: k.e(f"s_setprio {c.e4_prio}")
        for s in range(D): c.issueH(s)
        c.reads(0, c.WR)
        for s in range(28):
            if s + 1 < 28:
                k.wait_vm(("W", s + 1)); c.reads(s + 1, c.WR + 8*((s + 1) & 1))
            k.wait_vm(("H", s)); k.wait_lg(("r", s))
            c.mf(s, c.WR + 8*(s & 1), s == 0)
            if s + D < 36:
                c.issueW(s + D)
                if s + D < 28: c.issueH(s + D)
        for s in range(28, 36):
            k.wait_vm(("W", s)); c.reads(s, c.WOF + 8*(s - 28))
        k.wait_lg_all()
        c.reduce(32, True)
        k.stamp(st[1])
        if c.e4_prio is not None: k.e(f"s_setprio {c.post_prio or 0}")
        Lr = k.newlabel("oretry"); Lg = k.newlabel("ogo"); Ld = k.newlabel("odone")
        k.e(f"s_mov_b32 s{c.SK+1}, 0")
        k.label(Lr)
        c.spin("osp", *c.pollt(c.VPO), c.osleep)
        for s in range(28, 36): c.issueH(s)
        k.e(f"v_mov_b32 v{c.VC}, 0")
        for s in range(28, 36):
            k.wait_vm(("H", s))
            h = c.HR + (s % D)*8
            c.mf(s, c.WOF + 8*(s - 28), s == 28)
            for i in range(0, 8, 2): k.e(f"v_max3_u32 v{c.VC}, v{h+i}, v{h+i+1}, v{c.VC}")
        k.e(f"v_cmp_eq_u32 vcc, -1, v{c.VC}", f"s_add_u32 s{c.SK+1}, s{c.SK+1}, 1", "s_nop 3", "s_cmp_eq_u64 vcc, 0", f"s_cbranch_scc1 {Ld}",
            f"s_cmp_lt_u32 s{c.SK+1}, 0x40", "s_nop 15", f"s_cbranch_scc1 {Lr}")
        k.label(Ld)
        if not hwait: k.stamp(st[1] + 1)
        c.reduce(32, False)
        for half in range(2):
            for i in range(4): k.e(f"v_cvt_pk_bf16_f32 v{48+4*half+i - 0 if False else 16+4*half+i}, v{32+8*half+2*i}, v{32+8*half+2*i+1}")
        k.vmem(f"buffer_store_dwordx4 v[16:19], v{c.VX}, s[{c.SOUT}:{c.SOUT+3}], 0 offen", "st")
        k.e(f"s_mov_b32 s{c.ST}, 32768")
        k.vmem(f"buffer_store_dwordx4 v[20:23], v{c.VX}, s[{c.SOUT}:{c.SOUT+3}], s{c.ST} offen", "st")

def kB3_kernel(name="kb_main_kernel", prio_a=None, prio_g=None, epi_prio=None, post_prio=None, e4_prio=None, touch=True, hsleep=2, osleep=2, **kw):
    k = KV(name, nvgpr=256)
    k.e("s_cmp_ge_u32 s2, 512", f"s_cbranch_scc1 L_end_{k.name}")
    fx = srd(k, 20, 72, WS_SIZE2)
    k.e("s_cmp_ge_u32 s2, 256", "s_cbranch_scc1 L_kb_g")
    k.e("s_waitcnt lgkmcnt(0)"); k.e(*fx)
    if prio_a is not None: k.e(f"s_setprio {prio_a}")
    k.e("s_and_b32 s3, s2, 7", "s_lshr_b32 s4, s2, 3", "s_and_b32 s5, s4, 3", "s_lshl_b32 s25, s3, 2", "s_add_u32 s25, s25, s5", "s_lshr_b32 s26, s4, 2")
    k.stamp(0)
    if kw.pop("skip_a", False):
        k.e("v_and_b32 v1, 63, v0", "v_lshrrev_b32 v10, 6, v0", "s_nop 0", "v_readfirstlane_b32 s24, v10", "v_lshlrev_b32 v2, 4, v1",
            "v_mov_b32 v160, 0", "v_mov_b32 v161, 0", "v_mov_b32 v162, 0", "v_mov_b32 v163, 0")
        k.stamp(1); k.stamp(2)
        k.e("s_lshl_b32 s36, s26, 3", "s_lshl_b32 s37, s24, 1", "s_add_u32 s36, s36, s37", "s_lshl_b32 s36, s36, 5", "s_add_u32 s36, s36, s25",
            "s_lshl_b32 s36, s36, 10", f"s_add_u32 s36, s36, 0x{WS_OF:x}")
        k.e("buffer_store_dwordx4 v[160:163], v2, s[20:23], s36 offen sc1", "s_add_u32 s36, s36, 32768", "buffer_store_dwordx4 v[160:163], v2, s[20:23], s36 offen sc1")
        k.e("s_lshl_b32 s36, s26, 2", "s_add_u32 s36, s36, s24", "s_lshl_b32 s36, s36, 7", "s_lshl_b32 s37, s25, 2", "s_add_u32 s36, s36, s37",
            f"s_add_u32 s36, s36, 0x{FLG_O:x}", "v_mov_b32 v12, s36", "v_mov_b32 v13, 1", "s_mov_b64 exec, 1",
            "buffer_store_dword v13, v12, s[20:23], 0 offen sc1", "s_mov_b64 exec, -1")
        k.fb_code = lambda: None
    else:
        e2_body(k, st_sc1="sc1", touch=touch, oflag=True, **kw)
    k.wait_vm_all()
    k.stamp(3); k.stamp_out(4, 0x20000); k.wait_vm_all()
    k.e("s_endpgm")
    fb = k.fb_code
    k.label("L_kb_g")
    k.vm = []; k.lg = []
    SD, SO, SX, SOUT = 84, 88, 8, 4
    fx3 = srd(k, 12, 32, SZ_WG) + srd(k, 16, 40, SZ_WG) + srd(k, SD, 48, SZ_WD) + srd(k, SO, 16, SZ_WO) + srd(k, SX, 0, SZ_X) + srd(k, SOUT, 56, SZ_X)
    k.e("s_waitcnt lgkmcnt(0)"); k.e(*(fx + fx3))
    if prio_g is not None: k.e(f"s_setprio {prio_g}")
    e4 = E4F(k, SD, SO, 20, SX, SOUT, hsleep=hsleep, osleep=osleep)
    c = e4
    k.e("s_sub_u32 s3, s2, 256", "s_and_b32 s92, s3, 7", "s_lshr_b32 s93, s3, 3",
        f"s_and_b32 s{c.SRB}, s93, 3", "s_lshl_b32 s94, s92, 2", f"s_add_u32 s{c.SRB}, s{c.SRB}, s94", f"s_lshr_b32 s{c.SCB}, s93, 2")
    k.e("s_cmp_ge_u32 s2, 480", "s_cbranch_scc1 L_kb_pf")
    k.e("s_and_b32 s26, s92, 1", "s_mul_i32 s26, s26, 7", "s_lshr_b32 s94, s93, 2", "s_add_u32 s26, s26, s94",
        "s_lshr_b32 s25, s92, 1", "s_lshl_b32 s25, s25, 2", "s_and_b32 s95, s93, 3", "s_add_u32 s25, s25, s95")
    k.stamp(0)
    def pre_loop():
        if not touch: return
        k.e("v_lshrrev_b32 v66, 1, v1", "v_mul_u32_u24 v66, 3584, v66", "v_and_b32 v67, 1, v1", "v_lshl_add_u32 v66, v67, 7, v66",
            "s_lshl_b32 s36, s95, 7", "s_lshl_b32 s37, s28, 6", "s_add_u32 s36, s36, s37", "s_mul_i32 s36, s36, 3584", "s_lshl_b32 s37, s26, 8", "s_add_u32 s36, s36, s37",
            f"s_add_u32 s37, s36, {32*3584}", "s_cmp_eq_u32 s27, 0", "s_cbranch_scc0 L_kb_tu")
        k.vmem("buffer_load_dword v64, v66, s[12:15], s36 offen", "touch"); k.vmem("buffer_load_dword v64, v66, s[12:15], s37 offen", "touch")
        k.e("s_branch L_kb_tx")
        k.label("L_kb_tu")
        k.e("buffer_load_dword v64, v66, s[16:19], s36 offen", "buffer_load_dword v64, v66, s[16:19], s37 offen")
        k.label("L_kb_tx")
        k.e("v_and_b32 v67, 31, v1", "v_lshlrev_b32 v67, 10, v67", "s_lshl_b32 s36, s25, 17", "s_lshl_b32 s37, s24, 15", "s_add_u32 s36, s36, s37",
            "s_lshl_b32 s37, s94, 7", "s_add_u32 s36, s36, s37", f"s_add_u32 s36, s36, 0x{WS_XN + 128:x}", "s_mov_b64 exec, 0xffffffff")
        k.vmem("buffer_load_dword v64, v67, s[20:23], s36 offen", "touch")
        k.e("s_mov_b64 exec, -1")
    def post_loop():
        k.e("s_barrier")
        e4.setup()
        for s in range(c.DEPTH): e4.issueW(s)
        if touch: e4.touchW(64)
    e3_body(k, SX=20, norm=True, xoff=WS_XN, epi_prio=epi_prio, post_loop=post_loop, st_sc1="sc1", pre_loop=pre_loop)
    k.e("s_lshl_b32 s36, s25, 1", "s_add_u32 s36, s36, s27", "s_lshl_b32 s36, s36, 7", "s_lshl_b32 s37, s26, 1", "s_add_u32 s37, s37, s28",
        "s_lshl_b32 s37, s37, 2", "s_add_u32 s36, s36, s37", f"s_add_u32 s36, s36, 0x{FLG_H:x}", "v_mov_b32 v56, s36", "v_mov_b32 v57, 1")
    k.stamp(3)
    k.wait_vm_all()
    k.stamp(4)
    k.e("s_mov_b64 exec, 1")
    k.vmem("buffer_store_dword v57, v56, s[20:23], 0 offen sc1", "flag")
    k.e("s_mov_b64 exec, -1")
    if post_prio is not None: k.e(f"s_setprio {post_prio}")
    k.e("s_branch L_kb_e4")
    k.label("L_kb_pf")
    k.vm = []; k.lg = []
    k.e("v_and_b32 v1, 63, v0", "v_lshrrev_b32 v10, 6, v0", "s_nop 0", "v_readfirstlane_b32 s24, v10", "s_sub_u32 s3, s2, 480")
    k.stamp(0); k.stamp(1); k.stamp(2); k.stamp(3); k.stamp(4)
    e4.setup()
    for s in range(c.DEPTH): e4.issueW(s)
    if post_prio is not None: k.e(f"s_setprio {post_prio}")
    k.label("L_kb_e4")
    k.vm = [(("W", s), False) for s in range(c.DEPTH) for _ in range(2)] + [("flag", True)]
    k.lg = []
    e4.e4_prio = e4_prio; e4.post_prio = post_prio
    e4.body(st=(5, 6))
    k.wait_vm_all()
    k.stamp(7); k.stamp_out(8, 0x40000); k.wait_vm_all()
    k.label(f"L_end_{k.name}")
    k.e("s_endpgm")
    fb()
    k.emit_tails()
    return k


def gemm2(k, nunits, mfmas, reads, dmas, vm_need, fill0=None, rper=4, dper=1, hooks=None, pre_hooks=None, first_wait=None):
    def tagof(g, name): return ("fr", g, name)
    for u in range(nunits):
        g0, g1 = 2*u, 2*u + 1
        k.wait_vm(*vm_need(u))
        k.wait_lg_all()
        k.e("s_barrier")
        if pre_hooks and u in pre_hooks: pre_hooks[u]()
        R0 = list(reads(g0, 0)); R1 = list(reads(g1, 1))
        prev = list(mfmas(g0 - 1, 1)) if u > 0 else []
        cur = list(mfmas(g0, 0))
        D = list(dmas(u))
        F = list(fill0(u)) if fill0 else []
        rel = {}
        for i, (t, used) in enumerate(prev):
            for nm in used: rel[nm] = i
        def emit_reads(i, budget):
            n = 0
            while n < budget and R0:
                t, nm = R0.pop(0); k.ds(t, tagof(g0, nm)); n += 1
            j = 0
            while n < budget and j < len(R1):
                t, nm = R1[j]
                if rel.get(nm, -1) <= i:
                    k.ds(t, tagof(g1, nm)); R1.pop(j); n += 1
                else: j += 1
        def emit_dma():
            for (txt, tag, isvm) in D.pop(0):
                if isvm: k.vmem(txt, tag)
                else: k.e(txt)
        if not prev:
            emit_reads(-1, 1000)
        for i, (t, used) in enumerate(prev):
            k.e(t)
            emit_reads(i, rper)
            for _ in range(dper):
                if D: emit_dma()
        emit_reads(10**6, 1000)
        ngap = len(cur)
        per = -(-len(D) // ngap) if D else 0
        fper = -(-len(F) // ngap) if F else 0
        have = set()
        for j, (t, used) in enumerate(cur):
            k.wait_lg(*[tagof(g0, nm) for nm in used])
            have |= set(used)
            k.e(t)
            for _ in range(per):
                if D: emit_dma()
            n = 0; i = 0
            lim = fper + 1 if j < ngap - 1 else 10**6
            while n < lim and i < len(F):
                if F[i][1] in have:
                    k.e(F[i][0]); F.pop(i); n += 1
                else: i += 1
        assert not D and not F
        if hooks and u in hooks:
            for h in hooks[u]: h()
    k.wait_lg_all()
    for (t, used) in mfmas(2*nunits - 1, 1): k.e(t)

ONES = 42
DBG1 = {}

MF16 = "v_mfma_f32_16x16x32_bf16"
def sel_init(k, SEL, tmp):
    k.e(f"v_lshrrev_b32 v{tmp}, 4, v1", f"v_and_b32 v{tmp}, 1, v{tmp}", f"v_and_b32 v{SEL}, 15, v1", f"v_cmp_eq_u32 vcc, v{tmp}, v{SEL}",
        f"v_mov_b32 v{SEL+1}, 0x3f803f80", f"v_mov_b32 v{SEL+2}, 0", "s_nop 0", f"v_cndmask_b32 v{SEL}, v{SEL+2}, v{SEL+1}, vcc",
        f"v_mov_b32 v{SEL+1}, v{SEL}", f"v_mov_b32 v{SEL+2}, v{SEL}", f"v_mov_b32 v{SEL+3}, v{SEL}")

def sel_write(k, items, s_base, va, vt):
    k.e(f"v_and_b32 v{va}, 1, v1", f"v_lshlrev_b32 v{va}, 6, v{va}", f"v_lshrrev_b32 v{vt}, 4, v1", f"v_lshl_add_u32 v{va}, v{vt}, 4, v{va}", f"v_add_u32 v{va}, s{s_base}, v{va}",
        f"v_and_b32 v{vt}, 14, v1", f"v_cmp_eq_u32 vcc, 0, v{vt}", "s_nop 4", "s_mov_b64 exec, vcc")
    for (a, off) in items: k.ds(f"ds_write_b128 v{va}, v[{a}:{a+3}] offset:{off}")
    k.e("s_mov_b64 exec, -1")

def half_sum(k, regs, tmps):
    for r, t in zip(regs, tmps): k.e(f"v_mov_b32 v{t}, v{r}")
    k.e("s_nop 1")
    for r, t in zip(regs, tmps): k.e(f"v_permlane32_swap_b32 v{r}, v{t}")
    k.e("s_nop 1")
    for r, t in zip(regs, tmps): k.e(f"v_add_f32 v{r}, v{r}, v{t}")

def row_stats(k, sx, sxx, mean, rstd, tmp):
    k.e(f"v_mul_f32 v{mean}, 0x3b000000, v{sx}", f"v_mul_f32 v{tmp}, 0x3b000000, v{sxx}",
        f"v_fma_f32 v{tmp}, -v{mean}, v{mean}, v{tmp}", f"v_max_f32 v{tmp}, 0, v{tmp}", f"v_add_f32 v{tmp}, 0x3727c5ac, v{tmp}",
        f"v_rsq_f32 v{rstd}, v{tmp}")

def e1s_body(k, SX=8, SW=12, SWS=20, sc1="", hooks=None, pre_hooks=None, rot=False, pre_store=None, mst=False, post_dma=None, rper=5, dper=2):
    E1_XB = 49152
    k.e("v_and_b32 v1, 63, v0", "v_lshrrev_b32 v10, 6, v0", "s_nop 0", "v_readfirstlane_b32 s24, v10")
    k.e("v_and_b32 v11, 31, v1", "v_lshrrev_b32 v12, 5, v1")
    k.e("s_and_b32 s27, s24, 1", "s_lshr_b32 s28, s24, 1")
    k.e("v_lshrrev_b32 v13, 3, v1", "v_lshrrev_b32 v14, 4, v1", "v_and_b32 v15, 7, v1",
        "v_xor_b32 v7, v15, v14", "v_lshlrev_b32 v7, 4, v7", "v_lshl_add_u32 v7, v13, 10, v7",
        "s_lshl_b32 s29, s25, 16", "s_lshl_b32 s30, s24, 14", "s_add_u32 s29, s29, s30",
        "v_add_u32 v7, s29, v7", "v_xor_b32 v8, 64, v7", "v_add_u32 v8, 8192, v8")
    k.e("v_and_b32 v14, 1, v14", "v_lshlrev_b32 v14, 2, v14", "v_xor_b32 v9, v15, v14", "v_lshlrev_b32 v9, 4, v9",
        "s_lshl_b32 s30, s24, 3", "v_add_u32 v13, s30, v13", "v_mul_u32_u24 v13, 3072, v13", "v_add_u32 v9, v9, v13",
        "s_lshl_b32 s30, s26, 7", "v_add_u32 v9, s30, v9")
    k.e(f"s_lshl_b32 s31, s24, 11", f"s_add_u32 s31, s31, {E1_XB}", "s_lshl_b32 s32, s24, 10")
    def xd(v):
        if rot:
            return [dmab(SX, 7, 31, (v % 3)*8192, 33, 51, 0, ("X", v)),
                    dmab(SX, 8, 31, (v % 3)*8192 + 1024, 33, 51, 0, ("X", v), post=["s_add_u32 s51, s51, 128", "s_and_b32 s51, s51, 1023"])]
        return [dma(SX, 7, 31, (v % 3)*8192, 33, v*128, ("X", v)), dma(SX, 8, 31, (v % 3)*8192 + 1024, 33, v*128, ("X", v))]
    def wd(u):
        if rot:
            return [dmab(SW, 9, 32, (u % 4)*12288 + p*4096, 33, 50, 0, ("W", u), imm=1024*p, post=(rot_adv(50, 32*3072, 512*3072, 52) if p == 2 else ())) for p in range(3)]
        return [dma(SW, 9, 32, (u % 4)*12288 + p*4096, 33, u*32*3072, ("W", u), imm=1024*p) for p in range(3)]
    if rot:
        k.e("s_lshl_b32 s51, s53, 7", f"s_mul_i32 s50, s53, {64*3072}")
    emit_groups(k, xd(0) + wd(0) + wd(1) + xd(1) + wd(2))
    if post_dma: post_dma()
    k.e("s_xor_b32 s34, s27, s28")
    k.e("s_lshl_b32 s36, s27, 5", "v_add_u32 v13, s36, v11", "v_bfe_u32 v14, v13, 1, 3", "v_xor_b32 v14, v14, v12",
        "v_lshlrev_b32 v14, 4, v14", "v_lshl_add_u32 v2, v13, 7, v14", f"v_add_u32 v2, {E1_XB}, v2",
        "s_lshl_b32 s35, s34, 5", "v_xor_b32 v2, s35, v2",
        "v_xor_b32 v3, 32, v2", "v_xor_b32 v4, 64, v2", "v_xor_b32 v5, 96, v2")
    k.e("v_bfe_u32 v13, v1, 2, 2", "v_lshl_add_u32 v13, v12, 3, v13", "v_lshlrev_b32 v6, 7, v13",
        "v_bfe_u32 v13, v1, 4, 1", "v_lshlrev_b32 v13, 1, v13", "v_bfe_u32 v14, v1, 1, 1", "v_add_u32 v13, v13, v14",
        "s_lshl_b32 s36, s28, 2", "v_add_u32 v13, s36, v13", "v_bfe_u32 v14, v1, 3, 1", "v_lshlrev_b32 v14, 2, v14",
        "v_xor_b32 v13, v13, v14", "v_lshl_add_u32 v6, v13, 4, v6", "v_and_b32 v14, 1, v1", "v_lshl_add_u32 v6, v14, 3, v6",
        "s_lshl_b32 s35, s34, 11", "v_xor_b32 v10, 2048, v6", "v_xor_b32 v10, s35, v10", "v_xor_b32 v6, s35, v6")
    k.e(f"s_mov_b32 s{ONES}, 0x3f803f80")
    ST = 48
    for i in range(5): k.e(f"v_mov_b32 v{ST+i}, 0")
    SEL = 176; MA = 180
    if mst: sel_init(k, SEL, 13)
    ACC = 64
    def fr(st): return 16 + 16*st
    def reads(g, st):
        b = fr(st); u = g >> 1; v = g >> 2
        out = [(f"ds_read_b128 v[{b}:{b+3}], v{2 + (g & 3)} offset:{(v % 3)*8192}", "X")]
        av = 6 if (g & 1) == 0 else 10
        for p in range(3):
            o = (u % 4)*12288 + p*4096
            out.append((f"ds_read_b64_tr_b16 v[{b+4+4*p}:{b+5+4*p}], v{av} offset:{o}", f"W{p}"))
            out.append((f"ds_read_b64_tr_b16 v[{b+6+4*p}:{b+7+4*p}], v{av} offset:{o+512}", f"W{p}"))
        return out
    def mfmas(g, st):
        out = []
        b_x = fr(st); b_w = b_x + 4
        for p in range(3):
            a = ACC + 16*p
            w = f"v[{b_w+4*p}:{b_w+4*p+3}]"; x = f"v[{b_x}:{b_x+3}]"
            A, B = (w, x) if p < 2 else (x, w)
            c = "0" if g == 0 else f"v[{a}:{a+15}]"
            out.append((f"{MF} v[{a}:{a+15}], {A}, {B}, {c}", ["X", f"W{p}"]))
        if mst == 2 and (g & 1):
            def sm(j, src):
                a = MA + 4*j
                return f"{MF16} v[{a}:{a+3}], v[{src}:{src+3}], v[{SEL}:{SEL+3}], " + ("0" if g == 1 else f"v[{a}:{a+3}]")
            def sq(i):
                t = 196 + 2*(i & 1)
                return (f"\nv_lshlrev_b32 v{t}, 16, v{b_x+i}\nv_and_b32 v{t+1}, 0xffff0000, v{b_x+i}\nv_pk_fma_f32 v[{ST}:{ST+1}], v[{t}:{t+1}], v[{t}:{t+1}], v[{ST}:{ST+1}]")
            out = [(sm(1, b_w), ["W0"]), (out[0][0] + sq(0), ["X", "W0"]), (sm(2, b_w + 4), ["W1"]), (out[1][0] + sq(1), ["X", "W1"]),
                   (sm(3, b_w + 8), ["W2"]), (out[2][0] + sq(2), ["X", "W2"]), (sm(0, b_x) + sq(3), ["X"])]
        return out
    def fill0(u):
        b = fr(0); out = []
        if mst:
            def sm(j, src, nm):
                a = MA + 4*j
                return (f"{MF16} v[{a}:{a+3}], v[{src}:{src+3}], v[{SEL}:{SEL+3}], " + ("0" if u == 0 else f"v[{a}:{a+3}]"), nm)
            d2 = [(f"v_dot2_f32_bf16 v{ST+1}, v{b+i}, v{b+i}, v{ST+1}", "X") for i in range(4)]
            return [sm(0, b, "X"), d2[0], sm(1, b+4, "W0"), d2[1], sm(2, b+8, "W1"), d2[2], sm(3, b+12, "W2"), d2[3]]
        for i in range(4):
            out.append((f"v_dot2_f32_bf16 v{ST}, v{b+i}, s{ONES}, v{ST}", "X"))
            out.append((f"v_dot2_f32_bf16 v{ST+1}, v{b+i}, v{b+i}, v{ST+1}", "X"))
            for p in range(3):
                out.append((f"v_dot2_f32_bf16 v{ST+2+p}, v{b+4+4*p+i}, s{ONES}, v{ST+2+p}", f"W{p}"))
        return out
    def dmas(u):
        out = []
        if u + 3 < 16: out += wd(u + 3)
        if u % 2 == 0 and u//2 + 2 < 8: out += xd(u//2 + 2)
        return out
    k.stamp(1)
    if DBG1.get("fine"): pre_hooks = {0: lambda: k.stamp(2), 2: lambda: k.stamp(3), 4: lambda: k.stamp(4), 8: lambda: k.stamp(5)}
    gemm2(k, 16, mfmas, reads, dmas, lambda u: [("W", u), ("X", u >> 1)], fill0=(None if (DBG1.get("nostat1") or mst == 2) else fill0), rper=rper, dper=dper, hooks=hooks, pre_hooks=pre_hooks)
    k.stamp(6 if DBG1.get("fine") else 2)
    if mst == 2: k.e(f"v_add_f32 v{ST+1}, v{ST}, v{ST+1}")
    k.e("s_nop 2")
    if mst: half_sum(k, [ST+1], [53])
    else: half_sum(k, [ST+i for i in range(5)], [53, 54, 55, 56, 57])
    k.e("s_barrier", "s_mul_i32 s36, s24, 640", "v_lshlrev_b32 v13, 2, v11", "v_add_u32 v14, s36, v13")
    if mst:
        k.ds(f"ds_write_b32 v14, v{ST+1} offset:128")
        sel_write(k, [(MA, 0), (MA+4, 256), (MA+8, 384), (MA+12, 512)], 36, 15, 16)
    else:
        for i in range(5): k.ds(f"ds_write_b32 v14, v{ST+i} offset:{128*i}")
    k.e("s_xor_b32 s37, s24, 2", "s_mul_i32 s37, s37, 640", "v_add_u32 v15, s37, v13", "s_xor_b32 s37, s24, 1", "s_mul_i32 s37, s37, 640", "v_add_u32 v16, s37, v13")
    k.wait_lg_all()
    k.e("s_barrier")
    k.ds("ds_read_b32 v53, v15"); k.ds("ds_read_b32 v54, v15 offset:128")
    for p in range(3): k.ds(f"ds_read_b32 v{55+p}, v16 offset:{256+128*p}")
    if mst:
        k.ds(f"ds_read_b32 v{ST}, v14")
        for p in range(3): k.ds(f"ds_read_b32 v{ST+2+p}, v14 offset:{256+128*p}")
    k.e("v_lshlrev_b32 v10, 4, v1",
        "s_lshl_b32 s36, s26, 2", "s_lshl_b32 s37, s28, 1", "s_add_u32 s36, s36, s37", "s_lshl_b32 s36, s36, 16",
        "s_lshl_b32 s37, s25, 1", "s_add_u32 s37, s37, s27", "s_lshl_b32 s37, s37, 10", "s_add_u32 s36, s36, s37")
    k.e("v_lshrrev_b32 v17, 4, v11", "v_lshlrev_b32 v17, 16, v17", "v_lshl_add_u32 v17, v12, 8, v17", "v_and_b32 v18, 15, v11", "v_lshl_add_u32 v17, v18, 4, v17")
    k.wait_lg_all()
    for i in range(5): k.e(f"v_add_f32 v{ST+i}, v{ST+i}, v{53+i}")
    if pre_store: pre_store()
    row_stats(k, ST, ST+1, 58, 59, 60)
    k.e("s_mul_i32 s37, s24, 640", "s_add_u32 s37, s37, 2560", "v_add_u32 v14, s37, v13", "v_sub_f32 v58, 0, v58")
    k.ds(f"ds_write_b32 v14, v{ST+2}"); k.ds(f"ds_write_b32 v14, v{ST+3} offset:128")
    k.ds("ds_write_b32 v14, v58 offset:256"); k.ds("ds_write_b32 v14, v59 offset:384")
    k.e("v_lshlrev_b32 v15, 4, v12", "v_add_u32 v15, s37, v15", f"v_mul_f32 v60, 0x{f2u(0.25*LOG2E):08x}, v59")
    k.wait_lg_all()
    B0 = 112
    for i in range(4):
        for gq in range(4): k.ds(f"ds_read_b128 v[{B0+16*i+4*gq}:{B0+16*i+4*gq+3}], v15 offset:{128*i + 32*gq}", ("bc", i))
    for p, (scale, base) in enumerate(((60, WS_QF), (59, WS_KF))):
        a = ACC + 16*p
        k.wait_lg(("bc", p))
        for r in range(16): k.e(f"v_fmac_f32 v{a+r}, v58, v{B0+16*p+r}")
        for r in range(16): k.e(f"v_mul_f32 v{a+r}, v{a+r}, v{scale}")
        for j in range(2):
            d = 20 + 8*p + 4*j
            for i in range(4): k.e(f"v_cvt_pk_bf16_f32 v{d+i}, v{a+8*j+2*i}, v{a+8*j+2*i+1}")
            k.e(f"s_add_u32 s37, s36, 0x{base + j*65536:x}")
            k.vmem(f"buffer_store_dwordx4 v[{d}:{d+3}], v10, s[{SWS}:{SWS+3}], s37 offen {sc1}", "st")
    a = ACC + 32
    k.wait_lg(("bc", 3))
    for r in range(16): k.e(f"v_fmac_f32 v{a+r}, v{ST+4}, v{B0+32+r}")
    for r in range(16): k.e(f"v_mul_f32 v{a+r}, v{a+r}, v{B0+48+r}")
    k.e(f"s_add_u32 s37, s36, 0x{WS_VF:x}")
    for j in range(2):
        d = 36 + 4*j
        for i in range(4): k.e(f"v_cvt_pk_bf16_f32 v{d+i}, v{a+8*j+2*i}, v{a+8*j+2*i+1}")
        k.vmem(f"buffer_store_dwordx4 v[{d}:{d+3}], v17, s[{SWS}:{SWS+3}], s37 offen offset:{512*j} {sc1}", "st")

def e3s_body(k, SX=8, SG=12, SU=16, SWS=20, st_sc1="", epi_prio=None, post_loop=None, hooks=None, pre_hooks=None, rot=False, outb=48, pre_dma=None, mst=False, rper=4, dper=1):
    XB = 49152
    k.e("v_and_b32 v1, 63, v0", "v_lshrrev_b32 v10, 6, v0", "s_nop 0", "v_readfirstlane_b32 s24, v10")
    k.e("v_and_b32 v11, 31, v1", "v_lshrrev_b32 v12, 5, v1")
    k.e("s_and_b32 s27, s24, 1", "s_lshr_b32 s28, s24, 1")
    k.e("v_lshrrev_b32 v13, 3, v1", "v_lshrrev_b32 v14, 4, v1", "v_and_b32 v15, 7, v1",
        "v_xor_b32 v7, v15, v14", "v_lshlrev_b32 v7, 4, v7", "v_lshl_add_u32 v7, v13, 10, v7",
        "s_lshl_b32 s29, s25, 17", "s_lshl_b32 s30, s24, 15", "s_add_u32 s29, s29, s30",
        "v_add_u32 v7, s29, v7", "v_xor_b32 v8, 64, v7", "v_add_u32 v8, 8192, v8")
    k.e("v_lshlrev_b32 v13, 2, v14", "v_and_b32 v15, 15, v1", "v_xor_b32 v9, v15, v13", "v_lshlrev_b32 v9, 4, v9",
        "s_lshl_b32 s30, s24, 3", "v_add_u32 v13, s30, v14", "v_mul_u32_u24 v13, 3584, v13", "v_add_u32 v9, v9, v13",
        "s_lshl_b32 s30, s26, 8", "v_add_u32 v9, s30, v9")
    k.e(f"s_lshl_b32 s31, s24, 12", f"s_add_u32 s31, s31, {XB}", "s_lshl_b32 s32, s24, 11")
    def xd(v):
        if rot:
            return [dmab(SX, 7 + (i & 1), 31, (v % 2)*16384 + i*1024, 33, 51, (i >> 1)*16384, ("X", v),
                         post=(["s_add_u32 s51, s51, 128", "s_and_b32 s51, s51, 1023"] if i == 3 else ())) for i in range(4)]
        return [dma(SX, 7 + (i & 1), 31, (v % 2)*16384 + i*1024, 33, v*128 + (i >> 1)*16384, ("X", v)) for i in range(4)]
    def wd(u):
        out = []
        for i in range(2):
            for p, sr in enumerate((SG, SU)):
                if rot:
                    out.append(dmab(sr, 9, 32, (u % 3)*16384 + p*8192 + i*1024, 33, 50, 4*i*3584, ("W", u),
                                    post=(rot_adv(50, 32*3584, 512*3584, 52) if (i, p) == (1, 1) else ())))
                else:
                    out.append(dma(sr, 9, 32, (u % 3)*16384 + p*8192 + i*1024, 33, (u*32 + 4*i)*3584, ("W", u)))
        return out
    if rot:
        k.e("s_lshl_b32 s51, s53, 7", f"s_mul_i32 s50, s53, {64*3584}")
    if pre_dma: pre_dma()
    if DBG1.get("wfirst"): emit_groups(k, wd(0) + xd(0) + wd(1))
    else: emit_groups(k, xd(0) + wd(0) + wd(1))
    if DBG1.get("touch3"):
        Lu = k.newlabel("tu"); Lx = k.newlabel("tx")
        k.e("v_lshrrev_b32 v66, 1, v1", "s_lshl_b32 s36, s28, 5", "v_add_u32 v66, s36, v66", "v_mul_u32_u24 v66, 3584, v66", "v_and_b32 v67, 1, v1",
            "v_lshl_add_u32 v66, v67, 7, v66", "s_lshl_b32 s36, s26, 8", "v_add_u32 v66, s36, v66", "s_cmp_eq_u32 s27, 0", f"s_cbranch_scc0 {Lu}")
        k.vmem(f"buffer_load_dword v63, v66, s[{SG}:{SG+3}], s50 offen", "touch")
        k.e(f"s_branch {Lx}")
        k.label(Lu)
        k.e(f"buffer_load_dword v63, v66, s[{SU}:{SU+3}], s50 offen")
        k.label(Lx)
    k.e("s_xor_b32 s34, s27, s28")
    k.e("s_lshl_b32 s36, s27, 6", "v_add_u32 v13, s36, v11", "v_bfe_u32 v14, v13, 1, 3", "v_xor_b32 v14, v14, v12",
        "v_lshlrev_b32 v14, 4, v14", "v_lshl_add_u32 v2, v13, 7, v14", f"v_add_u32 v2, {XB}, v2",
        "s_lshl_b32 s35, s34, 5", "v_xor_b32 v2, s35, v2",
        "v_xor_b32 v3, 32, v2", "v_xor_b32 v4, 64, v2", "v_xor_b32 v5, 96, v2")
    k.e("v_bfe_u32 v15, v1, 2, 2", "v_lshl_add_u32 v13, v12, 3, v15", "v_lshlrev_b32 v6, 8, v13",
        "v_bfe_u32 v13, v1, 4, 1", "v_lshlrev_b32 v13, 1, v13", "v_bfe_u32 v14, v1, 1, 1", "v_add_u32 v13, v13, v14",
        "s_lshl_b32 s36, s28, 3", "v_add_u32 v13, s36, v13", "v_lshlrev_b32 v15, 2, v15",
        "v_xor_b32 v13, v13, v15", "v_lshl_add_u32 v6, v13, 4, v6", "v_and_b32 v14, 1, v1", "v_lshl_add_u32 v6, v14, 3, v6",
        "s_lshl_b32 s35, s34, 12", "v_xor_b32 v6, s35, v6",
        "v_xor_b32 v10, 64, v6", "v_xor_b32 v72, 4096, v6", "v_xor_b32 v73, 4096, v10")
    k.e(f"s_mov_b32 s{ONES}, 0x3f803f80")
    ST = 64
    for i in range(8): k.e(f"v_mov_b32 v{ST+i}, 0")
    SEL = 76; MA = 80
    if mst: sel_init(k, SEL, 13)
    ACC = 128
    def fr(st): return 16 + 24*st
    def acc(part, b, tb): return ACC + 16*(part*4 + b*2 + tb)
    def reads(g, st):
        b0 = fr(st); u = g >> 1; v = g >> 2
        def wr(part, b):
            d = b0 + 8 + 8*part + 4*b
            o = (u % 3)*16384 + part*8192
            av = ((6, 10), (72, 73))[g & 1][b]
            return [(f"ds_read_b64_tr_b16 v[{d}:{d+1}], v{av} offset:{o}", f"W{part}{b}"),
                    (f"ds_read_b64_tr_b16 v[{d+2}:{d+3}], v{av} offset:{o+1024}", f"W{part}{b}")]
        def xr(tb): return [(f"ds_read_b128 v[{b0+4*tb}:{b0+4*tb+3}], v{2 + (g & 3)} offset:{(v % 2)*16384 + tb*4096}", f"X{tb}")]
        return xr(0) + wr(0, 0) + xr(1) + wr(0, 1) + wr(1, 0) + wr(1, 1)
    def mfmas(g, st):
        out = []
        b0 = fr(st)
        for part in range(2):
            for b in range(2):
                for tb in range(2):
                    a = acc(part, b, tb); w = b0 + 8 + 8*part + 4*b; x = b0 + 4*tb
                    c = "0" if g == 0 else f"v[{a}:{a+15}]"
                    out.append((f"{MF} v[{a}:{a+15}], v[{w}:{w+3}], v[{x}:{x+3}], {c}", [f"X{tb}", f"W{part}{b}"]))
        if mst == 2 and (g & 1):
            def sm(j, src):
                a = MA + 4*j
                return f"{MF16} v[{a}:{a+3}], v[{src}:{src+3}], v[{SEL}:{SEL+3}], " + ("0" if g == 1 else f"v[{a}:{a+3}]")
            def sq(n):
                tb, i = n & 1, n >> 1
                t = 108 + 2*(n & 1); r = b0 + 4*tb + i; a = ST + 2*tb
                return (f"\nv_lshlrev_b32 v{t}, 16, v{r}\nv_and_b32 v{t+1}, 0xffff0000, v{r}\nv_pk_fma_f32 v[{a}:{a+1}], v[{t}:{t+1}], v[{t}:{t+1}], v[{a}:{a+1}]")
            o2 = []
            for j in range(4):
                part, b = j >> 1, j & 1
                o2.append((sm(2 + j, b0 + 8 + 8*part + 4*b), [f"W{part}{b}"]))
                for tb in range(2):
                    t, used = out[2*j + tb]
                    o2.append((t + sq(2*j + tb), used + ["X0", "X1"] if False else used + [f"X{(2*j+tb) & 1}"]))
            o2.append((sm(0, b0), ["X0"])); o2.append((sm(1, b0 + 4), ["X1"]))
            out = o2
        return out
    def fill0(u):
        b0 = fr(0); out = []
        if mst:
            def sm(j, src, nm):
                a = MA + 4*j
                return (f"{MF16} v[{a}:{a+3}], v[{src}:{src+3}], v[{SEL}:{SEL+3}], " + ("0" if u == 0 else f"v[{a}:{a+3}]"), nm)
            d2 = [(f"v_dot2_f32_bf16 v{ST+2*tb+1}, v{b0+4*tb+i}, v{b0+4*tb+i}, v{ST+2*tb+1}", f"X{tb}") for i in range(4) for tb in range(2)]
            sms = [sm(0, b0, "X0"), sm(1, b0+4, "X1")] + [sm(2 + 2*part + b, b0 + 8 + 8*part + 4*b, f"W{part}{b}") for part in range(2) for b in range(2)]
            for j in range(8):
                if j < 6: out.append(sms[j])
                out.append(d2[j])
            return out
        for i in range(4):
            for tb in range(2):
                x = b0 + 4*tb + i
                out.append((f"v_dot2_f32_bf16 v{ST+2*tb}, v{x}, s{ONES}, v{ST+2*tb}", f"X{tb}"))
                out.append((f"v_dot2_f32_bf16 v{ST+2*tb+1}, v{x}, v{x}, v{ST+2*tb+1}", f"X{tb}"))
            for part in range(2):
                for b in range(2):
                    w = b0 + 8 + 8*part + 4*b + i
                    out.append((f"v_dot2_f32_bf16 v{ST+4+2*part+b}, v{w}, s{ONES}, v{ST+4+2*part+b}", f"W{part}{b}"))
        return out
    def dmas(u):
        out = []
        if u + 2 < 16: out += wd(u + 2)
        if u % 2 == 0 and u//2 + 1 < 8: out += xd(u//2 + 1)
        return out
    k.stamp(1)
    if DBG1.get("fine"): pre_hooks = {0: lambda: k.stamp(2), 2: lambda: k.stamp(3), 4: lambda: k.stamp(4), 8: lambda: k.stamp(5)}
    gemm2(k, 16, mfmas, reads, dmas, lambda u: [("W", u), ("X", u >> 1)], fill0=(None if (DBG1.get("nostat3") or mst == 2) else fill0), rper=rper, dper=dper, hooks=hooks, pre_hooks=pre_hooks)
    k.stamp(6 if DBG1.get("fine") else 2)
    if epi_prio is not None: k.e(f"s_setprio {epi_prio}")
    if mst == 2: k.e(f"v_add_f32 v{ST+1}, v{ST}, v{ST+1}", f"v_add_f32 v{ST+3}, v{ST+2}, v{ST+3}")
    k.e("s_nop 2")
    if mst: half_sum(k, [ST+1, ST+3], [104, 105])
    else: half_sum(k, [ST+i for i in range(8)], [76+i for i in range(8)])
    SBASE = 73728
    k.e("s_barrier", "s_lshl_b32 s36, s24, 10", "v_lshlrev_b32 v13, 2, v11", "v_add_u32 v14, s36, v13", f"v_add_u32 v14, {SBASE}, v14")
    if mst:
        k.ds(f"ds_write_b32 v14, v{ST+1} offset:128"); k.ds(f"ds_write_b32 v14, v{ST+3} offset:384")
        k.e(f"s_add_u32 s36, s36, {SBASE}")
        sel_write(k, [(MA, 0), (MA+4, 256)] + [(MA+8+4*i, 512+128*i) for i in range(4)], 36, 15, 16)
    else:
        for i in range(8): k.ds(f"ds_write_b32 v14, v{ST+i} offset:{128*i}")
    k.e("v_xor_b32 v15, 2048, v14", "v_xor_b32 v16, 1024, v14")
    k.wait_lg_all()
    k.e("s_barrier")
    for i in range(4): k.ds(f"ds_read_b32 v{76+i}, v15 offset:{128*i}")
    for i in range(4, 8): k.ds(f"ds_read_b32 v{76+i}, v16 offset:{128*i}")
    if mst:
        for i in (0, 2, 4, 5, 6, 7): k.ds(f"ds_read_b32 v{ST+i}, v14 offset:{128*i}")
    if post_loop: post_loop()
    k.wait_lg_all()
    for i in range(8): k.e(f"v_add_f32 v{ST+i}, v{ST+i}, v{76+i}")
    for tb in range(2):
        row_stats(k, ST+2*tb, ST+2*tb+1, 84+tb, 86+tb, 88+tb)
    k.e("s_nop 0")
    for tb in range(2):
        k.e(f"v_mul_f32 v{88+tb}, v{88+tb}, v{86+tb}",
            f"v_mul_f32 v{86+tb}, 0x{f2u(-LOG2E):08x}, v{86+tb}", f"v_sub_f32 v{84+tb}, 0, v{84+tb}")
    k.e("s_lshl_b32 s36, s24, 9", f"s_add_u32 s36, s36, {SBASE + 4096}", "v_add_u32 v14, s36, v13", "v_lshlrev_b32 v15, 4, v12", "v_add_u32 v15, s36, v15")
    for i in range(4): k.ds(f"ds_write_b32 v14, v{ST+4+i} offset:{128*i}")
    k.wait_lg_all()
    CB = 16
    k.e("v_lshlrev_b32 v10, 4, v1",
        "s_lshl_b32 s36, s25, 2", "s_lshl_b32 s37, s27, 1", "s_add_u32 s36, s36, s37", "s_mul_i32 s36, s36, 112",
        "s_lshl_b32 s37, s26, 3", "s_add_u32 s36, s36, s37", "s_lshl_b32 s37, s28, 2", "s_add_u32 s36, s36, s37",
        "s_lshl_b32 s36, s36, 10", f"s_add_u32 s36, s36, 0x{WS_HF:x}")
    CR = [92, 16]
    for b in range(2):
        for part in range(2):
            for gq in range(4):
                d = CR[b] + 16*part + 4*gq
                k.ds(f"ds_read_b128 v[{d}:{d+3}], v15 offset:{128*(2*part + b) + 32*gq}", ("bc", b))
    n = 0
    for b in range(2):
        k.wait_lg(("bc", b))
        for tb in range(2):
            g = acc(0, b, tb); uu = acc(1, b, tb)
            for r in range(16): k.e(f"v_fmac_f32 v{g+r}, v{84+tb}, v{CR[b]+r}")
            for r in range(16): k.e(f"v_mul_f32 v{g+r}, v{g+r}, v{86+tb}")
            for r in range(16): k.e(f"v_exp_f32 v{g+r}, v{g+r}")
            for r in range(16): k.e(f"v_fmac_f32 v{uu+r}, v{84+tb}, v{CR[b]+16+r}")
            for r in range(16): k.e(f"v_fma_f32 v{g+r}, v{g+r}, v{88+tb}, v{88+tb}")
            for r in range(16): k.e(f"v_rcp_f32 v{g+r}, v{g+r}")
            k.e("s_nop 0")
            for r in range(16): k.e(f"v_mul_f32 v{g+r}, v{g+r}, v{uu+r}")
            for j in range(2):
                d = outb + 4*(n % 4); n += 1
                for i in range(4): k.e(f"v_cvt_pk_bf16_f32 v{d+i}, v{g+8*j+2*i}, v{g+8*j+2*i+1}")
                k.e(f"s_add_u32 s37, s36, {(tb*112 + b*2 + j)*1024}")
                k.vmem(f"buffer_store_dwordx4 v[{d}:{d+3}], v10, s[{SWS}:{SWS+3}], s37 offen {st_sc1}", "st")

def prep_role(k, SWS, s_idx, nwg, flags=True):
    per = (1 << 21) // nwg
    k.e("v_mov_b32 v40, -1", "v_mov_b32 v41, -1", "v_mov_b32 v42, -1", "v_mov_b32 v43, -1", "v_lshlrev_b32 v48, 4, v0",
        f"s_mul_i32 s34, s{s_idx}, {per}", f"s_add_u32 s34, s34, 0x{WS_OF:x}")
    for i in range(per // 4096):
        k.vmem(f"buffer_store_dwordx4 v[40:43], v48, s[{SWS}:{SWS+3}], s34 offen", "prep")
        k.e("s_add_u32 s34, s34, 4096")
    if flags:
        Lp = k.newlabel("prep")
        k.e("v_mov_b32 v44, 0", "v_mov_b32 v45, 0", "v_mov_b32 v46, 0", "v_mov_b32 v47, 0", f"s_mov_b32 s34, 0x{FLG_H:x}",
            f"s_lshl_b32 s35, s{s_idx}, 12", "s_add_u32 s34, s34, s35", f"s_cmp_ge_u32 s{s_idx}, 2", f"s_cbranch_scc1 {Lp}")
        k.vmem(f"buffer_store_dwordx4 v[44:47], v48, s[{SWS}:{SWS+3}], s34 offen", "prep", opt=True)
        k.label(Lp)

def k1s_kernel(name="k1_proj_kernel", map1=1, prio_a=None, prio_g=None, rot=0, **kw):
    k = KV(name, nvgpr=256)
    k.e("s_cmp_ge_u32 s2, 512", f"s_cbranch_scc1 L_end_{k.name}")
    fx = srd(k, 8, 0, SZ_X) + srd(k, 20, 72, WS_SIZE2)
    k.e("s_cmp_ge_u32 s2, 256", "s_cbranch_scc1 L_k1_g")
    fx1 = srd(k, 12, 8, SZ_WQKV)
    k.e("s_waitcnt lgkmcnt(0)"); k.e(*(fx + fx1))
    if prio_a is not None: k.e(f"s_setprio {prio_a}")
    if map1 == 0: k.e("s_and_b32 s26, s2, 7", "s_lshr_b32 s25, s2, 3")
    elif map1 == 3:
        k.e("s_and_b32 s3, s2, 7", "s_lshr_b32 s4, s2, 3", "s_and_b32 s5, s3, 1", "s_lshl_b32 s26, s5, 2", "s_and_b32 s5, s4, 3", "s_add_u32 s26, s26, s5",
            "s_lshr_b32 s25, s3, 1", "s_lshl_b32 s25, s25, 3", "s_lshr_b32 s5, s4, 2", "s_add_u32 s25, s25, s5")
    else: k.e("s_and_b32 s3, s2, 7", "s_lshr_b32 s4, s2, 3", "s_and_b32 s5, s4, 3", "s_lshl_b32 s25, s3, 2", "s_add_u32 s25, s25, s5", "s_lshr_b32 s26, s4, 2")
    if rot:
        if map1 == 3:
            k.e("s_and_b32 s53, s26, 3", "s_lshl_b32 s53, s53, 1", "s_add_u32 s53, s53, s25", "s_and_b32 s53, s53, 7")
        elif map1 == 1:
            k.e("s_and_b32 s53, s25, 3", "s_lshl_b32 s53, s53, 1", "s_add_u32 s53, s53, s26", "s_and_b32 s53, s53, 7")
        else:
            k.e("s_and_b32 s53, s25, 7")
    k.stamp(0)
    e1s_body(k, rot=bool(rot))
    k.wait_vm_all()
    if DBG1.get("fine"): k.stamp(7); k.stamp_out(8, 0)
    else: k.stamp(3); k.stamp_out(4, 0)
    k.wait_vm_all()
    k.e("s_endpgm")
    k.label("L_k1_g")
    k.vm = []; k.lg = []
    k.e("s_cmp_ge_u32 s2, 480", "s_cbranch_scc1 L_k1_pf")
    fx3 = srd(k, 12, 32, SZ_WG) + srd(k, 16, 40, SZ_WG)
    k.e("s_waitcnt lgkmcnt(0)"); k.e(*(fx + fx3))
    if prio_g is not None: k.e(f"s_setprio {prio_g}")
    k.e("s_sub_u32 s3, s2, 256", "s_and_b32 s92, s3, 7", "s_lshr_b32 s93, s3, 3")
    k.e("s_and_b32 s26, s92, 1", "s_mul_i32 s26, s26, 7", "s_lshr_b32 s94, s93, 2", "s_add_u32 s26, s26, s94",
        "s_lshr_b32 s25, s92, 1", "s_lshl_b32 s25, s25, 2", "s_and_b32 s95, s93, 3", "s_add_u32 s25, s25, s95")
    if rot: k.e("s_lshl_b32 s53, s95, 1", "s_add_u32 s53, s53, s94", "s_and_b32 s53, s53, 7")
    k.stamp(0)
    e3s_body(k, rot=bool(rot))
    k.wait_vm_all()
    if DBG1.get("fine"): k.stamp(7); k.stamp_out(8, 0)
    else: k.stamp(3); k.stamp_out(4, 0)
    k.wait_vm_all()
    k.e("s_endpgm")
    k.label("L_k1_pf")
    k.vm = []; k.lg = []
    fxp = srd(k, 12, 48, SZ_WD) + srd(k, 16, 16, SZ_WO)
    k.e("s_waitcnt lgkmcnt(0)"); k.e(*(fx + fxp))
    k.e("s_sub_u32 s3, s2, 480")
    prep_role(k, 20, 3, 32)
    if not DBG1.get("nopf"): prefetch_role(k, [(12, SZ_WD), (16, SZ_WO)], 3, 32)
    k.label(f"L_end_{k.name}")
    k.e("s_endpgm")
    k.emit_tails()
    return k

def k1t_kernel(name="k1_proj_kernel", prio_a=None, prio_g=None, **kw):
    k = KV(name, nvgpr=256)
    k.e("s_cmp_ge_u32 s2, 512", f"s_cbranch_scc1 L_end_{k.name}")
    fx = srd(k, 8, 0, SZ_X) + srd(k, 20, 72, WS_SIZE2)
    k.e("s_cmp_lt_u32 s2, 256", "s_cbranch_scc1 L_k1_g")
    fx1 = srd(k, 12, 8, SZ_WQKV)
    k.e("s_waitcnt lgkmcnt(0)"); k.e(*(fx + fx1))
    if prio_a is not None: k.e(f"s_setprio {prio_a}")
    k.e("s_and_b32 s3, s2, 7", "s_lshr_b32 s4, s2, 3", "s_and_b32 s4, s4, 31", "s_and_b32 s5, s3, 1", "s_lshl_b32 s26, s5, 2", "s_and_b32 s5, s4, 3", "s_add_u32 s26, s26, s5",
        "s_lshr_b32 s25, s3, 1", "s_lshl_b32 s25, s25, 3", "s_lshr_b32 s5, s4, 2", "s_add_u32 s25, s25, s5")
    k.e("s_and_b32 s53, s26, 3", "s_lshl_b32 s53, s53, 1", "s_add_u32 s53, s53, s25", "s_and_b32 s53, s53, 7")
    k.stamp(0)
    e1s_body(k, rot=True)
    k.wait_vm_all()
    if DBG1.get("fine"): k.stamp(7); k.stamp_out(8, 0)
    else: k.stamp(3); k.stamp_out(4, 0)
    k.wait_vm_all()
    k.e("s_endpgm")
    k.label("L_k1_g")
    k.vm = []; k.lg = []
    k.e("s_cmp_ge_u32 s2, 224", "s_cbranch_scc1 L_k1_pf")
    fx3 = srd(k, 12, 32, SZ_WG) + srd(k, 16, 40, SZ_WG)
    k.e("s_waitcnt lgkmcnt(0)"); k.e(*(fx + fx3))
    if prio_g is not None: k.e(f"s_setprio {prio_g}")
    k.e("s_and_b32 s92, s2, 7", "s_lshr_b32 s93, s2, 3")
    k.e("s_and_b32 s26, s92, 1", "s_mul_i32 s26, s26, 7", "s_lshr_b32 s94, s93, 2", "s_add_u32 s26, s26, s94",
        "s_lshr_b32 s25, s92, 1", "s_lshl_b32 s25, s25, 2", "s_and_b32 s95, s93, 3", "s_add_u32 s25, s25, s95")
    k.e("s_lshl_b32 s53, s95, 1", "s_add_u32 s53, s53, s94", "s_and_b32 s53, s53, 7")
    k.stamp(0)
    e3s_body(k, rot=True)
    k.wait_vm_all()
    if DBG1.get("fine"): k.stamp(7); k.stamp_out(8, 0)
    else: k.stamp(3); k.stamp_out(4, 0)
    k.wait_vm_all()
    k.e("s_endpgm")
    k.label("L_k1_pf")
    k.vm = []; k.lg = []
    fxp = srd(k, 12, 48, SZ_WD) + srd(k, 16, 16, SZ_WO)
    k.e("s_waitcnt lgkmcnt(0)"); k.e(*(fx + fxp))
    k.e("s_sub_u32 s3, s2, 224")
    prep_role(k, 20, 3, 32)
    if not DBG1.get("nopf"): prefetch_role(k, [(12, SZ_WD), (16, SZ_WO)], 3, 32)
    k.label(f"L_end_{k.name}")
    k.e("s_endpgm")
    k.emit_tails()
    return k

def kB4_kernel(name="kb_main_kernel", prio_a=None, prio_g=None, e4_prio=None, post_prio=None, osleep=2, **kw):
    k = KV(name, nvgpr=256)
    k.e("s_cmp_ge_u32 s2, 512", f"s_cbranch_scc1 L_end_{k.name}")
    fx = srd(k, 20, 72, WS_SIZE2)
    k.e("s_cmp_ge_u32 s2, 256", "s_cbranch_scc1 L_kb_g")
    k.e("s_waitcnt lgkmcnt(0)"); k.e(*fx)
    if prio_a is not None: k.e(f"s_setprio {prio_a}")
    k.e("s_and_b32 s3, s2, 7", "s_lshr_b32 s4, s2, 3", "s_and_b32 s5, s4, 3", "s_lshl_b32 s25, s3, 2", "s_add_u32 s25, s25, s5", "s_lshr_b32 s26, s4, 2")
    k.stamp(0)
    e2_body(k, st_sc1="sc1", oflag=True, **kw)
    k.wait_vm_all()
    k.stamp(3); k.stamp_out(4, 0x20000); k.wait_vm_all()
    k.e("s_endpgm")
    fb = k.fb_code
    k.label("L_kb_g")
    k.vm = []; k.lg = []
    SD, SO, SX, SOUT = 84, 88, 8, 4
    fx3 = srd(k, SD, 48, SZ_WD) + srd(k, SO, 16, SZ_WO) + srd(k, SX, 0, SZ_X) + srd(k, SOUT, 56, SZ_X)
    k.e("s_waitcnt lgkmcnt(0)"); k.e(*(fx + fx3))
    if prio_g is not None: k.e(f"s_setprio {prio_g}")
    e4 = E4F(k, SD, SO, 20, SX, SOUT, osleep=osleep)
    c = e4
    k.e("s_sub_u32 s3, s2, 256", "s_and_b32 s92, s3, 7", "s_lshr_b32 s93, s3, 3",
        f"s_and_b32 s{c.SRB}, s93, 3", "s_lshl_b32 s94, s92, 2", f"s_add_u32 s{c.SRB}, s{c.SRB}, s94", f"s_lshr_b32 s{c.SCB}, s93, 2")
    k.e("v_and_b32 v1, 63, v0", "v_lshrrev_b32 v10, 6, v0", "s_nop 0", "v_readfirstlane_b32 s24, v10", "s_nop 3")
    k.stamp(0)
    e4.setup()
    e4.e4_prio = e4_prio; e4.post_prio = post_prio
    e4.body(pre_issued=False, st=(1, 2), hwait=False)
    k.wait_vm_all()
    k.stamp(4); k.stamp_out(5, 0x40000); k.wait_vm_all()
    k.label(f"L_end_{k.name}")
    k.e("s_endpgm")
    fb()
    k.emit_tails()
    return k
```

```python
import sys
sys.path.insert(0, "gen")
from eng import *
import eng, haz

FLG_GO = FLG + 0x8000

def epoch_issue_all(k, vd):
    k.e(f"v_mov_b32 v{vd+2}, 0")
    k.vmem(f"global_load_dwordx2 v[{vd}:{vd+1}], v{vd+2}, s[{SDBG}:{SDBG+1}] sc1", "ep")

def epoch_check_all(k, vd):
    Ls = k.newlabel("eps"); Lc = k.newlabel("epc")
    k.wait_vm("ep")
    k.e(f"v_readfirstlane_b32 s{SEP}, v{vd}", f"v_readfirstlane_b32 s{SEP+1}, v{vd+1}", "s_nop 3", f"s_cmp_eq_u32 s{SEP}, 0", f"s_cbranch_scc1 {Ls}")
    k.label(Lc)
    def tail():
        k.label(Ls)
        k.e(f"s_mov_b32 s{SCNT}, 0")
        k.label(Ls + "_l")
        k.e(f"global_load_dwordx2 v[{vd}:{vd+1}], v{vd+2}, s[{SDBG}:{SDBG+1}] sc1", f"s_add_u32 s{SCNT}, s{SCNT}, 1", "s_waitcnt vmcnt(0)",
            f"v_readfirstlane_b32 s{SEP}, v{vd}", f"v_readfirstlane_b32 s{SEP+1}, v{vd+1}", "s_nop 3", f"s_cmp_lg_u32 s{SEP}, 0", f"s_cbranch_scc1 {Lc}",
            "s_sleep 2", f"s_cmp_lt_u32 s{SCNT}, 0x{SPIN_MAX:x}", f"s_cbranch_scc1 {Ls}_l", f"s_branch {Lc}")
    k.tails.append(tail)

def tag_check(k, issue, tagregs, name, zero):
    Ls = k.newlabel(name + "s"); Lc = k.newlabel(name + "c")
    def cmp():
        k.e(f"v_cmp_eq_u32 vcc, s{SEP}, v{tagregs[0]}")
        for r in tagregs[1:]:
            k.e(f"v_cmp_eq_u32 s[36:37], s{SEP}, v{r}", "s_nop 1", "s_and_b64 vcc, vcc, s[36:37]")
        k.e("s_cmp_eq_u64 vcc, -1")
    cmp()
    k.e(f"s_cbranch_scc0 {Ls}")
    k.label(Lc)
    zero()
    def tail():
        k.label(Ls)
        k.e(f"s_mov_b32 s{SCNT}, 0")
        k.label(Ls + "_l")
        sv = (k.vm, k.lg)
        issue()
        k.vm, k.lg = sv
        k.e(f"s_add_u32 s{SCNT}, s{SCNT}, 1", "s_waitcnt vmcnt(0)")
        cmp()
        k.e(f"s_cbranch_scc1 {Lc}", "s_sleep 1", f"s_cmp_lt_u32 s{SCNT}, 0x{SPIN_MAX:x}", f"s_cbranch_scc1 {Ls}_l", f"s_branch {Lc}")
    k.tails.append(tail)

def row_job2(k, s_job, srd_x, srd_ws):
    k.e("v_and_b32 v1, 63, v0", "v_lshrrev_b32 v2, 6, v0", f"s_lshl_b32 s40, s{s_job}, 14",
        "v_lshlrev_b32 v3, 12, v2", "v_lshl_add_u32 v3, v1, 4, v3", "v_add_u32 v3, s40, v3")
    for j in range(4):
        k.vmem(f"buffer_load_dwordx4 v[{4+4*j}:{7+4*j}], v3, s[{srd_x}:{srd_x+3}], 0 offen offset:{1024*j}", "rj")
    k.e("v_bfe_u32 v72, v1, 1, 2", "v_cmp_eq_u32 s[42:43], 1, v72", "v_cmp_eq_u32 s[44:45], 2, v72", "v_cmp_eq_u32 s[46:47], 3, v72")
    k.wait_vm("rj")
    epoch_issue_all(k, 74)
    for j in range(4):
        for i in range(4):
            k.e(f"v_lshlrev_b32 v{32+8*j+2*i}, 16, v{4+4*j+i}", f"v_and_b32 v{33+8*j+2*i}, 0xffff0000, v{4+4*j+i}")
    for j in range(4):
        b = 32 + 8*j
        k.e(f"v_add_f32 v{20+j}, v{b}, v{b+1}")
    for i in range(2, 8):
        for j in range(4):
            k.e(f"v_add_f32 v{20+j}, v{20+j}, v{32+8*j+i}")
    allreduce(k, [20, 21, 22, 23], [24, 25, 26, 27])
    for j in range(4): k.e(f"v_mul_f32 v{20+j}, 0x3b000000, v{20+j}")
    for i in range(8):
        for j in range(4): k.e(f"v_sub_f32 v{32+8*j+i}, v{32+8*j+i}, v{20+j}")
    for j in range(4): k.e(f"v_mul_f32 v{28+j}, v{32+8*j}, v{32+8*j}")
    for i in range(1, 8):
        for j in range(4): k.e(f"v_fmac_f32 v{28+j}, v{32+8*j+i}, v{32+8*j+i}")
    allreduce(k, [28, 29, 30, 31], [24, 25, 26, 27])
    k.e("v_cndmask_b32 v64, v20, v21, s[42:43]", "v_cndmask_b32 v65, v28, v29, s[42:43]",
        "v_cndmask_b32 v64, v64, v22, s[44:45]", "v_cndmask_b32 v65, v65, v30, s[44:45]",
        "v_cndmask_b32 v64, v64, v23, s[46:47]", "v_cndmask_b32 v65, v65, v31, s[46:47]")
    k.e("v_mov_b32 v66, 0x3727c5ac", "v_fmac_f32 v66, 0x3b000000, v65",
        "v_rsq_f32 v67, v66", "v_sub_f32 v64, 0, v64",
        "v_mul_f32 v68, v66, v67",
        "v_cvt_pk_bf16_f32 v69, v64, v64", "s_nop 0", "v_and_b32 v69, 0xffff0000, v69", "v_sub_f32 v70, v64, v69",
        "v_cvt_pk_bf16_f32 v69, v70, v70", "s_nop 0", "v_and_b32 v69, 0xffff0000, v69", "v_sub_f32 v71, v70, v69",
        "v_cvt_pk_bf16_f32 v4, v64, v70", "v_cvt_pk_bf16_f32 v6, v71, v64",
        "v_and_b32 v72, 1, v1", "v_cmp_eq_u32 vcc, 1, v72", "v_mov_b32 v5, v4")
    k.e(f"s_lshl_b32 s40, s{s_job}, 9", "v_lshlrev_b32 v3, 7, v2", "v_lshl_add_u32 v3, v1, 4, v3", "v_add_u32 v3, s40, v3")
    epoch_check_all(k, 74)
    k.e(f"v_mov_b32 v7, s{SEP}",
        "v_cndmask_b32 v4, v4, v67, vcc", "v_cndmask_b32 v5, v5, v68, vcc", "v_cndmask_b32 v6, v6, v7, vcc")
    k.e("v_cmp_gt_u32 vcc, 8, v1", "s_and_saveexec_b64 s[42:43], vcc")
    k.vmem(f"buffer_store_dwordx4 v[4:7], v3, s[{srd_ws}:{srd_ws+3}], 0 offen offset:{WS_TOK} sc1", "st")
    k.e("s_mov_b64 exec, s[42:43]")

def col_job2(k, s_job, srd_w, s_ld, s_col0b, srd_ws):
    k.e("v_and_b32 v1, 63, v0", "v_lshrrev_b32 v2, 6, v0", "v_lshrrev_b32 v3, 3, v1", "v_lshl_add_u32 v3, v2, 7, v3",
        f"v_mul_lo_u32 v3, v3, s{s_ld}", "v_and_b32 v4, 7, v1", "v_lshl_add_u32 v3, v4, 4, v3", f"v_add_u32 v3, s{s_col0b}, v3",
        f"s_lshl_b32 s41, s{s_ld}, 3", "s_mov_b32 s40, 0")
    for i in range(16):
        k.vmem(f"buffer_load_dwordx4 v[{8+4*i}:{11+4*i}], v3, s[{srd_w}:{srd_w+3}], s40 offen", ("cj", i))
        if i < 15: k.e("s_add_u32 s40, s40, s41")
    k.e("s_mov_b32 s42, 0x00003f80", "s_mov_b32 s43, 0x3f800000")
    A = 80
    for i in range(8): k.e(f"v_mov_b32 v{A+i}, 0")
    for i in range(16):
        k.wait_vm(("cj", i))
        if i == 15: epoch_issue_all(k, 74)
        for d in range(4):
            k.e(f"v_dot2_f32_bf16 v{A+2*d}, v{8+4*i+d}, s42, v{A+2*d}", f"v_dot2_f32_bf16 v{A+1+2*d}, v{8+4*i+d}, s43, v{A+1+2*d}")
    k.e("s_nop 2")
    for i in range(8): k.e(f"v_add_f32_dpp v{A+i}, v{A+i}, v{A+i} row_ror:8 row_mask:0xf bank_mask:0xf")
    k.e("v_lshrrev_b32 v5, 4, v1", "v_lshl_add_u32 v5, v2, 2, v5", "v_lshlrev_b32 v5, 8, v5", "v_lshl_add_u32 v5, v4, 5, v5",
        "v_and_b32 v6, 15, v1", "v_cmp_gt_u32 vcc, 8, v6", "s_and_saveexec_b64 s[44:45], vcc")
    k.ds(f"ds_write_b128 v5, v[{A}:{A+3}]")
    k.ds(f"ds_write_b128 v5, v[{A+4}:{A+7}] offset:16")
    k.e("s_mov_b64 exec, s[44:45]")
    k.wait_lg_all()
    k.e("s_barrier")
    k.e("v_lshlrev_b32 v5, 2, v1")
    for p in range(16): k.ds(f"ds_read_b32 v{8+p}, v5 offset:{256*p}")
    k.wait_lg_all()
    for st in (8, 4, 2, 1):
        for p in range(st): k.e(f"v_add_f32 v{8+p}, v{8+p}, v{8+p+st}")
    k.e("s_nop 0",
        "v_cvt_pk_bf16_f32 v12, v8, v8", "s_nop 0", "v_and_b32 v9, 0xffff0000, v12", "v_sub_f32 v9, v8, v9",
        "v_cvt_pk_bf16_f32 v13, v9, v9", "s_nop 0", "v_and_b32 v10, 0xffff0000, v13", "v_sub_f32 v10, v9, v10",
        "v_cvt_pk_bf16_f32 v14, v8, v10",
        f"s_lshl_b32 s40, s{s_job}, 10", "v_lshlrev_b32 v5, 4, v1", "v_add_u32 v5, s40, v5", f"s_mov_b32 s40, {WS_COL}")
    epoch_check_all(k, 74)
    k.e(f"v_mov_b32 v15, s{SEP}", "v_cmp_gt_u32 vcc, 64, v0", "s_and_saveexec_b64 s[44:45], vcc")
    Lx = k.newlabel("cjx")
    k.e(f"s_cbranch_execz {Lx}")
    k.vmem(f"buffer_store_dwordx4 v[12:15], v5, s[{srd_ws}:{srd_ws+3}], s40 offen sc1", "st", opt=True)
    k.label(Lx)
    k.e("s_mov_b64 exec, s[44:45]")
    k.e("s_barrier")

def stats_role2(k, SWQ=28, xal=False):
    Lc = k.newlabel("stc"); Ld = k.newlabel("std"); Lg = k.newlabel("stg")
    k.e("s_cmp_ge_u32 s3, 208", f"s_cbranch_scc1 {Ld}", "s_cmp_ge_u32 s3, 128", f"s_cbranch_scc1 {Lc}")
    if xal:
        k.e("s_and_b32 s96, s3, 7", "s_lshr_b32 s97, s3, 3", "s_lshl_b32 s96, s96, 4", "s_add_u32 s98, s96, s97")
    else: k.e("s_mov_b32 s98, s3")
    row_job2(k, 98, 8, 20)
    k.e(f"s_branch {Ld}")
    k.label(Lc)
    v0 = list(k.vm)
    k.vm = []; k.lg = []
    k.e("s_sub_u32 s98, s3, 128")
    if xal:
        La = k.newlabel("xa"); Lb = k.newlabel("xb")
        k.e("s_and_b32 s96, s98, 7", "s_lshr_b32 s97, s98, 3", "s_cmp_ge_u32 s97, 3", f"s_cbranch_scc1 {La}",
            "s_and_b32 s92, s96, 1", "s_lshl_b32 s92, s92, 2", "s_lshr_b32 s93, s96, 1", "s_add_u32 s92, s92, s93", "s_lshl_b32 s98, s97, 3", "s_add_u32 s98, s98, s92", f"s_branch {Lb}")
        k.label(La)
        k.e("s_lshr_b32 s92, s96, 1", "s_mul_i32 s92, s92, 7", "s_add_u32 s92, s92, s97", "s_sub_u32 s92, s92, 3",
            "s_and_b32 s93, s96, 1", "s_mul_i32 s93, s93, 7", "s_lshr_b32 s94, s92, 2", "s_add_u32 s93, s93, s94",
            "s_lshl_b32 s93, s93, 1", "s_and_b32 s94, s92, 1", "s_add_u32 s93, s93, s94",
            "s_bfe_u32 s94, s92, 0x10001", "s_mul_i32 s94, s94, 28", "s_add_u32 s98, s93, s94", "s_add_u32 s98, s98, 24")
        k.label(Lb)
    k.e(
        f"s_mov_b32 s92, s{SWQ}", f"s_mov_b32 s93, s{SWQ+1}", f"s_mov_b32 s94, {SZ_WQKV}", "s_mov_b32 s95, 0x00020000",
        "s_movk_i32 s96, 3072", "s_lshl_b32 s97, s98, 7",
        "s_cmp_lt_u32 s98, 24", f"s_cbranch_scc1 {Lg}",
        "s_mov_b32 s92, s12", "s_mov_b32 s93, s13", f"s_mov_b32 s94, {SZ_WG}", "s_movk_i32 s96, 3584",
        "s_sub_u32 s97, s98, 24", "s_lshl_b32 s97, s97, 7",
        "s_cmp_lt_u32 s98, 52", f"s_cbranch_scc1 {Lg}",
        "s_mov_b32 s92, s16", "s_mov_b32 s93, s17", "s_sub_u32 s97, s98, 52", "s_lshl_b32 s97, s97, 7")
    k.label(Lg)
    col_job2(k, 98, 92, 96, 97, 20)
    k.label(Ld)
    k.vm = [("st", True)]; k.lg = []

def e1x_body(k, SX=8, SW=12, SWS=20, rot=True, ux=11, pre_store=None, dup=False, rper=5, dper=2, notag=False, touch=False, fine=False):
    E1_XB = 49152
    k.e("v_and_b32 v1, 63, v0")
    k.e("v_and_b32 v11, 31, v1", "v_lshrrev_b32 v12, 5, v1")
    k.e("s_and_b32 s27, s24, 1", "s_lshr_b32 s28, s24, 1")
    k.e("v_lshrrev_b32 v13, 3, v1", "v_lshrrev_b32 v14, 4, v1", "v_and_b32 v15, 7, v1",
        "v_xor_b32 v7, v15, v14", "v_lshlrev_b32 v7, 4, v7", "v_lshl_add_u32 v7, v13, 10, v7",
        "s_lshl_b32 s29, s25, 16", "s_lshl_b32 s30, s24, 14", "s_add_u32 s29, s29, s30",
        "v_add_u32 v7, s29, v7", "v_xor_b32 v8, 64, v7", "v_add_u32 v8, 8192, v8")
    k.e("v_and_b32 v14, 1, v14", "v_lshlrev_b32 v14, 2, v14", "v_xor_b32 v9, v15, v14", "v_lshlrev_b32 v9, 4, v9",
        "s_lshl_b32 s30, s24, 3", "v_add_u32 v13, s30, v13", "v_mul_u32_u24 v13, 3072, v13", "v_add_u32 v9, v9, v13",
        "s_lshl_b32 s30, s26, 7", "v_add_u32 v9, s30, v9")
    k.e(f"s_lshl_b32 s31, s24, 11", f"s_add_u32 s31, s31, {E1_XB}", "s_lshl_b32 s32, s24, 10")
    def xd(v):
        if rot:
            return [dmab(SX, 7, 31, (v % 3)*8192, 33, 51, 0, ("X", v)),
                    dmab(SX, 8, 31, (v % 3)*8192 + 1024, 33, 51, 0, ("X", v), post=["s_add_u32 s51, s51, 128", "s_and_b32 s51, s51, 1023"])]
        return [dma(SX, 7, 31, (v % 3)*8192, 33, v*128, ("X", v)), dma(SX, 8, 31, (v % 3)*8192 + 1024, 33, v*128, ("X", v))]
    def wd(u):
        if rot:
            return [dmab(SW, 9, 32, (u % 4)*12288 + p*4096, 33, 50, 0, ("W", u), imm=1024*p, post=(rot_adv(50, 32*3072, 512*3072, 52) if p == 2 else ())) for p in range(3)]
        return [dma(SW, 9, 32, (u % 4)*12288 + p*4096, 33, u*32*3072, ("W", u), imm=1024*p) for p in range(3)]
    if rot:
        k.e("s_lshl_b32 s51, s53, 7", f"s_mul_i32 s50, s53, {64*3072}")
    if touch:
        k.e("v_lshrrev_b32 v130, 3, v1", "v_and_b32 v131, 7, v1", "v_lshlrev_b32 v131, 7, v131", "v_lshl_add_u32 v130, v130, 10, v131",
            "s_and_b32 s34, s26, 3", "s_lshl_b32 s34, s34, 4", "s_lshl_b32 s35, s24, 2", "s_add_u32 s34, s34, s35", "s_lshl_b32 s34, s34, 10", "s_lshl_b32 s35, s25, 16", "s_add_u32 s34, s34, s35",
            "s_mov_b32 exec_hi, 0")
        k.vmem(f"buffer_load_dword v132, v130, s[{SX}:{SX+3}], s34 offen", "touch")
        k.e("s_mov_b32 exec_hi, -1")
        k.e("v_and_b32 v130, 15, v1", "v_mul_u32_u24 v130, 3072, v130", "v_lshrrev_b32 v131, 4, v1", "v_lshl_add_u32 v130, v131, 10, v130",
            "s_and_b32 s34, s25, 7", "s_lshl_b32 s34, s34, 6", "s_lshl_b32 s35, s24, 4", "s_add_u32 s34, s34, s35", "s_mul_i32 s34, s34, 3072", "s_lshl_b32 s35, s26, 7", "s_add_u32 s34, s34, s35",
            "s_mov_b32 exec_hi, 0xffff")
        k.vmem(f"buffer_load_dword v133, v130, s[{SW}:{SW+3}], s34 offen", "touch")
        k.e("s_mov_b32 exec_hi, -1")
    emit_groups(k, xd(0) + wd(0) + wd(1) + xd(1) + wd(2))
    k.e("s_lshl_b32 s36, s27, 5", "v_add_u32 v13, s36, v11", "v_bfe_u32 v14, v13, 1, 3", "v_xor_b32 v14, v14, v12",
        "v_lshlrev_b32 v14, 4, v14", "v_lshl_add_u32 v2, v13, 7, v14", f"v_add_u32 v2, {E1_XB}, v2",
        "v_xor_b32 v3, 32, v2", "v_xor_b32 v4, 64, v2", "v_xor_b32 v5, 96, v2")
    k.e("v_bfe_u32 v13, v1, 2, 2", "v_lshl_add_u32 v13, v12, 3, v13", "v_lshlrev_b32 v6, 7, v13",
        "v_bfe_u32 v13, v1, 4, 1", "v_lshlrev_b32 v13, 1, v13", "v_bfe_u32 v14, v1, 1, 1", "v_add_u32 v13, v13, v14",
        "s_lshl_b32 s36, s28, 2", "v_add_u32 v13, s36, v13", "v_bfe_u32 v14, v1, 3, 1", "v_lshlrev_b32 v14, 2, v14",
        "v_xor_b32 v13, v13, v14", "v_lshl_add_u32 v6, v13, 4, v6", "v_and_b32 v14, 1, v1", "v_lshl_add_u32 v6, v14, 3, v6",
        "v_xor_b32 v10, 2048, v6")
    k.e("s_lshl_b32 s34, s25, 6", "s_lshl_b32 s35, s27, 5", "s_add_u32 s34, s34, s35", "v_add_u32 v117, s34, v11", "v_lshlrev_b32 v117, 5, v117",
        "s_lshl_b32 s35, s26, 6", "s_lshl_b32 s36, s28, 5", "s_add_u32 s35, s35, s36", "v_add_u32 v118, s35, v11", "v_lshlrev_b32 v118, 4, v118")
    def extras():
        k.vmem(f"buffer_load_dwordx4 v[48:51], v117, s[{SWS}:{SWS+3}], 0 offen offset:{WS_TOK} sc1", "ex")
        k.vmem(f"buffer_load_dwordx4 v[112:115], v117, s[{SWS}:{SWS+3}], 0 offen offset:{WS_TOK+16} sc1", "ex")
        for p in range(3):
            k.e(f"s_mov_b32 s36, {WS_COL + 8192*p}")
            k.vmem(f"buffer_load_dwordx4 v[{52+4*p}:{55+4*p}], v118, s[{SWS}:{SWS+3}], s36 offen sc1", "ex")
    ACC = 64
    def fr(st): return 16 + 16*st
    def reads(g, st):
        b = fr(st); u = g >> 1; v = g >> 2
        out = [(f"ds_read_b128 v[{b}:{b+3}], v{2 + (g & 3)} offset:{(v % 3)*8192}", "X")]
        av = 6 if (g & 1) == 0 else 10
        for p in range(3):
            o = (u % 4)*12288 + p*4096
            out.append((f"ds_read_b64_tr_b16 v[{b+4+4*p}:{b+5+4*p}], v{av} offset:{o}", f"W{p}"))
            out.append((f"ds_read_b64_tr_b16 v[{b+6+4*p}:{b+7+4*p}], v{av} offset:{o+512}", f"W{p}"))
        return out
    def mf(b_x, b_w, first):
        out = []
        for p in range(3):
            a = ACC + 16*p
            w = f"v[{b_w+4*p}:{b_w+4*p+3}]"; x = f"v[{b_x}:{b_x+3}]"
            A, B = (w, x) if p < 2 else (x, w)
            c = "0" if first else f"v[{a}:{a+15}]"
            out.append((f"{MF} v[{a}:{a+15}], {A}, {B}, {c}", ["X", f"W{p}"]))
        return out
    def mfmas(g, st): return mf(fr(st), fr(st) + 4, g == 0)
    def dmas(u):
        out = []
        if u + 3 < 16: out += wd(u + 3)
        if u % 2 == 0 and u//2 + 2 < 8: out += xd(u//2 + 2)
        return out
    hooks = {ux - 1: [lambda: epoch_issue_all(k, 120)], ux: [extras]}
    pre_hooks = None
    if fine: pre_hooks = {0: lambda: k.stamp(9), 1: lambda: k.stamp(10), 4: lambda: k.stamp(11), 10: lambda: k.stamp(12)}
    k.stamp(1)
    gemm2(k, 16, mfmas, reads, dmas, lambda u: [("W", u), ("X", u >> 1)], fill0=None, rper=rper, dper=dper, hooks=hooks, pre_hooks=pre_hooks)
    k.stamp(2)
    epoch_check_all(k, 120)
    k.wait_vm("ex")
    def zero():
        for r in (51, 55, 59, 63): k.e(f"v_mov_b32 v{r}, 0")
        k.e("s_mov_b32 exec_lo, 0")
        for r in range(48, 64):
            if r not in (51, 55, 59, 63): k.e(f"v_mov_b32 v{r}, 0")
        k.e("s_mov_b32 exec_lo, -1", "s_nop 1")
    if notag: zero()
    else: tag_check(k, extras, [51, 114, 55, 59, 63], "x1", zero)
    for (t, _) in mf(48, 52, False): k.e(t)
    k.e("s_lshl_b32 s36, s24, 7", "v_lshlrev_b32 v13, 2, v11", "v_add_u32 v13, s36, v13")
    k.ds("ds_write_b32 v13, v112")
    k.e("v_lshlrev_b32 v13, 4, v12", "v_add_u32 v13, s36, v13")
    k.wait_lg_all()
    for gq in range(4): k.ds(f"ds_read_b128 v[{32+4*gq}:{35+4*gq}], v13 offset:{32*gq}")
    k.e(f"v_mul_f32 v113, 0x{f2u(0.25*LOG2E):08x}, v112")
    if pre_store: pre_store()
    k.e("v_lshlrev_b32 v10, 4, v1",
        "s_lshl_b32 s36, s26, 2", "s_lshl_b32 s37, s28, 1", "s_add_u32 s36, s36, s37", "s_lshl_b32 s36, s36, 16",
        "s_lshl_b32 s37, s25, 1", "s_add_u32 s37, s37, s27", "s_lshl_b32 s37, s37, 10", "s_add_u32 s36, s36, s37")
    k.e("v_lshrrev_b32 v17, 4, v11", "v_lshlrev_b32 v17, 16, v17", "v_lshl_add_u32 v17, v12, 8, v17", "v_and_b32 v18, 15, v11", "v_lshl_add_u32 v17, v18, 4, v17")
    k.e("s_nop 4")
    modes = ("sc1", "") if dup else ("sc1",)
    for p, (scale, base) in enumerate(((113, WS_QF), (112, WS_KF))):
        a = ACC + 16*p
        for r in range(16): k.e(f"v_mul_f32 v{a+r}, v{a+r}, v{scale}")
        for j in range(2):
            d = 20 + 8*p + 4*j if p == 0 else 48 + 4*j
            for i in range(4): k.e(f"v_cvt_pk_bf16_f32 v{d+i}, v{a+8*j+2*i}, v{a+8*j+2*i+1}")
            k.e(f"s_add_u32 s37, s36, 0x{base + j*65536:x}")
            for m in modes: k.vmem(f"buffer_store_dwordx4 v[{d}:{d+3}], v10, s[{SWS}:{SWS+3}], s37 offen {m}", "st")
    k.wait_lg_all()
    a = ACC + 32
    for r in range(16): k.e(f"v_mul_f32 v{a+r}, v{a+r}, v{32+r}")
    k.e(f"s_add_u32 s37, s36, 0x{WS_VF:x}")
    for j in range(2):
        d = 56 + 4*j
        for i in range(4): k.e(f"v_cvt_pk_bf16_f32 v{d+i}, v{a+8*j+2*i}, v{a+8*j+2*i+1}")
        for m in modes: k.vmem(f"buffer_store_dwordx4 v[{d}:{d+3}], v17, s[{SWS}:{SWS+3}], s37 offen offset:{512*j} {m}", "st")

def e3x_body(k, SX=8, SG=12, SU=16, SWS=20, epi_prio=None, post_loop=None, rot=True, ux=11, rper=4, dper=1, pre_loop=None):
    XB = 49152
    k.e("v_and_b32 v1, 63, v0")
    k.e("v_and_b32 v11, 31, v1", "v_lshrrev_b32 v12, 5, v1")
    k.e("s_and_b32 s27, s24, 1", "s_lshr_b32 s28, s24, 1")
    k.e("v_lshrrev_b32 v13, 3, v1", "v_lshrrev_b32 v14, 4, v1", "v_and_b32 v15, 7, v1",
        "v_xor_b32 v7, v15, v14", "v_lshlrev_b32 v7, 4, v7", "v_lshl_add_u32 v7, v13, 10, v7",
        "s_lshl_b32 s29, s25, 17", "s_lshl_b32 s30, s24, 15", "s_add_u32 s29, s29, s30",
        "v_add_u32 v7, s29, v7", "v_xor_b32 v8, 64, v7", "v_add_u32 v8, 8192, v8")
    k.e("v_lshlrev_b32 v13, 2, v14", "v_and_b32 v15, 15, v1", "v_xor_b32 v9, v15, v13", "v_lshlrev_b32 v9, 4, v9",
        "s_lshl_b32 s30, s24, 3", "v_add_u32 v13, s30, v14", "v_mul_u32_u24 v13, 3584, v13", "v_add_u32 v9, v9, v13",
        "s_lshl_b32 s30, s26, 8", "v_add_u32 v9, s30, v9")
    k.e(f"s_lshl_b32 s31, s24, 12", f"s_add_u32 s31, s31, {XB}", "s_lshl_b32 s32, s24, 11")
    def xd(v):
        if rot:
            return [dmab(SX, 7 + (i & 1), 31, (v % 2)*16384 + i*1024, 33, 51, (i >> 1)*16384, ("X", v),
                         post=(["s_add_u32 s51, s51, 128", "s_and_b32 s51, s51, 1023"] if i == 3 else ())) for i in range(4)]
        return [dma(SX, 7 + (i & 1), 31, (v % 2)*16384 + i*1024, 33, v*128 + (i >> 1)*16384, ("X", v)) for i in range(4)]
    def wd(u):
        out = []
        for i in range(2):
            for p, sr in enumerate((SG, SU)):
                if rot:
                    out.append(dmab(sr, 9, 32, (u % 3)*16384 + p*8192 + i*1024, 33, 50, 4*i*3584, ("W", u),
                                    post=(rot_adv(50, 32*3584, 512*3584, 52) if (i, p) == (1, 1) else ())))
                else:
                    out.append(dma(sr, 9, 32, (u % 3)*16384 + p*8192 + i*1024, 33, (u*32 + 4*i)*3584, ("W", u)))
        return out
    if rot:
        k.e("s_lshl_b32 s51, s53, 7", f"s_mul_i32 s50, s53, {64*3584}")
    emit_groups(k, xd(0) + wd(0) + wd(1))
    if pre_loop: pre_loop()
    k.e("s_lshl_b32 s36, s27, 6", "v_add_u32 v13, s36, v11", "v_bfe_u32 v14, v13, 1, 3", "v_xor_b32 v14, v14, v12",
        "v_lshlrev_b32 v14, 4, v14", "v_lshl_add_u32 v2, v13, 7, v14", f"v_add_u32 v2, {XB}, v2",
        "v_xor_b32 v3, 32, v2", "v_xor_b32 v4, 64, v2", "v_xor_b32 v5, 96, v2")
    k.e("v_bfe_u32 v15, v1, 2, 2", "v_lshl_add_u32 v13, v12, 3, v15", "v_lshlrev_b32 v6, 8, v13",
        "v_bfe_u32 v13, v1, 4, 1", "v_lshlrev_b32 v13, 1, v13", "v_bfe_u32 v14, v1, 1, 1", "v_add_u32 v13, v13, v14",
        "s_lshl_b32 s36, s28, 3", "v_add_u32 v13, s36, v13", "v_lshlrev_b32 v15, 2, v15",
        "v_xor_b32 v13, v13, v15", "v_lshl_add_u32 v6, v13, 4, v6", "v_and_b32 v14, 1, v1", "v_lshl_add_u32 v6, v14, 3, v6",
        "v_xor_b32 v10, 64, v6", "v_xor_b32 v72, 4096, v6", "v_xor_b32 v73, 4096, v10")
    k.e("s_lshl_b32 s34, s25, 7", "s_lshl_b32 s35, s27, 6", "s_add_u32 s34, s34, s35", "v_add_u32 v108, s34, v11", "v_lshlrev_b32 v108, 5, v108",
        "s_lshl_b32 s35, s26, 7", "s_lshl_b32 s36, s28, 6", "s_add_u32 s35, s35, s36", "v_add_u32 v109, s35, v11", "v_lshlrev_b32 v109, 4, v109")
    EX = 76
    def extras():
        for tb in range(2):
            k.vmem(f"buffer_load_dwordx4 v[{EX+4*tb}:{EX+3+4*tb}], v108, s[{SWS}:{SWS+3}], 0 offen offset:{WS_TOK+1024*tb} sc1", "ex")
            k.vmem(f"buffer_load_dwordx4 v[{100+4*tb}:{103+4*tb}], v108, s[{SWS}:{SWS+3}], 0 offen offset:{WS_TOK+16+1024*tb} sc1", "ex")
        for part in range(2):
            k.e(f"s_mov_b32 s36, {WS_COL + (1536 + 1792*part)*16}")
            for b in range(2):
                d = EX + 8 + 8*part + 4*b
                k.vmem(f"buffer_load_dwordx4 v[{d}:{d+3}], v109, s[{SWS}:{SWS+3}], s36 offen offset:{512*b} sc1", "ex")
    ACC = 128
    def fr(st): return 16 + 24*st
    def acc(part, b, tb): return ACC + 16*(part*4 + b*2 + tb)
    def reads(g, st):
        b0 = fr(st); u = g >> 1; v = g >> 2
        def wr(part, b):
            d = b0 + 8 + 8*part + 4*b
            o = (u % 3)*16384 + part*8192
            av = ((6, 10), (72, 73))[g & 1][b]
            return [(f"ds_read_b64_tr_b16 v[{d}:{d+1}], v{av} offset:{o}", f"W{part}{b}"),
                    (f"ds_read_b64_tr_b16 v[{d+2}:{d+3}], v{av} offset:{o+1024}", f"W{part}{b}")]
        def xr(tb): return [(f"ds_read_b128 v[{b0+4*tb}:{b0+4*tb+3}], v{2 + (g & 3)} offset:{(v % 2)*16384 + tb*4096}", f"X{tb}")]
        return xr(0) + wr(0, 0) + xr(1) + wr(0, 1) + wr(1, 0) + wr(1, 1)
    def mf(b0, first):
        out = []
        for part in range(2):
            for b in range(2):
                for tb in range(2):
                    a = acc(part, b, tb); w = b0 + 8 + 8*part + 4*b; x = b0 + 4*tb
                    c = "0" if first else f"v[{a}:{a+15}]"
                    out.append((f"{MF} v[{a}:{a+15}], v[{w}:{w+3}], v[{x}:{x+3}], {c}", [f"X{tb}", f"W{part}{b}"]))
        return out
    def mfmas(g, st): return mf(fr(st), g == 0)
    def dmas(u):
        out = []
        if u + 2 < 16: out += wd(u + 2)
        if u % 2 == 0 and u//2 + 1 < 8: out += xd(u//2 + 1)
        return out
    hooks = {ux - 1: [lambda: epoch_issue_all(k, 112)], ux: [extras]}
    k.stamp(1)
    gemm2(k, 16, mfmas, reads, dmas, lambda u: [("W", u), ("X", u >> 1)], fill0=None, rper=rper, dper=dper, hooks=hooks)
    k.stamp(2)
    if epi_prio is not None: k.e(f"s_setprio {epi_prio}")
    epoch_check_all(k, 112)
    k.wait_vm("ex")
    tags = [EX + 3 + 4*i for i in range(6)]
    def zero():
        for r in tags: k.e(f"v_mov_b32 v{r}, 0")
        k.e("s_mov_b32 exec_lo, 0")
        for r in range(EX, EX + 24):
            if r not in tags: k.e(f"v_mov_b32 v{r}, 0")
        k.e("s_mov_b32 exec_lo, -1", "s_nop 1")
    tag_check(k, extras, tags + [102, 106], "x3", zero)
    for (t, _) in mf(EX, False): k.e(t)
    if post_loop: post_loop()
    k.e(f"v_mul_f32 v110, 0x{f2u(-LOG2E):08x}, v100", f"v_mul_f32 v111, 0x{f2u(-LOG2E):08x}, v104")
    k.e("v_lshlrev_b32 v10, 4, v1",
        "s_lshl_b32 s36, s25, 2", "s_lshl_b32 s37, s27, 1", "s_add_u32 s36, s36, s37", "s_mul_i32 s36, s36, 112",
        "s_lshl_b32 s37, s26, 3", "s_add_u32 s36, s36, s37", "s_lshl_b32 s37, s28, 2", "s_add_u32 s36, s36, s37",
        "s_lshl_b32 s36, s36, 10", f"s_add_u32 s36, s36, 0x{WS_HF:x}")
    k.e("s_nop 7")
    n = 0
    for b in range(2):
        for tb in range(2):
            g = acc(0, b, tb); uu = acc(1, b, tb)
            A = 110 + tb; SD = 101 + 4*tb
            for r in range(16): k.e(f"v_mul_f32 v{g+r}, v{g+r}, v{A}")
            for r in range(16): k.e(f"v_exp_f32 v{g+r}, v{g+r}")
            for r in range(16): k.e(f"v_fma_f32 v{g+r}, v{g+r}, v{SD}, v{SD}")
            for r in range(16): k.e(f"v_rcp_f32 v{g+r}, v{g+r}")
            k.e("s_nop 0")
            for r in range(16): k.e(f"v_mul_f32 v{g+r}, v{g+r}, v{uu+r}")
            for j in range(2):
                d = 16 + 4*(n % 8); n += 1
                for i in range(4): k.e(f"v_cvt_pk_bf16_f32 v{d+i}, v{g+8*j+2*i}, v{g+8*j+2*i+1}")
                k.e(f"s_add_u32 s37, s36, {(tb*112 + b*2 + j)*1024}")
                k.vmem(f"buffer_store_dwordx4 v[{d}:{d+3}], v10, s[{SWS}:{SWS+3}], s37 offen sc1", "st")

def kF1(name="f1_fused_kernel", prio_e1=None, prio_e2=None, prio_g=None, epi_prio=1, post_prio=0, e4_prio=None, hsleep=2, osleep=2, qsleep=2,
        rot=True, ux1=11, ux3=11, dup=False, force_fb=False, nostats=False, gexit=0, notag=False, xal=False, touch1=False, fine1=False, mode1="x", mode3="x", touch3=0, rp1=5, dp1=2, rp3=4, dp3=1, ugo=None, gosleep=4, gomax=64, gp_touch=False, prio_e3=None):
    k = KV(name, nvgpr=256)
    k.e("s_cmp_ge_u32 s2, 512", f"s_cbranch_scc1 L_end_{k.name}")
    fx = srd(k, 8, 0, SZ_X) + srd(k, 20, 72, WS_SIZE2)
    load_dbg(k)
    k.e("v_lshrrev_b32 v10, 6, v0", "s_nop 1", "v_readfirstlane_b32 s24, v10")
    k.e("s_cmp_ge_u32 s2, 256", "s_cbranch_scc1 L_f1_g")
    fx1 = srd(k, 12, 8, SZ_WQKV)
    k.e("s_waitcnt lgkmcnt(0)"); k.e(*(fx + fx1))
    epoch_make(k)
    if prio_e1 is not None: k.e(f"s_setprio {prio_e1}")
    k.e("s_and_b32 s3, s2, 7", "s_lshr_b32 s4, s2, 3", "s_and_b32 s5, s3, 1", "s_lshl_b32 s26, s5, 2", "s_and_b32 s5, s4, 3", "s_add_u32 s26, s26, s5",
        "s_lshr_b32 s25, s3, 1", "s_lshl_b32 s25, s25, 3", "s_lshr_b32 s5, s4, 2", "s_add_u32 s25, s25, s5")
    k.e("s_and_b32 s53, s26, 3", "s_lshl_b32 s53, s53, 1", "s_add_u32 s53, s53, s25", "s_and_b32 s53, s53, 7")
    k.e("s_lshl_b32 s44, s3, 2", "s_and_b32 s5, s4, 3", "s_add_u32 s44, s44, s5", "s_lshr_b32 s45, s4, 2")
    k.stamp(0)
    def o_fill():
        k.e("v_mov_b32 v204, -1", "v_mov_b32 v205, -1", "v_mov_b32 v206, -1", "v_mov_b32 v207, -1", "v_lshlrev_b32 v203, 4, v1",
            "s_lshl_b32 s46, s45, 3", "s_lshl_b32 s47, s24, 1", "s_add_u32 s46, s46, s47", "s_lshl_b32 s46, s46, 5", "s_add_u32 s46, s46, s44",
            "s_lshl_b32 s46, s46, 10", f"s_add_u32 s46, s46, 0x{WS_OF:x}")
        k.vmem("buffer_store_dwordx4 v[204:207], v203, s[20:23], s46 offen sc1", "st")
        k.e("s_add_u32 s46, s46, 32768")
        k.vmem("buffer_store_dwordx4 v[204:207], v203, s[20:23], s46 offen sc1", "st")
    if mode1 == "x":
        e1x_body(k, rot=rot, ux=ux1, pre_store=o_fill, dup=dup, notag=notag, touch=touch1, fine=fine1)
    else:
        ph = {0: lambda: k.stamp(9), 1: lambda: k.stamp(10), 4: lambda: k.stamp(11), 10: lambda: k.stamp(12)} if fine1 else None
        def go_store():
            L = w0_begin(k)
            k.e("s_lshl_b32 s46, s2, 7", f"s_add_u32 s46, s46, 0x{FLG_GO:x}", "v_mov_b32 v208, s46", "v_mov_b32 v209, 1", "s_mov_b64 exec, 1")
            k.vmem("buffer_store_dword v209, v208, s[20:23], 0 offen sc1", "go", opt=True)
            k.e("s_mov_b64 exec, -1")
            k.label(L)
        hk = {11: [lambda: epoch_issue_all(k, 200)]}
        if ugo is not None: hk.setdefault(ugo, []).append(go_store)
        e1s_body(k, sc1="sc1", rot=rot, mst={"s": 0, "m": 1, "n": 2}[mode1], rper=rp1, dper=dp1, pre_hooks=ph, hooks=hk, pre_store=lambda: (epoch_check_all(k, 200), o_fill()))
    k.stamp(3)
    k.e("s_lshl_b32 s48, s26, 5", "s_add_u32 s48, s48, s25", "s_lshl_b32 s48, s48, 3", f"s_add_u32 s48, s48, 0x{FLG_QKV8:x}")
    publish(k, 48, vt=19)
    k.stamp(4)
    k.e("s_mov_b32 s25, s44", "s_mov_b32 s26, s45")
    if prio_e2 is not None: k.e(f"s_setprio {prio_e2}")
    def qkv_wait():
        k.e("v_and_b32 v20, 31, v1", "v_lshlrev_b32 v20, 3, v20", "s_lshr_b32 s36, s25, 2", "s_lshl_b32 s36, s36, 8", f"s_add_u32 s36, s36, 0x{FLG_QKV8:x}",
            "v_add_u32 v20, s36, v20")
        L = w0_begin(k)
        Ll = k.newlabel("qw")
        k.e(f"s_mov_b32 s{SCNT}, 0")
        k.label(Ll)
        k.e("buffer_load_dwordx2 v[22:23], v20, s[20:23], 0 offen sc1", f"s_add_u32 s{SCNT}, s{SCNT}, 1", "s_waitcnt vmcnt(0)",
            f"v_cmp_eq_u64 vcc, s[{SEP}:{SEP+1}], v[22:23]", "s_nop 3", "s_cmp_eq_u64 vcc, -1", f"s_cbranch_scc1 {L}",
            f"s_sleep {qsleep}", f"s_cmp_lt_u32 s{SCNT}, 0x{SPIN_MAX:x}", f"s_cbranch_scc1 {Ll}")
        k.label(L)
        k.wait_lg_all()
        k.e("s_barrier")
        k.stamp(5 - k.stamp_off)
    k.stamp_off = 5
    e2_body(k, sc1="sc1", st_sc1="sc1", oflag="ep", pre_hook=qkv_wait, force_fb=force_fb)
    k.stamp_off = 0
    k.wait_vm_all()
    k.stamp(8); k.stamp_out(13 if fine1 else 9, 0, sh=7); k.wait_vm_all()
    k.e("s_endpgm")
    fb = k.fb_code
    k.label("L_f1_g")
    k.vm = []; k.lg = []
    SD, SO, SX, SOUT = 84, 88, 8, 4
    fx3 = srd(k, 12, 32, SZ_WG) + srd(k, 16, 40, SZ_WG) + srd(k, SD, 48, SZ_WD) + srd(k, SO, 16, SZ_WO) + srd(k, SOUT, 56, SZ_X)
    k.e("s_load_dwordx2 s[28:29], s[0:1], 8")
    k.e("s_sub_u32 s3, s2, 256")
    k.e("s_waitcnt lgkmcnt(0)"); k.e(*(fx + fx3))
    if prio_g is not None: k.e(f"s_setprio {prio_g}")
    def go_clear(idx=3):
        if ugo is None: return
        L = w0_begin(k)
        k.e(f"s_lshl_b32 s36, s{idx}, 7", f"s_add_u32 s36, s36, 0x{FLG_GO:x}", "v_mov_b32 v62, s36", "v_mov_b32 v63, 0", "s_mov_b64 exec, 1",
            "buffer_store_dword v63, v62, s[20:23], 0 offen sc1", "s_mov_b64 exec, -1")
        k.label(L)
    def go_wait():
        if ugo is None: return
        L = w0_begin(k)
        Ll = k.newlabel("go")
        k.e("s_waitcnt vmcnt(0)", "s_mov_b32 s38, 0", "s_mov_b64 exec, 1")
        k.label(Ll)
        k.e("buffer_load_dword v63, v62, s[20:23], 0 offen sc1", "s_add_u32 s38, s38, 1", "s_waitcnt vmcnt(0)", "v_readfirstlane_b32 s39, v63", "s_nop 3",
            "s_cmp_eq_u32 s39, 1", f"s_cbranch_scc1 {Ll}x", f"s_sleep {gosleep}", f"s_cmp_lt_u32 s38, {gomax}", f"s_cbranch_scc1 {Ll}")
        k.label(Ll + "x")
        k.e("s_mov_b64 exec, -1")
        k.label(L)
        k.e("s_barrier")
    k.stamp(0)
    go_clear()
    if gexit == 1: k.e("s_endpgm")
    if not nostats: stats_role2(k, xal=xal)
    if gexit == 2: k.e("s_waitcnt vmcnt(0)", "s_endpgm")
    e4 = E4F(k, SD, SO, 20, SX, SOUT, hsleep=hsleep, osleep=osleep, ep=True)
    c = e4
    k.e("s_and_b32 s92, s3, 7", "s_lshr_b32 s93, s3, 3",
        f"s_and_b32 s{c.SRB}, s93, 3", "s_lshl_b32 s94, s92, 2", f"s_add_u32 s{c.SRB}, s{c.SRB}, s94", f"s_lshr_b32 s{c.SCB}, s93, 2")
    k.e("s_cmp_ge_u32 s2, 480", "s_cbranch_scc1 L_f1_pf")
    k.e("s_and_b32 s26, s92, 1", "s_mul_i32 s26, s26, 7", "s_lshr_b32 s94, s93, 2", "s_add_u32 s26, s26, s94",
        "s_lshr_b32 s25, s92, 1", "s_lshl_b32 s25, s25, 2", "s_and_b32 s95, s93, 3", "s_add_u32 s25, s25, s95")
    k.e("s_lshl_b32 s53, s95, 1", "s_add_u32 s53, s53, s94", "s_and_b32 s53, s53, 7")
    def post_loop():
        k.e("s_barrier")
        e4.setup()
        for s in range(c.DEPTH): e4.issueW(s)
    def touch_w3():
        if touch3 in (0, 3): go_wait()
        if not touch3: return
        k.e("v_lshrrev_b32 v66, 1, v1", "v_mul_u32_u24 v66, 3584, v66", "v_and_b32 v67, 1, v1", "v_lshl_add_u32 v66, v67, 7, v66",
            "s_lshl_b32 s36, s95, 7", "s_lshl_b32 s37, s24, 5", "s_add_u32 s36, s36, s37", "s_mul_i32 s36, s36, 3584", "s_lshl_b32 s37, s26, 8", "s_add_u32 s36, s36, s37")
        k.vmem("buffer_load_dword v74, v66, s[12:15], s36 offen", "touch")
        k.vmem("buffer_load_dword v75, v66, s[16:19], s36 offen", "touch")
        if touch3 == 2: k.wait_vm("touch")
        if touch3 in (1, 2): go_wait()
    if prio_e3 is not None: k.e(f"s_setprio {prio_e3}")
    if mode3 == "x":
        e3x_body(k, epi_prio=epi_prio, post_loop=post_loop, rot=rot, ux=ux3)
    else:
        e3s_body(k, st_sc1="sc1", epi_prio=epi_prio, post_loop=post_loop, rot=rot, outb=64, pre_dma=touch_w3, mst={"s": 0, "m": 1, "n": 2}[mode3], rper=rp3, dper=dp3,
                 hooks={11: [lambda: epoch_issue_all(k, 124)], 13: [lambda: epoch_check_all(k, 124)]})
    k.e("s_lshl_b32 s36, s25, 1", "s_add_u32 s36, s36, s27", "s_lshl_b32 s36, s36, 8", "s_lshl_b32 s37, s26, 1", "s_add_u32 s37, s37, s28",
        "s_lshl_b32 s37, s37, 3", "s_add_u32 s36, s36, s37", f"s_add_u32 s36, s36, 0x{FLG_H8:x}", "v_mov_b32 v56, s36",
        f"v_mov_b32 v58, s{SEP}", f"v_mov_b32 v59, s{SEP+1}")
    k.stamp(3)
    k.wait_vm_all()
    k.stamp(4)
    k.e("s_mov_b64 exec, 1")
    k.vmem("buffer_store_dwordx2 v[58:59], v56, s[20:23], 0 offen sc1", "flag")
    k.e("s_mov_b64 exec, -1")
    if post_prio is not None: k.e(f"s_setprio {post_prio}")
    k.e("s_branch L_f1_e4")
    k.label("L_f1_pf")
    k.vm = []; k.lg = []
    k.e("v_and_b32 v1, 63, v0")
    if gp_touch:
        k.e("s_sub_u32 s99, s3, 224")
        go_wait()
        k.e("s_lshl_b32 s36, s99, 8", "v_add_u32 v60, s36, v0", "v_lshlrev_b32 v60, 7, v60", "s_mov_b32 s36, 0x100000")
        k.vmem(f"buffer_load_dword v61, v60, s[{SD}:{SD+3}], 0 offen", "touch")
        k.vmem(f"buffer_load_dword v62, v60, s[{SD}:{SD+3}], s36 offen", "touch")
        k.vmem(f"buffer_load_dword v63, v60, s[{SO}:{SO+3}], 0 offen", "touch")
    epoch_issue_all(k, 112)
    k.stamp(1); k.stamp(2); k.stamp(3); k.stamp(4)
    e4.setup()
    epoch_check_all(k, 112)
    for s in range(c.DEPTH): e4.issueW(s)
    if post_prio is not None: k.e(f"s_setprio {post_prio}")
    k.label("L_f1_e4")
    k.vm = [(("W", s), False) for s in range(c.DEPTH) for _ in range(2)] + [("flag", True)]
    k.lg = []
    e4.e4_prio = e4_prio; e4.post_prio = post_prio
    e4.body(st=(5, 6))
    k.wait_vm_all()
    k.stamp(7); k.stamp_out(8, 0x40000, sh=7); k.wait_vm_all()
    k.label(f"L_end_{k.name}")
    k.e("s_endpgm")
    fb()
    k.emit_tails()
    return k

def build(fn, **kw):
    k = kF1(**kw)
    txt = build_file([(k.name, (512,1,1), (256,1,1), 81920)], [k])
    open(fn, "w").write(txt)
    e = haz.check_text(txt)
    for x in e: print(x)
    print(fn, len(e), "hazards;", len(txt), "bytes")

if __name__ == "__main__":
    build("f1.s")
    KV.STAMP = True
    build("f1st.s")
```

```python
from f1 import *
M = dict(mode1="m", mode3="m", nostats=True, gp_touch=True, prio_e1=3, prio_e2=0, prio_e3=2, epi_prio=2, post_prio=1, gosleep=8, gomax=40)
build("f1go.s", ugo=12, touch3=3, **M)
KV.STAMP = True
for ugo in (8, 12):
    build(f"f1st_go{ugo}.s", ugo=ugo, touch3=3, **M)
build(f"f1st_go12_nt.s", ugo=12, touch3=0, **M)
M2 = dict(M); M2.update(prio_e3=0, epi_prio=1, post_prio=0)
build(f"f1st_go12_p0.s", ugo=12, touch3=3, **M2)
```

```python
import sys
sys.path.insert(0, "gen")
from eng import *
import eng, haz

FLG_GO = FLG + 0x8000

def epoch_issue_all(k, vd):
    k.e(f"v_mov_b32 v{vd+2}, 0")
    k.vmem(f"global_load_dwordx2 v[{vd}:{vd+1}], v{vd+2}, s[{SDBG}:{SDBG+1}] sc1", "ep")

def epoch_check_all(k, vd):
    Ls = k.newlabel("eps"); Lc = k.newlabel("epc")
    k.wait_vm("ep")
    k.e(f"v_readfirstlane_b32 s{SEP}, v{vd}", f"v_readfirstlane_b32 s{SEP+1}, v{vd+1}", "s_nop 3", f"s_cmp_eq_u32 s{SEP}, 0", f"s_cbranch_scc1 {Ls}")
    k.label(Lc)
    def tail():
        k.label(Ls)
        k.e(f"s_mov_b32 s{SCNT}, 0")
        k.label(Ls + "_l")
        k.e(f"global_load_dwordx2 v[{vd}:{vd+1}], v{vd+2}, s[{SDBG}:{SDBG+1}] sc1", f"s_add_u32 s{SCNT}, s{SCNT}, 1", "s_waitcnt vmcnt(0)",
            f"v_readfirstlane_b32 s{SEP}, v{vd}", f"v_readfirstlane_b32 s{SEP+1}, v{vd+1}", "s_nop 3", f"s_cmp_lg_u32 s{SEP}, 0", f"s_cbranch_scc1 {Lc}",
            "s_sleep 2", f"s_cmp_lt_u32 s{SCNT}, 0x{SPIN_MAX:x}", f"s_cbranch_scc1 {Ls}_l", f"s_branch {Lc}")
    k.tails.append(tail)

def tag_check(k, issue, tagregs, name, zero):
    Ls = k.newlabel(name + "s"); Lc = k.newlabel(name + "c")
    def cmp():
        k.e(f"v_cmp_eq_u32 vcc, s{SEP}, v{tagregs[0]}")
        for r in tagregs[1:]:
            k.e(f"v_cmp_eq_u32 s[36:37], s{SEP}, v{r}", "s_nop 1", "s_and_b64 vcc, vcc, s[36:37]")
        k.e("s_cmp_eq_u64 vcc, -1")
    cmp()
    k.e(f"s_cbranch_scc0 {Ls}")
    k.label(Lc)
    zero()
    def tail():
        k.label(Ls)
        k.e(f"s_mov_b32 s{SCNT}, 0")
        k.label(Ls + "_l")
        sv = (k.vm, k.lg)
        issue()
        k.vm, k.lg = sv
        k.e(f"s_add_u32 s{SCNT}, s{SCNT}, 1", "s_waitcnt vmcnt(0)")
        cmp()
        k.e(f"s_cbranch_scc1 {Lc}", "s_sleep 1", f"s_cmp_lt_u32 s{SCNT}, 0x{SPIN_MAX:x}", f"s_cbranch_scc1 {Ls}_l", f"s_branch {Lc}")
    k.tails.append(tail)

def row_job2(k, s_job, srd_x, srd_ws):
    k.e("v_and_b32 v1, 63, v0", "v_lshrrev_b32 v2, 6, v0", f"s_lshl_b32 s40, s{s_job}, 14",
        "v_lshlrev_b32 v3, 12, v2", "v_lshl_add_u32 v3, v1, 4, v3", "v_add_u32 v3, s40, v3")
    for j in range(4):
        k.vmem(f"buffer_load_dwordx4 v[{4+4*j}:{7+4*j}], v3, s[{srd_x}:{srd_x+3}], 0 offen offset:{1024*j}", "rj")
    k.e("v_bfe_u32 v72, v1, 1, 2", "v_cmp_eq_u32 s[42:43], 1, v72", "v_cmp_eq_u32 s[44:45], 2, v72", "v_cmp_eq_u32 s[46:47], 3, v72")
    k.wait_vm("rj")
    epoch_issue_all(k, 74)
    for j in range(4):
        for i in range(4):
            k.e(f"v_lshlrev_b32 v{32+8*j+2*i}, 16, v{4+4*j+i}", f"v_and_b32 v{33+8*j+2*i}, 0xffff0000, v{4+4*j+i}")
    for j in range(4):
        b = 32 + 8*j
        k.e(f"v_add_f32 v{20+j}, v{b}, v{b+1}")
    for i in range(2, 8):
        for j in range(4):
            k.e(f"v_add_f32 v{20+j}, v{20+j}, v{32+8*j+i}")
    allreduce(k, [20, 21, 22, 23], [24, 25, 26, 27])
    for j in range(4): k.e(f"v_mul_f32 v{20+j}, 0x3b000000, v{20+j}")
    for i in range(8):
        for j in range(4): k.e(f"v_sub_f32 v{32+8*j+i}, v{32+8*j+i}, v{20+j}")
    for j in range(4): k.e(f"v_mul_f32 v{28+j}, v{32+8*j}, v{32+8*j}")
    for i in range(1, 8):
        for j in range(4): k.e(f"v_fmac_f32 v{28+j}, v{32+8*j+i}, v{32+8*j+i}")
    allreduce(k, [28, 29, 30, 31], [24, 25, 26, 27])
    k.e("v_cndmask_b32 v64, v20, v21, s[42:43]", "v_cndmask_b32 v65, v28, v29, s[42:43]",
        "v_cndmask_b32 v64, v64, v22, s[44:45]", "v_cndmask_b32 v65, v65, v30, s[44:45]",
        "v_cndmask_b32 v64, v64, v23, s[46:47]", "v_cndmask_b32 v65, v65, v31, s[46:47]")
    k.e("v_mov_b32 v66, 0x3727c5ac", "v_fmac_f32 v66, 0x3b000000, v65",
        "v_rsq_f32 v67, v66", "v_sub_f32 v64, 0, v64",
        "v_mul_f32 v68, v66, v67",
        "v_cvt_pk_bf16_f32 v69, v64, v64", "s_nop 0", "v_and_b32 v69, 0xffff0000, v69", "v_sub_f32 v70, v64, v69",
        "v_cvt_pk_bf16_f32 v69, v70, v70", "s_nop 0", "v_and_b32 v69, 0xffff0000, v69", "v_sub_f32 v71, v70, v69",
        "v_cvt_pk_bf16_f32 v4, v64, v70", "v_cvt_pk_bf16_f32 v6, v71, v64",
        "v_and_b32 v72, 1, v1", "v_cmp_eq_u32 vcc, 1, v72", "v_mov_b32 v5, v4")
    k.e(f"s_lshl_b32 s40, s{s_job}, 9", "v_lshlrev_b32 v3, 7, v2", "v_lshl_add_u32 v3, v1, 4, v3", "v_add_u32 v3, s40, v3")
    epoch_check_all(k, 74)
    k.e(f"v_mov_b32 v7, s{SEP}",
        "v_cndmask_b32 v4, v4, v67, vcc", "v_cndmask_b32 v5, v5, v68, vcc", "v_cndmask_b32 v6, v6, v7, vcc")
    k.e("v_cmp_gt_u32 vcc, 8, v1", "s_and_saveexec_b64 s[42:43], vcc")
    k.vmem(f"buffer_store_dwordx4 v[4:7], v3, s[{srd_ws}:{srd_ws+3}], 0 offen offset:{WS_TOK} sc1", "st")
    k.e("s_mov_b64 exec, s[42:43]")

def col_job2(k, s_job, srd_w, s_ld, s_col0b, srd_ws, s_half=None):
    NL = 16 if s_half is None else 8
    k.e("v_and_b32 v1, 63, v0", "v_lshrrev_b32 v2, 6, v0", "v_lshrrev_b32 v3, 3, v1", f"v_lshl_add_u32 v3, v2, {7 if s_half is None else 6}, v3")
    if s_half is not None: k.e(f"s_lshl_b32 s40, s{s_half}, 8", "v_add_u32 v3, s40, v3")
    k.e(
        f"v_mul_lo_u32 v3, v3, s{s_ld}", "v_and_b32 v4, 7, v1", "v_lshl_add_u32 v3, v4, 4, v3", f"v_add_u32 v3, s{s_col0b}, v3",
        f"s_lshl_b32 s41, s{s_ld}, 3", "s_mov_b32 s40, 0")
    for i in range(NL):
        k.vmem(f"buffer_load_dwordx4 v[{8+4*i}:{11+4*i}], v3, s[{srd_w}:{srd_w+3}], s40 offen", ("cj", i))
        if i < NL - 1: k.e("s_add_u32 s40, s40, s41")
    k.e("s_mov_b32 s42, 0x00003f80", "s_mov_b32 s43, 0x3f800000")
    A = 80
    for i in range(8): k.e(f"v_mov_b32 v{A+i}, 0")
    for i in range(NL):
        k.wait_vm(("cj", i))
        if i == NL - 1: epoch_issue_all(k, 74)
        for d in range(4):
            k.e(f"v_dot2_f32_bf16 v{A+2*d}, v{8+4*i+d}, s42, v{A+2*d}", f"v_dot2_f32_bf16 v{A+1+2*d}, v{8+4*i+d}, s43, v{A+1+2*d}")
    k.e("s_nop 2")
    for i in range(8): k.e(f"v_add_f32_dpp v{A+i}, v{A+i}, v{A+i} row_ror:8 row_mask:0xf bank_mask:0xf")
    k.e("v_lshrrev_b32 v5, 4, v1", "v_lshl_add_u32 v5, v2, 2, v5", "v_lshlrev_b32 v5, 8, v5", "v_lshl_add_u32 v5, v4, 5, v5",
        "v_and_b32 v6, 15, v1", "v_cmp_gt_u32 vcc, 8, v6", "s_and_saveexec_b64 s[44:45], vcc")
    k.ds(f"ds_write_b128 v5, v[{A}:{A+3}]")
    k.ds(f"ds_write_b128 v5, v[{A+4}:{A+7}] offset:16")
    k.e("s_mov_b64 exec, s[44:45]")
    k.wait_lg_all()
    k.e("s_barrier")
    k.e("v_lshlrev_b32 v5, 2, v1")
    for p in range(16): k.ds(f"ds_read_b32 v{8+p}, v5 offset:{256*p}")
    k.wait_lg_all()
    for st in (8, 4, 2, 1):
        for p in range(st): k.e(f"v_add_f32 v{8+p}, v{8+p}, v{8+p+st}")
    k.e("s_nop 0",
        "v_cvt_pk_bf16_f32 v12, v8, v8", "s_nop 0", "v_and_b32 v9, 0xffff0000, v12", "v_sub_f32 v9, v8, v9",
        "v_cvt_pk_bf16_f32 v13, v9, v9", "s_nop 0", "v_and_b32 v10, 0xffff0000, v13", "v_sub_f32 v10, v9, v10",
        "v_cvt_pk_bf16_f32 v14, v8, v10",
        f"s_lshl_b32 s40, s{s_job}, 10", "v_lshlrev_b32 v5, 4, v1", "v_add_u32 v5, s40, v5", f"s_mov_b32 s40, {WS_COL}")
    if s_half is not None: k.e(f"s_mul_i32 s41, s{s_half}, {COL2}", "s_add_u32 s40, s40, s41")
    epoch_check_all(k, 74)
    k.e(f"v_mov_b32 v15, s{SEP}", "v_cmp_gt_u32 vcc, 64, v0", "s_and_saveexec_b64 s[44:45], vcc")
    Lx = k.newlabel("cjx")
    k.e(f"s_cbranch_execz {Lx}")
    k.vmem(f"buffer_store_dwordx4 v[12:15], v5, s[{srd_ws}:{srd_ws+3}], s40 offen sc1", "st", opt=True)
    k.label(Lx)
    k.e("s_mov_b64 exec, s[44:45]")
    k.e("s_barrier")

def stats_role2(k, SWQ=28, xal=False):
    Lc = k.newlabel("stc"); Ld = k.newlabel("std"); Lg = k.newlabel("stg")
    k.e("s_cmp_ge_u32 s3, 208", f"s_cbranch_scc1 {Ld}", "s_cmp_ge_u32 s3, 128", f"s_cbranch_scc1 {Lc}")
    if xal:
        k.e("s_and_b32 s96, s3, 7", "s_lshr_b32 s97, s3, 3", "s_lshl_b32 s96, s96, 4", "s_add_u32 s98, s96, s97")
    else: k.e("s_mov_b32 s98, s3")
    row_job2(k, 98, 8, 20)
    k.e(f"s_branch {Ld}")
    k.label(Lc)
    v0 = list(k.vm)
    k.vm = []; k.lg = []
    k.e("s_sub_u32 s98, s3, 128")
    if xal:
        La = k.newlabel("xa"); Lb = k.newlabel("xb")
        k.e("s_and_b32 s96, s98, 7", "s_lshr_b32 s97, s98, 3", "s_cmp_ge_u32 s97, 3", f"s_cbranch_scc1 {La}",
            "s_and_b32 s92, s96, 1", "s_lshl_b32 s92, s92, 2", "s_lshr_b32 s93, s96, 1", "s_add_u32 s92, s92, s93", "s_lshl_b32 s98, s97, 3", "s_add_u32 s98, s98, s92", f"s_branch {Lb}")
        k.label(La)
        k.e("s_lshr_b32 s92, s96, 1", "s_mul_i32 s92, s92, 7", "s_add_u32 s92, s92, s97", "s_sub_u32 s92, s92, 3",
            "s_and_b32 s93, s96, 1", "s_mul_i32 s93, s93, 7", "s_lshr_b32 s94, s92, 2", "s_add_u32 s93, s93, s94",
            "s_lshl_b32 s93, s93, 1", "s_and_b32 s94, s92, 1", "s_add_u32 s93, s93, s94",
            "s_bfe_u32 s94, s92, 0x10001", "s_mul_i32 s94, s94, 28", "s_add_u32 s98, s93, s94", "s_add_u32 s98, s98, 24")
        k.label(Lb)
    k.e(
        f"s_mov_b32 s92, s{SWQ}", f"s_mov_b32 s93, s{SWQ+1}", f"s_mov_b32 s94, {SZ_WQKV}", "s_mov_b32 s95, 0x00020000",
        "s_movk_i32 s96, 3072", "s_lshl_b32 s97, s98, 7",
        "s_cmp_lt_u32 s98, 24", f"s_cbranch_scc1 {Lg}",
        "s_mov_b32 s92, s12", "s_mov_b32 s93, s13", f"s_mov_b32 s94, {SZ_WG}", "s_movk_i32 s96, 3584",
        "s_sub_u32 s97, s98, 24", "s_lshl_b32 s97, s97, 7",
        "s_cmp_lt_u32 s98, 52", f"s_cbranch_scc1 {Lg}",
        "s_mov_b32 s92, s16", "s_mov_b32 s93, s17", "s_sub_u32 s97, s98, 52", "s_lshl_b32 s97, s97, 7")
    k.label(Lg)
    col_job2(k, 98, 92, 96, 97, 20)
    k.label(Ld)
    k.vm = [("st", True)]; k.lg = []

COL2 = 0x14000
def row_job3(k, s_job, srd_x, srd_ws):
    k.e("v_and_b32 v1, 63, v0", "v_lshrrev_b32 v2, 6, v0", f"s_lshl_b32 s40, s{s_job}, 15", "s_movk_i32 s41, 4096",
        "v_lshlrev_b32 v3, 13, v2", "v_lshl_add_u32 v3, v1, 4, v3", "v_add_u32 v3, s40, v3")
    SRC = (4, 80)
    for b in range(2):
        for j in range(4):
            k.vmem(f"buffer_load_dwordx4 v[{SRC[b]+4*j}:{SRC[b]+3+4*j}], v3, s[{srd_x}:{srd_x+3}], {'s41' if b else '0'} offen offset:{1024*j}", ("rj", b))
    k.e("v_bfe_u32 v72, v1, 1, 2", "v_cmp_eq_u32 s[42:43], 1, v72", "v_cmp_eq_u32 s[44:45], 2, v72", "v_cmp_eq_u32 s[46:47], 3, v72")
    k.e(f"s_lshl_b32 s40, s{s_job}, 10", "v_lshlrev_b32 v73, 8, v2", "v_lshl_add_u32 v73, v1, 4, v73", "v_add_u32 v73, s40, v73")
    for b in range(2):
        S = SRC[b]
        k.wait_vm(("rj", b))
        if b == 0: epoch_issue_all(k, 74)
        for j in range(4):
            for i in range(4):
                k.e(f"v_lshlrev_b32 v{32+8*j+2*i}, 16, v{S+4*j+i}", f"v_and_b32 v{33+8*j+2*i}, 0xffff0000, v{S+4*j+i}")
        for j in range(4):
            bb = 32 + 8*j
            k.e(f"v_add_f32 v{20+j}, v{bb}, v{bb+1}")
        for i in range(2, 8):
            for j in range(4):
                k.e(f"v_add_f32 v{20+j}, v{20+j}, v{32+8*j+i}")
        allreduce(k, [20, 21, 22, 23], [24, 25, 26, 27])
        for j in range(4): k.e(f"v_mul_f32 v{20+j}, 0x3b000000, v{20+j}")
        for i in range(8):
            for j in range(4): k.e(f"v_sub_f32 v{32+8*j+i}, v{32+8*j+i}, v{20+j}")
        for j in range(4): k.e(f"v_mul_f32 v{28+j}, v{32+8*j}, v{32+8*j}")
        for i in range(1, 8):
            for j in range(4): k.e(f"v_fmac_f32 v{28+j}, v{32+8*j+i}, v{32+8*j+i}")
        allreduce(k, [28, 29, 30, 31], [24, 25, 26, 27])
        k.e("v_cndmask_b32 v64, v20, v21, s[42:43]", "v_cndmask_b32 v65, v28, v29, s[42:43]",
            "v_cndmask_b32 v64, v64, v22, s[44:45]", "v_cndmask_b32 v65, v65, v30, s[44:45]",
            "v_cndmask_b32 v64, v64, v23, s[46:47]", "v_cndmask_b32 v65, v65, v31, s[46:47]")
        k.e("v_mov_b32 v66, 0x3727c5ac", "v_fmac_f32 v66, 0x3b000000, v65",
            "v_rsq_f32 v67, v66", "v_sub_f32 v64, 0, v64",
            "v_mul_f32 v68, v66, v67",
            "v_cvt_pk_bf16_f32 v69, v64, v64", "s_nop 0", "v_and_b32 v69, 0xffff0000, v69", "v_sub_f32 v70, v64, v69",
            "v_cvt_pk_bf16_f32 v69, v70, v70", "s_nop 0", "v_and_b32 v69, 0xffff0000, v69", "v_sub_f32 v71, v70, v69",
            "v_cvt_pk_bf16_f32 v96, v64, v70", "v_cvt_pk_bf16_f32 v98, v71, v64",
            "v_and_b32 v72, 1, v1", "v_cmp_eq_u32 vcc, 1, v72", "v_mov_b32 v97, v96")
        if b == 0: epoch_check_all(k, 74)
        k.e(f"v_mov_b32 v99, s{SEP}", "v_and_b32 v72, 1, v1", "v_cmp_eq_u32 vcc, 1, v72", "s_nop 1",
            "v_cndmask_b32 v96, v96, v67, vcc", "v_cndmask_b32 v97, v97, v68, vcc", "v_cndmask_b32 v98, v98, v99, vcc")
        k.e("v_cmp_gt_u32 vcc, 8, v1", "s_and_saveexec_b64 s[48:49], vcc")
        k.vmem(f"buffer_store_dwordx4 v[96:99], v73, s[{srd_ws}:{srd_ws+3}], 0 offen offset:{WS_TOK + 128*b} sc1", "st")
        k.e("s_mov_b64 exec, s[48:49]", "s_nop 1")

def stats_role3(k, SWQ=28):
    Lc = k.newlabel("stc"); Ld = k.newlabel("std"); Lg = k.newlabel("stg"); Lq = k.newlabel("stq")
    k.e("s_cmp_ge_u32 s3, 64", f"s_cbranch_scc1 {Lc}")
    k.e("s_mov_b32 s98, s3")
    row_job3(k, 98, 8, 20)
    k.e(f"s_branch {Ld}")
    k.label(Lc)
    k.vm = []; k.lg = []
    k.e("s_sub_u32 s98, s3, 64", "s_cmp_lt_u32 s3, 112", f"s_cbranch_scc1 {Lq}", "s_cmp_lt_u32 s3, 144", f"s_cbranch_scc1 {Ld}", "s_sub_u32 s98, s3, 96")
    k.label(Lq)
    k.e("s_and_b32 s99, s98, 1", "s_lshr_b32 s98, s98, 1")
    k.e(
        f"s_mov_b32 s92, s{SWQ}", f"s_mov_b32 s93, s{SWQ+1}", f"s_mov_b32 s94, {SZ_WQKV}", "s_mov_b32 s95, 0x00020000",
        "s_movk_i32 s96, 3072", "s_lshl_b32 s97, s98, 7",
        "s_cmp_lt_u32 s98, 24", f"s_cbranch_scc1 {Lg}",
        "s_mov_b32 s92, s12", "s_mov_b32 s93, s13", f"s_mov_b32 s94, {SZ_WG}", "s_movk_i32 s96, 3584",
        "s_sub_u32 s97, s98, 24", "s_lshl_b32 s97, s97, 7",
        "s_cmp_lt_u32 s98, 52", f"s_cbranch_scc1 {Lg}",
        "s_mov_b32 s92, s16", "s_mov_b32 s93, s17", "s_sub_u32 s97, s98, 52", "s_lshl_b32 s97, s97, 7")
    k.label(Lg)
    col_job2(k, 98, 92, 96, 97, 20, s_half=99)
    k.label(Ld)
    k.vm = [("st", True), ("st", True)]; k.lg = []

def e1x_body(k, SX=8, SW=12, SWS=20, bal=False, rot=True, ux=11, pre_store=None, dup=False, rper=5, dper=2, notag=False, touch=False, fine=False):
    E1_XB = 49152
    k.e("v_and_b32 v1, 63, v0")
    k.e("v_and_b32 v11, 31, v1", "v_lshrrev_b32 v12, 5, v1")
    k.e("s_and_b32 s27, s24, 1", "s_lshr_b32 s28, s24, 1")
    k.e("v_lshrrev_b32 v13, 3, v1", "v_lshrrev_b32 v14, 4, v1", "v_and_b32 v15, 7, v1",
        "v_xor_b32 v7, v15, v14", "v_lshlrev_b32 v7, 4, v7", "v_lshl_add_u32 v7, v13, 10, v7",
        "s_lshl_b32 s29, s25, 16", "s_lshl_b32 s30, s24, 14", "s_add_u32 s29, s29, s30",
        "v_add_u32 v7, s29, v7", "v_xor_b32 v8, 64, v7", "v_add_u32 v8, 8192, v8")
    k.e("v_and_b32 v14, 1, v14", "v_lshlrev_b32 v14, 2, v14", "v_xor_b32 v9, v15, v14", "v_lshlrev_b32 v9, 4, v9",
        "s_lshl_b32 s30, s24, 3", "v_add_u32 v13, s30, v13", "v_mul_u32_u24 v13, 3072, v13", "v_add_u32 v9, v9, v13",
        "s_lshl_b32 s30, s26, 7", "v_add_u32 v9, s30, v9")
    k.e(f"s_lshl_b32 s31, s24, 11", f"s_add_u32 s31, s31, {E1_XB}", "s_lshl_b32 s32, s24, 10")
    def xd(v):
        if rot:
            return [dmab(SX, 7, 31, (v % 3)*8192, 33, 51, 0, ("X", v)),
                    dmab(SX, 8, 31, (v % 3)*8192 + 1024, 33, 51, 0, ("X", v), post=["s_add_u32 s51, s51, 128", "s_and_b32 s51, s51, 1023"])]
        return [dma(SX, 7, 31, (v % 3)*8192, 33, v*128, ("X", v)), dma(SX, 8, 31, (v % 3)*8192 + 1024, 33, v*128, ("X", v))]
    def wd(u):
        if rot:
            return [dmab(SW, 9, 32, (u % 4)*12288 + p*4096, 33, 50, 0, ("W", u), imm=1024*p, post=(rot_adv(50, 32*3072, 512*3072, 52) if p == 2 else ())) for p in range(3)]
        return [dma(SW, 9, 32, (u % 4)*12288 + p*4096, 33, u*32*3072, ("W", u), imm=1024*p) for p in range(3)]
    if rot:
        k.e("s_lshl_b32 s51, s53, 7", f"s_mul_i32 s50, s53, {64*3072}")
    if touch:
        k.e("v_lshrrev_b32 v130, 3, v1", "v_and_b32 v131, 7, v1", "v_lshlrev_b32 v131, 7, v131", "v_lshl_add_u32 v130, v130, 10, v131",
            "s_and_b32 s34, s26, 3", "s_lshl_b32 s34, s34, 4", "s_lshl_b32 s35, s24, 2", "s_add_u32 s34, s34, s35", "s_lshl_b32 s34, s34, 10", "s_lshl_b32 s35, s25, 16", "s_add_u32 s34, s34, s35",
            "s_mov_b32 exec_hi, 0")
        k.vmem(f"buffer_load_dword v132, v130, s[{SX}:{SX+3}], s34 offen", "touch")
        k.e("s_mov_b32 exec_hi, -1")
        k.e("v_and_b32 v130, 15, v1", "v_mul_u32_u24 v130, 3072, v130", "v_lshrrev_b32 v131, 4, v1", "v_lshl_add_u32 v130, v131, 10, v130",
            "s_and_b32 s34, s25, 7", "s_lshl_b32 s34, s34, 6", "s_lshl_b32 s35, s24, 4", "s_add_u32 s34, s34, s35", "s_mul_i32 s34, s34, 3072", "s_lshl_b32 s35, s26, 7", "s_add_u32 s34, s34, s35",
            "s_mov_b32 exec_hi, 0xffff")
        k.vmem(f"buffer_load_dword v133, v130, s[{SW}:{SW+3}], s34 offen", "touch")
        k.e("s_mov_b32 exec_hi, -1")
    emit_groups(k, xd(0) + wd(0) + wd(1) + xd(1) + wd(2))
    k.e("s_lshl_b32 s36, s27, 5", "v_add_u32 v13, s36, v11", "v_bfe_u32 v14, v13, 1, 3", "v_xor_b32 v14, v14, v12",
        "v_lshlrev_b32 v14, 4, v14", "v_lshl_add_u32 v2, v13, 7, v14", f"v_add_u32 v2, {E1_XB}, v2",
        "v_xor_b32 v3, 32, v2", "v_xor_b32 v4, 64, v2", "v_xor_b32 v5, 96, v2")
    k.e("v_bfe_u32 v13, v1, 2, 2", "v_lshl_add_u32 v13, v12, 3, v13", "v_lshlrev_b32 v6, 7, v13",
        "v_bfe_u32 v13, v1, 4, 1", "v_lshlrev_b32 v13, 1, v13", "v_bfe_u32 v14, v1, 1, 1", "v_add_u32 v13, v13, v14",
        "s_lshl_b32 s36, s28, 2", "v_add_u32 v13, s36, v13", "v_bfe_u32 v14, v1, 3, 1", "v_lshlrev_b32 v14, 2, v14",
        "v_xor_b32 v13, v13, v14", "v_lshl_add_u32 v6, v13, 4, v6", "v_and_b32 v14, 1, v1", "v_lshl_add_u32 v6, v14, 3, v6",
        "v_xor_b32 v10, 2048, v6")
    k.e("s_lshl_b32 s34, s25, 6", "s_lshl_b32 s35, s27, 5", "s_add_u32 s34, s34, s35", "v_add_u32 v117, s34, v11", "v_lshlrev_b32 v117, 5, v117",
        "s_lshl_b32 s35, s26, 6", "s_lshl_b32 s36, s28, 5", "s_add_u32 s35, s35, s36", "v_add_u32 v118, s35, v11", "v_lshlrev_b32 v118, 4, v118")
    if bal: k.e(f"v_mul_u32_u24 v13, 0x{COL2:x}, v12", "v_add_u32 v118, v118, v13")
    def extras():
        k.vmem(f"buffer_load_dwordx4 v[48:51], v117, s[{SWS}:{SWS+3}], 0 offen offset:{WS_TOK} sc1", "ex")
        k.vmem(f"buffer_load_dwordx4 v[112:115], v117, s[{SWS}:{SWS+3}], 0 offen offset:{WS_TOK+16} sc1", "ex")
        for p in range(3):
            k.e(f"s_mov_b32 s36, {WS_COL + 8192*p}")
            k.vmem(f"buffer_load_dwordx4 v[{52+4*p}:{55+4*p}], v118, s[{SWS}:{SWS+3}], s36 offen sc1", "ex")
    ACC = 64
    def fr(st): return 16 + 16*st
    def reads(g, st):
        b = fr(st); u = g >> 1; v = g >> 2
        out = [(f"ds_read_b128 v[{b}:{b+3}], v{2 + (g & 3)} offset:{(v % 3)*8192}", "X")]
        av = 6 if (g & 1) == 0 else 10
        for p in range(3):
            o = (u % 4)*12288 + p*4096
            out.append((f"ds_read_b64_tr_b16 v[{b+4+4*p}:{b+5+4*p}], v{av} offset:{o}", f"W{p}"))
            out.append((f"ds_read_b64_tr_b16 v[{b+6+4*p}:{b+7+4*p}], v{av} offset:{o+512}", f"W{p}"))
        return out
    def mf(b_x, b_w, first):
        out = []
        for p in range(3):
            a = ACC + 16*p
            w = f"v[{b_w+4*p}:{b_w+4*p+3}]"; x = f"v[{b_x}:{b_x+3}]"
            A, B = (w, x) if p < 2 else (x, w)
            c = "0" if first else f"v[{a}:{a+15}]"
            out.append((f"{MF} v[{a}:{a+15}], {A}, {B}, {c}", ["X", f"W{p}"]))
        return out
    def mfmas(g, st): return mf(fr(st), fr(st) + 4, g == 0)
    def dmas(u):
        out = []
        if u + 3 < 16: out += wd(u + 3)
        if u % 2 == 0 and u//2 + 2 < 8: out += xd(u//2 + 2)
        return out
    hooks = {ux - 1: [lambda: epoch_issue_all(k, 120)], ux: [extras]}
    pre_hooks = None
    if fine: pre_hooks = {0: lambda: k.stamp(9), 1: lambda: k.stamp(10), 4: lambda: k.stamp(11), 10: lambda: k.stamp(12)}
    k.stamp(1)
    gemm2(k, 16, mfmas, reads, dmas, lambda u: [("W", u), ("X", u >> 1)], fill0=None, rper=rper, dper=dper, hooks=hooks, pre_hooks=pre_hooks)
    k.stamp(2)
    epoch_check_all(k, 120)
    k.wait_vm("ex")
    def zero():
        for r in (51, 55, 59, 63): k.e(f"v_mov_b32 v{r}, 0")
        if bal:
            k.e("s_nop 1")
            return
        k.e("s_mov_b32 exec_lo, 0")
        for r in range(48, 64):
            if r not in (51, 55, 59, 63): k.e(f"v_mov_b32 v{r}, 0")
        k.e("s_mov_b32 exec_lo, -1", "s_nop 1")
    if notag: zero()
    else: tag_check(k, extras, [51, 114, 55, 59, 63], "x1", zero)
    for (t, _) in mf(48, 52, False): k.e(t)
    k.e("s_lshl_b32 s36, s24, 7", "v_lshlrev_b32 v13, 2, v11", "v_add_u32 v13, s36, v13")
    k.ds("ds_write_b32 v13, v112")
    k.e("v_lshlrev_b32 v13, 4, v12", "v_add_u32 v13, s36, v13")
    k.wait_lg_all()
    for gq in range(4): k.ds(f"ds_read_b128 v[{32+4*gq}:{35+4*gq}], v13 offset:{32*gq}")
    k.e(f"v_mul_f32 v113, 0x{f2u(0.25*LOG2E):08x}, v112")
    if pre_store: pre_store()
    k.e("v_lshlrev_b32 v10, 4, v1",
        "s_lshl_b32 s36, s26, 2", "s_lshl_b32 s37, s28, 1", "s_add_u32 s36, s36, s37", "s_lshl_b32 s36, s36, 16",
        "s_lshl_b32 s37, s25, 1", "s_add_u32 s37, s37, s27", "s_lshl_b32 s37, s37, 10", "s_add_u32 s36, s36, s37")
    k.e("v_lshrrev_b32 v17, 4, v11", "v_lshlrev_b32 v17, 16, v17", "v_lshl_add_u32 v17, v12, 8, v17", "v_and_b32 v18, 15, v11", "v_lshl_add_u32 v17, v18, 4, v17")
    k.e("s_nop 4")
    modes = ("sc1", "") if dup else ("sc1",)
    for p, (scale, base) in enumerate(((113, WS_QF), (112, WS_KF))):
        a = ACC + 16*p
        for r in range(16): k.e(f"v_mul_f32 v{a+r}, v{a+r}, v{scale}")
        for j in range(2):
            d = 20 + 8*p + 4*j if p == 0 else 48 + 4*j
            for i in range(4): k.e(f"v_cvt_pk_bf16_f32 v{d+i}, v{a+8*j+2*i}, v{a+8*j+2*i+1}")
            k.e(f"s_add_u32 s37, s36, 0x{base + j*65536:x}")
            for m in modes: k.vmem(f"buffer_store_dwordx4 v[{d}:{d+3}], v10, s[{SWS}:{SWS+3}], s37 offen {m}", "st")
    k.wait_lg_all()
    a = ACC + 32
    for r in range(16): k.e(f"v_mul_f32 v{a+r}, v{a+r}, v{32+r}")
    k.e(f"s_add_u32 s37, s36, 0x{WS_VF:x}")
    for j in range(2):
        d = 56 + 4*j
        for i in range(4): k.e(f"v_cvt_pk_bf16_f32 v{d+i}, v{a+8*j+2*i}, v{a+8*j+2*i+1}")
        for m in modes: k.vmem(f"buffer_store_dwordx4 v[{d}:{d+3}], v17, s[{SWS}:{SWS+3}], s37 offen offset:{512*j} {m}", "st")

def e3x_body(k, SX=8, SG=12, SU=16, SWS=20, bal=False, fine=False, epi_prio=None, post_loop=None, rot=True, ux=11, rper=4, dper=1, pre_loop=None):
    XB = 49152
    k.e("v_and_b32 v1, 63, v0")
    k.e("v_and_b32 v11, 31, v1", "v_lshrrev_b32 v12, 5, v1")
    k.e("s_and_b32 s27, s24, 1", "s_lshr_b32 s28, s24, 1")
    k.e("v_lshrrev_b32 v13, 3, v1", "v_lshrrev_b32 v14, 4, v1", "v_and_b32 v15, 7, v1",
        "v_xor_b32 v7, v15, v14", "v_lshlrev_b32 v7, 4, v7", "v_lshl_add_u32 v7, v13, 10, v7",
        "s_lshl_b32 s29, s25, 17", "s_lshl_b32 s30, s24, 15", "s_add_u32 s29, s29, s30",
        "v_add_u32 v7, s29, v7", "v_xor_b32 v8, 64, v7", "v_add_u32 v8, 8192, v8")
    k.e("v_lshlrev_b32 v13, 2, v14", "v_and_b32 v15, 15, v1", "v_xor_b32 v9, v15, v13", "v_lshlrev_b32 v9, 4, v9",
        "s_lshl_b32 s30, s24, 3", "v_add_u32 v13, s30, v14", "v_mul_u32_u24 v13, 3584, v13", "v_add_u32 v9, v9, v13",
        "s_lshl_b32 s30, s26, 8", "v_add_u32 v9, s30, v9")
    k.e(f"s_lshl_b32 s31, s24, 12", f"s_add_u32 s31, s31, {XB}", "s_lshl_b32 s32, s24, 11")
    def xd(v):
        if rot:
            return [dmab(SX, 7 + (i & 1), 31, (v % 2)*16384 + i*1024, 33, 51, (i >> 1)*16384, ("X", v),
                         post=(["s_add_u32 s51, s51, 128", "s_and_b32 s51, s51, 1023"] if i == 3 else ())) for i in range(4)]
        return [dma(SX, 7 + (i & 1), 31, (v % 2)*16384 + i*1024, 33, v*128 + (i >> 1)*16384, ("X", v)) for i in range(4)]
    def wd(u):
        out = []
        for i in range(2):
            for p, sr in enumerate((SG, SU)):
                if rot:
                    out.append(dmab(sr, 9, 32, (u % 3)*16384 + p*8192 + i*1024, 33, 50, 4*i*3584, ("W", u),
                                    post=(rot_adv(50, 32*3584, 512*3584, 52) if (i, p) == (1, 1) else ())))
                else:
                    out.append(dma(sr, 9, 32, (u % 3)*16384 + p*8192 + i*1024, 33, (u*32 + 4*i)*3584, ("W", u)))
        return out
    if rot:
        k.e("s_lshl_b32 s51, s53, 7", f"s_mul_i32 s50, s53, {64*3584}")
    emit_groups(k, xd(0) + wd(0) + wd(1))
    if pre_loop: pre_loop()
    k.e("s_lshl_b32 s36, s27, 6", "v_add_u32 v13, s36, v11", "v_bfe_u32 v14, v13, 1, 3", "v_xor_b32 v14, v14, v12",
        "v_lshlrev_b32 v14, 4, v14", "v_lshl_add_u32 v2, v13, 7, v14", f"v_add_u32 v2, {XB}, v2",
        "v_xor_b32 v3, 32, v2", "v_xor_b32 v4, 64, v2", "v_xor_b32 v5, 96, v2")
    k.e("v_bfe_u32 v15, v1, 2, 2", "v_lshl_add_u32 v13, v12, 3, v15", "v_lshlrev_b32 v6, 8, v13",
        "v_bfe_u32 v13, v1, 4, 1", "v_lshlrev_b32 v13, 1, v13", "v_bfe_u32 v14, v1, 1, 1", "v_add_u32 v13, v13, v14",
        "s_lshl_b32 s36, s28, 3", "v_add_u32 v13, s36, v13", "v_lshlrev_b32 v15, 2, v15",
        "v_xor_b32 v13, v13, v15", "v_lshl_add_u32 v6, v13, 4, v6", "v_and_b32 v14, 1, v1", "v_lshl_add_u32 v6, v14, 3, v6",
        "v_xor_b32 v10, 64, v6", "v_xor_b32 v72, 4096, v6", "v_xor_b32 v73, 4096, v10")
    k.e("s_lshl_b32 s34, s25, 7", "s_lshl_b32 s35, s27, 6", "s_add_u32 s34, s34, s35", "v_add_u32 v108, s34, v11", "v_lshlrev_b32 v108, 5, v108",
        "s_lshl_b32 s35, s26, 7", "s_lshl_b32 s36, s28, 6", "s_add_u32 s35, s35, s36", "v_add_u32 v109, s35, v11", "v_lshlrev_b32 v109, 4, v109")
    if bal: k.e(f"v_mul_u32_u24 v13, 0x{COL2:x}, v12", "v_add_u32 v109, v109, v13")
    EX = 76
    def extras():
        for tb in range(2):
            k.vmem(f"buffer_load_dwordx4 v[{EX+4*tb}:{EX+3+4*tb}], v108, s[{SWS}:{SWS+3}], 0 offen offset:{WS_TOK+1024*tb} sc1", "ex")
            k.vmem(f"buffer_load_dwordx4 v[{100+4*tb}:{103+4*tb}], v108, s[{SWS}:{SWS+3}], 0 offen offset:{WS_TOK+16+1024*tb} sc1", "ex")
        for part in range(2):
            k.e(f"s_mov_b32 s36, {WS_COL + (1536 + 1792*part)*16}")
            for b in range(2):
                d = EX + 8 + 8*part + 4*b
                k.vmem(f"buffer_load_dwordx4 v[{d}:{d+3}], v109, s[{SWS}:{SWS+3}], s36 offen offset:{512*b} sc1", "ex")
    ACC = 128
    def fr(st): return 16 + 24*st
    def acc(part, b, tb): return ACC + 16*(part*4 + b*2 + tb)
    def reads(g, st):
        b0 = fr(st); u = g >> 1; v = g >> 2
        def wr(part, b):
            d = b0 + 8 + 8*part + 4*b
            o = (u % 3)*16384 + part*8192
            av = ((6, 10), (72, 73))[g & 1][b]
            return [(f"ds_read_b64_tr_b16 v[{d}:{d+1}], v{av} offset:{o}", f"W{part}{b}"),
                    (f"ds_read_b64_tr_b16 v[{d+2}:{d+3}], v{av} offset:{o+1024}", f"W{part}{b}")]
        def xr(tb): return [(f"ds_read_b128 v[{b0+4*tb}:{b0+4*tb+3}], v{2 + (g & 3)} offset:{(v % 2)*16384 + tb*4096}", f"X{tb}")]
        return xr(0) + wr(0, 0) + xr(1) + wr(0, 1) + wr(1, 0) + wr(1, 1)
    def mf(b0, first):
        out = []
        for part in range(2):
            for b in range(2):
                for tb in range(2):
                    a = acc(part, b, tb); w = b0 + 8 + 8*part + 4*b; x = b0 + 4*tb
                    c = "0" if first else f"v[{a}:{a+15}]"
                    out.append((f"{MF} v[{a}:{a+15}], v[{w}:{w+3}], v[{x}:{x+3}], {c}", [f"X{tb}", f"W{part}{b}"]))
        return out
    def mfmas(g, st): return mf(fr(st), g == 0)
    def dmas(u):
        out = []
        if u + 2 < 16: out += wd(u + 2)
        if u % 2 == 0 and u//2 + 1 < 8: out += xd(u//2 + 1)
        return out
    hooks = {ux - 1: [lambda: epoch_issue_all(k, 112)], ux: [extras]}
    ph = None
    if fine: ph = {u: (lambda i=i: k.stamp(i)) for i, u in enumerate((0, 2, 5, 8, 11, 14), 1)}
    else: k.stamp(1)
    gemm2(k, 16, mfmas, reads, dmas, lambda u: [("W", u), ("X", u >> 1)], fill0=None, rper=rper, dper=dper, hooks=hooks, pre_hooks=ph)
    if fine:
        k.stamp(7); k.nostamp = True
    k.stamp(2)
    if epi_prio is not None: k.e(f"s_setprio {epi_prio}")
    epoch_check_all(k, 112)
    k.wait_vm("ex")
    tags = [EX + 3 + 4*i for i in range(6)]
    def zero():
        for r in tags: k.e(f"v_mov_b32 v{r}, 0")
        if bal:
            k.e("s_nop 1")
            return
        k.e("s_mov_b32 exec_lo, 0")
        for r in range(EX, EX + 24):
            if r not in tags: k.e(f"v_mov_b32 v{r}, 0")
        k.e("s_mov_b32 exec_lo, -1", "s_nop 1")
    tag_check(k, extras, tags + [102, 106], "x3", zero)
    for (t, _) in mf(EX, False): k.e(t)
    if post_loop: post_loop()
    k.e(f"v_mul_f32 v110, 0x{f2u(-LOG2E):08x}, v100", f"v_mul_f32 v111, 0x{f2u(-LOG2E):08x}, v104")
    k.e("v_lshlrev_b32 v10, 4, v1",
        "s_lshl_b32 s36, s25, 2", "s_lshl_b32 s37, s27, 1", "s_add_u32 s36, s36, s37", "s_mul_i32 s36, s36, 112",
        "s_lshl_b32 s37, s26, 3", "s_add_u32 s36, s36, s37", "s_lshl_b32 s37, s28, 2", "s_add_u32 s36, s36, s37",
        "s_lshl_b32 s36, s36, 10", f"s_add_u32 s36, s36, 0x{WS_HF:x}")
    k.e("s_nop 7")
    n = 0
    for b in range(2):
        for tb in range(2):
            g = acc(0, b, tb); uu = acc(1, b, tb)
            A = 110 + tb; SD = 101 + 4*tb
            for r in range(16): k.e(f"v_mul_f32 v{g+r}, v{g+r}, v{A}")
            for r in range(16): k.e(f"v_exp_f32 v{g+r}, v{g+r}")
            for r in range(16): k.e(f"v_fma_f32 v{g+r}, v{g+r}, v{SD}, v{SD}")
            for r in range(16): k.e(f"v_rcp_f32 v{g+r}, v{g+r}")
            k.e("s_nop 0")
            for r in range(16): k.e(f"v_mul_f32 v{g+r}, v{g+r}, v{uu+r}")
            for j in range(2):
                d = 16 + 4*(n % 8); n += 1
                for i in range(4): k.e(f"v_cvt_pk_bf16_f32 v{d+i}, v{g+8*j+2*i}, v{g+8*j+2*i+1}")
                k.e(f"s_add_u32 s37, s36, {(tb*112 + b*2 + j)*1024}")
                k.vmem(f"buffer_store_dwordx4 v[{d}:{d+3}], v10, s[{SWS}:{SWS+3}], s37 offen sc1", "st")

def kF1(name="f1_fused_kernel", prio_e1=None, prio_e2=None, prio_g=None, epi_prio=1, post_prio=0, e4_prio=None, hsleep=2, osleep=2, qsleep=2,
        rot=True, ux1=11, ux3=11, dup=False, force_fb=False, nostats=False, gexit=0, notag=False, xal=False, touch1=False, fine1=False, mode1="x", mode3="x", touch3=0, rp1=5, dp1=2, rp3=4, dp3=1, ugo=None, gosleep=4, gomax=64, gp_touch=False, prio_e3=None, bal=False, tw=False, fine3=False, aexit=False, qnopoll=0, cpf=0):
    k = KV(name, nvgpr=256)
    k.e("s_cmp_ge_u32 s2, 512", f"s_cbranch_scc1 L_end_{k.name}")
    fx = srd(k, 8, 0, SZ_X) + srd(k, 20, 72, WS_SIZE2)
    load_dbg(k)
    if cpf:
        Lp = k.newlabel("cpf"); Lq = k.newlabel("pc")
        k.e(f"s_cmp_ge_u32 s2, {cpf}", f"s_cbranch_scc1 {Lp}", "s_getpc_b64 s[36:37]")
        k.label(Lq)
        k.e(f"s_sub_u32 s36, s36, {Lq}-{k.name}", "s_subb_u32 s37, s37, 0", "v_lshlrev_b32 v250, 7, v0",
            "v_mov_b32 v249, s37", "v_add_co_u32 v248, vcc, s36, v250", "s_nop 1", "v_addc_co_u32 v249, vcc, 0, v249, vcc")
        k.vmem("global_load_dword v252, v[248:249], off", "cpf", opt=True)
        k.e("v_add_u32 v250, 0x8000, v250", f"v_cmp_gt_u32 vcc, L_code_end-{k.name}, v250", "v_add_co_u32 v248, s[38:39], 0x4000, v248" if False else "s_nop 0")
        k.e("s_and_saveexec_b64 s[38:39], vcc", "v_mov_b32 v249, s37", "v_add_co_u32 v248, vcc, s36, v250", "s_nop 1", "v_addc_co_u32 v249, vcc, 0, v249, vcc")
        k.vmem("global_load_dword v253, v[248:249], off", "cpf", opt=True)
        k.e("s_mov_b64 exec, s[38:39]")
        k.label(Lp)
    k.e("v_lshrrev_b32 v10, 6, v0", "s_nop 1", "v_readfirstlane_b32 s24, v10")
    k.e("s_cmp_ge_u32 s2, 256", "s_cbranch_scc1 L_f1_g")
    fx1 = srd(k, 12, 8, SZ_WQKV)
    k.e("s_waitcnt lgkmcnt(0)"); k.e(*(fx + fx1))
    epoch_make(k)
    if prio_e1 is not None: k.e(f"s_setprio {prio_e1}")
    k.e("s_and_b32 s3, s2, 7", "s_lshr_b32 s4, s2, 3", "s_and_b32 s5, s3, 1", "s_lshl_b32 s26, s5, 2", "s_and_b32 s5, s4, 3", "s_add_u32 s26, s26, s5",
        "s_lshr_b32 s25, s3, 1", "s_lshl_b32 s25, s25, 3", "s_lshr_b32 s5, s4, 2", "s_add_u32 s25, s25, s5")
    k.e("s_and_b32 s53, s26, 3", "s_lshl_b32 s53, s53, 1", "s_add_u32 s53, s53, s25", "s_and_b32 s53, s53, 7")
    k.e("s_lshl_b32 s44, s3, 2", "s_and_b32 s5, s4, 3", "s_add_u32 s44, s44, s5", "s_lshr_b32 s45, s4, 2")
    k.stamp(0)
    if aexit:
        for i in range(1, 9): k.stamp(i)
        k.stamp_out(9, 0, sh=7); k.wait_vm_all(); k.e("s_waitcnt vmcnt(0)", "s_endpgm")
    def o_fill():
        k.e("v_mov_b32 v204, -1", "v_mov_b32 v205, -1", "v_mov_b32 v206, -1", "v_mov_b32 v207, -1", "v_lshlrev_b32 v203, 4, v1",
            "s_lshl_b32 s46, s45, 3", "s_lshl_b32 s47, s24, 1", "s_add_u32 s46, s46, s47", "s_lshl_b32 s46, s46, 5", "s_add_u32 s46, s46, s44",
            "s_lshl_b32 s46, s46, 10", f"s_add_u32 s46, s46, 0x{WS_OF:x}")
        k.vmem("buffer_store_dwordx4 v[204:207], v203, s[20:23], s46 offen sc1", "st")
        k.e("s_add_u32 s46, s46, 32768")
        k.vmem("buffer_store_dwordx4 v[204:207], v203, s[20:23], s46 offen sc1", "st")
    def go_store():
        L = w0_begin(k)
        k.e("s_lshl_b32 s46, s2, 7", f"s_add_u32 s46, s46, 0x{FLG_GO:x}", "v_mov_b32 v208, s46", "v_mov_b32 v209, 1", "s_mov_b64 exec, 1")
        k.vmem("buffer_store_dword v209, v208, s[20:23], 0 offen sc1", "go", opt=True)
        k.e("s_mov_b64 exec, -1")
        k.label(L)
    if mode1 == "x":
        e1x_body(k, bal=bal, rot=rot, ux=ux1, pre_store=o_fill, dup=dup, notag=notag, touch=touch1, fine=fine1)
    else:
        ph = {0: lambda: k.stamp(9), 1: lambda: k.stamp(10), 4: lambda: k.stamp(11), 10: lambda: k.stamp(12)} if fine1 else None
        hk = {11: [lambda: epoch_issue_all(k, 200)]}
        if isinstance(ugo, int): hk.setdefault(ugo, []).append(go_store)
        e1s_body(k, sc1="sc1", rot=rot, mst={"s": 0, "m": 1, "n": 2}[mode1], rper=rp1, dper=dp1, pre_hooks=ph, hooks=hk, pre_store=lambda: (epoch_check_all(k, 200), o_fill()))
    k.stamp(3)
    if ugo == "pub0": go_store()
    k.e("s_lshl_b32 s48, s26, 5", "s_add_u32 s48, s48, s25", "s_lshl_b32 s48, s48, 3", f"s_add_u32 s48, s48, 0x{FLG_QKV8:x}")
    publish(k, 48, vt=19)
    k.stamp(4)
    if ugo == "pub": go_store()
    k.e("s_mov_b32 s25, s44", "s_mov_b32 s26, s45")
    if prio_e2 is not None: k.e(f"s_setprio {prio_e2}")
    def qkv_wait():
        k.e("v_and_b32 v20, 31, v1", "v_lshlrev_b32 v20, 3, v20", "s_lshr_b32 s36, s25, 2", "s_lshl_b32 s36, s36, 8", f"s_add_u32 s36, s36, 0x{FLG_QKV8:x}",
            "v_add_u32 v20, s36, v20")
        L = w0_begin(k)
        Ll = k.newlabel("qw")
        if qnopoll:
            for _ in range(qnopoll): k.e("s_sleep 16")
            k.e(f"s_branch {L}")
        k.e(f"s_mov_b32 s{SCNT}, 0")
        k.label(Ll)
        k.e("buffer_load_dwordx2 v[22:23], v20, s[20:23], 0 offen sc1", f"s_add_u32 s{SCNT}, s{SCNT}, 1", "s_waitcnt vmcnt(0)",
            f"v_cmp_eq_u64 vcc, s[{SEP}:{SEP+1}], v[22:23]", "s_nop 3", "s_cmp_eq_u64 vcc, -1", f"s_cbranch_scc1 {L}",
            f"s_sleep {qsleep}", f"s_cmp_lt_u32 s{SCNT}, 0x{SPIN_MAX:x}", f"s_cbranch_scc1 {Ll}")
        k.label(L)
        k.wait_lg_all()
        k.e("s_barrier")
        if ugo == "e2": go_store()
        k.stamp(5 - k.stamp_off)
    k.stamp_off = 5
    e2_body(k, sc1="sc1", st_sc1="sc1", oflag="ep", pre_hook=qkv_wait, force_fb=force_fb)
    k.stamp_off = 0
    k.wait_vm_all()
    k.stamp(8); k.stamp_out(13 if fine1 else 9, 0, sh=7); k.wait_vm_all()
    k.e("s_endpgm")
    fb = k.fb_code
    k.label("L_f1_g")
    k.vm = []; k.lg = []
    SD, SO, SX, SOUT = 84, 88, 8, 4
    fx3 = srd(k, 12, 32, SZ_WG) + srd(k, 16, 40, SZ_WG) + srd(k, SD, 48, SZ_WD) + srd(k, SO, 16, SZ_WO) + srd(k, SOUT, 56, SZ_X)
    k.e("s_load_dwordx2 s[28:29], s[0:1], 8")
    k.e("s_sub_u32 s3, s2, 256")
    k.e("s_waitcnt lgkmcnt(0)"); k.e(*(fx + fx3))
    if prio_g is not None: k.e(f"s_setprio {prio_g}")
    def go_clear(idx=3):
        if ugo is None: return
        L = w0_begin(k)
        k.e(f"s_lshl_b32 s36, s{idx}, 7", f"s_add_u32 s36, s36, 0x{FLG_GO:x}", "v_mov_b32 v62, s36", "v_mov_b32 v63, 0", "s_mov_b64 exec, 1",
            "buffer_store_dword v63, v62, s[20:23], 0 offen sc1", "s_mov_b64 exec, -1")
        k.label(L)
    def go_wait():
        if ugo is None: return
        L = w0_begin(k)
        Ll = k.newlabel("go")
        k.e("s_waitcnt vmcnt(0)", "s_mov_b32 s38, 0", "s_mov_b64 exec, 1")
        k.label(Ll)
        k.e("buffer_load_dword v63, v62, s[20:23], 0 offen sc1", "s_add_u32 s38, s38, 1", "s_waitcnt vmcnt(0)", "v_readfirstlane_b32 s39, v63", "s_nop 3",
            "s_cmp_eq_u32 s39, 1", f"s_cbranch_scc1 {Ll}x", f"s_sleep {gosleep}", f"s_cmp_lt_u32 s38, {gomax}", f"s_cbranch_scc1 {Ll}")
        k.label(Ll + "x")
        k.e("s_mov_b64 exec, -1")
        k.label(L)
        k.e("s_barrier")
    k.stamp(0)
    go_clear()
    if gexit == 1: k.e("s_endpgm")
    if not nostats: (stats_role3(k) if bal else stats_role2(k, xal=xal))
    if gexit == 2: k.e("s_waitcnt vmcnt(0)", "s_endpgm")
    e4 = E4F(k, SD, SO, 20, SX, SOUT, hsleep=hsleep, osleep=osleep, ep=True)
    c = e4
    k.e("s_and_b32 s92, s3, 7", "s_lshr_b32 s93, s3, 3",
        f"s_and_b32 s{c.SRB}, s93, 3", "s_lshl_b32 s94, s92, 2", f"s_add_u32 s{c.SRB}, s{c.SRB}, s94", f"s_lshr_b32 s{c.SCB}, s93, 2")
    k.e("s_cmp_ge_u32 s2, 480", "s_cbranch_scc1 L_f1_pf")
    k.e("s_and_b32 s26, s92, 1", "s_mul_i32 s26, s26, 7", "s_lshr_b32 s94, s93, 2", "s_add_u32 s26, s26, s94",
        "s_lshr_b32 s25, s92, 1", "s_lshl_b32 s25, s25, 2", "s_and_b32 s95, s93, 3", "s_add_u32 s25, s25, s95")
    k.e("s_lshl_b32 s53, s95, 1", "s_add_u32 s53, s53, s94", "s_and_b32 s53, s53, 7")
    def touchW(vd=60):
        a = 61
        k.e(f"s_and_b32 s{c.SC}, s{c.SRB}, 3", f"s_mul_i32 s{c.SK}, s{c.SC}, {112*1024}", f"s_add_u32 s{c.SK}, s{c.SK}, s{c.SDO}",
            f"s_lshl_b32 s{c.ST}, s{c.SCB}, 7", f"v_lshlrev_b32 v{a}, 10, v1", f"v_add_u32 v{a}, s{c.ST}, v{a}")
        k.vmem(f"buffer_load_dword v{vd}, v{a}, s[{c.SD}:{c.SD+3}], s{c.SK} offen", "touch")
        k.e(f"s_add_u32 s{c.SK}, s{c.SK}, 65536", "s_mov_b32 exec_hi, 0xffff")
        k.vmem(f"buffer_load_dword v{vd+2}, v{a}, s[{c.SD}:{c.SD+3}], s{c.SK} offen", "touch")
        k.e(f"s_lshl_b32 s{c.SK}, s{c.SC}, 15", f"s_add_u32 s{c.SK}, s{c.SK}, s{c.SWO}", "s_mov_b32 exec_hi, 0")
        k.vmem(f"buffer_load_dword v{vd+3}, v{a}, s[{c.SO}:{c.SO+3}], s{c.SK} offen", "touch")
        k.e("s_mov_b32 exec_hi, -1")
    def post_loop():
        k.e("s_barrier")
        e4.setup()
        for s in range(c.DEPTH): e4.issueW(s)
        if tw: touchW()
    def touch_w3():
        if touch3 in (0, 3): go_wait()
        if not touch3: return
        k.e("v_lshrrev_b32 v66, 1, v1", "v_mul_u32_u24 v66, 3584, v66", "v_and_b32 v67, 1, v1", "v_lshl_add_u32 v66, v67, 7, v66",
            "s_lshl_b32 s36, s95, 7", "s_lshl_b32 s37, s24, 5", "s_add_u32 s36, s36, s37", "s_mul_i32 s36, s36, 3584", "s_lshl_b32 s37, s26, 8", "s_add_u32 s36, s36, s37")
        k.vmem("buffer_load_dword v74, v66, s[12:15], s36 offen", "touch")
        k.vmem("buffer_load_dword v75, v66, s[16:19], s36 offen", "touch")
        if touch3 == 2: k.wait_vm("touch")
        if touch3 in (1, 2): go_wait()
    if prio_e3 is not None: k.e(f"s_setprio {prio_e3}")
    if mode3 == "x":
        e3x_body(k, bal=bal, fine=fine3, epi_prio=epi_prio, post_loop=post_loop, rot=rot, ux=ux3)
    else:
        e3s_body(k, st_sc1="sc1", epi_prio=epi_prio, post_loop=post_loop, rot=rot, outb=64, pre_dma=touch_w3, mst={"s": 0, "m": 1, "n": 2}[mode3], rper=rp3, dper=dp3,
                 hooks={11: [lambda: epoch_issue_all(k, 124)], 13: [lambda: epoch_check_all(k, 124)]})
    k.e("s_lshl_b32 s36, s25, 1", "s_add_u32 s36, s36, s27", "s_lshl_b32 s36, s36, 8", "s_lshl_b32 s37, s26, 1", "s_add_u32 s37, s37, s28",
        "s_lshl_b32 s37, s37, 3", "s_add_u32 s36, s36, s37", f"s_add_u32 s36, s36, 0x{FLG_H8:x}", "v_mov_b32 v56, s36",
        f"v_mov_b32 v58, s{SEP}", f"v_mov_b32 v59, s{SEP+1}")
    k.stamp(3)
    k.wait_vm_all()
    if gexit == 3:
        ns = getattr(k, "nostamp", False); k.stamp_out(8, 0x40000, sh=7); k.e("s_waitcnt vmcnt(0)", "s_endpgm")
    k.stamp(4)
    k.e("s_mov_b64 exec, 1")
    k.vmem("buffer_store_dwordx2 v[58:59], v56, s[20:23], 0 offen sc1", "flag")
    k.e("s_mov_b64 exec, -1")
    if post_prio is not None: k.e(f"s_setprio {post_prio}")
    k.e("s_branch L_f1_e4")
    k.label("L_f1_pf")
    if gexit == 3: k.e("s_endpgm")
    k.vm = []; k.lg = []
    k.e("v_and_b32 v1, 63, v0")
    if gp_touch:
        k.e("s_sub_u32 s99, s3, 224")
        go_wait()
        k.e("s_lshl_b32 s36, s99, 8", "v_add_u32 v60, s36, v0", "v_lshlrev_b32 v60, 7, v60", "s_mov_b32 s36, 0x100000")
        k.vmem(f"buffer_load_dword v61, v60, s[{SD}:{SD+3}], 0 offen", "touch")
        k.vmem(f"buffer_load_dword v62, v60, s[{SD}:{SD+3}], s36 offen", "touch")
        k.vmem(f"buffer_load_dword v63, v60, s[{SO}:{SO+3}], 0 offen", "touch")
    epoch_issue_all(k, 112)
    k.stamp(1); k.stamp(2); k.stamp(3); k.stamp(4)
    e4.setup()
    epoch_check_all(k, 112)
    for s in range(c.DEPTH): e4.issueW(s)
    if post_prio is not None: k.e(f"s_setprio {post_prio}")
    k.label("L_f1_e4")
    k.vm = [(("W", s), False) for s in range(c.DEPTH) for _ in range(2)] + [("flag", True)]
    k.lg = []
    e4.e4_prio = e4_prio; e4.post_prio = post_prio
    e4.body(st=(5, 6))
    k.wait_vm_all()
    k.stamp(7); k.stamp_out(8, 0x40000, sh=7); k.wait_vm_all()
    k.label(f"L_end_{k.name}")
    k.e("s_endpgm")
    fb()
    k.emit_tails()
    k.label("L_code_end")
    k.e("s_endpgm")
    return k

def build(fn, **kw):
    k = kF1(**kw)
    txt = build_file([(k.name, (512,1,1), (256,1,1), 81920)], [k])
    open(fn, "w").write(txt)
    e = haz.check_text(txt)
    for x in e: print(x)
    print(fn, len(e), "hazards;", len(txt), "bytes")

if __name__ == "__main__":
    build("f1.s")
    KV.STAMP = True
    build("f1st.s")
```

```python
import sys
sys.path.insert(0, "gen")
from eng import *
import eng, haz

FLG_GO = FLG + 0x8000

EPCONST = [False]
def epoch_issue_all(k, vd):
    if EPCONST[0]: return
    k.e(f"v_mov_b32 v{vd+2}, 0")
    k.vmem(f"global_load_dwordx2 v[{vd}:{vd+1}], v{vd+2}, s[{SDBG}:{SDBG+1}] sc1", "ep")

def epoch_check_all(k, vd):
    if EPCONST[0]:
        k.e(f"s_mov_b32 s{SEP}, 0x13572469", f"s_mov_b32 s{SEP+1}, 0x2468ace1"); return
    Ls = k.newlabel("eps"); Lc = k.newlabel("epc")
    k.wait_vm("ep")
    k.e(f"v_readfirstlane_b32 s{SEP}, v{vd}", f"v_readfirstlane_b32 s{SEP+1}, v{vd+1}", "s_nop 3", f"s_cmp_eq_u32 s{SEP}, 0", f"s_cbranch_scc1 {Ls}")
    k.label(Lc)
    def tail():
        k.label(Ls)
        k.e(f"s_mov_b32 s{SCNT}, 0")
        k.label(Ls + "_l")
        k.e(f"global_load_dwordx2 v[{vd}:{vd+1}], v{vd+2}, s[{SDBG}:{SDBG+1}] sc1", f"s_add_u32 s{SCNT}, s{SCNT}, 1", "s_waitcnt vmcnt(0)",
            f"v_readfirstlane_b32 s{SEP}, v{vd}", f"v_readfirstlane_b32 s{SEP+1}, v{vd+1}", "s_nop 3", f"s_cmp_lg_u32 s{SEP}, 0", f"s_cbranch_scc1 {Lc}",
            "s_sleep 2", f"s_cmp_lt_u32 s{SCNT}, 0x{SPIN_MAX:x}", f"s_cbranch_scc1 {Ls}_l", f"s_branch {Lc}")
    k.tails.append(tail)

def tag_check(k, issue, tagregs, name, zero):
    Ls = k.newlabel(name + "s"); Lc = k.newlabel(name + "c")
    def cmp():
        k.e(f"v_cmp_eq_u32 vcc, s{SEP}, v{tagregs[0]}")
        for r in tagregs[1:]:
            k.e(f"v_cmp_eq_u32 s[36:37], s{SEP}, v{r}", "s_nop 1", "s_and_b64 vcc, vcc, s[36:37]")
        k.e("s_cmp_eq_u64 vcc, -1")
    cmp()
    k.e(f"s_cbranch_scc0 {Ls}")
    k.label(Lc)
    zero()
    def tail():
        k.label(Ls)
        k.e(f"s_mov_b32 s{SCNT}, 0")
        k.label(Ls + "_l")
        sv = (k.vm, k.lg)
        issue()
        k.vm, k.lg = sv
        k.e(f"s_add_u32 s{SCNT}, s{SCNT}, 1", "s_waitcnt vmcnt(0)")
        cmp()
        k.e(f"s_cbranch_scc1 {Lc}", "s_sleep 1", f"s_cmp_lt_u32 s{SCNT}, 0x{SPIN_MAX:x}", f"s_cbranch_scc1 {Ls}_l", f"s_branch {Lc}")
    k.tails.append(tail)

def row_job2(k, s_job, srd_x, srd_ws):
    k.e("v_and_b32 v1, 63, v0", "v_lshrrev_b32 v2, 6, v0", f"s_lshl_b32 s40, s{s_job}, 14",
        "v_lshlrev_b32 v3, 12, v2", "v_lshl_add_u32 v3, v1, 4, v3", "v_add_u32 v3, s40, v3")
    for j in range(4):
        k.vmem(f"buffer_load_dwordx4 v[{4+4*j}:{7+4*j}], v3, s[{srd_x}:{srd_x+3}], 0 offen offset:{1024*j}", "rj")
    k.e("v_bfe_u32 v72, v1, 1, 2", "v_cmp_eq_u32 s[42:43], 1, v72", "v_cmp_eq_u32 s[44:45], 2, v72", "v_cmp_eq_u32 s[46:47], 3, v72")
    k.wait_vm("rj")
    epoch_issue_all(k, 74)
    for j in range(4):
        for i in range(4):
            k.e(f"v_lshlrev_b32 v{32+8*j+2*i}, 16, v{4+4*j+i}", f"v_and_b32 v{33+8*j+2*i}, 0xffff0000, v{4+4*j+i}")
    for j in range(4):
        b = 32 + 8*j
        k.e(f"v_add_f32 v{20+j}, v{b}, v{b+1}")
    for i in range(2, 8):
        for j in range(4):
            k.e(f"v_add_f32 v{20+j}, v{20+j}, v{32+8*j+i}")
    allreduce(k, [20, 21, 22, 23], [24, 25, 26, 27])
    for j in range(4): k.e(f"v_mul_f32 v{20+j}, 0x3b000000, v{20+j}")
    for i in range(8):
        for j in range(4): k.e(f"v_sub_f32 v{32+8*j+i}, v{32+8*j+i}, v{20+j}")
    for j in range(4): k.e(f"v_mul_f32 v{28+j}, v{32+8*j}, v{32+8*j}")
    for i in range(1, 8):
        for j in range(4): k.e(f"v_fmac_f32 v{28+j}, v{32+8*j+i}, v{32+8*j+i}")
    allreduce(k, [28, 29, 30, 31], [24, 25, 26, 27])
    k.e("v_cndmask_b32 v64, v20, v21, s[42:43]", "v_cndmask_b32 v65, v28, v29, s[42:43]",
        "v_cndmask_b32 v64, v64, v22, s[44:45]", "v_cndmask_b32 v65, v65, v30, s[44:45]",
        "v_cndmask_b32 v64, v64, v23, s[46:47]", "v_cndmask_b32 v65, v65, v31, s[46:47]")
    k.e("v_mov_b32 v66, 0x3727c5ac", "v_fmac_f32 v66, 0x3b000000, v65",
        "v_rsq_f32 v67, v66", "v_sub_f32 v64, 0, v64",
        "v_mul_f32 v68, v66, v67",
        "v_cvt_pk_bf16_f32 v69, v64, v64", "s_nop 0", "v_and_b32 v69, 0xffff0000, v69", "v_sub_f32 v70, v64, v69",
        "v_cvt_pk_bf16_f32 v69, v70, v70", "s_nop 0", "v_and_b32 v69, 0xffff0000, v69", "v_sub_f32 v71, v70, v69",
        "v_cvt_pk_bf16_f32 v4, v64, v70", "v_cvt_pk_bf16_f32 v6, v71, v64",
        "v_and_b32 v72, 1, v1", "v_cmp_eq_u32 vcc, 1, v72", "v_mov_b32 v5, v4")
    k.e(f"s_lshl_b32 s40, s{s_job}, 9", "v_lshlrev_b32 v3, 7, v2", "v_lshl_add_u32 v3, v1, 4, v3", "v_add_u32 v3, s40, v3")
    epoch_check_all(k, 74)
    k.e(f"v_mov_b32 v7, s{SEP}",
        "v_cndmask_b32 v4, v4, v67, vcc", "v_cndmask_b32 v5, v5, v68, vcc", "v_cndmask_b32 v6, v6, v7, vcc")
    k.e("v_cmp_gt_u32 vcc, 8, v1", "s_and_saveexec_b64 s[42:43], vcc")
    k.vmem(f"buffer_store_dwordx4 v[4:7], v3, s[{srd_ws}:{srd_ws+3}], 0 offen offset:{WS_TOK} sc1", "st")
    k.e("s_mov_b64 exec, s[42:43]")

def col_job2(k, s_job, srd_w, s_ld, s_col0b, srd_ws, s_half=None, mid=None):
    NL = 16 if s_half is None else 8
    k.e("v_and_b32 v1, 63, v0", "v_lshrrev_b32 v2, 6, v0", "v_lshrrev_b32 v3, 3, v1", f"v_lshl_add_u32 v3, v2, {7 if s_half is None else 6}, v3")
    if s_half is not None: k.e(f"s_lshl_b32 s40, s{s_half}, 8", "v_add_u32 v3, s40, v3")
    k.e(
        f"v_mul_lo_u32 v3, v3, s{s_ld}", "v_and_b32 v4, 7, v1", "v_lshl_add_u32 v3, v4, 4, v3", f"v_add_u32 v3, s{s_col0b}, v3",
        f"s_lshl_b32 s41, s{s_ld}, 3", "s_mov_b32 s40, 0")
    for i in range(NL):
        k.vmem(f"buffer_load_dwordx4 v[{8+4*i}:{11+4*i}], v3, s[{srd_w}:{srd_w+3}], s40 offen", ("cj", i))
        if i < NL - 1: k.e("s_add_u32 s40, s40, s41")
    LB = 32768 if mid else 0
    if mid:
        epoch_issue_all(k, 74); mid()
    k.e("s_mov_b32 s42, 0x00003f80", "s_mov_b32 s43, 0x3f800000")
    A = 80
    for i in range(8): k.e(f"v_mov_b32 v{A+i}, 0")
    for i in range(NL):
        k.wait_vm(("cj", i))
        if i == NL - 1 and not mid: epoch_issue_all(k, 74)
        for d in range(4):
            k.e(f"v_dot2_f32_bf16 v{A+2*d}, v{8+4*i+d}, s42, v{A+2*d}", f"v_dot2_f32_bf16 v{A+1+2*d}, v{8+4*i+d}, s43, v{A+1+2*d}")
    k.e("s_nop 2")
    for i in range(8): k.e(f"v_add_f32_dpp v{A+i}, v{A+i}, v{A+i} row_ror:8 row_mask:0xf bank_mask:0xf")
    k.e("v_lshrrev_b32 v5, 4, v1", "v_lshl_add_u32 v5, v2, 2, v5", "v_lshlrev_b32 v5, 8, v5", "v_lshl_add_u32 v5, v4, 5, v5",
        "v_and_b32 v6, 15, v1", "v_cmp_gt_u32 vcc, 8, v6", "s_and_saveexec_b64 s[44:45], vcc")
    k.ds(f"ds_write_b128 v5, v[{A}:{A+3}] offset:{LB}")
    k.ds(f"ds_write_b128 v5, v[{A+4}:{A+7}] offset:{LB+16}")
    k.e("s_mov_b64 exec, s[44:45]")
    k.wait_lg_all()
    k.e("s_barrier")
    k.e("v_lshlrev_b32 v5, 2, v1")
    for p in range(16): k.ds(f"ds_read_b32 v{8+p}, v5 offset:{LB+256*p}")
    k.wait_lg_all()
    for st in (8, 4, 2, 1):
        for p in range(st): k.e(f"v_add_f32 v{8+p}, v{8+p}, v{8+p+st}")
    k.e("s_nop 0",
        "v_cvt_pk_bf16_f32 v12, v8, v8", "s_nop 0", "v_and_b32 v9, 0xffff0000, v12", "v_sub_f32 v9, v8, v9",
        "v_cvt_pk_bf16_f32 v13, v9, v9", "s_nop 0", "v_and_b32 v10, 0xffff0000, v13", "v_sub_f32 v10, v9, v10",
        "v_cvt_pk_bf16_f32 v14, v8, v10",
        f"s_lshl_b32 s40, s{s_job}, 10", "v_lshlrev_b32 v5, 4, v1", "v_add_u32 v5, s40, v5", f"s_mov_b32 s40, {WS_COL}")
    if s_half is not None: k.e(f"s_mul_i32 s41, s{s_half}, {COL2}", "s_add_u32 s40, s40, s41")
    epoch_check_all(k, 74)
    k.e(f"v_mov_b32 v15, s{SEP}", "v_cmp_gt_u32 vcc, 64, v0", "s_and_saveexec_b64 s[44:45], vcc")
    Lx = k.newlabel("cjx")
    k.e(f"s_cbranch_execz {Lx}")
    k.vmem(f"buffer_store_dwordx4 v[12:15], v5, s[{srd_ws}:{srd_ws+3}], s40 offen sc1", "st", opt=True)
    k.label(Lx)
    k.e("s_mov_b64 exec, s[44:45]")
    k.e("s_barrier")

def stats_role2(k, SWQ=28, xal=False):
    Lc = k.newlabel("stc"); Ld = k.newlabel("std"); Lg = k.newlabel("stg")
    k.e("s_cmp_ge_u32 s3, 208", f"s_cbranch_scc1 {Ld}", "s_cmp_ge_u32 s3, 128", f"s_cbranch_scc1 {Lc}")
    if xal:
        k.e("s_and_b32 s96, s3, 7", "s_lshr_b32 s97, s3, 3", "s_lshl_b32 s96, s96, 4", "s_add_u32 s98, s96, s97")
    else: k.e("s_mov_b32 s98, s3")
    row_job2(k, 98, 8, 20)
    k.e(f"s_branch {Ld}")
    k.label(Lc)
    v0 = list(k.vm)
    k.vm = []; k.lg = []
    k.e("s_sub_u32 s98, s3, 128")
    if xal:
        La = k.newlabel("xa"); Lb = k.newlabel("xb")
        k.e("s_and_b32 s96, s98, 7", "s_lshr_b32 s97, s98, 3", "s_cmp_ge_u32 s97, 3", f"s_cbranch_scc1 {La}",
            "s_and_b32 s92, s96, 1", "s_lshl_b32 s92, s92, 2", "s_lshr_b32 s93, s96, 1", "s_add_u32 s92, s92, s93", "s_lshl_b32 s98, s97, 3", "s_add_u32 s98, s98, s92", f"s_branch {Lb}")
        k.label(La)
        k.e("s_lshr_b32 s92, s96, 1", "s_mul_i32 s92, s92, 7", "s_add_u32 s92, s92, s97", "s_sub_u32 s92, s92, 3",
            "s_and_b32 s93, s96, 1", "s_mul_i32 s93, s93, 7", "s_lshr_b32 s94, s92, 2", "s_add_u32 s93, s93, s94",
            "s_lshl_b32 s93, s93, 1", "s_and_b32 s94, s92, 1", "s_add_u32 s93, s93, s94",
            "s_bfe_u32 s94, s92, 0x10001", "s_mul_i32 s94, s94, 28", "s_add_u32 s98, s93, s94", "s_add_u32 s98, s98, 24")
        k.label(Lb)
    k.e(
        f"s_mov_b32 s92, s{SWQ}", f"s_mov_b32 s93, s{SWQ+1}", f"s_mov_b32 s94, {SZ_WQKV}", "s_mov_b32 s95, 0x00020000",
        "s_movk_i32 s96, 3072", "s_lshl_b32 s97, s98, 7",
        "s_cmp_lt_u32 s98, 24", f"s_cbranch_scc1 {Lg}",
        "s_mov_b32 s92, s12", "s_mov_b32 s93, s13", f"s_mov_b32 s94, {SZ_WG}", "s_movk_i32 s96, 3584",
        "s_sub_u32 s97, s98, 24", "s_lshl_b32 s97, s97, 7",
        "s_cmp_lt_u32 s98, 52", f"s_cbranch_scc1 {Lg}",
        "s_mov_b32 s92, s16", "s_mov_b32 s93, s17", "s_sub_u32 s97, s98, 52", "s_lshl_b32 s97, s97, 7")
    k.label(Lg)
    col_job2(k, 98, 92, 96, 97, 20)
    k.label(Ld)
    k.vm = [("st", True)]; k.lg = []

COL2 = 0x14000
def row_job3(k, s_job, srd_x, srd_ws, mid=None):
    k.e("v_and_b32 v1, 63, v0", "v_lshrrev_b32 v2, 6, v0", f"s_lshl_b32 s40, s{s_job}, 15", "s_movk_i32 s41, 4096",
        "v_lshlrev_b32 v3, 13, v2", "v_lshl_add_u32 v3, v1, 4, v3", "v_add_u32 v3, s40, v3")
    SRC = (4, 80)
    for b in range(2):
        for j in range(4):
            k.vmem(f"buffer_load_dwordx4 v[{SRC[b]+4*j}:{SRC[b]+3+4*j}], v3, s[{srd_x}:{srd_x+3}], {'s41' if b else '0'} offen offset:{1024*j}", ("rj", b))
    if mid:
        epoch_issue_all(k, 74); mid()
    k.e("v_bfe_u32 v72, v1, 1, 2", "v_cmp_eq_u32 s[42:43], 1, v72", "v_cmp_eq_u32 s[44:45], 2, v72", "v_cmp_eq_u32 s[46:47], 3, v72")
    k.e(f"s_lshl_b32 s40, s{s_job}, 10", "v_lshlrev_b32 v73, 8, v2", "v_lshl_add_u32 v73, v1, 4, v73", "v_add_u32 v73, s40, v73")
    for b in range(2):
        S = SRC[b]
        k.wait_vm(("rj", b))
        if b == 0 and not mid: epoch_issue_all(k, 74)
        for j in range(4):
            for i in range(4):
                k.e(f"v_lshlrev_b32 v{32+8*j+2*i}, 16, v{S+4*j+i}", f"v_and_b32 v{33+8*j+2*i}, 0xffff0000, v{S+4*j+i}")
        for j in range(4):
            bb = 32 + 8*j
            k.e(f"v_add_f32 v{20+j}, v{bb}, v{bb+1}")
        for i in range(2, 8):
            for j in range(4):
                k.e(f"v_add_f32 v{20+j}, v{20+j}, v{32+8*j+i}")
        allreduce(k, [20, 21, 22, 23], [24, 25, 26, 27])
        for j in range(4): k.e(f"v_mul_f32 v{20+j}, 0x3b000000, v{20+j}")
        for i in range(8):
            for j in range(4): k.e(f"v_sub_f32 v{32+8*j+i}, v{32+8*j+i}, v{20+j}")
        for j in range(4): k.e(f"v_mul_f32 v{28+j}, v{32+8*j}, v{32+8*j}")
        for i in range(1, 8):
            for j in range(4): k.e(f"v_fmac_f32 v{28+j}, v{32+8*j+i}, v{32+8*j+i}")
        allreduce(k, [28, 29, 30, 31], [24, 25, 26, 27])
        k.e("v_cndmask_b32 v64, v20, v21, s[42:43]", "v_cndmask_b32 v65, v28, v29, s[42:43]",
            "v_cndmask_b32 v64, v64, v22, s[44:45]", "v_cndmask_b32 v65, v65, v30, s[44:45]",
            "v_cndmask_b32 v64, v64, v23, s[46:47]", "v_cndmask_b32 v65, v65, v31, s[46:47]")
        k.e("v_mov_b32 v66, 0x3727c5ac", "v_fmac_f32 v66, 0x3b000000, v65",
            "v_rsq_f32 v67, v66", "v_sub_f32 v64, 0, v64",
            "v_mul_f32 v68, v66, v67",
            "v_cvt_pk_bf16_f32 v69, v64, v64", "s_nop 0", "v_and_b32 v69, 0xffff0000, v69", "v_sub_f32 v70, v64, v69",
            "v_cvt_pk_bf16_f32 v69, v70, v70", "s_nop 0", "v_and_b32 v69, 0xffff0000, v69", "v_sub_f32 v71, v70, v69",
            "v_cvt_pk_bf16_f32 v96, v64, v70", "v_cvt_pk_bf16_f32 v98, v71, v64",
            "v_and_b32 v72, 1, v1", "v_cmp_eq_u32 vcc, 1, v72", "v_mov_b32 v97, v96")
        if b == 0: epoch_check_all(k, 74)
        k.e(f"v_mov_b32 v99, s{SEP}", "v_and_b32 v72, 1, v1", "v_cmp_eq_u32 vcc, 1, v72", "s_nop 1",
            "v_cndmask_b32 v96, v96, v67, vcc", "v_cndmask_b32 v97, v97, v68, vcc", "v_cndmask_b32 v98, v98, v99, vcc")
        k.e("v_cmp_gt_u32 vcc, 8, v1", "s_and_saveexec_b64 s[48:49], vcc")
        k.vmem(f"buffer_store_dwordx4 v[96:99], v73, s[{srd_ws}:{srd_ws+3}], 0 offen offset:{WS_TOK + 128*b} sc1", "st")
        k.e("s_mov_b64 exec, s[48:49]", "s_nop 1")

def stats_role3(k, SWQ=28, mid=None):
    Lc = k.newlabel("stc"); Ld = k.newlabel("std"); Lg = k.newlabel("stg"); Lq = k.newlabel("stq")
    k.e("s_cmp_ge_u32 s3, 64", f"s_cbranch_scc1 {Lc}")
    k.e("s_mov_b32 s98, s3")
    row_job3(k, 98, 8, 20, mid=mid)
    k.e(f"s_branch {Ld}")
    Lf = k.newlabel("stf")
    if mid:
        k.label(Lf)
        k.vm = []; k.lg = []
        mid()
        k.e(f"s_branch {Ld}")
    k.label(Lc)
    k.vm = []; k.lg = []
    k.e("s_sub_u32 s98, s3, 64", "s_cmp_lt_u32 s3, 112", f"s_cbranch_scc1 {Lq}", "s_cmp_lt_u32 s3, 144", f"s_cbranch_scc1 {Lf if mid else Ld}", "s_sub_u32 s98, s3, 96")
    k.label(Lq)
    k.e("s_and_b32 s99, s98, 1", "s_lshr_b32 s98, s98, 1")
    k.e(
        f"s_mov_b32 s92, s{SWQ}", f"s_mov_b32 s93, s{SWQ+1}", f"s_mov_b32 s94, {SZ_WQKV}", "s_mov_b32 s95, 0x00020000",
        "s_movk_i32 s96, 3072", "s_lshl_b32 s97, s98, 7",
        "s_cmp_lt_u32 s98, 24", f"s_cbranch_scc1 {Lg}",
        "s_mov_b32 s92, s12", "s_mov_b32 s93, s13", f"s_mov_b32 s94, {SZ_WG}", "s_movk_i32 s96, 3584",
        "s_sub_u32 s97, s98, 24", "s_lshl_b32 s97, s97, 7",
        "s_cmp_lt_u32 s98, 52", f"s_cbranch_scc1 {Lg}",
        "s_mov_b32 s92, s16", "s_mov_b32 s93, s17", "s_sub_u32 s97, s98, 52", "s_lshl_b32 s97, s97, 7")
    k.label(Lg)
    col_job2(k, 98, 92, 96, 97, 20, s_half=99, mid=mid)
    k.label(Ld)
    k.vm = [("st", True), ("st", True)]; k.lg = []
    if mid: k.vm = [(("X", 0), False)]*4 + [(("W", 0), False)]*4 + [(("W", 1), False)]*4 + k.vm

def e1x_body(k, SX=8, SW=12, SWS=20, exit_loop=False, noex=False, wx=0, bal=False, rot=True, ux=11, pre_store=None, dup=False, rper=5, dper=2, notag=False, touch=False, fine=False):
    E1_XB = 49152
    k.e("v_and_b32 v1, 63, v0")
    k.e("v_and_b32 v11, 31, v1", "v_lshrrev_b32 v12, 5, v1")
    k.e("s_and_b32 s27, s24, 1", "s_lshr_b32 s28, s24, 1")
    k.e("v_lshrrev_b32 v13, 3, v1", "v_lshrrev_b32 v14, 4, v1", "v_and_b32 v15, 7, v1",
        "v_xor_b32 v7, v15, v14", "v_lshlrev_b32 v7, 4, v7", "v_lshl_add_u32 v7, v13, 10, v7",
        "s_lshl_b32 s29, s25, 16", "s_lshl_b32 s30, s24, 14", "s_add_u32 s29, s29, s30",
        "v_add_u32 v7, s29, v7", "v_xor_b32 v8, 64, v7", "v_add_u32 v8, 8192, v8")
    k.e("v_and_b32 v14, 1, v14", "v_lshlrev_b32 v14, 2, v14", "v_xor_b32 v9, v15, v14", "v_lshlrev_b32 v9, 4, v9",
        "s_lshl_b32 s30, s24, 3", "v_add_u32 v13, s30, v13", "v_mul_u32_u24 v13, 3072, v13", "v_add_u32 v9, v9, v13",
        f"s_xor_b32 s30, s26, {wx}", "s_lshl_b32 s30, s30, 7", "v_add_u32 v9, s30, v9")
    k.e(f"s_lshl_b32 s31, s24, 11", f"s_add_u32 s31, s31, {E1_XB}", "s_lshl_b32 s32, s24, 10")
    def xd(v):
        if rot:
            return [dmab(SX, 7, 31, (v % 3)*8192, 33, 51, 0, ("X", v)),
                    dmab(SX, 8, 31, (v % 3)*8192 + 1024, 33, 51, 0, ("X", v), post=["s_add_u32 s51, s51, 128", "s_and_b32 s51, s51, 1023"])]
        return [dma(SX, 7, 31, (v % 3)*8192, 33, v*128, ("X", v)), dma(SX, 8, 31, (v % 3)*8192 + 1024, 33, v*128, ("X", v))]
    def wd(u):
        if rot:
            return [dmab(SW, 9, 32, (u % 4)*12288 + p*4096, 33, 50, 0, ("W", u), imm=1024*p, post=(rot_adv(50, 32*3072, 512*3072, 52) if p == 2 else ())) for p in range(3)]
        return [dma(SW, 9, 32, (u % 4)*12288 + p*4096, 33, u*32*3072, ("W", u), imm=1024*p) for p in range(3)]
    if rot:
        k.e("s_lshl_b32 s51, s53, 7", f"s_mul_i32 s50, s53, {64*3072}")
    if touch:
        k.e("v_lshrrev_b32 v130, 3, v1", "v_and_b32 v131, 7, v1", "v_lshlrev_b32 v131, 7, v131", "v_lshl_add_u32 v130, v130, 10, v131",
            "s_and_b32 s34, s26, 3", "s_lshl_b32 s34, s34, 4", "s_lshl_b32 s35, s24, 2", "s_add_u32 s34, s34, s35", "s_lshl_b32 s34, s34, 10", "s_lshl_b32 s35, s25, 16", "s_add_u32 s34, s34, s35",
            "s_mov_b32 exec_hi, 0")
        k.vmem(f"buffer_load_dword v132, v130, s[{SX}:{SX+3}], s34 offen", "touch")
        k.e("s_mov_b32 exec_hi, -1")
        k.e("v_and_b32 v130, 15, v1", "v_mul_u32_u24 v130, 3072, v130", "v_lshrrev_b32 v131, 4, v1", "v_lshl_add_u32 v130, v131, 10, v130",
            "s_and_b32 s34, s25, 7", "s_lshl_b32 s34, s34, 6", "s_lshl_b32 s35, s24, 4", "s_add_u32 s34, s34, s35", "s_mul_i32 s34, s34, 3072", "s_lshl_b32 s35, s26, 7", "s_add_u32 s34, s34, s35",
            "s_mov_b32 exec_hi, 0xffff")
        k.vmem(f"buffer_load_dword v133, v130, s[{SW}:{SW+3}], s34 offen", "touch")
        k.e("s_mov_b32 exec_hi, -1")
    emit_groups(k, xd(0) + wd(0) + wd(1) + xd(1) + wd(2))
    k.e("s_lshl_b32 s36, s27, 5", "v_add_u32 v13, s36, v11", "v_bfe_u32 v14, v13, 1, 3", "v_xor_b32 v14, v14, v12",
        "v_lshlrev_b32 v14, 4, v14", "v_lshl_add_u32 v2, v13, 7, v14", f"v_add_u32 v2, {E1_XB}, v2",
        "v_xor_b32 v3, 32, v2", "v_xor_b32 v4, 64, v2", "v_xor_b32 v5, 96, v2")
    k.e("v_bfe_u32 v13, v1, 2, 2", "v_lshl_add_u32 v13, v12, 3, v13", "v_lshlrev_b32 v6, 7, v13",
        "v_bfe_u32 v13, v1, 4, 1", "v_lshlrev_b32 v13, 1, v13", "v_bfe_u32 v14, v1, 1, 1", "v_add_u32 v13, v13, v14",
        "s_lshl_b32 s36, s28, 2", "v_add_u32 v13, s36, v13", "v_bfe_u32 v14, v1, 3, 1", "v_lshlrev_b32 v14, 2, v14",
        "v_xor_b32 v13, v13, v14", "v_lshl_add_u32 v6, v13, 4, v6", "v_and_b32 v14, 1, v1", "v_lshl_add_u32 v6, v14, 3, v6",
        "v_xor_b32 v10, 2048, v6")
    k.e("s_lshl_b32 s34, s25, 6", "s_lshl_b32 s35, s27, 5", "s_add_u32 s34, s34, s35", "v_add_u32 v117, s34, v11", "v_lshlrev_b32 v117, 5, v117",
        "s_lshl_b32 s35, s26, 6", "s_lshl_b32 s36, s28, 5", "s_add_u32 s35, s35, s36", "v_add_u32 v118, s35, v11", "v_lshlrev_b32 v118, 4, v118")
    if bal: k.e(f"v_mul_u32_u24 v13, 0x{COL2:x}, v12", "v_add_u32 v118, v118, v13")
    def extras():
        k.vmem(f"buffer_load_dwordx4 v[48:51], v117, s[{SWS}:{SWS+3}], 0 offen offset:{WS_TOK} sc1", "ex")
        k.vmem(f"buffer_load_dwordx4 v[112:115], v117, s[{SWS}:{SWS+3}], 0 offen offset:{WS_TOK+16} sc1", "ex")
        for p in range(3):
            k.e(f"s_mov_b32 s36, {WS_COL + 8192*p}")
            k.vmem(f"buffer_load_dwordx4 v[{52+4*p}:{55+4*p}], v118, s[{SWS}:{SWS+3}], s36 offen sc1", "ex")
    ACC = 64
    def fr(st): return 16 + 16*st
    def reads(g, st):
        b = fr(st); u = g >> 1; v = g >> 2
        out = [(f"ds_read_b128 v[{b}:{b+3}], v{2 + (g & 3)} offset:{(v % 3)*8192}", "X")]
        av = 6 if (g & 1) == 0 else 10
        for p in range(3):
            o = (u % 4)*12288 + p*4096
            out.append((f"ds_read_b64_tr_b16 v[{b+4+4*p}:{b+5+4*p}], v{av} offset:{o}", f"W{p}"))
            out.append((f"ds_read_b64_tr_b16 v[{b+6+4*p}:{b+7+4*p}], v{av} offset:{o+512}", f"W{p}"))
        return out
    def mf(b_x, b_w, first):
        out = []
        for p in range(3):
            a = ACC + 16*p
            w = f"v[{b_w+4*p}:{b_w+4*p+3}]"; x = f"v[{b_x}:{b_x+3}]"
            A, B = (w, x) if p < 2 else (x, w)
            c = "0" if first else f"v[{a}:{a+15}]"
            out.append((f"{MF} v[{a}:{a+15}], {A}, {B}, {c}", ["X", f"W{p}"]))
        return out
    def mfmas(g, st): return mf(fr(st), fr(st) + 4, g == 0)
    def dmas(u):
        out = []
        if u + 3 < 16: out += wd(u + 3)
        if u % 2 == 0 and u//2 + 2 < 8: out += xd(u//2 + 2)
        return out
    hooks = {ux - 1: [lambda: epoch_issue_all(k, 120)], ux: [extras]}
    if noex: hooks = {}
    pre_hooks = None
    if fine: pre_hooks = {0: lambda: k.stamp(9), 1: lambda: k.stamp(10), 4: lambda: k.stamp(11), 10: lambda: k.stamp(12)}
    k.stamp(1)
    gemm2(k, 16, mfmas, reads, dmas, lambda u: [("W", u), ("X", u >> 1)], fill0=None, rper=rper, dper=dper, hooks=hooks, pre_hooks=pre_hooks)
    k.stamp(2)
    if exit_loop:
        for i in range(3, 9): k.stamp(i)
        k.stamp_out(9, 0, sh=7); k.e("s_waitcnt vmcnt(0)", "s_endpgm")
    epoch_check_all(k, 120)
    k.wait_vm("ex")
    def zero():
        for r in (51, 55, 59, 63): k.e(f"v_mov_b32 v{r}, 0")
        if bal:
            k.e("s_nop 1")
            return
        k.e("s_mov_b32 exec_lo, 0")
        for r in range(48, 64):
            if r not in (51, 55, 59, 63): k.e(f"v_mov_b32 v{r}, 0")
        k.e("s_mov_b32 exec_lo, -1", "s_nop 1")
    if notag: zero()
    else: tag_check(k, extras, [51, 114, 55, 59, 63], "x1", zero)
    for (t, _) in mf(48, 52, False): k.e(t)
    k.e("s_lshl_b32 s36, s24, 7", "v_lshlrev_b32 v13, 2, v11", "v_add_u32 v13, s36, v13")
    k.ds("ds_write_b32 v13, v112")
    k.e("v_lshlrev_b32 v13, 4, v12", "v_add_u32 v13, s36, v13")
    k.wait_lg_all()
    for gq in range(4): k.ds(f"ds_read_b128 v[{32+4*gq}:{35+4*gq}], v13 offset:{32*gq}")
    k.e(f"v_mul_f32 v113, 0x{f2u(0.25*LOG2E):08x}, v112")
    if pre_store: pre_store()
    k.e("v_lshlrev_b32 v10, 4, v1",
        "s_lshl_b32 s36, s26, 2", "s_lshl_b32 s37, s28, 1", "s_add_u32 s36, s36, s37", "s_lshl_b32 s36, s36, 16",
        "s_lshl_b32 s37, s25, 1", "s_add_u32 s37, s37, s27", "s_lshl_b32 s37, s37, 10", "s_add_u32 s36, s36, s37")
    k.e("v_lshrrev_b32 v17, 4, v11", "v_lshlrev_b32 v17, 16, v17", "v_lshl_add_u32 v17, v12, 8, v17", "v_and_b32 v18, 15, v11", "v_lshl_add_u32 v17, v18, 4, v17")
    k.e("s_nop 4")
    modes = ("sc1", "") if dup else ("sc1",)
    for p, (scale, base) in enumerate(((113, WS_QF), (112, WS_KF))):
        a = ACC + 16*p
        for r in range(16): k.e(f"v_mul_f32 v{a+r}, v{a+r}, v{scale}")
        for j in range(2):
            d = 20 + 8*p + 4*j if p == 0 else 48 + 4*j
            for i in range(4): k.e(f"v_cvt_pk_bf16_f32 v{d+i}, v{a+8*j+2*i}, v{a+8*j+2*i+1}")
            k.e(f"s_add_u32 s37, s36, 0x{base + j*65536:x}")
            for m in modes: k.vmem(f"buffer_store_dwordx4 v[{d}:{d+3}], v10, s[{SWS}:{SWS+3}], s37 offen {m}", "st")
    k.wait_lg_all()
    a = ACC + 32
    for r in range(16): k.e(f"v_mul_f32 v{a+r}, v{a+r}, v{32+r}")
    k.e(f"s_add_u32 s37, s36, 0x{WS_VF:x}")
    for j in range(2):
        d = 56 + 4*j
        for i in range(4): k.e(f"v_cvt_pk_bf16_f32 v{d+i}, v{a+8*j+2*i}, v{a+8*j+2*i+1}")
        for m in modes: k.vmem(f"buffer_store_dwordx4 v[{d}:{d+3}], v17, s[{SWS}:{SWS+3}], s37 offen offset:{512*j} {m}", "st")

def e3x_body(k, SX=8, SG=12, SU=16, SWS=20, part=None, bal=False, fine=False, epi_prio=None, post_loop=None, rot=True, ux=11, rper=4, dper=1, pre_loop=None):
    XB = 49152
    line0 = len(k.lines)
    k.e("v_and_b32 v1, 63, v0")
    k.e("v_and_b32 v11, 31, v1", "v_lshrrev_b32 v12, 5, v1")
    k.e("s_and_b32 s27, s24, 1", "s_lshr_b32 s28, s24, 1")
    k.e("v_lshrrev_b32 v13, 3, v1", "v_lshrrev_b32 v14, 4, v1", "v_and_b32 v15, 7, v1",
        "v_xor_b32 v7, v15, v14", "v_lshlrev_b32 v7, 4, v7", "v_lshl_add_u32 v7, v13, 10, v7",
        "s_lshl_b32 s29, s25, 17", "s_lshl_b32 s30, s24, 15", "s_add_u32 s29, s29, s30",
        "v_add_u32 v7, s29, v7", "v_xor_b32 v8, 64, v7", "v_add_u32 v8, 8192, v8")
    k.e("v_lshlrev_b32 v13, 2, v14", "v_and_b32 v15, 15, v1", "v_xor_b32 v9, v15, v13", "v_lshlrev_b32 v9, 4, v9",
        "s_lshl_b32 s30, s24, 3", "v_add_u32 v13, s30, v14", "v_mul_u32_u24 v13, 3584, v13", "v_add_u32 v9, v9, v13",
        "s_lshl_b32 s30, s26, 8", "v_add_u32 v9, s30, v9")
    k.e(f"s_lshl_b32 s31, s24, 12", f"s_add_u32 s31, s31, {XB}", "s_lshl_b32 s32, s24, 11")
    def xd(v):
        if rot:
            return [dmab(SX, 7 + (i & 1), 31, (v % 2)*16384 + i*1024, 33, 51, (i >> 1)*16384, ("X", v),
                         post=(["s_add_u32 s51, s51, 128", "s_and_b32 s51, s51, 1023"] if i == 3 else ())) for i in range(4)]
        return [dma(SX, 7 + (i & 1), 31, (v % 2)*16384 + i*1024, 33, v*128 + (i >> 1)*16384, ("X", v)) for i in range(4)]
    def wd(u):
        out = []
        for i in range(2):
            for p, sr in enumerate((SG, SU)):
                if rot:
                    out.append(dmab(sr, 9, 32, (u % 3)*16384 + p*8192 + i*1024, 33, 50, 4*i*3584, ("W", u),
                                    post=(rot_adv(50, 32*3584, 512*3584, 52) if (i, p) == (1, 1) else ())))
                else:
                    out.append(dma(sr, 9, 32, (u % 3)*16384 + p*8192 + i*1024, 33, (u*32 + 4*i)*3584, ("W", u)))
        return out
    if part != "main":
        if rot:
            k.e("s_lshl_b32 s51, s53, 7", f"s_mul_i32 s50, s53, {64*3584}")
        emit_groups(k, xd(0) + wd(0) + wd(1))
    if part == "pre":
        import re
        for i in range(line0, len(k.lines)):
            k.lines[i] = re.sub(r"\bv(\d+)\b", lambda m: m.group(0) if int(m.group(1)) < 2 else f"v{int(m.group(1)) + 200}", k.lines[i])
        return
    if pre_loop: pre_loop()
    k.e("s_lshl_b32 s36, s27, 6", "v_add_u32 v13, s36, v11", "v_bfe_u32 v14, v13, 1, 3", "v_xor_b32 v14, v14, v12",
        "v_lshlrev_b32 v14, 4, v14", "v_lshl_add_u32 v2, v13, 7, v14", f"v_add_u32 v2, {XB}, v2",
        "v_xor_b32 v3, 32, v2", "v_xor_b32 v4, 64, v2", "v_xor_b32 v5, 96, v2")
    k.e("v_bfe_u32 v15, v1, 2, 2", "v_lshl_add_u32 v13, v12, 3, v15", "v_lshlrev_b32 v6, 8, v13",
        "v_bfe_u32 v13, v1, 4, 1", "v_lshlrev_b32 v13, 1, v13", "v_bfe_u32 v14, v1, 1, 1", "v_add_u32 v13, v13, v14",
        "s_lshl_b32 s36, s28, 3", "v_add_u32 v13, s36, v13", "v_lshlrev_b32 v15, 2, v15",
        "v_xor_b32 v13, v13, v15", "v_lshl_add_u32 v6, v13, 4, v6", "v_and_b32 v14, 1, v1", "v_lshl_add_u32 v6, v14, 3, v6",
        "v_xor_b32 v10, 64, v6", "v_xor_b32 v72, 4096, v6", "v_xor_b32 v73, 4096, v10")
    k.e("s_lshl_b32 s34, s25, 7", "s_lshl_b32 s35, s27, 6", "s_add_u32 s34, s34, s35", "v_add_u32 v108, s34, v11", "v_lshlrev_b32 v108, 5, v108",
        "s_lshl_b32 s35, s26, 7", "s_lshl_b32 s36, s28, 6", "s_add_u32 s35, s35, s36", "v_add_u32 v109, s35, v11", "v_lshlrev_b32 v109, 4, v109")
    if bal: k.e(f"v_mul_u32_u24 v13, 0x{COL2:x}, v12", "v_add_u32 v109, v109, v13")
    EX = 76
    def extras():
        for tb in range(2):
            k.vmem(f"buffer_load_dwordx4 v[{EX+4*tb}:{EX+3+4*tb}], v108, s[{SWS}:{SWS+3}], 0 offen offset:{WS_TOK+1024*tb} sc1", "ex")
            k.vmem(f"buffer_load_dwordx4 v[{100+4*tb}:{103+4*tb}], v108, s[{SWS}:{SWS+3}], 0 offen offset:{WS_TOK+16+1024*tb} sc1", "ex")
        for part in range(2):
            k.e(f"s_mov_b32 s36, {WS_COL + (1536 + 1792*part)*16}")
            for b in range(2):
                d = EX + 8 + 8*part + 4*b
                k.vmem(f"buffer_load_dwordx4 v[{d}:{d+3}], v109, s[{SWS}:{SWS+3}], s36 offen offset:{512*b} sc1", "ex")
    ACC = 128
    def fr(st): return 16 + 24*st
    def acc(part, b, tb): return ACC + 16*(part*4 + b*2 + tb)
    def reads(g, st):
        b0 = fr(st); u = g >> 1; v = g >> 2
        def wr(part, b):
            d = b0 + 8 + 8*part + 4*b
            o = (u % 3)*16384 + part*8192
            av = ((6, 10), (72, 73))[g & 1][b]
            return [(f"ds_read_b64_tr_b16 v[{d}:{d+1}], v{av} offset:{o}", f"W{part}{b}"),
                    (f"ds_read_b64_tr_b16 v[{d+2}:{d+3}], v{av} offset:{o+1024}", f"W{part}{b}")]
        def xr(tb): return [(f"ds_read_b128 v[{b0+4*tb}:{b0+4*tb+3}], v{2 + (g & 3)} offset:{(v % 2)*16384 + tb*4096}", f"X{tb}")]
        return xr(0) + wr(0, 0) + xr(1) + wr(0, 1) + wr(1, 0) + wr(1, 1)
    def mf(b0, first):
        out = []
        for part in range(2):
            for b in range(2):
                for tb in range(2):
                    a = acc(part, b, tb); w = b0 + 8 + 8*part + 4*b; x = b0 + 4*tb
                    c = "0" if first else f"v[{a}:{a+15}]"
                    out.append((f"{MF} v[{a}:{a+15}], v[{w}:{w+3}], v[{x}:{x+3}], {c}", [f"X{tb}", f"W{part}{b}"]))
        return out
    def mfmas(g, st): return mf(fr(st), g == 0)
    def dmas(u):
        out = []
        if u + 2 < 16: out += wd(u + 2)
        if u % 2 == 0 and u//2 + 1 < 8: out += xd(u//2 + 1)
        return out
    hooks = {ux - 1: [lambda: epoch_issue_all(k, 112)], ux: [extras]}
    ph = None
    if fine: ph = {u: (lambda i=i: k.stamp(i)) for i, u in enumerate((0, 2, 5, 8, 11, 14), 1)}
    else: k.stamp(1)
    gemm2(k, 16, mfmas, reads, dmas, lambda u: [("W", u), ("X", u >> 1)], fill0=None, rper=rper, dper=dper, hooks=hooks, pre_hooks=ph)
    if fine:
        k.stamp(7); k.nostamp = True
    k.stamp(2)
    if epi_prio is not None: k.e(f"s_setprio {epi_prio}")
    epoch_check_all(k, 112)
    k.wait_vm("ex")
    tags = [EX + 3 + 4*i for i in range(6)]
    def zero():
        for r in tags: k.e(f"v_mov_b32 v{r}, 0")
        if bal:
            k.e("s_nop 1")
            return
        k.e("s_mov_b32 exec_lo, 0")
        for r in range(EX, EX + 24):
            if r not in tags: k.e(f"v_mov_b32 v{r}, 0")
        k.e("s_mov_b32 exec_lo, -1", "s_nop 1")
    tag_check(k, extras, tags + [102, 106], "x3", zero)
    for (t, _) in mf(EX, False): k.e(t)
    if post_loop: post_loop()
    k.e(f"v_mul_f32 v110, 0x{f2u(-LOG2E):08x}, v100", f"v_mul_f32 v111, 0x{f2u(-LOG2E):08x}, v104")
    k.e("v_lshlrev_b32 v10, 4, v1",
        "s_lshl_b32 s36, s25, 2", "s_lshl_b32 s37, s27, 1", "s_add_u32 s36, s36, s37", "s_mul_i32 s36, s36, 112",
        "s_lshl_b32 s37, s26, 3", "s_add_u32 s36, s36, s37", "s_lshl_b32 s37, s28, 2", "s_add_u32 s36, s36, s37",
        "s_lshl_b32 s36, s36, 10", f"s_add_u32 s36, s36, 0x{WS_HF:x}")
    k.e("s_nop 7")
    n = 0
    for b in range(2):
        for tb in range(2):
            g = acc(0, b, tb); uu = acc(1, b, tb)
            A = 110 + tb; SD = 101 + 4*tb
            for r in range(16): k.e(f"v_mul_f32 v{g+r}, v{g+r}, v{A}")
            for r in range(16): k.e(f"v_exp_f32 v{g+r}, v{g+r}")
            for r in range(16): k.e(f"v_fma_f32 v{g+r}, v{g+r}, v{SD}, v{SD}")
            for r in range(16): k.e(f"v_rcp_f32 v{g+r}, v{g+r}")
            k.e("s_nop 0")
            for r in range(16): k.e(f"v_mul_f32 v{g+r}, v{g+r}, v{uu+r}")
            for j in range(2):
                d = 16 + 4*(n % 8); n += 1
                for i in range(4): k.e(f"v_cvt_pk_bf16_f32 v{d+i}, v{g+8*j+2*i}, v{g+8*j+2*i+1}")
                k.e(f"s_add_u32 s37, s36, {(tb*112 + b*2 + j)*1024}")
                k.vmem(f"buffer_store_dwordx4 v[{d}:{d+3}], v10, s[{SWS}:{SWS+3}], s37 offen sc1", "st")

def kF1(name="f1_fused_kernel", prio_e1=None, prio_e2=None, prio_g=None, epi_prio=1, post_prio=0, e4_prio=None, hsleep=2, osleep=2, qsleep=2,
        rot=True, ux1=11, ux3=11, dup=False, force_fb=False, nostats=False, gexit=0, notag=False, xal=False, touch1=False, fine1=False, mode1="x", mode3="x", touch3=0, rp1=5, dp1=2, rp3=4, dp3=1, ugo=None, gosleep=4, gomax=64, gp_touch=False, prio_e3=None, bal=False, tw=False, fine3=False, aexit=False, qnopoll=0, cpf=0, map1=0, wx=0, hoist=False, aexit2=0):
    k = KV(name, nvgpr=256)
    k.e("s_cmp_ge_u32 s2, 512", f"s_cbranch_scc1 L_end_{k.name}")
    fx = srd(k, 8, 0, SZ_X) + srd(k, 20, 72, WS_SIZE2)
    load_dbg(k)
    if cpf:
        Lp = k.newlabel("cpf"); Lq = k.newlabel("pc")
        k.e(f"s_cmp_ge_u32 s2, {cpf}", f"s_cbranch_scc1 {Lp}", "s_getpc_b64 s[36:37]")
        k.label(Lq)
        k.e(f"s_sub_u32 s36, s36, {Lq}-{k.name}", "s_subb_u32 s37, s37, 0", "v_lshlrev_b32 v250, 7, v0",
            "v_mov_b32 v249, s37", "v_add_co_u32 v248, vcc, s36, v250", "s_nop 1", "v_addc_co_u32 v249, vcc, 0, v249, vcc")
        k.vmem("global_load_dword v252, v[248:249], off", "cpf", opt=True)
        k.e("v_add_u32 v250, 0x8000, v250", f"v_cmp_gt_u32 vcc, L_code_end-{k.name}, v250", "v_add_co_u32 v248, s[38:39], 0x4000, v248" if False else "s_nop 0")
        k.e("s_and_saveexec_b64 s[38:39], vcc", "v_mov_b32 v249, s37", "v_add_co_u32 v248, vcc, s36, v250", "s_nop 1", "v_addc_co_u32 v249, vcc, 0, v249, vcc")
        k.vmem("global_load_dword v253, v[248:249], off", "cpf", opt=True)
        k.e("s_mov_b64 exec, s[38:39]")
        k.label(Lp)
    k.e("v_lshrrev_b32 v10, 6, v0", "s_nop 1", "v_readfirstlane_b32 s24, v10")
    k.e("s_cmp_ge_u32 s2, 256", "s_cbranch_scc1 L_f1_g")
    fx1 = srd(k, 12, 8, SZ_WQKV)
    k.e("s_waitcnt lgkmcnt(0)"); k.e(*(fx + fx1))
    epoch_make(k)
    if prio_e1 is not None: k.e(f"s_setprio {prio_e1}")
    k.e("s_and_b32 s3, s2, 7", "s_lshr_b32 s4, s2, 3", "s_and_b32 s5, s3, 1", "s_lshl_b32 s26, s5, 2", "s_and_b32 s5, s4, 3", "s_add_u32 s26, s26, s5",
        "s_lshr_b32 s25, s3, 1", "s_lshl_b32 s25, s25, 3", "s_lshr_b32 s5, s4, 2", "s_add_u32 s25, s25, s5")
    k.e("s_and_b32 s53, s26, 3", "s_lshl_b32 s53, s53, 1", "s_add_u32 s53, s53, s25", "s_and_b32 s53, s53, 7")
    if map1:
        k.e("s_and_b32 s26, s4, 7", "s_lshl_b32 s25, s3, 2", "s_lshr_b32 s5, s4, 3", "s_add_u32 s25, s25, s5",
            "s_lshl_b32 s53, s5, 1", "s_add_u32 s53, s53, s26", "s_and_b32 s53, s53, 7")
    k.e("s_lshl_b32 s44, s3, 2", "s_and_b32 s5, s4, 3", "s_add_u32 s44, s44, s5", "s_lshr_b32 s45, s4, 2")
    k.stamp(0)
    if aexit:
        for i in range(1, 9): k.stamp(i)
        k.stamp_out(9, 0, sh=7); k.wait_vm_all(); k.e("s_waitcnt vmcnt(0)", "s_endpgm")
    def o_fill():
        k.e("v_mov_b32 v204, -1", "v_mov_b32 v205, -1", "v_mov_b32 v206, -1", "v_mov_b32 v207, -1", "v_lshlrev_b32 v203, 4, v1",
            "s_lshl_b32 s46, s45, 3", "s_lshl_b32 s47, s24, 1", "s_add_u32 s46, s46, s47", "s_lshl_b32 s46, s46, 5", "s_add_u32 s46, s46, s44",
            "s_lshl_b32 s46, s46, 10", f"s_add_u32 s46, s46, 0x{WS_OF:x}")
        k.vmem("buffer_store_dwordx4 v[204:207], v203, s[20:23], s46 offen sc1", "st")
        k.e("s_add_u32 s46, s46, 32768")
        k.vmem("buffer_store_dwordx4 v[204:207], v203, s[20:23], s46 offen sc1", "st")
    def go_store():
        L = w0_begin(k)
        k.e("s_lshl_b32 s46, s2, 7", f"s_add_u32 s46, s46, 0x{FLG_GO:x}", "v_mov_b32 v208, s46", "v_mov_b32 v209, 1", "s_mov_b64 exec, 1")
        k.vmem("buffer_store_dword v209, v208, s[20:23], 0 offen sc1", "go", opt=True)
        k.e("s_mov_b64 exec, -1")
        k.label(L)
    if mode1 == "x":
        e1x_body(k, exit_loop=(aexit2 in (1, 3)), noex=(aexit2 == 3), wx=wx, bal=bal, rot=rot, ux=ux1, pre_store=o_fill, dup=dup, notag=notag, touch=touch1, fine=fine1)
    else:
        ph = {0: lambda: k.stamp(9), 1: lambda: k.stamp(10), 4: lambda: k.stamp(11), 10: lambda: k.stamp(12)} if fine1 else None
        hk = {11: [lambda: epoch_issue_all(k, 200)]}
        if isinstance(ugo, int): hk.setdefault(ugo, []).append(go_store)
        e1s_body(k, sc1="sc1", rot=rot, mst={"s": 0, "m": 1, "n": 2}[mode1], rper=rp1, dper=dp1, pre_hooks=ph, hooks=hk, pre_store=lambda: (epoch_check_all(k, 200), o_fill()))
    k.stamp(3)
    if ugo == "pub0": go_store()
    k.e("s_lshl_b32 s48, s26, 5", "s_add_u32 s48, s48, s25", "s_lshl_b32 s48, s48, 3", f"s_add_u32 s48, s48, 0x{FLG_QKV8:x}")
    publish(k, 48, vt=19)
    k.stamp(4)
    if aexit2 == 2:
        for i in range(5, 9): k.stamp(i)
        k.stamp_out(9, 0, sh=7); k.e("s_waitcnt vmcnt(0)", "s_endpgm")
    if ugo == "pub": go_store()
    k.e("s_mov_b32 s25, s44", "s_mov_b32 s26, s45")
    if prio_e2 is not None: k.e(f"s_setprio {prio_e2}")
    def qkv_wait():
        k.e("v_and_b32 v20, 31, v1", "v_lshlrev_b32 v20, 3, v20", "s_lshr_b32 s36, s25, 2", "s_lshl_b32 s36, s36, 8", f"s_add_u32 s36, s36, 0x{FLG_QKV8:x}",
            "v_add_u32 v20, s36, v20")
        L = w0_begin(k)
        Ll = k.newlabel("qw")
        if qnopoll:
            for _ in range(qnopoll): k.e("s_sleep 16")
            k.e(f"s_branch {L}")
        k.e(f"s_mov_b32 s{SCNT}, 0")
        k.label(Ll)
        k.e("buffer_load_dwordx2 v[22:23], v20, s[20:23], 0 offen sc1", f"s_add_u32 s{SCNT}, s{SCNT}, 1", "s_waitcnt vmcnt(0)",
            f"v_cmp_eq_u64 vcc, s[{SEP}:{SEP+1}], v[22:23]", "s_nop 3", "s_cmp_eq_u64 vcc, -1", f"s_cbranch_scc1 {L}",
            f"s_sleep {qsleep}", f"s_cmp_lt_u32 s{SCNT}, 0x{SPIN_MAX:x}", f"s_cbranch_scc1 {Ll}")
        k.label(L)
        k.wait_lg_all()
        k.e("s_barrier")
        if ugo == "e2": go_store()
        k.stamp(5 - k.stamp_off)
    k.stamp_off = 5
    e2_body(k, sc1="sc1", st_sc1="sc1", oflag="ep", pre_hook=qkv_wait, force_fb=force_fb)
    k.stamp_off = 0
    k.wait_vm_all()
    k.stamp(8); k.stamp_out(13 if fine1 else 9, 0, sh=7); k.wait_vm_all()
    k.e("s_endpgm")
    fb = k.fb_code
    k.label("L_f1_g")
    k.vm = []; k.lg = []
    SD, SO, SX, SOUT = 84, 88, 8, 4
    fx3 = srd(k, 12, 32, SZ_WG) + srd(k, 16, 40, SZ_WG) + srd(k, SD, 48, SZ_WD) + srd(k, SO, 16, SZ_WO) + srd(k, SOUT, 56, SZ_X)
    k.e(f"s_load_dwordx2 s[{34 if hoist else 28}:{35 if hoist else 29}], s[0:1], 8")
    k.e("s_sub_u32 s3, s2, 256")
    k.e("s_waitcnt lgkmcnt(0)"); k.e(*(fx + fx3))
    if prio_g is not None: k.e(f"s_setprio {prio_g}")
    def go_clear(idx=3):
        if ugo is None: return
        L = w0_begin(k)
        k.e(f"s_lshl_b32 s36, s{idx}, 7", f"s_add_u32 s36, s36, 0x{FLG_GO:x}", "v_mov_b32 v62, s36", "v_mov_b32 v63, 0", "s_mov_b64 exec, 1",
            "buffer_store_dword v63, v62, s[20:23], 0 offen sc1", "s_mov_b64 exec, -1")
        k.label(L)
    def go_wait():
        if ugo is None: return
        L = w0_begin(k)
        Ll = k.newlabel("go")
        k.e("s_waitcnt vmcnt(0)", "s_mov_b32 s38, 0", "s_mov_b64 exec, 1")
        k.label(Ll)
        k.e("buffer_load_dword v63, v62, s[20:23], 0 offen sc1", "s_add_u32 s38, s38, 1", "s_waitcnt vmcnt(0)", "v_readfirstlane_b32 s39, v63", "s_nop 3",
            "s_cmp_eq_u32 s39, 1", f"s_cbranch_scc1 {Ll}x", f"s_sleep {gosleep}", f"s_cmp_lt_u32 s38, {gomax}", f"s_cbranch_scc1 {Ll}")
        k.label(Ll + "x")
        k.e("s_mov_b64 exec, -1")
        k.label(L)
        k.e("s_barrier")
    k.stamp(0)
    go_clear()
    if gexit == 1: k.e("s_endpgm")
    def role3():
        k.e("s_and_b32 s92, s3, 7", "s_lshr_b32 s93, s3, 3")
        k.e("s_and_b32 s26, s92, 1", "s_mul_i32 s26, s26, 7", "s_lshr_b32 s94, s93, 2", "s_add_u32 s26, s26, s94",
            "s_lshr_b32 s25, s92, 1", "s_lshl_b32 s25, s25, 2", "s_and_b32 s95, s93, 3", "s_add_u32 s25, s25, s95")
        k.e("s_lshl_b32 s53, s95, 1", "s_add_u32 s53, s53, s94", "s_and_b32 s53, s53, 7")
    if hoist:
        role3()
        stats_role3(k, SWQ=34, mid=lambda: e3x_body(k, part="pre", bal=bal, rot=rot))
    elif not nostats: (stats_role3(k) if bal else stats_role2(k, xal=xal))
    if gexit == 2: k.e("s_waitcnt vmcnt(0)", "s_endpgm")
    e4 = E4F(k, SD, SO, 20, SX, SOUT, hsleep=hsleep, osleep=osleep, ep=True)
    c = e4
    k.e("s_and_b32 s92, s3, 7", "s_lshr_b32 s93, s3, 3",
        f"s_and_b32 s{c.SRB}, s93, 3", "s_lshl_b32 s94, s92, 2", f"s_add_u32 s{c.SRB}, s{c.SRB}, s94", f"s_lshr_b32 s{c.SCB}, s93, 2")
    k.e("s_cmp_ge_u32 s2, 480", "s_cbranch_scc1 L_f1_pf")
    k.e("s_and_b32 s26, s92, 1", "s_mul_i32 s26, s26, 7", "s_lshr_b32 s94, s93, 2", "s_add_u32 s26, s26, s94",
        "s_lshr_b32 s25, s92, 1", "s_lshl_b32 s25, s25, 2", "s_and_b32 s95, s93, 3", "s_add_u32 s25, s25, s95")
    k.e("s_lshl_b32 s53, s95, 1", "s_add_u32 s53, s53, s94", "s_and_b32 s53, s53, 7")
    def touchW(vd=60):
        a = 61
        k.e(f"s_and_b32 s{c.SC}, s{c.SRB}, 3", f"s_mul_i32 s{c.SK}, s{c.SC}, {112*1024}", f"s_add_u32 s{c.SK}, s{c.SK}, s{c.SDO}",
            f"s_lshl_b32 s{c.ST}, s{c.SCB}, 7", f"v_lshlrev_b32 v{a}, 10, v1", f"v_add_u32 v{a}, s{c.ST}, v{a}")
        k.vmem(f"buffer_load_dword v{vd}, v{a}, s[{c.SD}:{c.SD+3}], s{c.SK} offen", "touch")
        k.e(f"s_add_u32 s{c.SK}, s{c.SK}, 65536", "s_mov_b32 exec_hi, 0xffff")
        k.vmem(f"buffer_load_dword v{vd+2}, v{a}, s[{c.SD}:{c.SD+3}], s{c.SK} offen", "touch")
        k.e(f"s_lshl_b32 s{c.SK}, s{c.SC}, 15", f"s_add_u32 s{c.SK}, s{c.SK}, s{c.SWO}", "s_mov_b32 exec_hi, 0")
        k.vmem(f"buffer_load_dword v{vd+3}, v{a}, s[{c.SO}:{c.SO+3}], s{c.SK} offen", "touch")
        k.e("s_mov_b32 exec_hi, -1")
    def post_loop():
        k.e("s_barrier")
        e4.setup()
        for s in range(c.DEPTH): e4.issueW(s)
        if tw: touchW()
    def touch_w3():
        if touch3 in (0, 3): go_wait()
        if not touch3: return
        k.e("v_lshrrev_b32 v66, 1, v1", "v_mul_u32_u24 v66, 3584, v66", "v_and_b32 v67, 1, v1", "v_lshl_add_u32 v66, v67, 7, v66",
            "s_lshl_b32 s36, s95, 7", "s_lshl_b32 s37, s24, 5", "s_add_u32 s36, s36, s37", "s_mul_i32 s36, s36, 3584", "s_lshl_b32 s37, s26, 8", "s_add_u32 s36, s36, s37")
        k.vmem("buffer_load_dword v74, v66, s[12:15], s36 offen", "touch")
        k.vmem("buffer_load_dword v75, v66, s[16:19], s36 offen", "touch")
        if touch3 == 2: k.wait_vm("touch")
        if touch3 in (1, 2): go_wait()
    if prio_e3 is not None: k.e(f"s_setprio {prio_e3}")
    if mode3 == "x":
        e3x_body(k, part=("main" if hoist else None), bal=bal, fine=fine3, epi_prio=epi_prio, post_loop=post_loop, rot=rot, ux=ux3)
    else:
        e3s_body(k, st_sc1="sc1", epi_prio=epi_prio, post_loop=post_loop, rot=rot, outb=64, pre_dma=touch_w3, mst={"s": 0, "m": 1, "n": 2}[mode3], rper=rp3, dper=dp3,
                 hooks={11: [lambda: epoch_issue_all(k, 124)], 13: [lambda: epoch_check_all(k, 124)]})
    k.e("s_lshl_b32 s36, s25, 1", "s_add_u32 s36, s36, s27", "s_lshl_b32 s36, s36, 8", "s_lshl_b32 s37, s26, 1", "s_add_u32 s37, s37, s28",
        "s_lshl_b32 s37, s37, 3", "s_add_u32 s36, s36, s37", f"s_add_u32 s36, s36, 0x{FLG_H8:x}", "v_mov_b32 v56, s36",
        f"v_mov_b32 v58, s{SEP}", f"v_mov_b32 v59, s{SEP+1}")
    k.stamp(3)
    k.wait_vm_all()
    if gexit == 3:
        ns = getattr(k, "nostamp", False); k.stamp_out(8, 0x40000, sh=7); k.e("s_waitcnt vmcnt(0)", "s_endpgm")
    k.stamp(4)
    k.e("s_mov_b64 exec, 1")
    k.vmem("buffer_store_dwordx2 v[58:59], v56, s[20:23], 0 offen sc1", "flag")
    k.e("s_mov_b64 exec, -1")
    if post_prio is not None: k.e(f"s_setprio {post_prio}")
    k.e("s_branch L_f1_e4")
    k.label("L_f1_pf")
    if gexit == 3: k.e("s_endpgm")
    if hoist: k.e("s_waitcnt vmcnt(0)", "s_barrier")
    k.vm = []; k.lg = []
    k.e("v_and_b32 v1, 63, v0")
    if gp_touch:
        k.e("s_sub_u32 s99, s3, 224")
        go_wait()
        k.e("s_lshl_b32 s36, s99, 8", "v_add_u32 v60, s36, v0", "v_lshlrev_b32 v60, 7, v60", "s_mov_b32 s36, 0x100000")
        k.vmem(f"buffer_load_dword v61, v60, s[{SD}:{SD+3}], 0 offen", "touch")
        k.vmem(f"buffer_load_dword v62, v60, s[{SD}:{SD+3}], s36 offen", "touch")
        k.vmem(f"buffer_load_dword v63, v60, s[{SO}:{SO+3}], 0 offen", "touch")
    epoch_issue_all(k, 112)
    k.stamp(1); k.stamp(2); k.stamp(3); k.stamp(4)
    e4.setup()
    epoch_check_all(k, 112)
    for s in range(c.DEPTH): e4.issueW(s)
    if post_prio is not None: k.e(f"s_setprio {post_prio}")
    k.label("L_f1_e4")
    k.vm = [(("W", s), False) for s in range(c.DEPTH) for _ in range(2)] + [("flag", True)]
    k.lg = []
    e4.e4_prio = e4_prio; e4.post_prio = post_prio
    e4.body(st=(5, 6))
    k.wait_vm_all()
    k.stamp(7); k.stamp_out(8, 0x40000, sh=7); k.wait_vm_all()
    k.label(f"L_end_{k.name}")
    k.e("s_endpgm")
    fb()
    k.emit_tails()
    k.label("L_code_end")
    k.e("s_endpgm")
    return k

def build(fn, **kw):
    k = kF1(**kw)
    txt = build_file([(k.name, (512,1,1), (256,1,1), 81920)], [k])
    open(fn, "w").write(txt)
    e = haz.check_text(txt)
    for x in e: print(x)
    print(fn, len(e), "hazards;", len(txt), "bytes")

if __name__ == "__main__":
    build("f1.s")
    KV.STAMP = True
    build("f1st.s")
```

```python
from f1 import *
import f1
P = dict(bal=True, prio_e1=3, prio_e2=0, cpf=8, fine3=True, gexit=3)
KV.STAMP = True
build("f1st_x1.s", aexit2=1, **P)
build("f1st_x2.s", aexit2=2, **P)
build("f1st_x3.s", aexit2=3, **P)
```

```python
from agen import *

WS_TOK = 0x000000
WS_COL = 0x010000
WS_QF  = 0x100000
WS_KF  = 0x300000
WS_VF  = 0x500000
WS_HF  = 0x700000
WS_OF  = 0xE00000
WS_SIZE = 0x1100000
WS_DBG = 0x1000000
LOG2E = 1.4426950408889634

import struct
def f2u(x): return struct.unpack("<I", struct.pack("<f", x))[0]

class KV(Kernel):
    def __init__(self, *a, **kw):
        super().__init__(*a, **kw)
        self.vm = []
        self.lg = []
        self.tails = []
    def emit_tails(self):
        for t in self.tails: t()
        self.tails = []
    def vmem(self, txt, tag=None, opt=False):
        self.e(txt); self.vm.append((tag, opt))
    def wait_vm(self, *tags, cond=False):
        idx = [i for i, (t, o) in enumerate(self.vm) if t in tags]
        if not idx: return
        last = max(idx)
        n = sum(1 for (t, o) in self.vm[last + 1:] if not o)
        assert n <= 63
        self.e(f"s_waitcnt vmcnt({n})")
        if cond:
            self.vm = [(t, o) for i, (t, o) in enumerate(self.vm) if not (o and i <= last)]
        else:
            self.vm = self.vm[last + 1:]
    def wait_vm_all(self):
        self.e("s_waitcnt vmcnt(0)"); self.vm = []
    def ds(self, txt, tag=None):
        self.e(txt); self.lg.append(tag)
    def wait_lg(self, *tags):
        idx = [i for i, t in enumerate(self.lg) if t in tags]
        if not idx: return
        last = max(idx)
        n = min(15, len(self.lg) - 1 - last)
        self.e(f"s_waitcnt lgkmcnt({n})")
        self.lg = self.lg[len(self.lg) - n:] if n else []
    STAMP = False
    def stamp(self, idx):
        if not KV.STAMP or getattr(self, "nostamp", False): return
        idx = idx + getattr(self, "stamp_off", 0)
        self.e("s_memtime s[60:61]", "s_memrealtime s[62:63]", "s_waitcnt lgkmcnt(0)",
               f"s_mov_b32 s{64+2*idx}, s60", f"s_mov_b32 s{65+2*idx}, s62")
        self.lg = []
    def stamp_out(self, n, base, SWS=20, sh=6):
        if not KV.STAMP: return
        self.e("v_lshrrev_b32 v250, 6, v0", "s_lshl_b32 s60, s2, 2", "v_add_u32 v250, s60, v250", f"v_lshlrev_b32 v250, {sh}, v250",
               f"v_add_u32 v250, 0x{WS_DBG + base:x}, v250", "v_and_b32 v251, 63, v0", "v_cmp_eq_u32 vcc, 0, v251", "s_and_saveexec_b64 s[60:61], vcc")
        for i in range(2*n):
            self.e(f"v_mov_b32 v251, s{64+i}", f"buffer_store_dword v251, v250, s[{SWS}:{SWS+3}], 0 offen offset:{4*i}", "s_nop 1")
        self.e("s_mov_b64 exec, s[60:61]")
    def wait_lg_all(self):
        if self.lg:
            self.e("s_waitcnt lgkmcnt(0)")
        self.lg = []

def srd(k, d, karg_off, nbytes):
    k.e(f"s_load_dwordx2 s[{d}:{d+1}], s[0:1], {karg_off}")
    return [f"s_mov_b32 s{d+2}, 0x{nbytes:x}", f"s_mov_b32 s{d+3}, 0x00020000"]

SZ_X = 2048*512*2; SZ_WQKV = 512*1536*2; SZ_WO = 512*512*2; SZ_WG = 512*1792*2; SZ_WD = 1792*512*2

def allreduce(k, regs, tmps):
    n = len(regs)
    pad = max(0, 2 - (n - 1))
    for mode in ("quad_perm:[1,0,3,2]", "quad_perm:[2,3,0,1]", "row_half_mirror", "row_mirror"):
        for r in regs:
            k.e(f"v_add_f32_dpp v{r}, v{r}, v{r} {mode} row_mask:0xf bank_mask:0xf")
        if pad: k.e(f"s_nop {pad-1}")
    for sw in ("v_permlane16_swap_b32", "v_permlane32_swap_b32"):
        for r, t in zip(regs, tmps): k.e(f"v_mov_b32 v{t}, v{r}")
        k.e("s_nop 1")
        for r, t in zip(regs, tmps): k.e(f"{sw} v{r}, v{t}")
        k.e("s_nop 1")
        for r, t in zip(regs, tmps): k.e(f"v_add_f32 v{r}, v{r}, v{t}")
    k.e("s_nop 1")


SDBG = 56
SEP = 58
SCNT = 54
FLG = 0x40000
FLG_ROW = FLG
FLG_COLQ = FLG + 0x400
FLG_COLG = FLG + 0x800
FLG_QKV = FLG + 0x1000
FLG_H = FLG + 0x2000
FLG_O = FLG + 0x3000
SPIN_MAX = 0x4000
FLG_QKV8 = FLG + 0x1000
FLG_H8 = FLG + 0x2000
FLG_O8 = FLG + 0x4000
FLG_P8 = FLG + 0x6000

def load_dbg(k):
    k.e(f"s_load_dwordx2 s[{SDBG}:{SDBG+1}], s[0:1], 64")

def wave_id(k):
    k.e("v_lshrrev_b32 v10, 6, v0", "s_nop 1", "v_readfirstlane_b32 s24, v10", "s_nop 3")

def epoch_make(k):
    L = k.newlabel("ep")
    k.e("s_or_b32 s54, s2, s24", "s_cmp_lg_u32 s54, 0", f"s_cbranch_scc1 {L}",
        f"s_memrealtime s[{SEP}:{SEP+1}]", "v_mov_b32 v1, 0", "s_waitcnt lgkmcnt(0)", f"s_or_b32 s{SEP}, s{SEP}, 1",
        f"v_mov_b32 v2, s{SEP}", f"v_mov_b32 v3, s{SEP+1}", "s_mov_b64 exec, 1",
        f"global_store_dwordx2 v1, v[2:3], s[{SDBG}:{SDBG+1}] sc1", "s_mov_b64 exec, -1")
    k.label(L)

def w0_begin(k):
    L = k.newlabel("w0")
    k.e("s_cmp_lg_u32 s24, 0", f"s_cbranch_scc1 {L}")
    return L

def epoch_issue(k, vd):
    k.e(f"v_mov_b32 v{vd+2}, 0")
    L = w0_begin(k)
    k.vmem(f"global_load_dwordx2 v[{vd}:{vd+1}], v{vd+2}, s[{SDBG}:{SDBG+1}] sc1", "ep", opt=True)
    k.label(L)

def epoch_check(k, vd):
    L = w0_begin(k)
    Ls = k.newlabel("eps"); Lc = k.newlabel("epc")
    k.wait_vm("ep", cond=True)
    k.label(Lc + "_r")
    k.e(f"v_readfirstlane_b32 s{SEP}, v{vd}", f"v_readfirstlane_b32 s{SEP+1}, v{vd+1}", "s_nop 3", f"s_cmp_eq_u32 s{SEP}, 0", f"s_cbranch_scc1 {Ls}")
    k.label(Lc)
    k.label(L)
    def tail():
        k.label(Ls)
        k.e(f"s_mov_b32 s{SCNT}, 0")
        k.label(Ls + "_l")
        k.e(f"global_load_dwordx2 v[{vd}:{vd+1}], v{vd+2}, s[{SDBG}:{SDBG+1}] sc1", f"s_add_u32 s{SCNT}, s{SCNT}, 1", "s_waitcnt vmcnt(0)",
            f"v_readfirstlane_b32 s{SEP}, v{vd}", f"v_readfirstlane_b32 s{SEP+1}, v{vd+1}", "s_nop 3", f"s_cmp_lg_u32 s{SEP}, 0", f"s_cbranch_scc1 {Lc}",
            "s_sleep 2", f"s_cmp_lt_u32 s{SCNT}, 0x{SPIN_MAX:x}", f"s_cbranch_scc1 {Ls}_l", f"s_branch {Lc}")
    k.tails.append(tail)

def publish(k, s_off, SWS=20, vt=1):
    k.wait_vm_all(); k.wait_lg_all()
    k.e("s_barrier")
    L = w0_begin(k)
    k.e(f"v_mov_b32 v{vt}, s{s_off}", f"v_mov_b32 v{vt+1}, s{SEP}", f"v_mov_b32 v{vt+2}, s{SEP+1}", "s_mov_b64 exec, 1")
    k.vmem(f"buffer_store_dwordx2 v[{vt+1}:{vt+2}], v{vt}, s[{SWS}:{SWS+3}], 0 offen sc1", "flag", opt=True)
    k.e("s_mov_b64 exec, -1")
    k.label(L)

def poll_issue(k, vd, voff, SWS=20):
    L = w0_begin(k)
    k.vmem(f"buffer_load_dwordx2 v[{vd}:{vd+1}], v{voff}, s[{SWS}:{SWS+3}], 0 offen sc1", "poll", opt=True)
    k.label(L)

def poll_check(k, vd, voff, SWS=20):
    L = w0_begin(k)
    Ls = k.newlabel("spin"); Lc = k.newlabel("cont")
    k.wait_vm("poll", cond=True)
    k.e(f"v_cmp_eq_u64 vcc, s[{SEP}:{SEP+1}], v[{vd}:{vd+1}]", "s_nop 3", "s_cmp_eq_u64 vcc, -1", f"s_cbranch_scc0 {Ls}")
    k.label(Lc)
    k.label(L)
    def tail():
        k.label(Ls)
        k.e(f"s_mov_b32 s{SCNT}, 0")
        k.label(Ls + "_l")
        k.e("s_sleep 2", f"buffer_load_dwordx2 v[{vd}:{vd+1}], v{voff}, s[{SWS}:{SWS+3}], 0 offen sc1", f"s_add_u32 s{SCNT}, s{SCNT}, 1", "s_waitcnt vmcnt(0)",
            f"v_cmp_eq_u64 vcc, s[{SEP}:{SEP+1}], v[{vd}:{vd+1}]", "s_nop 3", "s_cmp_eq_u64 vcc, -1", f"s_cbranch_scc1 {Lc}",
            f"s_cmp_lt_u32 s{SCNT}, 0x{SPIN_MAX:x}", f"s_cbranch_scc1 {Ls}_l", f"s_branch {Lc}")
    k.tails.append(tail)

def row_job(k, s_job, srd_x, srd_ws, sc1="", pre_store=None):
    k.e("v_and_b32 v1, 63, v0", "v_lshrrev_b32 v2, 6, v0", f"s_lshl_b32 s40, s{s_job}, 14",
        "v_lshlrev_b32 v3, 12, v2", "v_lshl_add_u32 v3, v1, 4, v3", "v_add_u32 v3, s40, v3")
    for j in range(4):
        k.vmem(f"buffer_load_dwordx4 v[{4+4*j}:{7+4*j}], v3, s[{srd_x}:{srd_x+3}], 0 offen offset:{1024*j}", "rj")
    k.e("v_bfe_u32 v72, v1, 1, 2", "v_cmp_eq_u32 s[42:43], 1, v72", "v_cmp_eq_u32 s[44:45], 2, v72", "v_cmp_eq_u32 s[46:47], 3, v72")
    k.wait_vm("rj")
    if pre_store: pre_store()
    for j in range(4):
        for i in range(4):
            k.e(f"v_lshlrev_b32 v{32+8*j+2*i}, 16, v{4+4*j+i}", f"v_and_b32 v{33+8*j+2*i}, 0xffff0000, v{4+4*j+i}")
    for j in range(4):
        b = 32 + 8*j
        k.e(f"v_add_f32 v{20+j}, v{b}, v{b+1}")
    for i in range(2, 8):
        for j in range(4):
            k.e(f"v_add_f32 v{20+j}, v{20+j}, v{32+8*j+i}")
    allreduce(k, [20, 21, 22, 23], [24, 25, 26, 27])
    for j in range(4): k.e(f"v_mul_f32 v{20+j}, 0x3b000000, v{20+j}")
    for i in range(8):
        for j in range(4): k.e(f"v_sub_f32 v{32+8*j+i}, v{32+8*j+i}, v{20+j}")
    for j in range(4): k.e(f"v_mul_f32 v{28+j}, v{32+8*j}, v{32+8*j}")
    for i in range(1, 8):
        for j in range(4): k.e(f"v_fmac_f32 v{28+j}, v{32+8*j+i}, v{32+8*j+i}")
    allreduce(k, [28, 29, 30, 31], [24, 25, 26, 27])
    k.e("v_cndmask_b32 v64, v20, v21, s[42:43]", "v_cndmask_b32 v65, v28, v29, s[42:43]",
        "v_cndmask_b32 v64, v64, v22, s[44:45]", "v_cndmask_b32 v65, v65, v30, s[44:45]",
        "v_cndmask_b32 v64, v64, v23, s[46:47]", "v_cndmask_b32 v65, v65, v31, s[46:47]")
    k.e("v_mov_b32 v66, 0x3727c5ac", "v_fmac_f32 v66, 0x3b000000, v65",
        "v_rsq_f32 v67, v66", "v_sub_f32 v64, 0, v64",
        "v_mul_f32 v68, v66, v67",
        "v_cvt_pk_bf16_f32 v69, v64, v64", "s_nop 0", "v_and_b32 v69, 0xffff0000, v69", "v_sub_f32 v70, v64, v69",
        "v_cvt_pk_bf16_f32 v69, v70, v70", "s_nop 0", "v_and_b32 v69, 0xffff0000, v69", "v_sub_f32 v71, v70, v69",
        "v_cvt_pk_bf16_f32 v4, v64, v70", "v_cvt_pk_bf16_f32 v6, v71, v64",
        "v_and_b32 v72, 1, v1", "v_cmp_eq_u32 vcc, 1, v72", "v_mov_b32 v5, v4", "v_mov_b32 v7, 0",
        "v_cndmask_b32 v4, v4, v67, vcc", "v_cndmask_b32 v5, v5, v68, vcc", "v_cndmask_b32 v6, v6, v7, vcc")
    k.e(f"s_lshl_b32 s40, s{s_job}, 9", "v_lshlrev_b32 v3, 7, v2", "v_lshl_add_u32 v3, v1, 4, v3", "v_add_u32 v3, s40, v3",
        "v_cmp_gt_u32 vcc, 8, v1", "s_and_saveexec_b64 s[42:43], vcc")
    k.vmem(f"buffer_store_dwordx4 v[4:7], v3, s[{srd_ws}:{srd_ws+3}], 0 offen offset:{WS_TOK} {sc1}", "st")
    k.e("s_mov_b64 exec, s[42:43]")

def col_job(k, s_job, srd_w, s_ld, s_col0b, srd_ws, ldsbase=0, sc1="", pre_store=None):
    k.e("v_and_b32 v1, 63, v0", "v_lshrrev_b32 v2, 6, v0", "v_lshrrev_b32 v3, 2, v1", "v_lshl_add_u32 v3, v2, 7, v3",
        f"v_mul_lo_u32 v3, v3, s{s_ld}", "v_and_b32 v4, 3, v1", "v_lshl_add_u32 v3, v4, 4, v3", f"v_add_u32 v3, s{s_col0b}, v3",
        f"s_lshl_b32 s41, s{s_ld}, 4", "s_mov_b32 s40, 0")
    for i in range(8):
        k.vmem(f"buffer_load_dwordx4 v[{8+4*i}:{11+4*i}], v3, s[{srd_w}:{srd_w+3}], s40 offen", ("cj", i))
        if i < 7: k.e("s_add_u32 s40, s40, s41")
    k.e("s_mov_b32 s42, 0x00003f80", "s_mov_b32 s43, 0x3f800000")
    for i in range(8): k.e(f"v_mov_b32 v{40+i}, 0")
    for i in range(8):
        k.wait_vm(("cj", i))
        for d in range(4):
            k.e(f"v_dot2_f32_bf16 v{40+2*d}, v{8+4*i+d}, s42, v{40+2*d}", f"v_dot2_f32_bf16 v{41+2*d}, v{8+4*i+d}, s43, v{41+2*d}")
    if pre_store: pre_store()
    k.e("s_nop 2")
    for mode in ("row_ror:4", "row_ror:8"):
        for i in range(8): k.e(f"v_add_f32_dpp v{40+i}, v{40+i}, v{40+i} {mode} row_mask:0xf bank_mask:0xf")
    k.e("v_lshrrev_b32 v5, 4, v1", "v_lshl_add_u32 v5, v2, 2, v5", "v_lshlrev_b32 v5, 7, v5", "v_lshl_add_u32 v5, v4, 5, v5",
        "v_and_b32 v6, 15, v1", "v_cmp_gt_u32 vcc, 4, v6", "s_and_saveexec_b64 s[44:45], vcc")
    k.ds(f"ds_write_b128 v5, v[40:43] offset:{ldsbase}")
    k.ds(f"ds_write_b128 v5, v[44:47] offset:{ldsbase+16}")
    k.e("s_mov_b64 exec, s[44:45]")
    k.wait_lg_all()
    k.e("s_barrier")
    k.e("v_cmp_gt_u32 vcc, 32, v0", "s_and_saveexec_b64 s[44:45], vcc", "v_lshlrev_b32 v5, 2, v0")
    for p in range(16): k.ds(f"ds_read_b32 v{8+p}, v5 offset:{ldsbase+128*p}")
    k.wait_lg_all()
    for st in (8, 4, 2, 1):
        for p in range(st): k.e(f"v_add_f32 v{8+p}, v{8+p}, v{8+p+st}")
    k.e("s_nop 0",
        "v_cvt_pk_bf16_f32 v12, v8, v8", "s_nop 0", "v_and_b32 v9, 0xffff0000, v12", "v_sub_f32 v9, v8, v9",
        "v_cvt_pk_bf16_f32 v13, v9, v9", "s_nop 0", "v_and_b32 v10, 0xffff0000, v13", "v_sub_f32 v10, v9, v10",
        "v_cvt_pk_bf16_f32 v14, v8, v10", "v_mov_b32 v15, 0",
        f"s_lshl_b32 s40, s{s_job}, 9", "v_lshlrev_b32 v5, 4, v0", "v_add_u32 v5, s40, v5", f"s_mov_b32 s40, {WS_COL}")
    k.vmem(f"buffer_store_dwordx4 v[12:15], v5, s[{srd_ws}:{srd_ws+3}], s40 offen {sc1}", "st")
    k.e("s_mov_b64 exec, s[44:45]")

def k0_kernel():
    k = KV("k0_stats_kernel", nvgpr=96)
    k.e("s_cmp_ge_u32 s2, 288", f"s_cbranch_scc1 L_end_{k.name}")
    fx = srd(k, 8, 0, SZ_X) + srd(k, 20, 72, WS_SIZE)
    k.e("s_load_dwordx2 s[28:29], s[0:1], 8", "s_load_dwordx2 s[30:31], s[0:1], 32", "s_load_dwordx2 s[32:33], s[0:1], 40")
    k.e("s_waitcnt lgkmcnt(0)"); k.e(*fx)
    k.e("s_cmp_ge_u32 s2, 128", "s_cbranch_scc1 L_k0_col")
    row_job(k, 2, 8, 20)
    k.e("s_branch L_k0_done")
    k.label("L_k0_col")
    k.e("s_sub_u32 s3, s2, 128")
    k.e("s_mov_b32 s12, s28", "s_mov_b32 s13, s29", f"s_mov_b32 s14, {SZ_WQKV}", "s_mov_b32 s15, 0x00020000",
        "s_movk_i32 s16, 3072", "s_lshl_b32 s17, s3, 6",
        "s_cmp_lt_u32 s3, 48", "s_cbranch_scc1 L_k0_go",
        "s_mov_b32 s12, s30", "s_mov_b32 s13, s31", f"s_mov_b32 s14, {SZ_WG}", "s_movk_i32 s16, 3584",
        "s_sub_u32 s17, s3, 48", "s_lshl_b32 s17, s17, 6",
        "s_cmp_lt_u32 s3, 104", "s_cbranch_scc1 L_k0_go",
        "s_mov_b32 s12, s32", "s_mov_b32 s13, s33", "s_sub_u32 s17, s3, 104", "s_lshl_b32 s17, s17, 6")
    k.label("L_k0_go")
    col_job(k, 3, 12, 16, 17, 20)
    k.label("L_k0_done")
    k.wait_vm_all()
    k.label(f"L_end_{k.name}")
    k.e("s_endpgm")
    return k

DBG = dict(nodma=False, nobar=False, noreads=False, fill=None, early=False)
def gemm_loop(k, nunits, mfmas, reads, dmas, vm_need, fill=6, dma_first_gap=0, hooks=None, pre_hooks=None, dbg=False):
    def tagof(g, name): return ("fr", g, name)
    for u in range(nunits):
        g0, g1 = 2*u, 2*u + 1
        k.wait_vm(*vm_need(u))
        k.wait_lg_all()
        if not (dbg and DBG["nobar"]): k.e("s_barrier")
        if pre_hooks and u in pre_hooks: pre_hooks[u]()
        R0 = list(reads(g0, 0)); R1 = list(reads(g1, 1))
        if dbg and DBG["noreads"] and u > 0: R0 = []; R1 = []
        if dbg and DBG["fill"]: fill = DBG["fill"]
        prev = list(mfmas(g0 - 1, 1)) if u > 0 else []
        cur = list(mfmas(g0, 0))
        D = list(dmas(u))
        if dbg and DBG["nodma"]: D = []
        rel = {}
        for i, (t, used) in enumerate(prev):
            for nm in used: rel[nm] = i
        def emit_reads(i, budget):
            n = 0
            while n < budget and R0:
                t, nm = R0.pop(0); k.ds(t, tagof(g0, nm)); n += 1
            j = 0
            while n < budget and j < len(R1):
                t, nm = R1[j]
                if rel.get(nm, -1) <= i:
                    k.ds(t, tagof(g1, nm)); R1.pop(j); n += 1
                else: j += 1
            return n
        if not prev:
            emit_reads(-1, 1000)
        early = dbg and DBG["early"]
        def emit_dma():
            for (txt, tag, isvm) in D.pop(0):
                if isvm: k.vmem(txt, tag)
                else: k.e(txt)
        for i, (t, used) in enumerate(prev):
            k.e(t)
            if early:
                emit_reads(i, 4)
                if D: emit_dma()
            else:
                emit_reads(i, fill)
        emit_reads(10**6, 1000)
        ngap = len(cur)
        per = -(-len(D) // ngap) if D else 0
        for j, (t, used) in enumerate(cur):
            k.wait_lg(*[tagof(g0, nm) for nm in used])
            k.e(t)
            for _ in range(per):
                if D:
                    for (txt, tag, isvm) in D.pop(0):
                        if isvm: k.vmem(txt, tag)
                        else: k.e(txt)
        assert not D
        if hooks and u in hooks:
            for h in hooks[u]: h()
    k.wait_lg_all()
    for (t, used) in mfmas(2*nunits - 1, 1): k.e(t)

def dma(srd_, voff, s_m0base, m0imm, s_tmp, soff, tag, imm=0):
    out = [(f"s_add_u32 m0, s{s_m0base}, {m0imm - imm}" , None, False)]
    out.append((f"s_mov_b32 s{s_tmp}, 0x{soff:x}", None, False))
    o = f" offset:{imm}" if imm else ""
    out.append((f"buffer_load_dwordx4 v{voff}, s[{srd_}:{srd_+3}], s{s_tmp} offen{o} lds", tag, True))
    return out

def dmab(srd_, voff, s_m0base, m0imm, s_tmp, s_base, soff, tag, imm=0, post=()):
    out = [(f"s_add_u32 m0, s{s_m0base}, {m0imm - imm}" , None, False)]
    out.append((f"s_add_u32 s{s_tmp}, s{s_base}, 0x{soff:x}", None, False))
    o = f" offset:{imm}" if imm else ""
    out.append((f"buffer_load_dwordx4 v{voff}, s[{srd_}:{srd_+3}], s{s_tmp} offen{o} lds", tag, True))
    for t in post: out.append((t, None, False))
    return out

def rot_adv(s, step, lim, tmp):
    return [f"s_add_u32 s{s}, s{s}, {step}", f"s_cmp_ge_u32 s{s}, {lim}", f"s_cselect_b32 s{tmp}, {lim}, 0", f"s_sub_u32 s{s}, s{s}, s{tmp}"]

def emit_groups(k, groups):
    for gr in groups:
        for (txt, tag, isvm) in gr:
            if isvm: k.vmem(txt, tag)
            else: k.e(txt)

MF = "v_mfma_f32_32x32x16_bf16"

def e1_body(k, SX=8, SW=12, SWS=20, sc1="", stats_sync=None):
    E1_XB = 49152
    k.e("v_and_b32 v1, 63, v0", "v_lshrrev_b32 v10, 6, v0", "s_nop 0", "v_readfirstlane_b32 s24, v10")
    k.e("v_and_b32 v11, 31, v1", "v_lshrrev_b32 v12, 5, v1")
    k.e("s_and_b32 s27, s24, 1", "s_lshr_b32 s28, s24, 1")
    k.e("v_lshrrev_b32 v13, 3, v1", "v_lshrrev_b32 v14, 4, v1", "v_and_b32 v15, 7, v1",
        "v_xor_b32 v7, v15, v14", "v_lshlrev_b32 v7, 4, v7", "v_lshl_add_u32 v7, v13, 10, v7",
        "s_lshl_b32 s29, s25, 16", "s_lshl_b32 s30, s24, 14", "s_add_u32 s29, s29, s30",
        "v_add_u32 v7, s29, v7", "v_xor_b32 v8, 64, v7", "v_add_u32 v8, 8192, v8")
    k.e("v_and_b32 v14, 1, v14", "v_lshlrev_b32 v14, 2, v14", "v_xor_b32 v9, v15, v14", "v_lshlrev_b32 v9, 4, v9",
        "s_lshl_b32 s30, s24, 3", "v_add_u32 v13, s30, v13", "v_mul_u32_u24 v13, 3072, v13", "v_add_u32 v9, v9, v13",
        "s_lshl_b32 s30, s26, 7", "v_add_u32 v9, s30, v9")
    k.e(f"s_lshl_b32 s31, s24, 11", f"s_add_u32 s31, s31, {E1_XB}", "s_lshl_b32 s32, s24, 10")
    def xd(v):
        return [dma(SX, 7, 31, (v % 3)*8192, 33, v*128, ("X", v)), dma(SX, 8, 31, (v % 3)*8192 + 1024, 33, v*128, ("X", v))]
    def wd(u):
        return [dma(SW, 9, 32, (u % 4)*12288 + p*4096, 33, u*32*3072, ("W", u), imm=1024*p) for p in range(3)]
    emit_groups(k, xd(0) + wd(0) + wd(1) + xd(1) + wd(2))
    for i in range(48, 64): k.e(f"v_mov_b32 v{i}, 0")
    k.e("s_lshl_b32 s34, s25, 6", "s_lshl_b32 s35, s27, 5", "s_add_u32 s34, s34, s35",
        "v_add_u32 v116, s34, v11", "v_lshlrev_b32 v116, 5, v116")
    k.e("s_lshl_b32 s35, s26, 6", "s_lshl_b32 s36, s28, 5", "s_add_u32 s35, s35, s36",
        "v_add_u32 v117, s35, v11", "v_lshlrev_b32 v117, 4, v117")
    def extras(xsc):
        k.vmem(f"buffer_load_dword v112, v116, s[{SWS}:{SWS+3}], 0 offen offset:{WS_TOK+16} {xsc}", "ex")
        k.e(f"s_mov_b32 s36, {WS_COL}", "s_mov_b64 exec, 0xffffffff")
        k.vmem(f"buffer_load_dwordx4 v[48:51], v116, s[{SWS}:{SWS+3}], 0 offen offset:{WS_TOK} {xsc}", "ex")
        for p in range(3):
            k.vmem(f"buffer_load_dwordx4 v[{52+4*p}:{55+4*p}], v117, s[{SWS}:{SWS+3}], s36 offen {xsc}", "ex")
            if p < 2: k.e("s_add_u32 s36, s36, 8192")
        k.e("s_mov_b64 exec, -1")
    hooks = None; pre_hooks = None
    if stats_sync is None:
        extras("")
    else:
        ue, up, uc = stats_sync
        k.e("v_and_b32 v114, 15, v1", "v_min_u32 v114, 9, v114", "v_lshlrev_b32 v114, 3, v114",
            f"s_lshl_b32 s36, s25, 5", f"s_add_u32 s36, s36, 0x{FLG_ROW:x}", "v_add_u32 v115, s36, v114",
            f"s_lshl_b32 s36, s26, 7", f"s_add_u32 s36, s36, 0x{FLG_COLQ - 32:x}", "v_add_u32 v118, s36, v114",
            "v_cmp_gt_u32 vcc, 32, v114", "s_nop 1", "v_cndmask_b32 v115, v118, v115, vcc")
        def h_e(): epoch_issue(k, 120)
        def h_p():
            epoch_check(k, 120)
            poll_issue(k, 120, 115)
        def h_c(): poll_check(k, 120, 115)
        def h_x(): extras("sc1")
        hooks = {ue: [h_e], up: [h_p], uc: [h_c]}
        pre_hooks = {uc + 1: h_x}
    k.e("s_lshl_b32 s36, s27, 5", "v_add_u32 v13, s36, v11", "v_bfe_u32 v14, v13, 1, 3", "v_xor_b32 v14, v14, v12",
        "v_lshlrev_b32 v14, 4, v14", "v_lshl_add_u32 v2, v13, 7, v14", f"v_add_u32 v2, {E1_XB}, v2",
        "v_xor_b32 v3, 32, v2", "v_xor_b32 v4, 64, v2", "v_xor_b32 v5, 96, v2")
    k.e("v_bfe_u32 v13, v1, 2, 2", "v_lshl_add_u32 v13, v12, 3, v13", "v_lshlrev_b32 v6, 7, v13",
        "v_bfe_u32 v13, v1, 4, 1", "v_lshlrev_b32 v13, 1, v13", "v_bfe_u32 v14, v1, 1, 1", "v_add_u32 v13, v13, v14",
        "s_lshl_b32 s36, s28, 2", "v_add_u32 v13, s36, v13", "v_bfe_u32 v14, v1, 3, 1", "v_lshlrev_b32 v14, 2, v14",
        "v_xor_b32 v13, v13, v14", "v_lshl_add_u32 v6, v13, 4, v6", "v_and_b32 v14, 1, v1", "v_lshl_add_u32 v6, v14, 3, v6")
    for i in range(64, 112): k.e(f"v_mov_b32 v{i}, 0")
    def fr(st): return 16 + 16*st
    def reads(g, st):
        b = fr(st); u = g >> 1; v = g >> 2
        out = [(f"ds_read_b128 v[{b}:{b+3}], v{2 + (g & 3)} offset:{(v % 3)*8192}", "X")]
        for p in range(3):
            o = (u % 4)*12288 + p*4096 + (g & 1)*2048
            out.append((f"ds_read_b64_tr_b16 v[{b+4+4*p}:{b+5+4*p}], v6 offset:{o}", f"W{p}"))
            out.append((f"ds_read_b64_tr_b16 v[{b+6+4*p}:{b+7+4*p}], v6 offset:{o+512}", f"W{p}"))
        return out
    def mf(b_x, b_w):
        out = []
        for p in range(3):
            a = 64 + 16*p
            w = f"v[{b_w+4*p}:{b_w+4*p+3}]"; x = f"v[{b_x}:{b_x+3}]"
            A, B = (w, x) if p < 2 else (x, w)
            out.append((f"{MF} v[{a}:{a+15}], {A}, {B}, v[{a}:{a+15}]", ["X", f"W{p}"]))
        return out
    def mfmas(g, st): return mf(fr(st), fr(st) + 4)
    def dmas(u):
        out = []
        if u + 3 < 16: out += wd(u + 3)
        if u % 2 == 0 and u//2 + 2 < 8: out += xd(u//2 + 2)
        return out
    k.stamp(1)
    gemm_loop(k, 16, mfmas, reads, dmas, lambda u: [("W", u), ("X", u >> 1)], hooks=hooks, pre_hooks=pre_hooks)
    k.stamp(2)
    k.wait_vm("ex")
    for (t, _) in mf(48, 52): k.e(t)
    k.e("s_lshl_b32 s36, s24, 7", "v_lshlrev_b32 v13, 2, v11", "v_add_u32 v13, s36, v13")
    k.ds("ds_write_b32 v13, v112")
    k.e("v_lshlrev_b32 v13, 4, v12", "v_add_u32 v13, s36, v13")
    k.wait_lg_all()
    for gq in range(4): k.ds(f"ds_read_b128 v[{32+4*gq}:{35+4*gq}], v13 offset:{32*gq}")
    k.e(f"v_mul_f32 v113, 0x{f2u(0.25*LOG2E):08x}, v112")
    k.e("v_lshlrev_b32 v10, 4, v1",
        "s_lshl_b32 s36, s26, 2", "s_lshl_b32 s37, s28, 1", "s_add_u32 s36, s36, s37", "s_lshl_b32 s36, s36, 16",
        "s_lshl_b32 s37, s25, 1", "s_add_u32 s37, s37, s27", "s_lshl_b32 s37, s37, 10", "s_add_u32 s36, s36, s37")
    k.e("s_nop 4")
    for p, (scale, base) in enumerate(((113, WS_QF), (112, WS_KF))):
        a = 64 + 16*p
        for r in range(16): k.e(f"v_mul_f32 v{a+r}, v{a+r}, v{scale}")
        for j in range(2):
            d = 16 + 8*p + 4*j
            for i in range(4): k.e(f"v_cvt_pk_bf16_f32 v{d+i}, v{a+8*j+2*i}, v{a+8*j+2*i+1}")
            k.e(f"s_add_u32 s37, s36, 0x{base + j*65536:x}")
            k.vmem(f"buffer_store_dwordx4 v[{d}:{d+3}], v10, s[{SWS}:{SWS+3}], s37 offen {sc1}", "st")
    k.wait_lg_all()
    a = 96
    for r in range(16): k.e(f"v_mul_f32 v{a+r}, v{a+r}, v{32+r}")
    k.e("v_lshrrev_b32 v13, 4, v11", "v_lshlrev_b32 v13, 16, v13", "v_lshl_add_u32 v13, v12, 8, v13", "v_and_b32 v14, 15, v11",
        "v_lshl_add_u32 v13, v14, 4, v13", f"s_add_u32 s37, s36, 0x{WS_VF:x}")
    for j in range(2):
        d = 48 + 4*j
        for i in range(4): k.e(f"v_cvt_pk_bf16_f32 v{d+i}, v{a+8*j+2*i}, v{a+8*j+2*i+1}")
        k.vmem(f"buffer_store_dwordx4 v[{d}:{d+3}], v13, s[{SWS}:{SWS+3}], s37 offen offset:{512*j} {sc1}", "st")

def e3_body(k, SX=8, SG=12, SU=16, SWS=20, sc1="", norm=False, xoff=0, epi_prio=None, post_loop=None, st_sc1=None, pre_loop=None):
    XB = 49152
    k.e("v_and_b32 v1, 63, v0", "v_lshrrev_b32 v10, 6, v0", "s_nop 0", "v_readfirstlane_b32 s24, v10")
    k.e("v_and_b32 v11, 31, v1", "v_lshrrev_b32 v12, 5, v1")
    k.e("s_and_b32 s27, s24, 1", "s_lshr_b32 s28, s24, 1")
    k.e("v_lshrrev_b32 v13, 3, v1", "v_lshrrev_b32 v14, 4, v1", "v_and_b32 v15, 7, v1",
        "v_xor_b32 v7, v15, v14", "v_lshlrev_b32 v7, 4, v7", "v_lshl_add_u32 v7, v13, 10, v7",
        "s_lshl_b32 s29, s25, 17", "s_lshl_b32 s30, s24, 15", "s_add_u32 s29, s29, s30",
        "v_add_u32 v7, s29, v7", "v_xor_b32 v8, 64, v7", "v_add_u32 v8, 8192, v8")
    k.e("v_lshlrev_b32 v13, 2, v14", "v_and_b32 v15, 15, v1", "v_xor_b32 v9, v15, v13", "v_lshlrev_b32 v9, 4, v9",
        "s_lshl_b32 s30, s24, 3", "v_add_u32 v13, s30, v14", "v_mul_u32_u24 v13, 3584, v13", "v_add_u32 v9, v9, v13",
        "s_lshl_b32 s30, s26, 8", "v_add_u32 v9, s30, v9")
    k.e(f"s_lshl_b32 s31, s24, 12", f"s_add_u32 s31, s31, {XB}", "s_lshl_b32 s32, s24, 11")
    def xd(v):
        return [dma(SX, 7 + (i & 1), 31, (v % 2)*16384 + i*1024, 33, xoff + v*128 + (i >> 1)*16384, ("X", v)) for i in range(4)]
    def wd(u):
        out = []
        for i in range(2):
            for p, sr in enumerate((SG, SU)):
                out.append(dma(sr, 9, 32, (u % 3)*16384 + p*8192 + i*1024, 33, (u*32 + 4*i)*3584, ("W", u)))
        return out
    emit_groups(k, xd(0) + wd(0) + wd(1))
    if pre_loop: pre_loop()
    k.e("s_lshl_b32 s36, s27, 6", "v_add_u32 v13, s36, v11", "v_bfe_u32 v14, v13, 1, 3", "v_xor_b32 v14, v14, v12",
        "v_lshlrev_b32 v14, 4, v14", "v_lshl_add_u32 v2, v13, 7, v14", f"v_add_u32 v2, {XB}, v2",
        "v_xor_b32 v3, 32, v2", "v_xor_b32 v4, 64, v2", "v_xor_b32 v5, 96, v2")
    k.e("v_bfe_u32 v15, v1, 2, 2", "v_lshl_add_u32 v13, v12, 3, v15", "v_lshlrev_b32 v6, 8, v13",
        "v_bfe_u32 v13, v1, 4, 1", "v_lshlrev_b32 v13, 1, v13", "v_bfe_u32 v14, v1, 1, 1", "v_add_u32 v13, v13, v14",
        "s_lshl_b32 s36, s28, 3", "v_add_u32 v13, s36, v13", "v_lshlrev_b32 v15, 2, v15",
        "v_xor_b32 v13, v13, v15", "v_lshl_add_u32 v6, v13, 4, v6", "v_and_b32 v14, 1, v1", "v_lshl_add_u32 v6, v14, 3, v6",
        "v_xor_b32 v10, 64, v6")
    ACC = 128
    if not norm:
        for i in range(ACC, ACC + 128): k.e(f"v_mov_b32 v{i}, 0")
    def fr(st): return 16 + 24*st
    def acc(part, b, tb): return ACC + 16*(part*4 + b*2 + tb)
    def reads(g, st):
        b0 = fr(st); u = g >> 1; v = g >> 2
        out = []
        def wr(part, b):
            d = b0 + 8 + 8*part + 4*b
            o = (u % 3)*16384 + part*8192 + (g & 1)*4096
            av = 6 if b == 0 else 10
            return [(f"ds_read_b64_tr_b16 v[{d}:{d+1}], v{av} offset:{o}", f"W{part}{b}"),
                    (f"ds_read_b64_tr_b16 v[{d+2}:{d+3}], v{av} offset:{o+1024}", f"W{part}{b}")]
        def xr(tb): return [(f"ds_read_b128 v[{b0+4*tb}:{b0+4*tb+3}], v{2 + (g & 3)} offset:{(v % 2)*16384 + tb*4096}", f"X{tb}")]
        out = xr(0) + wr(0, 0) + xr(1) + wr(0, 1) + wr(1, 0) + wr(1, 1)
        return out
    def mf(b0, first=False):
        out = []
        for part in range(2):
            for b in range(2):
                for tb in range(2):
                    a = acc(part, b, tb); w = b0 + 8 + 8*part + 4*b; x = b0 + 4*tb
                    c = "0" if first else f"v[{a}:{a+15}]"
                    out.append((f"{MF} v[{a}:{a+15}], v[{w}:{w+3}], v[{x}:{x+3}], {c}", [f"X{tb}", f"W{part}{b}"]))
        return out
    def mfmas(g, st): return mf(fr(st), first=(norm and g == 0))
    def dmas(u):
        out = []
        if u + 2 < 16: out += wd(u + 2)
        if u % 2 == 0 and u//2 + 1 < 8: out += xd(u//2 + 1)
        return out
    if not norm:
        for i in range(64, 88): k.e(f"v_mov_b32 v{i}, 0")
        k.e("s_lshl_b32 s34, s25, 7", "s_lshl_b32 s35, s27, 6", "s_add_u32 s34, s34, s35",
            "v_add_u32 v13, s34, v11", "v_lshlrev_b32 v13, 5, v13")
        for tb in range(2):
            k.vmem(f"buffer_load_dwordx2 v[{88+2*tb}:{89+2*tb}], v13, s[{SWS}:{SWS+3}], 0 offen offset:{WS_TOK+16+1024*tb} {sc1}", "ex")
        k.e("s_lshl_b32 s35, s26, 7", "s_lshl_b32 s36, s28, 6", "s_add_u32 s35, s35, s36",
            "v_add_u32 v14, s35, v11", "v_lshlrev_b32 v14, 4, v14", f"s_mov_b32 s36, {WS_COL + 1536*16}", f"s_mov_b32 s37, {WS_COL + 3328*16}",
            "s_mov_b64 exec, 0xffffffff")
        for tb in range(2):
            k.vmem(f"buffer_load_dwordx4 v[{64+4*tb}:{67+4*tb}], v13, s[{SWS}:{SWS+3}], 0 offen offset:{WS_TOK+1024*tb} {sc1}", "ex")
        for part in range(2):
            for b in range(2):
                d = 72 + 8*part + 4*b
                k.vmem(f"buffer_load_dwordx4 v[{d}:{d+3}], v14, s[{SWS}:{SWS+3}], s{36+part} offen offset:{512*b} {sc1}", "ex")
        k.e("s_mov_b64 exec, -1")
    k.stamp(1)
    gemm_loop(k, 16, mfmas, reads, dmas, lambda u: [("W", u), ("X", u >> 1)], dbg=True)
    k.stamp(2)
    if epi_prio is not None: k.e(f"s_setprio {epi_prio}")
    if post_loop: post_loop()
    if st_sc1 is None: st_sc1 = sc1
    if not norm:
        k.wait_vm("ex")
        for (t, _) in mf(64): k.e(t)
        k.e(f"v_mul_f32 v92, 0x{f2u(LOG2E):08x}, v88", f"v_mul_f32 v93, 0x{f2u(LOG2E):08x}, v90")
    else:
        k.e(f"s_mov_b32 s38, 0x{f2u(-LOG2E):08x}")
    k.e("v_lshlrev_b32 v10, 4, v1",
        "s_lshl_b32 s36, s25, 2", "s_lshl_b32 s37, s27, 1", "s_add_u32 s36, s36, s37", "s_mul_i32 s36, s36, 112",
        "s_lshl_b32 s37, s26, 3", "s_add_u32 s36, s36, s37", "s_lshl_b32 s37, s28, 2", "s_add_u32 s36, s36, s37",
        "s_lshl_b32 s36, s36, 10", f"s_add_u32 s36, s36, 0x{WS_HF:x}")
    k.e("s_nop 4")
    n = 0
    for b in range(2):
        for tb in range(2):
            g = acc(0, b, tb); uu = acc(1, b, tb)
            A = 92 + tb; SD = 89 + 2*tb
            if not norm:
                for r in range(16): k.e(f"v_mul_f32 v{g+r}, v{g+r}, v{A}")
                for r in range(16): k.e(f"v_exp_f32 v{g+r}, -v{g+r}")
                for r in range(16): k.e(f"v_fma_f32 v{g+r}, v{g+r}, v{SD}, v{SD}")
            else:
                for r in range(16): k.e(f"v_mul_f32 v{g+r}, s38, v{g+r}")
                for r in range(16): k.e(f"v_exp_f32 v{g+r}, v{g+r}")
                for r in range(16): k.e(f"v_add_f32 v{g+r}, 1.0, v{g+r}")
            for r in range(16): k.e(f"v_rcp_f32 v{g+r}, v{g+r}")
            for r in range(16): k.e(f"v_mul_f32 v{g+r}, v{g+r}, v{uu+r}")
            for j in range(2):
                d = 16 + 4*(n % 8); n += 1
                for i in range(4): k.e(f"v_cvt_pk_bf16_f32 v{d+i}, v{g+8*j+2*i}, v{g+8*j+2*i+1}")
                k.e(f"s_add_u32 s37, s36, {(tb*112 + b*2 + j)*1024}")
                k.vmem(f"buffer_store_dwordx4 v[{d}:{d+3}], v10, s[{SWS}:{SWS+3}], s37 offen {st_sc1}", "st")

def k1_kernel():
    k = KV("k1_gemm_kernel", nvgpr=256)
    k.e("s_cmp_ge_u32 s2, 480", f"s_cbranch_scc1 L_end_{k.name}")
    fx = srd(k, 8, 0, SZ_X) + srd(k, 20, 72, WS_SIZE)
    k.e("s_cmp_ge_u32 s2, 256", "s_cbranch_scc1 L_k1_e3")
    fx1 = srd(k, 12, 8, SZ_WQKV)
    k.e("s_waitcnt lgkmcnt(0)"); k.e(*(fx + fx1))
    k.e("s_and_b32 s26, s2, 7", "s_lshr_b32 s25, s2, 3")
    k.stamp(0)
    e1_body(k)
    k.wait_vm_all()
    k.stamp(3); k.stamp_out(4, 0); k.wait_vm_all()
    k.e("s_endpgm")
    k.label("L_k1_e3")
    k.vm = []; k.lg = []
    fx3 = srd(k, 12, 32, SZ_WG) + srd(k, 16, 40, SZ_WG)
    k.e("s_waitcnt lgkmcnt(0)"); k.e(*(fx + fx3))
    k.e("s_sub_u32 s3, s2, 256", "s_and_b32 s4, s3, 7", "s_lshr_b32 s5, s3, 3", "s_mul_i32 s4, s4, 28", "s_add_u32 s4, s4, s5",
        "s_lshr_b32 s26, s4, 4", "s_and_b32 s25, s4, 15")
    k.stamp(0)
    e3_body(k)
    k.wait_vm_all()
    k.stamp(3); k.stamp_out(4, 0); k.wait_vm_all()
    k.label(f"L_end_{k.name}")
    k.e("s_endpgm")
    return k

BIAS_M = 90.0
def e2_body(k, SWS=20, sc1="", tag="e2", bias=BIAS_M, force_fb=False, pre_hook=None, sparse_ones=True, st_sc1=None, touch=False, oflag=False, prehint=0):
    SA, SB, OA, OB, CA, CB, PA, PB, QA, QB = 64, 80, 96, 112, 128, 144, 160, 168, 176, 180
    KB_ = [184, 188]; VB_ = [192, 200]
    SLOT = 12288
    S = [SA, SB]; O = [OA, OB]; C = [CA, CB]; P = [PA, PB]; Q = [QA, QB]
    k.e("v_and_b32 v1, 63, v0", "v_lshrrev_b32 v10, 6, v0", "s_nop 0", "v_readfirstlane_b32 s24, v10")
    k.e("v_lshlrev_b32 v2, 4, v1")
    k.e("v_lshrrev_b32 v3, 5, v1", "v_lshlrev_b32 v3, 8, v3", "v_and_b32 v4, 15, v1", "v_lshl_add_u32 v3, v4, 4, v3")
    k.e("s_mov_b32 s28, 0x0000ffff", "s_mov_b32 s29, 0x0000ffff")
    k.e("s_lshl_b32 s34, s24, 10", "v_add_u32 v14, s34, v2", f"s_add_u32 s34, s34, 0x{WS_VF - WS_KF - 1024:x}", "v_add_u32 v15, s34, v3",
        "v_subrev_u32 v16, 512, v15")
    k.e("s_lshl_b32 s33, s25, 16", f"s_add_u32 s30, s33, 0x{WS_KF:x}", "s_mul_i32 s32, s24, 3072")
    def chunk_dma_items(slot):
        return [("s", f"s_add_u32 m0, s32, {slot*SLOT}"),
                ("s", "s_nop 0"),
                ("v", f"buffer_load_dwordx4 v14, s[{SWS}:{SWS+3}], s30 offen {sc1} lds"),
                ("s", "s_mov_b64 exec, s[28:29]"),
                ("v", f"buffer_load_dwordx4 v15, s[{SWS}:{SWS+3}], s30 offen offset:1024 {sc1} lds"),
                ("v", f"buffer_load_dwordx4 v16, s[{SWS}:{SWS+3}], s30 offen offset:2048 {sc1} lds"),
                ("s", "s_mov_b64 exec, -1"),
                ("s", "s_add_u32 s30, s30, 4096")]
    def chunk_dma(slot):
        for kind, t in chunk_dma_items(slot):
            if kind == "v": k.vmem(t, "c")
            else: k.e(t)
    if sparse_ones:
        k.e("v_and_b32 v9, 27, v1", "v_cmp_eq_u32 vcc, 16, v9", "v_mov_b32 v4, 0x3f803f80", "v_mov_b32 v5, 0", "s_nop 1", "v_cndmask_b32 v4, v5, v4, vcc")
    else:
        k.e("v_mov_b32 v4, 0x3f803f80")
    k.e("v_mov_b32 v5, v4", "v_mov_b32 v6, v4", "v_mov_b32 v7, v4",
        f"s_mul_i32 s33, s24, {SLOT}", "v_add_u32 v8, s33, v2", "s_mov_b32 s38, 0xffff0000", "s_mov_b32 s39, 0xffff0000", "s_mov_b64 exec, s[38:39]")
    for kb in range(4):
        for g in range(2): k.ds(f"ds_write_b128 v8, v[4:7] offset:{kb*3072 + 1024 + g*1024}")
    k.e("s_mov_b64 exec, -1")
    if pre_hook: pre_hook()
    k.e("s_lshl_b32 s36, s26, 3", "s_lshl_b32 s37, s24, 1", "s_add_u32 s36, s36, s37",
        "s_lshl_b32 s37, s25, 6", "s_add_u32 s37, s37, s36", "s_lshl_b32 s37, s37, 10", f"s_add_u32 s37, s37, 0x{WS_QF:x}")
    chunk_dma(0)
    k.vmem(f"buffer_load_dwordx4 v[{QA}:{QA+3}], v2, s[{SWS}:{SWS+3}], s37 offen {sc1}", "q")
    k.vmem(f"buffer_load_dwordx4 v[{QB}:{QB+3}], v2, s[{SWS}:{SWS+3}], s37 offen offset:1024 {sc1}", "q")
    chunk_dma(1); chunk_dma(2)
    if touch:
        k.e("s_and_b32 s36, s24, 1", f"s_mul_i32 s36, s36, 0x{WS_VF - WS_KF:x}", "s_lshl_b32 s37, s26, 13", "s_add_u32 s36, s36, s37",
            "s_lshl_b32 s37, s25, 16", "s_add_u32 s36, s36, s37", f"s_add_u32 s36, s36, 0x{WS_KF:x}", "v_lshlrev_b32 v20, 7, v1")
        k.vmem(f"buffer_load_dword v21, v20, s[{SWS}:{SWS+3}], s36 offen", "touch")
    for i in range(16):
        k.e(f"v_mov_b32 v{OA+i}, 0", f"v_mov_b32 v{OB+i}, 0")
    for i in range(8): k.e(f"v_mov_b32 v{PB+i}, 0", f"v_mov_b32 v{VB_[1]+i}, 0")
    if prehint:
        k.e("s_lshl_b32 s36, s26, 2", "s_add_u32 s36, s36, s24", "s_lshl_b32 s36, s36, 8", "s_lshl_b32 s37, s25, 3", "s_add_u32 s36, s36, s37",
            f"s_add_u32 s36, s36, 0x{FLG_P8:x}", "v_mov_b32 v24, s36", f"v_mov_b32 v26, s{SEP}", f"v_mov_b32 v27, s{SEP+1}")
    k.wait_vm("q")
    k.wait_lg_all()
    k.e("s_barrier")
    k.ds(f"ds_read_b128 v[{KB_[0]}:{KB_[0]+3}], v2 offset:0")
    k.ds(f"ds_read_b128 v[{KB_[1]}:{KB_[1]+3}], v2 offset:3072")
    k.wait_lg_all()
    k.e(f"{MF} v[{SA}:{SA+15}], v[{KB_[0]}:{KB_[0]+3}], v[{QA}:{QA+3}], 0",
        f"{MF} v[{SB}:{SB+15}], v[{KB_[0]}:{KB_[0]+3}], v[{QB}:{QB+3}], 0",
        f"{MF} v[{CA}:{CA+15}], v[{KB_[1]}:{KB_[1]+3}], v[{QA}:{QA+3}], 0",
        f"{MF} v[{CB}:{CB+15}], v[{KB_[1]}:{KB_[1]+3}], v[{QB}:{QB+3}], 0")
    k.e("s_nop 9")
    for x in range(2):
        k.e(f"v_max3_f32 v{10+x}, v{S[x]}, v{S[x]+1}, v{S[x]+2}")
        for i in range(3, 15, 2): k.e(f"v_max3_f32 v{10+x}, v{S[x]+i}, v{S[x]+i+1}, v{10+x}")
        k.e(f"v_max_f32 v{10+x}, v{S[x]+15}, v{10+x}")
    k.e("s_nop 4")
    for x in range(2):
        for i in range(0, 16, 2): k.e(f"v_max3_f32 v{10+x}, v{C[x]+i}, v{C[x]+i+1}, v{10+x}")
    k.e("v_mov_b32 v12, v10", "v_mov_b32 v13, v11", "s_nop 1", "v_permlane32_swap_b32 v10, v12", "v_permlane32_swap_b32 v11, v13", "s_nop 1",
        "v_max_f32 v10, v10, v12", "v_max_f32 v11, v11, v13")
    k.e(f"v_sub_f32 v10, 0x{f2u(-bias):08x}, v10", f"v_sub_f32 v11, 0x{f2u(-bias):08x}, v11")
    for i in range(16): k.e(f"v_mov_b32 v{CA+i}, v10", f"v_mov_b32 v{CB+i}, v11")
    k.e("s_nop 1")
    k.e(f"{MF} v[{SA}:{SA+15}], v[{KB_[0]}:{KB_[0]+3}], v[{QA}:{QA+3}], v[{CA}:{CA+15}]")
    k.e("s_nop 11")

    def valu_seq(x):
        s, p = S[x], P[x]
        out = []
        for i in range(8):
            out.append(f"v_exp_f32 v{s+2*i}, v{s+2*i}"); out.append(f"v_exp_f32 v{s+2*i+1}, v{s+2*i+1}")
            if i >= 1: out.append(f"v_cvt_pk_bf16_f32 v{p+i-1}, v{s+2*i-2}, v{s+2*i-1}")
        out.append(f"v_cvt_pk_bf16_f32 v{p+7}, v{s+14}, v{s+15}")
        return out
    def phase(mf3, x, slots):
        va = valu_seq(x)
        def put(j):
            if mf3[j]: k.e(mf3[j])
            for t in slots[j]: k.e(t)
        put(0)
        for i, t in enumerate(va):
            k.e(t)
            if i == 5: put(1)
            if i == 13: put(2)
    def pvs(x, vb):
        return [f"{MF} v[{O[x]}:{O[x]+15}], v[{vb}:{vb+3}], v[{P[x]}:{P[x]+3}], v[{O[x]}:{O[x]+15}]",
                f"{MF} v[{O[x]}:{O[x]+15}], v[{vb+4}:{vb+7}], v[{P[x]+4}:{P[x]+7}], v[{O[x]}:{O[x]+15}]"]
    def koff(c4, kk):
        n = c4*4 + kk
        return ((n // 4) % 4)*SLOT + (n % 4)*3072
    def block(c4, kk, kblk_left, sync, do_dma, extra=()):
        par = kk & 1
        vo = koff(c4, kk) + 1024
        sA = [[f"ds_read_b128 v[{VB_[par]}:{VB_[par]+3}], v2 offset:{vo}"],
              [f"ds_read_b128 v[{VB_[par]+4}:{VB_[par]+7}], v2 offset:{vo+1024}"],
              ["s_waitcnt lgkmcnt(1)"]]
        if sync is not None: sA[2] = [f"s_waitcnt vmcnt({sync}) lgkmcnt(1)", "s_barrier"]
        sA[1] = sA[1] + list(extra)
        pv = pvs(1, VB_[par ^ 1])
        phase([f"{MF} v[{SB}:{SB+15}], v[{KB_[par]}:{KB_[par]+3}], v[{QB}:{QB+3}], v[{CB}:{CB+15}]", pv[0], pv[1]], 0, sA)
        fm = None if kblk_left < 1 else f"{MF} v[{SA}:{SA+15}], v[{KB_[par^1]}:{KB_[par^1]+3}], v[{QA}:{QA+3}], v[{CA}:{CA+15}]"
        sB = [[], [], []]
        if kblk_left >= 2:
            sB[0] = [f"ds_read_b128 v[{KB_[par]}:{KB_[par]+3}], v2 offset:{koff(c4, kk + 2)}"]
            sB[1] = ["s_waitcnt lgkmcnt(1)"]
        else:
            sB[0] = ["s_waitcnt lgkmcnt(0)"]
        if do_dma:
            it = [t for _, t in chunk_dma_items((c4 + 3) % 4)]
            sB[1] = sB[1] + it[0:3]
            sB[2] = it[3:]
        pv = pvs(0, VB_[par])
        phase([fm, pv[0], pv[1]], 1, sB)
    k.vm = []; k.lg = []
    k.stamp(1)
    k.e("s_mov_b32 s36, 3")
    L = f"L_{tag}_loop"
    k.label(L)
    for c4 in range(4):
        for kk in range(4):
            block(c4, kk, 99, 3 if kk == 2 else None, kk == 2)
    k.e("s_sub_u32 s36, s36, 1", "s_cmp_lg_u32 s36, 0", f"s_cbranch_scc1 {L}")
    for c4 in range(4):
        for kk in range(4):
            sync = None; dm = False
            if kk == 2:
                if c4 == 0: sync, dm = 3, True
                elif c4 == 1: sync = 3
                elif c4 == 2: sync = 0
            left = (3 - c4)*4 + (3 - kk)
            ex = ()
            if prehint and left + 1 == prehint:
                assert c4 >= 2
                ex = ("s_mov_b64 exec, 1", f"buffer_store_dwordx2 v[26:27], v24, s[{SWS}:{SWS+3}], 0 offen sc1", "s_mov_b64 exec, -1")
            block(c4, kk, left, sync, dm, ex)
    k.vm = []
    k.stamp(2)
    k.e("s_nop 1")
    for t in pvs(1, VB_[1]): k.e(t)
    k.e("s_nop 11")
    for x in range(2):
        k.e(f"v_add_f32 v{10+x}, v{O[x]}, v{O[x]+8}")
        for i in range(1, 8): k.e(f"v_add_f32 v{10+x}, v{10+x}, v{O[x]+i}")
    k.e("v_add_f32 v10, v10, v11", "s_movk_i32 s33, 0x207", "v_cmp_class_f32 vcc, v10, s33")
    if force_fb: k.e("s_mov_b64 vcc, -1")
    k.e("s_nop 4", f"s_cbranch_vccnz L_{tag}_fb")
    k.label(f"L_{tag}_fin")
    for x in range(2): k.e(f"v_rcp_f32 v{10+x}, v{O[x]+8}")
    k.e("s_nop 0")
    k.e("s_lshl_b32 s36, s26, 3", "s_lshl_b32 s37, s24, 1", "s_add_u32 s36, s36, s37", "s_lshl_b32 s36, s36, 5", "s_add_u32 s36, s36, s25",
        "s_lshl_b32 s36, s36, 10", f"s_add_u32 s36, s36, 0x{WS_OF:x}")
    for x in range(2):
        for i in range(8): k.e(f"v_mul_f32 v{O[x]+i}, v{O[x]+i}, v{10+x}")
        for i in range(4): k.e(f"v_cvt_pk_bf16_f32 v{P[x]+i}, v{O[x]+2*i}, v{O[x]+2*i+1}")
        k.vmem(f"buffer_store_dwordx4 v[{P[x]}:{P[x]+3}], v2, s[{SWS}:{SWS+3}], s36 offen {sc1 if st_sc1 is None else st_sc1}", "st")
        if x == 0: k.e("s_add_u32 s36, s36, 32768")
    if oflag == "ep":
        k.e("s_lshl_b32 s36, s26, 2", "s_add_u32 s36, s36, s24", "s_lshl_b32 s36, s36, 8", "s_lshl_b32 s37, s25, 3", "s_add_u32 s36, s36, s37",
            f"s_add_u32 s36, s36, 0x{FLG_O8:x}", "v_mov_b32 v12, s36", f"v_mov_b32 v14, s{SEP}", f"v_mov_b32 v15, s{SEP+1}", "s_mov_b64 exec, 1")
        k.vmem(f"buffer_store_dwordx2 v[14:15], v12, s[{SWS}:{SWS+3}], 0 offen sc1", "st")
        k.e("s_mov_b64 exec, -1")
    elif oflag:
        k.e("s_lshl_b32 s36, s26, 2", "s_add_u32 s36, s36, s24", "s_lshl_b32 s36, s36, 7", "s_lshl_b32 s37, s25, 2", "s_add_u32 s36, s36, s37",
            f"s_add_u32 s36, s36, 0x{FLG_O:x}", "v_mov_b32 v12, s36", "v_mov_b32 v13, 1", "s_mov_b64 exec, 1")
        k.vmem(f"buffer_store_dword v13, v12, s[{SWS}:{SWS+3}], 0 offen sc1", "st")
        k.e("s_mov_b64 exec, -1")
    k.fb_code = lambda: e2_fallback(k, SWS, sc1, tag, S, O, C, P, Q, KB_, VB_)

def e2_fallback(k, SWS, sc1, tag, S, O, C, P, Q, KB_, VB_):
    k.label(f"L_{tag}_fb")
    KR = KB_[0]; VR = VB_[0]
    k.e("s_lshl_b32 s33, s25, 16", f"s_add_u32 s30, s33, 0x{WS_KF:x}", f"s_add_u32 s31, s33, 0x{WS_VF:x}")
    k.e("v_mov_b32 v10, 0xff800000", "v_mov_b32 v11, 0xff800000", "s_mov_b32 s36, 64", "s_mov_b32 s33, s30")
    k.label(f"L_{tag}_fb1")
    k.e(f"buffer_load_dwordx4 v[{KR}:{KR+3}], v2, s[{SWS}:{SWS+3}], s33 offen {sc1}", "s_waitcnt vmcnt(0)")
    for x in range(2): k.e(f"{MF} v[{S[x]}:{S[x]+15}], v[{KR}:{KR+3}], v[{Q[x]}:{Q[x]+3}], 0")
    k.e("s_nop 11")
    for x in range(2):
        for i in range(0, 16, 2): k.e(f"v_max3_f32 v{10+x}, v{S[x]+i}, v{S[x]+i+1}, v{10+x}")
    k.e("s_add_u32 s33, s33, 1024", "s_sub_u32 s36, s36, 1", "s_cmp_lg_u32 s36, 0", f"s_cbranch_scc1 L_{tag}_fb1")
    k.e("v_mov_b32 v12, v10", "v_mov_b32 v13, v11", "s_nop 1", "v_permlane32_swap_b32 v10, v12", "v_permlane32_swap_b32 v11, v13", "s_nop 1",
        "v_max_f32 v10, v10, v12", "v_max_f32 v11, v11, v13", "v_sub_f32 v10, 0, v10", "v_sub_f32 v11, 0, v11")
    for i in range(16):
        k.e(f"v_mov_b32 v{C[0]+i}, v10", f"v_mov_b32 v{C[1]+i}, v11", f"v_mov_b32 v{O[0]+i}, 0", f"v_mov_b32 v{O[1]+i}, 0")
    for i in range(8): k.e(f"v_mov_b32 v{VR+i}, 0x3f803f80")
    k.e("s_mov_b32 s36, 64")
    k.label(f"L_{tag}_fb2")
    k.e(f"buffer_load_dwordx4 v[{KR}:{KR+3}], v2, s[{SWS}:{SWS+3}], s30 offen {sc1}", "s_mov_b64 exec, s[28:29]",
        f"buffer_load_dwordx4 v[{VR}:{VR+3}], v3, s[{SWS}:{SWS+3}], s31 offen {sc1}",
        f"buffer_load_dwordx4 v[{VR+4}:{VR+7}], v3, s[{SWS}:{SWS+3}], s31 offen offset:512 {sc1}",
        "s_mov_b64 exec, -1", "s_waitcnt vmcnt(0)")
    for x in range(2): k.e(f"{MF} v[{S[x]}:{S[x]+15}], v[{KR}:{KR+3}], v[{Q[x]}:{Q[x]+3}], v[{C[x]}:{C[x]+15}]")
    k.e("s_nop 11")
    for x in range(2):
        for i in range(16): k.e(f"v_exp_f32 v{S[x]+i}, v{S[x]+i}")
        k.e("s_nop 0")
        for i in range(8): k.e(f"v_cvt_pk_bf16_f32 v{P[x]+i}, v{S[x]+2*i}, v{S[x]+2*i+1}")
    k.e("s_nop 1")
    for x in range(2):
        k.e(f"{MF} v[{O[x]}:{O[x]+15}], v[{VR}:{VR+3}], v[{P[x]}:{P[x]+3}], v[{O[x]}:{O[x]+15}]",
            f"{MF} v[{O[x]}:{O[x]+15}], v[{VR+4}:{VR+7}], v[{P[x]+4}:{P[x]+7}], v[{O[x]}:{O[x]+15}]")
    k.e("s_add_u32 s30, s30, 1024", "s_add_u32 s31, s31, 1024", "s_sub_u32 s36, s36, 1", "s_cmp_lg_u32 s36, 0", f"s_cbranch_scc1 L_{tag}_fb2")
    k.e("s_nop 11", f"s_branch L_{tag}_fin")

def k2_kernel(**kw):
    k = KV("k2_attn_kernel", nvgpr=256)
    k.e("s_cmp_ge_u32 s2, 256", f"s_cbranch_scc1 L_end_{k.name}")
    fx = srd(k, 20, 72, WS_SIZE)
    k.e("s_waitcnt lgkmcnt(0)"); k.e(*fx)
    k.e("s_and_b32 s3, s2, 7", "s_lshr_b32 s4, s2, 3", "s_and_b32 s5, s4, 3", "s_lshl_b32 s25, s3, 2", "s_add_u32 s25, s25, s5", "s_lshr_b32 s26, s4, 2")
    k.stamp(0)
    e2_body(k, **kw)
    k.wait_vm_all()
    k.stamp(3); k.stamp_out(4, 0x20000); k.wait_vm_all()
    k.label(f"L_end_{k.name}")
    k.e("s_endpgm")
    k.fb_code()
    return k

def e4_body(k, SD=12, SO=16, SWS=20, SX=8, SOUT=4, sc1="", tag="e4"):
    DEPTH = 8
    ACC = 64
    HR = 128
    WR = 16
    k.e("v_and_b32 v1, 63, v0", "v_lshrrev_b32 v10, 6, v0", "s_nop 0", "v_readfirstlane_b32 s24, v10")
    k.e("v_lshlrev_b32 v2, 4, v1")
    k.e("v_lshrrev_b32 v3, 3, v1", "v_lshlrev_b32 v3, 10, v3", "v_bfe_u32 v4, v1, 4, 1", "v_lshlrev_b32 v4, 2, v4", "v_and_b32 v5, 7, v1",
        "v_xor_b32 v4, v4, v5", "v_lshl_add_u32 v3, v4, 4, v3", "s_lshl_b32 s27, s26, 7", "v_add_u32 v3, s27, v3")
    k.e("v_lshrrev_b32 v4, 5, v1", "v_bfe_u32 v5, v1, 2, 2", "v_lshl_add_u32 v4, v4, 2, v5", "v_lshlrev_b32 v6, 7, v4",
        "v_bfe_u32 v4, v1, 4, 1", "v_lshlrev_b32 v4, 1, v4", "v_bfe_u32 v5, v1, 1, 1", "v_add_u32 v4, v4, v5",
        "v_bfe_u32 v5, v1, 3, 1", "v_lshlrev_b32 v5, 2, v5", "v_xor_b32 v4, v4, v5", "v_lshl_add_u32 v6, v4, 4, v6",
        "v_and_b32 v5, 1, v1", "v_lshl_add_u32 v6, v5, 3, v6", "s_lshl_b32 s28, s24, 14", "v_add_u32 v6, s28, v6", "v_xor_b32 v7, 64, v6")
    k.e("s_mul_i32 s29, s24, 458752",
        "s_mul_i32 s30, s25, 224", "s_mul_i32 s31, s24, 28", "s_add_u32 s30, s30, s31", "s_lshl_b32 s30, s30, 10", f"s_add_u32 s30, s30, 0x{WS_HF:x}",
        "s_lshl_b32 s34, s24, 17",
        "s_lshl_b32 s35, s25, 6", "s_lshl_b32 s31, s24, 3", "s_add_u32 s35, s35, s31", "s_lshl_b32 s35, s35, 10", f"s_add_u32 s35, s35, 0x{WS_OF:x}")
    NS = 36
    def issue(s):
        slot = s % DEPTH
        if s < 28: sr, sb, kk, hb, hstride = SD, 29, s, 30, 112*1024
        else: sr, sb, kk, hb, hstride = SO, 34, s - 28, 35, 32*1024
        for i in range(2):
            k.e(f"s_add_u32 m0, s28, {slot*2048 + i*1024}", f"s_add_u32 s33, s{sb}, {kk*16384 + i*8192}")
            k.vmem(f"buffer_load_dwordx4 v3, s[{sr}:{sr+3}], s33 offen lds", ("W", s))
        for tb in range(2):
            d = HR + slot*8 + 4*tb
            k.e(f"s_add_u32 s33, s{hb}, {kk*1024 + tb*hstride}")
            k.vmem(f"buffer_load_dwordx4 v[{d}:{d+3}], v2, s[{SWS}:{SWS+3}], s33 offen {sc1}", ("H", s))
    def reads(s):
        b = WR + 8*(s & 1); o = (s % DEPTH)*2048
        for cb2 in range(2):
            av = 6 + cb2
            k.ds(f"ds_read_b64_tr_b16 v[{b+4*cb2}:{b+4*cb2+1}], v{av} offset:{o}", ("r", s))
            k.ds(f"ds_read_b64_tr_b16 v[{b+4*cb2+2}:{b+4*cb2+3}], v{av} offset:{o+1024}", ("r", s))
    for s in range(DEPTH): issue(s)
    k.e("v_lshrrev_b32 v8, 3, v0", "s_lshl_b32 s31, s25, 6", "v_add_u32 v8, s31, v8", "v_lshlrev_b32 v8, 10, v8",
        "v_and_b32 v9, 7, v0", "v_lshl_add_u32 v8, v9, 4, v8", "v_add_u32 v8, s27, v8")
    k.vmem(f"buffer_load_dwordx4 v[32:35], v8, s[{SX}:{SX+3}], 0 offen", "x")
    k.e("s_mov_b32 s31, 32768")
    k.vmem(f"buffer_load_dwordx4 v[36:39], v8, s[{SX}:{SX+3}], s31 offen", "x")
    for i in range(64): k.e(f"v_mov_b32 v{ACC+i}, 0")
    k.stamp(1)
    k.wait_vm(("W", 0)); reads(0)
    for s in range(NS):
        if s + 1 < NS:
            k.wait_vm(("W", s + 1)); reads(s + 1)
        k.wait_vm(("H", s)); k.wait_lg(("r", s))
        b = WR + 8*(s & 1); h = HR + (s % DEPTH)*8
        for cb2 in range(2):
            for tb in range(2):
                a = ACC + 16*(cb2*2 + tb)
                k.e(f"{MF} v[{a}:{a+15}], v[{b+4*cb2}:{b+4*cb2+3}], v[{h+4*tb}:{h+4*tb+3}], v[{a}:{a+15}]")
        if s + DEPTH < NS: issue(s + DEPTH)
    k.stamp(2)
    k.e("s_nop 7", "s_barrier")
    RS = 272
    k.e("v_and_b32 v4, 31, v1", f"v_mul_u32_u24 v4, {RS}, v4", "v_lshrrev_b32 v5, 5, v1", "v_lshl_add_u32 v4, v5, 4, v4",
        f"s_mul_i32 s31, s24, {64*RS}", "v_add_u32 v4, s31, v4", "s_nop 3")
    for cb2 in range(2):
        for tb in range(2):
            a = ACC + 16*(cb2*2 + tb)
            for g in range(4):
                k.ds(f"ds_write_b128 v4, v[{a+4*g}:{a+4*g+3}] offset:{tb*32*RS + cb2*128 + g*32}")
    k.wait_lg_all()
    k.e("s_barrier")
    k.e("v_lshrrev_b32 v4, 3, v0", f"v_mul_u32_u24 v4, {RS}, v4", "v_and_b32 v5, 7, v0", "v_lshl_add_u32 v4, v5, 5, v4")
    for half in range(2):
        for w in range(4):
            d = 64 + half*32 + w*8
            for j in range(2):
                k.ds(f"ds_read_b128 v[{d+4*j}:{d+4*j+3}], v4 offset:{w*64*RS + half*32*RS + j*16}", ("rd", half))
    k.wait_vm("x")
    for half in range(2):
        k.wait_lg(("rd", half))
        d = 64 + half*32
        for i in range(8):
            k.e(f"v_add_f32 v{d+i}, v{d+i}, v{d+8+i}", f"v_add_f32 v{d+16+i}, v{d+16+i}, v{d+24+i}")
        for i in range(4):
            xr = 32 + 4*half + i
            k.e(f"v_lshlrev_b32 v{d+8+2*i}, 16, v{xr}", f"v_and_b32 v{d+9+2*i}, 0xffff0000, v{xr}")
        for i in range(8): k.e(f"v_add_f32 v{d+i}, v{d+i}, v{d+16+i}")
        for i in range(8): k.e(f"v_add_f32 v{d+i}, v{d+i}, v{d+8+i}")
        for i in range(4): k.e(f"v_cvt_pk_bf16_f32 v{40+4*half+i}, v{d+2*i}, v{d+2*i+1}")
        if half == 0: k.vmem(f"buffer_store_dwordx4 v[40:43], v8, s[{SOUT}:{SOUT+3}], 0 offen", "st")
        else: k.vmem(f"buffer_store_dwordx4 v[44:47], v8, s[{SOUT}:{SOUT+3}], s31 offen", "st") if False else None
    k.e("s_mov_b32 s31, 32768")
    k.vmem(f"buffer_store_dwordx4 v[44:47], v8, s[{SOUT}:{SOUT+3}], s31 offen", "st")

def k3_kernel():
    k = KV("k3_out_kernel", nvgpr=256)
    k.e("s_cmp_ge_u32 s2, 256", f"s_cbranch_scc1 L_end_{k.name}")
    fx = srd(k, 8, 0, SZ_X) + srd(k, 20, 72, WS_SIZE) + srd(k, 12, 48, SZ_WD) + srd(k, 16, 16, SZ_WO) + srd(k, 4, 56, SZ_X)
    k.e("s_waitcnt lgkmcnt(0)"); k.e(*fx)
    k.e("s_and_b32 s3, s2, 7", "s_lshr_b32 s27, s2, 3", "s_and_b32 s28, s27, 3", "s_lshl_b32 s25, s3, 2", "s_add_u32 s25, s25, s28", "s_lshr_b32 s26, s27, 2")
    k.stamp(0)
    e4_body(k)
    k.wait_vm_all()
    k.stamp(3); k.stamp_out(4, 0x40000); k.wait_vm_all()
    k.label(f"L_end_{k.name}")
    k.e("s_endpgm")
    return k

def stats_role(k, sc1="sc1"):
    k.e("s_cmp_ge_u32 s3, 128", "s_cbranch_scc1 L_st_col")
    row_job(k, 3, 8, 20, sc1=sc1, pre_store=lambda: epoch_issue(k, 74))
    k.wait_vm_all()
    epoch_check(k, 74)
    k.e("s_lshl_b32 s48, s3, 3", f"s_add_u32 s48, s48, 0x{FLG_ROW:x}")
    publish(k, 48)
    k.e("s_branch L_st_done")
    k.label("L_st_col")
    k.vm = []; k.lg = []
    k.e("s_sub_u32 s3, s3, 128")
    k.label("L_st_col2")
    k.e("s_mov_b32 s12, s28", "s_mov_b32 s13, s29", f"s_mov_b32 s14, {SZ_WQKV}", "s_mov_b32 s15, 0x00020000",
        "s_movk_i32 s16, 3072", "s_lshl_b32 s17, s3, 6",
        "s_bfe_u32 s48, s3, 0x30001", "s_lshl_b32 s48, s48, 7", "s_lshr_b32 s49, s3, 4", "s_lshl_b32 s49, s49, 4", "s_add_u32 s48, s48, s49",
        "s_and_b32 s49, s3, 1", "s_lshl_b32 s49, s49, 3", "s_add_u32 s48, s48, s49", f"s_add_u32 s48, s48, 0x{FLG_COLQ:x}",
        "s_cmp_lt_u32 s3, 48", "s_cbranch_scc1 L_st_go",
        "s_mov_b32 s12, s30", "s_mov_b32 s13, s31", f"s_mov_b32 s14, {SZ_WG}", "s_movk_i32 s16, 3584",
        "s_sub_u32 s50, s3, 48", "s_lshl_b32 s17, s50, 6", f"s_mov_b32 s51, 0x{FLG_COLG:x}",
        "s_cmp_lt_u32 s3, 104", "s_cbranch_scc1 L_st_gu",
        "s_mov_b32 s12, s32", "s_mov_b32 s13, s33", "s_sub_u32 s50, s3, 104", "s_lshl_b32 s17, s50, 6", f"s_mov_b32 s51, 0x{FLG_COLG + 32:x}")
    k.label("L_st_gu")
    k.e("s_lshr_b32 s48, s50, 2", "s_lshl_b32 s48, s48, 7", "s_and_b32 s49, s50, 3", "s_lshl_b32 s49, s49, 3", "s_add_u32 s48, s48, s49", "s_add_u32 s48, s48, s51")
    k.label("L_st_go")
    col_job(k, 3, 12, 16, 17, 20, sc1=sc1, pre_store=lambda: epoch_issue(k, 60))
    k.wait_vm_all()
    epoch_check(k, 60)
    publish(k, 48)
    k.e("s_cmp_lt_u32 s3, 96", "s_cbranch_scc1 L_st_done", "s_cmp_ge_u32 s3, 128", "s_cbranch_scc1 L_st_done",
        "s_add_u32 s3, s3, 32", "s_branch L_st_col2")
    k.label("L_st_done")

def kA_kernel(ue=4, up=7, uc=10, name="ka_qkv_kernel"):
    k = KV(name, nvgpr=256)
    k.e("s_cmp_ge_u32 s2, 512", f"s_cbranch_scc1 L_end_{k.name}")
    fx = srd(k, 8, 0, SZ_X) + srd(k, 20, 72, WS_SIZE)
    load_dbg(k)
    wave_id(k)
    k.e("s_cmp_ge_u32 s2, 256", "s_cbranch_scc1 L_ka_g")
    fx1 = srd(k, 12, 8, SZ_WQKV)
    k.e("s_waitcnt lgkmcnt(0)"); k.e(*(fx + fx1))
    epoch_make(k)
    k.e("s_and_b32 s26, s2, 7", "s_lshr_b32 s25, s2, 3")
    k.stamp(0)
    e1_body(k, stats_sync=(ue, up, uc))
    k.wait_vm_all()
    k.stamp(3); k.stamp_out(4, 0); k.wait_vm_all()
    k.e("s_endpgm")
    k.label("L_ka_g")
    k.vm = []; k.lg = []
    k.e("s_load_dwordx2 s[28:29], s[0:1], 8", "s_load_dwordx2 s[30:31], s[0:1], 32", "s_load_dwordx2 s[32:33], s[0:1], 40")
    k.e("s_waitcnt lgkmcnt(0)"); k.e(*fx)
    k.e("s_sub_u32 s3, s2, 256")
    k.stamp(0); k.stamp(1); k.stamp(2)
    stats_role(k)
    k.wait_vm_all()
    k.stamp(3); k.stamp_out(4, 0); k.wait_vm_all()
    k.label(f"L_end_{k.name}")
    k.e("s_endpgm")
    k.emit_tails()
    return k

def prefetch_role(k, jobs, s_idx, nwg):
    for (sr, nb) in jobs:
        per = nb // nwg
        assert per % 4096 == 0 or per % 1024 == 0
        k.e(f"s_mul_i32 s40, s{s_idx}, {per}", "v_lshlrev_b32 v1, 4, v0", "v_add_u32 v1, s40, v1")
        n = per // 4096
        rem = per % 4096
        k.e("s_mov_b32 s41, 0")
        for i in range(n):
            k.vmem(f"buffer_load_dwordx4 v[{4+4*(i%32)}:{7+4*(i%32)}], v1, s[{sr}:{sr+3}], s41 offen", "pf")
            k.e("s_add_u32 s41, s41, 4096")
        if rem:
            k.e(f"v_cmp_gt_u32 vcc, {rem//16}, v0" if rem//16 <= 64 else f"s_movk_i32 s42, {rem//16}\n v_cmp_gt_u32 vcc, s42, v0", "s_and_saveexec_b64 s[44:45], vcc")
            k.vmem(f"buffer_load_dwordx4 v[{4+4*(n%32)}:{7+4*(n%32)}], v1, s[{sr}:{sr+3}], s41 offen", "pf")
            k.e("s_mov_b64 exec, s[44:45]")
    k.wait_vm_all()

def kB_kernel(name="kb_attn_glu_kernel", prio_a=None, prio_g=None, **kw):
    k = KV(name, nvgpr=256)
    k.e("s_cmp_ge_u32 s2, 512", f"s_cbranch_scc1 L_end_{k.name}")
    fx = srd(k, 20, 72, WS_SIZE)
    k.e("s_cmp_ge_u32 s2, 256", "s_cbranch_scc1 L_kb_g")
    k.e("s_waitcnt lgkmcnt(0)"); k.e(*fx)
    if prio_a is not None: k.e(f"s_setprio {prio_a}")
    k.e("s_and_b32 s3, s2, 7", "s_lshr_b32 s4, s2, 3", "s_and_b32 s5, s4, 3", "s_lshl_b32 s25, s3, 2", "s_add_u32 s25, s25, s5", "s_lshr_b32 s26, s4, 2")
    k.stamp(0)
    e2_body(k, **kw)
    k.wait_vm_all()
    k.stamp(3); k.stamp_out(4, 0x20000); k.wait_vm_all()
    k.e("s_endpgm")
    fb = k.fb_code
    k.label("L_kb_g")
    k.vm = []; k.lg = []
    k.e("s_cmp_ge_u32 s2, 480", "s_cbranch_scc1 L_kb_pf")
    fx3 = srd(k, 8, 0, SZ_X) + srd(k, 12, 32, SZ_WG) + srd(k, 16, 40, SZ_WG)
    k.e("s_waitcnt lgkmcnt(0)"); k.e(*(fx + fx3))
    if prio_g is not None: k.e(f"s_setprio {prio_g}")
    k.e("s_sub_u32 s3, s2, 256", "s_and_b32 s4, s3, 7", "s_lshr_b32 s5, s3, 3", "s_mul_i32 s4, s4, 28", "s_add_u32 s4, s4, s5",
        "s_lshr_b32 s26, s4, 4", "s_and_b32 s25, s4, 15")
    k.stamp(0)
    e3_body(k)
    k.wait_vm_all()
    k.stamp(3); k.stamp_out(4, 0x20000); k.wait_vm_all()
    k.e("s_endpgm")
    k.label("L_kb_pf")
    k.vm = []; k.lg = []
    fxp = srd(k, 12, 48, SZ_WD) + srd(k, 16, 16, SZ_WO)
    k.e("s_waitcnt lgkmcnt(0)"); k.e(*fxp)
    k.e("s_sub_u32 s3, s2, 480")
    prefetch_role(k, [(12, SZ_WD), (16, SZ_WO)], 3, 32)
    k.label(f"L_end_{k.name}")
    k.e("s_endpgm")
    fb()
    k.emit_tails()
    return k

WS_XN = 0x1100000
WS_SIZE2 = 0x1300000
def e1n_body(k, SX=8, SW=12, SWS=20, sc1="", NS=7, fine=False, prep=False, l2warm=0, wtouch=None):
    WB = 65536
    assert WB + NS*12288 <= 163840
    k.e("v_and_b32 v1, 63, v0", "v_lshrrev_b32 v10, 6, v0", "s_nop 0", "v_readfirstlane_b32 s24, v10")
    XR = 128
    k.e("v_lshrrev_b32 v13, 3, v1", "v_and_b32 v15, 7, v1", "v_lshlrev_b32 v7, 4, v15", "v_lshl_add_u32 v7, v13, 10, v7",
        "s_lshl_b32 s29, s25, 16", "s_lshl_b32 s30, s24, 14", "s_add_u32 s29, s29, s30", "s_add_u32 s30, s29, 8192")
    for g in range(2):
        for j in range(8):
            d = XR + 32*g + 4*j
            k.vmem(f"buffer_load_dwordx4 v[{d}:{d+3}], v7, s[{SX}:{SX+3}], s{29+g} offen offset:{128*j}", ("x", g))
    k.e("v_and_b32 v11, 31, v1", "v_lshrrev_b32 v12, 5, v1", "v_lshrrev_b32 v14, 4, v1")
    k.e("s_and_b32 s27, s24, 1", "s_lshr_b32 s28, s24, 1")
    k.e("v_and_b32 v14, 1, v14", "v_lshlrev_b32 v14, 2, v14", "v_xor_b32 v9, v15, v14", "v_lshlrev_b32 v9, 4, v9",
        "s_lshl_b32 s31, s24, 3", "v_add_u32 v16, s31, v13", "v_mul_u32_u24 v16, 3072, v16", "v_add_u32 v9, v9, v16",
        "s_lshl_b32 s31, s26, 7", "v_add_u32 v9, s31, v9")
    k.e("s_lshl_b32 s32, s24, 10", f"s_add_u32 s32, s32, {WB}")
    def wd(u):
        return [dma(SW, 9, 32, (u % NS)*12288 + p*4096, 33, u*32*3072, ("W", u), imm=1024*p) for p in range(3)]
    for u in range(NS - 1): emit_groups(k, wd(u))
    if l2warm:
        nrow = (16 - (NS - 1))*32
        per = nrow // 16
        k.e("s_and_b32 s34, s25, 3", "s_lshl_b32 s34, s34, 2", "s_add_u32 s34, s34, s24", f"s_mul_i32 s34, s34, {per*3072}",
            f"s_add_u32 s34, s34, {(NS-1)*32*3072}", f"s_mul_i32 s35, s24, {8*3072}", "s_sub_u32 s34, s34, s35",
            "s_lshl_b32 s35, s24, 10", f"s_add_u32 m0, s35, {WB + NS*12288}")
        for r0 in range(0, per, 8):
            part = r0 + 8 > per
            assert (not part) or per % 8 == 4
            if part: k.e("s_mov_b64 exec, 0xffffffff")
            for p in range(3):
                k.e(f"s_add_u32 s35, s34, {r0*3072 + 1024*p}")
                k.vmem(f"buffer_load_dwordx4 v9, s[{SW}:{SW+3}], s35 offen lds", "warm")
            if part: k.e("s_mov_b64 exec, -1")
    if prep:
        k.e("v_mov_b32 v40, -1", "v_mov_b32 v41, -1", "v_mov_b32 v42, -1", "v_mov_b32 v43, -1", "v_lshlrev_b32 v48, 4, v0",
            "s_lshl_b32 s34, s2, 13", f"s_add_u32 s34, s34, 0x{WS_OF:x}")
        k.vmem(f"buffer_store_dwordx4 v[40:43], v48, s[{SWS}:{SWS+3}], s34 offen", "prep")
        k.e("s_add_u32 s34, s34, 4096")
        k.vmem(f"buffer_store_dwordx4 v[40:43], v48, s[{SWS}:{SWS+3}], s34 offen", "prep")
        Lp = k.newlabel("prep")
        k.e("v_mov_b32 v44, 0", "v_mov_b32 v45, 0", "v_mov_b32 v46, 0", "v_mov_b32 v47, 0", f"s_mov_b32 s34, 0x{FLG_H:x}",
            "s_lshl_b32 s35, s2, 12", "s_add_u32 s34, s34, s35", "s_cmp_ge_u32 s2, 2", f"s_cbranch_scc1 {Lp}")
        k.vmem(f"buffer_store_dwordx4 v[44:47], v48, s[{SWS}:{SWS+3}], s34 offen", "prep", opt=True)
        k.label(Lp)
    k.e("v_lshrrev_b32 v16, 1, v13", "v_xor_b32 v16, v15, v16", "v_lshlrev_b32 v16, 4, v16", "v_lshl_add_u32 v16, v13, 7, v16",
        "s_lshl_b32 s31, s24, 11", "v_add_u32 v16, s31, v16", "v_xor_b32 v17, 64, v16", "v_add_u32 v17, 1024, v17")
    k.e("s_lshl_b32 s36, s27, 5", "v_add_u32 v18, s36, v11", "v_bfe_u32 v19, v18, 1, 3", "v_xor_b32 v19, v19, v12",
        "v_lshlrev_b32 v19, 4, v19", "v_lshl_add_u32 v2, v18, 7, v19",
        "v_xor_b32 v3, 32, v2", "v_xor_b32 v4, 64, v2", "v_xor_b32 v5, 96, v2")
    k.e("v_bfe_u32 v18, v1, 2, 2", "v_lshl_add_u32 v18, v12, 3, v18", "v_lshlrev_b32 v6, 7, v18",
        "v_bfe_u32 v18, v1, 4, 1", "v_lshlrev_b32 v18, 1, v18", "v_bfe_u32 v19, v1, 1, 1", "v_add_u32 v18, v18, v19",
        "s_lshl_b32 s36, s28, 2", "v_add_u32 v18, s36, v18", "v_bfe_u32 v19, v1, 3, 1", "v_lshlrev_b32 v19, 2, v19",
        "v_xor_b32 v18, v18, v19", "v_lshl_add_u32 v6, v18, 4, v6", "v_and_b32 v19, 1, v1", "v_lshl_add_u32 v6, v19, 3, v6",
        f"v_add_u32 v6, {WB}, v6", f"v_add_u32 v8, {5*12288}, v6")
    F = [64, 192]
    k.e("s_mov_b32 s42, 0x3f803f80", "s_mov_b32 s43, 0x00003f80", "s_mov_b32 s44, 0x3f800000")
    A = [20, 24]
    for g in range(2):
        k.wait_vm(("x", g))
        for i in range(32):
            c = f"v{A[g] + i % 4}" if i >= 4 else "0"
            k.e(f"v_dot2_f32_bf16 v{A[g] + i % 4}, v{XR + 32*g + i}, s42, {c}")
    if fine: k.stamp(1)
    k.e("s_nop 2")
    def red8(regs):
        for b in regs: k.e(f"v_add_f32 v{b}, v{b}, v{b+1}", f"v_add_f32 v{b+2}, v{b+2}, v{b+3}")
        for b in regs: k.e(f"v_add_f32 v{b}, v{b}, v{b+2}")
        k.e("s_nop 1")
        for mode in ("quad_perm:[1,0,3,2]", "quad_perm:[2,3,0,1]", "row_half_mirror"):
            for b in regs: k.e(f"v_add_f32_dpp v{b}, v{b}, v{b} {mode} row_mask:0xf bank_mask:0xf")
            k.e("s_nop 1")
    red8(A)
    for g in range(2): k.e(f"v_mul_f32 v{A[g]}, 0xbb000000, v{A[g]}")
    k.e("s_nop 0")
    for g in range(2):
        for i in range(32):
            k.e(f"v_dot2_f32_bf16 v{F[g] + 2*i}, v{XR + 32*g + i}, s43, v{A[g]}", f"v_dot2_f32_bf16 v{F[g] + 2*i + 1}, v{XR + 32*g + i}, s44, v{A[g]}")
    k.e("s_nop 2")
    B = [28, 32]
    for g in range(2):
        for i in range(32):
            a = B[g] + 2*(i % 2); d = F[g] + 2*i
            if i < 2: k.e(f"v_pk_mul_f32 v[{a}:{a+1}], v[{d}:{d+1}], v[{d}:{d+1}]")
            else: k.e(f"v_pk_fma_f32 v[{a}:{a+1}], v[{d}:{d+1}], v[{d}:{d+1}], v[{a}:{a+1}]")
    red8(B)
    k.e("v_mov_b32 v36, 0x3727c5ac", "v_mov_b32 v38, 0x3727c5ac")
    for g in range(2): k.e(f"v_fmac_f32 v{36+2*g}, 0x3b000000, v{B[g]}")
    for g in range(2): k.e(f"v_rsq_f32 v{36+2*g}, v{36+2*g}")
    k.e("s_nop 0")
    for g in range(2):
        for j in range(8):
            for i in range(4):
                d = F[g] + 2*(4*j + i)
                k.e(f"v_pk_mul_f32 v[{d}:{d+1}], v[{d}:{d+1}], v[{36+2*g}:{37+2*g}] op_sel_hi:[1,0]")
            for i in range(4):
                d = F[g] + 2*(4*j + i)
                k.e(f"v_cvt_pk_bf16_f32 v{XR + 32*g + 4*j + i}, v{d}, v{d+1}")
            k.ds(f"ds_write_b128 v{16+g}, v[{XR + 32*g + 4*j}:{XR + 32*g + 4*j + 3}] offset:{8192*j}")
    Ls = k.newlabel("xn"); L1 = k.newlabel("xn1")
    k.e("s_lshr_b32 s36, s26, 1", "s_cmp_lg_u32 s36, s24", f"s_cbranch_scc1 {Ls}",
        "s_lshl_b32 s36, s25, 16", "s_lshl_b32 s37, s26, 13", "s_add_u32 s36, s36, s37", f"s_add_u32 s36, s36, 0x{WS_XN:x}",
        "s_bitcmp1_b32 s26, 0", f"s_cbranch_scc1 {L1}")
    for g in range(2):
        if g == 1: k.label(L1)
        for j in range(8):
            d = XR + 32*g + 4*j
            k.vmem(f"buffer_store_dwordx4 v[{d}:{d+3}], v7, s[{SWS}:{SWS+3}], s36 offen offset:{128*j} {sc1}", "xn", opt=True)
        if g == 0: k.e(f"s_branch {Ls}")
    k.label(Ls)
    def fr(st): return 16 + 16*st + 24
    def reads(g, st):
        b = fr(st); u = g >> 1; v = g >> 2
        out = [(f"ds_read_b128 v[{b}:{b+3}], v{2 + (g & 3)} offset:{v*8192}", "X")]
        sl = u % NS
        av, so = (6, sl*12288) if sl < 5 else (8, (sl - 5)*12288)
        for p in range(3):
            o = so + p*4096 + (g & 1)*2048
            out.append((f"ds_read_b64_tr_b16 v[{b+4+4*p}:{b+5+4*p}], v{av} offset:{o}", f"W{p}"))
            out.append((f"ds_read_b64_tr_b16 v[{b+6+4*p}:{b+7+4*p}], v{av} offset:{o+512}", f"W{p}"))
        return out
    ACC = 80
    def mfmas(g, st):
        out = []
        b_x = fr(st); b_w = b_x + 4
        for p in range(3):
            a = ACC + 16*p
            w = f"v[{b_w+4*p}:{b_w+4*p+3}]"; x = f"v[{b_x}:{b_x+3}]"
            A_, B_ = (w, x) if p < 2 else (x, w)
            c = "0" if g == 0 else f"v[{a}:{a+15}]"
            out.append((f"{MF} v[{a}:{a+15}], {A_}, {B_}, {c}", ["X", f"W{p}"]))
        return out
    def dmas(u):
        return wd(u + NS - 1) if u + NS - 1 < 16 else []
    hooks = None
    if wtouch:
        def h_t():
            k.e("s_lshl_b32 s34, s2, 8", "v_add_u32 v72, s34, v0", "v_lshlrev_b32 v72, 7, v72", "s_lshl_b32 s35, s24, 10", f"s_add_u32 m0, s35, {WB + NS*12288}")
            start = 0
            for i, (sr, nb) in enumerate(wtouch):
                k.e(f"v_subrev_u32 v{73+i}, 0x{start:x}, v72")
                k.vmem(f"buffer_load_dword v{73+i}, s[{sr}:{sr+3}], 0 offen lds", "wt")
                start += nb
            assert start <= 65536*128
        hooks = {16 - NS: [h_t]}
    k.stamp(2 if fine else 1)
    gemm_loop(k, 16, mfmas, reads, dmas, lambda u: [("W", u)], hooks=hooks)
    if not fine: k.stamp(2)
    k.e("v_lshlrev_b32 v10, 4, v1",
        "s_lshl_b32 s36, s26, 2", "s_lshl_b32 s37, s28, 1", "s_add_u32 s36, s36, s37", "s_lshl_b32 s36, s36, 16",
        "s_lshl_b32 s37, s25, 1", "s_add_u32 s37, s37, s27", "s_lshl_b32 s37, s37, 10", "s_add_u32 s36, s36, s37")
    k.e("v_lshrrev_b32 v13, 4, v11", "v_lshlrev_b32 v13, 16, v13", "v_lshl_add_u32 v13, v12, 8, v13", "v_and_b32 v14, 15, v11",
        "v_lshl_add_u32 v13, v14, 4, v13", f"s_mov_b32 s38, 0x{f2u(0.25*LOG2E):08x}")
    k.e("s_nop 7")
    for p, base in enumerate((WS_QF, WS_KF)):
        a = ACC + 16*p
        if p == 0:
            for r in range(16): k.e(f"v_mul_f32 v{a+r}, s38, v{a+r}")
        for j in range(2):
            d = 16 + 8*p + 4*j
            for i in range(4): k.e(f"v_cvt_pk_bf16_f32 v{d+i}, v{a+8*j+2*i}, v{a+8*j+2*i+1}")
            k.e(f"s_add_u32 s37, s36, 0x{base + j*65536:x}")
            k.vmem(f"buffer_store_dwordx4 v[{d}:{d+3}], v10, s[{SWS}:{SWS+3}], s37 offen {sc1}", "st")
    a = ACC + 32
    k.e(f"s_add_u32 s37, s36, 0x{WS_VF:x}")
    for j in range(2):
        d = 32 + 4*j
        for i in range(4): k.e(f"v_cvt_pk_bf16_f32 v{d+i}, v{a+8*j+2*i}, v{a+8*j+2*i+1}")
        k.vmem(f"buffer_store_dwordx4 v[{d}:{d+3}], v13, s[{SWS}:{SWS+3}], s37 offen offset:{512*j} {sc1}", "st")

def kA2_kernel(name="ka_qkv_kernel", mapping=0, wtouch=False, **kw):
    k = KV(name, nvgpr=256)
    k.e("s_cmp_ge_u32 s2, 256", f"s_cbranch_scc1 L_end_{k.name}")
    fx = srd(k, 8, 0, SZ_X) + srd(k, 20, 72, WS_SIZE2) + srd(k, 12, 8, SZ_WQKV)
    if wtouch:
        fx += srd(k, 76, 32, SZ_WG) + srd(k, 80, 40, SZ_WG) + srd(k, 84, 48, SZ_WD) + srd(k, 88, 16, SZ_WO)
        kw["wtouch"] = [(76, SZ_WG), (80, SZ_WG), (84, SZ_WD), (88, SZ_WO)]
    k.e("s_waitcnt lgkmcnt(0)"); k.e(*fx)
    if mapping == 0:
        k.e("s_and_b32 s26, s2, 7", "s_lshr_b32 s25, s2, 3")
    elif mapping == 1:
        k.e("s_and_b32 s3, s2, 7", "s_lshr_b32 s4, s2, 3", "s_and_b32 s5, s4, 3", "s_lshl_b32 s25, s3, 2", "s_add_u32 s25, s25, s5", "s_lshr_b32 s26, s4, 2")
    elif mapping == 2:
        k.e("s_and_b32 s3, s2, 7", "s_lshr_b32 s4, s2, 3", "s_and_b32 s5, s3, 3", "s_lshl_b32 s26, s5, 1", "s_and_b32 s5, s4, 1", "s_add_u32 s26, s26, s5",
            "s_lshr_b32 s25, s3, 2", "s_lshl_b32 s25, s25, 4", "s_lshr_b32 s5, s4, 1", "s_add_u32 s25, s25, s5")
    elif mapping == 3:
        k.e("s_and_b32 s3, s2, 7", "s_lshr_b32 s4, s2, 3", "s_and_b32 s5, s3, 1", "s_lshl_b32 s26, s5, 2", "s_and_b32 s5, s4, 3", "s_add_u32 s26, s26, s5",
            "s_lshr_b32 s25, s3, 1", "s_lshl_b32 s25, s25, 3", "s_lshr_b32 s5, s4, 2", "s_add_u32 s25, s25, s5")
    k.stamp(0)
    e1n_body(k, **kw)
    k.wait_vm_all()
    k.stamp(3); k.stamp_out(4, 0); k.wait_vm_all()
    k.label(f"L_end_{k.name}")
    k.e("s_endpgm")
    return k


def kB2_kernel(name="kb_attn_glu_kernel", prio_a=None, prio_g=None, epi_prio=None, prefetch=True, **kw):
    k = KV(name, nvgpr=256)
    k.e("s_cmp_ge_u32 s2, 512", f"s_cbranch_scc1 L_end_{k.name}")
    fx = srd(k, 20, 72, WS_SIZE2)
    k.e("s_cmp_ge_u32 s2, 256", "s_cbranch_scc1 L_kb_g")
    k.e("s_waitcnt lgkmcnt(0)"); k.e(*fx)
    if prio_a is not None: k.e(f"s_setprio {prio_a}")
    k.e("s_and_b32 s3, s2, 7", "s_lshr_b32 s4, s2, 3", "s_and_b32 s5, s4, 3", "s_lshl_b32 s25, s3, 2", "s_add_u32 s25, s25, s5", "s_lshr_b32 s26, s4, 2")
    k.stamp(0)
    e2_body(k, **kw)
    k.wait_vm_all()
    k.stamp(3); k.stamp_out(4, 0x20000); k.wait_vm_all()
    k.e("s_endpgm")
    fb = k.fb_code
    k.label("L_kb_g")
    k.vm = []; k.lg = []
    k.e("s_cmp_ge_u32 s2, 480", "s_cbranch_scc1 L_kb_pf")
    fx3 = srd(k, 12, 32, SZ_WG) + srd(k, 16, 40, SZ_WG)
    k.e("s_waitcnt lgkmcnt(0)"); k.e(*(fx + fx3))
    if prio_g is not None: k.e(f"s_setprio {prio_g}")
    k.e("s_sub_u32 s3, s2, 256", "s_and_b32 s4, s3, 7", "s_lshr_b32 s5, s3, 3", "s_mul_i32 s4, s4, 28", "s_add_u32 s4, s4, s5",
        "s_lshr_b32 s26, s4, 4", "s_and_b32 s25, s4, 15")
    k.stamp(0)
    e3_body(k, SX=20, norm=True, xoff=WS_XN, epi_prio=epi_prio)
    k.wait_vm_all()
    k.stamp(3); k.stamp_out(4, 0x20000); k.wait_vm_all()
    k.e("s_endpgm")
    k.label("L_kb_pf")
    k.vm = []; k.lg = []
    if prefetch:
        fxp = srd(k, 12, 48, SZ_WD) + srd(k, 16, 16, SZ_WO)
        k.e("s_waitcnt lgkmcnt(0)"); k.e(*fxp)
        k.e("s_sub_u32 s3, s2, 480")
        prefetch_role(k, [(12, SZ_WD), (16, SZ_WO)], 3, 32)
    k.label(f"L_end_{k.name}")
    k.e("s_endpgm")
    fb()
    k.emit_tails()
    return k


class E4F:
    DEPTH = 8; ACC = 64; HR = 128; WR = 16; WOF = 192
    V16 = 48; VW = 49; VT = 50; VX = 52; VPH = 53; VPO = 54; VP = 55; VC = 56
    SB = 40; SDO = 41; SH = 42; SWO = 43; SO_ = 44; ST = 45; SCB = 46; SRB = 47; SC = 48; SK = 49
    def __init__(self, k, SD, SO, SWS, SX, SOUT, hsleep=2, osleep=2, ep=False):
        self.k = k; self.SD = SD; self.SO = SO; self.SWS = SWS; self.SX = SX; self.SOUT = SOUT
        self.hsleep = hsleep; self.osleep = osleep; self.ep = ep
        if ep: self.VP = 58
    def setup(self):
        k = self.k; c = self
        a, b = 56, 57
        k.e(f"v_lshlrev_b32 v{c.V16}, 4, v1", f"s_lshl_b32 s{c.ST}, s{c.SCB}, 7",
            f"v_lshrrev_b32 v{c.VW}, 3, v1", f"v_lshlrev_b32 v{c.VW}, 10, v{c.VW}", f"v_bfe_u32 v{a}, v1, 4, 1", f"v_lshlrev_b32 v{a}, 2, v{a}", f"v_and_b32 v{b}, 7, v1",
            f"v_xor_b32 v{a}, v{a}, v{b}", f"v_lshl_add_u32 v{c.VW}, v{a}, 4, v{c.VW}", f"v_add_u32 v{c.VW}, s{c.ST}, v{c.VW}")
        k.e(f"v_lshrrev_b32 v{a}, 5, v1", f"v_bfe_u32 v{b}, v1, 2, 2", f"v_lshl_add_u32 v{a}, v{a}, 2, v{b}", f"v_lshlrev_b32 v{c.VT}, 7, v{a}",
            f"v_bfe_u32 v{a}, v1, 4, 1", f"v_lshlrev_b32 v{a}, 1, v{a}", f"v_bfe_u32 v{b}, v1, 1, 1", f"v_add_u32 v{a}, v{a}, v{b}",
            f"v_bfe_u32 v{b}, v1, 3, 1", f"v_lshlrev_b32 v{b}, 2, v{b}", f"v_xor_b32 v{a}, v{a}, v{b}", f"v_lshl_add_u32 v{c.VT}, v{a}, 4, v{c.VT}",
            f"v_and_b32 v{b}, 1, v1", f"v_lshl_add_u32 v{c.VT}, v{b}, 3, v{c.VT}", f"s_lshl_b32 s{c.SB}, s24, 14", f"v_add_u32 v{c.VT}, s{c.SB}, v{c.VT}",
            f"v_xor_b32 v{c.VT+1}, 64, v{c.VT}")
        k.e(f"s_mul_i32 s{c.SDO}, s24, 458752",
            f"s_mul_i32 s{c.SH}, s{c.SRB}, 224", f"s_mul_i32 s{c.SC}, s24, 28", f"s_add_u32 s{c.SH}, s{c.SH}, s{c.SC}", f"s_lshl_b32 s{c.SH}, s{c.SH}, 10", f"s_add_u32 s{c.SH}, s{c.SH}, 0x{WS_HF:x}",
            f"s_lshl_b32 s{c.SWO}, s24, 17",
            f"s_lshl_b32 s{c.SO_}, s{c.SRB}, 6", f"s_lshl_b32 s{c.SC}, s24, 3", f"s_add_u32 s{c.SO_}, s{c.SO_}, s{c.SC}", f"s_lshl_b32 s{c.SO_}, s{c.SO_}, 10", f"s_add_u32 s{c.SO_}, s{c.SO_}, 0x{WS_OF:x}")
        k.e(f"v_lshrrev_b32 v{c.VX}, 3, v0", f"s_lshl_b32 s{c.SC}, s{c.SRB}, 6", f"v_add_u32 v{c.VX}, s{c.SC}, v{c.VX}", f"v_lshlrev_b32 v{c.VX}, 10, v{c.VX}",
            f"v_and_b32 v{a}, 7, v0", f"v_lshl_add_u32 v{c.VX}, v{a}, 4, v{c.VX}", f"v_add_u32 v{c.VX}, s{c.ST}, v{c.VX}")
        sh = 1 if c.ep else 0
        fh, fo = (FLG_H8, FLG_O8) if c.ep else (FLG_H, FLG_O)
        k.e(f"v_min_u32 v{c.VPH}, 6, v1", f"s_mul_i32 s{c.SC}, s24, 7", f"v_add_u32 v{c.VPH}, s{c.SC}, v{c.VPH}", f"v_lshlrev_b32 v{c.VPH}, {2+sh}, v{c.VPH}",
            f"s_lshl_b32 s{c.SC}, s{c.SRB}, {7+sh}", f"s_add_u32 s{c.SC}, s{c.SC}, 0x{fh:x}", f"v_add_u32 v{c.VPH}, s{c.SC}, v{c.VPH}")
        k.e(f"v_and_b32 v{a}, 7, v1", f"v_lshlrev_b32 v{c.VPO}, {2+sh}, v{a}", f"s_lshl_b32 s{c.SC}, s{c.SRB}, {7+sh}", f"s_lshl_b32 s{c.SK}, s24, {5+sh}",
            f"s_add_u32 s{c.SC}, s{c.SC}, s{c.SK}", f"s_add_u32 s{c.SC}, s{c.SC}, 0x{fo:x}", f"v_add_u32 v{c.VPO}, s{c.SC}, v{c.VPO}")
    def touchW(self, vd):
        k = self.k; c = self
        a = 56
        k.e(f"s_and_b32 s{c.SC}, s{c.SRB}, 3", f"s_mul_i32 s{c.SK}, s{c.SC}, {112*1024}", f"s_add_u32 s{c.SK}, s{c.SK}, s{c.SDO}",
            f"s_lshl_b32 s{c.ST}, s{c.SCB}, 7", f"v_lshlrev_b32 v{a}, 10, v1", f"v_add_u32 v{a}, s{c.ST}, v{a}")
        k.vmem(f"buffer_load_dword v{vd}, v{a}, s[{c.SD}:{c.SD+3}], s{c.SK} offen", "touch")
        k.e(f"s_add_u32 s{c.SK}, s{c.SK}, 65536", "s_mov_b32 exec_hi, 0xffff")
        k.vmem(f"buffer_load_dword v{vd}, v{a}, s[{c.SD}:{c.SD+3}], s{c.SK} offen", "touch")
        k.e(f"s_lshl_b32 s{c.SK}, s{c.SC}, 15", f"s_add_u32 s{c.SK}, s{c.SK}, s{c.SWO}", "s_mov_b64 exec, 0xffffffff")
        k.vmem(f"buffer_load_dword v{vd}, v{a}, s[{c.SO}:{c.SO+3}], s{c.SK} offen", "touch")
        k.e("s_mov_b64 exec, -1")
    def issueW(self, s):
        k = self.k; c = self
        slot = s % c.DEPTH
        sr, sb, kk = (c.SD, c.SDO, s) if s < 28 else (c.SO, c.SWO, s - 28)
        for i in range(2):
            k.e(f"s_add_u32 m0, s{c.SB}, {slot*2048 + i*1024}", f"s_add_u32 s{c.ST}, s{sb}, {kk*16384 + i*8192}")
            k.vmem(f"buffer_load_dwordx4 v{c.VW}, s[{sr}:{sr+3}], s{c.ST} offen lds", ("W", s))
    def issueH(self, s):
        k = self.k; c = self
        slot = s % c.DEPTH
        kk, hb, hstride = (s, c.SH, 112*1024) if s < 28 else (s - 28, c.SO_, 32*1024)
        for tb in range(2):
            d = c.HR + slot*8 + 4*tb
            k.e(f"s_add_u32 s{c.ST}, s{hb}, {kk*1024 + tb*hstride}")
            k.vmem(f"buffer_load_dwordx4 v[{d}:{d+3}], v{c.V16}, s[{c.SWS}:{c.SWS+3}], s{c.ST} offen {c.hsc1 if s < 28 else 'sc1'}", ("H", s))
    def reads(self, s, b):
        k = self.k; c = self
        o = (s % c.DEPTH)*2048
        for cb2 in range(2):
            av = c.VT + cb2
            k.ds(f"ds_read_b64_tr_b16 v[{b+4*cb2}:{b+4*cb2+1}], v{av} offset:{o}", ("r", s))
            k.ds(f"ds_read_b64_tr_b16 v[{b+4*cb2+2}:{b+4*cb2+3}], v{av} offset:{o+1024}", ("r", s))
    def mf(self, s, b, first):
        k = self.k; c = self
        h = c.HR + (s % c.DEPTH)*8
        for cb2 in range(2):
            for tb in range(2):
                a = c.ACC + 16*(cb2*2 + tb)
                k.e(f"{MF} v[{a}:{a+15}], v[{b+4*cb2}:{b+4*cb2+3}], v[{h+4*tb}:{h+4*tb+3}], " + ("0" if first else f"v[{a}:{a+15}]"))
    def spin(self, tag, issue_txt, ok_cmp, sleep):
        k = self.k; c = self
        L = k.newlabel(tag); Lc = k.newlabel(tag + "c")
        k.e(f"s_mov_b32 s{c.SK}, 0")
        k.label(L)
        k.e(issue_txt, f"s_add_u32 s{c.SK}, s{c.SK}, 1", "s_waitcnt vmcnt(0)", ok_cmp, "s_nop 3", "s_cmp_eq_u64 vcc, -1", f"s_cbranch_scc1 {Lc}",
            f"s_sleep {sleep}", f"s_cmp_lt_u32 s{c.SK}, 0x{SPIN_MAX:x}", f"s_cbranch_scc1 {L}")
        k.label(Lc)
        k.vm = []
    def pollt(self, va):
        c = self
        if c.ep: return (f"buffer_load_dwordx2 v[{c.VP}:{c.VP+1}], v{va}, s[{c.SWS}:{c.SWS+3}], 0 offen sc1", f"v_cmp_eq_u64 vcc, s[{SEP}:{SEP+1}], v[{c.VP}:{c.VP+1}]")
        return (f"buffer_load_dword v{c.VP}, v{va}, s[{c.SWS}:{c.SWS+3}], 0 offen sc1", f"v_cmp_eq_u32 vcc, 1, v{c.VP}")
    def reduce(self, dst, addx, lds_base=0):
        k = self.k; c = self
        RS = 272
        k.e("s_nop 7", "s_barrier")
        k.e("v_and_b32 v4, 31, v1", f"v_mul_u32_u24 v4, {RS}, v4", "v_lshrrev_b32 v5, 5, v1", "v_lshl_add_u32 v4, v5, 4, v4",
            f"s_mul_i32 s{c.SC}, s24, {64*RS}", f"v_add_u32 v4, s{c.SC}, v4", "s_nop 3")
        for cb2 in range(2):
            for tb in range(2):
                a = c.ACC + 16*(cb2*2 + tb)
                for g in range(4):
                    k.ds(f"ds_write_b128 v4, v[{a+4*g}:{a+4*g+3}] offset:{lds_base + tb*32*RS + cb2*128 + g*32}")
        k.e("v_lshrrev_b32 v6, 3, v0", f"v_mul_u32_u24 v6, {RS}, v6", "v_and_b32 v5, 7, v0", "v_lshl_add_u32 v6, v5, 5, v6")
        k.wait_lg_all()
        k.e("s_barrier")
        for half in range(2):
            for w in range(4):
                d = 64 + half*32 + w*8
                for j in range(2):
                    k.ds(f"ds_read_b128 v[{d+4*j}:{d+4*j+3}], v6 offset:{lds_base + w*64*RS + half*32*RS + j*16}", ("rd", half))
        if addx: k.wait_vm("x")
        for half in range(2):
            k.wait_lg(("rd", half))
            d = 64 + half*32; o = dst + 8*half
            for i in range(8):
                k.e(f"v_add_f32 v{d+i}, v{d+i}, v{d+8+i}", f"v_add_f32 v{d+16+i}, v{d+16+i}, v{d+24+i}")
            if addx:
                for i in range(4):
                    xr = 40 + 4*half + i
                    k.e(f"v_lshlrev_b32 v{d+8+2*i}, 16, v{xr}", f"v_and_b32 v{d+9+2*i}, 0xffff0000, v{xr}")
                for i in range(8): k.e(f"v_add_f32 v{d+i}, v{d+i}, v{d+16+i}")
                for i in range(8): k.e(f"v_add_f32 v{o+i}, v{d+i}, v{d+8+i}")
            else:
                for i in range(8): k.e(f"v_add_f32 v{d+i}, v{d+i}, v{d+16+i}")
                for i in range(8): k.e(f"v_add_f32 v{o+i}, v{o+i}, v{d+i}")
    def body(self, pre_issued=True, st=(1, 2), hwait=True):
        k = self.k; c = self
        D = c.DEPTH
        if not pre_issued:
            for s in range(D): c.issueW(s)
        k.vmem(f"buffer_load_dwordx4 v[40:43], v{c.VX}, s[{c.SX}:{c.SX+3}], 0 offen", "x")
        k.e(f"s_mov_b32 s{c.ST}, 32768")
        k.vmem(f"buffer_load_dwordx4 v[44:47], v{c.VX}, s[{c.SX}:{c.SX+3}], s{c.ST} offen", "x")
        if hwait:
            c.spin("hsp", *c.pollt(c.VPH), c.hsleep)
        c.hsc1 = "sc1" if hwait else ""
        k.stamp(st[0])
        if c.e4_prio is not None: k.e(f"s_setprio {c.e4_prio}")
        for s in range(D): c.issueH(s)
        c.reads(0, c.WR)
        for s in range(28):
            if s + 1 < 28:
                k.wait_vm(("W", s + 1)); c.reads(s + 1, c.WR + 8*((s + 1) & 1))
            k.wait_vm(("H", s)); k.wait_lg(("r", s))
            c.mf(s, c.WR + 8*(s & 1), s == 0)
            if s + D < 36:
                c.issueW(s + D)
                if s + D < 28: c.issueH(s + D)
        for s in range(28, 36):
            k.wait_vm(("W", s)); c.reads(s, c.WOF + 8*(s - 28))
        k.wait_lg_all()
        c.reduce(32, True)
        k.stamp(st[1])
        if c.e4_prio is not None: k.e(f"s_setprio {c.post_prio or 0}")
        Lr = k.newlabel("oretry"); Lg = k.newlabel("ogo"); Ld = k.newlabel("odone")
        k.e(f"s_mov_b32 s{c.SK+1}, 0")
        if getattr(c, "pre", 0):
            VPP = 55
            k.e(f"v_add_u32 v{VPP}, 0x{FLG_P8 - FLG_O8:x}, v{c.VPO}")
            c.spin("psp", *c.pollt(VPP), c.osleep)
            for s in range(28, 36): c.issueH(s)
            for s in range(28, 36):
                L = k.newlabel("ochk"); La = k.newlabel("oacc"); Lre = k.newlabel("ore")
                k.label(L)
                k.wait_vm(("H", s))
                h = c.HR + (s % D)*8
                k.e(f"v_max3_u32 v{c.VC}, v{h}, v{h+1}, v{h+2}", f"v_max3_u32 v{c.VC}, v{h+3}, v{h+4}, v{c.VC}", f"v_max3_u32 v{c.VC}, v{h+5}, v{h+6}, v{c.VC}",
                    f"v_max_u32 v{c.VC}, v{h+7}, v{c.VC}", f"v_cmp_eq_u32 vcc, -1, v{c.VC}", "s_nop 3", "s_cmp_eq_u64 vcc, 0", f"s_cbranch_scc0 {Lre}")
                k.label(La)
                c.mf(s, c.WOF + 8*(s - 28), s == 28)
                def tail(s=s, L=L, La=La, Lre=Lre):
                    Lgo = k.newlabel("orego")
                    k.label(Lre)
                    k.e(f"s_add_u32 s{c.SK+1}, s{c.SK+1}, 1", f"s_cmp_ge_u32 s{c.SK+1}, {c.lim1 + 64}", f"s_cbranch_scc1 {La}",
                        f"s_cmp_lg_u32 s{c.SK+1}, {c.lim1}", f"s_cbranch_scc1 {Lgo}")
                    c.spin("osp", *c.pollt(c.VPO), c.osleep)
                    k.label(Lgo)
                    if c.rsleep: k.e(f"s_sleep {c.rsleep}")
                    for t in range(s, 36): c.issueH(t)
                    k.e(f"s_branch {L}")
                    k.vm = []
                k.tails.append(tail)
        else:
            k.label(Lr)
            c.spin("osp", *c.pollt(c.VPO), c.osleep)
            for s in range(28, 36): c.issueH(s)
            k.e(f"v_mov_b32 v{c.VC}, 0")
            for s in range(28, 36):
                k.wait_vm(("H", s))
                h = c.HR + (s % D)*8
                c.mf(s, c.WOF + 8*(s - 28), s == 28)
                for i in range(0, 8, 2): k.e(f"v_max3_u32 v{c.VC}, v{h+i}, v{h+i+1}, v{c.VC}")
            k.e(f"v_cmp_eq_u32 vcc, -1, v{c.VC}", f"s_add_u32 s{c.SK+1}, s{c.SK+1}, 1", "s_nop 3", "s_cmp_eq_u64 vcc, 0", f"s_cbranch_scc1 {Ld}",
                f"s_cmp_lt_u32 s{c.SK+1}, 0x40", "s_nop 15", f"s_cbranch_scc1 {Lr}")
        k.label(Ld)
        if not hwait: k.stamp(st[1] + 1)
        c.reduce(32, False)
        for half in range(2):
            for i in range(4): k.e(f"v_cvt_pk_bf16_f32 v{48+4*half+i - 0 if False else 16+4*half+i}, v{32+8*half+2*i}, v{32+8*half+2*i+1}")
        k.vmem(f"buffer_store_dwordx4 v[16:19], v{c.VX}, s[{c.SOUT}:{c.SOUT+3}], 0 offen {getattr(c, 'omod', '')}".rstrip(), "st")
        k.e(f"s_mov_b32 s{c.ST}, 32768")
        k.vmem(f"buffer_store_dwordx4 v[20:23], v{c.VX}, s[{c.SOUT}:{c.SOUT+3}], s{c.ST} offen {getattr(c, 'omod', '')}".rstrip(), "st")

def kB3_kernel(name="kb_main_kernel", prio_a=None, prio_g=None, epi_prio=None, post_prio=None, e4_prio=None, touch=True, hsleep=2, osleep=2, **kw):
    k = KV(name, nvgpr=256)
    k.e("s_cmp_ge_u32 s2, 512", f"s_cbranch_scc1 L_end_{k.name}")
    fx = srd(k, 20, 72, WS_SIZE2)
    k.e("s_cmp_ge_u32 s2, 256", "s_cbranch_scc1 L_kb_g")
    k.e("s_waitcnt lgkmcnt(0)"); k.e(*fx)
    if prio_a is not None: k.e(f"s_setprio {prio_a}")
    k.e("s_and_b32 s3, s2, 7", "s_lshr_b32 s4, s2, 3", "s_and_b32 s5, s4, 3", "s_lshl_b32 s25, s3, 2", "s_add_u32 s25, s25, s5", "s_lshr_b32 s26, s4, 2")
    k.stamp(0)
    if kw.pop("skip_a", False):
        k.e("v_and_b32 v1, 63, v0", "v_lshrrev_b32 v10, 6, v0", "s_nop 0", "v_readfirstlane_b32 s24, v10", "v_lshlrev_b32 v2, 4, v1",
            "v_mov_b32 v160, 0", "v_mov_b32 v161, 0", "v_mov_b32 v162, 0", "v_mov_b32 v163, 0")
        k.stamp(1); k.stamp(2)
        k.e("s_lshl_b32 s36, s26, 3", "s_lshl_b32 s37, s24, 1", "s_add_u32 s36, s36, s37", "s_lshl_b32 s36, s36, 5", "s_add_u32 s36, s36, s25",
            "s_lshl_b32 s36, s36, 10", f"s_add_u32 s36, s36, 0x{WS_OF:x}")
        k.e("buffer_store_dwordx4 v[160:163], v2, s[20:23], s36 offen sc1", "s_add_u32 s36, s36, 32768", "buffer_store_dwordx4 v[160:163], v2, s[20:23], s36 offen sc1")
        k.e("s_lshl_b32 s36, s26, 2", "s_add_u32 s36, s36, s24", "s_lshl_b32 s36, s36, 7", "s_lshl_b32 s37, s25, 2", "s_add_u32 s36, s36, s37",
            f"s_add_u32 s36, s36, 0x{FLG_O:x}", "v_mov_b32 v12, s36", "v_mov_b32 v13, 1", "s_mov_b64 exec, 1",
            "buffer_store_dword v13, v12, s[20:23], 0 offen sc1", "s_mov_b64 exec, -1")
        k.fb_code = lambda: None
    else:
        e2_body(k, st_sc1="sc1", touch=touch, oflag=True, **kw)
    k.wait_vm_all()
    k.stamp(3); k.stamp_out(4, 0x20000); k.wait_vm_all()
    k.e("s_endpgm")
    fb = k.fb_code
    k.label("L_kb_g")
    k.vm = []; k.lg = []
    SD, SO, SX, SOUT = 84, 88, 8, 4
    fx3 = srd(k, 12, 32, SZ_WG) + srd(k, 16, 40, SZ_WG) + srd(k, SD, 48, SZ_WD) + srd(k, SO, 16, SZ_WO) + srd(k, SX, 0, SZ_X) + srd(k, SOUT, 56, SZ_X)
    k.e("s_waitcnt lgkmcnt(0)"); k.e(*(fx + fx3))
    if prio_g is not None: k.e(f"s_setprio {prio_g}")
    e4 = E4F(k, SD, SO, 20, SX, SOUT, hsleep=hsleep, osleep=osleep)
    c = e4
    k.e("s_sub_u32 s3, s2, 256", "s_and_b32 s92, s3, 7", "s_lshr_b32 s93, s3, 3",
        f"s_and_b32 s{c.SRB}, s93, 3", "s_lshl_b32 s94, s92, 2", f"s_add_u32 s{c.SRB}, s{c.SRB}, s94", f"s_lshr_b32 s{c.SCB}, s93, 2")
    k.e("s_cmp_ge_u32 s2, 480", "s_cbranch_scc1 L_kb_pf")
    k.e("s_and_b32 s26, s92, 1", "s_mul_i32 s26, s26, 7", "s_lshr_b32 s94, s93, 2", "s_add_u32 s26, s26, s94",
        "s_lshr_b32 s25, s92, 1", "s_lshl_b32 s25, s25, 2", "s_and_b32 s95, s93, 3", "s_add_u32 s25, s25, s95")
    k.stamp(0)
    def pre_loop():
        if not touch: return
        k.e("v_lshrrev_b32 v66, 1, v1", "v_mul_u32_u24 v66, 3584, v66", "v_and_b32 v67, 1, v1", "v_lshl_add_u32 v66, v67, 7, v66",
            "s_lshl_b32 s36, s95, 7", "s_lshl_b32 s37, s28, 6", "s_add_u32 s36, s36, s37", "s_mul_i32 s36, s36, 3584", "s_lshl_b32 s37, s26, 8", "s_add_u32 s36, s36, s37",
            f"s_add_u32 s37, s36, {32*3584}", "s_cmp_eq_u32 s27, 0", "s_cbranch_scc0 L_kb_tu")
        k.vmem("buffer_load_dword v64, v66, s[12:15], s36 offen", "touch"); k.vmem("buffer_load_dword v64, v66, s[12:15], s37 offen", "touch")
        k.e("s_branch L_kb_tx")
        k.label("L_kb_tu")
        k.e("buffer_load_dword v64, v66, s[16:19], s36 offen", "buffer_load_dword v64, v66, s[16:19], s37 offen")
        k.label("L_kb_tx")
        k.e("v_and_b32 v67, 31, v1", "v_lshlrev_b32 v67, 10, v67", "s_lshl_b32 s36, s25, 17", "s_lshl_b32 s37, s24, 15", "s_add_u32 s36, s36, s37",
            "s_lshl_b32 s37, s94, 7", "s_add_u32 s36, s36, s37", f"s_add_u32 s36, s36, 0x{WS_XN + 128:x}", "s_mov_b64 exec, 0xffffffff")
        k.vmem("buffer_load_dword v64, v67, s[20:23], s36 offen", "touch")
        k.e("s_mov_b64 exec, -1")
    def post_loop():
        k.e("s_barrier")
        e4.setup()
        for s in range(c.DEPTH): e4.issueW(s)
        if touch: e4.touchW(64)
    e3_body(k, SX=20, norm=True, xoff=WS_XN, epi_prio=epi_prio, post_loop=post_loop, st_sc1="sc1", pre_loop=pre_loop)
    k.e("s_lshl_b32 s36, s25, 1", "s_add_u32 s36, s36, s27", "s_lshl_b32 s36, s36, 7", "s_lshl_b32 s37, s26, 1", "s_add_u32 s37, s37, s28",
        "s_lshl_b32 s37, s37, 2", "s_add_u32 s36, s36, s37", f"s_add_u32 s36, s36, 0x{FLG_H:x}", "v_mov_b32 v56, s36", "v_mov_b32 v57, 1")
    k.stamp(3)
    k.wait_vm_all()
    k.stamp(4)
    k.e("s_mov_b64 exec, 1")
    k.vmem("buffer_store_dword v57, v56, s[20:23], 0 offen sc1", "flag")
    k.e("s_mov_b64 exec, -1")
    if post_prio is not None: k.e(f"s_setprio {post_prio}")
    k.e("s_branch L_kb_e4")
    k.label("L_kb_pf")
    k.vm = []; k.lg = []
    k.e("v_and_b32 v1, 63, v0", "v_lshrrev_b32 v10, 6, v0", "s_nop 0", "v_readfirstlane_b32 s24, v10", "s_sub_u32 s3, s2, 480")
    k.stamp(0); k.stamp(1); k.stamp(2); k.stamp(3); k.stamp(4)
    e4.setup()
    for s in range(c.DEPTH): e4.issueW(s)
    if post_prio is not None: k.e(f"s_setprio {post_prio}")
    k.label("L_kb_e4")
    k.vm = [(("W", s), False) for s in range(c.DEPTH) for _ in range(2)] + [("flag", True)]
    k.lg = []
    e4.e4_prio = e4_prio; e4.post_prio = post_prio
    e4.body(st=(5, 6))
    k.wait_vm_all()
    k.stamp(7); k.stamp_out(8, 0x40000); k.wait_vm_all()
    k.label(f"L_end_{k.name}")
    k.e("s_endpgm")
    fb()
    k.emit_tails()
    return k


def gemm2(k, nunits, mfmas, reads, dmas, vm_need, fill0=None, rper=4, dper=1, hooks=None, pre_hooks=None, first_wait=None):
    def tagof(g, name): return ("fr", g, name)
    for u in range(nunits):
        g0, g1 = 2*u, 2*u + 1
        k.wait_vm(*vm_need(u))
        k.wait_lg_all()
        k.e("s_barrier")
        if pre_hooks and u in pre_hooks: pre_hooks[u]()
        R0 = list(reads(g0, 0)); R1 = list(reads(g1, 1))
        prev = list(mfmas(g0 - 1, 1)) if u > 0 else []
        cur = list(mfmas(g0, 0))
        D = list(dmas(u))
        F = list(fill0(u)) if fill0 else []
        rel = {}
        for i, (t, used) in enumerate(prev):
            for nm in used: rel[nm] = i
        def emit_reads(i, budget):
            n = 0
            while n < budget and R0:
                t, nm = R0.pop(0); k.ds(t, tagof(g0, nm)); n += 1
            j = 0
            while n < budget and j < len(R1):
                t, nm = R1[j]
                if rel.get(nm, -1) <= i:
                    k.ds(t, tagof(g1, nm)); R1.pop(j); n += 1
                else: j += 1
        def emit_dma():
            for (txt, tag, isvm) in D.pop(0):
                if isvm: k.vmem(txt, tag)
                else: k.e(txt)
        if not prev:
            emit_reads(-1, 1000)
        for i, (t, used) in enumerate(prev):
            k.e(t)
            emit_reads(i, rper)
            for _ in range(dper):
                if D: emit_dma()
        emit_reads(10**6, 1000)
        ngap = len(cur)
        per = -(-len(D) // ngap) if D else 0
        fper = -(-len(F) // ngap) if F else 0
        have = set()
        for j, (t, used) in enumerate(cur):
            k.wait_lg(*[tagof(g0, nm) for nm in used])
            have |= set(used)
            k.e(t)
            for _ in range(per):
                if D: emit_dma()
            n = 0; i = 0
            lim = fper + 1 if j < ngap - 1 else 10**6
            while n < lim and i < len(F):
                if F[i][1] in have:
                    k.e(F[i][0]); F.pop(i); n += 1
                else: i += 1
        assert not D and not F
        if hooks and u in hooks:
            for h in hooks[u]: h()
    k.wait_lg_all()
    for (t, used) in mfmas(2*nunits - 1, 1): k.e(t)

ONES = 42
DBG1 = {}

MF16 = "v_mfma_f32_16x16x32_bf16"
def sel_init(k, SEL, tmp):
    k.e(f"v_lshrrev_b32 v{tmp}, 4, v1", f"v_and_b32 v{tmp}, 1, v{tmp}", f"v_and_b32 v{SEL}, 15, v1", f"v_cmp_eq_u32 vcc, v{tmp}, v{SEL}",
        f"v_mov_b32 v{SEL+1}, 0x3f803f80", f"v_mov_b32 v{SEL+2}, 0", "s_nop 0", f"v_cndmask_b32 v{SEL}, v{SEL+2}, v{SEL+1}, vcc",
        f"v_mov_b32 v{SEL+1}, v{SEL}", f"v_mov_b32 v{SEL+2}, v{SEL}", f"v_mov_b32 v{SEL+3}, v{SEL}")

def sel_write(k, items, s_base, va, vt):
    k.e(f"v_and_b32 v{va}, 1, v1", f"v_lshlrev_b32 v{va}, 6, v{va}", f"v_lshrrev_b32 v{vt}, 4, v1", f"v_lshl_add_u32 v{va}, v{vt}, 4, v{va}", f"v_add_u32 v{va}, s{s_base}, v{va}",
        f"v_and_b32 v{vt}, 14, v1", f"v_cmp_eq_u32 vcc, 0, v{vt}", "s_nop 4", "s_mov_b64 exec, vcc")
    for (a, off) in items: k.ds(f"ds_write_b128 v{va}, v[{a}:{a+3}] offset:{off}")
    k.e("s_mov_b64 exec, -1")

def half_sum(k, regs, tmps):
    for r, t in zip(regs, tmps): k.e(f"v_mov_b32 v{t}, v{r}")
    k.e("s_nop 1")
    for r, t in zip(regs, tmps): k.e(f"v_permlane32_swap_b32 v{r}, v{t}")
    k.e("s_nop 1")
    for r, t in zip(regs, tmps): k.e(f"v_add_f32 v{r}, v{r}, v{t}")

def row_stats(k, sx, sxx, mean, rstd, tmp):
    k.e(f"v_mul_f32 v{mean}, 0x3b000000, v{sx}", f"v_mul_f32 v{tmp}, 0x3b000000, v{sxx}",
        f"v_fma_f32 v{tmp}, -v{mean}, v{mean}, v{tmp}", f"v_max_f32 v{tmp}, 0, v{tmp}", f"v_add_f32 v{tmp}, 0x3727c5ac, v{tmp}",
        f"v_rsq_f32 v{rstd}, v{tmp}")

def e1s_body(k, SX=8, SW=12, SWS=20, sc1="", hooks=None, pre_hooks=None, rot=False, pre_store=None, mst=False, post_dma=None, rper=5, dper=2):
    E1_XB = 49152
    k.e("v_and_b32 v1, 63, v0", "v_lshrrev_b32 v10, 6, v0", "s_nop 0", "v_readfirstlane_b32 s24, v10")
    k.e("v_and_b32 v11, 31, v1", "v_lshrrev_b32 v12, 5, v1")
    k.e("s_and_b32 s27, s24, 1", "s_lshr_b32 s28, s24, 1")
    k.e("v_lshrrev_b32 v13, 3, v1", "v_lshrrev_b32 v14, 4, v1", "v_and_b32 v15, 7, v1",
        "v_xor_b32 v7, v15, v14", "v_lshlrev_b32 v7, 4, v7", "v_lshl_add_u32 v7, v13, 10, v7",
        "s_lshl_b32 s29, s25, 16", "s_lshl_b32 s30, s24, 14", "s_add_u32 s29, s29, s30",
        "v_add_u32 v7, s29, v7", "v_xor_b32 v8, 64, v7", "v_add_u32 v8, 8192, v8")
    k.e("v_and_b32 v14, 1, v14", "v_lshlrev_b32 v14, 2, v14", "v_xor_b32 v9, v15, v14", "v_lshlrev_b32 v9, 4, v9",
        "s_lshl_b32 s30, s24, 3", "v_add_u32 v13, s30, v13", "v_mul_u32_u24 v13, 3072, v13", "v_add_u32 v9, v9, v13",
        "s_lshl_b32 s30, s26, 7", "v_add_u32 v9, s30, v9")
    k.e(f"s_lshl_b32 s31, s24, 11", f"s_add_u32 s31, s31, {E1_XB}", "s_lshl_b32 s32, s24, 10")
    def xd(v):
        if rot:
            return [dmab(SX, 7, 31, (v % 3)*8192, 33, 51, 0, ("X", v)),
                    dmab(SX, 8, 31, (v % 3)*8192 + 1024, 33, 51, 0, ("X", v), post=["s_add_u32 s51, s51, 128", "s_and_b32 s51, s51, 1023"])]
        return [dma(SX, 7, 31, (v % 3)*8192, 33, v*128, ("X", v)), dma(SX, 8, 31, (v % 3)*8192 + 1024, 33, v*128, ("X", v))]
    def wd(u):
        if rot:
            return [dmab(SW, 9, 32, (u % 4)*12288 + p*4096, 33, 50, 0, ("W", u), imm=1024*p, post=(rot_adv(50, 32*3072, 512*3072, 52) if p == 2 else ())) for p in range(3)]
        return [dma(SW, 9, 32, (u % 4)*12288 + p*4096, 33, u*32*3072, ("W", u), imm=1024*p) for p in range(3)]
    if rot:
        k.e("s_lshl_b32 s51, s53, 7", f"s_mul_i32 s50, s53, {64*3072}")
    emit_groups(k, xd(0) + wd(0) + wd(1) + xd(1) + wd(2))
    if post_dma: post_dma()
    k.e("s_xor_b32 s34, s27, s28")
    k.e("s_lshl_b32 s36, s27, 5", "v_add_u32 v13, s36, v11", "v_bfe_u32 v14, v13, 1, 3", "v_xor_b32 v14, v14, v12",
        "v_lshlrev_b32 v14, 4, v14", "v_lshl_add_u32 v2, v13, 7, v14", f"v_add_u32 v2, {E1_XB}, v2",
        "s_lshl_b32 s35, s34, 5", "v_xor_b32 v2, s35, v2",
        "v_xor_b32 v3, 32, v2", "v_xor_b32 v4, 64, v2", "v_xor_b32 v5, 96, v2")
    k.e("v_bfe_u32 v13, v1, 2, 2", "v_lshl_add_u32 v13, v12, 3, v13", "v_lshlrev_b32 v6, 7, v13",
        "v_bfe_u32 v13, v1, 4, 1", "v_lshlrev_b32 v13, 1, v13", "v_bfe_u32 v14, v1, 1, 1", "v_add_u32 v13, v13, v14",
        "s_lshl_b32 s36, s28, 2", "v_add_u32 v13, s36, v13", "v_bfe_u32 v14, v1, 3, 1", "v_lshlrev_b32 v14, 2, v14",
        "v_xor_b32 v13, v13, v14", "v_lshl_add_u32 v6, v13, 4, v6", "v_and_b32 v14, 1, v1", "v_lshl_add_u32 v6, v14, 3, v6",
        "s_lshl_b32 s35, s34, 11", "v_xor_b32 v10, 2048, v6", "v_xor_b32 v10, s35, v10", "v_xor_b32 v6, s35, v6")
    k.e(f"s_mov_b32 s{ONES}, 0x3f803f80")
    ST = 48
    for i in range(5): k.e(f"v_mov_b32 v{ST+i}, 0")
    SEL = 176; MA = 180
    if mst: sel_init(k, SEL, 13)
    ACC = 64
    def fr(st): return 16 + 16*st
    def reads(g, st):
        b = fr(st); u = g >> 1; v = g >> 2
        out = [(f"ds_read_b128 v[{b}:{b+3}], v{2 + (g & 3)} offset:{(v % 3)*8192}", "X")]
        av = 6 if (g & 1) == 0 else 10
        for p in range(3):
            o = (u % 4)*12288 + p*4096
            out.append((f"ds_read_b64_tr_b16 v[{b+4+4*p}:{b+5+4*p}], v{av} offset:{o}", f"W{p}"))
            out.append((f"ds_read_b64_tr_b16 v[{b+6+4*p}:{b+7+4*p}], v{av} offset:{o+512}", f"W{p}"))
        return out
    def mfmas(g, st):
        out = []
        b_x = fr(st); b_w = b_x + 4
        for p in range(3):
            a = ACC + 16*p
            w = f"v[{b_w+4*p}:{b_w+4*p+3}]"; x = f"v[{b_x}:{b_x+3}]"
            A, B = (w, x) if p < 2 else (x, w)
            c = "0" if g == 0 else f"v[{a}:{a+15}]"
            out.append((f"{MF} v[{a}:{a+15}], {A}, {B}, {c}", ["X", f"W{p}"]))
        if mst == 2 and (g & 1):
            def sm(j, src):
                a = MA + 4*j
                return f"{MF16} v[{a}:{a+3}], v[{src}:{src+3}], v[{SEL}:{SEL+3}], " + ("0" if g == 1 else f"v[{a}:{a+3}]")
            def sq(i):
                t = 196 + 2*(i & 1)
                return (f"\nv_lshlrev_b32 v{t}, 16, v{b_x+i}\nv_and_b32 v{t+1}, 0xffff0000, v{b_x+i}\nv_pk_fma_f32 v[{ST}:{ST+1}], v[{t}:{t+1}], v[{t}:{t+1}], v[{ST}:{ST+1}]")
            out = [(sm(1, b_w), ["W0"]), (out[0][0] + sq(0), ["X", "W0"]), (sm(2, b_w + 4), ["W1"]), (out[1][0] + sq(1), ["X", "W1"]),
                   (sm(3, b_w + 8), ["W2"]), (out[2][0] + sq(2), ["X", "W2"]), (sm(0, b_x) + sq(3), ["X"])]
        return out
    def fill0(u):
        b = fr(0); out = []
        if mst:
            def sm(j, src, nm):
                a = MA + 4*j
                return (f"{MF16} v[{a}:{a+3}], v[{src}:{src+3}], v[{SEL}:{SEL+3}], " + ("0" if u == 0 else f"v[{a}:{a+3}]"), nm)
            d2 = [(f"v_dot2_f32_bf16 v{ST+1}, v{b+i}, v{b+i}, v{ST+1}", "X") for i in range(4)]
            return [sm(0, b, "X"), d2[0], sm(1, b+4, "W0"), d2[1], sm(2, b+8, "W1"), d2[2], sm(3, b+12, "W2"), d2[3]]
        for i in range(4):
            out.append((f"v_dot2_f32_bf16 v{ST}, v{b+i}, s{ONES}, v{ST}", "X"))
            out.append((f"v_dot2_f32_bf16 v{ST+1}, v{b+i}, v{b+i}, v{ST+1}", "X"))
            for p in range(3):
                out.append((f"v_dot2_f32_bf16 v{ST+2+p}, v{b+4+4*p+i}, s{ONES}, v{ST+2+p}", f"W{p}"))
        return out
    def dmas(u):
        out = []
        if u + 3 < 16: out += wd(u + 3)
        if u % 2 == 0 and u//2 + 2 < 8: out += xd(u//2 + 2)
        return out
    k.stamp(1)
    if DBG1.get("fine"): pre_hooks = {0: lambda: k.stamp(2), 2: lambda: k.stamp(3), 4: lambda: k.stamp(4), 8: lambda: k.stamp(5)}
    gemm2(k, 16, mfmas, reads, dmas, lambda u: [("W", u), ("X", u >> 1)], fill0=(None if (DBG1.get("nostat1") or mst == 2) else fill0), rper=rper, dper=dper, hooks=hooks, pre_hooks=pre_hooks)
    k.stamp(6 if DBG1.get("fine") else 2)
    if mst == 2: k.e(f"v_add_f32 v{ST+1}, v{ST}, v{ST+1}")
    k.e("s_nop 2")
    if mst: half_sum(k, [ST+1], [53])
    else: half_sum(k, [ST+i for i in range(5)], [53, 54, 55, 56, 57])
    k.e("s_barrier", "s_mul_i32 s36, s24, 640", "v_lshlrev_b32 v13, 2, v11", "v_add_u32 v14, s36, v13")
    if mst:
        k.ds(f"ds_write_b32 v14, v{ST+1} offset:128")
        sel_write(k, [(MA, 0), (MA+4, 256), (MA+8, 384), (MA+12, 512)], 36, 15, 16)
    else:
        for i in range(5): k.ds(f"ds_write_b32 v14, v{ST+i} offset:{128*i}")
    k.e("s_xor_b32 s37, s24, 2", "s_mul_i32 s37, s37, 640", "v_add_u32 v15, s37, v13", "s_xor_b32 s37, s24, 1", "s_mul_i32 s37, s37, 640", "v_add_u32 v16, s37, v13")
    k.wait_lg_all()
    k.e("s_barrier")
    k.ds("ds_read_b32 v53, v15"); k.ds("ds_read_b32 v54, v15 offset:128")
    for p in range(3): k.ds(f"ds_read_b32 v{55+p}, v16 offset:{256+128*p}")
    if mst:
        k.ds(f"ds_read_b32 v{ST}, v14")
        for p in range(3): k.ds(f"ds_read_b32 v{ST+2+p}, v14 offset:{256+128*p}")
    k.e("v_lshlrev_b32 v10, 4, v1",
        "s_lshl_b32 s36, s26, 2", "s_lshl_b32 s37, s28, 1", "s_add_u32 s36, s36, s37", "s_lshl_b32 s36, s36, 16",
        "s_lshl_b32 s37, s25, 1", "s_add_u32 s37, s37, s27", "s_lshl_b32 s37, s37, 10", "s_add_u32 s36, s36, s37")
    k.e("v_lshrrev_b32 v17, 4, v11", "v_lshlrev_b32 v17, 16, v17", "v_lshl_add_u32 v17, v12, 8, v17", "v_and_b32 v18, 15, v11", "v_lshl_add_u32 v17, v18, 4, v17")
    k.wait_lg_all()
    for i in range(5): k.e(f"v_add_f32 v{ST+i}, v{ST+i}, v{53+i}")
    if pre_store: pre_store()
    row_stats(k, ST, ST+1, 58, 59, 60)
    k.e("s_mul_i32 s37, s24, 640", "s_add_u32 s37, s37, 2560", "v_add_u32 v14, s37, v13", "v_sub_f32 v58, 0, v58")
    k.ds(f"ds_write_b32 v14, v{ST+2}"); k.ds(f"ds_write_b32 v14, v{ST+3} offset:128")
    k.ds("ds_write_b32 v14, v58 offset:256"); k.ds("ds_write_b32 v14, v59 offset:384")
    k.e("v_lshlrev_b32 v15, 4, v12", "v_add_u32 v15, s37, v15", f"v_mul_f32 v60, 0x{f2u(0.25*LOG2E):08x}, v59")
    k.wait_lg_all()
    B0 = 112
    for i in range(4):
        for gq in range(4): k.ds(f"ds_read_b128 v[{B0+16*i+4*gq}:{B0+16*i+4*gq+3}], v15 offset:{128*i + 32*gq}", ("bc", i))
    for p, (scale, base) in enumerate(((60, WS_QF), (59, WS_KF))):
        a = ACC + 16*p
        k.wait_lg(("bc", p))
        for r in range(16): k.e(f"v_fmac_f32 v{a+r}, v58, v{B0+16*p+r}")
        for r in range(16): k.e(f"v_mul_f32 v{a+r}, v{a+r}, v{scale}")
        for j in range(2):
            d = 20 + 8*p + 4*j
            for i in range(4): k.e(f"v_cvt_pk_bf16_f32 v{d+i}, v{a+8*j+2*i}, v{a+8*j+2*i+1}")
            k.e(f"s_add_u32 s37, s36, 0x{base + j*65536:x}")
            k.vmem(f"buffer_store_dwordx4 v[{d}:{d+3}], v10, s[{SWS}:{SWS+3}], s37 offen {sc1}", "st")
    a = ACC + 32
    k.wait_lg(("bc", 3))
    for r in range(16): k.e(f"v_fmac_f32 v{a+r}, v{ST+4}, v{B0+32+r}")
    for r in range(16): k.e(f"v_mul_f32 v{a+r}, v{a+r}, v{B0+48+r}")
    k.e(f"s_add_u32 s37, s36, 0x{WS_VF:x}")
    for j in range(2):
        d = 36 + 4*j
        for i in range(4): k.e(f"v_cvt_pk_bf16_f32 v{d+i}, v{a+8*j+2*i}, v{a+8*j+2*i+1}")
        k.vmem(f"buffer_store_dwordx4 v[{d}:{d+3}], v17, s[{SWS}:{SWS+3}], s37 offen offset:{512*j} {sc1}", "st")

def e3s_body(k, SX=8, SG=12, SU=16, SWS=20, st_sc1="", epi_prio=None, post_loop=None, hooks=None, pre_hooks=None, rot=False, outb=48, pre_dma=None, mst=False, rper=4, dper=1):
    XB = 49152
    k.e("v_and_b32 v1, 63, v0", "v_lshrrev_b32 v10, 6, v0", "s_nop 0", "v_readfirstlane_b32 s24, v10")
    k.e("v_and_b32 v11, 31, v1", "v_lshrrev_b32 v12, 5, v1")
    k.e("s_and_b32 s27, s24, 1", "s_lshr_b32 s28, s24, 1")
    k.e("v_lshrrev_b32 v13, 3, v1", "v_lshrrev_b32 v14, 4, v1", "v_and_b32 v15, 7, v1",
        "v_xor_b32 v7, v15, v14", "v_lshlrev_b32 v7, 4, v7", "v_lshl_add_u32 v7, v13, 10, v7",
        "s_lshl_b32 s29, s25, 17", "s_lshl_b32 s30, s24, 15", "s_add_u32 s29, s29, s30",
        "v_add_u32 v7, s29, v7", "v_xor_b32 v8, 64, v7", "v_add_u32 v8, 8192, v8")
    k.e("v_lshlrev_b32 v13, 2, v14", "v_and_b32 v15, 15, v1", "v_xor_b32 v9, v15, v13", "v_lshlrev_b32 v9, 4, v9",
        "s_lshl_b32 s30, s24, 3", "v_add_u32 v13, s30, v14", "v_mul_u32_u24 v13, 3584, v13", "v_add_u32 v9, v9, v13",
        "s_lshl_b32 s30, s26, 8", "v_add_u32 v9, s30, v9")
    k.e(f"s_lshl_b32 s31, s24, 12", f"s_add_u32 s31, s31, {XB}", "s_lshl_b32 s32, s24, 11")
    def xd(v):
        if rot:
            return [dmab(SX, 7 + (i & 1), 31, (v % 2)*16384 + i*1024, 33, 51, (i >> 1)*16384, ("X", v),
                         post=(["s_add_u32 s51, s51, 128", "s_and_b32 s51, s51, 1023"] if i == 3 else ())) for i in range(4)]
        return [dma(SX, 7 + (i & 1), 31, (v % 2)*16384 + i*1024, 33, v*128 + (i >> 1)*16384, ("X", v)) for i in range(4)]
    def wd(u):
        out = []
        for i in range(2):
            for p, sr in enumerate((SG, SU)):
                if rot:
                    out.append(dmab(sr, 9, 32, (u % 3)*16384 + p*8192 + i*1024, 33, 50, 4*i*3584, ("W", u),
                                    post=(rot_adv(50, 32*3584, 512*3584, 52) if (i, p) == (1, 1) else ())))
                else:
                    out.append(dma(sr, 9, 32, (u % 3)*16384 + p*8192 + i*1024, 33, (u*32 + 4*i)*3584, ("W", u)))
        return out
    if rot:
        k.e("s_lshl_b32 s51, s53, 7", f"s_mul_i32 s50, s53, {64*3584}")
    if pre_dma: pre_dma()
    if DBG1.get("wfirst"): emit_groups(k, wd(0) + xd(0) + wd(1))
    else: emit_groups(k, xd(0) + wd(0) + wd(1))
    if DBG1.get("touch3"):
        Lu = k.newlabel("tu"); Lx = k.newlabel("tx")
        k.e("v_lshrrev_b32 v66, 1, v1", "s_lshl_b32 s36, s28, 5", "v_add_u32 v66, s36, v66", "v_mul_u32_u24 v66, 3584, v66", "v_and_b32 v67, 1, v1",
            "v_lshl_add_u32 v66, v67, 7, v66", "s_lshl_b32 s36, s26, 8", "v_add_u32 v66, s36, v66", "s_cmp_eq_u32 s27, 0", f"s_cbranch_scc0 {Lu}")
        k.vmem(f"buffer_load_dword v63, v66, s[{SG}:{SG+3}], s50 offen", "touch")
        k.e(f"s_branch {Lx}")
        k.label(Lu)
        k.e(f"buffer_load_dword v63, v66, s[{SU}:{SU+3}], s50 offen")
        k.label(Lx)
    k.e("s_xor_b32 s34, s27, s28")
    k.e("s_lshl_b32 s36, s27, 6", "v_add_u32 v13, s36, v11", "v_bfe_u32 v14, v13, 1, 3", "v_xor_b32 v14, v14, v12",
        "v_lshlrev_b32 v14, 4, v14", "v_lshl_add_u32 v2, v13, 7, v14", f"v_add_u32 v2, {XB}, v2",
        "s_lshl_b32 s35, s34, 5", "v_xor_b32 v2, s35, v2",
        "v_xor_b32 v3, 32, v2", "v_xor_b32 v4, 64, v2", "v_xor_b32 v5, 96, v2")
    k.e("v_bfe_u32 v15, v1, 2, 2", "v_lshl_add_u32 v13, v12, 3, v15", "v_lshlrev_b32 v6, 8, v13",
        "v_bfe_u32 v13, v1, 4, 1", "v_lshlrev_b32 v13, 1, v13", "v_bfe_u32 v14, v1, 1, 1", "v_add_u32 v13, v13, v14",
        "s_lshl_b32 s36, s28, 3", "v_add_u32 v13, s36, v13", "v_lshlrev_b32 v15, 2, v15",
        "v_xor_b32 v13, v13, v15", "v_lshl_add_u32 v6, v13, 4, v6", "v_and_b32 v14, 1, v1", "v_lshl_add_u32 v6, v14, 3, v6",
        "s_lshl_b32 s35, s34, 12", "v_xor_b32 v6, s35, v6",
        "v_xor_b32 v10, 64, v6", "v_xor_b32 v72, 4096, v6", "v_xor_b32 v73, 4096, v10")
    k.e(f"s_mov_b32 s{ONES}, 0x3f803f80")
    ST = 64
    for i in range(8): k.e(f"v_mov_b32 v{ST+i}, 0")
    SEL = 76; MA = 80
    if mst: sel_init(k, SEL, 13)
    ACC = 128
    def fr(st): return 16 + 24*st
    def acc(part, b, tb): return ACC + 16*(part*4 + b*2 + tb)
    def reads(g, st):
        b0 = fr(st); u = g >> 1; v = g >> 2
        def wr(part, b):
            d = b0 + 8 + 8*part + 4*b
            o = (u % 3)*16384 + part*8192
            av = ((6, 10), (72, 73))[g & 1][b]
            return [(f"ds_read_b64_tr_b16 v[{d}:{d+1}], v{av} offset:{o}", f"W{part}{b}"),
                    (f"ds_read_b64_tr_b16 v[{d+2}:{d+3}], v{av} offset:{o+1024}", f"W{part}{b}")]
        def xr(tb): return [(f"ds_read_b128 v[{b0+4*tb}:{b0+4*tb+3}], v{2 + (g & 3)} offset:{(v % 2)*16384 + tb*4096}", f"X{tb}")]
        return xr(0) + wr(0, 0) + xr(1) + wr(0, 1) + wr(1, 0) + wr(1, 1)
    def mfmas(g, st):
        out = []
        b0 = fr(st)
        for part in range(2):
            for b in range(2):
                for tb in range(2):
                    a = acc(part, b, tb); w = b0 + 8 + 8*part + 4*b; x = b0 + 4*tb
                    c = "0" if g == 0 else f"v[{a}:{a+15}]"
                    out.append((f"{MF} v[{a}:{a+15}], v[{w}:{w+3}], v[{x}:{x+3}], {c}", [f"X{tb}", f"W{part}{b}"]))
        if mst == 2 and (g & 1):
            def sm(j, src):
                a = MA + 4*j
                return f"{MF16} v[{a}:{a+3}], v[{src}:{src+3}], v[{SEL}:{SEL+3}], " + ("0" if g == 1 else f"v[{a}:{a+3}]")
            def sq(n):
                tb, i = n & 1, n >> 1
                t = 108 + 2*(n & 1); r = b0 + 4*tb + i; a = ST + 2*tb
                return (f"\nv_lshlrev_b32 v{t}, 16, v{r}\nv_and_b32 v{t+1}, 0xffff0000, v{r}\nv_pk_fma_f32 v[{a}:{a+1}], v[{t}:{t+1}], v[{t}:{t+1}], v[{a}:{a+1}]")
            o2 = []
            for j in range(4):
                part, b = j >> 1, j & 1
                o2.append((sm(2 + j, b0 + 8 + 8*part + 4*b), [f"W{part}{b}"]))
                for tb in range(2):
                    t, used = out[2*j + tb]
                    o2.append((t + sq(2*j + tb), used + ["X0", "X1"] if False else used + [f"X{(2*j+tb) & 1}"]))
            o2.append((sm(0, b0), ["X0"])); o2.append((sm(1, b0 + 4), ["X1"]))
            out = o2
        return out
    def fill0(u):
        b0 = fr(0); out = []
        if mst:
            def sm(j, src, nm):
                a = MA + 4*j
                return (f"{MF16} v[{a}:{a+3}], v[{src}:{src+3}], v[{SEL}:{SEL+3}], " + ("0" if u == 0 else f"v[{a}:{a+3}]"), nm)
            d2 = [(f"v_dot2_f32_bf16 v{ST+2*tb+1}, v{b0+4*tb+i}, v{b0+4*tb+i}, v{ST+2*tb+1}", f"X{tb}") for i in range(4) for tb in range(2)]
            sms = [sm(0, b0, "X0"), sm(1, b0+4, "X1")] + [sm(2 + 2*part + b, b0 + 8 + 8*part + 4*b, f"W{part}{b}") for part in range(2) for b in range(2)]
            for j in range(8):
                if j < 6: out.append(sms[j])
                out.append(d2[j])
            return out
        for i in range(4):
            for tb in range(2):
                x = b0 + 4*tb + i
                out.append((f"v_dot2_f32_bf16 v{ST+2*tb}, v{x}, s{ONES}, v{ST+2*tb}", f"X{tb}"))
                out.append((f"v_dot2_f32_bf16 v{ST+2*tb+1}, v{x}, v{x}, v{ST+2*tb+1}", f"X{tb}"))
            for part in range(2):
                for b in range(2):
                    w = b0 + 8 + 8*part + 4*b + i
                    out.append((f"v_dot2_f32_bf16 v{ST+4+2*part+b}, v{w}, s{ONES}, v{ST+4+2*part+b}", f"W{part}{b}"))
        return out
    def dmas(u):
        out = []
        if u + 2 < 16: out += wd(u + 2)
        if u % 2 == 0 and u//2 + 1 < 8: out += xd(u//2 + 1)
        return out
    k.stamp(1)
    if DBG1.get("fine"): pre_hooks = {0: lambda: k.stamp(2), 2: lambda: k.stamp(3), 4: lambda: k.stamp(4), 8: lambda: k.stamp(5)}
    gemm2(k, 16, mfmas, reads, dmas, lambda u: [("W", u), ("X", u >> 1)], fill0=(None if (DBG1.get("nostat3") or mst == 2) else fill0), rper=rper, dper=dper, hooks=hooks, pre_hooks=pre_hooks)
    k.stamp(6 if DBG1.get("fine") else 2)
    if epi_prio is not None: k.e(f"s_setprio {epi_prio}")
    if mst == 2: k.e(f"v_add_f32 v{ST+1}, v{ST}, v{ST+1}", f"v_add_f32 v{ST+3}, v{ST+2}, v{ST+3}")
    k.e("s_nop 2")
    if mst: half_sum(k, [ST+1, ST+3], [104, 105])
    else: half_sum(k, [ST+i for i in range(8)], [76+i for i in range(8)])
    SBASE = 73728
    k.e("s_barrier", "s_lshl_b32 s36, s24, 10", "v_lshlrev_b32 v13, 2, v11", "v_add_u32 v14, s36, v13", f"v_add_u32 v14, {SBASE}, v14")
    if mst:
        k.ds(f"ds_write_b32 v14, v{ST+1} offset:128"); k.ds(f"ds_write_b32 v14, v{ST+3} offset:384")
        k.e(f"s_add_u32 s36, s36, {SBASE}")
        sel_write(k, [(MA, 0), (MA+4, 256)] + [(MA+8+4*i, 512+128*i) for i in range(4)], 36, 15, 16)
    else:
        for i in range(8): k.ds(f"ds_write_b32 v14, v{ST+i} offset:{128*i}")
    k.e("v_xor_b32 v15, 2048, v14", "v_xor_b32 v16, 1024, v14")
    k.wait_lg_all()
    k.e("s_barrier")
    for i in range(4): k.ds(f"ds_read_b32 v{76+i}, v15 offset:{128*i}")
    for i in range(4, 8): k.ds(f"ds_read_b32 v{76+i}, v16 offset:{128*i}")
    if mst:
        for i in (0, 2, 4, 5, 6, 7): k.ds(f"ds_read_b32 v{ST+i}, v14 offset:{128*i}")
    if post_loop: post_loop()
    k.wait_lg_all()
    for i in range(8): k.e(f"v_add_f32 v{ST+i}, v{ST+i}, v{76+i}")
    for tb in range(2):
        row_stats(k, ST+2*tb, ST+2*tb+1, 84+tb, 86+tb, 88+tb)
    k.e("s_nop 0")
    for tb in range(2):
        k.e(f"v_mul_f32 v{88+tb}, v{88+tb}, v{86+tb}",
            f"v_mul_f32 v{86+tb}, 0x{f2u(-LOG2E):08x}, v{86+tb}", f"v_sub_f32 v{84+tb}, 0, v{84+tb}")
    k.e("s_lshl_b32 s36, s24, 9", f"s_add_u32 s36, s36, {SBASE + 4096}", "v_add_u32 v14, s36, v13", "v_lshlrev_b32 v15, 4, v12", "v_add_u32 v15, s36, v15")
    for i in range(4): k.ds(f"ds_write_b32 v14, v{ST+4+i} offset:{128*i}")
    k.wait_lg_all()
    CB = 16
    k.e("v_lshlrev_b32 v10, 4, v1",
        "s_lshl_b32 s36, s25, 2", "s_lshl_b32 s37, s27, 1", "s_add_u32 s36, s36, s37", "s_mul_i32 s36, s36, 112",
        "s_lshl_b32 s37, s26, 3", "s_add_u32 s36, s36, s37", "s_lshl_b32 s37, s28, 2", "s_add_u32 s36, s36, s37",
        "s_lshl_b32 s36, s36, 10", f"s_add_u32 s36, s36, 0x{WS_HF:x}")
    CR = [92, 16]
    for b in range(2):
        for part in range(2):
            for gq in range(4):
                d = CR[b] + 16*part + 4*gq
                k.ds(f"ds_read_b128 v[{d}:{d+3}], v15 offset:{128*(2*part + b) + 32*gq}", ("bc", b))
    n = 0
    for b in range(2):
        k.wait_lg(("bc", b))
        for tb in range(2):
            g = acc(0, b, tb); uu = acc(1, b, tb)
            for r in range(16): k.e(f"v_fmac_f32 v{g+r}, v{84+tb}, v{CR[b]+r}")
            for r in range(16): k.e(f"v_mul_f32 v{g+r}, v{g+r}, v{86+tb}")
            for r in range(16): k.e(f"v_exp_f32 v{g+r}, v{g+r}")
            for r in range(16): k.e(f"v_fmac_f32 v{uu+r}, v{84+tb}, v{CR[b]+16+r}")
            for r in range(16): k.e(f"v_fma_f32 v{g+r}, v{g+r}, v{88+tb}, v{88+tb}")
            for r in range(16): k.e(f"v_rcp_f32 v{g+r}, v{g+r}")
            k.e("s_nop 0")
            for r in range(16): k.e(f"v_mul_f32 v{g+r}, v{g+r}, v{uu+r}")
            for j in range(2):
                d = outb + 4*(n % 4); n += 1
                for i in range(4): k.e(f"v_cvt_pk_bf16_f32 v{d+i}, v{g+8*j+2*i}, v{g+8*j+2*i+1}")
                k.e(f"s_add_u32 s37, s36, {(tb*112 + b*2 + j)*1024}")
                k.vmem(f"buffer_store_dwordx4 v[{d}:{d+3}], v10, s[{SWS}:{SWS+3}], s37 offen {st_sc1}", "st")

def prep_role(k, SWS, s_idx, nwg, flags=True):
    per = (1 << 21) // nwg
    k.e("v_mov_b32 v40, -1", "v_mov_b32 v41, -1", "v_mov_b32 v42, -1", "v_mov_b32 v43, -1", "v_lshlrev_b32 v48, 4, v0",
        f"s_mul_i32 s34, s{s_idx}, {per}", f"s_add_u32 s34, s34, 0x{WS_OF:x}")
    for i in range(per // 4096):
        k.vmem(f"buffer_store_dwordx4 v[40:43], v48, s[{SWS}:{SWS+3}], s34 offen", "prep")
        k.e("s_add_u32 s34, s34, 4096")
    if flags:
        Lp = k.newlabel("prep")
        k.e("v_mov_b32 v44, 0", "v_mov_b32 v45, 0", "v_mov_b32 v46, 0", "v_mov_b32 v47, 0", f"s_mov_b32 s34, 0x{FLG_H:x}",
            f"s_lshl_b32 s35, s{s_idx}, 12", "s_add_u32 s34, s34, s35", f"s_cmp_ge_u32 s{s_idx}, 2", f"s_cbranch_scc1 {Lp}")
        k.vmem(f"buffer_store_dwordx4 v[44:47], v48, s[{SWS}:{SWS+3}], s34 offen", "prep", opt=True)
        k.label(Lp)

def k1s_kernel(name="k1_proj_kernel", map1=1, prio_a=None, prio_g=None, rot=0, **kw):
    k = KV(name, nvgpr=256)
    k.e("s_cmp_ge_u32 s2, 512", f"s_cbranch_scc1 L_end_{k.name}")
    fx = srd(k, 8, 0, SZ_X) + srd(k, 20, 72, WS_SIZE2)
    k.e("s_cmp_ge_u32 s2, 256", "s_cbranch_scc1 L_k1_g")
    fx1 = srd(k, 12, 8, SZ_WQKV)
    k.e("s_waitcnt lgkmcnt(0)"); k.e(*(fx + fx1))
    if prio_a is not None: k.e(f"s_setprio {prio_a}")
    if map1 == 0: k.e("s_and_b32 s26, s2, 7", "s_lshr_b32 s25, s2, 3")
    elif map1 == 3:
        k.e("s_and_b32 s3, s2, 7", "s_lshr_b32 s4, s2, 3", "s_and_b32 s5, s3, 1", "s_lshl_b32 s26, s5, 2", "s_and_b32 s5, s4, 3", "s_add_u32 s26, s26, s5",
            "s_lshr_b32 s25, s3, 1", "s_lshl_b32 s25, s25, 3", "s_lshr_b32 s5, s4, 2", "s_add_u32 s25, s25, s5")
    else: k.e("s_and_b32 s3, s2, 7", "s_lshr_b32 s4, s2, 3", "s_and_b32 s5, s4, 3", "s_lshl_b32 s25, s3, 2", "s_add_u32 s25, s25, s5", "s_lshr_b32 s26, s4, 2")
    if rot:
        if map1 == 3:
            k.e("s_and_b32 s53, s26, 3", "s_lshl_b32 s53, s53, 1", "s_add_u32 s53, s53, s25", "s_and_b32 s53, s53, 7")
        elif map1 == 1:
            k.e("s_and_b32 s53, s25, 3", "s_lshl_b32 s53, s53, 1", "s_add_u32 s53, s53, s26", "s_and_b32 s53, s53, 7")
        else:
            k.e("s_and_b32 s53, s25, 7")
    k.stamp(0)
    e1s_body(k, rot=bool(rot))
    k.wait_vm_all()
    if DBG1.get("fine"): k.stamp(7); k.stamp_out(8, 0)
    else: k.stamp(3); k.stamp_out(4, 0)
    k.wait_vm_all()
    k.e("s_endpgm")
    k.label("L_k1_g")
    k.vm = []; k.lg = []
    k.e("s_cmp_ge_u32 s2, 480", "s_cbranch_scc1 L_k1_pf")
    fx3 = srd(k, 12, 32, SZ_WG) + srd(k, 16, 40, SZ_WG)
    k.e("s_waitcnt lgkmcnt(0)"); k.e(*(fx + fx3))
    if prio_g is not None: k.e(f"s_setprio {prio_g}")
    k.e("s_sub_u32 s3, s2, 256", "s_and_b32 s92, s3, 7", "s_lshr_b32 s93, s3, 3")
    k.e("s_and_b32 s26, s92, 1", "s_mul_i32 s26, s26, 7", "s_lshr_b32 s94, s93, 2", "s_add_u32 s26, s26, s94",
        "s_lshr_b32 s25, s92, 1", "s_lshl_b32 s25, s25, 2", "s_and_b32 s95, s93, 3", "s_add_u32 s25, s25, s95")
    if rot: k.e("s_lshl_b32 s53, s95, 1", "s_add_u32 s53, s53, s94", "s_and_b32 s53, s53, 7")
    k.stamp(0)
    e3s_body(k, rot=bool(rot))
    k.wait_vm_all()
    if DBG1.get("fine"): k.stamp(7); k.stamp_out(8, 0)
    else: k.stamp(3); k.stamp_out(4, 0)
    k.wait_vm_all()
    k.e("s_endpgm")
    k.label("L_k1_pf")
    k.vm = []; k.lg = []
    fxp = srd(k, 12, 48, SZ_WD) + srd(k, 16, 16, SZ_WO)
    k.e("s_waitcnt lgkmcnt(0)"); k.e(*(fx + fxp))
    k.e("s_sub_u32 s3, s2, 480")
    prep_role(k, 20, 3, 32)
    if not DBG1.get("nopf"): prefetch_role(k, [(12, SZ_WD), (16, SZ_WO)], 3, 32)
    k.label(f"L_end_{k.name}")
    k.e("s_endpgm")
    k.emit_tails()
    return k

def k1t_kernel(name="k1_proj_kernel", prio_a=None, prio_g=None, **kw):
    k = KV(name, nvgpr=256)
    k.e("s_cmp_ge_u32 s2, 512", f"s_cbranch_scc1 L_end_{k.name}")
    fx = srd(k, 8, 0, SZ_X) + srd(k, 20, 72, WS_SIZE2)
    k.e("s_cmp_lt_u32 s2, 256", "s_cbranch_scc1 L_k1_g")
    fx1 = srd(k, 12, 8, SZ_WQKV)
    k.e("s_waitcnt lgkmcnt(0)"); k.e(*(fx + fx1))
    if prio_a is not None: k.e(f"s_setprio {prio_a}")
    k.e("s_and_b32 s3, s2, 7", "s_lshr_b32 s4, s2, 3", "s_and_b32 s4, s4, 31", "s_and_b32 s5, s3, 1", "s_lshl_b32 s26, s5, 2", "s_and_b32 s5, s4, 3", "s_add_u32 s26, s26, s5",
        "s_lshr_b32 s25, s3, 1", "s_lshl_b32 s25, s25, 3", "s_lshr_b32 s5, s4, 2", "s_add_u32 s25, s25, s5")
    k.e("s_and_b32 s53, s26, 3", "s_lshl_b32 s53, s53, 1", "s_add_u32 s53, s53, s25", "s_and_b32 s53, s53, 7")
    k.stamp(0)
    e1s_body(k, rot=True)
    k.wait_vm_all()
    if DBG1.get("fine"): k.stamp(7); k.stamp_out(8, 0)
    else: k.stamp(3); k.stamp_out(4, 0)
    k.wait_vm_all()
    k.e("s_endpgm")
    k.label("L_k1_g")
    k.vm = []; k.lg = []
    k.e("s_cmp_ge_u32 s2, 224", "s_cbranch_scc1 L_k1_pf")
    fx3 = srd(k, 12, 32, SZ_WG) + srd(k, 16, 40, SZ_WG)
    k.e("s_waitcnt lgkmcnt(0)"); k.e(*(fx + fx3))
    if prio_g is not None: k.e(f"s_setprio {prio_g}")
    k.e("s_and_b32 s92, s2, 7", "s_lshr_b32 s93, s2, 3")
    k.e("s_and_b32 s26, s92, 1", "s_mul_i32 s26, s26, 7", "s_lshr_b32 s94, s93, 2", "s_add_u32 s26, s26, s94",
        "s_lshr_b32 s25, s92, 1", "s_lshl_b32 s25, s25, 2", "s_and_b32 s95, s93, 3", "s_add_u32 s25, s25, s95")
    k.e("s_lshl_b32 s53, s95, 1", "s_add_u32 s53, s53, s94", "s_and_b32 s53, s53, 7")
    k.stamp(0)
    e3s_body(k, rot=True)
    k.wait_vm_all()
    if DBG1.get("fine"): k.stamp(7); k.stamp_out(8, 0)
    else: k.stamp(3); k.stamp_out(4, 0)
    k.wait_vm_all()
    k.e("s_endpgm")
    k.label("L_k1_pf")
    k.vm = []; k.lg = []
    fxp = srd(k, 12, 48, SZ_WD) + srd(k, 16, 16, SZ_WO)
    k.e("s_waitcnt lgkmcnt(0)"); k.e(*(fx + fxp))
    k.e("s_sub_u32 s3, s2, 224")
    prep_role(k, 20, 3, 32)
    if not DBG1.get("nopf"): prefetch_role(k, [(12, SZ_WD), (16, SZ_WO)], 3, 32)
    k.label(f"L_end_{k.name}")
    k.e("s_endpgm")
    k.emit_tails()
    return k

def kB4_kernel(name="kb_main_kernel", prio_a=None, prio_g=None, e4_prio=None, post_prio=None, osleep=2, **kw):
    k = KV(name, nvgpr=256)
    k.e("s_cmp_ge_u32 s2, 512", f"s_cbranch_scc1 L_end_{k.name}")
    fx = srd(k, 20, 72, WS_SIZE2)
    k.e("s_cmp_ge_u32 s2, 256", "s_cbranch_scc1 L_kb_g")
    k.e("s_waitcnt lgkmcnt(0)"); k.e(*fx)
    if prio_a is not None: k.e(f"s_setprio {prio_a}")
    k.e("s_and_b32 s3, s2, 7", "s_lshr_b32 s4, s2, 3", "s_and_b32 s5, s4, 3", "s_lshl_b32 s25, s3, 2", "s_add_u32 s25, s25, s5", "s_lshr_b32 s26, s4, 2")
    k.stamp(0)
    e2_body(k, st_sc1="sc1", oflag=True, **kw)
    k.wait_vm_all()
    k.stamp(3); k.stamp_out(4, 0x20000); k.wait_vm_all()
    k.e("s_endpgm")
    fb = k.fb_code
    k.label("L_kb_g")
    k.vm = []; k.lg = []
    SD, SO, SX, SOUT = 84, 88, 8, 4
    fx3 = srd(k, SD, 48, SZ_WD) + srd(k, SO, 16, SZ_WO) + srd(k, SX, 0, SZ_X) + srd(k, SOUT, 56, SZ_X)
    k.e("s_waitcnt lgkmcnt(0)"); k.e(*(fx + fx3))
    if prio_g is not None: k.e(f"s_setprio {prio_g}")
    e4 = E4F(k, SD, SO, 20, SX, SOUT, osleep=osleep)
    c = e4
    k.e("s_sub_u32 s3, s2, 256", "s_and_b32 s92, s3, 7", "s_lshr_b32 s93, s3, 3",
        f"s_and_b32 s{c.SRB}, s93, 3", "s_lshl_b32 s94, s92, 2", f"s_add_u32 s{c.SRB}, s{c.SRB}, s94", f"s_lshr_b32 s{c.SCB}, s93, 2")
    k.e("v_and_b32 v1, 63, v0", "v_lshrrev_b32 v10, 6, v0", "s_nop 0", "v_readfirstlane_b32 s24, v10", "s_nop 3")
    k.stamp(0)
    e4.setup()
    e4.e4_prio = e4_prio; e4.post_prio = post_prio
    e4.body(pre_issued=False, st=(1, 2), hwait=False)
    k.wait_vm_all()
    k.stamp(4); k.stamp_out(5, 0x40000); k.wait_vm_all()
    k.label(f"L_end_{k.name}")
    k.e("s_endpgm")
    fb()
    k.emit_tails()
    return k
```

```python
import sys
sys.path.insert(0, "gen")
from eng import *
import eng, haz

FLG_GO = FLG + 0x8000

EPCONST = [False]
def epoch_issue_all(k, vd):
    if EPCONST[0]: return
    k.e(f"v_mov_b32 v{vd+2}, 0")
    k.vmem(f"global_load_dwordx2 v[{vd}:{vd+1}], v{vd+2}, s[{SDBG}:{SDBG+1}] sc1", "ep")

def epoch_check_all(k, vd):
    if EPCONST[0]:
        k.e(f"s_mov_b32 s{SEP}, 0x13572469", f"s_mov_b32 s{SEP+1}, 0x2468ace1"); return
    Ls = k.newlabel("eps"); Lc = k.newlabel("epc")
    k.wait_vm("ep")
    k.e(f"v_readfirstlane_b32 s{SEP}, v{vd}", f"v_readfirstlane_b32 s{SEP+1}, v{vd+1}", "s_nop 3", f"s_cmp_eq_u32 s{SEP}, 0", f"s_cbranch_scc1 {Ls}")
    k.label(Lc)
    def tail():
        k.label(Ls)
        k.e(f"s_mov_b32 s{SCNT}, 0")
        k.label(Ls + "_l")
        k.e(f"global_load_dwordx2 v[{vd}:{vd+1}], v{vd+2}, s[{SDBG}:{SDBG+1}] sc1", f"s_add_u32 s{SCNT}, s{SCNT}, 1", "s_waitcnt vmcnt(0)",
            f"v_readfirstlane_b32 s{SEP}, v{vd}", f"v_readfirstlane_b32 s{SEP+1}, v{vd+1}", "s_nop 3", f"s_cmp_lg_u32 s{SEP}, 0", f"s_cbranch_scc1 {Lc}",
            "s_sleep 2", f"s_cmp_lt_u32 s{SCNT}, 0x{SPIN_MAX:x}", f"s_cbranch_scc1 {Ls}_l", f"s_branch {Lc}")
    k.tails.append(tail)

def tag_check(k, issue, tagregs, name, zero):
    Ls = k.newlabel(name + "s"); Lc = k.newlabel(name + "c")
    def cmp():
        k.e(f"v_cmp_eq_u32 vcc, s{SEP}, v{tagregs[0]}")
        for r in tagregs[1:]:
            k.e(f"v_cmp_eq_u32 s[36:37], s{SEP}, v{r}", "s_nop 1", "s_and_b64 vcc, vcc, s[36:37]")
        k.e("s_cmp_eq_u64 vcc, -1")
    cmp()
    k.e(f"s_cbranch_scc0 {Ls}")
    k.label(Lc)
    zero()
    def tail():
        k.label(Ls)
        k.e(f"s_mov_b32 s{SCNT}, 0")
        k.label(Ls + "_l")
        sv = (k.vm, k.lg)
        issue()
        k.vm, k.lg = sv
        k.e(f"s_add_u32 s{SCNT}, s{SCNT}, 1", "s_waitcnt vmcnt(0)")
        cmp()
        k.e(f"s_cbranch_scc1 {Lc}", "s_sleep 1", f"s_cmp_lt_u32 s{SCNT}, 0x{SPIN_MAX:x}", f"s_cbranch_scc1 {Ls}_l", f"s_branch {Lc}")
    k.tails.append(tail)

def row_job2(k, s_job, srd_x, srd_ws):
    k.e("v_and_b32 v1, 63, v0", "v_lshrrev_b32 v2, 6, v0", f"s_lshl_b32 s40, s{s_job}, 14",
        "v_lshlrev_b32 v3, 12, v2", "v_lshl_add_u32 v3, v1, 4, v3", "v_add_u32 v3, s40, v3")
    for j in range(4):
        k.vmem(f"buffer_load_dwordx4 v[{4+4*j}:{7+4*j}], v3, s[{srd_x}:{srd_x+3}], 0 offen offset:{1024*j}", "rj")
    k.e("v_bfe_u32 v72, v1, 1, 2", "v_cmp_eq_u32 s[42:43], 1, v72", "v_cmp_eq_u32 s[44:45], 2, v72", "v_cmp_eq_u32 s[46:47], 3, v72")
    k.wait_vm("rj")
    epoch_issue_all(k, 74)
    for j in range(4):
        for i in range(4):
            k.e(f"v_lshlrev_b32 v{32+8*j+2*i}, 16, v{4+4*j+i}", f"v_and_b32 v{33+8*j+2*i}, 0xffff0000, v{4+4*j+i}")
    for j in range(4):
        b = 32 + 8*j
        k.e(f"v_add_f32 v{20+j}, v{b}, v{b+1}")
    for i in range(2, 8):
        for j in range(4):
            k.e(f"v_add_f32 v{20+j}, v{20+j}, v{32+8*j+i}")
    allreduce(k, [20, 21, 22, 23], [24, 25, 26, 27])
    for j in range(4): k.e(f"v_mul_f32 v{20+j}, 0x3b000000, v{20+j}")
    for i in range(8):
        for j in range(4): k.e(f"v_sub_f32 v{32+8*j+i}, v{32+8*j+i}, v{20+j}")
    for j in range(4): k.e(f"v_mul_f32 v{28+j}, v{32+8*j}, v{32+8*j}")
    for i in range(1, 8):
        for j in range(4): k.e(f"v_fmac_f32 v{28+j}, v{32+8*j+i}, v{32+8*j+i}")
    allreduce(k, [28, 29, 30, 31], [24, 25, 26, 27])
    k.e("v_cndmask_b32 v64, v20, v21, s[42:43]", "v_cndmask_b32 v65, v28, v29, s[42:43]",
        "v_cndmask_b32 v64, v64, v22, s[44:45]", "v_cndmask_b32 v65, v65, v30, s[44:45]",
        "v_cndmask_b32 v64, v64, v23, s[46:47]", "v_cndmask_b32 v65, v65, v31, s[46:47]")
    k.e("v_mov_b32 v66, 0x3727c5ac", "v_fmac_f32 v66, 0x3b000000, v65",
        "v_rsq_f32 v67, v66", "v_sub_f32 v64, 0, v64",
        "v_mul_f32 v68, v66, v67",
        "v_cvt_pk_bf16_f32 v69, v64, v64", "s_nop 0", "v_and_b32 v69, 0xffff0000, v69", "v_sub_f32 v70, v64, v69",
        "v_cvt_pk_bf16_f32 v69, v70, v70", "s_nop 0", "v_and_b32 v69, 0xffff0000, v69", "v_sub_f32 v71, v70, v69",
        "v_cvt_pk_bf16_f32 v4, v64, v70", "v_cvt_pk_bf16_f32 v6, v71, v64",
        "v_and_b32 v72, 1, v1", "v_cmp_eq_u32 vcc, 1, v72", "v_mov_b32 v5, v4")
    k.e(f"s_lshl_b32 s40, s{s_job}, 9", "v_lshlrev_b32 v3, 7, v2", "v_lshl_add_u32 v3, v1, 4, v3", "v_add_u32 v3, s40, v3")
    epoch_check_all(k, 74)
    k.e(f"v_mov_b32 v7, s{SEP}",
        "v_cndmask_b32 v4, v4, v67, vcc", "v_cndmask_b32 v5, v5, v68, vcc", "v_cndmask_b32 v6, v6, v7, vcc")
    k.e("v_cmp_gt_u32 vcc, 8, v1", "s_and_saveexec_b64 s[42:43], vcc")
    k.vmem(f"buffer_store_dwordx4 v[4:7], v3, s[{srd_ws}:{srd_ws+3}], 0 offen offset:{WS_TOK} sc1", "st")
    k.e("s_mov_b64 exec, s[42:43]")

def col_job2(k, s_job, srd_w, s_ld, s_col0b, srd_ws, s_half=None, mid=None):
    NL = 16 if s_half is None else 8
    k.e("v_and_b32 v1, 63, v0", "v_lshrrev_b32 v2, 6, v0", "v_lshrrev_b32 v3, 3, v1", f"v_lshl_add_u32 v3, v2, {7 if s_half is None else 6}, v3")
    if s_half is not None: k.e(f"s_lshl_b32 s40, s{s_half}, 8", "v_add_u32 v3, s40, v3")
    k.e(
        f"v_mul_lo_u32 v3, v3, s{s_ld}", "v_and_b32 v4, 7, v1", "v_lshl_add_u32 v3, v4, 4, v3", f"v_add_u32 v3, s{s_col0b}, v3",
        f"s_lshl_b32 s41, s{s_ld}, 3", "s_mov_b32 s40, 0")
    for i in range(NL):
        k.vmem(f"buffer_load_dwordx4 v[{8+4*i}:{11+4*i}], v3, s[{srd_w}:{srd_w+3}], s40 offen", ("cj", i))
        if i < NL - 1: k.e("s_add_u32 s40, s40, s41")
    LB = 32768 if mid else 0
    if mid:
        epoch_issue_all(k, 74); mid()
    k.e("s_mov_b32 s42, 0x00003f80", "s_mov_b32 s43, 0x3f800000")
    A = 80
    for i in range(8): k.e(f"v_mov_b32 v{A+i}, 0")
    for i in range(NL):
        k.wait_vm(("cj", i))
        if i == NL - 1 and not mid: epoch_issue_all(k, 74)
        for d in range(4):
            k.e(f"v_dot2_f32_bf16 v{A+2*d}, v{8+4*i+d}, s42, v{A+2*d}", f"v_dot2_f32_bf16 v{A+1+2*d}, v{8+4*i+d}, s43, v{A+1+2*d}")
    k.e("s_nop 2")
    for i in range(8): k.e(f"v_add_f32_dpp v{A+i}, v{A+i}, v{A+i} row_ror:8 row_mask:0xf bank_mask:0xf")
    k.e("v_lshrrev_b32 v5, 4, v1", "v_lshl_add_u32 v5, v2, 2, v5", "v_lshlrev_b32 v5, 8, v5", "v_lshl_add_u32 v5, v4, 5, v5",
        "v_and_b32 v6, 15, v1", "v_cmp_gt_u32 vcc, 8, v6", "s_and_saveexec_b64 s[44:45], vcc")
    k.ds(f"ds_write_b128 v5, v[{A}:{A+3}] offset:{LB}")
    k.ds(f"ds_write_b128 v5, v[{A+4}:{A+7}] offset:{LB+16}")
    k.e("s_mov_b64 exec, s[44:45]")
    k.wait_lg_all()
    k.e("s_barrier")
    k.e("v_lshlrev_b32 v5, 2, v1")
    for p in range(16): k.ds(f"ds_read_b32 v{8+p}, v5 offset:{LB+256*p}")
    k.wait_lg_all()
    for st in (8, 4, 2, 1):
        for p in range(st): k.e(f"v_add_f32 v{8+p}, v{8+p}, v{8+p+st}")
    k.e("s_nop 0",
        "v_cvt_pk_bf16_f32 v12, v8, v8", "s_nop 0", "v_and_b32 v9, 0xffff0000, v12", "v_sub_f32 v9, v8, v9",
        "v_cvt_pk_bf16_f32 v13, v9, v9", "s_nop 0", "v_and_b32 v10, 0xffff0000, v13", "v_sub_f32 v10, v9, v10",
        "v_cvt_pk_bf16_f32 v14, v8, v10",
        f"s_lshl_b32 s40, s{s_job}, 10", "v_lshlrev_b32 v5, 4, v1", "v_add_u32 v5, s40, v5", f"s_mov_b32 s40, {WS_COL}")
    if s_half is not None: k.e(f"s_mul_i32 s41, s{s_half}, {COL2}", "s_add_u32 s40, s40, s41")
    epoch_check_all(k, 74)
    k.e(f"v_mov_b32 v15, s{SEP}", "v_cmp_gt_u32 vcc, 64, v0", "s_and_saveexec_b64 s[44:45], vcc")
    Lx = k.newlabel("cjx")
    k.e(f"s_cbranch_execz {Lx}")
    k.vmem(f"buffer_store_dwordx4 v[12:15], v5, s[{srd_ws}:{srd_ws+3}], s40 offen sc1", "st", opt=True)
    k.label(Lx)
    k.e("s_mov_b64 exec, s[44:45]")
    k.e("s_barrier")

def stats_role2(k, SWQ=28, xal=False):
    Lc = k.newlabel("stc"); Ld = k.newlabel("std"); Lg = k.newlabel("stg")
    k.e("s_cmp_ge_u32 s3, 208", f"s_cbranch_scc1 {Ld}", "s_cmp_ge_u32 s3, 128", f"s_cbranch_scc1 {Lc}")
    if xal:
        k.e("s_and_b32 s96, s3, 7", "s_lshr_b32 s97, s3, 3", "s_lshl_b32 s96, s96, 4", "s_add_u32 s98, s96, s97")
    else: k.e("s_mov_b32 s98, s3")
    row_job2(k, 98, 8, 20)
    k.e(f"s_branch {Ld}")
    k.label(Lc)
    v0 = list(k.vm)
    k.vm = []; k.lg = []
    k.e("s_sub_u32 s98, s3, 128")
    if xal:
        La = k.newlabel("xa"); Lb = k.newlabel("xb")
        k.e("s_and_b32 s96, s98, 7", "s_lshr_b32 s97, s98, 3", "s_cmp_ge_u32 s97, 3", f"s_cbranch_scc1 {La}",
            "s_and_b32 s92, s96, 1", "s_lshl_b32 s92, s92, 2", "s_lshr_b32 s93, s96, 1", "s_add_u32 s92, s92, s93", "s_lshl_b32 s98, s97, 3", "s_add_u32 s98, s98, s92", f"s_branch {Lb}")
        k.label(La)
        k.e("s_lshr_b32 s92, s96, 1", "s_mul_i32 s92, s92, 7", "s_add_u32 s92, s92, s97", "s_sub_u32 s92, s92, 3",
            "s_and_b32 s93, s96, 1", "s_mul_i32 s93, s93, 7", "s_lshr_b32 s94, s92, 2", "s_add_u32 s93, s93, s94",
            "s_lshl_b32 s93, s93, 1", "s_and_b32 s94, s92, 1", "s_add_u32 s93, s93, s94",
            "s_bfe_u32 s94, s92, 0x10001", "s_mul_i32 s94, s94, 28", "s_add_u32 s98, s93, s94", "s_add_u32 s98, s98, 24")
        k.label(Lb)
    k.e(
        f"s_mov_b32 s92, s{SWQ}", f"s_mov_b32 s93, s{SWQ+1}", f"s_mov_b32 s94, {SZ_WQKV}", "s_mov_b32 s95, 0x00020000",
        "s_movk_i32 s96, 3072", "s_lshl_b32 s97, s98, 7",
        "s_cmp_lt_u32 s98, 24", f"s_cbranch_scc1 {Lg}",
        "s_mov_b32 s92, s12", "s_mov_b32 s93, s13", f"s_mov_b32 s94, {SZ_WG}", "s_movk_i32 s96, 3584",
        "s_sub_u32 s97, s98, 24", "s_lshl_b32 s97, s97, 7",
        "s_cmp_lt_u32 s98, 52", f"s_cbranch_scc1 {Lg}",
        "s_mov_b32 s92, s16", "s_mov_b32 s93, s17", "s_sub_u32 s97, s98, 52", "s_lshl_b32 s97, s97, 7")
    k.label(Lg)
    col_job2(k, 98, 92, 96, 97, 20)
    k.label(Ld)
    k.vm = [("st", True)]; k.lg = []

COL2 = 0x14000
def row_job3(k, s_job, srd_x, srd_ws, mid=None):
    k.e("v_and_b32 v1, 63, v0", "v_lshrrev_b32 v2, 6, v0", f"s_lshl_b32 s40, s{s_job}, 15", "s_movk_i32 s41, 4096",
        "v_lshlrev_b32 v3, 13, v2", "v_lshl_add_u32 v3, v1, 4, v3", "v_add_u32 v3, s40, v3")
    SRC = (4, 80)
    for b in range(2):
        for j in range(4):
            k.vmem(f"buffer_load_dwordx4 v[{SRC[b]+4*j}:{SRC[b]+3+4*j}], v3, s[{srd_x}:{srd_x+3}], {'s41' if b else '0'} offen offset:{1024*j}", ("rj", b))
    if mid:
        epoch_issue_all(k, 74); mid()
    k.e("v_bfe_u32 v72, v1, 1, 2", "v_cmp_eq_u32 s[42:43], 1, v72", "v_cmp_eq_u32 s[44:45], 2, v72", "v_cmp_eq_u32 s[46:47], 3, v72")
    k.e(f"s_lshl_b32 s40, s{s_job}, 10", "v_lshlrev_b32 v73, 8, v2", "v_lshl_add_u32 v73, v1, 4, v73", "v_add_u32 v73, s40, v73")
    for b in range(2):
        S = SRC[b]
        k.wait_vm(("rj", b))
        if b == 0 and not mid: epoch_issue_all(k, 74)
        for j in range(4):
            for i in range(4):
                k.e(f"v_lshlrev_b32 v{32+8*j+2*i}, 16, v{S+4*j+i}", f"v_and_b32 v{33+8*j+2*i}, 0xffff0000, v{S+4*j+i}")
        for j in range(4):
            bb = 32 + 8*j
            k.e(f"v_add_f32 v{20+j}, v{bb}, v{bb+1}")
        for i in range(2, 8):
            for j in range(4):
                k.e(f"v_add_f32 v{20+j}, v{20+j}, v{32+8*j+i}")
        allreduce(k, [20, 21, 22, 23], [24, 25, 26, 27])
        for j in range(4): k.e(f"v_mul_f32 v{20+j}, 0x3b000000, v{20+j}")
        for i in range(8):
            for j in range(4): k.e(f"v_sub_f32 v{32+8*j+i}, v{32+8*j+i}, v{20+j}")
        for j in range(4): k.e(f"v_mul_f32 v{28+j}, v{32+8*j}, v{32+8*j}")
        for i in range(1, 8):
            for j in range(4): k.e(f"v_fmac_f32 v{28+j}, v{32+8*j+i}, v{32+8*j+i}")
        allreduce(k, [28, 29, 30, 31], [24, 25, 26, 27])
        k.e("v_cndmask_b32 v64, v20, v21, s[42:43]", "v_cndmask_b32 v65, v28, v29, s[42:43]",
            "v_cndmask_b32 v64, v64, v22, s[44:45]", "v_cndmask_b32 v65, v65, v30, s[44:45]",
            "v_cndmask_b32 v64, v64, v23, s[46:47]", "v_cndmask_b32 v65, v65, v31, s[46:47]")
        k.e("v_mov_b32 v66, 0x3727c5ac", "v_fmac_f32 v66, 0x3b000000, v65",
            "v_rsq_f32 v67, v66", "v_sub_f32 v64, 0, v64",
            "v_mul_f32 v68, v66, v67",
            "v_cvt_pk_bf16_f32 v69, v64, v64", "s_nop 0", "v_and_b32 v69, 0xffff0000, v69", "v_sub_f32 v70, v64, v69",
            "v_cvt_pk_bf16_f32 v69, v70, v70", "s_nop 0", "v_and_b32 v69, 0xffff0000, v69", "v_sub_f32 v71, v70, v69",
            "v_cvt_pk_bf16_f32 v96, v64, v70", "v_cvt_pk_bf16_f32 v98, v71, v64",
            "v_and_b32 v72, 1, v1", "v_cmp_eq_u32 vcc, 1, v72", "v_mov_b32 v97, v96")
        if b == 0: epoch_check_all(k, 74)
        k.e(f"v_mov_b32 v99, s{SEP}", "v_and_b32 v72, 1, v1", "v_cmp_eq_u32 vcc, 1, v72", "s_nop 1",
            "v_cndmask_b32 v96, v96, v67, vcc", "v_cndmask_b32 v97, v97, v68, vcc", "v_cndmask_b32 v98, v98, v99, vcc")
        k.e("v_cmp_gt_u32 vcc, 8, v1", "s_and_saveexec_b64 s[48:49], vcc")
        k.vmem(f"buffer_store_dwordx4 v[96:99], v73, s[{srd_ws}:{srd_ws+3}], 0 offen offset:{WS_TOK + 128*b} sc1", "st")
        k.e("s_mov_b64 exec, s[48:49]", "s_nop 1")

def stats_role3(k, SWQ=28, mid=None):
    Lc = k.newlabel("stc"); Ld = k.newlabel("std"); Lg = k.newlabel("stg"); Lq = k.newlabel("stq")
    k.e("s_cmp_ge_u32 s3, 64", f"s_cbranch_scc1 {Lc}")
    k.e("s_mov_b32 s98, s3")
    row_job3(k, 98, 8, 20, mid=mid)
    k.e(f"s_branch {Ld}")
    Lf = k.newlabel("stf")
    if mid:
        k.label(Lf)
        k.vm = []; k.lg = []
        mid()
        k.e(f"s_branch {Ld}")
    k.label(Lc)
    k.vm = []; k.lg = []
    k.e("s_sub_u32 s98, s3, 64", "s_cmp_lt_u32 s3, 112", f"s_cbranch_scc1 {Lq}", "s_cmp_lt_u32 s3, 144", f"s_cbranch_scc1 {Lf if mid else Ld}", "s_sub_u32 s98, s3, 96")
    k.label(Lq)
    k.e("s_and_b32 s99, s98, 1", "s_lshr_b32 s98, s98, 1")
    k.e(
        f"s_mov_b32 s92, s{SWQ}", f"s_mov_b32 s93, s{SWQ+1}", f"s_mov_b32 s94, {SZ_WQKV}", "s_mov_b32 s95, 0x00020000",
        "s_movk_i32 s96, 3072", "s_lshl_b32 s97, s98, 7",
        "s_cmp_lt_u32 s98, 24", f"s_cbranch_scc1 {Lg}",
        "s_mov_b32 s92, s12", "s_mov_b32 s93, s13", f"s_mov_b32 s94, {SZ_WG}", "s_movk_i32 s96, 3584",
        "s_sub_u32 s97, s98, 24", "s_lshl_b32 s97, s97, 7",
        "s_cmp_lt_u32 s98, 52", f"s_cbranch_scc1 {Lg}",
        "s_mov_b32 s92, s16", "s_mov_b32 s93, s17", "s_sub_u32 s97, s98, 52", "s_lshl_b32 s97, s97, 7")
    k.label(Lg)
    col_job2(k, 98, 92, 96, 97, 20, s_half=99, mid=mid)
    k.label(Ld)
    k.vm = [("st", True), ("st", True)]; k.lg = []
    if mid: k.vm = [(("X", 0), False)]*4 + [(("W", 0), False)]*4 + [(("W", 1), False)]*4 + k.vm

def e1x_body(k, SX=8, SW=12, SWS=20, exit_loop=False, noex=False, wx=0, bal=False, rot=True, ux=11, pre_store=None, dup=False, rper=5, dper=2, notag=False, touch=False, fine=False):
    E1_XB = 49152
    k.e("v_and_b32 v1, 63, v0")
    k.e("v_and_b32 v11, 31, v1", "v_lshrrev_b32 v12, 5, v1")
    k.e("s_and_b32 s27, s24, 1", "s_lshr_b32 s28, s24, 1")
    k.e("v_lshrrev_b32 v13, 3, v1", "v_lshrrev_b32 v14, 4, v1", "v_and_b32 v15, 7, v1",
        "v_xor_b32 v7, v15, v14", "v_lshlrev_b32 v7, 4, v7", "v_lshl_add_u32 v7, v13, 10, v7",
        "s_lshl_b32 s29, s25, 16", "s_lshl_b32 s30, s24, 14", "s_add_u32 s29, s29, s30",
        "v_add_u32 v7, s29, v7", "v_xor_b32 v8, 64, v7", "v_add_u32 v8, 8192, v8")
    k.e("v_and_b32 v14, 1, v14", "v_lshlrev_b32 v14, 2, v14", "v_xor_b32 v9, v15, v14", "v_lshlrev_b32 v9, 4, v9",
        "s_lshl_b32 s30, s24, 3", "v_add_u32 v13, s30, v13", "v_mul_u32_u24 v13, 3072, v13", "v_add_u32 v9, v9, v13",
        f"s_xor_b32 s30, s26, {wx}", "s_lshl_b32 s30, s30, 7", "v_add_u32 v9, s30, v9")
    k.e(f"s_lshl_b32 s31, s24, 11", f"s_add_u32 s31, s31, {E1_XB}", "s_lshl_b32 s32, s24, 10")
    def xd(v):
        if rot:
            return [dmab(SX, 7, 31, (v % 3)*8192, 33, 51, 0, ("X", v)),
                    dmab(SX, 8, 31, (v % 3)*8192 + 1024, 33, 51, 0, ("X", v), post=["s_add_u32 s51, s51, 128", "s_and_b32 s51, s51, 1023"])]
        return [dma(SX, 7, 31, (v % 3)*8192, 33, v*128, ("X", v)), dma(SX, 8, 31, (v % 3)*8192 + 1024, 33, v*128, ("X", v))]
    def wd(u):
        if rot:
            return [dmab(SW, 9, 32, (u % 4)*12288 + p*4096, 33, 50, 0, ("W", u), imm=1024*p, post=(rot_adv(50, 32*3072, 512*3072, 52) if p == 2 else ())) for p in range(3)]
        return [dma(SW, 9, 32, (u % 4)*12288 + p*4096, 33, u*32*3072, ("W", u), imm=1024*p) for p in range(3)]
    if rot:
        k.e("s_lshl_b32 s51, s53, 7", f"s_mul_i32 s50, s53, {64*3072}")
    if touch:
        k.e("v_lshrrev_b32 v130, 3, v1", "v_and_b32 v131, 7, v1", "v_lshlrev_b32 v131, 7, v131", "v_lshl_add_u32 v130, v130, 10, v131",
            "s_and_b32 s34, s26, 3", "s_lshl_b32 s34, s34, 4", "s_lshl_b32 s35, s24, 2", "s_add_u32 s34, s34, s35", "s_lshl_b32 s34, s34, 10", "s_lshl_b32 s35, s25, 16", "s_add_u32 s34, s34, s35",
            "s_mov_b32 exec_hi, 0")
        k.vmem(f"buffer_load_dword v132, v130, s[{SX}:{SX+3}], s34 offen", "touch")
        k.e("s_mov_b32 exec_hi, -1")
        k.e("v_and_b32 v130, 15, v1", "v_mul_u32_u24 v130, 3072, v130", "v_lshrrev_b32 v131, 4, v1", "v_lshl_add_u32 v130, v131, 10, v130",
            "s_and_b32 s34, s25, 7", "s_lshl_b32 s34, s34, 6", "s_lshl_b32 s35, s24, 4", "s_add_u32 s34, s34, s35", "s_mul_i32 s34, s34, 3072", "s_lshl_b32 s35, s26, 7", "s_add_u32 s34, s34, s35",
            "s_mov_b32 exec_hi, 0xffff")
        k.vmem(f"buffer_load_dword v133, v130, s[{SW}:{SW+3}], s34 offen", "touch")
        k.e("s_mov_b32 exec_hi, -1")
    emit_groups(k, xd(0) + wd(0) + wd(1) + xd(1) + wd(2))
    k.e("s_lshl_b32 s36, s27, 5", "v_add_u32 v13, s36, v11", "v_bfe_u32 v14, v13, 1, 3", "v_xor_b32 v14, v14, v12",
        "v_lshlrev_b32 v14, 4, v14", "v_lshl_add_u32 v2, v13, 7, v14", f"v_add_u32 v2, {E1_XB}, v2",
        "v_xor_b32 v3, 32, v2", "v_xor_b32 v4, 64, v2", "v_xor_b32 v5, 96, v2")
    k.e("v_bfe_u32 v13, v1, 2, 2", "v_lshl_add_u32 v13, v12, 3, v13", "v_lshlrev_b32 v6, 7, v13",
        "v_bfe_u32 v13, v1, 4, 1", "v_lshlrev_b32 v13, 1, v13", "v_bfe_u32 v14, v1, 1, 1", "v_add_u32 v13, v13, v14",
        "s_lshl_b32 s36, s28, 2", "v_add_u32 v13, s36, v13", "v_bfe_u32 v14, v1, 3, 1", "v_lshlrev_b32 v14, 2, v14",
        "v_xor_b32 v13, v13, v14", "v_lshl_add_u32 v6, v13, 4, v6", "v_and_b32 v14, 1, v1", "v_lshl_add_u32 v6, v14, 3, v6",
        "v_xor_b32 v10, 2048, v6")
    k.e("s_lshl_b32 s34, s25, 6", "s_lshl_b32 s35, s27, 5", "s_add_u32 s34, s34, s35", "v_add_u32 v117, s34, v11", "v_lshlrev_b32 v117, 5, v117",
        "s_lshl_b32 s35, s26, 6", "s_lshl_b32 s36, s28, 5", "s_add_u32 s35, s35, s36", "v_add_u32 v118, s35, v11", "v_lshlrev_b32 v118, 4, v118")
    if bal: k.e(f"v_mul_u32_u24 v13, 0x{COL2:x}, v12", "v_add_u32 v118, v118, v13")
    def extras():
        k.vmem(f"buffer_load_dwordx4 v[48:51], v117, s[{SWS}:{SWS+3}], 0 offen offset:{WS_TOK} sc1", "ex")
        k.vmem(f"buffer_load_dwordx4 v[112:115], v117, s[{SWS}:{SWS+3}], 0 offen offset:{WS_TOK+16} sc1", "ex")
        for p in range(3):
            k.e(f"s_mov_b32 s36, {WS_COL + 8192*p}")
            k.vmem(f"buffer_load_dwordx4 v[{52+4*p}:{55+4*p}], v118, s[{SWS}:{SWS+3}], s36 offen sc1", "ex")
    ACC = 64
    def fr(st): return 16 + 16*st
    def reads(g, st):
        b = fr(st); u = g >> 1; v = g >> 2
        out = [(f"ds_read_b128 v[{b}:{b+3}], v{2 + (g & 3)} offset:{(v % 3)*8192}", "X")]
        av = 6 if (g & 1) == 0 else 10
        for p in range(3):
            o = (u % 4)*12288 + p*4096
            out.append((f"ds_read_b64_tr_b16 v[{b+4+4*p}:{b+5+4*p}], v{av} offset:{o}", f"W{p}"))
            out.append((f"ds_read_b64_tr_b16 v[{b+6+4*p}:{b+7+4*p}], v{av} offset:{o+512}", f"W{p}"))
        return out
    def mf(b_x, b_w, first):
        out = []
        for p in range(3):
            a = ACC + 16*p
            w = f"v[{b_w+4*p}:{b_w+4*p+3}]"; x = f"v[{b_x}:{b_x+3}]"
            A, B = (w, x) if p < 2 else (x, w)
            c = "0" if first else f"v[{a}:{a+15}]"
            out.append((f"{MF} v[{a}:{a+15}], {A}, {B}, {c}", ["X", f"W{p}"]))
        return out
    def mfmas(g, st): return mf(fr(st), fr(st) + 4, g == 0)
    def dmas(u):
        out = []
        if u + 3 < 16: out += wd(u + 3)
        if u % 2 == 0 and u//2 + 2 < 8: out += xd(u//2 + 2)
        return out
    hooks = {ux - 1: [lambda: epoch_issue_all(k, 120)], ux: [extras]}
    if noex: hooks = {}
    pre_hooks = None
    if fine: pre_hooks = {0: lambda: k.stamp(9), 1: lambda: k.stamp(10), 4: lambda: k.stamp(11), 10: lambda: k.stamp(12)}
    k.stamp(1)
    gemm2(k, 16, mfmas, reads, dmas, lambda u: [("W", u), ("X", u >> 1)], fill0=None, rper=rper, dper=dper, hooks=hooks, pre_hooks=pre_hooks)
    k.stamp(2)
    if exit_loop:
        for i in range(3, 9): k.stamp(i)
        k.stamp_out(9, 0, sh=7); k.e("s_waitcnt vmcnt(0)", "s_endpgm")
    epoch_check_all(k, 120)
    k.wait_vm("ex")
    def zero():
        for r in (51, 55, 59, 63): k.e(f"v_mov_b32 v{r}, 0")
        if bal:
            k.e("s_nop 1")
            return
        k.e("s_mov_b32 exec_lo, 0")
        for r in range(48, 64):
            if r not in (51, 55, 59, 63): k.e(f"v_mov_b32 v{r}, 0")
        k.e("s_mov_b32 exec_lo, -1", "s_nop 1")
    if notag: zero()
    else: tag_check(k, extras, [51, 114, 55, 59, 63], "x1", zero)
    for (t, _) in mf(48, 52, False): k.e(t)
    k.e("s_lshl_b32 s36, s24, 7", "v_lshlrev_b32 v13, 2, v11", "v_add_u32 v13, s36, v13")
    k.ds("ds_write_b32 v13, v112")
    k.e("v_lshlrev_b32 v13, 4, v12", "v_add_u32 v13, s36, v13")
    k.wait_lg_all()
    for gq in range(4): k.ds(f"ds_read_b128 v[{32+4*gq}:{35+4*gq}], v13 offset:{32*gq}")
    k.e(f"v_mul_f32 v113, 0x{f2u(0.25*LOG2E):08x}, v112")
    if pre_store: pre_store()
    k.e("v_lshlrev_b32 v10, 4, v1",
        "s_lshl_b32 s36, s26, 2", "s_lshl_b32 s37, s28, 1", "s_add_u32 s36, s36, s37", "s_lshl_b32 s36, s36, 16",
        "s_lshl_b32 s37, s25, 1", "s_add_u32 s37, s37, s27", "s_lshl_b32 s37, s37, 10", "s_add_u32 s36, s36, s37")
    k.e("v_lshrrev_b32 v17, 4, v11", "v_lshlrev_b32 v17, 16, v17", "v_lshl_add_u32 v17, v12, 8, v17", "v_and_b32 v18, 15, v11", "v_lshl_add_u32 v17, v18, 4, v17")
    k.e("s_nop 4")
    modes = ("sc1", "") if dup else ("sc1",)
    for p, (scale, base) in enumerate(((113, WS_QF), (112, WS_KF))):
        a = ACC + 16*p
        for r in range(16): k.e(f"v_mul_f32 v{a+r}, v{a+r}, v{scale}")
        for j in range(2):
            d = 20 + 8*p + 4*j if p == 0 else 48 + 4*j
            for i in range(4): k.e(f"v_cvt_pk_bf16_f32 v{d+i}, v{a+8*j+2*i}, v{a+8*j+2*i+1}")
            k.e(f"s_add_u32 s37, s36, 0x{base + j*65536:x}")
            for m in modes: k.vmem(f"buffer_store_dwordx4 v[{d}:{d+3}], v10, s[{SWS}:{SWS+3}], s37 offen {m}", "st")
    k.wait_lg_all()
    a = ACC + 32
    for r in range(16): k.e(f"v_mul_f32 v{a+r}, v{a+r}, v{32+r}")
    k.e(f"s_add_u32 s37, s36, 0x{WS_VF:x}")
    for j in range(2):
        d = 56 + 4*j
        for i in range(4): k.e(f"v_cvt_pk_bf16_f32 v{d+i}, v{a+8*j+2*i}, v{a+8*j+2*i+1}")
        for m in modes: k.vmem(f"buffer_store_dwordx4 v[{d}:{d+3}], v17, s[{SWS}:{SWS+3}], s37 offen offset:{512*j} {m}", "st")

def e3x_body(k, SX=8, SG=12, SU=16, SWS=20, part=None, bal=False, fine=False, epi_prio=None, post_loop=None, rot=True, ux=11, rper=4, dper=1, pre_loop=None):
    XB = 49152
    line0 = len(k.lines)
    k.e("v_and_b32 v1, 63, v0")
    k.e("v_and_b32 v11, 31, v1", "v_lshrrev_b32 v12, 5, v1")
    k.e("s_and_b32 s27, s24, 1", "s_lshr_b32 s28, s24, 1")
    k.e("v_lshrrev_b32 v13, 3, v1", "v_lshrrev_b32 v14, 4, v1", "v_and_b32 v15, 7, v1",
        "v_xor_b32 v7, v15, v14", "v_lshlrev_b32 v7, 4, v7", "v_lshl_add_u32 v7, v13, 10, v7",
        "s_lshl_b32 s29, s25, 17", "s_lshl_b32 s30, s24, 15", "s_add_u32 s29, s29, s30",
        "v_add_u32 v7, s29, v7", "v_xor_b32 v8, 64, v7", "v_add_u32 v8, 8192, v8")
    k.e("v_lshlrev_b32 v13, 2, v14", "v_and_b32 v15, 15, v1", "v_xor_b32 v9, v15, v13", "v_lshlrev_b32 v9, 4, v9",
        "s_lshl_b32 s30, s24, 3", "v_add_u32 v13, s30, v14", "v_mul_u32_u24 v13, 3584, v13", "v_add_u32 v9, v9, v13",
        "s_lshl_b32 s30, s26, 8", "v_add_u32 v9, s30, v9")
    k.e(f"s_lshl_b32 s31, s24, 12", f"s_add_u32 s31, s31, {XB}", "s_lshl_b32 s32, s24, 11")
    def xd(v):
        if rot:
            return [dmab(SX, 7 + (i & 1), 31, (v % 2)*16384 + i*1024, 33, 51, (i >> 1)*16384, ("X", v),
                         post=(["s_add_u32 s51, s51, 128", "s_and_b32 s51, s51, 1023"] if i == 3 else ())) for i in range(4)]
        return [dma(SX, 7 + (i & 1), 31, (v % 2)*16384 + i*1024, 33, v*128 + (i >> 1)*16384, ("X", v)) for i in range(4)]
    def wd(u):
        out = []
        for i in range(2):
            for p, sr in enumerate((SG, SU)):
                if rot:
                    out.append(dmab(sr, 9, 32, (u % 3)*16384 + p*8192 + i*1024, 33, 50, 4*i*3584, ("W", u),
                                    post=(rot_adv(50, 32*3584, 512*3584, 52) if (i, p) == (1, 1) else ())))
                else:
                    out.append(dma(sr, 9, 32, (u % 3)*16384 + p*8192 + i*1024, 33, (u*32 + 4*i)*3584, ("W", u)))
        return out
    if part != "main":
        if rot:
            k.e("s_lshl_b32 s51, s53, 7", f"s_mul_i32 s50, s53, {64*3584}")
        emit_groups(k, xd(0) + wd(0) + wd(1))
    if part == "pre":
        import re
        for i in range(line0, len(k.lines)):
            k.lines[i] = re.sub(r"\bv(\d+)\b", lambda m: m.group(0) if int(m.group(1)) < 2 else f"v{int(m.group(1)) + 200}", k.lines[i])
        return
    if pre_loop: pre_loop()
    k.e("s_lshl_b32 s36, s27, 6", "v_add_u32 v13, s36, v11", "v_bfe_u32 v14, v13, 1, 3", "v_xor_b32 v14, v14, v12",
        "v_lshlrev_b32 v14, 4, v14", "v_lshl_add_u32 v2, v13, 7, v14", f"v_add_u32 v2, {XB}, v2",
        "v_xor_b32 v3, 32, v2", "v_xor_b32 v4, 64, v2", "v_xor_b32 v5, 96, v2")
    k.e("v_bfe_u32 v15, v1, 2, 2", "v_lshl_add_u32 v13, v12, 3, v15", "v_lshlrev_b32 v6, 8, v13",
        "v_bfe_u32 v13, v1, 4, 1", "v_lshlrev_b32 v13, 1, v13", "v_bfe_u32 v14, v1, 1, 1", "v_add_u32 v13, v13, v14",
        "s_lshl_b32 s36, s28, 3", "v_add_u32 v13, s36, v13", "v_lshlrev_b32 v15, 2, v15",
        "v_xor_b32 v13, v13, v15", "v_lshl_add_u32 v6, v13, 4, v6", "v_and_b32 v14, 1, v1", "v_lshl_add_u32 v6, v14, 3, v6",
        "v_xor_b32 v10, 64, v6", "v_xor_b32 v72, 4096, v6", "v_xor_b32 v73, 4096, v10")
    k.e("s_lshl_b32 s34, s25, 7", "s_lshl_b32 s35, s27, 6", "s_add_u32 s34, s34, s35", "v_add_u32 v108, s34, v11", "v_lshlrev_b32 v108, 5, v108",
        "s_lshl_b32 s35, s26, 7", "s_lshl_b32 s36, s28, 6", "s_add_u32 s35, s35, s36", "v_add_u32 v109, s35, v11", "v_lshlrev_b32 v109, 4, v109")
    if bal: k.e(f"v_mul_u32_u24 v13, 0x{COL2:x}, v12", "v_add_u32 v109, v109, v13")
    EX = 76
    def extras():
        for tb in range(2):
            k.vmem(f"buffer_load_dwordx4 v[{EX+4*tb}:{EX+3+4*tb}], v108, s[{SWS}:{SWS+3}], 0 offen offset:{WS_TOK+1024*tb} sc1", "ex")
            k.vmem(f"buffer_load_dwordx4 v[{100+4*tb}:{103+4*tb}], v108, s[{SWS}:{SWS+3}], 0 offen offset:{WS_TOK+16+1024*tb} sc1", "ex")
        for part in range(2):
            k.e(f"s_mov_b32 s36, {WS_COL + (1536 + 1792*part)*16}")
            for b in range(2):
                d = EX + 8 + 8*part + 4*b
                k.vmem(f"buffer_load_dwordx4 v[{d}:{d+3}], v109, s[{SWS}:{SWS+3}], s36 offen offset:{512*b} sc1", "ex")
    ACC = 128
    def fr(st): return 16 + 24*st
    def acc(part, b, tb): return ACC + 16*(part*4 + b*2 + tb)
    def reads(g, st):
        b0 = fr(st); u = g >> 1; v = g >> 2
        def wr(part, b):
            d = b0 + 8 + 8*part + 4*b
            o = (u % 3)*16384 + part*8192
            av = ((6, 10), (72, 73))[g & 1][b]
            return [(f"ds_read_b64_tr_b16 v[{d}:{d+1}], v{av} offset:{o}", f"W{part}{b}"),
                    (f"ds_read_b64_tr_b16 v[{d+2}:{d+3}], v{av} offset:{o+1024}", f"W{part}{b}")]
        def xr(tb): return [(f"ds_read_b128 v[{b0+4*tb}:{b0+4*tb+3}], v{2 + (g & 3)} offset:{(v % 2)*16384 + tb*4096}", f"X{tb}")]
        return xr(0) + wr(0, 0) + xr(1) + wr(0, 1) + wr(1, 0) + wr(1, 1)
    def mf(b0, first):
        out = []
        for part in range(2):
            for b in range(2):
                for tb in range(2):
                    a = acc(part, b, tb); w = b0 + 8 + 8*part + 4*b; x = b0 + 4*tb
                    c = "0" if first else f"v[{a}:{a+15}]"
                    out.append((f"{MF} v[{a}:{a+15}], v[{w}:{w+3}], v[{x}:{x+3}], {c}", [f"X{tb}", f"W{part}{b}"]))
        return out
    def mfmas(g, st): return mf(fr(st), g == 0)
    def dmas(u):
        out = []
        if u + 2 < 16: out += wd(u + 2)
        if u % 2 == 0 and u//2 + 1 < 8: out += xd(u//2 + 1)
        return out
    hooks = {ux - 1: [lambda: epoch_issue_all(k, 112)], ux: [extras]}
    ph = None
    if fine: ph = {u: (lambda i=i: k.stamp(i)) for i, u in enumerate((0, 2, 5, 8, 11, 14), 1)}
    else: k.stamp(1)
    gemm2(k, 16, mfmas, reads, dmas, lambda u: [("W", u), ("X", u >> 1)], fill0=None, rper=rper, dper=dper, hooks=hooks, pre_hooks=ph)
    if fine:
        k.stamp(7); k.nostamp = True
    k.stamp(2)
    if epi_prio is not None: k.e(f"s_setprio {epi_prio}")
    epoch_check_all(k, 112)
    k.wait_vm("ex")
    tags = [EX + 3 + 4*i for i in range(6)]
    def zero():
        for r in tags: k.e(f"v_mov_b32 v{r}, 0")
        if bal:
            k.e("s_nop 1")
            return
        k.e("s_mov_b32 exec_lo, 0")
        for r in range(EX, EX + 24):
            if r not in tags: k.e(f"v_mov_b32 v{r}, 0")
        k.e("s_mov_b32 exec_lo, -1", "s_nop 1")
    tag_check(k, extras, tags + [102, 106], "x3", zero)
    for (t, _) in mf(EX, False): k.e(t)
    if post_loop: post_loop()
    k.e(f"v_mul_f32 v110, 0x{f2u(-LOG2E):08x}, v100", f"v_mul_f32 v111, 0x{f2u(-LOG2E):08x}, v104")
    k.e("v_lshlrev_b32 v10, 4, v1",
        "s_lshl_b32 s36, s25, 2", "s_lshl_b32 s37, s27, 1", "s_add_u32 s36, s36, s37", "s_mul_i32 s36, s36, 112",
        "s_lshl_b32 s37, s26, 3", "s_add_u32 s36, s36, s37", "s_lshl_b32 s37, s28, 2", "s_add_u32 s36, s36, s37",
        "s_lshl_b32 s36, s36, 10", f"s_add_u32 s36, s36, 0x{WS_HF:x}")
    k.e("s_nop 7")
    n = 0
    for b in range(2):
        for tb in range(2):
            g = acc(0, b, tb); uu = acc(1, b, tb)
            A = 110 + tb; SD = 101 + 4*tb
            for r in range(16): k.e(f"v_mul_f32 v{g+r}, v{g+r}, v{A}")
            for r in range(16): k.e(f"v_exp_f32 v{g+r}, v{g+r}")
            for r in range(16): k.e(f"v_fma_f32 v{g+r}, v{g+r}, v{SD}, v{SD}")
            for r in range(16): k.e(f"v_rcp_f32 v{g+r}, v{g+r}")
            k.e("s_nop 0")
            for r in range(16): k.e(f"v_mul_f32 v{g+r}, v{g+r}, v{uu+r}")
            for j in range(2):
                d = 16 + 4*(n % 8); n += 1
                for i in range(4): k.e(f"v_cvt_pk_bf16_f32 v{d+i}, v{g+8*j+2*i}, v{g+8*j+2*i+1}")
                k.e(f"s_add_u32 s37, s36, {(tb*112 + b*2 + j)*1024}")
                k.vmem(f"buffer_store_dwordx4 v[{d}:{d+3}], v10, s[{SWS}:{SWS+3}], s37 offen sc1", "st")

def kF1(name="f1_fused_kernel", prio_e1=None, prio_e2=None, prio_g=None, epi_prio=1, post_prio=0, e4_prio=None, hsleep=2, osleep=2, qsleep=2,
        rot=True, ux1=11, ux3=11, dup=False, force_fb=False, nostats=False, gexit=0, notag=False, xal=False, touch1=False, fine1=False, mode1="x", mode3="x", touch3=0, rp1=5, dp1=2, rp3=4, dp3=1, ugo=None, gosleep=4, gomax=64, gp_touch=False, prio_e3=None, bal=False, tw=False, fine3=False, aexit=False, qnopoll=0, cpf=0, map1=0, wx=0, hoist=False, aexit2=0, pre=0, rsleep=0, lim1=16, qpipe=0, qgap=4):
    k = KV(name, nvgpr=256)
    k.e("s_cmp_ge_u32 s2, 512", f"s_cbranch_scc1 L_end_{k.name}")
    fx = srd(k, 8, 0, SZ_X) + srd(k, 20, 72, WS_SIZE2)
    load_dbg(k)
    if cpf:
        Lp = k.newlabel("cpf"); Lq = k.newlabel("pc")
        k.e(f"s_cmp_ge_u32 s2, {cpf}", f"s_cbranch_scc1 {Lp}", "s_getpc_b64 s[36:37]")
        k.label(Lq)
        k.e(f"s_sub_u32 s36, s36, {Lq}-{k.name}", "s_subb_u32 s37, s37, 0", "v_lshlrev_b32 v250, 7, v0",
            "v_mov_b32 v249, s37", "v_add_co_u32 v248, vcc, s36, v250", "s_nop 1", "v_addc_co_u32 v249, vcc, 0, v249, vcc")
        k.vmem("global_load_dword v252, v[248:249], off", "cpf", opt=True)
        k.e("v_add_u32 v250, 0x8000, v250", f"v_cmp_gt_u32 vcc, L_code_end-{k.name}, v250", "v_add_co_u32 v248, s[38:39], 0x4000, v248" if False else "s_nop 0")
        k.e("s_and_saveexec_b64 s[38:39], vcc", "v_mov_b32 v249, s37", "v_add_co_u32 v248, vcc, s36, v250", "s_nop 1", "v_addc_co_u32 v249, vcc, 0, v249, vcc")
        k.vmem("global_load_dword v253, v[248:249], off", "cpf", opt=True)
        k.e("s_mov_b64 exec, s[38:39]")
        k.label(Lp)
    k.e("v_lshrrev_b32 v10, 6, v0", "s_nop 1", "v_readfirstlane_b32 s24, v10")
    k.e("s_cmp_ge_u32 s2, 256", "s_cbranch_scc1 L_f1_g")
    fx1 = srd(k, 12, 8, SZ_WQKV)
    k.e("s_waitcnt lgkmcnt(0)"); k.e(*(fx + fx1))
    epoch_make(k)
    if prio_e1 is not None: k.e(f"s_setprio {prio_e1}")
    k.e("s_and_b32 s3, s2, 7", "s_lshr_b32 s4, s2, 3", "s_and_b32 s5, s3, 1", "s_lshl_b32 s26, s5, 2", "s_and_b32 s5, s4, 3", "s_add_u32 s26, s26, s5",
        "s_lshr_b32 s25, s3, 1", "s_lshl_b32 s25, s25, 3", "s_lshr_b32 s5, s4, 2", "s_add_u32 s25, s25, s5")
    k.e("s_and_b32 s53, s26, 3", "s_lshl_b32 s53, s53, 1", "s_add_u32 s53, s53, s25", "s_and_b32 s53, s53, 7")
    if map1:
        k.e("s_and_b32 s26, s4, 7", "s_lshl_b32 s25, s3, 2", "s_lshr_b32 s5, s4, 3", "s_add_u32 s25, s25, s5",
            "s_lshl_b32 s53, s5, 1", "s_add_u32 s53, s53, s26", "s_and_b32 s53, s53, 7")
    k.e("s_lshl_b32 s44, s3, 2", "s_and_b32 s5, s4, 3", "s_add_u32 s44, s44, s5", "s_lshr_b32 s45, s4, 2")
    k.stamp(0)
    if aexit:
        for i in range(1, 9): k.stamp(i)
        k.stamp_out(9, 0, sh=7); k.wait_vm_all(); k.e("s_waitcnt vmcnt(0)", "s_endpgm")
    def o_fill():
        k.e("v_mov_b32 v204, -1", "v_mov_b32 v205, -1", "v_mov_b32 v206, -1", "v_mov_b32 v207, -1", "v_lshlrev_b32 v203, 4, v1",
            "s_lshl_b32 s46, s45, 3", "s_lshl_b32 s47, s24, 1", "s_add_u32 s46, s46, s47", "s_lshl_b32 s46, s46, 5", "s_add_u32 s46, s46, s44",
            "s_lshl_b32 s46, s46, 10", f"s_add_u32 s46, s46, 0x{WS_OF:x}")
        k.vmem("buffer_store_dwordx4 v[204:207], v203, s[20:23], s46 offen sc1", "st")
        k.e("s_add_u32 s46, s46, 32768")
        k.vmem("buffer_store_dwordx4 v[204:207], v203, s[20:23], s46 offen sc1", "st")
    def go_store():
        L = w0_begin(k)
        k.e("s_lshl_b32 s46, s2, 7", f"s_add_u32 s46, s46, 0x{FLG_GO:x}", "v_mov_b32 v208, s46", "v_mov_b32 v209, 1", "s_mov_b64 exec, 1")
        k.vmem("buffer_store_dword v209, v208, s[20:23], 0 offen sc1", "go", opt=True)
        k.e("s_mov_b64 exec, -1")
        k.label(L)
    if mode1 == "x":
        e1x_body(k, exit_loop=(aexit2 in (1, 3)), noex=(aexit2 == 3), wx=wx, bal=bal, rot=rot, ux=ux1, pre_store=o_fill, dup=dup, notag=notag, touch=touch1, fine=fine1)
    else:
        ph = {0: lambda: k.stamp(9), 1: lambda: k.stamp(10), 4: lambda: k.stamp(11), 10: lambda: k.stamp(12)} if fine1 else None
        hk = {11: [lambda: epoch_issue_all(k, 200)]}
        if isinstance(ugo, int): hk.setdefault(ugo, []).append(go_store)
        e1s_body(k, sc1="sc1", rot=rot, mst={"s": 0, "m": 1, "n": 2}[mode1], rper=rp1, dper=dp1, pre_hooks=ph, hooks=hk, pre_store=lambda: (epoch_check_all(k, 200), o_fill()))
    k.stamp(3)
    if ugo == "pub0": go_store()
    k.e("s_lshl_b32 s48, s26, 5", "s_add_u32 s48, s48, s25", "s_lshl_b32 s48, s48, 3", f"s_add_u32 s48, s48, 0x{FLG_QKV8:x}")
    publish(k, 48, vt=19)
    k.stamp(4)
    if aexit2 == 2:
        for i in range(5, 9): k.stamp(i)
        k.stamp_out(9, 0, sh=7); k.e("s_waitcnt vmcnt(0)", "s_endpgm")
    if ugo == "pub": go_store()
    k.e("s_mov_b32 s25, s44", "s_mov_b32 s26, s45")
    if prio_e2 is not None: k.e(f"s_setprio {prio_e2}")
    def qkv_wait():
        k.e("v_and_b32 v20, 31, v1", "v_lshlrev_b32 v20, 3, v20", "s_lshr_b32 s36, s25, 2", "s_lshl_b32 s36, s36, 8", f"s_add_u32 s36, s36, 0x{FLG_QKV8:x}",
            "v_add_u32 v20, s36, v20")
        L = w0_begin(k)
        Ll = k.newlabel("qw")
        if qnopoll:
            for _ in range(qnopoll): k.e("s_sleep 16")
            k.e(f"s_branch {L}")
        k.e(f"s_mov_b32 s{SCNT}, 0")
        if qpipe:
            ld = lambda i: f"buffer_load_dwordx2 v[{28+2*i}:{29+2*i}], v20, s[20:23], 0 offen sc1"
            for i in range(qpipe - 1): k.e(ld(i), f"s_sleep {qgap}")
            k.label(Ll)
            for i in range(qpipe):
                k.e(ld((i + qpipe - 1) % qpipe), f"s_waitcnt vmcnt({qpipe - 1})", f"v_cmp_eq_u64 vcc, s[{SEP}:{SEP+1}], v[{28+2*i}:{29+2*i}]",
                    "s_nop 3", "s_cmp_eq_u64 vcc, -1", f"s_cbranch_scc1 {L}")
            k.e(f"s_add_u32 s{SCNT}, s{SCNT}, 1", f"s_cmp_lt_u32 s{SCNT}, 0x{SPIN_MAX:x}", f"s_cbranch_scc1 {Ll}")
        else:
            k.label(Ll)
            k.e("buffer_load_dwordx2 v[22:23], v20, s[20:23], 0 offen sc1", f"s_add_u32 s{SCNT}, s{SCNT}, 1", "s_waitcnt vmcnt(0)",
                f"v_cmp_eq_u64 vcc, s[{SEP}:{SEP+1}], v[22:23]", "s_nop 3", "s_cmp_eq_u64 vcc, -1", f"s_cbranch_scc1 {L}",
                f"s_sleep {qsleep}", f"s_cmp_lt_u32 s{SCNT}, 0x{SPIN_MAX:x}", f"s_cbranch_scc1 {Ll}")
        k.label(L)
        k.wait_lg_all()
        k.e("s_barrier")
        if ugo == "e2": go_store()
        k.stamp(5 - k.stamp_off)
    k.stamp_off = 5
    e2_body(k, sc1="sc1", st_sc1="sc1", oflag="ep", pre_hook=qkv_wait, force_fb=force_fb, prehint=pre)
    k.stamp_off = 0
    k.wait_vm_all()
    k.stamp(8); k.stamp_out(13 if fine1 else 9, 0, sh=7); k.wait_vm_all()
    k.e("s_endpgm")
    fb = k.fb_code
    k.label("L_f1_g")
    k.vm = []; k.lg = []
    SD, SO, SX, SOUT = 84, 88, 8, 4
    fx3 = srd(k, 12, 32, SZ_WG) + srd(k, 16, 40, SZ_WG) + srd(k, SD, 48, SZ_WD) + srd(k, SO, 16, SZ_WO) + srd(k, SOUT, 56, SZ_X)
    k.e(f"s_load_dwordx2 s[{34 if hoist else 28}:{35 if hoist else 29}], s[0:1], 8")
    k.e("s_sub_u32 s3, s2, 256")
    k.e("s_waitcnt lgkmcnt(0)"); k.e(*(fx + fx3))
    if prio_g is not None: k.e(f"s_setprio {prio_g}")
    def go_clear(idx=3):
        if ugo is None: return
        L = w0_begin(k)
        k.e(f"s_lshl_b32 s36, s{idx}, 7", f"s_add_u32 s36, s36, 0x{FLG_GO:x}", "v_mov_b32 v62, s36", "v_mov_b32 v63, 0", "s_mov_b64 exec, 1",
            "buffer_store_dword v63, v62, s[20:23], 0 offen sc1", "s_mov_b64 exec, -1")
        k.label(L)
    def go_wait():
        if ugo is None: return
        L = w0_begin(k)
        Ll = k.newlabel("go")
        k.e("s_waitcnt vmcnt(0)", "s_mov_b32 s38, 0", "s_mov_b64 exec, 1")
        k.label(Ll)
        k.e("buffer_load_dword v63, v62, s[20:23], 0 offen sc1", "s_add_u32 s38, s38, 1", "s_waitcnt vmcnt(0)", "v_readfirstlane_b32 s39, v63", "s_nop 3",
            "s_cmp_eq_u32 s39, 1", f"s_cbranch_scc1 {Ll}x", f"s_sleep {gosleep}", f"s_cmp_lt_u32 s38, {gomax}", f"s_cbranch_scc1 {Ll}")
        k.label(Ll + "x")
        k.e("s_mov_b64 exec, -1")
        k.label(L)
        k.e("s_barrier")
    k.stamp(0)
    go_clear()
    if gexit == 1: k.e("s_endpgm")
    def role3():
        k.e("s_and_b32 s92, s3, 7", "s_lshr_b32 s93, s3, 3")
        k.e("s_and_b32 s26, s92, 1", "s_mul_i32 s26, s26, 7", "s_lshr_b32 s94, s93, 2", "s_add_u32 s26, s26, s94",
            "s_lshr_b32 s25, s92, 1", "s_lshl_b32 s25, s25, 2", "s_and_b32 s95, s93, 3", "s_add_u32 s25, s25, s95")
        k.e("s_lshl_b32 s53, s95, 1", "s_add_u32 s53, s53, s94", "s_and_b32 s53, s53, 7")
    if hoist:
        role3()
        stats_role3(k, SWQ=34, mid=lambda: e3x_body(k, part="pre", bal=bal, rot=rot))
    elif not nostats: (stats_role3(k) if bal else stats_role2(k, xal=xal))
    if gexit == 2: k.e("s_waitcnt vmcnt(0)", "s_endpgm")
    e4 = E4F(k, SD, SO, 20, SX, SOUT, hsleep=hsleep, osleep=osleep, ep=True)
    c = e4
    k.e("s_and_b32 s92, s3, 7", "s_lshr_b32 s93, s3, 3",
        f"s_and_b32 s{c.SRB}, s93, 3", "s_lshl_b32 s94, s92, 2", f"s_add_u32 s{c.SRB}, s{c.SRB}, s94", f"s_lshr_b32 s{c.SCB}, s93, 2")
    k.e("s_cmp_ge_u32 s2, 480", "s_cbranch_scc1 L_f1_pf")
    k.e("s_and_b32 s26, s92, 1", "s_mul_i32 s26, s26, 7", "s_lshr_b32 s94, s93, 2", "s_add_u32 s26, s26, s94",
        "s_lshr_b32 s25, s92, 1", "s_lshl_b32 s25, s25, 2", "s_and_b32 s95, s93, 3", "s_add_u32 s25, s25, s95")
    k.e("s_lshl_b32 s53, s95, 1", "s_add_u32 s53, s53, s94", "s_and_b32 s53, s53, 7")
    def touchW(vd=60):
        a = 61
        k.e(f"s_and_b32 s{c.SC}, s{c.SRB}, 3", f"s_mul_i32 s{c.SK}, s{c.SC}, {112*1024}", f"s_add_u32 s{c.SK}, s{c.SK}, s{c.SDO}",
            f"s_lshl_b32 s{c.ST}, s{c.SCB}, 7", f"v_lshlrev_b32 v{a}, 10, v1", f"v_add_u32 v{a}, s{c.ST}, v{a}")
        k.vmem(f"buffer_load_dword v{vd}, v{a}, s[{c.SD}:{c.SD+3}], s{c.SK} offen", "touch")
        k.e(f"s_add_u32 s{c.SK}, s{c.SK}, 65536", "s_mov_b32 exec_hi, 0xffff")
        k.vmem(f"buffer_load_dword v{vd+2}, v{a}, s[{c.SD}:{c.SD+3}], s{c.SK} offen", "touch")
        k.e(f"s_lshl_b32 s{c.SK}, s{c.SC}, 15", f"s_add_u32 s{c.SK}, s{c.SK}, s{c.SWO}", "s_mov_b32 exec_hi, 0")
        k.vmem(f"buffer_load_dword v{vd+3}, v{a}, s[{c.SO}:{c.SO+3}], s{c.SK} offen", "touch")
        k.e("s_mov_b32 exec_hi, -1")
    def post_loop():
        k.e("s_barrier")
        e4.setup()
        for s in range(c.DEPTH): e4.issueW(s)
        if tw: touchW()
    def touch_w3():
        if touch3 in (0, 3): go_wait()
        if not touch3: return
        k.e("v_lshrrev_b32 v66, 1, v1", "v_mul_u32_u24 v66, 3584, v66", "v_and_b32 v67, 1, v1", "v_lshl_add_u32 v66, v67, 7, v66",
            "s_lshl_b32 s36, s95, 7", "s_lshl_b32 s37, s24, 5", "s_add_u32 s36, s36, s37", "s_mul_i32 s36, s36, 3584", "s_lshl_b32 s37, s26, 8", "s_add_u32 s36, s36, s37")
        k.vmem("buffer_load_dword v74, v66, s[12:15], s36 offen", "touch")
        k.vmem("buffer_load_dword v75, v66, s[16:19], s36 offen", "touch")
        if touch3 == 2: k.wait_vm("touch")
        if touch3 in (1, 2): go_wait()
    if prio_e3 is not None: k.e(f"s_setprio {prio_e3}")
    if mode3 == "x":
        e3x_body(k, part=("main" if hoist else None), bal=bal, fine=fine3, epi_prio=epi_prio, post_loop=post_loop, rot=rot, ux=ux3)
    else:
        e3s_body(k, st_sc1="sc1", epi_prio=epi_prio, post_loop=post_loop, rot=rot, outb=64, pre_dma=touch_w3, mst={"s": 0, "m": 1, "n": 2}[mode3], rper=rp3, dper=dp3,
                 hooks={11: [lambda: epoch_issue_all(k, 124)], 13: [lambda: epoch_check_all(k, 124)]})
    k.e("s_lshl_b32 s36, s25, 1", "s_add_u32 s36, s36, s27", "s_lshl_b32 s36, s36, 8", "s_lshl_b32 s37, s26, 1", "s_add_u32 s37, s37, s28",
        "s_lshl_b32 s37, s37, 3", "s_add_u32 s36, s36, s37", f"s_add_u32 s36, s36, 0x{FLG_H8:x}", "v_mov_b32 v56, s36",
        f"v_mov_b32 v58, s{SEP}", f"v_mov_b32 v59, s{SEP+1}")
    k.stamp(3)
    k.wait_vm_all()
    if gexit == 3:
        ns = getattr(k, "nostamp", False); k.stamp_out(8, 0x40000, sh=7); k.e("s_waitcnt vmcnt(0)", "s_endpgm")
    k.stamp(4)
    k.e("s_mov_b64 exec, 1")
    k.vmem("buffer_store_dwordx2 v[58:59], v56, s[20:23], 0 offen sc1", "flag")
    k.e("s_mov_b64 exec, -1")
    if post_prio is not None: k.e(f"s_setprio {post_prio}")
    k.e("s_branch L_f1_e4")
    k.label("L_f1_pf")
    if gexit == 3: k.e("s_endpgm")
    if hoist: k.e("s_waitcnt vmcnt(0)", "s_barrier")
    k.vm = []; k.lg = []
    k.e("v_and_b32 v1, 63, v0")
    if gp_touch:
        k.e("s_sub_u32 s99, s3, 224")
        go_wait()
        k.e("s_lshl_b32 s36, s99, 8", "v_add_u32 v60, s36, v0", "v_lshlrev_b32 v60, 7, v60", "s_mov_b32 s36, 0x100000")
        k.vmem(f"buffer_load_dword v61, v60, s[{SD}:{SD+3}], 0 offen", "touch")
        k.vmem(f"buffer_load_dword v62, v60, s[{SD}:{SD+3}], s36 offen", "touch")
        k.vmem(f"buffer_load_dword v63, v60, s[{SO}:{SO+3}], 0 offen", "touch")
    epoch_issue_all(k, 112)
    k.stamp(1); k.stamp(2); k.stamp(3); k.stamp(4)
    e4.setup()
    epoch_check_all(k, 112)
    for s in range(c.DEPTH): e4.issueW(s)
    if post_prio is not None: k.e(f"s_setprio {post_prio}")
    k.label("L_f1_e4")
    k.vm = [(("W", s), False) for s in range(c.DEPTH) for _ in range(2)] + [("flag", True)]
    k.lg = []
    e4.e4_prio = e4_prio; e4.post_prio = post_prio; e4.pre = pre; e4.rsleep = rsleep; e4.lim1 = lim1
    e4.body(st=(5, 6))
    k.wait_vm_all()
    k.stamp(7); k.stamp_out(8, 0x40000, sh=7); k.wait_vm_all()
    k.label(f"L_end_{k.name}")
    k.e("s_endpgm")
    fb()
    k.emit_tails()
    k.label("L_code_end")
    k.e("s_endpgm")
    return k

def build(fn, **kw):
    k = kF1(**kw)
    txt = build_file([(k.name, (512,1,1), (256,1,1), 81920)], [k])
    open(fn, "w").write(txt)
    e = haz.check_text(txt)
    for x in e: print(x)
    print(fn, len(e), "hazards;", len(txt), "bytes")

if __name__ == "__main__":
    build("f1.s")
    KV.STAMP = True
    build("f1st.s")
```

```python
from f1 import *
import f1
build("f1p3.s", pre=3)
build("f1p3o1.s", pre=3, osleep=1)
build("f1p3b.s", pre=3, bal=True, prio_e1=3, prio_e2=0)
build("f1p4b.s", pre=4, bal=True, prio_e1=3, prio_e2=0, osleep=1)
```

```python
from f1 import *
import f1
build("g1.s", pre=3, osleep=1)
build("g2.s", pre=3, osleep=1, cpf=8)
build("g3.s", pre=3, osleep=1, cpf=8, bal=True, prio_e1=3, prio_e2=0)
build("g4.s", pre=2, osleep=1, cpf=8)
build("g5.s", pre=3, osleep=1, hsleep=1, cpf=8)
build("g6.s", pre=4, osleep=1, cpf=8, rsleep=1)
```

```python
import sys
sys.path.insert(0, "gen")
from eng import *
import eng, haz

FLG_GO = FLG + 0x8000

EPCONST = [False]
def epoch_issue_all(k, vd):
    if EPCONST[0]: return
    k.e(f"v_mov_b32 v{vd+2}, 0")
    k.vmem(f"global_load_dwordx2 v[{vd}:{vd+1}], v{vd+2}, s[{SDBG}:{SDBG+1}] sc1", "ep")

def epoch_check_all(k, vd):
    if EPCONST[0]:
        k.e(f"s_mov_b32 s{SEP}, 0x13572469", f"s_mov_b32 s{SEP+1}, 0x2468ace1"); return
    Ls = k.newlabel("eps"); Lc = k.newlabel("epc")
    k.wait_vm("ep")
    k.e(f"v_readfirstlane_b32 s{SEP}, v{vd}", f"v_readfirstlane_b32 s{SEP+1}, v{vd+1}", "s_nop 3", f"s_cmp_eq_u32 s{SEP}, 0", f"s_cbranch_scc1 {Ls}")
    k.label(Lc)
    def tail():
        k.label(Ls)
        k.e(f"s_mov_b32 s{SCNT}, 0")
        k.label(Ls + "_l")
        k.e(f"global_load_dwordx2 v[{vd}:{vd+1}], v{vd+2}, s[{SDBG}:{SDBG+1}] sc1", f"s_add_u32 s{SCNT}, s{SCNT}, 1", "s_waitcnt vmcnt(0)",
            f"v_readfirstlane_b32 s{SEP}, v{vd}", f"v_readfirstlane_b32 s{SEP+1}, v{vd+1}", "s_nop 3", f"s_cmp_lg_u32 s{SEP}, 0", f"s_cbranch_scc1 {Lc}",
            "s_sleep 2", f"s_cmp_lt_u32 s{SCNT}, 0x{SPIN_MAX:x}", f"s_cbranch_scc1 {Ls}_l", f"s_branch {Lc}")
    k.tails.append(tail)

def tag_check(k, issue, tagregs, name, zero):
    Ls = k.newlabel(name + "s"); Lc = k.newlabel(name + "c")
    def cmp():
        k.e(f"v_cmp_eq_u32 vcc, s{SEP}, v{tagregs[0]}")
        for r in tagregs[1:]:
            k.e(f"v_cmp_eq_u32 s[36:37], s{SEP}, v{r}", "s_nop 1", "s_and_b64 vcc, vcc, s[36:37]")
        k.e("s_cmp_eq_u64 vcc, -1")
    cmp()
    k.e(f"s_cbranch_scc0 {Ls}")
    k.label(Lc)
    zero()
    def tail():
        k.label(Ls)
        k.e(f"s_mov_b32 s{SCNT}, 0")
        k.label(Ls + "_l")
        sv = (k.vm, k.lg)
        issue()
        k.vm, k.lg = sv
        k.e(f"s_add_u32 s{SCNT}, s{SCNT}, 1", "s_waitcnt vmcnt(0)")
        cmp()
        k.e(f"s_cbranch_scc1 {Lc}", "s_sleep 1", f"s_cmp_lt_u32 s{SCNT}, 0x{SPIN_MAX:x}", f"s_cbranch_scc1 {Ls}_l", f"s_branch {Lc}")
    k.tails.append(tail)

def row_job2(k, s_job, srd_x, srd_ws):
    k.e("v_and_b32 v1, 63, v0", "v_lshrrev_b32 v2, 6, v0", f"s_lshl_b32 s40, s{s_job}, 14",
        "v_lshlrev_b32 v3, 12, v2", "v_lshl_add_u32 v3, v1, 4, v3", "v_add_u32 v3, s40, v3")
    for j in range(4):
        k.vmem(f"buffer_load_dwordx4 v[{4+4*j}:{7+4*j}], v3, s[{srd_x}:{srd_x+3}], 0 offen offset:{1024*j}", "rj")
    k.e("v_bfe_u32 v72, v1, 1, 2", "v_cmp_eq_u32 s[42:43], 1, v72", "v_cmp_eq_u32 s[44:45], 2, v72", "v_cmp_eq_u32 s[46:47], 3, v72")
    k.wait_vm("rj")
    epoch_issue_all(k, 74)
    for j in range(4):
        for i in range(4):
            k.e(f"v_lshlrev_b32 v{32+8*j+2*i}, 16, v{4+4*j+i}", f"v_and_b32 v{33+8*j+2*i}, 0xffff0000, v{4+4*j+i}")
    for j in range(4):
        b = 32 + 8*j
        k.e(f"v_add_f32 v{20+j}, v{b}, v{b+1}")
    for i in range(2, 8):
        for j in range(4):
            k.e(f"v_add_f32 v{20+j}, v{20+j}, v{32+8*j+i}")
    allreduce(k, [20, 21, 22, 23], [24, 25, 26, 27])
    for j in range(4): k.e(f"v_mul_f32 v{20+j}, 0x3b000000, v{20+j}")
    for i in range(8):
        for j in range(4): k.e(f"v_sub_f32 v{32+8*j+i}, v{32+8*j+i}, v{20+j}")
    for j in range(4): k.e(f"v_mul_f32 v{28+j}, v{32+8*j}, v{32+8*j}")
    for i in range(1, 8):
        for j in range(4): k.e(f"v_fmac_f32 v{28+j}, v{32+8*j+i}, v{32+8*j+i}")
    allreduce(k, [28, 29, 30, 31], [24, 25, 26, 27])
    k.e("v_cndmask_b32 v64, v20, v21, s[42:43]", "v_cndmask_b32 v65, v28, v29, s[42:43]",
        "v_cndmask_b32 v64, v64, v22, s[44:45]", "v_cndmask_b32 v65, v65, v30, s[44:45]",
        "v_cndmask_b32 v64, v64, v23, s[46:47]", "v_cndmask_b32 v65, v65, v31, s[46:47]")
    k.e("v_mov_b32 v66, 0x3727c5ac", "v_fmac_f32 v66, 0x3b000000, v65",
        "v_rsq_f32 v67, v66", "v_sub_f32 v64, 0, v64",
        "v_mul_f32 v68, v66, v67",
        "v_cvt_pk_bf16_f32 v69, v64, v64", "s_nop 0", "v_and_b32 v69, 0xffff0000, v69", "v_sub_f32 v70, v64, v69",
        "v_cvt_pk_bf16_f32 v69, v70, v70", "s_nop 0", "v_and_b32 v69, 0xffff0000, v69", "v_sub_f32 v71, v70, v69",
        "v_cvt_pk_bf16_f32 v4, v64, v70", "v_cvt_pk_bf16_f32 v6, v71, v64",
        "v_and_b32 v72, 1, v1", "v_cmp_eq_u32 vcc, 1, v72", "v_mov_b32 v5, v4")
    k.e(f"s_lshl_b32 s40, s{s_job}, 9", "v_lshlrev_b32 v3, 7, v2", "v_lshl_add_u32 v3, v1, 4, v3", "v_add_u32 v3, s40, v3")
    epoch_check_all(k, 74)
    k.e(f"v_mov_b32 v7, s{SEP}",
        "v_cndmask_b32 v4, v4, v67, vcc", "v_cndmask_b32 v5, v5, v68, vcc", "v_cndmask_b32 v6, v6, v7, vcc")
    k.e("v_cmp_gt_u32 vcc, 8, v1", "s_and_saveexec_b64 s[42:43], vcc")
    k.vmem(f"buffer_store_dwordx4 v[4:7], v3, s[{srd_ws}:{srd_ws+3}], 0 offen offset:{WS_TOK} sc1", "st")
    k.e("s_mov_b64 exec, s[42:43]")

def col_job2(k, s_job, srd_w, s_ld, s_col0b, srd_ws, s_half=None, mid=None):
    NL = 16 if s_half is None else 8
    k.e("v_and_b32 v1, 63, v0", "v_lshrrev_b32 v2, 6, v0", "v_lshrrev_b32 v3, 3, v1", f"v_lshl_add_u32 v3, v2, {7 if s_half is None else 6}, v3")
    if s_half is not None: k.e(f"s_lshl_b32 s40, s{s_half}, 8", "v_add_u32 v3, s40, v3")
    k.e(
        f"v_mul_lo_u32 v3, v3, s{s_ld}", "v_and_b32 v4, 7, v1", "v_lshl_add_u32 v3, v4, 4, v3", f"v_add_u32 v3, s{s_col0b}, v3",
        f"s_lshl_b32 s41, s{s_ld}, 3", "s_mov_b32 s40, 0")
    for i in range(NL):
        k.vmem(f"buffer_load_dwordx4 v[{8+4*i}:{11+4*i}], v3, s[{srd_w}:{srd_w+3}], s40 offen", ("cj", i))
        if i < NL - 1: k.e("s_add_u32 s40, s40, s41")
    LB = 32768 if mid else 0
    if mid:
        epoch_issue_all(k, 74); mid()
    k.e("s_mov_b32 s42, 0x00003f80", "s_mov_b32 s43, 0x3f800000")
    A = 80
    for i in range(8): k.e(f"v_mov_b32 v{A+i}, 0")
    for i in range(NL):
        k.wait_vm(("cj", i))
        if i == NL - 1 and not mid: epoch_issue_all(k, 74)
        for d in range(4):
            k.e(f"v_dot2_f32_bf16 v{A+2*d}, v{8+4*i+d}, s42, v{A+2*d}", f"v_dot2_f32_bf16 v{A+1+2*d}, v{8+4*i+d}, s43, v{A+1+2*d}")
    k.e("s_nop 2")
    for i in range(8): k.e(f"v_add_f32_dpp v{A+i}, v{A+i}, v{A+i} row_ror:8 row_mask:0xf bank_mask:0xf")
    k.e("v_lshrrev_b32 v5, 4, v1", "v_lshl_add_u32 v5, v2, 2, v5", "v_lshlrev_b32 v5, 8, v5", "v_lshl_add_u32 v5, v4, 5, v5",
        "v_and_b32 v6, 15, v1", "v_cmp_gt_u32 vcc, 8, v6", "s_and_saveexec_b64 s[44:45], vcc")
    k.ds(f"ds_write_b128 v5, v[{A}:{A+3}] offset:{LB}")
    k.ds(f"ds_write_b128 v5, v[{A+4}:{A+7}] offset:{LB+16}")
    k.e("s_mov_b64 exec, s[44:45]")
    k.wait_lg_all()
    k.e("s_barrier")
    k.e("v_lshlrev_b32 v5, 2, v1")
    for p in range(16): k.ds(f"ds_read_b32 v{8+p}, v5 offset:{LB+256*p}")
    k.wait_lg_all()
    for st in (8, 4, 2, 1):
        for p in range(st): k.e(f"v_add_f32 v{8+p}, v{8+p}, v{8+p+st}")
    k.e("s_nop 0",
        "v_cvt_pk_bf16_f32 v12, v8, v8", "s_nop 0", "v_and_b32 v9, 0xffff0000, v12", "v_sub_f32 v9, v8, v9",
        "v_cvt_pk_bf16_f32 v13, v9, v9", "s_nop 0", "v_and_b32 v10, 0xffff0000, v13", "v_sub_f32 v10, v9, v10",
        "v_cvt_pk_bf16_f32 v14, v8, v10",
        f"s_lshl_b32 s40, s{s_job}, 10", "v_lshlrev_b32 v5, 4, v1", "v_add_u32 v5, s40, v5", f"s_mov_b32 s40, {WS_COL}")
    if s_half is not None: k.e(f"s_mul_i32 s41, s{s_half}, {COL2}", "s_add_u32 s40, s40, s41")
    epoch_check_all(k, 74)
    k.e(f"v_mov_b32 v15, s{SEP}", "v_cmp_gt_u32 vcc, 64, v0", "s_and_saveexec_b64 s[44:45], vcc")
    Lx = k.newlabel("cjx")
    k.e(f"s_cbranch_execz {Lx}")
    k.vmem(f"buffer_store_dwordx4 v[12:15], v5, s[{srd_ws}:{srd_ws+3}], s40 offen sc1", "st", opt=True)
    k.label(Lx)
    k.e("s_mov_b64 exec, s[44:45]")
    k.e("s_barrier")

def stats_role2(k, SWQ=28, xal=False):
    Lc = k.newlabel("stc"); Ld = k.newlabel("std"); Lg = k.newlabel("stg")
    k.e("s_cmp_ge_u32 s3, 208", f"s_cbranch_scc1 {Ld}", "s_cmp_ge_u32 s3, 128", f"s_cbranch_scc1 {Lc}")
    if xal:
        k.e("s_and_b32 s96, s3, 7", "s_lshr_b32 s97, s3, 3", "s_lshl_b32 s96, s96, 4", "s_add_u32 s98, s96, s97")
    else: k.e("s_mov_b32 s98, s3")
    row_job2(k, 98, 8, 20)
    k.e(f"s_branch {Ld}")
    k.label(Lc)
    v0 = list(k.vm)
    k.vm = []; k.lg = []
    k.e("s_sub_u32 s98, s3, 128")
    if xal:
        La = k.newlabel("xa"); Lb = k.newlabel("xb")
        k.e("s_and_b32 s96, s98, 7", "s_lshr_b32 s97, s98, 3", "s_cmp_ge_u32 s97, 3", f"s_cbranch_scc1 {La}",
            "s_and_b32 s92, s96, 1", "s_lshl_b32 s92, s92, 2", "s_lshr_b32 s93, s96, 1", "s_add_u32 s92, s92, s93", "s_lshl_b32 s98, s97, 3", "s_add_u32 s98, s98, s92", f"s_branch {Lb}")
        k.label(La)
        k.e("s_lshr_b32 s92, s96, 1", "s_mul_i32 s92, s92, 7", "s_add_u32 s92, s92, s97", "s_sub_u32 s92, s92, 3",
            "s_and_b32 s93, s96, 1", "s_mul_i32 s93, s93, 7", "s_lshr_b32 s94, s92, 2", "s_add_u32 s93, s93, s94",
            "s_lshl_b32 s93, s93, 1", "s_and_b32 s94, s92, 1", "s_add_u32 s93, s93, s94",
            "s_bfe_u32 s94, s92, 0x10001", "s_mul_i32 s94, s94, 28", "s_add_u32 s98, s93, s94", "s_add_u32 s98, s98, 24")
        k.label(Lb)
    k.e(
        f"s_mov_b32 s92, s{SWQ}", f"s_mov_b32 s93, s{SWQ+1}", f"s_mov_b32 s94, {SZ_WQKV}", "s_mov_b32 s95, 0x00020000",
        "s_movk_i32 s96, 3072", "s_lshl_b32 s97, s98, 7",
        "s_cmp_lt_u32 s98, 24", f"s_cbranch_scc1 {Lg}",
        "s_mov_b32 s92, s12", "s_mov_b32 s93, s13", f"s_mov_b32 s94, {SZ_WG}", "s_movk_i32 s96, 3584",
        "s_sub_u32 s97, s98, 24", "s_lshl_b32 s97, s97, 7",
        "s_cmp_lt_u32 s98, 52", f"s_cbranch_scc1 {Lg}",
        "s_mov_b32 s92, s16", "s_mov_b32 s93, s17", "s_sub_u32 s97, s98, 52", "s_lshl_b32 s97, s97, 7")
    k.label(Lg)
    col_job2(k, 98, 92, 96, 97, 20)
    k.label(Ld)
    k.vm = [("st", True)]; k.lg = []

COL2 = 0x14000
def row_job3(k, s_job, srd_x, srd_ws, mid=None):
    k.e("v_and_b32 v1, 63, v0", "v_lshrrev_b32 v2, 6, v0", f"s_lshl_b32 s40, s{s_job}, 15", "s_movk_i32 s41, 4096",
        "v_lshlrev_b32 v3, 13, v2", "v_lshl_add_u32 v3, v1, 4, v3", "v_add_u32 v3, s40, v3")
    SRC = (4, 80)
    for b in range(2):
        for j in range(4):
            k.vmem(f"buffer_load_dwordx4 v[{SRC[b]+4*j}:{SRC[b]+3+4*j}], v3, s[{srd_x}:{srd_x+3}], {'s41' if b else '0'} offen offset:{1024*j}", ("rj", b))
    if mid:
        epoch_issue_all(k, 74); mid()
    k.e("v_bfe_u32 v72, v1, 1, 2", "v_cmp_eq_u32 s[42:43], 1, v72", "v_cmp_eq_u32 s[44:45], 2, v72", "v_cmp_eq_u32 s[46:47], 3, v72")
    k.e(f"s_lshl_b32 s40, s{s_job}, 10", "v_lshlrev_b32 v73, 8, v2", "v_lshl_add_u32 v73, v1, 4, v73", "v_add_u32 v73, s40, v73")
    for b in range(2):
        S = SRC[b]
        k.wait_vm(("rj", b))
        if b == 0 and not mid: epoch_issue_all(k, 74)
        for j in range(4):
            for i in range(4):
                k.e(f"v_lshlrev_b32 v{32+8*j+2*i}, 16, v{S+4*j+i}", f"v_and_b32 v{33+8*j+2*i}, 0xffff0000, v{S+4*j+i}")
        for j in range(4):
            bb = 32 + 8*j
            k.e(f"v_add_f32 v{20+j}, v{bb}, v{bb+1}")
        for i in range(2, 8):
            for j in range(4):
                k.e(f"v_add_f32 v{20+j}, v{20+j}, v{32+8*j+i}")
        allreduce(k, [20, 21, 22, 23], [24, 25, 26, 27])
        for j in range(4): k.e(f"v_mul_f32 v{20+j}, 0x3b000000, v{20+j}")
        for i in range(8):
            for j in range(4): k.e(f"v_sub_f32 v{32+8*j+i}, v{32+8*j+i}, v{20+j}")
        for j in range(4): k.e(f"v_mul_f32 v{28+j}, v{32+8*j}, v{32+8*j}")
        for i in range(1, 8):
            for j in range(4): k.e(f"v_fmac_f32 v{28+j}, v{32+8*j+i}, v{32+8*j+i}")
        allreduce(k, [28, 29, 30, 31], [24, 25, 26, 27])
        k.e("v_cndmask_b32 v64, v20, v21, s[42:43]", "v_cndmask_b32 v65, v28, v29, s[42:43]",
            "v_cndmask_b32 v64, v64, v22, s[44:45]", "v_cndmask_b32 v65, v65, v30, s[44:45]",
            "v_cndmask_b32 v64, v64, v23, s[46:47]", "v_cndmask_b32 v65, v65, v31, s[46:47]")
        k.e("v_mov_b32 v66, 0x3727c5ac", "v_fmac_f32 v66, 0x3b000000, v65",
            "v_rsq_f32 v67, v66", "v_sub_f32 v64, 0, v64",
            "v_mul_f32 v68, v66, v67",
            "v_cvt_pk_bf16_f32 v69, v64, v64", "s_nop 0", "v_and_b32 v69, 0xffff0000, v69", "v_sub_f32 v70, v64, v69",
            "v_cvt_pk_bf16_f32 v69, v70, v70", "s_nop 0", "v_and_b32 v69, 0xffff0000, v69", "v_sub_f32 v71, v70, v69",
            "v_cvt_pk_bf16_f32 v96, v64, v70", "v_cvt_pk_bf16_f32 v98, v71, v64",
            "v_and_b32 v72, 1, v1", "v_cmp_eq_u32 vcc, 1, v72", "v_mov_b32 v97, v96")
        if b == 0: epoch_check_all(k, 74)
        k.e(f"v_mov_b32 v99, s{SEP}", "v_and_b32 v72, 1, v1", "v_cmp_eq_u32 vcc, 1, v72", "s_nop 1",
            "v_cndmask_b32 v96, v96, v67, vcc", "v_cndmask_b32 v97, v97, v68, vcc", "v_cndmask_b32 v98, v98, v99, vcc")
        k.e("v_cmp_gt_u32 vcc, 8, v1", "s_and_saveexec_b64 s[48:49], vcc")
        k.vmem(f"buffer_store_dwordx4 v[96:99], v73, s[{srd_ws}:{srd_ws+3}], 0 offen offset:{WS_TOK + 128*b} sc1", "st")
        k.e("s_mov_b64 exec, s[48:49]", "s_nop 1")

def stats_role3(k, SWQ=28, mid=None):
    Lc = k.newlabel("stc"); Ld = k.newlabel("std"); Lg = k.newlabel("stg"); Lq = k.newlabel("stq")
    k.e("s_cmp_ge_u32 s3, 64", f"s_cbranch_scc1 {Lc}")
    k.e("s_mov_b32 s98, s3")
    row_job3(k, 98, 8, 20, mid=mid)
    k.e(f"s_branch {Ld}")
    Lf = k.newlabel("stf")
    if mid:
        k.label(Lf)
        k.vm = []; k.lg = []
        mid()
        k.e(f"s_branch {Ld}")
    k.label(Lc)
    k.vm = []; k.lg = []
    k.e("s_sub_u32 s98, s3, 64", "s_cmp_lt_u32 s3, 112", f"s_cbranch_scc1 {Lq}", "s_cmp_lt_u32 s3, 144", f"s_cbranch_scc1 {Lf if mid else Ld}", "s_sub_u32 s98, s3, 96")
    k.label(Lq)
    k.e("s_and_b32 s99, s98, 1", "s_lshr_b32 s98, s98, 1")
    k.e(
        f"s_mov_b32 s92, s{SWQ}", f"s_mov_b32 s93, s{SWQ+1}", f"s_mov_b32 s94, {SZ_WQKV}", "s_mov_b32 s95, 0x00020000",
        "s_movk_i32 s96, 3072", "s_lshl_b32 s97, s98, 7",
        "s_cmp_lt_u32 s98, 24", f"s_cbranch_scc1 {Lg}",
        "s_mov_b32 s92, s12", "s_mov_b32 s93, s13", f"s_mov_b32 s94, {SZ_WG}", "s_movk_i32 s96, 3584",
        "s_sub_u32 s97, s98, 24", "s_lshl_b32 s97, s97, 7",
        "s_cmp_lt_u32 s98, 52", f"s_cbranch_scc1 {Lg}",
        "s_mov_b32 s92, s16", "s_mov_b32 s93, s17", "s_sub_u32 s97, s98, 52", "s_lshl_b32 s97, s97, 7")
    k.label(Lg)
    col_job2(k, 98, 92, 96, 97, 20, s_half=99, mid=mid)
    k.label(Ld)
    k.vm = [("st", True), ("st", True)]; k.lg = []
    if mid: k.vm = [(("X", 0), False)]*4 + [(("W", 0), False)]*4 + [(("W", 1), False)]*4 + k.vm

def e1x_body(k, SX=8, SW=12, SWS=20, exit_loop=False, noex=False, wx=0, bal=False, rot=True, ux=11, pre_store=None, dup=False, rper=5, dper=2, notag=False, touch=False, fine=False):
    E1_XB = 49152
    k.e("v_and_b32 v1, 63, v0")
    k.e("v_and_b32 v11, 31, v1", "v_lshrrev_b32 v12, 5, v1")
    k.e("s_and_b32 s27, s24, 1", "s_lshr_b32 s28, s24, 1")
    k.e("v_lshrrev_b32 v13, 3, v1", "v_lshrrev_b32 v14, 4, v1", "v_and_b32 v15, 7, v1",
        "v_xor_b32 v7, v15, v14", "v_lshlrev_b32 v7, 4, v7", "v_lshl_add_u32 v7, v13, 10, v7",
        "s_lshl_b32 s29, s25, 16", "s_lshl_b32 s30, s24, 14", "s_add_u32 s29, s29, s30",
        "v_add_u32 v7, s29, v7", "v_xor_b32 v8, 64, v7", "v_add_u32 v8, 8192, v8")
    k.e("v_and_b32 v14, 1, v14", "v_lshlrev_b32 v14, 2, v14", "v_xor_b32 v9, v15, v14", "v_lshlrev_b32 v9, 4, v9",
        "s_lshl_b32 s30, s24, 3", "v_add_u32 v13, s30, v13", "v_mul_u32_u24 v13, 3072, v13", "v_add_u32 v9, v9, v13",
        f"s_xor_b32 s30, s26, {wx}", "s_lshl_b32 s30, s30, 7", "v_add_u32 v9, s30, v9")
    k.e(f"s_lshl_b32 s31, s24, 11", f"s_add_u32 s31, s31, {E1_XB}", "s_lshl_b32 s32, s24, 10")
    def xd(v):
        if rot:
            return [dmab(SX, 7, 31, (v % 3)*8192, 33, 51, 0, ("X", v)),
                    dmab(SX, 8, 31, (v % 3)*8192 + 1024, 33, 51, 0, ("X", v), post=["s_add_u32 s51, s51, 128", "s_and_b32 s51, s51, 1023"])]
        return [dma(SX, 7, 31, (v % 3)*8192, 33, v*128, ("X", v)), dma(SX, 8, 31, (v % 3)*8192 + 1024, 33, v*128, ("X", v))]
    def wd(u):
        if rot:
            return [dmab(SW, 9, 32, (u % 4)*12288 + p*4096, 33, 50, 0, ("W", u), imm=1024*p, post=(rot_adv(50, 32*3072, 512*3072, 52) if p == 2 else ())) for p in range(3)]
        return [dma(SW, 9, 32, (u % 4)*12288 + p*4096, 33, u*32*3072, ("W", u), imm=1024*p) for p in range(3)]
    if rot:
        k.e("s_lshl_b32 s51, s53, 7", f"s_mul_i32 s50, s53, {64*3072}")
    if touch:
        k.e("v_lshrrev_b32 v130, 3, v1", "v_and_b32 v131, 7, v1", "v_lshlrev_b32 v131, 7, v131", "v_lshl_add_u32 v130, v130, 10, v131",
            "s_and_b32 s34, s26, 3", "s_lshl_b32 s34, s34, 4", "s_lshl_b32 s35, s24, 2", "s_add_u32 s34, s34, s35", "s_lshl_b32 s34, s34, 10", "s_lshl_b32 s35, s25, 16", "s_add_u32 s34, s34, s35",
            "s_mov_b32 exec_hi, 0")
        k.vmem(f"buffer_load_dword v132, v130, s[{SX}:{SX+3}], s34 offen", "touch")
        k.e("s_mov_b32 exec_hi, -1")
        k.e("v_and_b32 v130, 15, v1", "v_mul_u32_u24 v130, 3072, v130", "v_lshrrev_b32 v131, 4, v1", "v_lshl_add_u32 v130, v131, 10, v130",
            "s_and_b32 s34, s25, 7", "s_lshl_b32 s34, s34, 6", "s_lshl_b32 s35, s24, 4", "s_add_u32 s34, s34, s35", "s_mul_i32 s34, s34, 3072", "s_lshl_b32 s35, s26, 7", "s_add_u32 s34, s34, s35",
            "s_mov_b32 exec_hi, 0xffff")
        k.vmem(f"buffer_load_dword v133, v130, s[{SW}:{SW+3}], s34 offen", "touch")
        k.e("s_mov_b32 exec_hi, -1")
    emit_groups(k, xd(0) + wd(0) + wd(1) + xd(1) + wd(2))
    k.e("s_lshl_b32 s36, s27, 5", "v_add_u32 v13, s36, v11", "v_bfe_u32 v14, v13, 1, 3", "v_xor_b32 v14, v14, v12",
        "v_lshlrev_b32 v14, 4, v14", "v_lshl_add_u32 v2, v13, 7, v14", f"v_add_u32 v2, {E1_XB}, v2",
        "v_xor_b32 v3, 32, v2", "v_xor_b32 v4, 64, v2", "v_xor_b32 v5, 96, v2")
    k.e("v_bfe_u32 v13, v1, 2, 2", "v_lshl_add_u32 v13, v12, 3, v13", "v_lshlrev_b32 v6, 7, v13",
        "v_bfe_u32 v13, v1, 4, 1", "v_lshlrev_b32 v13, 1, v13", "v_bfe_u32 v14, v1, 1, 1", "v_add_u32 v13, v13, v14",
        "s_lshl_b32 s36, s28, 2", "v_add_u32 v13, s36, v13", "v_bfe_u32 v14, v1, 3, 1", "v_lshlrev_b32 v14, 2, v14",
        "v_xor_b32 v13, v13, v14", "v_lshl_add_u32 v6, v13, 4, v6", "v_and_b32 v14, 1, v1", "v_lshl_add_u32 v6, v14, 3, v6",
        "v_xor_b32 v10, 2048, v6")
    k.e("s_lshl_b32 s34, s25, 6", "s_lshl_b32 s35, s27, 5", "s_add_u32 s34, s34, s35", "v_add_u32 v117, s34, v11", "v_lshlrev_b32 v117, 5, v117",
        "s_lshl_b32 s35, s26, 6", "s_lshl_b32 s36, s28, 5", "s_add_u32 s35, s35, s36", "v_add_u32 v118, s35, v11", "v_lshlrev_b32 v118, 4, v118")
    if bal: k.e(f"v_mul_u32_u24 v13, 0x{COL2:x}, v12", "v_add_u32 v118, v118, v13")
    def extras():
        k.vmem(f"buffer_load_dwordx4 v[48:51], v117, s[{SWS}:{SWS+3}], 0 offen offset:{WS_TOK} sc1", "ex")
        k.vmem(f"buffer_load_dwordx4 v[112:115], v117, s[{SWS}:{SWS+3}], 0 offen offset:{WS_TOK+16} sc1", "ex")
        for p in range(3):
            k.e(f"s_mov_b32 s36, {WS_COL + 8192*p}")
            k.vmem(f"buffer_load_dwordx4 v[{52+4*p}:{55+4*p}], v118, s[{SWS}:{SWS+3}], s36 offen sc1", "ex")
    ACC = 64
    def fr(st): return 16 + 16*st
    def reads(g, st):
        b = fr(st); u = g >> 1; v = g >> 2
        out = [(f"ds_read_b128 v[{b}:{b+3}], v{2 + (g & 3)} offset:{(v % 3)*8192}", "X")]
        av = 6 if (g & 1) == 0 else 10
        for p in range(3):
            o = (u % 4)*12288 + p*4096
            out.append((f"ds_read_b64_tr_b16 v[{b+4+4*p}:{b+5+4*p}], v{av} offset:{o}", f"W{p}"))
            out.append((f"ds_read_b64_tr_b16 v[{b+6+4*p}:{b+7+4*p}], v{av} offset:{o+512}", f"W{p}"))
        return out
    def mf(b_x, b_w, first):
        out = []
        for p in range(3):
            a = ACC + 16*p
            w = f"v[{b_w+4*p}:{b_w+4*p+3}]"; x = f"v[{b_x}:{b_x+3}]"
            A, B = (w, x) if p < 2 else (x, w)
            c = "0" if first else f"v[{a}:{a+15}]"
            out.append((f"{MF} v[{a}:{a+15}], {A}, {B}, {c}", ["X", f"W{p}"]))
        return out
    def mfmas(g, st): return mf(fr(st), fr(st) + 4, g == 0)
    def dmas(u):
        out = []
        if u + 3 < 16: out += wd(u + 3)
        if u % 2 == 0 and u//2 + 2 < 8: out += xd(u//2 + 2)
        return out
    hooks = {ux - 1: [lambda: epoch_issue_all(k, 120)], ux: [extras]}
    if noex: hooks = {}
    pre_hooks = None
    if fine: pre_hooks = {0: lambda: k.stamp(9), 1: lambda: k.stamp(10), 4: lambda: k.stamp(11), 10: lambda: k.stamp(12)}
    k.stamp(1)
    gemm2(k, 16, mfmas, reads, dmas, lambda u: [("W", u), ("X", u >> 1)], fill0=None, rper=rper, dper=dper, hooks=hooks, pre_hooks=pre_hooks)
    k.stamp(2)
    if exit_loop:
        for i in range(3, 9): k.stamp(i)
        k.stamp_out(9, 0, sh=7); k.e("s_waitcnt vmcnt(0)", "s_endpgm")
    epoch_check_all(k, 120)
    k.wait_vm("ex")
    def zero():
        for r in (51, 55, 59, 63): k.e(f"v_mov_b32 v{r}, 0")
        if bal:
            k.e("s_nop 1")
            return
        k.e("s_mov_b32 exec_lo, 0")
        for r in range(48, 64):
            if r not in (51, 55, 59, 63): k.e(f"v_mov_b32 v{r}, 0")
        k.e("s_mov_b32 exec_lo, -1", "s_nop 1")
    if notag: zero()
    else: tag_check(k, extras, [51, 114, 55, 59, 63], "x1", zero)
    for (t, _) in mf(48, 52, False): k.e(t)
    k.e("s_lshl_b32 s36, s24, 7", "v_lshlrev_b32 v13, 2, v11", "v_add_u32 v13, s36, v13")
    k.ds("ds_write_b32 v13, v112")
    k.e("v_lshlrev_b32 v13, 4, v12", "v_add_u32 v13, s36, v13")
    k.wait_lg_all()
    for gq in range(4): k.ds(f"ds_read_b128 v[{32+4*gq}:{35+4*gq}], v13 offset:{32*gq}")
    k.e(f"v_mul_f32 v113, 0x{f2u(0.25*LOG2E):08x}, v112")
    if pre_store: pre_store()
    k.e("v_lshlrev_b32 v10, 4, v1",
        "s_lshl_b32 s36, s26, 2", "s_lshl_b32 s37, s28, 1", "s_add_u32 s36, s36, s37", "s_lshl_b32 s36, s36, 16",
        "s_lshl_b32 s37, s25, 1", "s_add_u32 s37, s37, s27", "s_lshl_b32 s37, s37, 10", "s_add_u32 s36, s36, s37")
    k.e("v_lshrrev_b32 v17, 4, v11", "v_lshlrev_b32 v17, 16, v17", "v_lshl_add_u32 v17, v12, 8, v17", "v_and_b32 v18, 15, v11", "v_lshl_add_u32 v17, v18, 4, v17")
    k.e("s_nop 4")
    modes = ("sc1", "") if dup else ("sc1",)
    for p, (scale, base) in enumerate(((113, WS_QF), (112, WS_KF))):
        a = ACC + 16*p
        for r in range(16): k.e(f"v_mul_f32 v{a+r}, v{a+r}, v{scale}")
        for j in range(2):
            d = 20 + 8*p + 4*j if p == 0 else 48 + 4*j
            for i in range(4): k.e(f"v_cvt_pk_bf16_f32 v{d+i}, v{a+8*j+2*i}, v{a+8*j+2*i+1}")
            k.e(f"s_add_u32 s37, s36, 0x{base + j*65536:x}")
            for m in modes: k.vmem(f"buffer_store_dwordx4 v[{d}:{d+3}], v10, s[{SWS}:{SWS+3}], s37 offen {m}", "st")
    k.wait_lg_all()
    a = ACC + 32
    for r in range(16): k.e(f"v_mul_f32 v{a+r}, v{a+r}, v{32+r}")
    k.e(f"s_add_u32 s37, s36, 0x{WS_VF:x}")
    for j in range(2):
        d = 56 + 4*j
        for i in range(4): k.e(f"v_cvt_pk_bf16_f32 v{d+i}, v{a+8*j+2*i}, v{a+8*j+2*i+1}")
        for m in modes: k.vmem(f"buffer_store_dwordx4 v[{d}:{d+3}], v17, s[{SWS}:{SWS+3}], s37 offen offset:{512*j} {m}", "st")

def e3x_body(k, SX=8, SG=12, SU=16, SWS=20, part=None, bal=False, fine=False, epi_prio=None, post_loop=None, rot=True, ux=11, rper=4, dper=1, pre_loop=None):
    XB = 49152
    line0 = len(k.lines)
    k.e("v_and_b32 v1, 63, v0")
    k.e("v_and_b32 v11, 31, v1", "v_lshrrev_b32 v12, 5, v1")
    k.e("s_and_b32 s27, s24, 1", "s_lshr_b32 s28, s24, 1")
    k.e("v_lshrrev_b32 v13, 3, v1", "v_lshrrev_b32 v14, 4, v1", "v_and_b32 v15, 7, v1",
        "v_xor_b32 v7, v15, v14", "v_lshlrev_b32 v7, 4, v7", "v_lshl_add_u32 v7, v13, 10, v7",
        "s_lshl_b32 s29, s25, 17", "s_lshl_b32 s30, s24, 15", "s_add_u32 s29, s29, s30",
        "v_add_u32 v7, s29, v7", "v_xor_b32 v8, 64, v7", "v_add_u32 v8, 8192, v8")
    k.e("v_lshlrev_b32 v13, 2, v14", "v_and_b32 v15, 15, v1", "v_xor_b32 v9, v15, v13", "v_lshlrev_b32 v9, 4, v9",
        "s_lshl_b32 s30, s24, 3", "v_add_u32 v13, s30, v14", "v_mul_u32_u24 v13, 3584, v13", "v_add_u32 v9, v9, v13",
        "s_lshl_b32 s30, s26, 8", "v_add_u32 v9, s30, v9")
    k.e(f"s_lshl_b32 s31, s24, 12", f"s_add_u32 s31, s31, {XB}", "s_lshl_b32 s32, s24, 11")
    def xd(v):
        if rot:
            return [dmab(SX, 7 + (i & 1), 31, (v % 2)*16384 + i*1024, 33, 51, (i >> 1)*16384, ("X", v),
                         post=(["s_add_u32 s51, s51, 128", "s_and_b32 s51, s51, 1023"] if i == 3 else ())) for i in range(4)]
        return [dma(SX, 7 + (i & 1), 31, (v % 2)*16384 + i*1024, 33, v*128 + (i >> 1)*16384, ("X", v)) for i in range(4)]
    def wd(u):
        out = []
        for i in range(2):
            for p, sr in enumerate((SG, SU)):
                if rot:
                    out.append(dmab(sr, 9, 32, (u % 3)*16384 + p*8192 + i*1024, 33, 50, 4*i*3584, ("W", u),
                                    post=(rot_adv(50, 32*3584, 512*3584, 52) if (i, p) == (1, 1) else ())))
                else:
                    out.append(dma(sr, 9, 32, (u % 3)*16384 + p*8192 + i*1024, 33, (u*32 + 4*i)*3584, ("W", u)))
        return out
    if part != "main":
        if rot:
            k.e("s_lshl_b32 s51, s53, 7", f"s_mul_i32 s50, s53, {64*3584}")
        emit_groups(k, xd(0) + wd(0) + wd(1))
    if part == "pre":
        import re
        for i in range(line0, len(k.lines)):
            k.lines[i] = re.sub(r"\bv(\d+)\b", lambda m: m.group(0) if int(m.group(1)) < 2 else f"v{int(m.group(1)) + 200}", k.lines[i])
        return
    if pre_loop: pre_loop()
    k.e("s_lshl_b32 s36, s27, 6", "v_add_u32 v13, s36, v11", "v_bfe_u32 v14, v13, 1, 3", "v_xor_b32 v14, v14, v12",
        "v_lshlrev_b32 v14, 4, v14", "v_lshl_add_u32 v2, v13, 7, v14", f"v_add_u32 v2, {XB}, v2",
        "v_xor_b32 v3, 32, v2", "v_xor_b32 v4, 64, v2", "v_xor_b32 v5, 96, v2")
    k.e("v_bfe_u32 v15, v1, 2, 2", "v_lshl_add_u32 v13, v12, 3, v15", "v_lshlrev_b32 v6, 8, v13",
        "v_bfe_u32 v13, v1, 4, 1", "v_lshlrev_b32 v13, 1, v13", "v_bfe_u32 v14, v1, 1, 1", "v_add_u32 v13, v13, v14",
        "s_lshl_b32 s36, s28, 3", "v_add_u32 v13, s36, v13", "v_lshlrev_b32 v15, 2, v15",
        "v_xor_b32 v13, v13, v15", "v_lshl_add_u32 v6, v13, 4, v6", "v_and_b32 v14, 1, v1", "v_lshl_add_u32 v6, v14, 3, v6",
        "v_xor_b32 v10, 64, v6", "v_xor_b32 v72, 4096, v6", "v_xor_b32 v73, 4096, v10")
    k.e("s_lshl_b32 s34, s25, 7", "s_lshl_b32 s35, s27, 6", "s_add_u32 s34, s34, s35", "v_add_u32 v108, s34, v11", "v_lshlrev_b32 v108, 5, v108",
        "s_lshl_b32 s35, s26, 7", "s_lshl_b32 s36, s28, 6", "s_add_u32 s35, s35, s36", "v_add_u32 v109, s35, v11", "v_lshlrev_b32 v109, 4, v109")
    if bal: k.e(f"v_mul_u32_u24 v13, 0x{COL2:x}, v12", "v_add_u32 v109, v109, v13")
    EX = 76
    def extras():
        for tb in range(2):
            k.vmem(f"buffer_load_dwordx4 v[{EX+4*tb}:{EX+3+4*tb}], v108, s[{SWS}:{SWS+3}], 0 offen offset:{WS_TOK+1024*tb} sc1", "ex")
            k.vmem(f"buffer_load_dwordx4 v[{100+4*tb}:{103+4*tb}], v108, s[{SWS}:{SWS+3}], 0 offen offset:{WS_TOK+16+1024*tb} sc1", "ex")
        for part in range(2):
            k.e(f"s_mov_b32 s36, {WS_COL + (1536 + 1792*part)*16}")
            for b in range(2):
                d = EX + 8 + 8*part + 4*b
                k.vmem(f"buffer_load_dwordx4 v[{d}:{d+3}], v109, s[{SWS}:{SWS+3}], s36 offen offset:{512*b} sc1", "ex")
    ACC = 128
    def fr(st): return 16 + 24*st
    def acc(part, b, tb): return ACC + 16*(part*4 + b*2 + tb)
    def reads(g, st):
        b0 = fr(st); u = g >> 1; v = g >> 2
        def wr(part, b):
            d = b0 + 8 + 8*part + 4*b
            o = (u % 3)*16384 + part*8192
            av = ((6, 10), (72, 73))[g & 1][b]
            return [(f"ds_read_b64_tr_b16 v[{d}:{d+1}], v{av} offset:{o}", f"W{part}{b}"),
                    (f"ds_read_b64_tr_b16 v[{d+2}:{d+3}], v{av} offset:{o+1024}", f"W{part}{b}")]
        def xr(tb): return [(f"ds_read_b128 v[{b0+4*tb}:{b0+4*tb+3}], v{2 + (g & 3)} offset:{(v % 2)*16384 + tb*4096}", f"X{tb}")]
        return xr(0) + wr(0, 0) + xr(1) + wr(0, 1) + wr(1, 0) + wr(1, 1)
    def mf(b0, first):
        out = []
        for part in range(2):
            for b in range(2):
                for tb in range(2):
                    a = acc(part, b, tb); w = b0 + 8 + 8*part + 4*b; x = b0 + 4*tb
                    c = "0" if first else f"v[{a}:{a+15}]"
                    out.append((f"{MF} v[{a}:{a+15}], v[{w}:{w+3}], v[{x}:{x+3}], {c}", [f"X{tb}", f"W{part}{b}"]))
        return out
    def mfmas(g, st): return mf(fr(st), g == 0)
    def dmas(u):
        out = []
        if u + 2 < 16: out += wd(u + 2)
        if u % 2 == 0 and u//2 + 1 < 8: out += xd(u//2 + 1)
        return out
    hooks = {ux - 1: [lambda: epoch_issue_all(k, 112)], ux: [extras]}
    ph = None
    if fine: ph = {u: (lambda i=i: k.stamp(i)) for i, u in enumerate((0, 2, 5, 8, 11, 14), 1)}
    else: k.stamp(1)
    gemm2(k, 16, mfmas, reads, dmas, lambda u: [("W", u), ("X", u >> 1)], fill0=None, rper=rper, dper=dper, hooks=hooks, pre_hooks=ph)
    if fine:
        k.stamp(7); k.nostamp = True
    k.stamp(2)
    if epi_prio is not None: k.e(f"s_setprio {epi_prio}")
    epoch_check_all(k, 112)
    k.wait_vm("ex")
    tags = [EX + 3 + 4*i for i in range(6)]
    def zero():
        for r in tags: k.e(f"v_mov_b32 v{r}, 0")
        if bal:
            k.e("s_nop 1")
            return
        k.e("s_mov_b32 exec_lo, 0")
        for r in range(EX, EX + 24):
            if r not in tags: k.e(f"v_mov_b32 v{r}, 0")
        k.e("s_mov_b32 exec_lo, -1", "s_nop 1")
    tag_check(k, extras, tags + [102, 106], "x3", zero)
    for (t, _) in mf(EX, False): k.e(t)
    if post_loop: post_loop()
    k.e(f"v_mul_f32 v110, 0x{f2u(-LOG2E):08x}, v100", f"v_mul_f32 v111, 0x{f2u(-LOG2E):08x}, v104")
    k.e("v_lshlrev_b32 v10, 4, v1",
        "s_lshl_b32 s36, s25, 2", "s_lshl_b32 s37, s27, 1", "s_add_u32 s36, s36, s37", "s_mul_i32 s36, s36, 112",
        "s_lshl_b32 s37, s26, 3", "s_add_u32 s36, s36, s37", "s_lshl_b32 s37, s28, 2", "s_add_u32 s36, s36, s37",
        "s_lshl_b32 s36, s36, 10", f"s_add_u32 s36, s36, 0x{WS_HF:x}")
    k.e("s_nop 7")
    n = 0
    for b in range(2):
        for tb in range(2):
            g = acc(0, b, tb); uu = acc(1, b, tb)
            A = 110 + tb; SD = 101 + 4*tb
            for r in range(16): k.e(f"v_mul_f32 v{g+r}, v{g+r}, v{A}")
            for r in range(16): k.e(f"v_exp_f32 v{g+r}, v{g+r}")
            for r in range(16): k.e(f"v_fma_f32 v{g+r}, v{g+r}, v{SD}, v{SD}")
            for r in range(16): k.e(f"v_rcp_f32 v{g+r}, v{g+r}")
            k.e("s_nop 0")
            for r in range(16): k.e(f"v_mul_f32 v{g+r}, v{g+r}, v{uu+r}")
            for j in range(2):
                d = 16 + 4*(n % 8); n += 1
                for i in range(4): k.e(f"v_cvt_pk_bf16_f32 v{d+i}, v{g+8*j+2*i}, v{g+8*j+2*i+1}")
                k.e(f"s_add_u32 s37, s36, {(tb*112 + b*2 + j)*1024}")
                k.vmem(f"buffer_store_dwordx4 v[{d}:{d+3}], v10, s[{SWS}:{SWS+3}], s37 offen sc1", "st")

def kF1(name="f1_fused_kernel", prio_e1=None, prio_e2=None, prio_g=None, epi_prio=1, post_prio=0, e4_prio=None, hsleep=2, osleep=2, qsleep=2,
        rot=True, ux1=11, ux3=11, dup=False, force_fb=False, nostats=False, gexit=0, notag=False, xal=False, touch1=False, fine1=False, mode1="x", mode3="x", touch3=0, rp1=5, dp1=2, rp3=4, dp3=1, ugo=None, gosleep=4, gomax=64, gp_touch=False, prio_e3=None, bal=False, tw=False, fine3=False, aexit=False, qnopoll=0, cpf=0, map1=0, wx=0, hoist=False, aexit2=0, pre=0, rsleep=0, lim1=16, qpipe=0, qgap=4, omod='', endwait=True):
    k = KV(name, nvgpr=256)
    k.e("s_cmp_ge_u32 s2, 512", f"s_cbranch_scc1 L_end_{k.name}")
    fx = srd(k, 8, 0, SZ_X) + srd(k, 20, 72, WS_SIZE2)
    load_dbg(k)
    if cpf:
        Lp = k.newlabel("cpf"); Lq = k.newlabel("pc")
        k.e(f"s_cmp_ge_u32 s2, {cpf}", f"s_cbranch_scc1 {Lp}", "s_getpc_b64 s[36:37]")
        k.label(Lq)
        k.e(f"s_sub_u32 s36, s36, {Lq}-{k.name}", "s_subb_u32 s37, s37, 0", "v_lshlrev_b32 v250, 7, v0",
            "v_mov_b32 v249, s37", "v_add_co_u32 v248, vcc, s36, v250", "s_nop 1", "v_addc_co_u32 v249, vcc, 0, v249, vcc")
        k.vmem("global_load_dword v252, v[248:249], off", "cpf", opt=True)
        k.e("v_add_u32 v250, 0x8000, v250", f"v_cmp_gt_u32 vcc, L_code_end-{k.name}, v250", "v_add_co_u32 v248, s[38:39], 0x4000, v248" if False else "s_nop 0")
        k.e("s_and_saveexec_b64 s[38:39], vcc", "v_mov_b32 v249, s37", "v_add_co_u32 v248, vcc, s36, v250", "s_nop 1", "v_addc_co_u32 v249, vcc, 0, v249, vcc")
        k.vmem("global_load_dword v253, v[248:249], off", "cpf", opt=True)
        k.e("s_mov_b64 exec, s[38:39]")
        k.label(Lp)
    k.e("v_lshrrev_b32 v10, 6, v0", "s_nop 1", "v_readfirstlane_b32 s24, v10")
    k.e("s_cmp_ge_u32 s2, 256", "s_cbranch_scc1 L_f1_g")
    fx1 = srd(k, 12, 8, SZ_WQKV)
    k.e("s_waitcnt lgkmcnt(0)"); k.e(*(fx + fx1))
    epoch_make(k)
    if prio_e1 is not None: k.e(f"s_setprio {prio_e1}")
    k.e("s_and_b32 s3, s2, 7", "s_lshr_b32 s4, s2, 3", "s_and_b32 s5, s3, 1", "s_lshl_b32 s26, s5, 2", "s_and_b32 s5, s4, 3", "s_add_u32 s26, s26, s5",
        "s_lshr_b32 s25, s3, 1", "s_lshl_b32 s25, s25, 3", "s_lshr_b32 s5, s4, 2", "s_add_u32 s25, s25, s5")
    k.e("s_and_b32 s53, s26, 3", "s_lshl_b32 s53, s53, 1", "s_add_u32 s53, s53, s25", "s_and_b32 s53, s53, 7")
    if map1:
        k.e("s_and_b32 s26, s4, 7", "s_lshl_b32 s25, s3, 2", "s_lshr_b32 s5, s4, 3", "s_add_u32 s25, s25, s5",
            "s_lshl_b32 s53, s5, 1", "s_add_u32 s53, s53, s26", "s_and_b32 s53, s53, 7")
    k.e("s_lshl_b32 s44, s3, 2", "s_and_b32 s5, s4, 3", "s_add_u32 s44, s44, s5", "s_lshr_b32 s45, s4, 2")
    k.stamp(0)
    if aexit:
        for i in range(1, 9): k.stamp(i)
        k.stamp_out(9, 0, sh=7); k.wait_vm_all(); k.e("s_waitcnt vmcnt(0)", "s_endpgm")
    def o_fill():
        k.e("v_mov_b32 v204, -1", "v_mov_b32 v205, -1", "v_mov_b32 v206, -1", "v_mov_b32 v207, -1", "v_lshlrev_b32 v203, 4, v1",
            "s_lshl_b32 s46, s45, 3", "s_lshl_b32 s47, s24, 1", "s_add_u32 s46, s46, s47", "s_lshl_b32 s46, s46, 5", "s_add_u32 s46, s46, s44",
            "s_lshl_b32 s46, s46, 10", f"s_add_u32 s46, s46, 0x{WS_OF:x}")
        k.vmem("buffer_store_dwordx4 v[204:207], v203, s[20:23], s46 offen sc1", "st")
        k.e("s_add_u32 s46, s46, 32768")
        k.vmem("buffer_store_dwordx4 v[204:207], v203, s[20:23], s46 offen sc1", "st")
    def go_store():
        L = w0_begin(k)
        k.e("s_lshl_b32 s46, s2, 7", f"s_add_u32 s46, s46, 0x{FLG_GO:x}", "v_mov_b32 v208, s46", "v_mov_b32 v209, 1", "s_mov_b64 exec, 1")
        k.vmem("buffer_store_dword v209, v208, s[20:23], 0 offen sc1", "go", opt=True)
        k.e("s_mov_b64 exec, -1")
        k.label(L)
    if mode1 == "x":
        e1x_body(k, exit_loop=(aexit2 in (1, 3)), noex=(aexit2 == 3), wx=wx, bal=bal, rot=rot, ux=ux1, pre_store=o_fill, dup=dup, notag=notag, touch=touch1, fine=fine1)
    else:
        ph = {0: lambda: k.stamp(9), 1: lambda: k.stamp(10), 4: lambda: k.stamp(11), 10: lambda: k.stamp(12)} if fine1 else None
        hk = {11: [lambda: epoch_issue_all(k, 200)]}
        if isinstance(ugo, int): hk.setdefault(ugo, []).append(go_store)
        e1s_body(k, sc1="sc1", rot=rot, mst={"s": 0, "m": 1, "n": 2}[mode1], rper=rp1, dper=dp1, pre_hooks=ph, hooks=hk, pre_store=lambda: (epoch_check_all(k, 200), o_fill()))
    k.stamp(3)
    if ugo == "pub0": go_store()
    k.e("s_lshl_b32 s48, s26, 5", "s_add_u32 s48, s48, s25", "s_lshl_b32 s48, s48, 3", f"s_add_u32 s48, s48, 0x{FLG_QKV8:x}")
    publish(k, 48, vt=19)
    k.stamp(4)
    if aexit2 == 2:
        for i in range(5, 9): k.stamp(i)
        k.stamp_out(9, 0, sh=7); k.e("s_waitcnt vmcnt(0)", "s_endpgm")
    if ugo == "pub": go_store()
    k.e("s_mov_b32 s25, s44", "s_mov_b32 s26, s45")
    if prio_e2 is not None: k.e(f"s_setprio {prio_e2}")
    def qkv_wait():
        k.e("v_and_b32 v20, 31, v1", "v_lshlrev_b32 v20, 3, v20", "s_lshr_b32 s36, s25, 2", "s_lshl_b32 s36, s36, 8", f"s_add_u32 s36, s36, 0x{FLG_QKV8:x}",
            "v_add_u32 v20, s36, v20")
        L = w0_begin(k)
        Ll = k.newlabel("qw")
        if qnopoll:
            for _ in range(qnopoll): k.e("s_sleep 16")
            k.e(f"s_branch {L}")
        k.e(f"s_mov_b32 s{SCNT}, 0")
        if qpipe:
            ld = lambda i: f"buffer_load_dwordx2 v[{28+2*i}:{29+2*i}], v20, s[20:23], 0 offen sc1"
            for i in range(qpipe - 1): k.e(ld(i), f"s_sleep {qgap}")
            k.label(Ll)
            for i in range(qpipe):
                k.e(ld((i + qpipe - 1) % qpipe), f"s_waitcnt vmcnt({qpipe - 1})", f"v_cmp_eq_u64 vcc, s[{SEP}:{SEP+1}], v[{28+2*i}:{29+2*i}]",
                    "s_nop 3", "s_cmp_eq_u64 vcc, -1", f"s_cbranch_scc1 {L}")
            k.e(f"s_add_u32 s{SCNT}, s{SCNT}, 1", f"s_cmp_lt_u32 s{SCNT}, 0x{SPIN_MAX:x}", f"s_cbranch_scc1 {Ll}")
        else:
            k.label(Ll)
            k.e("buffer_load_dwordx2 v[22:23], v20, s[20:23], 0 offen sc1", f"s_add_u32 s{SCNT}, s{SCNT}, 1", "s_waitcnt vmcnt(0)",
                f"v_cmp_eq_u64 vcc, s[{SEP}:{SEP+1}], v[22:23]", "s_nop 3", "s_cmp_eq_u64 vcc, -1", f"s_cbranch_scc1 {L}",
                f"s_sleep {qsleep}", f"s_cmp_lt_u32 s{SCNT}, 0x{SPIN_MAX:x}", f"s_cbranch_scc1 {Ll}")
        k.label(L)
        k.wait_lg_all()
        k.e("s_barrier")
        if ugo == "e2": go_store()
        k.stamp(5 - k.stamp_off)
    k.stamp_off = 5
    e2_body(k, sc1="sc1", st_sc1="sc1", oflag="ep", pre_hook=qkv_wait, force_fb=force_fb, prehint=pre)
    k.stamp_off = 0
    k.wait_vm_all()
    k.stamp(8); k.stamp_out(13 if fine1 else 9, 0, sh=7); k.wait_vm_all()
    k.e("s_endpgm")
    fb = k.fb_code
    k.label("L_f1_g")
    k.vm = []; k.lg = []
    SD, SO, SX, SOUT = 84, 88, 8, 4
    fx3 = srd(k, 12, 32, SZ_WG) + srd(k, 16, 40, SZ_WG) + srd(k, SD, 48, SZ_WD) + srd(k, SO, 16, SZ_WO) + srd(k, SOUT, 56, SZ_X)
    k.e(f"s_load_dwordx2 s[{34 if hoist else 28}:{35 if hoist else 29}], s[0:1], 8")
    k.e("s_sub_u32 s3, s2, 256")
    k.e("s_waitcnt lgkmcnt(0)"); k.e(*(fx + fx3))
    if prio_g is not None: k.e(f"s_setprio {prio_g}")
    def go_clear(idx=3):
        if ugo is None: return
        L = w0_begin(k)
        k.e(f"s_lshl_b32 s36, s{idx}, 7", f"s_add_u32 s36, s36, 0x{FLG_GO:x}", "v_mov_b32 v62, s36", "v_mov_b32 v63, 0", "s_mov_b64 exec, 1",
            "buffer_store_dword v63, v62, s[20:23], 0 offen sc1", "s_mov_b64 exec, -1")
        k.label(L)
    def go_wait():
        if ugo is None: return
        L = w0_begin(k)
        Ll = k.newlabel("go")
        k.e("s_waitcnt vmcnt(0)", "s_mov_b32 s38, 0", "s_mov_b64 exec, 1")
        k.label(Ll)
        k.e("buffer_load_dword v63, v62, s[20:23], 0 offen sc1", "s_add_u32 s38, s38, 1", "s_waitcnt vmcnt(0)", "v_readfirstlane_b32 s39, v63", "s_nop 3",
            "s_cmp_eq_u32 s39, 1", f"s_cbranch_scc1 {Ll}x", f"s_sleep {gosleep}", f"s_cmp_lt_u32 s38, {gomax}", f"s_cbranch_scc1 {Ll}")
        k.label(Ll + "x")
        k.e("s_mov_b64 exec, -1")
        k.label(L)
        k.e("s_barrier")
    k.stamp(0)
    go_clear()
    if gexit == 1: k.e("s_endpgm")
    def role3():
        k.e("s_and_b32 s92, s3, 7", "s_lshr_b32 s93, s3, 3")
        k.e("s_and_b32 s26, s92, 1", "s_mul_i32 s26, s26, 7", "s_lshr_b32 s94, s93, 2", "s_add_u32 s26, s26, s94",
            "s_lshr_b32 s25, s92, 1", "s_lshl_b32 s25, s25, 2", "s_and_b32 s95, s93, 3", "s_add_u32 s25, s25, s95")
        k.e("s_lshl_b32 s53, s95, 1", "s_add_u32 s53, s53, s94", "s_and_b32 s53, s53, 7")
    if hoist:
        role3()
        stats_role3(k, SWQ=34, mid=lambda: e3x_body(k, part="pre", bal=bal, rot=rot))
    elif not nostats: (stats_role3(k) if bal else stats_role2(k, xal=xal))
    if gexit == 2: k.e("s_waitcnt vmcnt(0)", "s_endpgm")
    e4 = E4F(k, SD, SO, 20, SX, SOUT, hsleep=hsleep, osleep=osleep, ep=True)
    c = e4
    k.e("s_and_b32 s92, s3, 7", "s_lshr_b32 s93, s3, 3",
        f"s_and_b32 s{c.SRB}, s93, 3", "s_lshl_b32 s94, s92, 2", f"s_add_u32 s{c.SRB}, s{c.SRB}, s94", f"s_lshr_b32 s{c.SCB}, s93, 2")
    k.e("s_cmp_ge_u32 s2, 480", "s_cbranch_scc1 L_f1_pf")
    k.e("s_and_b32 s26, s92, 1", "s_mul_i32 s26, s26, 7", "s_lshr_b32 s94, s93, 2", "s_add_u32 s26, s26, s94",
        "s_lshr_b32 s25, s92, 1", "s_lshl_b32 s25, s25, 2", "s_and_b32 s95, s93, 3", "s_add_u32 s25, s25, s95")
    k.e("s_lshl_b32 s53, s95, 1", "s_add_u32 s53, s53, s94", "s_and_b32 s53, s53, 7")
    def touchW(vd=60):
        a = 61
        k.e(f"s_and_b32 s{c.SC}, s{c.SRB}, 3", f"s_mul_i32 s{c.SK}, s{c.SC}, {112*1024}", f"s_add_u32 s{c.SK}, s{c.SK}, s{c.SDO}",
            f"s_lshl_b32 s{c.ST}, s{c.SCB}, 7", f"v_lshlrev_b32 v{a}, 10, v1", f"v_add_u32 v{a}, s{c.ST}, v{a}")
        k.vmem(f"buffer_load_dword v{vd}, v{a}, s[{c.SD}:{c.SD+3}], s{c.SK} offen", "touch")
        k.e(f"s_add_u32 s{c.SK}, s{c.SK}, 65536", "s_mov_b32 exec_hi, 0xffff")
        k.vmem(f"buffer_load_dword v{vd+2}, v{a}, s[{c.SD}:{c.SD+3}], s{c.SK} offen", "touch")
        k.e(f"s_lshl_b32 s{c.SK}, s{c.SC}, 15", f"s_add_u32 s{c.SK}, s{c.SK}, s{c.SWO}", "s_mov_b32 exec_hi, 0")
        k.vmem(f"buffer_load_dword v{vd+3}, v{a}, s[{c.SO}:{c.SO+3}], s{c.SK} offen", "touch")
        k.e("s_mov_b32 exec_hi, -1")
    def post_loop():
        k.e("s_barrier")
        e4.setup()
        for s in range(c.DEPTH): e4.issueW(s)
        if tw: touchW()
    def touch_w3():
        if touch3 in (0, 3): go_wait()
        if not touch3: return
        k.e("v_lshrrev_b32 v66, 1, v1", "v_mul_u32_u24 v66, 3584, v66", "v_and_b32 v67, 1, v1", "v_lshl_add_u32 v66, v67, 7, v66",
            "s_lshl_b32 s36, s95, 7", "s_lshl_b32 s37, s24, 5", "s_add_u32 s36, s36, s37", "s_mul_i32 s36, s36, 3584", "s_lshl_b32 s37, s26, 8", "s_add_u32 s36, s36, s37")
        k.vmem("buffer_load_dword v74, v66, s[12:15], s36 offen", "touch")
        k.vmem("buffer_load_dword v75, v66, s[16:19], s36 offen", "touch")
        if touch3 == 2: k.wait_vm("touch")
        if touch3 in (1, 2): go_wait()
    if prio_e3 is not None: k.e(f"s_setprio {prio_e3}")
    if mode3 == "x":
        e3x_body(k, part=("main" if hoist else None), bal=bal, fine=fine3, epi_prio=epi_prio, post_loop=post_loop, rot=rot, ux=ux3)
    else:
        e3s_body(k, st_sc1="sc1", epi_prio=epi_prio, post_loop=post_loop, rot=rot, outb=64, pre_dma=touch_w3, mst={"s": 0, "m": 1, "n": 2}[mode3], rper=rp3, dper=dp3,
                 hooks={11: [lambda: epoch_issue_all(k, 124)], 13: [lambda: epoch_check_all(k, 124)]})
    k.e("s_lshl_b32 s36, s25, 1", "s_add_u32 s36, s36, s27", "s_lshl_b32 s36, s36, 8", "s_lshl_b32 s37, s26, 1", "s_add_u32 s37, s37, s28",
        "s_lshl_b32 s37, s37, 3", "s_add_u32 s36, s36, s37", f"s_add_u32 s36, s36, 0x{FLG_H8:x}", "v_mov_b32 v56, s36",
        f"v_mov_b32 v58, s{SEP}", f"v_mov_b32 v59, s{SEP+1}")
    k.stamp(3)
    k.wait_vm_all()
    if gexit == 3:
        ns = getattr(k, "nostamp", False); k.stamp_out(8, 0x40000, sh=7); k.e("s_waitcnt vmcnt(0)", "s_endpgm")
    k.stamp(4)
    k.e("s_mov_b64 exec, 1")
    k.vmem("buffer_store_dwordx2 v[58:59], v56, s[20:23], 0 offen sc1", "flag")
    k.e("s_mov_b64 exec, -1")
    if post_prio is not None: k.e(f"s_setprio {post_prio}")
    k.e("s_branch L_f1_e4")
    k.label("L_f1_pf")
    if gexit == 3: k.e("s_endpgm")
    if hoist: k.e("s_waitcnt vmcnt(0)", "s_barrier")
    k.vm = []; k.lg = []
    k.e("v_and_b32 v1, 63, v0")
    if gp_touch:
        k.e("s_sub_u32 s99, s3, 224")
        go_wait()
        k.e("s_lshl_b32 s36, s99, 8", "v_add_u32 v60, s36, v0", "v_lshlrev_b32 v60, 7, v60", "s_mov_b32 s36, 0x100000")
        k.vmem(f"buffer_load_dword v61, v60, s[{SD}:{SD+3}], 0 offen", "touch")
        k.vmem(f"buffer_load_dword v62, v60, s[{SD}:{SD+3}], s36 offen", "touch")
        k.vmem(f"buffer_load_dword v63, v60, s[{SO}:{SO+3}], 0 offen", "touch")
    epoch_issue_all(k, 112)
    k.stamp(1); k.stamp(2); k.stamp(3); k.stamp(4)
    e4.setup()
    epoch_check_all(k, 112)
    for s in range(c.DEPTH): e4.issueW(s)
    if post_prio is not None: k.e(f"s_setprio {post_prio}")
    k.label("L_f1_e4")
    k.vm = [(("W", s), False) for s in range(c.DEPTH) for _ in range(2)] + [("flag", True)]
    k.lg = []
    e4.e4_prio = e4_prio; e4.post_prio = post_prio; e4.pre = pre; e4.rsleep = rsleep; e4.lim1 = lim1; e4.omod = omod
    e4.body(st=(5, 6))
    if endwait: k.wait_vm_all()
    k.stamp(7); k.stamp_out(8, 0x40000, sh=7); k.wait_vm_all()
    k.label(f"L_end_{k.name}")
    k.e("s_endpgm")
    fb()
    k.emit_tails()
    k.label("L_code_end")
    k.e("s_endpgm")
    return k

def build(fn, **kw):
    k = kF1(**kw)
    txt = build_file([(k.name, (512,1,1), (256,1,1), 81920)], [k])
    open(fn, "w").write(txt)
    e = haz.check_text(txt)
    for x in e: print(x)
    print(fn, len(e), "hazards;", len(txt), "bytes")

if __name__ == "__main__":
    build("f1.s")
    KV.STAMP = True
    build("f1st.s")
```

```python
from f1 import *
import f1
P = dict(pre=3, osleep=1)
build("g1.s", **P)
build("h1.s", omod="sc1", **P)
build("h2.s", omod="sc0 sc1", **P)
build("h3.s", omod="nt", **P)
build("h4.s", omod="sc0 sc1 nt", **P)
build("h5.s", endwait=False, **P)
```

```python
from agen import *

WS_TOK = 0x000000
WS_COL = 0x010000
WS_QF  = 0x100000
WS_KF  = 0x300000
WS_VF  = 0x500000
WS_HF  = 0x700000
WS_OF  = 0xE00000
WS_SIZE = 0x1100000
WS_DBG = 0x1000000
LOG2E = 1.4426950408889634

import struct
def f2u(x): return struct.unpack("<I", struct.pack("<f", x))[0]

EPK = 0
EPK2 = 0
class KV(Kernel):
    def __init__(self, *a, **kw):
        super().__init__(*a, **kw)
        self.vm = []
        self.lg = []
        self.tails = []
    def emit_tails(self):
        for t in self.tails: t()
        self.tails = []
    def vmem(self, txt, tag=None, opt=False):
        self.e(txt); self.vm.append((tag, opt))
    def wait_vm(self, *tags, cond=False):
        idx = [i for i, (t, o) in enumerate(self.vm) if t in tags]
        if not idx: return
        last = max(idx)
        n = sum(1 for (t, o) in self.vm[last + 1:] if not o)
        assert n <= 63
        self.e(f"s_waitcnt vmcnt({n})")
        if cond:
            self.vm = [(t, o) for i, (t, o) in enumerate(self.vm) if not (o and i <= last)]
        else:
            self.vm = self.vm[last + 1:]
    def wait_vm_all(self):
        self.e("s_waitcnt vmcnt(0)"); self.vm = []
    def ds(self, txt, tag=None):
        self.e(txt); self.lg.append(tag)
    def wait_lg(self, *tags):
        idx = [i for i, t in enumerate(self.lg) if t in tags]
        if not idx: return
        last = max(idx)
        n = min(15, len(self.lg) - 1 - last)
        self.e(f"s_waitcnt lgkmcnt({n})")
        self.lg = self.lg[len(self.lg) - n:] if n else []
    STAMP = False
    def stamp(self, idx):
        if not KV.STAMP or getattr(self, "nostamp", False): return
        idx = idx + getattr(self, "stamp_off", 0)
        self.e("s_memtime s[60:61]", "s_memrealtime s[62:63]", "s_waitcnt lgkmcnt(0)",
               f"s_mov_b32 s{64+2*idx}, s60", f"s_mov_b32 s{65+2*idx}, s62")
        self.lg = []
    def stamp_out(self, n, base, SWS=20, sh=6):
        if not KV.STAMP: return
        self.e("v_lshrrev_b32 v250, 6, v0", "s_lshl_b32 s60, s2, 2", "v_add_u32 v250, s60, v250", f"v_lshlrev_b32 v250, {sh}, v250",
               f"v_add_u32 v250, 0x{WS_DBG + base:x}, v250", "v_and_b32 v251, 63, v0", "v_cmp_eq_u32 vcc, 0, v251", "s_and_saveexec_b64 s[60:61], vcc")
        for i in range(2*n):
            self.e(f"v_mov_b32 v251, s{64+i}", f"buffer_store_dword v251, v250, s[{SWS}:{SWS+3}], 0 offen offset:{4*i}", "s_nop 1")
        self.e("s_mov_b64 exec, s[60:61]")
    def wait_lg_all(self):
        if self.lg:
            self.e("s_waitcnt lgkmcnt(0)")
        self.lg = []

def srd(k, d, karg_off, nbytes):
    k.e(f"s_load_dwordx2 s[{d}:{d+1}], s[0:1], {karg_off}")
    return [f"s_mov_b32 s{d+2}, 0x{nbytes:x}", f"s_mov_b32 s{d+3}, 0x00020000"]

SZ_X = 2048*512*2; SZ_WQKV = 512*1536*2; SZ_WO = 512*512*2; SZ_WG = 512*1792*2; SZ_WD = 1792*512*2

def allreduce(k, regs, tmps):
    n = len(regs)
    pad = max(0, 2 - (n - 1))
    for mode in ("quad_perm:[1,0,3,2]", "quad_perm:[2,3,0,1]", "row_half_mirror", "row_mirror"):
        for r in regs:
            k.e(f"v_add_f32_dpp v{r}, v{r}, v{r} {mode} row_mask:0xf bank_mask:0xf")
        if pad: k.e(f"s_nop {pad-1}")
    for sw in ("v_permlane16_swap_b32", "v_permlane32_swap_b32"):
        for r, t in zip(regs, tmps): k.e(f"v_mov_b32 v{t}, v{r}")
        k.e("s_nop 1")
        for r, t in zip(regs, tmps): k.e(f"{sw} v{r}, v{t}")
        k.e("s_nop 1")
        for r, t in zip(regs, tmps): k.e(f"v_add_f32 v{r}, v{r}, v{t}")
    k.e("s_nop 1")


SDBG = 56
SEP = 58
SCNT = 54
FLG = 0x40000
FLG_ROW = FLG
FLG_COLQ = FLG + 0x400
FLG_COLG = FLG + 0x800
FLG_QKV = FLG + 0x1000
FLG_H = FLG + 0x2000
FLG_O = FLG + 0x3000
SPIN_MAX = 0x4000
FLG_QKV8 = FLG + 0x1000
FLG_H8 = FLG + 0x2000
FLG_O8 = FLG + 0x4000
FLG_P8 = FLG + 0x6000

def load_dbg(k):
    k.e(f"s_load_dwordx2 s[{SDBG}:{SDBG+1}], s[0:1], 64")

def wave_id(k):
    k.e("v_lshrrev_b32 v10, 6, v0", "s_nop 1", "v_readfirstlane_b32 s24, v10", "s_nop 3")

def epoch_make(k):
    L = k.newlabel("ep")
    k.e("s_or_b32 s54, s2, s24", "s_cmp_lg_u32 s54, 0", f"s_cbranch_scc1 {L}",
        f"s_memrealtime s[{SEP}:{SEP+1}]", "v_mov_b32 v1, 0", "s_waitcnt lgkmcnt(0)", f"s_or_b32 s{SEP}, s{SEP}, 1",
        f"v_mov_b32 v2, s{SEP}", f"v_mov_b32 v3, s{SEP+1}", "s_mov_b64 exec, 1",
        f"global_store_dwordx2 v1, v[2:3], s[{SDBG}:{SDBG+1}] sc1", "s_mov_b64 exec, -1")
    k.label(L)

def w0_begin(k):
    L = k.newlabel("w0")
    k.e("s_cmp_lg_u32 s24, 0", f"s_cbranch_scc1 {L}")
    return L

def epoch_issue(k, vd):
    k.e(f"v_mov_b32 v{vd+2}, 0")
    L = w0_begin(k)
    k.vmem(f"global_load_dwordx2 v[{vd}:{vd+1}], v{vd+2}, s[{SDBG}:{SDBG+1}] sc1", "ep", opt=True)
    k.label(L)

def epoch_check(k, vd):
    L = w0_begin(k)
    Ls = k.newlabel("eps"); Lc = k.newlabel("epc")
    k.wait_vm("ep", cond=True)
    k.label(Lc + "_r")
    k.e(f"v_readfirstlane_b32 s{SEP}, v{vd}", f"v_readfirstlane_b32 s{SEP+1}, v{vd+1}", "s_nop 3", f"s_cmp_eq_u32 s{SEP}, 0", f"s_cbranch_scc1 {Ls}")
    k.label(Lc)
    k.label(L)
    def tail():
        k.label(Ls)
        k.e(f"s_mov_b32 s{SCNT}, 0")
        k.label(Ls + "_l")
        k.e(f"global_load_dwordx2 v[{vd}:{vd+1}], v{vd+2}, s[{SDBG}:{SDBG+1}] sc1", f"s_add_u32 s{SCNT}, s{SCNT}, 1", "s_waitcnt vmcnt(0)",
            f"v_readfirstlane_b32 s{SEP}, v{vd}", f"v_readfirstlane_b32 s{SEP+1}, v{vd+1}", "s_nop 3", f"s_cmp_lg_u32 s{SEP}, 0", f"s_cbranch_scc1 {Lc}",
            "s_sleep 2", f"s_cmp_lt_u32 s{SCNT}, 0x{SPIN_MAX:x}", f"s_cbranch_scc1 {Ls}_l", f"s_branch {Lc}")
    k.tails.append(tail)

def publish(k, s_off, SWS=20, vt=1):
    k.wait_vm_all(); k.wait_lg_all()
    k.e("s_barrier")
    L = w0_begin(k)
    k.e(f"v_mov_b32 v{vt}, s{s_off}", f"v_mov_b32 v{vt+1}, s{SEP}", f"v_mov_b32 v{vt+2}, s{SEP+1}", "s_mov_b64 exec, 1")
    k.vmem(f"buffer_store_dwordx2 v[{vt+1}:{vt+2}], v{vt}, s[{SWS}:{SWS+3}], 0 offen sc1", "flag", opt=True)
    k.e("s_mov_b64 exec, -1")
    k.label(L)

def poll_issue(k, vd, voff, SWS=20):
    L = w0_begin(k)
    k.vmem(f"buffer_load_dwordx2 v[{vd}:{vd+1}], v{voff}, s[{SWS}:{SWS+3}], 0 offen sc1", "poll", opt=True)
    k.label(L)

def poll_check(k, vd, voff, SWS=20):
    L = w0_begin(k)
    Ls = k.newlabel("spin"); Lc = k.newlabel("cont")
    k.wait_vm("poll", cond=True)
    k.e(f"v_cmp_eq_u64 vcc, s[{SEP}:{SEP+1}], v[{vd}:{vd+1}]", "s_nop 3", "s_cmp_eq_u64 vcc, -1", f"s_cbranch_scc0 {Ls}")
    k.label(Lc)
    k.label(L)
    def tail():
        k.label(Ls)
        k.e(f"s_mov_b32 s{SCNT}, 0")
        k.label(Ls + "_l")
        k.e("s_sleep 2", f"buffer_load_dwordx2 v[{vd}:{vd+1}], v{voff}, s[{SWS}:{SWS+3}], 0 offen sc1", f"s_add_u32 s{SCNT}, s{SCNT}, 1", "s_waitcnt vmcnt(0)",
            f"v_cmp_eq_u64 vcc, s[{SEP}:{SEP+1}], v[{vd}:{vd+1}]", "s_nop 3", "s_cmp_eq_u64 vcc, -1", f"s_cbranch_scc1 {Lc}",
            f"s_cmp_lt_u32 s{SCNT}, 0x{SPIN_MAX:x}", f"s_cbranch_scc1 {Ls}_l", f"s_branch {Lc}")
    k.tails.append(tail)

def row_job(k, s_job, srd_x, srd_ws, sc1="", pre_store=None):
    k.e("v_and_b32 v1, 63, v0", "v_lshrrev_b32 v2, 6, v0", f"s_lshl_b32 s40, s{s_job}, 14",
        "v_lshlrev_b32 v3, 12, v2", "v_lshl_add_u32 v3, v1, 4, v3", "v_add_u32 v3, s40, v3")
    for j in range(4):
        k.vmem(f"buffer_load_dwordx4 v[{4+4*j}:{7+4*j}], v3, s[{srd_x}:{srd_x+3}], 0 offen offset:{1024*j}", "rj")
    k.e("v_bfe_u32 v72, v1, 1, 2", "v_cmp_eq_u32 s[42:43], 1, v72", "v_cmp_eq_u32 s[44:45], 2, v72", "v_cmp_eq_u32 s[46:47], 3, v72")
    k.wait_vm("rj")
    if pre_store: pre_store()
    for j in range(4):
        for i in range(4):
            k.e(f"v_lshlrev_b32 v{32+8*j+2*i}, 16, v{4+4*j+i}", f"v_and_b32 v{33+8*j+2*i}, 0xffff0000, v{4+4*j+i}")
    for j in range(4):
        b = 32 + 8*j
        k.e(f"v_add_f32 v{20+j}, v{b}, v{b+1}")
    for i in range(2, 8):
        for j in range(4):
            k.e(f"v_add_f32 v{20+j}, v{20+j}, v{32+8*j+i}")
    allreduce(k, [20, 21, 22, 23], [24, 25, 26, 27])
    for j in range(4): k.e(f"v_mul_f32 v{20+j}, 0x3b000000, v{20+j}")
    for i in range(8):
        for j in range(4): k.e(f"v_sub_f32 v{32+8*j+i}, v{32+8*j+i}, v{20+j}")
    for j in range(4): k.e(f"v_mul_f32 v{28+j}, v{32+8*j}, v{32+8*j}")
    for i in range(1, 8):
        for j in range(4): k.e(f"v_fmac_f32 v{28+j}, v{32+8*j+i}, v{32+8*j+i}")
    allreduce(k, [28, 29, 30, 31], [24, 25, 26, 27])
    k.e("v_cndmask_b32 v64, v20, v21, s[42:43]", "v_cndmask_b32 v65, v28, v29, s[42:43]",
        "v_cndmask_b32 v64, v64, v22, s[44:45]", "v_cndmask_b32 v65, v65, v30, s[44:45]",
        "v_cndmask_b32 v64, v64, v23, s[46:47]", "v_cndmask_b32 v65, v65, v31, s[46:47]")
    k.e("v_mov_b32 v66, 0x3727c5ac", "v_fmac_f32 v66, 0x3b000000, v65",
        "v_rsq_f32 v67, v66", "v_sub_f32 v64, 0, v64",
        "v_mul_f32 v68, v66, v67",
        "v_cvt_pk_bf16_f32 v69, v64, v64", "s_nop 0", "v_and_b32 v69, 0xffff0000, v69", "v_sub_f32 v70, v64, v69",
        "v_cvt_pk_bf16_f32 v69, v70, v70", "s_nop 0", "v_and_b32 v69, 0xffff0000, v69", "v_sub_f32 v71, v70, v69",
        "v_cvt_pk_bf16_f32 v4, v64, v70", "v_cvt_pk_bf16_f32 v6, v71, v64",
        "v_and_b32 v72, 1, v1", "v_cmp_eq_u32 vcc, 1, v72", "v_mov_b32 v5, v4", "v_mov_b32 v7, 0",
        "v_cndmask_b32 v4, v4, v67, vcc", "v_cndmask_b32 v5, v5, v68, vcc", "v_cndmask_b32 v6, v6, v7, vcc")
    k.e(f"s_lshl_b32 s40, s{s_job}, 9", "v_lshlrev_b32 v3, 7, v2", "v_lshl_add_u32 v3, v1, 4, v3", "v_add_u32 v3, s40, v3",
        "v_cmp_gt_u32 vcc, 8, v1", "s_and_saveexec_b64 s[42:43], vcc")
    k.vmem(f"buffer_store_dwordx4 v[4:7], v3, s[{srd_ws}:{srd_ws+3}], 0 offen offset:{WS_TOK} {sc1}", "st")
    k.e("s_mov_b64 exec, s[42:43]")

def col_job(k, s_job, srd_w, s_ld, s_col0b, srd_ws, ldsbase=0, sc1="", pre_store=None):
    k.e("v_and_b32 v1, 63, v0", "v_lshrrev_b32 v2, 6, v0", "v_lshrrev_b32 v3, 2, v1", "v_lshl_add_u32 v3, v2, 7, v3",
        f"v_mul_lo_u32 v3, v3, s{s_ld}", "v_and_b32 v4, 3, v1", "v_lshl_add_u32 v3, v4, 4, v3", f"v_add_u32 v3, s{s_col0b}, v3",
        f"s_lshl_b32 s41, s{s_ld}, 4", "s_mov_b32 s40, 0")
    for i in range(8):
        k.vmem(f"buffer_load_dwordx4 v[{8+4*i}:{11+4*i}], v3, s[{srd_w}:{srd_w+3}], s40 offen", ("cj", i))
        if i < 7: k.e("s_add_u32 s40, s40, s41")
    k.e("s_mov_b32 s42, 0x00003f80", "s_mov_b32 s43, 0x3f800000")
    for i in range(8): k.e(f"v_mov_b32 v{40+i}, 0")
    for i in range(8):
        k.wait_vm(("cj", i))
        for d in range(4):
            k.e(f"v_dot2_f32_bf16 v{40+2*d}, v{8+4*i+d}, s42, v{40+2*d}", f"v_dot2_f32_bf16 v{41+2*d}, v{8+4*i+d}, s43, v{41+2*d}")
    if pre_store: pre_store()
    k.e("s_nop 2")
    for mode in ("row_ror:4", "row_ror:8"):
        for i in range(8): k.e(f"v_add_f32_dpp v{40+i}, v{40+i}, v{40+i} {mode} row_mask:0xf bank_mask:0xf")
    k.e("v_lshrrev_b32 v5, 4, v1", "v_lshl_add_u32 v5, v2, 2, v5", "v_lshlrev_b32 v5, 7, v5", "v_lshl_add_u32 v5, v4, 5, v5",
        "v_and_b32 v6, 15, v1", "v_cmp_gt_u32 vcc, 4, v6", "s_and_saveexec_b64 s[44:45], vcc")
    k.ds(f"ds_write_b128 v5, v[40:43] offset:{ldsbase}")
    k.ds(f"ds_write_b128 v5, v[44:47] offset:{ldsbase+16}")
    k.e("s_mov_b64 exec, s[44:45]")
    k.wait_lg_all()
    k.e("s_barrier")
    k.e("v_cmp_gt_u32 vcc, 32, v0", "s_and_saveexec_b64 s[44:45], vcc", "v_lshlrev_b32 v5, 2, v0")
    for p in range(16): k.ds(f"ds_read_b32 v{8+p}, v5 offset:{ldsbase+128*p}")
    k.wait_lg_all()
    for st in (8, 4, 2, 1):
        for p in range(st): k.e(f"v_add_f32 v{8+p}, v{8+p}, v{8+p+st}")
    k.e("s_nop 0",
        "v_cvt_pk_bf16_f32 v12, v8, v8", "s_nop 0", "v_and_b32 v9, 0xffff0000, v12", "v_sub_f32 v9, v8, v9",
        "v_cvt_pk_bf16_f32 v13, v9, v9", "s_nop 0", "v_and_b32 v10, 0xffff0000, v13", "v_sub_f32 v10, v9, v10",
        "v_cvt_pk_bf16_f32 v14, v8, v10", "v_mov_b32 v15, 0",
        f"s_lshl_b32 s40, s{s_job}, 9", "v_lshlrev_b32 v5, 4, v0", "v_add_u32 v5, s40, v5", f"s_mov_b32 s40, {WS_COL}")
    k.vmem(f"buffer_store_dwordx4 v[12:15], v5, s[{srd_ws}:{srd_ws+3}], s40 offen {sc1}", "st")
    k.e("s_mov_b64 exec, s[44:45]")

def k0_kernel():
    k = KV("k0_stats_kernel", nvgpr=96)
    k.e("s_cmp_ge_u32 s2, 288", f"s_cbranch_scc1 L_end_{k.name}")
    fx = srd(k, 8, 0, SZ_X) + srd(k, 20, 72, WS_SIZE)
    k.e("s_load_dwordx2 s[28:29], s[0:1], 8", "s_load_dwordx2 s[30:31], s[0:1], 32", "s_load_dwordx2 s[32:33], s[0:1], 40")
    k.e("s_waitcnt lgkmcnt(0)"); k.e(*fx)
    k.e("s_cmp_ge_u32 s2, 128", "s_cbranch_scc1 L_k0_col")
    row_job(k, 2, 8, 20)
    k.e("s_branch L_k0_done")
    k.label("L_k0_col")
    k.e("s_sub_u32 s3, s2, 128")
    k.e("s_mov_b32 s12, s28", "s_mov_b32 s13, s29", f"s_mov_b32 s14, {SZ_WQKV}", "s_mov_b32 s15, 0x00020000",
        "s_movk_i32 s16, 3072", "s_lshl_b32 s17, s3, 6",
        "s_cmp_lt_u32 s3, 48", "s_cbranch_scc1 L_k0_go",
        "s_mov_b32 s12, s30", "s_mov_b32 s13, s31", f"s_mov_b32 s14, {SZ_WG}", "s_movk_i32 s16, 3584",
        "s_sub_u32 s17, s3, 48", "s_lshl_b32 s17, s17, 6",
        "s_cmp_lt_u32 s3, 104", "s_cbranch_scc1 L_k0_go",
        "s_mov_b32 s12, s32", "s_mov_b32 s13, s33", "s_sub_u32 s17, s3, 104", "s_lshl_b32 s17, s17, 6")
    k.label("L_k0_go")
    col_job(k, 3, 12, 16, 17, 20)
    k.label("L_k0_done")
    k.wait_vm_all()
    k.label(f"L_end_{k.name}")
    k.e("s_endpgm")
    return k

DBG = dict(nodma=False, nobar=False, noreads=False, fill=None, early=False)
def gemm_loop(k, nunits, mfmas, reads, dmas, vm_need, fill=6, dma_first_gap=0, hooks=None, pre_hooks=None, dbg=False):
    def tagof(g, name): return ("fr", g, name)
    for u in range(nunits):
        g0, g1 = 2*u, 2*u + 1
        k.wait_vm(*vm_need(u))
        k.wait_lg_all()
        if not (dbg and DBG["nobar"]): k.e("s_barrier")
        if pre_hooks and u in pre_hooks: pre_hooks[u]()
        R0 = list(reads(g0, 0)); R1 = list(reads(g1, 1))
        if dbg and DBG["noreads"] and u > 0: R0 = []; R1 = []
        if dbg and DBG["fill"]: fill = DBG["fill"]
        prev = list(mfmas(g0 - 1, 1)) if u > 0 else []
        cur = list(mfmas(g0, 0))
        D = list(dmas(u))
        if dbg and DBG["nodma"]: D = []
        rel = {}
        for i, (t, used) in enumerate(prev):
            for nm in used: rel[nm] = i
        def emit_reads(i, budget):
            n = 0
            while n < budget and R0:
                t, nm = R0.pop(0); k.ds(t, tagof(g0, nm)); n += 1
            j = 0
            while n < budget and j < len(R1):
                t, nm = R1[j]
                if rel.get(nm, -1) <= i:
                    k.ds(t, tagof(g1, nm)); R1.pop(j); n += 1
                else: j += 1
            return n
        if not prev:
            emit_reads(-1, 1000)
        early = dbg and DBG["early"]
        def emit_dma():
            for (txt, tag, isvm) in D.pop(0):
                if isvm: k.vmem(txt, tag)
                else: k.e(txt)
        for i, (t, used) in enumerate(prev):
            k.e(t)
            if early:
                emit_reads(i, 4)
                if D: emit_dma()
            else:
                emit_reads(i, fill)
        emit_reads(10**6, 1000)
        ngap = len(cur)
        per = -(-len(D) // ngap) if D else 0
        for j, (t, used) in enumerate(cur):
            k.wait_lg(*[tagof(g0, nm) for nm in used])
            k.e(t)
            for _ in range(per):
                if D:
                    for (txt, tag, isvm) in D.pop(0):
                        if isvm: k.vmem(txt, tag)
                        else: k.e(txt)
        assert not D
        if hooks and u in hooks:
            for h in hooks[u]: h()
    k.wait_lg_all()
    for (t, used) in mfmas(2*nunits - 1, 1): k.e(t)

def dma(srd_, voff, s_m0base, m0imm, s_tmp, soff, tag, imm=0):
    out = [(f"s_add_u32 m0, s{s_m0base}, {m0imm - imm}" , None, False)]
    out.append((f"s_mov_b32 s{s_tmp}, 0x{soff:x}", None, False))
    o = f" offset:{imm}" if imm else ""
    out.append((f"buffer_load_dwordx4 v{voff}, s[{srd_}:{srd_+3}], s{s_tmp} offen{o} lds", tag, True))
    return out

def dmab(srd_, voff, s_m0base, m0imm, s_tmp, s_base, soff, tag, imm=0, post=()):
    out = [(f"s_add_u32 m0, s{s_m0base}, {m0imm - imm}" , None, False)]
    out.append((f"s_add_u32 s{s_tmp}, s{s_base}, 0x{soff:x}", None, False))
    o = f" offset:{imm}" if imm else ""
    out.append((f"buffer_load_dwordx4 v{voff}, s[{srd_}:{srd_+3}], s{s_tmp} offen{o} lds", tag, True))
    for t in post: out.append((t, None, False))
    return out

def rot_adv(s, step, lim, tmp):
    return [f"s_add_u32 s{s}, s{s}, {step}", f"s_cmp_ge_u32 s{s}, {lim}", f"s_cselect_b32 s{tmp}, {lim}, 0", f"s_sub_u32 s{s}, s{s}, s{tmp}"]

def emit_groups(k, groups):
    for gr in groups:
        for (txt, tag, isvm) in gr:
            if isvm: k.vmem(txt, tag)
            else: k.e(txt)

MF = "v_mfma_f32_32x32x16_bf16"

def e1_body(k, SX=8, SW=12, SWS=20, sc1="", stats_sync=None):
    E1_XB = 49152
    k.e("v_and_b32 v1, 63, v0", "v_lshrrev_b32 v10, 6, v0", "s_nop 0", "v_readfirstlane_b32 s24, v10")
    k.e("v_and_b32 v11, 31, v1", "v_lshrrev_b32 v12, 5, v1")
    k.e("s_and_b32 s27, s24, 1", "s_lshr_b32 s28, s24, 1")
    k.e("v_lshrrev_b32 v13, 3, v1", "v_lshrrev_b32 v14, 4, v1", "v_and_b32 v15, 7, v1",
        "v_xor_b32 v7, v15, v14", "v_lshlrev_b32 v7, 4, v7", "v_lshl_add_u32 v7, v13, 10, v7",
        "s_lshl_b32 s29, s25, 16", "s_lshl_b32 s30, s24, 14", "s_add_u32 s29, s29, s30",
        "v_add_u32 v7, s29, v7", "v_xor_b32 v8, 64, v7", "v_add_u32 v8, 8192, v8")
    k.e("v_and_b32 v14, 1, v14", "v_lshlrev_b32 v14, 2, v14", "v_xor_b32 v9, v15, v14", "v_lshlrev_b32 v9, 4, v9",
        "s_lshl_b32 s30, s24, 3", "v_add_u32 v13, s30, v13", "v_mul_u32_u24 v13, 3072, v13", "v_add_u32 v9, v9, v13",
        "s_lshl_b32 s30, s26, 7", "v_add_u32 v9, s30, v9")
    k.e(f"s_lshl_b32 s31, s24, 11", f"s_add_u32 s31, s31, {E1_XB}", "s_lshl_b32 s32, s24, 10")
    def xd(v):
        return [dma(SX, 7, 31, (v % 3)*8192, 33, v*128, ("X", v)), dma(SX, 8, 31, (v % 3)*8192 + 1024, 33, v*128, ("X", v))]
    def wd(u):
        return [dma(SW, 9, 32, (u % 4)*12288 + p*4096, 33, u*32*3072, ("W", u), imm=1024*p) for p in range(3)]
    emit_groups(k, xd(0) + wd(0) + wd(1) + xd(1) + wd(2))
    for i in range(48, 64): k.e(f"v_mov_b32 v{i}, 0")
    k.e("s_lshl_b32 s34, s25, 6", "s_lshl_b32 s35, s27, 5", "s_add_u32 s34, s34, s35",
        "v_add_u32 v116, s34, v11", "v_lshlrev_b32 v116, 5, v116")
    k.e("s_lshl_b32 s35, s26, 6", "s_lshl_b32 s36, s28, 5", "s_add_u32 s35, s35, s36",
        "v_add_u32 v117, s35, v11", "v_lshlrev_b32 v117, 4, v117")
    def extras(xsc):
        k.vmem(f"buffer_load_dword v112, v116, s[{SWS}:{SWS+3}], 0 offen offset:{WS_TOK+16} {xsc}", "ex")
        k.e(f"s_mov_b32 s36, {WS_COL}", "s_mov_b64 exec, 0xffffffff")
        k.vmem(f"buffer_load_dwordx4 v[48:51], v116, s[{SWS}:{SWS+3}], 0 offen offset:{WS_TOK} {xsc}", "ex")
        for p in range(3):
            k.vmem(f"buffer_load_dwordx4 v[{52+4*p}:{55+4*p}], v117, s[{SWS}:{SWS+3}], s36 offen {xsc}", "ex")
            if p < 2: k.e("s_add_u32 s36, s36, 8192")
        k.e("s_mov_b64 exec, -1")
    hooks = None; pre_hooks = None
    if stats_sync is None:
        extras("")
    else:
        ue, up, uc = stats_sync
        k.e("v_and_b32 v114, 15, v1", "v_min_u32 v114, 9, v114", "v_lshlrev_b32 v114, 3, v114",
            f"s_lshl_b32 s36, s25, 5", f"s_add_u32 s36, s36, 0x{FLG_ROW:x}", "v_add_u32 v115, s36, v114",
            f"s_lshl_b32 s36, s26, 7", f"s_add_u32 s36, s36, 0x{FLG_COLQ - 32:x}", "v_add_u32 v118, s36, v114",
            "v_cmp_gt_u32 vcc, 32, v114", "s_nop 1", "v_cndmask_b32 v115, v118, v115, vcc")
        def h_e(): epoch_issue(k, 120)
        def h_p():
            epoch_check(k, 120)
            poll_issue(k, 120, 115)
        def h_c(): poll_check(k, 120, 115)
        def h_x(): extras("sc1")
        hooks = {ue: [h_e], up: [h_p], uc: [h_c]}
        pre_hooks = {uc + 1: h_x}
    k.e("s_lshl_b32 s36, s27, 5", "v_add_u32 v13, s36, v11", "v_bfe_u32 v14, v13, 1, 3", "v_xor_b32 v14, v14, v12",
        "v_lshlrev_b32 v14, 4, v14", "v_lshl_add_u32 v2, v13, 7, v14", f"v_add_u32 v2, {E1_XB}, v2",
        "v_xor_b32 v3, 32, v2", "v_xor_b32 v4, 64, v2", "v_xor_b32 v5, 96, v2")
    k.e("v_bfe_u32 v13, v1, 2, 2", "v_lshl_add_u32 v13, v12, 3, v13", "v_lshlrev_b32 v6, 7, v13",
        "v_bfe_u32 v13, v1, 4, 1", "v_lshlrev_b32 v13, 1, v13", "v_bfe_u32 v14, v1, 1, 1", "v_add_u32 v13, v13, v14",
        "s_lshl_b32 s36, s28, 2", "v_add_u32 v13, s36, v13", "v_bfe_u32 v14, v1, 3, 1", "v_lshlrev_b32 v14, 2, v14",
        "v_xor_b32 v13, v13, v14", "v_lshl_add_u32 v6, v13, 4, v6", "v_and_b32 v14, 1, v1", "v_lshl_add_u32 v6, v14, 3, v6")
    for i in range(64, 112): k.e(f"v_mov_b32 v{i}, 0")
    def fr(st): return 16 + 16*st
    def reads(g, st):
        b = fr(st); u = g >> 1; v = g >> 2
        out = [(f"ds_read_b128 v[{b}:{b+3}], v{2 + (g & 3)} offset:{(v % 3)*8192}", "X")]
        for p in range(3):
            o = (u % 4)*12288 + p*4096 + (g & 1)*2048
            out.append((f"ds_read_b64_tr_b16 v[{b+4+4*p}:{b+5+4*p}], v6 offset:{o}", f"W{p}"))
            out.append((f"ds_read_b64_tr_b16 v[{b+6+4*p}:{b+7+4*p}], v6 offset:{o+512}", f"W{p}"))
        return out
    def mf(b_x, b_w):
        out = []
        for p in range(3):
            a = 64 + 16*p
            w = f"v[{b_w+4*p}:{b_w+4*p+3}]"; x = f"v[{b_x}:{b_x+3}]"
            A, B = (w, x) if p < 2 else (x, w)
            out.append((f"{MF} v[{a}:{a+15}], {A}, {B}, v[{a}:{a+15}]", ["X", f"W{p}"]))
        return out
    def mfmas(g, st): return mf(fr(st), fr(st) + 4)
    def dmas(u):
        out = []
        if u + 3 < 16: out += wd(u + 3)
        if u % 2 == 0 and u//2 + 2 < 8: out += xd(u//2 + 2)
        return out
    k.stamp(1)
    gemm_loop(k, 16, mfmas, reads, dmas, lambda u: [("W", u), ("X", u >> 1)], hooks=hooks, pre_hooks=pre_hooks)
    k.stamp(2)
    k.wait_vm("ex")
    for (t, _) in mf(48, 52): k.e(t)
    k.e("s_lshl_b32 s36, s24, 7", "v_lshlrev_b32 v13, 2, v11", "v_add_u32 v13, s36, v13")
    k.ds("ds_write_b32 v13, v112")
    k.e("v_lshlrev_b32 v13, 4, v12", "v_add_u32 v13, s36, v13")
    k.wait_lg_all()
    for gq in range(4): k.ds(f"ds_read_b128 v[{32+4*gq}:{35+4*gq}], v13 offset:{32*gq}")
    k.e(f"v_mul_f32 v113, 0x{f2u(0.25*LOG2E):08x}, v112")
    k.e("v_lshlrev_b32 v10, 4, v1",
        "s_lshl_b32 s36, s26, 2", "s_lshl_b32 s37, s28, 1", "s_add_u32 s36, s36, s37", "s_lshl_b32 s36, s36, 16",
        "s_lshl_b32 s37, s25, 1", "s_add_u32 s37, s37, s27", "s_lshl_b32 s37, s37, 10", "s_add_u32 s36, s36, s37")
    k.e("s_nop 4")
    for p, (scale, base) in enumerate(((113, WS_QF), (112, WS_KF))):
        a = 64 + 16*p
        for r in range(16): k.e(f"v_mul_f32 v{a+r}, v{a+r}, v{scale}")
        for j in range(2):
            d = 16 + 8*p + 4*j
            for i in range(4): k.e(f"v_cvt_pk_bf16_f32 v{d+i}, v{a+8*j+2*i}, v{a+8*j+2*i+1}")
            k.e(f"s_add_u32 s37, s36, 0x{base + j*65536:x}")
            k.vmem(f"buffer_store_dwordx4 v[{d}:{d+3}], v10, s[{SWS}:{SWS+3}], s37 offen {sc1}", "st")
    k.wait_lg_all()
    a = 96
    for r in range(16): k.e(f"v_mul_f32 v{a+r}, v{a+r}, v{32+r}")
    k.e("v_lshrrev_b32 v13, 4, v11", "v_lshlrev_b32 v13, 16, v13", "v_lshl_add_u32 v13, v12, 8, v13", "v_and_b32 v14, 15, v11",
        "v_lshl_add_u32 v13, v14, 4, v13", f"s_add_u32 s37, s36, 0x{WS_VF:x}")
    for j in range(2):
        d = 48 + 4*j
        for i in range(4): k.e(f"v_cvt_pk_bf16_f32 v{d+i}, v{a+8*j+2*i}, v{a+8*j+2*i+1}")
        k.vmem(f"buffer_store_dwordx4 v[{d}:{d+3}], v13, s[{SWS}:{SWS+3}], s37 offen offset:{512*j} {sc1}", "st")

def e3_body(k, SX=8, SG=12, SU=16, SWS=20, sc1="", norm=False, xoff=0, epi_prio=None, post_loop=None, st_sc1=None, pre_loop=None):
    XB = 49152
    k.e("v_and_b32 v1, 63, v0", "v_lshrrev_b32 v10, 6, v0", "s_nop 0", "v_readfirstlane_b32 s24, v10")
    k.e("v_and_b32 v11, 31, v1", "v_lshrrev_b32 v12, 5, v1")
    k.e("s_and_b32 s27, s24, 1", "s_lshr_b32 s28, s24, 1")
    k.e("v_lshrrev_b32 v13, 3, v1", "v_lshrrev_b32 v14, 4, v1", "v_and_b32 v15, 7, v1",
        "v_xor_b32 v7, v15, v14", "v_lshlrev_b32 v7, 4, v7", "v_lshl_add_u32 v7, v13, 10, v7",
        "s_lshl_b32 s29, s25, 17", "s_lshl_b32 s30, s24, 15", "s_add_u32 s29, s29, s30",
        "v_add_u32 v7, s29, v7", "v_xor_b32 v8, 64, v7", "v_add_u32 v8, 8192, v8")
    k.e("v_lshlrev_b32 v13, 2, v14", "v_and_b32 v15, 15, v1", "v_xor_b32 v9, v15, v13", "v_lshlrev_b32 v9, 4, v9",
        "s_lshl_b32 s30, s24, 3", "v_add_u32 v13, s30, v14", "v_mul_u32_u24 v13, 3584, v13", "v_add_u32 v9, v9, v13",
        "s_lshl_b32 s30, s26, 8", "v_add_u32 v9, s30, v9")
    k.e(f"s_lshl_b32 s31, s24, 12", f"s_add_u32 s31, s31, {XB}", "s_lshl_b32 s32, s24, 11")
    def xd(v):
        return [dma(SX, 7 + (i & 1), 31, (v % 2)*16384 + i*1024, 33, xoff + v*128 + (i >> 1)*16384, ("X", v)) for i in range(4)]
    def wd(u):
        out = []
        for i in range(2):
            for p, sr in enumerate((SG, SU)):
                out.append(dma(sr, 9, 32, (u % 3)*16384 + p*8192 + i*1024, 33, (u*32 + 4*i)*3584, ("W", u)))
        return out
    emit_groups(k, xd(0) + wd(0) + wd(1))
    if pre_loop: pre_loop()
    k.e("s_lshl_b32 s36, s27, 6", "v_add_u32 v13, s36, v11", "v_bfe_u32 v14, v13, 1, 3", "v_xor_b32 v14, v14, v12",
        "v_lshlrev_b32 v14, 4, v14", "v_lshl_add_u32 v2, v13, 7, v14", f"v_add_u32 v2, {XB}, v2",
        "v_xor_b32 v3, 32, v2", "v_xor_b32 v4, 64, v2", "v_xor_b32 v5, 96, v2")
    k.e("v_bfe_u32 v15, v1, 2, 2", "v_lshl_add_u32 v13, v12, 3, v15", "v_lshlrev_b32 v6, 8, v13",
        "v_bfe_u32 v13, v1, 4, 1", "v_lshlrev_b32 v13, 1, v13", "v_bfe_u32 v14, v1, 1, 1", "v_add_u32 v13, v13, v14",
        "s_lshl_b32 s36, s28, 3", "v_add_u32 v13, s36, v13", "v_lshlrev_b32 v15, 2, v15",
        "v_xor_b32 v13, v13, v15", "v_lshl_add_u32 v6, v13, 4, v6", "v_and_b32 v14, 1, v1", "v_lshl_add_u32 v6, v14, 3, v6",
        "v_xor_b32 v10, 64, v6")
    ACC = 128
    if not norm:
        for i in range(ACC, ACC + 128): k.e(f"v_mov_b32 v{i}, 0")
    def fr(st): return 16 + 24*st
    def acc(part, b, tb): return ACC + 16*(part*4 + b*2 + tb)
    def reads(g, st):
        b0 = fr(st); u = g >> 1; v = g >> 2
        out = []
        def wr(part, b):
            d = b0 + 8 + 8*part + 4*b
            o = (u % 3)*16384 + part*8192 + (g & 1)*4096
            av = 6 if b == 0 else 10
            return [(f"ds_read_b64_tr_b16 v[{d}:{d+1}], v{av} offset:{o}", f"W{part}{b}"),
                    (f"ds_read_b64_tr_b16 v[{d+2}:{d+3}], v{av} offset:{o+1024}", f"W{part}{b}")]
        def xr(tb): return [(f"ds_read_b128 v[{b0+4*tb}:{b0+4*tb+3}], v{2 + (g & 3)} offset:{(v % 2)*16384 + tb*4096}", f"X{tb}")]
        out = xr(0) + wr(0, 0) + xr(1) + wr(0, 1) + wr(1, 0) + wr(1, 1)
        return out
    def mf(b0, first=False):
        out = []
        for part in range(2):
            for b in range(2):
                for tb in range(2):
                    a = acc(part, b, tb); w = b0 + 8 + 8*part + 4*b; x = b0 + 4*tb
                    c = "0" if first else f"v[{a}:{a+15}]"
                    out.append((f"{MF} v[{a}:{a+15}], v[{w}:{w+3}], v[{x}:{x+3}], {c}", [f"X{tb}", f"W{part}{b}"]))
        return out
    def mfmas(g, st): return mf(fr(st), first=(norm and g == 0))
    def dmas(u):
        out = []
        if u + 2 < 16: out += wd(u + 2)
        if u % 2 == 0 and u//2 + 1 < 8: out += xd(u//2 + 1)
        return out
    if not norm:
        for i in range(64, 88): k.e(f"v_mov_b32 v{i}, 0")
        k.e("s_lshl_b32 s34, s25, 7", "s_lshl_b32 s35, s27, 6", "s_add_u32 s34, s34, s35",
            "v_add_u32 v13, s34, v11", "v_lshlrev_b32 v13, 5, v13")
        for tb in range(2):
            k.vmem(f"buffer_load_dwordx2 v[{88+2*tb}:{89+2*tb}], v13, s[{SWS}:{SWS+3}], 0 offen offset:{WS_TOK+16+1024*tb} {sc1}", "ex")
        k.e("s_lshl_b32 s35, s26, 7", "s_lshl_b32 s36, s28, 6", "s_add_u32 s35, s35, s36",
            "v_add_u32 v14, s35, v11", "v_lshlrev_b32 v14, 4, v14", f"s_mov_b32 s36, {WS_COL + 1536*16}", f"s_mov_b32 s37, {WS_COL + 3328*16}",
            "s_mov_b64 exec, 0xffffffff")
        for tb in range(2):
            k.vmem(f"buffer_load_dwordx4 v[{64+4*tb}:{67+4*tb}], v13, s[{SWS}:{SWS+3}], 0 offen offset:{WS_TOK+1024*tb} {sc1}", "ex")
        for part in range(2):
            for b in range(2):
                d = 72 + 8*part + 4*b
                k.vmem(f"buffer_load_dwordx4 v[{d}:{d+3}], v14, s[{SWS}:{SWS+3}], s{36+part} offen offset:{512*b} {sc1}", "ex")
        k.e("s_mov_b64 exec, -1")
    k.stamp(1)
    gemm_loop(k, 16, mfmas, reads, dmas, lambda u: [("W", u), ("X", u >> 1)], dbg=True)
    k.stamp(2)
    if epi_prio is not None: k.e(f"s_setprio {epi_prio}")
    if post_loop: post_loop()
    if st_sc1 is None: st_sc1 = sc1
    if not norm:
        k.wait_vm("ex")
        for (t, _) in mf(64): k.e(t)
        k.e(f"v_mul_f32 v92, 0x{f2u(LOG2E):08x}, v88", f"v_mul_f32 v93, 0x{f2u(LOG2E):08x}, v90")
    else:
        k.e(f"s_mov_b32 s38, 0x{f2u(-LOG2E):08x}")
    k.e("v_lshlrev_b32 v10, 4, v1",
        "s_lshl_b32 s36, s25, 2", "s_lshl_b32 s37, s27, 1", "s_add_u32 s36, s36, s37", "s_mul_i32 s36, s36, 112",
        "s_lshl_b32 s37, s26, 3", "s_add_u32 s36, s36, s37", "s_lshl_b32 s37, s28, 2", "s_add_u32 s36, s36, s37",
        "s_lshl_b32 s36, s36, 10", f"s_add_u32 s36, s36, 0x{WS_HF:x}")
    k.e("s_nop 4")
    n = 0
    for b in range(2):
        for tb in range(2):
            g = acc(0, b, tb); uu = acc(1, b, tb)
            A = 92 + tb; SD = 89 + 2*tb
            if not norm:
                for r in range(16): k.e(f"v_mul_f32 v{g+r}, v{g+r}, v{A}")
                for r in range(16): k.e(f"v_exp_f32 v{g+r}, -v{g+r}")
                for r in range(16): k.e(f"v_fma_f32 v{g+r}, v{g+r}, v{SD}, v{SD}")
            else:
                for r in range(16): k.e(f"v_mul_f32 v{g+r}, s38, v{g+r}")
                for r in range(16): k.e(f"v_exp_f32 v{g+r}, v{g+r}")
                for r in range(16): k.e(f"v_add_f32 v{g+r}, 1.0, v{g+r}")
            for r in range(16): k.e(f"v_rcp_f32 v{g+r}, v{g+r}")
            for r in range(16): k.e(f"v_mul_f32 v{g+r}, v{g+r}, v{uu+r}")
            for j in range(2):
                d = 16 + 4*(n % 8); n += 1
                for i in range(4): k.e(f"v_cvt_pk_bf16_f32 v{d+i}, v{g+8*j+2*i}, v{g+8*j+2*i+1}")
                k.e(f"s_add_u32 s37, s36, {(tb*112 + b*2 + j)*1024}")
                k.vmem(f"buffer_store_dwordx4 v[{d}:{d+3}], v10, s[{SWS}:{SWS+3}], s37 offen {st_sc1}", "st")

def k1_kernel():
    k = KV("k1_gemm_kernel", nvgpr=256)
    k.e("s_cmp_ge_u32 s2, 480", f"s_cbranch_scc1 L_end_{k.name}")
    fx = srd(k, 8, 0, SZ_X) + srd(k, 20, 72, WS_SIZE)
    k.e("s_cmp_ge_u32 s2, 256", "s_cbranch_scc1 L_k1_e3")
    fx1 = srd(k, 12, 8, SZ_WQKV)
    k.e("s_waitcnt lgkmcnt(0)"); k.e(*(fx + fx1))
    k.e("s_and_b32 s26, s2, 7", "s_lshr_b32 s25, s2, 3")
    k.stamp(0)
    e1_body(k)
    k.wait_vm_all()
    k.stamp(3); k.stamp_out(4, 0); k.wait_vm_all()
    k.e("s_endpgm")
    k.label("L_k1_e3")
    k.vm = []; k.lg = []
    fx3 = srd(k, 12, 32, SZ_WG) + srd(k, 16, 40, SZ_WG)
    k.e("s_waitcnt lgkmcnt(0)"); k.e(*(fx + fx3))
    k.e("s_sub_u32 s3, s2, 256", "s_and_b32 s4, s3, 7", "s_lshr_b32 s5, s3, 3", "s_mul_i32 s4, s4, 28", "s_add_u32 s4, s4, s5",
        "s_lshr_b32 s26, s4, 4", "s_and_b32 s25, s4, 15")
    k.stamp(0)
    e3_body(k)
    k.wait_vm_all()
    k.stamp(3); k.stamp_out(4, 0); k.wait_vm_all()
    k.label(f"L_end_{k.name}")
    k.e("s_endpgm")
    return k

BIAS_M = 90.0
def e2_body(k, SWS=20, sc1="", tag="e2", bias=BIAS_M, force_fb=False, pre_hook=None, sparse_ones=True, st_sc1=None, touch=False, oflag=False, prehint=0):
    SA, SB, OA, OB, CA, CB, PA, PB, QA, QB = 64, 80, 96, 112, 128, 144, 160, 168, 176, 180
    KB_ = [184, 188]; VB_ = [192, 200]
    SLOT = 12288
    S = [SA, SB]; O = [OA, OB]; C = [CA, CB]; P = [PA, PB]; Q = [QA, QB]
    k.e("v_and_b32 v1, 63, v0", "v_lshrrev_b32 v10, 6, v0", "s_nop 0", "v_readfirstlane_b32 s24, v10")
    k.e("v_lshlrev_b32 v2, 4, v1")
    k.e("v_lshrrev_b32 v3, 5, v1", "v_lshlrev_b32 v3, 8, v3", "v_and_b32 v4, 15, v1", "v_lshl_add_u32 v3, v4, 4, v3")
    k.e("s_mov_b32 s28, 0x0000ffff", "s_mov_b32 s29, 0x0000ffff")
    k.e("s_lshl_b32 s34, s24, 10", "v_add_u32 v14, s34, v2", f"s_add_u32 s34, s34, 0x{WS_VF - WS_KF - 1024:x}", "v_add_u32 v15, s34, v3",
        "v_subrev_u32 v16, 512, v15")
    k.e("s_lshl_b32 s33, s25, 16", f"s_add_u32 s30, s33, 0x{WS_KF:x}", "s_mul_i32 s32, s24, 3072")
    def chunk_dma_items(slot):
        return [("s", f"s_add_u32 m0, s32, {slot*SLOT}"),
                ("s", "s_nop 0"),
                ("v", f"buffer_load_dwordx4 v14, s[{SWS}:{SWS+3}], s30 offen {sc1} lds"),
                ("s", "s_mov_b64 exec, s[28:29]"),
                ("v", f"buffer_load_dwordx4 v15, s[{SWS}:{SWS+3}], s30 offen offset:1024 {sc1} lds"),
                ("v", f"buffer_load_dwordx4 v16, s[{SWS}:{SWS+3}], s30 offen offset:2048 {sc1} lds"),
                ("s", "s_mov_b64 exec, -1"),
                ("s", "s_add_u32 s30, s30, 4096")]
    def chunk_dma(slot):
        for kind, t in chunk_dma_items(slot):
            if kind == "v": k.vmem(t, "c")
            else: k.e(t)
    if sparse_ones:
        k.e("v_and_b32 v9, 27, v1", "v_cmp_eq_u32 vcc, 16, v9", "v_mov_b32 v4, 0x3f803f80", "v_mov_b32 v5, 0", "s_nop 1", "v_cndmask_b32 v4, v5, v4, vcc")
    else:
        k.e("v_mov_b32 v4, 0x3f803f80")
    k.e("v_mov_b32 v5, v4", "v_mov_b32 v6, v4", "v_mov_b32 v7, v4",
        f"s_mul_i32 s33, s24, {SLOT}", "v_add_u32 v8, s33, v2", "s_mov_b32 s38, 0xffff0000", "s_mov_b32 s39, 0xffff0000", "s_mov_b64 exec, s[38:39]")
    for kb in range(4):
        for g in range(2): k.ds(f"ds_write_b128 v8, v[4:7] offset:{kb*3072 + 1024 + g*1024}")
    k.e("s_mov_b64 exec, -1")
    if pre_hook: pre_hook()
    k.e("s_lshl_b32 s36, s26, 3", "s_lshl_b32 s37, s24, 1", "s_add_u32 s36, s36, s37",
        "s_lshl_b32 s37, s25, 6", "s_add_u32 s37, s37, s36", "s_lshl_b32 s37, s37, 10", f"s_add_u32 s37, s37, 0x{WS_QF:x}")
    chunk_dma(0)
    k.vmem(f"buffer_load_dwordx4 v[{QA}:{QA+3}], v2, s[{SWS}:{SWS+3}], s37 offen {sc1}", "q")
    k.vmem(f"buffer_load_dwordx4 v[{QB}:{QB+3}], v2, s[{SWS}:{SWS+3}], s37 offen offset:1024 {sc1}", "q")
    chunk_dma(1); chunk_dma(2)
    if touch:
        k.e("s_and_b32 s36, s24, 1", f"s_mul_i32 s36, s36, 0x{WS_VF - WS_KF:x}", "s_lshl_b32 s37, s26, 13", "s_add_u32 s36, s36, s37",
            "s_lshl_b32 s37, s25, 16", "s_add_u32 s36, s36, s37", f"s_add_u32 s36, s36, 0x{WS_KF:x}", "v_lshlrev_b32 v20, 7, v1")
        k.vmem(f"buffer_load_dword v21, v20, s[{SWS}:{SWS+3}], s36 offen", "touch")
    for i in range(16):
        k.e(f"v_mov_b32 v{OA+i}, 0", f"v_mov_b32 v{OB+i}, 0")
    for i in range(8): k.e(f"v_mov_b32 v{PB+i}, 0", f"v_mov_b32 v{VB_[1]+i}, 0")
    if prehint:
        k.e("s_lshl_b32 s36, s26, 2", "s_add_u32 s36, s36, s24", "s_lshl_b32 s36, s36, 8", "s_lshl_b32 s37, s25, 3", "s_add_u32 s36, s36, s37",
            f"s_add_u32 s36, s36, 0x{FLG_P8:x}", "v_mov_b32 v24, s36", f"v_mov_b32 v26, s{SEP}", f"v_mov_b32 v27, s{SEP+1}")
    k.wait_vm("q")
    k.wait_lg_all()
    k.e("s_barrier")
    k.ds(f"ds_read_b128 v[{KB_[0]}:{KB_[0]+3}], v2 offset:0")
    k.ds(f"ds_read_b128 v[{KB_[1]}:{KB_[1]+3}], v2 offset:3072")
    k.wait_lg_all()
    k.e(f"{MF} v[{SA}:{SA+15}], v[{KB_[0]}:{KB_[0]+3}], v[{QA}:{QA+3}], 0",
        f"{MF} v[{SB}:{SB+15}], v[{KB_[0]}:{KB_[0]+3}], v[{QB}:{QB+3}], 0",
        f"{MF} v[{CA}:{CA+15}], v[{KB_[1]}:{KB_[1]+3}], v[{QA}:{QA+3}], 0",
        f"{MF} v[{CB}:{CB+15}], v[{KB_[1]}:{KB_[1]+3}], v[{QB}:{QB+3}], 0")
    k.e("s_nop 9")
    for x in range(2):
        k.e(f"v_max3_f32 v{10+x}, v{S[x]}, v{S[x]+1}, v{S[x]+2}")
        for i in range(3, 15, 2): k.e(f"v_max3_f32 v{10+x}, v{S[x]+i}, v{S[x]+i+1}, v{10+x}")
        k.e(f"v_max_f32 v{10+x}, v{S[x]+15}, v{10+x}")
    k.e("s_nop 4")
    for x in range(2):
        for i in range(0, 16, 2): k.e(f"v_max3_f32 v{10+x}, v{C[x]+i}, v{C[x]+i+1}, v{10+x}")
    k.e("v_mov_b32 v12, v10", "v_mov_b32 v13, v11", "s_nop 1", "v_permlane32_swap_b32 v10, v12", "v_permlane32_swap_b32 v11, v13", "s_nop 1",
        "v_max_f32 v10, v10, v12", "v_max_f32 v11, v11, v13")
    k.e(f"v_sub_f32 v10, 0x{f2u(-bias):08x}, v10", f"v_sub_f32 v11, 0x{f2u(-bias):08x}, v11")
    for i in range(16): k.e(f"v_mov_b32 v{CA+i}, v10", f"v_mov_b32 v{CB+i}, v11")
    k.e("s_nop 1")
    k.e(f"{MF} v[{SA}:{SA+15}], v[{KB_[0]}:{KB_[0]+3}], v[{QA}:{QA+3}], v[{CA}:{CA+15}]")
    k.e("s_nop 11")

    def valu_seq(x):
        s, p = S[x], P[x]
        out = []
        for i in range(8):
            out.append(f"v_exp_f32 v{s+2*i}, v{s+2*i}"); out.append(f"v_exp_f32 v{s+2*i+1}, v{s+2*i+1}")
            if i >= 1: out.append(f"v_cvt_pk_bf16_f32 v{p+i-1}, v{s+2*i-2}, v{s+2*i-1}")
        out.append(f"v_cvt_pk_bf16_f32 v{p+7}, v{s+14}, v{s+15}")
        return out
    def phase(mf3, x, slots):
        va = valu_seq(x)
        def put(j):
            if mf3[j]: k.e(mf3[j])
            for t in slots[j]: k.e(t)
        put(0)
        for i, t in enumerate(va):
            k.e(t)
            if i == 5: put(1)
            if i == 13: put(2)
    def pvs(x, vb):
        return [f"{MF} v[{O[x]}:{O[x]+15}], v[{vb}:{vb+3}], v[{P[x]}:{P[x]+3}], v[{O[x]}:{O[x]+15}]",
                f"{MF} v[{O[x]}:{O[x]+15}], v[{vb+4}:{vb+7}], v[{P[x]+4}:{P[x]+7}], v[{O[x]}:{O[x]+15}]"]
    def koff(c4, kk):
        n = c4*4 + kk
        return ((n // 4) % 4)*SLOT + (n % 4)*3072
    def block(c4, kk, kblk_left, sync, do_dma, extra=()):
        par = kk & 1
        vo = koff(c4, kk) + 1024
        sA = [[f"ds_read_b128 v[{VB_[par]}:{VB_[par]+3}], v2 offset:{vo}"],
              [f"ds_read_b128 v[{VB_[par]+4}:{VB_[par]+7}], v2 offset:{vo+1024}"],
              ["s_waitcnt lgkmcnt(1)"]]
        if sync is not None: sA[2] = [f"s_waitcnt vmcnt({sync}) lgkmcnt(1)", "s_barrier"]
        sA[1] = sA[1] + list(extra)
        pv = pvs(1, VB_[par ^ 1])
        phase([f"{MF} v[{SB}:{SB+15}], v[{KB_[par]}:{KB_[par]+3}], v[{QB}:{QB+3}], v[{CB}:{CB+15}]", pv[0], pv[1]], 0, sA)
        fm = None if kblk_left < 1 else f"{MF} v[{SA}:{SA+15}], v[{KB_[par^1]}:{KB_[par^1]+3}], v[{QA}:{QA+3}], v[{CA}:{CA+15}]"
        sB = [[], [], []]
        if kblk_left >= 2:
            sB[0] = [f"ds_read_b128 v[{KB_[par]}:{KB_[par]+3}], v2 offset:{koff(c4, kk + 2)}"]
            sB[1] = ["s_waitcnt lgkmcnt(1)"]
        else:
            sB[0] = ["s_waitcnt lgkmcnt(0)"]
        if do_dma:
            it = [t for _, t in chunk_dma_items((c4 + 3) % 4)]
            sB[1] = sB[1] + it[0:3]
            sB[2] = it[3:]
        pv = pvs(0, VB_[par])
        phase([fm, pv[0], pv[1]], 1, sB)
    k.vm = []; k.lg = []
    k.stamp(1)
    k.e("s_mov_b32 s36, 3")
    L = f"L_{tag}_loop"
    k.label(L)
    for c4 in range(4):
        for kk in range(4):
            block(c4, kk, 99, 3 if kk == 2 else None, kk == 2)
    k.e("s_sub_u32 s36, s36, 1", "s_cmp_lg_u32 s36, 0", f"s_cbranch_scc1 {L}")
    for c4 in range(4):
        for kk in range(4):
            sync = None; dm = False
            if kk == 2:
                if c4 == 0: sync, dm = 3, True
                elif c4 == 1: sync = 3
                elif c4 == 2: sync = 0
            left = (3 - c4)*4 + (3 - kk)
            ex = ()
            if prehint and left + 1 == prehint:
                assert c4 >= 2
                ex = ("s_mov_b64 exec, 1", f"buffer_store_dwordx2 v[26:27], v24, s[{SWS}:{SWS+3}], 0 offen sc1", "s_mov_b64 exec, -1")
            block(c4, kk, left, sync, dm, ex)
    k.vm = []
    k.stamp(2)
    k.e("s_nop 1")
    for t in pvs(1, VB_[1]): k.e(t)
    k.e("s_nop 11")
    for x in range(2):
        k.e(f"v_add_f32 v{10+x}, v{O[x]}, v{O[x]+8}")
        for i in range(1, 8): k.e(f"v_add_f32 v{10+x}, v{10+x}, v{O[x]+i}")
    k.e("v_add_f32 v10, v10, v11", "s_movk_i32 s33, 0x207", "v_cmp_class_f32 vcc, v10, s33")
    if force_fb: k.e("s_mov_b64 vcc, -1")
    k.e("s_nop 4", f"s_cbranch_vccnz L_{tag}_fb")
    k.label(f"L_{tag}_fin")
    for x in range(2): k.e(f"v_rcp_f32 v{10+x}, v{O[x]+8}")
    k.e("s_nop 0")
    k.e("s_lshl_b32 s36, s26, 3", "s_lshl_b32 s37, s24, 1", "s_add_u32 s36, s36, s37", "s_lshl_b32 s36, s36, 5", "s_add_u32 s36, s36, s25",
        "s_lshl_b32 s36, s36, 10", f"s_add_u32 s36, s36, 0x{WS_OF:x}")
    for x in range(2):
        if EPK2:
            for i in range(0, 8, 2): k.e(f"v_pk_mul_f32 v[{O[x]+i}:{O[x]+i+1}], v[{O[x]+i}:{O[x]+i+1}], v[10:11] op_sel:[0,{x}] op_sel_hi:[1,{x}]")
        else:
            for i in range(8): k.e(f"v_mul_f32 v{O[x]+i}, v{O[x]+i}, v{10+x}")
        for i in range(4): k.e(f"v_cvt_pk_bf16_f32 v{P[x]+i}, v{O[x]+2*i}, v{O[x]+2*i+1}")
        k.vmem(f"buffer_store_dwordx4 v[{P[x]}:{P[x]+3}], v2, s[{SWS}:{SWS+3}], s36 offen {sc1 if st_sc1 is None else st_sc1}", "st")
        if x == 0: k.e("s_add_u32 s36, s36, 32768")
    if oflag == "ep":
        k.e("s_lshl_b32 s36, s26, 2", "s_add_u32 s36, s36, s24", "s_lshl_b32 s36, s36, 8", "s_lshl_b32 s37, s25, 3", "s_add_u32 s36, s36, s37",
            f"s_add_u32 s36, s36, 0x{FLG_O8:x}", "v_mov_b32 v12, s36", f"v_mov_b32 v14, s{SEP}", f"v_mov_b32 v15, s{SEP+1}", "s_mov_b64 exec, 1")
        k.vmem(f"buffer_store_dwordx2 v[14:15], v12, s[{SWS}:{SWS+3}], 0 offen sc1", "st")
        k.e("s_mov_b64 exec, -1")
    elif oflag:
        k.e("s_lshl_b32 s36, s26, 2", "s_add_u32 s36, s36, s24", "s_lshl_b32 s36, s36, 7", "s_lshl_b32 s37, s25, 2", "s_add_u32 s36, s36, s37",
            f"s_add_u32 s36, s36, 0x{FLG_O:x}", "v_mov_b32 v12, s36", "v_mov_b32 v13, 1", "s_mov_b64 exec, 1")
        k.vmem(f"buffer_store_dword v13, v12, s[{SWS}:{SWS+3}], 0 offen sc1", "st")
        k.e("s_mov_b64 exec, -1")
    k.fb_code = lambda: e2_fallback(k, SWS, sc1, tag, S, O, C, P, Q, KB_, VB_)

def e2_fallback(k, SWS, sc1, tag, S, O, C, P, Q, KB_, VB_):
    k.label(f"L_{tag}_fb")
    KR = KB_[0]; VR = VB_[0]
    k.e("s_lshl_b32 s33, s25, 16", f"s_add_u32 s30, s33, 0x{WS_KF:x}", f"s_add_u32 s31, s33, 0x{WS_VF:x}")
    k.e("v_mov_b32 v10, 0xff800000", "v_mov_b32 v11, 0xff800000", "s_mov_b32 s36, 64", "s_mov_b32 s33, s30")
    k.label(f"L_{tag}_fb1")
    k.e(f"buffer_load_dwordx4 v[{KR}:{KR+3}], v2, s[{SWS}:{SWS+3}], s33 offen {sc1}", "s_waitcnt vmcnt(0)")
    for x in range(2): k.e(f"{MF} v[{S[x]}:{S[x]+15}], v[{KR}:{KR+3}], v[{Q[x]}:{Q[x]+3}], 0")
    k.e("s_nop 11")
    for x in range(2):
        for i in range(0, 16, 2): k.e(f"v_max3_f32 v{10+x}, v{S[x]+i}, v{S[x]+i+1}, v{10+x}")
    k.e("s_add_u32 s33, s33, 1024", "s_sub_u32 s36, s36, 1", "s_cmp_lg_u32 s36, 0", f"s_cbranch_scc1 L_{tag}_fb1")
    k.e("v_mov_b32 v12, v10", "v_mov_b32 v13, v11", "s_nop 1", "v_permlane32_swap_b32 v10, v12", "v_permlane32_swap_b32 v11, v13", "s_nop 1",
        "v_max_f32 v10, v10, v12", "v_max_f32 v11, v11, v13", "v_sub_f32 v10, 0, v10", "v_sub_f32 v11, 0, v11")
    for i in range(16):
        k.e(f"v_mov_b32 v{C[0]+i}, v10", f"v_mov_b32 v{C[1]+i}, v11", f"v_mov_b32 v{O[0]+i}, 0", f"v_mov_b32 v{O[1]+i}, 0")
    for i in range(8): k.e(f"v_mov_b32 v{VR+i}, 0x3f803f80")
    k.e("s_mov_b32 s36, 64")
    k.label(f"L_{tag}_fb2")
    k.e(f"buffer_load_dwordx4 v[{KR}:{KR+3}], v2, s[{SWS}:{SWS+3}], s30 offen {sc1}", "s_mov_b64 exec, s[28:29]",
        f"buffer_load_dwordx4 v[{VR}:{VR+3}], v3, s[{SWS}:{SWS+3}], s31 offen {sc1}",
        f"buffer_load_dwordx4 v[{VR+4}:{VR+7}], v3, s[{SWS}:{SWS+3}], s31 offen offset:512 {sc1}",
        "s_mov_b64 exec, -1", "s_waitcnt vmcnt(0)")
    for x in range(2): k.e(f"{MF} v[{S[x]}:{S[x]+15}], v[{KR}:{KR+3}], v[{Q[x]}:{Q[x]+3}], v[{C[x]}:{C[x]+15}]")
    k.e("s_nop 11")
    for x in range(2):
        for i in range(16): k.e(f"v_exp_f32 v{S[x]+i}, v{S[x]+i}")
        k.e("s_nop 0")
        for i in range(8): k.e(f"v_cvt_pk_bf16_f32 v{P[x]+i}, v{S[x]+2*i}, v{S[x]+2*i+1}")
    k.e("s_nop 1")
    for x in range(2):
        k.e(f"{MF} v[{O[x]}:{O[x]+15}], v[{VR}:{VR+3}], v[{P[x]}:{P[x]+3}], v[{O[x]}:{O[x]+15}]",
            f"{MF} v[{O[x]}:{O[x]+15}], v[{VR+4}:{VR+7}], v[{P[x]+4}:{P[x]+7}], v[{O[x]}:{O[x]+15}]")
    k.e("s_add_u32 s30, s30, 1024", "s_add_u32 s31, s31, 1024", "s_sub_u32 s36, s36, 1", "s_cmp_lg_u32 s36, 0", f"s_cbranch_scc1 L_{tag}_fb2")
    k.e("s_nop 11", f"s_branch L_{tag}_fin")

def k2_kernel(**kw):
    k = KV("k2_attn_kernel", nvgpr=256)
    k.e("s_cmp_ge_u32 s2, 256", f"s_cbranch_scc1 L_end_{k.name}")
    fx = srd(k, 20, 72, WS_SIZE)
    k.e("s_waitcnt lgkmcnt(0)"); k.e(*fx)
    k.e("s_and_b32 s3, s2, 7", "s_lshr_b32 s4, s2, 3", "s_and_b32 s5, s4, 3", "s_lshl_b32 s25, s3, 2", "s_add_u32 s25, s25, s5", "s_lshr_b32 s26, s4, 2")
    k.stamp(0)
    e2_body(k, **kw)
    k.wait_vm_all()
    k.stamp(3); k.stamp_out(4, 0x20000); k.wait_vm_all()
    k.label(f"L_end_{k.name}")
    k.e("s_endpgm")
    k.fb_code()
    return k

def e4_body(k, SD=12, SO=16, SWS=20, SX=8, SOUT=4, sc1="", tag="e4"):
    DEPTH = 8
    ACC = 64
    HR = 128
    WR = 16
    k.e("v_and_b32 v1, 63, v0", "v_lshrrev_b32 v10, 6, v0", "s_nop 0", "v_readfirstlane_b32 s24, v10")
    k.e("v_lshlrev_b32 v2, 4, v1")
    k.e("v_lshrrev_b32 v3, 3, v1", "v_lshlrev_b32 v3, 10, v3", "v_bfe_u32 v4, v1, 4, 1", "v_lshlrev_b32 v4, 2, v4", "v_and_b32 v5, 7, v1",
        "v_xor_b32 v4, v4, v5", "v_lshl_add_u32 v3, v4, 4, v3", "s_lshl_b32 s27, s26, 7", "v_add_u32 v3, s27, v3")
    k.e("v_lshrrev_b32 v4, 5, v1", "v_bfe_u32 v5, v1, 2, 2", "v_lshl_add_u32 v4, v4, 2, v5", "v_lshlrev_b32 v6, 7, v4",
        "v_bfe_u32 v4, v1, 4, 1", "v_lshlrev_b32 v4, 1, v4", "v_bfe_u32 v5, v1, 1, 1", "v_add_u32 v4, v4, v5",
        "v_bfe_u32 v5, v1, 3, 1", "v_lshlrev_b32 v5, 2, v5", "v_xor_b32 v4, v4, v5", "v_lshl_add_u32 v6, v4, 4, v6",
        "v_and_b32 v5, 1, v1", "v_lshl_add_u32 v6, v5, 3, v6", "s_lshl_b32 s28, s24, 14", "v_add_u32 v6, s28, v6", "v_xor_b32 v7, 64, v6")
    k.e("s_mul_i32 s29, s24, 458752",
        "s_mul_i32 s30, s25, 224", "s_mul_i32 s31, s24, 28", "s_add_u32 s30, s30, s31", "s_lshl_b32 s30, s30, 10", f"s_add_u32 s30, s30, 0x{WS_HF:x}",
        "s_lshl_b32 s34, s24, 17",
        "s_lshl_b32 s35, s25, 6", "s_lshl_b32 s31, s24, 3", "s_add_u32 s35, s35, s31", "s_lshl_b32 s35, s35, 10", f"s_add_u32 s35, s35, 0x{WS_OF:x}")
    NS = 36
    def issue(s):
        slot = s % DEPTH
        if s < 28: sr, sb, kk, hb, hstride = SD, 29, s, 30, 112*1024
        else: sr, sb, kk, hb, hstride = SO, 34, s - 28, 35, 32*1024
        for i in range(2):
            k.e(f"s_add_u32 m0, s28, {slot*2048 + i*1024}", f"s_add_u32 s33, s{sb}, {kk*16384 + i*8192}")
            k.vmem(f"buffer_load_dwordx4 v3, s[{sr}:{sr+3}], s33 offen lds", ("W", s))
        for tb in range(2):
            d = HR + slot*8 + 4*tb
            k.e(f"s_add_u32 s33, s{hb}, {kk*1024 + tb*hstride}")
            k.vmem(f"buffer_load_dwordx4 v[{d}:{d+3}], v2, s[{SWS}:{SWS+3}], s33 offen {sc1}", ("H", s))
    def reads(s):
        b = WR + 8*(s & 1); o = (s % DEPTH)*2048
        for cb2 in range(2):
            av = 6 + cb2
            k.ds(f"ds_read_b64_tr_b16 v[{b+4*cb2}:{b+4*cb2+1}], v{av} offset:{o}", ("r", s))
            k.ds(f"ds_read_b64_tr_b16 v[{b+4*cb2+2}:{b+4*cb2+3}], v{av} offset:{o+1024}", ("r", s))
    for s in range(DEPTH): issue(s)
    k.e("v_lshrrev_b32 v8, 3, v0", "s_lshl_b32 s31, s25, 6", "v_add_u32 v8, s31, v8", "v_lshlrev_b32 v8, 10, v8",
        "v_and_b32 v9, 7, v0", "v_lshl_add_u32 v8, v9, 4, v8", "v_add_u32 v8, s27, v8")
    k.vmem(f"buffer_load_dwordx4 v[32:35], v8, s[{SX}:{SX+3}], 0 offen", "x")
    k.e("s_mov_b32 s31, 32768")
    k.vmem(f"buffer_load_dwordx4 v[36:39], v8, s[{SX}:{SX+3}], s31 offen", "x")
    for i in range(64): k.e(f"v_mov_b32 v{ACC+i}, 0")
    k.stamp(1)
    k.wait_vm(("W", 0)); reads(0)
    for s in range(NS):
        if s + 1 < NS:
            k.wait_vm(("W", s + 1)); reads(s + 1)
        k.wait_vm(("H", s)); k.wait_lg(("r", s))
        b = WR + 8*(s & 1); h = HR + (s % DEPTH)*8
        for cb2 in range(2):
            for tb in range(2):
                a = ACC + 16*(cb2*2 + tb)
                k.e(f"{MF} v[{a}:{a+15}], v[{b+4*cb2}:{b+4*cb2+3}], v[{h+4*tb}:{h+4*tb+3}], v[{a}:{a+15}]")
        if s + DEPTH < NS: issue(s + DEPTH)
    k.stamp(2)
    k.e("s_nop 7", "s_barrier")
    RS = 272
    k.e("v_and_b32 v4, 31, v1", f"v_mul_u32_u24 v4, {RS}, v4", "v_lshrrev_b32 v5, 5, v1", "v_lshl_add_u32 v4, v5, 4, v4",
        f"s_mul_i32 s31, s24, {64*RS}", "v_add_u32 v4, s31, v4", "s_nop 3")
    for cb2 in range(2):
        for tb in range(2):
            a = ACC + 16*(cb2*2 + tb)
            for g in range(4):
                k.ds(f"ds_write_b128 v4, v[{a+4*g}:{a+4*g+3}] offset:{tb*32*RS + cb2*128 + g*32}")
    k.wait_lg_all()
    k.e("s_barrier")
    k.e("v_lshrrev_b32 v4, 3, v0", f"v_mul_u32_u24 v4, {RS}, v4", "v_and_b32 v5, 7, v0", "v_lshl_add_u32 v4, v5, 5, v4")
    for half in range(2):
        for w in range(4):
            d = 64 + half*32 + w*8
            for j in range(2):
                k.ds(f"ds_read_b128 v[{d+4*j}:{d+4*j+3}], v4 offset:{w*64*RS + half*32*RS + j*16}", ("rd", half))
    k.wait_vm("x")
    for half in range(2):
        k.wait_lg(("rd", half))
        d = 64 + half*32
        for i in range(8):
            k.e(f"v_add_f32 v{d+i}, v{d+i}, v{d+8+i}", f"v_add_f32 v{d+16+i}, v{d+16+i}, v{d+24+i}")
        for i in range(4):
            xr = 32 + 4*half + i
            k.e(f"v_lshlrev_b32 v{d+8+2*i}, 16, v{xr}", f"v_and_b32 v{d+9+2*i}, 0xffff0000, v{xr}")
        for i in range(8): k.e(f"v_add_f32 v{d+i}, v{d+i}, v{d+16+i}")
        for i in range(8): k.e(f"v_add_f32 v{d+i}, v{d+i}, v{d+8+i}")
        for i in range(4): k.e(f"v_cvt_pk_bf16_f32 v{40+4*half+i}, v{d+2*i}, v{d+2*i+1}")
        if half == 0: k.vmem(f"buffer_store_dwordx4 v[40:43], v8, s[{SOUT}:{SOUT+3}], 0 offen", "st")
        else: k.vmem(f"buffer_store_dwordx4 v[44:47], v8, s[{SOUT}:{SOUT+3}], s31 offen", "st") if False else None
    k.e("s_mov_b32 s31, 32768")
    k.vmem(f"buffer_store_dwordx4 v[44:47], v8, s[{SOUT}:{SOUT+3}], s31 offen", "st")

def k3_kernel():
    k = KV("k3_out_kernel", nvgpr=256)
    k.e("s_cmp_ge_u32 s2, 256", f"s_cbranch_scc1 L_end_{k.name}")
    fx = srd(k, 8, 0, SZ_X) + srd(k, 20, 72, WS_SIZE) + srd(k, 12, 48, SZ_WD) + srd(k, 16, 16, SZ_WO) + srd(k, 4, 56, SZ_X)
    k.e("s_waitcnt lgkmcnt(0)"); k.e(*fx)
    k.e("s_and_b32 s3, s2, 7", "s_lshr_b32 s27, s2, 3", "s_and_b32 s28, s27, 3", "s_lshl_b32 s25, s3, 2", "s_add_u32 s25, s25, s28", "s_lshr_b32 s26, s27, 2")
    k.stamp(0)
    e4_body(k)
    k.wait_vm_all()
    k.stamp(3); k.stamp_out(4, 0x40000); k.wait_vm_all()
    k.label(f"L_end_{k.name}")
    k.e("s_endpgm")
    return k

def stats_role(k, sc1="sc1"):
    k.e("s_cmp_ge_u32 s3, 128", "s_cbranch_scc1 L_st_col")
    row_job(k, 3, 8, 20, sc1=sc1, pre_store=lambda: epoch_issue(k, 74))
    k.wait_vm_all()
    epoch_check(k, 74)
    k.e("s_lshl_b32 s48, s3, 3", f"s_add_u32 s48, s48, 0x{FLG_ROW:x}")
    publish(k, 48)
    k.e("s_branch L_st_done")
    k.label("L_st_col")
    k.vm = []; k.lg = []
    k.e("s_sub_u32 s3, s3, 128")
    k.label("L_st_col2")
    k.e("s_mov_b32 s12, s28", "s_mov_b32 s13, s29", f"s_mov_b32 s14, {SZ_WQKV}", "s_mov_b32 s15, 0x00020000",
        "s_movk_i32 s16, 3072", "s_lshl_b32 s17, s3, 6",
        "s_bfe_u32 s48, s3, 0x30001", "s_lshl_b32 s48, s48, 7", "s_lshr_b32 s49, s3, 4", "s_lshl_b32 s49, s49, 4", "s_add_u32 s48, s48, s49",
        "s_and_b32 s49, s3, 1", "s_lshl_b32 s49, s49, 3", "s_add_u32 s48, s48, s49", f"s_add_u32 s48, s48, 0x{FLG_COLQ:x}",
        "s_cmp_lt_u32 s3, 48", "s_cbranch_scc1 L_st_go",
        "s_mov_b32 s12, s30", "s_mov_b32 s13, s31", f"s_mov_b32 s14, {SZ_WG}", "s_movk_i32 s16, 3584",
        "s_sub_u32 s50, s3, 48", "s_lshl_b32 s17, s50, 6", f"s_mov_b32 s51, 0x{FLG_COLG:x}",
        "s_cmp_lt_u32 s3, 104", "s_cbranch_scc1 L_st_gu",
        "s_mov_b32 s12, s32", "s_mov_b32 s13, s33", "s_sub_u32 s50, s3, 104", "s_lshl_b32 s17, s50, 6", f"s_mov_b32 s51, 0x{FLG_COLG + 32:x}")
    k.label("L_st_gu")
    k.e("s_lshr_b32 s48, s50, 2", "s_lshl_b32 s48, s48, 7", "s_and_b32 s49, s50, 3", "s_lshl_b32 s49, s49, 3", "s_add_u32 s48, s48, s49", "s_add_u32 s48, s48, s51")
    k.label("L_st_go")
    col_job(k, 3, 12, 16, 17, 20, sc1=sc1, pre_store=lambda: epoch_issue(k, 60))
    k.wait_vm_all()
    epoch_check(k, 60)
    publish(k, 48)
    k.e("s_cmp_lt_u32 s3, 96", "s_cbranch_scc1 L_st_done", "s_cmp_ge_u32 s3, 128", "s_cbranch_scc1 L_st_done",
        "s_add_u32 s3, s3, 32", "s_branch L_st_col2")
    k.label("L_st_done")

def kA_kernel(ue=4, up=7, uc=10, name="ka_qkv_kernel"):
    k = KV(name, nvgpr=256)
    k.e("s_cmp_ge_u32 s2, 512", f"s_cbranch_scc1 L_end_{k.name}")
    fx = srd(k, 8, 0, SZ_X) + srd(k, 20, 72, WS_SIZE)
    load_dbg(k)
    wave_id(k)
    k.e("s_cmp_ge_u32 s2, 256", "s_cbranch_scc1 L_ka_g")
    fx1 = srd(k, 12, 8, SZ_WQKV)
    k.e("s_waitcnt lgkmcnt(0)"); k.e(*(fx + fx1))
    epoch_make(k)
    k.e("s_and_b32 s26, s2, 7", "s_lshr_b32 s25, s2, 3")
    k.stamp(0)
    e1_body(k, stats_sync=(ue, up, uc))
    k.wait_vm_all()
    k.stamp(3); k.stamp_out(4, 0); k.wait_vm_all()
    k.e("s_endpgm")
    k.label("L_ka_g")
    k.vm = []; k.lg = []
    k.e("s_load_dwordx2 s[28:29], s[0:1], 8", "s_load_dwordx2 s[30:31], s[0:1], 32", "s_load_dwordx2 s[32:33], s[0:1], 40")
    k.e("s_waitcnt lgkmcnt(0)"); k.e(*fx)
    k.e("s_sub_u32 s3, s2, 256")
    k.stamp(0); k.stamp(1); k.stamp(2)
    stats_role(k)
    k.wait_vm_all()
    k.stamp(3); k.stamp_out(4, 0); k.wait_vm_all()
    k.label(f"L_end_{k.name}")
    k.e("s_endpgm")
    k.emit_tails()
    return k

def prefetch_role(k, jobs, s_idx, nwg):
    for (sr, nb) in jobs:
        per = nb // nwg
        assert per % 4096 == 0 or per % 1024 == 0
        k.e(f"s_mul_i32 s40, s{s_idx}, {per}", "v_lshlrev_b32 v1, 4, v0", "v_add_u32 v1, s40, v1")
        n = per // 4096
        rem = per % 4096
        k.e("s_mov_b32 s41, 0")
        for i in range(n):
            k.vmem(f"buffer_load_dwordx4 v[{4+4*(i%32)}:{7+4*(i%32)}], v1, s[{sr}:{sr+3}], s41 offen", "pf")
            k.e("s_add_u32 s41, s41, 4096")
        if rem:
            k.e(f"v_cmp_gt_u32 vcc, {rem//16}, v0" if rem//16 <= 64 else f"s_movk_i32 s42, {rem//16}\n v_cmp_gt_u32 vcc, s42, v0", "s_and_saveexec_b64 s[44:45], vcc")
            k.vmem(f"buffer_load_dwordx4 v[{4+4*(n%32)}:{7+4*(n%32)}], v1, s[{sr}:{sr+3}], s41 offen", "pf")
            k.e("s_mov_b64 exec, s[44:45]")
    k.wait_vm_all()

def kB_kernel(name="kb_attn_glu_kernel", prio_a=None, prio_g=None, **kw):
    k = KV(name, nvgpr=256)
    k.e("s_cmp_ge_u32 s2, 512", f"s_cbranch_scc1 L_end_{k.name}")
    fx = srd(k, 20, 72, WS_SIZE)
    k.e("s_cmp_ge_u32 s2, 256", "s_cbranch_scc1 L_kb_g")
    k.e("s_waitcnt lgkmcnt(0)"); k.e(*fx)
    if prio_a is not None: k.e(f"s_setprio {prio_a}")
    k.e("s_and_b32 s3, s2, 7", "s_lshr_b32 s4, s2, 3", "s_and_b32 s5, s4, 3", "s_lshl_b32 s25, s3, 2", "s_add_u32 s25, s25, s5", "s_lshr_b32 s26, s4, 2")
    k.stamp(0)
    e2_body(k, **kw)
    k.wait_vm_all()
    k.stamp(3); k.stamp_out(4, 0x20000); k.wait_vm_all()
    k.e("s_endpgm")
    fb = k.fb_code
    k.label("L_kb_g")
    k.vm = []; k.lg = []
    k.e("s_cmp_ge_u32 s2, 480", "s_cbranch_scc1 L_kb_pf")
    fx3 = srd(k, 8, 0, SZ_X) + srd(k, 12, 32, SZ_WG) + srd(k, 16, 40, SZ_WG)
    k.e("s_waitcnt lgkmcnt(0)"); k.e(*(fx + fx3))
    if prio_g is not None: k.e(f"s_setprio {prio_g}")
    k.e("s_sub_u32 s3, s2, 256", "s_and_b32 s4, s3, 7", "s_lshr_b32 s5, s3, 3", "s_mul_i32 s4, s4, 28", "s_add_u32 s4, s4, s5",
        "s_lshr_b32 s26, s4, 4", "s_and_b32 s25, s4, 15")
    k.stamp(0)
    e3_body(k)
    k.wait_vm_all()
    k.stamp(3); k.stamp_out(4, 0x20000); k.wait_vm_all()
    k.e("s_endpgm")
    k.label("L_kb_pf")
    k.vm = []; k.lg = []
    fxp = srd(k, 12, 48, SZ_WD) + srd(k, 16, 16, SZ_WO)
    k.e("s_waitcnt lgkmcnt(0)"); k.e(*fxp)
    k.e("s_sub_u32 s3, s2, 480")
    prefetch_role(k, [(12, SZ_WD), (16, SZ_WO)], 3, 32)
    k.label(f"L_end_{k.name}")
    k.e("s_endpgm")
    fb()
    k.emit_tails()
    return k

WS_XN = 0x1100000
WS_SIZE2 = 0x1300000
def e1n_body(k, SX=8, SW=12, SWS=20, sc1="", NS=7, fine=False, prep=False, l2warm=0, wtouch=None):
    WB = 65536
    assert WB + NS*12288 <= 163840
    k.e("v_and_b32 v1, 63, v0", "v_lshrrev_b32 v10, 6, v0", "s_nop 0", "v_readfirstlane_b32 s24, v10")
    XR = 128
    k.e("v_lshrrev_b32 v13, 3, v1", "v_and_b32 v15, 7, v1", "v_lshlrev_b32 v7, 4, v15", "v_lshl_add_u32 v7, v13, 10, v7",
        "s_lshl_b32 s29, s25, 16", "s_lshl_b32 s30, s24, 14", "s_add_u32 s29, s29, s30", "s_add_u32 s30, s29, 8192")
    for g in range(2):
        for j in range(8):
            d = XR + 32*g + 4*j
            k.vmem(f"buffer_load_dwordx4 v[{d}:{d+3}], v7, s[{SX}:{SX+3}], s{29+g} offen offset:{128*j}", ("x", g))
    k.e("v_and_b32 v11, 31, v1", "v_lshrrev_b32 v12, 5, v1", "v_lshrrev_b32 v14, 4, v1")
    k.e("s_and_b32 s27, s24, 1", "s_lshr_b32 s28, s24, 1")
    k.e("v_and_b32 v14, 1, v14", "v_lshlrev_b32 v14, 2, v14", "v_xor_b32 v9, v15, v14", "v_lshlrev_b32 v9, 4, v9",
        "s_lshl_b32 s31, s24, 3", "v_add_u32 v16, s31, v13", "v_mul_u32_u24 v16, 3072, v16", "v_add_u32 v9, v9, v16",
        "s_lshl_b32 s31, s26, 7", "v_add_u32 v9, s31, v9")
    k.e("s_lshl_b32 s32, s24, 10", f"s_add_u32 s32, s32, {WB}")
    def wd(u):
        return [dma(SW, 9, 32, (u % NS)*12288 + p*4096, 33, u*32*3072, ("W", u), imm=1024*p) for p in range(3)]
    for u in range(NS - 1): emit_groups(k, wd(u))
    if l2warm:
        nrow = (16 - (NS - 1))*32
        per = nrow // 16
        k.e("s_and_b32 s34, s25, 3", "s_lshl_b32 s34, s34, 2", "s_add_u32 s34, s34, s24", f"s_mul_i32 s34, s34, {per*3072}",
            f"s_add_u32 s34, s34, {(NS-1)*32*3072}", f"s_mul_i32 s35, s24, {8*3072}", "s_sub_u32 s34, s34, s35",
            "s_lshl_b32 s35, s24, 10", f"s_add_u32 m0, s35, {WB + NS*12288}")
        for r0 in range(0, per, 8):
            part = r0 + 8 > per
            assert (not part) or per % 8 == 4
            if part: k.e("s_mov_b64 exec, 0xffffffff")
            for p in range(3):
                k.e(f"s_add_u32 s35, s34, {r0*3072 + 1024*p}")
                k.vmem(f"buffer_load_dwordx4 v9, s[{SW}:{SW+3}], s35 offen lds", "warm")
            if part: k.e("s_mov_b64 exec, -1")
    if prep:
        k.e("v_mov_b32 v40, -1", "v_mov_b32 v41, -1", "v_mov_b32 v42, -1", "v_mov_b32 v43, -1", "v_lshlrev_b32 v48, 4, v0",
            "s_lshl_b32 s34, s2, 13", f"s_add_u32 s34, s34, 0x{WS_OF:x}")
        k.vmem(f"buffer_store_dwordx4 v[40:43], v48, s[{SWS}:{SWS+3}], s34 offen", "prep")
        k.e("s_add_u32 s34, s34, 4096")
        k.vmem(f"buffer_store_dwordx4 v[40:43], v48, s[{SWS}:{SWS+3}], s34 offen", "prep")
        Lp = k.newlabel("prep")
        k.e("v_mov_b32 v44, 0", "v_mov_b32 v45, 0", "v_mov_b32 v46, 0", "v_mov_b32 v47, 0", f"s_mov_b32 s34, 0x{FLG_H:x}",
            "s_lshl_b32 s35, s2, 12", "s_add_u32 s34, s34, s35", "s_cmp_ge_u32 s2, 2", f"s_cbranch_scc1 {Lp}")
        k.vmem(f"buffer_store_dwordx4 v[44:47], v48, s[{SWS}:{SWS+3}], s34 offen", "prep", opt=True)
        k.label(Lp)
    k.e("v_lshrrev_b32 v16, 1, v13", "v_xor_b32 v16, v15, v16", "v_lshlrev_b32 v16, 4, v16", "v_lshl_add_u32 v16, v13, 7, v16",
        "s_lshl_b32 s31, s24, 11", "v_add_u32 v16, s31, v16", "v_xor_b32 v17, 64, v16", "v_add_u32 v17, 1024, v17")
    k.e("s_lshl_b32 s36, s27, 5", "v_add_u32 v18, s36, v11", "v_bfe_u32 v19, v18, 1, 3", "v_xor_b32 v19, v19, v12",
        "v_lshlrev_b32 v19, 4, v19", "v_lshl_add_u32 v2, v18, 7, v19",
        "v_xor_b32 v3, 32, v2", "v_xor_b32 v4, 64, v2", "v_xor_b32 v5, 96, v2")
    k.e("v_bfe_u32 v18, v1, 2, 2", "v_lshl_add_u32 v18, v12, 3, v18", "v_lshlrev_b32 v6, 7, v18",
        "v_bfe_u32 v18, v1, 4, 1", "v_lshlrev_b32 v18, 1, v18", "v_bfe_u32 v19, v1, 1, 1", "v_add_u32 v18, v18, v19",
        "s_lshl_b32 s36, s28, 2", "v_add_u32 v18, s36, v18", "v_bfe_u32 v19, v1, 3, 1", "v_lshlrev_b32 v19, 2, v19",
        "v_xor_b32 v18, v18, v19", "v_lshl_add_u32 v6, v18, 4, v6", "v_and_b32 v19, 1, v1", "v_lshl_add_u32 v6, v19, 3, v6",
        f"v_add_u32 v6, {WB}, v6", f"v_add_u32 v8, {5*12288}, v6")
    F = [64, 192]
    k.e("s_mov_b32 s42, 0x3f803f80", "s_mov_b32 s43, 0x00003f80", "s_mov_b32 s44, 0x3f800000")
    A = [20, 24]
    for g in range(2):
        k.wait_vm(("x", g))
        for i in range(32):
            c = f"v{A[g] + i % 4}" if i >= 4 else "0"
            k.e(f"v_dot2_f32_bf16 v{A[g] + i % 4}, v{XR + 32*g + i}, s42, {c}")
    if fine: k.stamp(1)
    k.e("s_nop 2")
    def red8(regs):
        for b in regs: k.e(f"v_add_f32 v{b}, v{b}, v{b+1}", f"v_add_f32 v{b+2}, v{b+2}, v{b+3}")
        for b in regs: k.e(f"v_add_f32 v{b}, v{b}, v{b+2}")
        k.e("s_nop 1")
        for mode in ("quad_perm:[1,0,3,2]", "quad_perm:[2,3,0,1]", "row_half_mirror"):
            for b in regs: k.e(f"v_add_f32_dpp v{b}, v{b}, v{b} {mode} row_mask:0xf bank_mask:0xf")
            k.e("s_nop 1")
    red8(A)
    for g in range(2): k.e(f"v_mul_f32 v{A[g]}, 0xbb000000, v{A[g]}")
    k.e("s_nop 0")
    for g in range(2):
        for i in range(32):
            k.e(f"v_dot2_f32_bf16 v{F[g] + 2*i}, v{XR + 32*g + i}, s43, v{A[g]}", f"v_dot2_f32_bf16 v{F[g] + 2*i + 1}, v{XR + 32*g + i}, s44, v{A[g]}")
    k.e("s_nop 2")
    B = [28, 32]
    for g in range(2):
        for i in range(32):
            a = B[g] + 2*(i % 2); d = F[g] + 2*i
            if i < 2: k.e(f"v_pk_mul_f32 v[{a}:{a+1}], v[{d}:{d+1}], v[{d}:{d+1}]")
            else: k.e(f"v_pk_fma_f32 v[{a}:{a+1}], v[{d}:{d+1}], v[{d}:{d+1}], v[{a}:{a+1}]")
    red8(B)
    k.e("v_mov_b32 v36, 0x3727c5ac", "v_mov_b32 v38, 0x3727c5ac")
    for g in range(2): k.e(f"v_fmac_f32 v{36+2*g}, 0x3b000000, v{B[g]}")
    for g in range(2): k.e(f"v_rsq_f32 v{36+2*g}, v{36+2*g}")
    k.e("s_nop 0")
    for g in range(2):
        for j in range(8):
            for i in range(4):
                d = F[g] + 2*(4*j + i)
                k.e(f"v_pk_mul_f32 v[{d}:{d+1}], v[{d}:{d+1}], v[{36+2*g}:{37+2*g}] op_sel_hi:[1,0]")
            for i in range(4):
                d = F[g] + 2*(4*j + i)
                k.e(f"v_cvt_pk_bf16_f32 v{XR + 32*g + 4*j + i}, v{d}, v{d+1}")
            k.ds(f"ds_write_b128 v{16+g}, v[{XR + 32*g + 4*j}:{XR + 32*g + 4*j + 3}] offset:{8192*j}")
    Ls = k.newlabel("xn"); L1 = k.newlabel("xn1")
    k.e("s_lshr_b32 s36, s26, 1", "s_cmp_lg_u32 s36, s24", f"s_cbranch_scc1 {Ls}",
        "s_lshl_b32 s36, s25, 16", "s_lshl_b32 s37, s26, 13", "s_add_u32 s36, s36, s37", f"s_add_u32 s36, s36, 0x{WS_XN:x}",
        "s_bitcmp1_b32 s26, 0", f"s_cbranch_scc1 {L1}")
    for g in range(2):
        if g == 1: k.label(L1)
        for j in range(8):
            d = XR + 32*g + 4*j
            k.vmem(f"buffer_store_dwordx4 v[{d}:{d+3}], v7, s[{SWS}:{SWS+3}], s36 offen offset:{128*j} {sc1}", "xn", opt=True)
        if g == 0: k.e(f"s_branch {Ls}")
    k.label(Ls)
    def fr(st): return 16 + 16*st + 24
    def reads(g, st):
        b = fr(st); u = g >> 1; v = g >> 2
        out = [(f"ds_read_b128 v[{b}:{b+3}], v{2 + (g & 3)} offset:{v*8192}", "X")]
        sl = u % NS
        av, so = (6, sl*12288) if sl < 5 else (8, (sl - 5)*12288)
        for p in range(3):
            o = so + p*4096 + (g & 1)*2048
            out.append((f"ds_read_b64_tr_b16 v[{b+4+4*p}:{b+5+4*p}], v{av} offset:{o}", f"W{p}"))
            out.append((f"ds_read_b64_tr_b16 v[{b+6+4*p}:{b+7+4*p}], v{av} offset:{o+512}", f"W{p}"))
        return out
    ACC = 80
    def mfmas(g, st):
        out = []
        b_x = fr(st); b_w = b_x + 4
        for p in range(3):
            a = ACC + 16*p
            w = f"v[{b_w+4*p}:{b_w+4*p+3}]"; x = f"v[{b_x}:{b_x+3}]"
            A_, B_ = (w, x) if p < 2 else (x, w)
            c = "0" if g == 0 else f"v[{a}:{a+15}]"
            out.append((f"{MF} v[{a}:{a+15}], {A_}, {B_}, {c}", ["X", f"W{p}"]))
        return out
    def dmas(u):
        return wd(u + NS - 1) if u + NS - 1 < 16 else []
    hooks = None
    if wtouch:
        def h_t():
            k.e("s_lshl_b32 s34, s2, 8", "v_add_u32 v72, s34, v0", "v_lshlrev_b32 v72, 7, v72", "s_lshl_b32 s35, s24, 10", f"s_add_u32 m0, s35, {WB + NS*12288}")
            start = 0
            for i, (sr, nb) in enumerate(wtouch):
                k.e(f"v_subrev_u32 v{73+i}, 0x{start:x}, v72")
                k.vmem(f"buffer_load_dword v{73+i}, s[{sr}:{sr+3}], 0 offen lds", "wt")
                start += nb
            assert start <= 65536*128
        hooks = {16 - NS: [h_t]}
    k.stamp(2 if fine else 1)
    gemm_loop(k, 16, mfmas, reads, dmas, lambda u: [("W", u)], hooks=hooks)
    if not fine: k.stamp(2)
    k.e("v_lshlrev_b32 v10, 4, v1",
        "s_lshl_b32 s36, s26, 2", "s_lshl_b32 s37, s28, 1", "s_add_u32 s36, s36, s37", "s_lshl_b32 s36, s36, 16",
        "s_lshl_b32 s37, s25, 1", "s_add_u32 s37, s37, s27", "s_lshl_b32 s37, s37, 10", "s_add_u32 s36, s36, s37")
    k.e("v_lshrrev_b32 v13, 4, v11", "v_lshlrev_b32 v13, 16, v13", "v_lshl_add_u32 v13, v12, 8, v13", "v_and_b32 v14, 15, v11",
        "v_lshl_add_u32 v13, v14, 4, v13", f"s_mov_b32 s38, 0x{f2u(0.25*LOG2E):08x}")
    k.e("s_nop 7")
    for p, base in enumerate((WS_QF, WS_KF)):
        a = ACC + 16*p
        if p == 0:
            for r in range(16): k.e(f"v_mul_f32 v{a+r}, s38, v{a+r}")
        for j in range(2):
            d = 16 + 8*p + 4*j
            for i in range(4): k.e(f"v_cvt_pk_bf16_f32 v{d+i}, v{a+8*j+2*i}, v{a+8*j+2*i+1}")
            k.e(f"s_add_u32 s37, s36, 0x{base + j*65536:x}")
            k.vmem(f"buffer_store_dwordx4 v[{d}:{d+3}], v10, s[{SWS}:{SWS+3}], s37 offen {sc1}", "st")
    a = ACC + 32
    k.e(f"s_add_u32 s37, s36, 0x{WS_VF:x}")
    for j in range(2):
        d = 32 + 4*j
        for i in range(4): k.e(f"v_cvt_pk_bf16_f32 v{d+i}, v{a+8*j+2*i}, v{a+8*j+2*i+1}")
        k.vmem(f"buffer_store_dwordx4 v[{d}:{d+3}], v13, s[{SWS}:{SWS+3}], s37 offen offset:{512*j} {sc1}", "st")

def kA2_kernel(name="ka_qkv_kernel", mapping=0, wtouch=False, **kw):
    k = KV(name, nvgpr=256)
    k.e("s_cmp_ge_u32 s2, 256", f"s_cbranch_scc1 L_end_{k.name}")
    fx = srd(k, 8, 0, SZ_X) + srd(k, 20, 72, WS_SIZE2) + srd(k, 12, 8, SZ_WQKV)
    if wtouch:
        fx += srd(k, 76, 32, SZ_WG) + srd(k, 80, 40, SZ_WG) + srd(k, 84, 48, SZ_WD) + srd(k, 88, 16, SZ_WO)
        kw["wtouch"] = [(76, SZ_WG), (80, SZ_WG), (84, SZ_WD), (88, SZ_WO)]
    k.e("s_waitcnt lgkmcnt(0)"); k.e(*fx)
    if mapping == 0:
        k.e("s_and_b32 s26, s2, 7", "s_lshr_b32 s25, s2, 3")
    elif mapping == 1:
        k.e("s_and_b32 s3, s2, 7", "s_lshr_b32 s4, s2, 3", "s_and_b32 s5, s4, 3", "s_lshl_b32 s25, s3, 2", "s_add_u32 s25, s25, s5", "s_lshr_b32 s26, s4, 2")
    elif mapping == 2:
        k.e("s_and_b32 s3, s2, 7", "s_lshr_b32 s4, s2, 3", "s_and_b32 s5, s3, 3", "s_lshl_b32 s26, s5, 1", "s_and_b32 s5, s4, 1", "s_add_u32 s26, s26, s5",
            "s_lshr_b32 s25, s3, 2", "s_lshl_b32 s25, s25, 4", "s_lshr_b32 s5, s4, 1", "s_add_u32 s25, s25, s5")
    elif mapping == 3:
        k.e("s_and_b32 s3, s2, 7", "s_lshr_b32 s4, s2, 3", "s_and_b32 s5, s3, 1", "s_lshl_b32 s26, s5, 2", "s_and_b32 s5, s4, 3", "s_add_u32 s26, s26, s5",
            "s_lshr_b32 s25, s3, 1", "s_lshl_b32 s25, s25, 3", "s_lshr_b32 s5, s4, 2", "s_add_u32 s25, s25, s5")
    k.stamp(0)
    e1n_body(k, **kw)
    k.wait_vm_all()
    k.stamp(3); k.stamp_out(4, 0); k.wait_vm_all()
    k.label(f"L_end_{k.name}")
    k.e("s_endpgm")
    return k


def kB2_kernel(name="kb_attn_glu_kernel", prio_a=None, prio_g=None, epi_prio=None, prefetch=True, **kw):
    k = KV(name, nvgpr=256)
    k.e("s_cmp_ge_u32 s2, 512", f"s_cbranch_scc1 L_end_{k.name}")
    fx = srd(k, 20, 72, WS_SIZE2)
    k.e("s_cmp_ge_u32 s2, 256", "s_cbranch_scc1 L_kb_g")
    k.e("s_waitcnt lgkmcnt(0)"); k.e(*fx)
    if prio_a is not None: k.e(f"s_setprio {prio_a}")
    k.e("s_and_b32 s3, s2, 7", "s_lshr_b32 s4, s2, 3", "s_and_b32 s5, s4, 3", "s_lshl_b32 s25, s3, 2", "s_add_u32 s25, s25, s5", "s_lshr_b32 s26, s4, 2")
    k.stamp(0)
    e2_body(k, **kw)
    k.wait_vm_all()
    k.stamp(3); k.stamp_out(4, 0x20000); k.wait_vm_all()
    k.e("s_endpgm")
    fb = k.fb_code
    k.label("L_kb_g")
    k.vm = []; k.lg = []
    k.e("s_cmp_ge_u32 s2, 480", "s_cbranch_scc1 L_kb_pf")
    fx3 = srd(k, 12, 32, SZ_WG) + srd(k, 16, 40, SZ_WG)
    k.e("s_waitcnt lgkmcnt(0)"); k.e(*(fx + fx3))
    if prio_g is not None: k.e(f"s_setprio {prio_g}")
    k.e("s_sub_u32 s3, s2, 256", "s_and_b32 s4, s3, 7", "s_lshr_b32 s5, s3, 3", "s_mul_i32 s4, s4, 28", "s_add_u32 s4, s4, s5",
        "s_lshr_b32 s26, s4, 4", "s_and_b32 s25, s4, 15")
    k.stamp(0)
    e3_body(k, SX=20, norm=True, xoff=WS_XN, epi_prio=epi_prio)
    k.wait_vm_all()
    k.stamp(3); k.stamp_out(4, 0x20000); k.wait_vm_all()
    k.e("s_endpgm")
    k.label("L_kb_pf")
    k.vm = []; k.lg = []
    if prefetch:
        fxp = srd(k, 12, 48, SZ_WD) + srd(k, 16, 16, SZ_WO)
        k.e("s_waitcnt lgkmcnt(0)"); k.e(*fxp)
        k.e("s_sub_u32 s3, s2, 480")
        prefetch_role(k, [(12, SZ_WD), (16, SZ_WO)], 3, 32)
    k.label(f"L_end_{k.name}")
    k.e("s_endpgm")
    fb()
    k.emit_tails()
    return k


class E4F:
    DEPTH = 8; ACC = 64; HR = 128; WR = 16; WOF = 192
    V16 = 48; VW = 49; VT = 50; VX = 52; VPH = 53; VPO = 54; VP = 55; VC = 56
    SB = 40; SDO = 41; SH = 42; SWO = 43; SO_ = 44; ST = 45; SCB = 46; SRB = 47; SC = 48; SK = 49
    def __init__(self, k, SD, SO, SWS, SX, SOUT, hsleep=2, osleep=2, ep=False):
        self.k = k; self.SD = SD; self.SO = SO; self.SWS = SWS; self.SX = SX; self.SOUT = SOUT
        self.hsleep = hsleep; self.osleep = osleep; self.ep = ep
        if ep: self.VP = 58
    def setup(self):
        k = self.k; c = self
        a, b = 56, 57
        k.e(f"v_lshlrev_b32 v{c.V16}, 4, v1", f"s_lshl_b32 s{c.ST}, s{c.SCB}, 7",
            f"v_lshrrev_b32 v{c.VW}, 3, v1", f"v_lshlrev_b32 v{c.VW}, 10, v{c.VW}", f"v_bfe_u32 v{a}, v1, 4, 1", f"v_lshlrev_b32 v{a}, 2, v{a}", f"v_and_b32 v{b}, 7, v1",
            f"v_xor_b32 v{a}, v{a}, v{b}", f"v_lshl_add_u32 v{c.VW}, v{a}, 4, v{c.VW}", f"v_add_u32 v{c.VW}, s{c.ST}, v{c.VW}")
        k.e(f"v_lshrrev_b32 v{a}, 5, v1", f"v_bfe_u32 v{b}, v1, 2, 2", f"v_lshl_add_u32 v{a}, v{a}, 2, v{b}", f"v_lshlrev_b32 v{c.VT}, 7, v{a}",
            f"v_bfe_u32 v{a}, v1, 4, 1", f"v_lshlrev_b32 v{a}, 1, v{a}", f"v_bfe_u32 v{b}, v1, 1, 1", f"v_add_u32 v{a}, v{a}, v{b}",
            f"v_bfe_u32 v{b}, v1, 3, 1", f"v_lshlrev_b32 v{b}, 2, v{b}", f"v_xor_b32 v{a}, v{a}, v{b}", f"v_lshl_add_u32 v{c.VT}, v{a}, 4, v{c.VT}",
            f"v_and_b32 v{b}, 1, v1", f"v_lshl_add_u32 v{c.VT}, v{b}, 3, v{c.VT}", f"s_lshl_b32 s{c.SB}, s24, 14", f"v_add_u32 v{c.VT}, s{c.SB}, v{c.VT}",
            f"v_xor_b32 v{c.VT+1}, 64, v{c.VT}")
        k.e(f"s_mul_i32 s{c.SDO}, s24, 458752",
            f"s_mul_i32 s{c.SH}, s{c.SRB}, 224", f"s_mul_i32 s{c.SC}, s24, 28", f"s_add_u32 s{c.SH}, s{c.SH}, s{c.SC}", f"s_lshl_b32 s{c.SH}, s{c.SH}, 10", f"s_add_u32 s{c.SH}, s{c.SH}, 0x{WS_HF:x}",
            f"s_lshl_b32 s{c.SWO}, s24, 17",
            f"s_lshl_b32 s{c.SO_}, s{c.SRB}, 6", f"s_lshl_b32 s{c.SC}, s24, 3", f"s_add_u32 s{c.SO_}, s{c.SO_}, s{c.SC}", f"s_lshl_b32 s{c.SO_}, s{c.SO_}, 10", f"s_add_u32 s{c.SO_}, s{c.SO_}, 0x{WS_OF:x}")
        k.e(f"v_lshrrev_b32 v{c.VX}, 3, v0", f"s_lshl_b32 s{c.SC}, s{c.SRB}, 6", f"v_add_u32 v{c.VX}, s{c.SC}, v{c.VX}", f"v_lshlrev_b32 v{c.VX}, 10, v{c.VX}",
            f"v_and_b32 v{a}, 7, v0", f"v_lshl_add_u32 v{c.VX}, v{a}, 4, v{c.VX}", f"v_add_u32 v{c.VX}, s{c.ST}, v{c.VX}")
        sh = 1 if c.ep else 0
        fh, fo = (FLG_H8, FLG_O8) if c.ep else (FLG_H, FLG_O)
        k.e(f"v_min_u32 v{c.VPH}, 6, v1", f"s_mul_i32 s{c.SC}, s24, 7", f"v_add_u32 v{c.VPH}, s{c.SC}, v{c.VPH}", f"v_lshlrev_b32 v{c.VPH}, {2+sh}, v{c.VPH}",
            f"s_lshl_b32 s{c.SC}, s{c.SRB}, {7+sh}", f"s_add_u32 s{c.SC}, s{c.SC}, 0x{fh:x}", f"v_add_u32 v{c.VPH}, s{c.SC}, v{c.VPH}")
        k.e(f"v_and_b32 v{a}, 7, v1", f"v_lshlrev_b32 v{c.VPO}, {2+sh}, v{a}", f"s_lshl_b32 s{c.SC}, s{c.SRB}, {7+sh}", f"s_lshl_b32 s{c.SK}, s24, {5+sh}",
            f"s_add_u32 s{c.SC}, s{c.SC}, s{c.SK}", f"s_add_u32 s{c.SC}, s{c.SC}, 0x{fo:x}", f"v_add_u32 v{c.VPO}, s{c.SC}, v{c.VPO}")
    def touchW(self, vd):
        k = self.k; c = self
        a = 56
        k.e(f"s_and_b32 s{c.SC}, s{c.SRB}, 3", f"s_mul_i32 s{c.SK}, s{c.SC}, {112*1024}", f"s_add_u32 s{c.SK}, s{c.SK}, s{c.SDO}",
            f"s_lshl_b32 s{c.ST}, s{c.SCB}, 7", f"v_lshlrev_b32 v{a}, 10, v1", f"v_add_u32 v{a}, s{c.ST}, v{a}")
        k.vmem(f"buffer_load_dword v{vd}, v{a}, s[{c.SD}:{c.SD+3}], s{c.SK} offen", "touch")
        k.e(f"s_add_u32 s{c.SK}, s{c.SK}, 65536", "s_mov_b32 exec_hi, 0xffff")
        k.vmem(f"buffer_load_dword v{vd}, v{a}, s[{c.SD}:{c.SD+3}], s{c.SK} offen", "touch")
        k.e(f"s_lshl_b32 s{c.SK}, s{c.SC}, 15", f"s_add_u32 s{c.SK}, s{c.SK}, s{c.SWO}", "s_mov_b64 exec, 0xffffffff")
        k.vmem(f"buffer_load_dword v{vd}, v{a}, s[{c.SO}:{c.SO+3}], s{c.SK} offen", "touch")
        k.e("s_mov_b64 exec, -1")
    def issueW(self, s):
        k = self.k; c = self
        slot = s % c.DEPTH
        sr, sb, kk = (c.SD, c.SDO, s) if s < 28 else (c.SO, c.SWO, s - 28)
        for i in range(2):
            k.e(f"s_add_u32 m0, s{c.SB}, {slot*2048 + i*1024}", f"s_add_u32 s{c.ST}, s{sb}, {kk*16384 + i*8192}")
            k.vmem(f"buffer_load_dwordx4 v{c.VW}, s[{sr}:{sr+3}], s{c.ST} offen lds", ("W", s))
    def issueH(self, s):
        k = self.k; c = self
        slot = s % c.DEPTH
        kk, hb, hstride = (s, c.SH, 112*1024) if s < 28 else (s - 28, c.SO_, 32*1024)
        for tb in range(2):
            d = c.HR + slot*8 + 4*tb
            k.e(f"s_add_u32 s{c.ST}, s{hb}, {kk*1024 + tb*hstride}")
            k.vmem(f"buffer_load_dwordx4 v[{d}:{d+3}], v{c.V16}, s[{c.SWS}:{c.SWS+3}], s{c.ST} offen {c.hsc1 if s < 28 else 'sc1'}", ("H", s))
    def reads(self, s, b):
        k = self.k; c = self
        o = (s % c.DEPTH)*2048
        for cb2 in range(2):
            av = c.VT + cb2
            k.ds(f"ds_read_b64_tr_b16 v[{b+4*cb2}:{b+4*cb2+1}], v{av} offset:{o}", ("r", s))
            k.ds(f"ds_read_b64_tr_b16 v[{b+4*cb2+2}:{b+4*cb2+3}], v{av} offset:{o+1024}", ("r", s))
    def mf(self, s, b, first):
        k = self.k; c = self
        h = c.HR + (s % c.DEPTH)*8
        for cb2 in range(2):
            for tb in range(2):
                a = c.ACC + 16*(cb2*2 + tb)
                k.e(f"{MF} v[{a}:{a+15}], v[{b+4*cb2}:{b+4*cb2+3}], v[{h+4*tb}:{h+4*tb+3}], " + ("0" if first else f"v[{a}:{a+15}]"))
    def spin(self, tag, issue_txt, ok_cmp, sleep):
        k = self.k; c = self
        L = k.newlabel(tag); Lc = k.newlabel(tag + "c")
        k.e(f"s_mov_b32 s{c.SK}, 0")
        k.label(L)
        k.e(issue_txt, f"s_add_u32 s{c.SK}, s{c.SK}, 1", "s_waitcnt vmcnt(0)", ok_cmp, "s_nop 3", "s_cmp_eq_u64 vcc, -1", f"s_cbranch_scc1 {Lc}",
            f"s_sleep {sleep}", f"s_cmp_lt_u32 s{c.SK}, 0x{SPIN_MAX:x}", f"s_cbranch_scc1 {L}")
        k.label(Lc)
        k.vm = []
    def pollt(self, va):
        c = self
        if c.ep: return (f"buffer_load_dwordx2 v[{c.VP}:{c.VP+1}], v{va}, s[{c.SWS}:{c.SWS+3}], 0 offen sc1", f"v_cmp_eq_u64 vcc, s[{SEP}:{SEP+1}], v[{c.VP}:{c.VP+1}]")
        return (f"buffer_load_dword v{c.VP}, v{va}, s[{c.SWS}:{c.SWS+3}], 0 offen sc1", f"v_cmp_eq_u32 vcc, 1, v{c.VP}")
    def reduce(self, dst, addx, lds_base=0):
        k = self.k; c = self
        RS = 272
        k.e("s_nop 7", "s_barrier")
        k.e("v_and_b32 v4, 31, v1", f"v_mul_u32_u24 v4, {RS}, v4", "v_lshrrev_b32 v5, 5, v1", "v_lshl_add_u32 v4, v5, 4, v4",
            f"s_mul_i32 s{c.SC}, s24, {64*RS}", f"v_add_u32 v4, s{c.SC}, v4", "s_nop 3")
        for cb2 in range(2):
            for tb in range(2):
                a = c.ACC + 16*(cb2*2 + tb)
                for g in range(4):
                    k.ds(f"ds_write_b128 v4, v[{a+4*g}:{a+4*g+3}] offset:{lds_base + tb*32*RS + cb2*128 + g*32}")
        k.e("v_lshrrev_b32 v6, 3, v0", f"v_mul_u32_u24 v6, {RS}, v6", "v_and_b32 v5, 7, v0", "v_lshl_add_u32 v6, v5, 5, v6")
        k.wait_lg_all()
        k.e("s_barrier")
        for half in range(2):
            for w in range(4):
                d = 64 + half*32 + w*8
                for j in range(2):
                    k.ds(f"ds_read_b128 v[{d+4*j}:{d+4*j+3}], v6 offset:{lds_base + w*64*RS + half*32*RS + j*16}", ("rd", half))
        if addx: k.wait_vm("x")
        for half in range(2):
            k.wait_lg(("rd", half))
            d = 64 + half*32; o = dst + 8*half
            def padd(D_, A_, B_):
                if EPK:
                    for i in range(0, 8, 2): k.e(f"v_pk_add_f32 v[{D_+i}:{D_+i+1}], v[{A_+i}:{A_+i+1}], v[{B_+i}:{B_+i+1}]")
                else:
                    for i in range(8): k.e(f"v_add_f32 v{D_+i}, v{A_+i}, v{B_+i}")
            if EPK:
                padd(d, d, d + 8); padd(d + 16, d + 16, d + 24)
            else:
                for i in range(8):
                    k.e(f"v_add_f32 v{d+i}, v{d+i}, v{d+8+i}", f"v_add_f32 v{d+16+i}, v{d+16+i}, v{d+24+i}")
            if addx:
                for i in range(4):
                    xr = 40 + 4*half + i
                    k.e(f"v_lshlrev_b32 v{d+8+2*i}, 16, v{xr}", f"v_and_b32 v{d+9+2*i}, 0xffff0000, v{xr}")
                padd(d, d, d + 16)
                padd(o, d, d + 8)
            else:
                padd(d, d, d + 16)
                padd(o, o, d)
    def body(self, pre_issued=True, st=(1, 2), hwait=True):
        k = self.k; c = self
        D = c.DEPTH
        if not pre_issued:
            for s in range(D): c.issueW(s)
        k.vmem(f"buffer_load_dwordx4 v[40:43], v{c.VX}, s[{c.SX}:{c.SX+3}], 0 offen", "x")
        k.e(f"s_mov_b32 s{c.ST}, 32768")
        k.vmem(f"buffer_load_dwordx4 v[44:47], v{c.VX}, s[{c.SX}:{c.SX+3}], s{c.ST} offen", "x")
        if hwait:
            c.spin("hsp", *c.pollt(c.VPH), c.hsleep)
        c.hsc1 = "sc1" if hwait else ""
        k.stamp(st[0])
        if c.e4_prio is not None: k.e(f"s_setprio {c.e4_prio}")
        for s in range(D): c.issueH(s)
        c.reads(0, c.WR)
        for s in range(28):
            if s + 1 < 28:
                k.wait_vm(("W", s + 1)); c.reads(s + 1, c.WR + 8*((s + 1) & 1))
            k.wait_vm(("H", s)); k.wait_lg(("r", s))
            c.mf(s, c.WR + 8*(s & 1), s == 0)
            if s + D < 36:
                c.issueW(s + D)
                if s + D < 28: c.issueH(s + D)
        for s in range(28, 36):
            k.wait_vm(("W", s)); c.reads(s, c.WOF + 8*(s - 28))
        k.wait_lg_all()
        c.reduce(32, True)
        k.stamp(st[1])
        if c.e4_prio is not None: k.e(f"s_setprio {c.post_prio or 0}")
        Lr = k.newlabel("oretry"); Lg = k.newlabel("ogo"); Ld = k.newlabel("odone")
        k.e(f"s_mov_b32 s{c.SK+1}, 0")
        if getattr(c, "pre", 0):
            VPP = 55
            k.e(f"v_add_u32 v{VPP}, 0x{FLG_P8 - FLG_O8:x}, v{c.VPO}")
            c.spin("psp", *c.pollt(VPP), c.osleep)
            for s in range(28, 36): c.issueH(s)
            for s in range(28, 36):
                L = k.newlabel("ochk"); La = k.newlabel("oacc"); Lre = k.newlabel("ore")
                k.label(L)
                k.wait_vm(("H", s))
                h = c.HR + (s % D)*8
                k.e(f"v_max3_u32 v{c.VC}, v{h}, v{h+1}, v{h+2}", f"v_max3_u32 v{c.VC}, v{h+3}, v{h+4}, v{c.VC}", f"v_max3_u32 v{c.VC}, v{h+5}, v{h+6}, v{c.VC}",
                    f"v_max_u32 v{c.VC}, v{h+7}, v{c.VC}", f"v_cmp_eq_u32 vcc, -1, v{c.VC}", "s_nop 3", "s_cmp_eq_u64 vcc, 0", f"s_cbranch_scc0 {Lre}")
                k.label(La)
                c.mf(s, c.WOF + 8*(s - 28), s == 28)
                def tail(s=s, L=L, La=La, Lre=Lre):
                    Lgo = k.newlabel("orego")
                    k.label(Lre)
                    k.e(f"s_add_u32 s{c.SK+1}, s{c.SK+1}, 1", f"s_cmp_ge_u32 s{c.SK+1}, {c.lim1 + 64}", f"s_cbranch_scc1 {La}",
                        f"s_cmp_lg_u32 s{c.SK+1}, {c.lim1}", f"s_cbranch_scc1 {Lgo}")
                    c.spin("osp", *c.pollt(c.VPO), c.osleep)
                    k.label(Lgo)
                    if c.rsleep: k.e(f"s_sleep {c.rsleep}")
                    for t in range(s, 36): c.issueH(t)
                    k.e(f"s_branch {L}")
                    k.vm = []
                k.tails.append(tail)
        else:
            k.label(Lr)
            c.spin("osp", *c.pollt(c.VPO), c.osleep)
            for s in range(28, 36): c.issueH(s)
            k.e(f"v_mov_b32 v{c.VC}, 0")
            for s in range(28, 36):
                k.wait_vm(("H", s))
                h = c.HR + (s % D)*8
                c.mf(s, c.WOF + 8*(s - 28), s == 28)
                for i in range(0, 8, 2): k.e(f"v_max3_u32 v{c.VC}, v{h+i}, v{h+i+1}, v{c.VC}")
            k.e(f"v_cmp_eq_u32 vcc, -1, v{c.VC}", f"s_add_u32 s{c.SK+1}, s{c.SK+1}, 1", "s_nop 3", "s_cmp_eq_u64 vcc, 0", f"s_cbranch_scc1 {Ld}",
                f"s_cmp_lt_u32 s{c.SK+1}, 0x40", "s_nop 15", f"s_cbranch_scc1 {Lr}")
        k.label(Ld)
        if not hwait: k.stamp(st[1] + 1)
        c.reduce(32, False)
        for half in range(2):
            for i in range(4): k.e(f"v_cvt_pk_bf16_f32 v{48+4*half+i - 0 if False else 16+4*half+i}, v{32+8*half+2*i}, v{32+8*half+2*i+1}")
        k.vmem(f"buffer_store_dwordx4 v[16:19], v{c.VX}, s[{c.SOUT}:{c.SOUT+3}], 0 offen {getattr(c, 'omod', '')}".rstrip(), "st")
        k.e(f"s_mov_b32 s{c.ST}, 32768")
        k.vmem(f"buffer_store_dwordx4 v[20:23], v{c.VX}, s[{c.SOUT}:{c.SOUT+3}], s{c.ST} offen {getattr(c, 'omod', '')}".rstrip(), "st")

def kB3_kernel(name="kb_main_kernel", prio_a=None, prio_g=None, epi_prio=None, post_prio=None, e4_prio=None, touch=True, hsleep=2, osleep=2, **kw):
    k = KV(name, nvgpr=256)
    k.e("s_cmp_ge_u32 s2, 512", f"s_cbranch_scc1 L_end_{k.name}")
    fx = srd(k, 20, 72, WS_SIZE2)
    k.e("s_cmp_ge_u32 s2, 256", "s_cbranch_scc1 L_kb_g")
    k.e("s_waitcnt lgkmcnt(0)"); k.e(*fx)
    if prio_a is not None: k.e(f"s_setprio {prio_a}")
    k.e("s_and_b32 s3, s2, 7", "s_lshr_b32 s4, s2, 3", "s_and_b32 s5, s4, 3", "s_lshl_b32 s25, s3, 2", "s_add_u32 s25, s25, s5", "s_lshr_b32 s26, s4, 2")
    k.stamp(0)
    if kw.pop("skip_a", False):
        k.e("v_and_b32 v1, 63, v0", "v_lshrrev_b32 v10, 6, v0", "s_nop 0", "v_readfirstlane_b32 s24, v10", "v_lshlrev_b32 v2, 4, v1",
            "v_mov_b32 v160, 0", "v_mov_b32 v161, 0", "v_mov_b32 v162, 0", "v_mov_b32 v163, 0")
        k.stamp(1); k.stamp(2)
        k.e("s_lshl_b32 s36, s26, 3", "s_lshl_b32 s37, s24, 1", "s_add_u32 s36, s36, s37", "s_lshl_b32 s36, s36, 5", "s_add_u32 s36, s36, s25",
            "s_lshl_b32 s36, s36, 10", f"s_add_u32 s36, s36, 0x{WS_OF:x}")
        k.e("buffer_store_dwordx4 v[160:163], v2, s[20:23], s36 offen sc1", "s_add_u32 s36, s36, 32768", "buffer_store_dwordx4 v[160:163], v2, s[20:23], s36 offen sc1")
        k.e("s_lshl_b32 s36, s26, 2", "s_add_u32 s36, s36, s24", "s_lshl_b32 s36, s36, 7", "s_lshl_b32 s37, s25, 2", "s_add_u32 s36, s36, s37",
            f"s_add_u32 s36, s36, 0x{FLG_O:x}", "v_mov_b32 v12, s36", "v_mov_b32 v13, 1", "s_mov_b64 exec, 1",
            "buffer_store_dword v13, v12, s[20:23], 0 offen sc1", "s_mov_b64 exec, -1")
        k.fb_code = lambda: None
    else:
        e2_body(k, st_sc1="sc1", touch=touch, oflag=True, **kw)
    k.wait_vm_all()
    k.stamp(3); k.stamp_out(4, 0x20000); k.wait_vm_all()
    k.e("s_endpgm")
    fb = k.fb_code
    k.label("L_kb_g")
    k.vm = []; k.lg = []
    SD, SO, SX, SOUT = 84, 88, 8, 4
    fx3 = srd(k, 12, 32, SZ_WG) + srd(k, 16, 40, SZ_WG) + srd(k, SD, 48, SZ_WD) + srd(k, SO, 16, SZ_WO) + srd(k, SX, 0, SZ_X) + srd(k, SOUT, 56, SZ_X)
    k.e("s_waitcnt lgkmcnt(0)"); k.e(*(fx + fx3))
    if prio_g is not None: k.e(f"s_setprio {prio_g}")
    e4 = E4F(k, SD, SO, 20, SX, SOUT, hsleep=hsleep, osleep=osleep)
    c = e4
    k.e("s_sub_u32 s3, s2, 256", "s_and_b32 s92, s3, 7", "s_lshr_b32 s93, s3, 3",
        f"s_and_b32 s{c.SRB}, s93, 3", "s_lshl_b32 s94, s92, 2", f"s_add_u32 s{c.SRB}, s{c.SRB}, s94", f"s_lshr_b32 s{c.SCB}, s93, 2")
    k.e("s_cmp_ge_u32 s2, 480", "s_cbranch_scc1 L_kb_pf")
    k.e("s_and_b32 s26, s92, 1", "s_mul_i32 s26, s26, 7", "s_lshr_b32 s94, s93, 2", "s_add_u32 s26, s26, s94",
        "s_lshr_b32 s25, s92, 1", "s_lshl_b32 s25, s25, 2", "s_and_b32 s95, s93, 3", "s_add_u32 s25, s25, s95")
    k.stamp(0)
    def pre_loop():
        if not touch: return
        k.e("v_lshrrev_b32 v66, 1, v1", "v_mul_u32_u24 v66, 3584, v66", "v_and_b32 v67, 1, v1", "v_lshl_add_u32 v66, v67, 7, v66",
            "s_lshl_b32 s36, s95, 7", "s_lshl_b32 s37, s28, 6", "s_add_u32 s36, s36, s37", "s_mul_i32 s36, s36, 3584", "s_lshl_b32 s37, s26, 8", "s_add_u32 s36, s36, s37",
            f"s_add_u32 s37, s36, {32*3584}", "s_cmp_eq_u32 s27, 0", "s_cbranch_scc0 L_kb_tu")
        k.vmem("buffer_load_dword v64, v66, s[12:15], s36 offen", "touch"); k.vmem("buffer_load_dword v64, v66, s[12:15], s37 offen", "touch")
        k.e("s_branch L_kb_tx")
        k.label("L_kb_tu")
        k.e("buffer_load_dword v64, v66, s[16:19], s36 offen", "buffer_load_dword v64, v66, s[16:19], s37 offen")
        k.label("L_kb_tx")
        k.e("v_and_b32 v67, 31, v1", "v_lshlrev_b32 v67, 10, v67", "s_lshl_b32 s36, s25, 17", "s_lshl_b32 s37, s24, 15", "s_add_u32 s36, s36, s37",
            "s_lshl_b32 s37, s94, 7", "s_add_u32 s36, s36, s37", f"s_add_u32 s36, s36, 0x{WS_XN + 128:x}", "s_mov_b64 exec, 0xffffffff")
        k.vmem("buffer_load_dword v64, v67, s[20:23], s36 offen", "touch")
        k.e("s_mov_b64 exec, -1")
    def post_loop():
        k.e("s_barrier")
        e4.setup()
        for s in range(c.DEPTH): e4.issueW(s)
        if touch: e4.touchW(64)
    e3_body(k, SX=20, norm=True, xoff=WS_XN, epi_prio=epi_prio, post_loop=post_loop, st_sc1="sc1", pre_loop=pre_loop)
    k.e("s_lshl_b32 s36, s25, 1", "s_add_u32 s36, s36, s27", "s_lshl_b32 s36, s36, 7", "s_lshl_b32 s37, s26, 1", "s_add_u32 s37, s37, s28",
        "s_lshl_b32 s37, s37, 2", "s_add_u32 s36, s36, s37", f"s_add_u32 s36, s36, 0x{FLG_H:x}", "v_mov_b32 v56, s36", "v_mov_b32 v57, 1")
    k.stamp(3)
    k.wait_vm_all()
    k.stamp(4)
    k.e("s_mov_b64 exec, 1")
    k.vmem("buffer_store_dword v57, v56, s[20:23], 0 offen sc1", "flag")
    k.e("s_mov_b64 exec, -1")
    if post_prio is not None: k.e(f"s_setprio {post_prio}")
    k.e("s_branch L_kb_e4")
    k.label("L_kb_pf")
    k.vm = []; k.lg = []
    k.e("v_and_b32 v1, 63, v0", "v_lshrrev_b32 v10, 6, v0", "s_nop 0", "v_readfirstlane_b32 s24, v10", "s_sub_u32 s3, s2, 480")
    k.stamp(0); k.stamp(1); k.stamp(2); k.stamp(3); k.stamp(4)
    e4.setup()
    for s in range(c.DEPTH): e4.issueW(s)
    if post_prio is not None: k.e(f"s_setprio {post_prio}")
    k.label("L_kb_e4")
    k.vm = [(("W", s), False) for s in range(c.DEPTH) for _ in range(2)] + [("flag", True)]
    k.lg = []
    e4.e4_prio = e4_prio; e4.post_prio = post_prio
    e4.body(st=(5, 6))
    k.wait_vm_all()
    k.stamp(7); k.stamp_out(8, 0x40000); k.wait_vm_all()
    k.label(f"L_end_{k.name}")
    k.e("s_endpgm")
    fb()
    k.emit_tails()
    return k


def gemm2(k, nunits, mfmas, reads, dmas, vm_need, fill0=None, rper=4, dper=1, hooks=None, pre_hooks=None, first_wait=None):
    def tagof(g, name): return ("fr", g, name)
    for u in range(nunits):
        g0, g1 = 2*u, 2*u + 1
        k.wait_vm(*vm_need(u))
        k.wait_lg_all()
        k.e("s_barrier")
        if pre_hooks and u in pre_hooks: pre_hooks[u]()
        R0 = list(reads(g0, 0)); R1 = list(reads(g1, 1))
        prev = list(mfmas(g0 - 1, 1)) if u > 0 else []
        cur = list(mfmas(g0, 0))
        D = list(dmas(u))
        F = list(fill0(u)) if fill0 else []
        rel = {}
        for i, (t, used) in enumerate(prev):
            for nm in used: rel[nm] = i
        def emit_reads(i, budget):
            n = 0
            while n < budget and R0:
                t, nm = R0.pop(0); k.ds(t, tagof(g0, nm)); n += 1
            j = 0
            while n < budget and j < len(R1):
                t, nm = R1[j]
                if rel.get(nm, -1) <= i:
                    k.ds(t, tagof(g1, nm)); R1.pop(j); n += 1
                else: j += 1
        def emit_dma():
            for (txt, tag, isvm) in D.pop(0):
                if isvm: k.vmem(txt, tag)
                else: k.e(txt)
        if not prev:
            emit_reads(-1, 1000)
        for i, (t, used) in enumerate(prev):
            k.e(t)
            emit_reads(i, rper)
            for _ in range(dper):
                if D: emit_dma()
        emit_reads(10**6, 1000)
        ngap = len(cur)
        per = -(-len(D) // ngap) if D else 0
        fper = -(-len(F) // ngap) if F else 0
        have = set()
        for j, (t, used) in enumerate(cur):
            k.wait_lg(*[tagof(g0, nm) for nm in used])
            have |= set(used)
            k.e(t)
            for _ in range(per):
                if D: emit_dma()
            n = 0; i = 0
            lim = fper + 1 if j < ngap - 1 else 10**6
            while n < lim and i < len(F):
                if F[i][1] in have:
                    k.e(F[i][0]); F.pop(i); n += 1
                else: i += 1
        assert not D and not F
        if hooks and u in hooks:
            for h in hooks[u]: h()
    k.wait_lg_all()
    for (t, used) in mfmas(2*nunits - 1, 1): k.e(t)

ONES = 42
DBG1 = {}

MF16 = "v_mfma_f32_16x16x32_bf16"
def sel_init(k, SEL, tmp):
    k.e(f"v_lshrrev_b32 v{tmp}, 4, v1", f"v_and_b32 v{tmp}, 1, v{tmp}", f"v_and_b32 v{SEL}, 15, v1", f"v_cmp_eq_u32 vcc, v{tmp}, v{SEL}",
        f"v_mov_b32 v{SEL+1}, 0x3f803f80", f"v_mov_b32 v{SEL+2}, 0", "s_nop 0", f"v_cndmask_b32 v{SEL}, v{SEL+2}, v{SEL+1}, vcc",
        f"v_mov_b32 v{SEL+1}, v{SEL}", f"v_mov_b32 v{SEL+2}, v{SEL}", f"v_mov_b32 v{SEL+3}, v{SEL}")

def sel_write(k, items, s_base, va, vt):
    k.e(f"v_and_b32 v{va}, 1, v1", f"v_lshlrev_b32 v{va}, 6, v{va}", f"v_lshrrev_b32 v{vt}, 4, v1", f"v_lshl_add_u32 v{va}, v{vt}, 4, v{va}", f"v_add_u32 v{va}, s{s_base}, v{va}",
        f"v_and_b32 v{vt}, 14, v1", f"v_cmp_eq_u32 vcc, 0, v{vt}", "s_nop 4", "s_mov_b64 exec, vcc")
    for (a, off) in items: k.ds(f"ds_write_b128 v{va}, v[{a}:{a+3}] offset:{off}")
    k.e("s_mov_b64 exec, -1")

def half_sum(k, regs, tmps):
    for r, t in zip(regs, tmps): k.e(f"v_mov_b32 v{t}, v{r}")
    k.e("s_nop 1")
    for r, t in zip(regs, tmps): k.e(f"v_permlane32_swap_b32 v{r}, v{t}")
    k.e("s_nop 1")
    for r, t in zip(regs, tmps): k.e(f"v_add_f32 v{r}, v{r}, v{t}")

def row_stats(k, sx, sxx, mean, rstd, tmp):
    k.e(f"v_mul_f32 v{mean}, 0x3b000000, v{sx}", f"v_mul_f32 v{tmp}, 0x3b000000, v{sxx}",
        f"v_fma_f32 v{tmp}, -v{mean}, v{mean}, v{tmp}", f"v_max_f32 v{tmp}, 0, v{tmp}", f"v_add_f32 v{tmp}, 0x3727c5ac, v{tmp}",
        f"v_rsq_f32 v{rstd}, v{tmp}")

def e1s_body(k, SX=8, SW=12, SWS=20, sc1="", hooks=None, pre_hooks=None, rot=False, pre_store=None, mst=False, post_dma=None, rper=5, dper=2):
    E1_XB = 49152
    k.e("v_and_b32 v1, 63, v0", "v_lshrrev_b32 v10, 6, v0", "s_nop 0", "v_readfirstlane_b32 s24, v10")
    k.e("v_and_b32 v11, 31, v1", "v_lshrrev_b32 v12, 5, v1")
    k.e("s_and_b32 s27, s24, 1", "s_lshr_b32 s28, s24, 1")
    k.e("v_lshrrev_b32 v13, 3, v1", "v_lshrrev_b32 v14, 4, v1", "v_and_b32 v15, 7, v1",
        "v_xor_b32 v7, v15, v14", "v_lshlrev_b32 v7, 4, v7", "v_lshl_add_u32 v7, v13, 10, v7",
        "s_lshl_b32 s29, s25, 16", "s_lshl_b32 s30, s24, 14", "s_add_u32 s29, s29, s30",
        "v_add_u32 v7, s29, v7", "v_xor_b32 v8, 64, v7", "v_add_u32 v8, 8192, v8")
    k.e("v_and_b32 v14, 1, v14", "v_lshlrev_b32 v14, 2, v14", "v_xor_b32 v9, v15, v14", "v_lshlrev_b32 v9, 4, v9",
        "s_lshl_b32 s30, s24, 3", "v_add_u32 v13, s30, v13", "v_mul_u32_u24 v13, 3072, v13", "v_add_u32 v9, v9, v13",
        "s_lshl_b32 s30, s26, 7", "v_add_u32 v9, s30, v9")
    k.e(f"s_lshl_b32 s31, s24, 11", f"s_add_u32 s31, s31, {E1_XB}", "s_lshl_b32 s32, s24, 10")
    def xd(v):
        if rot:
            return [dmab(SX, 7, 31, (v % 3)*8192, 33, 51, 0, ("X", v)),
                    dmab(SX, 8, 31, (v % 3)*8192 + 1024, 33, 51, 0, ("X", v), post=["s_add_u32 s51, s51, 128", "s_and_b32 s51, s51, 1023"])]
        return [dma(SX, 7, 31, (v % 3)*8192, 33, v*128, ("X", v)), dma(SX, 8, 31, (v % 3)*8192 + 1024, 33, v*128, ("X", v))]
    def wd(u):
        if rot:
            return [dmab(SW, 9, 32, (u % 4)*12288 + p*4096, 33, 50, 0, ("W", u), imm=1024*p, post=(rot_adv(50, 32*3072, 512*3072, 52) if p == 2 else ())) for p in range(3)]
        return [dma(SW, 9, 32, (u % 4)*12288 + p*4096, 33, u*32*3072, ("W", u), imm=1024*p) for p in range(3)]
    if rot:
        k.e("s_lshl_b32 s51, s53, 7", f"s_mul_i32 s50, s53, {64*3072}")
    emit_groups(k, xd(0) + wd(0) + wd(1) + xd(1) + wd(2))
    if post_dma: post_dma()
    k.e("s_xor_b32 s34, s27, s28")
    k.e("s_lshl_b32 s36, s27, 5", "v_add_u32 v13, s36, v11", "v_bfe_u32 v14, v13, 1, 3", "v_xor_b32 v14, v14, v12",
        "v_lshlrev_b32 v14, 4, v14", "v_lshl_add_u32 v2, v13, 7, v14", f"v_add_u32 v2, {E1_XB}, v2",
        "s_lshl_b32 s35, s34, 5", "v_xor_b32 v2, s35, v2",
        "v_xor_b32 v3, 32, v2", "v_xor_b32 v4, 64, v2", "v_xor_b32 v5, 96, v2")
    k.e("v_bfe_u32 v13, v1, 2, 2", "v_lshl_add_u32 v13, v12, 3, v13", "v_lshlrev_b32 v6, 7, v13",
        "v_bfe_u32 v13, v1, 4, 1", "v_lshlrev_b32 v13, 1, v13", "v_bfe_u32 v14, v1, 1, 1", "v_add_u32 v13, v13, v14",
        "s_lshl_b32 s36, s28, 2", "v_add_u32 v13, s36, v13", "v_bfe_u32 v14, v1, 3, 1", "v_lshlrev_b32 v14, 2, v14",
        "v_xor_b32 v13, v13, v14", "v_lshl_add_u32 v6, v13, 4, v6", "v_and_b32 v14, 1, v1", "v_lshl_add_u32 v6, v14, 3, v6",
        "s_lshl_b32 s35, s34, 11", "v_xor_b32 v10, 2048, v6", "v_xor_b32 v10, s35, v10", "v_xor_b32 v6, s35, v6")
    k.e(f"s_mov_b32 s{ONES}, 0x3f803f80")
    ST = 48
    for i in range(5): k.e(f"v_mov_b32 v{ST+i}, 0")
    SEL = 176; MA = 180
    if mst: sel_init(k, SEL, 13)
    ACC = 64
    def fr(st): return 16 + 16*st
    def reads(g, st):
        b = fr(st); u = g >> 1; v = g >> 2
        out = [(f"ds_read_b128 v[{b}:{b+3}], v{2 + (g & 3)} offset:{(v % 3)*8192}", "X")]
        av = 6 if (g & 1) == 0 else 10
        for p in range(3):
            o = (u % 4)*12288 + p*4096
            out.append((f"ds_read_b64_tr_b16 v[{b+4+4*p}:{b+5+4*p}], v{av} offset:{o}", f"W{p}"))
            out.append((f"ds_read_b64_tr_b16 v[{b+6+4*p}:{b+7+4*p}], v{av} offset:{o+512}", f"W{p}"))
        return out
    def mfmas(g, st):
        out = []
        b_x = fr(st); b_w = b_x + 4
        for p in range(3):
            a = ACC + 16*p
            w = f"v[{b_w+4*p}:{b_w+4*p+3}]"; x = f"v[{b_x}:{b_x+3}]"
            A, B = (w, x) if p < 2 else (x, w)
            c = "0" if g == 0 else f"v[{a}:{a+15}]"
            out.append((f"{MF} v[{a}:{a+15}], {A}, {B}, {c}", ["X", f"W{p}"]))
        if mst == 2 and (g & 1):
            def sm(j, src):
                a = MA + 4*j
                return f"{MF16} v[{a}:{a+3}], v[{src}:{src+3}], v[{SEL}:{SEL+3}], " + ("0" if g == 1 else f"v[{a}:{a+3}]")
            def sq(i):
                t = 196 + 2*(i & 1)
                return (f"\nv_lshlrev_b32 v{t}, 16, v{b_x+i}\nv_and_b32 v{t+1}, 0xffff0000, v{b_x+i}\nv_pk_fma_f32 v[{ST}:{ST+1}], v[{t}:{t+1}], v[{t}:{t+1}], v[{ST}:{ST+1}]")
            out = [(sm(1, b_w), ["W0"]), (out[0][0] + sq(0), ["X", "W0"]), (sm(2, b_w + 4), ["W1"]), (out[1][0] + sq(1), ["X", "W1"]),
                   (sm(3, b_w + 8), ["W2"]), (out[2][0] + sq(2), ["X", "W2"]), (sm(0, b_x) + sq(3), ["X"])]
        return out
    def fill0(u):
        b = fr(0); out = []
        if mst:
            def sm(j, src, nm):
                a = MA + 4*j
                return (f"{MF16} v[{a}:{a+3}], v[{src}:{src+3}], v[{SEL}:{SEL+3}], " + ("0" if u == 0 else f"v[{a}:{a+3}]"), nm)
            d2 = [(f"v_dot2_f32_bf16 v{ST+1}, v{b+i}, v{b+i}, v{ST+1}", "X") for i in range(4)]
            return [sm(0, b, "X"), d2[0], sm(1, b+4, "W0"), d2[1], sm(2, b+8, "W1"), d2[2], sm(3, b+12, "W2"), d2[3]]
        for i in range(4):
            out.append((f"v_dot2_f32_bf16 v{ST}, v{b+i}, s{ONES}, v{ST}", "X"))
            out.append((f"v_dot2_f32_bf16 v{ST+1}, v{b+i}, v{b+i}, v{ST+1}", "X"))
            for p in range(3):
                out.append((f"v_dot2_f32_bf16 v{ST+2+p}, v{b+4+4*p+i}, s{ONES}, v{ST+2+p}", f"W{p}"))
        return out
    def dmas(u):
        out = []
        if u + 3 < 16: out += wd(u + 3)
        if u % 2 == 0 and u//2 + 2 < 8: out += xd(u//2 + 2)
        return out
    k.stamp(1)
    if DBG1.get("fine"): pre_hooks = {0: lambda: k.stamp(2), 2: lambda: k.stamp(3), 4: lambda: k.stamp(4), 8: lambda: k.stamp(5)}
    gemm2(k, 16, mfmas, reads, dmas, lambda u: [("W", u), ("X", u >> 1)], fill0=(None if (DBG1.get("nostat1") or mst == 2) else fill0), rper=rper, dper=dper, hooks=hooks, pre_hooks=pre_hooks)
    k.stamp(6 if DBG1.get("fine") else 2)
    if mst == 2: k.e(f"v_add_f32 v{ST+1}, v{ST}, v{ST+1}")
    k.e("s_nop 2")
    if mst: half_sum(k, [ST+1], [53])
    else: half_sum(k, [ST+i for i in range(5)], [53, 54, 55, 56, 57])
    k.e("s_barrier", "s_mul_i32 s36, s24, 640", "v_lshlrev_b32 v13, 2, v11", "v_add_u32 v14, s36, v13")
    if mst:
        k.ds(f"ds_write_b32 v14, v{ST+1} offset:128")
        sel_write(k, [(MA, 0), (MA+4, 256), (MA+8, 384), (MA+12, 512)], 36, 15, 16)
    else:
        for i in range(5): k.ds(f"ds_write_b32 v14, v{ST+i} offset:{128*i}")
    k.e("s_xor_b32 s37, s24, 2", "s_mul_i32 s37, s37, 640", "v_add_u32 v15, s37, v13", "s_xor_b32 s37, s24, 1", "s_mul_i32 s37, s37, 640", "v_add_u32 v16, s37, v13")
    k.wait_lg_all()
    k.e("s_barrier")
    k.ds("ds_read_b32 v53, v15"); k.ds("ds_read_b32 v54, v15 offset:128")
    for p in range(3): k.ds(f"ds_read_b32 v{55+p}, v16 offset:{256+128*p}")
    if mst:
        k.ds(f"ds_read_b32 v{ST}, v14")
        for p in range(3): k.ds(f"ds_read_b32 v{ST+2+p}, v14 offset:{256+128*p}")
    k.e("v_lshlrev_b32 v10, 4, v1",
        "s_lshl_b32 s36, s26, 2", "s_lshl_b32 s37, s28, 1", "s_add_u32 s36, s36, s37", "s_lshl_b32 s36, s36, 16",
        "s_lshl_b32 s37, s25, 1", "s_add_u32 s37, s37, s27", "s_lshl_b32 s37, s37, 10", "s_add_u32 s36, s36, s37")
    k.e("v_lshrrev_b32 v17, 4, v11", "v_lshlrev_b32 v17, 16, v17", "v_lshl_add_u32 v17, v12, 8, v17", "v_and_b32 v18, 15, v11", "v_lshl_add_u32 v17, v18, 4, v17")
    k.wait_lg_all()
    for i in range(5): k.e(f"v_add_f32 v{ST+i}, v{ST+i}, v{53+i}")
    if pre_store: pre_store()
    row_stats(k, ST, ST+1, 58, 59, 60)
    k.e("s_mul_i32 s37, s24, 640", "s_add_u32 s37, s37, 2560", "v_add_u32 v14, s37, v13", "v_sub_f32 v58, 0, v58")
    k.ds(f"ds_write_b32 v14, v{ST+2}"); k.ds(f"ds_write_b32 v14, v{ST+3} offset:128")
    k.ds("ds_write_b32 v14, v58 offset:256"); k.ds("ds_write_b32 v14, v59 offset:384")
    k.e("v_lshlrev_b32 v15, 4, v12", "v_add_u32 v15, s37, v15", f"v_mul_f32 v60, 0x{f2u(0.25*LOG2E):08x}, v59")
    k.wait_lg_all()
    B0 = 112
    for i in range(4):
        for gq in range(4): k.ds(f"ds_read_b128 v[{B0+16*i+4*gq}:{B0+16*i+4*gq+3}], v15 offset:{128*i + 32*gq}", ("bc", i))
    for p, (scale, base) in enumerate(((60, WS_QF), (59, WS_KF))):
        a = ACC + 16*p
        k.wait_lg(("bc", p))
        for r in range(16): k.e(f"v_fmac_f32 v{a+r}, v58, v{B0+16*p+r}")
        for r in range(16): k.e(f"v_mul_f32 v{a+r}, v{a+r}, v{scale}")
        for j in range(2):
            d = 20 + 8*p + 4*j
            for i in range(4): k.e(f"v_cvt_pk_bf16_f32 v{d+i}, v{a+8*j+2*i}, v{a+8*j+2*i+1}")
            k.e(f"s_add_u32 s37, s36, 0x{base + j*65536:x}")
            k.vmem(f"buffer_store_dwordx4 v[{d}:{d+3}], v10, s[{SWS}:{SWS+3}], s37 offen {sc1}", "st")
    a = ACC + 32
    k.wait_lg(("bc", 3))
    for r in range(16): k.e(f"v_fmac_f32 v{a+r}, v{ST+4}, v{B0+32+r}")
    for r in range(16): k.e(f"v_mul_f32 v{a+r}, v{a+r}, v{B0+48+r}")
    k.e(f"s_add_u32 s37, s36, 0x{WS_VF:x}")
    for j in range(2):
        d = 36 + 4*j
        for i in range(4): k.e(f"v_cvt_pk_bf16_f32 v{d+i}, v{a+8*j+2*i}, v{a+8*j+2*i+1}")
        k.vmem(f"buffer_store_dwordx4 v[{d}:{d+3}], v17, s[{SWS}:{SWS+3}], s37 offen offset:{512*j} {sc1}", "st")

def e3s_body(k, SX=8, SG=12, SU=16, SWS=20, st_sc1="", epi_prio=None, post_loop=None, hooks=None, pre_hooks=None, rot=False, outb=48, pre_dma=None, mst=False, rper=4, dper=1):
    XB = 49152
    k.e("v_and_b32 v1, 63, v0", "v_lshrrev_b32 v10, 6, v0", "s_nop 0", "v_readfirstlane_b32 s24, v10")
    k.e("v_and_b32 v11, 31, v1", "v_lshrrev_b32 v12, 5, v1")
    k.e("s_and_b32 s27, s24, 1", "s_lshr_b32 s28, s24, 1")
    k.e("v_lshrrev_b32 v13, 3, v1", "v_lshrrev_b32 v14, 4, v1", "v_and_b32 v15, 7, v1",
        "v_xor_b32 v7, v15, v14", "v_lshlrev_b32 v7, 4, v7", "v_lshl_add_u32 v7, v13, 10, v7",
        "s_lshl_b32 s29, s25, 17", "s_lshl_b32 s30, s24, 15", "s_add_u32 s29, s29, s30",
        "v_add_u32 v7, s29, v7", "v_xor_b32 v8, 64, v7", "v_add_u32 v8, 8192, v8")
    k.e("v_lshlrev_b32 v13, 2, v14", "v_and_b32 v15, 15, v1", "v_xor_b32 v9, v15, v13", "v_lshlrev_b32 v9, 4, v9",
        "s_lshl_b32 s30, s24, 3", "v_add_u32 v13, s30, v14", "v_mul_u32_u24 v13, 3584, v13", "v_add_u32 v9, v9, v13",
        "s_lshl_b32 s30, s26, 8", "v_add_u32 v9, s30, v9")
    k.e(f"s_lshl_b32 s31, s24, 12", f"s_add_u32 s31, s31, {XB}", "s_lshl_b32 s32, s24, 11")
    def xd(v):
        if rot:
            return [dmab(SX, 7 + (i & 1), 31, (v % 2)*16384 + i*1024, 33, 51, (i >> 1)*16384, ("X", v),
                         post=(["s_add_u32 s51, s51, 128", "s_and_b32 s51, s51, 1023"] if i == 3 else ())) for i in range(4)]
        return [dma(SX, 7 + (i & 1), 31, (v % 2)*16384 + i*1024, 33, v*128 + (i >> 1)*16384, ("X", v)) for i in range(4)]
    def wd(u):
        out = []
        for i in range(2):
            for p, sr in enumerate((SG, SU)):
                if rot:
                    out.append(dmab(sr, 9, 32, (u % 3)*16384 + p*8192 + i*1024, 33, 50, 4*i*3584, ("W", u),
                                    post=(rot_adv(50, 32*3584, 512*3584, 52) if (i, p) == (1, 1) else ())))
                else:
                    out.append(dma(sr, 9, 32, (u % 3)*16384 + p*8192 + i*1024, 33, (u*32 + 4*i)*3584, ("W", u)))
        return out
    if rot:
        k.e("s_lshl_b32 s51, s53, 7", f"s_mul_i32 s50, s53, {64*3584}")
    if pre_dma: pre_dma()
    if DBG1.get("wfirst"): emit_groups(k, wd(0) + xd(0) + wd(1))
    else: emit_groups(k, xd(0) + wd(0) + wd(1))
    if DBG1.get("touch3"):
        Lu = k.newlabel("tu"); Lx = k.newlabel("tx")
        k.e("v_lshrrev_b32 v66, 1, v1", "s_lshl_b32 s36, s28, 5", "v_add_u32 v66, s36, v66", "v_mul_u32_u24 v66, 3584, v66", "v_and_b32 v67, 1, v1",
            "v_lshl_add_u32 v66, v67, 7, v66", "s_lshl_b32 s36, s26, 8", "v_add_u32 v66, s36, v66", "s_cmp_eq_u32 s27, 0", f"s_cbranch_scc0 {Lu}")
        k.vmem(f"buffer_load_dword v63, v66, s[{SG}:{SG+3}], s50 offen", "touch")
        k.e(f"s_branch {Lx}")
        k.label(Lu)
        k.e(f"buffer_load_dword v63, v66, s[{SU}:{SU+3}], s50 offen")
        k.label(Lx)
    k.e("s_xor_b32 s34, s27, s28")
    k.e("s_lshl_b32 s36, s27, 6", "v_add_u32 v13, s36, v11", "v_bfe_u32 v14, v13, 1, 3", "v_xor_b32 v14, v14, v12",
        "v_lshlrev_b32 v14, 4, v14", "v_lshl_add_u32 v2, v13, 7, v14", f"v_add_u32 v2, {XB}, v2",
        "s_lshl_b32 s35, s34, 5", "v_xor_b32 v2, s35, v2",
        "v_xor_b32 v3, 32, v2", "v_xor_b32 v4, 64, v2", "v_xor_b32 v5, 96, v2")
    k.e("v_bfe_u32 v15, v1, 2, 2", "v_lshl_add_u32 v13, v12, 3, v15", "v_lshlrev_b32 v6, 8, v13",
        "v_bfe_u32 v13, v1, 4, 1", "v_lshlrev_b32 v13, 1, v13", "v_bfe_u32 v14, v1, 1, 1", "v_add_u32 v13, v13, v14",
        "s_lshl_b32 s36, s28, 3", "v_add_u32 v13, s36, v13", "v_lshlrev_b32 v15, 2, v15",
        "v_xor_b32 v13, v13, v15", "v_lshl_add_u32 v6, v13, 4, v6", "v_and_b32 v14, 1, v1", "v_lshl_add_u32 v6, v14, 3, v6",
        "s_lshl_b32 s35, s34, 12", "v_xor_b32 v6, s35, v6",
        "v_xor_b32 v10, 64, v6", "v_xor_b32 v72, 4096, v6", "v_xor_b32 v73, 4096, v10")
    k.e(f"s_mov_b32 s{ONES}, 0x3f803f80")
    ST = 64
    for i in range(8): k.e(f"v_mov_b32 v{ST+i}, 0")
    SEL = 76; MA = 80
    if mst: sel_init(k, SEL, 13)
    ACC = 128
    def fr(st): return 16 + 24*st
    def acc(part, b, tb): return ACC + 16*(part*4 + b*2 + tb)
    def reads(g, st):
        b0 = fr(st); u = g >> 1; v = g >> 2
        def wr(part, b):
            d = b0 + 8 + 8*part + 4*b
            o = (u % 3)*16384 + part*8192
            av = ((6, 10), (72, 73))[g & 1][b]
            return [(f"ds_read_b64_tr_b16 v[{d}:{d+1}], v{av} offset:{o}", f"W{part}{b}"),
                    (f"ds_read_b64_tr_b16 v[{d+2}:{d+3}], v{av} offset:{o+1024}", f"W{part}{b}")]
        def xr(tb): return [(f"ds_read_b128 v[{b0+4*tb}:{b0+4*tb+3}], v{2 + (g & 3)} offset:{(v % 2)*16384 + tb*4096}", f"X{tb}")]
        return xr(0) + wr(0, 0) + xr(1) + wr(0, 1) + wr(1, 0) + wr(1, 1)
    def mfmas(g, st):
        out = []
        b0 = fr(st)
        for part in range(2):
            for b in range(2):
                for tb in range(2):
                    a = acc(part, b, tb); w = b0 + 8 + 8*part + 4*b; x = b0 + 4*tb
                    c = "0" if g == 0 else f"v[{a}:{a+15}]"
                    out.append((f"{MF} v[{a}:{a+15}], v[{w}:{w+3}], v[{x}:{x+3}], {c}", [f"X{tb}", f"W{part}{b}"]))
        if mst == 2 and (g & 1):
            def sm(j, src):
                a = MA + 4*j
                return f"{MF16} v[{a}:{a+3}], v[{src}:{src+3}], v[{SEL}:{SEL+3}], " + ("0" if g == 1 else f"v[{a}:{a+3}]")
            def sq(n):
                tb, i = n & 1, n >> 1
                t = 108 + 2*(n & 1); r = b0 + 4*tb + i; a = ST + 2*tb
                return (f"\nv_lshlrev_b32 v{t}, 16, v{r}\nv_and_b32 v{t+1}, 0xffff0000, v{r}\nv_pk_fma_f32 v[{a}:{a+1}], v[{t}:{t+1}], v[{t}:{t+1}], v[{a}:{a+1}]")
            o2 = []
            for j in range(4):
                part, b = j >> 1, j & 1
                o2.append((sm(2 + j, b0 + 8 + 8*part + 4*b), [f"W{part}{b}"]))
                for tb in range(2):
                    t, used = out[2*j + tb]
                    o2.append((t + sq(2*j + tb), used + ["X0", "X1"] if False else used + [f"X{(2*j+tb) & 1}"]))
            o2.append((sm(0, b0), ["X0"])); o2.append((sm(1, b0 + 4), ["X1"]))
            out = o2
        return out
    def fill0(u):
        b0 = fr(0); out = []
        if mst:
            def sm(j, src, nm):
                a = MA + 4*j
                return (f"{MF16} v[{a}:{a+3}], v[{src}:{src+3}], v[{SEL}:{SEL+3}], " + ("0" if u == 0 else f"v[{a}:{a+3}]"), nm)
            d2 = [(f"v_dot2_f32_bf16 v{ST+2*tb+1}, v{b0+4*tb+i}, v{b0+4*tb+i}, v{ST+2*tb+1}", f"X{tb}") for i in range(4) for tb in range(2)]
            sms = [sm(0, b0, "X0"), sm(1, b0+4, "X1")] + [sm(2 + 2*part + b, b0 + 8 + 8*part + 4*b, f"W{part}{b}") for part in range(2) for b in range(2)]
            for j in range(8):
                if j < 6: out.append(sms[j])
                out.append(d2[j])
            return out
        for i in range(4):
            for tb in range(2):
                x = b0 + 4*tb + i
                out.append((f"v_dot2_f32_bf16 v{ST+2*tb}, v{x}, s{ONES}, v{ST+2*tb}", f"X{tb}"))
                out.append((f"v_dot2_f32_bf16 v{ST+2*tb+1}, v{x}, v{x}, v{ST+2*tb+1}", f"X{tb}"))
            for part in range(2):
                for b in range(2):
                    w = b0 + 8 + 8*part + 4*b + i
                    out.append((f"v_dot2_f32_bf16 v{ST+4+2*part+b}, v{w}, s{ONES}, v{ST+4+2*part+b}", f"W{part}{b}"))
        return out
    def dmas(u):
        out = []
        if u + 2 < 16: out += wd(u + 2)
        if u % 2 == 0 and u//2 + 1 < 8: out += xd(u//2 + 1)
        return out
    k.stamp(1)
    if DBG1.get("fine"): pre_hooks = {0: lambda: k.stamp(2), 2: lambda: k.stamp(3), 4: lambda: k.stamp(4), 8: lambda: k.stamp(5)}
    gemm2(k, 16, mfmas, reads, dmas, lambda u: [("W", u), ("X", u >> 1)], fill0=(None if (DBG1.get("nostat3") or mst == 2) else fill0), rper=rper, dper=dper, hooks=hooks, pre_hooks=pre_hooks)
    k.stamp(6 if DBG1.get("fine") else 2)
    if epi_prio is not None: k.e(f"s_setprio {epi_prio}")
    if mst == 2: k.e(f"v_add_f32 v{ST+1}, v{ST}, v{ST+1}", f"v_add_f32 v{ST+3}, v{ST+2}, v{ST+3}")
    k.e("s_nop 2")
    if mst: half_sum(k, [ST+1, ST+3], [104, 105])
    else: half_sum(k, [ST+i for i in range(8)], [76+i for i in range(8)])
    SBASE = 73728
    k.e("s_barrier", "s_lshl_b32 s36, s24, 10", "v_lshlrev_b32 v13, 2, v11", "v_add_u32 v14, s36, v13", f"v_add_u32 v14, {SBASE}, v14")
    if mst:
        k.ds(f"ds_write_b32 v14, v{ST+1} offset:128"); k.ds(f"ds_write_b32 v14, v{ST+3} offset:384")
        k.e(f"s_add_u32 s36, s36, {SBASE}")
        sel_write(k, [(MA, 0), (MA+4, 256)] + [(MA+8+4*i, 512+128*i) for i in range(4)], 36, 15, 16)
    else:
        for i in range(8): k.ds(f"ds_write_b32 v14, v{ST+i} offset:{128*i}")
    k.e("v_xor_b32 v15, 2048, v14", "v_xor_b32 v16, 1024, v14")
    k.wait_lg_all()
    k.e("s_barrier")
    for i in range(4): k.ds(f"ds_read_b32 v{76+i}, v15 offset:{128*i}")
    for i in range(4, 8): k.ds(f"ds_read_b32 v{76+i}, v16 offset:{128*i}")
    if mst:
        for i in (0, 2, 4, 5, 6, 7): k.ds(f"ds_read_b32 v{ST+i}, v14 offset:{128*i}")
    if post_loop: post_loop()
    k.wait_lg_all()
    for i in range(8): k.e(f"v_add_f32 v{ST+i}, v{ST+i}, v{76+i}")
    for tb in range(2):
        row_stats(k, ST+2*tb, ST+2*tb+1, 84+tb, 86+tb, 88+tb)
    k.e("s_nop 0")
    for tb in range(2):
        k.e(f"v_mul_f32 v{88+tb}, v{88+tb}, v{86+tb}",
            f"v_mul_f32 v{86+tb}, 0x{f2u(-LOG2E):08x}, v{86+tb}", f"v_sub_f32 v{84+tb}, 0, v{84+tb}")
    k.e("s_lshl_b32 s36, s24, 9", f"s_add_u32 s36, s36, {SBASE + 4096}", "v_add_u32 v14, s36, v13", "v_lshlrev_b32 v15, 4, v12", "v_add_u32 v15, s36, v15")
    for i in range(4): k.ds(f"ds_write_b32 v14, v{ST+4+i} offset:{128*i}")
    k.wait_lg_all()
    CB = 16
    k.e("v_lshlrev_b32 v10, 4, v1",
        "s_lshl_b32 s36, s25, 2", "s_lshl_b32 s37, s27, 1", "s_add_u32 s36, s36, s37", "s_mul_i32 s36, s36, 112",
        "s_lshl_b32 s37, s26, 3", "s_add_u32 s36, s36, s37", "s_lshl_b32 s37, s28, 2", "s_add_u32 s36, s36, s37",
        "s_lshl_b32 s36, s36, 10", f"s_add_u32 s36, s36, 0x{WS_HF:x}")
    CR = [92, 16]
    for b in range(2):
        for part in range(2):
            for gq in range(4):
                d = CR[b] + 16*part + 4*gq
                k.ds(f"ds_read_b128 v[{d}:{d+3}], v15 offset:{128*(2*part + b) + 32*gq}", ("bc", b))
    n = 0
    for b in range(2):
        k.wait_lg(("bc", b))
        for tb in range(2):
            g = acc(0, b, tb); uu = acc(1, b, tb)
            for r in range(16): k.e(f"v_fmac_f32 v{g+r}, v{84+tb}, v{CR[b]+r}")
            for r in range(16): k.e(f"v_mul_f32 v{g+r}, v{g+r}, v{86+tb}")
            for r in range(16): k.e(f"v_exp_f32 v{g+r}, v{g+r}")
            for r in range(16): k.e(f"v_fmac_f32 v{uu+r}, v{84+tb}, v{CR[b]+16+r}")
            for r in range(16): k.e(f"v_fma_f32 v{g+r}, v{g+r}, v{88+tb}, v{88+tb}")
            for r in range(16): k.e(f"v_rcp_f32 v{g+r}, v{g+r}")
            k.e("s_nop 0")
            for r in range(16): k.e(f"v_mul_f32 v{g+r}, v{g+r}, v{uu+r}")
            for j in range(2):
                d = outb + 4*(n % 4); n += 1
                for i in range(4): k.e(f"v_cvt_pk_bf16_f32 v{d+i}, v{g+8*j+2*i}, v{g+8*j+2*i+1}")
                k.e(f"s_add_u32 s37, s36, {(tb*112 + b*2 + j)*1024}")
                k.vmem(f"buffer_store_dwordx4 v[{d}:{d+3}], v10, s[{SWS}:{SWS+3}], s37 offen {st_sc1}", "st")

def prep_role(k, SWS, s_idx, nwg, flags=True):
    per = (1 << 21) // nwg
    k.e("v_mov_b32 v40, -1", "v_mov_b32 v41, -1", "v_mov_b32 v42, -1", "v_mov_b32 v43, -1", "v_lshlrev_b32 v48, 4, v0",
        f"s_mul_i32 s34, s{s_idx}, {per}", f"s_add_u32 s34, s34, 0x{WS_OF:x}")
    for i in range(per // 4096):
        k.vmem(f"buffer_store_dwordx4 v[40:43], v48, s[{SWS}:{SWS+3}], s34 offen", "prep")
        k.e("s_add_u32 s34, s34, 4096")
    if flags:
        Lp = k.newlabel("prep")
        k.e("v_mov_b32 v44, 0", "v_mov_b32 v45, 0", "v_mov_b32 v46, 0", "v_mov_b32 v47, 0", f"s_mov_b32 s34, 0x{FLG_H:x}",
            f"s_lshl_b32 s35, s{s_idx}, 12", "s_add_u32 s34, s34, s35", f"s_cmp_ge_u32 s{s_idx}, 2", f"s_cbranch_scc1 {Lp}")
        k.vmem(f"buffer_store_dwordx4 v[44:47], v48, s[{SWS}:{SWS+3}], s34 offen", "prep", opt=True)
        k.label(Lp)

def k1s_kernel(name="k1_proj_kernel", map1=1, prio_a=None, prio_g=None, rot=0, **kw):
    k = KV(name, nvgpr=256)
    k.e("s_cmp_ge_u32 s2, 512", f"s_cbranch_scc1 L_end_{k.name}")
    fx = srd(k, 8, 0, SZ_X) + srd(k, 20, 72, WS_SIZE2)
    k.e("s_cmp_ge_u32 s2, 256", "s_cbranch_scc1 L_k1_g")
    fx1 = srd(k, 12, 8, SZ_WQKV)
    k.e("s_waitcnt lgkmcnt(0)"); k.e(*(fx + fx1))
    if prio_a is not None: k.e(f"s_setprio {prio_a}")
    if map1 == 0: k.e("s_and_b32 s26, s2, 7", "s_lshr_b32 s25, s2, 3")
    elif map1 == 3:
        k.e("s_and_b32 s3, s2, 7", "s_lshr_b32 s4, s2, 3", "s_and_b32 s5, s3, 1", "s_lshl_b32 s26, s5, 2", "s_and_b32 s5, s4, 3", "s_add_u32 s26, s26, s5",
            "s_lshr_b32 s25, s3, 1", "s_lshl_b32 s25, s25, 3", "s_lshr_b32 s5, s4, 2", "s_add_u32 s25, s25, s5")
    else: k.e("s_and_b32 s3, s2, 7", "s_lshr_b32 s4, s2, 3", "s_and_b32 s5, s4, 3", "s_lshl_b32 s25, s3, 2", "s_add_u32 s25, s25, s5", "s_lshr_b32 s26, s4, 2")
    if rot:
        if map1 == 3:
            k.e("s_and_b32 s53, s26, 3", "s_lshl_b32 s53, s53, 1", "s_add_u32 s53, s53, s25", "s_and_b32 s53, s53, 7")
        elif map1 == 1:
            k.e("s_and_b32 s53, s25, 3", "s_lshl_b32 s53, s53, 1", "s_add_u32 s53, s53, s26", "s_and_b32 s53, s53, 7")
        else:
            k.e("s_and_b32 s53, s25, 7")
    k.stamp(0)
    e1s_body(k, rot=bool(rot))
    k.wait_vm_all()
    if DBG1.get("fine"): k.stamp(7); k.stamp_out(8, 0)
    else: k.stamp(3); k.stamp_out(4, 0)
    k.wait_vm_all()
    k.e("s_endpgm")
    k.label("L_k1_g")
    k.vm = []; k.lg = []
    k.e("s_cmp_ge_u32 s2, 480", "s_cbranch_scc1 L_k1_pf")
    fx3 = srd(k, 12, 32, SZ_WG) + srd(k, 16, 40, SZ_WG)
    k.e("s_waitcnt lgkmcnt(0)"); k.e(*(fx + fx3))
    if prio_g is not None: k.e(f"s_setprio {prio_g}")
    k.e("s_sub_u32 s3, s2, 256", "s_and_b32 s92, s3, 7", "s_lshr_b32 s93, s3, 3")
    k.e("s_and_b32 s26, s92, 1", "s_mul_i32 s26, s26, 7", "s_lshr_b32 s94, s93, 2", "s_add_u32 s26, s26, s94",
        "s_lshr_b32 s25, s92, 1", "s_lshl_b32 s25, s25, 2", "s_and_b32 s95, s93, 3", "s_add_u32 s25, s25, s95")
    if rot: k.e("s_lshl_b32 s53, s95, 1", "s_add_u32 s53, s53, s94", "s_and_b32 s53, s53, 7")
    k.stamp(0)
    e3s_body(k, rot=bool(rot))
    k.wait_vm_all()
    if DBG1.get("fine"): k.stamp(7); k.stamp_out(8, 0)
    else: k.stamp(3); k.stamp_out(4, 0)
    k.wait_vm_all()
    k.e("s_endpgm")
    k.label("L_k1_pf")
    k.vm = []; k.lg = []
    fxp = srd(k, 12, 48, SZ_WD) + srd(k, 16, 16, SZ_WO)
    k.e("s_waitcnt lgkmcnt(0)"); k.e(*(fx + fxp))
    k.e("s_sub_u32 s3, s2, 480")
    prep_role(k, 20, 3, 32)
    if not DBG1.get("nopf"): prefetch_role(k, [(12, SZ_WD), (16, SZ_WO)], 3, 32)
    k.label(f"L_end_{k.name}")
    k.e("s_endpgm")
    k.emit_tails()
    return k

def k1t_kernel(name="k1_proj_kernel", prio_a=None, prio_g=None, **kw):
    k = KV(name, nvgpr=256)
    k.e("s_cmp_ge_u32 s2, 512", f"s_cbranch_scc1 L_end_{k.name}")
    fx = srd(k, 8, 0, SZ_X) + srd(k, 20, 72, WS_SIZE2)
    k.e("s_cmp_lt_u32 s2, 256", "s_cbranch_scc1 L_k1_g")
    fx1 = srd(k, 12, 8, SZ_WQKV)
    k.e("s_waitcnt lgkmcnt(0)"); k.e(*(fx + fx1))
    if prio_a is not None: k.e(f"s_setprio {prio_a}")
    k.e("s_and_b32 s3, s2, 7", "s_lshr_b32 s4, s2, 3", "s_and_b32 s4, s4, 31", "s_and_b32 s5, s3, 1", "s_lshl_b32 s26, s5, 2", "s_and_b32 s5, s4, 3", "s_add_u32 s26, s26, s5",
        "s_lshr_b32 s25, s3, 1", "s_lshl_b32 s25, s25, 3", "s_lshr_b32 s5, s4, 2", "s_add_u32 s25, s25, s5")
    k.e("s_and_b32 s53, s26, 3", "s_lshl_b32 s53, s53, 1", "s_add_u32 s53, s53, s25", "s_and_b32 s53, s53, 7")
    k.stamp(0)
    e1s_body(k, rot=True)
    k.wait_vm_all()
    if DBG1.get("fine"): k.stamp(7); k.stamp_out(8, 0)
    else: k.stamp(3); k.stamp_out(4, 0)
    k.wait_vm_all()
    k.e("s_endpgm")
    k.label("L_k1_g")
    k.vm = []; k.lg = []
    k.e("s_cmp_ge_u32 s2, 224", "s_cbranch_scc1 L_k1_pf")
    fx3 = srd(k, 12, 32, SZ_WG) + srd(k, 16, 40, SZ_WG)
    k.e("s_waitcnt lgkmcnt(0)"); k.e(*(fx + fx3))
    if prio_g is not None: k.e(f"s_setprio {prio_g}")
    k.e("s_and_b32 s92, s2, 7", "s_lshr_b32 s93, s2, 3")
    k.e("s_and_b32 s26, s92, 1", "s_mul_i32 s26, s26, 7", "s_lshr_b32 s94, s93, 2", "s_add_u32 s26, s26, s94",
        "s_lshr_b32 s25, s92, 1", "s_lshl_b32 s25, s25, 2", "s_and_b32 s95, s93, 3", "s_add_u32 s25, s25, s95")
    k.e("s_lshl_b32 s53, s95, 1", "s_add_u32 s53, s53, s94", "s_and_b32 s53, s53, 7")
    k.stamp(0)
    e3s_body(k, rot=True)
    k.wait_vm_all()
    if DBG1.get("fine"): k.stamp(7); k.stamp_out(8, 0)
    else: k.stamp(3); k.stamp_out(4, 0)
    k.wait_vm_all()
    k.e("s_endpgm")
    k.label("L_k1_pf")
    k.vm = []; k.lg = []
    fxp = srd(k, 12, 48, SZ_WD) + srd(k, 16, 16, SZ_WO)
    k.e("s_waitcnt lgkmcnt(0)"); k.e(*(fx + fxp))
    k.e("s_sub_u32 s3, s2, 224")
    prep_role(k, 20, 3, 32)
    if not DBG1.get("nopf"): prefetch_role(k, [(12, SZ_WD), (16, SZ_WO)], 3, 32)
    k.label(f"L_end_{k.name}")
    k.e("s_endpgm")
    k.emit_tails()
    return k

def kB4_kernel(name="kb_main_kernel", prio_a=None, prio_g=None, e4_prio=None, post_prio=None, osleep=2, **kw):
    k = KV(name, nvgpr=256)
    k.e("s_cmp_ge_u32 s2, 512", f"s_cbranch_scc1 L_end_{k.name}")
    fx = srd(k, 20, 72, WS_SIZE2)
    k.e("s_cmp_ge_u32 s2, 256", "s_cbranch_scc1 L_kb_g")
    k.e("s_waitcnt lgkmcnt(0)"); k.e(*fx)
    if prio_a is not None: k.e(f"s_setprio {prio_a}")
    k.e("s_and_b32 s3, s2, 7", "s_lshr_b32 s4, s2, 3", "s_and_b32 s5, s4, 3", "s_lshl_b32 s25, s3, 2", "s_add_u32 s25, s25, s5", "s_lshr_b32 s26, s4, 2")
    k.stamp(0)
    e2_body(k, st_sc1="sc1", oflag=True, **kw)
    k.wait_vm_all()
    k.stamp(3); k.stamp_out(4, 0x20000); k.wait_vm_all()
    k.e("s_endpgm")
    fb = k.fb_code
    k.label("L_kb_g")
    k.vm = []; k.lg = []
    SD, SO, SX, SOUT = 84, 88, 8, 4
    fx3 = srd(k, SD, 48, SZ_WD) + srd(k, SO, 16, SZ_WO) + srd(k, SX, 0, SZ_X) + srd(k, SOUT, 56, SZ_X)
    k.e("s_waitcnt lgkmcnt(0)"); k.e(*(fx + fx3))
    if prio_g is not None: k.e(f"s_setprio {prio_g}")
    e4 = E4F(k, SD, SO, 20, SX, SOUT, osleep=osleep)
    c = e4
    k.e("s_sub_u32 s3, s2, 256", "s_and_b32 s92, s3, 7", "s_lshr_b32 s93, s3, 3",
        f"s_and_b32 s{c.SRB}, s93, 3", "s_lshl_b32 s94, s92, 2", f"s_add_u32 s{c.SRB}, s{c.SRB}, s94", f"s_lshr_b32 s{c.SCB}, s93, 2")
    k.e("v_and_b32 v1, 63, v0", "v_lshrrev_b32 v10, 6, v0", "s_nop 0", "v_readfirstlane_b32 s24, v10", "s_nop 3")
    k.stamp(0)
    e4.setup()
    e4.e4_prio = e4_prio; e4.post_prio = post_prio
    e4.body(pre_issued=False, st=(1, 2), hwait=False)
    k.wait_vm_all()
    k.stamp(4); k.stamp_out(5, 0x40000); k.wait_vm_all()
    k.label(f"L_end_{k.name}")
    k.e("s_endpgm")
    fb()
    k.emit_tails()
    return k
```

```python
import sys
sys.path.insert(0, "gen")
from eng import *
import eng, haz

FLG_GO = FLG + 0x8000

EPCONST = [False]
def epoch_issue_all(k, vd):
    if EPCONST[0]: return
    k.e(f"v_mov_b32 v{vd+2}, 0")
    k.vmem(f"global_load_dwordx2 v[{vd}:{vd+1}], v{vd+2}, s[{SDBG}:{SDBG+1}] sc1", "ep")

def epoch_check_all(k, vd):
    if EPCONST[0]:
        k.e(f"s_mov_b32 s{SEP}, 0x13572469", f"s_mov_b32 s{SEP+1}, 0x2468ace1"); return
    Ls = k.newlabel("eps"); Lc = k.newlabel("epc")
    k.wait_vm("ep")
    k.e(f"v_readfirstlane_b32 s{SEP}, v{vd}", f"v_readfirstlane_b32 s{SEP+1}, v{vd+1}", "s_nop 3", f"s_cmp_eq_u32 s{SEP}, 0", f"s_cbranch_scc1 {Ls}")
    k.label(Lc)
    def tail():
        k.label(Ls)
        k.e(f"s_mov_b32 s{SCNT}, 0")
        k.label(Ls + "_l")
        k.e(f"global_load_dwordx2 v[{vd}:{vd+1}], v{vd+2}, s[{SDBG}:{SDBG+1}] sc1", f"s_add_u32 s{SCNT}, s{SCNT}, 1", "s_waitcnt vmcnt(0)",
            f"v_readfirstlane_b32 s{SEP}, v{vd}", f"v_readfirstlane_b32 s{SEP+1}, v{vd+1}", "s_nop 3", f"s_cmp_lg_u32 s{SEP}, 0", f"s_cbranch_scc1 {Lc}",
            "s_sleep 2", f"s_cmp_lt_u32 s{SCNT}, 0x{SPIN_MAX:x}", f"s_cbranch_scc1 {Ls}_l", f"s_branch {Lc}")
    k.tails.append(tail)

def tag_check(k, issue, tagregs, name, zero):
    Ls = k.newlabel(name + "s"); Lc = k.newlabel(name + "c")
    def cmp():
        k.e(f"v_cmp_eq_u32 vcc, s{SEP}, v{tagregs[0]}")
        for r in tagregs[1:]:
            k.e(f"v_cmp_eq_u32 s[36:37], s{SEP}, v{r}", "s_nop 1", "s_and_b64 vcc, vcc, s[36:37]")
        k.e("s_cmp_eq_u64 vcc, -1")
    cmp()
    k.e(f"s_cbranch_scc0 {Ls}")
    k.label(Lc)
    zero()
    def tail():
        k.label(Ls)
        k.e(f"s_mov_b32 s{SCNT}, 0")
        k.label(Ls + "_l")
        sv = (k.vm, k.lg)
        issue()
        k.vm, k.lg = sv
        k.e(f"s_add_u32 s{SCNT}, s{SCNT}, 1", "s_waitcnt vmcnt(0)")
        cmp()
        k.e(f"s_cbranch_scc1 {Lc}", "s_sleep 1", f"s_cmp_lt_u32 s{SCNT}, 0x{SPIN_MAX:x}", f"s_cbranch_scc1 {Ls}_l", f"s_branch {Lc}")
    k.tails.append(tail)

def row_job2(k, s_job, srd_x, srd_ws):
    k.e("v_and_b32 v1, 63, v0", "v_lshrrev_b32 v2, 6, v0", f"s_lshl_b32 s40, s{s_job}, 14",
        "v_lshlrev_b32 v3, 12, v2", "v_lshl_add_u32 v3, v1, 4, v3", "v_add_u32 v3, s40, v3")
    for j in range(4):
        k.vmem(f"buffer_load_dwordx4 v[{4+4*j}:{7+4*j}], v3, s[{srd_x}:{srd_x+3}], 0 offen offset:{1024*j}", "rj")
    k.e("v_bfe_u32 v72, v1, 1, 2", "v_cmp_eq_u32 s[42:43], 1, v72", "v_cmp_eq_u32 s[44:45], 2, v72", "v_cmp_eq_u32 s[46:47], 3, v72")
    k.wait_vm("rj")
    epoch_issue_all(k, 74)
    for j in range(4):
        for i in range(4):
            k.e(f"v_lshlrev_b32 v{32+8*j+2*i}, 16, v{4+4*j+i}", f"v_and_b32 v{33+8*j+2*i}, 0xffff0000, v{4+4*j+i}")
    for j in range(4):
        b = 32 + 8*j
        k.e(f"v_add_f32 v{20+j}, v{b}, v{b+1}")
    for i in range(2, 8):
        for j in range(4):
            k.e(f"v_add_f32 v{20+j}, v{20+j}, v{32+8*j+i}")
    allreduce(k, [20, 21, 22, 23], [24, 25, 26, 27])
    for j in range(4): k.e(f"v_mul_f32 v{20+j}, 0x3b000000, v{20+j}")
    for i in range(8):
        for j in range(4): k.e(f"v_sub_f32 v{32+8*j+i}, v{32+8*j+i}, v{20+j}")
    for j in range(4): k.e(f"v_mul_f32 v{28+j}, v{32+8*j}, v{32+8*j}")
    for i in range(1, 8):
        for j in range(4): k.e(f"v_fmac_f32 v{28+j}, v{32+8*j+i}, v{32+8*j+i}")
    allreduce(k, [28, 29, 30, 31], [24, 25, 26, 27])
    k.e("v_cndmask_b32 v64, v20, v21, s[42:43]", "v_cndmask_b32 v65, v28, v29, s[42:43]",
        "v_cndmask_b32 v64, v64, v22, s[44:45]", "v_cndmask_b32 v65, v65, v30, s[44:45]",
        "v_cndmask_b32 v64, v64, v23, s[46:47]", "v_cndmask_b32 v65, v65, v31, s[46:47]")
    k.e("v_mov_b32 v66, 0x3727c5ac", "v_fmac_f32 v66, 0x3b000000, v65",
        "v_rsq_f32 v67, v66", "v_sub_f32 v64, 0, v64",
        "v_mul_f32 v68, v66, v67",
        "v_cvt_pk_bf16_f32 v69, v64, v64", "s_nop 0", "v_and_b32 v69, 0xffff0000, v69", "v_sub_f32 v70, v64, v69",
        "v_cvt_pk_bf16_f32 v69, v70, v70", "s_nop 0", "v_and_b32 v69, 0xffff0000, v69", "v_sub_f32 v71, v70, v69",
        "v_cvt_pk_bf16_f32 v4, v64, v70", "v_cvt_pk_bf16_f32 v6, v71, v64",
        "v_and_b32 v72, 1, v1", "v_cmp_eq_u32 vcc, 1, v72", "v_mov_b32 v5, v4")
    k.e(f"s_lshl_b32 s40, s{s_job}, 9", "v_lshlrev_b32 v3, 7, v2", "v_lshl_add_u32 v3, v1, 4, v3", "v_add_u32 v3, s40, v3")
    epoch_check_all(k, 74)
    k.e(f"v_mov_b32 v7, s{SEP}",
        "v_cndmask_b32 v4, v4, v67, vcc", "v_cndmask_b32 v5, v5, v68, vcc", "v_cndmask_b32 v6, v6, v7, vcc")
    k.e("v_cmp_gt_u32 vcc, 8, v1", "s_and_saveexec_b64 s[42:43], vcc")
    k.vmem(f"buffer_store_dwordx4 v[4:7], v3, s[{srd_ws}:{srd_ws+3}], 0 offen offset:{WS_TOK} sc1", "st")
    k.e("s_mov_b64 exec, s[42:43]")

def col_job2(k, s_job, srd_w, s_ld, s_col0b, srd_ws, s_half=None, mid=None):
    NL = 16 if s_half is None else 8
    k.e("v_and_b32 v1, 63, v0", "v_lshrrev_b32 v2, 6, v0", "v_lshrrev_b32 v3, 3, v1", f"v_lshl_add_u32 v3, v2, {7 if s_half is None else 6}, v3")
    if s_half is not None: k.e(f"s_lshl_b32 s40, s{s_half}, 8", "v_add_u32 v3, s40, v3")
    k.e(
        f"v_mul_lo_u32 v3, v3, s{s_ld}", "v_and_b32 v4, 7, v1", "v_lshl_add_u32 v3, v4, 4, v3", f"v_add_u32 v3, s{s_col0b}, v3",
        f"s_lshl_b32 s41, s{s_ld}, 3", "s_mov_b32 s40, 0")
    for i in range(NL):
        k.vmem(f"buffer_load_dwordx4 v[{8+4*i}:{11+4*i}], v3, s[{srd_w}:{srd_w+3}], s40 offen", ("cj", i))
        if i < NL - 1: k.e("s_add_u32 s40, s40, s41")
    LB = 32768 if mid else 0
    if mid:
        epoch_issue_all(k, 74); mid()
    k.e("s_mov_b32 s42, 0x00003f80", "s_mov_b32 s43, 0x3f800000")
    A = 80
    for i in range(8): k.e(f"v_mov_b32 v{A+i}, 0")
    for i in range(NL):
        k.wait_vm(("cj", i))
        if i == NL - 1 and not mid: epoch_issue_all(k, 74)
        for d in range(4):
            k.e(f"v_dot2_f32_bf16 v{A+2*d}, v{8+4*i+d}, s42, v{A+2*d}", f"v_dot2_f32_bf16 v{A+1+2*d}, v{8+4*i+d}, s43, v{A+1+2*d}")
    k.e("s_nop 2")
    for i in range(8): k.e(f"v_add_f32_dpp v{A+i}, v{A+i}, v{A+i} row_ror:8 row_mask:0xf bank_mask:0xf")
    k.e("v_lshrrev_b32 v5, 4, v1", "v_lshl_add_u32 v5, v2, 2, v5", "v_lshlrev_b32 v5, 8, v5", "v_lshl_add_u32 v5, v4, 5, v5",
        "v_and_b32 v6, 15, v1", "v_cmp_gt_u32 vcc, 8, v6", "s_and_saveexec_b64 s[44:45], vcc")
    k.ds(f"ds_write_b128 v5, v[{A}:{A+3}] offset:{LB}")
    k.ds(f"ds_write_b128 v5, v[{A+4}:{A+7}] offset:{LB+16}")
    k.e("s_mov_b64 exec, s[44:45]")
    k.wait_lg_all()
    k.e("s_barrier")
    k.e("v_lshlrev_b32 v5, 2, v1")
    for p in range(16): k.ds(f"ds_read_b32 v{8+p}, v5 offset:{LB+256*p}")
    k.wait_lg_all()
    for st in (8, 4, 2, 1):
        for p in range(st): k.e(f"v_add_f32 v{8+p}, v{8+p}, v{8+p+st}")
    k.e("s_nop 0",
        "v_cvt_pk_bf16_f32 v12, v8, v8", "s_nop 0", "v_and_b32 v9, 0xffff0000, v12", "v_sub_f32 v9, v8, v9",
        "v_cvt_pk_bf16_f32 v13, v9, v9", "s_nop 0", "v_and_b32 v10, 0xffff0000, v13", "v_sub_f32 v10, v9, v10",
        "v_cvt_pk_bf16_f32 v14, v8, v10",
        f"s_lshl_b32 s40, s{s_job}, 10", "v_lshlrev_b32 v5, 4, v1", "v_add_u32 v5, s40, v5", f"s_mov_b32 s40, {WS_COL}")
    if s_half is not None: k.e(f"s_mul_i32 s41, s{s_half}, {COL2}", "s_add_u32 s40, s40, s41")
    epoch_check_all(k, 74)
    k.e(f"v_mov_b32 v15, s{SEP}", "v_cmp_gt_u32 vcc, 64, v0", "s_and_saveexec_b64 s[44:45], vcc")
    Lx = k.newlabel("cjx")
    k.e(f"s_cbranch_execz {Lx}")
    k.vmem(f"buffer_store_dwordx4 v[12:15], v5, s[{srd_ws}:{srd_ws+3}], s40 offen sc1", "st", opt=True)
    k.label(Lx)
    k.e("s_mov_b64 exec, s[44:45]")
    k.e("s_barrier")

def stats_role2(k, SWQ=28, xal=False):
    Lc = k.newlabel("stc"); Ld = k.newlabel("std"); Lg = k.newlabel("stg")
    k.e("s_cmp_ge_u32 s3, 208", f"s_cbranch_scc1 {Ld}", "s_cmp_ge_u32 s3, 128", f"s_cbranch_scc1 {Lc}")
    if xal:
        k.e("s_and_b32 s96, s3, 7", "s_lshr_b32 s97, s3, 3", "s_lshl_b32 s96, s96, 4", "s_add_u32 s98, s96, s97")
    else: k.e("s_mov_b32 s98, s3")
    row_job2(k, 98, 8, 20)
    k.e(f"s_branch {Ld}")
    k.label(Lc)
    v0 = list(k.vm)
    k.vm = []; k.lg = []
    k.e("s_sub_u32 s98, s3, 128")
    if xal:
        La = k.newlabel("xa"); Lb = k.newlabel("xb")
        k.e("s_and_b32 s96, s98, 7", "s_lshr_b32 s97, s98, 3", "s_cmp_ge_u32 s97, 3", f"s_cbranch_scc1 {La}",
            "s_and_b32 s92, s96, 1", "s_lshl_b32 s92, s92, 2", "s_lshr_b32 s93, s96, 1", "s_add_u32 s92, s92, s93", "s_lshl_b32 s98, s97, 3", "s_add_u32 s98, s98, s92", f"s_branch {Lb}")
        k.label(La)
        k.e("s_lshr_b32 s92, s96, 1", "s_mul_i32 s92, s92, 7", "s_add_u32 s92, s92, s97", "s_sub_u32 s92, s92, 3",
            "s_and_b32 s93, s96, 1", "s_mul_i32 s93, s93, 7", "s_lshr_b32 s94, s92, 2", "s_add_u32 s93, s93, s94",
            "s_lshl_b32 s93, s93, 1", "s_and_b32 s94, s92, 1", "s_add_u32 s93, s93, s94",
            "s_bfe_u32 s94, s92, 0x10001", "s_mul_i32 s94, s94, 28", "s_add_u32 s98, s93, s94", "s_add_u32 s98, s98, 24")
        k.label(Lb)
    k.e(
        f"s_mov_b32 s92, s{SWQ}", f"s_mov_b32 s93, s{SWQ+1}", f"s_mov_b32 s94, {SZ_WQKV}", "s_mov_b32 s95, 0x00020000",
        "s_movk_i32 s96, 3072", "s_lshl_b32 s97, s98, 7",
        "s_cmp_lt_u32 s98, 24", f"s_cbranch_scc1 {Lg}",
        "s_mov_b32 s92, s12", "s_mov_b32 s93, s13", f"s_mov_b32 s94, {SZ_WG}", "s_movk_i32 s96, 3584",
        "s_sub_u32 s97, s98, 24", "s_lshl_b32 s97, s97, 7",
        "s_cmp_lt_u32 s98, 52", f"s_cbranch_scc1 {Lg}",
        "s_mov_b32 s92, s16", "s_mov_b32 s93, s17", "s_sub_u32 s97, s98, 52", "s_lshl_b32 s97, s97, 7")
    k.label(Lg)
    col_job2(k, 98, 92, 96, 97, 20)
    k.label(Ld)
    k.vm = [("st", True)]; k.lg = []

COL2 = 0x14000
def row_job3(k, s_job, srd_x, srd_ws, mid=None):
    k.e("v_and_b32 v1, 63, v0", "v_lshrrev_b32 v2, 6, v0", f"s_lshl_b32 s40, s{s_job}, 15", "s_movk_i32 s41, 4096",
        "v_lshlrev_b32 v3, 13, v2", "v_lshl_add_u32 v3, v1, 4, v3", "v_add_u32 v3, s40, v3")
    SRC = (4, 80)
    for b in range(2):
        for j in range(4):
            k.vmem(f"buffer_load_dwordx4 v[{SRC[b]+4*j}:{SRC[b]+3+4*j}], v3, s[{srd_x}:{srd_x+3}], {'s41' if b else '0'} offen offset:{1024*j}", ("rj", b))
    if mid:
        epoch_issue_all(k, 74); mid()
    k.e("v_bfe_u32 v72, v1, 1, 2", "v_cmp_eq_u32 s[42:43], 1, v72", "v_cmp_eq_u32 s[44:45], 2, v72", "v_cmp_eq_u32 s[46:47], 3, v72")
    k.e(f"s_lshl_b32 s40, s{s_job}, 10", "v_lshlrev_b32 v73, 8, v2", "v_lshl_add_u32 v73, v1, 4, v73", "v_add_u32 v73, s40, v73")
    for b in range(2):
        S = SRC[b]
        k.wait_vm(("rj", b))
        if b == 0 and not mid: epoch_issue_all(k, 74)
        for j in range(4):
            for i in range(4):
                k.e(f"v_lshlrev_b32 v{32+8*j+2*i}, 16, v{S+4*j+i}", f"v_and_b32 v{33+8*j+2*i}, 0xffff0000, v{S+4*j+i}")
        for j in range(4):
            bb = 32 + 8*j
            k.e(f"v_add_f32 v{20+j}, v{bb}, v{bb+1}")
        for i in range(2, 8):
            for j in range(4):
                k.e(f"v_add_f32 v{20+j}, v{20+j}, v{32+8*j+i}")
        allreduce(k, [20, 21, 22, 23], [24, 25, 26, 27])
        for j in range(4): k.e(f"v_mul_f32 v{20+j}, 0x3b000000, v{20+j}")
        for i in range(8):
            for j in range(4): k.e(f"v_sub_f32 v{32+8*j+i}, v{32+8*j+i}, v{20+j}")
        for j in range(4): k.e(f"v_mul_f32 v{28+j}, v{32+8*j}, v{32+8*j}")
        for i in range(1, 8):
            for j in range(4): k.e(f"v_fmac_f32 v{28+j}, v{32+8*j+i}, v{32+8*j+i}")
        allreduce(k, [28, 29, 30, 31], [24, 25, 26, 27])
        k.e("v_cndmask_b32 v64, v20, v21, s[42:43]", "v_cndmask_b32 v65, v28, v29, s[42:43]",
            "v_cndmask_b32 v64, v64, v22, s[44:45]", "v_cndmask_b32 v65, v65, v30, s[44:45]",
            "v_cndmask_b32 v64, v64, v23, s[46:47]", "v_cndmask_b32 v65, v65, v31, s[46:47]")
        k.e("v_mov_b32 v66, 0x3727c5ac", "v_fmac_f32 v66, 0x3b000000, v65",
            "v_rsq_f32 v67, v66", "v_sub_f32 v64, 0, v64",
            "v_mul_f32 v68, v66, v67",
            "v_cvt_pk_bf16_f32 v69, v64, v64", "s_nop 0", "v_and_b32 v69, 0xffff0000, v69", "v_sub_f32 v70, v64, v69",
            "v_cvt_pk_bf16_f32 v69, v70, v70", "s_nop 0", "v_and_b32 v69, 0xffff0000, v69", "v_sub_f32 v71, v70, v69",
            "v_cvt_pk_bf16_f32 v96, v64, v70", "v_cvt_pk_bf16_f32 v98, v71, v64",
            "v_and_b32 v72, 1, v1", "v_cmp_eq_u32 vcc, 1, v72", "v_mov_b32 v97, v96")
        if b == 0: epoch_check_all(k, 74)
        k.e(f"v_mov_b32 v99, s{SEP}", "v_and_b32 v72, 1, v1", "v_cmp_eq_u32 vcc, 1, v72", "s_nop 1",
            "v_cndmask_b32 v96, v96, v67, vcc", "v_cndmask_b32 v97, v97, v68, vcc", "v_cndmask_b32 v98, v98, v99, vcc")
        k.e("v_cmp_gt_u32 vcc, 8, v1", "s_and_saveexec_b64 s[48:49], vcc")
        k.vmem(f"buffer_store_dwordx4 v[96:99], v73, s[{srd_ws}:{srd_ws+3}], 0 offen offset:{WS_TOK + 128*b} sc1", "st")
        k.e("s_mov_b64 exec, s[48:49]", "s_nop 1")

def stats_role3(k, SWQ=28, mid=None):
    Lc = k.newlabel("stc"); Ld = k.newlabel("std"); Lg = k.newlabel("stg"); Lq = k.newlabel("stq")
    k.e("s_cmp_ge_u32 s3, 64", f"s_cbranch_scc1 {Lc}")
    k.e("s_mov_b32 s98, s3")
    row_job3(k, 98, 8, 20, mid=mid)
    k.e(f"s_branch {Ld}")
    Lf = k.newlabel("stf")
    if mid:
        k.label(Lf)
        k.vm = []; k.lg = []
        mid()
        k.e(f"s_branch {Ld}")
    k.label(Lc)
    k.vm = []; k.lg = []
    k.e("s_sub_u32 s98, s3, 64", "s_cmp_lt_u32 s3, 112", f"s_cbranch_scc1 {Lq}", "s_cmp_lt_u32 s3, 144", f"s_cbranch_scc1 {Lf if mid else Ld}", "s_sub_u32 s98, s3, 96")
    k.label(Lq)
    k.e("s_and_b32 s99, s98, 1", "s_lshr_b32 s98, s98, 1")
    k.e(
        f"s_mov_b32 s92, s{SWQ}", f"s_mov_b32 s93, s{SWQ+1}", f"s_mov_b32 s94, {SZ_WQKV}", "s_mov_b32 s95, 0x00020000",
        "s_movk_i32 s96, 3072", "s_lshl_b32 s97, s98, 7",
        "s_cmp_lt_u32 s98, 24", f"s_cbranch_scc1 {Lg}",
        "s_mov_b32 s92, s12", "s_mov_b32 s93, s13", f"s_mov_b32 s94, {SZ_WG}", "s_movk_i32 s96, 3584",
        "s_sub_u32 s97, s98, 24", "s_lshl_b32 s97, s97, 7",
        "s_cmp_lt_u32 s98, 52", f"s_cbranch_scc1 {Lg}",
        "s_mov_b32 s92, s16", "s_mov_b32 s93, s17", "s_sub_u32 s97, s98, 52", "s_lshl_b32 s97, s97, 7")
    k.label(Lg)
    col_job2(k, 98, 92, 96, 97, 20, s_half=99, mid=mid)
    k.label(Ld)
    k.vm = [("st", True), ("st", True)]; k.lg = []
    if mid: k.vm = [(("X", 0), False)]*4 + [(("W", 0), False)]*4 + [(("W", 1), False)]*4 + k.vm

PK = 0
def e1x_body(k, SX=8, SW=12, SWS=20, exit_loop=False, noex=False, wx=0, bal=False, rot=True, ux=11, pre_store=None, dup=False, rper=5, dper=2, notag=False, touch=False, fine=False):
    E1_XB = 49152
    k.e("v_and_b32 v1, 63, v0")
    k.e("v_and_b32 v11, 31, v1", "v_lshrrev_b32 v12, 5, v1")
    k.e("s_and_b32 s27, s24, 1", "s_lshr_b32 s28, s24, 1")
    k.e("v_lshrrev_b32 v13, 3, v1", "v_lshrrev_b32 v14, 4, v1", "v_and_b32 v15, 7, v1",
        "v_xor_b32 v7, v15, v14", "v_lshlrev_b32 v7, 4, v7", "v_lshl_add_u32 v7, v13, 10, v7",
        "s_lshl_b32 s29, s25, 16", "s_lshl_b32 s30, s24, 14", "s_add_u32 s29, s29, s30",
        "v_add_u32 v7, s29, v7", "v_xor_b32 v8, 64, v7", "v_add_u32 v8, 8192, v8")
    k.e("v_and_b32 v14, 1, v14", "v_lshlrev_b32 v14, 2, v14", "v_xor_b32 v9, v15, v14", "v_lshlrev_b32 v9, 4, v9",
        "s_lshl_b32 s30, s24, 3", "v_add_u32 v13, s30, v13", "v_mul_u32_u24 v13, 3072, v13", "v_add_u32 v9, v9, v13",
        f"s_xor_b32 s30, s26, {wx}", "s_lshl_b32 s30, s30, 7", "v_add_u32 v9, s30, v9")
    k.e(f"s_lshl_b32 s31, s24, 11", f"s_add_u32 s31, s31, {E1_XB}", "s_lshl_b32 s32, s24, 10")
    def xd(v):
        if rot:
            return [dmab(SX, 7, 31, (v % 3)*8192, 33, 51, 0, ("X", v)),
                    dmab(SX, 8, 31, (v % 3)*8192 + 1024, 33, 51, 0, ("X", v), post=["s_add_u32 s51, s51, 128", "s_and_b32 s51, s51, 1023"])]
        return [dma(SX, 7, 31, (v % 3)*8192, 33, v*128, ("X", v)), dma(SX, 8, 31, (v % 3)*8192 + 1024, 33, v*128, ("X", v))]
    def wd(u):
        if rot:
            return [dmab(SW, 9, 32, (u % 4)*12288 + p*4096, 33, 50, 0, ("W", u), imm=1024*p, post=(rot_adv(50, 32*3072, 512*3072, 52) if p == 2 else ())) for p in range(3)]
        return [dma(SW, 9, 32, (u % 4)*12288 + p*4096, 33, u*32*3072, ("W", u), imm=1024*p) for p in range(3)]
    if rot:
        k.e("s_lshl_b32 s51, s53, 7", f"s_mul_i32 s50, s53, {64*3072}")
    if touch:
        k.e("v_lshrrev_b32 v130, 3, v1", "v_and_b32 v131, 7, v1", "v_lshlrev_b32 v131, 7, v131", "v_lshl_add_u32 v130, v130, 10, v131",
            "s_and_b32 s34, s26, 3", "s_lshl_b32 s34, s34, 4", "s_lshl_b32 s35, s24, 2", "s_add_u32 s34, s34, s35", "s_lshl_b32 s34, s34, 10", "s_lshl_b32 s35, s25, 16", "s_add_u32 s34, s34, s35",
            "s_mov_b32 exec_hi, 0")
        k.vmem(f"buffer_load_dword v132, v130, s[{SX}:{SX+3}], s34 offen", "touch")
        k.e("s_mov_b32 exec_hi, -1")
        k.e("v_and_b32 v130, 15, v1", "v_mul_u32_u24 v130, 3072, v130", "v_lshrrev_b32 v131, 4, v1", "v_lshl_add_u32 v130, v131, 10, v130",
            "s_and_b32 s34, s25, 7", "s_lshl_b32 s34, s34, 6", "s_lshl_b32 s35, s24, 4", "s_add_u32 s34, s34, s35", "s_mul_i32 s34, s34, 3072", "s_lshl_b32 s35, s26, 7", "s_add_u32 s34, s34, s35",
            "s_mov_b32 exec_hi, 0xffff")
        k.vmem(f"buffer_load_dword v133, v130, s[{SW}:{SW+3}], s34 offen", "touch")
        k.e("s_mov_b32 exec_hi, -1")
    emit_groups(k, xd(0) + wd(0) + wd(1) + xd(1) + wd(2))
    k.e("s_lshl_b32 s36, s27, 5", "v_add_u32 v13, s36, v11", "v_bfe_u32 v14, v13, 1, 3", "v_xor_b32 v14, v14, v12",
        "v_lshlrev_b32 v14, 4, v14", "v_lshl_add_u32 v2, v13, 7, v14", f"v_add_u32 v2, {E1_XB}, v2",
        "v_xor_b32 v3, 32, v2", "v_xor_b32 v4, 64, v2", "v_xor_b32 v5, 96, v2")
    k.e("v_bfe_u32 v13, v1, 2, 2", "v_lshl_add_u32 v13, v12, 3, v13", "v_lshlrev_b32 v6, 7, v13",
        "v_bfe_u32 v13, v1, 4, 1", "v_lshlrev_b32 v13, 1, v13", "v_bfe_u32 v14, v1, 1, 1", "v_add_u32 v13, v13, v14",
        "s_lshl_b32 s36, s28, 2", "v_add_u32 v13, s36, v13", "v_bfe_u32 v14, v1, 3, 1", "v_lshlrev_b32 v14, 2, v14",
        "v_xor_b32 v13, v13, v14", "v_lshl_add_u32 v6, v13, 4, v6", "v_and_b32 v14, 1, v1", "v_lshl_add_u32 v6, v14, 3, v6",
        "v_xor_b32 v10, 2048, v6")
    k.e("s_lshl_b32 s34, s25, 6", "s_lshl_b32 s35, s27, 5", "s_add_u32 s34, s34, s35", "v_add_u32 v117, s34, v11", "v_lshlrev_b32 v117, 5, v117",
        "s_lshl_b32 s35, s26, 6", "s_lshl_b32 s36, s28, 5", "s_add_u32 s35, s35, s36", "v_add_u32 v118, s35, v11", "v_lshlrev_b32 v118, 4, v118")
    if bal: k.e(f"v_mul_u32_u24 v13, 0x{COL2:x}, v12", "v_add_u32 v118, v118, v13")
    def extras():
        k.vmem(f"buffer_load_dwordx4 v[48:51], v117, s[{SWS}:{SWS+3}], 0 offen offset:{WS_TOK} sc1", "ex")
        k.vmem(f"buffer_load_dwordx4 v[112:115], v117, s[{SWS}:{SWS+3}], 0 offen offset:{WS_TOK+16} sc1", "ex")
        for p in range(3):
            k.e(f"s_mov_b32 s36, {WS_COL + 8192*p}")
            k.vmem(f"buffer_load_dwordx4 v[{52+4*p}:{55+4*p}], v118, s[{SWS}:{SWS+3}], s36 offen sc1", "ex")
    ACC = 64
    def fr(st): return 16 + 16*st
    def reads(g, st):
        b = fr(st); u = g >> 1; v = g >> 2
        out = [(f"ds_read_b128 v[{b}:{b+3}], v{2 + (g & 3)} offset:{(v % 3)*8192}", "X")]
        av = 6 if (g & 1) == 0 else 10
        for p in range(3):
            o = (u % 4)*12288 + p*4096
            out.append((f"ds_read_b64_tr_b16 v[{b+4+4*p}:{b+5+4*p}], v{av} offset:{o}", f"W{p}"))
            out.append((f"ds_read_b64_tr_b16 v[{b+6+4*p}:{b+7+4*p}], v{av} offset:{o+512}", f"W{p}"))
        return out
    def mf(b_x, b_w, first):
        out = []
        for p in range(3):
            a = ACC + 16*p
            w = f"v[{b_w+4*p}:{b_w+4*p+3}]"; x = f"v[{b_x}:{b_x+3}]"
            A, B = (w, x) if p < 2 else (x, w)
            c = "0" if first else f"v[{a}:{a+15}]"
            out.append((f"{MF} v[{a}:{a+15}], {A}, {B}, {c}", ["X", f"W{p}"]))
        return out
    def mfmas(g, st): return mf(fr(st), fr(st) + 4, g == 0)
    def dmas(u):
        out = []
        if u + 3 < 16: out += wd(u + 3)
        if u % 2 == 0 and u//2 + 2 < 8: out += xd(u//2 + 2)
        return out
    hooks = {ux - 1: [lambda: epoch_issue_all(k, 120)], ux: [extras]}
    if noex: hooks = {}
    pre_hooks = None
    if fine: pre_hooks = {0: lambda: k.stamp(9), 1: lambda: k.stamp(10), 4: lambda: k.stamp(11), 10: lambda: k.stamp(12)}
    k.stamp(1)
    gemm2(k, 16, mfmas, reads, dmas, lambda u: [("W", u), ("X", u >> 1)], fill0=None, rper=rper, dper=dper, hooks=hooks, pre_hooks=pre_hooks)
    k.stamp(2)
    if exit_loop:
        for i in range(3, 9): k.stamp(i)
        k.stamp_out(9, 0, sh=7); k.e("s_waitcnt vmcnt(0)", "s_endpgm")
    epoch_check_all(k, 120)
    k.wait_vm("ex")
    def zero():
        for r in (51, 55, 59, 63): k.e(f"v_mov_b32 v{r}, 0")
        if bal:
            k.e("s_nop 1")
            return
        k.e("s_mov_b32 exec_lo, 0")
        for r in range(48, 64):
            if r not in (51, 55, 59, 63): k.e(f"v_mov_b32 v{r}, 0")
        k.e("s_mov_b32 exec_lo, -1", "s_nop 1")
    if notag: zero()
    else: tag_check(k, extras, [51, 114, 55, 59, 63], "x1", zero)
    for (t, _) in mf(48, 52, False): k.e(t)
    k.e("s_lshl_b32 s36, s24, 7", "v_lshlrev_b32 v13, 2, v11", "v_add_u32 v13, s36, v13")
    k.ds("ds_write_b32 v13, v112")
    k.e("v_lshlrev_b32 v13, 4, v12", "v_add_u32 v13, s36, v13")
    k.wait_lg_all()
    for gq in range(4): k.ds(f"ds_read_b128 v[{32+4*gq}:{35+4*gq}], v13 offset:{32*gq}")
    k.e(f"v_mul_f32 v113, 0x{f2u(0.25*LOG2E):08x}, v112")
    if pre_store: pre_store()
    k.e("v_lshlrev_b32 v10, 4, v1",
        "s_lshl_b32 s36, s26, 2", "s_lshl_b32 s37, s28, 1", "s_add_u32 s36, s36, s37", "s_lshl_b32 s36, s36, 16",
        "s_lshl_b32 s37, s25, 1", "s_add_u32 s37, s37, s27", "s_lshl_b32 s37, s37, 10", "s_add_u32 s36, s36, s37")
    k.e("v_lshrrev_b32 v17, 4, v11", "v_lshlrev_b32 v17, 16, v17", "v_lshl_add_u32 v17, v12, 8, v17", "v_and_b32 v18, 15, v11", "v_lshl_add_u32 v17, v18, 4, v17")
    k.e("s_nop 4")
    modes = ("sc1", "") if dup else ("sc1",)
    for p, (scale, base) in enumerate(((113, WS_QF), (112, WS_KF))):
        a = ACC + 16*p
        if PK & 2:
            for r in range(0, 16, 2): k.e(f"v_pk_mul_f32 v[{a+r}:{a+r+1}], v[{a+r}:{a+r+1}], v[112:113] op_sel:[0,{scale-112}] op_sel_hi:[1,{scale-112}]")
        else:
            for r in range(16): k.e(f"v_mul_f32 v{a+r}, v{a+r}, v{scale}")
        for j in range(2):
            d = 20 + 8*p + 4*j if p == 0 else 48 + 4*j
            for i in range(4): k.e(f"v_cvt_pk_bf16_f32 v{d+i}, v{a+8*j+2*i}, v{a+8*j+2*i+1}")
            k.e(f"s_add_u32 s37, s36, 0x{base + j*65536:x}")
            for m in modes: k.vmem(f"buffer_store_dwordx4 v[{d}:{d+3}], v10, s[{SWS}:{SWS+3}], s37 offen {m}", "st")
    k.wait_lg_all()
    a = ACC + 32
    if PK & 4:
        for r in range(0, 16, 2): k.e(f"v_pk_mul_f32 v[{a+r}:{a+r+1}], v[{a+r}:{a+r+1}], v[{32+r}:{33+r}]")
    else:
        for r in range(16): k.e(f"v_mul_f32 v{a+r}, v{a+r}, v{32+r}")
    k.e(f"s_add_u32 s37, s36, 0x{WS_VF:x}")
    for j in range(2):
        d = 56 + 4*j
        for i in range(4): k.e(f"v_cvt_pk_bf16_f32 v{d+i}, v{a+8*j+2*i}, v{a+8*j+2*i+1}")
        for m in modes: k.vmem(f"buffer_store_dwordx4 v[{d}:{d+3}], v17, s[{SWS}:{SWS+3}], s37 offen offset:{512*j} {m}", "st")

def e3x_body(k, SX=8, SG=12, SU=16, SWS=20, part=None, bal=False, fine=False, epi_prio=None, post_loop=None, rot=True, ux=11, rper=4, dper=1, pre_loop=None):
    XB = 49152
    line0 = len(k.lines)
    k.e("v_and_b32 v1, 63, v0")
    k.e("v_and_b32 v11, 31, v1", "v_lshrrev_b32 v12, 5, v1")
    k.e("s_and_b32 s27, s24, 1", "s_lshr_b32 s28, s24, 1")
    k.e("v_lshrrev_b32 v13, 3, v1", "v_lshrrev_b32 v14, 4, v1", "v_and_b32 v15, 7, v1",
        "v_xor_b32 v7, v15, v14", "v_lshlrev_b32 v7, 4, v7", "v_lshl_add_u32 v7, v13, 10, v7",
        "s_lshl_b32 s29, s25, 17", "s_lshl_b32 s30, s24, 15", "s_add_u32 s29, s29, s30",
        "v_add_u32 v7, s29, v7", "v_xor_b32 v8, 64, v7", "v_add_u32 v8, 8192, v8")
    k.e("v_lshlrev_b32 v13, 2, v14", "v_and_b32 v15, 15, v1", "v_xor_b32 v9, v15, v13", "v_lshlrev_b32 v9, 4, v9",
        "s_lshl_b32 s30, s24, 3", "v_add_u32 v13, s30, v14", "v_mul_u32_u24 v13, 3584, v13", "v_add_u32 v9, v9, v13",
        "s_lshl_b32 s30, s26, 8", "v_add_u32 v9, s30, v9")
    k.e(f"s_lshl_b32 s31, s24, 12", f"s_add_u32 s31, s31, {XB}", "s_lshl_b32 s32, s24, 11")
    def xd(v):
        if rot:
            return [dmab(SX, 7 + (i & 1), 31, (v % 2)*16384 + i*1024, 33, 51, (i >> 1)*16384, ("X", v),
                         post=(["s_add_u32 s51, s51, 128", "s_and_b32 s51, s51, 1023"] if i == 3 else ())) for i in range(4)]
        return [dma(SX, 7 + (i & 1), 31, (v % 2)*16384 + i*1024, 33, v*128 + (i >> 1)*16384, ("X", v)) for i in range(4)]
    def wd(u):
        out = []
        for i in range(2):
            for p, sr in enumerate((SG, SU)):
                if rot:
                    out.append(dmab(sr, 9, 32, (u % 3)*16384 + p*8192 + i*1024, 33, 50, 4*i*3584, ("W", u),
                                    post=(rot_adv(50, 32*3584, 512*3584, 52) if (i, p) == (1, 1) else ())))
                else:
                    out.append(dma(sr, 9, 32, (u % 3)*16384 + p*8192 + i*1024, 33, (u*32 + 4*i)*3584, ("W", u)))
        return out
    if part != "main":
        if rot:
            k.e("s_lshl_b32 s51, s53, 7", f"s_mul_i32 s50, s53, {64*3584}")
        emit_groups(k, xd(0) + wd(0) + wd(1))
    if part == "pre":
        import re
        for i in range(line0, len(k.lines)):
            k.lines[i] = re.sub(r"\bv(\d+)\b", lambda m: m.group(0) if int(m.group(1)) < 2 else f"v{int(m.group(1)) + 200}", k.lines[i])
        return
    if pre_loop: pre_loop()
    k.e("s_lshl_b32 s36, s27, 6", "v_add_u32 v13, s36, v11", "v_bfe_u32 v14, v13, 1, 3", "v_xor_b32 v14, v14, v12",
        "v_lshlrev_b32 v14, 4, v14", "v_lshl_add_u32 v2, v13, 7, v14", f"v_add_u32 v2, {XB}, v2",
        "v_xor_b32 v3, 32, v2", "v_xor_b32 v4, 64, v2", "v_xor_b32 v5, 96, v2")
    k.e("v_bfe_u32 v15, v1, 2, 2", "v_lshl_add_u32 v13, v12, 3, v15", "v_lshlrev_b32 v6, 8, v13",
        "v_bfe_u32 v13, v1, 4, 1", "v_lshlrev_b32 v13, 1, v13", "v_bfe_u32 v14, v1, 1, 1", "v_add_u32 v13, v13, v14",
        "s_lshl_b32 s36, s28, 3", "v_add_u32 v13, s36, v13", "v_lshlrev_b32 v15, 2, v15",
        "v_xor_b32 v13, v13, v15", "v_lshl_add_u32 v6, v13, 4, v6", "v_and_b32 v14, 1, v1", "v_lshl_add_u32 v6, v14, 3, v6",
        "v_xor_b32 v10, 64, v6", "v_xor_b32 v72, 4096, v6", "v_xor_b32 v73, 4096, v10")
    k.e("s_lshl_b32 s34, s25, 7", "s_lshl_b32 s35, s27, 6", "s_add_u32 s34, s34, s35", "v_add_u32 v108, s34, v11", "v_lshlrev_b32 v108, 5, v108",
        "s_lshl_b32 s35, s26, 7", "s_lshl_b32 s36, s28, 6", "s_add_u32 s35, s35, s36", "v_add_u32 v109, s35, v11", "v_lshlrev_b32 v109, 4, v109")
    if bal: k.e(f"v_mul_u32_u24 v13, 0x{COL2:x}, v12", "v_add_u32 v109, v109, v13")
    EX = 76
    def extras():
        for tb in range(2):
            k.vmem(f"buffer_load_dwordx4 v[{EX+4*tb}:{EX+3+4*tb}], v108, s[{SWS}:{SWS+3}], 0 offen offset:{WS_TOK+1024*tb} sc1", "ex")
            k.vmem(f"buffer_load_dwordx4 v[{100+4*tb}:{103+4*tb}], v108, s[{SWS}:{SWS+3}], 0 offen offset:{WS_TOK+16+1024*tb} sc1", "ex")
        for part in range(2):
            k.e(f"s_mov_b32 s36, {WS_COL + (1536 + 1792*part)*16}")
            for b in range(2):
                d = EX + 8 + 8*part + 4*b
                k.vmem(f"buffer_load_dwordx4 v[{d}:{d+3}], v109, s[{SWS}:{SWS+3}], s36 offen offset:{512*b} sc1", "ex")
    ACC = 128
    def fr(st): return 16 + 24*st
    def acc(part, b, tb): return ACC + 16*(part*4 + b*2 + tb)
    def reads(g, st):
        b0 = fr(st); u = g >> 1; v = g >> 2
        def wr(part, b):
            d = b0 + 8 + 8*part + 4*b
            o = (u % 3)*16384 + part*8192
            av = ((6, 10), (72, 73))[g & 1][b]
            return [(f"ds_read_b64_tr_b16 v[{d}:{d+1}], v{av} offset:{o}", f"W{part}{b}"),
                    (f"ds_read_b64_tr_b16 v[{d+2}:{d+3}], v{av} offset:{o+1024}", f"W{part}{b}")]
        def xr(tb): return [(f"ds_read_b128 v[{b0+4*tb}:{b0+4*tb+3}], v{2 + (g & 3)} offset:{(v % 2)*16384 + tb*4096}", f"X{tb}")]
        return xr(0) + wr(0, 0) + xr(1) + wr(0, 1) + wr(1, 0) + wr(1, 1)
    def mf(b0, first):
        out = []
        for part in range(2):
            for b in range(2):
                for tb in range(2):
                    a = acc(part, b, tb); w = b0 + 8 + 8*part + 4*b; x = b0 + 4*tb
                    c = "0" if first else f"v[{a}:{a+15}]"
                    out.append((f"{MF} v[{a}:{a+15}], v[{w}:{w+3}], v[{x}:{x+3}], {c}", [f"X{tb}", f"W{part}{b}"]))
        return out
    def mfmas(g, st): return mf(fr(st), g == 0)
    def dmas(u):
        out = []
        if u + 2 < 16: out += wd(u + 2)
        if u % 2 == 0 and u//2 + 1 < 8: out += xd(u//2 + 1)
        return out
    hooks = {ux - 1: [lambda: epoch_issue_all(k, 112)], ux: [extras]}
    ph = None
    if fine: ph = {u: (lambda i=i: k.stamp(i)) for i, u in enumerate((0, 2, 5, 8, 11, 14), 1)}
    else: k.stamp(1)
    gemm2(k, 16, mfmas, reads, dmas, lambda u: [("W", u), ("X", u >> 1)], fill0=None, rper=rper, dper=dper, hooks=hooks, pre_hooks=ph)
    if fine:
        k.stamp(7); k.nostamp = True
    k.stamp(2)
    if epi_prio is not None: k.e(f"s_setprio {epi_prio}")
    epoch_check_all(k, 112)
    k.wait_vm("ex")
    tags = [EX + 3 + 4*i for i in range(6)]
    def zero():
        for r in tags: k.e(f"v_mov_b32 v{r}, 0")
        if bal:
            k.e("s_nop 1")
            return
        k.e("s_mov_b32 exec_lo, 0")
        for r in range(EX, EX + 24):
            if r not in tags: k.e(f"v_mov_b32 v{r}, 0")
        k.e("s_mov_b32 exec_lo, -1", "s_nop 1")
    tag_check(k, extras, tags + [102, 106], "x3", zero)
    for (t, _) in mf(EX, False): k.e(t)
    if post_loop: post_loop()
    k.e(f"v_mul_f32 v110, 0x{f2u(-LOG2E):08x}, v100", f"v_mul_f32 v111, 0x{f2u(-LOG2E):08x}, v104")
    k.e("v_lshlrev_b32 v10, 4, v1",
        "s_lshl_b32 s36, s25, 2", "s_lshl_b32 s37, s27, 1", "s_add_u32 s36, s36, s37", "s_mul_i32 s36, s36, 112",
        "s_lshl_b32 s37, s26, 3", "s_add_u32 s36, s36, s37", "s_lshl_b32 s37, s28, 2", "s_add_u32 s36, s36, s37",
        "s_lshl_b32 s36, s36, 10", f"s_add_u32 s36, s36, 0x{WS_HF:x}")
    k.e("s_nop 7")
    n = 0
    for b in range(2):
        for tb in range(2):
            g = acc(0, b, tb); uu = acc(1, b, tb)
            A = 110 + tb; SD = 101 + 4*tb
            if PK & 1:
                for r in range(0, 16, 2): k.e(f"v_pk_mul_f32 v[{g+r}:{g+r+1}], v[{g+r}:{g+r+1}], v[110:111] op_sel:[0,{tb}] op_sel_hi:[1,{tb}]")
                for r in range(16): k.e(f"v_exp_f32 v{g+r}, v{g+r}")
                k.e("s_nop 0")
                for r in range(0, 16, 2): k.e(f"v_pk_fma_f32 v[{g+r}:{g+r+1}], v[{g+r}:{g+r+1}], v[{SD-1}:{SD}], v[{SD-1}:{SD}] op_sel:[0,1,1] op_sel_hi:[1,1,1]")
                for r in range(16): k.e(f"v_rcp_f32 v{g+r}, v{g+r}")
                k.e("s_nop 0")
                for r in range(0, 16, 2): k.e(f"v_pk_mul_f32 v[{g+r}:{g+r+1}], v[{g+r}:{g+r+1}], v[{uu+r}:{uu+r+1}]")
            else:
                for r in range(16): k.e(f"v_mul_f32 v{g+r}, v{g+r}, v{A}")
                for r in range(16): k.e(f"v_exp_f32 v{g+r}, v{g+r}")
                for r in range(16): k.e(f"v_fma_f32 v{g+r}, v{g+r}, v{SD}, v{SD}")
                for r in range(16): k.e(f"v_rcp_f32 v{g+r}, v{g+r}")
                k.e("s_nop 0")
                for r in range(16): k.e(f"v_mul_f32 v{g+r}, v{g+r}, v{uu+r}")
            for j in range(2):
                d = 16 + 4*(n % 8); n += 1
                for i in range(4): k.e(f"v_cvt_pk_bf16_f32 v{d+i}, v{g+8*j+2*i}, v{g+8*j+2*i+1}")
                k.e(f"s_add_u32 s37, s36, {(tb*112 + b*2 + j)*1024}")
                k.vmem(f"buffer_store_dwordx4 v[{d}:{d+3}], v10, s[{SWS}:{SWS+3}], s37 offen sc1", "st")

def kF1(name="f1_fused_kernel", prio_e1=None, prio_e2=None, prio_g=None, epi_prio=1, post_prio=0, e4_prio=None, hsleep=2, osleep=2, qsleep=2,
        rot=True, ux1=11, ux3=11, dup=False, force_fb=False, nostats=False, gexit=0, notag=False, xal=False, touch1=False, fine1=False, mode1="x", mode3="x", touch3=0, rp1=5, dp1=2, rp3=4, dp3=1, ugo=None, gosleep=4, gomax=64, gp_touch=False, prio_e3=None, bal=False, tw=False, fine3=False, aexit=False, qnopoll=0, cpf=0, map1=0, wx=0, hoist=False, aexit2=0, pre=0, rsleep=0, lim1=16, qpipe=0, qgap=4, omod='', endwait=True, qback=None):
    k = KV(name, nvgpr=256)
    k.e("s_cmp_ge_u32 s2, 512", f"s_cbranch_scc1 L_end_{k.name}")
    fx = srd(k, 8, 0, SZ_X) + srd(k, 20, 72, WS_SIZE2)
    load_dbg(k)
    if cpf:
        Lp = k.newlabel("cpf"); Lq = k.newlabel("pc")
        k.e(f"s_cmp_ge_u32 s2, {cpf}", f"s_cbranch_scc1 {Lp}", "s_getpc_b64 s[36:37]")
        k.label(Lq)
        k.e(f"s_sub_u32 s36, s36, {Lq}-{k.name}", "s_subb_u32 s37, s37, 0", "v_lshlrev_b32 v250, 7, v0",
            "v_mov_b32 v249, s37", "v_add_co_u32 v248, vcc, s36, v250", "s_nop 1", "v_addc_co_u32 v249, vcc, 0, v249, vcc")
        k.vmem("global_load_dword v252, v[248:249], off", "cpf", opt=True)
        k.e("v_add_u32 v250, 0x8000, v250", f"v_cmp_gt_u32 vcc, L_code_end-{k.name}, v250", "v_add_co_u32 v248, s[38:39], 0x4000, v248" if False else "s_nop 0")
        k.e("s_and_saveexec_b64 s[38:39], vcc", "v_mov_b32 v249, s37", "v_add_co_u32 v248, vcc, s36, v250", "s_nop 1", "v_addc_co_u32 v249, vcc, 0, v249, vcc")
        k.vmem("global_load_dword v253, v[248:249], off", "cpf", opt=True)
        k.e("s_mov_b64 exec, s[38:39]")
        k.label(Lp)
    k.e("v_lshrrev_b32 v10, 6, v0", "s_nop 1", "v_readfirstlane_b32 s24, v10")
    k.e("s_cmp_ge_u32 s2, 256", "s_cbranch_scc1 L_f1_g")
    fx1 = srd(k, 12, 8, SZ_WQKV)
    k.e("s_waitcnt lgkmcnt(0)"); k.e(*(fx + fx1))
    epoch_make(k)
    if prio_e1 is not None: k.e(f"s_setprio {prio_e1}")
    k.e("s_and_b32 s3, s2, 7", "s_lshr_b32 s4, s2, 3", "s_and_b32 s5, s3, 1", "s_lshl_b32 s26, s5, 2", "s_and_b32 s5, s4, 3", "s_add_u32 s26, s26, s5",
        "s_lshr_b32 s25, s3, 1", "s_lshl_b32 s25, s25, 3", "s_lshr_b32 s5, s4, 2", "s_add_u32 s25, s25, s5")
    k.e("s_and_b32 s53, s26, 3", "s_lshl_b32 s53, s53, 1", "s_add_u32 s53, s53, s25", "s_and_b32 s53, s53, 7")
    if map1:
        k.e("s_and_b32 s26, s4, 7", "s_lshl_b32 s25, s3, 2", "s_lshr_b32 s5, s4, 3", "s_add_u32 s25, s25, s5",
            "s_lshl_b32 s53, s5, 1", "s_add_u32 s53, s53, s26", "s_and_b32 s53, s53, 7")
    k.e("s_lshl_b32 s44, s3, 2", "s_and_b32 s5, s4, 3", "s_add_u32 s44, s44, s5", "s_lshr_b32 s45, s4, 2")
    k.stamp(0)
    if aexit:
        for i in range(1, 9): k.stamp(i)
        k.stamp_out(9, 0, sh=7); k.wait_vm_all(); k.e("s_waitcnt vmcnt(0)", "s_endpgm")
    def o_fill():
        k.e("v_mov_b32 v204, -1", "v_mov_b32 v205, -1", "v_mov_b32 v206, -1", "v_mov_b32 v207, -1", "v_lshlrev_b32 v203, 4, v1",
            "s_lshl_b32 s46, s45, 3", "s_lshl_b32 s47, s24, 1", "s_add_u32 s46, s46, s47", "s_lshl_b32 s46, s46, 5", "s_add_u32 s46, s46, s44",
            "s_lshl_b32 s46, s46, 10", f"s_add_u32 s46, s46, 0x{WS_OF:x}")
        k.vmem("buffer_store_dwordx4 v[204:207], v203, s[20:23], s46 offen sc1", "st")
        k.e("s_add_u32 s46, s46, 32768")
        k.vmem("buffer_store_dwordx4 v[204:207], v203, s[20:23], s46 offen sc1", "st")
    def go_store():
        L = w0_begin(k)
        k.e("s_lshl_b32 s46, s2, 7", f"s_add_u32 s46, s46, 0x{FLG_GO:x}", "v_mov_b32 v208, s46", "v_mov_b32 v209, 1", "s_mov_b64 exec, 1")
        k.vmem("buffer_store_dword v209, v208, s[20:23], 0 offen sc1", "go", opt=True)
        k.e("s_mov_b64 exec, -1")
        k.label(L)
    if mode1 == "x":
        e1x_body(k, exit_loop=(aexit2 in (1, 3)), noex=(aexit2 == 3), wx=wx, bal=bal, rot=rot, ux=ux1, pre_store=o_fill, dup=dup, notag=notag, touch=touch1, fine=fine1)
    else:
        ph = {0: lambda: k.stamp(9), 1: lambda: k.stamp(10), 4: lambda: k.stamp(11), 10: lambda: k.stamp(12)} if fine1 else None
        hk = {11: [lambda: epoch_issue_all(k, 200)]}
        if isinstance(ugo, int): hk.setdefault(ugo, []).append(go_store)
        e1s_body(k, sc1="sc1", rot=rot, mst={"s": 0, "m": 1, "n": 2}[mode1], rper=rp1, dper=dp1, pre_hooks=ph, hooks=hk, pre_store=lambda: (epoch_check_all(k, 200), o_fill()))
    k.stamp(3)
    if ugo == "pub0": go_store()
    k.e("s_lshl_b32 s48, s26, 5", "s_add_u32 s48, s48, s25", "s_lshl_b32 s48, s48, 3", f"s_add_u32 s48, s48, 0x{FLG_QKV8:x}")
    publish(k, 48, vt=19)
    k.stamp(4)
    if aexit2 == 2:
        for i in range(5, 9): k.stamp(i)
        k.stamp_out(9, 0, sh=7); k.e("s_waitcnt vmcnt(0)", "s_endpgm")
    if ugo == "pub": go_store()
    k.e("s_mov_b32 s25, s44", "s_mov_b32 s26, s45")
    if prio_e2 is not None: k.e(f"s_setprio {prio_e2}")
    def qkv_wait():
        k.e("v_and_b32 v20, 31, v1", "v_lshlrev_b32 v20, 3, v20", "s_lshr_b32 s36, s25, 2", "s_lshl_b32 s36, s36, 8", f"s_add_u32 s36, s36, 0x{FLG_QKV8:x}",
            "v_add_u32 v20, s36, v20")
        L = w0_begin(k)
        Ll = k.newlabel("qw")
        if qnopoll:
            for _ in range(qnopoll): k.e("s_sleep 16")
            k.e(f"s_branch {L}")
        k.e(f"s_mov_b32 s{SCNT}, 0")
        if qpipe:
            ld = lambda i: f"buffer_load_dwordx2 v[{28+2*i}:{29+2*i}], v20, s[20:23], 0 offen sc1"
            for i in range(qpipe - 1): k.e(ld(i), f"s_sleep {qgap}")
            k.label(Ll)
            for i in range(qpipe):
                k.e(ld((i + qpipe - 1) % qpipe), f"s_waitcnt vmcnt({qpipe - 1})", f"v_cmp_eq_u64 vcc, s[{SEP}:{SEP+1}], v[{28+2*i}:{29+2*i}]",
                    "s_nop 3", "s_cmp_eq_u64 vcc, -1", f"s_cbranch_scc1 {L}")
            k.e(f"s_add_u32 s{SCNT}, s{SCNT}, 1", f"s_cmp_lt_u32 s{SCNT}, 0x{SPIN_MAX:x}", f"s_cbranch_scc1 {Ll}")
        elif qback:
            t1, s1, t2, s2, s3 = qback
            La = k.newlabel("qa"); Lb = k.newlabel("qb"); Lc2 = k.newlabel("qc")
            k.label(Ll)
            k.e("buffer_load_dwordx2 v[22:23], v20, s[20:23], 0 offen sc1", f"s_add_u32 s{SCNT}, s{SCNT}, 1", "s_waitcnt vmcnt(0)",
                f"v_cmp_eq_u64 vcc, s[{SEP}:{SEP+1}], v[22:23]", "s_nop 3", "s_cmp_eq_u64 vcc, -1", f"s_cbranch_scc1 {L}",
                "s_bcnt1_i32_b64 s36, vcc", f"s_cmp_lt_u32 s36, {2*t1}", f"s_cbranch_scc1 {La}", f"s_cmp_lt_u32 s36, {2*t2}", f"s_cbranch_scc1 {Lb}",
                f"s_sleep {s3}", f"s_branch {Lc2}")
            k.label(La); k.e(f"s_sleep {s1}", f"s_branch {Lc2}")
            k.label(Lb); k.e(f"s_sleep {s2}")
            k.label(Lc2)
            k.e(f"s_cmp_lt_u32 s{SCNT}, 0x{SPIN_MAX:x}", f"s_cbranch_scc1 {Ll}")
        else:
            k.label(Ll)
            k.e("buffer_load_dwordx2 v[22:23], v20, s[20:23], 0 offen sc1", f"s_add_u32 s{SCNT}, s{SCNT}, 1", "s_waitcnt vmcnt(0)",
                f"v_cmp_eq_u64 vcc, s[{SEP}:{SEP+1}], v[22:23]", "s_nop 3", "s_cmp_eq_u64 vcc, -1", f"s_cbranch_scc1 {L}",
                f"s_sleep {qsleep}", f"s_cmp_lt_u32 s{SCNT}, 0x{SPIN_MAX:x}", f"s_cbranch_scc1 {Ll}")
        k.label(L)
        k.wait_lg_all()
        k.e("s_barrier")
        if ugo == "e2": go_store()
        k.stamp(5 - k.stamp_off)
    k.stamp_off = 5
    e2_body(k, sc1="sc1", st_sc1="sc1", oflag="ep", pre_hook=qkv_wait, force_fb=force_fb, prehint=pre)
    k.stamp_off = 0
    k.wait_vm_all()
    k.stamp(8); k.stamp_out(13 if fine1 else 9, 0, sh=7); k.wait_vm_all()
    k.e("s_endpgm")
    fb = k.fb_code
    k.label("L_f1_g")
    k.vm = []; k.lg = []
    SD, SO, SX, SOUT = 84, 88, 8, 4
    fx3 = srd(k, 12, 32, SZ_WG) + srd(k, 16, 40, SZ_WG) + srd(k, SD, 48, SZ_WD) + srd(k, SO, 16, SZ_WO) + srd(k, SOUT, 56, SZ_X)
    k.e(f"s_load_dwordx2 s[{34 if hoist else 28}:{35 if hoist else 29}], s[0:1], 8")
    k.e("s_sub_u32 s3, s2, 256")
    k.e("s_waitcnt lgkmcnt(0)"); k.e(*(fx + fx3))
    if prio_g is not None: k.e(f"s_setprio {prio_g}")
    def go_clear(idx=3):
        if ugo is None: return
        L = w0_begin(k)
        k.e(f"s_lshl_b32 s36, s{idx}, 7", f"s_add_u32 s36, s36, 0x{FLG_GO:x}", "v_mov_b32 v62, s36", "v_mov_b32 v63, 0", "s_mov_b64 exec, 1",
            "buffer_store_dword v63, v62, s[20:23], 0 offen sc1", "s_mov_b64 exec, -1")
        k.label(L)
    def go_wait():
        if ugo is None: return
        L = w0_begin(k)
        Ll = k.newlabel("go")
        k.e("s_waitcnt vmcnt(0)", "s_mov_b32 s38, 0", "s_mov_b64 exec, 1")
        k.label(Ll)
        k.e("buffer_load_dword v63, v62, s[20:23], 0 offen sc1", "s_add_u32 s38, s38, 1", "s_waitcnt vmcnt(0)", "v_readfirstlane_b32 s39, v63", "s_nop 3",
            "s_cmp_eq_u32 s39, 1", f"s_cbranch_scc1 {Ll}x", f"s_sleep {gosleep}", f"s_cmp_lt_u32 s38, {gomax}", f"s_cbranch_scc1 {Ll}")
        k.label(Ll + "x")
        k.e("s_mov_b64 exec, -1")
        k.label(L)
        k.e("s_barrier")
    k.stamp(0)
    go_clear()
    if gexit == 1: k.e("s_endpgm")
    def role3():
        k.e("s_and_b32 s92, s3, 7", "s_lshr_b32 s93, s3, 3")
        k.e("s_and_b32 s26, s92, 1", "s_mul_i32 s26, s26, 7", "s_lshr_b32 s94, s93, 2", "s_add_u32 s26, s26, s94",
            "s_lshr_b32 s25, s92, 1", "s_lshl_b32 s25, s25, 2", "s_and_b32 s95, s93, 3", "s_add_u32 s25, s25, s95")
        k.e("s_lshl_b32 s53, s95, 1", "s_add_u32 s53, s53, s94", "s_and_b32 s53, s53, 7")
    if hoist:
        role3()
        stats_role3(k, SWQ=34, mid=lambda: e3x_body(k, part="pre", bal=bal, rot=rot))
    elif not nostats: (stats_role3(k) if bal else stats_role2(k, xal=xal))
    if gexit == 2: k.e("s_waitcnt vmcnt(0)", "s_endpgm")
    e4 = E4F(k, SD, SO, 20, SX, SOUT, hsleep=hsleep, osleep=osleep, ep=True)
    c = e4
    k.e("s_and_b32 s92, s3, 7", "s_lshr_b32 s93, s3, 3",
        f"s_and_b32 s{c.SRB}, s93, 3", "s_lshl_b32 s94, s92, 2", f"s_add_u32 s{c.SRB}, s{c.SRB}, s94", f"s_lshr_b32 s{c.SCB}, s93, 2")
    k.e("s_cmp_ge_u32 s2, 480", "s_cbranch_scc1 L_f1_pf")
    k.e("s_and_b32 s26, s92, 1", "s_mul_i32 s26, s26, 7", "s_lshr_b32 s94, s93, 2", "s_add_u32 s26, s26, s94",
        "s_lshr_b32 s25, s92, 1", "s_lshl_b32 s25, s25, 2", "s_and_b32 s95, s93, 3", "s_add_u32 s25, s25, s95")
    k.e("s_lshl_b32 s53, s95, 1", "s_add_u32 s53, s53, s94", "s_and_b32 s53, s53, 7")
    def touchW(vd=60):
        a = 61
        k.e(f"s_and_b32 s{c.SC}, s{c.SRB}, 3", f"s_mul_i32 s{c.SK}, s{c.SC}, {112*1024}", f"s_add_u32 s{c.SK}, s{c.SK}, s{c.SDO}",
            f"s_lshl_b32 s{c.ST}, s{c.SCB}, 7", f"v_lshlrev_b32 v{a}, 10, v1", f"v_add_u32 v{a}, s{c.ST}, v{a}")
        k.vmem(f"buffer_load_dword v{vd}, v{a}, s[{c.SD}:{c.SD+3}], s{c.SK} offen", "touch")
        k.e(f"s_add_u32 s{c.SK}, s{c.SK}, 65536", "s_mov_b32 exec_hi, 0xffff")
        k.vmem(f"buffer_load_dword v{vd+2}, v{a}, s[{c.SD}:{c.SD+3}], s{c.SK} offen", "touch")
        k.e(f"s_lshl_b32 s{c.SK}, s{c.SC}, 15", f"s_add_u32 s{c.SK}, s{c.SK}, s{c.SWO}", "s_mov_b32 exec_hi, 0")
        k.vmem(f"buffer_load_dword v{vd+3}, v{a}, s[{c.SO}:{c.SO+3}], s{c.SK} offen", "touch")
        k.e("s_mov_b32 exec_hi, -1")
    def post_loop():
        k.e("s_barrier")
        e4.setup()
        for s in range(c.DEPTH): e4.issueW(s)
        if tw: touchW()
    def touch_w3():
        if touch3 in (0, 3): go_wait()
        if not touch3: return
        k.e("v_lshrrev_b32 v66, 1, v1", "v_mul_u32_u24 v66, 3584, v66", "v_and_b32 v67, 1, v1", "v_lshl_add_u32 v66, v67, 7, v66",
            "s_lshl_b32 s36, s95, 7", "s_lshl_b32 s37, s24, 5", "s_add_u32 s36, s36, s37", "s_mul_i32 s36, s36, 3584", "s_lshl_b32 s37, s26, 8", "s_add_u32 s36, s36, s37")
        k.vmem("buffer_load_dword v74, v66, s[12:15], s36 offen", "touch")
        k.vmem("buffer_load_dword v75, v66, s[16:19], s36 offen", "touch")
        if touch3 == 2: k.wait_vm("touch")
        if touch3 in (1, 2): go_wait()
    if prio_e3 is not None: k.e(f"s_setprio {prio_e3}")
    if mode3 == "x":
        e3x_body(k, part=("main" if hoist else None), bal=bal, fine=fine3, epi_prio=epi_prio, post_loop=post_loop, rot=rot, ux=ux3)
    else:
        e3s_body(k, st_sc1="sc1", epi_prio=epi_prio, post_loop=post_loop, rot=rot, outb=64, pre_dma=touch_w3, mst={"s": 0, "m": 1, "n": 2}[mode3], rper=rp3, dper=dp3,
                 hooks={11: [lambda: epoch_issue_all(k, 124)], 13: [lambda: epoch_check_all(k, 124)]})
    k.e("s_lshl_b32 s36, s25, 1", "s_add_u32 s36, s36, s27", "s_lshl_b32 s36, s36, 8", "s_lshl_b32 s37, s26, 1", "s_add_u32 s37, s37, s28",
        "s_lshl_b32 s37, s37, 3", "s_add_u32 s36, s36, s37", f"s_add_u32 s36, s36, 0x{FLG_H8:x}", "v_mov_b32 v56, s36",
        f"v_mov_b32 v58, s{SEP}", f"v_mov_b32 v59, s{SEP+1}")
    k.stamp(3)
    k.wait_vm_all()
    if gexit == 3:
        ns = getattr(k, "nostamp", False); k.stamp_out(8, 0x40000, sh=7); k.e("s_waitcnt vmcnt(0)", "s_endpgm")
    k.stamp(4)
    k.e("s_mov_b64 exec, 1")
    k.vmem("buffer_store_dwordx2 v[58:59], v56, s[20:23], 0 offen sc1", "flag")
    k.e("s_mov_b64 exec, -1")
    if post_prio is not None: k.e(f"s_setprio {post_prio}")
    k.e("s_branch L_f1_e4")
    k.label("L_f1_pf")
    if gexit == 3: k.e("s_endpgm")
    if hoist: k.e("s_waitcnt vmcnt(0)", "s_barrier")
    k.vm = []; k.lg = []
    k.e("v_and_b32 v1, 63, v0")
    if gp_touch:
        k.e("s_sub_u32 s99, s3, 224")
        go_wait()
        k.e("s_lshl_b32 s36, s99, 8", "v_add_u32 v60, s36, v0", "v_lshlrev_b32 v60, 7, v60", "s_mov_b32 s36, 0x100000")
        k.vmem(f"buffer_load_dword v61, v60, s[{SD}:{SD+3}], 0 offen", "touch")
        k.vmem(f"buffer_load_dword v62, v60, s[{SD}:{SD+3}], s36 offen", "touch")
        k.vmem(f"buffer_load_dword v63, v60, s[{SO}:{SO+3}], 0 offen", "touch")
    epoch_issue_all(k, 112)
    k.stamp(1); k.stamp(2); k.stamp(3); k.stamp(4)
    e4.setup()
    epoch_check_all(k, 112)
    for s in range(c.DEPTH): e4.issueW(s)
    if post_prio is not None: k.e(f"s_setprio {post_prio}")
    k.label("L_f1_e4")
    k.vm = [(("W", s), False) for s in range(c.DEPTH) for _ in range(2)] + [("flag", True)]
    k.lg = []
    e4.e4_prio = e4_prio; e4.post_prio = post_prio; e4.pre = pre; e4.rsleep = rsleep; e4.lim1 = lim1; e4.omod = omod
    e4.body(st=(5, 6))
    if endwait: k.wait_vm_all()
    k.stamp(7); k.stamp_out(8, 0x40000, sh=7); k.wait_vm_all()
    k.label(f"L_end_{k.name}")
    k.e("s_endpgm")
    fb()
    k.emit_tails()
    k.label("L_code_end")
    k.e("s_endpgm")
    return k

def build(fn, pk=0, **kw):
    global PK
    PK = pk
    import eng
    eng.EPK = pk & 8; eng.EPK2 = pk & 16
    k = kF1(**kw)
    txt = build_file([(k.name, (512,1,1), (256,1,1), 81920)], [k])
    open(fn, "w").write(txt)
    e = haz.check_text(txt)
    for x in e: print(x)
    print(fn, len(e), "hazards;", len(txt), "bytes")

if __name__ == "__main__":
    build("f1.s")
    KV.STAMP = True
    build("f1st.s")
```

```python
from f1 import *
import f1
P = dict(pre=3, osleep=1, omod="sc1")
build("h1.s", **P)
build("m1.s", qback=(16, 24, 28, 8, 1), **P)
build("m2.s", qback=(24, 32, 30, 8, 1), **P)
build("m3.s", qback=(16, 24, 28, 8, 1), bal=True, prio_e1=3, prio_e2=0, **P)
build("m4.s", bal=True, prio_e1=3, prio_e2=0, **P)
build("m5.s", bal=True, **P)
```

```python
from agen import *

WS_TOK = 0x000000
WS_COL = 0x010000
WS_QF  = 0x100000
WS_KF  = 0x300000
WS_VF  = 0x500000
WS_HF  = 0x700000
WS_OF  = 0xE00000
WS_SIZE = 0x1100000
WS_DBG = 0x1000000
LOG2E = 1.4426950408889634

import struct
def f2u(x): return struct.unpack("<I", struct.pack("<f", x))[0]

EPK = 0
EPK2 = 0
class KV(Kernel):
    def __init__(self, *a, **kw):
        super().__init__(*a, **kw)
        self.vm = []
        self.lg = []
        self.tails = []
    def emit_tails(self):
        for t in self.tails: t()
        self.tails = []
    def vmem(self, txt, tag=None, opt=False):
        self.e(txt); self.vm.append((tag, opt))
    def wait_vm(self, *tags, cond=False):
        idx = [i for i, (t, o) in enumerate(self.vm) if t in tags]
        if not idx: return
        last = max(idx)
        n = sum(1 for (t, o) in self.vm[last + 1:] if not o)
        assert n <= 63
        self.e(f"s_waitcnt vmcnt({n})")
        if cond:
            self.vm = [(t, o) for i, (t, o) in enumerate(self.vm) if not (o and i <= last)]
        else:
            self.vm = self.vm[last + 1:]
    def wait_vm_all(self):
        self.e("s_waitcnt vmcnt(0)"); self.vm = []
    def ds(self, txt, tag=None):
        self.e(txt); self.lg.append(tag)
    def wait_lg(self, *tags):
        idx = [i for i, t in enumerate(self.lg) if t in tags]
        if not idx: return
        last = max(idx)
        n = min(15, len(self.lg) - 1 - last)
        self.e(f"s_waitcnt lgkmcnt({n})")
        self.lg = self.lg[len(self.lg) - n:] if n else []
    STAMP = False
    def stamp(self, idx):
        if not KV.STAMP or getattr(self, "nostamp", False): return
        idx = idx + getattr(self, "stamp_off", 0)
        self.e("s_memtime s[60:61]", "s_memrealtime s[62:63]", "s_waitcnt lgkmcnt(0)",
               f"s_mov_b32 s{64+2*idx}, s60", f"s_mov_b32 s{65+2*idx}, s62")
        self.lg = []
    def stamp_out(self, n, base, SWS=20, sh=6):
        if not KV.STAMP: return
        self.e("v_lshrrev_b32 v250, 6, v0", "s_lshl_b32 s60, s2, 2", "v_add_u32 v250, s60, v250", f"v_lshlrev_b32 v250, {sh}, v250",
               f"v_add_u32 v250, 0x{WS_DBG + base:x}, v250", "v_and_b32 v251, 63, v0", "v_cmp_eq_u32 vcc, 0, v251", "s_and_saveexec_b64 s[60:61], vcc")
        for i in range(2*n):
            self.e(f"v_mov_b32 v251, s{64+i}", f"buffer_store_dword v251, v250, s[{SWS}:{SWS+3}], 0 offen offset:{4*i}", "s_nop 1")
        self.e("s_mov_b64 exec, s[60:61]")
    def wait_lg_all(self):
        if self.lg:
            self.e("s_waitcnt lgkmcnt(0)")
        self.lg = []

def srd(k, d, karg_off, nbytes):
    k.e(f"s_load_dwordx2 s[{d}:{d+1}], s[0:1], {karg_off}")
    return [f"s_mov_b32 s{d+2}, 0x{nbytes:x}", f"s_mov_b32 s{d+3}, 0x00020000"]

SZ_X = 2048*512*2; SZ_WQKV = 512*1536*2; SZ_WO = 512*512*2; SZ_WG = 512*1792*2; SZ_WD = 1792*512*2

def allreduce(k, regs, tmps):
    n = len(regs)
    pad = max(0, 2 - (n - 1))
    for mode in ("quad_perm:[1,0,3,2]", "quad_perm:[2,3,0,1]", "row_half_mirror", "row_mirror"):
        for r in regs:
            k.e(f"v_add_f32_dpp v{r}, v{r}, v{r} {mode} row_mask:0xf bank_mask:0xf")
        if pad: k.e(f"s_nop {pad-1}")
    for sw in ("v_permlane16_swap_b32", "v_permlane32_swap_b32"):
        for r, t in zip(regs, tmps): k.e(f"v_mov_b32 v{t}, v{r}")
        k.e("s_nop 1")
        for r, t in zip(regs, tmps): k.e(f"{sw} v{r}, v{t}")
        k.e("s_nop 1")
        for r, t in zip(regs, tmps): k.e(f"v_add_f32 v{r}, v{r}, v{t}")
    k.e("s_nop 1")


SDBG = 56
SEP = 58
SCNT = 54
FLG = 0x40000
FLG_ROW = FLG
FLG_COLQ = FLG + 0x400
FLG_COLG = FLG + 0x800
FLG_QKV = FLG + 0x1000
FLG_H = FLG + 0x2000
FLG_O = FLG + 0x3000
SPIN_MAX = 0x4000
FLG_QKV8 = FLG + 0x1000
FLG_H8 = FLG + 0x2000
FLG_O8 = FLG + 0x4000
FLG_P8 = FLG + 0x6000

def load_dbg(k):
    k.e(f"s_load_dwordx2 s[{SDBG}:{SDBG+1}], s[0:1], 64")

def wave_id(k):
    k.e("v_lshrrev_b32 v10, 6, v0", "s_nop 1", "v_readfirstlane_b32 s24, v10", "s_nop 3")

def epoch_make(k):
    L = k.newlabel("ep")
    k.e("s_or_b32 s54, s2, s24", "s_cmp_lg_u32 s54, 0", f"s_cbranch_scc1 {L}",
        f"s_memrealtime s[{SEP}:{SEP+1}]", "v_mov_b32 v1, 0", "s_waitcnt lgkmcnt(0)", f"s_or_b32 s{SEP}, s{SEP}, 1",
        f"v_mov_b32 v2, s{SEP}", f"v_mov_b32 v3, s{SEP+1}", "s_mov_b64 exec, 1",
        f"global_store_dwordx2 v1, v[2:3], s[{SDBG}:{SDBG+1}] sc1", "s_mov_b64 exec, -1")
    k.label(L)

def w0_begin(k):
    L = k.newlabel("w0")
    k.e("s_cmp_lg_u32 s24, 0", f"s_cbranch_scc1 {L}")
    return L

def epoch_issue(k, vd):
    k.e(f"v_mov_b32 v{vd+2}, 0")
    L = w0_begin(k)
    k.vmem(f"global_load_dwordx2 v[{vd}:{vd+1}], v{vd+2}, s[{SDBG}:{SDBG+1}] sc1", "ep", opt=True)
    k.label(L)

def epoch_check(k, vd):
    L = w0_begin(k)
    Ls = k.newlabel("eps"); Lc = k.newlabel("epc")
    k.wait_vm("ep", cond=True)
    k.label(Lc + "_r")
    k.e(f"v_readfirstlane_b32 s{SEP}, v{vd}", f"v_readfirstlane_b32 s{SEP+1}, v{vd+1}", "s_nop 3", f"s_cmp_eq_u32 s{SEP}, 0", f"s_cbranch_scc1 {Ls}")
    k.label(Lc)
    k.label(L)
    def tail():
        k.label(Ls)
        k.e(f"s_mov_b32 s{SCNT}, 0")
        k.label(Ls + "_l")
        k.e(f"global_load_dwordx2 v[{vd}:{vd+1}], v{vd+2}, s[{SDBG}:{SDBG+1}] sc1", f"s_add_u32 s{SCNT}, s{SCNT}, 1", "s_waitcnt vmcnt(0)",
            f"v_readfirstlane_b32 s{SEP}, v{vd}", f"v_readfirstlane_b32 s{SEP+1}, v{vd+1}", "s_nop 3", f"s_cmp_lg_u32 s{SEP}, 0", f"s_cbranch_scc1 {Lc}",
            "s_sleep 2", f"s_cmp_lt_u32 s{SCNT}, 0x{SPIN_MAX:x}", f"s_cbranch_scc1 {Ls}_l", f"s_branch {Lc}")
    k.tails.append(tail)

def publish(k, s_off, SWS=20, vt=1):
    k.wait_vm_all(); k.wait_lg_all()
    k.e("s_barrier")
    L = w0_begin(k)
    k.e(f"v_mov_b32 v{vt}, s{s_off}", f"v_mov_b32 v{vt+1}, s{SEP}", f"v_mov_b32 v{vt+2}, s{SEP+1}", "s_mov_b64 exec, 1")
    k.vmem(f"buffer_store_dwordx2 v[{vt+1}:{vt+2}], v{vt}, s[{SWS}:{SWS+3}], 0 offen sc1", "flag", opt=True)
    k.e("s_mov_b64 exec, -1")
    k.label(L)

def poll_issue(k, vd, voff, SWS=20):
    L = w0_begin(k)
    k.vmem(f"buffer_load_dwordx2 v[{vd}:{vd+1}], v{voff}, s[{SWS}:{SWS+3}], 0 offen sc1", "poll", opt=True)
    k.label(L)

def poll_check(k, vd, voff, SWS=20):
    L = w0_begin(k)
    Ls = k.newlabel("spin"); Lc = k.newlabel("cont")
    k.wait_vm("poll", cond=True)
    k.e(f"v_cmp_eq_u64 vcc, s[{SEP}:{SEP+1}], v[{vd}:{vd+1}]", "s_nop 3", "s_cmp_eq_u64 vcc, -1", f"s_cbranch_scc0 {Ls}")
    k.label(Lc)
    k.label(L)
    def tail():
        k.label(Ls)
        k.e(f"s_mov_b32 s{SCNT}, 0")
        k.label(Ls + "_l")
        k.e("s_sleep 2", f"buffer_load_dwordx2 v[{vd}:{vd+1}], v{voff}, s[{SWS}:{SWS+3}], 0 offen sc1", f"s_add_u32 s{SCNT}, s{SCNT}, 1", "s_waitcnt vmcnt(0)",
            f"v_cmp_eq_u64 vcc, s[{SEP}:{SEP+1}], v[{vd}:{vd+1}]", "s_nop 3", "s_cmp_eq_u64 vcc, -1", f"s_cbranch_scc1 {Lc}",
            f"s_cmp_lt_u32 s{SCNT}, 0x{SPIN_MAX:x}", f"s_cbranch_scc1 {Ls}_l", f"s_branch {Lc}")
    k.tails.append(tail)

def row_job(k, s_job, srd_x, srd_ws, sc1="", pre_store=None):
    k.e("v_and_b32 v1, 63, v0", "v_lshrrev_b32 v2, 6, v0", f"s_lshl_b32 s40, s{s_job}, 14",
        "v_lshlrev_b32 v3, 12, v2", "v_lshl_add_u32 v3, v1, 4, v3", "v_add_u32 v3, s40, v3")
    for j in range(4):
        k.vmem(f"buffer_load_dwordx4 v[{4+4*j}:{7+4*j}], v3, s[{srd_x}:{srd_x+3}], 0 offen offset:{1024*j}", "rj")
    k.e("v_bfe_u32 v72, v1, 1, 2", "v_cmp_eq_u32 s[42:43], 1, v72", "v_cmp_eq_u32 s[44:45], 2, v72", "v_cmp_eq_u32 s[46:47], 3, v72")
    k.wait_vm("rj")
    if pre_store: pre_store()
    for j in range(4):
        for i in range(4):
            k.e(f"v_lshlrev_b32 v{32+8*j+2*i}, 16, v{4+4*j+i}", f"v_and_b32 v{33+8*j+2*i}, 0xffff0000, v{4+4*j+i}")
    for j in range(4):
        b = 32 + 8*j
        k.e(f"v_add_f32 v{20+j}, v{b}, v{b+1}")
    for i in range(2, 8):
        for j in range(4):
            k.e(f"v_add_f32 v{20+j}, v{20+j}, v{32+8*j+i}")
    allreduce(k, [20, 21, 22, 23], [24, 25, 26, 27])
    for j in range(4): k.e(f"v_mul_f32 v{20+j}, 0x3b000000, v{20+j}")
    for i in range(8):
        for j in range(4): k.e(f"v_sub_f32 v{32+8*j+i}, v{32+8*j+i}, v{20+j}")
    for j in range(4): k.e(f"v_mul_f32 v{28+j}, v{32+8*j}, v{32+8*j}")
    for i in range(1, 8):
        for j in range(4): k.e(f"v_fmac_f32 v{28+j}, v{32+8*j+i}, v{32+8*j+i}")
    allreduce(k, [28, 29, 30, 31], [24, 25, 26, 27])
    k.e("v_cndmask_b32 v64, v20, v21, s[42:43]", "v_cndmask_b32 v65, v28, v29, s[42:43]",
        "v_cndmask_b32 v64, v64, v22, s[44:45]", "v_cndmask_b32 v65, v65, v30, s[44:45]",
        "v_cndmask_b32 v64, v64, v23, s[46:47]", "v_cndmask_b32 v65, v65, v31, s[46:47]")
    k.e("v_mov_b32 v66, 0x3727c5ac", "v_fmac_f32 v66, 0x3b000000, v65",
        "v_rsq_f32 v67, v66", "v_sub_f32 v64, 0, v64",
        "v_mul_f32 v68, v66, v67",
        "v_cvt_pk_bf16_f32 v69, v64, v64", "s_nop 0", "v_and_b32 v69, 0xffff0000, v69", "v_sub_f32 v70, v64, v69",
        "v_cvt_pk_bf16_f32 v69, v70, v70", "s_nop 0", "v_and_b32 v69, 0xffff0000, v69", "v_sub_f32 v71, v70, v69",
        "v_cvt_pk_bf16_f32 v4, v64, v70", "v_cvt_pk_bf16_f32 v6, v71, v64",
        "v_and_b32 v72, 1, v1", "v_cmp_eq_u32 vcc, 1, v72", "v_mov_b32 v5, v4", "v_mov_b32 v7, 0",
        "v_cndmask_b32 v4, v4, v67, vcc", "v_cndmask_b32 v5, v5, v68, vcc", "v_cndmask_b32 v6, v6, v7, vcc")
    k.e(f"s_lshl_b32 s40, s{s_job}, 9", "v_lshlrev_b32 v3, 7, v2", "v_lshl_add_u32 v3, v1, 4, v3", "v_add_u32 v3, s40, v3",
        "v_cmp_gt_u32 vcc, 8, v1", "s_and_saveexec_b64 s[42:43], vcc")
    k.vmem(f"buffer_store_dwordx4 v[4:7], v3, s[{srd_ws}:{srd_ws+3}], 0 offen offset:{WS_TOK} {sc1}", "st")
    k.e("s_mov_b64 exec, s[42:43]")

def col_job(k, s_job, srd_w, s_ld, s_col0b, srd_ws, ldsbase=0, sc1="", pre_store=None):
    k.e("v_and_b32 v1, 63, v0", "v_lshrrev_b32 v2, 6, v0", "v_lshrrev_b32 v3, 2, v1", "v_lshl_add_u32 v3, v2, 7, v3",
        f"v_mul_lo_u32 v3, v3, s{s_ld}", "v_and_b32 v4, 3, v1", "v_lshl_add_u32 v3, v4, 4, v3", f"v_add_u32 v3, s{s_col0b}, v3",
        f"s_lshl_b32 s41, s{s_ld}, 4", "s_mov_b32 s40, 0")
    for i in range(8):
        k.vmem(f"buffer_load_dwordx4 v[{8+4*i}:{11+4*i}], v3, s[{srd_w}:{srd_w+3}], s40 offen", ("cj", i))
        if i < 7: k.e("s_add_u32 s40, s40, s41")
    k.e("s_mov_b32 s42, 0x00003f80", "s_mov_b32 s43, 0x3f800000")
    for i in range(8): k.e(f"v_mov_b32 v{40+i}, 0")
    for i in range(8):
        k.wait_vm(("cj", i))
        for d in range(4):
            k.e(f"v_dot2_f32_bf16 v{40+2*d}, v{8+4*i+d}, s42, v{40+2*d}", f"v_dot2_f32_bf16 v{41+2*d}, v{8+4*i+d}, s43, v{41+2*d}")
    if pre_store: pre_store()
    k.e("s_nop 2")
    for mode in ("row_ror:4", "row_ror:8"):
        for i in range(8): k.e(f"v_add_f32_dpp v{40+i}, v{40+i}, v{40+i} {mode} row_mask:0xf bank_mask:0xf")
    k.e("v_lshrrev_b32 v5, 4, v1", "v_lshl_add_u32 v5, v2, 2, v5", "v_lshlrev_b32 v5, 7, v5", "v_lshl_add_u32 v5, v4, 5, v5",
        "v_and_b32 v6, 15, v1", "v_cmp_gt_u32 vcc, 4, v6", "s_and_saveexec_b64 s[44:45], vcc")
    k.ds(f"ds_write_b128 v5, v[40:43] offset:{ldsbase}")
    k.ds(f"ds_write_b128 v5, v[44:47] offset:{ldsbase+16}")
    k.e("s_mov_b64 exec, s[44:45]")
    k.wait_lg_all()
    k.e("s_barrier")
    k.e("v_cmp_gt_u32 vcc, 32, v0", "s_and_saveexec_b64 s[44:45], vcc", "v_lshlrev_b32 v5, 2, v0")
    for p in range(16): k.ds(f"ds_read_b32 v{8+p}, v5 offset:{ldsbase+128*p}")
    k.wait_lg_all()
    for st in (8, 4, 2, 1):
        for p in range(st): k.e(f"v_add_f32 v{8+p}, v{8+p}, v{8+p+st}")
    k.e("s_nop 0",
        "v_cvt_pk_bf16_f32 v12, v8, v8", "s_nop 0", "v_and_b32 v9, 0xffff0000, v12", "v_sub_f32 v9, v8, v9",
        "v_cvt_pk_bf16_f32 v13, v9, v9", "s_nop 0", "v_and_b32 v10, 0xffff0000, v13", "v_sub_f32 v10, v9, v10",
        "v_cvt_pk_bf16_f32 v14, v8, v10", "v_mov_b32 v15, 0",
        f"s_lshl_b32 s40, s{s_job}, 9", "v_lshlrev_b32 v5, 4, v0", "v_add_u32 v5, s40, v5", f"s_mov_b32 s40, {WS_COL}")
    k.vmem(f"buffer_store_dwordx4 v[12:15], v5, s[{srd_ws}:{srd_ws+3}], s40 offen {sc1}", "st")
    k.e("s_mov_b64 exec, s[44:45]")

def k0_kernel():
    k = KV("k0_stats_kernel", nvgpr=96)
    k.e("s_cmp_ge_u32 s2, 288", f"s_cbranch_scc1 L_end_{k.name}")
    fx = srd(k, 8, 0, SZ_X) + srd(k, 20, 72, WS_SIZE)
    k.e("s_load_dwordx2 s[28:29], s[0:1], 8", "s_load_dwordx2 s[30:31], s[0:1], 32", "s_load_dwordx2 s[32:33], s[0:1], 40")
    k.e("s_waitcnt lgkmcnt(0)"); k.e(*fx)
    k.e("s_cmp_ge_u32 s2, 128", "s_cbranch_scc1 L_k0_col")
    row_job(k, 2, 8, 20)
    k.e("s_branch L_k0_done")
    k.label("L_k0_col")
    k.e("s_sub_u32 s3, s2, 128")
    k.e("s_mov_b32 s12, s28", "s_mov_b32 s13, s29", f"s_mov_b32 s14, {SZ_WQKV}", "s_mov_b32 s15, 0x00020000",
        "s_movk_i32 s16, 3072", "s_lshl_b32 s17, s3, 6",
        "s_cmp_lt_u32 s3, 48", "s_cbranch_scc1 L_k0_go",
        "s_mov_b32 s12, s30", "s_mov_b32 s13, s31", f"s_mov_b32 s14, {SZ_WG}", "s_movk_i32 s16, 3584",
        "s_sub_u32 s17, s3, 48", "s_lshl_b32 s17, s17, 6",
        "s_cmp_lt_u32 s3, 104", "s_cbranch_scc1 L_k0_go",
        "s_mov_b32 s12, s32", "s_mov_b32 s13, s33", "s_sub_u32 s17, s3, 104", "s_lshl_b32 s17, s17, 6")
    k.label("L_k0_go")
    col_job(k, 3, 12, 16, 17, 20)
    k.label("L_k0_done")
    k.wait_vm_all()
    k.label(f"L_end_{k.name}")
    k.e("s_endpgm")
    return k

DBG = dict(nodma=False, nobar=False, noreads=False, fill=None, early=False)
def gemm_loop(k, nunits, mfmas, reads, dmas, vm_need, fill=6, dma_first_gap=0, hooks=None, pre_hooks=None, dbg=False):
    def tagof(g, name): return ("fr", g, name)
    for u in range(nunits):
        g0, g1 = 2*u, 2*u + 1
        k.wait_vm(*vm_need(u))
        k.wait_lg_all()
        if not (dbg and DBG["nobar"]): k.e("s_barrier")
        if pre_hooks and u in pre_hooks: pre_hooks[u]()
        R0 = list(reads(g0, 0)); R1 = list(reads(g1, 1))
        if dbg and DBG["noreads"] and u > 0: R0 = []; R1 = []
        if dbg and DBG["fill"]: fill = DBG["fill"]
        prev = list(mfmas(g0 - 1, 1)) if u > 0 else []
        cur = list(mfmas(g0, 0))
        D = list(dmas(u))
        if dbg and DBG["nodma"]: D = []
        rel = {}
        for i, (t, used) in enumerate(prev):
            for nm in used: rel[nm] = i
        def emit_reads(i, budget):
            n = 0
            while n < budget and R0:
                t, nm = R0.pop(0); k.ds(t, tagof(g0, nm)); n += 1
            j = 0
            while n < budget and j < len(R1):
                t, nm = R1[j]
                if rel.get(nm, -1) <= i:
                    k.ds(t, tagof(g1, nm)); R1.pop(j); n += 1
                else: j += 1
            return n
        if not prev:
            emit_reads(-1, 1000)
        early = dbg and DBG["early"]
        def emit_dma():
            for (txt, tag, isvm) in D.pop(0):
                if isvm: k.vmem(txt, tag)
                else: k.e(txt)
        for i, (t, used) in enumerate(prev):
            k.e(t)
            if early:
                emit_reads(i, 4)
                if D: emit_dma()
            else:
                emit_reads(i, fill)
        emit_reads(10**6, 1000)
        ngap = len(cur)
        per = -(-len(D) // ngap) if D else 0
        for j, (t, used) in enumerate(cur):
            k.wait_lg(*[tagof(g0, nm) for nm in used])
            k.e(t)
            for _ in range(per):
                if D:
                    for (txt, tag, isvm) in D.pop(0):
                        if isvm: k.vmem(txt, tag)
                        else: k.e(txt)
        assert not D
        if hooks and u in hooks:
            for h in hooks[u]: h()
    k.wait_lg_all()
    for (t, used) in mfmas(2*nunits - 1, 1): k.e(t)

def dma(srd_, voff, s_m0base, m0imm, s_tmp, soff, tag, imm=0):
    out = [(f"s_add_u32 m0, s{s_m0base}, {m0imm - imm}" , None, False)]
    out.append((f"s_mov_b32 s{s_tmp}, 0x{soff:x}", None, False))
    o = f" offset:{imm}" if imm else ""
    out.append((f"buffer_load_dwordx4 v{voff}, s[{srd_}:{srd_+3}], s{s_tmp} offen{o} lds", tag, True))
    return out

def dmab(srd_, voff, s_m0base, m0imm, s_tmp, s_base, soff, tag, imm=0, post=()):
    out = [(f"s_add_u32 m0, s{s_m0base}, {m0imm - imm}" , None, False)]
    out.append((f"s_add_u32 s{s_tmp}, s{s_base}, 0x{soff:x}", None, False))
    o = f" offset:{imm}" if imm else ""
    out.append((f"buffer_load_dwordx4 v{voff}, s[{srd_}:{srd_+3}], s{s_tmp} offen{o} lds", tag, True))
    for t in post: out.append((t, None, False))
    return out

def rot_adv(s, step, lim, tmp):
    return [f"s_add_u32 s{s}, s{s}, {step}", f"s_cmp_ge_u32 s{s}, {lim}", f"s_cselect_b32 s{tmp}, {lim}, 0", f"s_sub_u32 s{s}, s{s}, s{tmp}"]

def emit_groups(k, groups):
    for gr in groups:
        for (txt, tag, isvm) in gr:
            if isvm: k.vmem(txt, tag)
            else: k.e(txt)

MF = "v_mfma_f32_32x32x16_bf16"

def e1_body(k, SX=8, SW=12, SWS=20, sc1="", stats_sync=None):
    E1_XB = 49152
    k.e("v_and_b32 v1, 63, v0", "v_lshrrev_b32 v10, 6, v0", "s_nop 0", "v_readfirstlane_b32 s24, v10")
    k.e("v_and_b32 v11, 31, v1", "v_lshrrev_b32 v12, 5, v1")
    k.e("s_and_b32 s27, s24, 1", "s_lshr_b32 s28, s24, 1")
    k.e("v_lshrrev_b32 v13, 3, v1", "v_lshrrev_b32 v14, 4, v1", "v_and_b32 v15, 7, v1",
        "v_xor_b32 v7, v15, v14", "v_lshlrev_b32 v7, 4, v7", "v_lshl_add_u32 v7, v13, 10, v7",
        "s_lshl_b32 s29, s25, 16", "s_lshl_b32 s30, s24, 14", "s_add_u32 s29, s29, s30",
        "v_add_u32 v7, s29, v7", "v_xor_b32 v8, 64, v7", "v_add_u32 v8, 8192, v8")
    k.e("v_and_b32 v14, 1, v14", "v_lshlrev_b32 v14, 2, v14", "v_xor_b32 v9, v15, v14", "v_lshlrev_b32 v9, 4, v9",
        "s_lshl_b32 s30, s24, 3", "v_add_u32 v13, s30, v13", "v_mul_u32_u24 v13, 3072, v13", "v_add_u32 v9, v9, v13",
        "s_lshl_b32 s30, s26, 7", "v_add_u32 v9, s30, v9")
    k.e(f"s_lshl_b32 s31, s24, 11", f"s_add_u32 s31, s31, {E1_XB}", "s_lshl_b32 s32, s24, 10")
    def xd(v):
        return [dma(SX, 7, 31, (v % 3)*8192, 33, v*128, ("X", v)), dma(SX, 8, 31, (v % 3)*8192 + 1024, 33, v*128, ("X", v))]
    def wd(u):
        return [dma(SW, 9, 32, (u % 4)*12288 + p*4096, 33, u*32*3072, ("W", u), imm=1024*p) for p in range(3)]
    emit_groups(k, xd(0) + wd(0) + wd(1) + xd(1) + wd(2))
    for i in range(48, 64): k.e(f"v_mov_b32 v{i}, 0")
    k.e("s_lshl_b32 s34, s25, 6", "s_lshl_b32 s35, s27, 5", "s_add_u32 s34, s34, s35",
        "v_add_u32 v116, s34, v11", "v_lshlrev_b32 v116, 5, v116")
    k.e("s_lshl_b32 s35, s26, 6", "s_lshl_b32 s36, s28, 5", "s_add_u32 s35, s35, s36",
        "v_add_u32 v117, s35, v11", "v_lshlrev_b32 v117, 4, v117")
    def extras(xsc):
        k.vmem(f"buffer_load_dword v112, v116, s[{SWS}:{SWS+3}], 0 offen offset:{WS_TOK+16} {xsc}", "ex")
        k.e(f"s_mov_b32 s36, {WS_COL}", "s_mov_b64 exec, 0xffffffff")
        k.vmem(f"buffer_load_dwordx4 v[48:51], v116, s[{SWS}:{SWS+3}], 0 offen offset:{WS_TOK} {xsc}", "ex")
        for p in range(3):
            k.vmem(f"buffer_load_dwordx4 v[{52+4*p}:{55+4*p}], v117, s[{SWS}:{SWS+3}], s36 offen {xsc}", "ex")
            if p < 2: k.e("s_add_u32 s36, s36, 8192")
        k.e("s_mov_b64 exec, -1")
    hooks = None; pre_hooks = None
    if stats_sync is None:
        extras("")
    else:
        ue, up, uc = stats_sync
        k.e("v_and_b32 v114, 15, v1", "v_min_u32 v114, 9, v114", "v_lshlrev_b32 v114, 3, v114",
            f"s_lshl_b32 s36, s25, 5", f"s_add_u32 s36, s36, 0x{FLG_ROW:x}", "v_add_u32 v115, s36, v114",
            f"s_lshl_b32 s36, s26, 7", f"s_add_u32 s36, s36, 0x{FLG_COLQ - 32:x}", "v_add_u32 v118, s36, v114",
            "v_cmp_gt_u32 vcc, 32, v114", "s_nop 1", "v_cndmask_b32 v115, v118, v115, vcc")
        def h_e(): epoch_issue(k, 120)
        def h_p():
            epoch_check(k, 120)
            poll_issue(k, 120, 115)
        def h_c(): poll_check(k, 120, 115)
        def h_x(): extras("sc1")
        hooks = {ue: [h_e], up: [h_p], uc: [h_c]}
        pre_hooks = {uc + 1: h_x}
    k.e("s_lshl_b32 s36, s27, 5", "v_add_u32 v13, s36, v11", "v_bfe_u32 v14, v13, 1, 3", "v_xor_b32 v14, v14, v12",
        "v_lshlrev_b32 v14, 4, v14", "v_lshl_add_u32 v2, v13, 7, v14", f"v_add_u32 v2, {E1_XB}, v2",
        "v_xor_b32 v3, 32, v2", "v_xor_b32 v4, 64, v2", "v_xor_b32 v5, 96, v2")
    k.e("v_bfe_u32 v13, v1, 2, 2", "v_lshl_add_u32 v13, v12, 3, v13", "v_lshlrev_b32 v6, 7, v13",
        "v_bfe_u32 v13, v1, 4, 1", "v_lshlrev_b32 v13, 1, v13", "v_bfe_u32 v14, v1, 1, 1", "v_add_u32 v13, v13, v14",
        "s_lshl_b32 s36, s28, 2", "v_add_u32 v13, s36, v13", "v_bfe_u32 v14, v1, 3, 1", "v_lshlrev_b32 v14, 2, v14",
        "v_xor_b32 v13, v13, v14", "v_lshl_add_u32 v6, v13, 4, v6", "v_and_b32 v14, 1, v1", "v_lshl_add_u32 v6, v14, 3, v6")
    for i in range(64, 112): k.e(f"v_mov_b32 v{i}, 0")
    def fr(st): return 16 + 16*st
    def reads(g, st):
        b = fr(st); u = g >> 1; v = g >> 2
        out = [(f"ds_read_b128 v[{b}:{b+3}], v{2 + (g & 3)} offset:{(v % 3)*8192}", "X")]
        for p in range(3):
            o = (u % 4)*12288 + p*4096 + (g & 1)*2048
            out.append((f"ds_read_b64_tr_b16 v[{b+4+4*p}:{b+5+4*p}], v6 offset:{o}", f"W{p}"))
            out.append((f"ds_read_b64_tr_b16 v[{b+6+4*p}:{b+7+4*p}], v6 offset:{o+512}", f"W{p}"))
        return out
    def mf(b_x, b_w):
        out = []
        for p in range(3):
            a = 64 + 16*p
            w = f"v[{b_w+4*p}:{b_w+4*p+3}]"; x = f"v[{b_x}:{b_x+3}]"
            A, B = (w, x) if p < 2 else (x, w)
            out.append((f"{MF} v[{a}:{a+15}], {A}, {B}, v[{a}:{a+15}]", ["X", f"W{p}"]))
        return out
    def mfmas(g, st): return mf(fr(st), fr(st) + 4)
    def dmas(u):
        out = []
        if u + 3 < 16: out += wd(u + 3)
        if u % 2 == 0 and u//2 + 2 < 8: out += xd(u//2 + 2)
        return out
    k.stamp(1)
    gemm_loop(k, 16, mfmas, reads, dmas, lambda u: [("W", u), ("X", u >> 1)], hooks=hooks, pre_hooks=pre_hooks)
    k.stamp(2)
    k.wait_vm("ex")
    for (t, _) in mf(48, 52): k.e(t)
    k.e("s_lshl_b32 s36, s24, 7", "v_lshlrev_b32 v13, 2, v11", "v_add_u32 v13, s36, v13")
    k.ds("ds_write_b32 v13, v112")
    k.e("v_lshlrev_b32 v13, 4, v12", "v_add_u32 v13, s36, v13")
    k.wait_lg_all()
    for gq in range(4): k.ds(f"ds_read_b128 v[{32+4*gq}:{35+4*gq}], v13 offset:{32*gq}")
    k.e(f"v_mul_f32 v113, 0x{f2u(0.25*LOG2E):08x}, v112")
    k.e("v_lshlrev_b32 v10, 4, v1",
        "s_lshl_b32 s36, s26, 2", "s_lshl_b32 s37, s28, 1", "s_add_u32 s36, s36, s37", "s_lshl_b32 s36, s36, 16",
        "s_lshl_b32 s37, s25, 1", "s_add_u32 s37, s37, s27", "s_lshl_b32 s37, s37, 10", "s_add_u32 s36, s36, s37")
    k.e("s_nop 4")
    for p, (scale, base) in enumerate(((113, WS_QF), (112, WS_KF))):
        a = 64 + 16*p
        for r in range(16): k.e(f"v_mul_f32 v{a+r}, v{a+r}, v{scale}")
        for j in range(2):
            d = 16 + 8*p + 4*j
            for i in range(4): k.e(f"v_cvt_pk_bf16_f32 v{d+i}, v{a+8*j+2*i}, v{a+8*j+2*i+1}")
            k.e(f"s_add_u32 s37, s36, 0x{base + j*65536:x}")
            k.vmem(f"buffer_store_dwordx4 v[{d}:{d+3}], v10, s[{SWS}:{SWS+3}], s37 offen {sc1}", "st")
    k.wait_lg_all()
    a = 96
    for r in range(16): k.e(f"v_mul_f32 v{a+r}, v{a+r}, v{32+r}")
    k.e("v_lshrrev_b32 v13, 4, v11", "v_lshlrev_b32 v13, 16, v13", "v_lshl_add_u32 v13, v12, 8, v13", "v_and_b32 v14, 15, v11",
        "v_lshl_add_u32 v13, v14, 4, v13", f"s_add_u32 s37, s36, 0x{WS_VF:x}")
    for j in range(2):
        d = 48 + 4*j
        for i in range(4): k.e(f"v_cvt_pk_bf16_f32 v{d+i}, v{a+8*j+2*i}, v{a+8*j+2*i+1}")
        k.vmem(f"buffer_store_dwordx4 v[{d}:{d+3}], v13, s[{SWS}:{SWS+3}], s37 offen offset:{512*j} {sc1}", "st")

def e3_body(k, SX=8, SG=12, SU=16, SWS=20, sc1="", norm=False, xoff=0, epi_prio=None, post_loop=None, st_sc1=None, pre_loop=None):
    XB = 49152
    k.e("v_and_b32 v1, 63, v0", "v_lshrrev_b32 v10, 6, v0", "s_nop 0", "v_readfirstlane_b32 s24, v10")
    k.e("v_and_b32 v11, 31, v1", "v_lshrrev_b32 v12, 5, v1")
    k.e("s_and_b32 s27, s24, 1", "s_lshr_b32 s28, s24, 1")
    k.e("v_lshrrev_b32 v13, 3, v1", "v_lshrrev_b32 v14, 4, v1", "v_and_b32 v15, 7, v1",
        "v_xor_b32 v7, v15, v14", "v_lshlrev_b32 v7, 4, v7", "v_lshl_add_u32 v7, v13, 10, v7",
        "s_lshl_b32 s29, s25, 17", "s_lshl_b32 s30, s24, 15", "s_add_u32 s29, s29, s30",
        "v_add_u32 v7, s29, v7", "v_xor_b32 v8, 64, v7", "v_add_u32 v8, 8192, v8")
    k.e("v_lshlrev_b32 v13, 2, v14", "v_and_b32 v15, 15, v1", "v_xor_b32 v9, v15, v13", "v_lshlrev_b32 v9, 4, v9",
        "s_lshl_b32 s30, s24, 3", "v_add_u32 v13, s30, v14", "v_mul_u32_u24 v13, 3584, v13", "v_add_u32 v9, v9, v13",
        "s_lshl_b32 s30, s26, 8", "v_add_u32 v9, s30, v9")
    k.e(f"s_lshl_b32 s31, s24, 12", f"s_add_u32 s31, s31, {XB}", "s_lshl_b32 s32, s24, 11")
    def xd(v):
        return [dma(SX, 7 + (i & 1), 31, (v % 2)*16384 + i*1024, 33, xoff + v*128 + (i >> 1)*16384, ("X", v)) for i in range(4)]
    def wd(u):
        out = []
        for i in range(2):
            for p, sr in enumerate((SG, SU)):
                out.append(dma(sr, 9, 32, (u % 3)*16384 + p*8192 + i*1024, 33, (u*32 + 4*i)*3584, ("W", u)))
        return out
    emit_groups(k, xd(0) + wd(0) + wd(1))
    if pre_loop: pre_loop()
    k.e("s_lshl_b32 s36, s27, 6", "v_add_u32 v13, s36, v11", "v_bfe_u32 v14, v13, 1, 3", "v_xor_b32 v14, v14, v12",
        "v_lshlrev_b32 v14, 4, v14", "v_lshl_add_u32 v2, v13, 7, v14", f"v_add_u32 v2, {XB}, v2",
        "v_xor_b32 v3, 32, v2", "v_xor_b32 v4, 64, v2", "v_xor_b32 v5, 96, v2")
    k.e("v_bfe_u32 v15, v1, 2, 2", "v_lshl_add_u32 v13, v12, 3, v15", "v_lshlrev_b32 v6, 8, v13",
        "v_bfe_u32 v13, v1, 4, 1", "v_lshlrev_b32 v13, 1, v13", "v_bfe_u32 v14, v1, 1, 1", "v_add_u32 v13, v13, v14",
        "s_lshl_b32 s36, s28, 3", "v_add_u32 v13, s36, v13", "v_lshlrev_b32 v15, 2, v15",
        "v_xor_b32 v13, v13, v15", "v_lshl_add_u32 v6, v13, 4, v6", "v_and_b32 v14, 1, v1", "v_lshl_add_u32 v6, v14, 3, v6",
        "v_xor_b32 v10, 64, v6")
    ACC = 128
    if not norm:
        for i in range(ACC, ACC + 128): k.e(f"v_mov_b32 v{i}, 0")
    def fr(st): return 16 + 24*st
    def acc(part, b, tb): return ACC + 16*(part*4 + b*2 + tb)
    def reads(g, st):
        b0 = fr(st); u = g >> 1; v = g >> 2
        out = []
        def wr(part, b):
            d = b0 + 8 + 8*part + 4*b
            o = (u % 3)*16384 + part*8192 + (g & 1)*4096
            av = 6 if b == 0 else 10
            return [(f"ds_read_b64_tr_b16 v[{d}:{d+1}], v{av} offset:{o}", f"W{part}{b}"),
                    (f"ds_read_b64_tr_b16 v[{d+2}:{d+3}], v{av} offset:{o+1024}", f"W{part}{b}")]
        def xr(tb): return [(f"ds_read_b128 v[{b0+4*tb}:{b0+4*tb+3}], v{2 + (g & 3)} offset:{(v % 2)*16384 + tb*4096}", f"X{tb}")]
        out = xr(0) + wr(0, 0) + xr(1) + wr(0, 1) + wr(1, 0) + wr(1, 1)
        return out
    def mf(b0, first=False):
        out = []
        for part in range(2):
            for b in range(2):
                for tb in range(2):
                    a = acc(part, b, tb); w = b0 + 8 + 8*part + 4*b; x = b0 + 4*tb
                    c = "0" if first else f"v[{a}:{a+15}]"
                    out.append((f"{MF} v[{a}:{a+15}], v[{w}:{w+3}], v[{x}:{x+3}], {c}", [f"X{tb}", f"W{part}{b}"]))
        return out
    def mfmas(g, st): return mf(fr(st), first=(norm and g == 0))
    def dmas(u):
        out = []
        if u + 2 < 16: out += wd(u + 2)
        if u % 2 == 0 and u//2 + 1 < 8: out += xd(u//2 + 1)
        return out
    if not norm:
        for i in range(64, 88): k.e(f"v_mov_b32 v{i}, 0")
        k.e("s_lshl_b32 s34, s25, 7", "s_lshl_b32 s35, s27, 6", "s_add_u32 s34, s34, s35",
            "v_add_u32 v13, s34, v11", "v_lshlrev_b32 v13, 5, v13")
        for tb in range(2):
            k.vmem(f"buffer_load_dwordx2 v[{88+2*tb}:{89+2*tb}], v13, s[{SWS}:{SWS+3}], 0 offen offset:{WS_TOK+16+1024*tb} {sc1}", "ex")
        k.e("s_lshl_b32 s35, s26, 7", "s_lshl_b32 s36, s28, 6", "s_add_u32 s35, s35, s36",
            "v_add_u32 v14, s35, v11", "v_lshlrev_b32 v14, 4, v14", f"s_mov_b32 s36, {WS_COL + 1536*16}", f"s_mov_b32 s37, {WS_COL + 3328*16}",
            "s_mov_b64 exec, 0xffffffff")
        for tb in range(2):
            k.vmem(f"buffer_load_dwordx4 v[{64+4*tb}:{67+4*tb}], v13, s[{SWS}:{SWS+3}], 0 offen offset:{WS_TOK+1024*tb} {sc1}", "ex")
        for part in range(2):
            for b in range(2):
                d = 72 + 8*part + 4*b
                k.vmem(f"buffer_load_dwordx4 v[{d}:{d+3}], v14, s[{SWS}:{SWS+3}], s{36+part} offen offset:{512*b} {sc1}", "ex")
        k.e("s_mov_b64 exec, -1")
    k.stamp(1)
    gemm_loop(k, 16, mfmas, reads, dmas, lambda u: [("W", u), ("X", u >> 1)], dbg=True)
    k.stamp(2)
    if epi_prio is not None: k.e(f"s_setprio {epi_prio}")
    if post_loop: post_loop()
    if st_sc1 is None: st_sc1 = sc1
    if not norm:
        k.wait_vm("ex")
        for (t, _) in mf(64): k.e(t)
        k.e(f"v_mul_f32 v92, 0x{f2u(LOG2E):08x}, v88", f"v_mul_f32 v93, 0x{f2u(LOG2E):08x}, v90")
    else:
        k.e(f"s_mov_b32 s38, 0x{f2u(-LOG2E):08x}")
    k.e("v_lshlrev_b32 v10, 4, v1",
        "s_lshl_b32 s36, s25, 2", "s_lshl_b32 s37, s27, 1", "s_add_u32 s36, s36, s37", "s_mul_i32 s36, s36, 112",
        "s_lshl_b32 s37, s26, 3", "s_add_u32 s36, s36, s37", "s_lshl_b32 s37, s28, 2", "s_add_u32 s36, s36, s37",
        "s_lshl_b32 s36, s36, 10", f"s_add_u32 s36, s36, 0x{WS_HF:x}")
    k.e("s_nop 4")
    n = 0
    for b in range(2):
        for tb in range(2):
            g = acc(0, b, tb); uu = acc(1, b, tb)
            A = 92 + tb; SD = 89 + 2*tb
            if not norm:
                for r in range(16): k.e(f"v_mul_f32 v{g+r}, v{g+r}, v{A}")
                for r in range(16): k.e(f"v_exp_f32 v{g+r}, -v{g+r}")
                for r in range(16): k.e(f"v_fma_f32 v{g+r}, v{g+r}, v{SD}, v{SD}")
            else:
                for r in range(16): k.e(f"v_mul_f32 v{g+r}, s38, v{g+r}")
                for r in range(16): k.e(f"v_exp_f32 v{g+r}, v{g+r}")
                for r in range(16): k.e(f"v_add_f32 v{g+r}, 1.0, v{g+r}")
            for r in range(16): k.e(f"v_rcp_f32 v{g+r}, v{g+r}")
            for r in range(16): k.e(f"v_mul_f32 v{g+r}, v{g+r}, v{uu+r}")
            for j in range(2):
                d = 16 + 4*(n % 8); n += 1
                for i in range(4): k.e(f"v_cvt_pk_bf16_f32 v{d+i}, v{g+8*j+2*i}, v{g+8*j+2*i+1}")
                k.e(f"s_add_u32 s37, s36, {(tb*112 + b*2 + j)*1024}")
                k.vmem(f"buffer_store_dwordx4 v[{d}:{d+3}], v10, s[{SWS}:{SWS+3}], s37 offen {st_sc1}", "st")

def k1_kernel():
    k = KV("k1_gemm_kernel", nvgpr=256)
    k.e("s_cmp_ge_u32 s2, 480", f"s_cbranch_scc1 L_end_{k.name}")
    fx = srd(k, 8, 0, SZ_X) + srd(k, 20, 72, WS_SIZE)
    k.e("s_cmp_ge_u32 s2, 256", "s_cbranch_scc1 L_k1_e3")
    fx1 = srd(k, 12, 8, SZ_WQKV)
    k.e("s_waitcnt lgkmcnt(0)"); k.e(*(fx + fx1))
    k.e("s_and_b32 s26, s2, 7", "s_lshr_b32 s25, s2, 3")
    k.stamp(0)
    e1_body(k)
    k.wait_vm_all()
    k.stamp(3); k.stamp_out(4, 0); k.wait_vm_all()
    k.e("s_endpgm")
    k.label("L_k1_e3")
    k.vm = []; k.lg = []
    fx3 = srd(k, 12, 32, SZ_WG) + srd(k, 16, 40, SZ_WG)
    k.e("s_waitcnt lgkmcnt(0)"); k.e(*(fx + fx3))
    k.e("s_sub_u32 s3, s2, 256", "s_and_b32 s4, s3, 7", "s_lshr_b32 s5, s3, 3", "s_mul_i32 s4, s4, 28", "s_add_u32 s4, s4, s5",
        "s_lshr_b32 s26, s4, 4", "s_and_b32 s25, s4, 15")
    k.stamp(0)
    e3_body(k)
    k.wait_vm_all()
    k.stamp(3); k.stamp_out(4, 0); k.wait_vm_all()
    k.label(f"L_end_{k.name}")
    k.e("s_endpgm")
    return k

BIAS_M = 90.0
def e2_body(k, SWS=20, sc1="", tag="e2", bias=BIAS_M, force_fb=False, pre_hook=None, sparse_ones=True, st_sc1=None, touch=False, oflag=False, prehint=0):
    SA, SB, OA, OB, CA, CB, PA, PB, QA, QB = 64, 80, 96, 112, 128, 144, 160, 168, 176, 180
    KB_ = [184, 188]; VB_ = [192, 200]
    SLOT = 12288
    S = [SA, SB]; O = [OA, OB]; C = [CA, CB]; P = [PA, PB]; Q = [QA, QB]
    k.e("v_and_b32 v1, 63, v0", "v_lshrrev_b32 v10, 6, v0", "s_nop 0", "v_readfirstlane_b32 s24, v10")
    k.e("v_lshlrev_b32 v2, 4, v1")
    k.e("v_lshrrev_b32 v3, 5, v1", "v_lshlrev_b32 v3, 8, v3", "v_and_b32 v4, 15, v1", "v_lshl_add_u32 v3, v4, 4, v3")
    k.e("s_mov_b32 s28, 0x0000ffff", "s_mov_b32 s29, 0x0000ffff")
    k.e("s_lshl_b32 s34, s24, 10", "v_add_u32 v14, s34, v2", f"s_add_u32 s34, s34, 0x{WS_VF - WS_KF - 1024:x}", "v_add_u32 v15, s34, v3",
        "v_subrev_u32 v16, 512, v15")
    k.e("s_lshl_b32 s33, s25, 16", f"s_add_u32 s30, s33, 0x{WS_KF:x}", "s_mul_i32 s32, s24, 3072")
    def chunk_dma_items(slot):
        return [("s", f"s_add_u32 m0, s32, {slot*SLOT}"),
                ("s", "s_nop 0"),
                ("v", f"buffer_load_dwordx4 v14, s[{SWS}:{SWS+3}], s30 offen {sc1} lds"),
                ("s", "s_mov_b64 exec, s[28:29]"),
                ("v", f"buffer_load_dwordx4 v15, s[{SWS}:{SWS+3}], s30 offen offset:1024 {sc1} lds"),
                ("v", f"buffer_load_dwordx4 v16, s[{SWS}:{SWS+3}], s30 offen offset:2048 {sc1} lds"),
                ("s", "s_mov_b64 exec, -1"),
                ("s", "s_add_u32 s30, s30, 4096")]
    def chunk_dma(slot):
        for kind, t in chunk_dma_items(slot):
            if kind == "v": k.vmem(t, "c")
            else: k.e(t)
    if sparse_ones:
        k.e("v_and_b32 v9, 27, v1", "v_cmp_eq_u32 vcc, 16, v9", "v_mov_b32 v4, 0x3f803f80", "v_mov_b32 v5, 0", "s_nop 1", "v_cndmask_b32 v4, v5, v4, vcc")
    else:
        k.e("v_mov_b32 v4, 0x3f803f80")
    k.e("v_mov_b32 v5, v4", "v_mov_b32 v6, v4", "v_mov_b32 v7, v4",
        f"s_mul_i32 s33, s24, {SLOT}", "v_add_u32 v8, s33, v2", "s_mov_b32 s38, 0xffff0000", "s_mov_b32 s39, 0xffff0000", "s_mov_b64 exec, s[38:39]")
    for kb in range(4):
        for g in range(2): k.ds(f"ds_write_b128 v8, v[4:7] offset:{kb*3072 + 1024 + g*1024}")
    k.e("s_mov_b64 exec, -1")
    if pre_hook: pre_hook()
    k.e("s_lshl_b32 s36, s26, 3", "s_lshl_b32 s37, s24, 1", "s_add_u32 s36, s36, s37",
        "s_lshl_b32 s37, s25, 6", "s_add_u32 s37, s37, s36", "s_lshl_b32 s37, s37, 10", f"s_add_u32 s37, s37, 0x{WS_QF:x}")
    chunk_dma(0)
    k.vmem(f"buffer_load_dwordx4 v[{QA}:{QA+3}], v2, s[{SWS}:{SWS+3}], s37 offen {sc1}", "q")
    k.vmem(f"buffer_load_dwordx4 v[{QB}:{QB+3}], v2, s[{SWS}:{SWS+3}], s37 offen offset:1024 {sc1}", "q")
    chunk_dma(1); chunk_dma(2)
    if touch:
        k.e("s_and_b32 s36, s24, 1", f"s_mul_i32 s36, s36, 0x{WS_VF - WS_KF:x}", "s_lshl_b32 s37, s26, 13", "s_add_u32 s36, s36, s37",
            "s_lshl_b32 s37, s25, 16", "s_add_u32 s36, s36, s37", f"s_add_u32 s36, s36, 0x{WS_KF:x}", "v_lshlrev_b32 v20, 7, v1")
        k.vmem(f"buffer_load_dword v21, v20, s[{SWS}:{SWS+3}], s36 offen", "touch")
    for i in range(16):
        k.e(f"v_mov_b32 v{OA+i}, 0", f"v_mov_b32 v{OB+i}, 0")
    for i in range(8): k.e(f"v_mov_b32 v{PB+i}, 0", f"v_mov_b32 v{VB_[1]+i}, 0")
    if prehint:
        k.e("s_lshl_b32 s36, s26, 2", "s_add_u32 s36, s36, s24", "s_lshl_b32 s36, s36, 8", "s_lshl_b32 s37, s25, 3", "s_add_u32 s36, s36, s37",
            f"s_add_u32 s36, s36, 0x{FLG_P8:x}", "v_mov_b32 v24, s36", f"v_mov_b32 v26, s{SEP}", f"v_mov_b32 v27, s{SEP+1}")
    k.wait_vm("q")
    k.wait_lg_all()
    k.e("s_barrier")
    k.ds(f"ds_read_b128 v[{KB_[0]}:{KB_[0]+3}], v2 offset:0")
    k.ds(f"ds_read_b128 v[{KB_[1]}:{KB_[1]+3}], v2 offset:3072")
    k.wait_lg_all()
    k.e(f"{MF} v[{SA}:{SA+15}], v[{KB_[0]}:{KB_[0]+3}], v[{QA}:{QA+3}], 0",
        f"{MF} v[{SB}:{SB+15}], v[{KB_[0]}:{KB_[0]+3}], v[{QB}:{QB+3}], 0",
        f"{MF} v[{CA}:{CA+15}], v[{KB_[1]}:{KB_[1]+3}], v[{QA}:{QA+3}], 0",
        f"{MF} v[{CB}:{CB+15}], v[{KB_[1]}:{KB_[1]+3}], v[{QB}:{QB+3}], 0")
    k.e("s_nop 9")
    for x in range(2):
        k.e(f"v_max3_f32 v{10+x}, v{S[x]}, v{S[x]+1}, v{S[x]+2}")
        for i in range(3, 15, 2): k.e(f"v_max3_f32 v{10+x}, v{S[x]+i}, v{S[x]+i+1}, v{10+x}")
        k.e(f"v_max_f32 v{10+x}, v{S[x]+15}, v{10+x}")
    k.e("s_nop 4")
    for x in range(2):
        for i in range(0, 16, 2): k.e(f"v_max3_f32 v{10+x}, v{C[x]+i}, v{C[x]+i+1}, v{10+x}")
    k.e("v_mov_b32 v12, v10", "v_mov_b32 v13, v11", "s_nop 1", "v_permlane32_swap_b32 v10, v12", "v_permlane32_swap_b32 v11, v13", "s_nop 1",
        "v_max_f32 v10, v10, v12", "v_max_f32 v11, v11, v13")
    k.e(f"v_sub_f32 v10, 0x{f2u(-bias):08x}, v10", f"v_sub_f32 v11, 0x{f2u(-bias):08x}, v11")
    for i in range(16): k.e(f"v_mov_b32 v{CA+i}, v10", f"v_mov_b32 v{CB+i}, v11")
    k.e("s_nop 1")
    k.e(f"{MF} v[{SA}:{SA+15}], v[{KB_[0]}:{KB_[0]+3}], v[{QA}:{QA+3}], v[{CA}:{CA+15}]")
    k.e("s_nop 11")

    def valu_seq(x):
        s, p = S[x], P[x]
        out = []
        for i in range(8):
            out.append(f"v_exp_f32 v{s+2*i}, v{s+2*i}"); out.append(f"v_exp_f32 v{s+2*i+1}, v{s+2*i+1}")
            if i >= 1: out.append(f"v_cvt_pk_bf16_f32 v{p+i-1}, v{s+2*i-2}, v{s+2*i-1}")
        out.append(f"v_cvt_pk_bf16_f32 v{p+7}, v{s+14}, v{s+15}")
        return out
    def phase(mf3, x, slots):
        va = valu_seq(x)
        def put(j):
            if mf3[j]: k.e(mf3[j])
            for t in slots[j]: k.e(t)
        put(0)
        for i, t in enumerate(va):
            k.e(t)
            if i == 5: put(1)
            if i == 13: put(2)
    def pvs(x, vb):
        return [f"{MF} v[{O[x]}:{O[x]+15}], v[{vb}:{vb+3}], v[{P[x]}:{P[x]+3}], v[{O[x]}:{O[x]+15}]",
                f"{MF} v[{O[x]}:{O[x]+15}], v[{vb+4}:{vb+7}], v[{P[x]+4}:{P[x]+7}], v[{O[x]}:{O[x]+15}]"]
    def koff(c4, kk):
        n = c4*4 + kk
        return ((n // 4) % 4)*SLOT + (n % 4)*3072
    def block(c4, kk, kblk_left, sync, do_dma, extra=()):
        par = kk & 1
        vo = koff(c4, kk) + 1024
        sA = [[f"ds_read_b128 v[{VB_[par]}:{VB_[par]+3}], v2 offset:{vo}"],
              [f"ds_read_b128 v[{VB_[par]+4}:{VB_[par]+7}], v2 offset:{vo+1024}"],
              ["s_waitcnt lgkmcnt(1)"]]
        if sync is not None: sA[2] = [f"s_waitcnt vmcnt({sync}) lgkmcnt(1)", "s_barrier"]
        sA[1] = sA[1] + list(extra)
        pv = pvs(1, VB_[par ^ 1])
        phase([f"{MF} v[{SB}:{SB+15}], v[{KB_[par]}:{KB_[par]+3}], v[{QB}:{QB+3}], v[{CB}:{CB+15}]", pv[0], pv[1]], 0, sA)
        fm = None if kblk_left < 1 else f"{MF} v[{SA}:{SA+15}], v[{KB_[par^1]}:{KB_[par^1]+3}], v[{QA}:{QA+3}], v[{CA}:{CA+15}]"
        sB = [[], [], []]
        if kblk_left >= 2:
            sB[0] = [f"ds_read_b128 v[{KB_[par]}:{KB_[par]+3}], v2 offset:{koff(c4, kk + 2)}"]
            sB[1] = ["s_waitcnt lgkmcnt(1)"]
        else:
            sB[0] = ["s_waitcnt lgkmcnt(0)"]
        if do_dma:
            it = [t for _, t in chunk_dma_items((c4 + 3) % 4)]
            sB[1] = sB[1] + it[0:3]
            sB[2] = it[3:]
        pv = pvs(0, VB_[par])
        phase([fm, pv[0], pv[1]], 1, sB)
    k.vm = []; k.lg = []
    k.stamp(1)
    k.e("s_mov_b32 s36, 3")
    L = f"L_{tag}_loop"
    k.label(L)
    for c4 in range(4):
        for kk in range(4):
            block(c4, kk, 99, 3 if kk == 2 else None, kk == 2)
    k.e("s_sub_u32 s36, s36, 1", "s_cmp_lg_u32 s36, 0", f"s_cbranch_scc1 {L}")
    for c4 in range(4):
        for kk in range(4):
            sync = None; dm = False
            if kk == 2:
                if c4 == 0: sync, dm = 3, True
                elif c4 == 1: sync = 3
                elif c4 == 2: sync = 0
            left = (3 - c4)*4 + (3 - kk)
            ex = ()
            if prehint and left + 1 == prehint:
                assert c4 >= 2
                ex = ("s_mov_b64 exec, 1", f"buffer_store_dwordx2 v[26:27], v24, s[{SWS}:{SWS+3}], 0 offen sc1", "s_mov_b64 exec, -1")
            block(c4, kk, left, sync, dm, ex)
    k.vm = []
    k.stamp(2)
    k.e("s_nop 1")
    for t in pvs(1, VB_[1]): k.e(t)
    k.e("s_nop 11")
    for x in range(2):
        k.e(f"v_add_f32 v{10+x}, v{O[x]}, v{O[x]+8}")
        for i in range(1, 8): k.e(f"v_add_f32 v{10+x}, v{10+x}, v{O[x]+i}")
    k.e("v_add_f32 v10, v10, v11", "s_movk_i32 s33, 0x207", "v_cmp_class_f32 vcc, v10, s33")
    if force_fb: k.e("s_mov_b64 vcc, -1")
    k.e("s_nop 4", f"s_cbranch_vccnz L_{tag}_fb")
    k.label(f"L_{tag}_fin")
    for x in range(2): k.e(f"v_rcp_f32 v{10+x}, v{O[x]+8}")
    k.e("s_nop 0")
    k.e("s_lshl_b32 s36, s26, 3", "s_lshl_b32 s37, s24, 1", "s_add_u32 s36, s36, s37", "s_lshl_b32 s36, s36, 5", "s_add_u32 s36, s36, s25",
        "s_lshl_b32 s36, s36, 10", f"s_add_u32 s36, s36, 0x{WS_OF:x}")
    for x in range(2):
        if EPK2:
            for i in range(0, 8, 2): k.e(f"v_pk_mul_f32 v[{O[x]+i}:{O[x]+i+1}], v[{O[x]+i}:{O[x]+i+1}], v[10:11] op_sel:[0,{x}] op_sel_hi:[1,{x}]")
        else:
            for i in range(8): k.e(f"v_mul_f32 v{O[x]+i}, v{O[x]+i}, v{10+x}")
        for i in range(4): k.e(f"v_cvt_pk_bf16_f32 v{P[x]+i}, v{O[x]+2*i}, v{O[x]+2*i+1}")
        k.vmem(f"buffer_store_dwordx4 v[{P[x]}:{P[x]+3}], v2, s[{SWS}:{SWS+3}], s36 offen {sc1 if st_sc1 is None else st_sc1}", "st")
        if x == 0: k.e("s_add_u32 s36, s36, 32768")
    if oflag == "ep":
        k.e("s_lshl_b32 s36, s26, 2", "s_add_u32 s36, s36, s24", "s_lshl_b32 s36, s36, 8", "s_lshl_b32 s37, s25, 3", "s_add_u32 s36, s36, s37",
            f"s_add_u32 s36, s36, 0x{FLG_O8:x}", "v_mov_b32 v12, s36", f"v_mov_b32 v14, s{SEP}", f"v_mov_b32 v15, s{SEP+1}", "s_mov_b64 exec, 1")
        k.vmem(f"buffer_store_dwordx2 v[14:15], v12, s[{SWS}:{SWS+3}], 0 offen sc1", "st")
        k.e("s_mov_b64 exec, -1")
    elif oflag:
        k.e("s_lshl_b32 s36, s26, 2", "s_add_u32 s36, s36, s24", "s_lshl_b32 s36, s36, 7", "s_lshl_b32 s37, s25, 2", "s_add_u32 s36, s36, s37",
            f"s_add_u32 s36, s36, 0x{FLG_O:x}", "v_mov_b32 v12, s36", "v_mov_b32 v13, 1", "s_mov_b64 exec, 1")
        k.vmem(f"buffer_store_dword v13, v12, s[{SWS}:{SWS+3}], 0 offen sc1", "st")
        k.e("s_mov_b64 exec, -1")
    k.fb_code = lambda: e2_fallback(k, SWS, sc1, tag, S, O, C, P, Q, KB_, VB_)

def e2_fallback(k, SWS, sc1, tag, S, O, C, P, Q, KB_, VB_):
    k.label(f"L_{tag}_fb")
    KR = KB_[0]; VR = VB_[0]
    k.e("s_lshl_b32 s33, s25, 16", f"s_add_u32 s30, s33, 0x{WS_KF:x}", f"s_add_u32 s31, s33, 0x{WS_VF:x}")
    k.e("v_mov_b32 v10, 0xff800000", "v_mov_b32 v11, 0xff800000", "s_mov_b32 s36, 64", "s_mov_b32 s33, s30")
    k.label(f"L_{tag}_fb1")
    k.e(f"buffer_load_dwordx4 v[{KR}:{KR+3}], v2, s[{SWS}:{SWS+3}], s33 offen {sc1}", "s_waitcnt vmcnt(0)")
    for x in range(2): k.e(f"{MF} v[{S[x]}:{S[x]+15}], v[{KR}:{KR+3}], v[{Q[x]}:{Q[x]+3}], 0")
    k.e("s_nop 11")
    for x in range(2):
        for i in range(0, 16, 2): k.e(f"v_max3_f32 v{10+x}, v{S[x]+i}, v{S[x]+i+1}, v{10+x}")
    k.e("s_add_u32 s33, s33, 1024", "s_sub_u32 s36, s36, 1", "s_cmp_lg_u32 s36, 0", f"s_cbranch_scc1 L_{tag}_fb1")
    k.e("v_mov_b32 v12, v10", "v_mov_b32 v13, v11", "s_nop 1", "v_permlane32_swap_b32 v10, v12", "v_permlane32_swap_b32 v11, v13", "s_nop 1",
        "v_max_f32 v10, v10, v12", "v_max_f32 v11, v11, v13", "v_sub_f32 v10, 0, v10", "v_sub_f32 v11, 0, v11")
    for i in range(16):
        k.e(f"v_mov_b32 v{C[0]+i}, v10", f"v_mov_b32 v{C[1]+i}, v11", f"v_mov_b32 v{O[0]+i}, 0", f"v_mov_b32 v{O[1]+i}, 0")
    for i in range(8): k.e(f"v_mov_b32 v{VR+i}, 0x3f803f80")
    k.e("s_mov_b32 s36, 64")
    k.label(f"L_{tag}_fb2")
    k.e(f"buffer_load_dwordx4 v[{KR}:{KR+3}], v2, s[{SWS}:{SWS+3}], s30 offen {sc1}", "s_mov_b64 exec, s[28:29]",
        f"buffer_load_dwordx4 v[{VR}:{VR+3}], v3, s[{SWS}:{SWS+3}], s31 offen {sc1}",
        f"buffer_load_dwordx4 v[{VR+4}:{VR+7}], v3, s[{SWS}:{SWS+3}], s31 offen offset:512 {sc1}",
        "s_mov_b64 exec, -1", "s_waitcnt vmcnt(0)")
    for x in range(2): k.e(f"{MF} v[{S[x]}:{S[x]+15}], v[{KR}:{KR+3}], v[{Q[x]}:{Q[x]+3}], v[{C[x]}:{C[x]+15}]")
    k.e("s_nop 11")
    for x in range(2):
        for i in range(16): k.e(f"v_exp_f32 v{S[x]+i}, v{S[x]+i}")
        k.e("s_nop 0")
        for i in range(8): k.e(f"v_cvt_pk_bf16_f32 v{P[x]+i}, v{S[x]+2*i}, v{S[x]+2*i+1}")
    k.e("s_nop 1")
    for x in range(2):
        k.e(f"{MF} v[{O[x]}:{O[x]+15}], v[{VR}:{VR+3}], v[{P[x]}:{P[x]+3}], v[{O[x]}:{O[x]+15}]",
            f"{MF} v[{O[x]}:{O[x]+15}], v[{VR+4}:{VR+7}], v[{P[x]+4}:{P[x]+7}], v[{O[x]}:{O[x]+15}]")
    k.e("s_add_u32 s30, s30, 1024", "s_add_u32 s31, s31, 1024", "s_sub_u32 s36, s36, 1", "s_cmp_lg_u32 s36, 0", f"s_cbranch_scc1 L_{tag}_fb2")
    k.e("s_nop 11", f"s_branch L_{tag}_fin")

def k2_kernel(**kw):
    k = KV("k2_attn_kernel", nvgpr=256)
    k.e("s_cmp_ge_u32 s2, 256", f"s_cbranch_scc1 L_end_{k.name}")
    fx = srd(k, 20, 72, WS_SIZE)
    k.e("s_waitcnt lgkmcnt(0)"); k.e(*fx)
    k.e("s_and_b32 s3, s2, 7", "s_lshr_b32 s4, s2, 3", "s_and_b32 s5, s4, 3", "s_lshl_b32 s25, s3, 2", "s_add_u32 s25, s25, s5", "s_lshr_b32 s26, s4, 2")
    k.stamp(0)
    e2_body(k, **kw)
    k.wait_vm_all()
    k.stamp(3); k.stamp_out(4, 0x20000); k.wait_vm_all()
    k.label(f"L_end_{k.name}")
    k.e("s_endpgm")
    k.fb_code()
    return k

def e4_body(k, SD=12, SO=16, SWS=20, SX=8, SOUT=4, sc1="", tag="e4"):
    DEPTH = 8
    ACC = 64
    HR = 128
    WR = 16
    k.e("v_and_b32 v1, 63, v0", "v_lshrrev_b32 v10, 6, v0", "s_nop 0", "v_readfirstlane_b32 s24, v10")
    k.e("v_lshlrev_b32 v2, 4, v1")
    k.e("v_lshrrev_b32 v3, 3, v1", "v_lshlrev_b32 v3, 10, v3", "v_bfe_u32 v4, v1, 4, 1", "v_lshlrev_b32 v4, 2, v4", "v_and_b32 v5, 7, v1",
        "v_xor_b32 v4, v4, v5", "v_lshl_add_u32 v3, v4, 4, v3", "s_lshl_b32 s27, s26, 7", "v_add_u32 v3, s27, v3")
    k.e("v_lshrrev_b32 v4, 5, v1", "v_bfe_u32 v5, v1, 2, 2", "v_lshl_add_u32 v4, v4, 2, v5", "v_lshlrev_b32 v6, 7, v4",
        "v_bfe_u32 v4, v1, 4, 1", "v_lshlrev_b32 v4, 1, v4", "v_bfe_u32 v5, v1, 1, 1", "v_add_u32 v4, v4, v5",
        "v_bfe_u32 v5, v1, 3, 1", "v_lshlrev_b32 v5, 2, v5", "v_xor_b32 v4, v4, v5", "v_lshl_add_u32 v6, v4, 4, v6",
        "v_and_b32 v5, 1, v1", "v_lshl_add_u32 v6, v5, 3, v6", "s_lshl_b32 s28, s24, 14", "v_add_u32 v6, s28, v6", "v_xor_b32 v7, 64, v6")
    k.e("s_mul_i32 s29, s24, 458752",
        "s_mul_i32 s30, s25, 224", "s_mul_i32 s31, s24, 28", "s_add_u32 s30, s30, s31", "s_lshl_b32 s30, s30, 10", f"s_add_u32 s30, s30, 0x{WS_HF:x}",
        "s_lshl_b32 s34, s24, 17",
        "s_lshl_b32 s35, s25, 6", "s_lshl_b32 s31, s24, 3", "s_add_u32 s35, s35, s31", "s_lshl_b32 s35, s35, 10", f"s_add_u32 s35, s35, 0x{WS_OF:x}")
    NS = 36
    def issue(s):
        slot = s % DEPTH
        if s < 28: sr, sb, kk, hb, hstride = SD, 29, s, 30, 112*1024
        else: sr, sb, kk, hb, hstride = SO, 34, s - 28, 35, 32*1024
        for i in range(2):
            k.e(f"s_add_u32 m0, s28, {slot*2048 + i*1024}", f"s_add_u32 s33, s{sb}, {kk*16384 + i*8192}")
            k.vmem(f"buffer_load_dwordx4 v3, s[{sr}:{sr+3}], s33 offen lds", ("W", s))
        for tb in range(2):
            d = HR + slot*8 + 4*tb
            k.e(f"s_add_u32 s33, s{hb}, {kk*1024 + tb*hstride}")
            k.vmem(f"buffer_load_dwordx4 v[{d}:{d+3}], v2, s[{SWS}:{SWS+3}], s33 offen {sc1}", ("H", s))
    def reads(s):
        b = WR + 8*(s & 1); o = (s % DEPTH)*2048
        for cb2 in range(2):
            av = 6 + cb2
            k.ds(f"ds_read_b64_tr_b16 v[{b+4*cb2}:{b+4*cb2+1}], v{av} offset:{o}", ("r", s))
            k.ds(f"ds_read_b64_tr_b16 v[{b+4*cb2+2}:{b+4*cb2+3}], v{av} offset:{o+1024}", ("r", s))
    for s in range(DEPTH): issue(s)
    k.e("v_lshrrev_b32 v8, 3, v0", "s_lshl_b32 s31, s25, 6", "v_add_u32 v8, s31, v8", "v_lshlrev_b32 v8, 10, v8",
        "v_and_b32 v9, 7, v0", "v_lshl_add_u32 v8, v9, 4, v8", "v_add_u32 v8, s27, v8")
    k.vmem(f"buffer_load_dwordx4 v[32:35], v8, s[{SX}:{SX+3}], 0 offen", "x")
    k.e("s_mov_b32 s31, 32768")
    k.vmem(f"buffer_load_dwordx4 v[36:39], v8, s[{SX}:{SX+3}], s31 offen", "x")
    for i in range(64): k.e(f"v_mov_b32 v{ACC+i}, 0")
    k.stamp(1)
    k.wait_vm(("W", 0)); reads(0)
    for s in range(NS):
        if s + 1 < NS:
            k.wait_vm(("W", s + 1)); reads(s + 1)
        k.wait_vm(("H", s)); k.wait_lg(("r", s))
        b = WR + 8*(s & 1); h = HR + (s % DEPTH)*8
        for cb2 in range(2):
            for tb in range(2):
                a = ACC + 16*(cb2*2 + tb)
                k.e(f"{MF} v[{a}:{a+15}], v[{b+4*cb2}:{b+4*cb2+3}], v[{h+4*tb}:{h+4*tb+3}], v[{a}:{a+15}]")
        if s + DEPTH < NS: issue(s + DEPTH)
    k.stamp(2)
    k.e("s_nop 7", "s_barrier")
    RS = 272
    k.e("v_and_b32 v4, 31, v1", f"v_mul_u32_u24 v4, {RS}, v4", "v_lshrrev_b32 v5, 5, v1", "v_lshl_add_u32 v4, v5, 4, v4",
        f"s_mul_i32 s31, s24, {64*RS}", "v_add_u32 v4, s31, v4", "s_nop 3")
    for cb2 in range(2):
        for tb in range(2):
            a = ACC + 16*(cb2*2 + tb)
            for g in range(4):
                k.ds(f"ds_write_b128 v4, v[{a+4*g}:{a+4*g+3}] offset:{tb*32*RS + cb2*128 + g*32}")
    k.wait_lg_all()
    k.e("s_barrier")
    k.e("v_lshrrev_b32 v4, 3, v0", f"v_mul_u32_u24 v4, {RS}, v4", "v_and_b32 v5, 7, v0", "v_lshl_add_u32 v4, v5, 5, v4")
    for half in range(2):
        for w in range(4):
            d = 64 + half*32 + w*8
            for j in range(2):
                k.ds(f"ds_read_b128 v[{d+4*j}:{d+4*j+3}], v4 offset:{w*64*RS + half*32*RS + j*16}", ("rd", half))
    k.wait_vm("x")
    for half in range(2):
        k.wait_lg(("rd", half))
        d = 64 + half*32
        for i in range(8):
            k.e(f"v_add_f32 v{d+i}, v{d+i}, v{d+8+i}", f"v_add_f32 v{d+16+i}, v{d+16+i}, v{d+24+i}")
        for i in range(4):
            xr = 32 + 4*half + i
            k.e(f"v_lshlrev_b32 v{d+8+2*i}, 16, v{xr}", f"v_and_b32 v{d+9+2*i}, 0xffff0000, v{xr}")
        for i in range(8): k.e(f"v_add_f32 v{d+i}, v{d+i}, v{d+16+i}")
        for i in range(8): k.e(f"v_add_f32 v{d+i}, v{d+i}, v{d+8+i}")
        for i in range(4): k.e(f"v_cvt_pk_bf16_f32 v{40+4*half+i}, v{d+2*i}, v{d+2*i+1}")
        if half == 0: k.vmem(f"buffer_store_dwordx4 v[40:43], v8, s[{SOUT}:{SOUT+3}], 0 offen", "st")
        else: k.vmem(f"buffer_store_dwordx4 v[44:47], v8, s[{SOUT}:{SOUT+3}], s31 offen", "st") if False else None
    k.e("s_mov_b32 s31, 32768")
    k.vmem(f"buffer_store_dwordx4 v[44:47], v8, s[{SOUT}:{SOUT+3}], s31 offen", "st")

def k3_kernel():
    k = KV("k3_out_kernel", nvgpr=256)
    k.e("s_cmp_ge_u32 s2, 256", f"s_cbranch_scc1 L_end_{k.name}")
    fx = srd(k, 8, 0, SZ_X) + srd(k, 20, 72, WS_SIZE) + srd(k, 12, 48, SZ_WD) + srd(k, 16, 16, SZ_WO) + srd(k, 4, 56, SZ_X)
    k.e("s_waitcnt lgkmcnt(0)"); k.e(*fx)
    k.e("s_and_b32 s3, s2, 7", "s_lshr_b32 s27, s2, 3", "s_and_b32 s28, s27, 3", "s_lshl_b32 s25, s3, 2", "s_add_u32 s25, s25, s28", "s_lshr_b32 s26, s27, 2")
    k.stamp(0)
    e4_body(k)
    k.wait_vm_all()
    k.stamp(3); k.stamp_out(4, 0x40000); k.wait_vm_all()
    k.label(f"L_end_{k.name}")
    k.e("s_endpgm")
    return k

def stats_role(k, sc1="sc1"):
    k.e("s_cmp_ge_u32 s3, 128", "s_cbranch_scc1 L_st_col")
    row_job(k, 3, 8, 20, sc1=sc1, pre_store=lambda: epoch_issue(k, 74))
    k.wait_vm_all()
    epoch_check(k, 74)
    k.e("s_lshl_b32 s48, s3, 3", f"s_add_u32 s48, s48, 0x{FLG_ROW:x}")
    publish(k, 48)
    k.e("s_branch L_st_done")
    k.label("L_st_col")
    k.vm = []; k.lg = []
    k.e("s_sub_u32 s3, s3, 128")
    k.label("L_st_col2")
    k.e("s_mov_b32 s12, s28", "s_mov_b32 s13, s29", f"s_mov_b32 s14, {SZ_WQKV}", "s_mov_b32 s15, 0x00020000",
        "s_movk_i32 s16, 3072", "s_lshl_b32 s17, s3, 6",
        "s_bfe_u32 s48, s3, 0x30001", "s_lshl_b32 s48, s48, 7", "s_lshr_b32 s49, s3, 4", "s_lshl_b32 s49, s49, 4", "s_add_u32 s48, s48, s49",
        "s_and_b32 s49, s3, 1", "s_lshl_b32 s49, s49, 3", "s_add_u32 s48, s48, s49", f"s_add_u32 s48, s48, 0x{FLG_COLQ:x}",
        "s_cmp_lt_u32 s3, 48", "s_cbranch_scc1 L_st_go",
        "s_mov_b32 s12, s30", "s_mov_b32 s13, s31", f"s_mov_b32 s14, {SZ_WG}", "s_movk_i32 s16, 3584",
        "s_sub_u32 s50, s3, 48", "s_lshl_b32 s17, s50, 6", f"s_mov_b32 s51, 0x{FLG_COLG:x}",
        "s_cmp_lt_u32 s3, 104", "s_cbranch_scc1 L_st_gu",
        "s_mov_b32 s12, s32", "s_mov_b32 s13, s33", "s_sub_u32 s50, s3, 104", "s_lshl_b32 s17, s50, 6", f"s_mov_b32 s51, 0x{FLG_COLG + 32:x}")
    k.label("L_st_gu")
    k.e("s_lshr_b32 s48, s50, 2", "s_lshl_b32 s48, s48, 7", "s_and_b32 s49, s50, 3", "s_lshl_b32 s49, s49, 3", "s_add_u32 s48, s48, s49", "s_add_u32 s48, s48, s51")
    k.label("L_st_go")
    col_job(k, 3, 12, 16, 17, 20, sc1=sc1, pre_store=lambda: epoch_issue(k, 60))
    k.wait_vm_all()
    epoch_check(k, 60)
    publish(k, 48)
    k.e("s_cmp_lt_u32 s3, 96", "s_cbranch_scc1 L_st_done", "s_cmp_ge_u32 s3, 128", "s_cbranch_scc1 L_st_done",
        "s_add_u32 s3, s3, 32", "s_branch L_st_col2")
    k.label("L_st_done")

def kA_kernel(ue=4, up=7, uc=10, name="ka_qkv_kernel"):
    k = KV(name, nvgpr=256)
    k.e("s_cmp_ge_u32 s2, 512", f"s_cbranch_scc1 L_end_{k.name}")
    fx = srd(k, 8, 0, SZ_X) + srd(k, 20, 72, WS_SIZE)
    load_dbg(k)
    wave_id(k)
    k.e("s_cmp_ge_u32 s2, 256", "s_cbranch_scc1 L_ka_g")
    fx1 = srd(k, 12, 8, SZ_WQKV)
    k.e("s_waitcnt lgkmcnt(0)"); k.e(*(fx + fx1))
    epoch_make(k)
    k.e("s_and_b32 s26, s2, 7", "s_lshr_b32 s25, s2, 3")
    k.stamp(0)
    e1_body(k, stats_sync=(ue, up, uc))
    k.wait_vm_all()
    k.stamp(3); k.stamp_out(4, 0); k.wait_vm_all()
    k.e("s_endpgm")
    k.label("L_ka_g")
    k.vm = []; k.lg = []
    k.e("s_load_dwordx2 s[28:29], s[0:1], 8", "s_load_dwordx2 s[30:31], s[0:1], 32", "s_load_dwordx2 s[32:33], s[0:1], 40")
    k.e("s_waitcnt lgkmcnt(0)"); k.e(*fx)
    k.e("s_sub_u32 s3, s2, 256")
    k.stamp(0); k.stamp(1); k.stamp(2)
    stats_role(k)
    k.wait_vm_all()
    k.stamp(3); k.stamp_out(4, 0); k.wait_vm_all()
    k.label(f"L_end_{k.name}")
    k.e("s_endpgm")
    k.emit_tails()
    return k

def prefetch_role(k, jobs, s_idx, nwg):
    for (sr, nb) in jobs:
        per = nb // nwg
        assert per % 4096 == 0 or per % 1024 == 0
        k.e(f"s_mul_i32 s40, s{s_idx}, {per}", "v_lshlrev_b32 v1, 4, v0", "v_add_u32 v1, s40, v1")
        n = per // 4096
        rem = per % 4096
        k.e("s_mov_b32 s41, 0")
        for i in range(n):
            k.vmem(f"buffer_load_dwordx4 v[{4+4*(i%32)}:{7+4*(i%32)}], v1, s[{sr}:{sr+3}], s41 offen", "pf")
            k.e("s_add_u32 s41, s41, 4096")
        if rem:
            k.e(f"v_cmp_gt_u32 vcc, {rem//16}, v0" if rem//16 <= 64 else f"s_movk_i32 s42, {rem//16}\n v_cmp_gt_u32 vcc, s42, v0", "s_and_saveexec_b64 s[44:45], vcc")
            k.vmem(f"buffer_load_dwordx4 v[{4+4*(n%32)}:{7+4*(n%32)}], v1, s[{sr}:{sr+3}], s41 offen", "pf")
            k.e("s_mov_b64 exec, s[44:45]")
    k.wait_vm_all()

def kB_kernel(name="kb_attn_glu_kernel", prio_a=None, prio_g=None, **kw):
    k = KV(name, nvgpr=256)
    k.e("s_cmp_ge_u32 s2, 512", f"s_cbranch_scc1 L_end_{k.name}")
    fx = srd(k, 20, 72, WS_SIZE)
    k.e("s_cmp_ge_u32 s2, 256", "s_cbranch_scc1 L_kb_g")
    k.e("s_waitcnt lgkmcnt(0)"); k.e(*fx)
    if prio_a is not None: k.e(f"s_setprio {prio_a}")
    k.e("s_and_b32 s3, s2, 7", "s_lshr_b32 s4, s2, 3", "s_and_b32 s5, s4, 3", "s_lshl_b32 s25, s3, 2", "s_add_u32 s25, s25, s5", "s_lshr_b32 s26, s4, 2")
    k.stamp(0)
    e2_body(k, **kw)
    k.wait_vm_all()
    k.stamp(3); k.stamp_out(4, 0x20000); k.wait_vm_all()
    k.e("s_endpgm")
    fb = k.fb_code
    k.label("L_kb_g")
    k.vm = []; k.lg = []
    k.e("s_cmp_ge_u32 s2, 480", "s_cbranch_scc1 L_kb_pf")
    fx3 = srd(k, 8, 0, SZ_X) + srd(k, 12, 32, SZ_WG) + srd(k, 16, 40, SZ_WG)
    k.e("s_waitcnt lgkmcnt(0)"); k.e(*(fx + fx3))
    if prio_g is not None: k.e(f"s_setprio {prio_g}")
    k.e("s_sub_u32 s3, s2, 256", "s_and_b32 s4, s3, 7", "s_lshr_b32 s5, s3, 3", "s_mul_i32 s4, s4, 28", "s_add_u32 s4, s4, s5",
        "s_lshr_b32 s26, s4, 4", "s_and_b32 s25, s4, 15")
    k.stamp(0)
    e3_body(k)
    k.wait_vm_all()
    k.stamp(3); k.stamp_out(4, 0x20000); k.wait_vm_all()
    k.e("s_endpgm")
    k.label("L_kb_pf")
    k.vm = []; k.lg = []
    fxp = srd(k, 12, 48, SZ_WD) + srd(k, 16, 16, SZ_WO)
    k.e("s_waitcnt lgkmcnt(0)"); k.e(*fxp)
    k.e("s_sub_u32 s3, s2, 480")
    prefetch_role(k, [(12, SZ_WD), (16, SZ_WO)], 3, 32)
    k.label(f"L_end_{k.name}")
    k.e("s_endpgm")
    fb()
    k.emit_tails()
    return k

WS_XN = 0x1100000
WS_SIZE2 = 0x1300000
def e1n_body(k, SX=8, SW=12, SWS=20, sc1="", NS=7, fine=False, prep=False, l2warm=0, wtouch=None):
    WB = 65536
    assert WB + NS*12288 <= 163840
    k.e("v_and_b32 v1, 63, v0", "v_lshrrev_b32 v10, 6, v0", "s_nop 0", "v_readfirstlane_b32 s24, v10")
    XR = 128
    k.e("v_lshrrev_b32 v13, 3, v1", "v_and_b32 v15, 7, v1", "v_lshlrev_b32 v7, 4, v15", "v_lshl_add_u32 v7, v13, 10, v7",
        "s_lshl_b32 s29, s25, 16", "s_lshl_b32 s30, s24, 14", "s_add_u32 s29, s29, s30", "s_add_u32 s30, s29, 8192")
    for g in range(2):
        for j in range(8):
            d = XR + 32*g + 4*j
            k.vmem(f"buffer_load_dwordx4 v[{d}:{d+3}], v7, s[{SX}:{SX+3}], s{29+g} offen offset:{128*j}", ("x", g))
    k.e("v_and_b32 v11, 31, v1", "v_lshrrev_b32 v12, 5, v1", "v_lshrrev_b32 v14, 4, v1")
    k.e("s_and_b32 s27, s24, 1", "s_lshr_b32 s28, s24, 1")
    k.e("v_and_b32 v14, 1, v14", "v_lshlrev_b32 v14, 2, v14", "v_xor_b32 v9, v15, v14", "v_lshlrev_b32 v9, 4, v9",
        "s_lshl_b32 s31, s24, 3", "v_add_u32 v16, s31, v13", "v_mul_u32_u24 v16, 3072, v16", "v_add_u32 v9, v9, v16",
        "s_lshl_b32 s31, s26, 7", "v_add_u32 v9, s31, v9")
    k.e("s_lshl_b32 s32, s24, 10", f"s_add_u32 s32, s32, {WB}")
    def wd(u):
        return [dma(SW, 9, 32, (u % NS)*12288 + p*4096, 33, u*32*3072, ("W", u), imm=1024*p) for p in range(3)]
    for u in range(NS - 1): emit_groups(k, wd(u))
    if l2warm:
        nrow = (16 - (NS - 1))*32
        per = nrow // 16
        k.e("s_and_b32 s34, s25, 3", "s_lshl_b32 s34, s34, 2", "s_add_u32 s34, s34, s24", f"s_mul_i32 s34, s34, {per*3072}",
            f"s_add_u32 s34, s34, {(NS-1)*32*3072}", f"s_mul_i32 s35, s24, {8*3072}", "s_sub_u32 s34, s34, s35",
            "s_lshl_b32 s35, s24, 10", f"s_add_u32 m0, s35, {WB + NS*12288}")
        for r0 in range(0, per, 8):
            part = r0 + 8 > per
            assert (not part) or per % 8 == 4
            if part: k.e("s_mov_b64 exec, 0xffffffff")
            for p in range(3):
                k.e(f"s_add_u32 s35, s34, {r0*3072 + 1024*p}")
                k.vmem(f"buffer_load_dwordx4 v9, s[{SW}:{SW+3}], s35 offen lds", "warm")
            if part: k.e("s_mov_b64 exec, -1")
    if prep:
        k.e("v_mov_b32 v40, -1", "v_mov_b32 v41, -1", "v_mov_b32 v42, -1", "v_mov_b32 v43, -1", "v_lshlrev_b32 v48, 4, v0",
            "s_lshl_b32 s34, s2, 13", f"s_add_u32 s34, s34, 0x{WS_OF:x}")
        k.vmem(f"buffer_store_dwordx4 v[40:43], v48, s[{SWS}:{SWS+3}], s34 offen", "prep")
        k.e("s_add_u32 s34, s34, 4096")
        k.vmem(f"buffer_store_dwordx4 v[40:43], v48, s[{SWS}:{SWS+3}], s34 offen", "prep")
        Lp = k.newlabel("prep")
        k.e("v_mov_b32 v44, 0", "v_mov_b32 v45, 0", "v_mov_b32 v46, 0", "v_mov_b32 v47, 0", f"s_mov_b32 s34, 0x{FLG_H:x}",
            "s_lshl_b32 s35, s2, 12", "s_add_u32 s34, s34, s35", "s_cmp_ge_u32 s2, 2", f"s_cbranch_scc1 {Lp}")
        k.vmem(f"buffer_store_dwordx4 v[44:47], v48, s[{SWS}:{SWS+3}], s34 offen", "prep", opt=True)
        k.label(Lp)
    k.e("v_lshrrev_b32 v16, 1, v13", "v_xor_b32 v16, v15, v16", "v_lshlrev_b32 v16, 4, v16", "v_lshl_add_u32 v16, v13, 7, v16",
        "s_lshl_b32 s31, s24, 11", "v_add_u32 v16, s31, v16", "v_xor_b32 v17, 64, v16", "v_add_u32 v17, 1024, v17")
    k.e("s_lshl_b32 s36, s27, 5", "v_add_u32 v18, s36, v11", "v_bfe_u32 v19, v18, 1, 3", "v_xor_b32 v19, v19, v12",
        "v_lshlrev_b32 v19, 4, v19", "v_lshl_add_u32 v2, v18, 7, v19",
        "v_xor_b32 v3, 32, v2", "v_xor_b32 v4, 64, v2", "v_xor_b32 v5, 96, v2")
    k.e("v_bfe_u32 v18, v1, 2, 2", "v_lshl_add_u32 v18, v12, 3, v18", "v_lshlrev_b32 v6, 7, v18",
        "v_bfe_u32 v18, v1, 4, 1", "v_lshlrev_b32 v18, 1, v18", "v_bfe_u32 v19, v1, 1, 1", "v_add_u32 v18, v18, v19",
        "s_lshl_b32 s36, s28, 2", "v_add_u32 v18, s36, v18", "v_bfe_u32 v19, v1, 3, 1", "v_lshlrev_b32 v19, 2, v19",
        "v_xor_b32 v18, v18, v19", "v_lshl_add_u32 v6, v18, 4, v6", "v_and_b32 v19, 1, v1", "v_lshl_add_u32 v6, v19, 3, v6",
        f"v_add_u32 v6, {WB}, v6", f"v_add_u32 v8, {5*12288}, v6")
    F = [64, 192]
    k.e("s_mov_b32 s42, 0x3f803f80", "s_mov_b32 s43, 0x00003f80", "s_mov_b32 s44, 0x3f800000")
    A = [20, 24]
    for g in range(2):
        k.wait_vm(("x", g))
        for i in range(32):
            c = f"v{A[g] + i % 4}" if i >= 4 else "0"
            k.e(f"v_dot2_f32_bf16 v{A[g] + i % 4}, v{XR + 32*g + i}, s42, {c}")
    if fine: k.stamp(1)
    k.e("s_nop 2")
    def red8(regs):
        for b in regs: k.e(f"v_add_f32 v{b}, v{b}, v{b+1}", f"v_add_f32 v{b+2}, v{b+2}, v{b+3}")
        for b in regs: k.e(f"v_add_f32 v{b}, v{b}, v{b+2}")
        k.e("s_nop 1")
        for mode in ("quad_perm:[1,0,3,2]", "quad_perm:[2,3,0,1]", "row_half_mirror"):
            for b in regs: k.e(f"v_add_f32_dpp v{b}, v{b}, v{b} {mode} row_mask:0xf bank_mask:0xf")
            k.e("s_nop 1")
    red8(A)
    for g in range(2): k.e(f"v_mul_f32 v{A[g]}, 0xbb000000, v{A[g]}")
    k.e("s_nop 0")
    for g in range(2):
        for i in range(32):
            k.e(f"v_dot2_f32_bf16 v{F[g] + 2*i}, v{XR + 32*g + i}, s43, v{A[g]}", f"v_dot2_f32_bf16 v{F[g] + 2*i + 1}, v{XR + 32*g + i}, s44, v{A[g]}")
    k.e("s_nop 2")
    B = [28, 32]
    for g in range(2):
        for i in range(32):
            a = B[g] + 2*(i % 2); d = F[g] + 2*i
            if i < 2: k.e(f"v_pk_mul_f32 v[{a}:{a+1}], v[{d}:{d+1}], v[{d}:{d+1}]")
            else: k.e(f"v_pk_fma_f32 v[{a}:{a+1}], v[{d}:{d+1}], v[{d}:{d+1}], v[{a}:{a+1}]")
    red8(B)
    k.e("v_mov_b32 v36, 0x3727c5ac", "v_mov_b32 v38, 0x3727c5ac")
    for g in range(2): k.e(f"v_fmac_f32 v{36+2*g}, 0x3b000000, v{B[g]}")
    for g in range(2): k.e(f"v_rsq_f32 v{36+2*g}, v{36+2*g}")
    k.e("s_nop 0")
    for g in range(2):
        for j in range(8):
            for i in range(4):
                d = F[g] + 2*(4*j + i)
                k.e(f"v_pk_mul_f32 v[{d}:{d+1}], v[{d}:{d+1}], v[{36+2*g}:{37+2*g}] op_sel_hi:[1,0]")
            for i in range(4):
                d = F[g] + 2*(4*j + i)
                k.e(f"v_cvt_pk_bf16_f32 v{XR + 32*g + 4*j + i}, v{d}, v{d+1}")
            k.ds(f"ds_write_b128 v{16+g}, v[{XR + 32*g + 4*j}:{XR + 32*g + 4*j + 3}] offset:{8192*j}")
    Ls = k.newlabel("xn"); L1 = k.newlabel("xn1")
    k.e("s_lshr_b32 s36, s26, 1", "s_cmp_lg_u32 s36, s24", f"s_cbranch_scc1 {Ls}",
        "s_lshl_b32 s36, s25, 16", "s_lshl_b32 s37, s26, 13", "s_add_u32 s36, s36, s37", f"s_add_u32 s36, s36, 0x{WS_XN:x}",
        "s_bitcmp1_b32 s26, 0", f"s_cbranch_scc1 {L1}")
    for g in range(2):
        if g == 1: k.label(L1)
        for j in range(8):
            d = XR + 32*g + 4*j
            k.vmem(f"buffer_store_dwordx4 v[{d}:{d+3}], v7, s[{SWS}:{SWS+3}], s36 offen offset:{128*j} {sc1}", "xn", opt=True)
        if g == 0: k.e(f"s_branch {Ls}")
    k.label(Ls)
    def fr(st): return 16 + 16*st + 24
    def reads(g, st):
        b = fr(st); u = g >> 1; v = g >> 2
        out = [(f"ds_read_b128 v[{b}:{b+3}], v{2 + (g & 3)} offset:{v*8192}", "X")]
        sl = u % NS
        av, so = (6, sl*12288) if sl < 5 else (8, (sl - 5)*12288)
        for p in range(3):
            o = so + p*4096 + (g & 1)*2048
            out.append((f"ds_read_b64_tr_b16 v[{b+4+4*p}:{b+5+4*p}], v{av} offset:{o}", f"W{p}"))
            out.append((f"ds_read_b64_tr_b16 v[{b+6+4*p}:{b+7+4*p}], v{av} offset:{o+512}", f"W{p}"))
        return out
    ACC = 80
    def mfmas(g, st):
        out = []
        b_x = fr(st); b_w = b_x + 4
        for p in range(3):
            a = ACC + 16*p
            w = f"v[{b_w+4*p}:{b_w+4*p+3}]"; x = f"v[{b_x}:{b_x+3}]"
            A_, B_ = (w, x) if p < 2 else (x, w)
            c = "0" if g == 0 else f"v[{a}:{a+15}]"
            out.append((f"{MF} v[{a}:{a+15}], {A_}, {B_}, {c}", ["X", f"W{p}"]))
        return out
    def dmas(u):
        return wd(u + NS - 1) if u + NS - 1 < 16 else []
    hooks = None
    if wtouch:
        def h_t():
            k.e("s_lshl_b32 s34, s2, 8", "v_add_u32 v72, s34, v0", "v_lshlrev_b32 v72, 7, v72", "s_lshl_b32 s35, s24, 10", f"s_add_u32 m0, s35, {WB + NS*12288}")
            start = 0
            for i, (sr, nb) in enumerate(wtouch):
                k.e(f"v_subrev_u32 v{73+i}, 0x{start:x}, v72")
                k.vmem(f"buffer_load_dword v{73+i}, s[{sr}:{sr+3}], 0 offen lds", "wt")
                start += nb
            assert start <= 65536*128
        hooks = {16 - NS: [h_t]}
    k.stamp(2 if fine else 1)
    gemm_loop(k, 16, mfmas, reads, dmas, lambda u: [("W", u)], hooks=hooks)
    if not fine: k.stamp(2)
    k.e("v_lshlrev_b32 v10, 4, v1",
        "s_lshl_b32 s36, s26, 2", "s_lshl_b32 s37, s28, 1", "s_add_u32 s36, s36, s37", "s_lshl_b32 s36, s36, 16",
        "s_lshl_b32 s37, s25, 1", "s_add_u32 s37, s37, s27", "s_lshl_b32 s37, s37, 10", "s_add_u32 s36, s36, s37")
    k.e("v_lshrrev_b32 v13, 4, v11", "v_lshlrev_b32 v13, 16, v13", "v_lshl_add_u32 v13, v12, 8, v13", "v_and_b32 v14, 15, v11",
        "v_lshl_add_u32 v13, v14, 4, v13", f"s_mov_b32 s38, 0x{f2u(0.25*LOG2E):08x}")
    k.e("s_nop 7")
    for p, base in enumerate((WS_QF, WS_KF)):
        a = ACC + 16*p
        if p == 0:
            for r in range(16): k.e(f"v_mul_f32 v{a+r}, s38, v{a+r}")
        for j in range(2):
            d = 16 + 8*p + 4*j
            for i in range(4): k.e(f"v_cvt_pk_bf16_f32 v{d+i}, v{a+8*j+2*i}, v{a+8*j+2*i+1}")
            k.e(f"s_add_u32 s37, s36, 0x{base + j*65536:x}")
            k.vmem(f"buffer_store_dwordx4 v[{d}:{d+3}], v10, s[{SWS}:{SWS+3}], s37 offen {sc1}", "st")
    a = ACC + 32
    k.e(f"s_add_u32 s37, s36, 0x{WS_VF:x}")
    for j in range(2):
        d = 32 + 4*j
        for i in range(4): k.e(f"v_cvt_pk_bf16_f32 v{d+i}, v{a+8*j+2*i}, v{a+8*j+2*i+1}")
        k.vmem(f"buffer_store_dwordx4 v[{d}:{d+3}], v13, s[{SWS}:{SWS+3}], s37 offen offset:{512*j} {sc1}", "st")

def kA2_kernel(name="ka_qkv_kernel", mapping=0, wtouch=False, **kw):
    k = KV(name, nvgpr=256)
    k.e("s_cmp_ge_u32 s2, 256", f"s_cbranch_scc1 L_end_{k.name}")
    fx = srd(k, 8, 0, SZ_X) + srd(k, 20, 72, WS_SIZE2) + srd(k, 12, 8, SZ_WQKV)
    if wtouch:
        fx += srd(k, 76, 32, SZ_WG) + srd(k, 80, 40, SZ_WG) + srd(k, 84, 48, SZ_WD) + srd(k, 88, 16, SZ_WO)
        kw["wtouch"] = [(76, SZ_WG), (80, SZ_WG), (84, SZ_WD), (88, SZ_WO)]
    k.e("s_waitcnt lgkmcnt(0)"); k.e(*fx)
    if mapping == 0:
        k.e("s_and_b32 s26, s2, 7", "s_lshr_b32 s25, s2, 3")
    elif mapping == 1:
        k.e("s_and_b32 s3, s2, 7", "s_lshr_b32 s4, s2, 3", "s_and_b32 s5, s4, 3", "s_lshl_b32 s25, s3, 2", "s_add_u32 s25, s25, s5", "s_lshr_b32 s26, s4, 2")
    elif mapping == 2:
        k.e("s_and_b32 s3, s2, 7", "s_lshr_b32 s4, s2, 3", "s_and_b32 s5, s3, 3", "s_lshl_b32 s26, s5, 1", "s_and_b32 s5, s4, 1", "s_add_u32 s26, s26, s5",
            "s_lshr_b32 s25, s3, 2", "s_lshl_b32 s25, s25, 4", "s_lshr_b32 s5, s4, 1", "s_add_u32 s25, s25, s5")
    elif mapping == 3:
        k.e("s_and_b32 s3, s2, 7", "s_lshr_b32 s4, s2, 3", "s_and_b32 s5, s3, 1", "s_lshl_b32 s26, s5, 2", "s_and_b32 s5, s4, 3", "s_add_u32 s26, s26, s5",
            "s_lshr_b32 s25, s3, 1", "s_lshl_b32 s25, s25, 3", "s_lshr_b32 s5, s4, 2", "s_add_u32 s25, s25, s5")
    k.stamp(0)
    e1n_body(k, **kw)
    k.wait_vm_all()
    k.stamp(3); k.stamp_out(4, 0); k.wait_vm_all()
    k.label(f"L_end_{k.name}")
    k.e("s_endpgm")
    return k


def kB2_kernel(name="kb_attn_glu_kernel", prio_a=None, prio_g=None, epi_prio=None, prefetch=True, **kw):
    k = KV(name, nvgpr=256)
    k.e("s_cmp_ge_u32 s2, 512", f"s_cbranch_scc1 L_end_{k.name}")
    fx = srd(k, 20, 72, WS_SIZE2)
    k.e("s_cmp_ge_u32 s2, 256", "s_cbranch_scc1 L_kb_g")
    k.e("s_waitcnt lgkmcnt(0)"); k.e(*fx)
    if prio_a is not None: k.e(f"s_setprio {prio_a}")
    k.e("s_and_b32 s3, s2, 7", "s_lshr_b32 s4, s2, 3", "s_and_b32 s5, s4, 3", "s_lshl_b32 s25, s3, 2", "s_add_u32 s25, s25, s5", "s_lshr_b32 s26, s4, 2")
    k.stamp(0)
    e2_body(k, **kw)
    k.wait_vm_all()
    k.stamp(3); k.stamp_out(4, 0x20000); k.wait_vm_all()
    k.e("s_endpgm")
    fb = k.fb_code
    k.label("L_kb_g")
    k.vm = []; k.lg = []
    k.e("s_cmp_ge_u32 s2, 480", "s_cbranch_scc1 L_kb_pf")
    fx3 = srd(k, 12, 32, SZ_WG) + srd(k, 16, 40, SZ_WG)
    k.e("s_waitcnt lgkmcnt(0)"); k.e(*(fx + fx3))
    if prio_g is not None: k.e(f"s_setprio {prio_g}")
    k.e("s_sub_u32 s3, s2, 256", "s_and_b32 s4, s3, 7", "s_lshr_b32 s5, s3, 3", "s_mul_i32 s4, s4, 28", "s_add_u32 s4, s4, s5",
        "s_lshr_b32 s26, s4, 4", "s_and_b32 s25, s4, 15")
    k.stamp(0)
    e3_body(k, SX=20, norm=True, xoff=WS_XN, epi_prio=epi_prio)
    k.wait_vm_all()
    k.stamp(3); k.stamp_out(4, 0x20000); k.wait_vm_all()
    k.e("s_endpgm")
    k.label("L_kb_pf")
    k.vm = []; k.lg = []
    if prefetch:
        fxp = srd(k, 12, 48, SZ_WD) + srd(k, 16, 16, SZ_WO)
        k.e("s_waitcnt lgkmcnt(0)"); k.e(*fxp)
        k.e("s_sub_u32 s3, s2, 480")
        prefetch_role(k, [(12, SZ_WD), (16, SZ_WO)], 3, 32)
    k.label(f"L_end_{k.name}")
    k.e("s_endpgm")
    fb()
    k.emit_tails()
    return k


class E4F:
    DEPTH = 8; ACC = 64; HR = 128; WR = 16; WOF = 192
    V16 = 48; VW = 49; VT = 50; VX = 52; VPH = 53; VPO = 54; VP = 55; VC = 56
    SB = 40; SDO = 41; SH = 42; SWO = 43; SO_ = 44; ST = 45; SCB = 46; SRB = 47; SC = 48; SK = 49
    def __init__(self, k, SD, SO, SWS, SX, SOUT, hsleep=2, osleep=2, ep=False):
        self.k = k; self.SD = SD; self.SO = SO; self.SWS = SWS; self.SX = SX; self.SOUT = SOUT
        self.hsleep = hsleep; self.osleep = osleep; self.ep = ep
        if ep: self.VP = 58
    def setup(self):
        k = self.k; c = self
        a, b = 56, 57
        k.e(f"v_lshlrev_b32 v{c.V16}, 4, v1", f"s_lshl_b32 s{c.ST}, s{c.SCB}, 7",
            f"v_lshrrev_b32 v{c.VW}, 3, v1", f"v_lshlrev_b32 v{c.VW}, 10, v{c.VW}", f"v_bfe_u32 v{a}, v1, 4, 1", f"v_lshlrev_b32 v{a}, 2, v{a}", f"v_and_b32 v{b}, 7, v1",
            f"v_xor_b32 v{a}, v{a}, v{b}", f"v_lshl_add_u32 v{c.VW}, v{a}, 4, v{c.VW}", f"v_add_u32 v{c.VW}, s{c.ST}, v{c.VW}")
        k.e(f"v_lshrrev_b32 v{a}, 5, v1", f"v_bfe_u32 v{b}, v1, 2, 2", f"v_lshl_add_u32 v{a}, v{a}, 2, v{b}", f"v_lshlrev_b32 v{c.VT}, 7, v{a}",
            f"v_bfe_u32 v{a}, v1, 4, 1", f"v_lshlrev_b32 v{a}, 1, v{a}", f"v_bfe_u32 v{b}, v1, 1, 1", f"v_add_u32 v{a}, v{a}, v{b}",
            f"v_bfe_u32 v{b}, v1, 3, 1", f"v_lshlrev_b32 v{b}, 2, v{b}", f"v_xor_b32 v{a}, v{a}, v{b}", f"v_lshl_add_u32 v{c.VT}, v{a}, 4, v{c.VT}",
            f"v_and_b32 v{b}, 1, v1", f"v_lshl_add_u32 v{c.VT}, v{b}, 3, v{c.VT}", f"s_lshl_b32 s{c.SB}, s24, 14", f"v_add_u32 v{c.VT}, s{c.SB}, v{c.VT}",
            f"v_xor_b32 v{c.VT+1}, 64, v{c.VT}")
        k.e(f"s_mul_i32 s{c.SDO}, s24, 458752",
            f"s_mul_i32 s{c.SH}, s{c.SRB}, 224", f"s_mul_i32 s{c.SC}, s24, 28", f"s_add_u32 s{c.SH}, s{c.SH}, s{c.SC}", f"s_lshl_b32 s{c.SH}, s{c.SH}, 10", f"s_add_u32 s{c.SH}, s{c.SH}, 0x{WS_HF:x}",
            f"s_lshl_b32 s{c.SWO}, s24, 17",
            f"s_lshl_b32 s{c.SO_}, s{c.SRB}, 6", f"s_lshl_b32 s{c.SC}, s24, 3", f"s_add_u32 s{c.SO_}, s{c.SO_}, s{c.SC}", f"s_lshl_b32 s{c.SO_}, s{c.SO_}, 10", f"s_add_u32 s{c.SO_}, s{c.SO_}, 0x{WS_OF:x}")
        k.e(f"v_lshrrev_b32 v{c.VX}, 3, v0", f"s_lshl_b32 s{c.SC}, s{c.SRB}, 6", f"v_add_u32 v{c.VX}, s{c.SC}, v{c.VX}", f"v_lshlrev_b32 v{c.VX}, 10, v{c.VX}",
            f"v_and_b32 v{a}, 7, v0", f"v_lshl_add_u32 v{c.VX}, v{a}, 4, v{c.VX}", f"v_add_u32 v{c.VX}, s{c.ST}, v{c.VX}")
        sh = 1 if c.ep else 0
        fh, fo = (FLG_H8, FLG_O8) if c.ep else (FLG_H, FLG_O)
        k.e(f"v_min_u32 v{c.VPH}, 6, v1", f"s_mul_i32 s{c.SC}, s24, 7", f"v_add_u32 v{c.VPH}, s{c.SC}, v{c.VPH}", f"v_lshlrev_b32 v{c.VPH}, {2+sh}, v{c.VPH}",
            f"s_lshl_b32 s{c.SC}, s{c.SRB}, {7+sh}", f"s_add_u32 s{c.SC}, s{c.SC}, 0x{fh:x}", f"v_add_u32 v{c.VPH}, s{c.SC}, v{c.VPH}")
        k.e(f"v_and_b32 v{a}, 7, v1", f"v_lshlrev_b32 v{c.VPO}, {2+sh}, v{a}", f"s_lshl_b32 s{c.SC}, s{c.SRB}, {7+sh}", f"s_lshl_b32 s{c.SK}, s24, {5+sh}",
            f"s_add_u32 s{c.SC}, s{c.SC}, s{c.SK}", f"s_add_u32 s{c.SC}, s{c.SC}, 0x{fo:x}", f"v_add_u32 v{c.VPO}, s{c.SC}, v{c.VPO}")
    def touchW(self, vd):
        k = self.k; c = self
        a = 56
        k.e(f"s_and_b32 s{c.SC}, s{c.SRB}, 3", f"s_mul_i32 s{c.SK}, s{c.SC}, {112*1024}", f"s_add_u32 s{c.SK}, s{c.SK}, s{c.SDO}",
            f"s_lshl_b32 s{c.ST}, s{c.SCB}, 7", f"v_lshlrev_b32 v{a}, 10, v1", f"v_add_u32 v{a}, s{c.ST}, v{a}")
        k.vmem(f"buffer_load_dword v{vd}, v{a}, s[{c.SD}:{c.SD+3}], s{c.SK} offen", "touch")
        k.e(f"s_add_u32 s{c.SK}, s{c.SK}, 65536", "s_mov_b32 exec_hi, 0xffff")
        k.vmem(f"buffer_load_dword v{vd}, v{a}, s[{c.SD}:{c.SD+3}], s{c.SK} offen", "touch")
        k.e(f"s_lshl_b32 s{c.SK}, s{c.SC}, 15", f"s_add_u32 s{c.SK}, s{c.SK}, s{c.SWO}", "s_mov_b64 exec, 0xffffffff")
        k.vmem(f"buffer_load_dword v{vd}, v{a}, s[{c.SO}:{c.SO+3}], s{c.SK} offen", "touch")
        k.e("s_mov_b64 exec, -1")
    def issueW(self, s):
        k = self.k; c = self
        slot = s % c.DEPTH
        sr, sb, kk = (c.SD, c.SDO, s) if s < 28 else (c.SO, c.SWO, s - 28)
        for i in range(2):
            k.e(f"s_add_u32 m0, s{c.SB}, {slot*2048 + i*1024}", f"s_add_u32 s{c.ST}, s{sb}, {kk*16384 + i*8192}")
            k.vmem(f"buffer_load_dwordx4 v{c.VW}, s[{sr}:{sr+3}], s{c.ST} offen lds", ("W", s))
    def issueH(self, s):
        k = self.k; c = self
        slot = s % c.DEPTH
        kk, hb, hstride = (s, c.SH, 112*1024) if s < 28 else (s - 28, c.SO_, 32*1024)
        for tb in range(2):
            d = c.HR + slot*8 + 4*tb
            k.e(f"s_add_u32 s{c.ST}, s{hb}, {kk*1024 + tb*hstride}")
            k.vmem(f"buffer_load_dwordx4 v[{d}:{d+3}], v{c.V16}, s[{c.SWS}:{c.SWS+3}], s{c.ST} offen {c.hsc1 if s < 28 else 'sc1'}", ("H", s))
    def reads(self, s, b):
        k = self.k; c = self
        o = (s % c.DEPTH)*2048
        for cb2 in range(2):
            av = c.VT + cb2
            k.ds(f"ds_read_b64_tr_b16 v[{b+4*cb2}:{b+4*cb2+1}], v{av} offset:{o}", ("r", s))
            k.ds(f"ds_read_b64_tr_b16 v[{b+4*cb2+2}:{b+4*cb2+3}], v{av} offset:{o+1024}", ("r", s))
    def mf(self, s, b, first):
        k = self.k; c = self
        h = c.HR + (s % c.DEPTH)*8
        for cb2 in range(2):
            for tb in range(2):
                a = c.ACC + 16*(cb2*2 + tb)
                k.e(f"{MF} v[{a}:{a+15}], v[{b+4*cb2}:{b+4*cb2+3}], v[{h+4*tb}:{h+4*tb+3}], " + ("0" if first else f"v[{a}:{a+15}]"))
    def spin(self, tag, issue_txt, ok_cmp, sleep, back=None):
        k = self.k; c = self
        L = k.newlabel(tag); Lc = k.newlabel(tag + "c")
        k.e(f"s_mov_b32 s{c.SK}, 0")
        k.label(L)
        k.e(issue_txt, f"s_add_u32 s{c.SK}, s{c.SK}, 1", "s_waitcnt vmcnt(0)", ok_cmp, "s_nop 3", "s_cmp_eq_u64 vcc, -1", f"s_cbranch_scc1 {Lc}")
        if back:
            mask, t1, s1, t2, s2 = back
            La = k.newlabel(tag + "a"); Lb = k.newlabel(tag + "b"); Ld = k.newlabel(tag + "d")
            k.e(f"s_and_b32 s{c.SC}, vcc_lo, 0x{mask:x}", f"s_bcnt1_i32_b32 s{c.SC}, s{c.SC}", f"s_cmp_lt_u32 s{c.SC}, {t1}", f"s_cbranch_scc1 {La}",
                f"s_cmp_lt_u32 s{c.SC}, {t2}", f"s_cbranch_scc1 {Lb}", f"s_sleep {sleep}", f"s_branch {Ld}")
            k.label(La); k.e(f"s_sleep {s1}", f"s_branch {Ld}")
            k.label(Lb); k.e(f"s_sleep {s2}")
            k.label(Ld)
        else:
            k.e(f"s_sleep {sleep}")
        k.e(f"s_cmp_lt_u32 s{c.SK}, 0x{SPIN_MAX:x}", f"s_cbranch_scc1 {L}")
        k.label(Lc)
        k.vm = []
    def pollt(self, va):
        c = self
        if c.ep: return (f"buffer_load_dwordx2 v[{c.VP}:{c.VP+1}], v{va}, s[{c.SWS}:{c.SWS+3}], 0 offen sc1", f"v_cmp_eq_u64 vcc, s[{SEP}:{SEP+1}], v[{c.VP}:{c.VP+1}]")
        return (f"buffer_load_dword v{c.VP}, v{va}, s[{c.SWS}:{c.SWS+3}], 0 offen sc1", f"v_cmp_eq_u32 vcc, 1, v{c.VP}")
    def reduce(self, dst, addx, lds_base=0):
        k = self.k; c = self
        RS = 272
        k.e("s_nop 7", "s_barrier")
        k.e("v_and_b32 v4, 31, v1", f"v_mul_u32_u24 v4, {RS}, v4", "v_lshrrev_b32 v5, 5, v1", "v_lshl_add_u32 v4, v5, 4, v4",
            f"s_mul_i32 s{c.SC}, s24, {64*RS}", f"v_add_u32 v4, s{c.SC}, v4", "s_nop 3")
        for cb2 in range(2):
            for tb in range(2):
                a = c.ACC + 16*(cb2*2 + tb)
                for g in range(4):
                    k.ds(f"ds_write_b128 v4, v[{a+4*g}:{a+4*g+3}] offset:{lds_base + tb*32*RS + cb2*128 + g*32}")
        k.e("v_lshrrev_b32 v6, 3, v0", f"v_mul_u32_u24 v6, {RS}, v6", "v_and_b32 v5, 7, v0", "v_lshl_add_u32 v6, v5, 5, v6")
        k.wait_lg_all()
        k.e("s_barrier")
        for half in range(2):
            for w in range(4):
                d = 64 + half*32 + w*8
                for j in range(2):
                    k.ds(f"ds_read_b128 v[{d+4*j}:{d+4*j+3}], v6 offset:{lds_base + w*64*RS + half*32*RS + j*16}", ("rd", half))
        if addx: k.wait_vm("x")
        for half in range(2):
            k.wait_lg(("rd", half))
            d = 64 + half*32; o = dst + 8*half
            def padd(D_, A_, B_):
                if EPK:
                    for i in range(0, 8, 2): k.e(f"v_pk_add_f32 v[{D_+i}:{D_+i+1}], v[{A_+i}:{A_+i+1}], v[{B_+i}:{B_+i+1}]")
                else:
                    for i in range(8): k.e(f"v_add_f32 v{D_+i}, v{A_+i}, v{B_+i}")
            if EPK:
                padd(d, d, d + 8); padd(d + 16, d + 16, d + 24)
            else:
                for i in range(8):
                    k.e(f"v_add_f32 v{d+i}, v{d+i}, v{d+8+i}", f"v_add_f32 v{d+16+i}, v{d+16+i}, v{d+24+i}")
            if addx:
                for i in range(4):
                    xr = 40 + 4*half + i
                    k.e(f"v_lshlrev_b32 v{d+8+2*i}, 16, v{xr}", f"v_and_b32 v{d+9+2*i}, 0xffff0000, v{xr}")
                padd(d, d, d + 16)
                padd(o, d, d + 8)
            else:
                padd(d, d, d + 16)
                padd(o, o, d)
    def body(self, pre_issued=True, st=(1, 2), hwait=True):
        k = self.k; c = self
        D = c.DEPTH
        if not pre_issued:
            for s in range(D): c.issueW(s)
        k.vmem(f"buffer_load_dwordx4 v[40:43], v{c.VX}, s[{c.SX}:{c.SX+3}], 0 offen", "x")
        k.e(f"s_mov_b32 s{c.ST}, 32768")
        k.vmem(f"buffer_load_dwordx4 v[44:47], v{c.VX}, s[{c.SX}:{c.SX+3}], s{c.ST} offen", "x")
        if hwait:
            c.spin("hsp", *c.pollt(c.VPH), c.hsleep, back=getattr(c, "hback", None))
        c.hsc1 = "sc1" if hwait else ""
        k.stamp(st[0])
        if c.e4_prio is not None: k.e(f"s_setprio {c.e4_prio}")
        for s in range(D): c.issueH(s)
        c.reads(0, c.WR)
        for s in range(28):
            if s + 1 < 28:
                k.wait_vm(("W", s + 1)); c.reads(s + 1, c.WR + 8*((s + 1) & 1))
            k.wait_vm(("H", s)); k.wait_lg(("r", s))
            c.mf(s, c.WR + 8*(s & 1), s == 0)
            if s + D < 36:
                c.issueW(s + D)
                if s + D < 28: c.issueH(s + D)
        for s in range(28, 36):
            k.wait_vm(("W", s)); c.reads(s, c.WOF + 8*(s - 28))
        k.wait_lg_all()
        c.reduce(32, True)
        k.stamp(st[1])
        if c.e4_prio is not None: k.e(f"s_setprio {c.post_prio or 0}")
        Lr = k.newlabel("oretry"); Lg = k.newlabel("ogo"); Ld = k.newlabel("odone")
        k.e(f"s_mov_b32 s{c.SK+1}, 0")
        if getattr(c, "pre", 0):
            VPP = 55
            k.e(f"v_add_u32 v{VPP}, 0x{FLG_P8 - FLG_O8:x}, v{c.VPO}")
            c.spin("psp", *c.pollt(VPP), c.osleep, back=getattr(c, "pback", None))
            for s in range(28, 36): c.issueH(s)
            for s in range(28, 36):
                L = k.newlabel("ochk"); La = k.newlabel("oacc"); Lre = k.newlabel("ore")
                k.label(L)
                k.wait_vm(("H", s))
                h = c.HR + (s % D)*8
                k.e(f"v_max3_u32 v{c.VC}, v{h}, v{h+1}, v{h+2}", f"v_max3_u32 v{c.VC}, v{h+3}, v{h+4}, v{c.VC}", f"v_max3_u32 v{c.VC}, v{h+5}, v{h+6}, v{c.VC}",
                    f"v_max_u32 v{c.VC}, v{h+7}, v{c.VC}", f"v_cmp_eq_u32 vcc, -1, v{c.VC}", "s_nop 3", "s_cmp_eq_u64 vcc, 0", f"s_cbranch_scc0 {Lre}")
                k.label(La)
                c.mf(s, c.WOF + 8*(s - 28), s == 28)
                def tail(s=s, L=L, La=La, Lre=Lre):
                    Lgo = k.newlabel("orego")
                    k.label(Lre)
                    k.e(f"s_add_u32 s{c.SK+1}, s{c.SK+1}, 1", f"s_cmp_ge_u32 s{c.SK+1}, {c.lim1 + 64}", f"s_cbranch_scc1 {La}",
                        f"s_cmp_lg_u32 s{c.SK+1}, {c.lim1}", f"s_cbranch_scc1 {Lgo}")
                    c.spin("osp", *c.pollt(c.VPO), c.osleep)
                    k.label(Lgo)
                    if c.rsleep: k.e(f"s_sleep {c.rsleep}")
                    for t in range(s, 36): c.issueH(t)
                    k.e(f"s_branch {L}")
                    k.vm = []
                k.tails.append(tail)
        else:
            k.label(Lr)
            c.spin("osp", *c.pollt(c.VPO), c.osleep)
            for s in range(28, 36): c.issueH(s)
            k.e(f"v_mov_b32 v{c.VC}, 0")
            for s in range(28, 36):
                k.wait_vm(("H", s))
                h = c.HR + (s % D)*8
                c.mf(s, c.WOF + 8*(s - 28), s == 28)
                for i in range(0, 8, 2): k.e(f"v_max3_u32 v{c.VC}, v{h+i}, v{h+i+1}, v{c.VC}")
            k.e(f"v_cmp_eq_u32 vcc, -1, v{c.VC}", f"s_add_u32 s{c.SK+1}, s{c.SK+1}, 1", "s_nop 3", "s_cmp_eq_u64 vcc, 0", f"s_cbranch_scc1 {Ld}",
                f"s_cmp_lt_u32 s{c.SK+1}, 0x40", "s_nop 15", f"s_cbranch_scc1 {Lr}")
        k.label(Ld)
        if not hwait: k.stamp(st[1] + 1)
        c.reduce(32, False)
        for half in range(2):
            for i in range(4): k.e(f"v_cvt_pk_bf16_f32 v{48+4*half+i - 0 if False else 16+4*half+i}, v{32+8*half+2*i}, v{32+8*half+2*i+1}")
        k.vmem(f"buffer_store_dwordx4 v[16:19], v{c.VX}, s[{c.SOUT}:{c.SOUT+3}], 0 offen {getattr(c, 'omod', '')}".rstrip(), "st")
        k.e(f"s_mov_b32 s{c.ST}, 32768")
        k.vmem(f"buffer_store_dwordx4 v[20:23], v{c.VX}, s[{c.SOUT}:{c.SOUT+3}], s{c.ST} offen {getattr(c, 'omod', '')}".rstrip(), "st")

def kB3_kernel(name="kb_main_kernel", prio_a=None, prio_g=None, epi_prio=None, post_prio=None, e4_prio=None, touch=True, hsleep=2, osleep=2, **kw):
    k = KV(name, nvgpr=256)
    k.e("s_cmp_ge_u32 s2, 512", f"s_cbranch_scc1 L_end_{k.name}")
    fx = srd(k, 20, 72, WS_SIZE2)
    k.e("s_cmp_ge_u32 s2, 256", "s_cbranch_scc1 L_kb_g")
    k.e("s_waitcnt lgkmcnt(0)"); k.e(*fx)
    if prio_a is not None: k.e(f"s_setprio {prio_a}")
    k.e("s_and_b32 s3, s2, 7", "s_lshr_b32 s4, s2, 3", "s_and_b32 s5, s4, 3", "s_lshl_b32 s25, s3, 2", "s_add_u32 s25, s25, s5", "s_lshr_b32 s26, s4, 2")
    k.stamp(0)
    if kw.pop("skip_a", False):
        k.e("v_and_b32 v1, 63, v0", "v_lshrrev_b32 v10, 6, v0", "s_nop 0", "v_readfirstlane_b32 s24, v10", "v_lshlrev_b32 v2, 4, v1",
            "v_mov_b32 v160, 0", "v_mov_b32 v161, 0", "v_mov_b32 v162, 0", "v_mov_b32 v163, 0")
        k.stamp(1); k.stamp(2)
        k.e("s_lshl_b32 s36, s26, 3", "s_lshl_b32 s37, s24, 1", "s_add_u32 s36, s36, s37", "s_lshl_b32 s36, s36, 5", "s_add_u32 s36, s36, s25",
            "s_lshl_b32 s36, s36, 10", f"s_add_u32 s36, s36, 0x{WS_OF:x}")
        k.e("buffer_store_dwordx4 v[160:163], v2, s[20:23], s36 offen sc1", "s_add_u32 s36, s36, 32768", "buffer_store_dwordx4 v[160:163], v2, s[20:23], s36 offen sc1")
        k.e("s_lshl_b32 s36, s26, 2", "s_add_u32 s36, s36, s24", "s_lshl_b32 s36, s36, 7", "s_lshl_b32 s37, s25, 2", "s_add_u32 s36, s36, s37",
            f"s_add_u32 s36, s36, 0x{FLG_O:x}", "v_mov_b32 v12, s36", "v_mov_b32 v13, 1", "s_mov_b64 exec, 1",
            "buffer_store_dword v13, v12, s[20:23], 0 offen sc1", "s_mov_b64 exec, -1")
        k.fb_code = lambda: None
    else:
        e2_body(k, st_sc1="sc1", touch=touch, oflag=True, **kw)
    k.wait_vm_all()
    k.stamp(3); k.stamp_out(4, 0x20000); k.wait_vm_all()
    k.e("s_endpgm")
    fb = k.fb_code
    k.label("L_kb_g")
    k.vm = []; k.lg = []
    SD, SO, SX, SOUT = 84, 88, 8, 4
    fx3 = srd(k, 12, 32, SZ_WG) + srd(k, 16, 40, SZ_WG) + srd(k, SD, 48, SZ_WD) + srd(k, SO, 16, SZ_WO) + srd(k, SX, 0, SZ_X) + srd(k, SOUT, 56, SZ_X)
    k.e("s_waitcnt lgkmcnt(0)"); k.e(*(fx + fx3))
    if prio_g is not None: k.e(f"s_setprio {prio_g}")
    e4 = E4F(k, SD, SO, 20, SX, SOUT, hsleep=hsleep, osleep=osleep)
    c = e4
    k.e("s_sub_u32 s3, s2, 256", "s_and_b32 s92, s3, 7", "s_lshr_b32 s93, s3, 3",
        f"s_and_b32 s{c.SRB}, s93, 3", "s_lshl_b32 s94, s92, 2", f"s_add_u32 s{c.SRB}, s{c.SRB}, s94", f"s_lshr_b32 s{c.SCB}, s93, 2")
    k.e("s_cmp_ge_u32 s2, 480", "s_cbranch_scc1 L_kb_pf")
    k.e("s_and_b32 s26, s92, 1", "s_mul_i32 s26, s26, 7", "s_lshr_b32 s94, s93, 2", "s_add_u32 s26, s26, s94",
        "s_lshr_b32 s25, s92, 1", "s_lshl_b32 s25, s25, 2", "s_and_b32 s95, s93, 3", "s_add_u32 s25, s25, s95")
    k.stamp(0)
    def pre_loop():
        if not touch: return
        k.e("v_lshrrev_b32 v66, 1, v1", "v_mul_u32_u24 v66, 3584, v66", "v_and_b32 v67, 1, v1", "v_lshl_add_u32 v66, v67, 7, v66",
            "s_lshl_b32 s36, s95, 7", "s_lshl_b32 s37, s28, 6", "s_add_u32 s36, s36, s37", "s_mul_i32 s36, s36, 3584", "s_lshl_b32 s37, s26, 8", "s_add_u32 s36, s36, s37",
            f"s_add_u32 s37, s36, {32*3584}", "s_cmp_eq_u32 s27, 0", "s_cbranch_scc0 L_kb_tu")
        k.vmem("buffer_load_dword v64, v66, s[12:15], s36 offen", "touch"); k.vmem("buffer_load_dword v64, v66, s[12:15], s37 offen", "touch")
        k.e("s_branch L_kb_tx")
        k.label("L_kb_tu")
        k.e("buffer_load_dword v64, v66, s[16:19], s36 offen", "buffer_load_dword v64, v66, s[16:19], s37 offen")
        k.label("L_kb_tx")
        k.e("v_and_b32 v67, 31, v1", "v_lshlrev_b32 v67, 10, v67", "s_lshl_b32 s36, s25, 17", "s_lshl_b32 s37, s24, 15", "s_add_u32 s36, s36, s37",
            "s_lshl_b32 s37, s94, 7", "s_add_u32 s36, s36, s37", f"s_add_u32 s36, s36, 0x{WS_XN + 128:x}", "s_mov_b64 exec, 0xffffffff")
        k.vmem("buffer_load_dword v64, v67, s[20:23], s36 offen", "touch")
        k.e("s_mov_b64 exec, -1")
    def post_loop():
        k.e("s_barrier")
        e4.setup()
        for s in range(c.DEPTH): e4.issueW(s)
        if touch: e4.touchW(64)
    e3_body(k, SX=20, norm=True, xoff=WS_XN, epi_prio=epi_prio, post_loop=post_loop, st_sc1="sc1", pre_loop=pre_loop)
    k.e("s_lshl_b32 s36, s25, 1", "s_add_u32 s36, s36, s27", "s_lshl_b32 s36, s36, 7", "s_lshl_b32 s37, s26, 1", "s_add_u32 s37, s37, s28",
        "s_lshl_b32 s37, s37, 2", "s_add_u32 s36, s36, s37", f"s_add_u32 s36, s36, 0x{FLG_H:x}", "v_mov_b32 v56, s36", "v_mov_b32 v57, 1")
    k.stamp(3)
    k.wait_vm_all()
    k.stamp(4)
    k.e("s_mov_b64 exec, 1")
    k.vmem("buffer_store_dword v57, v56, s[20:23], 0 offen sc1", "flag")
    k.e("s_mov_b64 exec, -1")
    if post_prio is not None: k.e(f"s_setprio {post_prio}")
    k.e("s_branch L_kb_e4")
    k.label("L_kb_pf")
    k.vm = []; k.lg = []
    k.e("v_and_b32 v1, 63, v0", "v_lshrrev_b32 v10, 6, v0", "s_nop 0", "v_readfirstlane_b32 s24, v10", "s_sub_u32 s3, s2, 480")
    k.stamp(0); k.stamp(1); k.stamp(2); k.stamp(3); k.stamp(4)
    e4.setup()
    for s in range(c.DEPTH): e4.issueW(s)
    if post_prio is not None: k.e(f"s_setprio {post_prio}")
    k.label("L_kb_e4")
    k.vm = [(("W", s), False) for s in range(c.DEPTH) for _ in range(2)] + [("flag", True)]
    k.lg = []
    e4.e4_prio = e4_prio; e4.post_prio = post_prio
    e4.body(st=(5, 6))
    k.wait_vm_all()
    k.stamp(7); k.stamp_out(8, 0x40000); k.wait_vm_all()
    k.label(f"L_end_{k.name}")
    k.e("s_endpgm")
    fb()
    k.emit_tails()
    return k


def gemm2(k, nunits, mfmas, reads, dmas, vm_need, fill0=None, rper=4, dper=1, hooks=None, pre_hooks=None, first_wait=None):
    def tagof(g, name): return ("fr", g, name)
    for u in range(nunits):
        g0, g1 = 2*u, 2*u + 1
        k.wait_vm(*vm_need(u))
        k.wait_lg_all()
        k.e("s_barrier")
        if pre_hooks and u in pre_hooks: pre_hooks[u]()
        R0 = list(reads(g0, 0)); R1 = list(reads(g1, 1))
        prev = list(mfmas(g0 - 1, 1)) if u > 0 else []
        cur = list(mfmas(g0, 0))
        D = list(dmas(u))
        F = list(fill0(u)) if fill0 else []
        rel = {}
        for i, (t, used) in enumerate(prev):
            for nm in used: rel[nm] = i
        def emit_reads(i, budget):
            n = 0
            while n < budget and R0:
                t, nm = R0.pop(0); k.ds(t, tagof(g0, nm)); n += 1
            j = 0
            while n < budget and j < len(R1):
                t, nm = R1[j]
                if rel.get(nm, -1) <= i:
                    k.ds(t, tagof(g1, nm)); R1.pop(j); n += 1
                else: j += 1
        def emit_dma():
            for (txt, tag, isvm) in D.pop(0):
                if isvm: k.vmem(txt, tag)
                else: k.e(txt)
        if not prev:
            emit_reads(-1, 1000)
        for i, (t, used) in enumerate(prev):
            k.e(t)
            emit_reads(i, rper)
            for _ in range(dper):
                if D: emit_dma()
        emit_reads(10**6, 1000)
        ngap = len(cur)
        per = -(-len(D) // ngap) if D else 0
        fper = -(-len(F) // ngap) if F else 0
        have = set()
        for j, (t, used) in enumerate(cur):
            k.wait_lg(*[tagof(g0, nm) for nm in used])
            have |= set(used)
            k.e(t)
            for _ in range(per):
                if D: emit_dma()
            n = 0; i = 0
            lim = fper + 1 if j < ngap - 1 else 10**6
            while n < lim and i < len(F):
                if F[i][1] in have:
                    k.e(F[i][0]); F.pop(i); n += 1
                else: i += 1
        assert not D and not F
        if hooks and u in hooks:
            for h in hooks[u]: h()
    k.wait_lg_all()
    for (t, used) in mfmas(2*nunits - 1, 1): k.e(t)

ONES = 42
DBG1 = {}

MF16 = "v_mfma_f32_16x16x32_bf16"
def sel_init(k, SEL, tmp):
    k.e(f"v_lshrrev_b32 v{tmp}, 4, v1", f"v_and_b32 v{tmp}, 1, v{tmp}", f"v_and_b32 v{SEL}, 15, v1", f"v_cmp_eq_u32 vcc, v{tmp}, v{SEL}",
        f"v_mov_b32 v{SEL+1}, 0x3f803f80", f"v_mov_b32 v{SEL+2}, 0", "s_nop 0", f"v_cndmask_b32 v{SEL}, v{SEL+2}, v{SEL+1}, vcc",
        f"v_mov_b32 v{SEL+1}, v{SEL}", f"v_mov_b32 v{SEL+2}, v{SEL}", f"v_mov_b32 v{SEL+3}, v{SEL}")

def sel_write(k, items, s_base, va, vt):
    k.e(f"v_and_b32 v{va}, 1, v1", f"v_lshlrev_b32 v{va}, 6, v{va}", f"v_lshrrev_b32 v{vt}, 4, v1", f"v_lshl_add_u32 v{va}, v{vt}, 4, v{va}", f"v_add_u32 v{va}, s{s_base}, v{va}",
        f"v_and_b32 v{vt}, 14, v1", f"v_cmp_eq_u32 vcc, 0, v{vt}", "s_nop 4", "s_mov_b64 exec, vcc")
    for (a, off) in items: k.ds(f"ds_write_b128 v{va}, v[{a}:{a+3}] offset:{off}")
    k.e("s_mov_b64 exec, -1")

def half_sum(k, regs, tmps):
    for r, t in zip(regs, tmps): k.e(f"v_mov_b32 v{t}, v{r}")
    k.e("s_nop 1")
    for r, t in zip(regs, tmps): k.e(f"v_permlane32_swap_b32 v{r}, v{t}")
    k.e("s_nop 1")
    for r, t in zip(regs, tmps): k.e(f"v_add_f32 v{r}, v{r}, v{t}")

def row_stats(k, sx, sxx, mean, rstd, tmp):
    k.e(f"v_mul_f32 v{mean}, 0x3b000000, v{sx}", f"v_mul_f32 v{tmp}, 0x3b000000, v{sxx}",
        f"v_fma_f32 v{tmp}, -v{mean}, v{mean}, v{tmp}", f"v_max_f32 v{tmp}, 0, v{tmp}", f"v_add_f32 v{tmp}, 0x3727c5ac, v{tmp}",
        f"v_rsq_f32 v{rstd}, v{tmp}")

def e1s_body(k, SX=8, SW=12, SWS=20, sc1="", hooks=None, pre_hooks=None, rot=False, pre_store=None, mst=False, post_dma=None, rper=5, dper=2):
    E1_XB = 49152
    k.e("v_and_b32 v1, 63, v0", "v_lshrrev_b32 v10, 6, v0", "s_nop 0", "v_readfirstlane_b32 s24, v10")
    k.e("v_and_b32 v11, 31, v1", "v_lshrrev_b32 v12, 5, v1")
    k.e("s_and_b32 s27, s24, 1", "s_lshr_b32 s28, s24, 1")
    k.e("v_lshrrev_b32 v13, 3, v1", "v_lshrrev_b32 v14, 4, v1", "v_and_b32 v15, 7, v1",
        "v_xor_b32 v7, v15, v14", "v_lshlrev_b32 v7, 4, v7", "v_lshl_add_u32 v7, v13, 10, v7",
        "s_lshl_b32 s29, s25, 16", "s_lshl_b32 s30, s24, 14", "s_add_u32 s29, s29, s30",
        "v_add_u32 v7, s29, v7", "v_xor_b32 v8, 64, v7", "v_add_u32 v8, 8192, v8")
    k.e("v_and_b32 v14, 1, v14", "v_lshlrev_b32 v14, 2, v14", "v_xor_b32 v9, v15, v14", "v_lshlrev_b32 v9, 4, v9",
        "s_lshl_b32 s30, s24, 3", "v_add_u32 v13, s30, v13", "v_mul_u32_u24 v13, 3072, v13", "v_add_u32 v9, v9, v13",
        "s_lshl_b32 s30, s26, 7", "v_add_u32 v9, s30, v9")
    k.e(f"s_lshl_b32 s31, s24, 11", f"s_add_u32 s31, s31, {E1_XB}", "s_lshl_b32 s32, s24, 10")
    def xd(v):
        if rot:
            return [dmab(SX, 7, 31, (v % 3)*8192, 33, 51, 0, ("X", v)),
                    dmab(SX, 8, 31, (v % 3)*8192 + 1024, 33, 51, 0, ("X", v), post=["s_add_u32 s51, s51, 128", "s_and_b32 s51, s51, 1023"])]
        return [dma(SX, 7, 31, (v % 3)*8192, 33, v*128, ("X", v)), dma(SX, 8, 31, (v % 3)*8192 + 1024, 33, v*128, ("X", v))]
    def wd(u):
        if rot:
            return [dmab(SW, 9, 32, (u % 4)*12288 + p*4096, 33, 50, 0, ("W", u), imm=1024*p, post=(rot_adv(50, 32*3072, 512*3072, 52) if p == 2 else ())) for p in range(3)]
        return [dma(SW, 9, 32, (u % 4)*12288 + p*4096, 33, u*32*3072, ("W", u), imm=1024*p) for p in range(3)]
    if rot:
        k.e("s_lshl_b32 s51, s53, 7", f"s_mul_i32 s50, s53, {64*3072}")
    emit_groups(k, xd(0) + wd(0) + wd(1) + xd(1) + wd(2))
    if post_dma: post_dma()
    k.e("s_xor_b32 s34, s27, s28")
    k.e("s_lshl_b32 s36, s27, 5", "v_add_u32 v13, s36, v11", "v_bfe_u32 v14, v13, 1, 3", "v_xor_b32 v14, v14, v12",
        "v_lshlrev_b32 v14, 4, v14", "v_lshl_add_u32 v2, v13, 7, v14", f"v_add_u32 v2, {E1_XB}, v2",
        "s_lshl_b32 s35, s34, 5", "v_xor_b32 v2, s35, v2",
        "v_xor_b32 v3, 32, v2", "v_xor_b32 v4, 64, v2", "v_xor_b32 v5, 96, v2")
    k.e("v_bfe_u32 v13, v1, 2, 2", "v_lshl_add_u32 v13, v12, 3, v13", "v_lshlrev_b32 v6, 7, v13",
        "v_bfe_u32 v13, v1, 4, 1", "v_lshlrev_b32 v13, 1, v13", "v_bfe_u32 v14, v1, 1, 1", "v_add_u32 v13, v13, v14",
        "s_lshl_b32 s36, s28, 2", "v_add_u32 v13, s36, v13", "v_bfe_u32 v14, v1, 3, 1", "v_lshlrev_b32 v14, 2, v14",
        "v_xor_b32 v13, v13, v14", "v_lshl_add_u32 v6, v13, 4, v6", "v_and_b32 v14, 1, v1", "v_lshl_add_u32 v6, v14, 3, v6",
        "s_lshl_b32 s35, s34, 11", "v_xor_b32 v10, 2048, v6", "v_xor_b32 v10, s35, v10", "v_xor_b32 v6, s35, v6")
    k.e(f"s_mov_b32 s{ONES}, 0x3f803f80")
    ST = 48
    for i in range(5): k.e(f"v_mov_b32 v{ST+i}, 0")
    SEL = 176; MA = 180
    if mst: sel_init(k, SEL, 13)
    ACC = 64
    def fr(st): return 16 + 16*st
    def reads(g, st):
        b = fr(st); u = g >> 1; v = g >> 2
        out = [(f"ds_read_b128 v[{b}:{b+3}], v{2 + (g & 3)} offset:{(v % 3)*8192}", "X")]
        av = 6 if (g & 1) == 0 else 10
        for p in range(3):
            o = (u % 4)*12288 + p*4096
            out.append((f"ds_read_b64_tr_b16 v[{b+4+4*p}:{b+5+4*p}], v{av} offset:{o}", f"W{p}"))
            out.append((f"ds_read_b64_tr_b16 v[{b+6+4*p}:{b+7+4*p}], v{av} offset:{o+512}", f"W{p}"))
        return out
    def mfmas(g, st):
        out = []
        b_x = fr(st); b_w = b_x + 4
        for p in range(3):
            a = ACC + 16*p
            w = f"v[{b_w+4*p}:{b_w+4*p+3}]"; x = f"v[{b_x}:{b_x+3}]"
            A, B = (w, x) if p < 2 else (x, w)
            c = "0" if g == 0 else f"v[{a}:{a+15}]"
            out.append((f"{MF} v[{a}:{a+15}], {A}, {B}, {c}", ["X", f"W{p}"]))
        if mst == 2 and (g & 1):
            def sm(j, src):
                a = MA + 4*j
                return f"{MF16} v[{a}:{a+3}], v[{src}:{src+3}], v[{SEL}:{SEL+3}], " + ("0" if g == 1 else f"v[{a}:{a+3}]")
            def sq(i):
                t = 196 + 2*(i & 1)
                return (f"\nv_lshlrev_b32 v{t}, 16, v{b_x+i}\nv_and_b32 v{t+1}, 0xffff0000, v{b_x+i}\nv_pk_fma_f32 v[{ST}:{ST+1}], v[{t}:{t+1}], v[{t}:{t+1}], v[{ST}:{ST+1}]")
            out = [(sm(1, b_w), ["W0"]), (out[0][0] + sq(0), ["X", "W0"]), (sm(2, b_w + 4), ["W1"]), (out[1][0] + sq(1), ["X", "W1"]),
                   (sm(3, b_w + 8), ["W2"]), (out[2][0] + sq(2), ["X", "W2"]), (sm(0, b_x) + sq(3), ["X"])]
        return out
    def fill0(u):
        b = fr(0); out = []
        if mst:
            def sm(j, src, nm):
                a = MA + 4*j
                return (f"{MF16} v[{a}:{a+3}], v[{src}:{src+3}], v[{SEL}:{SEL+3}], " + ("0" if u == 0 else f"v[{a}:{a+3}]"), nm)
            d2 = [(f"v_dot2_f32_bf16 v{ST+1}, v{b+i}, v{b+i}, v{ST+1}", "X") for i in range(4)]
            return [sm(0, b, "X"), d2[0], sm(1, b+4, "W0"), d2[1], sm(2, b+8, "W1"), d2[2], sm(3, b+12, "W2"), d2[3]]
        for i in range(4):
            out.append((f"v_dot2_f32_bf16 v{ST}, v{b+i}, s{ONES}, v{ST}", "X"))
            out.append((f"v_dot2_f32_bf16 v{ST+1}, v{b+i}, v{b+i}, v{ST+1}", "X"))
            for p in range(3):
                out.append((f"v_dot2_f32_bf16 v{ST+2+p}, v{b+4+4*p+i}, s{ONES}, v{ST+2+p}", f"W{p}"))
        return out
    def dmas(u):
        out = []
        if u + 3 < 16: out += wd(u + 3)
        if u % 2 == 0 and u//2 + 2 < 8: out += xd(u//2 + 2)
        return out
    k.stamp(1)
    if DBG1.get("fine"): pre_hooks = {0: lambda: k.stamp(2), 2: lambda: k.stamp(3), 4: lambda: k.stamp(4), 8: lambda: k.stamp(5)}
    gemm2(k, 16, mfmas, reads, dmas, lambda u: [("W", u), ("X", u >> 1)], fill0=(None if (DBG1.get("nostat1") or mst == 2) else fill0), rper=rper, dper=dper, hooks=hooks, pre_hooks=pre_hooks)
    k.stamp(6 if DBG1.get("fine") else 2)
    if mst == 2: k.e(f"v_add_f32 v{ST+1}, v{ST}, v{ST+1}")
    k.e("s_nop 2")
    if mst: half_sum(k, [ST+1], [53])
    else: half_sum(k, [ST+i for i in range(5)], [53, 54, 55, 56, 57])
    k.e("s_barrier", "s_mul_i32 s36, s24, 640", "v_lshlrev_b32 v13, 2, v11", "v_add_u32 v14, s36, v13")
    if mst:
        k.ds(f"ds_write_b32 v14, v{ST+1} offset:128")
        sel_write(k, [(MA, 0), (MA+4, 256), (MA+8, 384), (MA+12, 512)], 36, 15, 16)
    else:
        for i in range(5): k.ds(f"ds_write_b32 v14, v{ST+i} offset:{128*i}")
    k.e("s_xor_b32 s37, s24, 2", "s_mul_i32 s37, s37, 640", "v_add_u32 v15, s37, v13", "s_xor_b32 s37, s24, 1", "s_mul_i32 s37, s37, 640", "v_add_u32 v16, s37, v13")
    k.wait_lg_all()
    k.e("s_barrier")
    k.ds("ds_read_b32 v53, v15"); k.ds("ds_read_b32 v54, v15 offset:128")
    for p in range(3): k.ds(f"ds_read_b32 v{55+p}, v16 offset:{256+128*p}")
    if mst:
        k.ds(f"ds_read_b32 v{ST}, v14")
        for p in range(3): k.ds(f"ds_read_b32 v{ST+2+p}, v14 offset:{256+128*p}")
    k.e("v_lshlrev_b32 v10, 4, v1",
        "s_lshl_b32 s36, s26, 2", "s_lshl_b32 s37, s28, 1", "s_add_u32 s36, s36, s37", "s_lshl_b32 s36, s36, 16",
        "s_lshl_b32 s37, s25, 1", "s_add_u32 s37, s37, s27", "s_lshl_b32 s37, s37, 10", "s_add_u32 s36, s36, s37")
    k.e("v_lshrrev_b32 v17, 4, v11", "v_lshlrev_b32 v17, 16, v17", "v_lshl_add_u32 v17, v12, 8, v17", "v_and_b32 v18, 15, v11", "v_lshl_add_u32 v17, v18, 4, v17")
    k.wait_lg_all()
    for i in range(5): k.e(f"v_add_f32 v{ST+i}, v{ST+i}, v{53+i}")
    if pre_store: pre_store()
    row_stats(k, ST, ST+1, 58, 59, 60)
    k.e("s_mul_i32 s37, s24, 640", "s_add_u32 s37, s37, 2560", "v_add_u32 v14, s37, v13", "v_sub_f32 v58, 0, v58")
    k.ds(f"ds_write_b32 v14, v{ST+2}"); k.ds(f"ds_write_b32 v14, v{ST+3} offset:128")
    k.ds("ds_write_b32 v14, v58 offset:256"); k.ds("ds_write_b32 v14, v59 offset:384")
    k.e("v_lshlrev_b32 v15, 4, v12", "v_add_u32 v15, s37, v15", f"v_mul_f32 v60, 0x{f2u(0.25*LOG2E):08x}, v59")
    k.wait_lg_all()
    B0 = 112
    for i in range(4):
        for gq in range(4): k.ds(f"ds_read_b128 v[{B0+16*i+4*gq}:{B0+16*i+4*gq+3}], v15 offset:{128*i + 32*gq}", ("bc", i))
    for p, (scale, base) in enumerate(((60, WS_QF), (59, WS_KF))):
        a = ACC + 16*p
        k.wait_lg(("bc", p))
        for r in range(16): k.e(f"v_fmac_f32 v{a+r}, v58, v{B0+16*p+r}")
        for r in range(16): k.e(f"v_mul_f32 v{a+r}, v{a+r}, v{scale}")
        for j in range(2):
            d = 20 + 8*p + 4*j
            for i in range(4): k.e(f"v_cvt_pk_bf16_f32 v{d+i}, v{a+8*j+2*i}, v{a+8*j+2*i+1}")
            k.e(f"s_add_u32 s37, s36, 0x{base + j*65536:x}")
            k.vmem(f"buffer_store_dwordx4 v[{d}:{d+3}], v10, s[{SWS}:{SWS+3}], s37 offen {sc1}", "st")
    a = ACC + 32
    k.wait_lg(("bc", 3))
    for r in range(16): k.e(f"v_fmac_f32 v{a+r}, v{ST+4}, v{B0+32+r}")
    for r in range(16): k.e(f"v_mul_f32 v{a+r}, v{a+r}, v{B0+48+r}")
    k.e(f"s_add_u32 s37, s36, 0x{WS_VF:x}")
    for j in range(2):
        d = 36 + 4*j
        for i in range(4): k.e(f"v_cvt_pk_bf16_f32 v{d+i}, v{a+8*j+2*i}, v{a+8*j+2*i+1}")
        k.vmem(f"buffer_store_dwordx4 v[{d}:{d+3}], v17, s[{SWS}:{SWS+3}], s37 offen offset:{512*j} {sc1}", "st")

def e3s_body(k, SX=8, SG=12, SU=16, SWS=20, st_sc1="", epi_prio=None, post_loop=None, hooks=None, pre_hooks=None, rot=False, outb=48, pre_dma=None, mst=False, rper=4, dper=1):
    XB = 49152
    k.e("v_and_b32 v1, 63, v0", "v_lshrrev_b32 v10, 6, v0", "s_nop 0", "v_readfirstlane_b32 s24, v10")
    k.e("v_and_b32 v11, 31, v1", "v_lshrrev_b32 v12, 5, v1")
    k.e("s_and_b32 s27, s24, 1", "s_lshr_b32 s28, s24, 1")
    k.e("v_lshrrev_b32 v13, 3, v1", "v_lshrrev_b32 v14, 4, v1", "v_and_b32 v15, 7, v1",
        "v_xor_b32 v7, v15, v14", "v_lshlrev_b32 v7, 4, v7", "v_lshl_add_u32 v7, v13, 10, v7",
        "s_lshl_b32 s29, s25, 17", "s_lshl_b32 s30, s24, 15", "s_add_u32 s29, s29, s30",
        "v_add_u32 v7, s29, v7", "v_xor_b32 v8, 64, v7", "v_add_u32 v8, 8192, v8")
    k.e("v_lshlrev_b32 v13, 2, v14", "v_and_b32 v15, 15, v1", "v_xor_b32 v9, v15, v13", "v_lshlrev_b32 v9, 4, v9",
        "s_lshl_b32 s30, s24, 3", "v_add_u32 v13, s30, v14", "v_mul_u32_u24 v13, 3584, v13", "v_add_u32 v9, v9, v13",
        "s_lshl_b32 s30, s26, 8", "v_add_u32 v9, s30, v9")
    k.e(f"s_lshl_b32 s31, s24, 12", f"s_add_u32 s31, s31, {XB}", "s_lshl_b32 s32, s24, 11")
    def xd(v):
        if rot:
            return [dmab(SX, 7 + (i & 1), 31, (v % 2)*16384 + i*1024, 33, 51, (i >> 1)*16384, ("X", v),
                         post=(["s_add_u32 s51, s51, 128", "s_and_b32 s51, s51, 1023"] if i == 3 else ())) for i in range(4)]
        return [dma(SX, 7 + (i & 1), 31, (v % 2)*16384 + i*1024, 33, v*128 + (i >> 1)*16384, ("X", v)) for i in range(4)]
    def wd(u):
        out = []
        for i in range(2):
            for p, sr in enumerate((SG, SU)):
                if rot:
                    out.append(dmab(sr, 9, 32, (u % 3)*16384 + p*8192 + i*1024, 33, 50, 4*i*3584, ("W", u),
                                    post=(rot_adv(50, 32*3584, 512*3584, 52) if (i, p) == (1, 1) else ())))
                else:
                    out.append(dma(sr, 9, 32, (u % 3)*16384 + p*8192 + i*1024, 33, (u*32 + 4*i)*3584, ("W", u)))
        return out
    if rot:
        k.e("s_lshl_b32 s51, s53, 7", f"s_mul_i32 s50, s53, {64*3584}")
    if pre_dma: pre_dma()
    if DBG1.get("wfirst"): emit_groups(k, wd(0) + xd(0) + wd(1))
    else: emit_groups(k, xd(0) + wd(0) + wd(1))
    if DBG1.get("touch3"):
        Lu = k.newlabel("tu"); Lx = k.newlabel("tx")
        k.e("v_lshrrev_b32 v66, 1, v1", "s_lshl_b32 s36, s28, 5", "v_add_u32 v66, s36, v66", "v_mul_u32_u24 v66, 3584, v66", "v_and_b32 v67, 1, v1",
            "v_lshl_add_u32 v66, v67, 7, v66", "s_lshl_b32 s36, s26, 8", "v_add_u32 v66, s36, v66", "s_cmp_eq_u32 s27, 0", f"s_cbranch_scc0 {Lu}")
        k.vmem(f"buffer_load_dword v63, v66, s[{SG}:{SG+3}], s50 offen", "touch")
        k.e(f"s_branch {Lx}")
        k.label(Lu)
        k.e(f"buffer_load_dword v63, v66, s[{SU}:{SU+3}], s50 offen")
        k.label(Lx)
    k.e("s_xor_b32 s34, s27, s28")
    k.e("s_lshl_b32 s36, s27, 6", "v_add_u32 v13, s36, v11", "v_bfe_u32 v14, v13, 1, 3", "v_xor_b32 v14, v14, v12",
        "v_lshlrev_b32 v14, 4, v14", "v_lshl_add_u32 v2, v13, 7, v14", f"v_add_u32 v2, {XB}, v2",
        "s_lshl_b32 s35, s34, 5", "v_xor_b32 v2, s35, v2",
        "v_xor_b32 v3, 32, v2", "v_xor_b32 v4, 64, v2", "v_xor_b32 v5, 96, v2")
    k.e("v_bfe_u32 v15, v1, 2, 2", "v_lshl_add_u32 v13, v12, 3, v15", "v_lshlrev_b32 v6, 8, v13",
        "v_bfe_u32 v13, v1, 4, 1", "v_lshlrev_b32 v13, 1, v13", "v_bfe_u32 v14, v1, 1, 1", "v_add_u32 v13, v13, v14",
        "s_lshl_b32 s36, s28, 3", "v_add_u32 v13, s36, v13", "v_lshlrev_b32 v15, 2, v15",
        "v_xor_b32 v13, v13, v15", "v_lshl_add_u32 v6, v13, 4, v6", "v_and_b32 v14, 1, v1", "v_lshl_add_u32 v6, v14, 3, v6",
        "s_lshl_b32 s35, s34, 12", "v_xor_b32 v6, s35, v6",
        "v_xor_b32 v10, 64, v6", "v_xor_b32 v72, 4096, v6", "v_xor_b32 v73, 4096, v10")
    k.e(f"s_mov_b32 s{ONES}, 0x3f803f80")
    ST = 64
    for i in range(8): k.e(f"v_mov_b32 v{ST+i}, 0")
    SEL = 76; MA = 80
    if mst: sel_init(k, SEL, 13)
    ACC = 128
    def fr(st): return 16 + 24*st
    def acc(part, b, tb): return ACC + 16*(part*4 + b*2 + tb)
    def reads(g, st):
        b0 = fr(st); u = g >> 1; v = g >> 2
        def wr(part, b):
            d = b0 + 8 + 8*part + 4*b
            o = (u % 3)*16384 + part*8192
            av = ((6, 10), (72, 73))[g & 1][b]
            return [(f"ds_read_b64_tr_b16 v[{d}:{d+1}], v{av} offset:{o}", f"W{part}{b}"),
                    (f"ds_read_b64_tr_b16 v[{d+2}:{d+3}], v{av} offset:{o+1024}", f"W{part}{b}")]
        def xr(tb): return [(f"ds_read_b128 v[{b0+4*tb}:{b0+4*tb+3}], v{2 + (g & 3)} offset:{(v % 2)*16384 + tb*4096}", f"X{tb}")]
        return xr(0) + wr(0, 0) + xr(1) + wr(0, 1) + wr(1, 0) + wr(1, 1)
    def mfmas(g, st):
        out = []
        b0 = fr(st)
        for part in range(2):
            for b in range(2):
                for tb in range(2):
                    a = acc(part, b, tb); w = b0 + 8 + 8*part + 4*b; x = b0 + 4*tb
                    c = "0" if g == 0 else f"v[{a}:{a+15}]"
                    out.append((f"{MF} v[{a}:{a+15}], v[{w}:{w+3}], v[{x}:{x+3}], {c}", [f"X{tb}", f"W{part}{b}"]))
        if mst == 2 and (g & 1):
            def sm(j, src):
                a = MA + 4*j
                return f"{MF16} v[{a}:{a+3}], v[{src}:{src+3}], v[{SEL}:{SEL+3}], " + ("0" if g == 1 else f"v[{a}:{a+3}]")
            def sq(n):
                tb, i = n & 1, n >> 1
                t = 108 + 2*(n & 1); r = b0 + 4*tb + i; a = ST + 2*tb
                return (f"\nv_lshlrev_b32 v{t}, 16, v{r}\nv_and_b32 v{t+1}, 0xffff0000, v{r}\nv_pk_fma_f32 v[{a}:{a+1}], v[{t}:{t+1}], v[{t}:{t+1}], v[{a}:{a+1}]")
            o2 = []
            for j in range(4):
                part, b = j >> 1, j & 1
                o2.append((sm(2 + j, b0 + 8 + 8*part + 4*b), [f"W{part}{b}"]))
                for tb in range(2):
                    t, used = out[2*j + tb]
                    o2.append((t + sq(2*j + tb), used + ["X0", "X1"] if False else used + [f"X{(2*j+tb) & 1}"]))
            o2.append((sm(0, b0), ["X0"])); o2.append((sm(1, b0 + 4), ["X1"]))
            out = o2
        return out
    def fill0(u):
        b0 = fr(0); out = []
        if mst:
            def sm(j, src, nm):
                a = MA + 4*j
                return (f"{MF16} v[{a}:{a+3}], v[{src}:{src+3}], v[{SEL}:{SEL+3}], " + ("0" if u == 0 else f"v[{a}:{a+3}]"), nm)
            d2 = [(f"v_dot2_f32_bf16 v{ST+2*tb+1}, v{b0+4*tb+i}, v{b0+4*tb+i}, v{ST+2*tb+1}", f"X{tb}") for i in range(4) for tb in range(2)]
            sms = [sm(0, b0, "X0"), sm(1, b0+4, "X1")] + [sm(2 + 2*part + b, b0 + 8 + 8*part + 4*b, f"W{part}{b}") for part in range(2) for b in range(2)]
            for j in range(8):
                if j < 6: out.append(sms[j])
                out.append(d2[j])
            return out
        for i in range(4):
            for tb in range(2):
                x = b0 + 4*tb + i
                out.append((f"v_dot2_f32_bf16 v{ST+2*tb}, v{x}, s{ONES}, v{ST+2*tb}", f"X{tb}"))
                out.append((f"v_dot2_f32_bf16 v{ST+2*tb+1}, v{x}, v{x}, v{ST+2*tb+1}", f"X{tb}"))
            for part in range(2):
                for b in range(2):
                    w = b0 + 8 + 8*part + 4*b + i
                    out.append((f"v_dot2_f32_bf16 v{ST+4+2*part+b}, v{w}, s{ONES}, v{ST+4+2*part+b}", f"W{part}{b}"))
        return out
    def dmas(u):
        out = []
        if u + 2 < 16: out += wd(u + 2)
        if u % 2 == 0 and u//2 + 1 < 8: out += xd(u//2 + 1)
        return out
    k.stamp(1)
    if DBG1.get("fine"): pre_hooks = {0: lambda: k.stamp(2), 2: lambda: k.stamp(3), 4: lambda: k.stamp(4), 8: lambda: k.stamp(5)}
    gemm2(k, 16, mfmas, reads, dmas, lambda u: [("W", u), ("X", u >> 1)], fill0=(None if (DBG1.get("nostat3") or mst == 2) else fill0), rper=rper, dper=dper, hooks=hooks, pre_hooks=pre_hooks)
    k.stamp(6 if DBG1.get("fine") else 2)
    if epi_prio is not None: k.e(f"s_setprio {epi_prio}")
    if mst == 2: k.e(f"v_add_f32 v{ST+1}, v{ST}, v{ST+1}", f"v_add_f32 v{ST+3}, v{ST+2}, v{ST+3}")
    k.e("s_nop 2")
    if mst: half_sum(k, [ST+1, ST+3], [104, 105])
    else: half_sum(k, [ST+i for i in range(8)], [76+i for i in range(8)])
    SBASE = 73728
    k.e("s_barrier", "s_lshl_b32 s36, s24, 10", "v_lshlrev_b32 v13, 2, v11", "v_add_u32 v14, s36, v13", f"v_add_u32 v14, {SBASE}, v14")
    if mst:
        k.ds(f"ds_write_b32 v14, v{ST+1} offset:128"); k.ds(f"ds_write_b32 v14, v{ST+3} offset:384")
        k.e(f"s_add_u32 s36, s36, {SBASE}")
        sel_write(k, [(MA, 0), (MA+4, 256)] + [(MA+8+4*i, 512+128*i) for i in range(4)], 36, 15, 16)
    else:
        for i in range(8): k.ds(f"ds_write_b32 v14, v{ST+i} offset:{128*i}")
    k.e("v_xor_b32 v15, 2048, v14", "v_xor_b32 v16, 1024, v14")
    k.wait_lg_all()
    k.e("s_barrier")
    for i in range(4): k.ds(f"ds_read_b32 v{76+i}, v15 offset:{128*i}")
    for i in range(4, 8): k.ds(f"ds_read_b32 v{76+i}, v16 offset:{128*i}")
    if mst:
        for i in (0, 2, 4, 5, 6, 7): k.ds(f"ds_read_b32 v{ST+i}, v14 offset:{128*i}")
    if post_loop: post_loop()
    k.wait_lg_all()
    for i in range(8): k.e(f"v_add_f32 v{ST+i}, v{ST+i}, v{76+i}")
    for tb in range(2):
        row_stats(k, ST+2*tb, ST+2*tb+1, 84+tb, 86+tb, 88+tb)
    k.e("s_nop 0")
    for tb in range(2):
        k.e(f"v_mul_f32 v{88+tb}, v{88+tb}, v{86+tb}",
            f"v_mul_f32 v{86+tb}, 0x{f2u(-LOG2E):08x}, v{86+tb}", f"v_sub_f32 v{84+tb}, 0, v{84+tb}")
    k.e("s_lshl_b32 s36, s24, 9", f"s_add_u32 s36, s36, {SBASE + 4096}", "v_add_u32 v14, s36, v13", "v_lshlrev_b32 v15, 4, v12", "v_add_u32 v15, s36, v15")
    for i in range(4): k.ds(f"ds_write_b32 v14, v{ST+4+i} offset:{128*i}")
    k.wait_lg_all()
    CB = 16
    k.e("v_lshlrev_b32 v10, 4, v1",
        "s_lshl_b32 s36, s25, 2", "s_lshl_b32 s37, s27, 1", "s_add_u32 s36, s36, s37", "s_mul_i32 s36, s36, 112",
        "s_lshl_b32 s37, s26, 3", "s_add_u32 s36, s36, s37", "s_lshl_b32 s37, s28, 2", "s_add_u32 s36, s36, s37",
        "s_lshl_b32 s36, s36, 10", f"s_add_u32 s36, s36, 0x{WS_HF:x}")
    CR = [92, 16]
    for b in range(2):
        for part in range(2):
            for gq in range(4):
                d = CR[b] + 16*part + 4*gq
                k.ds(f"ds_read_b128 v[{d}:{d+3}], v15 offset:{128*(2*part + b) + 32*gq}", ("bc", b))
    n = 0
    for b in range(2):
        k.wait_lg(("bc", b))
        for tb in range(2):
            g = acc(0, b, tb); uu = acc(1, b, tb)
            for r in range(16): k.e(f"v_fmac_f32 v{g+r}, v{84+tb}, v{CR[b]+r}")
            for r in range(16): k.e(f"v_mul_f32 v{g+r}, v{g+r}, v{86+tb}")
            for r in range(16): k.e(f"v_exp_f32 v{g+r}, v{g+r}")
            for r in range(16): k.e(f"v_fmac_f32 v{uu+r}, v{84+tb}, v{CR[b]+16+r}")
            for r in range(16): k.e(f"v_fma_f32 v{g+r}, v{g+r}, v{88+tb}, v{88+tb}")
            for r in range(16): k.e(f"v_rcp_f32 v{g+r}, v{g+r}")
            k.e("s_nop 0")
            for r in range(16): k.e(f"v_mul_f32 v{g+r}, v{g+r}, v{uu+r}")
            for j in range(2):
                d = outb + 4*(n % 4); n += 1
                for i in range(4): k.e(f"v_cvt_pk_bf16_f32 v{d+i}, v{g+8*j+2*i}, v{g+8*j+2*i+1}")
                k.e(f"s_add_u32 s37, s36, {(tb*112 + b*2 + j)*1024}")
                k.vmem(f"buffer_store_dwordx4 v[{d}:{d+3}], v10, s[{SWS}:{SWS+3}], s37 offen {st_sc1}", "st")

def prep_role(k, SWS, s_idx, nwg, flags=True):
    per = (1 << 21) // nwg
    k.e("v_mov_b32 v40, -1", "v_mov_b32 v41, -1", "v_mov_b32 v42, -1", "v_mov_b32 v43, -1", "v_lshlrev_b32 v48, 4, v0",
        f"s_mul_i32 s34, s{s_idx}, {per}", f"s_add_u32 s34, s34, 0x{WS_OF:x}")
    for i in range(per // 4096):
        k.vmem(f"buffer_store_dwordx4 v[40:43], v48, s[{SWS}:{SWS+3}], s34 offen", "prep")
        k.e("s_add_u32 s34, s34, 4096")
    if flags:
        Lp = k.newlabel("prep")
        k.e("v_mov_b32 v44, 0", "v_mov_b32 v45, 0", "v_mov_b32 v46, 0", "v_mov_b32 v47, 0", f"s_mov_b32 s34, 0x{FLG_H:x}",
            f"s_lshl_b32 s35, s{s_idx}, 12", "s_add_u32 s34, s34, s35", f"s_cmp_ge_u32 s{s_idx}, 2", f"s_cbranch_scc1 {Lp}")
        k.vmem(f"buffer_store_dwordx4 v[44:47], v48, s[{SWS}:{SWS+3}], s34 offen", "prep", opt=True)
        k.label(Lp)

def k1s_kernel(name="k1_proj_kernel", map1=1, prio_a=None, prio_g=None, rot=0, **kw):
    k = KV(name, nvgpr=256)
    k.e("s_cmp_ge_u32 s2, 512", f"s_cbranch_scc1 L_end_{k.name}")
    fx = srd(k, 8, 0, SZ_X) + srd(k, 20, 72, WS_SIZE2)
    k.e("s_cmp_ge_u32 s2, 256", "s_cbranch_scc1 L_k1_g")
    fx1 = srd(k, 12, 8, SZ_WQKV)
    k.e("s_waitcnt lgkmcnt(0)"); k.e(*(fx + fx1))
    if prio_a is not None: k.e(f"s_setprio {prio_a}")
    if map1 == 0: k.e("s_and_b32 s26, s2, 7", "s_lshr_b32 s25, s2, 3")
    elif map1 == 3:
        k.e("s_and_b32 s3, s2, 7", "s_lshr_b32 s4, s2, 3", "s_and_b32 s5, s3, 1", "s_lshl_b32 s26, s5, 2", "s_and_b32 s5, s4, 3", "s_add_u32 s26, s26, s5",
            "s_lshr_b32 s25, s3, 1", "s_lshl_b32 s25, s25, 3", "s_lshr_b32 s5, s4, 2", "s_add_u32 s25, s25, s5")
    else: k.e("s_and_b32 s3, s2, 7", "s_lshr_b32 s4, s2, 3", "s_and_b32 s5, s4, 3", "s_lshl_b32 s25, s3, 2", "s_add_u32 s25, s25, s5", "s_lshr_b32 s26, s4, 2")
    if rot:
        if map1 == 3:
            k.e("s_and_b32 s53, s26, 3", "s_lshl_b32 s53, s53, 1", "s_add_u32 s53, s53, s25", "s_and_b32 s53, s53, 7")
        elif map1 == 1:
            k.e("s_and_b32 s53, s25, 3", "s_lshl_b32 s53, s53, 1", "s_add_u32 s53, s53, s26", "s_and_b32 s53, s53, 7")
        else:
            k.e("s_and_b32 s53, s25, 7")
    k.stamp(0)
    e1s_body(k, rot=bool(rot))
    k.wait_vm_all()
    if DBG1.get("fine"): k.stamp(7); k.stamp_out(8, 0)
    else: k.stamp(3); k.stamp_out(4, 0)
    k.wait_vm_all()
    k.e("s_endpgm")
    k.label("L_k1_g")
    k.vm = []; k.lg = []
    k.e("s_cmp_ge_u32 s2, 480", "s_cbranch_scc1 L_k1_pf")
    fx3 = srd(k, 12, 32, SZ_WG) + srd(k, 16, 40, SZ_WG)
    k.e("s_waitcnt lgkmcnt(0)"); k.e(*(fx + fx3))
    if prio_g is not None: k.e(f"s_setprio {prio_g}")
    k.e("s_sub_u32 s3, s2, 256", "s_and_b32 s92, s3, 7", "s_lshr_b32 s93, s3, 3")
    k.e("s_and_b32 s26, s92, 1", "s_mul_i32 s26, s26, 7", "s_lshr_b32 s94, s93, 2", "s_add_u32 s26, s26, s94",
        "s_lshr_b32 s25, s92, 1", "s_lshl_b32 s25, s25, 2", "s_and_b32 s95, s93, 3", "s_add_u32 s25, s25, s95")
    if rot: k.e("s_lshl_b32 s53, s95, 1", "s_add_u32 s53, s53, s94", "s_and_b32 s53, s53, 7")
    k.stamp(0)
    e3s_body(k, rot=bool(rot))
    k.wait_vm_all()
    if DBG1.get("fine"): k.stamp(7); k.stamp_out(8, 0)
    else: k.stamp(3); k.stamp_out(4, 0)
    k.wait_vm_all()
    k.e("s_endpgm")
    k.label("L_k1_pf")
    k.vm = []; k.lg = []
    fxp = srd(k, 12, 48, SZ_WD) + srd(k, 16, 16, SZ_WO)
    k.e("s_waitcnt lgkmcnt(0)"); k.e(*(fx + fxp))
    k.e("s_sub_u32 s3, s2, 480")
    prep_role(k, 20, 3, 32)
    if not DBG1.get("nopf"): prefetch_role(k, [(12, SZ_WD), (16, SZ_WO)], 3, 32)
    k.label(f"L_end_{k.name}")
    k.e("s_endpgm")
    k.emit_tails()
    return k

def k1t_kernel(name="k1_proj_kernel", prio_a=None, prio_g=None, **kw):
    k = KV(name, nvgpr=256)
    k.e("s_cmp_ge_u32 s2, 512", f"s_cbranch_scc1 L_end_{k.name}")
    fx = srd(k, 8, 0, SZ_X) + srd(k, 20, 72, WS_SIZE2)
    k.e("s_cmp_lt_u32 s2, 256", "s_cbranch_scc1 L_k1_g")
    fx1 = srd(k, 12, 8, SZ_WQKV)
    k.e("s_waitcnt lgkmcnt(0)"); k.e(*(fx + fx1))
    if prio_a is not None: k.e(f"s_setprio {prio_a}")
    k.e("s_and_b32 s3, s2, 7", "s_lshr_b32 s4, s2, 3", "s_and_b32 s4, s4, 31", "s_and_b32 s5, s3, 1", "s_lshl_b32 s26, s5, 2", "s_and_b32 s5, s4, 3", "s_add_u32 s26, s26, s5",
        "s_lshr_b32 s25, s3, 1", "s_lshl_b32 s25, s25, 3", "s_lshr_b32 s5, s4, 2", "s_add_u32 s25, s25, s5")
    k.e("s_and_b32 s53, s26, 3", "s_lshl_b32 s53, s53, 1", "s_add_u32 s53, s53, s25", "s_and_b32 s53, s53, 7")
    k.stamp(0)
    e1s_body(k, rot=True)
    k.wait_vm_all()
    if DBG1.get("fine"): k.stamp(7); k.stamp_out(8, 0)
    else: k.stamp(3); k.stamp_out(4, 0)
    k.wait_vm_all()
    k.e("s_endpgm")
    k.label("L_k1_g")
    k.vm = []; k.lg = []
    k.e("s_cmp_ge_u32 s2, 224", "s_cbranch_scc1 L_k1_pf")
    fx3 = srd(k, 12, 32, SZ_WG) + srd(k, 16, 40, SZ_WG)
    k.e("s_waitcnt lgkmcnt(0)"); k.e(*(fx + fx3))
    if prio_g is not None: k.e(f"s_setprio {prio_g}")
    k.e("s_and_b32 s92, s2, 7", "s_lshr_b32 s93, s2, 3")
    k.e("s_and_b32 s26, s92, 1", "s_mul_i32 s26, s26, 7", "s_lshr_b32 s94, s93, 2", "s_add_u32 s26, s26, s94",
        "s_lshr_b32 s25, s92, 1", "s_lshl_b32 s25, s25, 2", "s_and_b32 s95, s93, 3", "s_add_u32 s25, s25, s95")
    k.e("s_lshl_b32 s53, s95, 1", "s_add_u32 s53, s53, s94", "s_and_b32 s53, s53, 7")
    k.stamp(0)
    e3s_body(k, rot=True)
    k.wait_vm_all()
    if DBG1.get("fine"): k.stamp(7); k.stamp_out(8, 0)
    else: k.stamp(3); k.stamp_out(4, 0)
    k.wait_vm_all()
    k.e("s_endpgm")
    k.label("L_k1_pf")
    k.vm = []; k.lg = []
    fxp = srd(k, 12, 48, SZ_WD) + srd(k, 16, 16, SZ_WO)
    k.e("s_waitcnt lgkmcnt(0)"); k.e(*(fx + fxp))
    k.e("s_sub_u32 s3, s2, 224")
    prep_role(k, 20, 3, 32)
    if not DBG1.get("nopf"): prefetch_role(k, [(12, SZ_WD), (16, SZ_WO)], 3, 32)
    k.label(f"L_end_{k.name}")
    k.e("s_endpgm")
    k.emit_tails()
    return k

def kB4_kernel(name="kb_main_kernel", prio_a=None, prio_g=None, e4_prio=None, post_prio=None, osleep=2, **kw):
    k = KV(name, nvgpr=256)
    k.e("s_cmp_ge_u32 s2, 512", f"s_cbranch_scc1 L_end_{k.name}")
    fx = srd(k, 20, 72, WS_SIZE2)
    k.e("s_cmp_ge_u32 s2, 256", "s_cbranch_scc1 L_kb_g")
    k.e("s_waitcnt lgkmcnt(0)"); k.e(*fx)
    if prio_a is not None: k.e(f"s_setprio {prio_a}")
    k.e("s_and_b32 s3, s2, 7", "s_lshr_b32 s4, s2, 3", "s_and_b32 s5, s4, 3", "s_lshl_b32 s25, s3, 2", "s_add_u32 s25, s25, s5", "s_lshr_b32 s26, s4, 2")
    k.stamp(0)
    e2_body(k, st_sc1="sc1", oflag=True, **kw)
    k.wait_vm_all()
    k.stamp(3); k.stamp_out(4, 0x20000); k.wait_vm_all()
    k.e("s_endpgm")
    fb = k.fb_code
    k.label("L_kb_g")
    k.vm = []; k.lg = []
    SD, SO, SX, SOUT = 84, 88, 8, 4
    fx3 = srd(k, SD, 48, SZ_WD) + srd(k, SO, 16, SZ_WO) + srd(k, SX, 0, SZ_X) + srd(k, SOUT, 56, SZ_X)
    k.e("s_waitcnt lgkmcnt(0)"); k.e(*(fx + fx3))
    if prio_g is not None: k.e(f"s_setprio {prio_g}")
    e4 = E4F(k, SD, SO, 20, SX, SOUT, osleep=osleep)
    c = e4
    k.e("s_sub_u32 s3, s2, 256", "s_and_b32 s92, s3, 7", "s_lshr_b32 s93, s3, 3",
        f"s_and_b32 s{c.SRB}, s93, 3", "s_lshl_b32 s94, s92, 2", f"s_add_u32 s{c.SRB}, s{c.SRB}, s94", f"s_lshr_b32 s{c.SCB}, s93, 2")
    k.e("v_and_b32 v1, 63, v0", "v_lshrrev_b32 v10, 6, v0", "s_nop 0", "v_readfirstlane_b32 s24, v10", "s_nop 3")
    k.stamp(0)
    e4.setup()
    e4.e4_prio = e4_prio; e4.post_prio = post_prio
    e4.body(pre_issued=False, st=(1, 2), hwait=False)
    k.wait_vm_all()
    k.stamp(4); k.stamp_out(5, 0x40000); k.wait_vm_all()
    k.label(f"L_end_{k.name}")
    k.e("s_endpgm")
    fb()
    k.emit_tails()
    return k
```

```python
import sys
sys.path.insert(0, "gen")
from eng import *
import eng, haz

FLG_GO = FLG + 0x8000

EPCONST = [False]
def epoch_issue_all(k, vd):
    if EPCONST[0]: return
    k.e(f"v_mov_b32 v{vd+2}, 0")
    k.vmem(f"global_load_dwordx2 v[{vd}:{vd+1}], v{vd+2}, s[{SDBG}:{SDBG+1}] sc1", "ep")

def epoch_check_all(k, vd):
    if EPCONST[0]:
        k.e(f"s_mov_b32 s{SEP}, 0x13572469", f"s_mov_b32 s{SEP+1}, 0x2468ace1"); return
    Ls = k.newlabel("eps"); Lc = k.newlabel("epc")
    k.wait_vm("ep")
    k.e(f"v_readfirstlane_b32 s{SEP}, v{vd}", f"v_readfirstlane_b32 s{SEP+1}, v{vd+1}", "s_nop 3", f"s_cmp_eq_u32 s{SEP}, 0", f"s_cbranch_scc1 {Ls}")
    k.label(Lc)
    def tail():
        k.label(Ls)
        k.e(f"s_mov_b32 s{SCNT}, 0")
        k.label(Ls + "_l")
        k.e(f"global_load_dwordx2 v[{vd}:{vd+1}], v{vd+2}, s[{SDBG}:{SDBG+1}] sc1", f"s_add_u32 s{SCNT}, s{SCNT}, 1", "s_waitcnt vmcnt(0)",
            f"v_readfirstlane_b32 s{SEP}, v{vd}", f"v_readfirstlane_b32 s{SEP+1}, v{vd+1}", "s_nop 3", f"s_cmp_lg_u32 s{SEP}, 0", f"s_cbranch_scc1 {Lc}",
            "s_sleep 2", f"s_cmp_lt_u32 s{SCNT}, 0x{SPIN_MAX:x}", f"s_cbranch_scc1 {Ls}_l", f"s_branch {Lc}")
    k.tails.append(tail)

TSLEEP = 1
def tag_check(k, issue, tagregs, name, zero):
    Ls = k.newlabel(name + "s"); Lc = k.newlabel(name + "c")
    def cmp():
        k.e(f"v_cmp_eq_u32 vcc, s{SEP}, v{tagregs[0]}")
        for r in tagregs[1:]:
            k.e(f"v_cmp_eq_u32 s[36:37], s{SEP}, v{r}", "s_nop 1", "s_and_b64 vcc, vcc, s[36:37]")
        k.e("s_cmp_eq_u64 vcc, -1")
    cmp()
    k.e(f"s_cbranch_scc0 {Ls}")
    k.label(Lc)
    zero()
    def tail():
        k.label(Ls)
        k.e(f"s_mov_b32 s{SCNT}, 0")
        k.label(Ls + "_l")
        sv = (k.vm, k.lg)
        issue()
        k.vm, k.lg = sv
        k.e(f"s_add_u32 s{SCNT}, s{SCNT}, 1", "s_waitcnt vmcnt(0)")
        cmp()
        k.e(f"s_cbranch_scc1 {Lc}", f"s_sleep {TSLEEP}", f"s_cmp_lt_u32 s{SCNT}, 0x{SPIN_MAX:x}", f"s_cbranch_scc1 {Ls}_l", f"s_branch {Lc}")
    k.tails.append(tail)

def row_job2(k, s_job, srd_x, srd_ws):
    k.e("v_and_b32 v1, 63, v0", "v_lshrrev_b32 v2, 6, v0", f"s_lshl_b32 s40, s{s_job}, 14",
        "v_lshlrev_b32 v3, 12, v2", "v_lshl_add_u32 v3, v1, 4, v3", "v_add_u32 v3, s40, v3")
    for j in range(4):
        k.vmem(f"buffer_load_dwordx4 v[{4+4*j}:{7+4*j}], v3, s[{srd_x}:{srd_x+3}], 0 offen offset:{1024*j}", "rj")
    k.e("v_bfe_u32 v72, v1, 1, 2", "v_cmp_eq_u32 s[42:43], 1, v72", "v_cmp_eq_u32 s[44:45], 2, v72", "v_cmp_eq_u32 s[46:47], 3, v72")
    k.wait_vm("rj")
    epoch_issue_all(k, 74)
    for j in range(4):
        for i in range(4):
            k.e(f"v_lshlrev_b32 v{32+8*j+2*i}, 16, v{4+4*j+i}", f"v_and_b32 v{33+8*j+2*i}, 0xffff0000, v{4+4*j+i}")
    for j in range(4):
        b = 32 + 8*j
        k.e(f"v_add_f32 v{20+j}, v{b}, v{b+1}")
    for i in range(2, 8):
        for j in range(4):
            k.e(f"v_add_f32 v{20+j}, v{20+j}, v{32+8*j+i}")
    allreduce(k, [20, 21, 22, 23], [24, 25, 26, 27])
    for j in range(4): k.e(f"v_mul_f32 v{20+j}, 0x3b000000, v{20+j}")
    for i in range(8):
        for j in range(4): k.e(f"v_sub_f32 v{32+8*j+i}, v{32+8*j+i}, v{20+j}")
    for j in range(4): k.e(f"v_mul_f32 v{28+j}, v{32+8*j}, v{32+8*j}")
    for i in range(1, 8):
        for j in range(4): k.e(f"v_fmac_f32 v{28+j}, v{32+8*j+i}, v{32+8*j+i}")
    allreduce(k, [28, 29, 30, 31], [24, 25, 26, 27])
    k.e("v_cndmask_b32 v64, v20, v21, s[42:43]", "v_cndmask_b32 v65, v28, v29, s[42:43]",
        "v_cndmask_b32 v64, v64, v22, s[44:45]", "v_cndmask_b32 v65, v65, v30, s[44:45]",
        "v_cndmask_b32 v64, v64, v23, s[46:47]", "v_cndmask_b32 v65, v65, v31, s[46:47]")
    k.e("v_mov_b32 v66, 0x3727c5ac", "v_fmac_f32 v66, 0x3b000000, v65",
        "v_rsq_f32 v67, v66", "v_sub_f32 v64, 0, v64",
        "v_mul_f32 v68, v66, v67",
        "v_cvt_pk_bf16_f32 v69, v64, v64", "s_nop 0", "v_and_b32 v69, 0xffff0000, v69", "v_sub_f32 v70, v64, v69",
        "v_cvt_pk_bf16_f32 v69, v70, v70", "s_nop 0", "v_and_b32 v69, 0xffff0000, v69", "v_sub_f32 v71, v70, v69",
        "v_cvt_pk_bf16_f32 v4, v64, v70", "v_cvt_pk_bf16_f32 v6, v71, v64",
        "v_and_b32 v72, 1, v1", "v_cmp_eq_u32 vcc, 1, v72", "v_mov_b32 v5, v4")
    k.e(f"s_lshl_b32 s40, s{s_job}, 9", "v_lshlrev_b32 v3, 7, v2", "v_lshl_add_u32 v3, v1, 4, v3", "v_add_u32 v3, s40, v3")
    epoch_check_all(k, 74)
    k.e(f"v_mov_b32 v7, s{SEP}",
        "v_cndmask_b32 v4, v4, v67, vcc", "v_cndmask_b32 v5, v5, v68, vcc", "v_cndmask_b32 v6, v6, v7, vcc")
    k.e("v_cmp_gt_u32 vcc, 8, v1", "s_and_saveexec_b64 s[42:43], vcc")
    k.vmem(f"buffer_store_dwordx4 v[4:7], v3, s[{srd_ws}:{srd_ws+3}], 0 offen offset:{WS_TOK} sc1", "st")
    k.e("s_mov_b64 exec, s[42:43]")

def col_job2(k, s_job, srd_w, s_ld, s_col0b, srd_ws, s_half=None, mid=None):
    NL = 16 if s_half is None else 8
    k.e("v_and_b32 v1, 63, v0", "v_lshrrev_b32 v2, 6, v0", "v_lshrrev_b32 v3, 3, v1", f"v_lshl_add_u32 v3, v2, {7 if s_half is None else 6}, v3")
    if s_half is not None: k.e(f"s_lshl_b32 s40, s{s_half}, 8", "v_add_u32 v3, s40, v3")
    k.e(
        f"v_mul_lo_u32 v3, v3, s{s_ld}", "v_and_b32 v4, 7, v1", "v_lshl_add_u32 v3, v4, 4, v3", f"v_add_u32 v3, s{s_col0b}, v3",
        f"s_lshl_b32 s41, s{s_ld}, 3", "s_mov_b32 s40, 0")
    for i in range(NL):
        k.vmem(f"buffer_load_dwordx4 v[{8+4*i}:{11+4*i}], v3, s[{srd_w}:{srd_w+3}], s40 offen", ("cj", i))
        if i < NL - 1: k.e("s_add_u32 s40, s40, s41")
    LB = 32768 if mid else 0
    if mid:
        epoch_issue_all(k, 74); mid()
    k.e("s_mov_b32 s42, 0x00003f80", "s_mov_b32 s43, 0x3f800000")
    A = 80
    for i in range(8): k.e(f"v_mov_b32 v{A+i}, 0")
    for i in range(NL):
        k.wait_vm(("cj", i))
        if i == NL - 1 and not mid: epoch_issue_all(k, 74)
        for d in range(4):
            k.e(f"v_dot2_f32_bf16 v{A+2*d}, v{8+4*i+d}, s42, v{A+2*d}", f"v_dot2_f32_bf16 v{A+1+2*d}, v{8+4*i+d}, s43, v{A+1+2*d}")
    k.e("s_nop 2")
    for i in range(8): k.e(f"v_add_f32_dpp v{A+i}, v{A+i}, v{A+i} row_ror:8 row_mask:0xf bank_mask:0xf")
    k.e("v_lshrrev_b32 v5, 4, v1", "v_lshl_add_u32 v5, v2, 2, v5", "v_lshlrev_b32 v5, 8, v5", "v_lshl_add_u32 v5, v4, 5, v5",
        "v_and_b32 v6, 15, v1", "v_cmp_gt_u32 vcc, 8, v6", "s_and_saveexec_b64 s[44:45], vcc")
    k.ds(f"ds_write_b128 v5, v[{A}:{A+3}] offset:{LB}")
    k.ds(f"ds_write_b128 v5, v[{A+4}:{A+7}] offset:{LB+16}")
    k.e("s_mov_b64 exec, s[44:45]")
    k.wait_lg_all()
    k.e("s_barrier")
    k.e("v_lshlrev_b32 v5, 2, v1")
    for p in range(16): k.ds(f"ds_read_b32 v{8+p}, v5 offset:{LB+256*p}")
    k.wait_lg_all()
    for st in (8, 4, 2, 1):
        for p in range(st): k.e(f"v_add_f32 v{8+p}, v{8+p}, v{8+p+st}")
    k.e("s_nop 0",
        "v_cvt_pk_bf16_f32 v12, v8, v8", "s_nop 0", "v_and_b32 v9, 0xffff0000, v12", "v_sub_f32 v9, v8, v9",
        "v_cvt_pk_bf16_f32 v13, v9, v9", "s_nop 0", "v_and_b32 v10, 0xffff0000, v13", "v_sub_f32 v10, v9, v10",
        "v_cvt_pk_bf16_f32 v14, v8, v10",
        f"s_lshl_b32 s40, s{s_job}, 10", "v_lshlrev_b32 v5, 4, v1", "v_add_u32 v5, s40, v5", f"s_mov_b32 s40, {WS_COL}")
    if s_half is not None: k.e(f"s_mul_i32 s41, s{s_half}, {COL2}", "s_add_u32 s40, s40, s41")
    epoch_check_all(k, 74)
    k.e(f"v_mov_b32 v15, s{SEP}", "v_cmp_gt_u32 vcc, 64, v0", "s_and_saveexec_b64 s[44:45], vcc")
    Lx = k.newlabel("cjx")
    k.e(f"s_cbranch_execz {Lx}")
    k.vmem(f"buffer_store_dwordx4 v[12:15], v5, s[{srd_ws}:{srd_ws+3}], s40 offen sc1", "st", opt=True)
    k.label(Lx)
    k.e("s_mov_b64 exec, s[44:45]")
    k.e("s_barrier")

def stats_role2(k, SWQ=28, xal=False):
    Lc = k.newlabel("stc"); Ld = k.newlabel("std"); Lg = k.newlabel("stg")
    k.e("s_cmp_ge_u32 s3, 208", f"s_cbranch_scc1 {Ld}", "s_cmp_ge_u32 s3, 128", f"s_cbranch_scc1 {Lc}")
    if xal:
        k.e("s_and_b32 s96, s3, 7", "s_lshr_b32 s97, s3, 3", "s_lshl_b32 s96, s96, 4", "s_add_u32 s98, s96, s97")
    else: k.e("s_mov_b32 s98, s3")
    row_job2(k, 98, 8, 20)
    k.e(f"s_branch {Ld}")
    k.label(Lc)
    v0 = list(k.vm)
    k.vm = []; k.lg = []
    k.e("s_sub_u32 s98, s3, 128")
    if xal:
        La = k.newlabel("xa"); Lb = k.newlabel("xb")
        k.e("s_and_b32 s96, s98, 7", "s_lshr_b32 s97, s98, 3", "s_cmp_ge_u32 s97, 3", f"s_cbranch_scc1 {La}",
            "s_and_b32 s92, s96, 1", "s_lshl_b32 s92, s92, 2", "s_lshr_b32 s93, s96, 1", "s_add_u32 s92, s92, s93", "s_lshl_b32 s98, s97, 3", "s_add_u32 s98, s98, s92", f"s_branch {Lb}")
        k.label(La)
        k.e("s_lshr_b32 s92, s96, 1", "s_mul_i32 s92, s92, 7", "s_add_u32 s92, s92, s97", "s_sub_u32 s92, s92, 3",
            "s_and_b32 s93, s96, 1", "s_mul_i32 s93, s93, 7", "s_lshr_b32 s94, s92, 2", "s_add_u32 s93, s93, s94",
            "s_lshl_b32 s93, s93, 1", "s_and_b32 s94, s92, 1", "s_add_u32 s93, s93, s94",
            "s_bfe_u32 s94, s92, 0x10001", "s_mul_i32 s94, s94, 28", "s_add_u32 s98, s93, s94", "s_add_u32 s98, s98, 24")
        k.label(Lb)
    k.e(
        f"s_mov_b32 s92, s{SWQ}", f"s_mov_b32 s93, s{SWQ+1}", f"s_mov_b32 s94, {SZ_WQKV}", "s_mov_b32 s95, 0x00020000",
        "s_movk_i32 s96, 3072", "s_lshl_b32 s97, s98, 7",
        "s_cmp_lt_u32 s98, 24", f"s_cbranch_scc1 {Lg}",
        "s_mov_b32 s92, s12", "s_mov_b32 s93, s13", f"s_mov_b32 s94, {SZ_WG}", "s_movk_i32 s96, 3584",
        "s_sub_u32 s97, s98, 24", "s_lshl_b32 s97, s97, 7",
        "s_cmp_lt_u32 s98, 52", f"s_cbranch_scc1 {Lg}",
        "s_mov_b32 s92, s16", "s_mov_b32 s93, s17", "s_sub_u32 s97, s98, 52", "s_lshl_b32 s97, s97, 7")
    k.label(Lg)
    col_job2(k, 98, 92, 96, 97, 20)
    k.label(Ld)
    k.vm = [("st", True)]; k.lg = []

COL2 = 0x14000
def row_job3(k, s_job, srd_x, srd_ws, mid=None):
    k.e("v_and_b32 v1, 63, v0", "v_lshrrev_b32 v2, 6, v0", f"s_lshl_b32 s40, s{s_job}, 15", "s_movk_i32 s41, 4096",
        "v_lshlrev_b32 v3, 13, v2", "v_lshl_add_u32 v3, v1, 4, v3", "v_add_u32 v3, s40, v3")
    SRC = (4, 80)
    for b in range(2):
        for j in range(4):
            k.vmem(f"buffer_load_dwordx4 v[{SRC[b]+4*j}:{SRC[b]+3+4*j}], v3, s[{srd_x}:{srd_x+3}], {'s41' if b else '0'} offen offset:{1024*j}", ("rj", b))
    if mid:
        epoch_issue_all(k, 74); mid()
    k.e("v_bfe_u32 v72, v1, 1, 2", "v_cmp_eq_u32 s[42:43], 1, v72", "v_cmp_eq_u32 s[44:45], 2, v72", "v_cmp_eq_u32 s[46:47], 3, v72")
    k.e(f"s_lshl_b32 s40, s{s_job}, 10", "v_lshlrev_b32 v73, 8, v2", "v_lshl_add_u32 v73, v1, 4, v73", "v_add_u32 v73, s40, v73")
    for b in range(2):
        S = SRC[b]
        k.wait_vm(("rj", b))
        if b == 0 and not mid: epoch_issue_all(k, 74)
        for j in range(4):
            for i in range(4):
                k.e(f"v_lshlrev_b32 v{32+8*j+2*i}, 16, v{S+4*j+i}", f"v_and_b32 v{33+8*j+2*i}, 0xffff0000, v{S+4*j+i}")
        for j in range(4):
            bb = 32 + 8*j
            k.e(f"v_add_f32 v{20+j}, v{bb}, v{bb+1}")
        for i in range(2, 8):
            for j in range(4):
                k.e(f"v_add_f32 v{20+j}, v{20+j}, v{32+8*j+i}")
        allreduce(k, [20, 21, 22, 23], [24, 25, 26, 27])
        for j in range(4): k.e(f"v_mul_f32 v{20+j}, 0x3b000000, v{20+j}")
        for i in range(8):
            for j in range(4): k.e(f"v_sub_f32 v{32+8*j+i}, v{32+8*j+i}, v{20+j}")
        for j in range(4): k.e(f"v_mul_f32 v{28+j}, v{32+8*j}, v{32+8*j}")
        for i in range(1, 8):
            for j in range(4): k.e(f"v_fmac_f32 v{28+j}, v{32+8*j+i}, v{32+8*j+i}")
        allreduce(k, [28, 29, 30, 31], [24, 25, 26, 27])
        k.e("v_cndmask_b32 v64, v20, v21, s[42:43]", "v_cndmask_b32 v65, v28, v29, s[42:43]",
            "v_cndmask_b32 v64, v64, v22, s[44:45]", "v_cndmask_b32 v65, v65, v30, s[44:45]",
            "v_cndmask_b32 v64, v64, v23, s[46:47]", "v_cndmask_b32 v65, v65, v31, s[46:47]")
        k.e("v_mov_b32 v66, 0x3727c5ac", "v_fmac_f32 v66, 0x3b000000, v65",
            "v_rsq_f32 v67, v66", "v_sub_f32 v64, 0, v64",
            "v_mul_f32 v68, v66, v67",
            "v_cvt_pk_bf16_f32 v69, v64, v64", "s_nop 0", "v_and_b32 v69, 0xffff0000, v69", "v_sub_f32 v70, v64, v69",
            "v_cvt_pk_bf16_f32 v69, v70, v70", "s_nop 0", "v_and_b32 v69, 0xffff0000, v69", "v_sub_f32 v71, v70, v69",
            "v_cvt_pk_bf16_f32 v96, v64, v70", "v_cvt_pk_bf16_f32 v98, v71, v64",
            "v_and_b32 v72, 1, v1", "v_cmp_eq_u32 vcc, 1, v72", "v_mov_b32 v97, v96")
        if b == 0: epoch_check_all(k, 74)
        k.e(f"v_mov_b32 v99, s{SEP}", "v_and_b32 v72, 1, v1", "v_cmp_eq_u32 vcc, 1, v72", "s_nop 1",
            "v_cndmask_b32 v96, v96, v67, vcc", "v_cndmask_b32 v97, v97, v68, vcc", "v_cndmask_b32 v98, v98, v99, vcc")
        k.e("v_cmp_gt_u32 vcc, 8, v1", "s_and_saveexec_b64 s[48:49], vcc")
        k.vmem(f"buffer_store_dwordx4 v[96:99], v73, s[{srd_ws}:{srd_ws+3}], 0 offen offset:{WS_TOK + 128*b} sc1", "st")
        k.e("s_mov_b64 exec, s[48:49]", "s_nop 1")

def stats_role3(k, SWQ=28, mid=None):
    Lc = k.newlabel("stc"); Ld = k.newlabel("std"); Lg = k.newlabel("stg"); Lq = k.newlabel("stq")
    k.e("s_cmp_ge_u32 s3, 64", f"s_cbranch_scc1 {Lc}")
    k.e("s_mov_b32 s98, s3")
    row_job3(k, 98, 8, 20, mid=mid)
    k.e(f"s_branch {Ld}")
    Lf = k.newlabel("stf")
    if mid:
        k.label(Lf)
        k.vm = []; k.lg = []
        mid()
        k.e(f"s_branch {Ld}")
    k.label(Lc)
    k.vm = []; k.lg = []
    k.e("s_sub_u32 s98, s3, 64", "s_cmp_lt_u32 s3, 112", f"s_cbranch_scc1 {Lq}", "s_cmp_lt_u32 s3, 144", f"s_cbranch_scc1 {Lf if mid else Ld}", "s_sub_u32 s98, s3, 96")
    k.label(Lq)
    k.e("s_and_b32 s99, s98, 1", "s_lshr_b32 s98, s98, 1")
    k.e(
        f"s_mov_b32 s92, s{SWQ}", f"s_mov_b32 s93, s{SWQ+1}", f"s_mov_b32 s94, {SZ_WQKV}", "s_mov_b32 s95, 0x00020000",
        "s_movk_i32 s96, 3072", "s_lshl_b32 s97, s98, 7",
        "s_cmp_lt_u32 s98, 24", f"s_cbranch_scc1 {Lg}",
        "s_mov_b32 s92, s12", "s_mov_b32 s93, s13", f"s_mov_b32 s94, {SZ_WG}", "s_movk_i32 s96, 3584",
        "s_sub_u32 s97, s98, 24", "s_lshl_b32 s97, s97, 7",
        "s_cmp_lt_u32 s98, 52", f"s_cbranch_scc1 {Lg}",
        "s_mov_b32 s92, s16", "s_mov_b32 s93, s17", "s_sub_u32 s97, s98, 52", "s_lshl_b32 s97, s97, 7")
    k.label(Lg)
    col_job2(k, 98, 92, 96, 97, 20, s_half=99, mid=mid)
    k.label(Ld)
    k.vm = [("st", True), ("st", True)]; k.lg = []
    if mid: k.vm = [(("X", 0), False)]*4 + [(("W", 0), False)]*4 + [(("W", 1), False)]*4 + k.vm

PK = 0
def e1x_body(k, SX=8, SW=12, SWS=20, exit_loop=False, noex=False, wx=0, bal=False, rot=True, ux=11, pre_store=None, dup=False, rper=5, dper=2, notag=False, touch=False, fine=False):
    E1_XB = 49152
    k.e("v_and_b32 v1, 63, v0")
    k.e("v_and_b32 v11, 31, v1", "v_lshrrev_b32 v12, 5, v1")
    k.e("s_and_b32 s27, s24, 1", "s_lshr_b32 s28, s24, 1")
    k.e("v_lshrrev_b32 v13, 3, v1", "v_lshrrev_b32 v14, 4, v1", "v_and_b32 v15, 7, v1",
        "v_xor_b32 v7, v15, v14", "v_lshlrev_b32 v7, 4, v7", "v_lshl_add_u32 v7, v13, 10, v7",
        "s_lshl_b32 s29, s25, 16", "s_lshl_b32 s30, s24, 14", "s_add_u32 s29, s29, s30",
        "v_add_u32 v7, s29, v7", "v_xor_b32 v8, 64, v7", "v_add_u32 v8, 8192, v8")
    k.e("v_and_b32 v14, 1, v14", "v_lshlrev_b32 v14, 2, v14", "v_xor_b32 v9, v15, v14", "v_lshlrev_b32 v9, 4, v9",
        "s_lshl_b32 s30, s24, 3", "v_add_u32 v13, s30, v13", "v_mul_u32_u24 v13, 3072, v13", "v_add_u32 v9, v9, v13",
        f"s_xor_b32 s30, s26, {wx}", "s_lshl_b32 s30, s30, 7", "v_add_u32 v9, s30, v9")
    k.e(f"s_lshl_b32 s31, s24, 11", f"s_add_u32 s31, s31, {E1_XB}", "s_lshl_b32 s32, s24, 10")
    def xd(v):
        if rot:
            return [dmab(SX, 7, 31, (v % 3)*8192, 33, 51, 0, ("X", v)),
                    dmab(SX, 8, 31, (v % 3)*8192 + 1024, 33, 51, 0, ("X", v), post=["s_add_u32 s51, s51, 128", "s_and_b32 s51, s51, 1023"])]
        return [dma(SX, 7, 31, (v % 3)*8192, 33, v*128, ("X", v)), dma(SX, 8, 31, (v % 3)*8192 + 1024, 33, v*128, ("X", v))]
    def wd(u):
        if rot:
            return [dmab(SW, 9, 32, (u % 4)*12288 + p*4096, 33, 50, 0, ("W", u), imm=1024*p, post=(rot_adv(50, 32*3072, 512*3072, 52) if p == 2 else ())) for p in range(3)]
        return [dma(SW, 9, 32, (u % 4)*12288 + p*4096, 33, u*32*3072, ("W", u), imm=1024*p) for p in range(3)]
    if rot:
        k.e("s_lshl_b32 s51, s53, 7", f"s_mul_i32 s50, s53, {64*3072}")
    if touch:
        k.e("v_lshrrev_b32 v130, 3, v1", "v_and_b32 v131, 7, v1", "v_lshlrev_b32 v131, 7, v131", "v_lshl_add_u32 v130, v130, 10, v131",
            "s_and_b32 s34, s26, 3", "s_lshl_b32 s34, s34, 4", "s_lshl_b32 s35, s24, 2", "s_add_u32 s34, s34, s35", "s_lshl_b32 s34, s34, 10", "s_lshl_b32 s35, s25, 16", "s_add_u32 s34, s34, s35",
            "s_mov_b32 exec_hi, 0")
        k.vmem(f"buffer_load_dword v132, v130, s[{SX}:{SX+3}], s34 offen", "touch")
        k.e("s_mov_b32 exec_hi, -1")
        k.e("v_and_b32 v130, 15, v1", "v_mul_u32_u24 v130, 3072, v130", "v_lshrrev_b32 v131, 4, v1", "v_lshl_add_u32 v130, v131, 10, v130",
            "s_and_b32 s34, s25, 7", "s_lshl_b32 s34, s34, 6", "s_lshl_b32 s35, s24, 4", "s_add_u32 s34, s34, s35", "s_mul_i32 s34, s34, 3072", "s_lshl_b32 s35, s26, 7", "s_add_u32 s34, s34, s35",
            "s_mov_b32 exec_hi, 0xffff")
        k.vmem(f"buffer_load_dword v133, v130, s[{SW}:{SW+3}], s34 offen", "touch")
        k.e("s_mov_b32 exec_hi, -1")
    emit_groups(k, xd(0) + wd(0) + wd(1) + xd(1) + wd(2))
    k.e("s_lshl_b32 s36, s27, 5", "v_add_u32 v13, s36, v11", "v_bfe_u32 v14, v13, 1, 3", "v_xor_b32 v14, v14, v12",
        "v_lshlrev_b32 v14, 4, v14", "v_lshl_add_u32 v2, v13, 7, v14", f"v_add_u32 v2, {E1_XB}, v2",
        "v_xor_b32 v3, 32, v2", "v_xor_b32 v4, 64, v2", "v_xor_b32 v5, 96, v2")
    k.e("v_bfe_u32 v13, v1, 2, 2", "v_lshl_add_u32 v13, v12, 3, v13", "v_lshlrev_b32 v6, 7, v13",
        "v_bfe_u32 v13, v1, 4, 1", "v_lshlrev_b32 v13, 1, v13", "v_bfe_u32 v14, v1, 1, 1", "v_add_u32 v13, v13, v14",
        "s_lshl_b32 s36, s28, 2", "v_add_u32 v13, s36, v13", "v_bfe_u32 v14, v1, 3, 1", "v_lshlrev_b32 v14, 2, v14",
        "v_xor_b32 v13, v13, v14", "v_lshl_add_u32 v6, v13, 4, v6", "v_and_b32 v14, 1, v1", "v_lshl_add_u32 v6, v14, 3, v6",
        "v_xor_b32 v10, 2048, v6")
    k.e("s_lshl_b32 s34, s25, 6", "s_lshl_b32 s35, s27, 5", "s_add_u32 s34, s34, s35", "v_add_u32 v117, s34, v11", "v_lshlrev_b32 v117, 5, v117",
        "s_lshl_b32 s35, s26, 6", "s_lshl_b32 s36, s28, 5", "s_add_u32 s35, s35, s36", "v_add_u32 v118, s35, v11", "v_lshlrev_b32 v118, 4, v118")
    if bal: k.e(f"v_mul_u32_u24 v13, 0x{COL2:x}, v12", "v_add_u32 v118, v118, v13")
    def extras():
        k.vmem(f"buffer_load_dwordx4 v[48:51], v117, s[{SWS}:{SWS+3}], 0 offen offset:{WS_TOK} sc1", "ex")
        k.vmem(f"buffer_load_dwordx4 v[112:115], v117, s[{SWS}:{SWS+3}], 0 offen offset:{WS_TOK+16} sc1", "ex")
        for p in range(3):
            k.e(f"s_mov_b32 s36, {WS_COL + 8192*p}")
            k.vmem(f"buffer_load_dwordx4 v[{52+4*p}:{55+4*p}], v118, s[{SWS}:{SWS+3}], s36 offen sc1", "ex")
    ACC = 64
    def fr(st): return 16 + 16*st
    def reads(g, st):
        b = fr(st); u = g >> 1; v = g >> 2
        out = [(f"ds_read_b128 v[{b}:{b+3}], v{2 + (g & 3)} offset:{(v % 3)*8192}", "X")]
        av = 6 if (g & 1) == 0 else 10
        for p in range(3):
            o = (u % 4)*12288 + p*4096
            out.append((f"ds_read_b64_tr_b16 v[{b+4+4*p}:{b+5+4*p}], v{av} offset:{o}", f"W{p}"))
            out.append((f"ds_read_b64_tr_b16 v[{b+6+4*p}:{b+7+4*p}], v{av} offset:{o+512}", f"W{p}"))
        return out
    def mf(b_x, b_w, first):
        out = []
        for p in range(3):
            a = ACC + 16*p
            w = f"v[{b_w+4*p}:{b_w+4*p+3}]"; x = f"v[{b_x}:{b_x+3}]"
            A, B = (w, x) if p < 2 else (x, w)
            c = "0" if first else f"v[{a}:{a+15}]"
            out.append((f"{MF} v[{a}:{a+15}], {A}, {B}, {c}", ["X", f"W{p}"]))
        return out
    def mfmas(g, st): return mf(fr(st), fr(st) + 4, g == 0)
    def dmas(u):
        out = []
        if u + 3 < 16: out += wd(u + 3)
        if u % 2 == 0 and u//2 + 2 < 8: out += xd(u//2 + 2)
        return out
    hooks = {ux - 1: [lambda: epoch_issue_all(k, 120)], ux: [extras]}
    if noex: hooks = {}
    pre_hooks = None
    if fine: pre_hooks = {0: lambda: k.stamp(9), 1: lambda: k.stamp(10), 4: lambda: k.stamp(11), 10: lambda: k.stamp(12)}
    k.stamp(1)
    gemm2(k, 16, mfmas, reads, dmas, lambda u: [("W", u), ("X", u >> 1)], fill0=None, rper=rper, dper=dper, hooks=hooks, pre_hooks=pre_hooks)
    k.stamp(2)
    if exit_loop:
        for i in range(3, 9): k.stamp(i)
        k.stamp_out(9, 0, sh=7); k.e("s_waitcnt vmcnt(0)", "s_endpgm")
    epoch_check_all(k, 120)
    k.wait_vm("ex")
    def zero():
        for r in (51, 55, 59, 63): k.e(f"v_mov_b32 v{r}, 0")
        if bal:
            k.e("s_nop 1")
            return
        k.e("s_mov_b32 exec_lo, 0")
        for r in range(48, 64):
            if r not in (51, 55, 59, 63): k.e(f"v_mov_b32 v{r}, 0")
        k.e("s_mov_b32 exec_lo, -1", "s_nop 1")
    if notag: zero()
    else: tag_check(k, extras, [51, 114, 55, 59, 63], "x1", zero)
    for (t, _) in mf(48, 52, False): k.e(t)
    k.e("s_lshl_b32 s36, s24, 7", "v_lshlrev_b32 v13, 2, v11", "v_add_u32 v13, s36, v13")
    k.ds("ds_write_b32 v13, v112")
    k.e("v_lshlrev_b32 v13, 4, v12", "v_add_u32 v13, s36, v13")
    k.wait_lg_all()
    for gq in range(4): k.ds(f"ds_read_b128 v[{32+4*gq}:{35+4*gq}], v13 offset:{32*gq}")
    k.e(f"v_mul_f32 v113, 0x{f2u(0.25*LOG2E):08x}, v112")
    if pre_store: pre_store()
    k.e("v_lshlrev_b32 v10, 4, v1",
        "s_lshl_b32 s36, s26, 2", "s_lshl_b32 s37, s28, 1", "s_add_u32 s36, s36, s37", "s_lshl_b32 s36, s36, 16",
        "s_lshl_b32 s37, s25, 1", "s_add_u32 s37, s37, s27", "s_lshl_b32 s37, s37, 10", "s_add_u32 s36, s36, s37")
    k.e("v_lshrrev_b32 v17, 4, v11", "v_lshlrev_b32 v17, 16, v17", "v_lshl_add_u32 v17, v12, 8, v17", "v_and_b32 v18, 15, v11", "v_lshl_add_u32 v17, v18, 4, v17")
    k.e("s_nop 4")
    modes = ("sc1", "") if dup else ("sc1",)
    for p, (scale, base) in enumerate(((113, WS_QF), (112, WS_KF))):
        a = ACC + 16*p
        if PK & 2:
            for r in range(0, 16, 2): k.e(f"v_pk_mul_f32 v[{a+r}:{a+r+1}], v[{a+r}:{a+r+1}], v[112:113] op_sel:[0,{scale-112}] op_sel_hi:[1,{scale-112}]")
        else:
            for r in range(16): k.e(f"v_mul_f32 v{a+r}, v{a+r}, v{scale}")
        for j in range(2):
            d = 20 + 8*p + 4*j if p == 0 else 48 + 4*j
            for i in range(4): k.e(f"v_cvt_pk_bf16_f32 v{d+i}, v{a+8*j+2*i}, v{a+8*j+2*i+1}")
            k.e(f"s_add_u32 s37, s36, 0x{base + j*65536:x}")
            for m in modes: k.vmem(f"buffer_store_dwordx4 v[{d}:{d+3}], v10, s[{SWS}:{SWS+3}], s37 offen {m}", "st")
    k.wait_lg_all()
    a = ACC + 32
    if PK & 4:
        for r in range(0, 16, 2): k.e(f"v_pk_mul_f32 v[{a+r}:{a+r+1}], v[{a+r}:{a+r+1}], v[{32+r}:{33+r}]")
    else:
        for r in range(16): k.e(f"v_mul_f32 v{a+r}, v{a+r}, v{32+r}")
    k.e(f"s_add_u32 s37, s36, 0x{WS_VF:x}")
    for j in range(2):
        d = 56 + 4*j
        for i in range(4): k.e(f"v_cvt_pk_bf16_f32 v{d+i}, v{a+8*j+2*i}, v{a+8*j+2*i+1}")
        for m in modes: k.vmem(f"buffer_store_dwordx4 v[{d}:{d+3}], v17, s[{SWS}:{SWS+3}], s37 offen offset:{512*j} {m}", "st")

def e3x_body(k, SX=8, SG=12, SU=16, SWS=20, part=None, bal=False, fine=False, epi_prio=None, post_loop=None, rot=True, ux=11, rper=4, dper=1, pre_loop=None):
    XB = 49152
    line0 = len(k.lines)
    k.e("v_and_b32 v1, 63, v0")
    k.e("v_and_b32 v11, 31, v1", "v_lshrrev_b32 v12, 5, v1")
    k.e("s_and_b32 s27, s24, 1", "s_lshr_b32 s28, s24, 1")
    k.e("v_lshrrev_b32 v13, 3, v1", "v_lshrrev_b32 v14, 4, v1", "v_and_b32 v15, 7, v1",
        "v_xor_b32 v7, v15, v14", "v_lshlrev_b32 v7, 4, v7", "v_lshl_add_u32 v7, v13, 10, v7",
        "s_lshl_b32 s29, s25, 17", "s_lshl_b32 s30, s24, 15", "s_add_u32 s29, s29, s30",
        "v_add_u32 v7, s29, v7", "v_xor_b32 v8, 64, v7", "v_add_u32 v8, 8192, v8")
    k.e("v_lshlrev_b32 v13, 2, v14", "v_and_b32 v15, 15, v1", "v_xor_b32 v9, v15, v13", "v_lshlrev_b32 v9, 4, v9",
        "s_lshl_b32 s30, s24, 3", "v_add_u32 v13, s30, v14", "v_mul_u32_u24 v13, 3584, v13", "v_add_u32 v9, v9, v13",
        "s_lshl_b32 s30, s26, 8", "v_add_u32 v9, s30, v9")
    k.e(f"s_lshl_b32 s31, s24, 12", f"s_add_u32 s31, s31, {XB}", "s_lshl_b32 s32, s24, 11")
    def xd(v):
        if rot:
            return [dmab(SX, 7 + (i & 1), 31, (v % 2)*16384 + i*1024, 33, 51, (i >> 1)*16384, ("X", v),
                         post=(["s_add_u32 s51, s51, 128", "s_and_b32 s51, s51, 1023"] if i == 3 else ())) for i in range(4)]
        return [dma(SX, 7 + (i & 1), 31, (v % 2)*16384 + i*1024, 33, v*128 + (i >> 1)*16384, ("X", v)) for i in range(4)]
    def wd(u):
        out = []
        for i in range(2):
            for p, sr in enumerate((SG, SU)):
                if rot:
                    out.append(dmab(sr, 9, 32, (u % 3)*16384 + p*8192 + i*1024, 33, 50, 4*i*3584, ("W", u),
                                    post=(rot_adv(50, 32*3584, 512*3584, 52) if (i, p) == (1, 1) else ())))
                else:
                    out.append(dma(sr, 9, 32, (u % 3)*16384 + p*8192 + i*1024, 33, (u*32 + 4*i)*3584, ("W", u)))
        return out
    if part != "main":
        if rot:
            k.e("s_lshl_b32 s51, s53, 7", f"s_mul_i32 s50, s53, {64*3584}")
        emit_groups(k, xd(0) + wd(0) + wd(1))
    if part == "pre":
        import re
        for i in range(line0, len(k.lines)):
            k.lines[i] = re.sub(r"\bv(\d+)\b", lambda m: m.group(0) if int(m.group(1)) < 2 else f"v{int(m.group(1)) + 200}", k.lines[i])
        return
    if pre_loop: pre_loop()
    k.e("s_lshl_b32 s36, s27, 6", "v_add_u32 v13, s36, v11", "v_bfe_u32 v14, v13, 1, 3", "v_xor_b32 v14, v14, v12",
        "v_lshlrev_b32 v14, 4, v14", "v_lshl_add_u32 v2, v13, 7, v14", f"v_add_u32 v2, {XB}, v2",
        "v_xor_b32 v3, 32, v2", "v_xor_b32 v4, 64, v2", "v_xor_b32 v5, 96, v2")
    k.e("v_bfe_u32 v15, v1, 2, 2", "v_lshl_add_u32 v13, v12, 3, v15", "v_lshlrev_b32 v6, 8, v13",
        "v_bfe_u32 v13, v1, 4, 1", "v_lshlrev_b32 v13, 1, v13", "v_bfe_u32 v14, v1, 1, 1", "v_add_u32 v13, v13, v14",
        "s_lshl_b32 s36, s28, 3", "v_add_u32 v13, s36, v13", "v_lshlrev_b32 v15, 2, v15",
        "v_xor_b32 v13, v13, v15", "v_lshl_add_u32 v6, v13, 4, v6", "v_and_b32 v14, 1, v1", "v_lshl_add_u32 v6, v14, 3, v6",
        "v_xor_b32 v10, 64, v6", "v_xor_b32 v72, 4096, v6", "v_xor_b32 v73, 4096, v10")
    k.e("s_lshl_b32 s34, s25, 7", "s_lshl_b32 s35, s27, 6", "s_add_u32 s34, s34, s35", "v_add_u32 v108, s34, v11", "v_lshlrev_b32 v108, 5, v108",
        "s_lshl_b32 s35, s26, 7", "s_lshl_b32 s36, s28, 6", "s_add_u32 s35, s35, s36", "v_add_u32 v109, s35, v11", "v_lshlrev_b32 v109, 4, v109")
    if bal: k.e(f"v_mul_u32_u24 v13, 0x{COL2:x}, v12", "v_add_u32 v109, v109, v13")
    EX = 76
    def extras():
        for tb in range(2):
            k.vmem(f"buffer_load_dwordx4 v[{EX+4*tb}:{EX+3+4*tb}], v108, s[{SWS}:{SWS+3}], 0 offen offset:{WS_TOK+1024*tb} sc1", "ex")
            k.vmem(f"buffer_load_dwordx4 v[{100+4*tb}:{103+4*tb}], v108, s[{SWS}:{SWS+3}], 0 offen offset:{WS_TOK+16+1024*tb} sc1", "ex")
        for part in range(2):
            k.e(f"s_mov_b32 s36, {WS_COL + (1536 + 1792*part)*16}")
            for b in range(2):
                d = EX + 8 + 8*part + 4*b
                k.vmem(f"buffer_load_dwordx4 v[{d}:{d+3}], v109, s[{SWS}:{SWS+3}], s36 offen offset:{512*b} sc1", "ex")
    ACC = 128
    def fr(st): return 16 + 24*st
    def acc(part, b, tb): return ACC + 16*(part*4 + b*2 + tb)
    def reads(g, st):
        b0 = fr(st); u = g >> 1; v = g >> 2
        def wr(part, b):
            d = b0 + 8 + 8*part + 4*b
            o = (u % 3)*16384 + part*8192
            av = ((6, 10), (72, 73))[g & 1][b]
            return [(f"ds_read_b64_tr_b16 v[{d}:{d+1}], v{av} offset:{o}", f"W{part}{b}"),
                    (f"ds_read_b64_tr_b16 v[{d+2}:{d+3}], v{av} offset:{o+1024}", f"W{part}{b}")]
        def xr(tb): return [(f"ds_read_b128 v[{b0+4*tb}:{b0+4*tb+3}], v{2 + (g & 3)} offset:{(v % 2)*16384 + tb*4096}", f"X{tb}")]
        return xr(0) + wr(0, 0) + xr(1) + wr(0, 1) + wr(1, 0) + wr(1, 1)
    def mf(b0, first):
        out = []
        for part in range(2):
            for b in range(2):
                for tb in range(2):
                    a = acc(part, b, tb); w = b0 + 8 + 8*part + 4*b; x = b0 + 4*tb
                    c = "0" if first else f"v[{a}:{a+15}]"
                    out.append((f"{MF} v[{a}:{a+15}], v[{w}:{w+3}], v[{x}:{x+3}], {c}", [f"X{tb}", f"W{part}{b}"]))
        return out
    def mfmas(g, st): return mf(fr(st), g == 0)
    def dmas(u):
        out = []
        if u + 2 < 16: out += wd(u + 2)
        if u % 2 == 0 and u//2 + 1 < 8: out += xd(u//2 + 1)
        return out
    hooks = {ux - 1: [lambda: epoch_issue_all(k, 112)], ux: [extras]}
    ph = None
    if fine: ph = {u: (lambda i=i: k.stamp(i)) for i, u in enumerate((0, 2, 5, 8, 11, 14), 1)}
    else: k.stamp(1)
    gemm2(k, 16, mfmas, reads, dmas, lambda u: [("W", u), ("X", u >> 1)], fill0=None, rper=rper, dper=dper, hooks=hooks, pre_hooks=ph)
    if fine:
        k.stamp(7); k.nostamp = True
    k.stamp(2)
    if epi_prio is not None: k.e(f"s_setprio {epi_prio}")
    epoch_check_all(k, 112)
    k.wait_vm("ex")
    tags = [EX + 3 + 4*i for i in range(6)]
    def zero():
        for r in tags: k.e(f"v_mov_b32 v{r}, 0")
        if bal:
            k.e("s_nop 1")
            return
        k.e("s_mov_b32 exec_lo, 0")
        for r in range(EX, EX + 24):
            if r not in tags: k.e(f"v_mov_b32 v{r}, 0")
        k.e("s_mov_b32 exec_lo, -1", "s_nop 1")
    tag_check(k, extras, tags + [102, 106], "x3", zero)
    for (t, _) in mf(EX, False): k.e(t)
    if post_loop: post_loop()
    k.e(f"v_mul_f32 v110, 0x{f2u(-LOG2E):08x}, v100", f"v_mul_f32 v111, 0x{f2u(-LOG2E):08x}, v104")
    k.e("v_lshlrev_b32 v10, 4, v1",
        "s_lshl_b32 s36, s25, 2", "s_lshl_b32 s37, s27, 1", "s_add_u32 s36, s36, s37", "s_mul_i32 s36, s36, 112",
        "s_lshl_b32 s37, s26, 3", "s_add_u32 s36, s36, s37", "s_lshl_b32 s37, s28, 2", "s_add_u32 s36, s36, s37",
        "s_lshl_b32 s36, s36, 10", f"s_add_u32 s36, s36, 0x{WS_HF:x}")
    k.e("s_nop 7")
    n = 0
    for b in range(2):
        for tb in range(2):
            g = acc(0, b, tb); uu = acc(1, b, tb)
            A = 110 + tb; SD = 101 + 4*tb
            if PK & 1:
                for r in range(0, 16, 2): k.e(f"v_pk_mul_f32 v[{g+r}:{g+r+1}], v[{g+r}:{g+r+1}], v[110:111] op_sel:[0,{tb}] op_sel_hi:[1,{tb}]")
                for r in range(16): k.e(f"v_exp_f32 v{g+r}, v{g+r}")
                k.e("s_nop 0")
                for r in range(0, 16, 2): k.e(f"v_pk_fma_f32 v[{g+r}:{g+r+1}], v[{g+r}:{g+r+1}], v[{SD-1}:{SD}], v[{SD-1}:{SD}] op_sel:[0,1,1] op_sel_hi:[1,1,1]")
                for r in range(16): k.e(f"v_rcp_f32 v{g+r}, v{g+r}")
                k.e("s_nop 0")
                for r in range(0, 16, 2): k.e(f"v_pk_mul_f32 v[{g+r}:{g+r+1}], v[{g+r}:{g+r+1}], v[{uu+r}:{uu+r+1}]")
            else:
                for r in range(16): k.e(f"v_mul_f32 v{g+r}, v{g+r}, v{A}")
                for r in range(16): k.e(f"v_exp_f32 v{g+r}, v{g+r}")
                for r in range(16): k.e(f"v_fma_f32 v{g+r}, v{g+r}, v{SD}, v{SD}")
                for r in range(16): k.e(f"v_rcp_f32 v{g+r}, v{g+r}")
                k.e("s_nop 0")
                for r in range(16): k.e(f"v_mul_f32 v{g+r}, v{g+r}, v{uu+r}")
            for j in range(2):
                d = 16 + 4*(n % 8); n += 1
                for i in range(4): k.e(f"v_cvt_pk_bf16_f32 v{d+i}, v{g+8*j+2*i}, v{g+8*j+2*i+1}")
                k.e(f"s_add_u32 s37, s36, {(tb*112 + b*2 + j)*1024}")
                k.vmem(f"buffer_store_dwordx4 v[{d}:{d+3}], v10, s[{SWS}:{SWS+3}], s37 offen sc1", "st")

def kF1(name="f1_fused_kernel", prio_e1=None, prio_e2=None, prio_g=None, epi_prio=1, post_prio=0, e4_prio=None, hsleep=2, osleep=2, qsleep=2,
        rot=True, ux1=11, ux3=11, dup=False, force_fb=False, nostats=False, gexit=0, notag=False, xal=False, touch1=False, fine1=False, mode1="x", mode3="x", touch3=0, rp1=5, dp1=2, rp3=4, dp3=1, ugo=None, gosleep=4, gomax=64, gp_touch=False, prio_e3=None, bal=False, tw=False, fine3=False, aexit=False, qnopoll=0, cpf=0, map1=0, wx=0, hoist=False, aexit2=0, pre=0, rsleep=0, lim1=16, qpipe=0, qgap=4, omod='', endwait=True, qback=None, hback=None, pback=None, tsleep=1):
    global TSLEEP
    TSLEEP = tsleep
    k = KV(name, nvgpr=256)
    k.e("s_cmp_ge_u32 s2, 512", f"s_cbranch_scc1 L_end_{k.name}")
    fx = srd(k, 8, 0, SZ_X) + srd(k, 20, 72, WS_SIZE2)
    load_dbg(k)
    if cpf:
        Lp = k.newlabel("cpf"); Lq = k.newlabel("pc")
        k.e(f"s_cmp_ge_u32 s2, {cpf}", f"s_cbranch_scc1 {Lp}", "s_getpc_b64 s[36:37]")
        k.label(Lq)
        k.e(f"s_sub_u32 s36, s36, {Lq}-{k.name}", "s_subb_u32 s37, s37, 0", "v_lshlrev_b32 v250, 7, v0",
            "v_mov_b32 v249, s37", "v_add_co_u32 v248, vcc, s36, v250", "s_nop 1", "v_addc_co_u32 v249, vcc, 0, v249, vcc")
        k.vmem("global_load_dword v252, v[248:249], off", "cpf", opt=True)
        k.e("v_add_u32 v250, 0x8000, v250", f"v_cmp_gt_u32 vcc, L_code_end-{k.name}, v250", "v_add_co_u32 v248, s[38:39], 0x4000, v248" if False else "s_nop 0")
        k.e("s_and_saveexec_b64 s[38:39], vcc", "v_mov_b32 v249, s37", "v_add_co_u32 v248, vcc, s36, v250", "s_nop 1", "v_addc_co_u32 v249, vcc, 0, v249, vcc")
        k.vmem("global_load_dword v253, v[248:249], off", "cpf", opt=True)
        k.e("s_mov_b64 exec, s[38:39]")
        k.label(Lp)
    k.e("v_lshrrev_b32 v10, 6, v0", "s_nop 1", "v_readfirstlane_b32 s24, v10")
    k.e("s_cmp_ge_u32 s2, 256", "s_cbranch_scc1 L_f1_g")
    fx1 = srd(k, 12, 8, SZ_WQKV)
    k.e("s_waitcnt lgkmcnt(0)"); k.e(*(fx + fx1))
    epoch_make(k)
    if prio_e1 is not None: k.e(f"s_setprio {prio_e1}")
    k.e("s_and_b32 s3, s2, 7", "s_lshr_b32 s4, s2, 3", "s_and_b32 s5, s3, 1", "s_lshl_b32 s26, s5, 2", "s_and_b32 s5, s4, 3", "s_add_u32 s26, s26, s5",
        "s_lshr_b32 s25, s3, 1", "s_lshl_b32 s25, s25, 3", "s_lshr_b32 s5, s4, 2", "s_add_u32 s25, s25, s5")
    k.e("s_and_b32 s53, s26, 3", "s_lshl_b32 s53, s53, 1", "s_add_u32 s53, s53, s25", "s_and_b32 s53, s53, 7")
    if map1:
        k.e("s_and_b32 s26, s4, 7", "s_lshl_b32 s25, s3, 2", "s_lshr_b32 s5, s4, 3", "s_add_u32 s25, s25, s5",
            "s_lshl_b32 s53, s5, 1", "s_add_u32 s53, s53, s26", "s_and_b32 s53, s53, 7")
    k.e("s_lshl_b32 s44, s3, 2", "s_and_b32 s5, s4, 3", "s_add_u32 s44, s44, s5", "s_lshr_b32 s45, s4, 2")
    k.stamp(0)
    if aexit:
        for i in range(1, 9): k.stamp(i)
        k.stamp_out(9, 0, sh=7); k.wait_vm_all(); k.e("s_waitcnt vmcnt(0)", "s_endpgm")
    def o_fill():
        k.e("v_mov_b32 v204, -1", "v_mov_b32 v205, -1", "v_mov_b32 v206, -1", "v_mov_b32 v207, -1", "v_lshlrev_b32 v203, 4, v1",
            "s_lshl_b32 s46, s45, 3", "s_lshl_b32 s47, s24, 1", "s_add_u32 s46, s46, s47", "s_lshl_b32 s46, s46, 5", "s_add_u32 s46, s46, s44",
            "s_lshl_b32 s46, s46, 10", f"s_add_u32 s46, s46, 0x{WS_OF:x}")
        k.vmem("buffer_store_dwordx4 v[204:207], v203, s[20:23], s46 offen sc1", "st")
        k.e("s_add_u32 s46, s46, 32768")
        k.vmem("buffer_store_dwordx4 v[204:207], v203, s[20:23], s46 offen sc1", "st")
    def go_store():
        L = w0_begin(k)
        k.e("s_lshl_b32 s46, s2, 7", f"s_add_u32 s46, s46, 0x{FLG_GO:x}", "v_mov_b32 v208, s46", "v_mov_b32 v209, 1", "s_mov_b64 exec, 1")
        k.vmem("buffer_store_dword v209, v208, s[20:23], 0 offen sc1", "go", opt=True)
        k.e("s_mov_b64 exec, -1")
        k.label(L)
    if mode1 == "x":
        e1x_body(k, exit_loop=(aexit2 in (1, 3)), noex=(aexit2 == 3), wx=wx, bal=bal, rot=rot, ux=ux1, pre_store=o_fill, dup=dup, notag=notag, touch=touch1, fine=fine1)
    else:
        ph = {0: lambda: k.stamp(9), 1: lambda: k.stamp(10), 4: lambda: k.stamp(11), 10: lambda: k.stamp(12)} if fine1 else None
        hk = {11: [lambda: epoch_issue_all(k, 200)]}
        if isinstance(ugo, int): hk.setdefault(ugo, []).append(go_store)
        e1s_body(k, sc1="sc1", rot=rot, mst={"s": 0, "m": 1, "n": 2}[mode1], rper=rp1, dper=dp1, pre_hooks=ph, hooks=hk, pre_store=lambda: (epoch_check_all(k, 200), o_fill()))
    k.stamp(3)
    if ugo == "pub0": go_store()
    k.e("s_lshl_b32 s48, s26, 5", "s_add_u32 s48, s48, s25", "s_lshl_b32 s48, s48, 3", f"s_add_u32 s48, s48, 0x{FLG_QKV8:x}")
    publish(k, 48, vt=19)
    k.stamp(4)
    if aexit2 == 2:
        for i in range(5, 9): k.stamp(i)
        k.stamp_out(9, 0, sh=7); k.e("s_waitcnt vmcnt(0)", "s_endpgm")
    if ugo == "pub": go_store()
    k.e("s_mov_b32 s25, s44", "s_mov_b32 s26, s45")
    if prio_e2 is not None: k.e(f"s_setprio {prio_e2}")
    def qkv_wait():
        k.e("v_and_b32 v20, 31, v1", "v_lshlrev_b32 v20, 3, v20", "s_lshr_b32 s36, s25, 2", "s_lshl_b32 s36, s36, 8", f"s_add_u32 s36, s36, 0x{FLG_QKV8:x}",
            "v_add_u32 v20, s36, v20")
        L = w0_begin(k)
        Ll = k.newlabel("qw")
        if qnopoll:
            for _ in range(qnopoll): k.e("s_sleep 16")
            k.e(f"s_branch {L}")
        k.e(f"s_mov_b32 s{SCNT}, 0")
        if qpipe:
            ld = lambda i: f"buffer_load_dwordx2 v[{28+2*i}:{29+2*i}], v20, s[20:23], 0 offen sc1"
            for i in range(qpipe - 1): k.e(ld(i), f"s_sleep {qgap}")
            k.label(Ll)
            for i in range(qpipe):
                k.e(ld((i + qpipe - 1) % qpipe), f"s_waitcnt vmcnt({qpipe - 1})", f"v_cmp_eq_u64 vcc, s[{SEP}:{SEP+1}], v[{28+2*i}:{29+2*i}]",
                    "s_nop 3", "s_cmp_eq_u64 vcc, -1", f"s_cbranch_scc1 {L}")
            k.e(f"s_add_u32 s{SCNT}, s{SCNT}, 1", f"s_cmp_lt_u32 s{SCNT}, 0x{SPIN_MAX:x}", f"s_cbranch_scc1 {Ll}")
        elif qback:
            t1, s1, t2, s2, s3 = qback
            La = k.newlabel("qa"); Lb = k.newlabel("qb"); Lc2 = k.newlabel("qc")
            k.label(Ll)
            k.e("buffer_load_dwordx2 v[22:23], v20, s[20:23], 0 offen sc1", f"s_add_u32 s{SCNT}, s{SCNT}, 1", "s_waitcnt vmcnt(0)",
                f"v_cmp_eq_u64 vcc, s[{SEP}:{SEP+1}], v[22:23]", "s_nop 3", "s_cmp_eq_u64 vcc, -1", f"s_cbranch_scc1 {L}",
                "s_bcnt1_i32_b64 s36, vcc", f"s_cmp_lt_u32 s36, {2*t1}", f"s_cbranch_scc1 {La}", f"s_cmp_lt_u32 s36, {2*t2}", f"s_cbranch_scc1 {Lb}",
                f"s_sleep {s3}", f"s_branch {Lc2}")
            k.label(La); k.e(f"s_sleep {s1}", f"s_branch {Lc2}")
            k.label(Lb); k.e(f"s_sleep {s2}")
            k.label(Lc2)
            k.e(f"s_cmp_lt_u32 s{SCNT}, 0x{SPIN_MAX:x}", f"s_cbranch_scc1 {Ll}")
        else:
            k.label(Ll)
            k.e("buffer_load_dwordx2 v[22:23], v20, s[20:23], 0 offen sc1", f"s_add_u32 s{SCNT}, s{SCNT}, 1", "s_waitcnt vmcnt(0)",
                f"v_cmp_eq_u64 vcc, s[{SEP}:{SEP+1}], v[22:23]", "s_nop 3", "s_cmp_eq_u64 vcc, -1", f"s_cbranch_scc1 {L}",
                f"s_sleep {qsleep}", f"s_cmp_lt_u32 s{SCNT}, 0x{SPIN_MAX:x}", f"s_cbranch_scc1 {Ll}")
        k.label(L)
        k.wait_lg_all()
        k.e("s_barrier")
        if ugo == "e2": go_store()
        k.stamp(5 - k.stamp_off)
    k.stamp_off = 5
    e2_body(k, sc1="sc1", st_sc1="sc1", oflag="ep", pre_hook=qkv_wait, force_fb=force_fb, prehint=pre)
    k.stamp_off = 0
    k.wait_vm_all()
    k.stamp(8); k.stamp_out(13 if fine1 else 9, 0, sh=7); k.wait_vm_all()
    k.e("s_endpgm")
    fb = k.fb_code
    k.label("L_f1_g")
    k.vm = []; k.lg = []
    SD, SO, SX, SOUT = 84, 88, 8, 4
    fx3 = srd(k, 12, 32, SZ_WG) + srd(k, 16, 40, SZ_WG) + srd(k, SD, 48, SZ_WD) + srd(k, SO, 16, SZ_WO) + srd(k, SOUT, 56, SZ_X)
    k.e(f"s_load_dwordx2 s[{34 if hoist else 28}:{35 if hoist else 29}], s[0:1], 8")
    k.e("s_sub_u32 s3, s2, 256")
    k.e("s_waitcnt lgkmcnt(0)"); k.e(*(fx + fx3))
    if prio_g is not None: k.e(f"s_setprio {prio_g}")
    def go_clear(idx=3):
        if ugo is None: return
        L = w0_begin(k)
        k.e(f"s_lshl_b32 s36, s{idx}, 7", f"s_add_u32 s36, s36, 0x{FLG_GO:x}", "v_mov_b32 v62, s36", "v_mov_b32 v63, 0", "s_mov_b64 exec, 1",
            "buffer_store_dword v63, v62, s[20:23], 0 offen sc1", "s_mov_b64 exec, -1")
        k.label(L)
    def go_wait():
        if ugo is None: return
        L = w0_begin(k)
        Ll = k.newlabel("go")
        k.e("s_waitcnt vmcnt(0)", "s_mov_b32 s38, 0", "s_mov_b64 exec, 1")
        k.label(Ll)
        k.e("buffer_load_dword v63, v62, s[20:23], 0 offen sc1", "s_add_u32 s38, s38, 1", "s_waitcnt vmcnt(0)", "v_readfirstlane_b32 s39, v63", "s_nop 3",
            "s_cmp_eq_u32 s39, 1", f"s_cbranch_scc1 {Ll}x", f"s_sleep {gosleep}", f"s_cmp_lt_u32 s38, {gomax}", f"s_cbranch_scc1 {Ll}")
        k.label(Ll + "x")
        k.e("s_mov_b64 exec, -1")
        k.label(L)
        k.e("s_barrier")
    k.stamp(0)
    go_clear()
    if gexit == 1: k.e("s_endpgm")
    def role3():
        k.e("s_and_b32 s92, s3, 7", "s_lshr_b32 s93, s3, 3")
        k.e("s_and_b32 s26, s92, 1", "s_mul_i32 s26, s26, 7", "s_lshr_b32 s94, s93, 2", "s_add_u32 s26, s26, s94",
            "s_lshr_b32 s25, s92, 1", "s_lshl_b32 s25, s25, 2", "s_and_b32 s95, s93, 3", "s_add_u32 s25, s25, s95")
        k.e("s_lshl_b32 s53, s95, 1", "s_add_u32 s53, s53, s94", "s_and_b32 s53, s53, 7")
    if hoist:
        role3()
        stats_role3(k, SWQ=34, mid=lambda: e3x_body(k, part="pre", bal=bal, rot=rot))
    elif not nostats: (stats_role3(k) if bal else stats_role2(k, xal=xal))
    if gexit == 2: k.e("s_waitcnt vmcnt(0)", "s_endpgm")
    e4 = E4F(k, SD, SO, 20, SX, SOUT, hsleep=hsleep, osleep=osleep, ep=True)
    c = e4
    k.e("s_and_b32 s92, s3, 7", "s_lshr_b32 s93, s3, 3",
        f"s_and_b32 s{c.SRB}, s93, 3", "s_lshl_b32 s94, s92, 2", f"s_add_u32 s{c.SRB}, s{c.SRB}, s94", f"s_lshr_b32 s{c.SCB}, s93, 2")
    k.e("s_cmp_ge_u32 s2, 480", "s_cbranch_scc1 L_f1_pf")
    k.e("s_and_b32 s26, s92, 1", "s_mul_i32 s26, s26, 7", "s_lshr_b32 s94, s93, 2", "s_add_u32 s26, s26, s94",
        "s_lshr_b32 s25, s92, 1", "s_lshl_b32 s25, s25, 2", "s_and_b32 s95, s93, 3", "s_add_u32 s25, s25, s95")
    k.e("s_lshl_b32 s53, s95, 1", "s_add_u32 s53, s53, s94", "s_and_b32 s53, s53, 7")
    def touchW(vd=60):
        a = 61
        k.e(f"s_and_b32 s{c.SC}, s{c.SRB}, 3", f"s_mul_i32 s{c.SK}, s{c.SC}, {112*1024}", f"s_add_u32 s{c.SK}, s{c.SK}, s{c.SDO}",
            f"s_lshl_b32 s{c.ST}, s{c.SCB}, 7", f"v_lshlrev_b32 v{a}, 10, v1", f"v_add_u32 v{a}, s{c.ST}, v{a}")
        k.vmem(f"buffer_load_dword v{vd}, v{a}, s[{c.SD}:{c.SD+3}], s{c.SK} offen", "touch")
        k.e(f"s_add_u32 s{c.SK}, s{c.SK}, 65536", "s_mov_b32 exec_hi, 0xffff")
        k.vmem(f"buffer_load_dword v{vd+2}, v{a}, s[{c.SD}:{c.SD+3}], s{c.SK} offen", "touch")
        k.e(f"s_lshl_b32 s{c.SK}, s{c.SC}, 15", f"s_add_u32 s{c.SK}, s{c.SK}, s{c.SWO}", "s_mov_b32 exec_hi, 0")
        k.vmem(f"buffer_load_dword v{vd+3}, v{a}, s[{c.SO}:{c.SO+3}], s{c.SK} offen", "touch")
        k.e("s_mov_b32 exec_hi, -1")
    def post_loop():
        k.e("s_barrier")
        e4.setup()
        for s in range(c.DEPTH): e4.issueW(s)
        if tw: touchW()
    def touch_w3():
        if touch3 in (0, 3): go_wait()
        if not touch3: return
        k.e("v_lshrrev_b32 v66, 1, v1", "v_mul_u32_u24 v66, 3584, v66", "v_and_b32 v67, 1, v1", "v_lshl_add_u32 v66, v67, 7, v66",
            "s_lshl_b32 s36, s95, 7", "s_lshl_b32 s37, s24, 5", "s_add_u32 s36, s36, s37", "s_mul_i32 s36, s36, 3584", "s_lshl_b32 s37, s26, 8", "s_add_u32 s36, s36, s37")
        k.vmem("buffer_load_dword v74, v66, s[12:15], s36 offen", "touch")
        k.vmem("buffer_load_dword v75, v66, s[16:19], s36 offen", "touch")
        if touch3 == 2: k.wait_vm("touch")
        if touch3 in (1, 2): go_wait()
    if prio_e3 is not None: k.e(f"s_setprio {prio_e3}")
    if mode3 == "x":
        e3x_body(k, part=("main" if hoist else None), bal=bal, fine=fine3, epi_prio=epi_prio, post_loop=post_loop, rot=rot, ux=ux3)
    else:
        e3s_body(k, st_sc1="sc1", epi_prio=epi_prio, post_loop=post_loop, rot=rot, outb=64, pre_dma=touch_w3, mst={"s": 0, "m": 1, "n": 2}[mode3], rper=rp3, dper=dp3,
                 hooks={11: [lambda: epoch_issue_all(k, 124)], 13: [lambda: epoch_check_all(k, 124)]})
    k.e("s_lshl_b32 s36, s25, 1", "s_add_u32 s36, s36, s27", "s_lshl_b32 s36, s36, 8", "s_lshl_b32 s37, s26, 1", "s_add_u32 s37, s37, s28",
        "s_lshl_b32 s37, s37, 3", "s_add_u32 s36, s36, s37", f"s_add_u32 s36, s36, 0x{FLG_H8:x}", "v_mov_b32 v56, s36",
        f"v_mov_b32 v58, s{SEP}", f"v_mov_b32 v59, s{SEP+1}")
    k.stamp(3)
    k.wait_vm_all()
    if gexit == 3:
        ns = getattr(k, "nostamp", False); k.stamp_out(8, 0x40000, sh=7); k.e("s_waitcnt vmcnt(0)", "s_endpgm")
    k.stamp(4)
    k.e("s_mov_b64 exec, 1")
    k.vmem("buffer_store_dwordx2 v[58:59], v56, s[20:23], 0 offen sc1", "flag")
    k.e("s_mov_b64 exec, -1")
    if post_prio is not None: k.e(f"s_setprio {post_prio}")
    k.e("s_branch L_f1_e4")
    k.label("L_f1_pf")
    if gexit == 3: k.e("s_endpgm")
    if hoist: k.e("s_waitcnt vmcnt(0)", "s_barrier")
    k.vm = []; k.lg = []
    k.e("v_and_b32 v1, 63, v0")
    if gp_touch:
        k.e("s_sub_u32 s99, s3, 224")
        go_wait()
        k.e("s_lshl_b32 s36, s99, 8", "v_add_u32 v60, s36, v0", "v_lshlrev_b32 v60, 7, v60", "s_mov_b32 s36, 0x100000")
        k.vmem(f"buffer_load_dword v61, v60, s[{SD}:{SD+3}], 0 offen", "touch")
        k.vmem(f"buffer_load_dword v62, v60, s[{SD}:{SD+3}], s36 offen", "touch")
        k.vmem(f"buffer_load_dword v63, v60, s[{SO}:{SO+3}], 0 offen", "touch")
    epoch_issue_all(k, 112)
    k.stamp(1); k.stamp(2); k.stamp(3); k.stamp(4)
    e4.setup()
    epoch_check_all(k, 112)
    for s in range(c.DEPTH): e4.issueW(s)
    if post_prio is not None: k.e(f"s_setprio {post_prio}")
    k.label("L_f1_e4")
    k.vm = [(("W", s), False) for s in range(c.DEPTH) for _ in range(2)] + [("flag", True)]
    k.lg = []
    e4.e4_prio = e4_prio; e4.post_prio = post_prio; e4.pre = pre; e4.rsleep = rsleep; e4.lim1 = lim1; e4.omod = omod; e4.hback = hback; e4.pback = pback
    e4.body(st=(5, 6))
    if endwait: k.wait_vm_all()
    k.stamp(7); k.stamp_out(8, 0x40000, sh=7); k.wait_vm_all()
    k.label(f"L_end_{k.name}")
    k.e("s_endpgm")
    fb()
    k.emit_tails()
    k.label("L_code_end")
    k.e("s_endpgm")
    return k

def build(fn, pk=0, **kw):
    global PK
    PK = pk
    import eng
    eng.EPK = pk & 8; eng.EPK2 = pk & 16
    k = kF1(**kw)
    txt = build_file([(k.name, (512,1,1), (256,1,1), 81920)], [k])
    open(fn, "w").write(txt)
    e = haz.check_text(txt)
    for x in e: print(x)
    print(fn, len(e), "hazards;", len(txt), "bytes")

if __name__ == "__main__":
    build("f1.s")
    KV.STAMP = True
    build("f1st.s")
```

```python
from f1 import *
import f1
P = dict(pre=3, osleep=1, omod="sc1", qback=(16, 24, 28, 8, 1), bal=True, prio_e1=3, prio_e2=0)
build("m3.s", **P)
build("n1.s", hback=(0x7f, 1, 32, 4, 8), **P)
build("n2.s", hback=(0x7f, 1, 32, 4, 8), tsleep=8, **P)
build("n3.s", tsleep=8, **P)
build("n4.s", hback=(0x7f, 1, 32, 4, 8), pback=(0xff, 1, 16, 4, 4), **P)
Q = dict(P); Q["qback"] = (20, 32, 29, 8, 1)
build("n5.s", hback=(0x7f, 1, 32, 4, 8), **Q)
```

```python
from f1 import *
import f1
P = dict(pre=3, osleep=1, omod="sc1", bal=True, prio_e1=3, prio_e2=0)
H = (0x7f, 1, 32, 4, 8)
build("p1.s", qback=(20, 32, 29, 8, 1), hback=H, tsleep=8, **P)
build("p2.s", qback=(24, 40, 30, 8, 1), hback=H, tsleep=8, **P)
build("p3.s", qback=(20, 32, 29, 8, 1), hback=H, tsleep=16, **P)
build("p4.s", qback=(20, 32, 29, 8, 1), hback=(0x7f, 1, 64, 5, 16), tsleep=8, **P)
build("p5.s", qback=(28, 32, 31, 6, 1), hback=H, tsleep=8, **P)
build("p6.s", qback=(20, 32, 29, 12, 2), hback=(0x7f, 3, 32, 6, 12), tsleep=8, **P)
```

```python
from agen import *

WS_TOK = 0x000000
WS_COL = 0x010000
WS_QF  = 0x100000
WS_KF  = 0x300000
WS_VF  = 0x500000
WS_HF  = 0x700000
WS_OF  = 0xE00000
WS_SIZE = 0x1100000
WS_DBG = 0x1000000
LOG2E = 1.4426950408889634

import struct
def f2u(x): return struct.unpack("<I", struct.pack("<f", x))[0]

EPK = 0
EPK2 = 0
class KV(Kernel):
    def __init__(self, *a, **kw):
        super().__init__(*a, **kw)
        self.vm = []
        self.lg = []
        self.tails = []
    def emit_tails(self):
        for t in self.tails: t()
        self.tails = []
    def vmem(self, txt, tag=None, opt=False):
        self.e(txt); self.vm.append((tag, opt))
    def wait_vm(self, *tags, cond=False):
        idx = [i for i, (t, o) in enumerate(self.vm) if t in tags]
        if not idx: return
        last = max(idx)
        n = sum(1 for (t, o) in self.vm[last + 1:] if not o)
        assert n <= 63
        self.e(f"s_waitcnt vmcnt({n})")
        if cond:
            self.vm = [(t, o) for i, (t, o) in enumerate(self.vm) if not (o and i <= last)]
        else:
            self.vm = self.vm[last + 1:]
    def wait_vm_all(self):
        self.e("s_waitcnt vmcnt(0)"); self.vm = []
    def ds(self, txt, tag=None):
        self.e(txt); self.lg.append(tag)
    def wait_lg(self, *tags):
        idx = [i for i, t in enumerate(self.lg) if t in tags]
        if not idx: return
        last = max(idx)
        n = min(15, len(self.lg) - 1 - last)
        self.e(f"s_waitcnt lgkmcnt({n})")
        self.lg = self.lg[len(self.lg) - n:] if n else []
    STAMP = False
    def stamp(self, idx):
        if not KV.STAMP or getattr(self, "nostamp", False): return
        idx = idx + getattr(self, "stamp_off", 0)
        self.e("s_memtime s[60:61]", "s_memrealtime s[62:63]", "s_waitcnt lgkmcnt(0)",
               f"s_mov_b32 s{64+2*idx}, s60", f"s_mov_b32 s{65+2*idx}, s62")
        self.lg = []
    def stamp_out(self, n, base, SWS=20, sh=6):
        if not KV.STAMP: return
        self.e("v_lshrrev_b32 v250, 6, v0", "s_lshl_b32 s60, s2, 2", "v_add_u32 v250, s60, v250", f"v_lshlrev_b32 v250, {sh}, v250",
               f"v_add_u32 v250, 0x{WS_DBG + base:x}, v250", "v_and_b32 v251, 63, v0", "v_cmp_eq_u32 vcc, 0, v251", "s_and_saveexec_b64 s[60:61], vcc")
        for i in range(2*n):
            self.e(f"v_mov_b32 v251, s{64+i}", f"buffer_store_dword v251, v250, s[{SWS}:{SWS+3}], 0 offen offset:{4*i}", "s_nop 1")
        self.e("s_mov_b64 exec, s[60:61]")
    def wait_lg_all(self):
        if self.lg:
            self.e("s_waitcnt lgkmcnt(0)")
        self.lg = []

def srd(k, d, karg_off, nbytes):
    k.e(f"s_load_dwordx2 s[{d}:{d+1}], s[0:1], {karg_off}")
    return [f"s_mov_b32 s{d+2}, 0x{nbytes:x}", f"s_mov_b32 s{d+3}, 0x00020000"]

SZ_X = 2048*512*2; SZ_WQKV = 512*1536*2; SZ_WO = 512*512*2; SZ_WG = 512*1792*2; SZ_WD = 1792*512*2

def allreduce(k, regs, tmps):
    n = len(regs)
    pad = max(0, 2 - (n - 1))
    for mode in ("quad_perm:[1,0,3,2]", "quad_perm:[2,3,0,1]", "row_half_mirror", "row_mirror"):
        for r in regs:
            k.e(f"v_add_f32_dpp v{r}, v{r}, v{r} {mode} row_mask:0xf bank_mask:0xf")
        if pad: k.e(f"s_nop {pad-1}")
    for sw in ("v_permlane16_swap_b32", "v_permlane32_swap_b32"):
        for r, t in zip(regs, tmps): k.e(f"v_mov_b32 v{t}, v{r}")
        k.e("s_nop 1")
        for r, t in zip(regs, tmps): k.e(f"{sw} v{r}, v{t}")
        k.e("s_nop 1")
        for r, t in zip(regs, tmps): k.e(f"v_add_f32 v{r}, v{r}, v{t}")
    k.e("s_nop 1")


SDBG = 56
SEP = 58
SCNT = 54
FLG = 0x40000
FLG_ROW = FLG
FLG_COLQ = FLG + 0x400
FLG_COLG = FLG + 0x800
FLG_QKV = FLG + 0x1000
FLG_H = FLG + 0x2000
FLG_O = FLG + 0x3000
SPIN_MAX = 0x4000
FLG_QKV8 = FLG + 0x1000
FLG_H8 = FLG + 0x2000
FLG_O8 = FLG + 0x4000
FLG_P8 = FLG + 0x6000

def load_dbg(k):
    k.e(f"s_load_dwordx2 s[{SDBG}:{SDBG+1}], s[0:1], 64")

def wave_id(k):
    k.e("v_lshrrev_b32 v10, 6, v0", "s_nop 1", "v_readfirstlane_b32 s24, v10", "s_nop 3")

def epoch_make(k, t=1):
    L = k.newlabel("ep")
    k.e("s_or_b32 s54, s2, s24", "s_cmp_lg_u32 s54, 0", f"s_cbranch_scc1 {L}",
        f"s_memrealtime s[{SEP}:{SEP+1}]", f"v_mov_b32 v{t}, 0", "s_waitcnt lgkmcnt(0)", f"s_or_b32 s{SEP}, s{SEP}, 1",
        f"v_mov_b32 v{t+1}, s{SEP}", f"v_mov_b32 v{t+2}, s{SEP+1}", "s_mov_b64 exec, 1",
        f"global_store_dwordx2 v{t}, v[{t+1}:{t+2}], s[{SDBG}:{SDBG+1}] sc1", "s_mov_b64 exec, -1")
    k.label(L)

def w0_begin(k):
    L = k.newlabel("w0")
    k.e("s_cmp_lg_u32 s24, 0", f"s_cbranch_scc1 {L}")
    return L

def epoch_issue(k, vd):
    k.e(f"v_mov_b32 v{vd+2}, 0")
    L = w0_begin(k)
    k.vmem(f"global_load_dwordx2 v[{vd}:{vd+1}], v{vd+2}, s[{SDBG}:{SDBG+1}] sc1", "ep", opt=True)
    k.label(L)

def epoch_check(k, vd):
    L = w0_begin(k)
    Ls = k.newlabel("eps"); Lc = k.newlabel("epc")
    k.wait_vm("ep", cond=True)
    k.label(Lc + "_r")
    k.e(f"v_readfirstlane_b32 s{SEP}, v{vd}", f"v_readfirstlane_b32 s{SEP+1}, v{vd+1}", "s_nop 3", f"s_cmp_eq_u32 s{SEP}, 0", f"s_cbranch_scc1 {Ls}")
    k.label(Lc)
    k.label(L)
    def tail():
        k.label(Ls)
        k.e(f"s_mov_b32 s{SCNT}, 0")
        k.label(Ls + "_l")
        k.e(f"global_load_dwordx2 v[{vd}:{vd+1}], v{vd+2}, s[{SDBG}:{SDBG+1}] sc1", f"s_add_u32 s{SCNT}, s{SCNT}, 1", "s_waitcnt vmcnt(0)",
            f"v_readfirstlane_b32 s{SEP}, v{vd}", f"v_readfirstlane_b32 s{SEP+1}, v{vd+1}", "s_nop 3", f"s_cmp_lg_u32 s{SEP}, 0", f"s_cbranch_scc1 {Lc}",
            "s_sleep 2", f"s_cmp_lt_u32 s{SCNT}, 0x{SPIN_MAX:x}", f"s_cbranch_scc1 {Ls}_l", f"s_branch {Lc}")
    k.tails.append(tail)

def publish(k, s_off, SWS=20, vt=1):
    k.wait_vm_all(); k.wait_lg_all()
    k.e("s_barrier")
    L = w0_begin(k)
    k.e(f"v_mov_b32 v{vt}, s{s_off}", f"v_mov_b32 v{vt+1}, s{SEP}", f"v_mov_b32 v{vt+2}, s{SEP+1}", "s_mov_b64 exec, 1")
    k.vmem(f"buffer_store_dwordx2 v[{vt+1}:{vt+2}], v{vt}, s[{SWS}:{SWS+3}], 0 offen sc1", "flag", opt=True)
    k.e("s_mov_b64 exec, -1")
    k.label(L)

def poll_issue(k, vd, voff, SWS=20):
    L = w0_begin(k)
    k.vmem(f"buffer_load_dwordx2 v[{vd}:{vd+1}], v{voff}, s[{SWS}:{SWS+3}], 0 offen sc1", "poll", opt=True)
    k.label(L)

def poll_check(k, vd, voff, SWS=20):
    L = w0_begin(k)
    Ls = k.newlabel("spin"); Lc = k.newlabel("cont")
    k.wait_vm("poll", cond=True)
    k.e(f"v_cmp_eq_u64 vcc, s[{SEP}:{SEP+1}], v[{vd}:{vd+1}]", "s_nop 3", "s_cmp_eq_u64 vcc, -1", f"s_cbranch_scc0 {Ls}")
    k.label(Lc)
    k.label(L)
    def tail():
        k.label(Ls)
        k.e(f"s_mov_b32 s{SCNT}, 0")
        k.label(Ls + "_l")
        k.e("s_sleep 2", f"buffer_load_dwordx2 v[{vd}:{vd+1}], v{voff}, s[{SWS}:{SWS+3}], 0 offen sc1", f"s_add_u32 s{SCNT}, s{SCNT}, 1", "s_waitcnt vmcnt(0)",
            f"v_cmp_eq_u64 vcc, s[{SEP}:{SEP+1}], v[{vd}:{vd+1}]", "s_nop 3", "s_cmp_eq_u64 vcc, -1", f"s_cbranch_scc1 {Lc}",
            f"s_cmp_lt_u32 s{SCNT}, 0x{SPIN_MAX:x}", f"s_cbranch_scc1 {Ls}_l", f"s_branch {Lc}")
    k.tails.append(tail)

def row_job(k, s_job, srd_x, srd_ws, sc1="", pre_store=None):
    k.e("v_and_b32 v1, 63, v0", "v_lshrrev_b32 v2, 6, v0", f"s_lshl_b32 s40, s{s_job}, 14",
        "v_lshlrev_b32 v3, 12, v2", "v_lshl_add_u32 v3, v1, 4, v3", "v_add_u32 v3, s40, v3")
    for j in range(4):
        k.vmem(f"buffer_load_dwordx4 v[{4+4*j}:{7+4*j}], v3, s[{srd_x}:{srd_x+3}], 0 offen offset:{1024*j}", "rj")
    k.e("v_bfe_u32 v72, v1, 1, 2", "v_cmp_eq_u32 s[42:43], 1, v72", "v_cmp_eq_u32 s[44:45], 2, v72", "v_cmp_eq_u32 s[46:47], 3, v72")
    k.wait_vm("rj")
    if pre_store: pre_store()
    for j in range(4):
        for i in range(4):
            k.e(f"v_lshlrev_b32 v{32+8*j+2*i}, 16, v{4+4*j+i}", f"v_and_b32 v{33+8*j+2*i}, 0xffff0000, v{4+4*j+i}")
    for j in range(4):
        b = 32 + 8*j
        k.e(f"v_add_f32 v{20+j}, v{b}, v{b+1}")
    for i in range(2, 8):
        for j in range(4):
            k.e(f"v_add_f32 v{20+j}, v{20+j}, v{32+8*j+i}")
    allreduce(k, [20, 21, 22, 23], [24, 25, 26, 27])
    for j in range(4): k.e(f"v_mul_f32 v{20+j}, 0x3b000000, v{20+j}")
    for i in range(8):
        for j in range(4): k.e(f"v_sub_f32 v{32+8*j+i}, v{32+8*j+i}, v{20+j}")
    for j in range(4): k.e(f"v_mul_f32 v{28+j}, v{32+8*j}, v{32+8*j}")
    for i in range(1, 8):
        for j in range(4): k.e(f"v_fmac_f32 v{28+j}, v{32+8*j+i}, v{32+8*j+i}")
    allreduce(k, [28, 29, 30, 31], [24, 25, 26, 27])
    k.e("v_cndmask_b32 v64, v20, v21, s[42:43]", "v_cndmask_b32 v65, v28, v29, s[42:43]",
        "v_cndmask_b32 v64, v64, v22, s[44:45]", "v_cndmask_b32 v65, v65, v30, s[44:45]",
        "v_cndmask_b32 v64, v64, v23, s[46:47]", "v_cndmask_b32 v65, v65, v31, s[46:47]")
    k.e("v_mov_b32 v66, 0x3727c5ac", "v_fmac_f32 v66, 0x3b000000, v65",
        "v_rsq_f32 v67, v66", "v_sub_f32 v64, 0, v64",
        "v_mul_f32 v68, v66, v67",
        "v_cvt_pk_bf16_f32 v69, v64, v64", "s_nop 0", "v_and_b32 v69, 0xffff0000, v69", "v_sub_f32 v70, v64, v69",
        "v_cvt_pk_bf16_f32 v69, v70, v70", "s_nop 0", "v_and_b32 v69, 0xffff0000, v69", "v_sub_f32 v71, v70, v69",
        "v_cvt_pk_bf16_f32 v4, v64, v70", "v_cvt_pk_bf16_f32 v6, v71, v64",
        "v_and_b32 v72, 1, v1", "v_cmp_eq_u32 vcc, 1, v72", "v_mov_b32 v5, v4", "v_mov_b32 v7, 0",
        "v_cndmask_b32 v4, v4, v67, vcc", "v_cndmask_b32 v5, v5, v68, vcc", "v_cndmask_b32 v6, v6, v7, vcc")
    k.e(f"s_lshl_b32 s40, s{s_job}, 9", "v_lshlrev_b32 v3, 7, v2", "v_lshl_add_u32 v3, v1, 4, v3", "v_add_u32 v3, s40, v3",
        "v_cmp_gt_u32 vcc, 8, v1", "s_and_saveexec_b64 s[42:43], vcc")
    k.vmem(f"buffer_store_dwordx4 v[4:7], v3, s[{srd_ws}:{srd_ws+3}], 0 offen offset:{WS_TOK} {sc1}", "st")
    k.e("s_mov_b64 exec, s[42:43]")

def col_job(k, s_job, srd_w, s_ld, s_col0b, srd_ws, ldsbase=0, sc1="", pre_store=None):
    k.e("v_and_b32 v1, 63, v0", "v_lshrrev_b32 v2, 6, v0", "v_lshrrev_b32 v3, 2, v1", "v_lshl_add_u32 v3, v2, 7, v3",
        f"v_mul_lo_u32 v3, v3, s{s_ld}", "v_and_b32 v4, 3, v1", "v_lshl_add_u32 v3, v4, 4, v3", f"v_add_u32 v3, s{s_col0b}, v3",
        f"s_lshl_b32 s41, s{s_ld}, 4", "s_mov_b32 s40, 0")
    for i in range(8):
        k.vmem(f"buffer_load_dwordx4 v[{8+4*i}:{11+4*i}], v3, s[{srd_w}:{srd_w+3}], s40 offen", ("cj", i))
        if i < 7: k.e("s_add_u32 s40, s40, s41")
    k.e("s_mov_b32 s42, 0x00003f80", "s_mov_b32 s43, 0x3f800000")
    for i in range(8): k.e(f"v_mov_b32 v{40+i}, 0")
    for i in range(8):
        k.wait_vm(("cj", i))
        for d in range(4):
            k.e(f"v_dot2_f32_bf16 v{40+2*d}, v{8+4*i+d}, s42, v{40+2*d}", f"v_dot2_f32_bf16 v{41+2*d}, v{8+4*i+d}, s43, v{41+2*d}")
    if pre_store: pre_store()
    k.e("s_nop 2")
    for mode in ("row_ror:4", "row_ror:8"):
        for i in range(8): k.e(f"v_add_f32_dpp v{40+i}, v{40+i}, v{40+i} {mode} row_mask:0xf bank_mask:0xf")
    k.e("v_lshrrev_b32 v5, 4, v1", "v_lshl_add_u32 v5, v2, 2, v5", "v_lshlrev_b32 v5, 7, v5", "v_lshl_add_u32 v5, v4, 5, v5",
        "v_and_b32 v6, 15, v1", "v_cmp_gt_u32 vcc, 4, v6", "s_and_saveexec_b64 s[44:45], vcc")
    k.ds(f"ds_write_b128 v5, v[40:43] offset:{ldsbase}")
    k.ds(f"ds_write_b128 v5, v[44:47] offset:{ldsbase+16}")
    k.e("s_mov_b64 exec, s[44:45]")
    k.wait_lg_all()
    k.e("s_barrier")
    k.e("v_cmp_gt_u32 vcc, 32, v0", "s_and_saveexec_b64 s[44:45], vcc", "v_lshlrev_b32 v5, 2, v0")
    for p in range(16): k.ds(f"ds_read_b32 v{8+p}, v5 offset:{ldsbase+128*p}")
    k.wait_lg_all()
    for st in (8, 4, 2, 1):
        for p in range(st): k.e(f"v_add_f32 v{8+p}, v{8+p}, v{8+p+st}")
    k.e("s_nop 0",
        "v_cvt_pk_bf16_f32 v12, v8, v8", "s_nop 0", "v_and_b32 v9, 0xffff0000, v12", "v_sub_f32 v9, v8, v9",
        "v_cvt_pk_bf16_f32 v13, v9, v9", "s_nop 0", "v_and_b32 v10, 0xffff0000, v13", "v_sub_f32 v10, v9, v10",
        "v_cvt_pk_bf16_f32 v14, v8, v10", "v_mov_b32 v15, 0",
        f"s_lshl_b32 s40, s{s_job}, 9", "v_lshlrev_b32 v5, 4, v0", "v_add_u32 v5, s40, v5", f"s_mov_b32 s40, {WS_COL}")
    k.vmem(f"buffer_store_dwordx4 v[12:15], v5, s[{srd_ws}:{srd_ws+3}], s40 offen {sc1}", "st")
    k.e("s_mov_b64 exec, s[44:45]")

def k0_kernel():
    k = KV("k0_stats_kernel", nvgpr=96)
    k.e("s_cmp_ge_u32 s2, 288", f"s_cbranch_scc1 L_end_{k.name}")
    fx = srd(k, 8, 0, SZ_X) + srd(k, 20, 72, WS_SIZE)
    k.e("s_load_dwordx2 s[28:29], s[0:1], 8", "s_load_dwordx2 s[30:31], s[0:1], 32", "s_load_dwordx2 s[32:33], s[0:1], 40")
    k.e("s_waitcnt lgkmcnt(0)"); k.e(*fx)
    k.e("s_cmp_ge_u32 s2, 128", "s_cbranch_scc1 L_k0_col")
    row_job(k, 2, 8, 20)
    k.e("s_branch L_k0_done")
    k.label("L_k0_col")
    k.e("s_sub_u32 s3, s2, 128")
    k.e("s_mov_b32 s12, s28", "s_mov_b32 s13, s29", f"s_mov_b32 s14, {SZ_WQKV}", "s_mov_b32 s15, 0x00020000",
        "s_movk_i32 s16, 3072", "s_lshl_b32 s17, s3, 6",
        "s_cmp_lt_u32 s3, 48", "s_cbranch_scc1 L_k0_go",
        "s_mov_b32 s12, s30", "s_mov_b32 s13, s31", f"s_mov_b32 s14, {SZ_WG}", "s_movk_i32 s16, 3584",
        "s_sub_u32 s17, s3, 48", "s_lshl_b32 s17, s17, 6",
        "s_cmp_lt_u32 s3, 104", "s_cbranch_scc1 L_k0_go",
        "s_mov_b32 s12, s32", "s_mov_b32 s13, s33", "s_sub_u32 s17, s3, 104", "s_lshl_b32 s17, s17, 6")
    k.label("L_k0_go")
    col_job(k, 3, 12, 16, 17, 20)
    k.label("L_k0_done")
    k.wait_vm_all()
    k.label(f"L_end_{k.name}")
    k.e("s_endpgm")
    return k

DBG = dict(nodma=False, nobar=False, noreads=False, fill=None, early=False)
def gemm_loop(k, nunits, mfmas, reads, dmas, vm_need, fill=6, dma_first_gap=0, hooks=None, pre_hooks=None, dbg=False):
    def tagof(g, name): return ("fr", g, name)
    for u in range(nunits):
        g0, g1 = 2*u, 2*u + 1
        k.wait_vm(*vm_need(u))
        k.wait_lg_all()
        if not (dbg and DBG["nobar"]): k.e("s_barrier")
        if pre_hooks and u in pre_hooks: pre_hooks[u]()
        R0 = list(reads(g0, 0)); R1 = list(reads(g1, 1))
        if dbg and DBG["noreads"] and u > 0: R0 = []; R1 = []
        if dbg and DBG["fill"]: fill = DBG["fill"]
        prev = list(mfmas(g0 - 1, 1)) if u > 0 else []
        cur = list(mfmas(g0, 0))
        D = list(dmas(u))
        if dbg and DBG["nodma"]: D = []
        rel = {}
        for i, (t, used) in enumerate(prev):
            for nm in used: rel[nm] = i
        def emit_reads(i, budget):
            n = 0
            while n < budget and R0:
                t, nm = R0.pop(0); k.ds(t, tagof(g0, nm)); n += 1
            j = 0
            while n < budget and j < len(R1):
                t, nm = R1[j]
                if rel.get(nm, -1) <= i:
                    k.ds(t, tagof(g1, nm)); R1.pop(j); n += 1
                else: j += 1
            return n
        if not prev:
            emit_reads(-1, 1000)
        early = dbg and DBG["early"]
        def emit_dma():
            for (txt, tag, isvm) in D.pop(0):
                if isvm: k.vmem(txt, tag)
                else: k.e(txt)
        for i, (t, used) in enumerate(prev):
            k.e(t)
            if early:
                emit_reads(i, 4)
                if D: emit_dma()
            else:
                emit_reads(i, fill)
        emit_reads(10**6, 1000)
        ngap = len(cur)
        per = -(-len(D) // ngap) if D else 0
        for j, (t, used) in enumerate(cur):
            k.wait_lg(*[tagof(g0, nm) for nm in used])
            k.e(t)
            for _ in range(per):
                if D:
                    for (txt, tag, isvm) in D.pop(0):
                        if isvm: k.vmem(txt, tag)
                        else: k.e(txt)
        assert not D
        if hooks and u in hooks:
            for h in hooks[u]: h()
    k.wait_lg_all()
    for (t, used) in mfmas(2*nunits - 1, 1): k.e(t)

def dma(srd_, voff, s_m0base, m0imm, s_tmp, soff, tag, imm=0):
    out = [(f"s_add_u32 m0, s{s_m0base}, {m0imm - imm}" , None, False)]
    out.append((f"s_mov_b32 s{s_tmp}, 0x{soff:x}", None, False))
    o = f" offset:{imm}" if imm else ""
    out.append((f"buffer_load_dwordx4 v{voff}, s[{srd_}:{srd_+3}], s{s_tmp} offen{o} lds", tag, True))
    return out

def dmab(srd_, voff, s_m0base, m0imm, s_tmp, s_base, soff, tag, imm=0, post=()):
    out = [(f"s_add_u32 m0, s{s_m0base}, {m0imm - imm}" , None, False)]
    out.append((f"s_add_u32 s{s_tmp}, s{s_base}, 0x{soff:x}", None, False))
    o = f" offset:{imm}" if imm else ""
    out.append((f"buffer_load_dwordx4 v{voff}, s[{srd_}:{srd_+3}], s{s_tmp} offen{o} lds", tag, True))
    for t in post: out.append((t, None, False))
    return out

def rot_adv(s, step, lim, tmp):
    return [f"s_add_u32 s{s}, s{s}, {step}", f"s_cmp_ge_u32 s{s}, {lim}", f"s_cselect_b32 s{tmp}, {lim}, 0", f"s_sub_u32 s{s}, s{s}, s{tmp}"]

def emit_groups(k, groups):
    for gr in groups:
        for (txt, tag, isvm) in gr:
            if isvm: k.vmem(txt, tag)
            else: k.e(txt)

MF = "v_mfma_f32_32x32x16_bf16"

def e1_body(k, SX=8, SW=12, SWS=20, sc1="", stats_sync=None):
    E1_XB = 49152
    k.e("v_and_b32 v1, 63, v0", "v_lshrrev_b32 v10, 6, v0", "s_nop 0", "v_readfirstlane_b32 s24, v10")
    k.e("v_and_b32 v11, 31, v1", "v_lshrrev_b32 v12, 5, v1")
    k.e("s_and_b32 s27, s24, 1", "s_lshr_b32 s28, s24, 1")
    k.e("v_lshrrev_b32 v13, 3, v1", "v_lshrrev_b32 v14, 4, v1", "v_and_b32 v15, 7, v1",
        "v_xor_b32 v7, v15, v14", "v_lshlrev_b32 v7, 4, v7", "v_lshl_add_u32 v7, v13, 10, v7",
        "s_lshl_b32 s29, s25, 16", "s_lshl_b32 s30, s24, 14", "s_add_u32 s29, s29, s30",
        "v_add_u32 v7, s29, v7", "v_xor_b32 v8, 64, v7", "v_add_u32 v8, 8192, v8")
    k.e("v_and_b32 v14, 1, v14", "v_lshlrev_b32 v14, 2, v14", "v_xor_b32 v9, v15, v14", "v_lshlrev_b32 v9, 4, v9",
        "s_lshl_b32 s30, s24, 3", "v_add_u32 v13, s30, v13", "v_mul_u32_u24 v13, 3072, v13", "v_add_u32 v9, v9, v13",
        "s_lshl_b32 s30, s26, 7", "v_add_u32 v9, s30, v9")
    k.e(f"s_lshl_b32 s31, s24, 11", f"s_add_u32 s31, s31, {E1_XB}", "s_lshl_b32 s32, s24, 10")
    def xd(v):
        return [dma(SX, 7, 31, (v % 3)*8192, 33, v*128, ("X", v)), dma(SX, 8, 31, (v % 3)*8192 + 1024, 33, v*128, ("X", v))]
    def wd(u):
        return [dma(SW, 9, 32, (u % 4)*12288 + p*4096, 33, u*32*3072, ("W", u), imm=1024*p) for p in range(3)]
    emit_groups(k, xd(0) + wd(0) + wd(1) + xd(1) + wd(2))
    for i in range(48, 64): k.e(f"v_mov_b32 v{i}, 0")
    k.e("s_lshl_b32 s34, s25, 6", "s_lshl_b32 s35, s27, 5", "s_add_u32 s34, s34, s35",
        "v_add_u32 v116, s34, v11", "v_lshlrev_b32 v116, 5, v116")
    k.e("s_lshl_b32 s35, s26, 6", "s_lshl_b32 s36, s28, 5", "s_add_u32 s35, s35, s36",
        "v_add_u32 v117, s35, v11", "v_lshlrev_b32 v117, 4, v117")
    def extras(xsc):
        k.vmem(f"buffer_load_dword v112, v116, s[{SWS}:{SWS+3}], 0 offen offset:{WS_TOK+16} {xsc}", "ex")
        k.e(f"s_mov_b32 s36, {WS_COL}", "s_mov_b64 exec, 0xffffffff")
        k.vmem(f"buffer_load_dwordx4 v[48:51], v116, s[{SWS}:{SWS+3}], 0 offen offset:{WS_TOK} {xsc}", "ex")
        for p in range(3):
            k.vmem(f"buffer_load_dwordx4 v[{52+4*p}:{55+4*p}], v117, s[{SWS}:{SWS+3}], s36 offen {xsc}", "ex")
            if p < 2: k.e("s_add_u32 s36, s36, 8192")
        k.e("s_mov_b64 exec, -1")
    hooks = None; pre_hooks = None
    if stats_sync is None:
        extras("")
    else:
        ue, up, uc = stats_sync
        k.e("v_and_b32 v114, 15, v1", "v_min_u32 v114, 9, v114", "v_lshlrev_b32 v114, 3, v114",
            f"s_lshl_b32 s36, s25, 5", f"s_add_u32 s36, s36, 0x{FLG_ROW:x}", "v_add_u32 v115, s36, v114",
            f"s_lshl_b32 s36, s26, 7", f"s_add_u32 s36, s36, 0x{FLG_COLQ - 32:x}", "v_add_u32 v118, s36, v114",
            "v_cmp_gt_u32 vcc, 32, v114", "s_nop 1", "v_cndmask_b32 v115, v118, v115, vcc")
        def h_e(): epoch_issue(k, 120)
        def h_p():
            epoch_check(k, 120)
            poll_issue(k, 120, 115)
        def h_c(): poll_check(k, 120, 115)
        def h_x(): extras("sc1")
        hooks = {ue: [h_e], up: [h_p], uc: [h_c]}
        pre_hooks = {uc + 1: h_x}
    k.e("s_lshl_b32 s36, s27, 5", "v_add_u32 v13, s36, v11", "v_bfe_u32 v14, v13, 1, 3", "v_xor_b32 v14, v14, v12",
        "v_lshlrev_b32 v14, 4, v14", "v_lshl_add_u32 v2, v13, 7, v14", f"v_add_u32 v2, {E1_XB}, v2",
        "v_xor_b32 v3, 32, v2", "v_xor_b32 v4, 64, v2", "v_xor_b32 v5, 96, v2")
    k.e("v_bfe_u32 v13, v1, 2, 2", "v_lshl_add_u32 v13, v12, 3, v13", "v_lshlrev_b32 v6, 7, v13",
        "v_bfe_u32 v13, v1, 4, 1", "v_lshlrev_b32 v13, 1, v13", "v_bfe_u32 v14, v1, 1, 1", "v_add_u32 v13, v13, v14",
        "s_lshl_b32 s36, s28, 2", "v_add_u32 v13, s36, v13", "v_bfe_u32 v14, v1, 3, 1", "v_lshlrev_b32 v14, 2, v14",
        "v_xor_b32 v13, v13, v14", "v_lshl_add_u32 v6, v13, 4, v6", "v_and_b32 v14, 1, v1", "v_lshl_add_u32 v6, v14, 3, v6")
    for i in range(64, 112): k.e(f"v_mov_b32 v{i}, 0")
    def fr(st): return 16 + 16*st
    def reads(g, st):
        b = fr(st); u = g >> 1; v = g >> 2
        out = [(f"ds_read_b128 v[{b}:{b+3}], v{2 + (g & 3)} offset:{(v % 3)*8192}", "X")]
        for p in range(3):
            o = (u % 4)*12288 + p*4096 + (g & 1)*2048
            out.append((f"ds_read_b64_tr_b16 v[{b+4+4*p}:{b+5+4*p}], v6 offset:{o}", f"W{p}"))
            out.append((f"ds_read_b64_tr_b16 v[{b+6+4*p}:{b+7+4*p}], v6 offset:{o+512}", f"W{p}"))
        return out
    def mf(b_x, b_w):
        out = []
        for p in range(3):
            a = 64 + 16*p
            w = f"v[{b_w+4*p}:{b_w+4*p+3}]"; x = f"v[{b_x}:{b_x+3}]"
            A, B = (w, x) if p < 2 else (x, w)
            out.append((f"{MF} v[{a}:{a+15}], {A}, {B}, v[{a}:{a+15}]", ["X", f"W{p}"]))
        return out
    def mfmas(g, st): return mf(fr(st), fr(st) + 4)
    def dmas(u):
        out = []
        if u + 3 < 16: out += wd(u + 3)
        if u % 2 == 0 and u//2 + 2 < 8: out += xd(u//2 + 2)
        return out
    k.stamp(1)
    gemm_loop(k, 16, mfmas, reads, dmas, lambda u: [("W", u), ("X", u >> 1)], hooks=hooks, pre_hooks=pre_hooks)
    k.stamp(2)
    k.wait_vm("ex")
    for (t, _) in mf(48, 52): k.e(t)
    k.e("s_lshl_b32 s36, s24, 7", "v_lshlrev_b32 v13, 2, v11", "v_add_u32 v13, s36, v13")
    k.ds("ds_write_b32 v13, v112")
    k.e("v_lshlrev_b32 v13, 4, v12", "v_add_u32 v13, s36, v13")
    k.wait_lg_all()
    for gq in range(4): k.ds(f"ds_read_b128 v[{32+4*gq}:{35+4*gq}], v13 offset:{32*gq}")
    k.e(f"v_mul_f32 v113, 0x{f2u(0.25*LOG2E):08x}, v112")
    k.e("v_lshlrev_b32 v10, 4, v1",
        "s_lshl_b32 s36, s26, 2", "s_lshl_b32 s37, s28, 1", "s_add_u32 s36, s36, s37", "s_lshl_b32 s36, s36, 16",
        "s_lshl_b32 s37, s25, 1", "s_add_u32 s37, s37, s27", "s_lshl_b32 s37, s37, 10", "s_add_u32 s36, s36, s37")
    k.e("s_nop 4")
    for p, (scale, base) in enumerate(((113, WS_QF), (112, WS_KF))):
        a = 64 + 16*p
        for r in range(16): k.e(f"v_mul_f32 v{a+r}, v{a+r}, v{scale}")
        for j in range(2):
            d = 16 + 8*p + 4*j
            for i in range(4): k.e(f"v_cvt_pk_bf16_f32 v{d+i}, v{a+8*j+2*i}, v{a+8*j+2*i+1}")
            k.e(f"s_add_u32 s37, s36, 0x{base + j*65536:x}")
            k.vmem(f"buffer_store_dwordx4 v[{d}:{d+3}], v10, s[{SWS}:{SWS+3}], s37 offen {sc1}", "st")
    k.wait_lg_all()
    a = 96
    for r in range(16): k.e(f"v_mul_f32 v{a+r}, v{a+r}, v{32+r}")
    k.e("v_lshrrev_b32 v13, 4, v11", "v_lshlrev_b32 v13, 16, v13", "v_lshl_add_u32 v13, v12, 8, v13", "v_and_b32 v14, 15, v11",
        "v_lshl_add_u32 v13, v14, 4, v13", f"s_add_u32 s37, s36, 0x{WS_VF:x}")
    for j in range(2):
        d = 48 + 4*j
        for i in range(4): k.e(f"v_cvt_pk_bf16_f32 v{d+i}, v{a+8*j+2*i}, v{a+8*j+2*i+1}")
        k.vmem(f"buffer_store_dwordx4 v[{d}:{d+3}], v13, s[{SWS}:{SWS+3}], s37 offen offset:{512*j} {sc1}", "st")

def e3_body(k, SX=8, SG=12, SU=16, SWS=20, sc1="", norm=False, xoff=0, epi_prio=None, post_loop=None, st_sc1=None, pre_loop=None):
    XB = 49152
    k.e("v_and_b32 v1, 63, v0", "v_lshrrev_b32 v10, 6, v0", "s_nop 0", "v_readfirstlane_b32 s24, v10")
    k.e("v_and_b32 v11, 31, v1", "v_lshrrev_b32 v12, 5, v1")
    k.e("s_and_b32 s27, s24, 1", "s_lshr_b32 s28, s24, 1")
    k.e("v_lshrrev_b32 v13, 3, v1", "v_lshrrev_b32 v14, 4, v1", "v_and_b32 v15, 7, v1",
        "v_xor_b32 v7, v15, v14", "v_lshlrev_b32 v7, 4, v7", "v_lshl_add_u32 v7, v13, 10, v7",
        "s_lshl_b32 s29, s25, 17", "s_lshl_b32 s30, s24, 15", "s_add_u32 s29, s29, s30",
        "v_add_u32 v7, s29, v7", "v_xor_b32 v8, 64, v7", "v_add_u32 v8, 8192, v8")
    k.e("v_lshlrev_b32 v13, 2, v14", "v_and_b32 v15, 15, v1", "v_xor_b32 v9, v15, v13", "v_lshlrev_b32 v9, 4, v9",
        "s_lshl_b32 s30, s24, 3", "v_add_u32 v13, s30, v14", "v_mul_u32_u24 v13, 3584, v13", "v_add_u32 v9, v9, v13",
        "s_lshl_b32 s30, s26, 8", "v_add_u32 v9, s30, v9")
    k.e(f"s_lshl_b32 s31, s24, 12", f"s_add_u32 s31, s31, {XB}", "s_lshl_b32 s32, s24, 11")
    def xd(v):
        return [dma(SX, 7 + (i & 1), 31, (v % 2)*16384 + i*1024, 33, xoff + v*128 + (i >> 1)*16384, ("X", v)) for i in range(4)]
    def wd(u):
        out = []
        for i in range(2):
            for p, sr in enumerate((SG, SU)):
                out.append(dma(sr, 9, 32, (u % 3)*16384 + p*8192 + i*1024, 33, (u*32 + 4*i)*3584, ("W", u)))
        return out
    emit_groups(k, xd(0) + wd(0) + wd(1))
    if pre_loop: pre_loop()
    k.e("s_lshl_b32 s36, s27, 6", "v_add_u32 v13, s36, v11", "v_bfe_u32 v14, v13, 1, 3", "v_xor_b32 v14, v14, v12",
        "v_lshlrev_b32 v14, 4, v14", "v_lshl_add_u32 v2, v13, 7, v14", f"v_add_u32 v2, {XB}, v2",
        "v_xor_b32 v3, 32, v2", "v_xor_b32 v4, 64, v2", "v_xor_b32 v5, 96, v2")
    k.e("v_bfe_u32 v15, v1, 2, 2", "v_lshl_add_u32 v13, v12, 3, v15", "v_lshlrev_b32 v6, 8, v13",
        "v_bfe_u32 v13, v1, 4, 1", "v_lshlrev_b32 v13, 1, v13", "v_bfe_u32 v14, v1, 1, 1", "v_add_u32 v13, v13, v14",
        "s_lshl_b32 s36, s28, 3", "v_add_u32 v13, s36, v13", "v_lshlrev_b32 v15, 2, v15",
        "v_xor_b32 v13, v13, v15", "v_lshl_add_u32 v6, v13, 4, v6", "v_and_b32 v14, 1, v1", "v_lshl_add_u32 v6, v14, 3, v6",
        "v_xor_b32 v10, 64, v6")
    ACC = 128
    if not norm:
        for i in range(ACC, ACC + 128): k.e(f"v_mov_b32 v{i}, 0")
    def fr(st): return 16 + 24*st
    def acc(part, b, tb): return ACC + 16*(part*4 + b*2 + tb)
    def reads(g, st):
        b0 = fr(st); u = g >> 1; v = g >> 2
        out = []
        def wr(part, b):
            d = b0 + 8 + 8*part + 4*b
            o = (u % 3)*16384 + part*8192 + (g & 1)*4096
            av = 6 if b == 0 else 10
            return [(f"ds_read_b64_tr_b16 v[{d}:{d+1}], v{av} offset:{o}", f"W{part}{b}"),
                    (f"ds_read_b64_tr_b16 v[{d+2}:{d+3}], v{av} offset:{o+1024}", f"W{part}{b}")]
        def xr(tb): return [(f"ds_read_b128 v[{b0+4*tb}:{b0+4*tb+3}], v{2 + (g & 3)} offset:{(v % 2)*16384 + tb*4096}", f"X{tb}")]
        out = xr(0) + wr(0, 0) + xr(1) + wr(0, 1) + wr(1, 0) + wr(1, 1)
        return out
    def mf(b0, first=False):
        out = []
        for part in range(2):
            for b in range(2):
                for tb in range(2):
                    a = acc(part, b, tb); w = b0 + 8 + 8*part + 4*b; x = b0 + 4*tb
                    c = "0" if first else f"v[{a}:{a+15}]"
                    out.append((f"{MF} v[{a}:{a+15}], v[{w}:{w+3}], v[{x}:{x+3}], {c}", [f"X{tb}", f"W{part}{b}"]))
        return out
    def mfmas(g, st): return mf(fr(st), first=(norm and g == 0))
    def dmas(u):
        out = []
        if u + 2 < 16: out += wd(u + 2)
        if u % 2 == 0 and u//2 + 1 < 8: out += xd(u//2 + 1)
        return out
    if not norm:
        for i in range(64, 88): k.e(f"v_mov_b32 v{i}, 0")
        k.e("s_lshl_b32 s34, s25, 7", "s_lshl_b32 s35, s27, 6", "s_add_u32 s34, s34, s35",
            "v_add_u32 v13, s34, v11", "v_lshlrev_b32 v13, 5, v13")
        for tb in range(2):
            k.vmem(f"buffer_load_dwordx2 v[{88+2*tb}:{89+2*tb}], v13, s[{SWS}:{SWS+3}], 0 offen offset:{WS_TOK+16+1024*tb} {sc1}", "ex")
        k.e("s_lshl_b32 s35, s26, 7", "s_lshl_b32 s36, s28, 6", "s_add_u32 s35, s35, s36",
            "v_add_u32 v14, s35, v11", "v_lshlrev_b32 v14, 4, v14", f"s_mov_b32 s36, {WS_COL + 1536*16}", f"s_mov_b32 s37, {WS_COL + 3328*16}",
            "s_mov_b64 exec, 0xffffffff")
        for tb in range(2):
            k.vmem(f"buffer_load_dwordx4 v[{64+4*tb}:{67+4*tb}], v13, s[{SWS}:{SWS+3}], 0 offen offset:{WS_TOK+1024*tb} {sc1}", "ex")
        for part in range(2):
            for b in range(2):
                d = 72 + 8*part + 4*b
                k.vmem(f"buffer_load_dwordx4 v[{d}:{d+3}], v14, s[{SWS}:{SWS+3}], s{36+part} offen offset:{512*b} {sc1}", "ex")
        k.e("s_mov_b64 exec, -1")
    k.stamp(1)
    gemm_loop(k, 16, mfmas, reads, dmas, lambda u: [("W", u), ("X", u >> 1)], dbg=True)
    k.stamp(2)
    if epi_prio is not None: k.e(f"s_setprio {epi_prio}")
    if post_loop: post_loop()
    if st_sc1 is None: st_sc1 = sc1
    if not norm:
        k.wait_vm("ex")
        for (t, _) in mf(64): k.e(t)
        k.e(f"v_mul_f32 v92, 0x{f2u(LOG2E):08x}, v88", f"v_mul_f32 v93, 0x{f2u(LOG2E):08x}, v90")
    else:
        k.e(f"s_mov_b32 s38, 0x{f2u(-LOG2E):08x}")
    k.e("v_lshlrev_b32 v10, 4, v1",
        "s_lshl_b32 s36, s25, 2", "s_lshl_b32 s37, s27, 1", "s_add_u32 s36, s36, s37", "s_mul_i32 s36, s36, 112",
        "s_lshl_b32 s37, s26, 3", "s_add_u32 s36, s36, s37", "s_lshl_b32 s37, s28, 2", "s_add_u32 s36, s36, s37",
        "s_lshl_b32 s36, s36, 10", f"s_add_u32 s36, s36, 0x{WS_HF:x}")
    k.e("s_nop 4")
    n = 0
    for b in range(2):
        for tb in range(2):
            g = acc(0, b, tb); uu = acc(1, b, tb)
            A = 92 + tb; SD = 89 + 2*tb
            if not norm:
                for r in range(16): k.e(f"v_mul_f32 v{g+r}, v{g+r}, v{A}")
                for r in range(16): k.e(f"v_exp_f32 v{g+r}, -v{g+r}")
                for r in range(16): k.e(f"v_fma_f32 v{g+r}, v{g+r}, v{SD}, v{SD}")
            else:
                for r in range(16): k.e(f"v_mul_f32 v{g+r}, s38, v{g+r}")
                for r in range(16): k.e(f"v_exp_f32 v{g+r}, v{g+r}")
                for r in range(16): k.e(f"v_add_f32 v{g+r}, 1.0, v{g+r}")
            for r in range(16): k.e(f"v_rcp_f32 v{g+r}, v{g+r}")
            for r in range(16): k.e(f"v_mul_f32 v{g+r}, v{g+r}, v{uu+r}")
            for j in range(2):
                d = 16 + 4*(n % 8); n += 1
                for i in range(4): k.e(f"v_cvt_pk_bf16_f32 v{d+i}, v{g+8*j+2*i}, v{g+8*j+2*i+1}")
                k.e(f"s_add_u32 s37, s36, {(tb*112 + b*2 + j)*1024}")
                k.vmem(f"buffer_store_dwordx4 v[{d}:{d+3}], v10, s[{SWS}:{SWS+3}], s37 offen {st_sc1}", "st")

def k1_kernel():
    k = KV("k1_gemm_kernel", nvgpr=256)
    k.e("s_cmp_ge_u32 s2, 480", f"s_cbranch_scc1 L_end_{k.name}")
    fx = srd(k, 8, 0, SZ_X) + srd(k, 20, 72, WS_SIZE)
    k.e("s_cmp_ge_u32 s2, 256", "s_cbranch_scc1 L_k1_e3")
    fx1 = srd(k, 12, 8, SZ_WQKV)
    k.e("s_waitcnt lgkmcnt(0)"); k.e(*(fx + fx1))
    k.e("s_and_b32 s26, s2, 7", "s_lshr_b32 s25, s2, 3")
    k.stamp(0)
    e1_body(k)
    k.wait_vm_all()
    k.stamp(3); k.stamp_out(4, 0); k.wait_vm_all()
    k.e("s_endpgm")
    k.label("L_k1_e3")
    k.vm = []; k.lg = []
    fx3 = srd(k, 12, 32, SZ_WG) + srd(k, 16, 40, SZ_WG)
    k.e("s_waitcnt lgkmcnt(0)"); k.e(*(fx + fx3))
    k.e("s_sub_u32 s3, s2, 256", "s_and_b32 s4, s3, 7", "s_lshr_b32 s5, s3, 3", "s_mul_i32 s4, s4, 28", "s_add_u32 s4, s4, s5",
        "s_lshr_b32 s26, s4, 4", "s_and_b32 s25, s4, 15")
    k.stamp(0)
    e3_body(k)
    k.wait_vm_all()
    k.stamp(3); k.stamp_out(4, 0); k.wait_vm_all()
    k.label(f"L_end_{k.name}")
    k.e("s_endpgm")
    return k

BIAS_M = 90.0
def e2_body(k, SWS=20, sc1="", tag="e2", bias=BIAS_M, force_fb=False, pre_hook=None, sparse_ones=True, st_sc1=None, touch=False, oflag=False, prehint=0):
    SA, SB, OA, OB, CA, CB, PA, PB, QA, QB = 64, 80, 96, 112, 128, 144, 160, 168, 176, 180
    KB_ = [184, 188]; VB_ = [192, 200]
    SLOT = 12288
    S = [SA, SB]; O = [OA, OB]; C = [CA, CB]; P = [PA, PB]; Q = [QA, QB]
    k.e("v_and_b32 v1, 63, v0", "v_lshrrev_b32 v10, 6, v0", "s_nop 0", "v_readfirstlane_b32 s24, v10")
    k.e("v_lshlrev_b32 v2, 4, v1")
    k.e("v_lshrrev_b32 v3, 5, v1", "v_lshlrev_b32 v3, 8, v3", "v_and_b32 v4, 15, v1", "v_lshl_add_u32 v3, v4, 4, v3")
    k.e("s_mov_b32 s28, 0x0000ffff", "s_mov_b32 s29, 0x0000ffff")
    k.e("s_lshl_b32 s34, s24, 10", "v_add_u32 v14, s34, v2", f"s_add_u32 s34, s34, 0x{WS_VF - WS_KF - 1024:x}", "v_add_u32 v15, s34, v3",
        "v_subrev_u32 v16, 512, v15")
    k.e("s_lshl_b32 s33, s25, 16", f"s_add_u32 s30, s33, 0x{WS_KF:x}", "s_mul_i32 s32, s24, 3072")
    def chunk_dma_items(slot):
        return [("s", f"s_add_u32 m0, s32, {slot*SLOT}"),
                ("s", "s_nop 0"),
                ("v", f"buffer_load_dwordx4 v14, s[{SWS}:{SWS+3}], s30 offen {sc1} lds"),
                ("s", "s_mov_b64 exec, s[28:29]"),
                ("v", f"buffer_load_dwordx4 v15, s[{SWS}:{SWS+3}], s30 offen offset:1024 {sc1} lds"),
                ("v", f"buffer_load_dwordx4 v16, s[{SWS}:{SWS+3}], s30 offen offset:2048 {sc1} lds"),
                ("s", "s_mov_b64 exec, -1"),
                ("s", "s_add_u32 s30, s30, 4096")]
    def chunk_dma(slot):
        for kind, t in chunk_dma_items(slot):
            if kind == "v": k.vmem(t, "c")
            else: k.e(t)
    if sparse_ones:
        k.e("v_and_b32 v9, 27, v1", "v_cmp_eq_u32 vcc, 16, v9", "v_mov_b32 v4, 0x3f803f80", "v_mov_b32 v5, 0", "s_nop 1", "v_cndmask_b32 v4, v5, v4, vcc")
    else:
        k.e("v_mov_b32 v4, 0x3f803f80")
    k.e("v_mov_b32 v5, v4", "v_mov_b32 v6, v4", "v_mov_b32 v7, v4",
        f"s_mul_i32 s33, s24, {SLOT}", "v_add_u32 v8, s33, v2", "s_mov_b32 s38, 0xffff0000", "s_mov_b32 s39, 0xffff0000", "s_mov_b64 exec, s[38:39]")
    for kb in range(4):
        for g in range(2): k.ds(f"ds_write_b128 v8, v[4:7] offset:{kb*3072 + 1024 + g*1024}")
    k.e("s_mov_b64 exec, -1")
    if pre_hook: pre_hook()
    k.e("s_lshl_b32 s36, s26, 3", "s_lshl_b32 s37, s24, 1", "s_add_u32 s36, s36, s37",
        "s_lshl_b32 s37, s25, 6", "s_add_u32 s37, s37, s36", "s_lshl_b32 s37, s37, 10", f"s_add_u32 s37, s37, 0x{WS_QF:x}")
    chunk_dma(0)
    k.vmem(f"buffer_load_dwordx4 v[{QA}:{QA+3}], v2, s[{SWS}:{SWS+3}], s37 offen {sc1}", "q")
    k.vmem(f"buffer_load_dwordx4 v[{QB}:{QB+3}], v2, s[{SWS}:{SWS+3}], s37 offen offset:1024 {sc1}", "q")
    chunk_dma(1); chunk_dma(2)
    if touch:
        k.e("s_and_b32 s36, s24, 1", f"s_mul_i32 s36, s36, 0x{WS_VF - WS_KF:x}", "s_lshl_b32 s37, s26, 13", "s_add_u32 s36, s36, s37",
            "s_lshl_b32 s37, s25, 16", "s_add_u32 s36, s36, s37", f"s_add_u32 s36, s36, 0x{WS_KF:x}", "v_lshlrev_b32 v20, 7, v1")
        k.vmem(f"buffer_load_dword v21, v20, s[{SWS}:{SWS+3}], s36 offen", "touch")
    for i in range(16):
        k.e(f"v_mov_b32 v{OA+i}, 0", f"v_mov_b32 v{OB+i}, 0")
    for i in range(8): k.e(f"v_mov_b32 v{PB+i}, 0", f"v_mov_b32 v{VB_[1]+i}, 0")
    if prehint:
        k.e("s_lshl_b32 s36, s26, 2", "s_add_u32 s36, s36, s24", "s_lshl_b32 s36, s36, 8", "s_lshl_b32 s37, s25, 3", "s_add_u32 s36, s36, s37",
            f"s_add_u32 s36, s36, 0x{FLG_P8:x}", "v_mov_b32 v24, s36", f"v_mov_b32 v26, s{SEP}", f"v_mov_b32 v27, s{SEP+1}")
    k.wait_vm("q")
    k.wait_lg_all()
    k.e("s_barrier")
    k.ds(f"ds_read_b128 v[{KB_[0]}:{KB_[0]+3}], v2 offset:0")
    k.ds(f"ds_read_b128 v[{KB_[1]}:{KB_[1]+3}], v2 offset:3072")
    k.wait_lg_all()
    k.e(f"{MF} v[{SA}:{SA+15}], v[{KB_[0]}:{KB_[0]+3}], v[{QA}:{QA+3}], 0",
        f"{MF} v[{SB}:{SB+15}], v[{KB_[0]}:{KB_[0]+3}], v[{QB}:{QB+3}], 0",
        f"{MF} v[{CA}:{CA+15}], v[{KB_[1]}:{KB_[1]+3}], v[{QA}:{QA+3}], 0",
        f"{MF} v[{CB}:{CB+15}], v[{KB_[1]}:{KB_[1]+3}], v[{QB}:{QB+3}], 0")
    k.e("s_nop 9")
    for x in range(2):
        k.e(f"v_max3_f32 v{10+x}, v{S[x]}, v{S[x]+1}, v{S[x]+2}")
        for i in range(3, 15, 2): k.e(f"v_max3_f32 v{10+x}, v{S[x]+i}, v{S[x]+i+1}, v{10+x}")
        k.e(f"v_max_f32 v{10+x}, v{S[x]+15}, v{10+x}")
    k.e("s_nop 4")
    for x in range(2):
        for i in range(0, 16, 2): k.e(f"v_max3_f32 v{10+x}, v{C[x]+i}, v{C[x]+i+1}, v{10+x}")
    k.e("v_mov_b32 v12, v10", "v_mov_b32 v13, v11", "s_nop 1", "v_permlane32_swap_b32 v10, v12", "v_permlane32_swap_b32 v11, v13", "s_nop 1",
        "v_max_f32 v10, v10, v12", "v_max_f32 v11, v11, v13")
    k.e(f"v_sub_f32 v10, 0x{f2u(-bias):08x}, v10", f"v_sub_f32 v11, 0x{f2u(-bias):08x}, v11")
    for i in range(16): k.e(f"v_mov_b32 v{CA+i}, v10", f"v_mov_b32 v{CB+i}, v11")
    k.e("s_nop 1")
    k.e(f"{MF} v[{SA}:{SA+15}], v[{KB_[0]}:{KB_[0]+3}], v[{QA}:{QA+3}], v[{CA}:{CA+15}]")
    k.e("s_nop 11")

    def valu_seq(x):
        s, p = S[x], P[x]
        out = []
        for i in range(8):
            out.append(f"v_exp_f32 v{s+2*i}, v{s+2*i}"); out.append(f"v_exp_f32 v{s+2*i+1}, v{s+2*i+1}")
            if i >= 1: out.append(f"v_cvt_pk_bf16_f32 v{p+i-1}, v{s+2*i-2}, v{s+2*i-1}")
        out.append(f"v_cvt_pk_bf16_f32 v{p+7}, v{s+14}, v{s+15}")
        return out
    def phase(mf3, x, slots):
        va = valu_seq(x)
        def put(j):
            if mf3[j]: k.e(mf3[j])
            for t in slots[j]: k.e(t)
        put(0)
        for i, t in enumerate(va):
            k.e(t)
            if i == 5: put(1)
            if i == 13: put(2)
    def pvs(x, vb):
        return [f"{MF} v[{O[x]}:{O[x]+15}], v[{vb}:{vb+3}], v[{P[x]}:{P[x]+3}], v[{O[x]}:{O[x]+15}]",
                f"{MF} v[{O[x]}:{O[x]+15}], v[{vb+4}:{vb+7}], v[{P[x]+4}:{P[x]+7}], v[{O[x]}:{O[x]+15}]"]
    def koff(c4, kk):
        n = c4*4 + kk
        return ((n // 4) % 4)*SLOT + (n % 4)*3072
    def block(c4, kk, kblk_left, sync, do_dma, extra=()):
        par = kk & 1
        vo = koff(c4, kk) + 1024
        sA = [[f"ds_read_b128 v[{VB_[par]}:{VB_[par]+3}], v2 offset:{vo}"],
              [f"ds_read_b128 v[{VB_[par]+4}:{VB_[par]+7}], v2 offset:{vo+1024}"],
              ["s_waitcnt lgkmcnt(1)"]]
        if sync is not None: sA[2] = [f"s_waitcnt vmcnt({sync}) lgkmcnt(1)", "s_barrier"]
        sA[1] = sA[1] + list(extra)
        pv = pvs(1, VB_[par ^ 1])
        phase([f"{MF} v[{SB}:{SB+15}], v[{KB_[par]}:{KB_[par]+3}], v[{QB}:{QB+3}], v[{CB}:{CB+15}]", pv[0], pv[1]], 0, sA)
        fm = None if kblk_left < 1 else f"{MF} v[{SA}:{SA+15}], v[{KB_[par^1]}:{KB_[par^1]+3}], v[{QA}:{QA+3}], v[{CA}:{CA+15}]"
        sB = [[], [], []]
        if kblk_left >= 2:
            sB[0] = [f"ds_read_b128 v[{KB_[par]}:{KB_[par]+3}], v2 offset:{koff(c4, kk + 2)}"]
            sB[1] = ["s_waitcnt lgkmcnt(1)"]
        else:
            sB[0] = ["s_waitcnt lgkmcnt(0)"]
        if do_dma:
            it = [t for _, t in chunk_dma_items((c4 + 3) % 4)]
            sB[1] = sB[1] + it[0:3]
            sB[2] = it[3:]
        pv = pvs(0, VB_[par])
        phase([fm, pv[0], pv[1]], 1, sB)
    k.vm = []; k.lg = []
    k.stamp(1)
    k.e("s_mov_b32 s36, 3")
    L = f"L_{tag}_loop"
    k.label(L)
    for c4 in range(4):
        for kk in range(4):
            block(c4, kk, 99, 3 if kk == 2 else None, kk == 2)
    k.e("s_sub_u32 s36, s36, 1", "s_cmp_lg_u32 s36, 0", f"s_cbranch_scc1 {L}")
    for c4 in range(4):
        for kk in range(4):
            sync = None; dm = False
            if kk == 2:
                if c4 == 0: sync, dm = 3, True
                elif c4 == 1: sync = 3
                elif c4 == 2: sync = 0
            left = (3 - c4)*4 + (3 - kk)
            ex = ()
            if prehint and left + 1 == prehint:
                assert c4 >= 2
                ex = ("s_mov_b64 exec, 1", f"buffer_store_dwordx2 v[26:27], v24, s[{SWS}:{SWS+3}], 0 offen sc1", "s_mov_b64 exec, -1")
            block(c4, kk, left, sync, dm, ex)
    k.vm = []
    k.stamp(2)
    k.e("s_nop 1")
    for t in pvs(1, VB_[1]): k.e(t)
    k.e("s_nop 11")
    for x in range(2):
        k.e(f"v_add_f32 v{10+x}, v{O[x]}, v{O[x]+8}")
        for i in range(1, 8): k.e(f"v_add_f32 v{10+x}, v{10+x}, v{O[x]+i}")
    k.e("v_add_f32 v10, v10, v11", "s_movk_i32 s33, 0x207", "v_cmp_class_f32 vcc, v10, s33")
    if force_fb: k.e("s_mov_b64 vcc, -1")
    k.e("s_nop 4", f"s_cbranch_vccnz L_{tag}_fb")
    k.label(f"L_{tag}_fin")
    for x in range(2): k.e(f"v_rcp_f32 v{10+x}, v{O[x]+8}")
    k.e("s_nop 0")
    k.e("s_lshl_b32 s36, s26, 3", "s_lshl_b32 s37, s24, 1", "s_add_u32 s36, s36, s37", "s_lshl_b32 s36, s36, 5", "s_add_u32 s36, s36, s25",
        "s_lshl_b32 s36, s36, 10", f"s_add_u32 s36, s36, 0x{WS_OF:x}")
    for x in range(2):
        if EPK2:
            for i in range(0, 8, 2): k.e(f"v_pk_mul_f32 v[{O[x]+i}:{O[x]+i+1}], v[{O[x]+i}:{O[x]+i+1}], v[10:11] op_sel:[0,{x}] op_sel_hi:[1,{x}]")
        else:
            for i in range(8): k.e(f"v_mul_f32 v{O[x]+i}, v{O[x]+i}, v{10+x}")
        for i in range(4): k.e(f"v_cvt_pk_bf16_f32 v{P[x]+i}, v{O[x]+2*i}, v{O[x]+2*i+1}")
        k.vmem(f"buffer_store_dwordx4 v[{P[x]}:{P[x]+3}], v2, s[{SWS}:{SWS+3}], s36 offen {sc1 if st_sc1 is None else st_sc1}", "st")
        if x == 0: k.e("s_add_u32 s36, s36, 32768")
    if oflag == "ep":
        k.e("s_lshl_b32 s36, s26, 2", "s_add_u32 s36, s36, s24", "s_lshl_b32 s36, s36, 8", "s_lshl_b32 s37, s25, 3", "s_add_u32 s36, s36, s37",
            f"s_add_u32 s36, s36, 0x{FLG_O8:x}", "v_mov_b32 v12, s36", f"v_mov_b32 v14, s{SEP}", f"v_mov_b32 v15, s{SEP+1}", "s_mov_b64 exec, 1")
        k.vmem(f"buffer_store_dwordx2 v[14:15], v12, s[{SWS}:{SWS+3}], 0 offen sc1", "st")
        k.e("s_mov_b64 exec, -1")
    elif oflag:
        k.e("s_lshl_b32 s36, s26, 2", "s_add_u32 s36, s36, s24", "s_lshl_b32 s36, s36, 7", "s_lshl_b32 s37, s25, 2", "s_add_u32 s36, s36, s37",
            f"s_add_u32 s36, s36, 0x{FLG_O:x}", "v_mov_b32 v12, s36", "v_mov_b32 v13, 1", "s_mov_b64 exec, 1")
        k.vmem(f"buffer_store_dword v13, v12, s[{SWS}:{SWS+3}], 0 offen sc1", "st")
        k.e("s_mov_b64 exec, -1")
    k.fb_code = lambda: e2_fallback(k, SWS, sc1, tag, S, O, C, P, Q, KB_, VB_)

def e2_fallback(k, SWS, sc1, tag, S, O, C, P, Q, KB_, VB_):
    k.label(f"L_{tag}_fb")
    KR = KB_[0]; VR = VB_[0]
    k.e("s_lshl_b32 s33, s25, 16", f"s_add_u32 s30, s33, 0x{WS_KF:x}", f"s_add_u32 s31, s33, 0x{WS_VF:x}")
    k.e("v_mov_b32 v10, 0xff800000", "v_mov_b32 v11, 0xff800000", "s_mov_b32 s36, 64", "s_mov_b32 s33, s30")
    k.label(f"L_{tag}_fb1")
    k.e(f"buffer_load_dwordx4 v[{KR}:{KR+3}], v2, s[{SWS}:{SWS+3}], s33 offen {sc1}", "s_waitcnt vmcnt(0)")
    for x in range(2): k.e(f"{MF} v[{S[x]}:{S[x]+15}], v[{KR}:{KR+3}], v[{Q[x]}:{Q[x]+3}], 0")
    k.e("s_nop 11")
    for x in range(2):
        for i in range(0, 16, 2): k.e(f"v_max3_f32 v{10+x}, v{S[x]+i}, v{S[x]+i+1}, v{10+x}")
    k.e("s_add_u32 s33, s33, 1024", "s_sub_u32 s36, s36, 1", "s_cmp_lg_u32 s36, 0", f"s_cbranch_scc1 L_{tag}_fb1")
    k.e("v_mov_b32 v12, v10", "v_mov_b32 v13, v11", "s_nop 1", "v_permlane32_swap_b32 v10, v12", "v_permlane32_swap_b32 v11, v13", "s_nop 1",
        "v_max_f32 v10, v10, v12", "v_max_f32 v11, v11, v13", "v_sub_f32 v10, 0, v10", "v_sub_f32 v11, 0, v11")
    for i in range(16):
        k.e(f"v_mov_b32 v{C[0]+i}, v10", f"v_mov_b32 v{C[1]+i}, v11", f"v_mov_b32 v{O[0]+i}, 0", f"v_mov_b32 v{O[1]+i}, 0")
    for i in range(8): k.e(f"v_mov_b32 v{VR+i}, 0x3f803f80")
    k.e("s_mov_b32 s36, 64")
    k.label(f"L_{tag}_fb2")
    k.e(f"buffer_load_dwordx4 v[{KR}:{KR+3}], v2, s[{SWS}:{SWS+3}], s30 offen {sc1}", "s_mov_b64 exec, s[28:29]",
        f"buffer_load_dwordx4 v[{VR}:{VR+3}], v3, s[{SWS}:{SWS+3}], s31 offen {sc1}",
        f"buffer_load_dwordx4 v[{VR+4}:{VR+7}], v3, s[{SWS}:{SWS+3}], s31 offen offset:512 {sc1}",
        "s_mov_b64 exec, -1", "s_waitcnt vmcnt(0)")
    for x in range(2): k.e(f"{MF} v[{S[x]}:{S[x]+15}], v[{KR}:{KR+3}], v[{Q[x]}:{Q[x]+3}], v[{C[x]}:{C[x]+15}]")
    k.e("s_nop 11")
    for x in range(2):
        for i in range(16): k.e(f"v_exp_f32 v{S[x]+i}, v{S[x]+i}")
        k.e("s_nop 0")
        for i in range(8): k.e(f"v_cvt_pk_bf16_f32 v{P[x]+i}, v{S[x]+2*i}, v{S[x]+2*i+1}")
    k.e("s_nop 1")
    for x in range(2):
        k.e(f"{MF} v[{O[x]}:{O[x]+15}], v[{VR}:{VR+3}], v[{P[x]}:{P[x]+3}], v[{O[x]}:{O[x]+15}]",
            f"{MF} v[{O[x]}:{O[x]+15}], v[{VR+4}:{VR+7}], v[{P[x]+4}:{P[x]+7}], v[{O[x]}:{O[x]+15}]")
    k.e("s_add_u32 s30, s30, 1024", "s_add_u32 s31, s31, 1024", "s_sub_u32 s36, s36, 1", "s_cmp_lg_u32 s36, 0", f"s_cbranch_scc1 L_{tag}_fb2")
    k.e("s_nop 11", f"s_branch L_{tag}_fin")

def k2_kernel(**kw):
    k = KV("k2_attn_kernel", nvgpr=256)
    k.e("s_cmp_ge_u32 s2, 256", f"s_cbranch_scc1 L_end_{k.name}")
    fx = srd(k, 20, 72, WS_SIZE)
    k.e("s_waitcnt lgkmcnt(0)"); k.e(*fx)
    k.e("s_and_b32 s3, s2, 7", "s_lshr_b32 s4, s2, 3", "s_and_b32 s5, s4, 3", "s_lshl_b32 s25, s3, 2", "s_add_u32 s25, s25, s5", "s_lshr_b32 s26, s4, 2")
    k.stamp(0)
    e2_body(k, **kw)
    k.wait_vm_all()
    k.stamp(3); k.stamp_out(4, 0x20000); k.wait_vm_all()
    k.label(f"L_end_{k.name}")
    k.e("s_endpgm")
    k.fb_code()
    return k

def e4_body(k, SD=12, SO=16, SWS=20, SX=8, SOUT=4, sc1="", tag="e4"):
    DEPTH = 8
    ACC = 64
    HR = 128
    WR = 16
    k.e("v_and_b32 v1, 63, v0", "v_lshrrev_b32 v10, 6, v0", "s_nop 0", "v_readfirstlane_b32 s24, v10")
    k.e("v_lshlrev_b32 v2, 4, v1")
    k.e("v_lshrrev_b32 v3, 3, v1", "v_lshlrev_b32 v3, 10, v3", "v_bfe_u32 v4, v1, 4, 1", "v_lshlrev_b32 v4, 2, v4", "v_and_b32 v5, 7, v1",
        "v_xor_b32 v4, v4, v5", "v_lshl_add_u32 v3, v4, 4, v3", "s_lshl_b32 s27, s26, 7", "v_add_u32 v3, s27, v3")
    k.e("v_lshrrev_b32 v4, 5, v1", "v_bfe_u32 v5, v1, 2, 2", "v_lshl_add_u32 v4, v4, 2, v5", "v_lshlrev_b32 v6, 7, v4",
        "v_bfe_u32 v4, v1, 4, 1", "v_lshlrev_b32 v4, 1, v4", "v_bfe_u32 v5, v1, 1, 1", "v_add_u32 v4, v4, v5",
        "v_bfe_u32 v5, v1, 3, 1", "v_lshlrev_b32 v5, 2, v5", "v_xor_b32 v4, v4, v5", "v_lshl_add_u32 v6, v4, 4, v6",
        "v_and_b32 v5, 1, v1", "v_lshl_add_u32 v6, v5, 3, v6", "s_lshl_b32 s28, s24, 14", "v_add_u32 v6, s28, v6", "v_xor_b32 v7, 64, v6")
    k.e("s_mul_i32 s29, s24, 458752",
        "s_mul_i32 s30, s25, 224", "s_mul_i32 s31, s24, 28", "s_add_u32 s30, s30, s31", "s_lshl_b32 s30, s30, 10", f"s_add_u32 s30, s30, 0x{WS_HF:x}",
        "s_lshl_b32 s34, s24, 17",
        "s_lshl_b32 s35, s25, 6", "s_lshl_b32 s31, s24, 3", "s_add_u32 s35, s35, s31", "s_lshl_b32 s35, s35, 10", f"s_add_u32 s35, s35, 0x{WS_OF:x}")
    NS = 36
    def issue(s):
        slot = s % DEPTH
        if s < 28: sr, sb, kk, hb, hstride = SD, 29, s, 30, 112*1024
        else: sr, sb, kk, hb, hstride = SO, 34, s - 28, 35, 32*1024
        for i in range(2):
            k.e(f"s_add_u32 m0, s28, {slot*2048 + i*1024}", f"s_add_u32 s33, s{sb}, {kk*16384 + i*8192}")
            k.vmem(f"buffer_load_dwordx4 v3, s[{sr}:{sr+3}], s33 offen lds", ("W", s))
        for tb in range(2):
            d = HR + slot*8 + 4*tb
            k.e(f"s_add_u32 s33, s{hb}, {kk*1024 + tb*hstride}")
            k.vmem(f"buffer_load_dwordx4 v[{d}:{d+3}], v2, s[{SWS}:{SWS+3}], s33 offen {sc1}", ("H", s))
    def reads(s):
        b = WR + 8*(s & 1); o = (s % DEPTH)*2048
        for cb2 in range(2):
            av = 6 + cb2
            k.ds(f"ds_read_b64_tr_b16 v[{b+4*cb2}:{b+4*cb2+1}], v{av} offset:{o}", ("r", s))
            k.ds(f"ds_read_b64_tr_b16 v[{b+4*cb2+2}:{b+4*cb2+3}], v{av} offset:{o+1024}", ("r", s))
    for s in range(DEPTH): issue(s)
    k.e("v_lshrrev_b32 v8, 3, v0", "s_lshl_b32 s31, s25, 6", "v_add_u32 v8, s31, v8", "v_lshlrev_b32 v8, 10, v8",
        "v_and_b32 v9, 7, v0", "v_lshl_add_u32 v8, v9, 4, v8", "v_add_u32 v8, s27, v8")
    k.vmem(f"buffer_load_dwordx4 v[32:35], v8, s[{SX}:{SX+3}], 0 offen", "x")
    k.e("s_mov_b32 s31, 32768")
    k.vmem(f"buffer_load_dwordx4 v[36:39], v8, s[{SX}:{SX+3}], s31 offen", "x")
    for i in range(64): k.e(f"v_mov_b32 v{ACC+i}, 0")
    k.stamp(1)
    k.wait_vm(("W", 0)); reads(0)
    for s in range(NS):
        if s + 1 < NS:
            k.wait_vm(("W", s + 1)); reads(s + 1)
        k.wait_vm(("H", s)); k.wait_lg(("r", s))
        b = WR + 8*(s & 1); h = HR + (s % DEPTH)*8
        for cb2 in range(2):
            for tb in range(2):
                a = ACC + 16*(cb2*2 + tb)
                k.e(f"{MF} v[{a}:{a+15}], v[{b+4*cb2}:{b+4*cb2+3}], v[{h+4*tb}:{h+4*tb+3}], v[{a}:{a+15}]")
        if s + DEPTH < NS: issue(s + DEPTH)
    k.stamp(2)
    k.e("s_nop 7", "s_barrier")
    RS = 272
    k.e("v_and_b32 v4, 31, v1", f"v_mul_u32_u24 v4, {RS}, v4", "v_lshrrev_b32 v5, 5, v1", "v_lshl_add_u32 v4, v5, 4, v4",
        f"s_mul_i32 s31, s24, {64*RS}", "v_add_u32 v4, s31, v4", "s_nop 3")
    for cb2 in range(2):
        for tb in range(2):
            a = ACC + 16*(cb2*2 + tb)
            for g in range(4):
                k.ds(f"ds_write_b128 v4, v[{a+4*g}:{a+4*g+3}] offset:{tb*32*RS + cb2*128 + g*32}")
    k.wait_lg_all()
    k.e("s_barrier")
    k.e("v_lshrrev_b32 v4, 3, v0", f"v_mul_u32_u24 v4, {RS}, v4", "v_and_b32 v5, 7, v0", "v_lshl_add_u32 v4, v5, 5, v4")
    for half in range(2):
        for w in range(4):
            d = 64 + half*32 + w*8
            for j in range(2):
                k.ds(f"ds_read_b128 v[{d+4*j}:{d+4*j+3}], v4 offset:{w*64*RS + half*32*RS + j*16}", ("rd", half))
    k.wait_vm("x")
    for half in range(2):
        k.wait_lg(("rd", half))
        d = 64 + half*32
        for i in range(8):
            k.e(f"v_add_f32 v{d+i}, v{d+i}, v{d+8+i}", f"v_add_f32 v{d+16+i}, v{d+16+i}, v{d+24+i}")
        for i in range(4):
            xr = 32 + 4*half + i
            k.e(f"v_lshlrev_b32 v{d+8+2*i}, 16, v{xr}", f"v_and_b32 v{d+9+2*i}, 0xffff0000, v{xr}")
        for i in range(8): k.e(f"v_add_f32 v{d+i}, v{d+i}, v{d+16+i}")
        for i in range(8): k.e(f"v_add_f32 v{d+i}, v{d+i}, v{d+8+i}")
        for i in range(4): k.e(f"v_cvt_pk_bf16_f32 v{40+4*half+i}, v{d+2*i}, v{d+2*i+1}")
        if half == 0: k.vmem(f"buffer_store_dwordx4 v[40:43], v8, s[{SOUT}:{SOUT+3}], 0 offen", "st")
        else: k.vmem(f"buffer_store_dwordx4 v[44:47], v8, s[{SOUT}:{SOUT+3}], s31 offen", "st") if False else None
    k.e("s_mov_b32 s31, 32768")
    k.vmem(f"buffer_store_dwordx4 v[44:47], v8, s[{SOUT}:{SOUT+3}], s31 offen", "st")

def k3_kernel():
    k = KV("k3_out_kernel", nvgpr=256)
    k.e("s_cmp_ge_u32 s2, 256", f"s_cbranch_scc1 L_end_{k.name}")
    fx = srd(k, 8, 0, SZ_X) + srd(k, 20, 72, WS_SIZE) + srd(k, 12, 48, SZ_WD) + srd(k, 16, 16, SZ_WO) + srd(k, 4, 56, SZ_X)
    k.e("s_waitcnt lgkmcnt(0)"); k.e(*fx)
    k.e("s_and_b32 s3, s2, 7", "s_lshr_b32 s27, s2, 3", "s_and_b32 s28, s27, 3", "s_lshl_b32 s25, s3, 2", "s_add_u32 s25, s25, s28", "s_lshr_b32 s26, s27, 2")
    k.stamp(0)
    e4_body(k)
    k.wait_vm_all()
    k.stamp(3); k.stamp_out(4, 0x40000); k.wait_vm_all()
    k.label(f"L_end_{k.name}")
    k.e("s_endpgm")
    return k

def stats_role(k, sc1="sc1"):
    k.e("s_cmp_ge_u32 s3, 128", "s_cbranch_scc1 L_st_col")
    row_job(k, 3, 8, 20, sc1=sc1, pre_store=lambda: epoch_issue(k, 74))
    k.wait_vm_all()
    epoch_check(k, 74)
    k.e("s_lshl_b32 s48, s3, 3", f"s_add_u32 s48, s48, 0x{FLG_ROW:x}")
    publish(k, 48)
    k.e("s_branch L_st_done")
    k.label("L_st_col")
    k.vm = []; k.lg = []
    k.e("s_sub_u32 s3, s3, 128")
    k.label("L_st_col2")
    k.e("s_mov_b32 s12, s28", "s_mov_b32 s13, s29", f"s_mov_b32 s14, {SZ_WQKV}", "s_mov_b32 s15, 0x00020000",
        "s_movk_i32 s16, 3072", "s_lshl_b32 s17, s3, 6",
        "s_bfe_u32 s48, s3, 0x30001", "s_lshl_b32 s48, s48, 7", "s_lshr_b32 s49, s3, 4", "s_lshl_b32 s49, s49, 4", "s_add_u32 s48, s48, s49",
        "s_and_b32 s49, s3, 1", "s_lshl_b32 s49, s49, 3", "s_add_u32 s48, s48, s49", f"s_add_u32 s48, s48, 0x{FLG_COLQ:x}",
        "s_cmp_lt_u32 s3, 48", "s_cbranch_scc1 L_st_go",
        "s_mov_b32 s12, s30", "s_mov_b32 s13, s31", f"s_mov_b32 s14, {SZ_WG}", "s_movk_i32 s16, 3584",
        "s_sub_u32 s50, s3, 48", "s_lshl_b32 s17, s50, 6", f"s_mov_b32 s51, 0x{FLG_COLG:x}",
        "s_cmp_lt_u32 s3, 104", "s_cbranch_scc1 L_st_gu",
        "s_mov_b32 s12, s32", "s_mov_b32 s13, s33", "s_sub_u32 s50, s3, 104", "s_lshl_b32 s17, s50, 6", f"s_mov_b32 s51, 0x{FLG_COLG + 32:x}")
    k.label("L_st_gu")
    k.e("s_lshr_b32 s48, s50, 2", "s_lshl_b32 s48, s48, 7", "s_and_b32 s49, s50, 3", "s_lshl_b32 s49, s49, 3", "s_add_u32 s48, s48, s49", "s_add_u32 s48, s48, s51")
    k.label("L_st_go")
    col_job(k, 3, 12, 16, 17, 20, sc1=sc1, pre_store=lambda: epoch_issue(k, 60))
    k.wait_vm_all()
    epoch_check(k, 60)
    publish(k, 48)
    k.e("s_cmp_lt_u32 s3, 96", "s_cbranch_scc1 L_st_done", "s_cmp_ge_u32 s3, 128", "s_cbranch_scc1 L_st_done",
        "s_add_u32 s3, s3, 32", "s_branch L_st_col2")
    k.label("L_st_done")

def kA_kernel(ue=4, up=7, uc=10, name="ka_qkv_kernel"):
    k = KV(name, nvgpr=256)
    k.e("s_cmp_ge_u32 s2, 512", f"s_cbranch_scc1 L_end_{k.name}")
    fx = srd(k, 8, 0, SZ_X) + srd(k, 20, 72, WS_SIZE)
    load_dbg(k)
    wave_id(k)
    k.e("s_cmp_ge_u32 s2, 256", "s_cbranch_scc1 L_ka_g")
    fx1 = srd(k, 12, 8, SZ_WQKV)
    k.e("s_waitcnt lgkmcnt(0)"); k.e(*(fx + fx1))
    epoch_make(k)
    k.e("s_and_b32 s26, s2, 7", "s_lshr_b32 s25, s2, 3")
    k.stamp(0)
    e1_body(k, stats_sync=(ue, up, uc))
    k.wait_vm_all()
    k.stamp(3); k.stamp_out(4, 0); k.wait_vm_all()
    k.e("s_endpgm")
    k.label("L_ka_g")
    k.vm = []; k.lg = []
    k.e("s_load_dwordx2 s[28:29], s[0:1], 8", "s_load_dwordx2 s[30:31], s[0:1], 32", "s_load_dwordx2 s[32:33], s[0:1], 40")
    k.e("s_waitcnt lgkmcnt(0)"); k.e(*fx)
    k.e("s_sub_u32 s3, s2, 256")
    k.stamp(0); k.stamp(1); k.stamp(2)
    stats_role(k)
    k.wait_vm_all()
    k.stamp(3); k.stamp_out(4, 0); k.wait_vm_all()
    k.label(f"L_end_{k.name}")
    k.e("s_endpgm")
    k.emit_tails()
    return k

def prefetch_role(k, jobs, s_idx, nwg):
    for (sr, nb) in jobs:
        per = nb // nwg
        assert per % 4096 == 0 or per % 1024 == 0
        k.e(f"s_mul_i32 s40, s{s_idx}, {per}", "v_lshlrev_b32 v1, 4, v0", "v_add_u32 v1, s40, v1")
        n = per // 4096
        rem = per % 4096
        k.e("s_mov_b32 s41, 0")
        for i in range(n):
            k.vmem(f"buffer_load_dwordx4 v[{4+4*(i%32)}:{7+4*(i%32)}], v1, s[{sr}:{sr+3}], s41 offen", "pf")
            k.e("s_add_u32 s41, s41, 4096")
        if rem:
            k.e(f"v_cmp_gt_u32 vcc, {rem//16}, v0" if rem//16 <= 64 else f"s_movk_i32 s42, {rem//16}\n v_cmp_gt_u32 vcc, s42, v0", "s_and_saveexec_b64 s[44:45], vcc")
            k.vmem(f"buffer_load_dwordx4 v[{4+4*(n%32)}:{7+4*(n%32)}], v1, s[{sr}:{sr+3}], s41 offen", "pf")
            k.e("s_mov_b64 exec, s[44:45]")
    k.wait_vm_all()

def kB_kernel(name="kb_attn_glu_kernel", prio_a=None, prio_g=None, **kw):
    k = KV(name, nvgpr=256)
    k.e("s_cmp_ge_u32 s2, 512", f"s_cbranch_scc1 L_end_{k.name}")
    fx = srd(k, 20, 72, WS_SIZE)
    k.e("s_cmp_ge_u32 s2, 256", "s_cbranch_scc1 L_kb_g")
    k.e("s_waitcnt lgkmcnt(0)"); k.e(*fx)
    if prio_a is not None: k.e(f"s_setprio {prio_a}")
    k.e("s_and_b32 s3, s2, 7", "s_lshr_b32 s4, s2, 3", "s_and_b32 s5, s4, 3", "s_lshl_b32 s25, s3, 2", "s_add_u32 s25, s25, s5", "s_lshr_b32 s26, s4, 2")
    k.stamp(0)
    e2_body(k, **kw)
    k.wait_vm_all()
    k.stamp(3); k.stamp_out(4, 0x20000); k.wait_vm_all()
    k.e("s_endpgm")
    fb = k.fb_code
    k.label("L_kb_g")
    k.vm = []; k.lg = []
    k.e("s_cmp_ge_u32 s2, 480", "s_cbranch_scc1 L_kb_pf")
    fx3 = srd(k, 8, 0, SZ_X) + srd(k, 12, 32, SZ_WG) + srd(k, 16, 40, SZ_WG)
    k.e("s_waitcnt lgkmcnt(0)"); k.e(*(fx + fx3))
    if prio_g is not None: k.e(f"s_setprio {prio_g}")
    k.e("s_sub_u32 s3, s2, 256", "s_and_b32 s4, s3, 7", "s_lshr_b32 s5, s3, 3", "s_mul_i32 s4, s4, 28", "s_add_u32 s4, s4, s5",
        "s_lshr_b32 s26, s4, 4", "s_and_b32 s25, s4, 15")
    k.stamp(0)
    e3_body(k)
    k.wait_vm_all()
    k.stamp(3); k.stamp_out(4, 0x20000); k.wait_vm_all()
    k.e("s_endpgm")
    k.label("L_kb_pf")
    k.vm = []; k.lg = []
    fxp = srd(k, 12, 48, SZ_WD) + srd(k, 16, 16, SZ_WO)
    k.e("s_waitcnt lgkmcnt(0)"); k.e(*fxp)
    k.e("s_sub_u32 s3, s2, 480")
    prefetch_role(k, [(12, SZ_WD), (16, SZ_WO)], 3, 32)
    k.label(f"L_end_{k.name}")
    k.e("s_endpgm")
    fb()
    k.emit_tails()
    return k

WS_XN = 0x1100000
WS_SIZE2 = 0x1300000
def e1n_body(k, SX=8, SW=12, SWS=20, sc1="", NS=7, fine=False, prep=False, l2warm=0, wtouch=None):
    WB = 65536
    assert WB + NS*12288 <= 163840
    k.e("v_and_b32 v1, 63, v0", "v_lshrrev_b32 v10, 6, v0", "s_nop 0", "v_readfirstlane_b32 s24, v10")
    XR = 128
    k.e("v_lshrrev_b32 v13, 3, v1", "v_and_b32 v15, 7, v1", "v_lshlrev_b32 v7, 4, v15", "v_lshl_add_u32 v7, v13, 10, v7",
        "s_lshl_b32 s29, s25, 16", "s_lshl_b32 s30, s24, 14", "s_add_u32 s29, s29, s30", "s_add_u32 s30, s29, 8192")
    for g in range(2):
        for j in range(8):
            d = XR + 32*g + 4*j
            k.vmem(f"buffer_load_dwordx4 v[{d}:{d+3}], v7, s[{SX}:{SX+3}], s{29+g} offen offset:{128*j}", ("x", g))
    k.e("v_and_b32 v11, 31, v1", "v_lshrrev_b32 v12, 5, v1", "v_lshrrev_b32 v14, 4, v1")
    k.e("s_and_b32 s27, s24, 1", "s_lshr_b32 s28, s24, 1")
    k.e("v_and_b32 v14, 1, v14", "v_lshlrev_b32 v14, 2, v14", "v_xor_b32 v9, v15, v14", "v_lshlrev_b32 v9, 4, v9",
        "s_lshl_b32 s31, s24, 3", "v_add_u32 v16, s31, v13", "v_mul_u32_u24 v16, 3072, v16", "v_add_u32 v9, v9, v16",
        "s_lshl_b32 s31, s26, 7", "v_add_u32 v9, s31, v9")
    k.e("s_lshl_b32 s32, s24, 10", f"s_add_u32 s32, s32, {WB}")
    def wd(u):
        return [dma(SW, 9, 32, (u % NS)*12288 + p*4096, 33, u*32*3072, ("W", u), imm=1024*p) for p in range(3)]
    for u in range(NS - 1): emit_groups(k, wd(u))
    if l2warm:
        nrow = (16 - (NS - 1))*32
        per = nrow // 16
        k.e("s_and_b32 s34, s25, 3", "s_lshl_b32 s34, s34, 2", "s_add_u32 s34, s34, s24", f"s_mul_i32 s34, s34, {per*3072}",
            f"s_add_u32 s34, s34, {(NS-1)*32*3072}", f"s_mul_i32 s35, s24, {8*3072}", "s_sub_u32 s34, s34, s35",
            "s_lshl_b32 s35, s24, 10", f"s_add_u32 m0, s35, {WB + NS*12288}")
        for r0 in range(0, per, 8):
            part = r0 + 8 > per
            assert (not part) or per % 8 == 4
            if part: k.e("s_mov_b64 exec, 0xffffffff")
            for p in range(3):
                k.e(f"s_add_u32 s35, s34, {r0*3072 + 1024*p}")
                k.vmem(f"buffer_load_dwordx4 v9, s[{SW}:{SW+3}], s35 offen lds", "warm")
            if part: k.e("s_mov_b64 exec, -1")
    if prep:
        k.e("v_mov_b32 v40, -1", "v_mov_b32 v41, -1", "v_mov_b32 v42, -1", "v_mov_b32 v43, -1", "v_lshlrev_b32 v48, 4, v0",
            "s_lshl_b32 s34, s2, 13", f"s_add_u32 s34, s34, 0x{WS_OF:x}")
        k.vmem(f"buffer_store_dwordx4 v[40:43], v48, s[{SWS}:{SWS+3}], s34 offen", "prep")
        k.e("s_add_u32 s34, s34, 4096")
        k.vmem(f"buffer_store_dwordx4 v[40:43], v48, s[{SWS}:{SWS+3}], s34 offen", "prep")
        Lp = k.newlabel("prep")
        k.e("v_mov_b32 v44, 0", "v_mov_b32 v45, 0", "v_mov_b32 v46, 0", "v_mov_b32 v47, 0", f"s_mov_b32 s34, 0x{FLG_H:x}",
            "s_lshl_b32 s35, s2, 12", "s_add_u32 s34, s34, s35", "s_cmp_ge_u32 s2, 2", f"s_cbranch_scc1 {Lp}")
        k.vmem(f"buffer_store_dwordx4 v[44:47], v48, s[{SWS}:{SWS+3}], s34 offen", "prep", opt=True)
        k.label(Lp)
    k.e("v_lshrrev_b32 v16, 1, v13", "v_xor_b32 v16, v15, v16", "v_lshlrev_b32 v16, 4, v16", "v_lshl_add_u32 v16, v13, 7, v16",
        "s_lshl_b32 s31, s24, 11", "v_add_u32 v16, s31, v16", "v_xor_b32 v17, 64, v16", "v_add_u32 v17, 1024, v17")
    k.e("s_lshl_b32 s36, s27, 5", "v_add_u32 v18, s36, v11", "v_bfe_u32 v19, v18, 1, 3", "v_xor_b32 v19, v19, v12",
        "v_lshlrev_b32 v19, 4, v19", "v_lshl_add_u32 v2, v18, 7, v19",
        "v_xor_b32 v3, 32, v2", "v_xor_b32 v4, 64, v2", "v_xor_b32 v5, 96, v2")
    k.e("v_bfe_u32 v18, v1, 2, 2", "v_lshl_add_u32 v18, v12, 3, v18", "v_lshlrev_b32 v6, 7, v18",
        "v_bfe_u32 v18, v1, 4, 1", "v_lshlrev_b32 v18, 1, v18", "v_bfe_u32 v19, v1, 1, 1", "v_add_u32 v18, v18, v19",
        "s_lshl_b32 s36, s28, 2", "v_add_u32 v18, s36, v18", "v_bfe_u32 v19, v1, 3, 1", "v_lshlrev_b32 v19, 2, v19",
        "v_xor_b32 v18, v18, v19", "v_lshl_add_u32 v6, v18, 4, v6", "v_and_b32 v19, 1, v1", "v_lshl_add_u32 v6, v19, 3, v6",
        f"v_add_u32 v6, {WB}, v6", f"v_add_u32 v8, {5*12288}, v6")
    F = [64, 192]
    k.e("s_mov_b32 s42, 0x3f803f80", "s_mov_b32 s43, 0x00003f80", "s_mov_b32 s44, 0x3f800000")
    A = [20, 24]
    for g in range(2):
        k.wait_vm(("x", g))
        for i in range(32):
            c = f"v{A[g] + i % 4}" if i >= 4 else "0"
            k.e(f"v_dot2_f32_bf16 v{A[g] + i % 4}, v{XR + 32*g + i}, s42, {c}")
    if fine: k.stamp(1)
    k.e("s_nop 2")
    def red8(regs):
        for b in regs: k.e(f"v_add_f32 v{b}, v{b}, v{b+1}", f"v_add_f32 v{b+2}, v{b+2}, v{b+3}")
        for b in regs: k.e(f"v_add_f32 v{b}, v{b}, v{b+2}")
        k.e("s_nop 1")
        for mode in ("quad_perm:[1,0,3,2]", "quad_perm:[2,3,0,1]", "row_half_mirror"):
            for b in regs: k.e(f"v_add_f32_dpp v{b}, v{b}, v{b} {mode} row_mask:0xf bank_mask:0xf")
            k.e("s_nop 1")
    red8(A)
    for g in range(2): k.e(f"v_mul_f32 v{A[g]}, 0xbb000000, v{A[g]}")
    k.e("s_nop 0")
    for g in range(2):
        for i in range(32):
            k.e(f"v_dot2_f32_bf16 v{F[g] + 2*i}, v{XR + 32*g + i}, s43, v{A[g]}", f"v_dot2_f32_bf16 v{F[g] + 2*i + 1}, v{XR + 32*g + i}, s44, v{A[g]}")
    k.e("s_nop 2")
    B = [28, 32]
    for g in range(2):
        for i in range(32):
            a = B[g] + 2*(i % 2); d = F[g] + 2*i
            if i < 2: k.e(f"v_pk_mul_f32 v[{a}:{a+1}], v[{d}:{d+1}], v[{d}:{d+1}]")
            else: k.e(f"v_pk_fma_f32 v[{a}:{a+1}], v[{d}:{d+1}], v[{d}:{d+1}], v[{a}:{a+1}]")
    red8(B)
    k.e("v_mov_b32 v36, 0x3727c5ac", "v_mov_b32 v38, 0x3727c5ac")
    for g in range(2): k.e(f"v_fmac_f32 v{36+2*g}, 0x3b000000, v{B[g]}")
    for g in range(2): k.e(f"v_rsq_f32 v{36+2*g}, v{36+2*g}")
    k.e("s_nop 0")
    for g in range(2):
        for j in range(8):
            for i in range(4):
                d = F[g] + 2*(4*j + i)
                k.e(f"v_pk_mul_f32 v[{d}:{d+1}], v[{d}:{d+1}], v[{36+2*g}:{37+2*g}] op_sel_hi:[1,0]")
            for i in range(4):
                d = F[g] + 2*(4*j + i)
                k.e(f"v_cvt_pk_bf16_f32 v{XR + 32*g + 4*j + i}, v{d}, v{d+1}")
            k.ds(f"ds_write_b128 v{16+g}, v[{XR + 32*g + 4*j}:{XR + 32*g + 4*j + 3}] offset:{8192*j}")
    Ls = k.newlabel("xn"); L1 = k.newlabel("xn1")
    k.e("s_lshr_b32 s36, s26, 1", "s_cmp_lg_u32 s36, s24", f"s_cbranch_scc1 {Ls}",
        "s_lshl_b32 s36, s25, 16", "s_lshl_b32 s37, s26, 13", "s_add_u32 s36, s36, s37", f"s_add_u32 s36, s36, 0x{WS_XN:x}",
        "s_bitcmp1_b32 s26, 0", f"s_cbranch_scc1 {L1}")
    for g in range(2):
        if g == 1: k.label(L1)
        for j in range(8):
            d = XR + 32*g + 4*j
            k.vmem(f"buffer_store_dwordx4 v[{d}:{d+3}], v7, s[{SWS}:{SWS+3}], s36 offen offset:{128*j} {sc1}", "xn", opt=True)
        if g == 0: k.e(f"s_branch {Ls}")
    k.label(Ls)
    def fr(st): return 16 + 16*st + 24
    def reads(g, st):
        b = fr(st); u = g >> 1; v = g >> 2
        out = [(f"ds_read_b128 v[{b}:{b+3}], v{2 + (g & 3)} offset:{v*8192}", "X")]
        sl = u % NS
        av, so = (6, sl*12288) if sl < 5 else (8, (sl - 5)*12288)
        for p in range(3):
            o = so + p*4096 + (g & 1)*2048
            out.append((f"ds_read_b64_tr_b16 v[{b+4+4*p}:{b+5+4*p}], v{av} offset:{o}", f"W{p}"))
            out.append((f"ds_read_b64_tr_b16 v[{b+6+4*p}:{b+7+4*p}], v{av} offset:{o+512}", f"W{p}"))
        return out
    ACC = 80
    def mfmas(g, st):
        out = []
        b_x = fr(st); b_w = b_x + 4
        for p in range(3):
            a = ACC + 16*p
            w = f"v[{b_w+4*p}:{b_w+4*p+3}]"; x = f"v[{b_x}:{b_x+3}]"
            A_, B_ = (w, x) if p < 2 else (x, w)
            c = "0" if g == 0 else f"v[{a}:{a+15}]"
            out.append((f"{MF} v[{a}:{a+15}], {A_}, {B_}, {c}", ["X", f"W{p}"]))
        return out
    def dmas(u):
        return wd(u + NS - 1) if u + NS - 1 < 16 else []
    hooks = None
    if wtouch:
        def h_t():
            k.e("s_lshl_b32 s34, s2, 8", "v_add_u32 v72, s34, v0", "v_lshlrev_b32 v72, 7, v72", "s_lshl_b32 s35, s24, 10", f"s_add_u32 m0, s35, {WB + NS*12288}")
            start = 0
            for i, (sr, nb) in enumerate(wtouch):
                k.e(f"v_subrev_u32 v{73+i}, 0x{start:x}, v72")
                k.vmem(f"buffer_load_dword v{73+i}, s[{sr}:{sr+3}], 0 offen lds", "wt")
                start += nb
            assert start <= 65536*128
        hooks = {16 - NS: [h_t]}
    k.stamp(2 if fine else 1)
    gemm_loop(k, 16, mfmas, reads, dmas, lambda u: [("W", u)], hooks=hooks)
    if not fine: k.stamp(2)
    k.e("v_lshlrev_b32 v10, 4, v1",
        "s_lshl_b32 s36, s26, 2", "s_lshl_b32 s37, s28, 1", "s_add_u32 s36, s36, s37", "s_lshl_b32 s36, s36, 16",
        "s_lshl_b32 s37, s25, 1", "s_add_u32 s37, s37, s27", "s_lshl_b32 s37, s37, 10", "s_add_u32 s36, s36, s37")
    k.e("v_lshrrev_b32 v13, 4, v11", "v_lshlrev_b32 v13, 16, v13", "v_lshl_add_u32 v13, v12, 8, v13", "v_and_b32 v14, 15, v11",
        "v_lshl_add_u32 v13, v14, 4, v13", f"s_mov_b32 s38, 0x{f2u(0.25*LOG2E):08x}")
    k.e("s_nop 7")
    for p, base in enumerate((WS_QF, WS_KF)):
        a = ACC + 16*p
        if p == 0:
            for r in range(16): k.e(f"v_mul_f32 v{a+r}, s38, v{a+r}")
        for j in range(2):
            d = 16 + 8*p + 4*j
            for i in range(4): k.e(f"v_cvt_pk_bf16_f32 v{d+i}, v{a+8*j+2*i}, v{a+8*j+2*i+1}")
            k.e(f"s_add_u32 s37, s36, 0x{base + j*65536:x}")
            k.vmem(f"buffer_store_dwordx4 v[{d}:{d+3}], v10, s[{SWS}:{SWS+3}], s37 offen {sc1}", "st")
    a = ACC + 32
    k.e(f"s_add_u32 s37, s36, 0x{WS_VF:x}")
    for j in range(2):
        d = 32 + 4*j
        for i in range(4): k.e(f"v_cvt_pk_bf16_f32 v{d+i}, v{a+8*j+2*i}, v{a+8*j+2*i+1}")
        k.vmem(f"buffer_store_dwordx4 v[{d}:{d+3}], v13, s[{SWS}:{SWS+3}], s37 offen offset:{512*j} {sc1}", "st")

def kA2_kernel(name="ka_qkv_kernel", mapping=0, wtouch=False, **kw):
    k = KV(name, nvgpr=256)
    k.e("s_cmp_ge_u32 s2, 256", f"s_cbranch_scc1 L_end_{k.name}")
    fx = srd(k, 8, 0, SZ_X) + srd(k, 20, 72, WS_SIZE2) + srd(k, 12, 8, SZ_WQKV)
    if wtouch:
        fx += srd(k, 76, 32, SZ_WG) + srd(k, 80, 40, SZ_WG) + srd(k, 84, 48, SZ_WD) + srd(k, 88, 16, SZ_WO)
        kw["wtouch"] = [(76, SZ_WG), (80, SZ_WG), (84, SZ_WD), (88, SZ_WO)]
    k.e("s_waitcnt lgkmcnt(0)"); k.e(*fx)
    if mapping == 0:
        k.e("s_and_b32 s26, s2, 7", "s_lshr_b32 s25, s2, 3")
    elif mapping == 1:
        k.e("s_and_b32 s3, s2, 7", "s_lshr_b32 s4, s2, 3", "s_and_b32 s5, s4, 3", "s_lshl_b32 s25, s3, 2", "s_add_u32 s25, s25, s5", "s_lshr_b32 s26, s4, 2")
    elif mapping == 2:
        k.e("s_and_b32 s3, s2, 7", "s_lshr_b32 s4, s2, 3", "s_and_b32 s5, s3, 3", "s_lshl_b32 s26, s5, 1", "s_and_b32 s5, s4, 1", "s_add_u32 s26, s26, s5",
            "s_lshr_b32 s25, s3, 2", "s_lshl_b32 s25, s25, 4", "s_lshr_b32 s5, s4, 1", "s_add_u32 s25, s25, s5")
    elif mapping == 3:
        k.e("s_and_b32 s3, s2, 7", "s_lshr_b32 s4, s2, 3", "s_and_b32 s5, s3, 1", "s_lshl_b32 s26, s5, 2", "s_and_b32 s5, s4, 3", "s_add_u32 s26, s26, s5",
            "s_lshr_b32 s25, s3, 1", "s_lshl_b32 s25, s25, 3", "s_lshr_b32 s5, s4, 2", "s_add_u32 s25, s25, s5")
    k.stamp(0)
    e1n_body(k, **kw)
    k.wait_vm_all()
    k.stamp(3); k.stamp_out(4, 0); k.wait_vm_all()
    k.label(f"L_end_{k.name}")
    k.e("s_endpgm")
    return k


def kB2_kernel(name="kb_attn_glu_kernel", prio_a=None, prio_g=None, epi_prio=None, prefetch=True, **kw):
    k = KV(name, nvgpr=256)
    k.e("s_cmp_ge_u32 s2, 512", f"s_cbranch_scc1 L_end_{k.name}")
    fx = srd(k, 20, 72, WS_SIZE2)
    k.e("s_cmp_ge_u32 s2, 256", "s_cbranch_scc1 L_kb_g")
    k.e("s_waitcnt lgkmcnt(0)"); k.e(*fx)
    if prio_a is not None: k.e(f"s_setprio {prio_a}")
    k.e("s_and_b32 s3, s2, 7", "s_lshr_b32 s4, s2, 3", "s_and_b32 s5, s4, 3", "s_lshl_b32 s25, s3, 2", "s_add_u32 s25, s25, s5", "s_lshr_b32 s26, s4, 2")
    k.stamp(0)
    e2_body(k, **kw)
    k.wait_vm_all()
    k.stamp(3); k.stamp_out(4, 0x20000); k.wait_vm_all()
    k.e("s_endpgm")
    fb = k.fb_code
    k.label("L_kb_g")
    k.vm = []; k.lg = []
    k.e("s_cmp_ge_u32 s2, 480", "s_cbranch_scc1 L_kb_pf")
    fx3 = srd(k, 12, 32, SZ_WG) + srd(k, 16, 40, SZ_WG)
    k.e("s_waitcnt lgkmcnt(0)"); k.e(*(fx + fx3))
    if prio_g is not None: k.e(f"s_setprio {prio_g}")
    k.e("s_sub_u32 s3, s2, 256", "s_and_b32 s4, s3, 7", "s_lshr_b32 s5, s3, 3", "s_mul_i32 s4, s4, 28", "s_add_u32 s4, s4, s5",
        "s_lshr_b32 s26, s4, 4", "s_and_b32 s25, s4, 15")
    k.stamp(0)
    e3_body(k, SX=20, norm=True, xoff=WS_XN, epi_prio=epi_prio)
    k.wait_vm_all()
    k.stamp(3); k.stamp_out(4, 0x20000); k.wait_vm_all()
    k.e("s_endpgm")
    k.label("L_kb_pf")
    k.vm = []; k.lg = []
    if prefetch:
        fxp = srd(k, 12, 48, SZ_WD) + srd(k, 16, 16, SZ_WO)
        k.e("s_waitcnt lgkmcnt(0)"); k.e(*fxp)
        k.e("s_sub_u32 s3, s2, 480")
        prefetch_role(k, [(12, SZ_WD), (16, SZ_WO)], 3, 32)
    k.label(f"L_end_{k.name}")
    k.e("s_endpgm")
    fb()
    k.emit_tails()
    return k


class E4F:
    DEPTH = 8; ACC = 64; HR = 128; WR = 16; WOF = 192
    V16 = 48; VW = 49; VT = 50; VX = 52; VPH = 53; VPO = 54; VP = 55; VC = 56
    SB = 40; SDO = 41; SH = 42; SWO = 43; SO_ = 44; ST = 45; SCB = 46; SRB = 47; SC = 48; SK = 49
    def __init__(self, k, SD, SO, SWS, SX, SOUT, hsleep=2, osleep=2, ep=False):
        self.k = k; self.SD = SD; self.SO = SO; self.SWS = SWS; self.SX = SX; self.SOUT = SOUT
        self.hsleep = hsleep; self.osleep = osleep; self.ep = ep
        if ep: self.VP = 58
    def setup(self):
        k = self.k; c = self
        a, b = 56, 57
        k.e(f"v_lshlrev_b32 v{c.V16}, 4, v1", f"s_lshl_b32 s{c.ST}, s{c.SCB}, 7",
            f"v_lshrrev_b32 v{c.VW}, 3, v1", f"v_lshlrev_b32 v{c.VW}, 10, v{c.VW}", f"v_bfe_u32 v{a}, v1, 4, 1", f"v_lshlrev_b32 v{a}, 2, v{a}", f"v_and_b32 v{b}, 7, v1",
            f"v_xor_b32 v{a}, v{a}, v{b}", f"v_lshl_add_u32 v{c.VW}, v{a}, 4, v{c.VW}", f"v_add_u32 v{c.VW}, s{c.ST}, v{c.VW}")
        k.e(f"v_lshrrev_b32 v{a}, 5, v1", f"v_bfe_u32 v{b}, v1, 2, 2", f"v_lshl_add_u32 v{a}, v{a}, 2, v{b}", f"v_lshlrev_b32 v{c.VT}, 7, v{a}",
            f"v_bfe_u32 v{a}, v1, 4, 1", f"v_lshlrev_b32 v{a}, 1, v{a}", f"v_bfe_u32 v{b}, v1, 1, 1", f"v_add_u32 v{a}, v{a}, v{b}",
            f"v_bfe_u32 v{b}, v1, 3, 1", f"v_lshlrev_b32 v{b}, 2, v{b}", f"v_xor_b32 v{a}, v{a}, v{b}", f"v_lshl_add_u32 v{c.VT}, v{a}, 4, v{c.VT}",
            f"v_and_b32 v{b}, 1, v1", f"v_lshl_add_u32 v{c.VT}, v{b}, 3, v{c.VT}", f"s_lshl_b32 s{c.SB}, s24, 14", f"v_add_u32 v{c.VT}, s{c.SB}, v{c.VT}",
            f"v_xor_b32 v{c.VT+1}, 64, v{c.VT}")
        k.e(f"s_mul_i32 s{c.SDO}, s24, 458752",
            f"s_mul_i32 s{c.SH}, s{c.SRB}, 224", f"s_mul_i32 s{c.SC}, s24, 28", f"s_add_u32 s{c.SH}, s{c.SH}, s{c.SC}", f"s_lshl_b32 s{c.SH}, s{c.SH}, 10", f"s_add_u32 s{c.SH}, s{c.SH}, 0x{WS_HF:x}",
            f"s_lshl_b32 s{c.SWO}, s24, 17",
            f"s_lshl_b32 s{c.SO_}, s{c.SRB}, 6", f"s_lshl_b32 s{c.SC}, s24, 3", f"s_add_u32 s{c.SO_}, s{c.SO_}, s{c.SC}", f"s_lshl_b32 s{c.SO_}, s{c.SO_}, 10", f"s_add_u32 s{c.SO_}, s{c.SO_}, 0x{WS_OF:x}")
        k.e(f"v_lshrrev_b32 v{c.VX}, 3, v0", f"s_lshl_b32 s{c.SC}, s{c.SRB}, 6", f"v_add_u32 v{c.VX}, s{c.SC}, v{c.VX}", f"v_lshlrev_b32 v{c.VX}, 10, v{c.VX}",
            f"v_and_b32 v{a}, 7, v0", f"v_lshl_add_u32 v{c.VX}, v{a}, 4, v{c.VX}", f"v_add_u32 v{c.VX}, s{c.ST}, v{c.VX}")
        sh = 1 if c.ep else 0
        fh, fo = (FLG_H8, FLG_O8) if c.ep else (FLG_H, FLG_O)
        k.e(f"v_min_u32 v{c.VPH}, 6, v1", f"s_mul_i32 s{c.SC}, s24, 7", f"v_add_u32 v{c.VPH}, s{c.SC}, v{c.VPH}", f"v_lshlrev_b32 v{c.VPH}, {2+sh}, v{c.VPH}",
            f"s_lshl_b32 s{c.SC}, s{c.SRB}, {7+sh}", f"s_add_u32 s{c.SC}, s{c.SC}, 0x{fh:x}", f"v_add_u32 v{c.VPH}, s{c.SC}, v{c.VPH}")
        k.e(f"v_and_b32 v{a}, 7, v1", f"v_lshlrev_b32 v{c.VPO}, {2+sh}, v{a}", f"s_lshl_b32 s{c.SC}, s{c.SRB}, {7+sh}", f"s_lshl_b32 s{c.SK}, s24, {5+sh}",
            f"s_add_u32 s{c.SC}, s{c.SC}, s{c.SK}", f"s_add_u32 s{c.SC}, s{c.SC}, 0x{fo:x}", f"v_add_u32 v{c.VPO}, s{c.SC}, v{c.VPO}")
    def touchW(self, vd):
        k = self.k; c = self
        a = 56
        k.e(f"s_and_b32 s{c.SC}, s{c.SRB}, 3", f"s_mul_i32 s{c.SK}, s{c.SC}, {112*1024}", f"s_add_u32 s{c.SK}, s{c.SK}, s{c.SDO}",
            f"s_lshl_b32 s{c.ST}, s{c.SCB}, 7", f"v_lshlrev_b32 v{a}, 10, v1", f"v_add_u32 v{a}, s{c.ST}, v{a}")
        k.vmem(f"buffer_load_dword v{vd}, v{a}, s[{c.SD}:{c.SD+3}], s{c.SK} offen", "touch")
        k.e(f"s_add_u32 s{c.SK}, s{c.SK}, 65536", "s_mov_b32 exec_hi, 0xffff")
        k.vmem(f"buffer_load_dword v{vd}, v{a}, s[{c.SD}:{c.SD+3}], s{c.SK} offen", "touch")
        k.e(f"s_lshl_b32 s{c.SK}, s{c.SC}, 15", f"s_add_u32 s{c.SK}, s{c.SK}, s{c.SWO}", "s_mov_b64 exec, 0xffffffff")
        k.vmem(f"buffer_load_dword v{vd}, v{a}, s[{c.SO}:{c.SO+3}], s{c.SK} offen", "touch")
        k.e("s_mov_b64 exec, -1")
    def issueW(self, s):
        k = self.k; c = self
        slot = s % c.DEPTH
        sr, sb, kk = (c.SD, c.SDO, s) if s < 28 else (c.SO, c.SWO, s - 28)
        for i in range(2):
            k.e(f"s_add_u32 m0, s{c.SB}, {slot*2048 + i*1024}", f"s_add_u32 s{c.ST}, s{sb}, {kk*16384 + i*8192}")
            k.vmem(f"buffer_load_dwordx4 v{c.VW}, s[{sr}:{sr+3}], s{c.ST} offen lds", ("W", s))
    def issueH(self, s):
        k = self.k; c = self
        slot = s % c.DEPTH
        kk, hb, hstride = (s, c.SH, 112*1024) if s < 28 else (s - 28, c.SO_, 32*1024)
        for tb in range(2):
            d = c.HR + slot*8 + 4*tb
            k.e(f"s_add_u32 s{c.ST}, s{hb}, {kk*1024 + tb*hstride}")
            k.vmem(f"buffer_load_dwordx4 v[{d}:{d+3}], v{c.V16}, s[{c.SWS}:{c.SWS+3}], s{c.ST} offen {c.hsc1 if s < 28 else 'sc1'}", ("H", s))
    def reads(self, s, b):
        k = self.k; c = self
        o = (s % c.DEPTH)*2048
        for cb2 in range(2):
            av = c.VT + cb2
            k.ds(f"ds_read_b64_tr_b16 v[{b+4*cb2}:{b+4*cb2+1}], v{av} offset:{o}", ("r", s))
            k.ds(f"ds_read_b64_tr_b16 v[{b+4*cb2+2}:{b+4*cb2+3}], v{av} offset:{o+1024}", ("r", s))
    def mf(self, s, b, first):
        k = self.k; c = self
        h = c.HR + (s % c.DEPTH)*8
        for cb2 in range(2):
            for tb in range(2):
                a = c.ACC + 16*(cb2*2 + tb)
                k.e(f"{MF} v[{a}:{a+15}], v[{b+4*cb2}:{b+4*cb2+3}], v[{h+4*tb}:{h+4*tb+3}], " + ("0" if first else f"v[{a}:{a+15}]"))
    def spin(self, tag, issue_txt, ok_cmp, sleep, back=None):
        k = self.k; c = self
        L = k.newlabel(tag); Lc = k.newlabel(tag + "c")
        k.e(f"s_mov_b32 s{c.SK}, 0")
        k.label(L)
        k.e(issue_txt, f"s_add_u32 s{c.SK}, s{c.SK}, 1", "s_waitcnt vmcnt(0)", ok_cmp, "s_nop 3", "s_cmp_eq_u64 vcc, -1", f"s_cbranch_scc1 {Lc}")
        if back:
            mask, t1, s1, t2, s2 = back
            La = k.newlabel(tag + "a"); Lb = k.newlabel(tag + "b"); Ld = k.newlabel(tag + "d")
            k.e(f"s_and_b32 s{c.SC}, vcc_lo, 0x{mask:x}", f"s_bcnt1_i32_b32 s{c.SC}, s{c.SC}", f"s_cmp_lt_u32 s{c.SC}, {t1}", f"s_cbranch_scc1 {La}",
                f"s_cmp_lt_u32 s{c.SC}, {t2}", f"s_cbranch_scc1 {Lb}", f"s_sleep {sleep}", f"s_branch {Ld}")
            k.label(La); k.e(f"s_sleep {s1}", f"s_branch {Ld}")
            k.label(Lb); k.e(f"s_sleep {s2}")
            k.label(Ld)
        else:
            k.e(f"s_sleep {sleep}")
        k.e(f"s_cmp_lt_u32 s{c.SK}, 0x{SPIN_MAX:x}", f"s_cbranch_scc1 {L}")
        k.label(Lc)
        k.vm = []
    def pollt(self, va):
        c = self
        if c.ep: return (f"buffer_load_dwordx2 v[{c.VP}:{c.VP+1}], v{va}, s[{c.SWS}:{c.SWS+3}], 0 offen sc1", f"v_cmp_eq_u64 vcc, s[{SEP}:{SEP+1}], v[{c.VP}:{c.VP+1}]")
        return (f"buffer_load_dword v{c.VP}, v{va}, s[{c.SWS}:{c.SWS+3}], 0 offen sc1", f"v_cmp_eq_u32 vcc, 1, v{c.VP}")
    def reduce(self, dst, addx, lds_base=0):
        k = self.k; c = self
        RS = 272
        nolead = getattr(c, "nolead", False)
        if nolead and not addx: k.e("s_nop 7")
        else: k.e("s_nop 7", "s_barrier")
        k.e("v_and_b32 v4, 31, v1", f"v_mul_u32_u24 v4, {RS}, v4", "v_lshrrev_b32 v5, 5, v1", "v_lshl_add_u32 v4, v5, 4, v4",
            f"s_mul_i32 s{c.SC}, s24, {64*RS}", f"v_add_u32 v4, s{c.SC}, v4", "s_nop 3")
        for cb2 in range(2):
            for tb in range(2):
                a = c.ACC + 16*(cb2*2 + tb)
                for g in range(4):
                    k.ds(f"ds_write_b128 v4, v[{a+4*g}:{a+4*g+3}] offset:{lds_base + tb*32*RS + cb2*128 + g*32}")
        k.e("v_lshrrev_b32 v6, 3, v0", f"v_mul_u32_u24 v6, {RS}, v6", "v_and_b32 v5, 7, v0", "v_lshl_add_u32 v6, v5, 5, v6")
        k.wait_lg_all()
        k.e("s_barrier")
        for half in range(2):
            for w in range(4):
                d = 64 + half*32 + w*8
                for j in range(2):
                    k.ds(f"ds_read_b128 v[{d+4*j}:{d+4*j+3}], v6 offset:{lds_base + w*64*RS + half*32*RS + j*16}", ("rd", half))
        if addx: k.wait_vm("x")
        for half in range(2):
            k.wait_lg(("rd", half))
            d = 64 + half*32; o = dst + 8*half
            def padd(D_, A_, B_):
                if EPK:
                    for i in range(0, 8, 2): k.e(f"v_pk_add_f32 v[{D_+i}:{D_+i+1}], v[{A_+i}:{A_+i+1}], v[{B_+i}:{B_+i+1}]")
                else:
                    for i in range(8): k.e(f"v_add_f32 v{D_+i}, v{A_+i}, v{B_+i}")
            if EPK:
                padd(d, d, d + 8); padd(d + 16, d + 16, d + 24)
            else:
                for i in range(8):
                    k.e(f"v_add_f32 v{d+i}, v{d+i}, v{d+8+i}", f"v_add_f32 v{d+16+i}, v{d+16+i}, v{d+24+i}")
            if addx:
                for i in range(4):
                    xr = 40 + 4*half + i
                    k.e(f"v_lshlrev_b32 v{d+8+2*i}, 16, v{xr}", f"v_and_b32 v{d+9+2*i}, 0xffff0000, v{xr}")
                padd(d, d, d + 16)
                padd(o, d, d + 8)
            else:
                padd(d, d, d + 16)
                padd(o, o, d)
        if nolead and addx: k.e("s_barrier")
    def body(self, pre_issued=True, st=(1, 2), hwait=True):
        k = self.k; c = self
        D = c.DEPTH
        if not pre_issued:
            for s in range(D): c.issueW(s)
        k.vmem(f"buffer_load_dwordx4 v[40:43], v{c.VX}, s[{c.SX}:{c.SX+3}], 0 offen", "x")
        k.e(f"s_mov_b32 s{c.ST}, 32768")
        k.vmem(f"buffer_load_dwordx4 v[44:47], v{c.VX}, s[{c.SX}:{c.SX+3}], s{c.ST} offen", "x")
        if hwait:
            c.spin("hsp", *c.pollt(c.VPH), c.hsleep, back=getattr(c, "hback", None))
        c.hsc1 = getattr(c, "hsc", "sc1") if hwait else ""
        k.stamp(st[0])
        if c.e4_prio is not None: k.e(f"s_setprio {c.e4_prio}")
        for s in range(D): c.issueH(s)
        c.reads(0, c.WR)
        for s in range(28):
            if s + 1 < 28:
                k.wait_vm(("W", s + 1)); c.reads(s + 1, c.WR + 8*((s + 1) & 1))
            k.wait_vm(("H", s)); k.wait_lg(("r", s))
            c.mf(s, c.WR + 8*(s & 1), s == 0)
            if s + D < 36:
                c.issueW(s + D)
                if s + D < 28: c.issueH(s + D)
        for s in range(28, 36):
            k.wait_vm(("W", s)); c.reads(s, c.WOF + 8*(s - 28))
        k.wait_lg_all()
        c.reduce(32, True)
        k.stamp(st[1])
        if c.e4_prio is not None: k.e(f"s_setprio {c.post_prio or 0}")
        Lr = k.newlabel("oretry"); Lg = k.newlabel("ogo"); Ld = k.newlabel("odone")
        k.e(f"s_mov_b32 s{c.SK+1}, 0")
        if getattr(c, "pre", 0):
            VPP = 55
            k.e(f"v_add_u32 v{VPP}, 0x{FLG_P8 - FLG_O8:x}, v{c.VPO}")
            c.spin("psp", *c.pollt(VPP), c.osleep, back=getattr(c, "pback", None))
            for s in range(28, 36): c.issueH(s)
            for s in range(28, 36):
                L = k.newlabel("ochk"); La = k.newlabel("oacc"); Lre = k.newlabel("ore")
                k.label(L)
                k.wait_vm(("H", s))
                h = c.HR + (s % D)*8
                k.e(f"v_max3_u32 v{c.VC}, v{h}, v{h+1}, v{h+2}", f"v_max3_u32 v{c.VC}, v{h+3}, v{h+4}, v{c.VC}", f"v_max3_u32 v{c.VC}, v{h+5}, v{h+6}, v{c.VC}",
                    f"v_max_u32 v{c.VC}, v{h+7}, v{c.VC}", f"v_cmp_eq_u32 vcc, -1, v{c.VC}", "s_nop 3", "s_cmp_eq_u64 vcc, 0", f"s_cbranch_scc0 {Lre}")
                k.label(La)
                c.mf(s, c.WOF + 8*(s - 28), s == 28)
                def tail(s=s, L=L, La=La, Lre=Lre):
                    Lgo = k.newlabel("orego")
                    k.label(Lre)
                    k.e(f"s_add_u32 s{c.SK+1}, s{c.SK+1}, 1", f"s_cmp_ge_u32 s{c.SK+1}, {c.lim1 + 64}", f"s_cbranch_scc1 {La}",
                        f"s_cmp_lg_u32 s{c.SK+1}, {c.lim1}", f"s_cbranch_scc1 {Lgo}")
                    c.spin("osp", *c.pollt(c.VPO), c.osleep)
                    k.label(Lgo)
                    if c.rsleep: k.e(f"s_sleep {c.rsleep}")
                    for t in range(s, 36): c.issueH(t)
                    k.e(f"s_branch {L}")
                    k.vm = []
                k.tails.append(tail)
        else:
            k.label(Lr)
            c.spin("osp", *c.pollt(c.VPO), c.osleep)
            for s in range(28, 36): c.issueH(s)
            k.e(f"v_mov_b32 v{c.VC}, 0")
            for s in range(28, 36):
                k.wait_vm(("H", s))
                h = c.HR + (s % D)*8
                c.mf(s, c.WOF + 8*(s - 28), s == 28)
                for i in range(0, 8, 2): k.e(f"v_max3_u32 v{c.VC}, v{h+i}, v{h+i+1}, v{c.VC}")
            k.e(f"v_cmp_eq_u32 vcc, -1, v{c.VC}", f"s_add_u32 s{c.SK+1}, s{c.SK+1}, 1", "s_nop 3", "s_cmp_eq_u64 vcc, 0", f"s_cbranch_scc1 {Ld}",
                f"s_cmp_lt_u32 s{c.SK+1}, 0x40", "s_nop 15", f"s_cbranch_scc1 {Lr}")
        k.label(Ld)
        if not hwait: k.stamp(st[1] + 1)
        c.reduce(32, False)
        for half in range(2):
            for i in range(4): k.e(f"v_cvt_pk_bf16_f32 v{48+4*half+i - 0 if False else 16+4*half+i}, v{32+8*half+2*i}, v{32+8*half+2*i+1}")
        k.vmem(f"buffer_store_dwordx4 v[16:19], v{c.VX}, s[{c.SOUT}:{c.SOUT+3}], 0 offen {getattr(c, 'omod', '')}".rstrip(), "st")
        k.e(f"s_mov_b32 s{c.ST}, 32768")
        k.vmem(f"buffer_store_dwordx4 v[20:23], v{c.VX}, s[{c.SOUT}:{c.SOUT+3}], s{c.ST} offen {getattr(c, 'omod', '')}".rstrip(), "st")

def kB3_kernel(name="kb_main_kernel", prio_a=None, prio_g=None, epi_prio=None, post_prio=None, e4_prio=None, touch=True, hsleep=2, osleep=2, **kw):
    k = KV(name, nvgpr=256)
    k.e("s_cmp_ge_u32 s2, 512", f"s_cbranch_scc1 L_end_{k.name}")
    fx = srd(k, 20, 72, WS_SIZE2)
    k.e("s_cmp_ge_u32 s2, 256", "s_cbranch_scc1 L_kb_g")
    k.e("s_waitcnt lgkmcnt(0)"); k.e(*fx)
    if prio_a is not None: k.e(f"s_setprio {prio_a}")
    k.e("s_and_b32 s3, s2, 7", "s_lshr_b32 s4, s2, 3", "s_and_b32 s5, s4, 3", "s_lshl_b32 s25, s3, 2", "s_add_u32 s25, s25, s5", "s_lshr_b32 s26, s4, 2")
    k.stamp(0)
    if kw.pop("skip_a", False):
        k.e("v_and_b32 v1, 63, v0", "v_lshrrev_b32 v10, 6, v0", "s_nop 0", "v_readfirstlane_b32 s24, v10", "v_lshlrev_b32 v2, 4, v1",
            "v_mov_b32 v160, 0", "v_mov_b32 v161, 0", "v_mov_b32 v162, 0", "v_mov_b32 v163, 0")
        k.stamp(1); k.stamp(2)
        k.e("s_lshl_b32 s36, s26, 3", "s_lshl_b32 s37, s24, 1", "s_add_u32 s36, s36, s37", "s_lshl_b32 s36, s36, 5", "s_add_u32 s36, s36, s25",
            "s_lshl_b32 s36, s36, 10", f"s_add_u32 s36, s36, 0x{WS_OF:x}")
        k.e("buffer_store_dwordx4 v[160:163], v2, s[20:23], s36 offen sc1", "s_add_u32 s36, s36, 32768", "buffer_store_dwordx4 v[160:163], v2, s[20:23], s36 offen sc1")
        k.e("s_lshl_b32 s36, s26, 2", "s_add_u32 s36, s36, s24", "s_lshl_b32 s36, s36, 7", "s_lshl_b32 s37, s25, 2", "s_add_u32 s36, s36, s37",
            f"s_add_u32 s36, s36, 0x{FLG_O:x}", "v_mov_b32 v12, s36", "v_mov_b32 v13, 1", "s_mov_b64 exec, 1",
            "buffer_store_dword v13, v12, s[20:23], 0 offen sc1", "s_mov_b64 exec, -1")
        k.fb_code = lambda: None
    else:
        e2_body(k, st_sc1="sc1", touch=touch, oflag=True, **kw)
    k.wait_vm_all()
    k.stamp(3); k.stamp_out(4, 0x20000); k.wait_vm_all()
    k.e("s_endpgm")
    fb = k.fb_code
    k.label("L_kb_g")
    k.vm = []; k.lg = []
    SD, SO, SX, SOUT = 84, 88, 8, 4
    fx3 = srd(k, 12, 32, SZ_WG) + srd(k, 16, 40, SZ_WG) + srd(k, SD, 48, SZ_WD) + srd(k, SO, 16, SZ_WO) + srd(k, SX, 0, SZ_X) + srd(k, SOUT, 56, SZ_X)
    k.e("s_waitcnt lgkmcnt(0)"); k.e(*(fx + fx3))
    if prio_g is not None: k.e(f"s_setprio {prio_g}")
    e4 = E4F(k, SD, SO, 20, SX, SOUT, hsleep=hsleep, osleep=osleep)
    c = e4
    k.e("s_sub_u32 s3, s2, 256", "s_and_b32 s92, s3, 7", "s_lshr_b32 s93, s3, 3",
        f"s_and_b32 s{c.SRB}, s93, 3", "s_lshl_b32 s94, s92, 2", f"s_add_u32 s{c.SRB}, s{c.SRB}, s94", f"s_lshr_b32 s{c.SCB}, s93, 2")
    k.e("s_cmp_ge_u32 s2, 480", "s_cbranch_scc1 L_kb_pf")
    k.e("s_and_b32 s26, s92, 1", "s_mul_i32 s26, s26, 7", "s_lshr_b32 s94, s93, 2", "s_add_u32 s26, s26, s94",
        "s_lshr_b32 s25, s92, 1", "s_lshl_b32 s25, s25, 2", "s_and_b32 s95, s93, 3", "s_add_u32 s25, s25, s95")
    k.stamp(0)
    def pre_loop():
        if not touch: return
        k.e("v_lshrrev_b32 v66, 1, v1", "v_mul_u32_u24 v66, 3584, v66", "v_and_b32 v67, 1, v1", "v_lshl_add_u32 v66, v67, 7, v66",
            "s_lshl_b32 s36, s95, 7", "s_lshl_b32 s37, s28, 6", "s_add_u32 s36, s36, s37", "s_mul_i32 s36, s36, 3584", "s_lshl_b32 s37, s26, 8", "s_add_u32 s36, s36, s37",
            f"s_add_u32 s37, s36, {32*3584}", "s_cmp_eq_u32 s27, 0", "s_cbranch_scc0 L_kb_tu")
        k.vmem("buffer_load_dword v64, v66, s[12:15], s36 offen", "touch"); k.vmem("buffer_load_dword v64, v66, s[12:15], s37 offen", "touch")
        k.e("s_branch L_kb_tx")
        k.label("L_kb_tu")
        k.e("buffer_load_dword v64, v66, s[16:19], s36 offen", "buffer_load_dword v64, v66, s[16:19], s37 offen")
        k.label("L_kb_tx")
        k.e("v_and_b32 v67, 31, v1", "v_lshlrev_b32 v67, 10, v67", "s_lshl_b32 s36, s25, 17", "s_lshl_b32 s37, s24, 15", "s_add_u32 s36, s36, s37",
            "s_lshl_b32 s37, s94, 7", "s_add_u32 s36, s36, s37", f"s_add_u32 s36, s36, 0x{WS_XN + 128:x}", "s_mov_b64 exec, 0xffffffff")
        k.vmem("buffer_load_dword v64, v67, s[20:23], s36 offen", "touch")
        k.e("s_mov_b64 exec, -1")
    def post_loop():
        k.e("s_barrier")
        e4.setup()
        for s in range(c.DEPTH): e4.issueW(s)
        if touch: e4.touchW(64)
    e3_body(k, SX=20, norm=True, xoff=WS_XN, epi_prio=epi_prio, post_loop=post_loop, st_sc1="sc1", pre_loop=pre_loop)
    k.e("s_lshl_b32 s36, s25, 1", "s_add_u32 s36, s36, s27", "s_lshl_b32 s36, s36, 7", "s_lshl_b32 s37, s26, 1", "s_add_u32 s37, s37, s28",
        "s_lshl_b32 s37, s37, 2", "s_add_u32 s36, s36, s37", f"s_add_u32 s36, s36, 0x{FLG_H:x}", "v_mov_b32 v56, s36", "v_mov_b32 v57, 1")
    k.stamp(3)
    k.wait_vm_all()
    k.stamp(4)
    k.e("s_mov_b64 exec, 1")
    k.vmem("buffer_store_dword v57, v56, s[20:23], 0 offen sc1", "flag")
    k.e("s_mov_b64 exec, -1")
    if post_prio is not None: k.e(f"s_setprio {post_prio}")
    k.e("s_branch L_kb_e4")
    k.label("L_kb_pf")
    k.vm = []; k.lg = []
    k.e("v_and_b32 v1, 63, v0", "v_lshrrev_b32 v10, 6, v0", "s_nop 0", "v_readfirstlane_b32 s24, v10", "s_sub_u32 s3, s2, 480")
    k.stamp(0); k.stamp(1); k.stamp(2); k.stamp(3); k.stamp(4)
    e4.setup()
    for s in range(c.DEPTH): e4.issueW(s)
    if post_prio is not None: k.e(f"s_setprio {post_prio}")
    k.label("L_kb_e4")
    k.vm = [(("W", s), False) for s in range(c.DEPTH) for _ in range(2)] + [("flag", True)]
    k.lg = []
    e4.e4_prio = e4_prio; e4.post_prio = post_prio
    e4.body(st=(5, 6))
    k.wait_vm_all()
    k.stamp(7); k.stamp_out(8, 0x40000); k.wait_vm_all()
    k.label(f"L_end_{k.name}")
    k.e("s_endpgm")
    fb()
    k.emit_tails()
    return k


def gemm2(k, nunits, mfmas, reads, dmas, vm_need, fill0=None, rper=4, dper=1, hooks=None, pre_hooks=None, first_wait=None):
    def tagof(g, name): return ("fr", g, name)
    for u in range(nunits):
        g0, g1 = 2*u, 2*u + 1
        k.wait_vm(*vm_need(u))
        k.wait_lg_all()
        k.e("s_barrier")
        if pre_hooks and u in pre_hooks: pre_hooks[u]()
        R0 = list(reads(g0, 0)); R1 = list(reads(g1, 1))
        prev = list(mfmas(g0 - 1, 1)) if u > 0 else []
        cur = list(mfmas(g0, 0))
        D = list(dmas(u))
        F = list(fill0(u)) if fill0 else []
        rel = {}
        for i, (t, used) in enumerate(prev):
            for nm in used: rel[nm] = i
        def emit_reads(i, budget):
            n = 0
            while n < budget and R0:
                t, nm = R0.pop(0); k.ds(t, tagof(g0, nm)); n += 1
            j = 0
            while n < budget and j < len(R1):
                t, nm = R1[j]
                if rel.get(nm, -1) <= i:
                    k.ds(t, tagof(g1, nm)); R1.pop(j); n += 1
                else: j += 1
        def emit_dma():
            for (txt, tag, isvm) in D.pop(0):
                if isvm: k.vmem(txt, tag)
                else: k.e(txt)
        if not prev:
            emit_reads(-1, 1000)
        for i, (t, used) in enumerate(prev):
            k.e(t)
            emit_reads(i, rper)
            for _ in range(dper):
                if D: emit_dma()
        emit_reads(10**6, 1000)
        ngap = len(cur)
        per = -(-len(D) // ngap) if D else 0
        fper = -(-len(F) // ngap) if F else 0
        have = set()
        for j, (t, used) in enumerate(cur):
            k.wait_lg(*[tagof(g0, nm) for nm in used])
            have |= set(used)
            k.e(t)
            for _ in range(per):
                if D: emit_dma()
            n = 0; i = 0
            lim = fper + 1 if j < ngap - 1 else 10**6
            while n < lim and i < len(F):
                if F[i][1] in have:
                    k.e(F[i][0]); F.pop(i); n += 1
                else: i += 1
        assert not D and not F
        if hooks and u in hooks:
            for h in hooks[u]: h()
    k.wait_lg_all()
    for (t, used) in mfmas(2*nunits - 1, 1): k.e(t)

ONES = 42
DBG1 = {}

MF16 = "v_mfma_f32_16x16x32_bf16"
def sel_init(k, SEL, tmp):
    k.e(f"v_lshrrev_b32 v{tmp}, 4, v1", f"v_and_b32 v{tmp}, 1, v{tmp}", f"v_and_b32 v{SEL}, 15, v1", f"v_cmp_eq_u32 vcc, v{tmp}, v{SEL}",
        f"v_mov_b32 v{SEL+1}, 0x3f803f80", f"v_mov_b32 v{SEL+2}, 0", "s_nop 0", f"v_cndmask_b32 v{SEL}, v{SEL+2}, v{SEL+1}, vcc",
        f"v_mov_b32 v{SEL+1}, v{SEL}", f"v_mov_b32 v{SEL+2}, v{SEL}", f"v_mov_b32 v{SEL+3}, v{SEL}")

def sel_write(k, items, s_base, va, vt):
    k.e(f"v_and_b32 v{va}, 1, v1", f"v_lshlrev_b32 v{va}, 6, v{va}", f"v_lshrrev_b32 v{vt}, 4, v1", f"v_lshl_add_u32 v{va}, v{vt}, 4, v{va}", f"v_add_u32 v{va}, s{s_base}, v{va}",
        f"v_and_b32 v{vt}, 14, v1", f"v_cmp_eq_u32 vcc, 0, v{vt}", "s_nop 4", "s_mov_b64 exec, vcc")
    for (a, off) in items: k.ds(f"ds_write_b128 v{va}, v[{a}:{a+3}] offset:{off}")
    k.e("s_mov_b64 exec, -1")

def half_sum(k, regs, tmps):
    for r, t in zip(regs, tmps): k.e(f"v_mov_b32 v{t}, v{r}")
    k.e("s_nop 1")
    for r, t in zip(regs, tmps): k.e(f"v_permlane32_swap_b32 v{r}, v{t}")
    k.e("s_nop 1")
    for r, t in zip(regs, tmps): k.e(f"v_add_f32 v{r}, v{r}, v{t}")

def row_stats(k, sx, sxx, mean, rstd, tmp):
    k.e(f"v_mul_f32 v{mean}, 0x3b000000, v{sx}", f"v_mul_f32 v{tmp}, 0x3b000000, v{sxx}",
        f"v_fma_f32 v{tmp}, -v{mean}, v{mean}, v{tmp}", f"v_max_f32 v{tmp}, 0, v{tmp}", f"v_add_f32 v{tmp}, 0x3727c5ac, v{tmp}",
        f"v_rsq_f32 v{rstd}, v{tmp}")

def e1s_body(k, SX=8, SW=12, SWS=20, sc1="", hooks=None, pre_hooks=None, rot=False, pre_store=None, mst=False, post_dma=None, rper=5, dper=2):
    E1_XB = 49152
    k.e("v_and_b32 v1, 63, v0", "v_lshrrev_b32 v10, 6, v0", "s_nop 0", "v_readfirstlane_b32 s24, v10")
    k.e("v_and_b32 v11, 31, v1", "v_lshrrev_b32 v12, 5, v1")
    k.e("s_and_b32 s27, s24, 1", "s_lshr_b32 s28, s24, 1")
    k.e("v_lshrrev_b32 v13, 3, v1", "v_lshrrev_b32 v14, 4, v1", "v_and_b32 v15, 7, v1",
        "v_xor_b32 v7, v15, v14", "v_lshlrev_b32 v7, 4, v7", "v_lshl_add_u32 v7, v13, 10, v7",
        "s_lshl_b32 s29, s25, 16", "s_lshl_b32 s30, s24, 14", "s_add_u32 s29, s29, s30",
        "v_add_u32 v7, s29, v7", "v_xor_b32 v8, 64, v7", "v_add_u32 v8, 8192, v8")
    k.e("v_and_b32 v14, 1, v14", "v_lshlrev_b32 v14, 2, v14", "v_xor_b32 v9, v15, v14", "v_lshlrev_b32 v9, 4, v9",
        "s_lshl_b32 s30, s24, 3", "v_add_u32 v13, s30, v13", "v_mul_u32_u24 v13, 3072, v13", "v_add_u32 v9, v9, v13",
        "s_lshl_b32 s30, s26, 7", "v_add_u32 v9, s30, v9")
    k.e(f"s_lshl_b32 s31, s24, 11", f"s_add_u32 s31, s31, {E1_XB}", "s_lshl_b32 s32, s24, 10")
    def xd(v):
        if rot:
            return [dmab(SX, 7, 31, (v % 3)*8192, 33, 51, 0, ("X", v)),
                    dmab(SX, 8, 31, (v % 3)*8192 + 1024, 33, 51, 0, ("X", v), post=["s_add_u32 s51, s51, 128", "s_and_b32 s51, s51, 1023"])]
        return [dma(SX, 7, 31, (v % 3)*8192, 33, v*128, ("X", v)), dma(SX, 8, 31, (v % 3)*8192 + 1024, 33, v*128, ("X", v))]
    def wd(u):
        if rot:
            return [dmab(SW, 9, 32, (u % 4)*12288 + p*4096, 33, 50, 0, ("W", u), imm=1024*p, post=(rot_adv(50, 32*3072, 512*3072, 52) if p == 2 else ())) for p in range(3)]
        return [dma(SW, 9, 32, (u % 4)*12288 + p*4096, 33, u*32*3072, ("W", u), imm=1024*p) for p in range(3)]
    if rot:
        k.e("s_lshl_b32 s51, s53, 7", f"s_mul_i32 s50, s53, {64*3072}")
    emit_groups(k, xd(0) + wd(0) + wd(1) + xd(1) + wd(2))
    if post_dma: post_dma()
    k.e("s_xor_b32 s34, s27, s28")
    k.e("s_lshl_b32 s36, s27, 5", "v_add_u32 v13, s36, v11", "v_bfe_u32 v14, v13, 1, 3", "v_xor_b32 v14, v14, v12",
        "v_lshlrev_b32 v14, 4, v14", "v_lshl_add_u32 v2, v13, 7, v14", f"v_add_u32 v2, {E1_XB}, v2",
        "s_lshl_b32 s35, s34, 5", "v_xor_b32 v2, s35, v2",
        "v_xor_b32 v3, 32, v2", "v_xor_b32 v4, 64, v2", "v_xor_b32 v5, 96, v2")
    k.e("v_bfe_u32 v13, v1, 2, 2", "v_lshl_add_u32 v13, v12, 3, v13", "v_lshlrev_b32 v6, 7, v13",
        "v_bfe_u32 v13, v1, 4, 1", "v_lshlrev_b32 v13, 1, v13", "v_bfe_u32 v14, v1, 1, 1", "v_add_u32 v13, v13, v14",
        "s_lshl_b32 s36, s28, 2", "v_add_u32 v13, s36, v13", "v_bfe_u32 v14, v1, 3, 1", "v_lshlrev_b32 v14, 2, v14",
        "v_xor_b32 v13, v13, v14", "v_lshl_add_u32 v6, v13, 4, v6", "v_and_b32 v14, 1, v1", "v_lshl_add_u32 v6, v14, 3, v6",
        "s_lshl_b32 s35, s34, 11", "v_xor_b32 v10, 2048, v6", "v_xor_b32 v10, s35, v10", "v_xor_b32 v6, s35, v6")
    k.e(f"s_mov_b32 s{ONES}, 0x3f803f80")
    ST = 48
    for i in range(5): k.e(f"v_mov_b32 v{ST+i}, 0")
    SEL = 176; MA = 180
    if mst: sel_init(k, SEL, 13)
    ACC = 64
    def fr(st): return 16 + 16*st
    def reads(g, st):
        b = fr(st); u = g >> 1; v = g >> 2
        out = [(f"ds_read_b128 v[{b}:{b+3}], v{2 + (g & 3)} offset:{(v % 3)*8192}", "X")]
        av = 6 if (g & 1) == 0 else 10
        for p in range(3):
            o = (u % 4)*12288 + p*4096
            out.append((f"ds_read_b64_tr_b16 v[{b+4+4*p}:{b+5+4*p}], v{av} offset:{o}", f"W{p}"))
            out.append((f"ds_read_b64_tr_b16 v[{b+6+4*p}:{b+7+4*p}], v{av} offset:{o+512}", f"W{p}"))
        return out
    def mfmas(g, st):
        out = []
        b_x = fr(st); b_w = b_x + 4
        for p in range(3):
            a = ACC + 16*p
            w = f"v[{b_w+4*p}:{b_w+4*p+3}]"; x = f"v[{b_x}:{b_x+3}]"
            A, B = (w, x) if p < 2 else (x, w)
            c = "0" if g == 0 else f"v[{a}:{a+15}]"
            out.append((f"{MF} v[{a}:{a+15}], {A}, {B}, {c}", ["X", f"W{p}"]))
        if mst == 2 and (g & 1):
            def sm(j, src):
                a = MA + 4*j
                return f"{MF16} v[{a}:{a+3}], v[{src}:{src+3}], v[{SEL}:{SEL+3}], " + ("0" if g == 1 else f"v[{a}:{a+3}]")
            def sq(i):
                t = 196 + 2*(i & 1)
                return (f"\nv_lshlrev_b32 v{t}, 16, v{b_x+i}\nv_and_b32 v{t+1}, 0xffff0000, v{b_x+i}\nv_pk_fma_f32 v[{ST}:{ST+1}], v[{t}:{t+1}], v[{t}:{t+1}], v[{ST}:{ST+1}]")
            out = [(sm(1, b_w), ["W0"]), (out[0][0] + sq(0), ["X", "W0"]), (sm(2, b_w + 4), ["W1"]), (out[1][0] + sq(1), ["X", "W1"]),
                   (sm(3, b_w + 8), ["W2"]), (out[2][0] + sq(2), ["X", "W2"]), (sm(0, b_x) + sq(3), ["X"])]
        return out
    def fill0(u):
        b = fr(0); out = []
        if mst:
            def sm(j, src, nm):
                a = MA + 4*j
                return (f"{MF16} v[{a}:{a+3}], v[{src}:{src+3}], v[{SEL}:{SEL+3}], " + ("0" if u == 0 else f"v[{a}:{a+3}]"), nm)
            d2 = [(f"v_dot2_f32_bf16 v{ST+1}, v{b+i}, v{b+i}, v{ST+1}", "X") for i in range(4)]
            return [sm(0, b, "X"), d2[0], sm(1, b+4, "W0"), d2[1], sm(2, b+8, "W1"), d2[2], sm(3, b+12, "W2"), d2[3]]
        for i in range(4):
            out.append((f"v_dot2_f32_bf16 v{ST}, v{b+i}, s{ONES}, v{ST}", "X"))
            out.append((f"v_dot2_f32_bf16 v{ST+1}, v{b+i}, v{b+i}, v{ST+1}", "X"))
            for p in range(3):
                out.append((f"v_dot2_f32_bf16 v{ST+2+p}, v{b+4+4*p+i}, s{ONES}, v{ST+2+p}", f"W{p}"))
        return out
    def dmas(u):
        out = []
        if u + 3 < 16: out += wd(u + 3)
        if u % 2 == 0 and u//2 + 2 < 8: out += xd(u//2 + 2)
        return out
    k.stamp(1)
    if DBG1.get("fine"): pre_hooks = {0: lambda: k.stamp(2), 2: lambda: k.stamp(3), 4: lambda: k.stamp(4), 8: lambda: k.stamp(5)}
    gemm2(k, 16, mfmas, reads, dmas, lambda u: [("W", u), ("X", u >> 1)], fill0=(None if (DBG1.get("nostat1") or mst == 2) else fill0), rper=rper, dper=dper, hooks=hooks, pre_hooks=pre_hooks)
    k.stamp(6 if DBG1.get("fine") else 2)
    if mst == 2: k.e(f"v_add_f32 v{ST+1}, v{ST}, v{ST+1}")
    k.e("s_nop 2")
    if mst: half_sum(k, [ST+1], [53])
    else: half_sum(k, [ST+i for i in range(5)], [53, 54, 55, 56, 57])
    k.e("s_barrier", "s_mul_i32 s36, s24, 640", "v_lshlrev_b32 v13, 2, v11", "v_add_u32 v14, s36, v13")
    if mst:
        k.ds(f"ds_write_b32 v14, v{ST+1} offset:128")
        sel_write(k, [(MA, 0), (MA+4, 256), (MA+8, 384), (MA+12, 512)], 36, 15, 16)
    else:
        for i in range(5): k.ds(f"ds_write_b32 v14, v{ST+i} offset:{128*i}")
    k.e("s_xor_b32 s37, s24, 2", "s_mul_i32 s37, s37, 640", "v_add_u32 v15, s37, v13", "s_xor_b32 s37, s24, 1", "s_mul_i32 s37, s37, 640", "v_add_u32 v16, s37, v13")
    k.wait_lg_all()
    k.e("s_barrier")
    k.ds("ds_read_b32 v53, v15"); k.ds("ds_read_b32 v54, v15 offset:128")
    for p in range(3): k.ds(f"ds_read_b32 v{55+p}, v16 offset:{256+128*p}")
    if mst:
        k.ds(f"ds_read_b32 v{ST}, v14")
        for p in range(3): k.ds(f"ds_read_b32 v{ST+2+p}, v14 offset:{256+128*p}")
    k.e("v_lshlrev_b32 v10, 4, v1",
        "s_lshl_b32 s36, s26, 2", "s_lshl_b32 s37, s28, 1", "s_add_u32 s36, s36, s37", "s_lshl_b32 s36, s36, 16",
        "s_lshl_b32 s37, s25, 1", "s_add_u32 s37, s37, s27", "s_lshl_b32 s37, s37, 10", "s_add_u32 s36, s36, s37")
    k.e("v_lshrrev_b32 v17, 4, v11", "v_lshlrev_b32 v17, 16, v17", "v_lshl_add_u32 v17, v12, 8, v17", "v_and_b32 v18, 15, v11", "v_lshl_add_u32 v17, v18, 4, v17")
    k.wait_lg_all()
    for i in range(5): k.e(f"v_add_f32 v{ST+i}, v{ST+i}, v{53+i}")
    if pre_store: pre_store()
    row_stats(k, ST, ST+1, 58, 59, 60)
    k.e("s_mul_i32 s37, s24, 640", "s_add_u32 s37, s37, 2560", "v_add_u32 v14, s37, v13", "v_sub_f32 v58, 0, v58")
    k.ds(f"ds_write_b32 v14, v{ST+2}"); k.ds(f"ds_write_b32 v14, v{ST+3} offset:128")
    k.ds("ds_write_b32 v14, v58 offset:256"); k.ds("ds_write_b32 v14, v59 offset:384")
    k.e("v_lshlrev_b32 v15, 4, v12", "v_add_u32 v15, s37, v15", f"v_mul_f32 v60, 0x{f2u(0.25*LOG2E):08x}, v59")
    k.wait_lg_all()
    B0 = 112
    for i in range(4):
        for gq in range(4): k.ds(f"ds_read_b128 v[{B0+16*i+4*gq}:{B0+16*i+4*gq+3}], v15 offset:{128*i + 32*gq}", ("bc", i))
    for p, (scale, base) in enumerate(((60, WS_QF), (59, WS_KF))):
        a = ACC + 16*p
        k.wait_lg(("bc", p))
        for r in range(16): k.e(f"v_fmac_f32 v{a+r}, v58, v{B0+16*p+r}")
        for r in range(16): k.e(f"v_mul_f32 v{a+r}, v{a+r}, v{scale}")
        for j in range(2):
            d = 20 + 8*p + 4*j
            for i in range(4): k.e(f"v_cvt_pk_bf16_f32 v{d+i}, v{a+8*j+2*i}, v{a+8*j+2*i+1}")
            k.e(f"s_add_u32 s37, s36, 0x{base + j*65536:x}")
            k.vmem(f"buffer_store_dwordx4 v[{d}:{d+3}], v10, s[{SWS}:{SWS+3}], s37 offen {sc1}", "st")
    a = ACC + 32
    k.wait_lg(("bc", 3))
    for r in range(16): k.e(f"v_fmac_f32 v{a+r}, v{ST+4}, v{B0+32+r}")
    for r in range(16): k.e(f"v_mul_f32 v{a+r}, v{a+r}, v{B0+48+r}")
    k.e(f"s_add_u32 s37, s36, 0x{WS_VF:x}")
    for j in range(2):
        d = 36 + 4*j
        for i in range(4): k.e(f"v_cvt_pk_bf16_f32 v{d+i}, v{a+8*j+2*i}, v{a+8*j+2*i+1}")
        k.vmem(f"buffer_store_dwordx4 v[{d}:{d+3}], v17, s[{SWS}:{SWS+3}], s37 offen offset:{512*j} {sc1}", "st")

def e3s_body(k, SX=8, SG=12, SU=16, SWS=20, st_sc1="", epi_prio=None, post_loop=None, hooks=None, pre_hooks=None, rot=False, outb=48, pre_dma=None, mst=False, rper=4, dper=1):
    XB = 49152
    k.e("v_and_b32 v1, 63, v0", "v_lshrrev_b32 v10, 6, v0", "s_nop 0", "v_readfirstlane_b32 s24, v10")
    k.e("v_and_b32 v11, 31, v1", "v_lshrrev_b32 v12, 5, v1")
    k.e("s_and_b32 s27, s24, 1", "s_lshr_b32 s28, s24, 1")
    k.e("v_lshrrev_b32 v13, 3, v1", "v_lshrrev_b32 v14, 4, v1", "v_and_b32 v15, 7, v1",
        "v_xor_b32 v7, v15, v14", "v_lshlrev_b32 v7, 4, v7", "v_lshl_add_u32 v7, v13, 10, v7",
        "s_lshl_b32 s29, s25, 17", "s_lshl_b32 s30, s24, 15", "s_add_u32 s29, s29, s30",
        "v_add_u32 v7, s29, v7", "v_xor_b32 v8, 64, v7", "v_add_u32 v8, 8192, v8")
    k.e("v_lshlrev_b32 v13, 2, v14", "v_and_b32 v15, 15, v1", "v_xor_b32 v9, v15, v13", "v_lshlrev_b32 v9, 4, v9",
        "s_lshl_b32 s30, s24, 3", "v_add_u32 v13, s30, v14", "v_mul_u32_u24 v13, 3584, v13", "v_add_u32 v9, v9, v13",
        "s_lshl_b32 s30, s26, 8", "v_add_u32 v9, s30, v9")
    k.e(f"s_lshl_b32 s31, s24, 12", f"s_add_u32 s31, s31, {XB}", "s_lshl_b32 s32, s24, 11")
    def xd(v):
        if rot:
            return [dmab(SX, 7 + (i & 1), 31, (v % 2)*16384 + i*1024, 33, 51, (i >> 1)*16384, ("X", v),
                         post=(["s_add_u32 s51, s51, 128", "s_and_b32 s51, s51, 1023"] if i == 3 else ())) for i in range(4)]
        return [dma(SX, 7 + (i & 1), 31, (v % 2)*16384 + i*1024, 33, v*128 + (i >> 1)*16384, ("X", v)) for i in range(4)]
    def wd(u):
        out = []
        for i in range(2):
            for p, sr in enumerate((SG, SU)):
                if rot:
                    out.append(dmab(sr, 9, 32, (u % 3)*16384 + p*8192 + i*1024, 33, 50, 4*i*3584, ("W", u),
                                    post=(rot_adv(50, 32*3584, 512*3584, 52) if (i, p) == (1, 1) else ())))
                else:
                    out.append(dma(sr, 9, 32, (u % 3)*16384 + p*8192 + i*1024, 33, (u*32 + 4*i)*3584, ("W", u)))
        return out
    if rot:
        k.e("s_lshl_b32 s51, s53, 7", f"s_mul_i32 s50, s53, {64*3584}")
    if pre_dma: pre_dma()
    if DBG1.get("wfirst"): emit_groups(k, wd(0) + xd(0) + wd(1))
    else: emit_groups(k, xd(0) + wd(0) + wd(1))
    if DBG1.get("touch3"):
        Lu = k.newlabel("tu"); Lx = k.newlabel("tx")
        k.e("v_lshrrev_b32 v66, 1, v1", "s_lshl_b32 s36, s28, 5", "v_add_u32 v66, s36, v66", "v_mul_u32_u24 v66, 3584, v66", "v_and_b32 v67, 1, v1",
            "v_lshl_add_u32 v66, v67, 7, v66", "s_lshl_b32 s36, s26, 8", "v_add_u32 v66, s36, v66", "s_cmp_eq_u32 s27, 0", f"s_cbranch_scc0 {Lu}")
        k.vmem(f"buffer_load_dword v63, v66, s[{SG}:{SG+3}], s50 offen", "touch")
        k.e(f"s_branch {Lx}")
        k.label(Lu)
        k.e(f"buffer_load_dword v63, v66, s[{SU}:{SU+3}], s50 offen")
        k.label(Lx)
    k.e("s_xor_b32 s34, s27, s28")
    k.e("s_lshl_b32 s36, s27, 6", "v_add_u32 v13, s36, v11", "v_bfe_u32 v14, v13, 1, 3", "v_xor_b32 v14, v14, v12",
        "v_lshlrev_b32 v14, 4, v14", "v_lshl_add_u32 v2, v13, 7, v14", f"v_add_u32 v2, {XB}, v2",
        "s_lshl_b32 s35, s34, 5", "v_xor_b32 v2, s35, v2",
        "v_xor_b32 v3, 32, v2", "v_xor_b32 v4, 64, v2", "v_xor_b32 v5, 96, v2")
    k.e("v_bfe_u32 v15, v1, 2, 2", "v_lshl_add_u32 v13, v12, 3, v15", "v_lshlrev_b32 v6, 8, v13",
        "v_bfe_u32 v13, v1, 4, 1", "v_lshlrev_b32 v13, 1, v13", "v_bfe_u32 v14, v1, 1, 1", "v_add_u32 v13, v13, v14",
        "s_lshl_b32 s36, s28, 3", "v_add_u32 v13, s36, v13", "v_lshlrev_b32 v15, 2, v15",
        "v_xor_b32 v13, v13, v15", "v_lshl_add_u32 v6, v13, 4, v6", "v_and_b32 v14, 1, v1", "v_lshl_add_u32 v6, v14, 3, v6",
        "s_lshl_b32 s35, s34, 12", "v_xor_b32 v6, s35, v6",
        "v_xor_b32 v10, 64, v6", "v_xor_b32 v72, 4096, v6", "v_xor_b32 v73, 4096, v10")
    k.e(f"s_mov_b32 s{ONES}, 0x3f803f80")
    ST = 64
    for i in range(8): k.e(f"v_mov_b32 v{ST+i}, 0")
    SEL = 76; MA = 80
    if mst: sel_init(k, SEL, 13)
    ACC = 128
    def fr(st): return 16 + 24*st
    def acc(part, b, tb): return ACC + 16*(part*4 + b*2 + tb)
    def reads(g, st):
        b0 = fr(st); u = g >> 1; v = g >> 2
        def wr(part, b):
            d = b0 + 8 + 8*part + 4*b
            o = (u % 3)*16384 + part*8192
            av = ((6, 10), (72, 73))[g & 1][b]
            return [(f"ds_read_b64_tr_b16 v[{d}:{d+1}], v{av} offset:{o}", f"W{part}{b}"),
                    (f"ds_read_b64_tr_b16 v[{d+2}:{d+3}], v{av} offset:{o+1024}", f"W{part}{b}")]
        def xr(tb): return [(f"ds_read_b128 v[{b0+4*tb}:{b0+4*tb+3}], v{2 + (g & 3)} offset:{(v % 2)*16384 + tb*4096}", f"X{tb}")]
        return xr(0) + wr(0, 0) + xr(1) + wr(0, 1) + wr(1, 0) + wr(1, 1)
    def mfmas(g, st):
        out = []
        b0 = fr(st)
        for part in range(2):
            for b in range(2):
                for tb in range(2):
                    a = acc(part, b, tb); w = b0 + 8 + 8*part + 4*b; x = b0 + 4*tb
                    c = "0" if g == 0 else f"v[{a}:{a+15}]"
                    out.append((f"{MF} v[{a}:{a+15}], v[{w}:{w+3}], v[{x}:{x+3}], {c}", [f"X{tb}", f"W{part}{b}"]))
        if mst == 2 and (g & 1):
            def sm(j, src):
                a = MA + 4*j
                return f"{MF16} v[{a}:{a+3}], v[{src}:{src+3}], v[{SEL}:{SEL+3}], " + ("0" if g == 1 else f"v[{a}:{a+3}]")
            def sq(n):
                tb, i = n & 1, n >> 1
                t = 108 + 2*(n & 1); r = b0 + 4*tb + i; a = ST + 2*tb
                return (f"\nv_lshlrev_b32 v{t}, 16, v{r}\nv_and_b32 v{t+1}, 0xffff0000, v{r}\nv_pk_fma_f32 v[{a}:{a+1}], v[{t}:{t+1}], v[{t}:{t+1}], v[{a}:{a+1}]")
            o2 = []
            for j in range(4):
                part, b = j >> 1, j & 1
                o2.append((sm(2 + j, b0 + 8 + 8*part + 4*b), [f"W{part}{b}"]))
                for tb in range(2):
                    t, used = out[2*j + tb]
                    o2.append((t + sq(2*j + tb), used + ["X0", "X1"] if False else used + [f"X{(2*j+tb) & 1}"]))
            o2.append((sm(0, b0), ["X0"])); o2.append((sm(1, b0 + 4), ["X1"]))
            out = o2
        return out
    def fill0(u):
        b0 = fr(0); out = []
        if mst:
            def sm(j, src, nm):
                a = MA + 4*j
                return (f"{MF16} v[{a}:{a+3}], v[{src}:{src+3}], v[{SEL}:{SEL+3}], " + ("0" if u == 0 else f"v[{a}:{a+3}]"), nm)
            d2 = [(f"v_dot2_f32_bf16 v{ST+2*tb+1}, v{b0+4*tb+i}, v{b0+4*tb+i}, v{ST+2*tb+1}", f"X{tb}") for i in range(4) for tb in range(2)]
            sms = [sm(0, b0, "X0"), sm(1, b0+4, "X1")] + [sm(2 + 2*part + b, b0 + 8 + 8*part + 4*b, f"W{part}{b}") for part in range(2) for b in range(2)]
            for j in range(8):
                if j < 6: out.append(sms[j])
                out.append(d2[j])
            return out
        for i in range(4):
            for tb in range(2):
                x = b0 + 4*tb + i
                out.append((f"v_dot2_f32_bf16 v{ST+2*tb}, v{x}, s{ONES}, v{ST+2*tb}", f"X{tb}"))
                out.append((f"v_dot2_f32_bf16 v{ST+2*tb+1}, v{x}, v{x}, v{ST+2*tb+1}", f"X{tb}"))
            for part in range(2):
                for b in range(2):
                    w = b0 + 8 + 8*part + 4*b + i
                    out.append((f"v_dot2_f32_bf16 v{ST+4+2*part+b}, v{w}, s{ONES}, v{ST+4+2*part+b}", f"W{part}{b}"))
        return out
    def dmas(u):
        out = []
        if u + 2 < 16: out += wd(u + 2)
        if u % 2 == 0 and u//2 + 1 < 8: out += xd(u//2 + 1)
        return out
    k.stamp(1)
    if DBG1.get("fine"): pre_hooks = {0: lambda: k.stamp(2), 2: lambda: k.stamp(3), 4: lambda: k.stamp(4), 8: lambda: k.stamp(5)}
    gemm2(k, 16, mfmas, reads, dmas, lambda u: [("W", u), ("X", u >> 1)], fill0=(None if (DBG1.get("nostat3") or mst == 2) else fill0), rper=rper, dper=dper, hooks=hooks, pre_hooks=pre_hooks)
    k.stamp(6 if DBG1.get("fine") else 2)
    if epi_prio is not None: k.e(f"s_setprio {epi_prio}")
    if mst == 2: k.e(f"v_add_f32 v{ST+1}, v{ST}, v{ST+1}", f"v_add_f32 v{ST+3}, v{ST+2}, v{ST+3}")
    k.e("s_nop 2")
    if mst: half_sum(k, [ST+1, ST+3], [104, 105])
    else: half_sum(k, [ST+i for i in range(8)], [76+i for i in range(8)])
    SBASE = 73728
    k.e("s_barrier", "s_lshl_b32 s36, s24, 10", "v_lshlrev_b32 v13, 2, v11", "v_add_u32 v14, s36, v13", f"v_add_u32 v14, {SBASE}, v14")
    if mst:
        k.ds(f"ds_write_b32 v14, v{ST+1} offset:128"); k.ds(f"ds_write_b32 v14, v{ST+3} offset:384")
        k.e(f"s_add_u32 s36, s36, {SBASE}")
        sel_write(k, [(MA, 0), (MA+4, 256)] + [(MA+8+4*i, 512+128*i) for i in range(4)], 36, 15, 16)
    else:
        for i in range(8): k.ds(f"ds_write_b32 v14, v{ST+i} offset:{128*i}")
    k.e("v_xor_b32 v15, 2048, v14", "v_xor_b32 v16, 1024, v14")
    k.wait_lg_all()
    k.e("s_barrier")
    for i in range(4): k.ds(f"ds_read_b32 v{76+i}, v15 offset:{128*i}")
    for i in range(4, 8): k.ds(f"ds_read_b32 v{76+i}, v16 offset:{128*i}")
    if mst:
        for i in (0, 2, 4, 5, 6, 7): k.ds(f"ds_read_b32 v{ST+i}, v14 offset:{128*i}")
    if post_loop: post_loop()
    k.wait_lg_all()
    for i in range(8): k.e(f"v_add_f32 v{ST+i}, v{ST+i}, v{76+i}")
    for tb in range(2):
        row_stats(k, ST+2*tb, ST+2*tb+1, 84+tb, 86+tb, 88+tb)
    k.e("s_nop 0")
    for tb in range(2):
        k.e(f"v_mul_f32 v{88+tb}, v{88+tb}, v{86+tb}",
            f"v_mul_f32 v{86+tb}, 0x{f2u(-LOG2E):08x}, v{86+tb}", f"v_sub_f32 v{84+tb}, 0, v{84+tb}")
    k.e("s_lshl_b32 s36, s24, 9", f"s_add_u32 s36, s36, {SBASE + 4096}", "v_add_u32 v14, s36, v13", "v_lshlrev_b32 v15, 4, v12", "v_add_u32 v15, s36, v15")
    for i in range(4): k.ds(f"ds_write_b32 v14, v{ST+4+i} offset:{128*i}")
    k.wait_lg_all()
    CB = 16
    k.e("v_lshlrev_b32 v10, 4, v1",
        "s_lshl_b32 s36, s25, 2", "s_lshl_b32 s37, s27, 1", "s_add_u32 s36, s36, s37", "s_mul_i32 s36, s36, 112",
        "s_lshl_b32 s37, s26, 3", "s_add_u32 s36, s36, s37", "s_lshl_b32 s37, s28, 2", "s_add_u32 s36, s36, s37",
        "s_lshl_b32 s36, s36, 10", f"s_add_u32 s36, s36, 0x{WS_HF:x}")
    CR = [92, 16]
    for b in range(2):
        for part in range(2):
            for gq in range(4):
                d = CR[b] + 16*part + 4*gq
                k.ds(f"ds_read_b128 v[{d}:{d+3}], v15 offset:{128*(2*part + b) + 32*gq}", ("bc", b))
    n = 0
    for b in range(2):
        k.wait_lg(("bc", b))
        for tb in range(2):
            g = acc(0, b, tb); uu = acc(1, b, tb)
            for r in range(16): k.e(f"v_fmac_f32 v{g+r}, v{84+tb}, v{CR[b]+r}")
            for r in range(16): k.e(f"v_mul_f32 v{g+r}, v{g+r}, v{86+tb}")
            for r in range(16): k.e(f"v_exp_f32 v{g+r}, v{g+r}")
            for r in range(16): k.e(f"v_fmac_f32 v{uu+r}, v{84+tb}, v{CR[b]+16+r}")
            for r in range(16): k.e(f"v_fma_f32 v{g+r}, v{g+r}, v{88+tb}, v{88+tb}")
            for r in range(16): k.e(f"v_rcp_f32 v{g+r}, v{g+r}")
            k.e("s_nop 0")
            for r in range(16): k.e(f"v_mul_f32 v{g+r}, v{g+r}, v{uu+r}")
            for j in range(2):
                d = outb + 4*(n % 4); n += 1
                for i in range(4): k.e(f"v_cvt_pk_bf16_f32 v{d+i}, v{g+8*j+2*i}, v{g+8*j+2*i+1}")
                k.e(f"s_add_u32 s37, s36, {(tb*112 + b*2 + j)*1024}")
                k.vmem(f"buffer_store_dwordx4 v[{d}:{d+3}], v10, s[{SWS}:{SWS+3}], s37 offen {st_sc1}", "st")

def prep_role(k, SWS, s_idx, nwg, flags=True):
    per = (1 << 21) // nwg
    k.e("v_mov_b32 v40, -1", "v_mov_b32 v41, -1", "v_mov_b32 v42, -1", "v_mov_b32 v43, -1", "v_lshlrev_b32 v48, 4, v0",
        f"s_mul_i32 s34, s{s_idx}, {per}", f"s_add_u32 s34, s34, 0x{WS_OF:x}")
    for i in range(per // 4096):
        k.vmem(f"buffer_store_dwordx4 v[40:43], v48, s[{SWS}:{SWS+3}], s34 offen", "prep")
        k.e("s_add_u32 s34, s34, 4096")
    if flags:
        Lp = k.newlabel("prep")
        k.e("v_mov_b32 v44, 0", "v_mov_b32 v45, 0", "v_mov_b32 v46, 0", "v_mov_b32 v47, 0", f"s_mov_b32 s34, 0x{FLG_H:x}",
            f"s_lshl_b32 s35, s{s_idx}, 12", "s_add_u32 s34, s34, s35", f"s_cmp_ge_u32 s{s_idx}, 2", f"s_cbranch_scc1 {Lp}")
        k.vmem(f"buffer_store_dwordx4 v[44:47], v48, s[{SWS}:{SWS+3}], s34 offen", "prep", opt=True)
        k.label(Lp)

def k1s_kernel(name="k1_proj_kernel", map1=1, prio_a=None, prio_g=None, rot=0, **kw):
    k = KV(name, nvgpr=256)
    k.e("s_cmp_ge_u32 s2, 512", f"s_cbranch_scc1 L_end_{k.name}")
    fx = srd(k, 8, 0, SZ_X) + srd(k, 20, 72, WS_SIZE2)
    k.e("s_cmp_ge_u32 s2, 256", "s_cbranch_scc1 L_k1_g")
    fx1 = srd(k, 12, 8, SZ_WQKV)
    k.e("s_waitcnt lgkmcnt(0)"); k.e(*(fx + fx1))
    if prio_a is not None: k.e(f"s_setprio {prio_a}")
    if map1 == 0: k.e("s_and_b32 s26, s2, 7", "s_lshr_b32 s25, s2, 3")
    elif map1 == 3:
        k.e("s_and_b32 s3, s2, 7", "s_lshr_b32 s4, s2, 3", "s_and_b32 s5, s3, 1", "s_lshl_b32 s26, s5, 2", "s_and_b32 s5, s4, 3", "s_add_u32 s26, s26, s5",
            "s_lshr_b32 s25, s3, 1", "s_lshl_b32 s25, s25, 3", "s_lshr_b32 s5, s4, 2", "s_add_u32 s25, s25, s5")
    else: k.e("s_and_b32 s3, s2, 7", "s_lshr_b32 s4, s2, 3", "s_and_b32 s5, s4, 3", "s_lshl_b32 s25, s3, 2", "s_add_u32 s25, s25, s5", "s_lshr_b32 s26, s4, 2")
    if rot:
        if map1 == 3:
            k.e("s_and_b32 s53, s26, 3", "s_lshl_b32 s53, s53, 1", "s_add_u32 s53, s53, s25", "s_and_b32 s53, s53, 7")
        elif map1 == 1:
            k.e("s_and_b32 s53, s25, 3", "s_lshl_b32 s53, s53, 1", "s_add_u32 s53, s53, s26", "s_and_b32 s53, s53, 7")
        else:
            k.e("s_and_b32 s53, s25, 7")
    k.stamp(0)
    e1s_body(k, rot=bool(rot))
    k.wait_vm_all()
    if DBG1.get("fine"): k.stamp(7); k.stamp_out(8, 0)
    else: k.stamp(3); k.stamp_out(4, 0)
    k.wait_vm_all()
    k.e("s_endpgm")
    k.label("L_k1_g")
    k.vm = []; k.lg = []
    k.e("s_cmp_ge_u32 s2, 480", "s_cbranch_scc1 L_k1_pf")
    fx3 = srd(k, 12, 32, SZ_WG) + srd(k, 16, 40, SZ_WG)
    k.e("s_waitcnt lgkmcnt(0)"); k.e(*(fx + fx3))
    if prio_g is not None: k.e(f"s_setprio {prio_g}")
    k.e("s_sub_u32 s3, s2, 256", "s_and_b32 s92, s3, 7", "s_lshr_b32 s93, s3, 3")
    k.e("s_and_b32 s26, s92, 1", "s_mul_i32 s26, s26, 7", "s_lshr_b32 s94, s93, 2", "s_add_u32 s26, s26, s94",
        "s_lshr_b32 s25, s92, 1", "s_lshl_b32 s25, s25, 2", "s_and_b32 s95, s93, 3", "s_add_u32 s25, s25, s95")
    if rot: k.e("s_lshl_b32 s53, s95, 1", "s_add_u32 s53, s53, s94", "s_and_b32 s53, s53, 7")
    k.stamp(0)
    e3s_body(k, rot=bool(rot))
    k.wait_vm_all()
    if DBG1.get("fine"): k.stamp(7); k.stamp_out(8, 0)
    else: k.stamp(3); k.stamp_out(4, 0)
    k.wait_vm_all()
    k.e("s_endpgm")
    k.label("L_k1_pf")
    k.vm = []; k.lg = []
    fxp = srd(k, 12, 48, SZ_WD) + srd(k, 16, 16, SZ_WO)
    k.e("s_waitcnt lgkmcnt(0)"); k.e(*(fx + fxp))
    k.e("s_sub_u32 s3, s2, 480")
    prep_role(k, 20, 3, 32)
    if not DBG1.get("nopf"): prefetch_role(k, [(12, SZ_WD), (16, SZ_WO)], 3, 32)
    k.label(f"L_end_{k.name}")
    k.e("s_endpgm")
    k.emit_tails()
    return k

def k1t_kernel(name="k1_proj_kernel", prio_a=None, prio_g=None, **kw):
    k = KV(name, nvgpr=256)
    k.e("s_cmp_ge_u32 s2, 512", f"s_cbranch_scc1 L_end_{k.name}")
    fx = srd(k, 8, 0, SZ_X) + srd(k, 20, 72, WS_SIZE2)
    k.e("s_cmp_lt_u32 s2, 256", "s_cbranch_scc1 L_k1_g")
    fx1 = srd(k, 12, 8, SZ_WQKV)
    k.e("s_waitcnt lgkmcnt(0)"); k.e(*(fx + fx1))
    if prio_a is not None: k.e(f"s_setprio {prio_a}")
    k.e("s_and_b32 s3, s2, 7", "s_lshr_b32 s4, s2, 3", "s_and_b32 s4, s4, 31", "s_and_b32 s5, s3, 1", "s_lshl_b32 s26, s5, 2", "s_and_b32 s5, s4, 3", "s_add_u32 s26, s26, s5",
        "s_lshr_b32 s25, s3, 1", "s_lshl_b32 s25, s25, 3", "s_lshr_b32 s5, s4, 2", "s_add_u32 s25, s25, s5")
    k.e("s_and_b32 s53, s26, 3", "s_lshl_b32 s53, s53, 1", "s_add_u32 s53, s53, s25", "s_and_b32 s53, s53, 7")
    k.stamp(0)
    e1s_body(k, rot=True)
    k.wait_vm_all()
    if DBG1.get("fine"): k.stamp(7); k.stamp_out(8, 0)
    else: k.stamp(3); k.stamp_out(4, 0)
    k.wait_vm_all()
    k.e("s_endpgm")
    k.label("L_k1_g")
    k.vm = []; k.lg = []
    k.e("s_cmp_ge_u32 s2, 224", "s_cbranch_scc1 L_k1_pf")
    fx3 = srd(k, 12, 32, SZ_WG) + srd(k, 16, 40, SZ_WG)
    k.e("s_waitcnt lgkmcnt(0)"); k.e(*(fx + fx3))
    if prio_g is not None: k.e(f"s_setprio {prio_g}")
    k.e("s_and_b32 s92, s2, 7", "s_lshr_b32 s93, s2, 3")
    k.e("s_and_b32 s26, s92, 1", "s_mul_i32 s26, s26, 7", "s_lshr_b32 s94, s93, 2", "s_add_u32 s26, s26, s94",
        "s_lshr_b32 s25, s92, 1", "s_lshl_b32 s25, s25, 2", "s_and_b32 s95, s93, 3", "s_add_u32 s25, s25, s95")
    k.e("s_lshl_b32 s53, s95, 1", "s_add_u32 s53, s53, s94", "s_and_b32 s53, s53, 7")
    k.stamp(0)
    e3s_body(k, rot=True)
    k.wait_vm_all()
    if DBG1.get("fine"): k.stamp(7); k.stamp_out(8, 0)
    else: k.stamp(3); k.stamp_out(4, 0)
    k.wait_vm_all()
    k.e("s_endpgm")
    k.label("L_k1_pf")
    k.vm = []; k.lg = []
    fxp = srd(k, 12, 48, SZ_WD) + srd(k, 16, 16, SZ_WO)
    k.e("s_waitcnt lgkmcnt(0)"); k.e(*(fx + fxp))
    k.e("s_sub_u32 s3, s2, 224")
    prep_role(k, 20, 3, 32)
    if not DBG1.get("nopf"): prefetch_role(k, [(12, SZ_WD), (16, SZ_WO)], 3, 32)
    k.label(f"L_end_{k.name}")
    k.e("s_endpgm")
    k.emit_tails()
    return k

def kB4_kernel(name="kb_main_kernel", prio_a=None, prio_g=None, e4_prio=None, post_prio=None, osleep=2, **kw):
    k = KV(name, nvgpr=256)
    k.e("s_cmp_ge_u32 s2, 512", f"s_cbranch_scc1 L_end_{k.name}")
    fx = srd(k, 20, 72, WS_SIZE2)
    k.e("s_cmp_ge_u32 s2, 256", "s_cbranch_scc1 L_kb_g")
    k.e("s_waitcnt lgkmcnt(0)"); k.e(*fx)
    if prio_a is not None: k.e(f"s_setprio {prio_a}")
    k.e("s_and_b32 s3, s2, 7", "s_lshr_b32 s4, s2, 3", "s_and_b32 s5, s4, 3", "s_lshl_b32 s25, s3, 2", "s_add_u32 s25, s25, s5", "s_lshr_b32 s26, s4, 2")
    k.stamp(0)
    e2_body(k, st_sc1="sc1", oflag=True, **kw)
    k.wait_vm_all()
    k.stamp(3); k.stamp_out(4, 0x20000); k.wait_vm_all()
    k.e("s_endpgm")
    fb = k.fb_code
    k.label("L_kb_g")
    k.vm = []; k.lg = []
    SD, SO, SX, SOUT = 84, 88, 8, 4
    fx3 = srd(k, SD, 48, SZ_WD) + srd(k, SO, 16, SZ_WO) + srd(k, SX, 0, SZ_X) + srd(k, SOUT, 56, SZ_X)
    k.e("s_waitcnt lgkmcnt(0)"); k.e(*(fx + fx3))
    if prio_g is not None: k.e(f"s_setprio {prio_g}")
    e4 = E4F(k, SD, SO, 20, SX, SOUT, osleep=osleep)
    c = e4
    k.e("s_sub_u32 s3, s2, 256", "s_and_b32 s92, s3, 7", "s_lshr_b32 s93, s3, 3",
        f"s_and_b32 s{c.SRB}, s93, 3", "s_lshl_b32 s94, s92, 2", f"s_add_u32 s{c.SRB}, s{c.SRB}, s94", f"s_lshr_b32 s{c.SCB}, s93, 2")
    k.e("v_and_b32 v1, 63, v0", "v_lshrrev_b32 v10, 6, v0", "s_nop 0", "v_readfirstlane_b32 s24, v10", "s_nop 3")
    k.stamp(0)
    e4.setup()
    e4.e4_prio = e4_prio; e4.post_prio = post_prio
    e4.body(pre_issued=False, st=(1, 2), hwait=False)
    k.wait_vm_all()
    k.stamp(4); k.stamp_out(5, 0x40000); k.wait_vm_all()
    k.label(f"L_end_{k.name}")
    k.e("s_endpgm")
    fb()
    k.emit_tails()
    return k
```

```python
import sys
sys.path.insert(0, "gen")
from eng import *
import eng, haz

FLG_GO = FLG + 0x8000

EPCONST = [False]
def epoch_issue_all(k, vd):
    if EPCONST[0]: return
    k.e(f"v_mov_b32 v{vd+2}, 0")
    k.vmem(f"global_load_dwordx2 v[{vd}:{vd+1}], v{vd+2}, s[{SDBG}:{SDBG+1}] sc1", "ep")

def epoch_check_all(k, vd):
    if EPCONST[0]:
        k.e(f"s_mov_b32 s{SEP}, 0x13572469", f"s_mov_b32 s{SEP+1}, 0x2468ace1"); return
    Ls = k.newlabel("eps"); Lc = k.newlabel("epc")
    k.wait_vm("ep")
    k.e(f"v_readfirstlane_b32 s{SEP}, v{vd}", f"v_readfirstlane_b32 s{SEP+1}, v{vd+1}", "s_nop 3", f"s_cmp_eq_u32 s{SEP}, 0", f"s_cbranch_scc1 {Ls}")
    k.label(Lc)
    def tail():
        k.label(Ls)
        k.e(f"s_mov_b32 s{SCNT}, 0")
        k.label(Ls + "_l")
        k.e(f"global_load_dwordx2 v[{vd}:{vd+1}], v{vd+2}, s[{SDBG}:{SDBG+1}] sc1", f"s_add_u32 s{SCNT}, s{SCNT}, 1", "s_waitcnt vmcnt(0)",
            f"v_readfirstlane_b32 s{SEP}, v{vd}", f"v_readfirstlane_b32 s{SEP+1}, v{vd+1}", "s_nop 3", f"s_cmp_lg_u32 s{SEP}, 0", f"s_cbranch_scc1 {Lc}",
            "s_sleep 2", f"s_cmp_lt_u32 s{SCNT}, 0x{SPIN_MAX:x}", f"s_cbranch_scc1 {Ls}_l", f"s_branch {Lc}")
    k.tails.append(tail)

TSLEEP = 1
EPEARLY = 0
LATE = 0
def tag_check(k, issue, tagregs, name, zero):
    Ls = k.newlabel(name + "s"); Lc = k.newlabel(name + "c")
    def cmp():
        k.e(f"v_cmp_eq_u32 vcc, s{SEP}, v{tagregs[0]}")
        for r in tagregs[1:]:
            k.e(f"v_cmp_eq_u32 s[36:37], s{SEP}, v{r}", "s_nop 1", "s_and_b64 vcc, vcc, s[36:37]")
        k.e("s_cmp_eq_u64 vcc, -1")
    cmp()
    k.e(f"s_cbranch_scc0 {Ls}")
    k.label(Lc)
    zero()
    def tail():
        k.label(Ls)
        k.e(f"s_mov_b32 s{SCNT}, 0")
        k.label(Ls + "_l")
        sv = (k.vm, k.lg)
        issue()
        k.vm, k.lg = sv
        k.e(f"s_add_u32 s{SCNT}, s{SCNT}, 1", "s_waitcnt vmcnt(0)")
        cmp()
        k.e(f"s_cbranch_scc1 {Lc}", f"s_sleep {TSLEEP}", f"s_cmp_lt_u32 s{SCNT}, 0x{SPIN_MAX:x}", f"s_cbranch_scc1 {Ls}_l", f"s_branch {Lc}")
    k.tails.append(tail)

def row_job2(k, s_job, srd_x, srd_ws):
    k.e("v_and_b32 v1, 63, v0", "v_lshrrev_b32 v2, 6, v0", f"s_lshl_b32 s40, s{s_job}, 14",
        "v_lshlrev_b32 v3, 12, v2", "v_lshl_add_u32 v3, v1, 4, v3", "v_add_u32 v3, s40, v3")
    for j in range(4):
        k.vmem(f"buffer_load_dwordx4 v[{4+4*j}:{7+4*j}], v3, s[{srd_x}:{srd_x+3}], 0 offen offset:{1024*j}", "rj")
    k.e("v_bfe_u32 v72, v1, 1, 2", "v_cmp_eq_u32 s[42:43], 1, v72", "v_cmp_eq_u32 s[44:45], 2, v72", "v_cmp_eq_u32 s[46:47], 3, v72")
    k.wait_vm("rj")
    epoch_issue_all(k, 74)
    for j in range(4):
        for i in range(4):
            k.e(f"v_lshlrev_b32 v{32+8*j+2*i}, 16, v{4+4*j+i}", f"v_and_b32 v{33+8*j+2*i}, 0xffff0000, v{4+4*j+i}")
    for j in range(4):
        b = 32 + 8*j
        k.e(f"v_add_f32 v{20+j}, v{b}, v{b+1}")
    for i in range(2, 8):
        for j in range(4):
            k.e(f"v_add_f32 v{20+j}, v{20+j}, v{32+8*j+i}")
    allreduce(k, [20, 21, 22, 23], [24, 25, 26, 27])
    for j in range(4): k.e(f"v_mul_f32 v{20+j}, 0x3b000000, v{20+j}")
    for i in range(8):
        for j in range(4): k.e(f"v_sub_f32 v{32+8*j+i}, v{32+8*j+i}, v{20+j}")
    for j in range(4): k.e(f"v_mul_f32 v{28+j}, v{32+8*j}, v{32+8*j}")
    for i in range(1, 8):
        for j in range(4): k.e(f"v_fmac_f32 v{28+j}, v{32+8*j+i}, v{32+8*j+i}")
    allreduce(k, [28, 29, 30, 31], [24, 25, 26, 27])
    k.e("v_cndmask_b32 v64, v20, v21, s[42:43]", "v_cndmask_b32 v65, v28, v29, s[42:43]",
        "v_cndmask_b32 v64, v64, v22, s[44:45]", "v_cndmask_b32 v65, v65, v30, s[44:45]",
        "v_cndmask_b32 v64, v64, v23, s[46:47]", "v_cndmask_b32 v65, v65, v31, s[46:47]")
    k.e("v_mov_b32 v66, 0x3727c5ac", "v_fmac_f32 v66, 0x3b000000, v65",
        "v_rsq_f32 v67, v66", "v_sub_f32 v64, 0, v64",
        "v_mul_f32 v68, v66, v67",
        "v_cvt_pk_bf16_f32 v69, v64, v64", "s_nop 0", "v_and_b32 v69, 0xffff0000, v69", "v_sub_f32 v70, v64, v69",
        "v_cvt_pk_bf16_f32 v69, v70, v70", "s_nop 0", "v_and_b32 v69, 0xffff0000, v69", "v_sub_f32 v71, v70, v69",
        "v_cvt_pk_bf16_f32 v4, v64, v70", "v_cvt_pk_bf16_f32 v6, v71, v64",
        "v_and_b32 v72, 1, v1", "v_cmp_eq_u32 vcc, 1, v72", "v_mov_b32 v5, v4")
    k.e(f"s_lshl_b32 s40, s{s_job}, 9", "v_lshlrev_b32 v3, 7, v2", "v_lshl_add_u32 v3, v1, 4, v3", "v_add_u32 v3, s40, v3")
    epoch_check_all(k, 74)
    k.e(f"v_mov_b32 v7, s{SEP}",
        "v_cndmask_b32 v4, v4, v67, vcc", "v_cndmask_b32 v5, v5, v68, vcc", "v_cndmask_b32 v6, v6, v7, vcc")
    k.e("v_cmp_gt_u32 vcc, 8, v1", "s_and_saveexec_b64 s[42:43], vcc")
    k.vmem(f"buffer_store_dwordx4 v[4:7], v3, s[{srd_ws}:{srd_ws+3}], 0 offen offset:{WS_TOK} sc1", "st")
    k.e("s_mov_b64 exec, s[42:43]")

def col_job2(k, s_job, srd_w, s_ld, s_col0b, srd_ws, s_half=None, mid=None):
    NL = 16 if s_half is None else 8
    k.e("v_and_b32 v1, 63, v0", "v_lshrrev_b32 v2, 6, v0", "v_lshrrev_b32 v3, 3, v1", f"v_lshl_add_u32 v3, v2, {7 if s_half is None else 6}, v3")
    if s_half is not None: k.e(f"s_lshl_b32 s40, s{s_half}, 8", "v_add_u32 v3, s40, v3")
    k.e(
        f"v_mul_lo_u32 v3, v3, s{s_ld}", "v_and_b32 v4, 7, v1", "v_lshl_add_u32 v3, v4, 4, v3", f"v_add_u32 v3, s{s_col0b}, v3",
        f"s_lshl_b32 s41, s{s_ld}, 3", "s_mov_b32 s40, 0")
    for i in range(NL):
        k.vmem(f"buffer_load_dwordx4 v[{8+4*i}:{11+4*i}], v3, s[{srd_w}:{srd_w+3}], s40 offen", ("cj", i))
        if i < NL - 1: k.e("s_add_u32 s40, s40, s41")
    LB = 32768 if mid else 0
    if mid and not LATE:
        epoch_issue_all(k, 74); mid()
    k.e("s_mov_b32 s42, 0x00003f80", "s_mov_b32 s43, 0x3f800000")
    A = 80
    for i in range(8): k.e(f"v_mov_b32 v{A+i}, 0")
    for i in range(NL):
        k.wait_vm(("cj", i))
        if i == (0 if EPEARLY else NL - 1) and (not mid or LATE): epoch_issue_all(k, 74)
        for d in range(4):
            k.e(f"v_dot2_f32_bf16 v{A+2*d}, v{8+4*i+d}, s42, v{A+2*d}", f"v_dot2_f32_bf16 v{A+1+2*d}, v{8+4*i+d}, s43, v{A+1+2*d}")
    k.e("s_nop 2")
    for i in range(8): k.e(f"v_add_f32_dpp v{A+i}, v{A+i}, v{A+i} row_ror:8 row_mask:0xf bank_mask:0xf")
    k.e("v_lshrrev_b32 v5, 4, v1", "v_lshl_add_u32 v5, v2, 2, v5", "v_lshlrev_b32 v5, 8, v5", "v_lshl_add_u32 v5, v4, 5, v5",
        "v_and_b32 v6, 15, v1", "v_cmp_gt_u32 vcc, 8, v6", "s_and_saveexec_b64 s[44:45], vcc")
    k.ds(f"ds_write_b128 v5, v[{A}:{A+3}] offset:{LB}")
    k.ds(f"ds_write_b128 v5, v[{A+4}:{A+7}] offset:{LB+16}")
    k.e("s_mov_b64 exec, s[44:45]")
    k.wait_lg_all()
    k.e("s_barrier")
    if mid and LATE: mid()
    k.e("v_lshlrev_b32 v5, 2, v1")
    for p in range(16): k.ds(f"ds_read_b32 v{8+p}, v5 offset:{LB+256*p}")
    k.wait_lg_all()
    for st in (8, 4, 2, 1):
        for p in range(st): k.e(f"v_add_f32 v{8+p}, v{8+p}, v{8+p+st}")
    k.e("s_nop 0",
        "v_cvt_pk_bf16_f32 v12, v8, v8", "s_nop 0", "v_and_b32 v9, 0xffff0000, v12", "v_sub_f32 v9, v8, v9",
        "v_cvt_pk_bf16_f32 v13, v9, v9", "s_nop 0", "v_and_b32 v10, 0xffff0000, v13", "v_sub_f32 v10, v9, v10",
        "v_cvt_pk_bf16_f32 v14, v8, v10",
        f"s_lshl_b32 s40, s{s_job}, 10", "v_lshlrev_b32 v5, 4, v1", "v_add_u32 v5, s40, v5", f"s_mov_b32 s40, {WS_COL}")
    if s_half is not None: k.e(f"s_mul_i32 s41, s{s_half}, {COL2}", "s_add_u32 s40, s40, s41")
    epoch_check_all(k, 74)
    k.e(f"v_mov_b32 v15, s{SEP}", "v_cmp_gt_u32 vcc, 64, v0", "s_and_saveexec_b64 s[44:45], vcc")
    Lx = k.newlabel("cjx")
    k.e(f"s_cbranch_execz {Lx}")
    k.vmem(f"buffer_store_dwordx4 v[12:15], v5, s[{srd_ws}:{srd_ws+3}], s40 offen sc1", "st", opt=True)
    k.label(Lx)
    k.e("s_mov_b64 exec, s[44:45]")
    if not (mid and LATE): k.e("s_barrier")

def stats_role2(k, SWQ=28, xal=False):
    Lc = k.newlabel("stc"); Ld = k.newlabel("std"); Lg = k.newlabel("stg")
    k.e("s_cmp_ge_u32 s3, 208", f"s_cbranch_scc1 {Ld}", "s_cmp_ge_u32 s3, 128", f"s_cbranch_scc1 {Lc}")
    if xal:
        k.e("s_and_b32 s96, s3, 7", "s_lshr_b32 s97, s3, 3", "s_lshl_b32 s96, s96, 4", "s_add_u32 s98, s96, s97")
    else: k.e("s_mov_b32 s98, s3")
    row_job2(k, 98, 8, 20)
    k.e(f"s_branch {Ld}")
    k.label(Lc)
    v0 = list(k.vm)
    k.vm = []; k.lg = []
    k.e("s_sub_u32 s98, s3, 128")
    if xal:
        La = k.newlabel("xa"); Lb = k.newlabel("xb")
        k.e("s_and_b32 s96, s98, 7", "s_lshr_b32 s97, s98, 3", "s_cmp_ge_u32 s97, 3", f"s_cbranch_scc1 {La}",
            "s_and_b32 s92, s96, 1", "s_lshl_b32 s92, s92, 2", "s_lshr_b32 s93, s96, 1", "s_add_u32 s92, s92, s93", "s_lshl_b32 s98, s97, 3", "s_add_u32 s98, s98, s92", f"s_branch {Lb}")
        k.label(La)
        k.e("s_lshr_b32 s92, s96, 1", "s_mul_i32 s92, s92, 7", "s_add_u32 s92, s92, s97", "s_sub_u32 s92, s92, 3",
            "s_and_b32 s93, s96, 1", "s_mul_i32 s93, s93, 7", "s_lshr_b32 s94, s92, 2", "s_add_u32 s93, s93, s94",
            "s_lshl_b32 s93, s93, 1", "s_and_b32 s94, s92, 1", "s_add_u32 s93, s93, s94",
            "s_bfe_u32 s94, s92, 0x10001", "s_mul_i32 s94, s94, 28", "s_add_u32 s98, s93, s94", "s_add_u32 s98, s98, 24")
        k.label(Lb)
    k.e(
        f"s_mov_b32 s92, s{SWQ}", f"s_mov_b32 s93, s{SWQ+1}", f"s_mov_b32 s94, {SZ_WQKV}", "s_mov_b32 s95, 0x00020000",
        "s_movk_i32 s96, 3072", "s_lshl_b32 s97, s98, 7",
        "s_cmp_lt_u32 s98, 24", f"s_cbranch_scc1 {Lg}",
        "s_mov_b32 s92, s12", "s_mov_b32 s93, s13", f"s_mov_b32 s94, {SZ_WG}", "s_movk_i32 s96, 3584",
        "s_sub_u32 s97, s98, 24", "s_lshl_b32 s97, s97, 7",
        "s_cmp_lt_u32 s98, 52", f"s_cbranch_scc1 {Lg}",
        "s_mov_b32 s92, s16", "s_mov_b32 s93, s17", "s_sub_u32 s97, s98, 52", "s_lshl_b32 s97, s97, 7")
    k.label(Lg)
    col_job2(k, 98, 92, 96, 97, 20)
    k.label(Ld)
    k.vm = [("st", True)]; k.lg = []

COL2 = 0x14000
def row_job3(k, s_job, srd_x, srd_ws, mid=None):
    k.e("v_and_b32 v1, 63, v0", "v_lshrrev_b32 v2, 6, v0", f"s_lshl_b32 s40, s{s_job}, 15", "s_movk_i32 s41, 4096",
        "v_lshlrev_b32 v3, 13, v2", "v_lshl_add_u32 v3, v1, 4, v3", "v_add_u32 v3, s40, v3")
    SRC = (4, 80)
    for b in range(2):
        for j in range(4):
            k.vmem(f"buffer_load_dwordx4 v[{SRC[b]+4*j}:{SRC[b]+3+4*j}], v3, s[{srd_x}:{srd_x+3}], {'s41' if b else '0'} offen offset:{1024*j}", ("rj", b))
    if mid and not LATE:
        epoch_issue_all(k, 74); mid()
    k.e("v_bfe_u32 v72, v1, 1, 2", "v_cmp_eq_u32 s[42:43], 1, v72", "v_cmp_eq_u32 s[44:45], 2, v72", "v_cmp_eq_u32 s[46:47], 3, v72")
    k.e(f"s_lshl_b32 s40, s{s_job}, 10", "v_lshlrev_b32 v73, 8, v2", "v_lshl_add_u32 v73, v1, 4, v73", "v_add_u32 v73, s40, v73")
    for b in range(2):
        S = SRC[b]
        k.wait_vm(("rj", b))
        if b == 0 and (not mid or LATE): epoch_issue_all(k, 74)
        if b == LATE - 1 and mid and LATE: mid()
        for j in range(4):
            for i in range(4):
                k.e(f"v_lshlrev_b32 v{32+8*j+2*i}, 16, v{S+4*j+i}", f"v_and_b32 v{33+8*j+2*i}, 0xffff0000, v{S+4*j+i}")
        for j in range(4):
            bb = 32 + 8*j
            k.e(f"v_add_f32 v{20+j}, v{bb}, v{bb+1}")
        for i in range(2, 8):
            for j in range(4):
                k.e(f"v_add_f32 v{20+j}, v{20+j}, v{32+8*j+i}")
        allreduce(k, [20, 21, 22, 23], [24, 25, 26, 27])
        for j in range(4): k.e(f"v_mul_f32 v{20+j}, 0x3b000000, v{20+j}")
        for i in range(8):
            for j in range(4): k.e(f"v_sub_f32 v{32+8*j+i}, v{32+8*j+i}, v{20+j}")
        for j in range(4): k.e(f"v_mul_f32 v{28+j}, v{32+8*j}, v{32+8*j}")
        for i in range(1, 8):
            for j in range(4): k.e(f"v_fmac_f32 v{28+j}, v{32+8*j+i}, v{32+8*j+i}")
        allreduce(k, [28, 29, 30, 31], [24, 25, 26, 27])
        k.e("v_cndmask_b32 v64, v20, v21, s[42:43]", "v_cndmask_b32 v65, v28, v29, s[42:43]",
            "v_cndmask_b32 v64, v64, v22, s[44:45]", "v_cndmask_b32 v65, v65, v30, s[44:45]",
            "v_cndmask_b32 v64, v64, v23, s[46:47]", "v_cndmask_b32 v65, v65, v31, s[46:47]")
        k.e("v_mov_b32 v66, 0x3727c5ac", "v_fmac_f32 v66, 0x3b000000, v65",
            "v_rsq_f32 v67, v66", "v_sub_f32 v64, 0, v64",
            "v_mul_f32 v68, v66, v67",
            "v_cvt_pk_bf16_f32 v69, v64, v64", "s_nop 0", "v_and_b32 v69, 0xffff0000, v69", "v_sub_f32 v70, v64, v69",
            "v_cvt_pk_bf16_f32 v69, v70, v70", "s_nop 0", "v_and_b32 v69, 0xffff0000, v69", "v_sub_f32 v71, v70, v69",
            "v_cvt_pk_bf16_f32 v96, v64, v70", "v_cvt_pk_bf16_f32 v98, v71, v64",
            "v_and_b32 v72, 1, v1", "v_cmp_eq_u32 vcc, 1, v72", "v_mov_b32 v97, v96")
        if b == 0: epoch_check_all(k, 74)
        k.e(f"v_mov_b32 v99, s{SEP}", "v_and_b32 v72, 1, v1", "v_cmp_eq_u32 vcc, 1, v72", "s_nop 1",
            "v_cndmask_b32 v96, v96, v67, vcc", "v_cndmask_b32 v97, v97, v68, vcc", "v_cndmask_b32 v98, v98, v99, vcc")
        k.e("v_cmp_gt_u32 vcc, 8, v1", "s_and_saveexec_b64 s[48:49], vcc")
        k.vmem(f"buffer_store_dwordx4 v[96:99], v73, s[{srd_ws}:{srd_ws+3}], 0 offen offset:{WS_TOK + 128*b} sc1", "st")
        k.e("s_mov_b64 exec, s[48:49]", "s_nop 1")

def stats_role3(k, SWQ=28, mid=None):
    Lc = k.newlabel("stc"); Ld = k.newlabel("std"); Lg = k.newlabel("stg"); Lq = k.newlabel("stq")
    k.e("s_cmp_ge_u32 s3, 64", f"s_cbranch_scc1 {Lc}")
    k.e("s_mov_b32 s98, s3")
    row_job3(k, 98, 8, 20, mid=mid)
    k.e(f"s_branch {Ld}")
    Lf = k.newlabel("stf")
    if mid:
        k.label(Lf)
        k.vm = []; k.lg = []
        mid()
        k.e(f"s_branch {Ld}")
    k.label(Lc)
    k.vm = []; k.lg = []
    k.e("s_sub_u32 s98, s3, 64", "s_cmp_lt_u32 s3, 112", f"s_cbranch_scc1 {Lq}", "s_cmp_lt_u32 s3, 144", f"s_cbranch_scc1 {Lf if mid else Ld}", "s_sub_u32 s98, s3, 96")
    k.label(Lq)
    k.e("s_and_b32 s99, s98, 1", "s_lshr_b32 s98, s98, 1")
    k.e(
        f"s_mov_b32 s92, s{SWQ}", f"s_mov_b32 s93, s{SWQ+1}", f"s_mov_b32 s94, {SZ_WQKV}", "s_mov_b32 s95, 0x00020000",
        "s_movk_i32 s96, 3072", "s_lshl_b32 s97, s98, 7",
        "s_cmp_lt_u32 s98, 24", f"s_cbranch_scc1 {Lg}",
        "s_mov_b32 s92, s12", "s_mov_b32 s93, s13", f"s_mov_b32 s94, {SZ_WG}", "s_movk_i32 s96, 3584",
        "s_sub_u32 s97, s98, 24", "s_lshl_b32 s97, s97, 7",
        "s_cmp_lt_u32 s98, 52", f"s_cbranch_scc1 {Lg}",
        "s_mov_b32 s92, s16", "s_mov_b32 s93, s17", "s_sub_u32 s97, s98, 52", "s_lshl_b32 s97, s97, 7")
    k.label(Lg)
    col_job2(k, 98, 92, 96, 97, 20, s_half=99, mid=mid)
    k.label(Ld)
    k.vm = [("st", True), ("st", True)]; k.lg = []
    if mid: k.vm = [(("X", 0), False)]*4 + [(("W", 0), False)]*4 + [(("W", 1), False)]*4 + k.vm

PK = 0
def e1x_body(k, first_dma=None, SX=8, SW=12, SWS=20, exit_loop=False, noex=False, wx=0, bal=False, rot=True, ux=11, pre_store=None, dup=False, rper=5, dper=2, notag=False, touch=False, fine=False):
    E1_XB = 49152
    k.e("v_and_b32 v1, 63, v0")
    k.e("v_and_b32 v11, 31, v1", "v_lshrrev_b32 v12, 5, v1")
    k.e("s_and_b32 s27, s24, 1", "s_lshr_b32 s28, s24, 1")
    k.e("v_lshrrev_b32 v13, 3, v1", "v_lshrrev_b32 v14, 4, v1", "v_and_b32 v15, 7, v1",
        "v_xor_b32 v7, v15, v14", "v_lshlrev_b32 v7, 4, v7", "v_lshl_add_u32 v7, v13, 10, v7",
        "s_lshl_b32 s29, s25, 16", "s_lshl_b32 s30, s24, 14", "s_add_u32 s29, s29, s30",
        "v_add_u32 v7, s29, v7", "v_xor_b32 v8, 64, v7", "v_add_u32 v8, 8192, v8")
    k.e("v_and_b32 v14, 1, v14", "v_lshlrev_b32 v14, 2, v14", "v_xor_b32 v9, v15, v14", "v_lshlrev_b32 v9, 4, v9",
        "s_lshl_b32 s30, s24, 3", "v_add_u32 v13, s30, v13", "v_mul_u32_u24 v13, 3072, v13", "v_add_u32 v9, v9, v13",
        f"s_xor_b32 s30, s26, {wx}", "s_lshl_b32 s30, s30, 7", "v_add_u32 v9, s30, v9")
    k.e(f"s_lshl_b32 s31, s24, 11", f"s_add_u32 s31, s31, {E1_XB}", "s_lshl_b32 s32, s24, 10")
    def xd(v):
        if rot:
            return [dmab(SX, 7, 31, (v % 3)*8192, 33, 51, 0, ("X", v)),
                    dmab(SX, 8, 31, (v % 3)*8192 + 1024, 33, 51, 0, ("X", v), post=["s_add_u32 s51, s51, 128", "s_and_b32 s51, s51, 1023"])]
        return [dma(SX, 7, 31, (v % 3)*8192, 33, v*128, ("X", v)), dma(SX, 8, 31, (v % 3)*8192 + 1024, 33, v*128, ("X", v))]
    def wd(u):
        if rot:
            return [dmab(SW, 9, 32, (u % 4)*12288 + p*4096, 33, 50, 0, ("W", u), imm=1024*p, post=(rot_adv(50, 32*3072, 512*3072, 52) if p == 2 else ())) for p in range(3)]
        return [dma(SW, 9, 32, (u % 4)*12288 + p*4096, 33, u*32*3072, ("W", u), imm=1024*p) for p in range(3)]
    if rot:
        k.e("s_lshl_b32 s51, s53, 7", f"s_mul_i32 s50, s53, {64*3072}")
    if touch:
        k.e("v_lshrrev_b32 v130, 3, v1", "v_and_b32 v131, 7, v1", "v_lshlrev_b32 v131, 7, v131", "v_lshl_add_u32 v130, v130, 10, v131",
            "s_and_b32 s34, s26, 3", "s_lshl_b32 s34, s34, 4", "s_lshl_b32 s35, s24, 2", "s_add_u32 s34, s34, s35", "s_lshl_b32 s34, s34, 10", "s_lshl_b32 s35, s25, 16", "s_add_u32 s34, s34, s35",
            "s_mov_b32 exec_hi, 0")
        k.vmem(f"buffer_load_dword v132, v130, s[{SX}:{SX+3}], s34 offen", "touch")
        k.e("s_mov_b32 exec_hi, -1")
        k.e("v_and_b32 v130, 15, v1", "v_mul_u32_u24 v130, 3072, v130", "v_lshrrev_b32 v131, 4, v1", "v_lshl_add_u32 v130, v131, 10, v130",
            "s_and_b32 s34, s25, 7", "s_lshl_b32 s34, s34, 6", "s_lshl_b32 s35, s24, 4", "s_add_u32 s34, s34, s35", "s_mul_i32 s34, s34, 3072", "s_lshl_b32 s35, s26, 7", "s_add_u32 s34, s34, s35",
            "s_mov_b32 exec_hi, 0xffff")
        k.vmem(f"buffer_load_dword v133, v130, s[{SW}:{SW+3}], s34 offen", "touch")
        k.e("s_mov_b32 exec_hi, -1")
    if first_dma:
        G0 = xd(0) + wd(0) + wd(1) + xd(1) + wd(2)
        first_dma()
        emit_groups(k, G0)
    else:
        emit_groups(k, xd(0) + wd(0) + wd(1) + xd(1) + wd(2))
    k.e("s_lshl_b32 s36, s27, 5", "v_add_u32 v13, s36, v11", "v_bfe_u32 v14, v13, 1, 3", "v_xor_b32 v14, v14, v12",
        "v_lshlrev_b32 v14, 4, v14", "v_lshl_add_u32 v2, v13, 7, v14", f"v_add_u32 v2, {E1_XB}, v2",
        "v_xor_b32 v3, 32, v2", "v_xor_b32 v4, 64, v2", "v_xor_b32 v5, 96, v2")
    k.e("v_bfe_u32 v13, v1, 2, 2", "v_lshl_add_u32 v13, v12, 3, v13", "v_lshlrev_b32 v6, 7, v13",
        "v_bfe_u32 v13, v1, 4, 1", "v_lshlrev_b32 v13, 1, v13", "v_bfe_u32 v14, v1, 1, 1", "v_add_u32 v13, v13, v14",
        "s_lshl_b32 s36, s28, 2", "v_add_u32 v13, s36, v13", "v_bfe_u32 v14, v1, 3, 1", "v_lshlrev_b32 v14, 2, v14",
        "v_xor_b32 v13, v13, v14", "v_lshl_add_u32 v6, v13, 4, v6", "v_and_b32 v14, 1, v1", "v_lshl_add_u32 v6, v14, 3, v6",
        "v_xor_b32 v10, 2048, v6")
    k.e("s_lshl_b32 s34, s25, 6", "s_lshl_b32 s35, s27, 5", "s_add_u32 s34, s34, s35", "v_add_u32 v117, s34, v11", "v_lshlrev_b32 v117, 5, v117",
        "s_lshl_b32 s35, s26, 6", "s_lshl_b32 s36, s28, 5", "s_add_u32 s35, s35, s36", "v_add_u32 v118, s35, v11", "v_lshlrev_b32 v118, 4, v118")
    if bal: k.e(f"v_mul_u32_u24 v13, 0x{COL2:x}, v12", "v_add_u32 v118, v118, v13")
    def extras():
        k.vmem(f"buffer_load_dwordx4 v[48:51], v117, s[{SWS}:{SWS+3}], 0 offen offset:{WS_TOK} sc1", "ex")
        k.vmem(f"buffer_load_dwordx4 v[112:115], v117, s[{SWS}:{SWS+3}], 0 offen offset:{WS_TOK+16} sc1", "ex")
        for p in range(3):
            k.e(f"s_mov_b32 s36, {WS_COL + 8192*p}")
            k.vmem(f"buffer_load_dwordx4 v[{52+4*p}:{55+4*p}], v118, s[{SWS}:{SWS+3}], s36 offen sc1", "ex")
    ACC = 64
    def fr(st): return 16 + 16*st
    def reads(g, st):
        b = fr(st); u = g >> 1; v = g >> 2
        out = [(f"ds_read_b128 v[{b}:{b+3}], v{2 + (g & 3)} offset:{(v % 3)*8192}", "X")]
        av = 6 if (g & 1) == 0 else 10
        for p in range(3):
            o = (u % 4)*12288 + p*4096
            out.append((f"ds_read_b64_tr_b16 v[{b+4+4*p}:{b+5+4*p}], v{av} offset:{o}", f"W{p}"))
            out.append((f"ds_read_b64_tr_b16 v[{b+6+4*p}:{b+7+4*p}], v{av} offset:{o+512}", f"W{p}"))
        return out
    def mf(b_x, b_w, first):
        out = []
        for p in range(3):
            a = ACC + 16*p
            w = f"v[{b_w+4*p}:{b_w+4*p+3}]"; x = f"v[{b_x}:{b_x+3}]"
            A, B = (w, x) if p < 2 else (x, w)
            c = "0" if first else f"v[{a}:{a+15}]"
            out.append((f"{MF} v[{a}:{a+15}], {A}, {B}, {c}", ["X", f"W{p}"]))
        return out
    def mfmas(g, st): return mf(fr(st), fr(st) + 4, g == 0)
    def dmas(u):
        out = []
        if u + 3 < 16: out += wd(u + 3)
        if u % 2 == 0 and u//2 + 2 < 8: out += xd(u//2 + 2)
        return out
    hooks = {ux - 1: [lambda: epoch_issue_all(k, 120)], ux: [extras]}
    if noex: hooks = {}
    pre_hooks = None
    if fine: pre_hooks = {0: lambda: k.stamp(9), 1: lambda: k.stamp(10), 4: lambda: k.stamp(11), 10: lambda: k.stamp(12)}
    k.stamp(1)
    gemm2(k, 16, mfmas, reads, dmas, lambda u: [("W", u), ("X", u >> 1)], fill0=None, rper=rper, dper=dper, hooks=hooks, pre_hooks=pre_hooks)
    k.stamp(2)
    if exit_loop:
        for i in range(3, 9): k.stamp(i)
        k.stamp_out(9, 0, sh=7); k.e("s_waitcnt vmcnt(0)", "s_endpgm")
    epoch_check_all(k, 120)
    k.wait_vm("ex")
    def zero():
        for r in (51, 55, 59, 63): k.e(f"v_mov_b32 v{r}, 0")
        if bal:
            k.e("s_nop 1")
            return
        k.e("s_mov_b32 exec_lo, 0")
        for r in range(48, 64):
            if r not in (51, 55, 59, 63): k.e(f"v_mov_b32 v{r}, 0")
        k.e("s_mov_b32 exec_lo, -1", "s_nop 1")
    if notag: zero()
    else: tag_check(k, extras, [51, 114, 55, 59, 63], "x1", zero)
    for (t, _) in mf(48, 52, False): k.e(t)
    k.e("s_lshl_b32 s36, s24, 7", "v_lshlrev_b32 v13, 2, v11", "v_add_u32 v13, s36, v13")
    k.ds("ds_write_b32 v13, v112")
    k.e("v_lshlrev_b32 v13, 4, v12", "v_add_u32 v13, s36, v13")
    k.wait_lg_all()
    for gq in range(4): k.ds(f"ds_read_b128 v[{32+4*gq}:{35+4*gq}], v13 offset:{32*gq}")
    k.e(f"v_mul_f32 v113, 0x{f2u(0.25*LOG2E):08x}, v112")
    if pre_store: pre_store()
    k.e("v_lshlrev_b32 v10, 4, v1",
        "s_lshl_b32 s36, s26, 2", "s_lshl_b32 s37, s28, 1", "s_add_u32 s36, s36, s37", "s_lshl_b32 s36, s36, 16",
        "s_lshl_b32 s37, s25, 1", "s_add_u32 s37, s37, s27", "s_lshl_b32 s37, s37, 10", "s_add_u32 s36, s36, s37")
    k.e("v_lshrrev_b32 v17, 4, v11", "v_lshlrev_b32 v17, 16, v17", "v_lshl_add_u32 v17, v12, 8, v17", "v_and_b32 v18, 15, v11", "v_lshl_add_u32 v17, v18, 4, v17")
    k.e("s_nop 4")
    modes = ("sc1", "") if dup else ("sc1",)
    for p, (scale, base) in enumerate(((113, WS_QF), (112, WS_KF))):
        a = ACC + 16*p
        if PK & 2:
            for r in range(0, 16, 2): k.e(f"v_pk_mul_f32 v[{a+r}:{a+r+1}], v[{a+r}:{a+r+1}], v[112:113] op_sel:[0,{scale-112}] op_sel_hi:[1,{scale-112}]")
        else:
            for r in range(16): k.e(f"v_mul_f32 v{a+r}, v{a+r}, v{scale}")
        for j in range(2):
            d = 20 + 8*p + 4*j if p == 0 else 48 + 4*j
            for i in range(4): k.e(f"v_cvt_pk_bf16_f32 v{d+i}, v{a+8*j+2*i}, v{a+8*j+2*i+1}")
            k.e(f"s_add_u32 s37, s36, 0x{base + j*65536:x}")
            for m in modes: k.vmem(f"buffer_store_dwordx4 v[{d}:{d+3}], v10, s[{SWS}:{SWS+3}], s37 offen {m}", "st")
    k.wait_lg_all()
    a = ACC + 32
    if PK & 4:
        for r in range(0, 16, 2): k.e(f"v_pk_mul_f32 v[{a+r}:{a+r+1}], v[{a+r}:{a+r+1}], v[{32+r}:{33+r}]")
    else:
        for r in range(16): k.e(f"v_mul_f32 v{a+r}, v{a+r}, v{32+r}")
    k.e(f"s_add_u32 s37, s36, 0x{WS_VF:x}")
    for j in range(2):
        d = 56 + 4*j
        for i in range(4): k.e(f"v_cvt_pk_bf16_f32 v{d+i}, v{a+8*j+2*i}, v{a+8*j+2*i+1}")
        for m in modes: k.vmem(f"buffer_store_dwordx4 v[{d}:{d+3}], v17, s[{SWS}:{SWS+3}], s37 offen offset:{512*j} {m}", "st")

def e3x_body(k, SX=8, SG=12, SU=16, SWS=20, part=None, bal=False, fine=False, epi_prio=None, post_loop=None, rot=True, ux=11, rper=4, dper=1, pre_loop=None):
    XB = 49152
    line0 = len(k.lines)
    k.e("v_and_b32 v1, 63, v0")
    k.e("v_and_b32 v11, 31, v1", "v_lshrrev_b32 v12, 5, v1")
    k.e("s_and_b32 s27, s24, 1", "s_lshr_b32 s28, s24, 1")
    k.e("v_lshrrev_b32 v13, 3, v1", "v_lshrrev_b32 v14, 4, v1", "v_and_b32 v15, 7, v1",
        "v_xor_b32 v7, v15, v14", "v_lshlrev_b32 v7, 4, v7", "v_lshl_add_u32 v7, v13, 10, v7",
        "s_lshl_b32 s29, s25, 17", "s_lshl_b32 s30, s24, 15", "s_add_u32 s29, s29, s30",
        "v_add_u32 v7, s29, v7", "v_xor_b32 v8, 64, v7", "v_add_u32 v8, 8192, v8")
    k.e("v_lshlrev_b32 v13, 2, v14", "v_and_b32 v15, 15, v1", "v_xor_b32 v9, v15, v13", "v_lshlrev_b32 v9, 4, v9",
        "s_lshl_b32 s30, s24, 3", "v_add_u32 v13, s30, v14", "v_mul_u32_u24 v13, 3584, v13", "v_add_u32 v9, v9, v13",
        "s_lshl_b32 s30, s26, 8", "v_add_u32 v9, s30, v9")
    k.e(f"s_lshl_b32 s31, s24, 12", f"s_add_u32 s31, s31, {XB}", "s_lshl_b32 s32, s24, 11")
    def xd(v):
        if rot:
            return [dmab(SX, 7 + (i & 1), 31, (v % 2)*16384 + i*1024, 33, 51, (i >> 1)*16384, ("X", v),
                         post=(["s_add_u32 s51, s51, 128", "s_and_b32 s51, s51, 1023"] if i == 3 else ())) for i in range(4)]
        return [dma(SX, 7 + (i & 1), 31, (v % 2)*16384 + i*1024, 33, v*128 + (i >> 1)*16384, ("X", v)) for i in range(4)]
    def wd(u):
        out = []
        for i in range(2):
            for p, sr in enumerate((SG, SU)):
                if rot:
                    out.append(dmab(sr, 9, 32, (u % 3)*16384 + p*8192 + i*1024, 33, 50, 4*i*3584, ("W", u),
                                    post=(rot_adv(50, 32*3584, 512*3584, 52) if (i, p) == (1, 1) else ())))
                else:
                    out.append(dma(sr, 9, 32, (u % 3)*16384 + p*8192 + i*1024, 33, (u*32 + 4*i)*3584, ("W", u)))
        return out
    if part != "main":
        if rot:
            k.e("s_lshl_b32 s51, s53, 7", f"s_mul_i32 s50, s53, {64*3584}")
        emit_groups(k, xd(0) + wd(0) + wd(1))
    if part == "pre":
        import re
        for i in range(line0, len(k.lines)):
            k.lines[i] = re.sub(r"\bv(\d+)\b", lambda m: m.group(0) if int(m.group(1)) < 2 else f"v{int(m.group(1)) + 200}", k.lines[i])
        return
    if pre_loop: pre_loop()
    k.e("s_lshl_b32 s36, s27, 6", "v_add_u32 v13, s36, v11", "v_bfe_u32 v14, v13, 1, 3", "v_xor_b32 v14, v14, v12",
        "v_lshlrev_b32 v14, 4, v14", "v_lshl_add_u32 v2, v13, 7, v14", f"v_add_u32 v2, {XB}, v2",
        "v_xor_b32 v3, 32, v2", "v_xor_b32 v4, 64, v2", "v_xor_b32 v5, 96, v2")
    k.e("v_bfe_u32 v15, v1, 2, 2", "v_lshl_add_u32 v13, v12, 3, v15", "v_lshlrev_b32 v6, 8, v13",
        "v_bfe_u32 v13, v1, 4, 1", "v_lshlrev_b32 v13, 1, v13", "v_bfe_u32 v14, v1, 1, 1", "v_add_u32 v13, v13, v14",
        "s_lshl_b32 s36, s28, 3", "v_add_u32 v13, s36, v13", "v_lshlrev_b32 v15, 2, v15",
        "v_xor_b32 v13, v13, v15", "v_lshl_add_u32 v6, v13, 4, v6", "v_and_b32 v14, 1, v1", "v_lshl_add_u32 v6, v14, 3, v6",
        "v_xor_b32 v10, 64, v6", "v_xor_b32 v72, 4096, v6", "v_xor_b32 v73, 4096, v10")
    k.e("s_lshl_b32 s34, s25, 7", "s_lshl_b32 s35, s27, 6", "s_add_u32 s34, s34, s35", "v_add_u32 v108, s34, v11", "v_lshlrev_b32 v108, 5, v108",
        "s_lshl_b32 s35, s26, 7", "s_lshl_b32 s36, s28, 6", "s_add_u32 s35, s35, s36", "v_add_u32 v109, s35, v11", "v_lshlrev_b32 v109, 4, v109")
    if bal: k.e(f"v_mul_u32_u24 v13, 0x{COL2:x}, v12", "v_add_u32 v109, v109, v13")
    EX = 76
    def extras():
        for tb in range(2):
            k.vmem(f"buffer_load_dwordx4 v[{EX+4*tb}:{EX+3+4*tb}], v108, s[{SWS}:{SWS+3}], 0 offen offset:{WS_TOK+1024*tb} sc1", "ex")
            k.vmem(f"buffer_load_dwordx4 v[{100+4*tb}:{103+4*tb}], v108, s[{SWS}:{SWS+3}], 0 offen offset:{WS_TOK+16+1024*tb} sc1", "ex")
        for part in range(2):
            k.e(f"s_mov_b32 s36, {WS_COL + (1536 + 1792*part)*16}")
            for b in range(2):
                d = EX + 8 + 8*part + 4*b
                k.vmem(f"buffer_load_dwordx4 v[{d}:{d+3}], v109, s[{SWS}:{SWS+3}], s36 offen offset:{512*b} sc1", "ex")
    ACC = 128
    def fr(st): return 16 + 24*st
    def acc(part, b, tb): return ACC + 16*(part*4 + b*2 + tb)
    def reads(g, st):
        b0 = fr(st); u = g >> 1; v = g >> 2
        def wr(part, b):
            d = b0 + 8 + 8*part + 4*b
            o = (u % 3)*16384 + part*8192
            av = ((6, 10), (72, 73))[g & 1][b]
            return [(f"ds_read_b64_tr_b16 v[{d}:{d+1}], v{av} offset:{o}", f"W{part}{b}"),
                    (f"ds_read_b64_tr_b16 v[{d+2}:{d+3}], v{av} offset:{o+1024}", f"W{part}{b}")]
        def xr(tb): return [(f"ds_read_b128 v[{b0+4*tb}:{b0+4*tb+3}], v{2 + (g & 3)} offset:{(v % 2)*16384 + tb*4096}", f"X{tb}")]
        return xr(0) + wr(0, 0) + xr(1) + wr(0, 1) + wr(1, 0) + wr(1, 1)
    def mf(b0, first):
        out = []
        for part in range(2):
            for b in range(2):
                for tb in range(2):
                    a = acc(part, b, tb); w = b0 + 8 + 8*part + 4*b; x = b0 + 4*tb
                    c = "0" if first else f"v[{a}:{a+15}]"
                    out.append((f"{MF} v[{a}:{a+15}], v[{w}:{w+3}], v[{x}:{x+3}], {c}", [f"X{tb}", f"W{part}{b}"]))
        return out
    def mfmas(g, st): return mf(fr(st), g == 0)
    def dmas(u):
        out = []
        if u + 2 < 16: out += wd(u + 2)
        if u % 2 == 0 and u//2 + 1 < 8: out += xd(u//2 + 1)
        return out
    hooks = {ux - 1: [lambda: epoch_issue_all(k, 112)], ux: [extras]}
    ph = None
    if fine: ph = {u: (lambda i=i: k.stamp(i)) for i, u in enumerate((0, 2, 5, 8, 11, 14), 1)}
    else: k.stamp(1)
    gemm2(k, 16, mfmas, reads, dmas, lambda u: [("W", u), ("X", u >> 1)], fill0=None, rper=rper, dper=dper, hooks=hooks, pre_hooks=ph)
    if fine:
        k.stamp(7); k.nostamp = True
    k.stamp(2)
    if epi_prio is not None: k.e(f"s_setprio {epi_prio}")
    epoch_check_all(k, 112)
    k.wait_vm("ex")
    tags = [EX + 3 + 4*i for i in range(6)]
    def zero():
        for r in tags: k.e(f"v_mov_b32 v{r}, 0")
        if bal:
            k.e("s_nop 1")
            return
        k.e("s_mov_b32 exec_lo, 0")
        for r in range(EX, EX + 24):
            if r not in tags: k.e(f"v_mov_b32 v{r}, 0")
        k.e("s_mov_b32 exec_lo, -1", "s_nop 1")
    tag_check(k, extras, tags + [102, 106], "x3", zero)
    for (t, _) in mf(EX, False): k.e(t)
    if post_loop: post_loop()
    k.e(f"v_mul_f32 v110, 0x{f2u(-LOG2E):08x}, v100", f"v_mul_f32 v111, 0x{f2u(-LOG2E):08x}, v104")
    k.e("v_lshlrev_b32 v10, 4, v1",
        "s_lshl_b32 s36, s25, 2", "s_lshl_b32 s37, s27, 1", "s_add_u32 s36, s36, s37", "s_mul_i32 s36, s36, 112",
        "s_lshl_b32 s37, s26, 3", "s_add_u32 s36, s36, s37", "s_lshl_b32 s37, s28, 2", "s_add_u32 s36, s36, s37",
        "s_lshl_b32 s36, s36, 10", f"s_add_u32 s36, s36, 0x{WS_HF:x}")
    k.e("s_nop 7")
    n = 0
    for b in range(2):
        for tb in range(2):
            g = acc(0, b, tb); uu = acc(1, b, tb)
            A = 110 + tb; SD = 101 + 4*tb
            if PK & 1:
                for r in range(0, 16, 2): k.e(f"v_pk_mul_f32 v[{g+r}:{g+r+1}], v[{g+r}:{g+r+1}], v[110:111] op_sel:[0,{tb}] op_sel_hi:[1,{tb}]")
                for r in range(16): k.e(f"v_exp_f32 v{g+r}, v{g+r}")
                k.e("s_nop 0")
                for r in range(0, 16, 2): k.e(f"v_pk_fma_f32 v[{g+r}:{g+r+1}], v[{g+r}:{g+r+1}], v[{SD-1}:{SD}], v[{SD-1}:{SD}] op_sel:[0,1,1] op_sel_hi:[1,1,1]")
                for r in range(16): k.e(f"v_rcp_f32 v{g+r}, v{g+r}")
                k.e("s_nop 0")
                for r in range(0, 16, 2): k.e(f"v_pk_mul_f32 v[{g+r}:{g+r+1}], v[{g+r}:{g+r+1}], v[{uu+r}:{uu+r+1}]")
            else:
                for r in range(16): k.e(f"v_mul_f32 v{g+r}, v{g+r}, v{A}")
                for r in range(16): k.e(f"v_exp_f32 v{g+r}, v{g+r}")
                for r in range(16): k.e(f"v_fma_f32 v{g+r}, v{g+r}, v{SD}, v{SD}")
                for r in range(16): k.e(f"v_rcp_f32 v{g+r}, v{g+r}")
                k.e("s_nop 0")
                for r in range(16): k.e(f"v_mul_f32 v{g+r}, v{g+r}, v{uu+r}")
            for j in range(2):
                d = 16 + 4*(n % 8); n += 1
                for i in range(4): k.e(f"v_cvt_pk_bf16_f32 v{d+i}, v{g+8*j+2*i}, v{g+8*j+2*i+1}")
                k.e(f"s_add_u32 s37, s36, {(tb*112 + b*2 + j)*1024}")
                k.vmem(f"buffer_store_dwordx4 v[{d}:{d+3}], v10, s[{SWS}:{SWS+3}], s37 offen sc1", "st")

def kF1(name="f1_fused_kernel", prio_e1=None, prio_e2=None, prio_g=None, epi_prio=1, post_prio=0, e4_prio=None, hsleep=2, osleep=2, qsleep=2,
        rot=True, ux1=11, ux3=11, dup=False, force_fb=False, nostats=False, gexit=0, notag=False, xal=False, touch1=False, fine1=False, mode1="x", mode3="x", touch3=0, rp1=5, dp1=2, rp3=4, dp3=1, ugo=None, gosleep=4, gomax=64, gp_touch=False, prio_e3=None, bal=False, tw=False, fine3=False, aexit=False, qnopoll=0, cpf=0, map1=0, wx=0, hoist=False, aexit2=0, pre=0, rsleep=0, lim1=16, qpipe=0, qgap=4, omod='', endwait=True, qback=None, hback=None, pback=None, tsleep=1, e2sc='sc1', hsc='sc1', latew=False, epearly=0, late=0, nolead=False):
    global TSLEEP, EPEARLY, LATE
    TSLEEP = tsleep; EPEARLY = epearly; LATE = late
    k = KV(name, nvgpr=256)
    k.e("s_cmp_ge_u32 s2, 512", f"s_cbranch_scc1 L_end_{k.name}")
    fx = srd(k, 8, 0, SZ_X) + srd(k, 20, 72, WS_SIZE2)
    load_dbg(k)
    if cpf:
        Lp = k.newlabel("cpf"); Lq = k.newlabel("pc")
        k.e(f"s_cmp_ge_u32 s2, {cpf}", f"s_cbranch_scc1 {Lp}", "s_getpc_b64 s[36:37]")
        k.label(Lq)
        k.e(f"s_sub_u32 s36, s36, {Lq}-{k.name}", "s_subb_u32 s37, s37, 0", "v_lshlrev_b32 v250, 7, v0",
            "v_mov_b32 v249, s37", "v_add_co_u32 v248, vcc, s36, v250", "s_nop 1", "v_addc_co_u32 v249, vcc, 0, v249, vcc")
        k.vmem("global_load_dword v252, v[248:249], off", "cpf", opt=True)
        k.e("v_add_u32 v250, 0x8000, v250", f"v_cmp_gt_u32 vcc, L_code_end-{k.name}, v250", "v_add_co_u32 v248, s[38:39], 0x4000, v248" if False else "s_nop 0")
        k.e("s_and_saveexec_b64 s[38:39], vcc", "v_mov_b32 v249, s37", "v_add_co_u32 v248, vcc, s36, v250", "s_nop 1", "v_addc_co_u32 v249, vcc, 0, v249, vcc")
        k.vmem("global_load_dword v253, v[248:249], off", "cpf", opt=True)
        k.e("s_mov_b64 exec, s[38:39]")
        k.label(Lp)
    k.e("v_lshrrev_b32 v10, 6, v0", "s_nop 1", "v_readfirstlane_b32 s24, v10")
    k.e("s_cmp_ge_u32 s2, 256", "s_cbranch_scc1 L_f1_g")
    fx1 = srd(k, 12, 8, SZ_WQKV)
    if latew and mode1 == "x" and not KV.STAMP:
        k.e(*(fx + fx1))
        def first_dma():
            k.e("s_waitcnt lgkmcnt(0)")
            epoch_make(k, t=131)
    else:
        first_dma = None
        k.e("s_waitcnt lgkmcnt(0)"); k.e(*(fx + fx1))
        epoch_make(k)
    if prio_e1 is not None: k.e(f"s_setprio {prio_e1}")
    k.e("s_and_b32 s3, s2, 7", "s_lshr_b32 s4, s2, 3", "s_and_b32 s5, s3, 1", "s_lshl_b32 s26, s5, 2", "s_and_b32 s5, s4, 3", "s_add_u32 s26, s26, s5",
        "s_lshr_b32 s25, s3, 1", "s_lshl_b32 s25, s25, 3", "s_lshr_b32 s5, s4, 2", "s_add_u32 s25, s25, s5")
    k.e("s_and_b32 s53, s26, 3", "s_lshl_b32 s53, s53, 1", "s_add_u32 s53, s53, s25", "s_and_b32 s53, s53, 7")
    if map1:
        k.e("s_and_b32 s26, s4, 7", "s_lshl_b32 s25, s3, 2", "s_lshr_b32 s5, s4, 3", "s_add_u32 s25, s25, s5",
            "s_lshl_b32 s53, s5, 1", "s_add_u32 s53, s53, s26", "s_and_b32 s53, s53, 7")
    k.e("s_lshl_b32 s44, s3, 2", "s_and_b32 s5, s4, 3", "s_add_u32 s44, s44, s5", "s_lshr_b32 s45, s4, 2")
    k.stamp(0)
    if aexit:
        for i in range(1, 9): k.stamp(i)
        k.stamp_out(9, 0, sh=7); k.wait_vm_all(); k.e("s_waitcnt vmcnt(0)", "s_endpgm")
    def o_fill():
        k.e("v_mov_b32 v204, -1", "v_mov_b32 v205, -1", "v_mov_b32 v206, -1", "v_mov_b32 v207, -1", "v_lshlrev_b32 v203, 4, v1",
            "s_lshl_b32 s46, s45, 3", "s_lshl_b32 s47, s24, 1", "s_add_u32 s46, s46, s47", "s_lshl_b32 s46, s46, 5", "s_add_u32 s46, s46, s44",
            "s_lshl_b32 s46, s46, 10", f"s_add_u32 s46, s46, 0x{WS_OF:x}")
        k.vmem("buffer_store_dwordx4 v[204:207], v203, s[20:23], s46 offen sc1", "st")
        k.e("s_add_u32 s46, s46, 32768")
        k.vmem("buffer_store_dwordx4 v[204:207], v203, s[20:23], s46 offen sc1", "st")
    def go_store():
        L = w0_begin(k)
        k.e("s_lshl_b32 s46, s2, 7", f"s_add_u32 s46, s46, 0x{FLG_GO:x}", "v_mov_b32 v208, s46", "v_mov_b32 v209, 1", "s_mov_b64 exec, 1")
        k.vmem("buffer_store_dword v209, v208, s[20:23], 0 offen sc1", "go", opt=True)
        k.e("s_mov_b64 exec, -1")
        k.label(L)
    if mode1 == "x":
        e1x_body(k, first_dma=first_dma, exit_loop=(aexit2 in (1, 3)), noex=(aexit2 == 3), wx=wx, bal=bal, rot=rot, ux=ux1, pre_store=o_fill, dup=dup, notag=notag, touch=touch1, fine=fine1)
    else:
        ph = {0: lambda: k.stamp(9), 1: lambda: k.stamp(10), 4: lambda: k.stamp(11), 10: lambda: k.stamp(12)} if fine1 else None
        hk = {11: [lambda: epoch_issue_all(k, 200)]}
        if isinstance(ugo, int): hk.setdefault(ugo, []).append(go_store)
        e1s_body(k, sc1="sc1", rot=rot, mst={"s": 0, "m": 1, "n": 2}[mode1], rper=rp1, dper=dp1, pre_hooks=ph, hooks=hk, pre_store=lambda: (epoch_check_all(k, 200), o_fill()))
    k.stamp(3)
    if ugo == "pub0": go_store()
    k.e("s_lshl_b32 s48, s26, 5", "s_add_u32 s48, s48, s25", "s_lshl_b32 s48, s48, 3", f"s_add_u32 s48, s48, 0x{FLG_QKV8:x}")
    publish(k, 48, vt=19)
    k.stamp(4)
    if aexit2 == 2:
        for i in range(5, 9): k.stamp(i)
        k.stamp_out(9, 0, sh=7); k.e("s_waitcnt vmcnt(0)", "s_endpgm")
    if ugo == "pub": go_store()
    k.e("s_mov_b32 s25, s44", "s_mov_b32 s26, s45")
    if prio_e2 is not None: k.e(f"s_setprio {prio_e2}")
    def qkv_wait():
        k.e("v_and_b32 v20, 31, v1", "v_lshlrev_b32 v20, 3, v20", "s_lshr_b32 s36, s25, 2", "s_lshl_b32 s36, s36, 8", f"s_add_u32 s36, s36, 0x{FLG_QKV8:x}",
            "v_add_u32 v20, s36, v20")
        L = w0_begin(k)
        Ll = k.newlabel("qw")
        if qnopoll:
            for _ in range(qnopoll): k.e("s_sleep 16")
            k.e(f"s_branch {L}")
        k.e(f"s_mov_b32 s{SCNT}, 0")
        if qpipe:
            ld = lambda i: f"buffer_load_dwordx2 v[{28+2*i}:{29+2*i}], v20, s[20:23], 0 offen sc1"
            for i in range(qpipe - 1): k.e(ld(i), f"s_sleep {qgap}")
            k.label(Ll)
            for i in range(qpipe):
                k.e(ld((i + qpipe - 1) % qpipe), f"s_waitcnt vmcnt({qpipe - 1})", f"v_cmp_eq_u64 vcc, s[{SEP}:{SEP+1}], v[{28+2*i}:{29+2*i}]",
                    "s_nop 3", "s_cmp_eq_u64 vcc, -1", f"s_cbranch_scc1 {L}")
            k.e(f"s_add_u32 s{SCNT}, s{SCNT}, 1", f"s_cmp_lt_u32 s{SCNT}, 0x{SPIN_MAX:x}", f"s_cbranch_scc1 {Ll}")
        elif qback:
            t1, s1, t2, s2, s3 = qback
            La = k.newlabel("qa"); Lb = k.newlabel("qb"); Lc2 = k.newlabel("qc")
            k.label(Ll)
            k.e("buffer_load_dwordx2 v[22:23], v20, s[20:23], 0 offen sc1", f"s_add_u32 s{SCNT}, s{SCNT}, 1", "s_waitcnt vmcnt(0)",
                f"v_cmp_eq_u64 vcc, s[{SEP}:{SEP+1}], v[22:23]", "s_nop 3", "s_cmp_eq_u64 vcc, -1", f"s_cbranch_scc1 {L}",
                "s_bcnt1_i32_b64 s36, vcc", f"s_cmp_lt_u32 s36, {2*t1}", f"s_cbranch_scc1 {La}", f"s_cmp_lt_u32 s36, {2*t2}", f"s_cbranch_scc1 {Lb}",
                f"s_sleep {s3}", f"s_branch {Lc2}")
            k.label(La); k.e(f"s_sleep {s1}", f"s_branch {Lc2}")
            k.label(Lb); k.e(f"s_sleep {s2}")
            k.label(Lc2)
            k.e(f"s_cmp_lt_u32 s{SCNT}, 0x{SPIN_MAX:x}", f"s_cbranch_scc1 {Ll}")
        else:
            k.label(Ll)
            k.e("buffer_load_dwordx2 v[22:23], v20, s[20:23], 0 offen sc1", f"s_add_u32 s{SCNT}, s{SCNT}, 1", "s_waitcnt vmcnt(0)",
                f"v_cmp_eq_u64 vcc, s[{SEP}:{SEP+1}], v[22:23]", "s_nop 3", "s_cmp_eq_u64 vcc, -1", f"s_cbranch_scc1 {L}",
                f"s_sleep {qsleep}", f"s_cmp_lt_u32 s{SCNT}, 0x{SPIN_MAX:x}", f"s_cbranch_scc1 {Ll}")
        k.label(L)
        k.wait_lg_all()
        k.e("s_barrier")
        if ugo == "e2": go_store()
        k.stamp(5 - k.stamp_off)
    k.stamp_off = 5
    e2_body(k, sc1=e2sc, st_sc1="sc1", oflag="ep", pre_hook=qkv_wait, force_fb=force_fb, prehint=pre)
    k.stamp_off = 0
    k.wait_vm_all()
    k.stamp(8); k.stamp_out(13 if fine1 else 9, 0, sh=7); k.wait_vm_all()
    k.e("s_endpgm")
    fb = k.fb_code
    k.label("L_f1_g")
    k.vm = []; k.lg = []
    SD, SO, SX, SOUT = 84, 88, 8, 4
    fx3 = srd(k, 12, 32, SZ_WG) + srd(k, 16, 40, SZ_WG) + srd(k, SD, 48, SZ_WD) + srd(k, SO, 16, SZ_WO) + srd(k, SOUT, 56, SZ_X)
    k.e(f"s_load_dwordx2 s[{34 if hoist else 28}:{35 if hoist else 29}], s[0:1], 8")
    k.e("s_sub_u32 s3, s2, 256")
    k.e("s_waitcnt lgkmcnt(0)"); k.e(*(fx + fx3))
    if prio_g is not None: k.e(f"s_setprio {prio_g}")
    def go_clear(idx=3):
        if ugo is None: return
        L = w0_begin(k)
        k.e(f"s_lshl_b32 s36, s{idx}, 7", f"s_add_u32 s36, s36, 0x{FLG_GO:x}", "v_mov_b32 v62, s36", "v_mov_b32 v63, 0", "s_mov_b64 exec, 1",
            "buffer_store_dword v63, v62, s[20:23], 0 offen sc1", "s_mov_b64 exec, -1")
        k.label(L)
    def go_wait():
        if ugo is None: return
        L = w0_begin(k)
        Ll = k.newlabel("go")
        k.e("s_waitcnt vmcnt(0)", "s_mov_b32 s38, 0", "s_mov_b64 exec, 1")
        k.label(Ll)
        k.e("buffer_load_dword v63, v62, s[20:23], 0 offen sc1", "s_add_u32 s38, s38, 1", "s_waitcnt vmcnt(0)", "v_readfirstlane_b32 s39, v63", "s_nop 3",
            "s_cmp_eq_u32 s39, 1", f"s_cbranch_scc1 {Ll}x", f"s_sleep {gosleep}", f"s_cmp_lt_u32 s38, {gomax}", f"s_cbranch_scc1 {Ll}")
        k.label(Ll + "x")
        k.e("s_mov_b64 exec, -1")
        k.label(L)
        k.e("s_barrier")
    k.stamp(0)
    go_clear()
    if gexit == 1: k.e("s_endpgm")
    def role3():
        k.e("s_and_b32 s92, s3, 7", "s_lshr_b32 s93, s3, 3")
        k.e("s_and_b32 s26, s92, 1", "s_mul_i32 s26, s26, 7", "s_lshr_b32 s94, s93, 2", "s_add_u32 s26, s26, s94",
            "s_lshr_b32 s25, s92, 1", "s_lshl_b32 s25, s25, 2", "s_and_b32 s95, s93, 3", "s_add_u32 s25, s25, s95")
        k.e("s_lshl_b32 s53, s95, 1", "s_add_u32 s53, s53, s94", "s_and_b32 s53, s53, 7")
    if hoist:
        role3()
        stats_role3(k, SWQ=34, mid=lambda: e3x_body(k, part="pre", bal=bal, rot=rot))
    elif not nostats: (stats_role3(k) if bal else stats_role2(k, xal=xal))
    if gexit == 2: k.e("s_waitcnt vmcnt(0)", "s_endpgm")
    e4 = E4F(k, SD, SO, 20, SX, SOUT, hsleep=hsleep, osleep=osleep, ep=True)
    c = e4
    k.e("s_and_b32 s92, s3, 7", "s_lshr_b32 s93, s3, 3",
        f"s_and_b32 s{c.SRB}, s93, 3", "s_lshl_b32 s94, s92, 2", f"s_add_u32 s{c.SRB}, s{c.SRB}, s94", f"s_lshr_b32 s{c.SCB}, s93, 2")
    k.e("s_cmp_ge_u32 s2, 480", "s_cbranch_scc1 L_f1_pf")
    k.e("s_and_b32 s26, s92, 1", "s_mul_i32 s26, s26, 7", "s_lshr_b32 s94, s93, 2", "s_add_u32 s26, s26, s94",
        "s_lshr_b32 s25, s92, 1", "s_lshl_b32 s25, s25, 2", "s_and_b32 s95, s93, 3", "s_add_u32 s25, s25, s95")
    k.e("s_lshl_b32 s53, s95, 1", "s_add_u32 s53, s53, s94", "s_and_b32 s53, s53, 7")
    def touchW(vd=60):
        a = 61
        k.e(f"s_and_b32 s{c.SC}, s{c.SRB}, 3", f"s_mul_i32 s{c.SK}, s{c.SC}, {112*1024}", f"s_add_u32 s{c.SK}, s{c.SK}, s{c.SDO}",
            f"s_lshl_b32 s{c.ST}, s{c.SCB}, 7", f"v_lshlrev_b32 v{a}, 10, v1", f"v_add_u32 v{a}, s{c.ST}, v{a}")
        k.vmem(f"buffer_load_dword v{vd}, v{a}, s[{c.SD}:{c.SD+3}], s{c.SK} offen", "touch")
        k.e(f"s_add_u32 s{c.SK}, s{c.SK}, 65536", "s_mov_b32 exec_hi, 0xffff")
        k.vmem(f"buffer_load_dword v{vd+2}, v{a}, s[{c.SD}:{c.SD+3}], s{c.SK} offen", "touch")
        k.e(f"s_lshl_b32 s{c.SK}, s{c.SC}, 15", f"s_add_u32 s{c.SK}, s{c.SK}, s{c.SWO}", "s_mov_b32 exec_hi, 0")
        k.vmem(f"buffer_load_dword v{vd+3}, v{a}, s[{c.SO}:{c.SO+3}], s{c.SK} offen", "touch")
        k.e("s_mov_b32 exec_hi, -1")
    def post_loop():
        k.e("s_barrier")
        e4.setup()
        for s in range(c.DEPTH): e4.issueW(s)
        if tw: touchW()
    def touch_w3():
        if touch3 in (0, 3): go_wait()
        if not touch3: return
        k.e("v_lshrrev_b32 v66, 1, v1", "v_mul_u32_u24 v66, 3584, v66", "v_and_b32 v67, 1, v1", "v_lshl_add_u32 v66, v67, 7, v66",
            "s_lshl_b32 s36, s95, 7", "s_lshl_b32 s37, s24, 5", "s_add_u32 s36, s36, s37", "s_mul_i32 s36, s36, 3584", "s_lshl_b32 s37, s26, 8", "s_add_u32 s36, s36, s37")
        k.vmem("buffer_load_dword v74, v66, s[12:15], s36 offen", "touch")
        k.vmem("buffer_load_dword v75, v66, s[16:19], s36 offen", "touch")
        if touch3 == 2: k.wait_vm("touch")
        if touch3 in (1, 2): go_wait()
    if prio_e3 is not None: k.e(f"s_setprio {prio_e3}")
    if mode3 == "x":
        e3x_body(k, part=("main" if hoist else None), bal=bal, fine=fine3, epi_prio=epi_prio, post_loop=post_loop, rot=rot, ux=ux3)
    else:
        e3s_body(k, st_sc1="sc1", epi_prio=epi_prio, post_loop=post_loop, rot=rot, outb=64, pre_dma=touch_w3, mst={"s": 0, "m": 1, "n": 2}[mode3], rper=rp3, dper=dp3,
                 hooks={11: [lambda: epoch_issue_all(k, 124)], 13: [lambda: epoch_check_all(k, 124)]})
    k.e("s_lshl_b32 s36, s25, 1", "s_add_u32 s36, s36, s27", "s_lshl_b32 s36, s36, 8", "s_lshl_b32 s37, s26, 1", "s_add_u32 s37, s37, s28",
        "s_lshl_b32 s37, s37, 3", "s_add_u32 s36, s36, s37", f"s_add_u32 s36, s36, 0x{FLG_H8:x}", "v_mov_b32 v56, s36",
        f"v_mov_b32 v58, s{SEP}", f"v_mov_b32 v59, s{SEP+1}")
    k.stamp(3)
    k.wait_vm_all()
    if gexit == 3:
        ns = getattr(k, "nostamp", False); k.stamp_out(8, 0x40000, sh=7); k.e("s_waitcnt vmcnt(0)", "s_endpgm")
    k.stamp(4)
    k.e("s_mov_b64 exec, 1")
    k.vmem("buffer_store_dwordx2 v[58:59], v56, s[20:23], 0 offen sc1", "flag")
    k.e("s_mov_b64 exec, -1")
    if post_prio is not None: k.e(f"s_setprio {post_prio}")
    k.e("s_branch L_f1_e4")
    k.label("L_f1_pf")
    if gexit == 3: k.e("s_endpgm")
    if hoist: k.e("s_waitcnt vmcnt(0)", "s_barrier")
    k.vm = []; k.lg = []
    k.e("v_and_b32 v1, 63, v0")
    if gp_touch:
        k.e("s_sub_u32 s99, s3, 224")
        go_wait()
        k.e("s_lshl_b32 s36, s99, 8", "v_add_u32 v60, s36, v0", "v_lshlrev_b32 v60, 7, v60", "s_mov_b32 s36, 0x100000")
        k.vmem(f"buffer_load_dword v61, v60, s[{SD}:{SD+3}], 0 offen", "touch")
        k.vmem(f"buffer_load_dword v62, v60, s[{SD}:{SD+3}], s36 offen", "touch")
        k.vmem(f"buffer_load_dword v63, v60, s[{SO}:{SO+3}], 0 offen", "touch")
    epoch_issue_all(k, 112)
    k.stamp(1); k.stamp(2); k.stamp(3); k.stamp(4)
    e4.setup()
    epoch_check_all(k, 112)
    for s in range(c.DEPTH): e4.issueW(s)
    if post_prio is not None: k.e(f"s_setprio {post_prio}")
    k.label("L_f1_e4")
    k.vm = [(("W", s), False) for s in range(c.DEPTH) for _ in range(2)] + [("flag", True)]
    k.lg = []
    e4.e4_prio = e4_prio; e4.post_prio = post_prio; e4.pre = pre; e4.rsleep = rsleep; e4.lim1 = lim1; e4.omod = omod; e4.hback = hback; e4.nolead = nolead; e4.hsc = hsc; e4.pback = pback
    e4.body(st=(5, 6))
    if endwait: k.wait_vm_all()
    k.stamp(7); k.stamp_out(8, 0x40000, sh=7); k.wait_vm_all()
    k.label(f"L_end_{k.name}")
    k.e("s_endpgm")
    fb()
    k.emit_tails()
    k.label("L_code_end")
    k.e("s_endpgm")
    return k

def build(fn, pk=0, **kw):
    global PK
    PK = pk
    import eng
    eng.EPK = pk & 8; eng.EPK2 = pk & 16
    k = kF1(**kw)
    txt = build_file([(k.name, (512,1,1), (256,1,1), 81920)], [k])
    open(fn, "w").write(txt)
    e = haz.check_text(txt)
    for x in e: print(x)
    print(fn, len(e), "hazards;", len(txt), "bytes")

if __name__ == "__main__":
    build("f1.s")
    KV.STAMP = True
    build("f1st.s")
```

```python
from f1 import *
import f1
B = dict(pre=3, osleep=1, omod="sc1", bal=True, prio_e1=3, prio_e2=0, qback=(22, 32, 30, 10, 2), hback=(0x7f, 4, 32, 7, 8), tsleep=16, ux1=13, ux3=14, latew=True, epearly=1, nolead=True)
def v(fn, **kw):
    d = dict(B); d.update(kw); build(f"exp/{fn}.s", **d)
v("w1")
v("v1", post_prio=1, prio_e2=1)
v("v2", e4_prio=1)
v("v3", rp3=4, dp3=1, ux3=15)
v("v4", epi_prio=2, prio_e1=3)
v("v5", prio_g=1, prio_e2=1, post_prio=1, epi_prio=2)
```

```python
import sys
sys.path.insert(0, "gen")
from eng import *
import eng, haz

FLG_GO = FLG + 0x8000

EPCONST = [False]
def epoch_issue_all(k, vd):
    if EPCONST[0]: return
    k.e(f"v_mov_b32 v{vd+2}, 0")
    k.vmem(f"global_load_dwordx2 v[{vd}:{vd+1}], v{vd+2}, s[{SDBG}:{SDBG+1}] sc1", "ep")

def epoch_check_all(k, vd):
    if EPCONST[0]:
        k.e(f"s_mov_b32 s{SEP}, 0x13572469", f"s_mov_b32 s{SEP+1}, 0x2468ace1"); return
    Ls = k.newlabel("eps"); Lc = k.newlabel("epc")
    k.wait_vm("ep")
    k.e(f"v_readfirstlane_b32 s{SEP}, v{vd}", f"v_readfirstlane_b32 s{SEP+1}, v{vd+1}", "s_nop 3", f"s_cmp_eq_u32 s{SEP}, 0", f"s_cbranch_scc1 {Ls}")
    k.label(Lc)
    def tail():
        k.label(Ls)
        k.e(f"s_mov_b32 s{SCNT}, 0")
        k.label(Ls + "_l")
        k.e(f"global_load_dwordx2 v[{vd}:{vd+1}], v{vd+2}, s[{SDBG}:{SDBG+1}] sc1", f"s_add_u32 s{SCNT}, s{SCNT}, 1", "s_waitcnt vmcnt(0)",
            f"v_readfirstlane_b32 s{SEP}, v{vd}", f"v_readfirstlane_b32 s{SEP+1}, v{vd+1}", "s_nop 3", f"s_cmp_lg_u32 s{SEP}, 0", f"s_cbranch_scc1 {Lc}",
            "s_sleep 2", f"s_cmp_lt_u32 s{SCNT}, 0x{SPIN_MAX:x}", f"s_cbranch_scc1 {Ls}_l", f"s_branch {Lc}")
    k.tails.append(tail)

TSLEEP = 1
EPEARLY = 0
LATE = 0
def tag_check(k, issue, tagregs, name, zero):
    Ls = k.newlabel(name + "s"); Lc = k.newlabel(name + "c")
    def cmp():
        k.e(f"v_cmp_eq_u32 vcc, s{SEP}, v{tagregs[0]}")
        for r in tagregs[1:]:
            k.e(f"v_cmp_eq_u32 s[36:37], s{SEP}, v{r}", "s_nop 1", "s_and_b64 vcc, vcc, s[36:37]")
        k.e("s_cmp_eq_u64 vcc, -1")
    cmp()
    k.e(f"s_cbranch_scc0 {Ls}")
    k.label(Lc)
    zero()
    def tail():
        k.label(Ls)
        k.e(f"s_mov_b32 s{SCNT}, 0")
        k.label(Ls + "_l")
        sv = (k.vm, k.lg)
        issue()
        k.vm, k.lg = sv
        k.e(f"s_add_u32 s{SCNT}, s{SCNT}, 1", "s_waitcnt vmcnt(0)")
        cmp()
        k.e(f"s_cbranch_scc1 {Lc}", f"s_sleep {TSLEEP}", f"s_cmp_lt_u32 s{SCNT}, 0x{SPIN_MAX:x}", f"s_cbranch_scc1 {Ls}_l", f"s_branch {Lc}")
    k.tails.append(tail)

def row_job2(k, s_job, srd_x, srd_ws):
    k.e("v_and_b32 v1, 63, v0", "v_lshrrev_b32 v2, 6, v0", f"s_lshl_b32 s40, s{s_job}, 14",
        "v_lshlrev_b32 v3, 12, v2", "v_lshl_add_u32 v3, v1, 4, v3", "v_add_u32 v3, s40, v3")
    for j in range(4):
        k.vmem(f"buffer_load_dwordx4 v[{4+4*j}:{7+4*j}], v3, s[{srd_x}:{srd_x+3}], 0 offen offset:{1024*j}", "rj")
    k.e("v_bfe_u32 v72, v1, 1, 2", "v_cmp_eq_u32 s[42:43], 1, v72", "v_cmp_eq_u32 s[44:45], 2, v72", "v_cmp_eq_u32 s[46:47], 3, v72")
    k.wait_vm("rj")
    epoch_issue_all(k, 74)
    for j in range(4):
        for i in range(4):
            k.e(f"v_lshlrev_b32 v{32+8*j+2*i}, 16, v{4+4*j+i}", f"v_and_b32 v{33+8*j+2*i}, 0xffff0000, v{4+4*j+i}")
    for j in range(4):
        b = 32 + 8*j
        k.e(f"v_add_f32 v{20+j}, v{b}, v{b+1}")
    for i in range(2, 8):
        for j in range(4):
            k.e(f"v_add_f32 v{20+j}, v{20+j}, v{32+8*j+i}")
    allreduce(k, [20, 21, 22, 23], [24, 25, 26, 27])
    for j in range(4): k.e(f"v_mul_f32 v{20+j}, 0x3b000000, v{20+j}")
    for i in range(8):
        for j in range(4): k.e(f"v_sub_f32 v{32+8*j+i}, v{32+8*j+i}, v{20+j}")
    for j in range(4): k.e(f"v_mul_f32 v{28+j}, v{32+8*j}, v{32+8*j}")
    for i in range(1, 8):
        for j in range(4): k.e(f"v_fmac_f32 v{28+j}, v{32+8*j+i}, v{32+8*j+i}")
    allreduce(k, [28, 29, 30, 31], [24, 25, 26, 27])
    k.e("v_cndmask_b32 v64, v20, v21, s[42:43]", "v_cndmask_b32 v65, v28, v29, s[42:43]",
        "v_cndmask_b32 v64, v64, v22, s[44:45]", "v_cndmask_b32 v65, v65, v30, s[44:45]",
        "v_cndmask_b32 v64, v64, v23, s[46:47]", "v_cndmask_b32 v65, v65, v31, s[46:47]")
    k.e("v_mov_b32 v66, 0x3727c5ac", "v_fmac_f32 v66, 0x3b000000, v65",
        "v_rsq_f32 v67, v66", "v_sub_f32 v64, 0, v64",
        "v_mul_f32 v68, v66, v67",
        "v_cvt_pk_bf16_f32 v69, v64, v64", "s_nop 0", "v_and_b32 v69, 0xffff0000, v69", "v_sub_f32 v70, v64, v69",
        "v_cvt_pk_bf16_f32 v69, v70, v70", "s_nop 0", "v_and_b32 v69, 0xffff0000, v69", "v_sub_f32 v71, v70, v69",
        "v_cvt_pk_bf16_f32 v4, v64, v70", "v_cvt_pk_bf16_f32 v6, v71, v64",
        "v_and_b32 v72, 1, v1", "v_cmp_eq_u32 vcc, 1, v72", "v_mov_b32 v5, v4")
    k.e(f"s_lshl_b32 s40, s{s_job}, 9", "v_lshlrev_b32 v3, 7, v2", "v_lshl_add_u32 v3, v1, 4, v3", "v_add_u32 v3, s40, v3")
    epoch_check_all(k, 74)
    k.e(f"v_mov_b32 v7, s{SEP}",
        "v_cndmask_b32 v4, v4, v67, vcc", "v_cndmask_b32 v5, v5, v68, vcc", "v_cndmask_b32 v6, v6, v7, vcc")
    k.e("v_cmp_gt_u32 vcc, 8, v1", "s_and_saveexec_b64 s[42:43], vcc")
    k.vmem(f"buffer_store_dwordx4 v[4:7], v3, s[{srd_ws}:{srd_ws+3}], 0 offen offset:{WS_TOK} sc1", "st")
    k.e("s_mov_b64 exec, s[42:43]")

def col_job2(k, s_job, srd_w, s_ld, s_col0b, srd_ws, s_half=None, mid=None):
    NL = 16 if s_half is None else 8
    k.e("v_and_b32 v1, 63, v0", "v_lshrrev_b32 v2, 6, v0", "v_lshrrev_b32 v3, 3, v1", f"v_lshl_add_u32 v3, v2, {7 if s_half is None else 6}, v3")
    if s_half is not None: k.e(f"s_lshl_b32 s40, s{s_half}, 8", "v_add_u32 v3, s40, v3")
    k.e(
        f"v_mul_lo_u32 v3, v3, s{s_ld}", "v_and_b32 v4, 7, v1", "v_lshl_add_u32 v3, v4, 4, v3", f"v_add_u32 v3, s{s_col0b}, v3",
        f"s_lshl_b32 s41, s{s_ld}, 3", "s_mov_b32 s40, 0")
    for i in range(NL):
        k.vmem(f"buffer_load_dwordx4 v[{8+4*i}:{11+4*i}], v3, s[{srd_w}:{srd_w+3}], s40 offen", ("cj", i))
        if i < NL - 1: k.e("s_add_u32 s40, s40, s41")
    LB = 32768 if mid else 0
    if mid and not LATE:
        epoch_issue_all(k, 74); mid()
    k.e("s_mov_b32 s42, 0x00003f80", "s_mov_b32 s43, 0x3f800000")
    A = 80
    for i in range(8): k.e(f"v_mov_b32 v{A+i}, 0")
    for i in range(NL):
        k.wait_vm(("cj", i))
        if i == (0 if EPEARLY else NL - 1) and (not mid or LATE): epoch_issue_all(k, 74)
        for d in range(4):
            k.e(f"v_dot2_f32_bf16 v{A+2*d}, v{8+4*i+d}, s42, v{A+2*d}", f"v_dot2_f32_bf16 v{A+1+2*d}, v{8+4*i+d}, s43, v{A+1+2*d}")
    k.e("s_nop 2")
    for i in range(8): k.e(f"v_add_f32_dpp v{A+i}, v{A+i}, v{A+i} row_ror:8 row_mask:0xf bank_mask:0xf")
    k.e("v_lshrrev_b32 v5, 4, v1", "v_lshl_add_u32 v5, v2, 2, v5", "v_lshlrev_b32 v5, 8, v5", "v_lshl_add_u32 v5, v4, 5, v5",
        "v_and_b32 v6, 15, v1", "v_cmp_gt_u32 vcc, 8, v6", "s_and_saveexec_b64 s[44:45], vcc")
    k.ds(f"ds_write_b128 v5, v[{A}:{A+3}] offset:{LB}")
    k.ds(f"ds_write_b128 v5, v[{A+4}:{A+7}] offset:{LB+16}")
    k.e("s_mov_b64 exec, s[44:45]")
    k.wait_lg_all()
    k.e("s_barrier")
    if mid and LATE: mid()
    k.e("v_lshlrev_b32 v5, 2, v1")
    for p in range(16): k.ds(f"ds_read_b32 v{8+p}, v5 offset:{LB+256*p}")
    k.wait_lg_all()
    for st in (8, 4, 2, 1):
        for p in range(st): k.e(f"v_add_f32 v{8+p}, v{8+p}, v{8+p+st}")
    k.e("s_nop 0",
        "v_cvt_pk_bf16_f32 v12, v8, v8", "s_nop 0", "v_and_b32 v9, 0xffff0000, v12", "v_sub_f32 v9, v8, v9",
        "v_cvt_pk_bf16_f32 v13, v9, v9", "s_nop 0", "v_and_b32 v10, 0xffff0000, v13", "v_sub_f32 v10, v9, v10",
        "v_cvt_pk_bf16_f32 v14, v8, v10",
        f"s_lshl_b32 s40, s{s_job}, 10", "v_lshlrev_b32 v5, 4, v1", "v_add_u32 v5, s40, v5", f"s_mov_b32 s40, {WS_COL}")
    if s_half is not None: k.e(f"s_mul_i32 s41, s{s_half}, {COL2}", "s_add_u32 s40, s40, s41")
    epoch_check_all(k, 74)
    k.e(f"v_mov_b32 v15, s{SEP}", "v_cmp_gt_u32 vcc, 64, v0", "s_and_saveexec_b64 s[44:45], vcc")
    Lx = k.newlabel("cjx")
    k.e(f"s_cbranch_execz {Lx}")
    k.vmem(f"buffer_store_dwordx4 v[12:15], v5, s[{srd_ws}:{srd_ws+3}], s40 offen sc1", "st", opt=True)
    k.label(Lx)
    k.e("s_mov_b64 exec, s[44:45]")
    if not (mid and LATE): k.e("s_barrier")

def stats_role2(k, SWQ=28, xal=False):
    Lc = k.newlabel("stc"); Ld = k.newlabel("std"); Lg = k.newlabel("stg")
    k.e("s_cmp_ge_u32 s3, 208", f"s_cbranch_scc1 {Ld}", "s_cmp_ge_u32 s3, 128", f"s_cbranch_scc1 {Lc}")
    if xal:
        k.e("s_and_b32 s96, s3, 7", "s_lshr_b32 s97, s3, 3", "s_lshl_b32 s96, s96, 4", "s_add_u32 s98, s96, s97")
    else: k.e("s_mov_b32 s98, s3")
    row_job2(k, 98, 8, 20)
    k.e(f"s_branch {Ld}")
    k.label(Lc)
    v0 = list(k.vm)
    k.vm = []; k.lg = []
    k.e("s_sub_u32 s98, s3, 128")
    if xal:
        La = k.newlabel("xa"); Lb = k.newlabel("xb")
        k.e("s_and_b32 s96, s98, 7", "s_lshr_b32 s97, s98, 3", "s_cmp_ge_u32 s97, 3", f"s_cbranch_scc1 {La}",
            "s_and_b32 s92, s96, 1", "s_lshl_b32 s92, s92, 2", "s_lshr_b32 s93, s96, 1", "s_add_u32 s92, s92, s93", "s_lshl_b32 s98, s97, 3", "s_add_u32 s98, s98, s92", f"s_branch {Lb}")
        k.label(La)
        k.e("s_lshr_b32 s92, s96, 1", "s_mul_i32 s92, s92, 7", "s_add_u32 s92, s92, s97", "s_sub_u32 s92, s92, 3",
            "s_and_b32 s93, s96, 1", "s_mul_i32 s93, s93, 7", "s_lshr_b32 s94, s92, 2", "s_add_u32 s93, s93, s94",
            "s_lshl_b32 s93, s93, 1", "s_and_b32 s94, s92, 1", "s_add_u32 s93, s93, s94",
            "s_bfe_u32 s94, s92, 0x10001", "s_mul_i32 s94, s94, 28", "s_add_u32 s98, s93, s94", "s_add_u32 s98, s98, 24")
        k.label(Lb)
    k.e(
        f"s_mov_b32 s92, s{SWQ}", f"s_mov_b32 s93, s{SWQ+1}", f"s_mov_b32 s94, {SZ_WQKV}", "s_mov_b32 s95, 0x00020000",
        "s_movk_i32 s96, 3072", "s_lshl_b32 s97, s98, 7",
        "s_cmp_lt_u32 s98, 24", f"s_cbranch_scc1 {Lg}",
        "s_mov_b32 s92, s12", "s_mov_b32 s93, s13", f"s_mov_b32 s94, {SZ_WG}", "s_movk_i32 s96, 3584",
        "s_sub_u32 s97, s98, 24", "s_lshl_b32 s97, s97, 7",
        "s_cmp_lt_u32 s98, 52", f"s_cbranch_scc1 {Lg}",
        "s_mov_b32 s92, s16", "s_mov_b32 s93, s17", "s_sub_u32 s97, s98, 52", "s_lshl_b32 s97, s97, 7")
    k.label(Lg)
    col_job2(k, 98, 92, 96, 97, 20)
    k.label(Ld)
    k.vm = [("st", True)]; k.lg = []

COL2 = 0x14000
def row_job3(k, s_job, srd_x, srd_ws, mid=None):
    k.e("v_and_b32 v1, 63, v0", "v_lshrrev_b32 v2, 6, v0", f"s_lshl_b32 s40, s{s_job}, 15", "s_movk_i32 s41, 4096",
        "v_lshlrev_b32 v3, 13, v2", "v_lshl_add_u32 v3, v1, 4, v3", "v_add_u32 v3, s40, v3")
    SRC = (4, 80)
    for b in range(2):
        for j in range(4):
            k.vmem(f"buffer_load_dwordx4 v[{SRC[b]+4*j}:{SRC[b]+3+4*j}], v3, s[{srd_x}:{srd_x+3}], {'s41' if b else '0'} offen offset:{1024*j}", ("rj", b))
    if mid and not LATE:
        epoch_issue_all(k, 74); mid()
    k.e("v_bfe_u32 v72, v1, 1, 2", "v_cmp_eq_u32 s[42:43], 1, v72", "v_cmp_eq_u32 s[44:45], 2, v72", "v_cmp_eq_u32 s[46:47], 3, v72")
    k.e(f"s_lshl_b32 s40, s{s_job}, 10", "v_lshlrev_b32 v73, 8, v2", "v_lshl_add_u32 v73, v1, 4, v73", "v_add_u32 v73, s40, v73")
    for b in range(2):
        S = SRC[b]
        k.wait_vm(("rj", b))
        if b == 0 and (not mid or LATE): epoch_issue_all(k, 74)
        if b == LATE - 1 and mid and LATE: mid()
        for j in range(4):
            for i in range(4):
                k.e(f"v_lshlrev_b32 v{32+8*j+2*i}, 16, v{S+4*j+i}", f"v_and_b32 v{33+8*j+2*i}, 0xffff0000, v{S+4*j+i}")
        for j in range(4):
            bb = 32 + 8*j
            k.e(f"v_add_f32 v{20+j}, v{bb}, v{bb+1}")
        for i in range(2, 8):
            for j in range(4):
                k.e(f"v_add_f32 v{20+j}, v{20+j}, v{32+8*j+i}")
        allreduce(k, [20, 21, 22, 23], [24, 25, 26, 27])
        for j in range(4): k.e(f"v_mul_f32 v{20+j}, 0x3b000000, v{20+j}")
        for i in range(8):
            for j in range(4): k.e(f"v_sub_f32 v{32+8*j+i}, v{32+8*j+i}, v{20+j}")
        for j in range(4): k.e(f"v_mul_f32 v{28+j}, v{32+8*j}, v{32+8*j}")
        for i in range(1, 8):
            for j in range(4): k.e(f"v_fmac_f32 v{28+j}, v{32+8*j+i}, v{32+8*j+i}")
        allreduce(k, [28, 29, 30, 31], [24, 25, 26, 27])
        k.e("v_cndmask_b32 v64, v20, v21, s[42:43]", "v_cndmask_b32 v65, v28, v29, s[42:43]",
            "v_cndmask_b32 v64, v64, v22, s[44:45]", "v_cndmask_b32 v65, v65, v30, s[44:45]",
            "v_cndmask_b32 v64, v64, v23, s[46:47]", "v_cndmask_b32 v65, v65, v31, s[46:47]")
        k.e("v_mov_b32 v66, 0x3727c5ac", "v_fmac_f32 v66, 0x3b000000, v65",
            "v_rsq_f32 v67, v66", "v_sub_f32 v64, 0, v64",
            "v_mul_f32 v68, v66, v67",
            "v_cvt_pk_bf16_f32 v69, v64, v64", "s_nop 0", "v_and_b32 v69, 0xffff0000, v69", "v_sub_f32 v70, v64, v69",
            "v_cvt_pk_bf16_f32 v69, v70, v70", "s_nop 0", "v_and_b32 v69, 0xffff0000, v69", "v_sub_f32 v71, v70, v69",
            "v_cvt_pk_bf16_f32 v96, v64, v70", "v_cvt_pk_bf16_f32 v98, v71, v64",
            "v_and_b32 v72, 1, v1", "v_cmp_eq_u32 vcc, 1, v72", "v_mov_b32 v97, v96")
        if b == 0: epoch_check_all(k, 74)
        k.e(f"v_mov_b32 v99, s{SEP}", "v_and_b32 v72, 1, v1", "v_cmp_eq_u32 vcc, 1, v72", "s_nop 1",
            "v_cndmask_b32 v96, v96, v67, vcc", "v_cndmask_b32 v97, v97, v68, vcc", "v_cndmask_b32 v98, v98, v99, vcc")
        k.e("v_cmp_gt_u32 vcc, 8, v1", "s_and_saveexec_b64 s[48:49], vcc")
        k.vmem(f"buffer_store_dwordx4 v[96:99], v73, s[{srd_ws}:{srd_ws+3}], 0 offen offset:{WS_TOK + 128*b} sc1", "st")
        k.e("s_mov_b64 exec, s[48:49]", "s_nop 1")

def stats_role3(k, SWQ=28, mid=None):
    Lc = k.newlabel("stc"); Ld = k.newlabel("std"); Lg = k.newlabel("stg"); Lq = k.newlabel("stq")
    k.e("s_cmp_ge_u32 s3, 64", f"s_cbranch_scc1 {Lc}")
    k.e("s_mov_b32 s98, s3")
    row_job3(k, 98, 8, 20, mid=mid)
    k.e(f"s_branch {Ld}")
    Lf = k.newlabel("stf")
    if mid:
        k.label(Lf)
        k.vm = []; k.lg = []
        mid()
        k.e(f"s_branch {Ld}")
    k.label(Lc)
    k.vm = []; k.lg = []
    k.e("s_sub_u32 s98, s3, 64", "s_cmp_lt_u32 s3, 112", f"s_cbranch_scc1 {Lq}", "s_cmp_lt_u32 s3, 144", f"s_cbranch_scc1 {Lf if mid else Ld}", "s_sub_u32 s98, s3, 96")
    k.label(Lq)
    k.e("s_and_b32 s99, s98, 1", "s_lshr_b32 s98, s98, 1")
    k.e(
        f"s_mov_b32 s92, s{SWQ}", f"s_mov_b32 s93, s{SWQ+1}", f"s_mov_b32 s94, {SZ_WQKV}", "s_mov_b32 s95, 0x00020000",
        "s_movk_i32 s96, 3072", "s_lshl_b32 s97, s98, 7",
        "s_cmp_lt_u32 s98, 24", f"s_cbranch_scc1 {Lg}",
        "s_mov_b32 s92, s12", "s_mov_b32 s93, s13", f"s_mov_b32 s94, {SZ_WG}", "s_movk_i32 s96, 3584",
        "s_sub_u32 s97, s98, 24", "s_lshl_b32 s97, s97, 7",
        "s_cmp_lt_u32 s98, 52", f"s_cbranch_scc1 {Lg}",
        "s_mov_b32 s92, s16", "s_mov_b32 s93, s17", "s_sub_u32 s97, s98, 52", "s_lshl_b32 s97, s97, 7")
    k.label(Lg)
    col_job2(k, 98, 92, 96, 97, 20, s_half=99, mid=mid)
    k.label(Ld)
    k.vm = [("st", True), ("st", True)]; k.lg = []
    if mid: k.vm = [(("X", 0), False)]*4 + [(("W", 0), False)]*4 + [(("W", 1), False)]*4 + k.vm

PK = 0
def e1x_body(k, first_dma=None, SX=8, SW=12, SWS=20, exit_loop=False, noex=False, wx=0, bal=False, rot=True, ux=11, pre_store=None, dup=False, rper=5, dper=2, notag=False, touch=False, fine=False):
    E1_XB = 49152
    k.e("v_and_b32 v1, 63, v0")
    k.e("v_and_b32 v11, 31, v1", "v_lshrrev_b32 v12, 5, v1")
    k.e("s_and_b32 s27, s24, 1", "s_lshr_b32 s28, s24, 1")
    k.e("v_lshrrev_b32 v13, 3, v1", "v_lshrrev_b32 v14, 4, v1", "v_and_b32 v15, 7, v1",
        "v_xor_b32 v7, v15, v14", "v_lshlrev_b32 v7, 4, v7", "v_lshl_add_u32 v7, v13, 10, v7",
        "s_lshl_b32 s29, s25, 16", "s_lshl_b32 s30, s24, 14", "s_add_u32 s29, s29, s30",
        "v_add_u32 v7, s29, v7", "v_xor_b32 v8, 64, v7", "v_add_u32 v8, 8192, v8")
    k.e("v_and_b32 v14, 1, v14", "v_lshlrev_b32 v14, 2, v14", "v_xor_b32 v9, v15, v14", "v_lshlrev_b32 v9, 4, v9",
        "s_lshl_b32 s30, s24, 3", "v_add_u32 v13, s30, v13", "v_mul_u32_u24 v13, 3072, v13", "v_add_u32 v9, v9, v13",
        f"s_xor_b32 s30, s26, {wx}", "s_lshl_b32 s30, s30, 7", "v_add_u32 v9, s30, v9")
    k.e(f"s_lshl_b32 s31, s24, 11", f"s_add_u32 s31, s31, {E1_XB}", "s_lshl_b32 s32, s24, 10")
    def xd(v):
        if rot:
            return [dmab(SX, 7, 31, (v % 3)*8192, 33, 51, 0, ("X", v)),
                    dmab(SX, 8, 31, (v % 3)*8192 + 1024, 33, 51, 0, ("X", v), post=["s_add_u32 s51, s51, 128", "s_and_b32 s51, s51, 1023"])]
        return [dma(SX, 7, 31, (v % 3)*8192, 33, v*128, ("X", v)), dma(SX, 8, 31, (v % 3)*8192 + 1024, 33, v*128, ("X", v))]
    def wd(u):
        if rot:
            return [dmab(SW, 9, 32, (u % 4)*12288 + p*4096, 33, 50, 0, ("W", u), imm=1024*p, post=(rot_adv(50, 32*3072, 512*3072, 52) if p == 2 else ())) for p in range(3)]
        return [dma(SW, 9, 32, (u % 4)*12288 + p*4096, 33, u*32*3072, ("W", u), imm=1024*p) for p in range(3)]
    if rot:
        k.e("s_lshl_b32 s51, s53, 7", f"s_mul_i32 s50, s53, {64*3072}")
    if touch:
        k.e("v_lshrrev_b32 v130, 3, v1", "v_and_b32 v131, 7, v1", "v_lshlrev_b32 v131, 7, v131", "v_lshl_add_u32 v130, v130, 10, v131",
            "s_and_b32 s34, s26, 3", "s_lshl_b32 s34, s34, 4", "s_lshl_b32 s35, s24, 2", "s_add_u32 s34, s34, s35", "s_lshl_b32 s34, s34, 10", "s_lshl_b32 s35, s25, 16", "s_add_u32 s34, s34, s35",
            "s_mov_b32 exec_hi, 0")
        k.vmem(f"buffer_load_dword v132, v130, s[{SX}:{SX+3}], s34 offen", "touch")
        k.e("s_mov_b32 exec_hi, -1")
        k.e("v_and_b32 v130, 15, v1", "v_mul_u32_u24 v130, 3072, v130", "v_lshrrev_b32 v131, 4, v1", "v_lshl_add_u32 v130, v131, 10, v130",
            "s_and_b32 s34, s25, 7", "s_lshl_b32 s34, s34, 6", "s_lshl_b32 s35, s24, 4", "s_add_u32 s34, s34, s35", "s_mul_i32 s34, s34, 3072", "s_lshl_b32 s35, s26, 7", "s_add_u32 s34, s34, s35",
            "s_mov_b32 exec_hi, 0xffff")
        k.vmem(f"buffer_load_dword v133, v130, s[{SW}:{SW+3}], s34 offen", "touch")
        k.e("s_mov_b32 exec_hi, -1")
    if first_dma:
        G0 = xd(0) + wd(0) + wd(1) + xd(1) + wd(2)
        first_dma()
        emit_groups(k, G0)
    else:
        emit_groups(k, xd(0) + wd(0) + wd(1) + xd(1) + wd(2))
    k.e("s_lshl_b32 s36, s27, 5", "v_add_u32 v13, s36, v11", "v_bfe_u32 v14, v13, 1, 3", "v_xor_b32 v14, v14, v12",
        "v_lshlrev_b32 v14, 4, v14", "v_lshl_add_u32 v2, v13, 7, v14", f"v_add_u32 v2, {E1_XB}, v2",
        "v_xor_b32 v3, 32, v2", "v_xor_b32 v4, 64, v2", "v_xor_b32 v5, 96, v2")
    k.e("v_bfe_u32 v13, v1, 2, 2", "v_lshl_add_u32 v13, v12, 3, v13", "v_lshlrev_b32 v6, 7, v13",
        "v_bfe_u32 v13, v1, 4, 1", "v_lshlrev_b32 v13, 1, v13", "v_bfe_u32 v14, v1, 1, 1", "v_add_u32 v13, v13, v14",
        "s_lshl_b32 s36, s28, 2", "v_add_u32 v13, s36, v13", "v_bfe_u32 v14, v1, 3, 1", "v_lshlrev_b32 v14, 2, v14",
        "v_xor_b32 v13, v13, v14", "v_lshl_add_u32 v6, v13, 4, v6", "v_and_b32 v14, 1, v1", "v_lshl_add_u32 v6, v14, 3, v6",
        "v_xor_b32 v10, 2048, v6")
    k.e("s_lshl_b32 s34, s25, 6", "s_lshl_b32 s35, s27, 5", "s_add_u32 s34, s34, s35", "v_add_u32 v117, s34, v11", "v_lshlrev_b32 v117, 5, v117",
        "s_lshl_b32 s35, s26, 6", "s_lshl_b32 s36, s28, 5", "s_add_u32 s35, s35, s36", "v_add_u32 v118, s35, v11", "v_lshlrev_b32 v118, 4, v118")
    if bal: k.e(f"v_mul_u32_u24 v13, 0x{COL2:x}, v12", "v_add_u32 v118, v118, v13")
    def extras():
        k.vmem(f"buffer_load_dwordx4 v[48:51], v117, s[{SWS}:{SWS+3}], 0 offen offset:{WS_TOK} sc1", "ex")
        k.vmem(f"buffer_load_dwordx4 v[112:115], v117, s[{SWS}:{SWS+3}], 0 offen offset:{WS_TOK+16} sc1", "ex")
        for p in range(3):
            k.e(f"s_mov_b32 s36, {WS_COL + 8192*p}")
            k.vmem(f"buffer_load_dwordx4 v[{52+4*p}:{55+4*p}], v118, s[{SWS}:{SWS+3}], s36 offen sc1", "ex")
    ACC = 64
    def fr(st): return 16 + 16*st
    def reads(g, st):
        b = fr(st); u = g >> 1; v = g >> 2
        out = [(f"ds_read_b128 v[{b}:{b+3}], v{2 + (g & 3)} offset:{(v % 3)*8192}", "X")]
        av = 6 if (g & 1) == 0 else 10
        for p in range(3):
            o = (u % 4)*12288 + p*4096
            out.append((f"ds_read_b64_tr_b16 v[{b+4+4*p}:{b+5+4*p}], v{av} offset:{o}", f"W{p}"))
            out.append((f"ds_read_b64_tr_b16 v[{b+6+4*p}:{b+7+4*p}], v{av} offset:{o+512}", f"W{p}"))
        return out
    def mf(b_x, b_w, first):
        out = []
        for p in range(3):
            a = ACC + 16*p
            w = f"v[{b_w+4*p}:{b_w+4*p+3}]"; x = f"v[{b_x}:{b_x+3}]"
            A, B = (w, x) if p < 2 else (x, w)
            c = "0" if first else f"v[{a}:{a+15}]"
            out.append((f"{MF} v[{a}:{a+15}], {A}, {B}, {c}", ["X", f"W{p}"]))
        return out
    def mfmas(g, st): return mf(fr(st), fr(st) + 4, g == 0)
    def dmas(u):
        out = []
        if u + 3 < 16: out += wd(u + 3)
        if u % 2 == 0 and u//2 + 2 < 8: out += xd(u//2 + 2)
        return out
    hooks = {ux - 1: [lambda: epoch_issue_all(k, 120)], ux: [extras]}
    if noex: hooks = {}
    pre_hooks = None
    if fine: pre_hooks = {0: lambda: k.stamp(9), 1: lambda: k.stamp(10), 4: lambda: k.stamp(11), 10: lambda: k.stamp(12)}
    k.stamp(1)
    gemm2(k, 16, mfmas, reads, dmas, lambda u: [("W", u), ("X", u >> 1)], fill0=None, rper=rper, dper=dper, hooks=hooks, pre_hooks=pre_hooks)
    k.stamp(2)
    if exit_loop:
        for i in range(3, 9): k.stamp(i)
        k.stamp_out(9, 0, sh=7); k.e("s_waitcnt vmcnt(0)", "s_endpgm")
    epoch_check_all(k, 120)
    k.wait_vm("ex")
    def zero():
        for r in (51, 55, 59, 63): k.e(f"v_mov_b32 v{r}, 0")
        if bal:
            k.e("s_nop 1")
            return
        k.e("s_mov_b32 exec_lo, 0")
        for r in range(48, 64):
            if r not in (51, 55, 59, 63): k.e(f"v_mov_b32 v{r}, 0")
        k.e("s_mov_b32 exec_lo, -1", "s_nop 1")
    if notag: zero()
    else: tag_check(k, extras, [51, 114, 55, 59, 63], "x1", zero)
    for (t, _) in mf(48, 52, False): k.e(t)
    k.e("s_lshl_b32 s36, s24, 7", "v_lshlrev_b32 v13, 2, v11", "v_add_u32 v13, s36, v13")
    k.ds("ds_write_b32 v13, v112")
    k.e("v_lshlrev_b32 v13, 4, v12", "v_add_u32 v13, s36, v13")
    k.wait_lg_all()
    for gq in range(4): k.ds(f"ds_read_b128 v[{32+4*gq}:{35+4*gq}], v13 offset:{32*gq}")
    k.e(f"v_mul_f32 v113, 0x{f2u(0.25*LOG2E):08x}, v112")
    if pre_store: pre_store()
    k.e("v_lshlrev_b32 v10, 4, v1",
        "s_lshl_b32 s36, s26, 2", "s_lshl_b32 s37, s28, 1", "s_add_u32 s36, s36, s37", "s_lshl_b32 s36, s36, 16",
        "s_lshl_b32 s37, s25, 1", "s_add_u32 s37, s37, s27", "s_lshl_b32 s37, s37, 10", "s_add_u32 s36, s36, s37")
    k.e("v_lshrrev_b32 v17, 4, v11", "v_lshlrev_b32 v17, 16, v17", "v_lshl_add_u32 v17, v12, 8, v17", "v_and_b32 v18, 15, v11", "v_lshl_add_u32 v17, v18, 4, v17")
    k.e("s_nop 4")
    modes = ("sc1", "") if dup else ("sc1",)
    for p, (scale, base) in enumerate(((113, WS_QF), (112, WS_KF))):
        a = ACC + 16*p
        if PK & 2:
            for r in range(0, 16, 2): k.e(f"v_pk_mul_f32 v[{a+r}:{a+r+1}], v[{a+r}:{a+r+1}], v[112:113] op_sel:[0,{scale-112}] op_sel_hi:[1,{scale-112}]")
        else:
            for r in range(16): k.e(f"v_mul_f32 v{a+r}, v{a+r}, v{scale}")
        for j in range(2):
            d = 20 + 8*p + 4*j if p == 0 else 48 + 4*j
            for i in range(4): k.e(f"v_cvt_pk_bf16_f32 v{d+i}, v{a+8*j+2*i}, v{a+8*j+2*i+1}")
            k.e(f"s_add_u32 s37, s36, 0x{base + j*65536:x}")
            for m in modes: k.vmem(f"buffer_store_dwordx4 v[{d}:{d+3}], v10, s[{SWS}:{SWS+3}], s37 offen {m}", "st")
    k.wait_lg_all()
    a = ACC + 32
    if PK & 4:
        for r in range(0, 16, 2): k.e(f"v_pk_mul_f32 v[{a+r}:{a+r+1}], v[{a+r}:{a+r+1}], v[{32+r}:{33+r}]")
    else:
        for r in range(16): k.e(f"v_mul_f32 v{a+r}, v{a+r}, v{32+r}")
    k.e(f"s_add_u32 s37, s36, 0x{WS_VF:x}")
    for j in range(2):
        d = 56 + 4*j
        for i in range(4): k.e(f"v_cvt_pk_bf16_f32 v{d+i}, v{a+8*j+2*i}, v{a+8*j+2*i+1}")
        for m in modes: k.vmem(f"buffer_store_dwordx4 v[{d}:{d+3}], v17, s[{SWS}:{SWS+3}], s37 offen offset:{512*j} {m}", "st")

def e3x_body(k, SX=8, SG=12, SU=16, SWS=20, part=None, bal=False, fine=False, epi_prio=None, post_loop=None, rot=True, ux=11, rper=4, dper=1, pre_loop=None):
    XB = 49152
    line0 = len(k.lines)
    k.e("v_and_b32 v1, 63, v0")
    k.e("v_and_b32 v11, 31, v1", "v_lshrrev_b32 v12, 5, v1")
    k.e("s_and_b32 s27, s24, 1", "s_lshr_b32 s28, s24, 1")
    k.e("v_lshrrev_b32 v13, 3, v1", "v_lshrrev_b32 v14, 4, v1", "v_and_b32 v15, 7, v1",
        "v_xor_b32 v7, v15, v14", "v_lshlrev_b32 v7, 4, v7", "v_lshl_add_u32 v7, v13, 10, v7",
        "s_lshl_b32 s29, s25, 17", "s_lshl_b32 s30, s24, 15", "s_add_u32 s29, s29, s30",
        "v_add_u32 v7, s29, v7", "v_xor_b32 v8, 64, v7", "v_add_u32 v8, 8192, v8")
    k.e("v_lshlrev_b32 v13, 2, v14", "v_and_b32 v15, 15, v1", "v_xor_b32 v9, v15, v13", "v_lshlrev_b32 v9, 4, v9",
        "s_lshl_b32 s30, s24, 3", "v_add_u32 v13, s30, v14", "v_mul_u32_u24 v13, 3584, v13", "v_add_u32 v9, v9, v13",
        "s_lshl_b32 s30, s26, 8", "v_add_u32 v9, s30, v9")
    k.e(f"s_lshl_b32 s31, s24, 12", f"s_add_u32 s31, s31, {XB}", "s_lshl_b32 s32, s24, 11")
    def xd(v):
        if rot:
            return [dmab(SX, 7 + (i & 1), 31, (v % 2)*16384 + i*1024, 33, 51, (i >> 1)*16384, ("X", v),
                         post=(["s_add_u32 s51, s51, 128", "s_and_b32 s51, s51, 1023"] if i == 3 else ())) for i in range(4)]
        return [dma(SX, 7 + (i & 1), 31, (v % 2)*16384 + i*1024, 33, v*128 + (i >> 1)*16384, ("X", v)) for i in range(4)]
    def wd(u):
        out = []
        for i in range(2):
            for p, sr in enumerate((SG, SU)):
                if rot:
                    out.append(dmab(sr, 9, 32, (u % 3)*16384 + p*8192 + i*1024, 33, 50, 4*i*3584, ("W", u),
                                    post=(rot_adv(50, 32*3584, 512*3584, 52) if (i, p) == (1, 1) else ())))
                else:
                    out.append(dma(sr, 9, 32, (u % 3)*16384 + p*8192 + i*1024, 33, (u*32 + 4*i)*3584, ("W", u)))
        return out
    if part != "main":
        if rot:
            k.e("s_lshl_b32 s51, s53, 7", f"s_mul_i32 s50, s53, {64*3584}")
        emit_groups(k, xd(0) + wd(0) + wd(1))
    if part == "pre":
        import re
        for i in range(line0, len(k.lines)):
            k.lines[i] = re.sub(r"\bv(\d+)\b", lambda m: m.group(0) if int(m.group(1)) < 2 else f"v{int(m.group(1)) + 200}", k.lines[i])
        return
    if pre_loop: pre_loop()
    k.e("s_lshl_b32 s36, s27, 6", "v_add_u32 v13, s36, v11", "v_bfe_u32 v14, v13, 1, 3", "v_xor_b32 v14, v14, v12",
        "v_lshlrev_b32 v14, 4, v14", "v_lshl_add_u32 v2, v13, 7, v14", f"v_add_u32 v2, {XB}, v2",
        "v_xor_b32 v3, 32, v2", "v_xor_b32 v4, 64, v2", "v_xor_b32 v5, 96, v2")
    k.e("v_bfe_u32 v15, v1, 2, 2", "v_lshl_add_u32 v13, v12, 3, v15", "v_lshlrev_b32 v6, 8, v13",
        "v_bfe_u32 v13, v1, 4, 1", "v_lshlrev_b32 v13, 1, v13", "v_bfe_u32 v14, v1, 1, 1", "v_add_u32 v13, v13, v14",
        "s_lshl_b32 s36, s28, 3", "v_add_u32 v13, s36, v13", "v_lshlrev_b32 v15, 2, v15",
        "v_xor_b32 v13, v13, v15", "v_lshl_add_u32 v6, v13, 4, v6", "v_and_b32 v14, 1, v1", "v_lshl_add_u32 v6, v14, 3, v6",
        "v_xor_b32 v10, 64, v6", "v_xor_b32 v72, 4096, v6", "v_xor_b32 v73, 4096, v10")
    k.e("s_lshl_b32 s34, s25, 7", "s_lshl_b32 s35, s27, 6", "s_add_u32 s34, s34, s35", "v_add_u32 v108, s34, v11", "v_lshlrev_b32 v108, 5, v108",
        "s_lshl_b32 s35, s26, 7", "s_lshl_b32 s36, s28, 6", "s_add_u32 s35, s35, s36", "v_add_u32 v109, s35, v11", "v_lshlrev_b32 v109, 4, v109")
    if bal: k.e(f"v_mul_u32_u24 v13, 0x{COL2:x}, v12", "v_add_u32 v109, v109, v13")
    EX = 76
    def extras():
        for tb in range(2):
            k.vmem(f"buffer_load_dwordx4 v[{EX+4*tb}:{EX+3+4*tb}], v108, s[{SWS}:{SWS+3}], 0 offen offset:{WS_TOK+1024*tb} sc1", "ex")
            k.vmem(f"buffer_load_dwordx4 v[{100+4*tb}:{103+4*tb}], v108, s[{SWS}:{SWS+3}], 0 offen offset:{WS_TOK+16+1024*tb} sc1", "ex")
        for part in range(2):
            k.e(f"s_mov_b32 s36, {WS_COL + (1536 + 1792*part)*16}")
            for b in range(2):
                d = EX + 8 + 8*part + 4*b
                k.vmem(f"buffer_load_dwordx4 v[{d}:{d+3}], v109, s[{SWS}:{SWS+3}], s36 offen offset:{512*b} sc1", "ex")
    ACC = 128
    def fr(st): return 16 + 24*st
    def acc(part, b, tb): return ACC + 16*(part*4 + b*2 + tb)
    def reads(g, st):
        b0 = fr(st); u = g >> 1; v = g >> 2
        def wr(part, b):
            d = b0 + 8 + 8*part + 4*b
            o = (u % 3)*16384 + part*8192
            av = ((6, 10), (72, 73))[g & 1][b]
            return [(f"ds_read_b64_tr_b16 v[{d}:{d+1}], v{av} offset:{o}", f"W{part}{b}"),
                    (f"ds_read_b64_tr_b16 v[{d+2}:{d+3}], v{av} offset:{o+1024}", f"W{part}{b}")]
        def xr(tb): return [(f"ds_read_b128 v[{b0+4*tb}:{b0+4*tb+3}], v{2 + (g & 3)} offset:{(v % 2)*16384 + tb*4096}", f"X{tb}")]
        return xr(0) + wr(0, 0) + xr(1) + wr(0, 1) + wr(1, 0) + wr(1, 1)
    def mf(b0, first):
        out = []
        for part in range(2):
            for b in range(2):
                for tb in range(2):
                    a = acc(part, b, tb); w = b0 + 8 + 8*part + 4*b; x = b0 + 4*tb
                    c = "0" if first else f"v[{a}:{a+15}]"
                    out.append((f"{MF} v[{a}:{a+15}], v[{w}:{w+3}], v[{x}:{x+3}], {c}", [f"X{tb}", f"W{part}{b}"]))
        return out
    def mfmas(g, st): return mf(fr(st), g == 0)
    def dmas(u):
        out = []
        if u + 2 < 16: out += wd(u + 2)
        if u % 2 == 0 and u//2 + 1 < 8: out += xd(u//2 + 1)
        return out
    hooks = {ux - 1: [lambda: epoch_issue_all(k, 112)], ux: [extras]}
    ph = None
    if fine: ph = {u: (lambda i=i: k.stamp(i)) for i, u in enumerate((0, 2, 5, 8, 11, 14), 1)}
    else: k.stamp(1)
    gemm2(k, 16, mfmas, reads, dmas, lambda u: [("W", u), ("X", u >> 1)], fill0=None, rper=rper, dper=dper, hooks=hooks, pre_hooks=ph)
    if fine:
        k.stamp(7); k.nostamp = True
    k.stamp(2)
    if epi_prio is not None: k.e(f"s_setprio {epi_prio}")
    epoch_check_all(k, 112)
    k.wait_vm("ex")
    tags = [EX + 3 + 4*i for i in range(6)]
    def zero():
        for r in tags: k.e(f"v_mov_b32 v{r}, 0")
        if bal:
            k.e("s_nop 1")
            return
        k.e("s_mov_b32 exec_lo, 0")
        for r in range(EX, EX + 24):
            if r not in tags: k.e(f"v_mov_b32 v{r}, 0")
        k.e("s_mov_b32 exec_lo, -1", "s_nop 1")
    tag_check(k, extras, tags + [102, 106], "x3", zero)
    for (t, _) in mf(EX, False): k.e(t)
    if post_loop: post_loop()
    k.e(f"v_mul_f32 v110, 0x{f2u(-LOG2E):08x}, v100", f"v_mul_f32 v111, 0x{f2u(-LOG2E):08x}, v104")
    k.e("v_lshlrev_b32 v10, 4, v1",
        "s_lshl_b32 s36, s25, 2", "s_lshl_b32 s37, s27, 1", "s_add_u32 s36, s36, s37", "s_mul_i32 s36, s36, 112",
        "s_lshl_b32 s37, s26, 3", "s_add_u32 s36, s36, s37", "s_lshl_b32 s37, s28, 2", "s_add_u32 s36, s36, s37",
        "s_lshl_b32 s36, s36, 10", f"s_add_u32 s36, s36, 0x{WS_HF:x}")
    k.e("s_nop 7")
    n = 0
    for b in range(2):
        for tb in range(2):
            g = acc(0, b, tb); uu = acc(1, b, tb)
            A = 110 + tb; SD = 101 + 4*tb
            if PK & 1:
                for r in range(0, 16, 2): k.e(f"v_pk_mul_f32 v[{g+r}:{g+r+1}], v[{g+r}:{g+r+1}], v[110:111] op_sel:[0,{tb}] op_sel_hi:[1,{tb}]")
                for r in range(16): k.e(f"v_exp_f32 v{g+r}, v{g+r}")
                k.e("s_nop 0")
                for r in range(0, 16, 2): k.e(f"v_pk_fma_f32 v[{g+r}:{g+r+1}], v[{g+r}:{g+r+1}], v[{SD-1}:{SD}], v[{SD-1}:{SD}] op_sel:[0,1,1] op_sel_hi:[1,1,1]")
                for r in range(16): k.e(f"v_rcp_f32 v{g+r}, v{g+r}")
                k.e("s_nop 0")
                for r in range(0, 16, 2): k.e(f"v_pk_mul_f32 v[{g+r}:{g+r+1}], v[{g+r}:{g+r+1}], v[{uu+r}:{uu+r+1}]")
            else:
                for r in range(16): k.e(f"v_mul_f32 v{g+r}, v{g+r}, v{A}")
                for r in range(16): k.e(f"v_exp_f32 v{g+r}, v{g+r}")
                for r in range(16): k.e(f"v_fma_f32 v{g+r}, v{g+r}, v{SD}, v{SD}")
                for r in range(16): k.e(f"v_rcp_f32 v{g+r}, v{g+r}")
                k.e("s_nop 0")
                for r in range(16): k.e(f"v_mul_f32 v{g+r}, v{g+r}, v{uu+r}")
            for j in range(2):
                d = 16 + 4*(n % 8); n += 1
                for i in range(4): k.e(f"v_cvt_pk_bf16_f32 v{d+i}, v{g+8*j+2*i}, v{g+8*j+2*i+1}")
                k.e(f"s_add_u32 s37, s36, {(tb*112 + b*2 + j)*1024}")
                k.vmem(f"buffer_store_dwordx4 v[{d}:{d+3}], v10, s[{SWS}:{SWS+3}], s37 offen sc1", "st")

def kF1(name="f1_fused_kernel", prio_e1=None, prio_e2=None, prio_g=None, epi_prio=1, post_prio=0, e4_prio=None, hsleep=2, osleep=2, qsleep=2,
        rot=True, ux1=11, ux3=11, dup=False, force_fb=False, nostats=False, gexit=0, notag=False, xal=False, touch1=False, fine1=False, mode1="x", mode3="x", touch3=0, rp1=5, dp1=2, rp3=4, dp3=1, ugo=None, gosleep=4, gomax=64, gp_touch=False, prio_e3=None, bal=False, tw=False, fine3=False, aexit=False, qnopoll=0, cpf=0, map1=0, wx=0, hoist=False, aexit2=0, pre=0, rsleep=0, lim1=16, qpipe=0, qgap=4, omod='', endwait=True, qback=None, hback=None, pback=None, tsleep=1, e2sc='sc1', hsc='sc1', latew=False, epearly=0, late=0, nolead=False, ofl_late=False, x1p=(5, 2), x3p=(4, 1)):
    global TSLEEP, EPEARLY, LATE
    TSLEEP = tsleep; EPEARLY = epearly; LATE = late
    k = KV(name, nvgpr=256)
    k.e("s_cmp_ge_u32 s2, 512", f"s_cbranch_scc1 L_end_{k.name}")
    fx = srd(k, 8, 0, SZ_X) + srd(k, 20, 72, WS_SIZE2)
    load_dbg(k)
    if cpf:
        Lp = k.newlabel("cpf"); Lq = k.newlabel("pc")
        k.e(f"s_cmp_ge_u32 s2, {cpf}", f"s_cbranch_scc1 {Lp}", "s_getpc_b64 s[36:37]")
        k.label(Lq)
        k.e(f"s_sub_u32 s36, s36, {Lq}-{k.name}", "s_subb_u32 s37, s37, 0", "v_lshlrev_b32 v250, 7, v0",
            "v_mov_b32 v249, s37", "v_add_co_u32 v248, vcc, s36, v250", "s_nop 1", "v_addc_co_u32 v249, vcc, 0, v249, vcc")
        k.vmem("global_load_dword v252, v[248:249], off", "cpf", opt=True)
        k.e("v_add_u32 v250, 0x8000, v250", f"v_cmp_gt_u32 vcc, L_code_end-{k.name}, v250", "v_add_co_u32 v248, s[38:39], 0x4000, v248" if False else "s_nop 0")
        k.e("s_and_saveexec_b64 s[38:39], vcc", "v_mov_b32 v249, s37", "v_add_co_u32 v248, vcc, s36, v250", "s_nop 1", "v_addc_co_u32 v249, vcc, 0, v249, vcc")
        k.vmem("global_load_dword v253, v[248:249], off", "cpf", opt=True)
        k.e("s_mov_b64 exec, s[38:39]")
        k.label(Lp)
    k.e("v_lshrrev_b32 v10, 6, v0", "s_nop 1", "v_readfirstlane_b32 s24, v10")
    k.e("s_cmp_ge_u32 s2, 256", "s_cbranch_scc1 L_f1_g")
    fx1 = srd(k, 12, 8, SZ_WQKV)
    if latew and mode1 == "x" and not KV.STAMP:
        k.e(*(fx + fx1))
        def first_dma():
            k.e("s_waitcnt lgkmcnt(0)")
            epoch_make(k, t=131)
    else:
        first_dma = None
        k.e("s_waitcnt lgkmcnt(0)"); k.e(*(fx + fx1))
        epoch_make(k)
    if prio_e1 is not None: k.e(f"s_setprio {prio_e1}")
    k.e("s_and_b32 s3, s2, 7", "s_lshr_b32 s4, s2, 3", "s_and_b32 s5, s3, 1", "s_lshl_b32 s26, s5, 2", "s_and_b32 s5, s4, 3", "s_add_u32 s26, s26, s5",
        "s_lshr_b32 s25, s3, 1", "s_lshl_b32 s25, s25, 3", "s_lshr_b32 s5, s4, 2", "s_add_u32 s25, s25, s5")
    k.e("s_and_b32 s53, s26, 3", "s_lshl_b32 s53, s53, 1", "s_add_u32 s53, s53, s25", "s_and_b32 s53, s53, 7")
    if map1:
        k.e("s_and_b32 s26, s4, 7", "s_lshl_b32 s25, s3, 2", "s_lshr_b32 s5, s4, 3", "s_add_u32 s25, s25, s5",
            "s_lshl_b32 s53, s5, 1", "s_add_u32 s53, s53, s26", "s_and_b32 s53, s53, 7")
    k.e("s_lshl_b32 s44, s3, 2", "s_and_b32 s5, s4, 3", "s_add_u32 s44, s44, s5", "s_lshr_b32 s45, s4, 2")
    k.stamp(0)
    if aexit:
        for i in range(1, 9): k.stamp(i)
        k.stamp_out(9, 0, sh=7); k.wait_vm_all(); k.e("s_waitcnt vmcnt(0)", "s_endpgm")
    def o_fill():
        k.e("v_mov_b32 v204, -1", "v_mov_b32 v205, -1", "v_mov_b32 v206, -1", "v_mov_b32 v207, -1", "v_lshlrev_b32 v203, 4, v1",
            "s_lshl_b32 s46, s45, 3", "s_lshl_b32 s47, s24, 1", "s_add_u32 s46, s46, s47", "s_lshl_b32 s46, s46, 5", "s_add_u32 s46, s46, s44",
            "s_lshl_b32 s46, s46, 10", f"s_add_u32 s46, s46, 0x{WS_OF:x}")
        k.vmem("buffer_store_dwordx4 v[204:207], v203, s[20:23], s46 offen sc1", "st")
        k.e("s_add_u32 s46, s46, 32768")
        k.vmem("buffer_store_dwordx4 v[204:207], v203, s[20:23], s46 offen sc1", "st")
    def go_store():
        L = w0_begin(k)
        k.e("s_lshl_b32 s46, s2, 7", f"s_add_u32 s46, s46, 0x{FLG_GO:x}", "v_mov_b32 v208, s46", "v_mov_b32 v209, 1", "s_mov_b64 exec, 1")
        k.vmem("buffer_store_dword v209, v208, s[20:23], 0 offen sc1", "go", opt=True)
        k.e("s_mov_b64 exec, -1")
        k.label(L)
    if mode1 == "x":
        e1x_body(k, first_dma=first_dma, exit_loop=(aexit2 in (1, 3)), noex=(aexit2 == 3), wx=wx, bal=bal, rot=rot, ux=ux1, pre_store=(None if ofl_late else o_fill), rper=x1p[0], dper=x1p[1], dup=dup, notag=notag, touch=touch1, fine=fine1)
    else:
        ph = {0: lambda: k.stamp(9), 1: lambda: k.stamp(10), 4: lambda: k.stamp(11), 10: lambda: k.stamp(12)} if fine1 else None
        hk = {11: [lambda: epoch_issue_all(k, 200)]}
        if isinstance(ugo, int): hk.setdefault(ugo, []).append(go_store)
        e1s_body(k, sc1="sc1", rot=rot, mst={"s": 0, "m": 1, "n": 2}[mode1], rper=rp1, dper=dp1, pre_hooks=ph, hooks=hk, pre_store=lambda: (epoch_check_all(k, 200), o_fill()))
    k.stamp(3)
    if ugo == "pub0": go_store()
    k.e("s_lshl_b32 s48, s26, 5", "s_add_u32 s48, s48, s25", "s_lshl_b32 s48, s48, 3", f"s_add_u32 s48, s48, 0x{FLG_QKV8:x}")
    publish(k, 48, vt=19)
    if ofl_late:
        assert pre and pre <= 5
        o_fill()
    k.stamp(4)
    if aexit2 == 2:
        for i in range(5, 9): k.stamp(i)
        k.stamp_out(9, 0, sh=7); k.e("s_waitcnt vmcnt(0)", "s_endpgm")
    if ugo == "pub": go_store()
    k.e("s_mov_b32 s25, s44", "s_mov_b32 s26, s45")
    if prio_e2 is not None: k.e(f"s_setprio {prio_e2}")
    def qkv_wait():
        k.e("v_and_b32 v20, 31, v1", "v_lshlrev_b32 v20, 3, v20", "s_lshr_b32 s36, s25, 2", "s_lshl_b32 s36, s36, 8", f"s_add_u32 s36, s36, 0x{FLG_QKV8:x}",
            "v_add_u32 v20, s36, v20")
        L = w0_begin(k)
        Ll = k.newlabel("qw")
        if qnopoll:
            for _ in range(qnopoll): k.e("s_sleep 16")
            k.e(f"s_branch {L}")
        k.e(f"s_mov_b32 s{SCNT}, 0")
        if qpipe:
            ld = lambda i: f"buffer_load_dwordx2 v[{28+2*i}:{29+2*i}], v20, s[20:23], 0 offen sc1"
            for i in range(qpipe - 1): k.e(ld(i), f"s_sleep {qgap}")
            k.label(Ll)
            for i in range(qpipe):
                k.e(ld((i + qpipe - 1) % qpipe), f"s_waitcnt vmcnt({qpipe - 1})", f"v_cmp_eq_u64 vcc, s[{SEP}:{SEP+1}], v[{28+2*i}:{29+2*i}]",
                    "s_nop 3", "s_cmp_eq_u64 vcc, -1", f"s_cbranch_scc1 {L}")
            k.e(f"s_add_u32 s{SCNT}, s{SCNT}, 1", f"s_cmp_lt_u32 s{SCNT}, 0x{SPIN_MAX:x}", f"s_cbranch_scc1 {Ll}")
        elif qback:
            t1, s1, t2, s2, s3 = qback
            La = k.newlabel("qa"); Lb = k.newlabel("qb"); Lc2 = k.newlabel("qc")
            k.label(Ll)
            k.e("buffer_load_dwordx2 v[22:23], v20, s[20:23], 0 offen sc1", f"s_add_u32 s{SCNT}, s{SCNT}, 1", "s_waitcnt vmcnt(0)",
                f"v_cmp_eq_u64 vcc, s[{SEP}:{SEP+1}], v[22:23]", "s_nop 3", "s_cmp_eq_u64 vcc, -1", f"s_cbranch_scc1 {L}",
                "s_bcnt1_i32_b64 s36, vcc", f"s_cmp_lt_u32 s36, {2*t1}", f"s_cbranch_scc1 {La}", f"s_cmp_lt_u32 s36, {2*t2}", f"s_cbranch_scc1 {Lb}",
                f"s_sleep {s3}", f"s_branch {Lc2}")
            k.label(La); k.e(f"s_sleep {s1}", f"s_branch {Lc2}")
            k.label(Lb); k.e(f"s_sleep {s2}")
            k.label(Lc2)
            k.e(f"s_cmp_lt_u32 s{SCNT}, 0x{SPIN_MAX:x}", f"s_cbranch_scc1 {Ll}")
        else:
            k.label(Ll)
            k.e("buffer_load_dwordx2 v[22:23], v20, s[20:23], 0 offen sc1", f"s_add_u32 s{SCNT}, s{SCNT}, 1", "s_waitcnt vmcnt(0)",
                f"v_cmp_eq_u64 vcc, s[{SEP}:{SEP+1}], v[22:23]", "s_nop 3", "s_cmp_eq_u64 vcc, -1", f"s_cbranch_scc1 {L}",
                f"s_sleep {qsleep}", f"s_cmp_lt_u32 s{SCNT}, 0x{SPIN_MAX:x}", f"s_cbranch_scc1 {Ll}")
        k.label(L)
        k.wait_lg_all()
        k.e("s_barrier")
        if ugo == "e2": go_store()
        k.stamp(5 - k.stamp_off)
    k.stamp_off = 5
    e2_body(k, sc1=e2sc, st_sc1="sc1", oflag="ep", pre_hook=qkv_wait, force_fb=force_fb, prehint=pre)
    k.stamp_off = 0
    k.wait_vm_all()
    k.stamp(8); k.stamp_out(13 if fine1 else 9, 0, sh=7); k.wait_vm_all()
    k.e("s_endpgm")
    fb = k.fb_code
    k.label("L_f1_g")
    k.vm = []; k.lg = []
    SD, SO, SX, SOUT = 84, 88, 8, 4
    fx3 = srd(k, 12, 32, SZ_WG) + srd(k, 16, 40, SZ_WG) + srd(k, SD, 48, SZ_WD) + srd(k, SO, 16, SZ_WO) + srd(k, SOUT, 56, SZ_X)
    k.e(f"s_load_dwordx2 s[{34 if hoist else 28}:{35 if hoist else 29}], s[0:1], 8")
    k.e("s_sub_u32 s3, s2, 256")
    k.e("s_waitcnt lgkmcnt(0)"); k.e(*(fx + fx3))
    if prio_g is not None: k.e(f"s_setprio {prio_g}")
    def go_clear(idx=3):
        if ugo is None: return
        L = w0_begin(k)
        k.e(f"s_lshl_b32 s36, s{idx}, 7", f"s_add_u32 s36, s36, 0x{FLG_GO:x}", "v_mov_b32 v62, s36", "v_mov_b32 v63, 0", "s_mov_b64 exec, 1",
            "buffer_store_dword v63, v62, s[20:23], 0 offen sc1", "s_mov_b64 exec, -1")
        k.label(L)
    def go_wait():
        if ugo is None: return
        L = w0_begin(k)
        Ll = k.newlabel("go")
        k.e("s_waitcnt vmcnt(0)", "s_mov_b32 s38, 0", "s_mov_b64 exec, 1")
        k.label(Ll)
        k.e("buffer_load_dword v63, v62, s[20:23], 0 offen sc1", "s_add_u32 s38, s38, 1", "s_waitcnt vmcnt(0)", "v_readfirstlane_b32 s39, v63", "s_nop 3",
            "s_cmp_eq_u32 s39, 1", f"s_cbranch_scc1 {Ll}x", f"s_sleep {gosleep}", f"s_cmp_lt_u32 s38, {gomax}", f"s_cbranch_scc1 {Ll}")
        k.label(Ll + "x")
        k.e("s_mov_b64 exec, -1")
        k.label(L)
        k.e("s_barrier")
    k.stamp(0)
    go_clear()
    if gexit == 1: k.e("s_endpgm")
    def role3():
        k.e("s_and_b32 s92, s3, 7", "s_lshr_b32 s93, s3, 3")
        k.e("s_and_b32 s26, s92, 1", "s_mul_i32 s26, s26, 7", "s_lshr_b32 s94, s93, 2", "s_add_u32 s26, s26, s94",
            "s_lshr_b32 s25, s92, 1", "s_lshl_b32 s25, s25, 2", "s_and_b32 s95, s93, 3", "s_add_u32 s25, s25, s95")
        k.e("s_lshl_b32 s53, s95, 1", "s_add_u32 s53, s53, s94", "s_and_b32 s53, s53, 7")
    if hoist:
        role3()
        stats_role3(k, SWQ=34, mid=lambda: e3x_body(k, part="pre", bal=bal, rot=rot))
    elif not nostats: (stats_role3(k) if bal else stats_role2(k, xal=xal))
    if gexit == 2: k.e("s_waitcnt vmcnt(0)", "s_endpgm")
    e4 = E4F(k, SD, SO, 20, SX, SOUT, hsleep=hsleep, osleep=osleep, ep=True)
    c = e4
    k.e("s_and_b32 s92, s3, 7", "s_lshr_b32 s93, s3, 3",
        f"s_and_b32 s{c.SRB}, s93, 3", "s_lshl_b32 s94, s92, 2", f"s_add_u32 s{c.SRB}, s{c.SRB}, s94", f"s_lshr_b32 s{c.SCB}, s93, 2")
    k.e("s_cmp_ge_u32 s2, 480", "s_cbranch_scc1 L_f1_pf")
    k.e("s_and_b32 s26, s92, 1", "s_mul_i32 s26, s26, 7", "s_lshr_b32 s94, s93, 2", "s_add_u32 s26, s26, s94",
        "s_lshr_b32 s25, s92, 1", "s_lshl_b32 s25, s25, 2", "s_and_b32 s95, s93, 3", "s_add_u32 s25, s25, s95")
    k.e("s_lshl_b32 s53, s95, 1", "s_add_u32 s53, s53, s94", "s_and_b32 s53, s53, 7")
    def touchW(vd=60):
        a = 61
        k.e(f"s_and_b32 s{c.SC}, s{c.SRB}, 3", f"s_mul_i32 s{c.SK}, s{c.SC}, {112*1024}", f"s_add_u32 s{c.SK}, s{c.SK}, s{c.SDO}",
            f"s_lshl_b32 s{c.ST}, s{c.SCB}, 7", f"v_lshlrev_b32 v{a}, 10, v1", f"v_add_u32 v{a}, s{c.ST}, v{a}")
        k.vmem(f"buffer_load_dword v{vd}, v{a}, s[{c.SD}:{c.SD+3}], s{c.SK} offen", "touch")
        k.e(f"s_add_u32 s{c.SK}, s{c.SK}, 65536", "s_mov_b32 exec_hi, 0xffff")
        k.vmem(f"buffer_load_dword v{vd+2}, v{a}, s[{c.SD}:{c.SD+3}], s{c.SK} offen", "touch")
        k.e(f"s_lshl_b32 s{c.SK}, s{c.SC}, 15", f"s_add_u32 s{c.SK}, s{c.SK}, s{c.SWO}", "s_mov_b32 exec_hi, 0")
        k.vmem(f"buffer_load_dword v{vd+3}, v{a}, s[{c.SO}:{c.SO+3}], s{c.SK} offen", "touch")
        k.e("s_mov_b32 exec_hi, -1")
    def post_loop():
        k.e("s_barrier")
        e4.setup()
        for s in range(c.DEPTH): e4.issueW(s)
        if tw: touchW()
    def touch_w3():
        if touch3 in (0, 3): go_wait()
        if not touch3: return
        k.e("v_lshrrev_b32 v66, 1, v1", "v_mul_u32_u24 v66, 3584, v66", "v_and_b32 v67, 1, v1", "v_lshl_add_u32 v66, v67, 7, v66",
            "s_lshl_b32 s36, s95, 7", "s_lshl_b32 s37, s24, 5", "s_add_u32 s36, s36, s37", "s_mul_i32 s36, s36, 3584", "s_lshl_b32 s37, s26, 8", "s_add_u32 s36, s36, s37")
        k.vmem("buffer_load_dword v74, v66, s[12:15], s36 offen", "touch")
        k.vmem("buffer_load_dword v75, v66, s[16:19], s36 offen", "touch")
        if touch3 == 2: k.wait_vm("touch")
        if touch3 in (1, 2): go_wait()
    if prio_e3 is not None: k.e(f"s_setprio {prio_e3}")
    if mode3 == "x":
        e3x_body(k, part=("main" if hoist else None), bal=bal, fine=fine3, epi_prio=epi_prio, post_loop=post_loop, rot=rot, ux=ux3, rper=x3p[0], dper=x3p[1])
    else:
        e3s_body(k, st_sc1="sc1", epi_prio=epi_prio, post_loop=post_loop, rot=rot, outb=64, pre_dma=touch_w3, mst={"s": 0, "m": 1, "n": 2}[mode3], rper=rp3, dper=dp3,
                 hooks={11: [lambda: epoch_issue_all(k, 124)], 13: [lambda: epoch_check_all(k, 124)]})
    k.e("s_lshl_b32 s36, s25, 1", "s_add_u32 s36, s36, s27", "s_lshl_b32 s36, s36, 8", "s_lshl_b32 s37, s26, 1", "s_add_u32 s37, s37, s28",
        "s_lshl_b32 s37, s37, 3", "s_add_u32 s36, s36, s37", f"s_add_u32 s36, s36, 0x{FLG_H8:x}", "v_mov_b32 v56, s36",
        f"v_mov_b32 v58, s{SEP}", f"v_mov_b32 v59, s{SEP+1}")
    k.stamp(3)
    k.wait_vm_all()
    if gexit == 3:
        ns = getattr(k, "nostamp", False); k.stamp_out(8, 0x40000, sh=7); k.e("s_waitcnt vmcnt(0)", "s_endpgm")
    k.stamp(4)
    k.e("s_mov_b64 exec, 1")
    k.vmem("buffer_store_dwordx2 v[58:59], v56, s[20:23], 0 offen sc1", "flag")
    k.e("s_mov_b64 exec, -1")
    if post_prio is not None: k.e(f"s_setprio {post_prio}")
    k.e("s_branch L_f1_e4")
    k.label("L_f1_pf")
    if gexit == 3: k.e("s_endpgm")
    if hoist: k.e("s_waitcnt vmcnt(0)", "s_barrier")
    k.vm = []; k.lg = []
    k.e("v_and_b32 v1, 63, v0")
    if gp_touch:
        k.e("s_sub_u32 s99, s3, 224")
        go_wait()
        k.e("s_lshl_b32 s36, s99, 8", "v_add_u32 v60, s36, v0", "v_lshlrev_b32 v60, 7, v60", "s_mov_b32 s36, 0x100000")
        k.vmem(f"buffer_load_dword v61, v60, s[{SD}:{SD+3}], 0 offen", "touch")
        k.vmem(f"buffer_load_dword v62, v60, s[{SD}:{SD+3}], s36 offen", "touch")
        k.vmem(f"buffer_load_dword v63, v60, s[{SO}:{SO+3}], 0 offen", "touch")
    epoch_issue_all(k, 112)
    k.stamp(1); k.stamp(2); k.stamp(3); k.stamp(4)
    e4.setup()
    epoch_check_all(k, 112)
    for s in range(c.DEPTH): e4.issueW(s)
    if post_prio is not None: k.e(f"s_setprio {post_prio}")
    k.label("L_f1_e4")
    k.vm = [(("W", s), False) for s in range(c.DEPTH) for _ in range(2)] + [("flag", True)]
    k.lg = []
    e4.e4_prio = e4_prio; e4.post_prio = post_prio; e4.pre = pre; e4.rsleep = rsleep; e4.lim1 = lim1; e4.omod = omod; e4.hback = hback; e4.nolead = nolead; e4.hsc = hsc; e4.pback = pback
    e4.body(st=(5, 6))
    if endwait: k.wait_vm_all()
    k.stamp(7); k.stamp_out(8, 0x40000, sh=7); k.wait_vm_all()
    k.label(f"L_end_{k.name}")
    k.e("s_endpgm")
    fb()
    k.emit_tails()
    k.label("L_code_end")
    k.e("s_endpgm")
    return k

def build(fn, pk=0, **kw):
    global PK
    PK = pk
    import eng
    eng.EPK = pk & 8; eng.EPK2 = pk & 16
    k = kF1(**kw)
    txt = build_file([(k.name, (512,1,1), (256,1,1), 81920)], [k])
    open(fn, "w").write(txt)
    e = haz.check_text(txt)
    for x in e: print(x)
    print(fn, len(e), "hazards;", len(txt), "bytes")

if __name__ == "__main__":
    build("f1.s")
    KV.STAMP = True
    build("f1st.s")
```

```python
from f1 import *
import f1
B = dict(pre=3, osleep=1, omod="sc1", bal=True, prio_e1=3, prio_e2=0, qback=(22, 32, 30, 10, 2), hback=(0x7f, 4, 32, 7, 8), tsleep=16, ux1=13, ux3=14, latew=True, epearly=1, nolead=True, ofl_late=True)
def v(fn, **kw):
    d = dict(B); d.update(kw); build(f"exp/{fn}.s", **d)
v("u1_chk")
v("t1", x1p=(5, 3))
v("t2", x3p=(4, 2))
v("t3", x1p=(7, 3), x3p=(6, 2))
v("t4", x3p=(3, 1))
v("t5", x1p=(4, 1))
```
